```python
import torch

def _softmax(x, axis=-1):
    return torch.softmax(x, dim=axis)
def _gelu(x):
    return torch.nn.functional.gelu(x, approximate="tanh")
def _silu(x):
    return torch.nn.functional.silu(x)
def _sigmoid(x):
    return torch.sigmoid(x)
def _layernorm(x, axis=-1, eps=1e-5):
    m = x.mean(dim=axis, keepdim=True)
    v = x.var(dim=axis, keepdim=True, unbiased=False)
    return (x - m) / torch.sqrt(v + eps)
def _scatter_add(tgt, idx, src, axis=0):
    return tgt.clone().index_add_(axis, idx, src)
def _segment_sum(src, seg, n):
    out = torch.zeros((n,) + src.shape[1:], dtype=src.dtype)
    return out.index_add_(0, seg, src)
def _pad(x, pw):
    flat = tuple(v for pair in reversed(pw) for v in pair)
    return torch.nn.functional.pad(x, flat)

kernel_name = 'gated_mix__ssm_conv_s4__mha_block__prompt'

def setup_inputs():

    _w = (lambda a: (lambda t: t.to(torch.bfloat16) if t.is_floating_point() else t)(torch.as_tensor(a)))
    def _A_setup():
        B, L, D, N = 1, 2048, 512, 128
        A_re = -(lambda _x: torch.exp(torch.as_tensor(_x)))((lambda *s: torch.randn(*s, dtype=torch.bfloat16) * 6.4)(D, N))
        A_im = torch.pi * (lambda *s: torch.randn(*s, dtype=torch.bfloat16) * 0.1)(D, N)
        B_re = (lambda *s: torch.randn(*s, dtype=torch.bfloat16) * 0.2)(D, N)
        B_im = (lambda *s: torch.randn(*s, dtype=torch.bfloat16) * 0.2)(D, N)
        C_re = (lambda *s: torch.randn(*s, dtype=torch.bfloat16) * 0.2)(D, N)
        C_im = (lambda *s: torch.randn(*s, dtype=torch.bfloat16) * 0.2)(D, N)
        log_dt = (lambda *s: torch.randn(*s, dtype=torch.bfloat16) * 0.1)(D) * 0.5 - 4.0
        Dskip = (lambda *s: torch.randn(*s, dtype=torch.bfloat16) * 0.1)(D)
        return {
            "u": _w((lambda *s: torch.randn(*s, dtype=torch.bfloat16) * 0.05)(B, L, D)),
            "A_re": _w(A_re),
            "A_im": _w(A_im),
            "B_re": _w(B_re),
            "B_im": _w(B_im),
            "C_re": _w(C_re),
            "C_im": _w(C_im),
            "log_dt": _w(log_dt),
            "Dskip": _w(Dskip),
        }
    _A_in = _A_setup()

    def _B_setup():
        B, S, D, H = 1, 2048, 512, 32
        return {
            "x": _w((lambda *s: torch.randn(*s, dtype=torch.bfloat16) * 0.05)(B, S, D)),
            "wqkv": _w((lambda *s: torch.randn(*s, dtype=torch.bfloat16) * 0.8)(D, 3 * D)),
            "wo": _w((lambda *s: torch.randn(*s, dtype=torch.bfloat16) * 0.05)(D, D)),
        }
    _B_in = _B_setup()

    return {
        "A_u": _A_in["u"],
        "A_A_re": _A_in["A_re"],
        "A_A_im": _A_in["A_im"],
        "A_B_re": _A_in["B_re"],
        "A_B_im": _A_in["B_im"],
        "A_C_re": _A_in["C_re"],
        "A_C_im": _A_in["C_im"],
        "A_log_dt": _A_in["log_dt"],
        "A_Dskip": _A_in["Dskip"],
        "B_x": _B_in["x"],
        "B_wqkv": _B_in["wqkv"],
        "B_wo": _B_in["wo"],
        "gate_w": _w((lambda *s: torch.randn(*s, dtype=torch.bfloat16) * 0.05)(512) * 16.0),
    }

def reference(A_u, A_A_re, A_A_im, A_B_re, A_B_im, A_C_re, A_C_im, A_log_dt, A_Dskip, B_x, B_wqkv, B_wo, gate_w):
    def _A_ref(u, A_re, A_im, B_re, B_im, C_re, C_im, log_dt, Dskip):
        Bsz, L, D = u.shape
        dt = torch.exp(log_dt)[:, None]
        A = A_re + 1j * A_im
        Bc = B_re + 1j * B_im
        Cc = C_re + 1j * C_im
        logdA = dt * A
        dB = dt * Bc
        l = (lambda x, dt: x.to(dt))(torch.arange(L), A_re.dtype)
        P = torch.exp(logdA[:, :, None] * l[None, None, :])
        K = torch.einsum("dn,dnl,dn->dl", Cc, P, dB).real
        L2 = 2 * L
        Kp = _pad(K, ((0, 0), (0, L)))
        up = (lambda x, *d: x.permute(*d))(u, 0, 2, 1)
        up = _pad(up, ((0, 0), (0, 0), (0, L)))
        Kf = (lambda x, axes=(-2,-1): torch.fft.rfft2(x.float(), dim=axes))(Kp[:, None, :], axes=(-2, -1))
        Uf = (lambda x, axes=(-2,-1): torch.fft.rfft2(x.float(), dim=axes))(up[:, :, None, :], axes=(-2, -1))
        Yf = Uf * Kf[None, :, :, :]
        y = (lambda x, s, axes=(-2,-1): torch.fft.irfft2(x, s=s, dim=axes).to(torch.bfloat16))(Yf, (1, L2), axes=(-2, -1))[:, :, 0, :L]
        y = (lambda x, *d: x.permute(*d))(y, 0, 2, 1) + u * Dskip[None, None, :]
        return y

    def _B_ref(x, wqkv, wo):
        B, S, D = x.shape
        H = 32
        Dh = D // H
        qkv = (lambda x, *d: x.permute(*d))((x @ wqkv).reshape(B, S, 3, H, Dh), 2, 0, 3, 1, 4)
        q, k, v = qkv[0], qkv[1], qkv[2]
        scores = torch.einsum("bhqd,bhkd->bhqk", q, k) * (Dh ** -0.5)
        p = _softmax(scores, axis=-1)
        o = torch.einsum("bhqk,bhkd->bhqd", p, v)
        return (lambda x, *d: x.permute(*d))(o, 0, 2, 1, 3).reshape(B, S, D) @ wo

    x = A_u
    g = _sigmoid((x * gate_w).sum(-1, keepdims=True))
    a = _A_ref(x, A_A_re, A_A_im, A_B_re, A_B_im, A_C_re, A_C_im, A_log_dt, A_Dskip)
    b = _B_ref(x, B_wqkv, B_wo)
    return g * a + (1 - g) * b
```

```python
import sys, math, struct

NAME = "gated_mix__ssm_conv_s4__mha_block__prompt"
OPT = dict(stamp=0, rot=0, fs=64, spin=200000)
for a in sys.argv[2:]:
    k, v = a.split("=")
    OPT[k] = int(v)
STAMP = OPT["stamp"]
FS = OPT["fs"]
FSH = int(math.log2(FS))

L = []
def E(s):
    for x in s.split("\n"):
        x = x.strip()
        if x:
            L.append(("" if x.endswith(":") else "    ") + x)
def fbits(x): return "0x%08x" % struct.unpack("<I", struct.pack("<f", x))[0]
def vr(a, n): return f"v[{a}:{a+n-1}]"
def sr(a, n): return f"s[{a}:{a+n-1}]"

WS_KV = 0
WS_OF = 4 << 20
WS_AT = 6 << 20
WS_FL = 8 << 20
WS_ST = 10 << 20
F1, F2, F3 = 0, 1024, 2048
SLOT = 28672; WPART = 7168
KG = 114688; KGS = 8704
KCP = 4160 + 64 - 4160 % 256 + (0 if 4160 % 256 <= 64 else 256)
KCP = 4160
assert KCP % 256 == 64
UR = KG + 4 * KGS; URS = 4576
GP = UR + 2 * URS
CNT = GP + 1024
LDS_BYTES = CNT + 64
EXCH = 0; RED = 24576; REDS = 4608; CRED = 43008; WST = 59392; OFL = 43008
assert LDS_BYTES <= 163840
sW, sHP, sRB, sCH, sROT = 3, 4, 5, 6, 7
SRDX, SRDW = 8, 12
pX, pAre, pAim, pBre, pBim, pCre, pCim, pLdt = 16, 18, 20, 22, 24, 26, 28, 30
pDsk, pW, pWo, pGw, pOut, pDbg, pWs = 32, 36, 38, 40, 42, 44, 46
pFL = 34
sT = 48
sSPIN = 62
sST = 64

nstamp = {"m": 0, "h": 0}
def stamp(role):
    if not STAMP: return
    i = nstamp[role]; nstamp[role] += 1
    assert i < 16
    E(f"s_memrealtime {sr(sST+2*i,2)}\ns_waitcnt lgkmcnt(0)")
def stamp_flush(role):
    if not STAMP: return
    E(f"s_lshl_b32 s{sT}, s2, 3\ns_add_u32 s{sT}, s{sT}, s{sW}\ns_lshl_b32 s{sT}, s{sT}, 6\ns_add_u32 s{sT}, s{sT}, {WS_ST}\nv_mov_b32 v2, s{sT}")
    for i in range(nstamp[role]):
        E(f"v_mov_b32 v3, s{sST+2*i}\nglobal_store_dword v2, v3, {sr(pWs,2)} offset:{4*i}")
    E(f"s_getreg_b32 s{sT}, hwreg(HW_REG_XCC_ID)\nv_mov_b32 v3, s{sT}\nglobal_store_dword v2, v3, {sr(pWs,2)} offset:60")

lab = [0]
def newlab(p):
    lab[0] += 1
    return f"L_{p}{lab[0]}"

def poll_global(vaddr, base, vtmp):
    l = newlab("poll"); d = newlab("polld")
    E(f"""
    s_mov_b32 s{sSPIN}, {OPT['spin']}
    {l}:
    global_load_dword v{vtmp}, v{vaddr}, {sr(base,2)} sc1
    s_sub_u32 s{sSPIN}, s{sSPIN}, 1
    s_cbranch_scc1 {d}
    s_waitcnt vmcnt(0)
    v_cmp_ne_u32 vcc, 0, v{vtmp}
    s_nop 1
    s_cmp_eq_u64 vcc, -1
    s_cbranch_scc0 {l}
    {d}:
    s_waitcnt vmcnt(0)
    """)
def lds_arrive(vaddr, vone):
    E(f"""
    s_waitcnt lgkmcnt(0)
    s_mov_b64 exec, 1
    ds_add_u32 v{vaddr}, v{vone}
    s_mov_b64 exec, -1
    """)
def lds_wait(vaddr, vtmp, n):
    l = newlab("lw"); d = newlab("lwd")
    E(f"""
    s_mov_b32 s{sSPIN}, {OPT['spin']*8}
    {l}:
    ds_read_b32 v{vtmp}, v{vaddr}
    s_sub_u32 s{sSPIN}, s{sSPIN}, 1
    s_cbranch_scc1 {d}
    s_waitcnt lgkmcnt(0)
    v_readfirstlane_b32 s{sSPIN+1}, v{vtmp}
    s_nop 1
    s_cmp_ge_u32 s{sSPIN+1}, {n}
    s_cbranch_scc0 {l}
    {d}:
    s_waitcnt lgkmcnt(0)
    """)

def prologue():
    E(f"""
    s_cmp_ge_u32 s2, 256
    s_cbranch_scc1 L_end
    s_load_dwordx16 s[16:31], s[0:1], 0
    s_load_dwordx16 s[32:47], s[0:1], 64
    v_lshrrev_b32 v2, 6, v0
    v_and_b32 v1, 63, v0
    v_readfirstlane_b32 s{sW}, v2
    s_lshr_b32 s{sT}, s2, 3
    s_and_b32 s{sHP}, s2, 1
    s_lshl_b32 s{sHP}, s{sHP}, 3
    s_and_b32 s{sT+1}, s{sT}, 7
    s_or_b32 s{sHP}, s{sHP}, s{sT+1}
    s_bfe_u32 s{sRB}, s2, 0x20001
    s_lshl_b32 s{sRB}, s{sRB}, 2
    s_lshr_b32 s{sT+1}, s{sT}, 3
    s_or_b32 s{sRB}, s{sRB}, s{sT+1}
    s_and_b32 s{sCH}, s2, 7
    s_lshl_b32 s{sCH}, s{sCH}, 5
    s_or_b32 s{sCH}, s{sCH}, s{sT}
    s_lshl_b32 s{sCH}, s{sCH}, 1
    """)
    if OPT["rot"] == 0:
        E(f"s_mov_b32 s{sROT}, 0")
    elif OPT["rot"] == 1:
        E(f"s_xor_b32 s{sROT}, s{sHP}, s{sRB}\ns_and_b32 s{sROT}, s{sROT}, 1\ns_lshl_b32 s{sROT}, s{sROT}, 2")
    else:
        E(f"s_lshl_b32 s{sROT}, s{sRB}, 1\ns_add_u32 s{sROT}, s{sROT}, s{sHP}\ns_and_b32 s{sROT}, s{sROT}, 7")
    E(f"""
    s_cmp_ge_u32 s{sW}, 4
    s_cbranch_scc1 L_helper
    """)

def main_wave():
    vXD = 4
    vWD = 8
    vXA = 10
    vFB = 24
    aA, aB, aV = 72, 88, 104
    sXO, sWO, sM0 = sT + 2, sT + 3, sT + 4
    E(f"""
    s_lshl_b32 s{sT}, s{sRB}, 2
    s_add_u32 s{sT}, s{sT}, s{sW}
    s_lshl_b32 s{sT}, s{sT}, 15
    v_lshrrev_b32 v2, 3, v1
    v_lshl_add_u32 v2, v2, 10, s{sT}
    v_lshrrev_b32 v3, 4, v1
    v_xor_b32 v3, v3, v1
    v_and_b32 v3, 7, v3
    v_lshl_add_u32 v{vXD}, v3, 4, v2
    v_xor_b32 v{vXD+1}, 64, v{vXD}
    v_add_u32 v{vXD+1}, 7168, v{vXD+1}
    v_add_u32 v{vXD+2}, 14336, v{vXD}
    v_add_u32 v{vXD+3}, 14336, v{vXD+1}
    s_mul_i32 s{sT}, s{sW}, 49152
    s_lshl_b32 s{sT+1}, s{sHP}, 6
    s_add_u32 s{sT}, s{sT}, s{sT+1}
    v_lshrrev_b32 v2, 2, v1
    v_mul_u32_u24 v2, 3072, v2
    v_and_b32 v3, 3, v1
    v_lshlrev_b32 v3, 4, v3
    v_add3_u32 v{vWD}, v2, v3, s{sT}
    v_xor_b32 v{vWD+1}, 32, v{vWD}
    s_mul_i32 s{sM0}, s{sW}, {WPART}
    s_waitcnt lgkmcnt(0)
    s_mov_b32 s{SRDX}, s{pX}
    s_mov_b32 s{SRDX+1}, s{pX+1}
    s_mov_b32 s{SRDX+2}, {2048*1024}
    s_mov_b32 s{SRDX+3}, 0x00020000
    s_mov_b32 s{SRDW}, s{pW}
    s_mov_b32 s{SRDW+1}, s{pW+1}
    s_mov_b32 s{SRDW+2}, {512*3072}
    s_mov_b32 s{SRDW+3}, 0x00020000
    """)
    stamp("m")
    def dma(i):
        slot = i & 3
        o = [f"s_add_u32 s{sT}, s{sROT}, {i}", f"s_and_b32 s{sT}, s{sT}, 7", f"s_lshl_b32 s{sXO}, s{sT}, 7",
             f"s_add_u32 m0, s{sM0}, {slot*SLOT+4096}", f"s_mul_i32 s{sWO}, s{sT}, 196608"]
        for seg in range(3):
            o.append(f"buffer_load_dwordx4 v{vWD+(seg==1)}, {sr(SRDW,4)}, s{sWO} offen offset:{seg*1024} lds")
        o += [f"s_add_u32 m0, s{sM0}, {slot*SLOT}", "s_nop 0"]
        for j in range(4):
            o.append(f"buffer_load_dwordx4 v{vXD+j}, {sr(SRDX,4)}, s{sXO} offen offset:{j*1024} lds")
        return o
    for i in range(4):
        E("\n".join(dma(i)))
    E(f"""
    s_add_u32 s{pFL}, s{pWs}, {WS_FL}
    s_addc_u32 s{pFL+1}, s{pWs+1}, 0
    v_and_b32 v2, 31, v1
    v_lshl_add_u32 v2, v2, 7, s{sM0}
    v_bfe_u32 v3, v1, 1, 3
    v_lshrrev_b32 v{vXA+1}, 5, v1
    v_xor_b32 v3, v3, v{vXA+1}
    v_lshl_add_u32 v{vXA}, v3, 4, v2
    v_xor_b32 v{vXA+1}, 32, v{vXA}
    v_xor_b32 v{vXA+2}, 64, v{vXA}
    v_xor_b32 v{vXA+3}, 0x60, v{vXA}
    v_lshrrev_b32 v2, 5, v1
    v_lshlrev_b32 v2, 3, v2
    v_bfe_u32 v3, v1, 2, 2
    v_add_u32 v2, v2, v3
    v_lshlrev_b32 v2, 6, v2
    v_and_b32 v3, 3, v1
    v_lshl_add_u32 v2, v3, 3, v2
    v_add_u32 v2, 4096, v2
    v_bfe_u32 v3, v1, 4, 1
    v_mul_u32_u24 v{vXA+4}, 1056, v3
    v_add_u32 v{vXA+4}, v{vXA+4}, v2
    v_xor_b32 v{vXA+5}, 32, v{vXA+4}
    v_lshl_add_u32 v{vXA+6}, v3, 5, v2
    v_add_u32 v{vXA+6}, 2048, v{vXA+6}
    """)
    for j in range(7):
        E(f"v_add_u32 v{vXA+7+j}, {2*SLOT}, v{vXA+j}")
    def reads(n):
        i, s = n >> 2, n & 3
        slot = i & 3
        a = vXA + 7 * (slot >> 1)
        so = (slot & 1) * SLOT
        f = vFB + 16 * (n % 3)
        o = [f"ds_read_b128 {vr(f,4)}, v{a+s} offset:{so}"]
        for c in range(3):
            o.append(f"ds_read_b64_tr_b16 {vr(f+4+4*c,2)}, v{a+4+c} offset:{so+s*WPART}")
            o.append(f"ds_read_b64_tr_b16 {vr(f+6+4*c,2)}, v{a+4+c} offset:{so+s*WPART+256}")
        return o
    E("s_waitcnt vmcnt(21)\ns_barrier")
    stamp("m")
    E("\n".join(reads(0) + reads(1)))
    vmw = {1: 14, 2: 14, 3: 14, 4: 14, 5: 14, 6: 7, 7: 0}
    for n in range(32):
        f = vFB + 16 * (n % 3)
        c = (lambda a: "0" if n == 0 else vr(a, 16))
        m = [f"v_mfma_f32_32x32x16_bf16 {vr(aA,16)}, {vr(f+4,4)}, {vr(f,4)}, {c(aA)}",
             f"v_mfma_f32_32x32x16_bf16 {vr(aB,16)}, {vr(f+8,4)}, {vr(f,4)}, {c(aB)}",
             f"v_mfma_f32_32x32x16_bf16 {vr(aV,16)}, {vr(f,4)}, {vr(f+12,4)}, {c(aV)}"]
        r = reads(n + 2) if n + 2 < 32 else []
        E(f"s_waitcnt lgkmcnt({7 if n < 31 else 0})")
        E(m[0])
        d = []
        if (n + 2) % 4 == 0 and n + 2 < 32:
            b = (n + 2) >> 2
            E(f"s_waitcnt vmcnt({vmw[b]}) lgkmcnt(0)\ns_barrier")
            if b + 3 <= 7: d = dma(b + 3)
        E("\n".join(r[:3])); E(m[1]); E("\n".join(r[3:])); E(m[2])
        E("\n".join(d))
    stamp("m")
    vQ = 4
    vIDX, vKA, vVA, vFA = 20, 21, 22, 23
    SA, SB = 24, 40
    vP = 24
    vKV = 192
    vO = 128
    vT = 56
    sX, sZ, sKVb, sKV, sJ, sMask, sCnt = sT, sT + 1, sT + 2, sT + 4, sT + 6, sT + 8, sT + 7
    qs = fbits(0.25 * math.log2(math.e))
    E(f"""
    v_and_b32 v{vT}, 15, v1
    v_lshlrev_b32 v{vT}, 2, v{vT}
    global_load_dword v{vT+1}, v{vT}, {sr(pDbg,2)} sc1
    s_and_b32 s{sX}, s{sW}, 1
    s_lshr_b32 s{sZ}, s{sW}, 1
    s_lshl_b32 s{sT+10}, s{sRB}, 2
    s_add_u32 s{sT+10}, s{sT+10}, s{sW}
    s_lshl_b32 s{sT+10}, s{sT+10}, 11
    s_lshl_b32 s{sT+11}, s{sHP}, 18
    s_add_u32 s{sT+10}, s{sT+10}, s{sT+11}
    v_lshlrev_b32 v{vKA}, 4, v1
    v_add_u32 v{vT+2}, s{sT+10}, v{vKA}
    v_add_u32 v{vT+3}, 0x20000, v{vT+2}
    v_and_b32 v{vVA}, 15, v1
    v_lshrrev_b32 v{vT+4}, 5, v1
    v_lshl_add_u32 v{vVA}, v{vT+4}, 4, v{vVA}
    v_lshlrev_b32 v{vVA}, 4, v{vVA}
    v_bfe_u32 v{vT+4}, v1, 4, 1
    v_lshlrev_b32 v{vT+4}, 17, v{vT+4}
    v_add3_u32 v{vT+4}, v{vT+4}, v{vVA}, s{sT+10}
    s_mul_i32 s{sT+11}, s{sW}, 6144
    v_add_u32 v{vT+5}, s{sT+11}, v{vKA}
    s_mov_b32 s{sT+11}, {qs}
    """)
    for j in range(4):
        E(f"v_cvt_pk_bf16_f32 v{vP+8+j}, v{aA+8+2*j}, v{aA+9+2*j}")
    E(f"global_store_dwordx4 v{vT+2}, {vr(vP+8,4)}, {sr(pWs,2)} sc1")
    for j in range(4):
        E(f"v_cvt_pk_bf16_f32 v{vP+12+j}, v{aB+8+2*j}, v{aB+9+2*j}")
    E(f"global_store_dwordx4 v{vT+3}, {vr(vP+12,4)}, {sr(pWs,2)} sc1")
    for j in range(8):
        E(f"v_cvt_pk_bf16_f32 v{vP+16+j}, v{aV+2*j}, v{aV+1+2*j}")
    E("s_nop 1")
    for a in (0, 1, 4, 5):
        E(f"v_permlane32_swap_b32 v{vP+16+a}, v{vP+18+a}")
    E(f"global_store_dwordx4 v{vT+4}, {vr(vP+16,4)}, {sr(pWs,2)} offset:1024 sc1")
    E(f"global_store_dwordx4 v{vT+4}, {vr(vP+20,4)}, {sr(pWs,2)} offset:1536 sc1")
    for a, o in ((aA, 0), (aB, 4)):
        for j in range(8):
            E(f"v_mul_f32 v{a+j}, s{sT+11}, v{a+j}")
        for j in range(4):
            E(f"v_cvt_pk_bf16_f32 v{vP+o+j}, v{a+2*j}, v{a+1+2*j}")
    for j in range(6):
        E(f"ds_write_b128 v{vT+5}, {vr(vP+4*j,4)} offset:{EXCH+1024*j}")
    E(f"""
    v_mov_b32 v{vIDX}, 0xdddddddd
    v_and_b32 v{vT+6}, 27, v1
    v_cmp_eq_u32 vcc, 16, v{vT+6}
    v_mov_b32 v{vT+6}, 0x3f803f80
    s_mov_b32 s{sMask}, 0x0000ffff
    s_mov_b32 s{sMask+1}, 0x0000ffff
    v_cndmask_b32 v{vT+6}, 0, v{vT+6}, vcc
    """)
    for s in range(4):
        for j in range(8):
            E(f"v_mov_b32 v{vKV+12*s+4+j}, v{vT+6}")
    E(f"""
    s_lshl_b32 s{sT+10}, s{sX}, 10
    s_mul_i32 s{sT+11}, s{sZ}, 12288
    s_add_u32 s{sT+12}, s{sT+10}, s{sT+11}
    v_add_u32 v{vT+7}, s{sT+12}, v{vKA}
    s_sub_u32 s{sT+12}, s{sT+10}, s{sT+11}
    s_add_u32 s{sT+12}, s{sT+12}, 12288
    v_add_u32 v{vT+8}, s{sT+12}, v{vKA}
    s_lshl_b32 s{sT+10}, s{sX}, 8
    s_add_u32 s{sT+12}, s{sT+10}, s{sT+11}
    v_add_u32 v{vT+9}, s{sT+12}, v{vKA}
    s_waitcnt lgkmcnt(0)
    s_barrier
    ds_read_b128 {vr(vQ,4)}, v{vT+7} offset:{EXCH}
    ds_read_b128 {vr(vQ+4,4)}, v{vT+7} offset:{EXCH+6144}
    ds_read_b128 {vr(vQ+8,4)}, v{vT+8} offset:{EXCH}
    ds_read_b128 {vr(vQ+12,4)}, v{vT+8} offset:{EXCH+6144}
    ds_read_b128 {vr(vKV,4)}, v{vT+7} offset:{EXCH+2048}
    ds_read_b128 {vr(vKV+12,4)}, v{vT+7} offset:{EXCH+2048+6144}
    s_mov_b64 exec, {sr(sMask,2)}
    ds_read_b128 {vr(vKV+4,4)}, v{vT+9} offset:{EXCH+4096}
    ds_read_b128 {vr(vKV+8,4)}, v{vT+9} offset:{EXCH+5120}
    ds_read_b128 {vr(vKV+16,4)}, v{vT+9} offset:{EXCH+4096+6144}
    ds_read_b128 {vr(vKV+20,4)}, v{vT+9} offset:{EXCH+5120+6144}
    s_mov_b64 exec, -1
    """)
    E(f"""
    s_lshl_b32 s{sT+10}, s{sHP}, 4
    s_add_u32 s{sT+11}, s{sT+10}, s{sRB}
    s_lshl_b32 s{sT+11}, s{sT+11}, 2
    s_add_u32 s{sT+11}, s{sT+11}, s{sW}
    s_lshl_b32 s{sT+11}, s{sT+11}, {FSH}
    v_mov_b32 v{vT+10}, s{sT+11}
    v_mov_b32 v{vT+11}, 1
    v_bfe_u32 v{vFA}, v1, 1, 4
    v_add_u32 v{vFA}, s{sT+10}, v{vFA}
    v_lshlrev_b32 v{vFA}, 1, v{vFA}
    v_add_u32 v{vFA}, s{sZ}, v{vFA}
    v_and_b32 v{vT+12}, 1, v1
    v_lshl_add_u32 v{vFA}, v{vFA}, 1, v{vT+12}
    v_lshlrev_b32 v{vFA}, {FSH}, v{vFA}
    s_lshl_b32 s{sT+10}, s{sHP}, 1
    s_add_u32 s{sT+10}, s{sT+10}, s{sX}
    s_lshl_b32 s{sT+10}, s{sT+10}, 17
    s_lshl_b32 s{sT+11}, s{sZ}, 12
    s_add_u32 s{sT+10}, s{sT+10}, s{sT+11}
    s_add_u32 s{sKVb}, s{pWs}, s{sT+10}
    s_addc_u32 s{sKVb+1}, s{pWs+1}, 0
    """)
    for j in range(64):
        E(f"v_mov_b32 v{vO+j}, 0")
    for j in range(8):
        E(f"v_mov_b32 v{SB+8+j}, 0")
    lr = newlab("rdy")
    E(f"""
    s_waitcnt vmcnt(0)
    v_cmp_ne_u32 vcc, 0, v{vT+1}
    s_nop 1
    s_cmp_eq_u64 vcc, -1
    s_cbranch_scc1 {lr}
    """)
    poll_global(vT, pDbg, vT + 1)
    E(f"""
    {lr}:
    s_mov_b64 exec, 1
    global_store_dword v{vT+10}, v{vT+11}, {sr(pFL,2)} sc1
    s_mov_b64 exec, -1
    """)
    stamp("m")
    poll_global(vFA, pFL, vT + 1)
    stamp("m")
    def kvaddr():
        return [f"s_add_u32 s{sJ}, s{sJ}, 0x2000", f"s_and_b32 s{sJ}, s{sJ}, 0x1e000",
                f"s_add_u32 s{sKV}, s{sKVb}, s{sJ}", f"s_addc_u32 s{sKV+1}, s{sKVb+1}, 0"]
    def kload(st, par):
        return [f"global_load_dwordx4 {vr(vKV+12*st,4)}, v{vKA}, {sr(sKV,2)} offset:{par*2048} sc1"]
    def vload(st, par):
        return [f"s_mov_b64 exec, {sr(sMask,2)}",
                f"global_load_dwordx4 {vr(vKV+12*st+4,4)}, v{vVA}, {sr(sKV,2)} offset:{par*2048+1024} sc1",
                f"global_load_dwordx4 {vr(vKV+12*st+8,4)}, v{vVA}, {sr(sKV,2)} offset:{par*2048+1536} sc1",
                "s_mov_b64 exec, -1"]
    E(f"s_lshl_b32 s{sJ}, s{sRB}, 13")
    E("\n".join(kvaddr() + vload(2, 0) + kload(2, 0)))
    E(f"""
    s_mov_b32 s{sCnt}, 8
    s_waitcnt lgkmcnt(0)
    v_mfma_f32_32x32x16_bf16 {vr(SA,16)}, {vr(vKV,4)}, {vr(vQ,4)}, 0
    s_nop 15
    .p2align 3
    L_attn:
    """)
    for t in range(4):
        for q in range(4):
            cur, oth = (SA, SB) if q % 2 == 0 else (SB, SA)
            tp, qp = (t, q - 1) if q else ((t - 1) % 4, 3)
            tn, qn = (t, q + 1) if q < 3 else ((t + 1) % 4, 0)
            after2, afterq, after1 = [], [], []
            st = (t + 3) % 4; par = (t + 3) & 1
            if q == 0:
                after2 = vload(st, par); afterq = kload(st, par)
            if q == 1 and par == 1:
                ka = kvaddr(); after2 = ka[:2]; after1 = ka[2:]
            if q == 3:
                after2 = ["s_waitcnt vmcnt(6)"]
                if t == 3: after1 = [f"s_sub_u32 s{sCnt}, s{sCnt}, 1", f"s_cmp_lg_u32 s{sCnt}, 0"]
            for i in range(16):
                E(f"v_exp_f32 v{cur+i}, v{cur+i}")
                if i == 1:
                    E(f"v_smfmac_f32_32x32x32_bf16 {vr(vO+16*qp,16)}, {vr(vKV+12*tp+8,4)}, {vr(oth+8,8)}, v{vIDX}")
                    E("\n".join(after2))
                if i == 4:
                    E(f"v_mfma_f32_32x32x16_bf16 {vr(oth,16)}, {vr(vKV+12*tn,4)}, {vr(vQ+4*qn,4)}, 0")
                    E("\n".join(afterq))
                if i == 10:
                    E(f"v_smfmac_f32_32x32x32_bf16 {vr(vO+16*q,16)}, {vr(vKV+12*t+4,4)}, {vr(cur,8)}, v{vIDX}")
                    E("\n".join(after1))
    E(f"""
    s_cbranch_scc1 L_attn
    s_mul_i32 s{sT+10}, s{sW}, {REDS}
    v_smfmac_f32_32x32x32_bf16 {vr(vO+48,16)}, {vr(vKV+36+8,4)}, {vr(SB+8,8)}, v{vIDX}
    """)
    stamp("m")
    E(f"""
    v_add_u32 v{vT}, s{sT+10}, v{vKA}
    v_lshrrev_b32 v{vT+1}, 2, v{vKA}
    v_add_u32 v{vT+1}, s{sT+10}, v{vT+1}
    s_xor_b32 s{sT+11}, s{sW}, 2
    s_mul_i32 s{sT+11}, s{sT+11}, {REDS}
    v_add_u32 v{vT+2}, s{sT+11}, v{vKA}
    v_lshrrev_b32 v{vT+3}, 2, v{vKA}
    v_add_u32 v{vT+3}, s{sT+11}, v{vT+3}
    ds_write_b128 v{vT}, {vr(vO+32,4)} offset:{RED}
    ds_write_b128 v{vT}, {vr(vO+36,4)} offset:{RED+1024}
    ds_write_b32 v{vT+1}, v{vO+40} offset:{RED+4096}
    s_lshl_b32 s{sT+10}, s{sRB}, 1
    s_add_u32 s{sT+10}, s{sT+10}, s{sZ}
    s_lshl_b32 s{sT+11}, s{sHP}, 1
    s_add_u32 s{sT+11}, s{sT+11}, s{sX}
    ds_write_b128 v{vT}, {vr(vO+48,4)} offset:{RED+2048}
    ds_write_b128 v{vT}, {vr(vO+52,4)} offset:{RED+3072}
    ds_write_b32 v{vT+1}, v{vO+56} offset:{RED+4352}
    s_lshl_b32 s{sT+12}, s{sT+10}, 6
    s_add_u32 s{sT+12}, s{sT+12}, s{sT+11}
    s_lshl_b32 s{sT+12}, s{sT+12}, 10
    s_add_u32 s{sT+12}, s{sT+12}, {WS_OF}
    v_add_u32 v{vT+4}, s{sT+12}, v{vKA}
    v_add_u32 v{vT+5}, 0x8000, v{vT+4}
    s_lshl_b32 s{sT+12}, s{sT+10}, 5
    s_add_u32 s{sT+12}, s{sT+12}, s{sT+11}
    s_add_u32 s{sT+12}, s{sT+12}, {F2}
    s_lshl_b32 s{sT+12}, s{sT+12}, {FSH}
    v_mov_b32 v{vT+10}, s{sT+12}
    s_waitcnt lgkmcnt(0)
    s_barrier
    ds_read_b32 v{SA+8}, v{vT+3} offset:{RED+4096}
    ds_read_b32 v{SB+8}, v{vT+3} offset:{RED+4352}
    ds_read_b128 {vr(SA,4)}, v{vT+2} offset:{RED}
    ds_read_b128 {vr(SA+4,4)}, v{vT+2} offset:{RED+1024}
    ds_read_b128 {vr(SB,4)}, v{vT+2} offset:{RED+2048}
    ds_read_b128 {vr(SB+4,4)}, v{vT+2} offset:{RED+3072}
    s_mov_b32 s{sT+10}, {fbits(2.0**-30)}
    s_mov_b32 s{sT+11}, {fbits(2.0**50)}
    s_waitcnt lgkmcnt(0)
    """)
    for j in (8, 0, 1, 2, 3, 4, 5, 6, 7):
        E(f"v_add_f32 v{vO+j}, v{vO+j}, v{SA+j}\nv_add_f32 v{vO+16+j}, v{vO+16+j}, v{SB+j}")
    E(f"""
    v_min_f32 v{vT+6}, v{vO+8}, v{vO+24}
    v_max_f32 v{vT+7}, v{vO+8}, v{vO+24}
    """)
    E(f"v_max3_f32 v{vT+8}, abs(v{vO}), abs(v{vO+1}), abs(v{vO+2})")
    rest = [vO + j for j in range(3, 8)] + [vO + 16 + j for j in range(8)] + [vO + 23]
    for j in range(0, 14, 2):
        E(f"v_max3_f32 v{vT+8}, abs(v{rest[j]}), abs(v{rest[j+1]}), v{vT+8}")
    E(f"""
    v_cmp_lt_f32 vcc, s{sT+10}, v{vT+6}
    v_cmp_gt_f32 {sr(sT+12,2)}, s{sT+11}, v{vT+7}
    s_mov_b32 s{sT+11}, 0x7f000000
    s_and_b64 {sr(sT+12,2)}, {sr(sT+12,2)}, vcc
    v_cmp_gt_f32 vcc, s{sT+11}, v{vT+8}
    s_nop 1
    s_and_b64 vcc, {sr(sT+12,2)}, vcc
    s_cmp_eq_u64 vcc, -1
    s_cbranch_scc0 L_safe
    L_norm:
    v_rcp_f32 v{vT+6}, v{vO+8}
    v_rcp_f32 v{vT+7}, v{vO+24}
    s_nop 0
    """)
    for j in range(8):
        E(f"v_mul_f32 v{vO+j}, v{vO+j}, v{vT+6}")
    for j in range(4):
        E(f"v_cvt_pk_bf16_f32 v{SA+j}, v{vO+2*j}, v{vO+2*j+1}")
    E(f"global_store_dwordx4 v{vT+4}, {vr(SA,4)}, {sr(pWs,2)} sc1")
    for j in range(8):
        E(f"v_mul_f32 v{vO+16+j}, v{vO+16+j}, v{vT+7}")
    for j in range(4):
        E(f"v_cvt_pk_bf16_f32 v{SB+j}, v{vO+16+2*j}, v{vO+17+2*j}")
    E(f"""
    global_store_dwordx4 v{vT+5}, {vr(SB,4)}, {sr(pWs,2)} sc1
    s_waitcnt vmcnt(0)
    s_mov_b64 exec, 1
    global_store_dword v{vT+10}, v{vT+11}, {sr(pFL,2)} sc1
    s_mov_b64 exec, -1
    """)
    stamp("m")
    stamp_flush("m")
    E("s_endpgm")
    vM, vC = vT + 6, 72
    E(f"""
    L_safe:
    s_waitcnt vmcnt(0)
    s_lshl_b32 s{sT+10}, s{sZ}, 12
    s_sub_u32 s{sKVb}, s{sKVb}, s{sT+10}
    s_subb_u32 s{sKVb+1}, s{sKVb+1}, 0
    s_mov_b32 s{sKV}, s{sKVb}
    s_mov_b32 s{sKV+1}, s{sKVb+1}
    s_mov_b32 s{sCnt}, 64
    v_mov_b32 v{vM}, 0xff800000
    v_mov_b32 v{vM+1}, 0xff800000
    L_safe1:
    global_load_dwordx4 {vr(vKV,4)}, v{vKA}, {sr(sKV,2)} sc1
    s_add_u32 s{sKV}, s{sKV}, 2048
    s_addc_u32 s{sKV+1}, s{sKV+1}, 0
    s_waitcnt vmcnt(0)
    v_mfma_f32_32x32x16_bf16 {vr(SA,16)}, {vr(vKV,4)}, {vr(vQ,4)}, 0
    v_mfma_f32_32x32x16_bf16 {vr(SB,16)}, {vr(vKV,4)}, {vr(vQ+4,4)}, 0
    s_nop 15
    """)
    for j in range(8):
        E(f"v_max3_f32 v{vM}, v{SA+2*j}, v{SA+2*j+1}, v{vM}\nv_max3_f32 v{vM+1}, v{SB+2*j}, v{SB+2*j+1}, v{vM+1}")
    E(f"""
    s_sub_u32 s{sCnt}, s{sCnt}, 1
    s_cmp_lg_u32 s{sCnt}, 0
    s_cbranch_scc1 L_safe1
    v_mov_b32 v{SA}, v{vM}
    v_mov_b32 v{SB}, v{vM+1}
    s_nop 1
    v_permlane32_swap_b32 v{SA}, v{vM}
    v_permlane32_swap_b32 v{SB}, v{vM+1}
    s_nop 1
    v_max_f32 v{vM}, v{vM}, v{SA}
    v_max_f32 v{vM+1}, v{vM+1}, v{SB}
    """)
    for j in range(16):
        E(f"v_sub_f32 v{vC+j}, 0, v{vM}\nv_sub_f32 v{vC+16+j}, 0, v{vM+1}\nv_mov_b32 v{vO+j}, 0\nv_mov_b32 v{vO+16+j}, 0")
    E(f"""
    s_mov_b32 s{sKV}, s{sKVb}
    s_mov_b32 s{sKV+1}, s{sKVb+1}
    s_mov_b32 s{sCnt}, 64
    L_safe2:
    """)
    E("\n".join(kload(0, 0) + vload(0, 0)))
    E(f"""
    s_add_u32 s{sKV}, s{sKV}, 2048
    s_addc_u32 s{sKV+1}, s{sKV+1}, 0
    s_waitcnt vmcnt(0)
    v_mfma_f32_32x32x16_bf16 {vr(SA,16)}, {vr(vKV,4)}, {vr(vQ,4)}, {vr(vC,16)}
    v_mfma_f32_32x32x16_bf16 {vr(SB,16)}, {vr(vKV,4)}, {vr(vQ+4,4)}, {vr(vC+16,16)}
    s_nop 15
    """)
    for j in range(32):
        E(f"v_exp_f32 v{SA+j}, v{SA+j}")
    E(f"""
    s_nop 1
    v_smfmac_f32_32x32x32_bf16 {vr(vO,16)}, {vr(vKV+4,4)}, {vr(SA,8)}, v{vIDX}
    v_smfmac_f32_32x32x32_bf16 {vr(vO,16)}, {vr(vKV+8,4)}, {vr(SA+8,8)}, v{vIDX}
    v_smfmac_f32_32x32x32_bf16 {vr(vO+16,16)}, {vr(vKV+4,4)}, {vr(SB,8)}, v{vIDX}
    v_smfmac_f32_32x32x32_bf16 {vr(vO+16,16)}, {vr(vKV+8,4)}, {vr(SB+8,8)}, v{vIDX}
    s_sub_u32 s{sCnt}, s{sCnt}, 1
    s_cmp_lg_u32 s{sCnt}, 0
    s_cbranch_scc1 L_safe2
    s_nop 15
    s_branch L_norm
    """)

def helper_wave():
    sH, sC, sMH, sRT, sCB, sD = sT, sT + 1, sT + 2, sT + 3, sT + 4, sT + 5
    sLd, sDs = sT + 6, sT + 7
    t0 = sT + 8
    vGW = 128
    vXF = 160
    vG, vGA0, vGA1 = 164, 165, 166
    vU = 168
    vUA = 167
    vPar = 4
    E(f"""
    L_helper:
    s_setprio 2
    s_sub_u32 s{sH}, s{sW}, 4
    s_lshr_b32 s{sC}, s{sH}, 1
    s_and_b32 s{sMH}, s{sH}, 1
    s_and_b32 s{sRT}, s{sHP}, 3
    s_lshr_b32 s{sCB}, s{sHP}, 2
    s_add_u32 s{sD}, s{sCH}, s{sC}
    s_lshl_b32 s{t0}, s{sD}, 1
    s_add_u32 s{t0}, s{t0}, s{sMH}
    s_lshl_b32 s{t0}, s{t0}, 7
    v_lshl_add_u32 v2, v1, 1, s{t0}
    s_lshl_b32 s{t0+1}, s{sCH}, 1
    v_lshrrev_b32 v3, 5, v1
    v_lshlrev_b32 v3, 4, v3
    s_lshl_b32 s{t0+2}, s{sH}, 5
    v_add_u32 v3, s{t0+2}, v3
    s_waitcnt lgkmcnt(0)
    s_load_dword s{sLd}, {sr(pLdt,2)}, s{t0+1}
    s_load_dword s{sDs}, {sr(pDsk,2)}, s{t0+1}
    """)
    for j, p in enumerate((pAre, pAim, pBre, pBim, pCre, pCim)):
        E(f"global_load_ushort v{vPar+j}, v2, {sr(p,2)}")
    E(f"s_add_u32 s{pFL}, s{pWs}, {WS_FL}\ns_addc_u32 s{pFL+1}, s{pWs+1}, 0")
    for i in range(8):
        E(f"s_add_u32 s{t0}, s{sROT}, {i}\ns_and_b32 s{t0}, s{t0}, 7\ns_lshl_b32 s{t0}, s{t0}, 7\nv_add_u32 v10, s{t0}, v3")
        E(f"global_load_dwordx4 {vr(vGW+4*i,4)}, v10, {sr(pGw,2)}")
    stamp("h")
    ln = newlab("nl")
    E(f"""
    v_mov_b32 v12, 0
    v_mov_b32 v13, 0
    v_mov_b32 v14, 0
    v_mov_b32 v15, 0
    s_cmp_lt_u32 s2, 16
    s_cselect_b32 s{t0+3}, s{sW}, 0
    s_cmp_eq_u32 s{t0+3}, 7
    s_cbranch_scc0 {ln}
    s_mul_i32 s{t0}, s2, 192
    v_add_u32 v10, s{t0}, v1
    v_lshlrev_b32 v10, {FSH}, v10
    global_store_dword v10, v12, {sr(pFL,2)} sc1
    v_add_u32 v10, {64*FS}, v10
    global_store_dword v10, v12, {sr(pFL,2)} sc1
    v_add_u32 v10, {64*FS}, v10
    global_store_dword v10, v12, {sr(pFL,2)} sc1
    s_lshl_b32 s{t0}, s2, 2
    v_mov_b32 v10, s{t0}
    v_mov_b32 v11, 1
    s_waitcnt vmcnt(0)
    s_mov_b64 exec, 1
    global_store_dword v10, v11, {sr(pDbg,2)} sc1
    s_mov_b64 exec, -1
    {ln}:
    """)
    E(f"""
    s_mul_i32 s{t0}, s{sC}, {URS}
    s_add_u32 s{t0}, s{t0}, {UR+4096}
    v_lshl_add_u32 v10, v1, 4, s{t0}
    v_mov_b32 v11, {CNT}
    v_cmp_gt_u32 vcc, 30, v1
    s_nop 1
    v_cndmask_b32 v10, v11, v10, vcc
    ds_write_b128 v10, v[12:15]
    """)
    vWA, vRA = 16, 17
    E(f"""
    s_mul_i32 s{t0}, s{sRT}, {WPART}
    v_and_b32 v10, 31, v1
    v_lshl_add_u32 v10, v10, 7, s{t0}
    v_bfe_u32 v11, v1, 1, 3
    v_lshrrev_b32 v12, 5, v1
    v_xor_b32 v11, v11, v12
    s_lshl_b32 s{t0}, s{sH}, 1
    v_xor_b32 v11, s{t0}, v11
    v_lshl_add_u32 v{vGA0}, v11, 4, v10
    v_add_u32 v{vGA1}, {2*SLOT}, v{vGA0}
    v_mov_b32 v{vG}, 0
    s_lshl_b32 s{t0}, s{sH}, 19
    s_lshl_b32 s{t0+1}, s{sCH}, 1
    s_add_u32 s{t0}, s{t0}, s{t0+1}
    s_add_u32 s{t0}, s{t0}, 4096
    v_lshl_add_u32 v{vUA}, v1, 13, s{t0}
    s_mul_i32 s{t0}, s{sH}, {KGS}
    s_add_u32 s{t0}, s{t0}, {KG}
    v_lshl_add_u32 v{vWA}, v1, 2, s{t0}
    v_and_b32 v10, 31, v1
    v_mul_u32_u24 v10, 272, v10
    v_lshl_add_u32 v10, v12, 4, v10
    v_add_u32 v{vRA}, s{t0}, v10
    """)
    K = []
    def k(s, c=None):
        for x in s.split("\n"):
            x = x.strip()
            if not x: continue
            cc = c if c is not None else (8 if any(t in x for t in ("v_exp", "v_sin", "v_cos", "v_rcp", "mfma")) else 4)
            K.append((cc, x))
    va, vb, vCB, vt = 18, 19, 20, 22
    log2e = math.log2(math.e)
    c_hi = struct.unpack("<f", struct.pack("<f", log2e))[0]
    c_lo = log2e - c_hi
    k(f"""
    s_waitcnt lgkmcnt(0)
    s_lshl_b32 s{t0}, s{sC}, 4
    s_lshr_b32 s{sLd}, s{sLd}, s{t0}
    s_lshl_b32 s{sLd}, s{sLd}, 16
    s_lshr_b32 s{sDs}, s{sDs}, s{t0}
    s_lshl_b32 s{sDs}, s{sDs}, 16
    s_mov_b32 s{t0}, {fbits(c_hi)}
    v_mov_b32 v{vt}, s{sLd}
    v_mul_f32 v{vt+1}, s{t0}, v{vt}
    v_fma_f32 v{vt+2}, v{vt}, s{t0}, -v{vt+1}
    v_fmac_f32 v{vt+2}, {fbits(c_lo)}, v{vt}
    v_exp_f32 v{vt+1}, v{vt+1}
    v_mul_f32 v{vt+2}, {fbits(math.log(2.0))}, v{vt+2}
    v_fma_f32 v{vt+1}, v{vt+1}, v{vt+2}, v{vt+1}
    v_cvt_pk_bf16_f32 v{vt+1}, v{vt+1}, v{vt+1}
    v_lshlrev_b32 v{vt}, 16, v{vt+1}
    s_waitcnt vmcnt(8)
    """)
    for j in range(6):
        k(f"v_lshlrev_b32 v{vPar+j}, 16, v{vPar+j}")
    k(f"""
    v_mul_f32 v{va}, v{vt}, v{vPar}
    v_mul_f32 v{vb}, v{vt}, v{vPar+1}
    v_mul_f32 v{vPar+2}, v{vt}, v{vPar+2}
    v_mul_f32 v{vPar+3}, v{vt}, v{vPar+3}
    v_mul_f32 v{va}, s{t0}, v{va}
    v_mul_f32 v{vb}, 0.15915494, v{vb}
    """)
    def cmul(z, x, w):
        return [f"v_pk_mul_f32 {vr(z,2)}, {vr(x,2)}, {vr(w,2)} op_sel_hi:[0,1]",
                f"v_pk_fma_f32 {vr(z,2)}, {vr(x,2)}, {vr(w,2)}, {vr(z,2)} op_sel:[1,1,0] op_sel_hi:[1,0,1] neg_lo:[1,0,0]"]
    def direct(z, x):
        k(f"""
        v_mul_f32 v{vt+2}, {fbits(x)}, v{vb}
        v_mul_f32 v{vt+1}, {fbits(x)}, v{va}
        v_fract_f32 v{vt+2}, v{vt+2}
        v_exp_f32 v{vt+1}, v{vt+1}
        v_cos_f32 v{z}, v{vt+2}
        v_sin_f32 v{z+1}, v{vt+2}
        s_nop 0
        v_mul_f32 v{z}, v{z}, v{vt+1}
        v_mul_f32 v{z+1}, v{z+1}, v{vt+1}
        """)
    k("\n".join(cmul(vCB, vPar + 4, vPar + 2)))
    E1, E32, E256 = 28, 30, 32
    vE = 34
    vPk = 50
    direct(vE + 2, 8.0); direct(E32, 32.0)
    npk = [0]
    def put(z, rows, neg):
        p = vPk + npk[0] % 8; npk[0] += 1
        k(f"v_cvt_pk_bf16_f32 v{p}, v{z}, {'-' if neg else ''}v{z+1}")
        for r in rows:
            k(f"ds_write_b32 v{vWA}, v{p} offset:{272*r}")
    def e(j): return vE + 2 * (j % 8)
    k(f"v_mov_b32 v{e(0)}, 1.0\nv_mov_b32 v{e(0)+1}, 0")
    k("\n".join(cmul(e(2), e(1), e(1))))
    put(e(0), [0], False); put(e(1), [1], False)
    k("\n".join(cmul(e(3), e(2), e(1))))
    put(e(2), [2], False); put(e(3), [3], False)
    for j0 in range(4, 32, 4):
        cm = [cmul(e(j), e(j - 4), E32) for j in range(j0, j0 + 4)]
        k("\n".join(c[0] for c in cm)); k("\n".join(c[1] for c in cm))
        for j in range(j0, j0 + 4): put(e(j), [j], False)
    vEF, vGF, vD = 64, 96, 176
    for s in range(8):
        k(f"ds_read_b128 {vr(vEF+4*s,4)}, v{vRA} offset:{32*s}")
    direct(E1, 1.0); direct(E256, 256.0)
    k("s_waitcnt lgkmcnt(0)")
    def row(r, h): return 8 * (r >> 2) + 4 * h + (r & 3)
    g = {}
    vGv = 192
    for x in range(9): g[x] = vGv + 2 * x
    k(f"v_mov_b32 v{g[0]}, v{vCB}\nv_mov_b32 v{g[0]+1}, v{vCB+1}")
    E2 = e(0)
    k("\n".join(cmul(E2, E1, E1)))
    k("\n".join(cmul(g[1], g[0], E1)))
    put(g[0], [row(0, 0)], True)
    for x in range(2, 9, 2):
        xs = [y for y in (x, x + 1) if y <= 8]
        cm = [cmul(g[y], g[y - 2], E2) for y in xs]
        k("\n".join(c[0] for c in cm)); k("\n".join(c[1] for c in cm))
        put(g[x - 1], [row(x - 1, 0)], True)
        if x < 8: put(g[x], [row(x, 0)], True)
    A = {o: vGv + 18 + 2 * i for i, o in enumerate((0, 2, 4, 6, 8))}
    cm = [cmul(A[o], g[o], E256) for o in (0, 2, 4, 6, 8)]
    k("\n".join(c[0] for c in cm)); k("\n".join(c[1] for c in cm))
    for o, rs in ((0, (0, 1)), (2, (2,)), (4, (3, 4, 5)), (6, (6,)), (8, (7,))):
        put(A[o], [row(r, 1) for r in rs], True)
    src, dst = A, g
    for os_, r0, h in (((0, 4, 8), 8, 0), ((0, 4, 8), 8, 1), ((0, 8), 11, 0), ((0, 8), 11, 1), ((0, 8), 13, 0), ((0, 8), 13, 1)):
        cm = [cmul(dst[o], src[o], E256) for o in os_]
        k("\n".join(c[0] for c in cm)); k("\n".join(c[1] for c in cm))
        for i, o in enumerate(os_): put(dst[o], [row(r0 + i, h)], True)
        src, dst = dst, src
    for s in range(8):
        k(f"ds_read_b128 {vr(vGF+4*s,4)}, v{vRA} offset:{32*s}")
    k("s_waitcnt lgkmcnt(0)", 100)
    for s in range(8):
        k(f"v_mfma_f32_32x32x16_bf16 {vr(vD,16)}, {vr(vGF+4*s,4)}, {vr(vEF+4*s,4)}, {'0' if s == 0 else vr(vD,16)}", 40)
    k(f"s_mul_i32 s{t0}, s{sC}, {2*KGS}\ns_add_u32 s{t0}, s{t0}, {KG+KGS}\nv_lshl_add_u32 v{vWA}, v1, 4, s{t0}\ns_nop 15", 20)
    tot = sum(c for c, _ in K)
    nseg = 7
    segs = [[] for _ in range(nseg)]
    acc = 0
    for c, x in K:
        segs[min(nseg - 1, int(acc * nseg / tot))].append(x); acc += c
    def gate_glue(i):
        E("s_waitcnt lgkmcnt(0)\ns_barrier")
        if i == 1: E("s_waitcnt vmcnt(0)")
        if i >= 1:
            for j in range(4):
                E(f"v_dot2_f32_bf16 v{vG}, v{vXF+j}, v{vGW+4*(i-1)+j}, v{vG}")
        if i <= 7:
            slot = i & 3
            E(f"ds_read_b128 {vr(vXF,4)}, v{vGA1 if slot >> 1 else vGA0} offset:{(slot&1)*SLOT}")
    for i in range(nseg):
        E("\n".join(segs[i]))
        if i == nseg - 1:
            lx = newlab("nx")
            E(f"s_cmp_eq_u32 s{sMH}, 0\ns_cbranch_scc1 {lx}")
            for j in range(4):
                E(f"ds_write_b128 v{vWA}, {vr(vD+4*j,4)} offset:{1024*j}")
            E(f"{lx}:")
        gate_glue(i)
        if i == OPT.get("gath", 5):
            for j in range(8):
                E(f"global_load_dword v{vU+j}, v{vUA}, {sr(pX,2)} offset:{1024*j-4096}")
    stamp("h")
    lk = newlab("nk")
    vR = 64
    E(f"s_cmp_eq_u32 s{sMH}, 0\ns_cbranch_scc0 {lk}")
    for j in range(4):
        E(f"ds_read_b128 {vr(vR+4*j,4)}, v{vWA} offset:{1024*j}")
    E(f"""
    s_mul_i32 s{t0}, s{sC}, {2*KGS}
    s_add_u32 s{t0}, s{t0}, {KG}
    v_lshl_add_u32 v10, v1, 4, s{t0}
    v_lshrrev_b32 v11, 1, v1
    v_mul_u32_u24 v11, {KCP}, v11
    v_and_b32 v12, 1, v1
    v_lshlrev_b32 v13, 4, v12
    v_add3_u32 v11, v11, v13, s{t0}
    v_cmp_eq_u32 {sr(t0+2,2)}, 1, v12
    v_cmp_eq_u32 vcc, 0, v1
    v_mov_b32 v13, s{sDs}
    v_mov_b32 v20, 0
    v_mov_b32 v21, 0
    v_mov_b32 v22, 0
    v_mov_b32 v23, 0
    v_cndmask_b32 v13, 0, v13, vcc
    s_waitcnt lgkmcnt(0)
    s_mov_b64 exec, 0xff
    ds_write_b128 v11, v[20:23]
    s_mov_b64 exec, -1
    """)
    for j in range(15):
        E(f"v_add_f32 v{vD+j}, v{vD+j}, v{vR+j}")
    E(f"""
    v_add_f32 v{vD}, v{vD}, v13
    v_cndmask_b32 v14, v{vD+11}, v{vD+12}, {sr(t0+2,2)}
    v_cndmask_b32 v15, v{vD+13}, v{vD+14}, {sr(t0+2,2)}
    """)
    D = lambda j: vD + j
    pats = [[(D(0), D(1)), (D(2), D(3)), (D(4), D(5)), (D(6), D(7))],
            [(D(8), D(8)), (D(8), D(9)), (D(9), D(9)), (D(10), D(10))],
            [(D(11), D(11)), (D(11), D(11)), (14, D(12)), (D(12), D(12))],
            [(D(13), D(13)), (D(13), D(13)), (15, D(14)), (D(14), D(14))]]
    vE0 = 64
    for u in range(4):
        for j, (a, b) in enumerate(pats[u]):
            E(f"v_cvt_pk_bf16_f32 v{vE0+8*u+j}, v{a}, v{b}")
        E(f"ds_write_b128 v10, {vr(vE0+8*u,4)} offset:{32+1024*u}")
    for u in range(4):
        E(f"ds_read_b64 {vr(vE0+8*u+4,2)}, v10 offset:{48+1024*u}")
    E("s_waitcnt lgkmcnt(0)")
    for u in range(4):
        b = vE0 + 8 * u; o = 96 + 12 * (u & 1)
        for j in range(4):
            E(f"v_alignbit_b32 v{o+j}, v{b+j+1}, v{b+j}, 16")
        E(f"ds_write_b128 v10, {vr(o,4)} offset:{32+1024*u+KCP}")
        for j in range(4):
            E(f"v_mov_b32 v{o+4+j}, v{b+j+1}")
        E(f"ds_write_b128 v10, {vr(o+4,4)} offset:{32+1024*u+2*KCP}")
        for j in range(4):
            E(f"v_alignbit_b32 v{o+8+j}, v{b+j+2}, v{b+j+1}, 16")
        E(f"ds_write_b128 v10, {vr(o+8,4)} offset:{32+1024*u+3*KCP}")
        if u == 0:
            E(f"""
            v_lshlrev_b32 v14, 16, v{b}
            s_mov_b64 exec, 1
            ds_write_b32 v10, v14 offset:{28+KCP}
            ds_write_b32 v10, v{b} offset:{28+2*KCP}
            ds_write_b32 v10, v14 offset:{24+3*KCP}
            ds_write_b32 v10, v{o} offset:{28+3*KCP}
            s_mov_b64 exec, -1
            """)
    E(f"{lk}:")
    gate_glue(7)
    E(f"""
    v_and_b32 v10, 31, v1
    v_lshlrev_b32 v10, 5, v10
    v_lshrrev_b32 v11, 5, v1
    v_lshl_add_u32 v11, v11, 2, v10
    s_lshl_b32 s{t0}, s{sH}, 3
    s_add_u32 s{t0}, s{t0}, {GP}
    v_add_u32 v11, s{t0}, v11
    v_add_u32 v{vGA0}, {GP}, v10
    s_waitcnt lgkmcnt(0)
    """)
    for j in range(4):
        E(f"v_dot2_f32_bf16 v{vG}, v{vXF+j}, v{vGW+28+j}, v{vG}")
    E(f"""
    s_nop 2
    ds_write_b32 v11, v{vG}
    s_waitcnt lgkmcnt(0)
    s_barrier
    """)
    stamp("h")
    vCA, vOne, vTm = 4, 5, 6
    E(f"""
    s_lshl_b32 s{t0}, s{sH}, 10
    s_sub_u32 s{t0}, {UR+4080}, s{t0}
    v_lshlrev_b32 v10, 4, v1
    v_sub_u32 v10, s{t0}, v10
    s_mov_b32 s{t0}, 0x05040100
    s_mov_b32 s{t0+1}, 0x07060302
    v_mov_b32 v{vCA}, {CNT}
    v_mov_b32 v{vOne}, 1
    s_waitcnt vmcnt(0)
    """)
    for j in range(4):
        E(f"v_perm_b32 v{12+j}, v{vU+6-2*j}, v{vU+7-2*j}, s{t0}")
        E(f"v_perm_b32 v{16+j}, v{vU+6-2*j}, v{vU+7-2*j}, s{t0+1}")
    E(f"ds_write_b128 v10, v[12:15]\nds_write_b128 v10, v[16:19] offset:{URS}")
    lds_arrive(vCA, vOne)
    vAA, vBA = 7, 8
    E(f"""
    v_and_b32 v10, 15, v1
    v_add_u32 v11, 1, v10
    v_and_b32 v12, 3, v11
    v_mul_u32_u24 v12, {KCP}, v12
    v_lshrrev_b32 v11, 2, v11
    v_lshl_add_u32 v12, v11, 3, v12
    v_lshrrev_b32 v13, 4, v1
    v_lshlrev_b32 v13, 4, v13
    s_mul_i32 s{t0}, s{sC}, {2*KGS}
    s_lshl_b32 s{t0+1}, s{sMH}, 8
    s_add_u32 s{t0}, s{t0}, s{t0+1}
    s_add_u32 s{t0}, s{t0}, {KG}
    v_add3_u32 v{vAA}, v12, v13, s{t0}
    s_mul_i32 s{t0}, s{sC}, {URS}
    s_add_u32 s{t0}, s{t0}, s{t0+1}
    s_add_u32 s{t0}, s{t0}, {UR+4064-3584}
    v_lshlrev_b32 v10, 5, v10
    v_sub_u32 v13, v13, v10
    v_add_u32 v{vBA}, s{t0}, v13
    """)
    lds_wait(vCA, vTm, 4)
    stamp("h")
    vY = 64
    vF = [96, 192]
    def creads(r):
        f = vF[r & 1]; o = []
        for gmm in range(8):
            o.append(f"ds_read_b64 {vr(f+4*gmm,2)}, v{vAA} offset:{512*gmm+64*r}")
            o.append(f"ds_read_b64 {vr(f+4*gmm+2,2)}, v{vAA} offset:{512*gmm+64*r+8}")
            o.append(f"ds_read_b128 {vr(f+32+4*gmm,4)}, v{vBA} offset:{3584-512*gmm+64*r}")
        return o
    E("\n".join(creads(0)))
    for r in range(4):
        f = vF[r & 1]
        nxt = creads(r + 1) if r < 3 else []
        E("s_waitcnt lgkmcnt(0)")
        seen = set()
        for gmm in range(8):
            for dl in range(8 - gmm):
                tau = gmm + dl
                c = "0" if (r == 0 and tau not in seen) else vr(vY + 4 * tau, 4)
                seen.add(tau)
                E(f"v_mfma_f32_16x16x32_bf16 {vr(vY+4*tau,4)}, {vr(f+4*gmm,4)}, {vr(f+32+4*dl,4)}, {c}")
                if nxt: E(nxt.pop(0))
    l1 = newlab("c1"); l2 = newlab("c2")
    E(f"""
    s_lshl_b32 s{t0}, s{sH}, 12
    s_add_u32 s{t0}, s{t0}, {CRED}
    v_lshl_add_u32 v10, v1, 4, s{t0}
    s_xor_b32 s{t0}, s{sH}, 1
    s_lshl_b32 s{t0}, s{t0}, 12
    s_add_u32 s{t0}, s{t0}, {CRED}
    v_lshl_add_u32 v11, v1, 4, s{t0}
    s_lshl_b32 s{t0}, s{sC}, 2
    s_add_u32 s{t0}, s{t0}, {CNT+4}
    v_mov_b32 v{vCA}, s{t0}
    s_cmp_eq_u32 s{sMH}, 0
    s_cbranch_scc0 {l1}
    """)
    for j in range(4):
        E(f"ds_write_b128 v10, {vr(vY+16+4*j,4)} offset:{1024*j}")
    E(f"s_branch {l2}\n{l1}:")
    for j in range(4):
        E(f"ds_write_b128 v10, {vr(vY+4*j,4)} offset:{1024*j}")
    E("s_waitcnt lgkmcnt(0)")
    for j in range(16):
        E(f"v_mov_b32 v{vY+j}, v{vY+16+j}")
    E(f"{l2}:")
    lds_arrive(vCA, vOne)
    E(f"""
    v_and_b32 v12, 15, v1
    v_lshlrev_b32 v16, 2, v12
    v_lshrrev_b32 v13, 1, v12
    v_lshlrev_b32 v13, 15, v13
    v_and_b32 v12, 1, v1
    v_lshl_add_u32 v13, v12, 5, v13
    v_lshrrev_b32 v12, 4, v1
    v_lshl_add_u32 v13, v12, 3, v13
    s_lshl_b32 s{t0}, s{sMH}, 20
    s_lshl_b32 s{t0+1}, s{sD}, 6
    s_add_u32 s{t0}, s{t0}, s{t0+1}
    s_add_u32 s{t0}, s{t0}, {WS_AT}
    v_add_u32 v13, s{t0}, v13
    s_lshl_b32 s{t0}, s{sMH}, 9
    s_add_u32 s{t0}, s{t0}, s{sD}
    s_add_u32 s{t0}, s{t0}, {F3}
    s_lshl_b32 s{t0}, s{t0}, {FSH}
    v_mov_b32 v14, s{t0}
    """)
    lds_wait(vCA, vTm, 2)
    for j in range(4):
        E(f"ds_read_b128 {vr(96+4*j,4)}, v11 offset:{1024*j}")
    E("s_waitcnt lgkmcnt(0)")
    for j in range(16):
        E(f"v_add_f32 v{vY+j}, v{vY+j}, v{96+j}")
    for j in range(4):
        E(f"v_cvt_pk_bf16_f32 v{112+2*j}, v{vY+4*j}, v{vY+4*j+1}\nv_cvt_pk_bf16_f32 v{113+2*j}, v{vY+4*j+2}, v{vY+4*j+3}")
        E(f"global_store_dwordx2 v13, {vr(112+2*j,2)}, {sr(pWs,2)} sc1")
        if j < 3: E(f"v_add_u32 v13, {8*32768}, v13")
    poll_global(16, pDbg, vTm)
    E(f"""
    s_mov_b64 exec, 1
    global_store_dword v14, v{vOne}, {sr(pFL,2)} sc1
    s_mov_b64 exec, -1
    """)
    stamp("h")
    vWo = 128
    sO = t0 + 2
    E(f"""
    s_mov_b32 s{SRDW}, s{pWo}
    s_mov_b32 s{SRDW+1}, s{pWo+1}
    s_mov_b32 s{SRDW+2}, {512*1024}
    s_mov_b32 s{SRDW+3}, 0x00020000
    ds_read_b128 v[20:23], v{vGA0}
    ds_read_b128 v[24:27], v{vGA0} offset:16
    s_lshl_b32 s{t0}, s{sCB}, 2
    s_add_u32 s{t0}, s{t0}, s{sH}
    s_lshl_b32 s{t0}, s{t0}, 6
    v_lshrrev_b32 v10, 2, v1
    v_lshl_add_u32 v10, v10, 10, s{t0}
    v_and_b32 v11, 3, v1
    v_lshl_add_u32 v10, v11, 4, v10
    s_lshl_b32 s{t0+1}, s{sH}, 13
    s_add_u32 s{t0+1}, s{t0+1}, {WST}
    v_lshrrev_b32 v12, 5, v1
    v_lshlrev_b32 v12, 2, v12
    v_bfe_u32 v13, v1, 2, 2
    v_add_u32 v12, v12, v13
    v_lshl_add_u32 v12, v12, 6, s{t0+1}
    v_lshl_add_u32 v12, v11, 3, v12
    v_bfe_u32 v13, v1, 4, 1
    v_lshl_add_u32 v12, v13, 5, v12
    s_waitcnt lgkmcnt(0)
    v_add_f32 v20, v20, v21
    v_add_f32 v22, v22, v23
    v_add_f32 v24, v24, v25
    v_add_f32 v26, v26, v27
    v_add_f32 v20, v20, v22
    v_add_f32 v24, v24, v26
    v_add_f32 v20, v20, v24
    v_mul_f32 v20, {fbits(-log2e)}, v20
    v_exp_f32 v20, v20
    s_nop 0
    v_add_f32 v20, 1.0, v20
    v_rcp_f32 v20, v20
    s_nop 0
    v_sub_f32 v21, 1.0, v20
    """)
    for rd in range(4):
        for j in range(8):
            hd = 8 * rd + j
            if j % 4 == 0: E(f"s_add_u32 m0, s{t0+1}, {j*1024}")
            E(f"s_mov_b32 s{sO}, {hd*16384-(j%4)*1024}")
            E(f"buffer_load_dwordx4 v10, {sr(SRDW,4)}, s{sO} offen offset:{(j%4)*1024} lds")
        E("s_waitcnt vmcnt(0)")
        for j in range(8):
            hd = 8 * rd + j
            E(f"ds_read_b64_tr_b16 {vr(vWo+4*hd,2)}, v12 offset:{1024*j}")
            E(f"ds_read_b64_tr_b16 {vr(vWo+4*hd+2,2)}, v12 offset:{1024*j+512}")
        E("s_waitcnt lgkmcnt(0)")
    vA = 32
    E(f"""
    s_lshl_b32 s{t0}, s{sCB}, 2
    s_add_u32 s{t0}, s{t0}, s{sH}
    s_lshl_b32 s{t0}, s{t0}, 5
    s_lshr_b32 s{t0+1}, s{sRB}, 3
    s_lshl_b32 s{t0+1}, s{t0+1}, 9
    s_add_u32 s{t0+1}, s{t0+1}, s{t0}
    s_add_u32 s{t0+1}, s{t0+1}, {F3}
    v_and_b32 v10, 31, v1
    v_add_u32 v11, s{t0+1}, v10
    v_lshlrev_b32 v11, {FSH}, v11
    s_lshl_b32 s{t0+1}, s{sRB}, 2
    s_add_u32 s{t0+1}, s{t0+1}, s{sRT}
    s_lshl_b32 s{t0+2}, s{t0+1}, 15
    s_lshl_b32 s{t0+3}, s{t0}, 6
    s_add_u32 s{t0+3}, s{t0+3}, s{t0+2}
    s_add_u32 s{t0+3}, s{t0+3}, {WS_AT}
    v_lshrrev_b32 v13, 5, v1
    v_lshlrev_b32 v12, 8, v13
    v_lshl_add_u32 v12, v10, 1, v12
    v_add_u32 v12, s{t0+3}, v12
    s_lshl_b32 s{t0}, s{t0}, 1
    s_add_u32 s{t0}, s{t0}, s{t0+2}
    v_lshl_add_u32 v14, v10, 10, s{t0}
    v_lshl_add_u32 v14, v13, 4, v14
    s_lshl_b32 s{t0}, s{sH}, 13
    s_add_u32 s{t0+2}, s{t0+2}, s{t0}
    s_add_u32 s{t0+2}, s{t0+2}, {WS_OF}
    v_lshl_add_u32 v15, v1, 4, s{t0+2}
    v_add_u32 v16, 4096, v15
    s_add_u32 s{t0+4}, s{t0}, {OFL}
    s_lshr_b32 s{t0+1}, s{t0+1}, 1
    s_lshl_b32 s{t0+1}, s{t0+1}, 5
    s_lshl_b32 s{t0}, s{sH}, 3
    s_add_u32 s{t0+1}, s{t0+1}, s{t0}
    s_add_u32 s{t0+1}, s{t0+1}, {F2}
    v_and_b32 v17, 7, v1
    v_add_u32 v17, s{t0+1}, v17
    v_lshlrev_b32 v17, {FSH}, v17
    v_lshlrev_b32 v18, 4, v1
    v_add_u32 v18, {OFL}, v18
    """)
    for j in range(16):
        E(f"v_mov_b32 v{vA+j}, 0")
    poll_global(11, pFL, vTm)
    for r in range(16):
        E(f"global_load_short_d16_hi v{vA+r}, v12, {sr(pWs,2)} offset:{(8*(r>>2)+(r&3))*64} sc1")
    E("s_waitcnt vmcnt(0)")
    for r in range(16):
        E(f"v_mul_f32 v{vA+r}, v20, v{vA+r}")
    stamp("h")
    E("s_barrier")
    stamp("h")
    poll_global(17, pFL, vTm)
    stamp("h")
    E(f"s_mov_b32 m0, s{t0+4}\ns_nop 0")
    for j in range(4):
        E(f"global_load_lds_dwordx4 v15, {sr(pWs,2)} offset:{1024*j} sc1")
    E(f"s_add_u32 m0, s{t0+4}, 4096\ns_nop 0")
    for j in range(4):
        E(f"global_load_lds_dwordx4 v16, {sr(pWs,2)} offset:{1024*j} sc1")
    E("s_waitcnt vmcnt(0)\ns_barrier")
    stamp("h")
    vB = 64; vAcc = 48; NB = 8
    for j in range(NB):
        E(f"ds_read_b128 {vr(vB+4*j,4)}, v18 offset:{1024*j}")
    for hd in range(32):
        E(f"s_waitcnt lgkmcnt({min(NB-1, 31-hd)})")
        E(f"v_mfma_f32_32x32x16_bf16 {vr(vAcc,16)}, {vr(vWo+4*hd,4)}, {vr(vB+4*(hd%NB),4)}, {'0' if hd == 0 else vr(vAcc,16)}")
        if hd + NB < 32:
            E(f"ds_read_b128 {vr(vB+4*(hd%NB),4)}, v18 offset:{1024*(hd+NB)}")
    E("s_nop 11")
    for r in range(16):
        E(f"v_fma_f32 v{vAcc+r}, v{vAcc+r}, v21, v{vA+r}")
    for j in range(8):
        E(f"v_cvt_pk_bf16_f32 v{vB+j}, v{vAcc+2*j}, v{vAcc+2*j+1}")
    E("s_nop 1")
    for a in (0, 1, 4, 5):
        E(f"v_permlane32_swap_b32 v{vB+a}, v{vB+2+a}")
    E(f"global_store_dwordx4 v14, {vr(vB,4)}, {sr(pOut,2)}\nglobal_store_dwordx4 v14, {vr(vB+4,4)}, {sr(pOut,2)} offset:32")
    if STAMP:
        E("s_waitcnt vmcnt(0)")
    stamp("h")
    stamp_flush("h")
    E("L_end:\ns_endpgm")

hdr = open(f"cdna_kernels/{NAME}.s.ref").read().split("; Override launch")[0]
prologue(); main_wave(); helper_wave()
out = hdr + f"""; @launch grid=(256,1,1) block=(512,1,1) lds={LDS_BYTES}
.amdgcn_target "amdgcn-amd-amdhsa--gfx950"
.text
.globl {NAME}_kernel
.p2align 8
.type {NAME}_kernel,@function
{NAME}_kernel:
""" + "\n".join(L) + f"""
.section .rodata,"a"
.p2align 6
.amdhsa_kernel {NAME}_kernel
  .amdhsa_next_free_vgpr 256
  .amdhsa_next_free_sgpr 102
  .amdhsa_accum_offset 256
  .amdhsa_group_segment_fixed_size 0
  .amdhsa_kernarg_size 128
  .amdhsa_user_sgpr_count 2
  .amdhsa_user_sgpr_kernarg_segment_ptr 1
  .amdhsa_system_sgpr_workgroup_id_x 1
.end_amdhsa_kernel
"""
open(sys.argv[1], "w").write(out)
```

```python
import sys, math, struct

NAME = "gated_mix__ssm_conv_s4__mha_block__prompt"
OPT = dict(stamp=0, rot=0, fs=64, spin=200000)
for a in sys.argv[2:]:
    k, v = a.split("=")
    OPT[k] = int(v)
STAMP = OPT["stamp"]
FS = OPT["fs"]
FSH = int(math.log2(FS))

L = []
def E(s):
    for x in s.split("\n"):
        x = x.strip()
        if x:
            L.append(("" if x.endswith(":") else "    ") + x)
def fbits(x): return "0x%08x" % struct.unpack("<I", struct.pack("<f", x))[0]
def vr(a, n): return f"v[{a}:{a+n-1}]"
def sr(a, n): return f"s[{a}:{a+n-1}]"

WS_KV = 0
WS_OF = 4 << 20
WS_AT = 6 << 20
WS_FL = 8 << 20
WS_ST = 10 << 20
F1, F2, F3 = 0, 1024, 2048
SLOT = 28672; WPART = 7168
KG = 114688; KGS = 8704
KCP = 4160 + 64 - 4160 % 256 + (0 if 4160 % 256 <= 64 else 256)
KCP = 4160
assert KCP % 256 == 64
UR = KG + 4 * KGS; URS = 4576
GP = UR + 2 * URS
CNT = GP + 1024
LDS_BYTES = CNT + 64
EXCH = 0; RED = 24576; REDS = 4608; CRED = 43008; WST = 59392; OFL = 43008
assert LDS_BYTES <= 163840
sW, sHP, sRB, sCH, sROT = 3, 4, 5, 6, 7
SRDX, SRDW = 8, 12
pX, pAre, pAim, pBre, pBim, pCre, pCim, pLdt = 16, 18, 20, 22, 24, 26, 28, 30
pDsk, pW, pWo, pGw, pOut, pDbg, pWs = 32, 36, 38, 40, 42, 44, 46
pFL = 34
sT = 48
sSPIN = 62
sST = 64

nstamp = {"m": 0, "h": 0}
SPM, SPH = OPT.get("spm", -1), OPT.get("sph", -1)
def spin_end(role):
    if (SPM if role == "m" else SPH) < 0: return
    l = newlab("sp")
    if role == "m": E("s_barrier")
    E(f"{l}:\ns_memrealtime s[98:99]\ns_waitcnt lgkmcnt(0)\ns_sub_u32 s98, s98, s96\ns_cmp_lt_u32 s98, 4000\ns_cbranch_scc1 {l}")
def stamp(role):
    if SPM >= 0 or SPH >= 0:
        i = nstamp[role]; nstamp[role] += 1
        if i == (SPM if role == "m" else SPH): E("s_memrealtime s[96:97]\ns_waitcnt lgkmcnt(0)")
        return
    if not STAMP: return
    i = nstamp[role]; nstamp[role] += 1
    assert i < 16
    E(f"s_memrealtime {sr(sST+2*i,2)}\ns_waitcnt lgkmcnt(0)")
def stamp_flush(role):
    if not STAMP: return
    E(f"s_lshl_b32 s{sT}, s2, 3\ns_add_u32 s{sT}, s{sT}, s{sW}\ns_lshl_b32 s{sT}, s{sT}, 6\ns_add_u32 s{sT}, s{sT}, {WS_ST}\nv_mov_b32 v2, s{sT}")
    for i in range(nstamp[role]):
        E(f"v_mov_b32 v3, s{sST+2*i}\nglobal_store_dword v2, v3, {sr(pWs,2)} offset:{4*i}")
    E(f"s_getreg_b32 s{sT}, hwreg(HW_REG_XCC_ID)\nv_mov_b32 v3, s{sT}\nglobal_store_dword v2, v3, {sr(pWs,2)} offset:60")

lab = [0]
def newlab(p):
    lab[0] += 1
    return f"L_{p}{lab[0]}"

def poll_global(vaddr, base, vtmp):
    l = newlab("poll"); d = newlab("polld")
    E(f"""
    s_mov_b32 s{sSPIN}, {OPT['spin']}
    {l}:
    global_load_dword v{vtmp}, v{vaddr}, {sr(base,2)} sc1
    s_sub_u32 s{sSPIN}, s{sSPIN}, 1
    s_cbranch_scc1 {d}
    s_waitcnt vmcnt(0)
    v_cmp_ne_u32 vcc, 0, v{vtmp}
    s_nop 1
    s_cmp_eq_u64 vcc, -1
    s_cbranch_scc0 {l}
    {d}:
    s_waitcnt vmcnt(0)
    """)
def lds_arrive(vaddr, vone):
    E(f"""
    s_waitcnt lgkmcnt(0)
    s_mov_b64 exec, 1
    ds_add_u32 v{vaddr}, v{vone}
    s_mov_b64 exec, -1
    """)
def lds_wait(vaddr, vtmp, n):
    l = newlab("lw"); d = newlab("lwd")
    E(f"""
    s_mov_b32 s{sSPIN}, {OPT['spin']*8}
    {l}:
    ds_read_b32 v{vtmp}, v{vaddr}
    s_sub_u32 s{sSPIN}, s{sSPIN}, 1
    s_cbranch_scc1 {d}
    s_waitcnt lgkmcnt(0)
    v_readfirstlane_b32 s{sSPIN+1}, v{vtmp}
    s_nop 1
    s_cmp_ge_u32 s{sSPIN+1}, {n}
    s_cbranch_scc0 {l}
    {d}:
    s_waitcnt lgkmcnt(0)
    """)

def prologue():
    E(f"""
    s_cmp_ge_u32 s2, 256
    s_cbranch_scc1 L_end
    s_load_dwordx16 s[16:31], s[0:1], 0
    s_load_dwordx16 s[32:47], s[0:1], 64
    v_lshrrev_b32 v2, 6, v0
    v_and_b32 v1, 63, v0
    v_readfirstlane_b32 s{sW}, v2
    s_lshr_b32 s{sT}, s2, 3
    s_and_b32 s{sHP}, s2, 1
    s_lshl_b32 s{sHP}, s{sHP}, 3
    s_and_b32 s{sT+1}, s{sT}, 7
    s_or_b32 s{sHP}, s{sHP}, s{sT+1}
    s_bfe_u32 s{sRB}, s2, 0x20001
    s_lshl_b32 s{sRB}, s{sRB}, 2
    s_lshr_b32 s{sT+1}, s{sT}, 3
    s_or_b32 s{sRB}, s{sRB}, s{sT+1}
    s_and_b32 s{sCH}, s2, 7
    s_lshl_b32 s{sCH}, s{sCH}, 5
    s_or_b32 s{sCH}, s{sCH}, s{sT}
    s_lshl_b32 s{sCH}, s{sCH}, 1
    """)
    if OPT["rot"] == 0:
        E(f"s_mov_b32 s{sROT}, 0")
    elif OPT["rot"] == 1:
        E(f"s_xor_b32 s{sROT}, s{sHP}, s{sRB}\ns_and_b32 s{sROT}, s{sROT}, 1\ns_lshl_b32 s{sROT}, s{sROT}, 2")
    else:
        E(f"s_lshl_b32 s{sROT}, s{sRB}, 1\ns_add_u32 s{sROT}, s{sROT}, s{sHP}\ns_and_b32 s{sROT}, s{sROT}, 7")
    E(f"""
    s_cmp_ge_u32 s{sW}, 4
    s_cbranch_scc1 L_helper
    """)

def main_wave():
    vXD = 4
    vWD = 8
    vXA = 10
    vFB = 24
    aA, aB, aV = 72, 88, 104
    sXO, sWO, sM0 = sT + 2, sT + 3, sT + 4
    E(f"""
    s_lshl_b32 s{sT}, s{sRB}, 2
    s_add_u32 s{sT}, s{sT}, s{sW}
    s_lshl_b32 s{sT}, s{sT}, 15
    v_lshrrev_b32 v2, 3, v1
    v_lshl_add_u32 v2, v2, 10, s{sT}
    v_lshrrev_b32 v3, 4, v1
    v_xor_b32 v3, v3, v1
    v_and_b32 v3, 7, v3
    v_lshl_add_u32 v{vXD}, v3, 4, v2
    v_xor_b32 v{vXD+1}, 64, v{vXD}
    v_add_u32 v{vXD+1}, 7168, v{vXD+1}
    v_add_u32 v{vXD+2}, 14336, v{vXD}
    v_add_u32 v{vXD+3}, 14336, v{vXD+1}
    s_mul_i32 s{sT}, s{sW}, 49152
    s_lshl_b32 s{sT+1}, s{sHP}, 6
    s_add_u32 s{sT}, s{sT}, s{sT+1}
    v_lshrrev_b32 v2, 2, v1
    v_mul_u32_u24 v2, 3072, v2
    v_and_b32 v3, 3, v1
    v_lshlrev_b32 v3, 4, v3
    v_add3_u32 v{vWD}, v2, v3, s{sT}
    v_xor_b32 v{vWD+1}, 32, v{vWD}
    s_mul_i32 s{sM0}, s{sW}, {WPART}
    s_waitcnt lgkmcnt(0)
    s_mov_b32 s{SRDX}, s{pX}
    s_mov_b32 s{SRDX+1}, s{pX+1}
    s_mov_b32 s{SRDX+2}, {2048*1024}
    s_mov_b32 s{SRDX+3}, 0x00020000
    s_mov_b32 s{SRDW}, s{pW}
    s_mov_b32 s{SRDW+1}, s{pW+1}
    s_mov_b32 s{SRDW+2}, {512*3072}
    s_mov_b32 s{SRDW+3}, 0x00020000
    """)
    stamp("m")
    def dma(i):
        slot = i & 3
        o = [f"s_add_u32 s{sT}, s{sROT}, {i}", f"s_and_b32 s{sT}, s{sT}, 7", f"s_lshl_b32 s{sXO}, s{sT}, 7",
             f"s_add_u32 m0, s{sM0}, {slot*SLOT+4096}", f"s_mul_i32 s{sWO}, s{sT}, 196608"]
        for seg in range(3):
            o.append(f"buffer_load_dwordx4 v{vWD+(seg==1)}, {sr(SRDW,4)}, s{sWO} offen offset:{seg*1024} lds")
        o += [f"s_add_u32 m0, s{sM0}, {slot*SLOT}", "s_nop 0"]
        for j in range(4):
            o.append(f"buffer_load_dwordx4 v{vXD+j}, {sr(SRDX,4)}, s{sXO} offen offset:{j*1024} lds")
        return o
    for i in range(4):
        E("\n".join(dma(i)))
    E(f"""
    s_add_u32 s{pFL}, s{pWs}, {WS_FL}
    s_addc_u32 s{pFL+1}, s{pWs+1}, 0
    v_and_b32 v2, 31, v1
    v_lshl_add_u32 v2, v2, 7, s{sM0}
    v_bfe_u32 v3, v1, 1, 3
    v_lshrrev_b32 v{vXA+1}, 5, v1
    v_xor_b32 v3, v3, v{vXA+1}
    v_lshl_add_u32 v{vXA}, v3, 4, v2
    v_xor_b32 v{vXA+1}, 32, v{vXA}
    v_xor_b32 v{vXA+2}, 64, v{vXA}
    v_xor_b32 v{vXA+3}, 0x60, v{vXA}
    v_lshrrev_b32 v2, 5, v1
    v_lshlrev_b32 v2, 3, v2
    v_bfe_u32 v3, v1, 2, 2
    v_add_u32 v2, v2, v3
    v_lshlrev_b32 v2, 6, v2
    v_and_b32 v3, 3, v1
    v_lshl_add_u32 v2, v3, 3, v2
    v_add_u32 v2, 4096, v2
    v_bfe_u32 v3, v1, 4, 1
    v_mul_u32_u24 v{vXA+4}, 1056, v3
    v_add_u32 v{vXA+4}, v{vXA+4}, v2
    v_xor_b32 v{vXA+5}, 32, v{vXA+4}
    v_lshl_add_u32 v{vXA+6}, v3, 5, v2
    v_add_u32 v{vXA+6}, 2048, v{vXA+6}
    """)
    for j in range(7):
        E(f"v_add_u32 v{vXA+7+j}, {2*SLOT}, v{vXA+j}")
    def reads(n):
        i, s = n >> 2, n & 3
        slot = i & 3
        a = vXA + 7 * (slot >> 1)
        so = (slot & 1) * SLOT
        f = vFB + 16 * (n % 3)
        o = [f"ds_read_b128 {vr(f,4)}, v{a+s} offset:{so}"]
        for c in range(3):
            o.append(f"ds_read_b64_tr_b16 {vr(f+4+4*c,2)}, v{a+4+c} offset:{so+s*WPART}")
            o.append(f"ds_read_b64_tr_b16 {vr(f+6+4*c,2)}, v{a+4+c} offset:{so+s*WPART+256}")
        return o
    E("s_waitcnt vmcnt(21)\ns_barrier")
    stamp("m")
    E("\n".join(reads(0) + reads(1)))
    vmw = {1: 14, 2: 14, 3: 14, 4: 14, 5: 14, 6: 7, 7: 0}
    for n in range(32):
        f = vFB + 16 * (n % 3)
        c = (lambda a: "0" if n == 0 else vr(a, 16))
        m = [f"v_mfma_f32_32x32x16_bf16 {vr(aA,16)}, {vr(f+4,4)}, {vr(f,4)}, {c(aA)}",
             f"v_mfma_f32_32x32x16_bf16 {vr(aB,16)}, {vr(f+8,4)}, {vr(f,4)}, {c(aB)}",
             f"v_mfma_f32_32x32x16_bf16 {vr(aV,16)}, {vr(f,4)}, {vr(f+12,4)}, {c(aV)}"]
        r = reads(n + 2) if n + 2 < 32 else []
        E(f"s_waitcnt lgkmcnt({7 if n < 31 else 0})")
        E(m[0])
        d = []
        if (n + 2) % 4 == 0 and n + 2 < 32:
            b = (n + 2) >> 2
            E(f"s_waitcnt vmcnt({vmw[b]}) lgkmcnt(0)")
            if STAMP == 3: stamp("m")
            E("s_barrier")
            if STAMP == 2: stamp("m")
            if b + 3 <= 7: d = dma(b + 3)
        E("\n".join(r[:3])); E(m[1]); E("\n".join(r[3:])); E(m[2])
        E("\n".join(d))
    stamp("m")
    vQ = 4
    vIDX, vKA, vVA, vFA = 20, 21, 22, 23
    SA, SB = 24, 40
    vP = 24
    vKV = 192
    vO = 128
    vT = 56
    sX, sZ, sKVb, sKV, sJ, sMask, sCnt = sT, sT + 1, sT + 2, sT + 4, sT + 6, sT + 8, sT + 7
    qs = fbits(0.25 * math.log2(math.e))
    E(f"""
    v_and_b32 v{vT}, 15, v1
    v_lshlrev_b32 v{vT}, 2, v{vT}
    global_load_dword v{vT+1}, v{vT}, {sr(pDbg,2)} sc1
    s_and_b32 s{sX}, s{sW}, 1
    s_lshr_b32 s{sZ}, s{sW}, 1
    s_lshl_b32 s{sT+10}, s{sRB}, 2
    s_add_u32 s{sT+10}, s{sT+10}, s{sW}
    s_lshl_b32 s{sT+10}, s{sT+10}, 11
    s_lshl_b32 s{sT+11}, s{sHP}, 18
    s_add_u32 s{sT+10}, s{sT+10}, s{sT+11}
    v_lshlrev_b32 v{vKA}, 4, v1
    v_add_u32 v{vT+2}, s{sT+10}, v{vKA}
    v_add_u32 v{vT+3}, 0x20000, v{vT+2}
    v_and_b32 v{vVA}, 15, v1
    v_lshrrev_b32 v{vT+4}, 5, v1
    v_lshl_add_u32 v{vVA}, v{vT+4}, 4, v{vVA}
    v_lshlrev_b32 v{vVA}, 4, v{vVA}
    v_bfe_u32 v{vT+4}, v1, 4, 1
    v_lshlrev_b32 v{vT+4}, 17, v{vT+4}
    v_add3_u32 v{vT+4}, v{vT+4}, v{vVA}, s{sT+10}
    s_mul_i32 s{sT+11}, s{sW}, 6144
    v_add_u32 v{vT+5}, s{sT+11}, v{vKA}
    s_mov_b32 s{sT+11}, {qs}
    """)
    for j in range(4):
        E(f"v_cvt_pk_bf16_f32 v{vP+8+j}, v{aA+8+2*j}, v{aA+9+2*j}")
    E(f"global_store_dwordx4 v{vT+2}, {vr(vP+8,4)}, {sr(pWs,2)} sc1")
    for j in range(4):
        E(f"v_cvt_pk_bf16_f32 v{vP+12+j}, v{aB+8+2*j}, v{aB+9+2*j}")
    E(f"global_store_dwordx4 v{vT+3}, {vr(vP+12,4)}, {sr(pWs,2)} sc1")
    for j in range(8):
        E(f"v_cvt_pk_bf16_f32 v{vP+16+j}, v{aV+2*j}, v{aV+1+2*j}")
    E("s_nop 1")
    for a in (0, 1, 4, 5):
        E(f"v_permlane32_swap_b32 v{vP+16+a}, v{vP+18+a}")
    E(f"global_store_dwordx4 v{vT+4}, {vr(vP+16,4)}, {sr(pWs,2)} offset:1024 sc1")
    E(f"global_store_dwordx4 v{vT+4}, {vr(vP+20,4)}, {sr(pWs,2)} offset:1536 sc1")
    for a, o in ((aA, 0), (aB, 4)):
        for j in range(8):
            E(f"v_mul_f32 v{a+j}, s{sT+11}, v{a+j}")
        for j in range(4):
            E(f"v_cvt_pk_bf16_f32 v{vP+o+j}, v{a+2*j}, v{a+1+2*j}")
    for j in range(6):
        E(f"ds_write_b128 v{vT+5}, {vr(vP+4*j,4)} offset:{EXCH+1024*j}")
    E(f"""
    v_mov_b32 v{vIDX}, 0xdddddddd
    v_and_b32 v{vT+6}, 27, v1
    v_cmp_eq_u32 vcc, 16, v{vT+6}
    v_mov_b32 v{vT+6}, 0x3f803f80
    s_mov_b32 s{sMask}, 0x0000ffff
    s_mov_b32 s{sMask+1}, 0x0000ffff
    v_cndmask_b32 v{vT+6}, 0, v{vT+6}, vcc
    """)
    for s in range(4):
        for j in range(8):
            E(f"v_mov_b32 v{vKV+12*s+4+j}, v{vT+6}")
    E(f"""
    s_lshl_b32 s{sT+10}, s{sX}, 10
    s_mul_i32 s{sT+11}, s{sZ}, 12288
    s_add_u32 s{sT+12}, s{sT+10}, s{sT+11}
    v_add_u32 v{vT+7}, s{sT+12}, v{vKA}
    s_sub_u32 s{sT+12}, s{sT+10}, s{sT+11}
    s_add_u32 s{sT+12}, s{sT+12}, 12288
    v_add_u32 v{vT+8}, s{sT+12}, v{vKA}
    s_lshl_b32 s{sT+10}, s{sX}, 8
    s_add_u32 s{sT+12}, s{sT+10}, s{sT+11}
    v_add_u32 v{vT+9}, s{sT+12}, v{vKA}
    s_waitcnt lgkmcnt(0)
    s_barrier
    ds_read_b128 {vr(vQ,4)}, v{vT+7} offset:{EXCH}
    ds_read_b128 {vr(vQ+4,4)}, v{vT+7} offset:{EXCH+6144}
    ds_read_b128 {vr(vQ+8,4)}, v{vT+8} offset:{EXCH}
    ds_read_b128 {vr(vQ+12,4)}, v{vT+8} offset:{EXCH+6144}
    ds_read_b128 {vr(vKV,4)}, v{vT+7} offset:{EXCH+2048}
    ds_read_b128 {vr(vKV+12,4)}, v{vT+7} offset:{EXCH+2048+6144}
    s_mov_b64 exec, {sr(sMask,2)}
    ds_read_b128 {vr(vKV+4,4)}, v{vT+9} offset:{EXCH+4096}
    ds_read_b128 {vr(vKV+8,4)}, v{vT+9} offset:{EXCH+5120}
    ds_read_b128 {vr(vKV+16,4)}, v{vT+9} offset:{EXCH+4096+6144}
    ds_read_b128 {vr(vKV+20,4)}, v{vT+9} offset:{EXCH+5120+6144}
    s_mov_b64 exec, -1
    """)
    E(f"""
    s_lshl_b32 s{sT+10}, s{sHP}, 4
    s_add_u32 s{sT+11}, s{sT+10}, s{sRB}
    s_lshl_b32 s{sT+11}, s{sT+11}, 2
    s_add_u32 s{sT+11}, s{sT+11}, s{sW}
    s_lshl_b32 s{sT+11}, s{sT+11}, {FSH}
    v_mov_b32 v{vT+10}, s{sT+11}
    v_mov_b32 v{vT+11}, 1
    v_bfe_u32 v{vFA}, v1, 1, 4
    v_add_u32 v{vFA}, s{sT+10}, v{vFA}
    v_lshlrev_b32 v{vFA}, 1, v{vFA}
    v_add_u32 v{vFA}, s{sZ}, v{vFA}
    v_and_b32 v{vT+12}, 1, v1
    v_lshl_add_u32 v{vFA}, v{vFA}, 1, v{vT+12}
    v_lshlrev_b32 v{vFA}, {FSH}, v{vFA}
    s_lshl_b32 s{sT+10}, s{sHP}, 1
    s_add_u32 s{sT+10}, s{sT+10}, s{sX}
    s_lshl_b32 s{sT+10}, s{sT+10}, 17
    s_lshl_b32 s{sT+11}, s{sZ}, 12
    s_add_u32 s{sT+10}, s{sT+10}, s{sT+11}
    s_add_u32 s{sKVb}, s{pWs}, s{sT+10}
    s_addc_u32 s{sKVb+1}, s{pWs+1}, 0
    """)
    for j in range(64):
        E(f"v_mov_b32 v{vO+j}, 0")
    for j in range(8):
        E(f"v_mov_b32 v{SB+8+j}, 0")
    lr = newlab("rdy")
    E(f"""
    s_waitcnt vmcnt(0)
    v_cmp_ne_u32 vcc, 0, v{vT+1}
    s_nop 1
    s_cmp_eq_u64 vcc, -1
    s_cbranch_scc1 {lr}
    """)
    poll_global(vT, pDbg, vT + 1)
    E(f"""
    {lr}:
    s_mov_b64 exec, 1
    global_store_dword v{vT+10}, v{vT+11}, {sr(pFL,2)} sc1
    s_mov_b64 exec, -1
    """)
    stamp("m")
    poll_global(vFA, pFL, vT + 1)
    stamp("m")
    def kvaddr():
        return [f"s_add_u32 s{sJ}, s{sJ}, 0x2000", f"s_and_b32 s{sJ}, s{sJ}, 0x1e000",
                f"s_add_u32 s{sKV}, s{sKVb}, s{sJ}", f"s_addc_u32 s{sKV+1}, s{sKVb+1}, 0"]
    def kload(st, par):
        return [f"global_load_dwordx4 {vr(vKV+12*st,4)}, v{vKA}, {sr(sKV,2)} offset:{par*2048} sc1"]
    def vload(st, par):
        return [f"s_mov_b64 exec, {sr(sMask,2)}",
                f"global_load_dwordx4 {vr(vKV+12*st+4,4)}, v{vVA}, {sr(sKV,2)} offset:{par*2048+1024} sc1",
                f"global_load_dwordx4 {vr(vKV+12*st+8,4)}, v{vVA}, {sr(sKV,2)} offset:{par*2048+1536} sc1",
                "s_mov_b64 exec, -1"]
    E(f"s_lshl_b32 s{sJ}, s{sRB}, 13")
    E("\n".join(kvaddr() + vload(2, 0) + kload(2, 0)))
    E(f"""
    s_mov_b32 s{sCnt}, 8
    s_waitcnt lgkmcnt(0)
    v_mfma_f32_32x32x16_bf16 {vr(SA,16)}, {vr(vKV,4)}, {vr(vQ,4)}, 0
    s_nop 15
    .p2align 3
    L_attn:
    """)
    for t in range(4):
        for q in range(4):
            cur, oth = (SA, SB) if q % 2 == 0 else (SB, SA)
            tp, qp = (t, q - 1) if q else ((t - 1) % 4, 3)
            tn, qn = (t, q + 1) if q < 3 else ((t + 1) % 4, 0)
            after2, afterq, after1 = [], [], []
            st = (t + 3) % 4; par = (t + 3) & 1
            if q == 0:
                after2 = vload(st, par); afterq = kload(st, par)
            if q == 1 and par == 1:
                ka = kvaddr(); after2 = ka[:2]; after1 = ka[2:]
            if q == 3:
                after2 = ["s_waitcnt vmcnt(6)"]
                if t == 3: after1 = [f"s_sub_u32 s{sCnt}, s{sCnt}, 1", f"s_cmp_lg_u32 s{sCnt}, 0"]
            for i in range(16):
                E(f"v_exp_f32 v{cur+i}, v{cur+i}")
                if i == 1:
                    E(f"v_smfmac_f32_32x32x32_bf16 {vr(vO+16*qp,16)}, {vr(vKV+12*tp+8,4)}, {vr(oth+8,8)}, v{vIDX}")
                    E("\n".join(after2))
                if i == 4:
                    E(f"v_mfma_f32_32x32x16_bf16 {vr(oth,16)}, {vr(vKV+12*tn,4)}, {vr(vQ+4*qn,4)}, 0")
                    E("\n".join(afterq))
                if i == 10:
                    E(f"v_smfmac_f32_32x32x32_bf16 {vr(vO+16*q,16)}, {vr(vKV+12*t+4,4)}, {vr(cur,8)}, v{vIDX}")
                    E("\n".join(after1))
    E(f"""
    s_cbranch_scc1 L_attn
    s_mul_i32 s{sT+10}, s{sW}, {REDS}
    v_smfmac_f32_32x32x32_bf16 {vr(vO+48,16)}, {vr(vKV+36+8,4)}, {vr(SB+8,8)}, v{vIDX}
    """)
    stamp("m")
    E(f"""
    v_add_u32 v{vT}, s{sT+10}, v{vKA}
    v_lshrrev_b32 v{vT+1}, 2, v{vKA}
    v_add_u32 v{vT+1}, s{sT+10}, v{vT+1}
    s_xor_b32 s{sT+11}, s{sW}, 2
    s_mul_i32 s{sT+11}, s{sT+11}, {REDS}
    v_add_u32 v{vT+2}, s{sT+11}, v{vKA}
    v_lshrrev_b32 v{vT+3}, 2, v{vKA}
    v_add_u32 v{vT+3}, s{sT+11}, v{vT+3}
    ds_write_b128 v{vT}, {vr(vO+32,4)} offset:{RED}
    ds_write_b128 v{vT}, {vr(vO+36,4)} offset:{RED+1024}
    ds_write_b32 v{vT+1}, v{vO+40} offset:{RED+4096}
    s_lshl_b32 s{sT+10}, s{sRB}, 1
    s_add_u32 s{sT+10}, s{sT+10}, s{sZ}
    s_lshl_b32 s{sT+11}, s{sHP}, 1
    s_add_u32 s{sT+11}, s{sT+11}, s{sX}
    ds_write_b128 v{vT}, {vr(vO+48,4)} offset:{RED+2048}
    ds_write_b128 v{vT}, {vr(vO+52,4)} offset:{RED+3072}
    ds_write_b32 v{vT+1}, v{vO+56} offset:{RED+4352}
    s_lshl_b32 s{sT+12}, s{sT+10}, 6
    s_add_u32 s{sT+12}, s{sT+12}, s{sT+11}
    s_lshl_b32 s{sT+12}, s{sT+12}, 10
    s_add_u32 s{sT+12}, s{sT+12}, {WS_OF}
    v_add_u32 v{vT+4}, s{sT+12}, v{vKA}
    v_add_u32 v{vT+5}, 0x8000, v{vT+4}
    s_lshl_b32 s{sT+12}, s{sT+10}, 5
    s_add_u32 s{sT+12}, s{sT+12}, s{sT+11}
    s_add_u32 s{sT+12}, s{sT+12}, {F2}
    s_lshl_b32 s{sT+12}, s{sT+12}, {FSH}
    v_mov_b32 v{vT+10}, s{sT+12}
    s_waitcnt lgkmcnt(0)
    s_barrier
    ds_read_b32 v{SA+8}, v{vT+3} offset:{RED+4096}
    ds_read_b32 v{SB+8}, v{vT+3} offset:{RED+4352}
    ds_read_b128 {vr(SA,4)}, v{vT+2} offset:{RED}
    ds_read_b128 {vr(SA+4,4)}, v{vT+2} offset:{RED+1024}
    ds_read_b128 {vr(SB,4)}, v{vT+2} offset:{RED+2048}
    ds_read_b128 {vr(SB+4,4)}, v{vT+2} offset:{RED+3072}
    s_mov_b32 s{sT+10}, {fbits(2.0**-30)}
    s_mov_b32 s{sT+11}, {fbits(2.0**50)}
    s_waitcnt lgkmcnt(0)
    """)
    for j in (8, 0, 1, 2, 3, 4, 5, 6, 7):
        E(f"v_add_f32 v{vO+j}, v{vO+j}, v{SA+j}\nv_add_f32 v{vO+16+j}, v{vO+16+j}, v{SB+j}")
    E(f"""
    v_min_f32 v{vT+6}, v{vO+8}, v{vO+24}
    v_max_f32 v{vT+7}, v{vO+8}, v{vO+24}
    """)
    E(f"v_max3_f32 v{vT+8}, abs(v{vO}), abs(v{vO+1}), abs(v{vO+2})")
    rest = [vO + j for j in range(3, 8)] + [vO + 16 + j for j in range(8)] + [vO + 23]
    for j in range(0, 14, 2):
        E(f"v_max3_f32 v{vT+8}, abs(v{rest[j]}), abs(v{rest[j+1]}), v{vT+8}")
    E(f"""
    v_cmp_lt_f32 vcc, s{sT+10}, v{vT+6}
    v_cmp_gt_f32 {sr(sT+12,2)}, s{sT+11}, v{vT+7}
    s_mov_b32 s{sT+11}, 0x7f000000
    s_and_b64 {sr(sT+12,2)}, {sr(sT+12,2)}, vcc
    v_cmp_gt_f32 vcc, s{sT+11}, v{vT+8}
    s_nop 1
    s_and_b64 vcc, {sr(sT+12,2)}, vcc
    s_cmp_eq_u64 vcc, -1
    s_cbranch_scc0 L_safe
    L_norm:
    v_rcp_f32 v{vT+6}, v{vO+8}
    v_rcp_f32 v{vT+7}, v{vO+24}
    s_nop 0
    """)
    for j in range(8):
        E(f"v_mul_f32 v{vO+j}, v{vO+j}, v{vT+6}")
    for j in range(4):
        E(f"v_cvt_pk_bf16_f32 v{SA+j}, v{vO+2*j}, v{vO+2*j+1}")
    E(f"global_store_dwordx4 v{vT+4}, {vr(SA,4)}, {sr(pWs,2)} sc1")
    for j in range(8):
        E(f"v_mul_f32 v{vO+16+j}, v{vO+16+j}, v{vT+7}")
    for j in range(4):
        E(f"v_cvt_pk_bf16_f32 v{SB+j}, v{vO+16+2*j}, v{vO+17+2*j}")
    E(f"""
    global_store_dwordx4 v{vT+5}, {vr(SB,4)}, {sr(pWs,2)} sc1
    s_waitcnt vmcnt(0)
    s_mov_b64 exec, 1
    global_store_dword v{vT+10}, v{vT+11}, {sr(pFL,2)} sc1
    s_mov_b64 exec, -1
    """)
    stamp("m")
    stamp_flush("m"); spin_end("m")
    E("s_endpgm")
    vM, vC = vT + 6, 72
    E(f"""
    L_safe:
    s_waitcnt vmcnt(0)
    s_lshl_b32 s{sT+10}, s{sZ}, 12
    s_sub_u32 s{sKVb}, s{sKVb}, s{sT+10}
    s_subb_u32 s{sKVb+1}, s{sKVb+1}, 0
    s_mov_b32 s{sKV}, s{sKVb}
    s_mov_b32 s{sKV+1}, s{sKVb+1}
    s_mov_b32 s{sCnt}, 64
    v_mov_b32 v{vM}, 0xff800000
    v_mov_b32 v{vM+1}, 0xff800000
    L_safe1:
    global_load_dwordx4 {vr(vKV,4)}, v{vKA}, {sr(sKV,2)} sc1
    s_add_u32 s{sKV}, s{sKV}, 2048
    s_addc_u32 s{sKV+1}, s{sKV+1}, 0
    s_waitcnt vmcnt(0)
    v_mfma_f32_32x32x16_bf16 {vr(SA,16)}, {vr(vKV,4)}, {vr(vQ,4)}, 0
    v_mfma_f32_32x32x16_bf16 {vr(SB,16)}, {vr(vKV,4)}, {vr(vQ+4,4)}, 0
    s_nop 15
    """)
    for j in range(8):
        E(f"v_max3_f32 v{vM}, v{SA+2*j}, v{SA+2*j+1}, v{vM}\nv_max3_f32 v{vM+1}, v{SB+2*j}, v{SB+2*j+1}, v{vM+1}")
    E(f"""
    s_sub_u32 s{sCnt}, s{sCnt}, 1
    s_cmp_lg_u32 s{sCnt}, 0
    s_cbranch_scc1 L_safe1
    v_mov_b32 v{SA}, v{vM}
    v_mov_b32 v{SB}, v{vM+1}
    s_nop 1
    v_permlane32_swap_b32 v{SA}, v{vM}
    v_permlane32_swap_b32 v{SB}, v{vM+1}
    s_nop 1
    v_max_f32 v{vM}, v{vM}, v{SA}
    v_max_f32 v{vM+1}, v{vM+1}, v{SB}
    """)
    for j in range(16):
        E(f"v_sub_f32 v{vC+j}, 0, v{vM}\nv_sub_f32 v{vC+16+j}, 0, v{vM+1}\nv_mov_b32 v{vO+j}, 0\nv_mov_b32 v{vO+16+j}, 0")
    E(f"""
    s_mov_b32 s{sKV}, s{sKVb}
    s_mov_b32 s{sKV+1}, s{sKVb+1}
    s_mov_b32 s{sCnt}, 64
    L_safe2:
    """)
    E("\n".join(kload(0, 0) + vload(0, 0)))
    E(f"""
    s_add_u32 s{sKV}, s{sKV}, 2048
    s_addc_u32 s{sKV+1}, s{sKV+1}, 0
    s_waitcnt vmcnt(0)
    v_mfma_f32_32x32x16_bf16 {vr(SA,16)}, {vr(vKV,4)}, {vr(vQ,4)}, {vr(vC,16)}
    v_mfma_f32_32x32x16_bf16 {vr(SB,16)}, {vr(vKV,4)}, {vr(vQ+4,4)}, {vr(vC+16,16)}
    s_nop 15
    """)
    for j in range(32):
        E(f"v_exp_f32 v{SA+j}, v{SA+j}")
    E(f"""
    s_nop 1
    v_smfmac_f32_32x32x32_bf16 {vr(vO,16)}, {vr(vKV+4,4)}, {vr(SA,8)}, v{vIDX}
    v_smfmac_f32_32x32x32_bf16 {vr(vO,16)}, {vr(vKV+8,4)}, {vr(SA+8,8)}, v{vIDX}
    v_smfmac_f32_32x32x32_bf16 {vr(vO+16,16)}, {vr(vKV+4,4)}, {vr(SB,8)}, v{vIDX}
    v_smfmac_f32_32x32x32_bf16 {vr(vO+16,16)}, {vr(vKV+8,4)}, {vr(SB+8,8)}, v{vIDX}
    s_sub_u32 s{sCnt}, s{sCnt}, 1
    s_cmp_lg_u32 s{sCnt}, 0
    s_cbranch_scc1 L_safe2
    s_nop 15
    s_branch L_norm
    """)

def helper_wave():
    sH, sC, sMH, sRT, sCB, sD = sT, sT + 1, sT + 2, sT + 3, sT + 4, sT + 5
    sLd, sDs = sT + 6, sT + 7
    t0 = sT + 8
    vGW = 128
    vXF = 160
    vG, vGA0, vGA1 = 164, 165, 166
    vU = 168
    vUA = 167
    vPar = 4
    E(f"""
    L_helper:
    s_setprio {OPT.get('prio',2)}
    s_sub_u32 s{sH}, s{sW}, 4
    s_lshr_b32 s{sC}, s{sH}, 1
    s_and_b32 s{sMH}, s{sH}, 1
    s_and_b32 s{sRT}, s{sHP}, 3
    s_lshr_b32 s{sCB}, s{sHP}, 2
    s_add_u32 s{sD}, s{sCH}, s{sC}
    s_lshl_b32 s{t0}, s{sD}, 1
    s_add_u32 s{t0}, s{t0}, s{sMH}
    s_lshl_b32 s{t0}, s{t0}, 7
    v_lshl_add_u32 v2, v1, 1, s{t0}
    s_lshl_b32 s{t0+1}, s{sCH}, 1
    v_lshrrev_b32 v3, 5, v1
    v_lshlrev_b32 v3, 4, v3
    s_lshl_b32 s{t0+2}, s{sH}, 5
    v_add_u32 v3, s{t0+2}, v3
    s_waitcnt lgkmcnt(0)
    s_load_dword s{sLd}, {sr(pLdt,2)}, s{t0+1}
    s_load_dword s{sDs}, {sr(pDsk,2)}, s{t0+1}
    """)
    for j, p in enumerate((pAre, pAim, pBre, pBim, pCre, pCim)):
        E(f"global_load_ushort v{vPar+j}, v2, {sr(p,2)}")
    E(f"s_add_u32 s{pFL}, s{pWs}, {WS_FL}\ns_addc_u32 s{pFL+1}, s{pWs+1}, 0")
    for i in range(8):
        E(f"s_add_u32 s{t0}, s{sROT}, {i}\ns_and_b32 s{t0}, s{t0}, 7\ns_lshl_b32 s{t0}, s{t0}, 7\nv_add_u32 v10, s{t0}, v3")
        E(f"global_load_dwordx4 {vr(vGW+4*i,4)}, v10, {sr(pGw,2)}")
    stamp("h")
    ln = newlab("nl")
    E(f"""
    v_mov_b32 v12, 0
    v_mov_b32 v13, 0
    v_mov_b32 v14, 0
    v_mov_b32 v15, 0
    s_cmp_lt_u32 s2, 16
    s_cselect_b32 s{t0+3}, s{sW}, 0
    s_cmp_eq_u32 s{t0+3}, 7
    s_cbranch_scc0 {ln}
    s_mul_i32 s{t0}, s2, 192
    v_add_u32 v10, s{t0}, v1
    v_lshlrev_b32 v10, {FSH}, v10
    global_store_dword v10, v12, {sr(pFL,2)} sc1
    v_add_u32 v10, {64*FS}, v10
    global_store_dword v10, v12, {sr(pFL,2)} sc1
    v_add_u32 v10, {64*FS}, v10
    global_store_dword v10, v12, {sr(pFL,2)} sc1
    s_lshl_b32 s{t0}, s2, 2
    v_mov_b32 v10, s{t0}
    v_mov_b32 v11, 1
    s_waitcnt vmcnt(0)
    s_mov_b64 exec, 1
    global_store_dword v10, v11, {sr(pDbg,2)} sc1
    s_mov_b64 exec, -1
    {ln}:
    """)
    E(f"""
    s_mul_i32 s{t0}, s{sC}, {URS}
    s_add_u32 s{t0}, s{t0}, {UR+4096}
    v_lshl_add_u32 v10, v1, 4, s{t0}
    v_mov_b32 v11, {CNT}
    v_cmp_gt_u32 vcc, 30, v1
    s_nop 1
    v_cndmask_b32 v10, v11, v10, vcc
    ds_write_b128 v10, v[12:15]
    """)
    vWA, vRA = 16, 17
    E(f"""
    s_mul_i32 s{t0}, s{sRT}, {WPART}
    v_and_b32 v10, 31, v1
    v_lshl_add_u32 v10, v10, 7, s{t0}
    v_bfe_u32 v11, v1, 1, 3
    v_lshrrev_b32 v12, 5, v1
    v_xor_b32 v11, v11, v12
    s_lshl_b32 s{t0}, s{sH}, 1
    v_xor_b32 v11, s{t0}, v11
    v_lshl_add_u32 v{vGA0}, v11, 4, v10
    v_add_u32 v{vGA1}, {2*SLOT}, v{vGA0}
    v_mov_b32 v{vG}, 0
    s_lshl_b32 s{t0}, s{sH}, 19
    s_lshl_b32 s{t0+1}, s{sCH}, 1
    s_add_u32 s{t0}, s{t0}, s{t0+1}
    s_add_u32 s{t0}, s{t0}, 4096
    v_lshl_add_u32 v{vUA}, v1, 13, s{t0}
    s_mul_i32 s{t0}, s{sH}, {KGS}
    s_add_u32 s{t0}, s{t0}, {KG}
    v_lshl_add_u32 v{vWA}, v1, 2, s{t0}
    v_and_b32 v10, 31, v1
    v_mul_u32_u24 v10, 272, v10
    v_lshl_add_u32 v10, v12, 4, v10
    v_add_u32 v{vRA}, s{t0}, v10
    """)
    K = []
    def k(s, c=None):
        for x in s.split("\n"):
            x = x.strip()
            if not x: continue
            cc = c if c is not None else (8 if any(t in x for t in ("v_exp", "v_sin", "v_cos", "v_rcp", "mfma")) else 4)
            K.append((cc, x))
    va, vb, vCB, vt = 18, 19, 20, 22
    log2e = math.log2(math.e)
    c_hi = struct.unpack("<f", struct.pack("<f", log2e))[0]
    c_lo = log2e - c_hi
    k(f"""
    s_waitcnt lgkmcnt(0)
    s_lshl_b32 s{t0}, s{sC}, 4
    s_lshr_b32 s{sLd}, s{sLd}, s{t0}
    s_lshl_b32 s{sLd}, s{sLd}, 16
    s_lshr_b32 s{sDs}, s{sDs}, s{t0}
    s_lshl_b32 s{sDs}, s{sDs}, 16
    s_mov_b32 s{t0}, {fbits(c_hi)}
    v_mov_b32 v{vt}, s{sLd}
    v_mul_f32 v{vt+1}, s{t0}, v{vt}
    v_fma_f32 v{vt+2}, v{vt}, s{t0}, -v{vt+1}
    v_fmac_f32 v{vt+2}, {fbits(c_lo)}, v{vt}
    v_exp_f32 v{vt+1}, v{vt+1}
    v_mul_f32 v{vt+2}, {fbits(math.log(2.0))}, v{vt+2}
    v_fma_f32 v{vt+1}, v{vt+1}, v{vt+2}, v{vt+1}
    v_cvt_pk_bf16_f32 v{vt+1}, v{vt+1}, v{vt+1}
    v_lshlrev_b32 v{vt}, 16, v{vt+1}
    s_waitcnt vmcnt(8)
    """)
    for j in range(6):
        k(f"v_lshlrev_b32 v{vPar+j}, 16, v{vPar+j}")
    k(f"""
    v_mul_f32 v{va}, v{vt}, v{vPar}
    v_mul_f32 v{vb}, v{vt}, v{vPar+1}
    v_mul_f32 v{vPar+2}, v{vt}, v{vPar+2}
    v_mul_f32 v{vPar+3}, v{vt}, v{vPar+3}
    v_mul_f32 v{va}, s{t0}, v{va}
    v_mul_f32 v{vb}, 0.15915494, v{vb}
    """)
    def cmul(z, x, w):
        return [f"v_pk_mul_f32 {vr(z,2)}, {vr(x,2)}, {vr(w,2)} op_sel_hi:[0,1]",
                f"v_pk_fma_f32 {vr(z,2)}, {vr(x,2)}, {vr(w,2)}, {vr(z,2)} op_sel:[1,1,0] op_sel_hi:[1,0,1] neg_lo:[1,0,0]"]
    def direct(z, x):
        k(f"""
        v_mul_f32 v{vt+2}, {fbits(x)}, v{vb}
        v_mul_f32 v{vt+1}, {fbits(x)}, v{va}
        v_fract_f32 v{vt+2}, v{vt+2}
        v_exp_f32 v{vt+1}, v{vt+1}
        v_cos_f32 v{z}, v{vt+2}
        v_sin_f32 v{z+1}, v{vt+2}
        s_nop 0
        v_mul_f32 v{z}, v{z}, v{vt+1}
        v_mul_f32 v{z+1}, v{z+1}, v{vt+1}
        """)
    k("\n".join(cmul(vCB, vPar + 4, vPar + 2)))
    E1, E32, E256 = 28, 30, 32
    vE = 34
    vPk = 50
    direct(vE + 2, 8.0); direct(E32, 32.0)
    npk = [0]
    def put(z, rows, neg):
        p = vPk + npk[0] % 8; npk[0] += 1
        k(f"v_cvt_pk_bf16_f32 v{p}, v{z}, {'-' if neg else ''}v{z+1}")
        for r in rows:
            k(f"ds_write_b32 v{vWA}, v{p} offset:{272*r}")
    def e(j): return vE + 2 * (j % 8)
    k(f"v_mov_b32 v{e(0)}, 1.0\nv_mov_b32 v{e(0)+1}, 0")
    k("\n".join(cmul(e(2), e(1), e(1))))
    put(e(0), [0], False); put(e(1), [1], False)
    k("\n".join(cmul(e(3), e(2), e(1))))
    put(e(2), [2], False); put(e(3), [3], False)
    for j0 in range(4, 32, 4):
        cm = [cmul(e(j), e(j - 4), E32) for j in range(j0, j0 + 4)]
        k("\n".join(c[0] for c in cm)); k("\n".join(c[1] for c in cm))
        for j in range(j0, j0 + 4): put(e(j), [j], False)
    vEF, vGF, vD = 64, 96, 176
    for s in range(8):
        k(f"ds_read_b128 {vr(vEF+4*s,4)}, v{vRA} offset:{32*s}")
    direct(E1, 1.0); direct(E256, 256.0)
    k("s_waitcnt lgkmcnt(0)")
    def row(r, h): return 8 * (r >> 2) + 4 * h + (r & 3)
    g = {}
    vGv = 192
    for x in range(9): g[x] = vGv + 2 * x
    k(f"v_mov_b32 v{g[0]}, v{vCB}\nv_mov_b32 v{g[0]+1}, v{vCB+1}")
    E2 = e(0)
    k("\n".join(cmul(E2, E1, E1)))
    k("\n".join(cmul(g[1], g[0], E1)))
    put(g[0], [row(0, 0)], True)
    for x in range(2, 9, 2):
        xs = [y for y in (x, x + 1) if y <= 8]
        cm = [cmul(g[y], g[y - 2], E2) for y in xs]
        k("\n".join(c[0] for c in cm)); k("\n".join(c[1] for c in cm))
        put(g[x - 1], [row(x - 1, 0)], True)
        if x < 8: put(g[x], [row(x, 0)], True)
    A = {o: vGv + 18 + 2 * i for i, o in enumerate((0, 2, 4, 6, 8))}
    cm = [cmul(A[o], g[o], E256) for o in (0, 2, 4, 6, 8)]
    k("\n".join(c[0] for c in cm)); k("\n".join(c[1] for c in cm))
    for o, rs in ((0, (0, 1)), (2, (2,)), (4, (3, 4, 5)), (6, (6,)), (8, (7,))):
        put(A[o], [row(r, 1) for r in rs], True)
    src, dst = A, g
    for os_, r0, h in (((0, 4, 8), 8, 0), ((0, 4, 8), 8, 1), ((0, 8), 11, 0), ((0, 8), 11, 1), ((0, 8), 13, 0), ((0, 8), 13, 1)):
        cm = [cmul(dst[o], src[o], E256) for o in os_]
        k("\n".join(c[0] for c in cm)); k("\n".join(c[1] for c in cm))
        for i, o in enumerate(os_): put(dst[o], [row(r0 + i, h)], True)
        src, dst = dst, src
    for s in range(8):
        k(f"ds_read_b128 {vr(vGF+4*s,4)}, v{vRA} offset:{32*s}")
    k("s_waitcnt lgkmcnt(0)", 100)
    for s in range(8):
        k(f"v_mfma_f32_32x32x16_bf16 {vr(vD,16)}, {vr(vGF+4*s,4)}, {vr(vEF+4*s,4)}, {'0' if s == 0 else vr(vD,16)}", 40)
    k(f"s_mul_i32 s{t0}, s{sC}, {2*KGS}\ns_add_u32 s{t0}, s{t0}, {KG+KGS}\nv_lshl_add_u32 v{vWA}, v1, 4, s{t0}\ns_nop 15", 20)
    tot = sum(c for c, _ in K)
    nseg = 7
    segs = [[] for _ in range(nseg)]
    acc = 0
    for c, x in K:
        segs[min(nseg - 1, int(acc * nseg / tot))].append(x); acc += c
    def gate_glue(i):
        E("s_waitcnt lgkmcnt(0)\ns_barrier")
        if i == 1: E("s_waitcnt vmcnt(0)")
        if i >= 1:
            for j in range(4):
                E(f"v_dot2_f32_bf16 v{vG}, v{vXF+j}, v{vGW+4*(i-1)+j}, v{vG}")
        if i <= 7:
            slot = i & 3
            E(f"ds_read_b128 {vr(vXF,4)}, v{vGA1 if slot >> 1 else vGA0} offset:{(slot&1)*SLOT}")
    for i in range(nseg):
        if OPT.get("nokgen"): segs[i] = [x for x in segs[i] if not any(t in x for t in ("v_pk", "v_cvt", "ds_", "mfma"))]
        E("\n".join(segs[i]))
        if i == nseg - 1:
            lx = newlab("nx")
            E(f"s_cmp_eq_u32 s{sMH}, 0\ns_cbranch_scc1 {lx}")
            for j in range(4):
                E(f"ds_write_b128 v{vWA}, {vr(vD+4*j,4)} offset:{1024*j}")
            E(f"{lx}:")
        gate_glue(i)
        if i == OPT.get("gath", 5):
            for j in range(8):
                E(f"global_load_dword v{vU+j}, v{vUA}, {sr(pX,2)} offset:{1024*j-4096}")
    stamp("h")
    lk = newlab("nk")
    vR = 64
    E(f"s_cmp_eq_u32 s{sMH}, 0\ns_cbranch_scc0 {lk}")
    for j in range(4):
        E(f"ds_read_b128 {vr(vR+4*j,4)}, v{vWA} offset:{1024*j}")
    E(f"""
    s_mul_i32 s{t0}, s{sC}, {2*KGS}
    s_add_u32 s{t0}, s{t0}, {KG}
    v_lshl_add_u32 v10, v1, 4, s{t0}
    v_lshrrev_b32 v11, 1, v1
    v_mul_u32_u24 v11, {KCP}, v11
    v_and_b32 v12, 1, v1
    v_lshlrev_b32 v13, 4, v12
    v_add3_u32 v11, v11, v13, s{t0}
    v_cmp_eq_u32 {sr(t0+2,2)}, 1, v12
    v_cmp_eq_u32 vcc, 0, v1
    v_mov_b32 v13, s{sDs}
    v_mov_b32 v20, 0
    v_mov_b32 v21, 0
    v_mov_b32 v22, 0
    v_mov_b32 v23, 0
    v_cndmask_b32 v13, 0, v13, vcc
    s_waitcnt lgkmcnt(0)
    s_mov_b64 exec, 0xff
    ds_write_b128 v11, v[20:23]
    s_mov_b64 exec, -1
    """)
    for j in range(15):
        E(f"v_add_f32 v{vD+j}, v{vD+j}, v{vR+j}")
    E(f"""
    v_add_f32 v{vD}, v{vD}, v13
    v_cndmask_b32 v14, v{vD+11}, v{vD+12}, {sr(t0+2,2)}
    v_cndmask_b32 v15, v{vD+13}, v{vD+14}, {sr(t0+2,2)}
    """)
    D = lambda j: vD + j
    pats = [[(D(0), D(1)), (D(2), D(3)), (D(4), D(5)), (D(6), D(7))],
            [(D(8), D(8)), (D(8), D(9)), (D(9), D(9)), (D(10), D(10))],
            [(D(11), D(11)), (D(11), D(11)), (14, D(12)), (D(12), D(12))],
            [(D(13), D(13)), (D(13), D(13)), (15, D(14)), (D(14), D(14))]]
    vE0 = 64
    for u in range(4):
        for j, (a, b) in enumerate(pats[u]):
            E(f"v_cvt_pk_bf16_f32 v{vE0+8*u+j}, v{a}, v{b}")
        E(f"ds_write_b128 v10, {vr(vE0+8*u,4)} offset:{32+1024*u}")
    for u in range(4):
        E(f"ds_read_b64 {vr(vE0+8*u+4,2)}, v10 offset:{48+1024*u}")
    E("s_waitcnt lgkmcnt(0)")
    for u in range(4):
        b = vE0 + 8 * u; o = 96 + 12 * (u & 1)
        for j in range(4):
            E(f"v_alignbit_b32 v{o+j}, v{b+j+1}, v{b+j}, 16")
        E(f"ds_write_b128 v10, {vr(o,4)} offset:{32+1024*u+KCP}")
        for j in range(4):
            E(f"v_mov_b32 v{o+4+j}, v{b+j+1}")
        E(f"ds_write_b128 v10, {vr(o+4,4)} offset:{32+1024*u+2*KCP}")
        for j in range(4):
            E(f"v_alignbit_b32 v{o+8+j}, v{b+j+2}, v{b+j+1}, 16")
        E(f"ds_write_b128 v10, {vr(o+8,4)} offset:{32+1024*u+3*KCP}")
        if u == 0:
            E(f"""
            v_lshlrev_b32 v14, 16, v{b}
            s_mov_b64 exec, 1
            ds_write_b32 v10, v14 offset:{28+KCP}
            ds_write_b32 v10, v{b} offset:{28+2*KCP}
            ds_write_b32 v10, v14 offset:{24+3*KCP}
            ds_write_b32 v10, v{o} offset:{28+3*KCP}
            s_mov_b64 exec, -1
            """)
    E(f"{lk}:")
    gate_glue(7)
    E(f"""
    v_and_b32 v10, 31, v1
    v_lshlrev_b32 v10, 5, v10
    v_lshrrev_b32 v11, 5, v1
    v_lshl_add_u32 v11, v11, 2, v10
    s_lshl_b32 s{t0}, s{sH}, 3
    s_add_u32 s{t0}, s{t0}, {GP}
    v_add_u32 v11, s{t0}, v11
    v_add_u32 v{vGA0}, {GP}, v10
    s_waitcnt lgkmcnt(0)
    """)
    for j in range(4):
        E(f"v_dot2_f32_bf16 v{vG}, v{vXF+j}, v{vGW+28+j}, v{vG}")
    E(f"""
    s_nop 2
    ds_write_b32 v11, v{vG}
    s_waitcnt lgkmcnt(0)
    s_barrier
    """)
    stamp("h")
    vCA, vOne, vTm = 4, 5, 6
    E(f"""
    s_lshl_b32 s{t0}, s{sH}, 10
    s_sub_u32 s{t0}, {UR+4080}, s{t0}
    v_lshlrev_b32 v10, 4, v1
    v_sub_u32 v10, s{t0}, v10
    s_mov_b32 s{t0}, 0x05040100
    s_mov_b32 s{t0+1}, 0x07060302
    v_mov_b32 v{vCA}, {CNT}
    v_mov_b32 v{vOne}, 1
    s_waitcnt vmcnt(0)
    """)
    for j in range(4):
        E(f"v_perm_b32 v{12+j}, v{vU+6-2*j}, v{vU+7-2*j}, s{t0}")
        E(f"v_perm_b32 v{16+j}, v{vU+6-2*j}, v{vU+7-2*j}, s{t0+1}")
    E(f"ds_write_b128 v10, v[12:15]\nds_write_b128 v10, v[16:19] offset:{URS}")
    lds_arrive(vCA, vOne)
    vAA, vBA = 7, 8
    E(f"""
    v_and_b32 v10, 15, v1
    v_add_u32 v11, 1, v10
    v_and_b32 v12, 3, v11
    v_mul_u32_u24 v12, {KCP}, v12
    v_lshrrev_b32 v11, 2, v11
    v_lshl_add_u32 v12, v11, 3, v12
    v_lshrrev_b32 v13, 4, v1
    v_lshlrev_b32 v13, 4, v13
    s_mul_i32 s{t0}, s{sC}, {2*KGS}
    s_lshl_b32 s{t0+1}, s{sMH}, 8
    s_add_u32 s{t0}, s{t0}, s{t0+1}
    s_add_u32 s{t0}, s{t0}, {KG}
    v_add3_u32 v{vAA}, v12, v13, s{t0}
    s_mul_i32 s{t0}, s{sC}, {URS}
    s_add_u32 s{t0}, s{t0}, s{t0+1}
    s_add_u32 s{t0}, s{t0}, {UR+4064-3584}
    v_lshlrev_b32 v10, 5, v10
    v_sub_u32 v13, v13, v10
    v_add_u32 v{vBA}, s{t0}, v13
    """)
    lds_wait(vCA, vTm, 4)
    stamp("h")
    vY = 64
    vF = [96, 192]
    def creads(r):
        f = vF[r & 1]; o = []
        for gmm in range(8):
            o.append(f"ds_read_b64 {vr(f+4*gmm,2)}, v{vAA} offset:{512*gmm+64*r}")
            o.append(f"ds_read_b64 {vr(f+4*gmm+2,2)}, v{vAA} offset:{512*gmm+64*r+8}")
            o.append(f"ds_read_b128 {vr(f+32+4*gmm,4)}, v{vBA} offset:{3584-512*gmm+64*r}")
        return o
    E("\n".join(creads(0)))
    for r in range(4):
        f = vF[r & 1]
        nxt = creads(r + 1) if r < 3 else []
        E("s_waitcnt lgkmcnt(0)")
        seen = set()
        for gmm in range(8):
            for dl in range(8 - gmm):
                tau = gmm + dl
                c = "0" if (r == 0 and tau not in seen) else vr(vY + 4 * tau, 4)
                seen.add(tau)
                E(f"v_mfma_f32_16x16x32_bf16 {vr(vY+4*tau,4)}, {vr(f+4*gmm,4)}, {vr(f+32+4*dl,4)}, {c}")
                if nxt: E(nxt.pop(0))
    l1 = newlab("c1"); l2 = newlab("c2")
    E(f"""
    s_lshl_b32 s{t0}, s{sH}, 12
    s_add_u32 s{t0}, s{t0}, {CRED}
    v_lshl_add_u32 v10, v1, 4, s{t0}
    s_xor_b32 s{t0}, s{sH}, 1
    s_lshl_b32 s{t0}, s{t0}, 12
    s_add_u32 s{t0}, s{t0}, {CRED}
    v_lshl_add_u32 v11, v1, 4, s{t0}
    s_lshl_b32 s{t0}, s{sC}, 2
    s_add_u32 s{t0}, s{t0}, {CNT+4}
    v_mov_b32 v{vCA}, s{t0}
    s_cmp_eq_u32 s{sMH}, 0
    s_cbranch_scc0 {l1}
    """)
    for j in range(4):
        E(f"ds_write_b128 v10, {vr(vY+16+4*j,4)} offset:{1024*j}")
    E(f"s_branch {l2}\n{l1}:")
    for j in range(4):
        E(f"ds_write_b128 v10, {vr(vY+4*j,4)} offset:{1024*j}")
    E("s_waitcnt lgkmcnt(0)")
    for j in range(16):
        E(f"v_mov_b32 v{vY+j}, v{vY+16+j}")
    E(f"{l2}:")
    lds_arrive(vCA, vOne)
    E(f"""
    v_and_b32 v12, 15, v1
    v_lshlrev_b32 v16, 2, v12
    v_lshrrev_b32 v13, 1, v12
    v_lshlrev_b32 v13, 15, v13
    v_and_b32 v12, 1, v1
    v_lshl_add_u32 v13, v12, 5, v13
    v_lshrrev_b32 v12, 4, v1
    v_lshl_add_u32 v13, v12, 3, v13
    s_lshl_b32 s{t0}, s{sMH}, 20
    s_lshl_b32 s{t0+1}, s{sD}, 6
    s_add_u32 s{t0}, s{t0}, s{t0+1}
    s_add_u32 s{t0}, s{t0}, {WS_AT}
    v_add_u32 v13, s{t0}, v13
    s_lshl_b32 s{t0}, s{sMH}, 9
    s_add_u32 s{t0}, s{t0}, s{sD}
    s_add_u32 s{t0}, s{t0}, {F3}
    s_lshl_b32 s{t0}, s{t0}, {FSH}
    v_mov_b32 v14, s{t0}
    """)
    lds_wait(vCA, vTm, 2)
    for j in range(4):
        E(f"ds_read_b128 {vr(96+4*j,4)}, v11 offset:{1024*j}")
    E("s_waitcnt lgkmcnt(0)")
    for j in range(16):
        E(f"v_add_f32 v{vY+j}, v{vY+j}, v{96+j}")
    for j in range(4):
        E(f"v_cvt_pk_bf16_f32 v{112+2*j}, v{vY+4*j}, v{vY+4*j+1}\nv_cvt_pk_bf16_f32 v{113+2*j}, v{vY+4*j+2}, v{vY+4*j+3}")
        E(f"global_store_dwordx2 v13, {vr(112+2*j,2)}, {sr(pWs,2)} sc1")
        if j < 3: E(f"v_add_u32 v13, {8*32768}, v13")
    poll_global(16, pDbg, vTm)
    E(f"""
    s_mov_b64 exec, 1
    global_store_dword v14, v{vOne}, {sr(pFL,2)} sc1
    s_mov_b64 exec, -1
    """)
    stamp("h")
    vWo = 128
    sO = t0 + 2
    E(f"""
    s_mov_b32 s{SRDW}, s{pWo}
    s_mov_b32 s{SRDW+1}, s{pWo+1}
    s_mov_b32 s{SRDW+2}, {512*1024}
    s_mov_b32 s{SRDW+3}, 0x00020000
    ds_read_b128 v[20:23], v{vGA0}
    ds_read_b128 v[24:27], v{vGA0} offset:16
    s_lshl_b32 s{t0}, s{sCB}, 2
    s_add_u32 s{t0}, s{t0}, s{sH}
    s_lshl_b32 s{t0}, s{t0}, 6
    v_lshrrev_b32 v10, 2, v1
    v_lshl_add_u32 v10, v10, 10, s{t0}
    v_and_b32 v11, 3, v1
    v_lshl_add_u32 v10, v11, 4, v10
    s_lshl_b32 s{t0+1}, s{sH}, 13
    s_add_u32 s{t0+1}, s{t0+1}, {WST}
    v_lshrrev_b32 v12, 5, v1
    v_lshlrev_b32 v12, 2, v12
    v_bfe_u32 v13, v1, 2, 2
    v_add_u32 v12, v12, v13
    v_lshl_add_u32 v12, v12, 6, s{t0+1}
    v_lshl_add_u32 v12, v11, 3, v12
    v_bfe_u32 v13, v1, 4, 1
    v_lshl_add_u32 v12, v13, 5, v12
    s_waitcnt lgkmcnt(0)
    v_add_f32 v20, v20, v21
    v_add_f32 v22, v22, v23
    v_add_f32 v24, v24, v25
    v_add_f32 v26, v26, v27
    v_add_f32 v20, v20, v22
    v_add_f32 v24, v24, v26
    v_add_f32 v20, v20, v24
    v_mul_f32 v20, {fbits(-log2e)}, v20
    v_exp_f32 v20, v20
    s_nop 0
    v_add_f32 v20, 1.0, v20
    v_rcp_f32 v20, v20
    s_nop 0
    v_sub_f32 v21, 1.0, v20
    """)
    for rd in range(4):
        for j in range(8):
            hd = 8 * rd + j
            if j % 4 == 0: E(f"s_add_u32 m0, s{t0+1}, {j*1024}")
            E(f"s_mov_b32 s{sO}, {hd*16384-(j%4)*1024}")
            E(f"buffer_load_dwordx4 v10, {sr(SRDW,4)}, s{sO} offen offset:{(j%4)*1024} lds")
        E("s_waitcnt vmcnt(0)")
        for j in range(8):
            hd = 8 * rd + j
            E(f"ds_read_b64_tr_b16 {vr(vWo+4*hd,2)}, v12 offset:{1024*j}")
            E(f"ds_read_b64_tr_b16 {vr(vWo+4*hd+2,2)}, v12 offset:{1024*j+512}")
        E("s_waitcnt lgkmcnt(0)")
    vA = 32
    E(f"""
    s_lshl_b32 s{t0}, s{sCB}, 2
    s_add_u32 s{t0}, s{t0}, s{sH}
    s_lshl_b32 s{t0}, s{t0}, 5
    s_lshr_b32 s{t0+1}, s{sRB}, 3
    s_lshl_b32 s{t0+1}, s{t0+1}, 9
    s_add_u32 s{t0+1}, s{t0+1}, s{t0}
    s_add_u32 s{t0+1}, s{t0+1}, {F3}
    v_and_b32 v10, 31, v1
    v_add_u32 v11, s{t0+1}, v10
    v_lshlrev_b32 v11, {FSH}, v11
    s_lshl_b32 s{t0+1}, s{sRB}, 2
    s_add_u32 s{t0+1}, s{t0+1}, s{sRT}
    s_lshl_b32 s{t0+2}, s{t0+1}, 15
    s_lshl_b32 s{t0+3}, s{t0}, 6
    s_add_u32 s{t0+3}, s{t0+3}, s{t0+2}
    s_add_u32 s{t0+3}, s{t0+3}, {WS_AT}
    v_lshrrev_b32 v13, 5, v1
    v_lshlrev_b32 v12, 8, v13
    v_lshl_add_u32 v12, v10, 1, v12
    v_add_u32 v12, s{t0+3}, v12
    s_lshl_b32 s{t0}, s{t0}, 1
    s_add_u32 s{t0}, s{t0}, s{t0+2}
    v_lshl_add_u32 v14, v10, 10, s{t0}
    v_lshl_add_u32 v14, v13, 4, v14
    s_lshl_b32 s{t0}, s{sH}, 13
    s_add_u32 s{t0+2}, s{t0+2}, s{t0}
    s_add_u32 s{t0+2}, s{t0+2}, {WS_OF}
    v_lshl_add_u32 v15, v1, 4, s{t0+2}
    v_add_u32 v16, 4096, v15
    s_add_u32 s{t0+4}, s{t0}, {OFL}
    s_lshr_b32 s{t0+1}, s{t0+1}, 1
    s_lshl_b32 s{t0+1}, s{t0+1}, 5
    s_lshl_b32 s{t0}, s{sH}, 3
    s_add_u32 s{t0+1}, s{t0+1}, s{t0}
    s_add_u32 s{t0+1}, s{t0+1}, {F2}
    v_and_b32 v17, 7, v1
    v_add_u32 v17, s{t0+1}, v17
    v_lshlrev_b32 v17, {FSH}, v17
    v_lshlrev_b32 v18, 4, v1
    v_add_u32 v18, {OFL}, v18
    """)
    for j in range(16):
        E(f"v_mov_b32 v{vA+j}, 0")
    poll_global(11, pFL, vTm)
    for r in range(16):
        E(f"global_load_short_d16_hi v{vA+r}, v12, {sr(pWs,2)} offset:{(8*(r>>2)+(r&3))*64} sc1")
    E("s_waitcnt vmcnt(0)")
    for r in range(16):
        E(f"v_mul_f32 v{vA+r}, v20, v{vA+r}")
    stamp("h")
    E("s_barrier")
    stamp("h")
    poll_global(17, pFL, vTm)
    stamp("h")
    E(f"s_mov_b32 m0, s{t0+4}\ns_nop 0")
    for j in range(4):
        E(f"global_load_lds_dwordx4 v15, {sr(pWs,2)} offset:{1024*j} sc1")
    E(f"s_add_u32 m0, s{t0+4}, 4096\ns_nop 0")
    for j in range(4):
        E(f"global_load_lds_dwordx4 v16, {sr(pWs,2)} offset:{1024*j} sc1")
    E("s_waitcnt vmcnt(0)\ns_barrier")
    stamp("h")
    vB = 64; vAcc = 48; NB = 8
    for j in range(NB):
        E(f"ds_read_b128 {vr(vB+4*j,4)}, v18 offset:{1024*j}")
    for hd in range(32):
        E(f"s_waitcnt lgkmcnt({min(NB-1, 31-hd)})")
        E(f"v_mfma_f32_32x32x16_bf16 {vr(vAcc,16)}, {vr(vWo+4*hd,4)}, {vr(vB+4*(hd%NB),4)}, {'0' if hd == 0 else vr(vAcc,16)}")
        if hd + NB < 32:
            E(f"ds_read_b128 {vr(vB+4*(hd%NB),4)}, v18 offset:{1024*(hd+NB)}")
    E("s_nop 11")
    for r in range(16):
        E(f"v_fma_f32 v{vAcc+r}, v{vAcc+r}, v21, v{vA+r}")
    for j in range(8):
        E(f"v_cvt_pk_bf16_f32 v{vB+j}, v{vAcc+2*j}, v{vAcc+2*j+1}")
    E("s_nop 1")
    for a in (0, 1, 4, 5):
        E(f"v_permlane32_swap_b32 v{vB+a}, v{vB+2+a}")
    E(f"global_store_dwordx4 v14, {vr(vB,4)}, {sr(pOut,2)}\nglobal_store_dwordx4 v14, {vr(vB+4,4)}, {sr(pOut,2)} offset:32")
    if STAMP:
        E("s_waitcnt vmcnt(0)")
    stamp("h")
    stamp_flush("h"); spin_end("h")
    E("L_end:\ns_endpgm")

hdr = open(f"cdna_kernels/{NAME}.s.ref").read().split("; Override launch")[0]
prologue(); main_wave(); helper_wave()
out = hdr + f"""; @launch grid=(256,1,1) block=(512,1,1) lds={LDS_BYTES}
.amdgcn_target "amdgcn-amd-amdhsa--gfx950"
.text
.globl {NAME}_kernel
.p2align 8
.type {NAME}_kernel,@function
{NAME}_kernel:
""" + "\n".join(L) + f"""
.section .rodata,"a"
.p2align 6
.amdhsa_kernel {NAME}_kernel
  .amdhsa_next_free_vgpr 256
  .amdhsa_next_free_sgpr 102
  .amdhsa_accum_offset 256
  .amdhsa_group_segment_fixed_size 0
  .amdhsa_kernarg_size 128
  .amdhsa_user_sgpr_count 2
  .amdhsa_user_sgpr_kernarg_segment_ptr 1
  .amdhsa_system_sgpr_workgroup_id_x 1
.end_amdhsa_kernel
"""
open(sys.argv[1], "w").write(out)
```

```python
import sys, math, struct

NAME = "gated_mix__ssm_conv_s4__mha_block__prompt"
OPT = dict(stamp=0, rot=2, fs=128, spin=200000, prio=2, outsc=0, la=2)
for a in sys.argv[2:]:
    k, v = a.split("=")
    OPT[k] = int(v)
STAMP = OPT["stamp"]
FS = OPT["fs"]
FSH = int(math.log2(FS))

L = []
def E(s):
    if isinstance(s, list): s = "\n".join(s)
    for x in s.split("\n"):
        x = x.strip()
        if x:
            L.append(("" if x.endswith(":") else "    ") + x)
def fbits(x): return "0x%08x" % struct.unpack("<I", struct.pack("<f", x))[0]
def vr(a, n): return f"v[{a}:{a+n-1}]"
def sr(a, n): return f"s[{a}:{a+n-1}]"

WS_KV = 0
WS_OF = 4 << 20
WS_AT = 6 << 20
WS_FL = 8 << 20
WS_ST = 16 << 20
F1, F2, F3 = 0, 256, 512
KG = 0; KGS = 8704
KCP = 4160
UR = KG + 4 * KGS; URS = 4576
GP = UR + 2 * URS
CNT = GP + 1024
RING = CNT + 64
SLOT = 28672; WPART = 7168
NS = OPT["la"] + 1
EXCH = RING + 3 * SLOT if NS == 3 else RING
LDS_BYTES = max(EXCH + 24576, RING + NS * SLOT)
RED = RING + 24576; REDS = 4608
CRED = RED + 4 * REDS; WST = CRED + 16384; OFL = CRED
assert RING % 128 == 0 and WST + 32768 <= (LDS_BYTES if NS == 4 else LDS_BYTES) and LDS_BYTES <= 163840
if NS == 3:
    RED = RING; CRED = RED + 4 * REDS; WST = CRED + 16384; OFL = CRED
    assert WST + 32768 <= EXCH
sW, sHP, sRB, sCH, sROT = 3, 4, 5, 6, 7
SRDX, SRDW = 8, 12
pX, pAre, pAim, pBre, pBim, pCre, pCim, pLdt = 16, 18, 20, 22, 24, 26, 28, 30
pDsk, pW, pWo, pGw, pOut, pDbg, pWs = 32, 36, 38, 40, 42, 44, 46
pFL = 34
sT = 48
sSPIN = 62
sST = 64

nstamp = {"m": 0, "h": 0}
SPM, SPH = OPT.get("spm", -1), OPT.get("sph", -1)
def spin_end(role):
    if (SPM if role == "m" else SPH) < 0: return
    l = newlab("sp")
    E(f"{l}:\ns_memrealtime s[98:99]\ns_waitcnt lgkmcnt(0)\ns_sub_u32 s98, s98, s96\ns_cmp_lt_u32 s98, 4000\ns_cbranch_scc1 {l}")
def stamp(role):
    if SPM >= 0 or SPH >= 0:
        i = nstamp[role]; nstamp[role] += 1
        if i == (SPM if role == "m" else SPH): E("s_memrealtime s[96:97]\ns_waitcnt lgkmcnt(0)")
        return
    if not STAMP or nstamp[role] >= 14: return
    i = nstamp[role]; nstamp[role] += 1
    E(f"s_memrealtime {sr(sST+2*i,2)}\ns_waitcnt lgkmcnt(0)")
def stamp_flush(role):
    if not STAMP: return
    E(f"s_lshl_b32 s{sT}, s2, 3\ns_add_u32 s{sT}, s{sT}, s{sW}\ns_lshl_b32 s{sT}, s{sT}, 6\ns_add_u32 s{sT}, s{sT}, {WS_ST}\nv_mov_b32 v2, s{sT}")
    for i in range(nstamp[role]):
        E(f"v_mov_b32 v3, s{sST+2*i}\nglobal_store_dword v2, v3, {sr(pWs,2)} offset:{4*i}")
    E(f"s_getreg_b32 s{sT}, hwreg(HW_REG_XCC_ID)\nv_mov_b32 v3, s{sT}\nglobal_store_dword v2, v3, {sr(pWs,2)} offset:60")

lab = [0]
def newlab(p):
    lab[0] += 1
    return f"L_{p}_{lab[0]}"

def poll_global(vaddr, base, vtmp):
    l = newlab("poll"); d = newlab("polld")
    E(f"""
    s_mov_b32 s{sSPIN}, {OPT['spin']}
    {l}:
    global_load_dword v{vtmp}, v{vaddr}, {sr(base,2)} sc1
    s_sub_u32 s{sSPIN}, s{sSPIN}, 1
    s_cbranch_scc1 {d}
    s_waitcnt vmcnt(0)
    v_cmp_ne_u32 vcc, 0, v{vtmp}
    s_nop 1
    s_cmp_eq_u64 vcc, -1
    s_cbranch_scc0 {l}
    {d}:
    s_waitcnt vmcnt(0)
    """)
def put_flag(vaddr, vone, base=None):
    E(f"""
    s_mov_b64 exec, 1
    global_store_dword v{vaddr}, v{vone}, {sr(pFL if base is None else base,2)} sc1
    s_mov_b64 exec, -1
    """)
def lds_arrive(vaddr, vone):
    E(f"""
    s_mov_b64 exec, 1
    ds_add_u32 v{vaddr}, v{vone}
    s_mov_b64 exec, -1
    """)
def lds_wait(vaddr, vtmp, n):
    l = newlab("lw"); d = newlab("lwd")
    E(f"""
    s_mov_b32 s{sSPIN}, {OPT['spin']*8}
    {l}:
    ds_read_b32 v{vtmp}, v{vaddr}
    s_sub_u32 s{sSPIN}, s{sSPIN}, 1
    s_cbranch_scc1 {d}
    s_waitcnt lgkmcnt(0)
    v_readfirstlane_b32 s{sSPIN+1}, v{vtmp}
    s_nop 1
    s_cmp_ge_u32 s{sSPIN+1}, {n}
    s_cbranch_scc0 {l}
    {d}:
    s_waitcnt lgkmcnt(0)
    """)

def prologue():
    E(f"""
    s_cmp_ge_u32 s2, 256
    s_cbranch_scc1 L_end
    s_load_dwordx16 s[16:31], s[0:1], 0
    s_load_dwordx16 s[32:47], s[0:1], 64
    v_lshrrev_b32 v2, 6, v0
    v_and_b32 v1, 63, v0
    v_readfirstlane_b32 s{sW}, v2
    s_lshr_b32 s{sT}, s2, 3
    s_and_b32 s{sHP}, s2, 1
    s_lshl_b32 s{sHP}, s{sHP}, 3
    s_and_b32 s{sT+1}, s{sT}, 7
    s_or_b32 s{sHP}, s{sHP}, s{sT+1}
    s_bfe_u32 s{sRB}, s2, 0x20001
    s_lshl_b32 s{sRB}, s{sRB}, 2
    s_lshr_b32 s{sT+1}, s{sT}, 3
    s_or_b32 s{sRB}, s{sRB}, s{sT+1}
    s_and_b32 s{sCH}, s2, 7
    s_lshl_b32 s{sCH}, s{sCH}, 5
    s_or_b32 s{sCH}, s{sCH}, s{sT}
    s_lshl_b32 s{sCH}, s{sCH}, 1
    """)
    if OPT["rot"] == 0:
        E(f"s_mov_b32 s{sROT}, 0")
    elif OPT["rot"] == 1:
        E(f"s_xor_b32 s{sROT}, s{sHP}, s{sRB}\ns_and_b32 s{sROT}, s{sROT}, 1\ns_lshl_b32 s{sROT}, s{sROT}, 2")
    else:
        E(f"s_lshl_b32 s{sROT}, s{sRB}, 1\ns_add_u32 s{sROT}, s{sROT}, s{sHP}\ns_and_b32 s{sROT}, s{sROT}, 7")
    E(f"""
    s_cmp_ge_u32 s{sW}, 4
    s_cbranch_scc1 L_helper
    """)

def main_wave():
    vXD = 4
    vWD = 8
    vXA = 10
    vFB = 24
    aA, aB, aV = 72, 88, 104
    sXO, sWO, sM0, sX, sZ, sQS = 92, 93, 94, 95, 100, 101
    sKVb, sKV, sJ, sCnt, sMask = sT + 2, sT + 4, sT + 6, sT + 7, sT + 8
    ta, tb, tc = sT + 10, sT + 11, sT + 12
    vO, vKV = 128, 192
    vIDX, vKA, vVA, vSA, vSB, vSV, vEW, vER0, vER1, vERV = range(240, 250)
    vRW, vRWl, vRR, vRRl, vOA, vOB = range(250, 256)
    vF2, vOne, vF2P, vOD = 120, 121, 122, 123
    vQ = 4; SA, SB = 24, 40; vP = 24; vT = 56
    LA = OPT["la"]
    E(f"""
    s_lshl_b32 s{sT}, s{sRB}, 2
    s_add_u32 s{sT}, s{sT}, s{sW}
    s_lshl_b32 s{sT}, s{sT}, 15
    v_lshrrev_b32 v2, 3, v1
    v_lshl_add_u32 v2, v2, 10, s{sT}
    v_lshrrev_b32 v3, 4, v1
    v_xor_b32 v3, v3, v1
    v_and_b32 v3, 7, v3
    v_lshl_add_u32 v{vXD}, v3, 4, v2
    v_xor_b32 v{vXD+1}, 64, v{vXD}
    v_add_u32 v{vXD+1}, 7168, v{vXD+1}
    v_add_u32 v{vXD+2}, 14336, v{vXD}
    v_add_u32 v{vXD+3}, 14336, v{vXD+1}
    s_mul_i32 s{sT}, s{sW}, 49152
    s_lshl_b32 s{sT+1}, s{sHP}, 6
    s_add_u32 s{sT}, s{sT}, s{sT+1}
    v_lshrrev_b32 v2, 2, v1
    v_mul_u32_u24 v2, 3072, v2
    v_and_b32 v3, 3, v1
    v_lshlrev_b32 v3, 4, v3
    v_add3_u32 v{vWD}, v2, v3, s{sT}
    v_xor_b32 v{vWD+1}, 32, v{vWD}
    s_mul_i32 s{sM0}, s{sW}, {WPART}
    s_add_u32 s{sM0}, s{sM0}, {RING}
    s_mov_b32 s{SRDX+2}, {2048*1024}
    s_mov_b32 s{SRDX+3}, 0x00020000
    s_mov_b32 s{SRDW+2}, {512*3072}
    s_mov_b32 s{SRDW+3}, 0x00020000
    s_waitcnt lgkmcnt(0)
    s_mov_b32 s{SRDX}, s{pX}
    s_mov_b32 s{SRDX+1}, s{pX+1}
    s_mov_b32 s{SRDW}, s{pW}
    s_mov_b32 s{SRDW+1}, s{pW+1}
    """)
    stamp("m")
    def dma(i):
        slot = i % NS
        g = []
        for seg in range(3):
            g.append([f"buffer_load_dwordx4 v{vWD+(seg==1)}, {sr(SRDW,4)}, s{sWO} offen offset:{seg*1024} lds"])
        for j in range(4):
            g.append([f"buffer_load_dwordx4 v{vXD+j}, {sr(SRDX,4)}, s{sXO} offen offset:{j*1024} lds"])
        g[0] = [f"s_add_u32 s{sT}, s{sROT}, {i}", f"s_and_b32 s{sT}, s{sT}, 7",
                f"s_add_u32 m0, s{sM0}, {slot*SLOT+4096}", f"s_mul_i32 s{sWO}, s{sT}, 196608"] + g[0]
        g[3] = [f"s_add_u32 m0, s{sM0}, {slot*SLOT}", f"s_lshl_b32 s{sXO}, s{sT}, 7"] + g[3]
        return g
    for i in range(LA):
        for g in dma(i): E(g)
    E(f"""
    s_add_u32 s{pFL}, s{pWs}, {WS_FL}
    s_addc_u32 s{pFL+1}, s{pWs+1}, 0
    v_and_b32 v2, 31, v1
    v_lshl_add_u32 v2, v2, 7, s{sM0}
    v_bfe_u32 v3, v1, 1, 3
    v_lshrrev_b32 v{vXA+1}, 5, v1
    v_xor_b32 v3, v3, v{vXA+1}
    v_lshl_add_u32 v{vXA}, v3, 4, v2
    v_xor_b32 v{vXA+1}, 32, v{vXA}
    v_xor_b32 v{vXA+2}, 64, v{vXA}
    v_xor_b32 v{vXA+3}, 0x60, v{vXA}
    v_lshrrev_b32 v2, 5, v1
    v_lshlrev_b32 v2, 3, v2
    v_bfe_u32 v3, v1, 2, 2
    v_add_u32 v2, v2, v3
    v_lshlrev_b32 v2, 6, v2
    v_and_b32 v3, 3, v1
    v_lshl_add_u32 v2, v3, 3, v2
    v_add_u32 v2, {RING+4096}, v2
    v_bfe_u32 v3, v1, 4, 1
    v_mul_u32_u24 v{vXA+4}, 1056, v3
    v_add_u32 v{vXA+4}, v{vXA+4}, v2
    v_xor_b32 v{vXA+5}, 32, v{vXA+4}
    v_lshl_add_u32 v{vXA+6}, v3, 5, v2
    v_add_u32 v{vXA+6}, 2048, v{vXA+6}
    """)
    for j in range(7):
        E(f"v_add_u32 v{vXA+7+j}, {2*SLOT}, v{vXA+j}")
    E(f"""
    s_and_b32 s{sX}, s{sW}, 1
    s_lshr_b32 s{sZ}, s{sW}, 1
    s_mov_b32 s{sQS}, {fbits(0.25 * math.log2(math.e))}
    s_lshl_b32 s{ta}, s{sRB}, 2
    s_add_u32 s{ta}, s{ta}, s{sW}
    s_lshl_b32 s{ta}, s{ta}, 11
    s_lshl_b32 s{tb}, s{sHP}, 18
    s_add_u32 s{ta}, s{ta}, s{tb}
    v_lshlrev_b32 v{vKA}, 4, v1
    v_add_u32 v{vSA}, s{ta}, v{vKA}
    v_add_u32 v{vSB}, 0x20000, v{vSA}
    v_and_b32 v{vVA}, 15, v1
    v_lshrrev_b32 v2, 5, v1
    v_lshl_add_u32 v{vVA}, v2, 4, v{vVA}
    v_lshlrev_b32 v{vVA}, 4, v{vVA}
    v_bfe_u32 v2, v1, 4, 1
    v_lshlrev_b32 v2, 17, v2
    v_add3_u32 v{vSV}, v2, v{vVA}, s{ta}
    s_mul_i32 s{tb}, s{sW}, 6144
    s_add_u32 s{tb}, s{tb}, {EXCH}
    v_add_u32 v{vEW}, s{tb}, v{vKA}
    s_lshl_b32 s{ta}, s{sX}, 10
    s_add_u32 s{ta}, s{ta}, {EXCH}
    s_mul_i32 s{tb}, s{sZ}, 12288
    s_add_u32 s{tc}, s{ta}, s{tb}
    v_add_u32 v{vER0}, s{tc}, v{vKA}
    s_sub_u32 s{tc}, s{ta}, s{tb}
    s_add_u32 s{tc}, s{tc}, 12288
    v_add_u32 v{vER1}, s{tc}, v{vKA}
    s_lshl_b32 s{ta}, s{sX}, 8
    s_add_u32 s{tc}, s{ta}, s{tb}
    s_add_u32 s{tc}, s{tc}, {EXCH}
    v_add_u32 v{vERV}, s{tc}, v{vKA}
    s_lshl_b32 s{ta}, s{sHP}, 1
    s_add_u32 s{ta}, s{ta}, s{sX}
    s_lshl_b32 s{tb}, s{ta}, 17
    s_lshl_b32 s{tc}, s{sZ}, 12
    s_add_u32 s{tb}, s{tb}, s{tc}
    s_add_u32 s{sKVb}, s{pWs}, s{tb}
    s_addc_u32 s{sKVb+1}, s{pWs+1}, 0
    s_lshl_b32 s{sJ}, s{sRB}, 13
    s_lshl_b32 s{tb}, s{sRB}, 1
    s_add_u32 s{tb}, s{tb}, s{sZ}
    s_lshl_b32 s{tb}, s{tb}, 6
    s_add_u32 s{tb}, s{tb}, s{ta}
    s_lshl_b32 s{tb}, s{tb}, 10
    s_add_u32 s{tb}, s{tb}, {WS_OF}
    v_add_u32 v{vOA}, s{tb}, v{vKA}
    v_add_u32 v{vOB}, 0x8000, v{vOA}
    s_mul_i32 s{ta}, s{sW}, {REDS}
    s_add_u32 s{ta}, s{ta}, {RED}
    v_add_u32 v{vRW}, s{ta}, v{vKA}
    v_lshl_add_u32 v{vRWl}, v1, 2, s{ta}
    s_xor_b32 s{ta}, s{sW}, 2
    s_mul_i32 s{ta}, s{ta}, {REDS}
    s_add_u32 s{ta}, s{ta}, {RED}
    v_add_u32 v{vRR}, s{ta}, v{vKA}
    v_lshl_add_u32 v{vRRl}, v1, 2, s{ta}
    s_lshl_b32 s{ta}, s{sRB}, 4
    s_add_u32 s{ta}, s{ta}, {F2}
    s_add_u32 s{tb}, s{ta}, s{sHP}
    s_lshl_b32 s{tb}, s{tb}, {FSH}
    v_mov_b32 v{vF2}, s{tb}
    v_mov_b32 v{vOne}, 1
    v_and_b32 v2, 15, v1
    v_add_u32 v2, s{ta}, v2
    v_lshlrev_b32 v{vF2P}, {FSH}, v2
    s_lshl_b32 s{ta}, s{sRB}, 2
    s_and_b32 s{tb}, s{sHP}, 3
    s_add_u32 s{ta}, s{ta}, s{tb}
    s_lshl_b32 s{ta}, s{ta}, 15
    s_add_u32 s{ta}, s{ta}, {WS_OF}
    v_add_u32 v{vOD}, s{ta}, v{vKA}
    v_mov_b32 v{vIDX}, 0xdddddddd
    v_and_b32 v2, 27, v1
    v_cmp_eq_u32 vcc, 16, v2
    v_mov_b32 v2, 0x3f803f80
    s_mov_b32 s{sMask}, 0x0000ffff
    s_mov_b32 s{sMask+1}, 0x0000ffff
    v_cndmask_b32 v2, 0, v2, vcc
    """)
    for s in range(4):
        for j in range(8):
            E(f"v_mov_b32 v{vKV+12*s+4+j}, v2")
    for j in range(64):
        E(f"v_mov_b32 v{vO+j}, 0")
    def reads(n):
        i, s = n >> 2, n & 3
        slot = i % NS
        a = vXA + 7 * (slot >> 1)
        so = (slot & 1) * SLOT
        f = vFB + 16 * (n % 3)
        o = [f"ds_read_b128 {vr(f,4)}, v{a+s} offset:{so}"]
        for c in range(3):
            o.append(f"ds_read_b64_tr_b16 {vr(f+4+4*c,2)}, v{a+4+c} offset:{so+s*WPART}")
            o.append(f"ds_read_b64_tr_b16 {vr(f+6+4*c,2)}, v{a+4+c} offset:{so+s*WPART+256}")
        return o
    E(f"s_waitcnt vmcnt({7*(LA-1)})\ns_barrier")
    stamp("m")
    E(reads(0) + reads(1))
    pend = dma(LA)
    E(pend.pop(0))
    for n in range(32):
        f = vFB + 16 * (n % 3)
        c = (lambda a: "0" if n == 0 else vr(a, 16))
        m = [f"v_mfma_f32_32x32x16_bf16 {vr(aA,16)}, {vr(f+4,4)}, {vr(f,4)}, {c(aA)}",
             f"v_mfma_f32_32x32x16_bf16 {vr(aB,16)}, {vr(f+8,4)}, {vr(f,4)}, {c(aB)}",
             f"v_mfma_f32_32x32x16_bf16 {vr(aV,16)}, {vr(f,4)}, {vr(f+12,4)}, {c(aV)}"]
        r = reads(n + 2) if n + 2 < 32 else []
        E(f"s_waitcnt lgkmcnt({7 if n < 31 else 0})")
        E(m[0])
        if (n + 2) % 4 == 0 and n + 2 < 32:
            b = (n + 2) >> 2
            assert not pend
            E(f"s_waitcnt vmcnt({7*min(LA-1, 7-b)}) lgkmcnt(0)")
            if STAMP == 3: stamp("m")
            E("s_barrier")
            if STAMP == 2: stamp("m")
            if b + LA <= 7: pend = dma(b + LA)
        E(r[:3])
        if pend and n < 2: E(pend.pop(0))
        E(m[1]); E(r[3:])
        if pend: E(pend.pop(0))
        E(m[2])
        if pend: E(pend.pop(0))
    stamp("m")
    E("s_nop 9")
    for j in range(4):
        E(f"v_cvt_pk_bf16_f32 v{vP+8+j}, v{aA+8+2*j}, v{aA+9+2*j}")
    E(f"global_store_dwordx4 v{vSA}, {vr(vP+8,4)}, {sr(pWs,2)} sc1")
    for j in range(4):
        E(f"v_cvt_pk_bf16_f32 v{vP+12+j}, v{aB+8+2*j}, v{aB+9+2*j}")
    E(f"global_store_dwordx4 v{vSB}, {vr(vP+12,4)}, {sr(pWs,2)} sc1")
    for j in range(8):
        E(f"v_cvt_pk_bf16_f32 v{vP+16+j}, v{aV+2*j}, v{aV+1+2*j}")
    E(f"ds_write_b128 v{vEW}, {vr(vP+8,4)} offset:2048\nds_write_b128 v{vEW}, {vr(vP+12,4)} offset:3072")
    for a in (0, 1, 4, 5):
        E(f"v_permlane32_swap_b32 v{vP+16+a}, v{vP+18+a}")
    E(f"global_store_dwordx4 v{vSV}, {vr(vP+16,4)}, {sr(pWs,2)} offset:1024 sc1")
    E(f"global_store_dwordx4 v{vSV}, {vr(vP+20,4)}, {sr(pWs,2)} offset:1536 sc1")
    E(f"ds_write_b128 v{vEW}, {vr(vP+16,4)} offset:4096\nds_write_b128 v{vEW}, {vr(vP+20,4)} offset:5120")
    for a, o in ((aA, 0), (aB, 4)):
        for j in range(8):
            E(f"v_mul_f32 v{a+j}, s{sQS}, v{a+j}")
        for j in range(4):
            E(f"v_cvt_pk_bf16_f32 v{vP+o+j}, v{a+2*j}, v{a+1+2*j}")
        E(f"ds_write_b128 v{vEW}, {vr(vP+o,4)} offset:{256*o}")
    def kvaddr():
        return [f"s_add_u32 s{sJ}, s{sJ}, 0x2000", f"s_and_b32 s{sJ}, s{sJ}, 0x1e000",
                f"s_add_u32 s{sKV}, s{sKVb}, s{sJ}", f"s_addc_u32 s{sKV+1}, s{sKVb+1}, 0"]
    E(kvaddr())
    E(f"""
    s_mov_b32 s{sCnt}, 8
    s_waitcnt lgkmcnt(0)
    s_barrier
    ds_read_b128 {vr(vQ,4)}, v{vER0}
    ds_read_b128 {vr(vKV,4)}, v{vER0} offset:2048
    ds_read_b128 {vr(vQ+4,4)}, v{vER0} offset:6144
    ds_read_b128 {vr(vQ+8,4)}, v{vER1}
    ds_read_b128 {vr(vQ+12,4)}, v{vER1} offset:6144
    ds_read_b128 {vr(vKV+12,4)}, v{vER0} offset:{2048+6144}
    s_mov_b64 exec, {sr(sMask,2)}
    ds_read_b128 {vr(vKV+4,4)}, v{vERV} offset:4096
    ds_read_b128 {vr(vKV+8,4)}, v{vERV} offset:5120
    ds_read_b128 {vr(vKV+16,4)}, v{vERV} offset:{4096+6144}
    ds_read_b128 {vr(vKV+20,4)}, v{vERV} offset:{5120+6144}
    s_mov_b64 exec, -1
    s_waitcnt vmcnt(0) lgkmcnt(0)
    v_mfma_f32_32x32x16_bf16 {vr(SA,16)}, {vr(vKV,4)}, {vr(vQ,4)}, 0
    s_barrier
    """)
    stamp("m")
    E("s_nop 11")
    def kload(st, par):
        return [f"global_load_dwordx4 {vr(vKV+12*st,4)}, v{vKA}, {sr(sKV,2)} offset:{par*2048} sc1"]
    def vload(st, par):
        return [f"s_mov_b64 exec, {sr(sMask,2)}",
                f"global_load_dwordx4 {vr(vKV+12*st+4,4)}, v{vVA}, {sr(sKV,2)} offset:{par*2048+1024} sc1",
                f"global_load_dwordx4 {vr(vKV+12*st+8,4)}, v{vVA}, {sr(sKV,2)} offset:{par*2048+1536} sc1",
                "s_mov_b64 exec, -1"]
    def step(t, q, peeled=False):
        cur, oth = (SA, SB) if q % 2 == 0 else (SB, SA)
        tp, qp = (t, q - 1) if q else ((t - 1) % 4, 3)
        tn, qn = (t, q + 1) if q < 3 else ((t + 1) % 4, 0)
        after2, afterq, after1 = [], [], []
        st = (t + 3) % 4; par = (t + 3) & 1
        if not peeled:
            if q == 0:
                after2 = vload(st, par); afterq = kload(st, par)
            if q == 1 and par == 1:
                ka = kvaddr(); after2 = ka[:2]; after1 = ka[2:]
            if q == 3:
                after2 = ["s_waitcnt vmcnt(6)"]
                if t == 3: after1 = [f"s_sub_u32 s{sCnt}, s{sCnt}, 1", f"s_cmp_lg_u32 s{sCnt}, 0"]
        for i in range(16):
            E(f"v_exp_f32 v{cur+i}, v{cur+i}")
            if i == 1 and not (peeled and q == 0):
                E(f"v_smfmac_f32_32x32x32_bf16 {vr(vO+16*qp,16)}, {vr(vKV+12*tp+8,4)}, {vr(oth+8,8)}, v{vIDX}")
                E(after2)
            if i == 4:
                E(f"v_mfma_f32_32x32x16_bf16 {vr(oth,16)}, {vr(vKV+12*tn,4)}, {vr(vQ+4*qn,4)}, 0")
                E(afterq)
            if i == 10:
                E(f"v_smfmac_f32_32x32x32_bf16 {vr(vO+16*q,16)}, {vr(vKV+12*t+4,4)}, {vr(cur,8)}, v{vIDX}")
                E(after1)
    for q in range(4): step(0, q, True)
    E("s_barrier")
    stamp("m")
    E(vload(2, 0) + kload(2, 0) + vload(3, 1) + kload(3, 1) + kvaddr())
    E("s_branch L_attn1\n.p2align 3\nL_attn:")
    for t in range(4):
        if t == 1: E("L_attn1:")
        for q in range(4): step(t, q)
    E(f"""
    s_cbranch_scc1 L_attn
    ds_write_b128 v{vRW}, {vr(vO+32,4)}
    v_smfmac_f32_32x32x32_bf16 {vr(vO+48,16)}, {vr(vKV+36+8,4)}, {vr(SB+8,8)}, v{vIDX}
    """)
    stamp("m")
    E(f"""
    ds_write_b128 v{vRW}, {vr(vO+36,4)} offset:1024
    ds_write_b32 v{vRWl}, v{vO+40} offset:4096
    s_mov_b32 s{ta}, {fbits(2.0**-30)}
    s_mov_b32 s{tb}, {fbits(2.0**50)}
    s_nop 7
    ds_write_b128 v{vRW}, {vr(vO+48,4)} offset:2048
    ds_write_b128 v{vRW}, {vr(vO+52,4)} offset:3072
    ds_write_b32 v{vRWl}, v{vO+56} offset:4352
    s_waitcnt lgkmcnt(0)
    s_barrier
    ds_read_b32 v{SA+8}, v{vRRl} offset:4096
    ds_read_b32 v{SB+8}, v{vRRl} offset:4352
    ds_read_b128 {vr(SA,4)}, v{vRR}
    ds_read_b128 {vr(SA+4,4)}, v{vRR} offset:1024
    ds_read_b128 {vr(SB,4)}, v{vRR} offset:2048
    ds_read_b128 {vr(SB+4,4)}, v{vRR} offset:3072
    s_waitcnt lgkmcnt(4)
    v_add_f32 v{vO+8}, v{vO+8}, v{SA+8}
    v_add_f32 v{vO+24}, v{vO+24}, v{SB+8}
    v_min_f32 v{vT+6}, v{vO+8}, v{vO+24}
    v_max_f32 v{vT+7}, v{vO+8}, v{vO+24}
    v_cmp_lt_f32 vcc, s{ta}, v{vT+6}
    v_cmp_gt_f32 {sr(tc,2)}, s{tb}, v{vT+7}
    s_waitcnt lgkmcnt(0)
    s_and_b64 {sr(tc,2)}, {sr(tc,2)}, vcc
    """)
    for j in range(8):
        E(f"v_add_f32 v{vO+j}, v{vO+j}, v{SA+j}\nv_add_f32 v{vO+16+j}, v{vO+16+j}, v{SB+j}")
    E(f"v_pk_mul_f32 {vr(vT+8,2)}, {vr(vO,2)}, 0 op_sel_hi:[1,0]")
    for j in (2, 4, 6, 16, 18, 20, 22):
        E(f"v_pk_fma_f32 {vr(vT+8,2)}, {vr(vO+j,2)}, 0, {vr(vT+8,2)} op_sel_hi:[1,0,1]")
    E(f"""
    v_cmp_o_f32 vcc, v{vT+8}, v{vT+9}
    s_nop 1
    s_and_b64 vcc, {sr(tc,2)}, vcc
    s_cmp_eq_u64 vcc, -1
    s_cbranch_scc0 L_safe
    L_norm:
    v_rcp_f32 v{vT+6}, v{vO+8}
    v_rcp_f32 v{vT+7}, v{vO+24}
    s_nop 0
    """)
    for j in range(8):
        E(f"v_mul_f32 v{vO+j}, v{vO+j}, v{vT+6}")
    for j in range(4):
        E(f"v_cvt_pk_bf16_f32 v{SA+j}, v{vO+2*j}, v{vO+2*j+1}")
    E(f"global_store_dwordx4 v{vOA}, {vr(SA,4)}, {sr(pWs,2)} sc1")
    for j in range(8):
        E(f"v_mul_f32 v{vO+16+j}, v{vO+16+j}, v{vT+7}")
    for j in range(4):
        E(f"v_cvt_pk_bf16_f32 v{SB+j}, v{vO+16+2*j}, v{vO+17+2*j}")
    E(f"""
    global_store_dwordx4 v{vOB}, {vr(SB,4)}, {sr(pWs,2)} sc1
    s_waitcnt vmcnt(0)
    s_barrier
    """)
    stamp("m")
    E(f"s_cmp_lg_u32 s{sW}, 0\ns_cbranch_scc1 L_mdone")
    put_flag(vF2, vOne)
    E("s_waitcnt vmcnt(0)")
    poll_global(vF2P, pFL, 2)
    E(f"s_mov_b32 s{sKV}, s{pWs}\ns_mov_b32 s{sKV+1}, s{pWs+1}")
    for g in range(8):
        E(f"s_mov_b32 m0, {OFL+4096*g}")
        if g: E(f"s_add_u32 s{sKV}, s{sKV}, 4096\ns_addc_u32 s{sKV+1}, s{sKV+1}, 0")
        else: E("s_nop 0")
        for j in range(4):
            E(f"global_load_lds_dwordx4 v{vOD}, {sr(sKV,2)} offset:{1024*j} sc1")
    for n in (24, 16, 8, 0):
        E(f"s_waitcnt vmcnt({n})\ns_barrier")
    if SPM >= 0:
        E("s_branch L_mdone2\nL_mdone:\ns_barrier\ns_barrier\ns_barrier\ns_barrier\nL_mdone2:")
    else:
        E("L_mdone:")
    stamp_flush("m"); spin_end("m")
    E("s_endpgm")
    vM, vC = vT + 6, 72
    E(f"""
    L_safe:
    s_waitcnt vmcnt(0)
    s_lshl_b32 s{ta}, s{sZ}, 12
    s_sub_u32 s{sKVb}, s{sKVb}, s{ta}
    s_subb_u32 s{sKVb+1}, s{sKVb+1}, 0
    s_mov_b32 s{sKV}, s{sKVb}
    s_mov_b32 s{sKV+1}, s{sKVb+1}
    s_mov_b32 s{sCnt}, 64
    v_mov_b32 v{vM}, 0xff800000
    v_mov_b32 v{vM+1}, 0xff800000
    L_safe1:
    global_load_dwordx4 {vr(vKV,4)}, v{vKA}, {sr(sKV,2)} sc1
    s_add_u32 s{sKV}, s{sKV}, 2048
    s_addc_u32 s{sKV+1}, s{sKV+1}, 0
    s_waitcnt vmcnt(0)
    v_mfma_f32_32x32x16_bf16 {vr(SA,16)}, {vr(vKV,4)}, {vr(vQ,4)}, 0
    v_mfma_f32_32x32x16_bf16 {vr(SB,16)}, {vr(vKV,4)}, {vr(vQ+4,4)}, 0
    s_nop 15
    """)
    for j in range(8):
        E(f"v_max3_f32 v{vM}, v{SA+2*j}, v{SA+2*j+1}, v{vM}\nv_max3_f32 v{vM+1}, v{SB+2*j}, v{SB+2*j+1}, v{vM+1}")
    E(f"""
    s_sub_u32 s{sCnt}, s{sCnt}, 1
    s_cmp_lg_u32 s{sCnt}, 0
    s_cbranch_scc1 L_safe1
    v_mov_b32 v{SA}, v{vM}
    v_mov_b32 v{SB}, v{vM+1}
    s_nop 1
    v_permlane32_swap_b32 v{SA}, v{vM}
    v_permlane32_swap_b32 v{SB}, v{vM+1}
    s_nop 1
    v_max_f32 v{vM}, v{vM}, v{SA}
    v_max_f32 v{vM+1}, v{vM+1}, v{SB}
    """)
    for j in range(16):
        E(f"v_sub_f32 v{vC+j}, 0, v{vM}\nv_sub_f32 v{vC+16+j}, 0, v{vM+1}\nv_mov_b32 v{vO+j}, 0\nv_mov_b32 v{vO+16+j}, 0")
    E(f"""
    s_mov_b32 s{sKV}, s{sKVb}
    s_mov_b32 s{sKV+1}, s{sKVb+1}
    s_mov_b32 s{sCnt}, 64
    L_safe2:
    """)
    E(kload(0, 0) + vload(0, 0))
    E(f"""
    s_add_u32 s{sKV}, s{sKV}, 2048
    s_addc_u32 s{sKV+1}, s{sKV+1}, 0
    s_waitcnt vmcnt(0)
    v_mfma_f32_32x32x16_bf16 {vr(SA,16)}, {vr(vKV,4)}, {vr(vQ,4)}, {vr(vC,16)}
    v_mfma_f32_32x32x16_bf16 {vr(SB,16)}, {vr(vKV,4)}, {vr(vQ+4,4)}, {vr(vC+16,16)}
    s_nop 15
    """)
    for j in range(32):
        E(f"v_exp_f32 v{SA+j}, v{SA+j}")
    E(f"""
    s_nop 1
    v_smfmac_f32_32x32x32_bf16 {vr(vO,16)}, {vr(vKV+4,4)}, {vr(SA,8)}, v{vIDX}
    v_smfmac_f32_32x32x32_bf16 {vr(vO,16)}, {vr(vKV+8,4)}, {vr(SA+8,8)}, v{vIDX}
    v_smfmac_f32_32x32x32_bf16 {vr(vO+16,16)}, {vr(vKV+4,4)}, {vr(SB,8)}, v{vIDX}
    v_smfmac_f32_32x32x32_bf16 {vr(vO+16,16)}, {vr(vKV+8,4)}, {vr(SB+8,8)}, v{vIDX}
    s_sub_u32 s{sCnt}, s{sCnt}, 1
    s_cmp_lg_u32 s{sCnt}, 0
    s_cbranch_scc1 L_safe2
    s_nop 15
    s_branch L_norm
    """)

def helper_wave():
    sH, sC, sMH, sRT, sCB, sD = sT, sT + 1, sT + 2, sT + 3, sT + 4, sT + 5
    sLd, sDs = sT + 6, sT + 7
    t0 = sT + 8
    sLead, sWst, sP0, sP1 = 92, 93, 94, 95
    sAT = 100
    vGW = 128
    vXF = 160
    vG, vGA0, vGA1 = 164, 165, 166
    vU = 168
    vUA = 167
    vPar = 4
    E(f"""
    L_helper:
    s_setprio {OPT['prio']}
    s_sub_u32 s{sH}, s{sW}, 4
    s_lshr_b32 s{sC}, s{sH}, 1
    s_and_b32 s{sMH}, s{sH}, 1
    s_and_b32 s{sRT}, s{sHP}, 3
    s_lshr_b32 s{sCB}, s{sHP}, 2
    s_add_u32 s{sD}, s{sCH}, s{sC}
    s_lshl_b32 s{t0}, s{sD}, 1
    s_add_u32 s{t0}, s{t0}, s{sMH}
    s_lshl_b32 s{t0}, s{t0}, 7
    v_lshl_add_u32 v2, v1, 1, s{t0}
    s_lshl_b32 s{t0+1}, s{sCH}, 1
    v_lshrrev_b32 v3, 5, v1
    v_lshlrev_b32 v3, 4, v3
    s_lshl_b32 s{t0+2}, s{sH}, 5
    v_add_u32 v3, s{t0+2}, v3
    v_mov_b32 v12, 0
    v_mov_b32 v13, 0
    v_mov_b32 v14, 0
    v_mov_b32 v15, 0
    s_cmp_lt_u32 s2, 16
    s_cselect_b32 s{sLead}, s{sW}, 0
    s_waitcnt lgkmcnt(0)
    s_load_dword s{sLd}, {sr(pLdt,2)}, s{t0+1}
    s_load_dword s{sDs}, {sr(pDsk,2)}, s{t0+1}
    """)
    for j, p in enumerate((pAre, pAim, pBre, pBim, pCre, pCim)):
        E(f"global_load_ushort v{vPar+j}, v2, {sr(p,2)}")
    E(f"s_add_u32 s{pFL}, s{pWs}, {WS_FL}\ns_addc_u32 s{pFL+1}, s{pWs+1}, 0")
    for i in range(8):
        E(f"s_add_u32 s{t0}, s{sROT}, {i}\ns_and_b32 s{t0}, s{t0}, 7\ns_lshl_b32 s{t0}, s{t0}, 7\nv_add_u32 v10, s{t0}, v3")
        E(f"global_load_dwordx4 {vr(vGW+4*i,4)}, v10, {sr(pGw,2)}")
    stamp("h")
    ln = newlab("nl")
    E(f"""
    s_cmp_eq_u32 s{sLead}, 7
    s_cbranch_scc0 {ln}
    s_mul_i32 s{t0}, s2, 96
    v_add_u32 v10, s{t0}, v1
    v_lshlrev_b32 v10, {FSH}, v10
    global_store_dword v10, v12, {sr(pFL,2)} sc1
    v_add_u32 v10, {32*FS}, v10
    global_store_dword v10, v12, {sr(pFL,2)} sc1
    {ln}:
    """)
    E(f"""
    s_mul_i32 s{t0}, s{sC}, {URS}
    s_add_u32 s{t0}, s{t0}, {UR+4096}
    v_lshl_add_u32 v10, v1, 4, s{t0}
    v_mov_b32 v11, {CNT}
    v_cmp_gt_u32 vcc, 30, v1
    s_nop 1
    v_cndmask_b32 v10, v11, v10, vcc
    ds_write_b128 v10, v[12:15]
    """)
    vWA, vRA = 16, 17
    if "prio1" in OPT: E(f"s_setprio {OPT['prio1']}")
    E(f"""
    s_mul_i32 s{t0}, s{sRT}, {WPART}
    s_add_u32 s{t0}, s{t0}, {RING}
    v_and_b32 v10, 31, v1
    v_lshl_add_u32 v10, v10, 7, s{t0}
    v_bfe_u32 v11, v1, 1, 3
    v_lshrrev_b32 v3, 5, v1
    v_xor_b32 v11, v11, v3
    s_lshl_b32 s{t0}, s{sH}, 1
    v_xor_b32 v11, s{t0}, v11
    v_lshl_add_u32 v{vGA0}, v11, 4, v10
    v_add_u32 v{vGA1}, {2*SLOT}, v{vGA0}
    v_mov_b32 v{vG}, 0
    s_lshl_b32 s{t0}, s{sH}, 19
    s_lshl_b32 s{t0+1}, s{sCH}, 1
    s_add_u32 s{t0}, s{t0}, s{t0+1}
    s_add_u32 s{t0}, s{t0}, 4096
    v_lshl_add_u32 v{vUA}, v1, 13, s{t0}
    s_mul_i32 s{t0}, s{sH}, {KGS}
    s_add_u32 s{t0}, s{t0}, {KG}
    s_mov_b32 m0, s{t0}
    v_and_b32 v10, 31, v1
    v_mul_u32_u24 v10, 272, v10
    v_lshl_add_u32 v10, v3, 4, v10
    v_add_u32 v{vRA}, s{t0}, v10
    s_mul_i32 s{t0}, s{sC}, {2*KGS}
    s_add_u32 s{t0}, s{t0}, {KG+KGS}
    v_lshl_add_u32 v{vWA}, v1, 4, s{t0}
    """)
    K = []
    def k(s, c=None):
        if isinstance(s, list): s = "\n".join(s)
        for x in s.split("\n"):
            x = x.strip()
            if not x: continue
            cc = c if c is not None else (8 if any(t in x for t in ("v_exp", "v_sin", "v_cos", "v_rcp", "ds_")) else 4)
            K.append((cc, x))
    va, vb, vCB, vt = 18, 19, 20, 22
    log2e = math.log2(math.e)
    c_hi = struct.unpack("<f", struct.pack("<f", log2e))[0]
    c_lo = log2e - c_hi
    k(f"""
    s_waitcnt lgkmcnt(0)
    s_lshl_b32 s{t0}, s{sC}, 4
    s_lshr_b32 s{sLd}, s{sLd}, s{t0}
    s_lshl_b32 s{sLd}, s{sLd}, 16
    s_lshr_b32 s{sDs}, s{sDs}, s{t0}
    s_lshl_b32 s{sDs}, s{sDs}, 16
    s_mov_b32 s{t0}, {fbits(c_hi)}
    v_mov_b32 v{vt}, s{sLd}
    v_mul_f32 v{vt+1}, s{t0}, v{vt}
    v_fma_f32 v{vt+2}, v{vt}, s{t0}, -v{vt+1}
    v_fmac_f32 v{vt+2}, {fbits(c_lo)}, v{vt}
    v_exp_f32 v{vt+1}, v{vt+1}
    v_mul_f32 v{vt+2}, {fbits(math.log(2.0))}, v{vt+2}
    v_fma_f32 v{vt+1}, v{vt+1}, v{vt+2}, v{vt+1}
    v_cvt_pk_bf16_f32 v{vt+1}, v{vt+1}, v{vt+1}
    v_lshlrev_b32 v{vt}, 16, v{vt+1}
    s_waitcnt vmcnt(8)
    """)
    for j in range(6):
        k(f"v_lshlrev_b32 v{vPar+j}, 16, v{vPar+j}")
    k(f"""
    v_mul_f32 v{va}, v{vt}, v{vPar}
    v_mul_f32 v{vb}, v{vt}, v{vPar+1}
    v_mul_f32 v{vPar+2}, v{vt}, v{vPar+2}
    v_mul_f32 v{vPar+3}, v{vt}, v{vPar+3}
    v_mul_f32 v{va}, {fbits(c_hi)}, v{va}
    v_mul_f32 v{vb}, 0.15915494, v{vb}
    """)
    def cmul(z, x, w):
        return [f"v_mul_f32 v{z}, v{x}, v{w}\nv_mul_f32 v{z+1}, v{x}, v{w+1}",
                f"v_fma_f32 v{z}, -v{x+1}, v{w+1}, v{z}\nv_fmac_f32 v{z+1}, v{x+1}, v{w}"]
    def cmuls(lst):
        cm = [cmul(*a) for a in lst]
        k([c[0] for c in cm]); k([c[1] for c in cm])
    def direct(z, x):
        k(f"""
        v_mul_f32 v{vt+2}, {fbits(x)}, v{vb}
        v_mul_f32 v{vt+1}, {fbits(x)}, v{va}
        v_fract_f32 v{vt+2}, v{vt+2}
        v_exp_f32 v{vt+1}, v{vt+1}
        v_cos_f32 v{z}, v{vt+2}
        v_sin_f32 v{z+1}, v{vt+2}
        s_nop 0
        v_mul_f32 v{z}, v{z}, v{vt+1}
        v_mul_f32 v{z+1}, v{z+1}, v{vt+1}
        """)
    E1, E32, E256 = 28, 30, 32
    vE = 34
    vPk = 50
    npk = [0]
    def puts(lst, neg):
        w = []
        for z, rows in lst:
            p = vPk + npk[0] % 8; npk[0] += 1
            k(f"v_cvt_pk_bf16_f32 v{p}, v{z}, {'-' if neg else ''}v{z+1}")
            w += [f"ds_write_addtid_b32 v{p} offset:{272*r}" for r in rows]
        k(w)
    def e(j): return vE + 2 * (j % 8)
    direct(e(1), 8.0); direct(E32, 32.0)
    k(f"v_mov_b32 v{e(0)}, 1.0\nv_mov_b32 v{e(0)+1}, 0\nv_mov_b32 v{e(4)}, v{E32}\nv_mov_b32 v{e(4)+1}, v{E32+1}")
    cmuls([(e(2), e(1), e(1)), (e(5), e(1), E32)])
    cmuls([(e(3), e(2), e(1)), (e(6), e(2), E32)])
    cmuls([(e(7), e(3), E32)])
    puts([(e(j), [j]) for j in range(4)], False)
    for j0 in range(4, 32, 4):
        if j0 + 4 < 32: cmuls([(e(j + 4), e(j), E32) for j in range(j0, j0 + 4)])
        puts([(e(j), [j]) for j in range(j0, j0 + 4)], False)
    vEF, vGF, vD = 64, 96, 176
    for s in range(8):
        k(f"ds_read_b128 {vr(vEF+4*s,4)}, v{vRA} offset:{32*s}")
    direct(E1, 1.0); direct(E256, 256.0)
    def row(r, h): return 8 * (r >> 2) + 4 * h + (r & 3)
    vGv = 192
    g = {x: vGv + 2 * x for x in range(9)}
    E2 = e(0)
    cmuls([(g[0], vPar + 4, vPar + 2), (E2, E1, E1)])
    cmuls([(g[1], g[0], E1), (g[2], g[0], E2)])
    cmuls([(g[3], g[1], E2), (g[4], g[2], E2)])
    puts([(g[x], [row(x, 0)]) for x in range(4)], True)
    cmuls([(g[5], g[3], E2), (g[6], g[4], E2)])
    cmuls([(g[7], g[5], E2), (g[8], g[6], E2)])
    puts([(g[x], [row(x, 0)]) for x in range(4, 8)], True)
    A = {o: vGv + 18 + 2 * i for i, o in enumerate((0, 2, 4, 6, 8))}
    cmuls([(A[o], g[o], E256) for o in (0, 2, 4, 6, 8)])
    puts([(A[o], [row(r, 1) for r in rs]) for o, rs in ((0, (0, 1)), (2, (2,)), (4, (3, 4, 5)), (6, (6,)), (8, (7,)))], True)
    src, dst = A, g
    for os_, r0, h in (((0, 4, 8), 8, 0), ((0, 4, 8), 8, 1), ((0, 8), 11, 0), ((0, 8), 11, 1), ((0, 8), 13, 0), ((0, 8), 13, 1)):
        cmuls([(dst[o], src[o], E256) for o in os_])
        puts([(dst[o], [row(r0 + i, h)]) for i, o in enumerate(os_)], True)
        src, dst = dst, src
    for s in range(8):
        k(f"ds_read_b128 {vr(vGF+4*s,4)}, v{vRA} offset:{32*s}")
    k("s_waitcnt lgkmcnt(0)", 100)
    for s in range(8):
        k(f"v_mfma_f32_32x32x16_bf16 {vr(vD,16)}, {vr(vGF+4*s,4)}, {vr(vEF+4*s,4)}, {'0' if s == 0 else vr(vD,16)}", 40)
    k("s_nop 15", 60)
    tot = sum(c for c, _ in K)
    nseg = 8
    segs = [[] for _ in range(nseg)]
    acc = 0
    for c, x in K:
        segs[min(nseg - 1, int(acc * nseg / tot))].append(x); acc += c
    def gate_glue(i):
        E("s_waitcnt lgkmcnt(0)")
        if OPT.get("hst"): stamp("h")
        E("s_barrier")
        if i == 1:
            lq = newlab("nr")
            E(f"""
            s_waitcnt vmcnt(0)
            s_cmp_eq_u32 s{sLead}, 7
            s_cbranch_scc0 {lq}
            s_lshl_b32 s{t0+1}, s2, 2
            v_mov_b32 v10, s{t0+1}
            v_mov_b32 v11, 1
            """)
            put_flag(10, 11, pDbg)
            E(f"{lq}:")
        if i >= 1:
            for j in range(4):
                E(f"v_dot2_f32_bf16 v{vG}, v{vXF+j}, v{vGW+4*(i-1)+j}, v{vG}")
        slot = i % NS
        E(f"ds_read_b128 {vr(vXF,4)}, v{vGA1 if slot >> 1 else vGA0} offset:{(slot&1)*SLOT}")
    for i in range(nseg):
        if OPT.get("nokgen"): segs[i] = [x for x in segs[i] if not any(t in x for t in [("v_mul", "v_fma", "v_cvt", "ds_", "mfma"), ("ds_write",), ("v_mul", "v_fma")][OPT["nokgen"]-1])]
        E(segs[i])
        gate_glue(i)
    stamp("h")
    lx = newlab("nx")
    E(f"s_cmp_eq_u32 s{sMH}, 0\ns_cbranch_scc1 {lx}")
    for j in range(4):
        E(f"ds_write_b128 v{vWA}, {vr(vD+4*j,4)} offset:{1024*j}")
    E(f"""
    {lx}:
    v_and_b32 v10, 31, v1
    v_lshlrev_b32 v10, 5, v10
    v_lshrrev_b32 v11, 5, v1
    v_lshl_add_u32 v11, v11, 2, v10
    s_lshl_b32 s{t0}, s{sH}, 3
    s_add_u32 s{t0}, s{t0}, {GP}
    v_add_u32 v11, s{t0}, v11
    v_add_u32 v{vGA0}, {GP}, v10
    s_waitcnt lgkmcnt(0)
    """)
    for j in range(4):
        E(f"v_dot2_f32_bf16 v{vG}, v{vXF+j}, v{vGW+28+j}, v{vG}")
    E(f"s_nop 2\nds_write_b32 v11, v{vG}")
    (vCA, vCP, vOne, vTm, vAA, vBA, vUW, vCW, vCR, vAT, vF3, vWoG, vWoL, vF3P, vAL, vOut, vg, vomg, vOL, vF1, vF1P, vRdy) = range(24, 46)
    vA = 48; vAcc = 96
    E(f"""
    v_mov_b32 v{vCA}, {CNT}
    s_lshl_b32 s{t0}, s{sC}, 2
    s_add_u32 s{t0}, s{t0}, {CNT+4}
    v_mov_b32 v{vCP}, s{t0}
    v_mov_b32 v{vOne}, 1
    v_lshlrev_b32 v2, 4, v1
    s_lshl_b32 s{t0}, s{sH}, 10
    s_sub_u32 s{t0}, {UR+4080}, s{t0}
    v_sub_u32 v{vUW}, s{t0}, v2
    s_mov_b32 s{sP0}, 0x05040100
    s_mov_b32 s{sP1}, 0x07060302
    v_and_b32 v10, 15, v1
    v_lshlrev_b32 v{vRdy}, 2, v10
    v_add_u32 v11, 1, v10
    v_and_b32 v12, 3, v11
    v_mul_u32_u24 v12, {KCP}, v12
    v_lshrrev_b32 v11, 2, v11
    v_lshl_add_u32 v12, v11, 3, v12
    v_lshrrev_b32 v13, 4, v1
    v_lshlrev_b32 v14, 4, v13
    s_mul_i32 s{t0}, s{sC}, {2*KGS}
    s_lshl_b32 s{t0+1}, s{sMH}, 8
    s_add_u32 s{t0}, s{t0}, s{t0+1}
    s_add_u32 s{t0}, s{t0}, {KG}
    v_add3_u32 v{vAA}, v12, v14, s{t0}
    s_mul_i32 s{t0}, s{sC}, {URS}
    s_add_u32 s{t0}, s{t0}, s{t0+1}
    s_add_u32 s{t0}, s{t0}, {UR+4064-3584}
    v_lshlrev_b32 v11, 5, v10
    v_sub_u32 v14, v14, v11
    v_add_u32 v{vBA}, s{t0}, v14
    s_lshl_b32 s{t0}, s{sH}, 12
    s_add_u32 s{t0}, s{t0}, {CRED}
    v_add_u32 v{vCW}, s{t0}, v2
    s_xor_b32 s{t0}, s{sH}, 1
    s_lshl_b32 s{t0}, s{t0}, 12
    s_add_u32 s{t0}, s{t0}, {CRED}
    v_add_u32 v{vCR}, s{t0}, v2
    v_add_u32 v{vOL}, {OFL}, v2
    v_lshrrev_b32 v11, 1, v10
    v_lshlrev_b32 v11, 15, v11
    v_and_b32 v12, 1, v1
    v_lshl_add_u32 v11, v12, 5, v11
    v_lshl_add_u32 v{vAT}, v13, 3, v11
    s_lshl_b32 s{t0}, s{sMH}, 20
    s_lshl_b32 s{t0+1}, s{sD}, 6
    s_add_u32 s{t0}, s{t0}, s{t0+1}
    s_add_u32 s{t0}, s{t0}, {WS_AT}
    s_add_u32 s{sAT}, s{pWs}, s{t0}
    s_addc_u32 s{sAT+1}, s{pWs+1}, 0
    s_lshl_b32 s{t0}, s{sMH}, 9
    s_add_u32 s{t0}, s{t0}, s{sD}
    s_add_u32 s{t0}, s{t0}, {F3}
    s_lshl_b32 s{t0}, s{t0}, {FSH}
    v_mov_b32 v{vF3}, s{t0}
    s_lshl_b32 s{t0}, s{sHP}, 4
    v_add_u32 v11, s{t0}, v10
    v_lshlrev_b32 v{vF1P}, {FSH}, v11
    s_add_u32 s{t0}, s{t0}, s{sRB}
    s_lshl_b32 s{t0}, s{t0}, {FSH}
    v_mov_b32 v{vF1}, s{t0}
    s_mov_b32 s{SRDW}, s{pWo}
    s_mov_b32 s{SRDW+1}, s{pWo+1}
    s_mov_b32 s{SRDW+2}, {512*1024}
    s_mov_b32 s{SRDW+3}, 0x00020000
    s_lshl_b32 s{t0}, s{sCB}, 2
    s_add_u32 s{t0}, s{t0}, s{sH}
    s_lshl_b32 s{t0+1}, s{t0}, 6
    v_lshrrev_b32 v10, 2, v1
    v_lshl_add_u32 v10, v10, 10, s{t0+1}
    v_and_b32 v11, 3, v1
    v_lshl_add_u32 v{vWoG}, v11, 4, v10
    s_lshl_b32 s{sWst}, s{sH}, 13
    s_add_u32 s{sWst}, s{sWst}, {WST}
    v_lshrrev_b32 v14, 5, v1
    v_lshlrev_b32 v12, 2, v14
    v_bfe_u32 v13, v1, 2, 2
    v_add_u32 v12, v12, v13
    v_lshl_add_u32 v12, v12, 6, s{sWst}
    v_lshl_add_u32 v12, v11, 3, v12
    v_bfe_u32 v13, v1, 4, 1
    v_lshl_add_u32 v{vWoL}, v13, 5, v12
    s_lshl_b32 s{t0}, s{t0}, 5
    s_lshr_b32 s{t0+1}, s{sRB}, 3
    s_lshl_b32 s{t0+1}, s{t0+1}, 9
    s_add_u32 s{t0+1}, s{t0+1}, s{t0}
    s_add_u32 s{t0+1}, s{t0+1}, {F3}
    v_and_b32 v10, 31, v1
    v_add_u32 v11, s{t0+1}, v10
    v_lshlrev_b32 v{vF3P}, {FSH}, v11
    s_lshl_b32 s{t0+1}, s{sRB}, 2
    s_add_u32 s{t0+1}, s{t0+1}, s{sRT}
    s_lshl_b32 s{t0+2}, s{t0+1}, 15
    s_lshl_b32 s{t0+3}, s{t0}, 6
    s_add_u32 s{t0+3}, s{t0+3}, s{t0+2}
    s_add_u32 s{t0+3}, s{t0+3}, {WS_AT}
    v_lshlrev_b32 v12, 8, v14
    v_lshl_add_u32 v12, v10, 1, v12
    v_add_u32 v{vAL}, s{t0+3}, v12
    s_lshl_b32 s{t0}, s{t0}, 1
    s_add_u32 s{t0}, s{t0}, s{t0+2}
    v_lshl_add_u32 v12, v10, 10, s{t0}
    v_lshl_add_u32 v{vOut}, v14, 4, v12
    """)
    for j in range(16):
        E(f"v_mov_b32 v{vA+j}, 0")
    E("s_waitcnt lgkmcnt(0)\ns_barrier")
    if "prio1" in OPT: E(f"s_setprio {OPT['prio']}")
    stamp("h")
    E(f"ds_read_b128 v[4:7], v{vGA0}\nds_read_b128 v[8:11], v{vGA0} offset:16")
    lk = newlab("nk"); lk2 = newlab("nk2")
    vR = 64
    E(f"s_cmp_eq_u32 s{sMH}, 0\ns_cbranch_scc1 {lk}\ns_cmp_eq_u32 s{sH}, 1\ns_cbranch_scc0 {lk2}")
    poll_global(vRdy, pDbg, vTm)
    E(f"s_branch {lk2}\n{lk}:")
    for j in range(4):
        E(f"ds_read_b128 {vr(vR+4*j,4)}, v{vWA} offset:{1024*j}")
    E(f"""
    s_mul_i32 s{t0}, s{sC}, {2*KGS}
    s_add_u32 s{t0}, s{t0}, {KG}
    v_lshl_add_u32 v2, v1, 4, s{t0}
    v_lshrrev_b32 v3, 1, v1
    v_mul_u32_u24 v3, {KCP}, v3
    v_and_b32 v12, 1, v1
    v_lshlrev_b32 v13, 4, v12
    v_add3_u32 v3, v3, v13, s{t0}
    v_cmp_eq_u32 {sr(t0+2,2)}, 1, v12
    v_mov_b32 v20, 0
    v_mov_b32 v21, 0
    v_mov_b32 v22, 0
    v_mov_b32 v23, 0
    s_mov_b64 exec, 1
    v_add_f32 v{vD}, s{sDs}, v{vD}
    s_waitcnt lgkmcnt(0)
    s_mov_b64 exec, 0xff
    ds_write_b128 v3, v[20:23]
    s_mov_b64 exec, -1
    """)
    for j in range(15):
        E(f"v_add_f32 v{vD+j}, v{vD+j}, v{vR+j}")
    E(f"""
    v_cndmask_b32 v14, v{vD+11}, v{vD+12}, {sr(t0+2,2)}
    v_cndmask_b32 v15, v{vD+13}, v{vD+14}, {sr(t0+2,2)}
    """)
    D = lambda j: vD + j
    pats = [[(D(0), D(1)), (D(2), D(3)), (D(4), D(5)), (D(6), D(7))],
            [(D(8), D(8)), (D(8), D(9)), (D(9), D(9)), (D(10), D(10))],
            [(D(11), D(11)), (D(11), D(11)), (14, D(12)), (D(12), D(12))],
            [(D(13), D(13)), (D(13), D(13)), (15, D(14)), (D(14), D(14))]]
    vE0 = 64
    for u in range(4):
        for j, (a, b) in enumerate(pats[u]):
            E(f"v_cvt_pk_bf16_f32 v{vE0+8*u+j}, v{a}, v{b}")
        E(f"ds_write_b128 v2, {vr(vE0+8*u,4)} offset:{32+1024*u}")
    for u in range(4):
        E(f"ds_read_b64 {vr(vE0+8*u+4,2)}, v2 offset:{48+1024*u}")
    E(f"{lk2}:")
    E(f"""
    s_waitcnt lgkmcnt(0)
    v_add_f32 v4, v4, v5
    v_add_f32 v6, v6, v7
    v_add_f32 v8, v8, v9
    v_add_f32 v10, v10, v11
    v_add_f32 v4, v4, v6
    v_add_f32 v8, v8, v10
    v_add_f32 v4, v4, v8
    v_mul_f32 v4, {fbits(-log2e)}, v4
    v_exp_f32 v4, v4
    s_nop 0
    v_add_f32 v4, 1.0, v4
    v_rcp_f32 v{vg}, v4
    s_nop 0
    v_sub_f32 v{vomg}, 1.0, v{vg}
    s_barrier
    """)
    lk = newlab("nk"); lk2 = newlab("nk2")
    E(f"s_cmp_eq_u32 s{sMH}, 0\ns_cbranch_scc1 {lk}\ns_cmp_eq_u32 s{sH}, 1\ns_cbranch_scc0 {lk2}")
    put_flag(vF1, vOne)
    E("s_waitcnt vmcnt(0)")
    poll_global(vF1P, pFL, vTm)
    E(f"s_branch {lk2}\n{lk}:")
    for u in range(4):
        b = vE0 + 8 * u; o = 96 + 12 * (u & 1)
        for j in range(4):
            E(f"v_alignbit_b32 v{o+j}, v{b+j+1}, v{b+j}, 16")
        E(f"ds_write_b128 v2, {vr(o,4)} offset:{32+1024*u+KCP}")
        for j in range(4):
            E(f"v_mov_b32 v{o+4+j}, v{b+j+1}")
        E(f"ds_write_b128 v2, {vr(o+4,4)} offset:{32+1024*u+2*KCP}")
        for j in range(4):
            E(f"v_alignbit_b32 v{o+8+j}, v{b+j+2}, v{b+j+1}, 16")
        E(f"ds_write_b128 v2, {vr(o+8,4)} offset:{32+1024*u+3*KCP}")
        if u == 0:
            E(f"""
            v_lshlrev_b32 v14, 16, v{b}
            s_mov_b64 exec, 1
            ds_write_b32 v2, v14 offset:{28+KCP}
            ds_write_b32 v2, v{b} offset:{28+2*KCP}
            ds_write_b32 v2, v14 offset:{24+3*KCP}
            ds_write_b32 v2, v{o} offset:{28+3*KCP}
            s_mov_b64 exec, -1
            """)
    E(f"{lk2}:\ns_barrier")
    stamp("h")
    E(f"s_setprio {OPT.get('prio2', 0)}")
    for j in range(8):
        E(f"global_load_dword v{vU+j}, v{vUA}, {sr(pX,2)} offset:{1024*j-4096}\ns_waitcnt vmcnt({OPT.get('gd',0) if j < 7 else 0})")
    E(f"s_setprio {OPT['prio']}")
    for j in range(4):
        E(f"v_perm_b32 v{12+j}, v{vU+6-2*j}, v{vU+7-2*j}, s{sP0}")
        E(f"v_perm_b32 v{16+j}, v{vU+6-2*j}, v{vU+7-2*j}, s{sP1}")
    E(f"ds_write_b128 v{vUW}, v[12:15]\nds_write_b128 v{vUW}, v[16:19] offset:{URS}")
    lds_arrive(vCA, vOne)
    lds_wait(vCA, vTm, 4)
    stamp("h")
    vY = 64
    vF = [96, 192]
    def creads(r):
        f = vF[r & 1]; o = []
        for gmm in range(8):
            o.append(f"ds_read_b64 {vr(f+4*gmm,2)}, v{vAA} offset:{512*gmm+64*r}")
            o.append(f"ds_read_b64 {vr(f+4*gmm+2,2)}, v{vAA} offset:{512*gmm+64*r+8}")
            o.append(f"ds_read_b128 {vr(f+32+4*gmm,4)}, v{vBA} offset:{3584-512*gmm+64*r}")
        return o
    E(creads(0))
    E(f"s_setprio {OPT.get('prio3', OPT['prio'])}")
    for r in range(4):
        f = vF[r & 1]
        nxt = creads(r + 1) if r < 3 else []
        E("s_waitcnt lgkmcnt(0)")
        seen = set()
        for gmm in range(8):
            for dl in range(8 - gmm):
                tau = gmm + dl
                c = "0" if (r == 0 and tau not in seen) else vr(vY + 4 * tau, 4)
                seen.add(tau)
                E(f"v_mfma_f32_16x16x32_bf16 {vr(vY+4*tau,4)}, {vr(f+4*gmm,4)}, {vr(f+32+4*dl,4)}, {c}")
                if nxt: E(nxt.pop(0))
    E(f"s_setprio {OPT['prio']}")
    l1 = newlab("c1"); l2 = newlab("c2")
    E(f"s_nop 5\ns_cmp_eq_u32 s{sMH}, 0\ns_cbranch_scc0 {l1}")
    def conv_fin(send, keep):
        for j in range(4):
            E(f"ds_write_b128 v{vCW}, {vr(send+4*j,4)} offset:{1024*j}")
        lds_arrive(vCP, vOne)
        lds_wait(vCP, vTm, 2)
        for j in range(4):
            E(f"ds_read_b128 {vr(96+4*j,4)}, v{vCR} offset:{1024*j}")
        E("s_waitcnt lgkmcnt(0)")
        for j in range(16):
            E(f"v_add_f32 v{96+j}, v{keep+j}, v{96+j}")
    conv_fin(vY + 16, vY)
    E(f"s_branch {l2}\n{l1}:")
    conv_fin(vY, vY + 16)
    E(f"{l2}:")
    for j in range(4):
        E(f"v_cvt_pk_bf16_f32 v{112+2*j}, v{96+4*j}, v{97+4*j}\nv_cvt_pk_bf16_f32 v{113+2*j}, v{98+4*j}, v{99+4*j}")
        E(f"global_store_dwordx2 v{vAT}, {vr(112+2*j,2)}, {sr(sAT,2)} sc1")
        if j < 3: E(f"s_add_u32 s{sAT}, s{sAT}, {8*32768}\ns_addc_u32 s{sAT+1}, s{sAT+1}, 0")
    E("s_waitcnt vmcnt(0)")
    put_flag(vF3, vOne)
    stamp("h")
    vWo = 128
    sO = t0 + 2
    for rd in range(4):
        for j in range(8):
            hd = 8 * rd + j
            if j % 4 == 0: E(f"s_add_u32 m0, s{sWst}, {j*1024}")
            E(f"s_mov_b32 s{sO}, {hd*16384-(j%4)*1024}")
            E(f"buffer_load_dwordx4 v{vWoG}, {sr(SRDW,4)}, s{sO} offen offset:{(j%4)*1024} lds")
            if j % 2 == 1 and OPT.get("wothr", 1): E("s_waitcnt vmcnt(2)")
        E("s_waitcnt vmcnt(0)")
        for j in range(8):
            hd = 8 * rd + j
            E(f"ds_read_b64_tr_b16 {vr(vWo+4*hd,2)}, v{vWoL} offset:{1024*j}")
            E(f"ds_read_b64_tr_b16 {vr(vWo+4*hd+2,2)}, v{vWoL} offset:{1024*j+512}")
        E("s_waitcnt lgkmcnt(0)")
    stamp("h")
    poll_global(vF3P, pFL, vTm)
    for r in range(16):
        E(f"global_load_short_d16_hi v{vA+r}, v{vAL}, {sr(pWs,2)} offset:{(8*(r>>2)+(r&3))*64} sc1")
    E("s_waitcnt vmcnt(0)")
    stamp("h")
    E("s_barrier")
    for r in range(16):
        E(f"v_mul_f32 v{vA+r}, v{vg}, v{vA+r}")
    E("s_barrier")
    stamp("h")
    vB = 64
    for ch in range(4):
        E("s_barrier")
        if ch == 0: stamp("h")
        for j in range(8):
            E(f"ds_read_b128 {vr(vB+4*j,4)}, v{vOL} offset:{1024*(8*ch+j)}")
        for j in range(8):
            hd = 8 * ch + j
            E(f"s_waitcnt lgkmcnt({7-j})")
            E(f"v_mfma_f32_32x32x16_bf16 {vr(vAcc,16)}, {vr(vWo+4*hd,4)}, {vr(vB+4*j,4)}, {'0' if hd == 0 else vr(vAcc,16)}")
    E("s_nop 11")
    for r in range(16):
        E(f"v_fma_f32 v{vAcc+r}, v{vAcc+r}, v{vomg}, v{vA+r}")
    for j in range(8):
        E(f"v_cvt_pk_bf16_f32 v{vB+j}, v{vAcc+2*j}, v{vAcc+2*j+1}")
    E("s_nop 1")
    for a in (0, 1, 4, 5):
        E(f"v_permlane32_swap_b32 v{vB+a}, v{vB+2+a}")
    fl = ["", "sc1", "nt", "sc0 sc1"][OPT["outsc"]]
    E(f"global_store_dwordx4 v{vOut}, {vr(vB,4)}, {sr(pOut,2)} {fl}\nglobal_store_dwordx4 v{vOut}, {vr(vB+4,4)}, {sr(pOut,2)} offset:32 {fl}")
    if STAMP:
        E("s_waitcnt vmcnt(0)")
    stamp("h")
    stamp_flush("h"); spin_end("h")
    E("L_end:\ns_endpgm")

hdr = open(f"cdna_kernels/{NAME}.s.ref").read().split("; Override launch")[0]
prologue(); main_wave(); helper_wave()
out = hdr + f"""; @launch grid=(256,1,1) block=(512,1,1) lds={LDS_BYTES}
.amdgcn_target "amdgcn-amd-amdhsa--gfx950"
.text
.globl {NAME}_kernel
.p2align 8
.type {NAME}_kernel,@function
{NAME}_kernel:
""" + "\n".join(L) + f"""
.section .rodata,"a"
.p2align 6
.amdhsa_kernel {NAME}_kernel
  .amdhsa_next_free_vgpr 256
  .amdhsa_next_free_sgpr 102
  .amdhsa_accum_offset 256
  .amdhsa_group_segment_fixed_size 0
  .amdhsa_kernarg_size 128
  .amdhsa_user_sgpr_count 2
  .amdhsa_user_sgpr_kernarg_segment_ptr 1
  .amdhsa_system_sgpr_workgroup_id_x 1
.end_amdhsa_kernel
"""
open(sys.argv[1], "w").write(out)
```

```python
import sys, math, struct

NAME = "gated_mix__ssm_conv_s4__mha_block__prompt"
OPT = dict(stamp=0, rot=2, fs=128, spin=200000, prio=2, outsc=0, la=2)
for a in sys.argv[2:]:
    k, v = a.split("=")
    OPT[k] = int(v)
STAMP = OPT["stamp"]
FS = OPT["fs"]
FSH = int(math.log2(FS))

L = []
def E(s):
    if isinstance(s, list): s = "\n".join(s)
    for x in s.split("\n"):
        x = x.strip()
        if x:
            L.append(("" if x.endswith(":") else "    ") + x)
def fbits(x): return "0x%08x" % struct.unpack("<I", struct.pack("<f", x))[0]
def vr(a, n): return f"v[{a}:{a+n-1}]"
def sr(a, n): return f"s[{a}:{a+n-1}]"

WS_KV = 0
WS_OF = 4 << 20
WS_AT = 6 << 20
WS_FL = 8 << 20
WS_ST = 16 << 20
F1, F2, F3 = 0, 256, 512
KG = 0; KGS = 8704
KCP = 4160
UR = KG + 4 * KGS; URS = 4576
GP = UR + 2 * URS
CNT = GP + 1024
RING = CNT + 64
SLOT = 28672; WPART = 7168
NS = OPT["la"] + 1
EXCH = RING + 3 * SLOT if NS == 3 else RING
LDS_BYTES = max(EXCH + 24576, RING + NS * SLOT)
RED = RING + 24576; REDS = 4608
CRED = RED + 4 * REDS; WST = CRED + 16384; OFL = CRED
assert RING % 128 == 0 and WST + 32768 <= (LDS_BYTES if NS == 4 else LDS_BYTES) and LDS_BYTES <= 163840
if NS == 3:
    RED = RING; CRED = RED + 4 * REDS; WST = CRED + 16384; OFL = CRED
    assert WST + 32768 <= EXCH
sW, sHP, sRB, sCH, sROT = 3, 4, 5, 6, 7
SRDX, SRDW = 8, 12
pX, pAre, pAim, pBre, pBim, pCre, pCim, pLdt = 16, 18, 20, 22, 24, 26, 28, 30
pDsk, pW, pWo, pGw, pOut, pDbg, pWs = 32, 36, 38, 40, 42, 44, 46
pFL = 34
sT = 48
sSPIN = 62
sST = 64

nstamp = {"m": 0, "h": 0}
SPM, SPH = OPT.get("spm", -1), OPT.get("sph", -1)
def spin_end(role):
    if (SPM if role == "m" else SPH) < 0: return
    l = newlab("sp")
    E(f"{l}:\ns_memrealtime s[98:99]\ns_waitcnt lgkmcnt(0)\ns_sub_u32 s98, s98, s96\ns_cmp_lt_u32 s98, 4000\ns_cbranch_scc1 {l}")
def stamp(role):
    if SPM >= 0 or SPH >= 0:
        i = nstamp[role]; nstamp[role] += 1
        if i == (SPM if role == "m" else SPH): E("s_memrealtime s[96:97]\ns_waitcnt lgkmcnt(0)")
        return
    if not STAMP or nstamp[role] >= 14: return
    i = nstamp[role]; nstamp[role] += 1
    E(f"s_memrealtime {sr(sST+2*i,2)}\ns_waitcnt lgkmcnt(0)")
def stamp_flush(role):
    if not STAMP: return
    E(f"s_lshl_b32 s{sT}, s2, 3\ns_add_u32 s{sT}, s{sT}, s{sW}\ns_lshl_b32 s{sT}, s{sT}, 6\ns_add_u32 s{sT}, s{sT}, {WS_ST}\nv_mov_b32 v2, s{sT}")
    for i in range(nstamp[role]):
        E(f"v_mov_b32 v3, s{sST+2*i}\nglobal_store_dword v2, v3, {sr(pWs,2)} offset:{4*i}")
    E(f"s_getreg_b32 s{sT}, hwreg(HW_REG_XCC_ID)\nv_mov_b32 v3, s{sT}\nglobal_store_dword v2, v3, {sr(pWs,2)} offset:60")

lab = [0]
def newlab(p):
    lab[0] += 1
    return f"L_{p}_{lab[0]}"

def poll_global(vaddr, base, vtmp):
    l = newlab("poll"); d = newlab("polld")
    E(f"""
    s_mov_b32 s{sSPIN}, {OPT['spin']}
    {l}:
    global_load_dword v{vtmp}, v{vaddr}, {sr(base,2)} sc1
    s_sub_u32 s{sSPIN}, s{sSPIN}, 1
    s_cbranch_scc1 {d}
    s_waitcnt vmcnt(0)
    v_cmp_ne_u32 vcc, 0, v{vtmp}
    s_nop 1
    s_cmp_eq_u64 vcc, -1
    s_cbranch_scc0 {l}
    {d}:
    s_waitcnt vmcnt(0)
    """)
def put_flag(vaddr, vone, base=None):
    E(f"""
    s_mov_b64 exec, 1
    global_store_dword v{vaddr}, v{vone}, {sr(pFL if base is None else base,2)} sc1
    s_mov_b64 exec, -1
    """)
def lds_arrive(vaddr, vone):
    E(f"""
    s_mov_b64 exec, 1
    ds_add_u32 v{vaddr}, v{vone}
    s_mov_b64 exec, -1
    """)
def lds_wait(vaddr, vtmp, n):
    l = newlab("lw"); d = newlab("lwd")
    E(f"""
    s_mov_b32 s{sSPIN}, {OPT['spin']*8}
    {l}:
    ds_read_b32 v{vtmp}, v{vaddr}
    s_sub_u32 s{sSPIN}, s{sSPIN}, 1
    s_cbranch_scc1 {d}
    s_waitcnt lgkmcnt(0)
    v_readfirstlane_b32 s{sSPIN+1}, v{vtmp}
    s_nop 1
    s_cmp_ge_u32 s{sSPIN+1}, {n}
    s_cbranch_scc0 {l}
    {d}:
    s_waitcnt lgkmcnt(0)
    """)

def prologue():
    E(f"""
    s_cmp_ge_u32 s2, 256
    s_cbranch_scc1 L_end
    s_load_dwordx16 s[16:31], s[0:1], 0
    s_load_dwordx16 s[32:47], s[0:1], 64
    v_lshrrev_b32 v2, 6, v0
    v_and_b32 v1, 63, v0
    v_readfirstlane_b32 s{sW}, v2
    s_lshr_b32 s{sT}, s2, 3
    s_and_b32 s{sHP}, s2, 1
    s_lshl_b32 s{sHP}, s{sHP}, 3
    s_and_b32 s{sT+1}, s{sT}, 7
    s_or_b32 s{sHP}, s{sHP}, s{sT+1}
    s_bfe_u32 s{sRB}, s2, 0x20001
    s_lshl_b32 s{sRB}, s{sRB}, 2
    s_lshr_b32 s{sT+1}, s{sT}, 3
    s_or_b32 s{sRB}, s{sRB}, s{sT+1}
    s_and_b32 s{sCH}, s2, 7
    s_lshl_b32 s{sCH}, s{sCH}, 5
    s_or_b32 s{sCH}, s{sCH}, s{sT}
    s_lshl_b32 s{sCH}, s{sCH}, 1
    """)
    if OPT["rot"] == 0:
        E(f"s_mov_b32 s{sROT}, 0")
    elif OPT["rot"] == 1:
        E(f"s_xor_b32 s{sROT}, s{sHP}, s{sRB}\ns_and_b32 s{sROT}, s{sROT}, 1\ns_lshl_b32 s{sROT}, s{sROT}, 2")
    else:
        E(f"s_lshl_b32 s{sROT}, s{sRB}, 1\ns_add_u32 s{sROT}, s{sROT}, s{sHP}\ns_and_b32 s{sROT}, s{sROT}, 7")
    E(f"""
    s_cmp_ge_u32 s{sW}, 4
    s_cbranch_scc1 L_helper
    """)

def main_wave():
    vXD = 4
    vWD = 8
    vXA = 10
    vFB = 24
    aA, aB, aV = 72, 88, 104
    sXO, sWO, sM0, sX, sZ, sQS = 92, 93, 94, 95, 100, 101
    sKVb, sKV, sJ, sCnt, sMask = sT + 2, sT + 4, sT + 6, sT + 7, sT + 8
    ta, tb, tc = sT + 10, sT + 11, sT + 12
    vO, vKV = 128, 192
    vIDX, vKA, vVA, vSA, vSB, vSV, vEW, vER0, vER1, vERV = range(240, 250)
    vRW, vRWl, vRR, vRRl, vOA, vOB = range(250, 256)
    vF2, vOne, vF2P, vOD = 120, 121, 122, 123
    vQ = 4; SA, SB = 24, 40; vP = 24; vT = 56
    LA = OPT["la"]
    E(f"""
    s_lshl_b32 s{sT}, s{sRB}, 2
    s_add_u32 s{sT}, s{sT}, s{sW}
    s_lshl_b32 s{sT}, s{sT}, 15
    v_lshrrev_b32 v2, 3, v1
    v_lshl_add_u32 v2, v2, 10, s{sT}
    v_lshrrev_b32 v3, 4, v1
    v_xor_b32 v3, v3, v1
    v_and_b32 v3, 7, v3
    v_lshl_add_u32 v{vXD}, v3, 4, v2
    v_xor_b32 v{vXD+1}, 64, v{vXD}
    v_add_u32 v{vXD+1}, 7168, v{vXD+1}
    v_add_u32 v{vXD+2}, 14336, v{vXD}
    v_add_u32 v{vXD+3}, 14336, v{vXD+1}
    s_mul_i32 s{sT}, s{sW}, 49152
    s_lshl_b32 s{sT+1}, s{sHP}, 6
    s_add_u32 s{sT}, s{sT}, s{sT+1}
    v_lshrrev_b32 v2, 2, v1
    v_mul_u32_u24 v2, 3072, v2
    v_and_b32 v3, 3, v1
    v_lshlrev_b32 v3, 4, v3
    v_add3_u32 v{vWD}, v2, v3, s{sT}
    v_xor_b32 v{vWD+1}, 32, v{vWD}
    s_mul_i32 s{sM0}, s{sW}, {WPART}
    s_add_u32 s{sM0}, s{sM0}, {RING}
    s_mov_b32 s{SRDX+2}, {2048*1024}
    s_mov_b32 s{SRDX+3}, 0x00020000
    s_mov_b32 s{SRDW+2}, {512*3072}
    s_mov_b32 s{SRDW+3}, 0x00020000
    s_waitcnt lgkmcnt(0)
    s_add_u32 s{pWs}, s{pWs}, {OPT.get('wsoff',0)<<20}
    s_addc_u32 s{pWs+1}, s{pWs+1}, 0
    s_mov_b32 s{SRDX}, s{pX}
    s_mov_b32 s{SRDX+1}, s{pX+1}
    s_mov_b32 s{SRDW}, s{pW}
    s_mov_b32 s{SRDW+1}, s{pW+1}
    """)
    stamp("m")
    def dma(i):
        slot = i % NS
        g = []
        for seg in range(3):
            g.append([f"buffer_load_dwordx4 v{vWD+(seg==1)}, {sr(SRDW,4)}, s{sWO} offen offset:{seg*1024} lds"])
        for j in range(4):
            g.append([f"buffer_load_dwordx4 v{vXD+j}, {sr(SRDX,4)}, s{sXO} offen offset:{j*1024} lds"])
        g[0] = [f"s_add_u32 s{sT}, s{sROT}, {i}", f"s_and_b32 s{sT}, s{sT}, 7",
                f"s_add_u32 m0, s{sM0}, {slot*SLOT+4096}", f"s_mul_i32 s{sWO}, s{sT}, 196608"] + g[0]
        g[3] = [f"s_add_u32 m0, s{sM0}, {slot*SLOT}", f"s_lshl_b32 s{sXO}, s{sT}, 7"] + g[3]
        return g
    for i in range(LA):
        for g in dma(i): E(g)
    E(f"""
    s_add_u32 s{pFL}, s{pWs}, {WS_FL}
    s_addc_u32 s{pFL+1}, s{pWs+1}, 0
    v_and_b32 v2, 31, v1
    v_lshl_add_u32 v2, v2, 7, s{sM0}
    v_bfe_u32 v3, v1, 1, 3
    v_lshrrev_b32 v{vXA+1}, 5, v1
    v_xor_b32 v3, v3, v{vXA+1}
    v_lshl_add_u32 v{vXA}, v3, 4, v2
    v_xor_b32 v{vXA+1}, 32, v{vXA}
    v_xor_b32 v{vXA+2}, 64, v{vXA}
    v_xor_b32 v{vXA+3}, 0x60, v{vXA}
    v_lshrrev_b32 v2, 5, v1
    v_lshlrev_b32 v2, 3, v2
    v_bfe_u32 v3, v1, 2, 2
    v_add_u32 v2, v2, v3
    v_lshlrev_b32 v2, 6, v2
    v_and_b32 v3, 3, v1
    v_lshl_add_u32 v2, v3, 3, v2
    v_add_u32 v2, {RING+4096}, v2
    v_bfe_u32 v3, v1, 4, 1
    v_mul_u32_u24 v{vXA+4}, 1056, v3
    v_add_u32 v{vXA+4}, v{vXA+4}, v2
    v_xor_b32 v{vXA+5}, 32, v{vXA+4}
    v_lshl_add_u32 v{vXA+6}, v3, 5, v2
    v_add_u32 v{vXA+6}, 2048, v{vXA+6}
    """)
    for j in range(7):
        E(f"v_add_u32 v{vXA+7+j}, {2*SLOT}, v{vXA+j}")
    E(f"""
    s_and_b32 s{sX}, s{sW}, 1
    s_lshr_b32 s{sZ}, s{sW}, 1
    s_mov_b32 s{sQS}, {fbits(0.25 * math.log2(math.e))}
    s_lshl_b32 s{ta}, s{sRB}, 2
    s_add_u32 s{ta}, s{ta}, s{sW}
    s_lshl_b32 s{ta}, s{ta}, 11
    s_lshl_b32 s{tb}, s{sHP}, 18
    s_add_u32 s{ta}, s{ta}, s{tb}
    v_lshlrev_b32 v{vKA}, 4, v1
    v_add_u32 v{vSA}, s{ta}, v{vKA}
    v_add_u32 v{vSB}, 0x20000, v{vSA}
    v_and_b32 v{vVA}, 15, v1
    v_lshrrev_b32 v2, 5, v1
    v_lshl_add_u32 v{vVA}, v2, 4, v{vVA}
    v_lshlrev_b32 v{vVA}, 4, v{vVA}
    v_bfe_u32 v2, v1, 4, 1
    v_lshlrev_b32 v2, 17, v2
    v_add3_u32 v{vSV}, v2, v{vVA}, s{ta}
    s_mul_i32 s{tb}, s{sW}, 6144
    s_add_u32 s{tb}, s{tb}, {EXCH}
    v_add_u32 v{vEW}, s{tb}, v{vKA}
    s_lshl_b32 s{ta}, s{sX}, 10
    s_add_u32 s{ta}, s{ta}, {EXCH}
    s_mul_i32 s{tb}, s{sZ}, 12288
    s_add_u32 s{tc}, s{ta}, s{tb}
    v_add_u32 v{vER0}, s{tc}, v{vKA}
    s_sub_u32 s{tc}, s{ta}, s{tb}
    s_add_u32 s{tc}, s{tc}, 12288
    v_add_u32 v{vER1}, s{tc}, v{vKA}
    s_lshl_b32 s{ta}, s{sX}, 8
    s_add_u32 s{tc}, s{ta}, s{tb}
    s_add_u32 s{tc}, s{tc}, {EXCH}
    v_add_u32 v{vERV}, s{tc}, v{vKA}
    s_lshl_b32 s{ta}, s{sHP}, 1
    s_add_u32 s{ta}, s{ta}, s{sX}
    s_lshl_b32 s{tb}, s{ta}, 17
    s_lshl_b32 s{tc}, s{sZ}, 12
    s_add_u32 s{tb}, s{tb}, s{tc}
    s_add_u32 s{sKVb}, s{pWs}, s{tb}
    s_addc_u32 s{sKVb+1}, s{pWs+1}, 0
    s_lshl_b32 s{sJ}, s{sRB}, 13
    s_lshl_b32 s{tb}, s{sRB}, 1
    s_add_u32 s{tb}, s{tb}, s{sZ}
    s_lshl_b32 s{tb}, s{tb}, 6
    s_add_u32 s{tb}, s{tb}, s{ta}
    s_lshl_b32 s{tb}, s{tb}, 10
    s_add_u32 s{tb}, s{tb}, {WS_OF}
    v_add_u32 v{vOA}, s{tb}, v{vKA}
    v_add_u32 v{vOB}, 0x8000, v{vOA}
    s_mul_i32 s{ta}, s{sW}, {REDS}
    s_add_u32 s{ta}, s{ta}, {RED}
    v_add_u32 v{vRW}, s{ta}, v{vKA}
    v_lshl_add_u32 v{vRWl}, v1, 2, s{ta}
    s_xor_b32 s{ta}, s{sW}, 2
    s_mul_i32 s{ta}, s{ta}, {REDS}
    s_add_u32 s{ta}, s{ta}, {RED}
    v_add_u32 v{vRR}, s{ta}, v{vKA}
    v_lshl_add_u32 v{vRRl}, v1, 2, s{ta}
    s_lshl_b32 s{ta}, s{sRB}, 4
    s_add_u32 s{ta}, s{ta}, {F2}
    s_add_u32 s{tb}, s{ta}, s{sHP}
    s_lshl_b32 s{tb}, s{tb}, {FSH}
    v_mov_b32 v{vF2}, s{tb}
    v_mov_b32 v{vOne}, 1
    v_and_b32 v2, 15, v1
    v_add_u32 v2, s{ta}, v2
    v_lshlrev_b32 v{vF2P}, {FSH}, v2
    s_lshl_b32 s{ta}, s{sRB}, 2
    s_and_b32 s{tb}, s{sHP}, 3
    s_add_u32 s{ta}, s{ta}, s{tb}
    s_lshl_b32 s{ta}, s{ta}, 15
    s_add_u32 s{ta}, s{ta}, {WS_OF}
    v_add_u32 v{vOD}, s{ta}, v{vKA}
    v_mov_b32 v{vIDX}, 0xdddddddd
    v_and_b32 v2, 27, v1
    v_cmp_eq_u32 vcc, 16, v2
    v_mov_b32 v2, 0x3f803f80
    s_mov_b32 s{sMask}, 0x0000ffff
    s_mov_b32 s{sMask+1}, 0x0000ffff
    v_cndmask_b32 v2, 0, v2, vcc
    """)
    for s in range(4):
        for j in range(8):
            E(f"v_mov_b32 v{vKV+12*s+4+j}, v2")
    for j in range(64):
        E(f"v_mov_b32 v{vO+j}, 0")
    def reads(n):
        i, s = n >> 2, n & 3
        slot = i % NS
        a = vXA + 7 * (slot >> 1)
        so = (slot & 1) * SLOT
        f = vFB + 16 * (n % 3)
        o = [f"ds_read_b128 {vr(f,4)}, v{a+s} offset:{so}"]
        for c in range(3):
            o.append(f"ds_read_b64_tr_b16 {vr(f+4+4*c,2)}, v{a+4+c} offset:{so+s*WPART}")
            o.append(f"ds_read_b64_tr_b16 {vr(f+6+4*c,2)}, v{a+4+c} offset:{so+s*WPART+256}")
        return o
    E(f"s_waitcnt vmcnt({7*(LA-1)})\ns_barrier")
    stamp("m")
    E(reads(0) + reads(1))
    pend = dma(LA)
    E(pend.pop(0))
    for n in range(32):
        f = vFB + 16 * (n % 3)
        c = (lambda a: "0" if n == 0 else vr(a, 16))
        m = [f"v_mfma_f32_32x32x16_bf16 {vr(aA,16)}, {vr(f+4,4)}, {vr(f,4)}, {c(aA)}",
             f"v_mfma_f32_32x32x16_bf16 {vr(aB,16)}, {vr(f+8,4)}, {vr(f,4)}, {c(aB)}",
             f"v_mfma_f32_32x32x16_bf16 {vr(aV,16)}, {vr(f,4)}, {vr(f+12,4)}, {c(aV)}"]
        r = reads(n + 2) if n + 2 < 32 else []
        E(f"s_waitcnt lgkmcnt({7 if n < 31 else 0})")
        E(m[0])
        if (n + 2) % 4 == 0 and n + 2 < 32:
            b = (n + 2) >> 2
            assert not pend
            E(f"s_waitcnt vmcnt({7*min(LA-1, 7-b)}) lgkmcnt(0)")
            if STAMP == 3: stamp("m")
            E("s_barrier")
            if STAMP == 2: stamp("m")
            if b + LA <= 7: pend = dma(b + LA)
        E(r[:3])
        if pend and n < 2: E(pend.pop(0))
        E(m[1]); E(r[3:])
        if pend: E(pend.pop(0))
        E(m[2])
        if pend: E(pend.pop(0))
    stamp("m")
    E("s_nop 9")
    for j in range(4):
        E(f"v_cvt_pk_bf16_f32 v{vP+8+j}, v{aA+8+2*j}, v{aA+9+2*j}")
    E(f"global_store_dwordx4 v{vSA}, {vr(vP+8,4)}, {sr(pWs,2)} sc1")
    for j in range(4):
        E(f"v_cvt_pk_bf16_f32 v{vP+12+j}, v{aB+8+2*j}, v{aB+9+2*j}")
    E(f"global_store_dwordx4 v{vSB}, {vr(vP+12,4)}, {sr(pWs,2)} sc1")
    for j in range(8):
        E(f"v_cvt_pk_bf16_f32 v{vP+16+j}, v{aV+2*j}, v{aV+1+2*j}")
    E(f"ds_write_b128 v{vEW}, {vr(vP+8,4)} offset:2048\nds_write_b128 v{vEW}, {vr(vP+12,4)} offset:3072")
    for a in (0, 1, 4, 5):
        E(f"v_permlane32_swap_b32 v{vP+16+a}, v{vP+18+a}")
    E(f"global_store_dwordx4 v{vSV}, {vr(vP+16,4)}, {sr(pWs,2)} offset:1024 sc1")
    E(f"global_store_dwordx4 v{vSV}, {vr(vP+20,4)}, {sr(pWs,2)} offset:1536 sc1")
    E(f"ds_write_b128 v{vEW}, {vr(vP+16,4)} offset:4096\nds_write_b128 v{vEW}, {vr(vP+20,4)} offset:5120")
    for a, o in ((aA, 0), (aB, 4)):
        for j in range(8):
            E(f"v_mul_f32 v{a+j}, s{sQS}, v{a+j}")
        for j in range(4):
            E(f"v_cvt_pk_bf16_f32 v{vP+o+j}, v{a+2*j}, v{a+1+2*j}")
        E(f"ds_write_b128 v{vEW}, {vr(vP+o,4)} offset:{256*o}")
    def kvaddr():
        return [f"s_add_u32 s{sJ}, s{sJ}, 0x2000", f"s_and_b32 s{sJ}, s{sJ}, 0x1e000",
                f"s_add_u32 s{sKV}, s{sKVb}, s{sJ}", f"s_addc_u32 s{sKV+1}, s{sKVb+1}, 0"]
    E(kvaddr())
    E(f"""
    s_mov_b32 s{sCnt}, 8
    s_waitcnt lgkmcnt(0)
    s_barrier
    ds_read_b128 {vr(vQ,4)}, v{vER0}
    ds_read_b128 {vr(vKV,4)}, v{vER0} offset:2048
    ds_read_b128 {vr(vQ+4,4)}, v{vER0} offset:6144
    ds_read_b128 {vr(vQ+8,4)}, v{vER1}
    ds_read_b128 {vr(vQ+12,4)}, v{vER1} offset:6144
    ds_read_b128 {vr(vKV+12,4)}, v{vER0} offset:{2048+6144}
    s_mov_b64 exec, {sr(sMask,2)}
    ds_read_b128 {vr(vKV+4,4)}, v{vERV} offset:4096
    ds_read_b128 {vr(vKV+8,4)}, v{vERV} offset:5120
    ds_read_b128 {vr(vKV+16,4)}, v{vERV} offset:{4096+6144}
    ds_read_b128 {vr(vKV+20,4)}, v{vERV} offset:{5120+6144}
    s_mov_b64 exec, -1
    s_waitcnt vmcnt(0) lgkmcnt(0)
    v_mfma_f32_32x32x16_bf16 {vr(SA,16)}, {vr(vKV,4)}, {vr(vQ,4)}, 0
    s_barrier
    """)
    stamp("m")
    E("s_nop 11")
    def kload(st, par):
        return [f"global_load_dwordx4 {vr(vKV+12*st,4)}, v{vKA}, {sr(sKV,2)} offset:{par*2048} sc1"]
    def vload(st, par):
        return [f"s_mov_b64 exec, {sr(sMask,2)}",
                f"global_load_dwordx4 {vr(vKV+12*st+4,4)}, v{vVA}, {sr(sKV,2)} offset:{par*2048+1024} sc1",
                f"global_load_dwordx4 {vr(vKV+12*st+8,4)}, v{vVA}, {sr(sKV,2)} offset:{par*2048+1536} sc1",
                "s_mov_b64 exec, -1"]
    def step(t, q, peeled=False):
        cur, oth = (SA, SB) if q % 2 == 0 else (SB, SA)
        tp, qp = (t, q - 1) if q else ((t - 1) % 4, 3)
        tn, qn = (t, q + 1) if q < 3 else ((t + 1) % 4, 0)
        after2, afterq, after1 = [], [], []
        st = (t + 3) % 4; par = (t + 3) & 1
        if not peeled:
            if q == 0:
                after2 = vload(st, par); afterq = kload(st, par)
            if q == 1 and par == 1:
                ka = kvaddr(); after2 = ka[:2]; after1 = ka[2:]
            if q == 3:
                after2 = ["s_waitcnt vmcnt(6)"]
                if t == 3: after1 = [f"s_sub_u32 s{sCnt}, s{sCnt}, 1", f"s_cmp_lg_u32 s{sCnt}, 0"]
        for i in range(16):
            E(f"v_exp_f32 v{cur+i}, v{cur+i}")
            if i == 1 and not (peeled and q == 0):
                E(f"v_smfmac_f32_32x32x32_bf16 {vr(vO+16*qp,16)}, {vr(vKV+12*tp+8,4)}, {vr(oth+8,8)}, v{vIDX}")
                E(after2)
            if i == 4:
                E(f"v_mfma_f32_32x32x16_bf16 {vr(oth,16)}, {vr(vKV+12*tn,4)}, {vr(vQ+4*qn,4)}, 0")
                E(afterq)
            if i == 10:
                E(f"v_smfmac_f32_32x32x32_bf16 {vr(vO+16*q,16)}, {vr(vKV+12*t+4,4)}, {vr(cur,8)}, v{vIDX}")
                E(after1)
    for q in range(4): step(0, q, True)
    E("s_barrier")
    stamp("m")
    E(vload(2, 0) + kload(2, 0) + vload(3, 1) + kload(3, 1) + kvaddr())
    E("s_branch L_attn1\n.p2align 3\nL_attn:")
    for t in range(4):
        if t == 1: E("L_attn1:")
        for q in range(4): step(t, q)
    E(f"""
    s_cbranch_scc1 L_attn
    ds_write_b128 v{vRW}, {vr(vO+32,4)}
    v_smfmac_f32_32x32x32_bf16 {vr(vO+48,16)}, {vr(vKV+36+8,4)}, {vr(SB+8,8)}, v{vIDX}
    """)
    stamp("m")
    E(f"""
    ds_write_b128 v{vRW}, {vr(vO+36,4)} offset:1024
    ds_write_b32 v{vRWl}, v{vO+40} offset:4096
    s_mov_b32 s{ta}, {fbits(2.0**-30)}
    s_mov_b32 s{tb}, {fbits(2.0**50)}
    s_nop 7
    ds_write_b128 v{vRW}, {vr(vO+48,4)} offset:2048
    ds_write_b128 v{vRW}, {vr(vO+52,4)} offset:3072
    ds_write_b32 v{vRWl}, v{vO+56} offset:4352
    s_waitcnt lgkmcnt(0)
    s_barrier
    ds_read_b32 v{SA+8}, v{vRRl} offset:4096
    ds_read_b32 v{SB+8}, v{vRRl} offset:4352
    ds_read_b128 {vr(SA,4)}, v{vRR}
    ds_read_b128 {vr(SA+4,4)}, v{vRR} offset:1024
    ds_read_b128 {vr(SB,4)}, v{vRR} offset:2048
    ds_read_b128 {vr(SB+4,4)}, v{vRR} offset:3072
    s_waitcnt lgkmcnt(4)
    v_add_f32 v{vO+8}, v{vO+8}, v{SA+8}
    v_add_f32 v{vO+24}, v{vO+24}, v{SB+8}
    v_min_f32 v{vT+6}, v{vO+8}, v{vO+24}
    v_max_f32 v{vT+7}, v{vO+8}, v{vO+24}
    v_cmp_lt_f32 vcc, s{ta}, v{vT+6}
    v_cmp_gt_f32 {sr(tc,2)}, s{tb}, v{vT+7}
    s_waitcnt lgkmcnt(0)
    s_and_b64 {sr(tc,2)}, {sr(tc,2)}, vcc
    """)
    for j in range(8):
        E(f"v_add_f32 v{vO+j}, v{vO+j}, v{SA+j}\nv_add_f32 v{vO+16+j}, v{vO+16+j}, v{SB+j}")
    E(f"v_pk_mul_f32 {vr(vT+8,2)}, {vr(vO,2)}, 0 op_sel_hi:[1,0]")
    for j in (2, 4, 6, 16, 18, 20, 22):
        E(f"v_pk_fma_f32 {vr(vT+8,2)}, {vr(vO+j,2)}, 0, {vr(vT+8,2)} op_sel_hi:[1,0,1]")
    E(f"""
    v_cmp_o_f32 vcc, v{vT+8}, v{vT+9}
    s_nop 1
    s_and_b64 vcc, {sr(tc,2)}, vcc
    s_cmp_eq_u64 vcc, -1
    s_cbranch_scc0 L_safe
    L_norm:
    v_rcp_f32 v{vT+6}, v{vO+8}
    v_rcp_f32 v{vT+7}, v{vO+24}
    s_nop 0
    """)
    for j in range(8):
        E(f"v_mul_f32 v{vO+j}, v{vO+j}, v{vT+6}")
    for j in range(4):
        E(f"v_cvt_pk_bf16_f32 v{SA+j}, v{vO+2*j}, v{vO+2*j+1}")
    E(f"global_store_dwordx4 v{vOA}, {vr(SA,4)}, {sr(pWs,2)} sc1")
    for j in range(8):
        E(f"v_mul_f32 v{vO+16+j}, v{vO+16+j}, v{vT+7}")
    for j in range(4):
        E(f"v_cvt_pk_bf16_f32 v{SB+j}, v{vO+16+2*j}, v{vO+17+2*j}")
    E(f"""
    global_store_dwordx4 v{vOB}, {vr(SB,4)}, {sr(pWs,2)} sc1
    s_waitcnt vmcnt(0)
    s_barrier
    """)
    stamp("m")
    E(f"s_cmp_lg_u32 s{sW}, 0\ns_cbranch_scc1 L_mdone")
    put_flag(vF2, vOne)
    E("s_waitcnt vmcnt(0)")
    poll_global(vF2P, pFL, 2)
    E(f"s_mov_b32 s{sKV}, s{pWs}\ns_mov_b32 s{sKV+1}, s{pWs+1}")
    for g in range(8):
        E(f"s_mov_b32 m0, {OFL+4096*g}")
        if g: E(f"s_add_u32 s{sKV}, s{sKV}, 4096\ns_addc_u32 s{sKV+1}, s{sKV+1}, 0")
        else: E("s_nop 0")
        for j in range(4):
            E(f"global_load_lds_dwordx4 v{vOD}, {sr(sKV,2)} offset:{1024*j} sc1")
    for n in (24, 16, 8, 0):
        E(f"s_waitcnt vmcnt({n})\ns_barrier")
    if SPM >= 0:
        E("s_branch L_mdone2\nL_mdone:\ns_barrier\ns_barrier\ns_barrier\ns_barrier\nL_mdone2:")
    else:
        E("L_mdone:")
    stamp_flush("m"); spin_end("m")
    E("s_endpgm")
    vM, vC = vT + 6, 72
    E(f"""
    L_safe:
    s_waitcnt vmcnt(0)
    s_lshl_b32 s{ta}, s{sZ}, 12
    s_sub_u32 s{sKVb}, s{sKVb}, s{ta}
    s_subb_u32 s{sKVb+1}, s{sKVb+1}, 0
    s_mov_b32 s{sKV}, s{sKVb}
    s_mov_b32 s{sKV+1}, s{sKVb+1}
    s_mov_b32 s{sCnt}, 64
    v_mov_b32 v{vM}, 0xff800000
    v_mov_b32 v{vM+1}, 0xff800000
    L_safe1:
    global_load_dwordx4 {vr(vKV,4)}, v{vKA}, {sr(sKV,2)} sc1
    s_add_u32 s{sKV}, s{sKV}, 2048
    s_addc_u32 s{sKV+1}, s{sKV+1}, 0
    s_waitcnt vmcnt(0)
    v_mfma_f32_32x32x16_bf16 {vr(SA,16)}, {vr(vKV,4)}, {vr(vQ,4)}, 0
    v_mfma_f32_32x32x16_bf16 {vr(SB,16)}, {vr(vKV,4)}, {vr(vQ+4,4)}, 0
    s_nop 15
    """)
    for j in range(8):
        E(f"v_max3_f32 v{vM}, v{SA+2*j}, v{SA+2*j+1}, v{vM}\nv_max3_f32 v{vM+1}, v{SB+2*j}, v{SB+2*j+1}, v{vM+1}")
    E(f"""
    s_sub_u32 s{sCnt}, s{sCnt}, 1
    s_cmp_lg_u32 s{sCnt}, 0
    s_cbranch_scc1 L_safe1
    v_mov_b32 v{SA}, v{vM}
    v_mov_b32 v{SB}, v{vM+1}
    s_nop 1
    v_permlane32_swap_b32 v{SA}, v{vM}
    v_permlane32_swap_b32 v{SB}, v{vM+1}
    s_nop 1
    v_max_f32 v{vM}, v{vM}, v{SA}
    v_max_f32 v{vM+1}, v{vM+1}, v{SB}
    """)
    for j in range(16):
        E(f"v_sub_f32 v{vC+j}, 0, v{vM}\nv_sub_f32 v{vC+16+j}, 0, v{vM+1}\nv_mov_b32 v{vO+j}, 0\nv_mov_b32 v{vO+16+j}, 0")
    E(f"""
    s_mov_b32 s{sKV}, s{sKVb}
    s_mov_b32 s{sKV+1}, s{sKVb+1}
    s_mov_b32 s{sCnt}, 64
    L_safe2:
    """)
    E(kload(0, 0) + vload(0, 0))
    E(f"""
    s_add_u32 s{sKV}, s{sKV}, 2048
    s_addc_u32 s{sKV+1}, s{sKV+1}, 0
    s_waitcnt vmcnt(0)
    v_mfma_f32_32x32x16_bf16 {vr(SA,16)}, {vr(vKV,4)}, {vr(vQ,4)}, {vr(vC,16)}
    v_mfma_f32_32x32x16_bf16 {vr(SB,16)}, {vr(vKV,4)}, {vr(vQ+4,4)}, {vr(vC+16,16)}
    s_nop 15
    """)
    for j in range(32):
        E(f"v_exp_f32 v{SA+j}, v{SA+j}")
    E(f"""
    s_nop 1
    v_smfmac_f32_32x32x32_bf16 {vr(vO,16)}, {vr(vKV+4,4)}, {vr(SA,8)}, v{vIDX}
    v_smfmac_f32_32x32x32_bf16 {vr(vO,16)}, {vr(vKV+8,4)}, {vr(SA+8,8)}, v{vIDX}
    v_smfmac_f32_32x32x32_bf16 {vr(vO+16,16)}, {vr(vKV+4,4)}, {vr(SB,8)}, v{vIDX}
    v_smfmac_f32_32x32x32_bf16 {vr(vO+16,16)}, {vr(vKV+8,4)}, {vr(SB+8,8)}, v{vIDX}
    s_sub_u32 s{sCnt}, s{sCnt}, 1
    s_cmp_lg_u32 s{sCnt}, 0
    s_cbranch_scc1 L_safe2
    s_nop 15
    s_branch L_norm
    """)

def helper_wave():
    sH, sC, sMH, sRT, sCB, sD = sT, sT + 1, sT + 2, sT + 3, sT + 4, sT + 5
    sLd, sDs = sT + 6, sT + 7
    t0 = sT + 8
    sLead, sWst, sP0, sP1 = 92, 93, 94, 95
    sAT = 100
    vGW = 128
    vXF = 160
    vG, vGA0, vGA1 = 164, 165, 166
    vU = 168
    vUA = 167
    vPar = 4
    E(f"""
    L_helper:
    s_setprio {OPT['prio']}
    s_sub_u32 s{sH}, s{sW}, 4
    s_lshr_b32 s{sC}, s{sH}, 1
    s_and_b32 s{sMH}, s{sH}, 1
    s_and_b32 s{sRT}, s{sHP}, 3
    s_lshr_b32 s{sCB}, s{sHP}, 2
    s_add_u32 s{sD}, s{sCH}, s{sC}
    s_lshl_b32 s{t0}, s{sD}, 1
    s_add_u32 s{t0}, s{t0}, s{sMH}
    s_lshl_b32 s{t0}, s{t0}, 7
    v_lshl_add_u32 v2, v1, 1, s{t0}
    s_lshl_b32 s{t0+1}, s{sCH}, 1
    v_lshrrev_b32 v3, 5, v1
    v_lshlrev_b32 v3, 4, v3
    s_lshl_b32 s{t0+2}, s{sH}, 5
    v_add_u32 v3, s{t0+2}, v3
    v_mov_b32 v12, 0
    v_mov_b32 v13, 0
    v_mov_b32 v14, 0
    v_mov_b32 v15, 0
    s_cmp_lt_u32 s2, 16
    s_cselect_b32 s{sLead}, s{sW}, 0
    s_waitcnt lgkmcnt(0)
    s_add_u32 s{pWs}, s{pWs}, {OPT.get('wsoff',0)<<20}
    s_addc_u32 s{pWs+1}, s{pWs+1}, 0
    s_load_dword s{sLd}, {sr(pLdt,2)}, s{t0+1}
    s_load_dword s{sDs}, {sr(pDsk,2)}, s{t0+1}
    """)
    for j, p in enumerate((pAre, pAim, pBre, pBim, pCre, pCim)):
        E(f"global_load_ushort v{vPar+j}, v2, {sr(p,2)}")
    E(f"s_add_u32 s{pFL}, s{pWs}, {WS_FL}\ns_addc_u32 s{pFL+1}, s{pWs+1}, 0")
    for i in range(8):
        E(f"s_add_u32 s{t0}, s{sROT}, {i}\ns_and_b32 s{t0}, s{t0}, 7\ns_lshl_b32 s{t0}, s{t0}, 7\nv_add_u32 v10, s{t0}, v3")
        E(f"global_load_dwordx4 {vr(vGW+4*i,4)}, v10, {sr(pGw,2)}")
    stamp("h")
    ln = newlab("nl")
    E(f"""
    s_cmp_eq_u32 s{sLead}, 7
    s_cbranch_scc0 {ln}
    s_mul_i32 s{t0}, s2, 96
    v_add_u32 v10, s{t0}, v1
    v_lshlrev_b32 v10, {FSH}, v10
    global_store_dword v10, v12, {sr(pFL,2)} sc1
    v_add_u32 v10, {32*FS}, v10
    global_store_dword v10, v12, {sr(pFL,2)} sc1
    {ln}:
    """)
    E(f"""
    s_mul_i32 s{t0}, s{sC}, {URS}
    s_add_u32 s{t0}, s{t0}, {UR+4096}
    v_lshl_add_u32 v10, v1, 4, s{t0}
    v_mov_b32 v11, {CNT}
    v_cmp_gt_u32 vcc, 30, v1
    s_nop 1
    v_cndmask_b32 v10, v11, v10, vcc
    ds_write_b128 v10, v[12:15]
    """)
    vWA, vRA = 16, 17
    if "prio1" in OPT: E(f"s_setprio {OPT['prio1']}")
    E(f"""
    s_mul_i32 s{t0}, s{sRT}, {WPART}
    s_add_u32 s{t0}, s{t0}, {RING}
    v_and_b32 v10, 31, v1
    v_lshl_add_u32 v10, v10, 7, s{t0}
    v_bfe_u32 v11, v1, 1, 3
    v_lshrrev_b32 v3, 5, v1
    v_xor_b32 v11, v11, v3
    s_lshl_b32 s{t0}, s{sH}, 1
    v_xor_b32 v11, s{t0}, v11
    v_lshl_add_u32 v{vGA0}, v11, 4, v10
    v_add_u32 v{vGA1}, {2*SLOT}, v{vGA0}
    v_mov_b32 v{vG}, 0
    s_lshl_b32 s{t0}, s{sH}, 19
    s_lshl_b32 s{t0+1}, s{sCH}, 1
    s_add_u32 s{t0}, s{t0}, s{t0+1}
    s_add_u32 s{t0}, s{t0}, 4096
    v_lshl_add_u32 v{vUA}, v1, 13, s{t0}
    s_mul_i32 s{t0}, s{sH}, {KGS}
    s_add_u32 s{t0}, s{t0}, {KG}
    s_mov_b32 m0, s{t0}
    v_and_b32 v10, 31, v1
    v_mul_u32_u24 v10, 272, v10
    v_lshl_add_u32 v10, v3, 4, v10
    v_add_u32 v{vRA}, s{t0}, v10
    s_mul_i32 s{t0}, s{sC}, {2*KGS}
    s_add_u32 s{t0}, s{t0}, {KG+KGS}
    v_lshl_add_u32 v{vWA}, v1, 4, s{t0}
    """)
    K = []
    def k(s, c=None):
        if isinstance(s, list): s = "\n".join(s)
        for x in s.split("\n"):
            x = x.strip()
            if not x: continue
            cc = c if c is not None else (8 if any(t in x for t in ("v_exp", "v_sin", "v_cos", "v_rcp", "ds_")) else 4)
            K.append((cc, x))
    va, vb, vCB, vt = 18, 19, 20, 22
    log2e = math.log2(math.e)
    c_hi = struct.unpack("<f", struct.pack("<f", log2e))[0]
    c_lo = log2e - c_hi
    k(f"""
    s_waitcnt lgkmcnt(0)
    s_lshl_b32 s{t0}, s{sC}, 4
    s_lshr_b32 s{sLd}, s{sLd}, s{t0}
    s_lshl_b32 s{sLd}, s{sLd}, 16
    s_lshr_b32 s{sDs}, s{sDs}, s{t0}
    s_lshl_b32 s{sDs}, s{sDs}, 16
    s_mov_b32 s{t0}, {fbits(c_hi)}
    v_mov_b32 v{vt}, s{sLd}
    v_mul_f32 v{vt+1}, s{t0}, v{vt}
    v_fma_f32 v{vt+2}, v{vt}, s{t0}, -v{vt+1}
    v_fmac_f32 v{vt+2}, {fbits(c_lo)}, v{vt}
    v_exp_f32 v{vt+1}, v{vt+1}
    v_mul_f32 v{vt+2}, {fbits(math.log(2.0))}, v{vt+2}
    v_fma_f32 v{vt+1}, v{vt+1}, v{vt+2}, v{vt+1}
    v_cvt_pk_bf16_f32 v{vt+1}, v{vt+1}, v{vt+1}
    v_lshlrev_b32 v{vt}, 16, v{vt+1}
    s_waitcnt vmcnt(8)
    """)
    for j in range(6):
        k(f"v_lshlrev_b32 v{vPar+j}, 16, v{vPar+j}")
    k(f"""
    v_mul_f32 v{va}, v{vt}, v{vPar}
    v_mul_f32 v{vb}, v{vt}, v{vPar+1}
    v_mul_f32 v{vPar+2}, v{vt}, v{vPar+2}
    v_mul_f32 v{vPar+3}, v{vt}, v{vPar+3}
    v_mul_f32 v{va}, {fbits(c_hi)}, v{va}
    v_mul_f32 v{vb}, 0.15915494, v{vb}
    """)
    def cmul(z, x, w):
        return [f"v_mul_f32 v{z}, v{x}, v{w}\nv_mul_f32 v{z+1}, v{x}, v{w+1}",
                f"v_fma_f32 v{z}, -v{x+1}, v{w+1}, v{z}\nv_fmac_f32 v{z+1}, v{x+1}, v{w}"]
    def cmuls(lst):
        cm = [cmul(*a) for a in lst]
        k([c[0] for c in cm]); k([c[1] for c in cm])
    def direct(z, x):
        k(f"""
        v_mul_f32 v{vt+2}, {fbits(x)}, v{vb}
        v_mul_f32 v{vt+1}, {fbits(x)}, v{va}
        v_fract_f32 v{vt+2}, v{vt+2}
        v_exp_f32 v{vt+1}, v{vt+1}
        v_cos_f32 v{z}, v{vt+2}
        v_sin_f32 v{z+1}, v{vt+2}
        s_nop 0
        v_mul_f32 v{z}, v{z}, v{vt+1}
        v_mul_f32 v{z+1}, v{z+1}, v{vt+1}
        """)
    E1, E32, E256 = 28, 30, 32
    vE = 34
    vPk = 50
    npk = [0]
    def puts(lst, neg):
        w = []
        for z, rows in lst:
            p = vPk + npk[0] % 8; npk[0] += 1
            k(f"v_cvt_pk_bf16_f32 v{p}, v{z}, {'-' if neg else ''}v{z+1}")
            w += [f"ds_write_addtid_b32 v{p} offset:{272*r}" for r in rows]
        k(w)
    def e(j): return vE + 2 * (j % 8)
    direct(e(1), 8.0); direct(E32, 32.0)
    k(f"v_mov_b32 v{e(0)}, 1.0\nv_mov_b32 v{e(0)+1}, 0\nv_mov_b32 v{e(4)}, v{E32}\nv_mov_b32 v{e(4)+1}, v{E32+1}")
    cmuls([(e(2), e(1), e(1)), (e(5), e(1), E32)])
    cmuls([(e(3), e(2), e(1)), (e(6), e(2), E32)])
    cmuls([(e(7), e(3), E32)])
    puts([(e(j), [j]) for j in range(4)], False)
    for j0 in range(4, 32, 4):
        if j0 + 4 < 32: cmuls([(e(j + 4), e(j), E32) for j in range(j0, j0 + 4)])
        puts([(e(j), [j]) for j in range(j0, j0 + 4)], False)
    vEF, vGF, vD = 64, 96, 176
    for s in range(8):
        k(f"ds_read_b128 {vr(vEF+4*s,4)}, v{vRA} offset:{32*s}")
    direct(E1, 1.0); direct(E256, 256.0)
    def row(r, h): return 8 * (r >> 2) + 4 * h + (r & 3)
    vGv = 192
    g = {x: vGv + 2 * x for x in range(9)}
    E2 = e(0)
    cmuls([(g[0], vPar + 4, vPar + 2), (E2, E1, E1)])
    cmuls([(g[1], g[0], E1), (g[2], g[0], E2)])
    cmuls([(g[3], g[1], E2), (g[4], g[2], E2)])
    puts([(g[x], [row(x, 0)]) for x in range(4)], True)
    cmuls([(g[5], g[3], E2), (g[6], g[4], E2)])
    cmuls([(g[7], g[5], E2), (g[8], g[6], E2)])
    puts([(g[x], [row(x, 0)]) for x in range(4, 8)], True)
    A = {o: vGv + 18 + 2 * i for i, o in enumerate((0, 2, 4, 6, 8))}
    cmuls([(A[o], g[o], E256) for o in (0, 2, 4, 6, 8)])
    puts([(A[o], [row(r, 1) for r in rs]) for o, rs in ((0, (0, 1)), (2, (2,)), (4, (3, 4, 5)), (6, (6,)), (8, (7,)))], True)
    src, dst = A, g
    for os_, r0, h in (((0, 4, 8), 8, 0), ((0, 4, 8), 8, 1), ((0, 8), 11, 0), ((0, 8), 11, 1), ((0, 8), 13, 0), ((0, 8), 13, 1)):
        cmuls([(dst[o], src[o], E256) for o in os_])
        puts([(dst[o], [row(r0 + i, h)]) for i, o in enumerate(os_)], True)
        src, dst = dst, src
    for s in range(8):
        k(f"ds_read_b128 {vr(vGF+4*s,4)}, v{vRA} offset:{32*s}")
    k("s_waitcnt lgkmcnt(0)", 100)
    for s in range(8):
        k(f"v_mfma_f32_32x32x16_bf16 {vr(vD,16)}, {vr(vGF+4*s,4)}, {vr(vEF+4*s,4)}, {'0' if s == 0 else vr(vD,16)}", 40)
    k("s_nop 15", 60)
    tot = sum(c for c, _ in K)
    nseg = 8
    segs = [[] for _ in range(nseg)]
    acc = 0
    for c, x in K:
        segs[min(nseg - 1, int(acc * nseg / tot))].append(x); acc += c
    def gate_glue(i):
        E("s_waitcnt lgkmcnt(0)")
        if OPT.get("hst"): stamp("h")
        E("s_barrier")
        if i == 1:
            lq = newlab("nr")
            E(f"""
            s_waitcnt vmcnt(0)
            s_cmp_eq_u32 s{sLead}, 7
            s_cbranch_scc0 {lq}
            s_lshl_b32 s{t0+1}, s2, 2
            v_mov_b32 v10, s{t0+1}
            v_mov_b32 v11, 1
            """)
            put_flag(10, 11, pDbg)
            E(f"{lq}:")
        if i >= 1:
            for j in range(4):
                E(f"v_dot2_f32_bf16 v{vG}, v{vXF+j}, v{vGW+4*(i-1)+j}, v{vG}")
        slot = i % NS
        E(f"ds_read_b128 {vr(vXF,4)}, v{vGA1 if slot >> 1 else vGA0} offset:{(slot&1)*SLOT}")
    for i in range(nseg):
        if OPT.get("nokgen"): segs[i] = [x for x in segs[i] if not any(t in x for t in [("v_mul", "v_fma", "v_cvt", "ds_", "mfma"), ("ds_write",), ("v_mul", "v_fma")][OPT["nokgen"]-1])]
        E(segs[i])
        gate_glue(i)
    stamp("h")
    lx = newlab("nx")
    E(f"s_cmp_eq_u32 s{sMH}, 0\ns_cbranch_scc1 {lx}")
    for j in range(4):
        E(f"ds_write_b128 v{vWA}, {vr(vD+4*j,4)} offset:{1024*j}")
    E(f"""
    {lx}:
    v_and_b32 v10, 31, v1
    v_lshlrev_b32 v10, 5, v10
    v_lshrrev_b32 v11, 5, v1
    v_lshl_add_u32 v11, v11, 2, v10
    s_lshl_b32 s{t0}, s{sH}, 3
    s_add_u32 s{t0}, s{t0}, {GP}
    v_add_u32 v11, s{t0}, v11
    v_add_u32 v{vGA0}, {GP}, v10
    s_waitcnt lgkmcnt(0)
    """)
    for j in range(4):
        E(f"v_dot2_f32_bf16 v{vG}, v{vXF+j}, v{vGW+28+j}, v{vG}")
    E(f"s_nop 2\nds_write_b32 v11, v{vG}")
    (vCA, vCP, vOne, vTm, vAA, vBA, vUW, vCW, vCR, vAT, vF3, vWoG, vWoL, vF3P, vAL, vOut, vg, vomg, vOL, vF1, vF1P, vRdy) = range(24, 46)
    vA = 48; vAcc = 96
    E(f"""
    v_mov_b32 v{vCA}, {CNT}
    s_lshl_b32 s{t0}, s{sC}, 2
    s_add_u32 s{t0}, s{t0}, {CNT+4}
    v_mov_b32 v{vCP}, s{t0}
    v_mov_b32 v{vOne}, 1
    v_lshlrev_b32 v2, 4, v1
    s_lshl_b32 s{t0}, s{sH}, 10
    s_sub_u32 s{t0}, {UR+4080}, s{t0}
    v_sub_u32 v{vUW}, s{t0}, v2
    s_mov_b32 s{sP0}, 0x05040100
    s_mov_b32 s{sP1}, 0x07060302
    v_and_b32 v10, 15, v1
    v_lshlrev_b32 v{vRdy}, 2, v10
    v_add_u32 v11, 1, v10
    v_and_b32 v12, 3, v11
    v_mul_u32_u24 v12, {KCP}, v12
    v_lshrrev_b32 v11, 2, v11
    v_lshl_add_u32 v12, v11, 3, v12
    v_lshrrev_b32 v13, 4, v1
    v_lshlrev_b32 v14, 4, v13
    s_mul_i32 s{t0}, s{sC}, {2*KGS}
    s_lshl_b32 s{t0+1}, s{sMH}, 8
    s_add_u32 s{t0}, s{t0}, s{t0+1}
    s_add_u32 s{t0}, s{t0}, {KG}
    v_add3_u32 v{vAA}, v12, v14, s{t0}
    s_mul_i32 s{t0}, s{sC}, {URS}
    s_add_u32 s{t0}, s{t0}, s{t0+1}
    s_add_u32 s{t0}, s{t0}, {UR+4064-3584}
    v_lshlrev_b32 v11, 5, v10
    v_sub_u32 v14, v14, v11
    v_add_u32 v{vBA}, s{t0}, v14
    s_lshl_b32 s{t0}, s{sH}, 12
    s_add_u32 s{t0}, s{t0}, {CRED}
    v_add_u32 v{vCW}, s{t0}, v2
    s_xor_b32 s{t0}, s{sH}, 1
    s_lshl_b32 s{t0}, s{t0}, 12
    s_add_u32 s{t0}, s{t0}, {CRED}
    v_add_u32 v{vCR}, s{t0}, v2
    v_add_u32 v{vOL}, {OFL}, v2
    v_lshrrev_b32 v11, 1, v10
    v_lshlrev_b32 v11, 15, v11
    v_and_b32 v12, 1, v1
    v_lshl_add_u32 v11, v12, 5, v11
    v_lshl_add_u32 v{vAT}, v13, 3, v11
    s_lshl_b32 s{t0}, s{sMH}, 20
    s_lshl_b32 s{t0+1}, s{sD}, 6
    s_add_u32 s{t0}, s{t0}, s{t0+1}
    s_add_u32 s{t0}, s{t0}, {WS_AT}
    s_add_u32 s{sAT}, s{pWs}, s{t0}
    s_addc_u32 s{sAT+1}, s{pWs+1}, 0
    s_lshl_b32 s{t0}, s{sMH}, 9
    s_add_u32 s{t0}, s{t0}, s{sD}
    s_add_u32 s{t0}, s{t0}, {F3}
    s_lshl_b32 s{t0}, s{t0}, {FSH}
    v_mov_b32 v{vF3}, s{t0}
    s_lshl_b32 s{t0}, s{sHP}, 4
    v_add_u32 v11, s{t0}, v10
    v_lshlrev_b32 v{vF1P}, {FSH}, v11
    s_add_u32 s{t0}, s{t0}, s{sRB}
    s_lshl_b32 s{t0}, s{t0}, {FSH}
    v_mov_b32 v{vF1}, s{t0}
    s_mov_b32 s{SRDW}, s{pWo}
    s_mov_b32 s{SRDW+1}, s{pWo+1}
    s_mov_b32 s{SRDW+2}, {512*1024}
    s_mov_b32 s{SRDW+3}, 0x00020000
    s_lshl_b32 s{t0}, s{sCB}, 2
    s_add_u32 s{t0}, s{t0}, s{sH}
    s_lshl_b32 s{t0+1}, s{t0}, 6
    v_lshrrev_b32 v10, 2, v1
    v_lshl_add_u32 v10, v10, 10, s{t0+1}
    v_and_b32 v11, 3, v1
    v_lshl_add_u32 v{vWoG}, v11, 4, v10
    s_lshl_b32 s{sWst}, s{sH}, 13
    s_add_u32 s{sWst}, s{sWst}, {WST}
    v_lshrrev_b32 v14, 5, v1
    v_lshlrev_b32 v12, 2, v14
    v_bfe_u32 v13, v1, 2, 2
    v_add_u32 v12, v12, v13
    v_lshl_add_u32 v12, v12, 6, s{sWst}
    v_lshl_add_u32 v12, v11, 3, v12
    v_bfe_u32 v13, v1, 4, 1
    v_lshl_add_u32 v{vWoL}, v13, 5, v12
    s_lshl_b32 s{t0}, s{t0}, 5
    s_lshr_b32 s{t0+1}, s{sRB}, 3
    s_lshl_b32 s{t0+1}, s{t0+1}, 9
    s_add_u32 s{t0+1}, s{t0+1}, s{t0}
    s_add_u32 s{t0+1}, s{t0+1}, {F3}
    v_and_b32 v10, 31, v1
    v_add_u32 v11, s{t0+1}, v10
    v_lshlrev_b32 v{vF3P}, {FSH}, v11
    s_lshl_b32 s{t0+1}, s{sRB}, 2
    s_add_u32 s{t0+1}, s{t0+1}, s{sRT}
    s_lshl_b32 s{t0+2}, s{t0+1}, 15
    s_lshl_b32 s{t0+3}, s{t0}, 6
    s_add_u32 s{t0+3}, s{t0+3}, s{t0+2}
    s_add_u32 s{t0+3}, s{t0+3}, {WS_AT}
    v_lshlrev_b32 v12, 8, v14
    v_lshl_add_u32 v12, v10, 1, v12
    v_add_u32 v{vAL}, s{t0+3}, v12
    s_lshl_b32 s{t0}, s{t0}, 1
    s_add_u32 s{t0}, s{t0}, s{t0+2}
    v_lshl_add_u32 v12, v10, 10, s{t0}
    v_lshl_add_u32 v{vOut}, v14, 4, v12
    """)
    for j in range(16):
        E(f"v_mov_b32 v{vA+j}, 0")
    E("s_waitcnt lgkmcnt(0)\ns_barrier")
    if "prio1" in OPT: E(f"s_setprio {OPT['prio']}")
    stamp("h")
    E(f"ds_read_b128 v[4:7], v{vGA0}\nds_read_b128 v[8:11], v{vGA0} offset:16")
    lk = newlab("nk"); lk2 = newlab("nk2")
    vR = 64
    E(f"s_cmp_eq_u32 s{sMH}, 0\ns_cbranch_scc1 {lk}\ns_cmp_eq_u32 s{sH}, 1\ns_cbranch_scc0 {lk2}")
    poll_global(vRdy, pDbg, vTm)
    E(f"s_branch {lk2}\n{lk}:")
    for j in range(4):
        E(f"ds_read_b128 {vr(vR+4*j,4)}, v{vWA} offset:{1024*j}")
    E(f"""
    s_mul_i32 s{t0}, s{sC}, {2*KGS}
    s_add_u32 s{t0}, s{t0}, {KG}
    v_lshl_add_u32 v2, v1, 4, s{t0}
    v_lshrrev_b32 v3, 1, v1
    v_mul_u32_u24 v3, {KCP}, v3
    v_and_b32 v12, 1, v1
    v_lshlrev_b32 v13, 4, v12
    v_add3_u32 v3, v3, v13, s{t0}
    v_cmp_eq_u32 {sr(t0+2,2)}, 1, v12
    v_mov_b32 v20, 0
    v_mov_b32 v21, 0
    v_mov_b32 v22, 0
    v_mov_b32 v23, 0
    s_mov_b64 exec, 1
    v_add_f32 v{vD}, s{sDs}, v{vD}
    s_waitcnt lgkmcnt(0)
    s_mov_b64 exec, 0xff
    ds_write_b128 v3, v[20:23]
    s_mov_b64 exec, -1
    """)
    for j in range(15):
        E(f"v_add_f32 v{vD+j}, v{vD+j}, v{vR+j}")
    E(f"""
    v_cndmask_b32 v14, v{vD+11}, v{vD+12}, {sr(t0+2,2)}
    v_cndmask_b32 v15, v{vD+13}, v{vD+14}, {sr(t0+2,2)}
    """)
    D = lambda j: vD + j
    pats = [[(D(0), D(1)), (D(2), D(3)), (D(4), D(5)), (D(6), D(7))],
            [(D(8), D(8)), (D(8), D(9)), (D(9), D(9)), (D(10), D(10))],
            [(D(11), D(11)), (D(11), D(11)), (14, D(12)), (D(12), D(12))],
            [(D(13), D(13)), (D(13), D(13)), (15, D(14)), (D(14), D(14))]]
    vE0 = 64
    for u in range(4):
        for j, (a, b) in enumerate(pats[u]):
            E(f"v_cvt_pk_bf16_f32 v{vE0+8*u+j}, v{a}, v{b}")
        E(f"ds_write_b128 v2, {vr(vE0+8*u,4)} offset:{32+1024*u}")
    for u in range(4):
        E(f"ds_read_b64 {vr(vE0+8*u+4,2)}, v2 offset:{48+1024*u}")
    E(f"{lk2}:")
    E(f"""
    s_waitcnt lgkmcnt(0)
    v_add_f32 v4, v4, v5
    v_add_f32 v6, v6, v7
    v_add_f32 v8, v8, v9
    v_add_f32 v10, v10, v11
    v_add_f32 v4, v4, v6
    v_add_f32 v8, v8, v10
    v_add_f32 v4, v4, v8
    v_mul_f32 v4, {fbits(-log2e)}, v4
    v_exp_f32 v4, v4
    s_nop 0
    v_add_f32 v4, 1.0, v4
    v_rcp_f32 v{vg}, v4
    s_nop 0
    v_sub_f32 v{vomg}, 1.0, v{vg}
    s_barrier
    """)
    lk = newlab("nk"); lk2 = newlab("nk2")
    E(f"s_cmp_eq_u32 s{sMH}, 0\ns_cbranch_scc1 {lk}\ns_cmp_eq_u32 s{sH}, 1\ns_cbranch_scc0 {lk2}")
    put_flag(vF1, vOne)
    E("s_waitcnt vmcnt(0)")
    poll_global(vF1P, pFL, vTm)
    E(f"s_branch {lk2}\n{lk}:")
    for u in range(4):
        b = vE0 + 8 * u; o = 96 + 12 * (u & 1)
        for j in range(4):
            E(f"v_alignbit_b32 v{o+j}, v{b+j+1}, v{b+j}, 16")
        E(f"ds_write_b128 v2, {vr(o,4)} offset:{32+1024*u+KCP}")
        for j in range(4):
            E(f"v_mov_b32 v{o+4+j}, v{b+j+1}")
        E(f"ds_write_b128 v2, {vr(o+4,4)} offset:{32+1024*u+2*KCP}")
        for j in range(4):
            E(f"v_alignbit_b32 v{o+8+j}, v{b+j+2}, v{b+j+1}, 16")
        E(f"ds_write_b128 v2, {vr(o+8,4)} offset:{32+1024*u+3*KCP}")
        if u == 0:
            E(f"""
            v_lshlrev_b32 v14, 16, v{b}
            s_mov_b64 exec, 1
            ds_write_b32 v2, v14 offset:{28+KCP}
            ds_write_b32 v2, v{b} offset:{28+2*KCP}
            ds_write_b32 v2, v14 offset:{24+3*KCP}
            ds_write_b32 v2, v{o} offset:{28+3*KCP}
            s_mov_b64 exec, -1
            """)
    E(f"{lk2}:\ns_barrier")
    stamp("h")
    E(f"s_setprio {OPT.get('prio2', 0)}")
    for j in range(8):
        E(f"global_load_dword v{vU+j}, v{vUA}, {sr(pX,2)} offset:{1024*j-4096}\ns_waitcnt vmcnt({OPT.get('gd',0) if j < 7 else 0})")
    E(f"s_setprio {OPT['prio']}")
    for j in range(4):
        E(f"v_perm_b32 v{12+j}, v{vU+6-2*j}, v{vU+7-2*j}, s{sP0}")
        E(f"v_perm_b32 v{16+j}, v{vU+6-2*j}, v{vU+7-2*j}, s{sP1}")
    E(f"ds_write_b128 v{vUW}, v[12:15]\nds_write_b128 v{vUW}, v[16:19] offset:{URS}")
    lds_arrive(vCA, vOne)
    lds_wait(vCA, vTm, 4)
    stamp("h")
    vY = 64
    vF = [96, 192]
    def creads(r):
        f = vF[r & 1]; o = []
        for gmm in range(8):
            o.append(f"ds_read_b64 {vr(f+4*gmm,2)}, v{vAA} offset:{512*gmm+64*r}")
            o.append(f"ds_read_b64 {vr(f+4*gmm+2,2)}, v{vAA} offset:{512*gmm+64*r+8}")
            o.append(f"ds_read_b128 {vr(f+32+4*gmm,4)}, v{vBA} offset:{3584-512*gmm+64*r}")
        return o
    E(creads(0))
    E(f"s_setprio {OPT.get('prio3', OPT['prio'])}")
    for r in range(4):
        f = vF[r & 1]
        nxt = creads(r + 1) if r < 3 else []
        E("s_waitcnt lgkmcnt(0)")
        seen = set()
        for gmm in range(8):
            for dl in range(8 - gmm):
                tau = gmm + dl
                c = "0" if (r == 0 and tau not in seen) else vr(vY + 4 * tau, 4)
                seen.add(tau)
                E(f"v_mfma_f32_16x16x32_bf16 {vr(vY+4*tau,4)}, {vr(f+4*gmm,4)}, {vr(f+32+4*dl,4)}, {c}")
                if nxt: E(nxt.pop(0))
    E(f"s_setprio {OPT['prio']}")
    l1 = newlab("c1"); l2 = newlab("c2")
    E(f"s_nop 5\ns_cmp_eq_u32 s{sMH}, 0\ns_cbranch_scc0 {l1}")
    def conv_fin(send, keep):
        for j in range(4):
            E(f"ds_write_b128 v{vCW}, {vr(send+4*j,4)} offset:{1024*j}")
        lds_arrive(vCP, vOne)
        lds_wait(vCP, vTm, 2)
        for j in range(4):
            E(f"ds_read_b128 {vr(96+4*j,4)}, v{vCR} offset:{1024*j}")
        E("s_waitcnt lgkmcnt(0)")
        for j in range(16):
            E(f"v_add_f32 v{96+j}, v{keep+j}, v{96+j}")
    conv_fin(vY + 16, vY)
    E(f"s_branch {l2}\n{l1}:")
    conv_fin(vY, vY + 16)
    E(f"{l2}:")
    for j in range(4):
        E(f"v_cvt_pk_bf16_f32 v{112+2*j}, v{96+4*j}, v{97+4*j}\nv_cvt_pk_bf16_f32 v{113+2*j}, v{98+4*j}, v{99+4*j}")
        E(f"global_store_dwordx2 v{vAT}, {vr(112+2*j,2)}, {sr(sAT,2)} sc1")
        if j < 3: E(f"s_add_u32 s{sAT}, s{sAT}, {8*32768}\ns_addc_u32 s{sAT+1}, s{sAT+1}, 0")
    E("s_waitcnt vmcnt(0)")
    put_flag(vF3, vOne)
    stamp("h")
    vWo = 128
    sO = t0 + 2
    for rd in range(4):
        for j in range(8):
            hd = 8 * rd + j
            if j % 4 == 0: E(f"s_add_u32 m0, s{sWst}, {j*1024}")
            E(f"s_mov_b32 s{sO}, {hd*16384-(j%4)*1024}")
            E(f"buffer_load_dwordx4 v{vWoG}, {sr(SRDW,4)}, s{sO} offen offset:{(j%4)*1024} lds")
            if j % 2 == 1 and OPT.get("wothr", 1): E("s_waitcnt vmcnt(2)")
        E("s_waitcnt vmcnt(0)")
        for j in range(8):
            hd = 8 * rd + j
            E(f"ds_read_b64_tr_b16 {vr(vWo+4*hd,2)}, v{vWoL} offset:{1024*j}")
            E(f"ds_read_b64_tr_b16 {vr(vWo+4*hd+2,2)}, v{vWoL} offset:{1024*j+512}")
        E("s_waitcnt lgkmcnt(0)")
    stamp("h")
    poll_global(vF3P, pFL, vTm)
    for r in range(16):
        E(f"global_load_short_d16_hi v{vA+r}, v{vAL}, {sr(pWs,2)} offset:{(8*(r>>2)+(r&3))*64} sc1")
    E("s_waitcnt vmcnt(0)")
    stamp("h")
    E("s_barrier")
    for r in range(16):
        E(f"v_mul_f32 v{vA+r}, v{vg}, v{vA+r}")
    E("s_barrier")
    stamp("h")
    vB = 64
    for ch in range(4):
        E("s_barrier")
        if ch == 0: stamp("h")
        for j in range(8):
            E(f"ds_read_b128 {vr(vB+4*j,4)}, v{vOL} offset:{1024*(8*ch+j)}")
        for j in range(8):
            hd = 8 * ch + j
            E(f"s_waitcnt lgkmcnt({7-j})")
            E(f"v_mfma_f32_32x32x16_bf16 {vr(vAcc,16)}, {vr(vWo+4*hd,4)}, {vr(vB+4*j,4)}, {'0' if hd == 0 else vr(vAcc,16)}")
    E("s_nop 11")
    for r in range(16):
        E(f"v_fma_f32 v{vAcc+r}, v{vAcc+r}, v{vomg}, v{vA+r}")
    for j in range(8):
        E(f"v_cvt_pk_bf16_f32 v{vB+j}, v{vAcc+2*j}, v{vAcc+2*j+1}")
    E("s_nop 1")
    for a in (0, 1, 4, 5):
        E(f"v_permlane32_swap_b32 v{vB+a}, v{vB+2+a}")
    fl = ["", "sc1", "nt", "sc0 sc1"][OPT["outsc"]]
    E(f"global_store_dwordx4 v{vOut}, {vr(vB,4)}, {sr(pOut,2)} {fl}\nglobal_store_dwordx4 v{vOut}, {vr(vB+4,4)}, {sr(pOut,2)} offset:32 {fl}")
    if STAMP:
        E("s_waitcnt vmcnt(0)")
    stamp("h")
    stamp_flush("h"); spin_end("h")
    E("L_end:\ns_endpgm")

hdr = open(f"cdna_kernels/{NAME}.s.ref").read().split("; Override launch")[0]
prologue(); main_wave(); helper_wave()
out = hdr + f"""; @launch grid=(256,1,1) block=(512,1,1) lds={LDS_BYTES}
.amdgcn_target "amdgcn-amd-amdhsa--gfx950"
.text
.globl {NAME}_kernel
.p2align 8
.type {NAME}_kernel,@function
{NAME}_kernel:
""" + "\n".join(L) + f"""
.section .rodata,"a"
.p2align 6
.amdhsa_kernel {NAME}_kernel
  .amdhsa_next_free_vgpr 256
  .amdhsa_next_free_sgpr 102
  .amdhsa_accum_offset 256
  .amdhsa_group_segment_fixed_size 0
  .amdhsa_kernarg_size 128
  .amdhsa_user_sgpr_count 2
  .amdhsa_user_sgpr_kernarg_segment_ptr 1
  .amdhsa_system_sgpr_workgroup_id_x 1
.end_amdhsa_kernel
"""
open(sys.argv[1], "w").write(out)
```

```python
import sys, math, struct

NAME = "gated_mix__ssm_conv_s4__mha_block__prompt"
OPT = dict(stamp=0, rot=1, fs=8, spin=200000, prio=2, outsc=0, la=2, prio3=0, pf=1, tlb=1, ksplit=50, pk0=1, pk1=0, wod=4)
for a in sys.argv[2:]:
    k, v = a.split("=")
    OPT[k] = int(v)
STAMP = OPT["stamp"]
FS = OPT["fs"]
FSH = int(math.log2(FS))

L = []
def E(s):
    if isinstance(s, list): s = "\n".join(s)
    for x in s.split("\n"):
        x = x.strip()
        if x:
            L.append(("" if x.endswith(":") else "    ") + x)
def fbits(x): return "0x%08x" % struct.unpack("<I", struct.pack("<f", x))[0]
def vr(a, n): return f"v[{a}:{a+n-1}]"
def sr(a, n): return f"s[{a}:{a+n-1}]"

WS_KV = 0
WS_OF = 4 << 20
WS_AT = 6 << 20
WS_FL = 8 << 20
WS_ST = 16 << 20
F1, F2, F3 = 0, 256, 512
KG = 0; KGS = 8704
KCP = 4160
UR = KG + 4 * KGS; URS = 4576
GP = UR + 2 * URS
GW = GP + 1024
CNT = GW + 2048
RING = CNT + 64
SLOT = 28672; WPART = 7168
NS = OPT["la"] + 1
EXCH = RING + 3 * SLOT if NS == 3 else RING
LDS_BYTES = max(EXCH + 24576, RING + NS * SLOT)
RED = RING + 24576; REDS = 4608
CRED = RED + 4 * REDS; WST = CRED + 16384; OFL = CRED
assert RING % 128 == 0 and WST + 32768 <= (LDS_BYTES if NS == 4 else LDS_BYTES) and LDS_BYTES <= 163840
if NS == 3:
    RED = RING; CRED = RED + 4 * REDS; WST = CRED + 16384; OFL = CRED
    assert WST + 65536 <= LDS_BYTES
sW, sHP, sRB, sCH, sROT = 3, 4, 5, 6, 7
SRDX, SRDW = 8, 12
pX, pAre, pAim, pBre, pBim, pCre, pCim, pLdt = 16, 18, 20, 22, 24, 26, 28, 30
pDsk, pW, pWo, pGw, pOut, pDbg, pWs = 32, 36, 38, 40, 42, 44, 46
pFL = 34
sT = 48
sSPIN = 62
sST = 64

nstamp = {"m": 0, "h": 0}
SPM, SPH = OPT.get("spm", -1), OPT.get("sph", -1)
def spin_end(role):
    if (SPM if role == "m" else SPH) < 0: return
    l = newlab("sp")
    E(f"{l}:\ns_memrealtime s[98:99]\ns_waitcnt lgkmcnt(0)\ns_sub_u32 s98, s98, s96\ns_cmp_lt_u32 s98, 4000\ns_cbranch_scc1 {l}")
def stamp(role):
    if SPM >= 0 or SPH >= 0:
        i = nstamp[role]; nstamp[role] += 1
        if i == (SPM if role == "m" else SPH): E("s_memrealtime s[96:97]\ns_waitcnt lgkmcnt(0)")
        return
    if not STAMP or nstamp[role] >= 14: return
    i = nstamp[role]; nstamp[role] += 1
    E(f"s_memrealtime {sr(sST+2*i,2)}\ns_waitcnt lgkmcnt(0)")
def stamp_flush(role):
    if not STAMP: return
    E(f"s_lshl_b32 s{sT}, s2, 3\ns_add_u32 s{sT}, s{sT}, s{sW}\ns_lshl_b32 s{sT}, s{sT}, 6\ns_add_u32 s{sT}, s{sT}, {WS_ST}\nv_mov_b32 v2, s{sT}")
    for i in range(nstamp[role]):
        E(f"v_mov_b32 v3, s{sST+2*i}\nglobal_store_dword v2, v3, {sr(pWs,2)} offset:{4*i}")
    E(f"s_getreg_b32 s{sT}, hwreg(HW_REG_XCC_ID)\nv_mov_b32 v3, s{sT}\nglobal_store_dword v2, v3, {sr(pWs,2)} offset:60")

lab = [0]
def newlab(p):
    lab[0] += 1
    return f"L_{p}_{lab[0]}"

def poll_global(vaddr, base, vtmp):
    l = newlab("poll"); d = newlab("polld")
    E(f"""
    s_mov_b32 s{sSPIN}, {OPT['spin']}
    {l}:
    global_load_dword v{vtmp}, v{vaddr}, {sr(base,2)} sc1
    s_sub_u32 s{sSPIN}, s{sSPIN}, 1
    s_cbranch_scc1 {d}
    s_waitcnt vmcnt(0)
    v_cmp_ne_u32 vcc, 0, v{vtmp}
    s_nop 1
    s_cmp_eq_u64 vcc, -1
    s_cbranch_scc0 {l}
    {d}:
    s_waitcnt vmcnt(0)
    """)
def put_flag(vaddr, vone, base=None):
    E(f"""
    s_mov_b64 exec, 1
    global_store_dword v{vaddr}, v{vone}, {sr(pFL if base is None else base,2)} sc1
    s_mov_b64 exec, -1
    """)
def lds_arrive(vaddr, vone):
    E(f"""
    s_mov_b64 exec, 1
    ds_add_u32 v{vaddr}, v{vone}
    s_mov_b64 exec, -1
    """)
def lds_wait(vaddr, vtmp, n):
    l = newlab("lw"); d = newlab("lwd")
    E(f"""
    s_mov_b32 s{sSPIN}, {OPT['spin']*8}
    {l}:
    ds_read_b32 v{vtmp}, v{vaddr}
    s_sub_u32 s{sSPIN}, s{sSPIN}, 1
    s_cbranch_scc1 {d}
    s_waitcnt lgkmcnt(0)
    v_readfirstlane_b32 s{sSPIN+1}, v{vtmp}
    s_nop 1
    s_cmp_ge_u32 s{sSPIN+1}, {n}
    s_cbranch_scc0 {l}
    {d}:
    s_waitcnt lgkmcnt(0)
    """)

def prologue():
    E(f"""
    s_cmp_ge_u32 s2, 256
    s_cbranch_scc1 L_end
    s_load_dwordx16 s[16:31], s[0:1], 0
    s_load_dwordx16 s[32:47], s[0:1], 64
    v_lshrrev_b32 v2, 6, v0
    v_and_b32 v1, 63, v0
    v_readfirstlane_b32 s{sW}, v2
    """)
    if OPT["pf"]:
        E(f"""
        s_getpc_b64 s[8:9]
        L_pc:
        s_and_b32 s10, s2, 0xf8
        v_add_u32 v2, s10, v2
        v_lshlrev_b32 v2, 7, v2
        v_min_u32 v2, L_end-L_pc, v2
        v_mov_b32 v3, s9
        v_add_co_u32 v2, vcc, s8, v2
        s_mov_b64 exec, 1
        s_nop 0
        v_addc_co_u32 v3, vcc, 0, v3, vcc
        global_load_dword v127, v[2:3], off
        s_mov_b64 exec, -1
        """)
    E(f"""
    s_lshr_b32 s{sT}, s2, 3
    s_and_b32 s{sHP}, s2, 1
    s_lshl_b32 s{sHP}, s{sHP}, 3
    s_and_b32 s{sT+1}, s{sT}, 7
    s_or_b32 s{sHP}, s{sHP}, s{sT+1}
    s_bfe_u32 s{sRB}, s2, 0x20001
    s_lshl_b32 s{sRB}, s{sRB}, 2
    s_lshr_b32 s{sT+1}, s{sT}, 3
    s_or_b32 s{sRB}, s{sRB}, s{sT+1}
    s_and_b32 s{sCH}, s2, 7
    s_lshl_b32 s{sCH}, s{sCH}, 5
    s_or_b32 s{sCH}, s{sCH}, s{sT}
    s_lshl_b32 s{sCH}, s{sCH}, 1
    """)
    if OPT["rot"] == 0:
        E(f"s_mov_b32 s{sROT}, 0")
    elif OPT["rot"] == 1:
        E(f"s_xor_b32 s{sROT}, s{sHP}, s{sRB}\ns_and_b32 s{sROT}, s{sROT}, 1\ns_lshl_b32 s{sROT}, s{sROT}, 2")
    elif OPT["rot"] == 2:
        E(f"s_lshl_b32 s{sROT}, s{sRB}, 1\ns_add_u32 s{sROT}, s{sROT}, s{sHP}\ns_and_b32 s{sROT}, s{sROT}, 7")
    else:
        E(f"s_lshr_b32 s{sROT}, s{sHP}, 1\ns_add_u32 s{sROT}, s{sROT}, s{sRB}\ns_and_b32 s{sROT}, s{sROT}, 3\ns_lshl_b32 s{sROT}, s{sROT}, 1")
    sH, sC, sMH, sD, sLd, sDs, t0 = sT, sT + 1, sT + 2, sT + 5, sT + 6, sT + 7, sT + 8
    E(f"""
    s_cmp_lt_u32 s{sW}, 4
    s_cbranch_scc1 L_main
    s_setprio {OPT['prio']}
    s_sub_u32 s{sH}, s{sW}, 4
    s_lshr_b32 s{sC}, s{sH}, 1
    s_and_b32 s{sMH}, s{sH}, 1
    s_add_u32 s{sD}, s{sCH}, s{sC}
    s_lshl_b32 s{t0}, s{sD}, 1
    s_add_u32 s{t0}, s{t0}, s{sMH}
    s_lshl_b32 s{t0}, s{t0}, 7
    v_lshl_add_u32 v2, v1, 1, s{t0}
    s_lshl_b32 s{t0+1}, s{sCH}, 1
    s_lshl_b32 s{t0}, s{sMH}, 10
    s_add_u32 m0, s{t0}, {GW}
    v_lshlrev_b32 v3, 4, v1
    s_waitcnt lgkmcnt(0)
    s_load_dword s{sLd}, {sr(pLdt,2)}, s{t0+1}
    s_load_dword s{sDs}, {sr(pDsk,2)}, s{t0+1}
    """)
    for j, p in enumerate((pAre, pAim, pBre, pBim, pCre, pCim)):
        E(f"global_load_ushort v{4+j}, v2, {sr(p,2)}")
    E(f"global_load_lds_dwordx4 v3, {sr(pGw,2)}")
    E("s_branch L_helper\nL_main:")

def main_wave():
    vXD = 4
    vWD = 8
    vXA = 10
    vFB = 24
    aA, aB, aV = 72, 88, 104
    sXO, sWO, sM0, sX, sZ, sQS = 92, 93, 94, 95, 100, 101
    sKVb, sKV, sJ, sCnt, sMask = sT + 2, sT + 4, sT + 6, sT + 7, sT + 8
    ta, tb, tc = sT + 10, sT + 11, sT + 12
    vO, vKV = 128, 192
    vIDX, vKA, vVA, vSA, vSB, vSV, vEW, vER0, vER1, vERV = range(240, 250)
    vRW, vRWl, vRR, vRRl, vOA, vOB = range(250, 256)
    vF2, vOne, vF2P, vOD, vF1, vF1P, vRdy = range(120, 127)
    vQ = 4; SA, SB = 24, 40; vP = 24; vT = 56
    LA = OPT["la"]
    E(f"""
    s_lshl_b32 s{sT}, s{sRB}, 2
    s_add_u32 s{sT}, s{sT}, s{sW}
    s_lshl_b32 s{sT}, s{sT}, 15
    v_lshrrev_b32 v2, 3, v1
    v_lshl_add_u32 v2, v2, 10, s{sT}
    v_lshrrev_b32 v3, 4, v1
    v_xor_b32 v3, v3, v1
    v_and_b32 v3, 7, v3
    v_lshl_add_u32 v{vXD}, v3, 4, v2
    v_xor_b32 v{vXD+1}, 64, v{vXD}
    v_add_u32 v{vXD+1}, 7168, v{vXD+1}
    v_add_u32 v{vXD+2}, 14336, v{vXD}
    v_add_u32 v{vXD+3}, 14336, v{vXD+1}
    s_mul_i32 s{sT}, s{sW}, 49152
    s_lshl_b32 s{sT+1}, s{sHP}, 6
    s_add_u32 s{sT}, s{sT}, s{sT+1}
    v_lshrrev_b32 v2, 2, v1
    v_mul_u32_u24 v2, 3072, v2
    v_and_b32 v3, 3, v1
    v_lshlrev_b32 v3, 4, v3
    v_add3_u32 v{vWD}, v2, v3, s{sT}
    v_xor_b32 v{vWD+1}, 32, v{vWD}
    s_mul_i32 s{sM0}, s{sW}, {WPART}
    s_add_u32 s{sM0}, s{sM0}, {RING}
    s_mov_b32 s{SRDX+2}, {2048*1024}
    s_mov_b32 s{SRDX+3}, 0x00020000
    s_mov_b32 s{SRDW+2}, {512*3072}
    s_mov_b32 s{SRDW+3}, 0x00020000
    s_waitcnt lgkmcnt(0)
    s_mov_b32 s{SRDX}, s{pX}
    s_mov_b32 s{SRDX+1}, s{pX+1}
    s_mov_b32 s{SRDW}, s{pW}
    s_mov_b32 s{SRDW+1}, s{pW+1}
    """)
    stamp("m")
    def dma(i):
        slot = i % NS
        g = []
        for seg in range(3):
            g.append([f"buffer_load_dwordx4 v{vWD+(seg==1)}, {sr(SRDW,4)}, s{sWO} offen offset:{seg*1024} lds"])
        for j in range(4):
            g.append([f"buffer_load_dwordx4 v{vXD+j}, {sr(SRDX,4)}, s{sXO} offen offset:{j*1024} lds"])
        g[0] = [f"s_add_u32 s{sT}, s{sROT}, {i}", f"s_and_b32 s{sT}, s{sT}, 7",
                f"s_add_u32 m0, s{sM0}, {slot*SLOT+4096}", f"s_mul_i32 s{sWO}, s{sT}, 196608"] + g[0]
        g[3] = [f"s_add_u32 m0, s{sM0}, {slot*SLOT}", f"s_lshl_b32 s{sXO}, s{sT}, 7"] + g[3]
        return g
    for i in range(LA):
        for g in dma(i): E(g)
    if OPT["tlb"]:
        E(f"""
        s_mov_b32 s{ta}, {WS_FL + 0x40000}
        s_load_dword s18, {sr(pWs,2)}, s{ta}
        s_load_dword s19, {sr(pDbg,2)}, 128
        s_load_dword s20, {sr(pOut,2)}, 0
        s_load_dword s21, {sr(pWo,2)}, 0
        """)
    E(f"""
    s_add_u32 s{pFL}, s{pWs}, {WS_FL}
    s_addc_u32 s{pFL+1}, s{pWs+1}, 0
    v_and_b32 v2, 31, v1
    v_lshl_add_u32 v2, v2, 7, s{sM0}
    v_bfe_u32 v3, v1, 1, 3
    v_lshrrev_b32 v{vXA+1}, 5, v1
    v_xor_b32 v3, v3, v{vXA+1}
    v_lshl_add_u32 v{vXA}, v3, 4, v2
    v_xor_b32 v{vXA+1}, 32, v{vXA}
    v_xor_b32 v{vXA+2}, 64, v{vXA}
    v_xor_b32 v{vXA+3}, 0x60, v{vXA}
    v_lshrrev_b32 v2, 5, v1
    v_lshlrev_b32 v2, 3, v2
    v_bfe_u32 v3, v1, 2, 2
    v_add_u32 v2, v2, v3
    v_lshlrev_b32 v2, 6, v2
    v_and_b32 v3, 3, v1
    v_lshl_add_u32 v2, v3, 3, v2
    v_add_u32 v2, {RING+4096}, v2
    v_bfe_u32 v3, v1, 4, 1
    v_mul_u32_u24 v{vXA+4}, 1056, v3
    v_add_u32 v{vXA+4}, v{vXA+4}, v2
    v_xor_b32 v{vXA+5}, 32, v{vXA+4}
    v_lshl_add_u32 v{vXA+6}, v3, 5, v2
    v_add_u32 v{vXA+6}, 2048, v{vXA+6}
    """)
    for j in range(7):
        E(f"v_add_u32 v{vXA+7+j}, {2*SLOT}, v{vXA+j}")
    E(f"""
    s_and_b32 s{sX}, s{sW}, 1
    s_lshr_b32 s{sZ}, s{sW}, 1
    s_mov_b32 s{sQS}, {fbits(0.25 * math.log2(math.e))}
    s_lshl_b32 s{ta}, s{sRB}, 2
    s_add_u32 s{ta}, s{ta}, s{sW}
    s_lshl_b32 s{ta}, s{ta}, 11
    s_lshl_b32 s{tb}, s{sHP}, 18
    s_add_u32 s{ta}, s{ta}, s{tb}
    v_lshlrev_b32 v{vKA}, 4, v1
    v_add_u32 v{vSA}, s{ta}, v{vKA}
    v_add_u32 v{vSB}, 0x20000, v{vSA}
    v_and_b32 v{vVA}, 15, v1
    v_lshrrev_b32 v2, 5, v1
    v_lshl_add_u32 v{vVA}, v2, 4, v{vVA}
    v_lshlrev_b32 v{vVA}, 4, v{vVA}
    v_bfe_u32 v2, v1, 4, 1
    v_lshlrev_b32 v2, 17, v2
    v_add3_u32 v{vSV}, v2, v{vVA}, s{ta}
    s_mul_i32 s{tb}, s{sW}, 6144
    s_add_u32 s{tb}, s{tb}, {EXCH}
    v_add_u32 v{vEW}, s{tb}, v{vKA}
    s_lshl_b32 s{ta}, s{sX}, 10
    s_add_u32 s{ta}, s{ta}, {EXCH}
    s_mul_i32 s{tb}, s{sZ}, 12288
    s_add_u32 s{tc}, s{ta}, s{tb}
    v_add_u32 v{vER0}, s{tc}, v{vKA}
    s_sub_u32 s{tc}, s{ta}, s{tb}
    s_add_u32 s{tc}, s{tc}, 12288
    v_add_u32 v{vER1}, s{tc}, v{vKA}
    s_lshl_b32 s{ta}, s{sX}, 8
    s_add_u32 s{tc}, s{ta}, s{tb}
    s_add_u32 s{tc}, s{tc}, {EXCH}
    v_add_u32 v{vERV}, s{tc}, v{vKA}
    s_lshl_b32 s{ta}, s{sHP}, 1
    s_add_u32 s{ta}, s{ta}, s{sX}
    s_lshl_b32 s{tb}, s{ta}, 17
    s_lshl_b32 s{tc}, s{sZ}, 12
    s_add_u32 s{tb}, s{tb}, s{tc}
    s_add_u32 s{sKVb}, s{pWs}, s{tb}
    s_addc_u32 s{sKVb+1}, s{pWs+1}, 0
    s_lshl_b32 s{sJ}, s{sRB}, 13
    s_lshl_b32 s{tb}, s{sRB}, 1
    s_add_u32 s{tb}, s{tb}, s{sZ}
    s_lshl_b32 s{tb}, s{tb}, 6
    s_add_u32 s{tb}, s{tb}, s{ta}
    s_lshl_b32 s{tb}, s{tb}, 10
    s_add_u32 s{tb}, s{tb}, {WS_OF}
    v_add_u32 v{vOA}, s{tb}, v{vKA}
    v_add_u32 v{vOB}, 0x8000, v{vOA}
    s_mul_i32 s{ta}, s{sW}, {REDS}
    s_add_u32 s{ta}, s{ta}, {RED}
    v_add_u32 v{vRW}, s{ta}, v{vKA}
    v_lshl_add_u32 v{vRWl}, v1, 2, s{ta}
    s_xor_b32 s{ta}, s{sW}, 2
    s_mul_i32 s{ta}, s{ta}, {REDS}
    s_add_u32 s{ta}, s{ta}, {RED}
    v_add_u32 v{vRR}, s{ta}, v{vKA}
    v_lshl_add_u32 v{vRRl}, v1, 2, s{ta}
    s_lshl_b32 s{ta}, s{sRB}, 4
    s_add_u32 s{ta}, s{ta}, {F2}
    s_add_u32 s{tb}, s{ta}, s{sHP}
    s_lshl_b32 s{tb}, s{tb}, {FSH}
    v_mov_b32 v{vF2}, s{tb}
    v_mov_b32 v{vOne}, 1
    v_and_b32 v3, 15, v1
    v_add_u32 v2, s{ta}, v3
    v_lshlrev_b32 v{vF2P}, {FSH}, v2
    v_lshlrev_b32 v{vRdy}, 2, v3
    s_lshl_b32 s{ta}, s{sHP}, 4
    v_add_u32 v2, s{ta}, v3
    v_lshlrev_b32 v{vF1P}, {FSH}, v2
    s_add_u32 s{ta}, s{ta}, s{sRB}
    s_lshl_b32 s{ta}, s{ta}, {FSH}
    v_mov_b32 v{vF1}, s{ta}
    s_lshl_b32 s{ta}, s{sRB}, 2
    s_and_b32 s{tb}, s{sHP}, 3
    s_add_u32 s{ta}, s{ta}, s{tb}
    s_lshl_b32 s{ta}, s{ta}, 15
    s_add_u32 s{ta}, s{ta}, {WS_OF}
    v_add_u32 v{vOD}, s{ta}, v{vKA}
    v_mov_b32 v{vIDX}, 0xdddddddd
    v_and_b32 v2, 27, v1
    v_cmp_eq_u32 vcc, 16, v2
    v_mov_b32 v2, 0x3f803f80
    s_mov_b32 s{sMask}, 0x0000ffff
    s_mov_b32 s{sMask+1}, 0x0000ffff
    v_cndmask_b32 v2, 0, v2, vcc
    """)
    for s in range(4):
        for j in range(8):
            E(f"v_mov_b32 v{vKV+12*s+4+j}, v2")
    for j in range(64):
        E(f"v_mov_b32 v{vO+j}, 0")
    def reads(n):
        i, s = n >> 2, n & 3
        slot = i % NS
        a = vXA + 7 * (slot >> 1)
        so = (slot & 1) * SLOT
        f = vFB + 16 * (n % 3)
        o = [f"ds_read_b128 {vr(f,4)}, v{a+s} offset:{so}"]
        for c in range(3):
            o.append(f"ds_read_b64_tr_b16 {vr(f+4+4*c,2)}, v{a+4+c} offset:{so+s*WPART}")
            o.append(f"ds_read_b64_tr_b16 {vr(f+6+4*c,2)}, v{a+4+c} offset:{so+s*WPART+256}")
        return o
    E(f"s_waitcnt vmcnt({7*(LA-1)})\ns_barrier")
    stamp("m")
    E(reads(0) + reads(1))
    pend = dma(LA)
    E(pend.pop(0))
    for n in range(32):
        f = vFB + 16 * (n % 3)
        c = (lambda a: "0" if n == 0 else vr(a, 16))
        m = [f"v_mfma_f32_32x32x16_bf16 {vr(aA,16)}, {vr(f+4,4)}, {vr(f,4)}, {c(aA)}",
             f"v_mfma_f32_32x32x16_bf16 {vr(aB,16)}, {vr(f+8,4)}, {vr(f,4)}, {c(aB)}",
             f"v_mfma_f32_32x32x16_bf16 {vr(aV,16)}, {vr(f,4)}, {vr(f+12,4)}, {c(aV)}"]
        r = reads(n + 2) if n + 2 < 32 else []
        E(f"s_waitcnt lgkmcnt({7 if n < 31 else 0})")
        E(m[0])
        if (n + 2) % 4 == 0 and n + 2 < 32:
            b = (n + 2) >> 2
            assert not pend
            E(f"s_waitcnt vmcnt({7*min(LA-1, 7-b)}) lgkmcnt(0)")
            if STAMP == 3: stamp("m")
            E("s_barrier")
            if STAMP == 2: stamp("m")
            if b + LA <= 7: pend = dma(b + LA)
        E(r[:3])
        if pend and n < 2: E(pend.pop(0))
        E(m[1]); E(r[3:])
        if pend: E(pend.pop(0))
        E(m[2])
        if pend: E(pend.pop(0))
    stamp("m")
    E(f"global_load_dword v2, v{vRdy}, {sr(pDbg,2)} sc1\ns_nop 8")
    for j in range(4):
        E(f"v_cvt_pk_bf16_f32 v{vP+8+j}, v{aA+8+2*j}, v{aA+9+2*j}")
    E(f"global_store_dwordx4 v{vSA}, {vr(vP+8,4)}, {sr(pWs,2)} sc1")
    for j in range(4):
        E(f"v_cvt_pk_bf16_f32 v{vP+12+j}, v{aB+8+2*j}, v{aB+9+2*j}")
    E(f"global_store_dwordx4 v{vSB}, {vr(vP+12,4)}, {sr(pWs,2)} sc1")
    for j in range(8):
        E(f"v_cvt_pk_bf16_f32 v{vP+16+j}, v{aV+2*j}, v{aV+1+2*j}")
    E(f"ds_write_b128 v{vEW}, {vr(vP+8,4)} offset:2048\nds_write_b128 v{vEW}, {vr(vP+12,4)} offset:3072")
    for a in (0, 1, 4, 5):
        E(f"v_permlane32_swap_b32 v{vP+16+a}, v{vP+18+a}")
    E(f"global_store_dwordx4 v{vSV}, {vr(vP+16,4)}, {sr(pWs,2)} offset:1024 sc1")
    E(f"global_store_dwordx4 v{vSV}, {vr(vP+20,4)}, {sr(pWs,2)} offset:1536 sc1")
    E(f"ds_write_b128 v{vEW}, {vr(vP+16,4)} offset:4096\nds_write_b128 v{vEW}, {vr(vP+20,4)} offset:5120")
    for a, o in ((aA, 0), (aB, 4)):
        for j in range(8):
            E(f"v_mul_f32 v{a+j}, s{sQS}, v{a+j}")
        for j in range(4):
            E(f"v_cvt_pk_bf16_f32 v{vP+o+j}, v{a+2*j}, v{a+1+2*j}")
        E(f"ds_write_b128 v{vEW}, {vr(vP+o,4)} offset:{256*o}")
    def kvaddr():
        return [f"s_add_u32 s{sJ}, s{sJ}, 0x2000", f"s_and_b32 s{sJ}, s{sJ}, 0x1e000",
                f"s_add_u32 s{sKV}, s{sKVb}, s{sJ}", f"s_addc_u32 s{sKV+1}, s{sKVb+1}, 0"]
    E(kvaddr())
    E(f"""
    s_mov_b32 s{sCnt}, 8
    s_waitcnt lgkmcnt(0)
    s_barrier
    ds_read_b128 {vr(vQ,4)}, v{vER0}
    ds_read_b128 {vr(vKV,4)}, v{vER0} offset:2048
    ds_read_b128 {vr(vQ+4,4)}, v{vER0} offset:6144
    ds_read_b128 {vr(vQ+8,4)}, v{vER1}
    ds_read_b128 {vr(vQ+12,4)}, v{vER1} offset:6144
    ds_read_b128 {vr(vKV+12,4)}, v{vER0} offset:{2048+6144}
    s_mov_b64 exec, {sr(sMask,2)}
    ds_read_b128 {vr(vKV+4,4)}, v{vERV} offset:4096
    ds_read_b128 {vr(vKV+8,4)}, v{vERV} offset:5120
    ds_read_b128 {vr(vKV+16,4)}, v{vERV} offset:{4096+6144}
    ds_read_b128 {vr(vKV+20,4)}, v{vERV} offset:{5120+6144}
    s_mov_b64 exec, -1
    s_waitcnt vmcnt(0) lgkmcnt(0)
    v_mfma_f32_32x32x16_bf16 {vr(SA,16)}, {vr(vKV,4)}, {vr(vQ,4)}, 0
    s_barrier
    """)
    stamp("m")
    lq = newlab("nf"); lr = newlab("rdy")
    E(f"""
    s_cmp_lg_u32 s{sW}, 0
    s_cbranch_scc1 {lq}
    v_cmp_ne_u32 vcc, 0, v2
    s_nop 1
    s_cmp_eq_u64 vcc, -1
    s_cbranch_scc1 {lr}
    """)
    poll_global(vRdy, pDbg, 2)
    E(f"{lr}:")
    put_flag(vF1, vOne)
    E(f"{lq}:\ns_nop 9")
    def kload(st, par):
        return [f"global_load_dwordx4 {vr(vKV+12*st,4)}, v{vKA}, {sr(sKV,2)} offset:{par*2048} sc1"]
    def vload(st, par):
        return [f"s_mov_b64 exec, {sr(sMask,2)}",
                f"global_load_dwordx4 {vr(vKV+12*st+4,4)}, v{vVA}, {sr(sKV,2)} offset:{par*2048+1024} sc1",
                f"global_load_dwordx4 {vr(vKV+12*st+8,4)}, v{vVA}, {sr(sKV,2)} offset:{par*2048+1536} sc1",
                "s_mov_b64 exec, -1"]
    def step(t, q, peeled=False):
        cur, oth = (SA, SB) if q % 2 == 0 else (SB, SA)
        tp, qp = (t, q - 1) if q else ((t - 1) % 4, 3)
        tn, qn = (t, q + 1) if q < 3 else ((t + 1) % 4, 0)
        after2, afterq, after1 = [], [], []
        st = (t + 3) % 4; par = (t + 3) & 1
        if not peeled:
            if q == 0:
                after2 = vload(st, par); afterq = kload(st, par)
            if q == 1 and par == 1:
                ka = kvaddr(); after2 = ka[:2]; after1 = ka[2:]
            if q == 3:
                after2 = ["s_waitcnt vmcnt(6)"]
                if t == 3: after1 = [f"s_sub_u32 s{sCnt}, s{sCnt}, 1", f"s_cmp_lg_u32 s{sCnt}, 0"]
        for i in range(16):
            E(f"v_exp_f32 v{cur+i}, v{cur+i}")
            if i == 1 and not (peeled and q == 0):
                E(f"v_smfmac_f32_32x32x32_bf16 {vr(vO+16*qp,16)}, {vr(vKV+12*tp+8,4)}, {vr(oth+8,8)}, v{vIDX}")
                E(after2)
            if i == 4:
                E(f"v_mfma_f32_32x32x16_bf16 {vr(oth,16)}, {vr(vKV+12*tn,4)}, {vr(vQ+4*qn,4)}, 0")
                E(afterq)
            if i == 10:
                E(f"v_smfmac_f32_32x32x32_bf16 {vr(vO+16*q,16)}, {vr(vKV+12*t+4,4)}, {vr(cur,8)}, v{vIDX}")
                E(after1)
    for q in range(4): step(0, q, True)
    lq = newlab("np")
    E(f"s_cmp_lg_u32 s{sW}, 0\ns_cbranch_scc1 {lq}")
    poll_global(vF1P, pFL, 2)
    E(f"{lq}:\ns_barrier")
    stamp("m")
    E(vload(2, 0) + kload(2, 0) + vload(3, 1) + kload(3, 1) + kvaddr())
    E("s_branch L_attn1\n.p2align 3\nL_attn:")
    for t in range(4):
        if t == 1: E("L_attn1:")
        for q in range(4): step(t, q)
    E(f"""
    s_cbranch_scc1 L_attn
    ds_write_b128 v{vRW}, {vr(vO+32,4)}
    v_smfmac_f32_32x32x32_bf16 {vr(vO+48,16)}, {vr(vKV+36+8,4)}, {vr(SB+8,8)}, v{vIDX}
    """)
    stamp("m")
    E(f"""
    ds_write_b128 v{vRW}, {vr(vO+36,4)} offset:1024
    ds_write_b32 v{vRWl}, v{vO+40} offset:4096
    s_mov_b32 s{ta}, {fbits(2.0**-30)}
    s_mov_b32 s{tb}, {fbits(2.0**50)}
    s_nop 7
    ds_write_b128 v{vRW}, {vr(vO+48,4)} offset:2048
    ds_write_b128 v{vRW}, {vr(vO+52,4)} offset:3072
    ds_write_b32 v{vRWl}, v{vO+56} offset:4352
    s_waitcnt lgkmcnt(0)
    s_barrier
    ds_read_b32 v{SA+8}, v{vRRl} offset:4096
    ds_read_b32 v{SB+8}, v{vRRl} offset:4352
    ds_read_b128 {vr(SA,4)}, v{vRR}
    ds_read_b128 {vr(SA+4,4)}, v{vRR} offset:1024
    ds_read_b128 {vr(SB,4)}, v{vRR} offset:2048
    ds_read_b128 {vr(SB+4,4)}, v{vRR} offset:3072
    s_waitcnt lgkmcnt(4)
    v_add_f32 v{vO+8}, v{vO+8}, v{SA+8}
    v_add_f32 v{vO+24}, v{vO+24}, v{SB+8}
    v_min_f32 v{vT+6}, v{vO+8}, v{vO+24}
    v_max_f32 v{vT+7}, v{vO+8}, v{vO+24}
    v_cmp_lt_f32 vcc, s{ta}, v{vT+6}
    v_cmp_gt_f32 {sr(tc,2)}, s{tb}, v{vT+7}
    s_waitcnt lgkmcnt(0)
    s_and_b64 {sr(tc,2)}, {sr(tc,2)}, vcc
    """)
    for j in range(8):
        E(f"v_add_f32 v{vO+j}, v{vO+j}, v{SA+j}\nv_add_f32 v{vO+16+j}, v{vO+16+j}, v{SB+j}")
    E(f"v_pk_mul_f32 {vr(vT+8,2)}, {vr(vO,2)}, 0 op_sel_hi:[1,0]")
    for j in (2, 4, 6, 16, 18, 20, 22):
        E(f"v_pk_fma_f32 {vr(vT+8,2)}, {vr(vO+j,2)}, 0, {vr(vT+8,2)} op_sel_hi:[1,0,1]")
    E(f"""
    v_cmp_o_f32 vcc, v{vT+8}, v{vT+9}
    s_nop 1
    s_and_b64 vcc, {sr(tc,2)}, vcc
    s_cmp_eq_u64 vcc, -1
    s_cbranch_scc0 L_safe
    L_norm:
    v_rcp_f32 v{vT+6}, v{vO+8}
    v_rcp_f32 v{vT+7}, v{vO+24}
    s_nop 0
    """)
    for j in range(8):
        E(f"v_mul_f32 v{vO+j}, v{vO+j}, v{vT+6}")
    for j in range(4):
        E(f"v_cvt_pk_bf16_f32 v{SA+j}, v{vO+2*j}, v{vO+2*j+1}")
    E(f"global_store_dwordx4 v{vOA}, {vr(SA,4)}, {sr(pWs,2)} sc1")
    for j in range(8):
        E(f"v_mul_f32 v{vO+16+j}, v{vO+16+j}, v{vT+7}")
    for j in range(4):
        E(f"v_cvt_pk_bf16_f32 v{SB+j}, v{vO+16+2*j}, v{vO+17+2*j}")
    E(f"""
    global_store_dwordx4 v{vOB}, {vr(SB,4)}, {sr(pWs,2)} sc1
    s_waitcnt vmcnt(0)
    s_barrier
    """)
    stamp("m")
    E(f"s_cmp_lg_u32 s{sW}, 0\ns_cbranch_scc1 L_mdone")
    put_flag(vF2, vOne)
    E("s_waitcnt vmcnt(0)")
    poll_global(vF2P, pFL, 2)
    E(f"s_mov_b32 s{sKV}, s{pWs}\ns_mov_b32 s{sKV+1}, s{pWs+1}")
    for g in range(8):
        E(f"s_mov_b32 m0, {OFL+4096*g}")
        if g: E(f"s_add_u32 s{sKV}, s{sKV}, 4096\ns_addc_u32 s{sKV+1}, s{sKV+1}, 0")
        else: E("s_nop 0")
        for j in range(4):
            E(f"global_load_lds_dwordx4 v{vOD}, {sr(sKV,2)} offset:{1024*j} sc1")
    for n in (24, 16, 8, 0):
        E(f"s_waitcnt vmcnt({n})\ns_barrier")
    if SPM >= 0:
        E("s_branch L_mdone2\nL_mdone:\ns_barrier\ns_barrier\ns_barrier\ns_barrier\nL_mdone2:")
    else:
        E("L_mdone:")
    stamp_flush("m"); spin_end("m")
    E("s_endpgm")
    vM, vC = vT + 6, 72
    E(f"""
    L_safe:
    s_waitcnt vmcnt(0)
    s_lshl_b32 s{ta}, s{sZ}, 12
    s_sub_u32 s{sKVb}, s{sKVb}, s{ta}
    s_subb_u32 s{sKVb+1}, s{sKVb+1}, 0
    s_mov_b32 s{sKV}, s{sKVb}
    s_mov_b32 s{sKV+1}, s{sKVb+1}
    s_mov_b32 s{sCnt}, 64
    v_mov_b32 v{vM}, 0xff800000
    v_mov_b32 v{vM+1}, 0xff800000
    L_safe1:
    global_load_dwordx4 {vr(vKV,4)}, v{vKA}, {sr(sKV,2)} sc1
    s_add_u32 s{sKV}, s{sKV}, 2048
    s_addc_u32 s{sKV+1}, s{sKV+1}, 0
    s_waitcnt vmcnt(0)
    v_mfma_f32_32x32x16_bf16 {vr(SA,16)}, {vr(vKV,4)}, {vr(vQ,4)}, 0
    v_mfma_f32_32x32x16_bf16 {vr(SB,16)}, {vr(vKV,4)}, {vr(vQ+4,4)}, 0
    s_nop 15
    """)
    for j in range(8):
        E(f"v_max3_f32 v{vM}, v{SA+2*j}, v{SA+2*j+1}, v{vM}\nv_max3_f32 v{vM+1}, v{SB+2*j}, v{SB+2*j+1}, v{vM+1}")
    E(f"""
    s_sub_u32 s{sCnt}, s{sCnt}, 1
    s_cmp_lg_u32 s{sCnt}, 0
    s_cbranch_scc1 L_safe1
    v_mov_b32 v{SA}, v{vM}
    v_mov_b32 v{SB}, v{vM+1}
    s_nop 1
    v_permlane32_swap_b32 v{SA}, v{vM}
    v_permlane32_swap_b32 v{SB}, v{vM+1}
    s_nop 1
    v_max_f32 v{vM}, v{vM}, v{SA}
    v_max_f32 v{vM+1}, v{vM+1}, v{SB}
    """)
    for j in range(16):
        E(f"v_sub_f32 v{vC+j}, 0, v{vM}\nv_sub_f32 v{vC+16+j}, 0, v{vM+1}\nv_mov_b32 v{vO+j}, 0\nv_mov_b32 v{vO+16+j}, 0")
    E(f"""
    s_mov_b32 s{sKV}, s{sKVb}
    s_mov_b32 s{sKV+1}, s{sKVb+1}
    s_mov_b32 s{sCnt}, 64
    L_safe2:
    """)
    E(kload(0, 0) + vload(0, 0))
    E(f"""
    s_add_u32 s{sKV}, s{sKV}, 2048
    s_addc_u32 s{sKV+1}, s{sKV+1}, 0
    s_waitcnt vmcnt(0)
    v_mfma_f32_32x32x16_bf16 {vr(SA,16)}, {vr(vKV,4)}, {vr(vQ,4)}, {vr(vC,16)}
    v_mfma_f32_32x32x16_bf16 {vr(SB,16)}, {vr(vKV,4)}, {vr(vQ+4,4)}, {vr(vC+16,16)}
    s_nop 15
    """)
    for j in range(32):
        E(f"v_exp_f32 v{SA+j}, v{SA+j}")
    E(f"""
    s_nop 1
    v_smfmac_f32_32x32x32_bf16 {vr(vO,16)}, {vr(vKV+4,4)}, {vr(SA,8)}, v{vIDX}
    v_smfmac_f32_32x32x32_bf16 {vr(vO,16)}, {vr(vKV+8,4)}, {vr(SA+8,8)}, v{vIDX}
    v_smfmac_f32_32x32x32_bf16 {vr(vO+16,16)}, {vr(vKV+4,4)}, {vr(SB,8)}, v{vIDX}
    v_smfmac_f32_32x32x32_bf16 {vr(vO+16,16)}, {vr(vKV+8,4)}, {vr(SB+8,8)}, v{vIDX}
    s_sub_u32 s{sCnt}, s{sCnt}, 1
    s_cmp_lg_u32 s{sCnt}, 0
    s_cbranch_scc1 L_safe2
    s_nop 15
    s_branch L_norm
    """)

def helper_wave():
    sH, sC, sMH, sRT, sCB, sD = sT, sT + 1, sT + 2, sT + 3, sT + 4, sT + 5
    sLd, sDs = sT + 6, sT + 7
    t0 = sT + 8
    sLead, sWst, sP0, sP1 = 92, 93, 94, 95
    sAT = 100
    vGW = 156
    vGWA = 155
    vXF = 160
    vG, vGA0, vGA1 = 164, 165, 166
    vU = 168
    vUA = 167
    vPar = 4
    E(f"""
    L_helper:
    s_and_b32 s{sRT}, s{sHP}, 3
    s_lshr_b32 s{sCB}, s{sHP}, 2
    v_lshrrev_b32 v3, 5, v1
    v_lshlrev_b32 v3, 4, v3
    s_lshl_b32 s{t0+2}, s{sROT}, 2
    s_add_u32 s{t0+2}, s{t0+2}, s{sH}
    s_lshl_b32 s{t0+2}, s{t0+2}, 5
    s_add_u32 s{t0+2}, s{t0+2}, {GW}
    v_add_u32 v{vGWA}, s{t0+2}, v3
    v_mov_b32 v12, 0
    v_mov_b32 v13, 0
    v_mov_b32 v14, 0
    v_mov_b32 v15, 0
    s_cmp_lt_u32 s2, 16
    s_cselect_b32 s{sLead}, s{sW}, 0
    """)
    E(f"s_add_u32 s{pFL}, s{pWs}, {WS_FL}\ns_addc_u32 s{pFL+1}, s{pWs+1}, 0")
    stamp("h")
    E(f"""
    s_mul_i32 s{t0}, s{sC}, {URS}
    s_add_u32 s{t0}, s{t0}, {UR+4096}
    v_lshl_add_u32 v10, v1, 4, s{t0}
    v_mov_b32 v11, {CNT}
    v_cmp_gt_u32 vcc, 30, v1
    s_nop 1
    v_cndmask_b32 v10, v11, v10, vcc
    ds_write_b128 v10, v[12:15]
    """)
    vWA, vRA = 16, 17
    if "prio1" in OPT: E(f"s_setprio {OPT['prio1']}")
    E(f"""
    s_mul_i32 s{t0}, s{sRT}, {WPART}
    s_add_u32 s{t0}, s{t0}, {RING}
    v_and_b32 v10, 31, v1
    v_lshl_add_u32 v10, v10, 7, s{t0}
    v_bfe_u32 v11, v1, 1, 3
    v_lshrrev_b32 v3, 5, v1
    v_xor_b32 v11, v11, v3
    s_lshl_b32 s{t0}, s{sH}, 1
    v_xor_b32 v11, s{t0}, v11
    v_lshl_add_u32 v{vGA0}, v11, 4, v10
    v_add_u32 v{vGA1}, {2*SLOT}, v{vGA0}
    v_mov_b32 v{vG}, 0
    s_lshl_b32 s{t0}, s{sH}, 19
    s_lshl_b32 s{t0+1}, s{sCH}, 1
    s_add_u32 s{t0}, s{t0}, s{t0+1}
    s_add_u32 s{t0}, s{t0}, 4096
    v_lshl_add_u32 v{vUA}, v1, 13, s{t0}
    s_mul_i32 s{t0}, s{sH}, {KGS}
    s_add_u32 s{t0}, s{t0}, {KG}
    s_mov_b32 m0, s{t0}
    v_and_b32 v10, 31, v1
    v_mul_u32_u24 v10, 272, v10
    v_lshl_add_u32 v10, v3, 4, v10
    v_add_u32 v{vRA}, s{t0}, v10
    s_mul_i32 s{t0}, s{sC}, {2*KGS}
    s_add_u32 s{t0}, s{t0}, {KG+KGS}
    v_lshl_add_u32 v{vWA}, v1, 4, s{t0}
    """)
    K = []
    def k(s, c=None):
        if isinstance(s, list): s = "\n".join(s)
        for x in s.split("\n"):
            x = x.strip()
            if not x: continue
            cc = c if c is not None else (8 if any(t in x for t in ("v_exp", "v_sin", "v_cos", "v_rcp", "ds_")) else 4)
            K.append((cc, x))
    va, vb, vt = 220, 221, 222
    log2e = math.log2(math.e)
    c_hi = struct.unpack("<f", struct.pack("<f", log2e))[0]
    c_lo = log2e - c_hi
    k(f"""
    s_waitcnt lgkmcnt(0)
    s_lshl_b32 s{t0}, s{sC}, 4
    s_lshr_b32 s{sLd}, s{sLd}, s{t0}
    s_lshl_b32 s{sLd}, s{sLd}, 16
    s_lshr_b32 s{sDs}, s{sDs}, s{t0}
    s_lshl_b32 s{sDs}, s{sDs}, 16
    s_mov_b32 s{t0}, {fbits(c_hi)}
    v_mov_b32 v{vt}, s{sLd}
    v_mul_f32 v{vt+1}, s{t0}, v{vt}
    v_fma_f32 v{vt+2}, v{vt}, s{t0}, -v{vt+1}
    v_fmac_f32 v{vt+2}, {fbits(c_lo)}, v{vt}
    v_exp_f32 v{vt+1}, v{vt+1}
    v_mul_f32 v{vt+2}, {fbits(math.log(2.0))}, v{vt+2}
    v_fma_f32 v{vt+1}, v{vt+1}, v{vt+2}, v{vt+1}
    v_cvt_pk_bf16_f32 v{vt+1}, v{vt+1}, v{vt+1}
    v_lshlrev_b32 v{vt}, 16, v{vt+1}
    s_waitcnt vmcnt(1)
    """)
    for j in range(6):
        k(f"v_lshlrev_b32 v{vPar+j}, 16, v{vPar+j}")
    k(f"""
    v_mul_f32 v{va}, v{vt}, v{vPar}
    v_mul_f32 v{vb}, v{vt}, v{vPar+1}
    v_mul_f32 v{vPar+2}, v{vt}, v{vPar+2}
    v_mul_f32 v{vPar+3}, v{vt}, v{vPar+3}
    v_mul_f32 v{va}, {fbits(c_hi)}, v{va}
    v_mul_f32 v{vb}, 0.15915494, v{vb}
    """)
    pkm = [OPT["pk0"]]
    def cmul(z, x, w):
        if pkm[0]:
            return [f"v_pk_mul_f32 {vr(z,2)}, {vr(x,2)}, {vr(w,2)} op_sel_hi:[0,1]",
                    f"v_pk_fma_f32 {vr(z,2)}, {vr(x,2)}, {vr(w,2)}, {vr(z,2)} op_sel:[1,1,0] op_sel_hi:[1,0,1] neg_lo:[1,0,0]"]
        return [f"v_mul_f32 v{z}, v{x}, v{w}\nv_mul_f32 v{z+1}, v{x}, v{w+1}",
                f"v_fma_f32 v{z}, -v{x+1}, v{w+1}, v{z}\nv_fmac_f32 v{z+1}, v{x+1}, v{w}"]
    def cmuls(lst):
        cm = [cmul(*a) for a in lst]
        k([c[0] for c in cm]); k([c[1] for c in cm])
    def direct(z, x):
        k(f"""
        v_mul_f32 v{vt+2}, {fbits(x)}, v{vb}
        v_mul_f32 v{vt+1}, {fbits(x)}, v{va}
        v_fract_f32 v{vt+2}, v{vt+2}
        v_exp_f32 v{vt+1}, v{vt+1}
        v_cos_f32 v{z}, v{vt+2}
        v_sin_f32 v{z+1}, v{vt+2}
        s_nop 0
        v_mul_f32 v{z}, v{z}, v{vt+1}
        v_mul_f32 v{z+1}, v{z+1}, v{vt+1}
        """)
    E1, E32, E256 = 226, 228, 230
    vE = 232
    vPk = 248
    npk = [0]
    def puts(lst, neg):
        w = []
        for z, rows in lst:
            p = vPk + npk[0] % 8; npk[0] += 1
            k(f"v_cvt_pk_bf16_f32 v{p}, v{z}, {'-' if neg else ''}v{z+1}")
            w += [f"ds_write_addtid_b32 v{p} offset:{272*r}" for r in rows]
        k(w)
    def e(j): return vE + 2 * (j % 8)
    direct(e(1), 8.0); direct(E32, 32.0)
    k(f"v_mov_b32 v{e(0)}, 1.0\nv_mov_b32 v{e(0)+1}, 0\nv_mov_b32 v{e(4)}, v{E32}\nv_mov_b32 v{e(4)+1}, v{E32+1}")
    cmuls([(e(2), e(1), e(1)), (e(5), e(1), E32)])
    cmuls([(e(3), e(2), e(1)), (e(6), e(2), E32)])
    cmuls([(e(7), e(3), E32)])
    puts([(e(j), [j]) for j in range(4)], False)
    for j0 in range(4, 32, 4):
        if j0 + 4 < 32: cmuls([(e(j + 4), e(j), E32) for j in range(j0, j0 + 4)])
        puts([(e(j), [j]) for j in range(j0, j0 + 4)], False)
    vEF, vGF, vD = 64, 96, 176
    for s in range(8):
        k(f"ds_read_b128 {vr(vEF+4*s,4)}, v{vRA} offset:{32*s}")
    KE = [x for _, x in K]; K.clear()
    pkm[0] = OPT["pk0"] if OPT["ksplit"] >= 75 else OPT["pk1"]
    direct(E1, 1.0); direct(E256, 256.0)
    def row(r, h): return 8 * (r >> 2) + 4 * h + (r & 3)
    vGv = 192
    g = {x: vGv + 2 * x for x in range(9)}
    E2 = e(0)
    cmuls([(g[0], vPar + 4, vPar + 2), (E2, E1, E1)])
    cmuls([(g[1], g[0], E1), (g[2], g[0], E2)])
    cmuls([(g[3], g[1], E2), (g[4], g[2], E2)])
    puts([(g[x], [row(x, 0)]) for x in range(4)], True)
    cmuls([(g[5], g[3], E2), (g[6], g[4], E2)])
    cmuls([(g[7], g[5], E2), (g[8], g[6], E2)])
    puts([(g[x], [row(x, 0)]) for x in range(4, 8)], True)
    A = {o: vGv + 18 + 2 * i for i, o in enumerate((0, 2, 4, 6, 8))}
    cmuls([(A[o], g[o], E256) for o in (0, 2, 4, 6, 8)])
    puts([(A[o], [row(r, 1) for r in rs]) for o, rs in ((0, (0, 1)), (2, (2,)), (4, (3, 4, 5)), (6, (6,)), (8, (7,)))], True)
    KG1 = [x for _, x in K]; K.clear()
    pkm[0] = OPT["pk0"] if OPT["ksplit"] >= 100 else OPT["pk1"]
    src, dst = A, g
    for os_, r0, h in (((0, 4, 8), 8, 0), ((0, 4, 8), 8, 1), ((0, 8), 11, 0), ((0, 8), 11, 1), ((0, 8), 13, 0), ((0, 8), 13, 1)):
        cmuls([(dst[o], src[o], E256) for o in os_])
        puts([(dst[o], [row(r0 + i, h)]) for i, o in enumerate(os_)], True)
        src, dst = dst, src
    for s in range(8):
        k(f"ds_read_b128 {vr(vGF+4*s,4)}, v{vRA} offset:{32*s}")
    k("s_waitcnt lgkmcnt(0)", 100)
    for s in range(8):
        k(f"v_mfma_f32_32x32x16_bf16 {vr(vD,16)}, {vr(vGF+4*s,4)}, {vr(vEF+4*s,4)}, {'0' if s == 0 else vr(vD,16)}", 40)
    k("s_nop 15", 60)
    lx = newlab("nx")
    k(f"s_cmp_eq_u32 s{sMH}, 0\ns_cbranch_scc1 {lx}")
    for j in range(4):
        k(f"ds_write_b128 v{vWA}, {vr(vD+4*j,4)} offset:{1024*j}")
    k(f"{lx}:")
    KG2 = [x for _, x in K]; K.clear()
    (vCA, vCP, vOne, vTm, vAA, vBA, vUW, vCW, vCR, vAT, vF3, vWoG, vWoL, vF3P, vAL, vOut, vg, vomg, vOL, vGPw, vGPr, vWoP) = range(24, 46)
    vA = 48; vAcc = 96
    ADDR = f"""
    v_mov_b32 v{vCA}, {CNT}
    s_lshl_b32 s{t0}, s{sC}, 2
    s_add_u32 s{t0}, s{t0}, {CNT+4}
    v_mov_b32 v{vCP}, s{t0}
    v_mov_b32 v{vOne}, 1
    v_lshlrev_b32 v23, 4, v1
    s_lshl_b32 s{t0}, s{sH}, 10
    s_sub_u32 s{t0}, {UR+4080}, s{t0}
    v_sub_u32 v{vUW}, s{t0}, v23
    s_mov_b32 s{sP0}, 0x05040100
    s_mov_b32 s{sP1}, 0x07060302
    v_and_b32 v18, 15, v1
    v_add_u32 v19, 1, v18
    v_and_b32 v20, 3, v19
    v_mul_u32_u24 v20, {KCP}, v20
    v_lshrrev_b32 v19, 2, v19
    v_lshl_add_u32 v20, v19, 3, v20
    v_lshrrev_b32 v21, 4, v1
    v_lshlrev_b32 v22, 4, v21
    s_mul_i32 s{t0}, s{sC}, {2*KGS}
    s_lshl_b32 s{t0+1}, s{sMH}, 8
    s_add_u32 s{t0}, s{t0}, s{t0+1}
    s_add_u32 s{t0}, s{t0}, {KG}
    v_add3_u32 v{vAA}, v20, v22, s{t0}
    s_mul_i32 s{t0}, s{sC}, {URS}
    s_add_u32 s{t0}, s{t0}, s{t0+1}
    s_add_u32 s{t0}, s{t0}, {UR+4064-3584}
    v_lshlrev_b32 v19, 5, v18
    v_sub_u32 v22, v22, v19
    v_add_u32 v{vBA}, s{t0}, v22
    s_lshl_b32 s{t0}, s{sH}, 12
    s_add_u32 s{t0}, s{t0}, {CRED}
    v_add_u32 v{vCW}, s{t0}, v23
    s_xor_b32 s{t0}, s{sH}, 1
    s_lshl_b32 s{t0}, s{t0}, 12
    s_add_u32 s{t0}, s{t0}, {CRED}
    v_add_u32 v{vCR}, s{t0}, v23
    v_add_u32 v{vOL}, {OFL}, v23
    v_lshrrev_b32 v19, 1, v18
    v_lshlrev_b32 v19, 15, v19
    v_and_b32 v20, 1, v1
    v_lshl_add_u32 v19, v20, 5, v19
    v_lshl_add_u32 v{vAT}, v21, 3, v19
    s_lshl_b32 s{t0}, s{sMH}, 20
    s_lshl_b32 s{t0+1}, s{sD}, 6
    s_add_u32 s{t0}, s{t0}, s{t0+1}
    s_add_u32 s{t0}, s{t0}, {WS_AT}
    s_add_u32 s{sAT}, s{pWs}, s{t0}
    s_addc_u32 s{sAT+1}, s{pWs+1}, 0
    s_lshl_b32 s{t0}, s{sMH}, 9
    s_add_u32 s{t0}, s{t0}, s{sD}
    s_add_u32 s{t0}, s{t0}, {F3}
    s_lshl_b32 s{t0}, s{t0}, {FSH}
    v_mov_b32 v{vF3}, s{t0}
    s_mov_b32 s{SRDW}, s{pWo}
    s_mov_b32 s{SRDW+1}, s{pWo+1}
    s_mov_b32 s{SRDW+2}, {512*1024}
    s_mov_b32 s{SRDW+3}, 0x00020000
    s_lshl_b32 s{t0}, s{sCB}, 2
    s_add_u32 s{t0}, s{t0}, s{sH}
    s_lshl_b32 s{t0+1}, s{t0}, 6
    v_lshrrev_b32 v18, 2, v1
    v_lshl_add_u32 v18, v18, 10, s{t0+1}
    v_and_b32 v19, 3, v1
    v_lshl_add_u32 v{vWoG}, v19, 4, v18
    s_lshl_b32 s{sWst}, s{sH}, 14
    s_add_u32 s{sWst}, s{sWst}, {WST}
    v_lshrrev_b32 v22, 5, v1
    v_lshlrev_b32 v20, 2, v22
    v_bfe_u32 v21, v1, 2, 2
    v_add_u32 v20, v20, v21
    v_lshl_add_u32 v20, v20, 6, s{sWst}
    v_lshl_add_u32 v20, v19, 3, v20
    v_bfe_u32 v21, v1, 4, 1
    v_lshl_add_u32 v{vWoL}, v21, 5, v20
    s_lshl_b32 s{t0}, s{t0}, 5
    s_lshr_b32 s{t0+1}, s{sRB}, 3
    s_lshl_b32 s{t0+1}, s{t0+1}, 9
    s_add_u32 s{t0+1}, s{t0+1}, s{t0}
    s_add_u32 s{t0+1}, s{t0+1}, {F3}
    v_and_b32 v18, 31, v1
    v_add_u32 v19, s{t0+1}, v18
    v_lshlrev_b32 v{vF3P}, {FSH}, v19
    s_lshl_b32 s{t0+1}, s{sRB}, 2
    s_add_u32 s{t0+1}, s{t0+1}, s{sRT}
    s_lshl_b32 s{t0+2}, s{t0+1}, 15
    s_lshl_b32 s{t0+3}, s{t0}, 6
    s_add_u32 s{t0+3}, s{t0+3}, s{t0+2}
    s_add_u32 s{t0+3}, s{t0+3}, {WS_AT}
    v_lshlrev_b32 v20, 8, v22
    v_lshl_add_u32 v20, v18, 1, v20
    v_add_u32 v{vAL}, s{t0+3}, v20
    s_lshl_b32 s{t0}, s{t0}, 1
    s_add_u32 s{t0}, s{t0}, s{t0+2}
    v_lshl_add_u32 v20, v18, 10, s{t0}
    v_lshl_add_u32 v{vOut}, v22, 4, v20
    """.split("\n")
    ADDR += f"""
    v_and_b32 v18, 31, v1
    v_lshlrev_b32 v18, 5, v18
    v_lshrrev_b32 v19, 5, v1
    v_lshl_add_u32 v19, v19, 2, v18
    s_lshl_b32 s{t0}, s{sH}, 3
    s_add_u32 s{t0}, s{t0}, {GP}
    v_add_u32 v{vGPw}, s{t0}, v19
    v_add_u32 v{vGPr}, {GP}, v18
    s_lshr_b32 s{t0}, s2, 3
    s_lshl_b32 s{t0}, s{t0}, 2
    s_add_u32 s{t0}, s{t0}, s{sH}
    s_lshl_b32 s{t0}, s{t0}, 12
    s_lshr_b32 s{t0+1}, s{sHP}, 3
    s_lshl_b32 s{t0+1}, s{t0+1}, 9
    s_add_u32 s{t0}, s{t0}, s{t0+1}
    v_bfe_u32 v18, v1, 2, 2
    v_lshl_add_u32 v18, v18, 10, s{t0}
    v_and_b32 v19, 3, v1
    v_lshl_add_u32 v{vWoP}, v19, 7, v18
    """.split("\n") + [f"v_mov_b32 v{vA+j}, 0" for j in range(16)]
    ADDR = [x.strip() for x in ADDR if x.strip()]
    def GATEF():
        E("s_waitcnt lgkmcnt(0)")
        for j in range(4):
            E(f"v_dot2_f32_bf16 v{vG}, v{vXF+j}, v{vGW+j}, v{vG}")
        E(f"s_nop 2\nds_write_b32 v{vGPw}, v{vG}")
    def SIG():
        E(f"""
        ds_read_b128 v[128:131], v{vGPr}
        ds_read_b128 v[132:135], v{vGPr} offset:16
        s_waitcnt lgkmcnt(0)
        v_add_f32 v128, v128, v129
        v_add_f32 v130, v130, v131
        v_add_f32 v132, v132, v133
        v_add_f32 v134, v134, v135
        v_add_f32 v128, v128, v130
        v_add_f32 v132, v132, v134
        v_add_f32 v128, v128, v132
        v_mul_f32 v128, {fbits(-log2e)}, v128
        v_exp_f32 v128, v128
        s_nop 0
        v_add_f32 v128, 1.0, v128
        v_rcp_f32 v{vg}, v128
        s_nop 0
        v_sub_f32 v{vomg}, 1.0, v{vg}
        """)
    vR = 64; vE0 = 64
    def KC1():
        lk = newlab("nk")
        E(f"s_cmp_eq_u32 s{sMH}, 0\ns_cbranch_scc0 {lk}")
        for j in range(4):
            E(f"ds_read_b128 {vr(vR+4*j,4)}, v{vWA} offset:{1024*j}")
        E(f"""
        s_mul_i32 s{t0}, s{sC}, {2*KGS}
        s_add_u32 s{t0}, s{t0}, {KG}
        v_lshl_add_u32 v2, v1, 4, s{t0}
        v_lshrrev_b32 v3, 1, v1
        v_mul_u32_u24 v3, {KCP}, v3
        v_and_b32 v10, 1, v1
        v_lshlrev_b32 v11, 4, v10
        v_add3_u32 v3, v3, v11, s{t0}
        v_cmp_eq_u32 {sr(t0+2,2)}, 1, v10
        s_mov_b64 exec, 1
        v_add_f32 v{vD}, s{sDs}, v{vD}
        s_waitcnt lgkmcnt(0)
        s_mov_b64 exec, 0xff
        ds_write_b128 v3, v[12:15]
        s_mov_b64 exec, -1
        """)
        for j in range(15):
            E(f"v_add_f32 v{vD+j}, v{vD+j}, v{vR+j}")
        E(f"""
        v_cndmask_b32 v10, v{vD+11}, v{vD+12}, {sr(t0+2,2)}
        v_cndmask_b32 v11, v{vD+13}, v{vD+14}, {sr(t0+2,2)}
        """)
        D = lambda j: vD + j
        pats = [[(D(0), D(1)), (D(2), D(3)), (D(4), D(5)), (D(6), D(7))],
                [(D(8), D(8)), (D(8), D(9)), (D(9), D(9)), (D(10), D(10))],
                [(D(11), D(11)), (D(11), D(11)), (10, D(12)), (D(12), D(12))],
                [(D(13), D(13)), (D(13), D(13)), (11, D(14)), (D(14), D(14))]]
        for u in range(4):
            for j, (a, b) in enumerate(pats[u]):
                E(f"v_cvt_pk_bf16_f32 v{vE0+8*u+j}, v{a}, v{b}")
            E(f"ds_write_b128 v2, {vr(vE0+8*u,4)} offset:{32+1024*u}")
        for u in range(4):
            E(f"ds_read_b64 {vr(vE0+8*u+4,2)}, v2 offset:{48+1024*u}")
        E(f"{lk}:")
    def KC2():
        lk = newlab("nk")
        E(f"s_cmp_eq_u32 s{sMH}, 0\ns_cbranch_scc0 {lk}\ns_waitcnt lgkmcnt(0)")
        for u in range(4):
            b = vE0 + 8 * u; o = 96 + 12 * (u & 1)
            for j in range(4):
                E(f"v_alignbit_b32 v{o+j}, v{b+j+1}, v{b+j}, 16")
            E(f"ds_write_b128 v2, {vr(o,4)} offset:{32+1024*u+KCP}")
            for j in range(4):
                E(f"v_mov_b32 v{o+4+j}, v{b+j+1}")
            E(f"ds_write_b128 v2, {vr(o+4,4)} offset:{32+1024*u+2*KCP}")
            for j in range(4):
                E(f"v_alignbit_b32 v{o+8+j}, v{b+j+2}, v{b+j+1}, 16")
            E(f"ds_write_b128 v2, {vr(o+8,4)} offset:{32+1024*u+3*KCP}")
            if u == 0:
                E(f"""
                v_lshlrev_b32 v10, 16, v{b}
                s_mov_b64 exec, 1
                ds_write_b32 v2, v10 offset:{28+KCP}
                ds_write_b32 v2, v{b} offset:{28+2*KCP}
                ds_write_b32 v2, v10 offset:{24+3*KCP}
                ds_write_b32 v2, v{o} offset:{28+3*KCP}
                s_mov_b64 exec, -1
                """)
        E(f"{lk}:")
    def gate_glue(i):
        E("s_waitcnt vmcnt(0) lgkmcnt(0)" if i == 0 else "s_waitcnt lgkmcnt(0)")
        if OPT.get("hst"): stamp("h")
        E("s_barrier")
        if i == 0:
            lq = newlab("nr")
            E(f"""
            s_cmp_eq_u32 s{sLead}, 7
            s_cbranch_scc0 {lq}
            s_mul_i32 s{sSPIN}, s2, {96*FS}
            v_lshl_add_u32 v10, v1, 4, s{sSPIN}
            """)
            nb = 96 * FS
            for o in range(0, nb, 1024):
                n = min(64, (nb - o) // 16)
                if n < 64: E(f"s_bfm_b64 exec, {n}, 0")
                E(f"global_store_dwordx4 v10, v[12:15], {sr(pFL,2)} offset:{o} sc1")
            E(f"s_mov_b64 exec, -1\n{lq}:")
        if i == 2:
            lq = newlab("nr")
            E(f"""
            s_cmp_eq_u32 s{sLead}, 7
            s_cbranch_scc0 {lq}
            s_lshl_b32 s{sSPIN}, s2, 2
            v_mov_b32 v10, s{sSPIN}
            v_mov_b32 v11, 1
            s_waitcnt vmcnt(0)
            """)
            put_flag(10, 11, pDbg)
            E(f"{lq}:")
        if i >= 1:
            for j in range(4):
                E(f"v_dot2_f32_bf16 v{vG}, v{vXF+j}, v{vGW+j}, v{vG}")
        slot = i % NS
        E(f"ds_read_b128 {vr(vXF,4)}, v{vGA1 if slot >> 1 else vGA0} offset:{(slot&1)*SLOT}")
        E(f"ds_read_b128 {vr(vGW,4)}, v{vGWA} offset:{128*i}")
    ks = OPT["ksplit"]
    E(KE)
    if ks >= 75: E(KG1)
    if ks >= 100: E(KG2)
    cuts = [len(ADDR) * i // 7 for i in range(8)]
    cuts = [c + 1 if c < len(ADDR) and ADDR[c].startswith("s_addc") else c for c in cuts]
    for i in range(8):
        gate_glue(i)
        if i < 7: E(ADDR[cuts[i]:cuts[i+1]])
    stamp("h")
    GATEF()
    if ks == 50: E(KG1)
    if ks == 75: E(KG2)
    if ks == 100: KC1()
    E("s_waitcnt lgkmcnt(0)\ns_barrier")
    stamp("h")
    if ks == 50: E(KG2)
    if ks == 75: KC1()
    if ks == 100: KC2()
    E("s_waitcnt lgkmcnt(0)\ns_barrier")
    SIG()
    if ks == 50: KC1()
    if ks == 75: KC2()
    E("s_barrier")
    stamp("h")
    if ks == 50: KC2()
    E(f"s_setprio {OPT.get('prio2', 0)}")
    if OPT.get("wopf", 1):
        E(f"s_mov_b64 exec, 0xffff\nglobal_load_dword v{vTm}, v{vWoP}, {sr(pWo,2)}\ns_mov_b64 exec, -1")
    for j in range(0 if OPT.get("nogath") else 8):
        E(f"global_load_dword v{vU+j}, v{vUA}, {sr(pX,2)} offset:{1024*j-4096}\ns_waitcnt vmcnt({OPT.get('gd',1) if j < 7 else 0})")
    E(f"s_setprio {OPT['prio']}")
    for j in range(4):
        E(f"v_perm_b32 v{12+j}, v{vU+6-2*j}, v{vU+7-2*j}, s{sP0}")
        E(f"v_perm_b32 v{16+j}, v{vU+6-2*j}, v{vU+7-2*j}, s{sP1}")
    E(f"ds_write_b128 v{vUW}, v[12:15]\nds_write_b128 v{vUW}, v[16:19] offset:{URS}")
    lds_arrive(vCA, vOne)
    lds_wait(vCA, vTm, 4)
    stamp("h")
    vY = 64
    vF = [96, 192]
    def creads(r):
        f = vF[r & 1]; o = []
        for gmm in range(8):
            o.append(f"ds_read_b64 {vr(f+4*gmm,2)}, v{vAA} offset:{512*gmm+64*r}")
            o.append(f"ds_read_b64 {vr(f+4*gmm+2,2)}, v{vAA} offset:{512*gmm+64*r+8}")
            o.append(f"ds_read_b128 {vr(f+32+4*gmm,4)}, v{vBA} offset:{3584-512*gmm+64*r}")
        return o
    E(creads(0))
    E(f"s_setprio {OPT.get('prio3', OPT['prio'])}")
    for r in range(4):
        f = vF[r & 1]
        nxt = creads(r + 1) if r < 3 else []
        E("s_waitcnt lgkmcnt(0)")
        seen = set()
        for gmm in range(8):
            for dl in range(8 - gmm):
                tau = gmm + dl
                c = "0" if (r == 0 and tau not in seen) else vr(vY + 4 * tau, 4)
                seen.add(tau)
                if not OPT.get("noconv"): E(f"v_mfma_f32_16x16x32_bf16 {vr(vY+4*tau,4)}, {vr(f+4*gmm,4)}, {vr(f+32+4*dl,4)}, {c}")
                if nxt: E(nxt.pop(0))
    E(f"s_setprio {OPT['prio']}")
    l1 = newlab("c1"); l2 = newlab("c2")
    E(f"s_nop 5\ns_cmp_eq_u32 s{sMH}, 0\ns_cbranch_scc0 {l1}")
    def conv_fin(send, keep):
        for j in range(4):
            E(f"ds_write_b128 v{vCW}, {vr(send+4*j,4)} offset:{1024*j}")
        lds_arrive(vCP, vOne)
        lds_wait(vCP, vTm, 2)
        for j in range(4):
            E(f"ds_read_b128 {vr(96+4*j,4)}, v{vCR} offset:{1024*j}")
        E("s_waitcnt lgkmcnt(0)")
        for j in range(16):
            E(f"v_add_f32 v{96+j}, v{keep+j}, v{96+j}")
    conv_fin(vY + 16, vY)
    E(f"s_branch {l2}\n{l1}:")
    conv_fin(vY, vY + 16)
    E(f"{l2}:")
    for j in range(4):
        E(f"v_cvt_pk_bf16_f32 v{112+2*j}, v{96+4*j}, v{97+4*j}\nv_cvt_pk_bf16_f32 v{113+2*j}, v{98+4*j}, v{99+4*j}")
        E(f"global_store_dwordx2 v{vAT}, {vr(112+2*j,2)}, {sr(sAT,2)} sc1")
        if j < 3: E(f"s_add_u32 s{sAT}, s{sAT}, {8*32768}\ns_addc_u32 s{sAT+1}, s{sAT+1}, 0")
    E("s_waitcnt vmcnt(0)")
    put_flag(vF3, vOne)
    stamp("h")
    vWo = 128
    sO = t0 + 2
    WD = OPT["wod"]
    for hd in range(0 if OPT.get("nowo") else 32 + WD):
        if hd < 32:
            if hd % 4 == 0: E(f"s_add_u32 m0, s{sWst}, {(hd%16)*1024}")
            E(f"s_mov_b32 s{sO}, {hd*16384-(hd%4)*1024}")
            E(f"buffer_load_dwordx4 v{vWoG}, {sr(SRDW,4)}, s{sO} offen offset:{(hd%4)*1024} lds")
        r = hd - WD
        if r >= 0:
            E(f"s_waitcnt vmcnt({min(WD, 31-r)}) lgkmcnt(8)")
            E(f"ds_read_b64_tr_b16 {vr(vWo+4*r,2)}, v{vWoL} offset:{1024*(r%16)}")
            E(f"ds_read_b64_tr_b16 {vr(vWo+4*r+2,2)}, v{vWoL} offset:{1024*(r%16)+512}")
    E("s_waitcnt lgkmcnt(0)")
    stamp("h")
    poll_global(vF3P, pFL, vTm)
    for r in range(16):
        E(f"global_load_short_d16_hi v{vA+r}, v{vAL}, {sr(pWs,2)} offset:{(8*(r>>2)+(r&3))*64} sc1")
    E("s_waitcnt vmcnt(0)")
    stamp("h")
    E("s_barrier")
    for r in range(16):
        E(f"v_mul_f32 v{vA+r}, v{vg}, v{vA+r}")
    E("s_barrier")
    stamp("h")
    vB = 64
    def ord_(hd): return f"ds_read_b128 {vr(vB+4*(hd%8),4)}, v{vOL} offset:{1024*hd}"
    E("s_barrier")
    stamp("h")
    for j in range(8): E(ord_(j))
    for hd in range(32):
        out = min(hd + 4, 31) - hd if hd >= 4 else 7 - hd
        E(f"s_waitcnt lgkmcnt({out if hd < 4 else min(3, 31-hd)})")
        E(f"v_mfma_f32_32x32x16_bf16 {vr(vAcc,16)}, {vr(vWo+4*hd,4)}, {vr(vB+4*(hd%8),4)}, {'0' if hd == 0 else vr(vAcc,16)}")
        nx = hd + 4
        if 8 <= nx < 32:
            if nx % 8 == 0: E("s_barrier")
            E(ord_(nx))
    E("s_nop 11")
    for r in range(16):
        E(f"v_fma_f32 v{vAcc+r}, v{vAcc+r}, v{vomg}, v{vA+r}")
    for j in range(8):
        E(f"v_cvt_pk_bf16_f32 v{vB+j}, v{vAcc+2*j}, v{vAcc+2*j+1}")
    E("s_nop 1")
    for a in (0, 1, 4, 5):
        E(f"v_permlane32_swap_b32 v{vB+a}, v{vB+2+a}")
    fl = ["", "sc1", "nt", "sc0 sc1"][OPT["outsc"]]
    E(f"global_store_dwordx4 v{vOut}, {vr(vB,4)}, {sr(pOut,2)} {fl}\nglobal_store_dwordx4 v{vOut}, {vr(vB+4,4)}, {sr(pOut,2)} offset:32 {fl}")
    if STAMP:
        E("s_waitcnt vmcnt(0)")
    stamp("h")
    stamp_flush("h"); spin_end("h")
    E("L_end:\ns_endpgm")

hdr = open(f"cdna_kernels/{NAME}.s.ref").read().split("; Override launch")[0]
prologue(); main_wave(); helper_wave()
out = hdr + f"""; @launch grid=(256,1,1) block=(512,1,1) lds={LDS_BYTES}
.amdgcn_target "amdgcn-amd-amdhsa--gfx950"
.text
.globl {NAME}_kernel
.p2align 8
.type {NAME}_kernel,@function
{NAME}_kernel:
""" + "\n".join(L) + f"""
.section .rodata,"a"
.p2align 6
.amdhsa_kernel {NAME}_kernel
  .amdhsa_next_free_vgpr 256
  .amdhsa_next_free_sgpr 102
  .amdhsa_accum_offset 256
  .amdhsa_group_segment_fixed_size 0
  .amdhsa_kernarg_size 128
  .amdhsa_user_sgpr_count 2
  .amdhsa_user_sgpr_kernarg_segment_ptr 1
  .amdhsa_system_sgpr_workgroup_id_x 1
.end_amdhsa_kernel
"""
open(sys.argv[1], "w").write(out)
```

```python
import sys, math, struct

NAME = "gated_mix__ssm_conv_s4__mha_block__prompt"
OPT = dict(stamp=0, rot=3, fs=128, spin=200000, prio=2, outsc=0, prio3=0, pf=1, tlb=1, ksplit=90, pk0=0, wod=4, wopf=1, lay=2, prioq=0, eb=2, lq=7, epc=10, ackn=26, ute=0, kcp=1, gath=0, gd=0, d1=3, d1w=4, pl=55555, utl=1, kpre=5, kw=7, wqpf=2, sigl=1)
for a in sys.argv[2:]:
    k, v = a.split("=")
    OPT[k] = int(v)
STAMP = OPT["stamp"]
FS = OPT["fs"]
FSH = int(math.log2(FS))

L = []
def E(s):
    if isinstance(s, list): s = "\n".join(s)
    for x in s.split("\n"):
        x = x.strip()
        if x:
            L.append(("" if x.endswith(":") else "    ") + x)
def fbits(x): return "0x%08x" % struct.unpack("<I", struct.pack("<f", x))[0]
def vr(a, n): return f"v[{a}:{a+n-1}]"
def sr(a, n): return f"s[{a}:{a+n-1}]"

WS_KV = 0
WS_OF = 4 << 20
WS_AT = 6 << 20
WS_FL = 8 << 20
WS_UT = 10 << 20
WS_ST = 16 << 20
F1, F2 = 0, 256
F3 = 512 * FS // 4
F4 = F3 + 1024
KG = 0; KGS = 8704
KCP = 4160
UR = KG + 4 * KGS; URS = 4576
GP = UR + 2 * URS
GW = GP + 1024
CNT = GW + 2048
RING = CNT + 64
SLOT = 24576; WPART = 6144; NS = 3
WQ = RING + NS * SLOT
LDS_BYTES = WQ + 32768
EXCH = RING; RED = WQ; REDS = 4608
CRED = RING; WST = RING + 16384; WSL = 12; OFL = RING
assert RING % 256 == 0 and WST + 4 * WSL * 1024 <= WQ and LDS_BYTES <= 163840
sW, sHP, sRB, sCH, sROT = 3, 4, 5, 6, 7
SRDX, SRDW = 8, 12
pX, pAre, pAim, pBre, pBim, pCre, pCim, pLdt = 16, 18, 20, 22, 24, 26, 28, 30
pDsk, pW, pWo, pGw, pOut, pDbg, pWs = 32, 36, 38, 40, 42, 44, 46
pFL = 34
sT = 48
sSPIN = 62
sST = 64

nstamp = {"m": 0, "h": 0}
SPM, SPH = OPT.get("spm", -1), OPT.get("sph", -1)
def spin_end(role):
    if (SPM if role == "m" else SPH) < 0: return
    l = newlab("sp")
    E(f"{l}:\ns_memrealtime s[98:99]\ns_waitcnt lgkmcnt(0)\ns_sub_u32 s98, s98, s96\ns_cmp_lt_u32 s98, 4000\ns_cbranch_scc1 {l}")
def stamp(role):
    if SPM >= 0 or SPH >= 0:
        i = nstamp[role]; nstamp[role] += 1
        if i == (SPM if role == "m" else SPH): E("s_memrealtime s[96:97]\ns_waitcnt lgkmcnt(0)")
        return
    if not STAMP or nstamp[role] >= 14: return
    i = nstamp[role]; nstamp[role] += 1
    E(f"s_memrealtime {sr(sST+2*i,2)}\ns_waitcnt lgkmcnt(0)")
def stamp_flush(role):
    if not STAMP: return
    E(f"s_lshl_b32 s{sT}, s2, 3\ns_add_u32 s{sT}, s{sT}, s{sW}\ns_lshl_b32 s{sT}, s{sT}, 6\ns_add_u32 s{sT}, s{sT}, {WS_ST}\nv_mov_b32 v2, s{sT}")
    for i in range(nstamp[role]):
        E(f"v_mov_b32 v3, s{sST+2*i}\nglobal_store_dword v2, v3, {sr(pWs,2)} offset:{4*i}")
    E(f"s_getreg_b32 s{sT}, hwreg(HW_REG_XCC_ID)\nv_mov_b32 v3, s{sT}\nglobal_store_dword v2, v3, {sr(pWs,2)} offset:60")

lab = [0]
def newlab(p):
    lab[0] += 1
    return f"L_{p}_{lab[0]}"

def poll_global(vaddr, base, vtmp):
    l = newlab("poll"); d = newlab("polld")
    E(f"""
    s_mov_b32 s{sSPIN}, {OPT['spin']}
    {l}:
    global_load_dword v{vtmp}, v{vaddr}, {sr(base,2)} sc1
    s_sub_u32 s{sSPIN}, s{sSPIN}, 1
    s_cbranch_scc1 {d}
    s_waitcnt vmcnt(0)
    v_cmp_ne_u32 vcc, 0, v{vtmp}
    s_nop 1
    s_cmp_eq_u64 vcc, -1
    s_cbranch_scc0 {l}
    {d}:
    s_waitcnt vmcnt(0)
    """)
def put_flag(vaddr, vone, base=None):
    E(f"""
    s_mov_b64 exec, 1
    global_store_dword v{vaddr}, v{vone}, {sr(pFL if base is None else base,2)} sc1
    s_mov_b64 exec, -1
    """)
def lds_arrive(vaddr, vone):
    E(f"""
    s_mov_b64 exec, 1
    ds_add_u32 v{vaddr}, v{vone}
    s_mov_b64 exec, -1
    """)
def lds_wait(vaddr, vtmp, n):
    l = newlab("lw"); d = newlab("lwd")
    E(f"""
    s_mov_b32 s{sSPIN}, {OPT['spin']*8}
    {l}:
    ds_read_b32 v{vtmp}, v{vaddr}
    s_sub_u32 s{sSPIN}, s{sSPIN}, 1
    s_cbranch_scc1 {d}
    s_waitcnt lgkmcnt(0)
    v_readfirstlane_b32 s{sSPIN+1}, v{vtmp}
    s_nop 1
    s_cmp_ge_u32 s{sSPIN+1}, {n}
    s_cbranch_scc0 {l}
    {d}:
    s_waitcnt lgkmcnt(0)
    """)

def helper_entry():
    sH, sC, sMH, sD, sLd, sDs, t0 = sT, sT + 1, sT + 2, sT + 5, sT + 6, sT + 7, sT + 8
    E(f"L_h0:\ns_setprio {OPT['prio']}\ns_sub_u32 s{sH}, s{sW}, 4")
    if OPT["pf"]:
        E(f"""
        s_getpc_b64 s[8:9]
        L_pc:
        s_andn2_b32 s10, s2, 7
        s_lshl1_add_u32 s10, s{sH}, s10
        v_and_b32 v2, 1, v1
        v_add_lshl_u32 v2, v2, s10, 7
        v_min_u32 v2, L_end-L_pc, v2
        v_mov_b32 v3, 0
        v_lshl_add_u64 v[2:3], v[2:3], 0, s[8:9]
        global_load_dword v167, v[2:3], off
        """)
    if OPT["gath"]:
        E(f"s_and_b32 s{sCH}, s2, 7\ns_lshl_b32 s{sCH}, s{sCH}, 5\ns_lshr_b32 s{t0}, s2, 3\ns_or_b32 s{sCH}, s{sCH}, s{t0}")
    else:
        E(f"s_lshl4_add_u32 s{sCH}, s{sHP}, s{sRB}")
    E(f"""
    s_lshl2_add_u32 s{t0}, s{sCH}, s{sH}
    s_lshl_b32 s{t0}, s{t0}, 7
    v_lshl_add_u32 v2, v1, 1, s{t0}
    s_lshl_b32 s{t0+1}, s{sCH}, 2
    s_and_b32 s{sMH}, s{sH}, 1
    s_lshl_b32 s{t0}, s{sMH}, 10
    s_add_u32 m0, s{t0}, {GW}
    v_lshlrev_b32 v3, 4, v1
    s_waitcnt lgkmcnt(0)
    """)
    for j, p in enumerate((pAre, pAim, pBre, pBim, pCre, pCim)):
        E(f"global_load_ushort v{4+j}, v2, {sr(p,2)}")
    E(f"""
    global_load_lds_dwordx4 v3, {sr(pGw,2)}
    {"s_barrier" if OPT["eb"] else ""}
    s_load_dword s{sLd}, {sr(pLdt,2)}, s{t0+1}
    s_load_dword s{sDs}, {sr(pDsk,2)}, s{t0+1}
    s_lshl_b32 s{sCH}, s{sCH}, 1
    """)

def prologue():
    if STAMP:
        E(f"s_memrealtime {sr(sST,2)}"); nstamp["m"] = nstamp["h"] = 1
    E(f"""
    s_cmpk_ge_u32 s2, 0x100
    s_cbranch_scc1 L_end
    s_load_dwordx16 s[16:31], s[0:1], 0
    s_load_dwordx16 s[32:47], s[0:1], 64
    v_lshrrev_b32 v2, 6, v0
    v_and_b32 v1, 63, v0
    v_readfirstlane_b32 s{sW}, v2
    s_bfe_u32 s{sHP}, s2, 0x30003
    s_and_b32 s{sT}, s2, 1
    s_lshl3_add_u32 s{sHP}, s{sT}, s{sHP}
    s_lshr_b32 s{sRB}, s2, 6
    s_and_b32 s{sT}, s2, 6
    s_lshl1_add_u32 s{sRB}, s{sT}, s{sRB}
    """)
    if OPT["rot"] == 0:
        E(f"s_mov_b32 s{sROT}, 0")
    elif OPT["rot"] == 1:
        E(f"s_xor_b32 s{sROT}, s{sHP}, s{sRB}\ns_and_b32 s{sROT}, s{sROT}, 1\ns_lshl_b32 s{sROT}, s{sROT}, 2")
    elif OPT["rot"] == 2:
        E(f"s_lshl1_add_u32 s{sROT}, s{sRB}, s{sHP}\ns_and_b32 s{sROT}, s{sROT}, 7")
    else:
        E(f"s_lshl1_add_u32 s{sROT}, s{sRB}, s{sHP}\ns_and_b32 s{sROT}, s{sROT}, 6")
    if OPT["lay"] == 2:
        E(f"s_cmp_lt_u32 s{sW}, 4\ns_cbranch_scc1 L_m0")
        helper_entry()
        E("s_branch L_helper\nL_m0:")
    else:
        E(f"s_cmp_ge_u32 s{sW}, 4\ns_cbranch_scc1 L_h0")

def main_wave():
    vXD, vWD, vXA, vWA, vQA = 4, 8, 10, 14, 16
    vFB = 24
    aK, aV, aQ = 48, 64, 80
    vP = 96
    vXF = 128
    sXO, sWO, sM0, sX, sZ, sQS = 92, 93, 94, 95, 100, 101
    sKVb, sKV, sJ, sCnt, sMask = sT + 2, sT + 4, sT + 6, sT + 7, sT + 8
    ta, tb, tc = sT + 10, sT + 11, sT + 12
    vO, vKV = 128, 192
    (vIDX, vKA, vVA, vSA, vSB, vSV, vEW, vER0, vER1, vERV, vRW, vRWl, vRR, vRRl, vOA, vOB) = range(112, 128)
    vF2, vOne, vF2P, vOD, vOnes, vZer = range(17, 23)
    vQ = 96; SA, SB = 24, 40; vT = 56
    E(f"""
    s_lshl2_add_u32 s{sT}, s{sRB}, s{sW}
    s_lshl_b32 s{sT}, s{sT}, 15
    v_lshrrev_b32 v2, 3, v1
    v_lshl_add_u32 v2, v2, 10, s{sT}
    v_lshrrev_b32 v3, 4, v1
    v_xor_b32 v3, v3, v1
    v_and_b32 v3, 7, v3
    v_lshl_add_u32 v{vXD}, v3, 4, v2
    v_xor_b32 v{vXD+1}, 64, v{vXD}
    s_movk_i32 s{sT}, 7168
    v_add_u32 v{vXD+1}, s{sT}, v{vXD+1}
    s_movk_i32 s{sT}, 14336
    v_add_u32 v{vXD+2}, s{sT}, v{vXD}
    v_add_u32 v{vXD+3}, s{sT}, v{vXD+1}
    v_lshrrev_b32 v2, 2, v0
    v_mul_u32_u24 v2, 3072, v2
    v_and_b32 v3, 3, v1
    s_lshl2_add_u32 s{sT}, s{sHP}, 64
    v_add_u32 v3, s{sT}, v3
    v_lshl_add_u32 v{vWD}, v3, 4, v2
    s_mul_i32 s{sM0}, s{sW}, {WPART}
    s_mov_b32 s{SRDX+2}, 0x200000
    s_mov_b32 s{SRDX+3}, 0x00020000
    s_mov_b64 {sr(SRDW+2,2)}, {sr(SRDX+2,2)}
    """)
    def dma(i, first=False):
        slot = i % NS
        g = []
        for seg in range(2):
            g.append([f"buffer_load_dwordx4 v{vWD}, {sr(SRDW,4)}, s{sWO} offen offset:{seg*1024} lds"])
        for j in range(4):
            g.append([f"buffer_load_dwordx4 v{vXD+j}, {sr(SRDX,4)}, s{sXO} offen offset:{j*1024} lds"])
        st = sROT if i == 0 else sT
        pre = [] if i == 0 else [f"s_add_u32 s{sT}, s{sROT}, {i}", f"s_and_b32 s{sT}, s{sT}, 7"]
        pre += [f"s_add_u32 m0, s{sM0}, {RING+slot*SLOT+4096}", f"s_mul_i32 s{sWO}, s{st}, 196608"]
        if first:
            pre += ["s_waitcnt lgkmcnt(0)", f"s_mov_b64 {sr(SRDW,2)}, {sr(pW,2)}", f"s_mov_b64 {sr(SRDX,2)}, {sr(pX,2)}"]
        g[0] = pre + g[0]
        g[2] = [f"s_add_u32 m0, s{sM0}, {RING+slot*SLOT}", f"s_lshl_b32 s{sXO}, s{st}, 7"] + g[2]
        return g
    for gi, g in enumerate(dma(0, True)):
        if gi == 0 and OPT["eb"] == 2: g.insert(len(g) - 1, "s_barrier")
        E(g)
    if OPT["eb"] == 1: E("s_barrier")
    if OPT["lay"] == 0:
        for g in dma(1): E(g)
        E("s_branch L_m1")
        helper_entry(); helper_wave()
        E("L_m1:")
        stamp("m")
    elif OPT["lay"] == 2:
        stamp("m")
        held = dma(1)
        for g in held[:OPT["d1"]]: E(g)
        held = held[OPT["d1"]:]
    else:
        E("s_branch L_m1")
        helper_entry()
        E("s_branch L_helper\nL_m1:")
        stamp("m")
        for g in dma(1): E(g)
    if OPT["tlb"]:
        E(f"""
        s_mov_b32 s{ta}, {WS_FL + 0x100000}
        s_load_dword s18, {sr(pWs,2)}, s{ta}
        s_load_dword s19, {sr(pDbg,2)}, 128
        s_load_dword s20, {sr(pOut,2)}, 0
        s_load_dword s21, {sr(pWo,2)}, 0
        """)
    E(f"""
    s_add_u32 s{pFL}, s{pWs}, {WS_FL}
    s_addc_u32 s{pFL+1}, s{pWs+1}, 0
    s_add_u32 s{ta}, s{sM0}, {RING}
    v_and_b32 v2, 31, v1
    v_lshl_add_u32 v2, v2, 7, s{ta}
    v_bfe_u32 v3, v1, 1, 3
    v_lshrrev_b32 v{vXA+1}, 5, v1
    v_xor_b32 v3, v3, v{vXA+1}
    v_lshl_add_u32 v{vXA}, v3, 4, v2
    v_xor_b32 v{vXA+1}, 32, v{vXA}
    v_xor_b32 v{vXA+2}, 64, v{vXA}
    v_xor_b32 v{vXA+3}, 0x60, v{vXA}
    v_lshrrev_b32 v2, 5, v1
    v_lshlrev_b32 v2, 3, v2
    v_bfe_u32 v3, v1, 2, 2
    v_add_u32 v2, v2, v3
    v_lshlrev_b32 v2, 6, v2
    v_and_b32 v3, 3, v1
    v_lshl_add_u32 v2, v3, 3, v2
    v_bfe_u32 v3, v1, 4, 1
    v_lshl_add_u32 v2, v3, 5, v2
    v_add_u32 v{vWA}, {RING+4096}, v2
    v_add_u32 v{vWA+1}, {RING+4096+2*SLOT}, v2
    v_add_u32 v{vQA}, {WQ}, v2
    """)
    E(f"""
    s_and_b32 s{sX}, s{sW}, 1
    s_lshr_b32 s{sZ}, s{sW}, 1
    s_mov_b32 s{sQS}, {fbits(0.25 * math.log2(math.e))}
    s_lshl2_add_u32 s{ta}, s{sRB}, s{sW}
    s_lshl_b32 s{ta}, s{ta}, 11
    s_lshl_b32 s{tb}, s{sHP}, 18
    s_add_u32 s{ta}, s{ta}, s{tb}
    v_lshlrev_b32 v{vKA}, 4, v1
    v_add_u32 v{vSA}, s{ta}, v{vKA}
    v_add_u32 v{vSB}, 0x20000, v{vSA}
    v_and_b32 v{vVA}, 15, v1
    v_lshrrev_b32 v2, 5, v1
    v_lshl_add_u32 v{vVA}, v2, 4, v{vVA}
    v_lshlrev_b32 v{vVA}, 4, v{vVA}
    v_bfe_u32 v2, v1, 4, 1
    v_lshlrev_b32 v2, 17, v2
    v_add3_u32 v{vSV}, v2, v{vVA}, s{ta}
    s_add_u32 s{tb}, s{sM0}, {EXCH}
    v_add_u32 v{vEW}, s{tb}, v{vKA}
    s_lshl_b32 s{ta}, s{sX}, 10
    s_add_u32 s{ta}, s{ta}, {EXCH}
    s_mul_i32 s{tb}, s{sZ}, 12288
    s_add_u32 s{tc}, s{ta}, s{tb}
    v_add_u32 v{vER0}, s{tc}, v{vKA}
    s_sub_u32 s{tc}, s{ta}, s{tb}
    s_add_u32 s{tc}, s{tc}, 12288
    v_add_u32 v{vER1}, s{tc}, v{vKA}
    s_lshl_b32 s{ta}, s{sX}, 8
    s_add_u32 s{tc}, s{ta}, s{tb}
    s_add_u32 s{tc}, s{tc}, {EXCH}
    v_add_u32 v{vERV}, s{tc}, v{vKA}
    s_lshl1_add_u32 s{ta}, s{sHP}, s{sX}
    s_lshl_b32 s{tb}, s{ta}, 17
    s_lshl_b32 s{tc}, s{sZ}, 12
    s_add_u32 s{tb}, s{tb}, s{tc}
    s_add_u32 s{sKVb}, s{pWs}, s{tb}
    s_addc_u32 s{sKVb+1}, s{pWs+1}, 0
    s_lshl_b32 s{sJ}, s{sRB}, 13
    s_lshl1_add_u32 s{tb}, s{sRB}, s{sZ}
    s_lshl_b32 s{tb}, s{tb}, 6
    s_add_u32 s{tb}, s{tb}, s{ta}
    s_lshl_b32 s{tb}, s{tb}, 10
    s_add_u32 s{tb}, s{tb}, {WS_OF}
    v_add_u32 v{vOA}, s{tb}, v{vKA}
    v_add_u32 v{vOB}, 0x8000, v{vOA}
    s_mul_i32 s{ta}, s{sW}, {REDS}
    s_add_u32 s{ta}, s{ta}, {RED}
    v_add_u32 v{vRW}, s{ta}, v{vKA}
    v_lshl_add_u32 v{vRWl}, v1, 2, s{ta}
    s_xor_b32 s{ta}, s{sW}, 2
    s_mul_i32 s{ta}, s{ta}, {REDS}
    s_add_u32 s{ta}, s{ta}, {RED}
    v_add_u32 v{vRR}, s{ta}, v{vKA}
    v_lshl_add_u32 v{vRRl}, v1, 2, s{ta}
    s_lshl_b32 s{ta}, s{sRB}, 4
    s_add_u32 s{ta}, s{ta}, {F2}
    s_add_u32 s{tb}, s{ta}, s{sHP}
    s_lshl_b32 s{tb}, s{tb}, {FSH}
    v_mov_b32 v{vF2}, s{tb}
    v_mov_b32 v{vOne}, 1
    v_and_b32 v3, 15, v1
    v_add_u32 v2, s{ta}, v3
    v_lshlrev_b32 v{vF2P}, {FSH}, v2
    s_and_b32 s{tb}, s{sHP}, 3
    s_lshl2_add_u32 s{ta}, s{sRB}, s{tb}
    s_lshl_b32 s{ta}, s{ta}, 15
    s_add_u32 s{ta}, s{ta}, {WS_OF}
    v_add_u32 v{vOD}, s{ta}, v{vKA}
    v_mov_b32 v{vIDX}, 0xdddddddd
    v_and_b32 v2, 27, v1
    v_cmp_eq_u32 vcc, 16, v2
    v_mov_b32 v2, {CNT+32}
    v_mov_b32 v{vZer}, {CNT+16}
    s_mov_b32 s{sMask}, 0x0000ffff
    s_mov_b32 s{sMask+1}, 0x0000ffff
    v_cndmask_b32 v{vOnes}, v{vZer}, v2, vcc
    s_mov_b32 s{sCnt}, 8
    """)
    def kvaddr():
        return [f"s_add_u32 s{sJ}, s{sJ}, 0x2000", f"s_and_b32 s{sJ}, s{sJ}, 0x1e000",
                f"s_add_u32 s{sKV}, s{sKVb}, s{sJ}", f"s_addc_u32 s{sKV+1}, s{sKVb+1}, 0"]
    E(kvaddr())
    def reads(n):
        i, s = n >> 2, n & 3
        slot = i % NS
        a = vWA + (slot >> 1); so = (slot & 1) * SLOT + s * WPART
        f = vFB + 8 * (n % 3)
        o = [f"ds_read_b128 {vr(vXF+4*n,4)}, v{vXA+s} offset:{slot*SLOT}"]
        for c in range(2):
            o.append(f"ds_read_b64_tr_b16 {vr(f+4*c,2)}, v{a} offset:{so+1024*c}")
            o.append(f"ds_read_b64_tr_b16 {vr(f+2+4*c,2)}, v{a} offset:{so+1024*c+256}")
        return o
    def dmaq(h):
        return [[f"s_add_u32 s{sT}, s{sROT}, {i}", f"s_and_b32 s{sT}, s{sT}, 7", f"s_add_u32 m0, s{sXO}, {WQ+4096*i}",
                 f"s_mul_i32 s{sWO}, s{sT}, 196608", f"buffer_load_dwordx4 v{vWD+1}, {sr(SRDW,4)}, s{sWO} offen lds"] for i in range(4*h, 4*h+4)]
    E(f"v_subrev_u32 v{vWD+1}, 1024, v{vWD}")
    if held:
        E(f"s_waitcnt vmcnt({OPT['d1'] + 6 - OPT['d1w']})")
        for g in held: E(g)
    E("s_waitcnt vmcnt(6)")
    if STAMP == 5: stamp("m")
    E("s_barrier")
    stamp("m")
    E(reads(0) + reads(1))
    pend = dma(2)
    E(pend.pop(0)); E(pend.pop(0))
    for n in range(32):
        f = vFB + 8 * (n % 3); x = vXF + 4 * n
        c = (lambda a: "0" if n == 0 else vr(a, 16))
        m = [f"v_mfma_f32_32x32x16_bf16 {vr(aV,16)}, {vr(x,4)}, {vr(f+4,4)}, {c(aV)}",
             f"v_mfma_f32_32x32x16_bf16 {vr(aK,16)}, {vr(f,4)}, {vr(x,4)}, {c(aK)}"]
        r = reads(n + 2) if n + 2 < 32 else []
        E(f"s_waitcnt lgkmcnt({5 if n < 31 else 0})")
        E(m[0])
        if (n + 2) % 4 == 0 and n + 2 < 32:
            b = (n + 2) >> 2
            assert not pend
            E(f"s_waitcnt vmcnt({6 if b < 7 else 4}) lgkmcnt(0)")
            if STAMP == 3: stamp("m")
            E("s_barrier")
            if STAMP == 2: stamp("m")
            if b + 2 <= 7: pend = dma(b + 2)
            else:
                pend = dmaq(b - 6)
                if b == 6: E(f"s_lshl_b32 s{sXO}, s{sW}, 10")
        E(r[:3])
        if pend: E(pend.pop(0))
        E(m[1]); E(r[3:])
        if pend: E(pend.pop(0))
    stamp("m")
    ep = [f"v_cvt_pk_bf16_f32 v{vP+j}, v{aK+2*j}, v{aK+1+2*j}" for j in range(4)]
    ep += [f"global_store_dwordx4 v{vSA}, {vr(vP,4)}, {sr(pWs,2)} sc1"]
    ep += [f"v_cvt_pk_bf16_f32 v{vP+j}, v{aK+2*j}, v{aK+1+2*j}" for j in range(4, 8)]
    ep += [f"global_store_dwordx4 v{vSB}, {vr(vP+4,4)}, {sr(pWs,2)} sc1"]
    ep += [f"v_permlane32_swap_b32 v{vP+8+a}, v{vP+10+a}" for a in (0, 1)]
    ep += [f"global_store_dwordx4 v{vSV}, {vr(vP+8,4)}, {sr(pWs,2)} offset:1024 sc1"]
    ep += [f"v_permlane32_swap_b32 v{vP+8+a}, v{vP+10+a}" for a in (4, 5)]
    ep += [f"global_store_dwordx4 v{vSV}, {vr(vP+12,4)}, {sr(pWs,2)} offset:1536 sc1"]
    LQ = OPT["lq"]
    qb = [40, 44, 24, 28, 32, 36, 64, 68, 72]
    def qread(n):
        f = qb[n % 9]
        return [f"ds_read_b64_tr_b16 {vr(f,2)}, v{vQA} offset:{1024*n}", f"ds_read_b64_tr_b16 {vr(f+2,2)}, v{vQA} offset:{1024*n+256}"]
    E("s_nop 10")
    for j in range(8):
        E(f"v_cvt_pk_bf16_f32 v{vP+8+j}, v{aV+2*j}, v{aV+1+2*j}")
    cut = OPT["epc"]
    E(ep[:cut])
    E(f"s_waitcnt vmcnt({4 + sum('store' in x for x in ep[:cut])})\ns_barrier")
    if STAMP == 4: stamp("m")
    for n in range(LQ): E(qread(n))
    E(ep[cut:])
    late = [f"ds_read_b128 {vr(vO+16*q+8+4*e,4)}, v{vZer}" for q in range(4) for e in range(2)]
    late += [f"ds_write_b128 v{vEW}, {vr(vP+4*j,4)} offset:{2048+1024*j}" for j in range(4)]
    late += [f"ds_read_b128 {vr(vKV+12*st+4+4*e,4)}, v{vOnes}" for st in range(4) for e in range(2)]
    nl = 0
    for n in range(32):
        E(f"s_waitcnt lgkmcnt({min(15, 2*min(LQ-1, 31-n) + nl)})")
        E(f"v_mfma_f32_32x32x16_bf16 {vr(aQ,16)}, {vr(qb[n%9],4)}, {vr(vXF+4*n,4)}, {'0' if n == 0 else vr(aQ,16)}")
        if n == OPT["ackn"]:
            if STAMP == 4: stamp("m")
            E("s_waitcnt vmcnt(0)\ns_barrier")
            if STAMP == 4: stamp("m")
        if n + LQ < 32:
            if n + LQ == 16:
                if STAMP == 4: stamp("m")
                E("s_waitcnt vmcnt(4)\ns_barrier")
                if STAMP == 4: stamp("m")
            E(qread(n + LQ))
        else:
            E(late[:2]); late = late[2:]; nl += 2
        r0 = vXF + 4 * (n - 1)
        for r in range(r0, r0 + 4):
            if n >= 1 and r < vKV and (r - vO) % 16 < 8: E(f"v_mov_b32 v{r}, 0")
    E(late)
    E(f"s_nop {max(0, 11 - len(late))}")
    for o in (0, 1):
        for j in range(8):
            E(f"v_mul_f32 v{aQ+8*o+j}, s{sQS}, v{aQ+8*o+j}")
        for j in range(4):
            E(f"v_cvt_pk_bf16_f32 v{aK+4*o+j}, v{aQ+8*o+2*j}, v{aQ+8*o+1+2*j}")
        E(f"ds_write_b128 v{vEW}, {vr(aK+4*o,4)} offset:{1024*o}")
    if STAMP == 4: stamp("m"); E("s_waitcnt vmcnt(0)"); stamp("m")
    E("s_waitcnt vmcnt(0) lgkmcnt(0)\ns_barrier")
    stamp("m")
    E(f"""
    ds_read_b128 {vr(vQ,4)}, v{vER1}
    ds_read_b128 {vr(vKV,4)}, v{vER0} offset:2048
    ds_read_b128 {vr(vQ+4,4)}, v{vER1} offset:6144
    s_mov_b64 exec, {sr(sMask,2)}
    ds_read_b128 {vr(vKV+4,4)}, v{vERV} offset:4096
    ds_read_b128 {vr(vKV+8,4)}, v{vERV} offset:5120
    ds_read_b128 {vr(vKV+16,4)}, v{vERV} offset:{4096+6144}
    ds_read_b128 {vr(vKV+20,4)}, v{vERV} offset:{5120+6144}
    s_mov_b64 exec, -1
    ds_read_b128 {vr(vQ+8,4)}, v{vER0}
    ds_read_b128 {vr(vQ+12,4)}, v{vER0} offset:6144
    ds_read_b128 {vr(vKV+12,4)}, v{vER0} offset:{2048+6144}
    s_waitcnt lgkmcnt(8)
    v_mfma_f32_32x32x16_bf16 {vr(SA,16)}, {vr(vKV,4)}, {vr(vQ,4)}, 0
    s_nop 10
    s_waitcnt lgkmcnt(0)
    """)
    def kload(st, par):
        return [f"global_load_dwordx4 {vr(vKV+12*st,4)}, v{vKA}, {sr(sKV,2)} offset:{par*2048} sc1"]
    def vload(st, par):
        return [f"s_mov_b64 exec, {sr(sMask,2)}",
                f"global_load_dwordx4 {vr(vKV+12*st+4,4)}, v{vVA}, {sr(sKV,2)} offset:{par*2048+1024} sc1",
                f"global_load_dwordx4 {vr(vKV+12*st+8,4)}, v{vVA}, {sr(sKV,2)} offset:{par*2048+1536} sc1",
                "s_mov_b64 exec, -1"]
    def step(t, q, mode="loop", lo=0, hi=16, extra=None):
        cur, oth = (SA, SB) if q % 2 == 0 else (SB, SA)
        tp, qp = (t, q - 1) if q else ((t - 1) % 4, 3)
        tn, qn = (t, q + 1) if q < 3 else ((t + 1) % 4, 0)
        after2, afterq, after1 = extra or ([], [], [])
        st = (t + 3) % 4; par = (t + 3) & 1
        if mode == "loop":
            if q == 0:
                after2 = vload(st, par); afterq = kload(st, par)
            if q == 1 and par == 1:
                ka = kvaddr(); after2 = ka[:2]; after1 = ka[2:]
            if q == 3:
                after2 = ["s_waitcnt vmcnt(6)"]
                if t == 2:
                    after2 += [f"s_sub_u32 s{sCnt}, s{sCnt}, 1"]; afterq = [f"s_cmp_lg_u32 s{sCnt}, 0"]
        for i in range(lo, hi):
            E(f"v_exp_f32 v{cur+i}, v{cur+i}")
            if i == 1 and not (mode == "first" and q == 0):
                E(f"v_smfmac_f32_32x32x32_bf16 {vr(vO+16*qp,16)}, {vr(vKV+12*tp+8,4)}, {vr(oth+8,8)}, v{vIDX}")
                E(after2)
            if i == 4 and not (mode == "last" and q == 3):
                E(f"v_mfma_f32_32x32x16_bf16 {vr(oth,16)}, {vr(vKV+12*tn,4)}, {vr(vQ+4*qn,4)}, 0")
                E(afterq)
            if i == 10:
                E(f"v_smfmac_f32_32x32x32_bf16 {vr(vO+16*q,16)}, {vr(vKV+12*t+4,4)}, {vr(cur,8)}, v{vIDX}")
                E(after1)
    for q in range(4): step(0, q, "first")
    E("s_barrier")
    stamp("m")
    E(kload(2, 0) + vload(2, 0) + vload(3, 1) + kload(3, 1) + kvaddr())
    E("s_branch L_attn1\n.p2align 3\nL_attn:")
    step(2, 3, lo=11)
    for t in (3, 0, 1, 2):
        if t == 1: E("L_attn1:")
        for q in range(4): step(t, q, hi=(11 if (t, q) == (2, 3) else 16))
    if OPT.get("itst"):
        E(f"s_memtime s[90:91]\ns_mov_b32 m0, s{sCnt}\ns_waitcnt lgkmcnt(0)\nv_writelane_b32 v23, s90, m0")
    E("s_cbranch_scc1 L_attn")
    step(2, 3, lo=11)
    vR = 64
    def sendw(q): return [f"ds_write_b128 v{vRW}, {vr(vO+16*q,4)} offset:{2048*q}", f"ds_write_b128 v{vRW}, {vr(vO+16*q+4,4)} offset:{2048*q+1024}",
                          f"ds_write_b32 v{vRWl}, v{vO+16*q+8} offset:{4096+256*q}"]
    recv = ["s_waitcnt lgkmcnt(0)", "s_barrier",
            f"ds_read_b32 v{vR+16}, v{vRRl} offset:4096", f"ds_read_b128 {vr(vR,4)}, v{vRR}", f"ds_read_b128 {vr(vR+4,4)}, v{vRR} offset:1024",
            f"ds_read_b32 v{vR+17}, v{vRRl} offset:4352", f"ds_read_b128 {vr(vR+8,4)}, v{vRR} offset:2048", f"ds_read_b128 {vr(vR+12,4)}, v{vRR} offset:3072"]
    step(3, 0, "last"); step(3, 1, "last")
    w0 = sendw(0)
    step(3, 2, "last", extra=(w0[:1], w0[1:2], w0[2:]))
    step(3, 3, "last", extra=(sendw(1), [], recv))
    O2, O3 = vO + 32, vO + 48
    E(f"""
    s_waitcnt lgkmcnt(3)
    v_add_f32 v{O2+8}, v{O2+8}, v{vR+16}
    v_smfmac_f32_32x32x32_bf16 {vr(O3,16)}, {vr(vKV+36+8,4)}, {vr(SB+8,8)}, v{vIDX}
    """)
    stamp("m")
    def fin(o, r, rl, dst, addr):
        if rl is not None: E(f"v_add_f32 v{o+8}, v{o+8}, v{rl}")
        E(f"v_rcp_f32 v{vT}, v{o+8}")
        if r is not None:
            for j in range(8): E(f"v_add_f32 v{o+j}, v{o+j}, v{r+j}")
        else:
            E("s_nop 0")
        for j in range(8): E(f"v_mul_f32 v{o+j}, v{o+j}, v{vT}")
        for j in range(4): E(f"v_cvt_pk_bf16_f32 v{dst+j}, v{o+2*j}, v{o+2*j+1}")
        E(f"global_store_dwordx4 v{addr}, {vr(dst,4)}, {sr(pWs,2)} sc1")
    fin(O2, vR, None, SA, vOA)
    E("s_waitcnt lgkmcnt(0)")
    fin(O3, vR + 8, vR + 17, SA + 4, vOB)
    E(f"""
    s_mov_b32 s{ta}, {fbits(2.0**-30)}
    s_mov_b32 s{tb}, {fbits(2.0**50)}
    v_min_f32 v{vT+6}, v{O2+8}, v{O3+8}
    v_max_f32 v{vT+7}, v{O2+8}, v{O3+8}
    v_cmp_lt_f32 vcc, s{ta}, v{vT+6}
    v_cmp_gt_f32 {sr(tc,2)}, s{tb}, v{vT+7}
    v_pk_mul_f32 {vr(vT+2,2)}, {vr(O2,2)}, 0 op_sel_hi:[1,0]
    s_and_b64 {sr(tc,2)}, {sr(tc,2)}, vcc
    """)
    for j in (2, 4, 6, 16, 18, 20, 22):
        E(f"v_pk_fma_f32 {vr(vT+2,2)}, {vr(O2+j,2)}, 0, {vr(vT+2,2)} op_sel_hi:[1,0,1]")
    E(f"""
    v_cmp_o_f32 vcc, v{vT+2}, v{vT+3}
    s_nop 1
    s_and_b64 vcc, {sr(tc,2)}, vcc
    s_cmp_eq_u64 vcc, -1
    s_cbranch_scc0 L_safe
    L_pub:
    s_waitcnt vmcnt(0)
    s_barrier
    """)
    stamp("m")
    E(f"s_cmp_lg_u32 s{sW}, 0\ns_cbranch_scc1 L_mdone")
    put_flag(vF2, vOne)
    E("s_waitcnt vmcnt(0)")
    poll_global(vF2P, pFL, 2)
    E(f"s_mov_b32 s{sKV}, s{pWs}\ns_mov_b32 s{sKV+1}, s{pWs+1}")
    for g in range(8):
        E(f"s_mov_b32 m0, {OFL+4096*g}")
        if g: E(f"s_add_u32 s{sKV}, s{sKV}, 4096\ns_addc_u32 s{sKV+1}, s{sKV+1}, 0")
        else: E("s_nop 0")
        for j in range(4):
            E(f"global_load_lds_dwordx4 v{vOD}, {sr(sKV,2)} offset:{1024*j} sc1")
    for n in (24, 16, 8, 0):
        E(f"s_waitcnt vmcnt({n})\ns_barrier")
    if SPM >= 0:
        E("s_branch L_mdone2\nL_mdone:\ns_barrier\ns_barrier\ns_barrier\ns_barrier\nL_mdone2:")
    else:
        E("L_mdone:")
    stamp_flush("m"); spin_end("m")
    if OPT.get("itst"):
        E(f"v_lshl_add_u32 v2, v1, 2, v2\nv_add_u32 v2, 0x100000, v2\ns_mov_b64 exec, 0xff\nglobal_store_dword v2, v23, {sr(pWs,2)}")
    E("s_endpgm")
    vM, vC = vT + 6, 64
    vQ += 8; vO += 32
    E(f"""
    L_safe:
    s_waitcnt vmcnt(0)
    s_lshl_b32 s{ta}, s{sZ}, 12
    s_sub_u32 s{sKVb}, s{sKVb}, s{ta}
    s_subb_u32 s{sKVb+1}, s{sKVb+1}, 0
    s_mov_b32 s{sKV}, s{sKVb}
    s_mov_b32 s{sKV+1}, s{sKVb+1}
    s_mov_b32 s{sCnt}, 64
    v_mov_b32 v{vM}, 0xff800000
    v_mov_b32 v{vM+1}, 0xff800000
    L_safe1:
    global_load_dwordx4 {vr(vKV,4)}, v{vKA}, {sr(sKV,2)} sc1
    s_add_u32 s{sKV}, s{sKV}, 2048
    s_addc_u32 s{sKV+1}, s{sKV+1}, 0
    s_waitcnt vmcnt(0)
    v_mfma_f32_32x32x16_bf16 {vr(SA,16)}, {vr(vKV,4)}, {vr(vQ,4)}, 0
    v_mfma_f32_32x32x16_bf16 {vr(SB,16)}, {vr(vKV,4)}, {vr(vQ+4,4)}, 0
    s_nop 15
    """)
    for j in range(8):
        E(f"v_max3_f32 v{vM}, v{SA+2*j}, v{SA+2*j+1}, v{vM}\nv_max3_f32 v{vM+1}, v{SB+2*j}, v{SB+2*j+1}, v{vM+1}")
    E(f"""
    s_sub_u32 s{sCnt}, s{sCnt}, 1
    s_cmp_lg_u32 s{sCnt}, 0
    s_cbranch_scc1 L_safe1
    v_mov_b32 v{SA}, v{vM}
    v_mov_b32 v{SB}, v{vM+1}
    s_nop 1
    v_permlane32_swap_b32 v{SA}, v{vM}
    v_permlane32_swap_b32 v{SB}, v{vM+1}
    s_nop 1
    v_max_f32 v{vM}, v{vM}, v{SA}
    v_max_f32 v{vM+1}, v{vM+1}, v{SB}
    """)
    for j in range(16):
        E(f"v_sub_f32 v{vC+j}, 0, v{vM}\nv_sub_f32 v{vC+16+j}, 0, v{vM+1}\nv_mov_b32 v{vO+j}, 0\nv_mov_b32 v{vO+16+j}, 0")
    E(f"""
    s_mov_b32 s{sKV}, s{sKVb}
    s_mov_b32 s{sKV+1}, s{sKVb+1}
    s_mov_b32 s{sCnt}, 64
    L_safe2:
    """)
    E(kload(0, 0) + vload(0, 0))
    E(f"""
    s_add_u32 s{sKV}, s{sKV}, 2048
    s_addc_u32 s{sKV+1}, s{sKV+1}, 0
    s_waitcnt vmcnt(0)
    v_mfma_f32_32x32x16_bf16 {vr(SA,16)}, {vr(vKV,4)}, {vr(vQ,4)}, {vr(vC,16)}
    v_mfma_f32_32x32x16_bf16 {vr(SB,16)}, {vr(vKV,4)}, {vr(vQ+4,4)}, {vr(vC+16,16)}
    s_nop 15
    """)
    for j in range(32):
        E(f"v_exp_f32 v{SA+j}, v{SA+j}")
    E(f"""
    s_nop 1
    v_smfmac_f32_32x32x32_bf16 {vr(vO,16)}, {vr(vKV+4,4)}, {vr(SA,8)}, v{vIDX}
    v_smfmac_f32_32x32x32_bf16 {vr(vO,16)}, {vr(vKV+8,4)}, {vr(SA+8,8)}, v{vIDX}
    v_smfmac_f32_32x32x32_bf16 {vr(vO+16,16)}, {vr(vKV+4,4)}, {vr(SB,8)}, v{vIDX}
    v_smfmac_f32_32x32x32_bf16 {vr(vO+16,16)}, {vr(vKV+8,4)}, {vr(SB+8,8)}, v{vIDX}
    s_sub_u32 s{sCnt}, s{sCnt}, 1
    s_cmp_lg_u32 s{sCnt}, 0
    s_cbranch_scc1 L_safe2
    s_nop 15
    """)
    fin(O2, None, None, SA, vOA); fin(O3, None, None, SA + 4, vOB)
    E("s_branch L_pub")

def helper_wave():
    sH, sC, sMH, sRT, sCB, sD = sT, sT + 1, sT + 2, sT + 3, sT + 4, sT + 5
    sLd, sDs = sT + 6, sT + 7
    t0 = sT + 8
    sLead, sWst = 92, 93
    sAT = 100
    vGW = 156
    vGWA = 155
    vXF = 160
    vG, vGA0, vGA1 = 164, 165, 166
    vU = 168
    vF4, vF4P, vWqP, vWqG, vRdy, vF1, vF1P = range(141, 148)
    sWq = 94
    vTA, vTS = 148, 152
    sUW = sT + 13
    assert NS == 3
    vPar = 4
    E(f"""
    L_helper:
    s_lshr_b32 s{sC}, s{sH}, 1
    s_add_u32 s{sD}, s{sCH}, s{sC}
    s_and_b32 s{sRT}, s{sHP}, 3
    s_lshr_b32 s{sCB}, s{sHP}, 2
    v_lshrrev_b32 v3, 5, v1
    v_lshlrev_b32 v3, 4, v3
    s_lshl_b32 s{t0+2}, s{sROT}, 2
    s_add_u32 s{t0+2}, s{t0+2}, s{sH}
    s_lshl_b32 s{t0+2}, s{t0+2}, 5
    s_add_u32 s{t0+2}, s{t0+2}, {GW}
    v_add_u32 v{vGWA}, s{t0+2}, v3
    v_mov_b32 v12, 0
    v_mov_b32 v13, 0
    v_mov_b32 v14, 0
    v_mov_b32 v15, 0
    s_cmp_lt_u32 s2, 16
    s_cselect_b32 s{sLead}, s{sW}, 0
    """)
    E(f"s_add_u32 s{pFL}, s{pWs}, {WS_FL}\ns_addc_u32 s{pFL+1}, s{pWs+1}, 0")
    stamp("h")
    E(f"""
    s_mul_i32 s{t0}, s{sC}, {URS}
    s_add_u32 s{t0}, s{t0}, {UR+4096}
    v_lshl_add_u32 v10, v1, 4, s{t0}
    v_and_b32 v11, 1, v1
    v_lshlrev_b32 v11, 4, v11
    v_cmp_gt_u32 vcc, 30, v1
    v_add_u32 v11, {CNT}, v11
    v_mov_b32 v2, 0x3f803f80
    v_cndmask_b32 v10, v11, v10, vcc
    ds_write_b128 v10, v[12:15]
    v_and_b32 v11, 3, v1
    v_lshlrev_b32 v11, 2, v11
    ds_write_b32 v11, v2 offset:{CNT+32}
    """)
    vWA, vRA = 16, 17
    if "prio1" in OPT: E(f"s_setprio {OPT['prio1']}")
    E(f"""
    s_mul_i32 s{t0}, s{sRT}, {WPART}
    s_add_u32 s{t0}, s{t0}, {RING}
    v_and_b32 v10, 31, v1
    v_lshl_add_u32 v10, v10, 7, s{t0}
    v_bfe_u32 v11, v1, 1, 3
    v_lshrrev_b32 v3, 5, v1
    v_xor_b32 v11, v11, v3
    s_lshl_b32 s{t0}, s{sH}, 1
    v_xor_b32 v11, s{t0}, v11
    v_lshl_add_u32 v{vGA0}, v11, 4, v10
    v_mov_b32 v{vG}, 0
    """)
    if not OPT["gath"]: E(f"""
    s_lshr_b32 s{sUW}, s{sHP}, 1
    s_sub_u32 s{sUW}, s{sUW}, s{sROT}
    s_and_b32 s{sUW}, s{sUW}, 7
    s_mul_i32 s{t0}, s{sUW}, 11
    s_lshr_b32 s{t0}, s{t0}, 5
    s_mul_i32 s{t0}, s{t0}, 3
    s_sub_u32 s{t0}, s{sUW}, s{t0}
    s_mul_i32 s{t0}, s{t0}, {SLOT}
    s_mul_i32 s{t0+1}, s{sH}, {WPART}
    s_add_u32 s{t0}, s{t0}, s{t0+1}
    s_add_u32 s{t0}, s{t0}, {RING}
    v_and_b32 v10, 3, v1
    v_bfe_u32 v11, v1, 2, 2
    v_lshlrev_b32 v10, 3, v10
    v_sub_u32 v10, v10, v11
    v_add_u32 v10, 7, v10
    v_bfe_u32 v11, v10, 1, 3
    v_xor_b32 v11, v11, v3
    s_and_b32 s{t0+1}, s{sHP}, 1
    s_lshl_b32 s{t0+1}, s{t0+1}, 2
    v_xor_b32 v11, s{t0+1}, v11
    v_lshlrev_b32 v11, 4, v11
    v_lshl_add_u32 v11, v10, 7, v11
    v_bfe_u32 v10, v1, 4, 1
    v_lshl_add_u32 v11, v10, 3, v11
    v_add_u32 v{vTA}, s{t0}, v11
    v_xor_b32 v{vTA+1}, 32, v{vTA}
    v_subrev_u32 v{vTA+2}, 512, v{vTA}
    v_subrev_u32 v{vTA+3}, 512, v{vTA+1}
    """)
    E(f"""
    s_mul_i32 s{t0}, s{sH}, {KGS}
    s_add_u32 s{t0}, s{t0}, {KG}
    s_mov_b32 m0, s{t0}
    v_and_b32 v10, 31, v1
    v_mul_u32_u24 v10, 272, v10
    v_lshl_add_u32 v10, v3, 4, v10
    v_add_u32 v{vRA}, s{t0}, v10
    s_mul_i32 s{t0}, s{sC}, {2*KGS}
    s_add_u32 s{t0}, s{t0}, {KG+KGS}
    v_lshl_add_u32 v{vWA}, v1, 4, s{t0}
    """)
    K = []
    def k(s, c=None):
        if isinstance(s, list): s = "\n".join(s)
        for x in s.split("\n"):
            x = x.strip()
            if not x: continue
            cc = c if c is not None else (8 if any(t in x for t in ("v_exp", "v_sin", "v_cos", "v_rcp", "ds_")) else 4)
            K.append((cc, x))
    va, vb, vt = 220, 221, 222
    log2e = math.log2(math.e)
    c_hi = struct.unpack("<f", struct.pack("<f", log2e))[0]
    c_lo = log2e - c_hi
    k(f"""
    s_waitcnt lgkmcnt(0)
    s_lshl_b32 s{t0}, s{sC}, 4
    s_lshr_b32 s{sLd}, s{sLd}, s{t0}
    s_lshl_b32 s{sLd}, s{sLd}, 16
    s_lshr_b32 s{sDs}, s{sDs}, s{t0}
    s_lshl_b32 s{sDs}, s{sDs}, 16
    s_mov_b32 s{t0}, {fbits(c_hi)}
    v_mov_b32 v{vt}, s{sLd}
    v_mul_f32 v{vt+1}, s{t0}, v{vt}
    v_fma_f32 v{vt+2}, v{vt}, s{t0}, -v{vt+1}
    v_fmac_f32 v{vt+2}, {fbits(c_lo)}, v{vt}
    v_exp_f32 v{vt+1}, v{vt+1}
    v_mul_f32 v{vt+2}, {fbits(math.log(2.0))}, v{vt+2}
    v_fma_f32 v{vt+1}, v{vt+1}, v{vt+2}, v{vt+1}
    v_cvt_pk_bf16_f32 v{vt+1}, v{vt+1}, v{vt+1}
    v_lshlrev_b32 v{vt}, 16, v{vt+1}
    s_waitcnt vmcnt(1)
    """)
    for j in range(6):
        k(f"v_lshlrev_b32 v{vPar+j}, 16, v{vPar+j}")
    k(f"""
    v_mul_f32 v{va}, v{vt}, v{vPar}
    v_mul_f32 v{vb}, v{vt}, v{vPar+1}
    v_mul_f32 v{vPar+2}, v{vt}, v{vPar+2}
    v_mul_f32 v{vPar+3}, v{vt}, v{vPar+3}
    v_mul_f32 v{va}, {fbits(c_hi)}, v{va}
    v_mul_f32 v{vb}, 0.15915494, v{vb}
    """)
    pkm = [OPT["pk0"]]
    def cmul(z, x, w):
        if pkm[0]:
            return [f"v_pk_mul_f32 {vr(z,2)}, {vr(x,2)}, {vr(w,2)} op_sel_hi:[0,1]",
                    f"v_pk_fma_f32 {vr(z,2)}, {vr(x,2)}, {vr(w,2)}, {vr(z,2)} op_sel:[1,1,0] op_sel_hi:[1,0,1] neg_lo:[1,0,0]"]
        return [f"v_mul_f32 v{z}, v{x}, v{w}\nv_mul_f32 v{z+1}, v{x}, v{w+1}",
                f"v_fma_f32 v{z}, -v{x+1}, v{w+1}, v{z}\nv_fmac_f32 v{z+1}, v{x+1}, v{w}"]
    def cmuls(lst):
        cm = [cmul(*a) for a in lst]
        k([c[0] for c in cm]); k([c[1] for c in cm])
    def direct(z, x):
        k(f"""
        v_mul_f32 v{vt+2}, {fbits(x)}, v{vb}
        v_mul_f32 v{vt+1}, {fbits(x)}, v{va}
        v_fract_f32 v{vt+2}, v{vt+2}
        v_exp_f32 v{vt+1}, v{vt+1}
        v_cos_f32 v{z}, v{vt+2}
        v_sin_f32 v{z+1}, v{vt+2}
        s_nop 0
        v_mul_f32 v{z}, v{z}, v{vt+1}
        v_mul_f32 v{z+1}, v{z+1}, v{vt+1}
        """)
    E1, E32, E256 = 226, 228, 230
    vE = 232
    vPk = 64
    npk = [0]
    DW = {False: [], True: []}
    def puts(lst, neg):
        for z, rows in lst:
            p = vPk + npk[0]; npk[0] += 1
            k(f"v_cvt_pk_bf16_f32 v{p}, v{z}, {'-' if neg else ''}v{z+1}")
            DW[neg] += [f"ds_write_addtid_b32 v{p} offset:{272*r}" for r in rows]
    def e(j): return vE + 2 * (j % 8)
    direct(e(1), 8.0); direct(E32, 32.0)
    k(f"v_mov_b32 v{e(0)}, 1.0\nv_mov_b32 v{e(0)+1}, 0\nv_mov_b32 v{e(4)}, v{E32}\nv_mov_b32 v{e(4)+1}, v{E32+1}")
    cmuls([(e(2), e(1), e(1)), (e(5), e(1), E32)])
    cmuls([(e(3), e(2), e(1)), (e(6), e(2), E32)])
    cmuls([(e(7), e(3), E32)])
    puts([(e(j), [j]) for j in range(4)], False)
    for j0 in range(4, 32, 4):
        if j0 + 4 < 32: cmuls([(e(j + 4), e(j), E32) for j in range(j0, j0 + 4)])
        puts([(e(j), [j]) for j in range(j0, j0 + 4)], False)
    vEF, vGF, vD = 192, 224, 176
    direct(E1, 1.0); direct(E256, 256.0)
    def row(r, h): return 8 * (r >> 2) + 4 * h + (r & 3)
    vGv = 192
    g = {x: vGv + 2 * x for x in range(9)}
    E2 = e(0)
    cmuls([(g[0], vPar + 4, vPar + 2), (E2, E1, E1)])
    cmuls([(g[1], g[0], E1), (g[2], g[0], E2)])
    cmuls([(g[3], g[1], E2), (g[4], g[2], E2)])
    puts([(g[x], [row(x, 0)]) for x in range(4)], True)
    cmuls([(g[5], g[3], E2), (g[6], g[4], E2)])
    cmuls([(g[7], g[5], E2), (g[8], g[6], E2)])
    puts([(g[x], [row(x, 0)]) for x in range(4, 8)], True)
    A = {o: vGv + 18 + 2 * i for i, o in enumerate((0, 2, 4, 6, 8))}
    cmuls([(A[o], g[o], E256) for o in (0, 2, 4, 6, 8)])
    puts([(A[o], [row(r, 1) for r in rs]) for o, rs in ((0, (0, 1)), (2, (2,)), (4, (3, 4, 5)), (6, (6,)), (8, (7,)))], True)
    src, dst = A, g
    for os_, r0, h in (((0, 4, 8), 8, 0), ((0, 4, 8), 8, 1), ((0, 8), 11, 0), ((0, 8), 11, 1), ((0, 8), 13, 0), ((0, 8), 13, 1)):
        cmuls([(dst[o], src[o], E256) for o in os_])
        puts([(dst[o], [row(r0 + i, h)]) for i, o in enumerate(os_)], True)
        src, dst = dst, src
    def D1(): E(DW[False] + [f"ds_read_b128 {vr(vEF+4*s,4)}, v{vRA} offset:{32*s}" for s in range(8)])
    def D2(): E(DW[True] + [f"ds_read_b128 {vr(vGF+4*s,4)}, v{vRA} offset:{32*s}" for s in range(8)])
    PL = [int(c) for c in "%05d" % OPT["pl"]]
    psync = PL[2] == PL[3]
    def D3():
        E("s_waitcnt lgkmcnt(0)")
        for s in range(8):
            E(f"v_mfma_f32_32x32x16_bf16 {vr(vD,16)}, {vr(vGF+4*s,4)}, {vr(vEF+4*s,4)}, {'0' if s == 0 else vr(vD,16)}")
        lx = newlab("nx")
        E(f"s_nop 9\ns_cmp_eq_u32 s{sMH}, 0\ns_cbranch_scc1 {lx}")
        for j in range(4):
            E(f"ds_write_b128 v{vWA}, {vr(vD+4*j,4)} offset:{1024*j}")
        if psync: lds_arrive(vCP, vOne)
        E(f"s_waitcnt lgkmcnt(0)\n{lx}:")
    (vCA, vCP, vOne, vTm, vAA, vBA, vUW, vCW, vCR, vAT, vF3, vWoG, vWoL, vF3P, vAL, vOut, vg, vomg, vOL, vGPw, vGPr, vWoP, vUL) = range(24, 47)
    vA = 48; vAcc = 96
    ADDR = f"""
    s_lshr_b32 s{t0}, s2, 3
    s_lshl2_add_u32 s{t0}, s{t0}, s{sH}
    s_mul_i32 s{t0}, s{t0}, 12288
    s_lshr_b32 s{t0+1}, s{sHP}, 3
    s_lshl_b32 s{t0+1}, s{t0+1}, 9
    s_add_u32 s{t0}, s{t0}, s{t0+1}
    v_bfe_u32 v18, v1, 2, 2
    v_mul_u32_u24 v18, 3072, v18
    v_and_b32 v19, 3, v1
    v_lshl_add_u32 v18, v19, 7, v18
    v_add_u32 v{vWqP}, s{t0}, v18
    v_mov_b32 v{vCA}, {CNT}
    s_lshl_b32 s{t0}, s{sC}, 2
    s_add_u32 s{t0}, s{t0}, {CNT+4}
    v_mov_b32 v{vCP}, s{t0}
    v_mov_b32 v{vOne}, 1
    v_lshlrev_b32 v23, 4, v1
    s_lshl_b32 s{t0}, s{sH}, 10
    s_sub_u32 s{t0}, {UR+4080-512}, s{t0}
    v_lshrrev_b32 v18, 1, v1
    v_lshlrev_b32 v19, 4, v18
    v_sub_u32 v19, s{t0}, v19
    v_and_b32 v20, 1, v1
    v_mul_u32_u24 v21, {URS}, v20
    v_add_u32 v{vUW}, v19, v21
    s_lshr_b32 s{t0}, s{sCH}, 2
    s_lshl_b32 s{t0}, s{t0}, 14
    s_lshl_b32 s{t0+1}, s{sH}, 12
    s_add_u32 s{t0}, s{t0}, s{t0+1}
    s_and_b32 s{t0+1}, s{sRB}, 1
    s_lshl_b32 s{t0+1}, s{t0+1}, 5
    s_add_u32 s{t0}, s{t0}, s{t0+1}
    s_add_u32 s{t0}, s{t0}, {WS_UT}
    v_lshl_add_u32 v18, v18, 6, s{t0}
    v_lshl_add_u32 v{vUL}, v20, 4, v18
    v_and_b32 v18, 15, v1
    v_add_u32 v19, 1, v18
    v_and_b32 v20, 3, v19
    v_mul_u32_u24 v20, {KCP}, v20
    v_lshrrev_b32 v19, 2, v19
    v_lshl_add_u32 v20, v19, 3, v20
    v_lshrrev_b32 v21, 4, v1
    v_lshlrev_b32 v22, 4, v21
    s_mul_i32 s{t0}, s{sC}, {2*KGS}
    s_lshl_b32 s{t0+1}, s{sMH}, 8
    s_add_u32 s{t0}, s{t0}, s{t0+1}
    s_add_u32 s{t0}, s{t0}, {KG}
    v_add3_u32 v{vAA}, v20, v22, s{t0}
    s_mul_i32 s{t0}, s{sC}, {URS}
    s_add_u32 s{t0}, s{t0}, s{t0+1}
    s_add_u32 s{t0}, s{t0}, {UR+4064-3584}
    v_lshlrev_b32 v19, 5, v18
    v_sub_u32 v22, v22, v19
    v_add_u32 v{vBA}, s{t0}, v22
    s_lshl_b32 s{t0}, s{sH}, 12
    s_add_u32 s{t0}, s{t0}, {CRED}
    v_add_u32 v{vCW}, s{t0}, v23
    s_xor_b32 s{t0}, s{sH}, 1
    s_lshl_b32 s{t0}, s{t0}, 12
    s_add_u32 s{t0}, s{t0}, {CRED}
    v_add_u32 v{vCR}, s{t0}, v23
    v_add_u32 v{vOL}, {OFL}, v23
    v_lshrrev_b32 v19, 1, v18
    v_lshlrev_b32 v19, 15, v19
    v_and_b32 v20, 1, v1
    v_lshl_add_u32 v19, v20, 5, v19
    v_lshl_add_u32 v{vAT}, v21, 3, v19
    s_lshl_b32 s{t0}, s{sMH}, 20
    s_lshl_b32 s{t0+1}, s{sD}, 6
    s_add_u32 s{t0}, s{t0}, s{t0+1}
    s_add_u32 s{t0}, s{t0}, {WS_AT}
    s_add_u32 s{sAT}, s{pWs}, s{t0}
    s_addc_u32 s{sAT+1}, s{pWs+1}, 0
    s_lshl_b32 s{t0}, s{sMH}, 9
    s_add_u32 s{t0}, s{t0}, s{sD}
    s_add_u32 s{t0}, s{t0}, {F3}
    s_lshl_b32 s{t0}, s{t0}, 2
    v_mov_b32 v{vF3}, s{t0}
    s_mov_b32 s{SRDW}, s{pWo}
    s_mov_b32 s{SRDW+1}, s{pWo+1}
    s_mov_b32 s{SRDW+2}, {512*1024}
    s_mov_b32 s{SRDW+3}, 0x00020000
    s_lshl_b32 s{t0}, s{sCB}, 2
    s_add_u32 s{t0}, s{t0}, s{sH}
    s_lshl_b32 s{t0+1}, s{t0}, 6
    v_lshrrev_b32 v18, 2, v1
    v_lshl_add_u32 v18, v18, 10, s{t0+1}
    v_and_b32 v19, 3, v1
    v_lshl_add_u32 v{vWoG}, v19, 4, v18
    s_mul_i32 s{sWst}, s{sH}, {WSL*1024}
    s_add_u32 s{sWst}, s{sWst}, {WST}
    v_lshrrev_b32 v22, 5, v1
    v_lshlrev_b32 v20, 2, v22
    v_bfe_u32 v21, v1, 2, 2
    v_add_u32 v20, v20, v21
    v_lshl_add_u32 v20, v20, 6, s{sWst}
    v_lshl_add_u32 v20, v19, 3, v20
    v_bfe_u32 v21, v1, 4, 1
    v_lshl_add_u32 v{vWoL}, v21, 5, v20
    s_lshl_b32 s{t0}, s{t0}, 5
    s_lshr_b32 s{t0+1}, s{sRB}, 3
    s_lshl_b32 s{t0+1}, s{t0+1}, 9
    s_add_u32 s{t0+1}, s{t0+1}, s{t0}
    s_add_u32 s{t0+1}, s{t0+1}, {F3}
    v_and_b32 v18, 31, v1
    v_add_u32 v19, s{t0+1}, v18
    v_lshlrev_b32 v{vF3P}, 2, v19
    s_lshl_b32 s{t0+1}, s{sRB}, 2
    s_add_u32 s{t0+1}, s{t0+1}, s{sRT}
    s_lshl_b32 s{t0+2}, s{t0+1}, 15
    s_lshl_b32 s{t0+3}, s{t0}, 6
    s_add_u32 s{t0+3}, s{t0+3}, s{t0+2}
    s_add_u32 s{t0+3}, s{t0+3}, {WS_AT}
    v_lshlrev_b32 v20, 8, v22
    v_lshl_add_u32 v20, v18, 1, v20
    v_add_u32 v{vAL}, s{t0+3}, v20
    s_lshl_b32 s{t0}, s{t0}, 1
    s_add_u32 s{t0}, s{t0}, s{t0+2}
    v_lshl_add_u32 v20, v18, 10, s{t0}
    v_lshl_add_u32 v{vOut}, v22, 4, v20
    """.split("\n")
    ADDR += f"""
    s_lshl_b32 s{t0}, s{sRB}, 2
    s_add_u32 s{t0}, s{t0}, s{sH}
    s_lshl_b32 s{t0}, s{t0}, 8
    s_lshl_b32 s{t0+1}, s{sHP}, 17
    s_add_u32 s{t0}, s{t0}, s{t0+1}
    s_add_u32 s{t0}, s{t0}, {WS_UT}
    v_and_b32 v18, 15, v1
    v_lshl_add_u32 v18, v18, 4, s{t0}
    v_lshrrev_b32 v19, 4, v1
    v_lshl_add_u32 v{vTS}, v19, 14, v18
    v_add_u32 v{vTS+1}, 0x10000, v{vTS}
    v_and_b32 v18, 15, v1
    v_lshlrev_b32 v{vRdy}, 2, v18
    s_lshl_b32 s{t0}, s{sHP}, 4
    v_add_u32 v19, s{t0}, v18
    v_lshlrev_b32 v{vF1P}, {FSH}, v19
    s_add_u32 s{t0}, s{t0}, s{sRB}
    s_lshl2_add_u32 s{t0+1}, s{t0}, s{sH}
    s_add_u32 s{t0+1}, s{t0+1}, {F4}
    s_lshl_b32 s{t0+1}, s{t0+1}, 2
    v_mov_b32 v{vF4}, s{t0+1}
    s_lshl2_add_u32 s{t0+1}, s{sHP}, s{sH}
    s_lshl4_add_u32 s{t0+1}, s{t0+1}, {F4}
    v_add_lshl_u32 v{vF4P}, v18, s{t0+1}, 2
    s_lshl_b32 s{t0}, s{t0}, {FSH}
    v_mov_b32 v{vF1}, s{t0}
    v_and_b32 v18, 31, v1
    v_lshlrev_b32 v18, 5, v18
    v_lshrrev_b32 v19, 5, v1
    v_lshl_add_u32 v19, v19, 2, v18
    s_lshl_b32 s{t0}, s{sH}, 3
    s_add_u32 s{t0}, s{t0}, {GP}
    v_add_u32 v{vGPw}, s{t0}, v19
    v_add_u32 v{vGPr}, {GP}, v18
    s_lshr_b32 s{t0}, s2, 3
    s_lshl_b32 s{t0}, s{t0}, 2
    s_add_u32 s{t0}, s{t0}, s{sH}
    s_lshl_b32 s{t0}, s{t0}, 12
    s_lshr_b32 s{t0+1}, s{sHP}, 3
    s_lshl_b32 s{t0+1}, s{t0+1}, 9
    s_add_u32 s{t0}, s{t0}, s{t0+1}
    v_bfe_u32 v18, v1, 2, 2
    v_lshl_add_u32 v18, v18, 10, s{t0}
    v_and_b32 v19, 3, v1
    v_lshl_add_u32 v{vWoP}, v19, 7, v18
    """.split("\n") + [f"v_mov_b32 v{vA+j}, 0" for j in range(16)]
    if OPT["gath"]:
        ADDR += f"""
        s_lshl_b32 s{t0}, s{sH}, 19
        s_lshl_b32 s{t0+1}, s{sCH}, 1
        s_add_u32 s{t0}, s{t0}, s{t0+1}
        s_add_u32 s{t0}, s{t0}, 4096
        v_lshl_add_u32 v{vUL}, v1, 13, s{t0}
        s_lshl_b32 s{t0}, s{sH}, 10
        s_sub_u32 s{t0}, {UR+4080}, s{t0}
        v_lshlrev_b32 v18, 4, v1
        v_sub_u32 v{vUW}, s{t0}, v18
        s_mov_b32 s94, 0x05040100
        s_mov_b32 s95, 0x07060302
        """.split("\n")
    ADDR = [x.strip() for x in ADDR if x.strip()]
    def GATEF():
        E("s_waitcnt lgkmcnt(0)")
        for j in range(4):
            E(f"v_dot2_f32_bf16 v{vG}, v{vXF+j}, v{vGW+j}, v{vG}")
        E(f"s_nop 2\nds_write_b32 v{vGPw}, v{vG}")
    def SIG():
        E(f"""
        ds_read_b128 v[128:131], v{vGPr}
        ds_read_b128 v[132:135], v{vGPr} offset:16
        s_waitcnt lgkmcnt(0)
        v_add_f32 v128, v128, v129
        v_add_f32 v130, v130, v131
        v_add_f32 v132, v132, v133
        v_add_f32 v134, v134, v135
        v_add_f32 v128, v128, v130
        v_add_f32 v132, v132, v134
        v_add_f32 v128, v128, v132
        v_mul_f32 v128, {fbits(-log2e)}, v128
        v_exp_f32 v128, v128
        s_nop 0
        v_add_f32 v128, 1.0, v128
        v_rcp_f32 v{vg}, v128
        s_nop 0
        v_sub_f32 v{vomg}, 1.0, v{vg}
        """)
    vR = 64; vE0 = 64
    def KC1():
        lk = newlab("nk")
        E(f"s_cmp_eq_u32 s{sMH}, 0\ns_cbranch_scc0 {lk}")
        if psync: lds_wait(vCP, 2, 1)
        for j in range(4):
            E(f"ds_read_b128 {vr(vR+4*j,4)}, v{vWA} offset:{1024*j}")
        E(f"""
        s_mul_i32 s{t0}, s{sC}, {2*KGS}
        s_add_u32 s{t0}, s{t0}, {KG}
        v_lshl_add_u32 v2, v1, 4, s{t0}
        v_lshrrev_b32 v3, 1, v1
        v_mul_u32_u24 v3, {KCP}, v3
        v_and_b32 v10, 1, v1
        v_lshlrev_b32 v11, 4, v10
        v_add3_u32 v3, v3, v11, s{t0}
        v_cmp_eq_u32 {sr(t0+2,2)}, 1, v10
        s_mov_b64 exec, 1
        v_add_f32 v{vD}, s{sDs}, v{vD}
        s_waitcnt lgkmcnt(0)
        s_mov_b64 exec, 0xff
        ds_write_b128 v3, v[12:15]
        s_mov_b64 exec, -1
        """)
        for j in range(15):
            E(f"v_add_f32 v{vD+j}, v{vD+j}, v{vR+j}")
        E(f"""
        v_cndmask_b32 v10, v{vD+11}, v{vD+12}, {sr(t0+2,2)}
        v_cndmask_b32 v11, v{vD+13}, v{vD+14}, {sr(t0+2,2)}
        """)
        D = lambda j: vD + j
        pats = [[(D(0), D(1)), (D(2), D(3)), (D(4), D(5)), (D(6), D(7))],
                [(D(8), D(8)), (D(8), D(9)), (D(9), D(9)), (D(10), D(10))],
                [(D(11), D(11)), (D(11), D(11)), (10, D(12)), (D(12), D(12))],
                [(D(13), D(13)), (D(13), D(13)), (11, D(14)), (D(14), D(14))]]
        for u in range(4):
            for j, (a, b) in enumerate(pats[u]):
                E(f"v_cvt_pk_bf16_f32 v{vE0+8*u+j}, v{a}, v{b}")
            E(f"ds_write_b128 v2, {vr(vE0+8*u,4)} offset:{32+1024*u}")
        for u in range(4):
            E(f"ds_read_b64 {vr(vE0+8*u+4,2)}, v2 offset:{48+1024*u}")
        E(f"{lk}:")
    def KC2():
        lk = newlab("nk")
        E(f"s_cmp_eq_u32 s{sMH}, 0\ns_cbranch_scc0 {lk}\ns_waitcnt lgkmcnt(0)")
        for u in range(4):
            b = vE0 + 8 * u; o = 96 + 12 * (u & 1)
            for j in range(4):
                E(f"v_alignbit_b32 v{o+j}, v{b+j+1}, v{b+j}, 16")
            E(f"ds_write_b128 v2, {vr(o,4)} offset:{32+1024*u+KCP}")
            for j in range(4):
                E(f"v_mov_b32 v{o+4+j}, v{b+j+1}")
            E(f"ds_write_b128 v2, {vr(o+4,4)} offset:{32+1024*u+2*KCP}")
            for j in range(4):
                E(f"v_alignbit_b32 v{o+8+j}, v{b+j+2}, v{b+j+1}, 16")
            E(f"ds_write_b128 v2, {vr(o+8,4)} offset:{32+1024*u+3*KCP}")
            if u == 0:
                E(f"""
                v_lshlrev_b32 v10, 16, v{b}
                s_mov_b64 exec, 1
                ds_write_b32 v2, v10 offset:{28+KCP}
                ds_write_b32 v2, v{b} offset:{28+2*KCP}
                ds_write_b32 v2, v10 offset:{24+3*KCP}
                ds_write_b32 v2, v{o} offset:{28+3*KCP}
                s_mov_b64 exec, -1
                """)
        E(f"{lk}:")
    def gate_glue(i):
        E("s_waitcnt vmcnt(0) lgkmcnt(0)" if i == 0 else "s_waitcnt lgkmcnt(0)")
        if OPT.get("hst"): stamp("h")
        E("s_barrier")
        if i == 0:
            lq = newlab("nr")
            E(f"""
            s_cmp_eq_u32 s{sLead}, 7
            s_cbranch_scc0 {lq}
            s_lshl_b32 s{sSPIN}, s2, 5
            v_add_u32 v10, s{sSPIN}, v1
            v_lshlrev_b32 v10, {FSH}, v10
            s_lshl_b32 s{sSPIN}, s2, 9
            s_add_u32 s{sSPIN}, s{sSPIN}, {4*F3}
            v_lshl_add_u32 v11, v1, 3, s{sSPIN}
            global_store_dwordx2 v11, v[12:13], {sr(pFL,2)} sc1
            s_bfm_b64 exec, 32, 0
            global_store_dword v10, v12, {sr(pFL,2)} sc1
            s_mov_b64 exec, -1
            {lq}:
            """)
        if i == 2:
            lq = newlab("nr")
            E(f"""
            s_cmp_eq_u32 s{sLead}, 7
            s_cbranch_scc0 {lq}
            s_lshl_b32 s{sSPIN}, s2, 2
            v_mov_b32 v10, s{sSPIN}
            v_mov_b32 v11, 1
            s_waitcnt vmcnt(0)
            """)
            put_flag(10, 11, pDbg)
            E(f"{lq}:")
        if i >= 1:
            for j in range(4):
                E(f"v_dot2_f32_bf16 v{vG}, v{vXF+j}, v{vGW+j}, v{vG}")
        slot = i % NS
        E(f"ds_read_b128 {vr(vXF,4)}, v{vGA0} offset:{slot*SLOT}")
        E(f"ds_read_b128 {vr(vGW,4)}, v{vGWA} offset:{128*i}")
        if not OPT["gath"]: E(f"""
        s_cmp_eq_u32 s{sUW}, {i}
        s_cbranch_scc0 L_ut{i}
        ds_read_b64_tr_b16 {vr(vU,2)}, v{vTA}
        ds_read_b64_tr_b16 {vr(vU+2,2)}, v{vTA+3}
        ds_read_b64_tr_b16 {vr(vU+4,2)}, v{vTA+1}
        ds_read_b64_tr_b16 {vr(vU+6,2)}, v{vTA+2}
        L_ut{i}:
        """)
    E(ADDR)
    tot = sum(c for c, _ in K); nw = OPT["kw"]
    pre = tot * OPT["kpre"] / 100
    segs = [[] for _ in range(9)]; acc = 0
    for c, x in K:
        segs[0 if acc < pre else 1 + min(nw - 1, int((acc - pre) * nw / (tot - pre)))].append(x); acc += c
    items = [D1, D2, D3, KC1, KC2]
    def place(w):
        for it, p in zip(items, PL):
            if p == w: it()
    E(segs[0])
    for i in range(8):
        gate_glue(i)
        if i == OPT["wqpf"]:
            E(f"s_mov_b64 exec, 0xffff\nglobal_load_dword v167, v{vWqP}, {sr(pW,2)}\ns_mov_b64 exec, -1")
        E(segs[i + 1])
    stamp("h")
    GATEF()
    uts = f"""
    global_store_dwordx4 v{vTS}, {vr(vU,4)}, {sr(pWs,2)} sc1
    global_store_dwordx4 v{vTS+1}, {vr(vU+4,4)}, {sr(pWs,2)} sc1
    """
    E(f"global_load_dword v{vTm}, v{vRdy}, {sr(pDbg,2)} sc1")
    place(0)
    E(f"s_setprio {OPT['prioq']}\ns_waitcnt lgkmcnt(0)\ns_barrier")
    stamp("h")
    if not OPT["gath"] and not OPT["utl"]: E(uts)
    SIG()
    place(1)
    E("s_barrier")
    place(2)
    assert OPT["ackn"] > 16 - OPT["lq"]
    E(f"s_setprio {OPT['prio']}\ns_waitcnt vmcnt(0)\ns_barrier")
    stamp("h")
    lq = newlab("nf"); lr = newlab("rdy")
    E(f"""
    s_cmp_lg_u32 s{sH}, 1
    s_cbranch_scc1 {lq}
    v_cmp_ne_u32 vcc, 0, v{vTm}
    s_nop 1
    s_cmp_eq_u64 vcc, -1
    s_cbranch_scc1 {lr}
    """)
    poll_global(vRdy, pDbg, vTm)
    E(f"{lr}:")
    put_flag(vF1, vOne)
    E(f"{lq}:")
    place(3)
    E("s_barrier")
    place(4)
    lq = newlab("nf")
    E(f"s_cmp_lg_u32 s{sH}, 1\ns_cbranch_scc1 {lq}")
    poll_global(vF1P, pFL, vTm)
    E(f"{lq}:")
    E("s_setprio 0\ns_barrier")
    stamp("h")
    late = OPT["utl"] and not OPT["gath"]
    if PL[0] == 5: D1()
    if late: E(uts)
    E(f"s_setprio {OPT['prio']}")
    if PL[1] == 5: D2()
    if PL[2] == 5: D3()
    if late:
        E("s_waitcnt vmcnt(0)")
        put_flag(vF4, vOne)
    if PL[3] == 5: KC1()
    if PL[4] == 5: KC2()
    if late:
        lds_arrive(vCA, vOne)
        lds_wait(vCA, vTm, 4)
        E("s_waitcnt vmcnt(0)")
        poll_global(vF4P, pFL, vTm)
    if OPT["gath"]:
        for j in range(8):
            E(f"global_load_dword v{vU+j}, v{vUL}, {sr(pX,2)} offset:{1024*j-4096}\ns_waitcnt vmcnt({OPT['gd'] if j < 7 else 0})")
        E(f"s_setprio {OPT['prio']}")
        for j in range(4):
            E(f"v_perm_b32 v{12+j}, v{vU+6-2*j}, v{vU+7-2*j}, s94")
            E(f"v_perm_b32 v{16+j}, v{vU+6-2*j}, v{vU+7-2*j}, s95")
        E(f"ds_write_b128 v{vUW}, v[12:15]\nds_write_b128 v{vUW}, v[16:19] offset:{URS}")
    else: E(f"""
    global_load_dwordx4 v[12:15], v{vUL}, {sr(pWs,2)} sc1
    global_load_dwordx4 v[16:19], v{vUL}, {sr(pWs,2)} offset:2048 sc1
    s_waitcnt vmcnt(0)
    s_setprio {OPT['prio']}
    ds_write_b128 v{vUW}, v[12:15] offset:512
    ds_write_b128 v{vUW}, v[16:19]
    """)
    lds_arrive(vCA, vOne)
    lds_wait(vCA, vTm, 8 if late else 4)
    stamp("h")
    vY = 64
    vF = [96, 192]
    def creads(r):
        f = vF[r & 1]; o = []
        for gmm in range(8):
            o.append(f"ds_read_b64 {vr(f+4*gmm,2)}, v{vAA} offset:{512*gmm+64*r}")
            o.append(f"ds_read_b64 {vr(f+4*gmm+2,2)}, v{vAA} offset:{512*gmm+64*r+8}")
            o.append(f"ds_read_b128 {vr(f+32+4*gmm,4)}, v{vBA} offset:{3584-512*gmm+64*r}")
        return o
    E(creads(0))
    E(f"s_setprio {OPT.get('prio3', OPT['prio'])}")
    for r in range(4):
        f = vF[r & 1]
        nxt = creads(r + 1) if r < 3 else []
        if r == 2 and OPT["wopf"]:
            E(f"s_mov_b64 exec, 0xffff\nglobal_load_dword v20, v{vWoP}, {sr(pWo,2)}\ns_mov_b64 exec, -1")
        E("s_waitcnt lgkmcnt(0)")
        seen = set()
        for gmm in range(8):
            for dl in range(8 - gmm):
                tau = gmm + dl
                c = "0" if (r == 0 and tau not in seen) else vr(vY + 4 * tau, 4)
                seen.add(tau)
                if not OPT.get("noconv"): E(f"v_mfma_f32_16x16x32_bf16 {vr(vY+4*tau,4)}, {vr(f+4*gmm,4)}, {vr(f+32+4*dl,4)}, {c}")
                if nxt: E(nxt.pop(0))
    E(f"s_setprio {OPT['prio']}")
    l1 = newlab("c1"); l2 = newlab("c2")
    E(f"s_nop 5\ns_cmp_eq_u32 s{sMH}, 0\ns_cbranch_scc0 {l1}")
    def conv_fin(send, keep):
        for j in range(4):
            E(f"ds_write_b128 v{vCW}, {vr(send+4*j,4)} offset:{1024*j}")
        lds_arrive(vCP, vOne)
        lds_wait(vCP, vTm, 2 + psync)
        for j in range(4):
            E(f"ds_read_b128 {vr(96+4*j,4)}, v{vCR} offset:{1024*j}")
        E("s_waitcnt lgkmcnt(0)")
        for j in range(16):
            E(f"v_add_f32 v{96+j}, v{keep+j}, v{96+j}")
    conv_fin(vY + 16, vY)
    E(f"s_branch {l2}\n{l1}:")
    conv_fin(vY, vY + 16)
    E(f"{l2}:")
    for j in range(4):
        E(f"v_cvt_pk_bf16_f32 v{112+2*j}, v{96+4*j}, v{97+4*j}\nv_cvt_pk_bf16_f32 v{113+2*j}, v{98+4*j}, v{99+4*j}")
        E(f"global_store_dwordx2 v{vAT}, {vr(112+2*j,2)}, {sr(sAT,2)} sc1")
        if j < 3: E(f"s_add_u32 s{sAT}, s{sAT}, {8*32768}\ns_addc_u32 s{sAT+1}, s{sAT+1}, 0")
    E("s_waitcnt vmcnt(0)")
    put_flag(vF3, vOne)
    stamp("h")
    vWo = 128
    sO = t0 + 2
    WD = OPT["wod"]
    for hd in range(0 if OPT.get("nowo") else 32 + WD):
        if hd < 32:
            if hd % 4 == 0: E(f"s_add_u32 m0, s{sWst}, {(hd%WSL)*1024}")
            E(f"s_mov_b32 s{sO}, {hd*16384-(hd%4)*1024}")
            E(f"buffer_load_dwordx4 v{vWoG}, {sr(SRDW,4)}, s{sO} offen offset:{(hd%4)*1024} lds")
        r = hd - WD
        if r >= 0:
            E(f"s_waitcnt vmcnt({min(WD, 31-r)}) lgkmcnt(8)")
            E(f"ds_read_b64_tr_b16 {vr(vWo+4*r,2)}, v{vWoL} offset:{1024*(r%WSL)}")
            E(f"ds_read_b64_tr_b16 {vr(vWo+4*r+2,2)}, v{vWoL} offset:{1024*(r%WSL)+512}")
    E("s_waitcnt lgkmcnt(0)")
    stamp("h")
    poll_global(vF3P, pFL, vTm)
    for r in range(16):
        E(f"global_load_short_d16_hi v{vA+r}, v{vAL}, {sr(pWs,2)} offset:{(8*(r>>2)+(r&3))*64} sc1")
    E("s_waitcnt vmcnt(0)")
    stamp("h")
    E("s_barrier")
    for r in range(16):
        E(f"v_mul_f32 v{vA+r}, v{vg}, v{vA+r}")
    E("s_barrier")
    stamp("h")
    vB = 64
    def ord_(hd): return f"ds_read_b128 {vr(vB+4*(hd%8),4)}, v{vOL} offset:{1024*hd}"
    E("s_barrier")
    stamp("h")
    for j in range(8): E(ord_(j))
    for hd in range(32):
        out = min(hd + 4, 31) - hd if hd >= 4 else 7 - hd
        E(f"s_waitcnt lgkmcnt({out if hd < 4 else min(3, 31-hd)})")
        E(f"v_mfma_f32_32x32x16_bf16 {vr(vAcc,16)}, {vr(vWo+4*hd,4)}, {vr(vB+4*(hd%8),4)}, {'0' if hd == 0 else vr(vAcc,16)}")
        nx = hd + 4
        if 8 <= nx < 32:
            if nx % 8 == 0: E("s_barrier")
            E(ord_(nx))
    E("s_nop 11")
    for r in range(16):
        E(f"v_fma_f32 v{vAcc+r}, v{vAcc+r}, v{vomg}, v{vA+r}")
    for j in range(8):
        E(f"v_cvt_pk_bf16_f32 v{vB+j}, v{vAcc+2*j}, v{vAcc+2*j+1}")
    E("s_nop 1")
    for a in (0, 1, 4, 5):
        E(f"v_permlane32_swap_b32 v{vB+a}, v{vB+2+a}")
    fl = ["", "sc1", "nt", "sc0 sc1"][OPT["outsc"]]
    E(f"global_store_dwordx4 v{vOut}, {vr(vB,4)}, {sr(pOut,2)} {fl}\nglobal_store_dwordx4 v{vOut}, {vr(vB+4,4)}, {sr(pOut,2)} offset:32 {fl}")
    if STAMP:
        E("s_waitcnt vmcnt(0)")
    stamp("h")
    stamp_flush("h"); spin_end("h")
    E("s_endpgm")

hdr = open(f"cdna_kernels/{NAME}.s.ref").read().split("; Override launch")[0]
prologue(); main_wave()
if OPT["lay"]: helper_wave()
E("L_end:\ns_endpgm")
out = hdr + f"""; @launch grid=(256,1,1) block=(512,1,1) lds={LDS_BYTES}
.amdgcn_target "amdgcn-amd-amdhsa--gfx950"
.text
.globl {NAME}_kernel
.p2align 8
.type {NAME}_kernel,@function
{NAME}_kernel:
""" + "\n".join(L) + f"""
.section .rodata,"a"
.p2align 6
.amdhsa_kernel {NAME}_kernel
  .amdhsa_next_free_vgpr 256
  .amdhsa_next_free_sgpr 102
  .amdhsa_accum_offset 256
  .amdhsa_group_segment_fixed_size 0
  .amdhsa_kernarg_size 128
  .amdhsa_user_sgpr_count 2
  .amdhsa_user_sgpr_kernarg_segment_ptr 1
  .amdhsa_system_sgpr_workgroup_id_x 1
.end_amdhsa_kernel
"""
open(sys.argv[1], "w").write(out)
```

```python
import sys, math, struct

NAME = "gated_mix__ssm_conv_s4__mha_block__prompt"
OPT = dict(stamp=0, rot=3, fs=128, spin=200000, prio=2, outsc=0, prio3=0, pf=1, tlb=1, ksplit=90, pk0=0, wod=4, wopf=1, lay=2, prioq=0, eb=2, lq=7, epc=10, ackn=26, ute=0, kcp=1, gath=0, gd=0, d1=3, d1w=4, pl=55555, utl=1, kpre=5, kw=7, clm=1, clo=3, rdyw=5, wqpf=2, sigl=1)
for a in sys.argv[2:]:
    k, v = a.split("=")
    OPT[k] = int(v)
STAMP = OPT["stamp"]
FS = OPT["fs"]
FSH = int(math.log2(FS))

L = []
def E(s):
    if isinstance(s, list): s = "\n".join(s)
    for x in s.split("\n"):
        x = x.strip()
        if x:
            L.append(("" if x.endswith(":") else "    ") + x)
def fbits(x): return "0x%08x" % struct.unpack("<I", struct.pack("<f", x))[0]
def vr(a, n): return f"v[{a}:{a+n-1}]"
def sr(a, n): return f"s[{a}:{a+n-1}]"

WS_KV = 0
WS_OF = 4 << 20
WS_AT = 6 << 20
WS_FL = 8 << 20
WS_UT = 10 << 20
WS_ST = 16 << 20
F1, F2 = 0, 256
F3 = 512 * FS // 4
F4 = F3 + 1024
KG = 0; KGS = 8704
KCP = 4160
UR = KG + 4 * KGS; URS = 4576
GP = UR + 2 * URS
GW = GP + 1024
CNT = GW + 2048
RING = CNT + 64
SLOT = 24576; WPART = 6144; NS = 3
WQ = RING + NS * SLOT
LDS_BYTES = WQ + 32768
EXCH = RING; RED = WQ; REDS = 4608
CRED = RING; WST = RING + 16384; WSL = 12; OFL = RING
assert RING % 256 == 0 and WST + 4 * WSL * 1024 <= WQ and LDS_BYTES <= 163840
sW, sHP, sRB, sCH, sROT = 3, 4, 5, 6, 7
SRDX, SRDW = 8, 12
pX, pAre, pAim, pBre, pBim, pCre, pCim, pLdt = 16, 18, 20, 22, 24, 26, 28, 30
pDsk, pW, pWo, pGw, pOut, pDbg, pWs = 32, 36, 38, 40, 42, 44, 46
pFL = 34
sT = 48
sSPIN = 62
sST = 64

nstamp = {"m": 0, "h": 0}
SPM, SPH = OPT.get("spm", -1), OPT.get("sph", -1)
def spin_end(role):
    if (SPM if role == "m" else SPH) < 0: return
    l = newlab("sp")
    E(f"{l}:\ns_memrealtime s[98:99]\ns_waitcnt lgkmcnt(0)\ns_sub_u32 s98, s98, s96\ns_cmp_lt_u32 s98, 4000\ns_cbranch_scc1 {l}")
def stamp(role):
    if SPM >= 0 or SPH >= 0:
        i = nstamp[role]; nstamp[role] += 1
        if i == (SPM if role == "m" else SPH): E("s_memrealtime s[96:97]\ns_waitcnt lgkmcnt(0)")
        return
    if not STAMP or nstamp[role] >= 14: return
    i = nstamp[role]; nstamp[role] += 1
    E(f"s_memrealtime {sr(sST+2*i,2)}\ns_waitcnt lgkmcnt(0)")
def stamp_flush(role):
    if not STAMP: return
    E(f"s_lshl_b32 s{sT}, s2, 3\ns_add_u32 s{sT}, s{sT}, s{sW}\ns_lshl_b32 s{sT}, s{sT}, 6\ns_add_u32 s{sT}, s{sT}, {WS_ST}\nv_mov_b32 v2, s{sT}")
    for i in range(nstamp[role]):
        E(f"v_mov_b32 v3, s{sST+2*i}\nglobal_store_dword v2, v3, {sr(pWs,2)} offset:{4*i}")
    E(f"s_getreg_b32 s{sT}, hwreg(HW_REG_XCC_ID)\nv_mov_b32 v3, s{sT}\nglobal_store_dword v2, v3, {sr(pWs,2)} offset:60")

lab = [0]
def newlab(p):
    lab[0] += 1
    return f"L_{p}_{lab[0]}"

def poll_global(vaddr, base, vtmp):
    l = newlab("poll"); d = newlab("polld")
    E(f"""
    s_mov_b32 s{sSPIN}, {OPT['spin']}
    {l}:
    global_load_dword v{vtmp}, v{vaddr}, {sr(base,2)} sc1
    s_sub_u32 s{sSPIN}, s{sSPIN}, 1
    s_cbranch_scc1 {d}
    s_waitcnt vmcnt(0)
    v_cmp_ne_u32 vcc, 0, v{vtmp}
    s_nop 1
    s_cmp_eq_u64 vcc, -1
    s_cbranch_scc0 {l}
    {d}:
    s_waitcnt vmcnt(0)
    """)
def put_flag(vaddr, vone, base=None):
    E(f"""
    s_mov_b64 exec, 1
    global_store_dword v{vaddr}, v{vone}, {sr(pFL if base is None else base,2)} sc1
    s_mov_b64 exec, -1
    """)
def lds_arrive(vaddr, vone):
    E(f"""
    s_mov_b64 exec, 1
    ds_add_u32 v{vaddr}, v{vone}
    s_mov_b64 exec, -1
    """)
def lds_wait(vaddr, vtmp, n):
    l = newlab("lw"); d = newlab("lwd")
    E(f"""
    s_mov_b32 s{sSPIN}, {OPT['spin']*8}
    {l}:
    ds_read_b32 v{vtmp}, v{vaddr}
    s_sub_u32 s{sSPIN}, s{sSPIN}, 1
    s_cbranch_scc1 {d}
    s_waitcnt lgkmcnt(0)
    v_readfirstlane_b32 s{sSPIN+1}, v{vtmp}
    s_nop 1
    s_cmp_ge_u32 s{sSPIN+1}, {n}
    s_cbranch_scc0 {l}
    {d}:
    s_waitcnt lgkmcnt(0)
    """)

def helper_entry():
    sH, sC, sMH, sD, sLd, sDs, t0 = sT, sT + 1, sT + 2, sT + 5, sT + 6, sT + 7, sT + 8
    E(f"L_h0:\ns_setprio {OPT['prio']}\ns_sub_u32 s{sH}, s{sW}, 4")
    if OPT["pf"]:
        E(f"""
        s_getpc_b64 s[8:9]
        L_pc:
        s_andn2_b32 s10, s2, 7
        s_lshl1_add_u32 s10, s{sH}, s10
        v_and_b32 v2, 1, v1
        v_add_lshl_u32 v2, v2, s10, 7
        v_min_u32 v2, L_end-L_pc, v2
        v_mov_b32 v3, 0
        v_lshl_add_u64 v[2:3], v[2:3], 0, s[8:9]
        global_load_dword v167, v[2:3], off
        """)
    if OPT["gath"]:
        E(f"s_and_b32 s{sCH}, s2, 7\ns_lshl_b32 s{sCH}, s{sCH}, 5\ns_lshr_b32 s{t0}, s2, 3\ns_or_b32 s{sCH}, s{sCH}, s{t0}")
    else:
        E(f"s_lshl4_add_u32 s{sCH}, s{sHP}, s{sRB}")
    E(f"""
    s_lshl2_add_u32 s{t0}, s{sCH}, s{sH}
    s_lshl_b32 s{t0}, s{t0}, 7
    v_lshl_add_u32 v2, v1, 1, s{t0}
    s_lshl_b32 s{t0+1}, s{sCH}, 2
    s_and_b32 s{sMH}, s{sH}, 1
    s_lshl_b32 s{t0}, s{sMH}, 10
    s_add_u32 m0, s{t0}, {GW}
    v_lshlrev_b32 v3, 4, v1
    s_waitcnt lgkmcnt(0)
    """)
    for j, p in enumerate((pAre, pAim, pBre, pBim, pCre, pCim)):
        E(f"global_load_ushort v{4+j}, v2, {sr(p,2)}")
    E(f"""
    global_load_lds_dwordx4 v3, {sr(pGw,2)}
    {"s_barrier" if OPT["eb"] else ""}
    s_load_dword s{sLd}, {sr(pLdt,2)}, s{t0+1}
    s_load_dword s{sDs}, {sr(pDsk,2)}, s{t0+1}
    s_lshl_b32 s{sCH}, s{sCH}, 1
    """)

def prologue():
    if STAMP:
        E(f"s_memrealtime {sr(sST,2)}"); nstamp["m"] = nstamp["h"] = 1
    E(f"""
    s_cmpk_ge_u32 s2, 0x100
    s_cbranch_scc1 L_end
    s_load_dwordx16 s[16:31], s[0:1], 0
    s_load_dwordx16 s[32:47], s[0:1], 64
    v_lshrrev_b32 v2, 6, v0
    v_and_b32 v1, 63, v0
    v_readfirstlane_b32 s{sW}, v2
    s_bfe_u32 s{sHP}, s2, 0x30003
    s_and_b32 s{sT}, s2, 1
    s_lshl3_add_u32 s{sHP}, s{sT}, s{sHP}
    s_lshr_b32 s{sRB}, s2, 6
    s_and_b32 s{sT}, s2, 6
    s_lshl1_add_u32 s{sRB}, s{sT}, s{sRB}
    """)
    if OPT["rot"] == 0:
        E(f"s_mov_b32 s{sROT}, 0")
    elif OPT["rot"] == 1:
        E(f"s_xor_b32 s{sROT}, s{sHP}, s{sRB}\ns_and_b32 s{sROT}, s{sROT}, 1\ns_lshl_b32 s{sROT}, s{sROT}, 2")
    elif OPT["rot"] == 2:
        E(f"s_lshl1_add_u32 s{sROT}, s{sRB}, s{sHP}\ns_and_b32 s{sROT}, s{sROT}, 7")
    else:
        E(f"s_lshl1_add_u32 s{sROT}, s{sRB}, s{sHP}\ns_and_b32 s{sROT}, s{sROT}, 6")
    if OPT["lay"] == 2:
        E(f"s_cmp_lt_u32 s{sW}, 4\ns_cbranch_scc1 L_m0")
        helper_entry()
        E("s_branch L_helper\nL_m0:")
    else:
        E(f"s_cmp_ge_u32 s{sW}, 4\ns_cbranch_scc1 L_h0")

def main_wave():
    vXD, vWD, vXA, vWA, vQA = 4, 8, 10, 14, 16
    vFB = 24
    aK, aV, aQ = 48, 64, 80
    vP = 96
    vXF = 128
    sXO, sWO, sM0, sX, sZ, sQS = 92, 93, 94, 95, 100, 101
    sKVb, sKV, sJ, sCnt, sMask = sT + 2, sT + 4, sT + 6, sT + 7, sT + 8
    ta, tb, tc = sT + 10, sT + 11, sT + 12
    vO, vKV = 128, 192
    (vIDX, vKA, vVA, vSA, vSB, vSV, vEW, vER0, vER1, vERV, vRW, vRWl, vRR, vRRl, vOA, vOB) = range(112, 128)
    vF2, vOne, vF2P, vOD, vOnes, vZer = range(17, 23)
    vQ = 96; SA, SB = 24, 40; vT = 56
    E(f"""
    s_lshl2_add_u32 s{sT}, s{sRB}, s{sW}
    s_lshl_b32 s{sT}, s{sT}, 15
    v_lshrrev_b32 v2, 3, v1
    v_lshl_add_u32 v2, v2, 10, s{sT}
    v_lshrrev_b32 v3, 4, v1
    v_xor_b32 v3, v3, v1
    v_and_b32 v3, 7, v3
    v_lshl_add_u32 v{vXD}, v3, 4, v2
    v_xor_b32 v{vXD+1}, 64, v{vXD}
    s_movk_i32 s{sT}, 7168
    v_add_u32 v{vXD+1}, s{sT}, v{vXD+1}
    s_movk_i32 s{sT}, 14336
    v_add_u32 v{vXD+2}, s{sT}, v{vXD}
    v_add_u32 v{vXD+3}, s{sT}, v{vXD+1}
    v_lshrrev_b32 v2, 2, v0
    v_mul_u32_u24 v2, 3072, v2
    v_and_b32 v3, 3, v1
    s_lshl2_add_u32 s{sT}, s{sHP}, 64
    v_add_u32 v3, s{sT}, v3
    v_lshl_add_u32 v{vWD}, v3, 4, v2
    s_mul_i32 s{sM0}, s{sW}, {WPART}
    s_mov_b32 s{SRDX+2}, 0x200000
    s_mov_b32 s{SRDX+3}, 0x00020000
    s_mov_b64 {sr(SRDW+2,2)}, {sr(SRDX+2,2)}
    """)
    def dma(i, first=False):
        slot = i % NS
        g = []
        for seg in range(2):
            g.append([f"buffer_load_dwordx4 v{vWD}, {sr(SRDW,4)}, s{sWO} offen offset:{seg*1024} lds"])
        for j in range(4):
            g.append([f"buffer_load_dwordx4 v{vXD+j}, {sr(SRDX,4)}, s{sXO} offen offset:{j*1024} lds"])
        st = sROT if i == 0 else sT
        pre = [] if i == 0 else [f"s_add_u32 s{sT}, s{sROT}, {i}", f"s_and_b32 s{sT}, s{sT}, 7"]
        pre += [f"s_add_u32 m0, s{sM0}, {RING+slot*SLOT+4096}", f"s_mul_i32 s{sWO}, s{st}, 196608"]
        if first:
            pre += ["s_waitcnt lgkmcnt(0)", f"s_mov_b64 {sr(SRDW,2)}, {sr(pW,2)}", f"s_mov_b64 {sr(SRDX,2)}, {sr(pX,2)}"]
        g[0] = pre + g[0]
        g[2] = [f"s_add_u32 m0, s{sM0}, {RING+slot*SLOT}", f"s_lshl_b32 s{sXO}, s{st}, 7"] + g[2]
        return g
    for gi, g in enumerate(dma(0, True)):
        if gi == 0 and OPT["eb"] == 2: g.insert(len(g) - 1, "s_barrier")
        E(g)
    if OPT["eb"] == 1: E("s_barrier")
    if OPT["lay"] == 0:
        for g in dma(1): E(g)
        E("s_branch L_m1")
        helper_entry(); helper_wave()
        E("L_m1:")
        stamp("m")
    elif OPT["lay"] == 2:
        stamp("m")
        held = dma(1)
        for g in held[:OPT["d1"]]: E(g)
        held = held[OPT["d1"]:]
    else:
        E("s_branch L_m1")
        helper_entry()
        E("s_branch L_helper\nL_m1:")
        stamp("m")
        for g in dma(1): E(g)
    if OPT["tlb"]:
        E(f"""
        s_mov_b32 s{ta}, {WS_FL + 0x100000}
        s_load_dword s18, {sr(pWs,2)}, s{ta}
        s_load_dword s19, {sr(pDbg,2)}, 128
        s_load_dword s20, {sr(pOut,2)}, 0
        s_load_dword s21, {sr(pWo,2)}, 0
        """)
    E(f"""
    s_add_u32 s{pFL}, s{pWs}, {WS_FL}
    s_addc_u32 s{pFL+1}, s{pWs+1}, 0
    s_add_u32 s{ta}, s{sM0}, {RING}
    v_and_b32 v2, 31, v1
    v_lshl_add_u32 v2, v2, 7, s{ta}
    v_bfe_u32 v3, v1, 1, 3
    v_lshrrev_b32 v{vXA+1}, 5, v1
    v_xor_b32 v3, v3, v{vXA+1}
    v_lshl_add_u32 v{vXA}, v3, 4, v2
    v_xor_b32 v{vXA+1}, 32, v{vXA}
    v_xor_b32 v{vXA+2}, 64, v{vXA}
    v_xor_b32 v{vXA+3}, 0x60, v{vXA}
    v_lshrrev_b32 v2, 5, v1
    v_lshlrev_b32 v2, 3, v2
    v_bfe_u32 v3, v1, 2, 2
    v_add_u32 v2, v2, v3
    v_lshlrev_b32 v2, 6, v2
    v_and_b32 v3, 3, v1
    v_lshl_add_u32 v2, v3, 3, v2
    v_bfe_u32 v3, v1, 4, 1
    v_lshl_add_u32 v2, v3, 5, v2
    v_add_u32 v{vWA}, {RING+4096}, v2
    v_add_u32 v{vWA+1}, {RING+4096+2*SLOT}, v2
    v_add_u32 v{vQA}, {WQ}, v2
    """)
    E(f"""
    s_and_b32 s{sX}, s{sW}, 1
    s_lshr_b32 s{sZ}, s{sW}, 1
    s_mov_b32 s{sQS}, {fbits(0.25 * math.log2(math.e))}
    s_lshl2_add_u32 s{ta}, s{sRB}, s{sW}
    s_lshl_b32 s{ta}, s{ta}, 11
    s_lshl_b32 s{tb}, s{sHP}, 18
    s_add_u32 s{ta}, s{ta}, s{tb}
    v_lshlrev_b32 v{vKA}, 4, v1
    v_add_u32 v{vSA}, s{ta}, v{vKA}
    v_add_u32 v{vSB}, 0x20000, v{vSA}
    v_and_b32 v{vVA}, 15, v1
    v_lshrrev_b32 v2, 5, v1
    v_lshl_add_u32 v{vVA}, v2, 4, v{vVA}
    v_lshlrev_b32 v{vVA}, 4, v{vVA}
    v_bfe_u32 v2, v1, 4, 1
    v_lshlrev_b32 v2, 17, v2
    v_add3_u32 v{vSV}, v2, v{vVA}, s{ta}
    s_add_u32 s{tb}, s{sM0}, {EXCH}
    v_add_u32 v{vEW}, s{tb}, v{vKA}
    s_lshl_b32 s{ta}, s{sX}, 10
    s_add_u32 s{ta}, s{ta}, {EXCH}
    s_mul_i32 s{tb}, s{sZ}, 12288
    s_add_u32 s{tc}, s{ta}, s{tb}
    v_add_u32 v{vER0}, s{tc}, v{vKA}
    s_sub_u32 s{tc}, s{ta}, s{tb}
    s_add_u32 s{tc}, s{tc}, 12288
    v_add_u32 v{vER1}, s{tc}, v{vKA}
    s_lshl_b32 s{ta}, s{sX}, 8
    s_add_u32 s{tc}, s{ta}, s{tb}
    s_add_u32 s{tc}, s{tc}, {EXCH}
    v_add_u32 v{vERV}, s{tc}, v{vKA}
    s_lshl1_add_u32 s{ta}, s{sHP}, s{sX}
    s_lshl_b32 s{tb}, s{ta}, 17
    s_lshl_b32 s{tc}, s{sZ}, 12
    s_add_u32 s{tb}, s{tb}, s{tc}
    s_add_u32 s{sKVb}, s{pWs}, s{tb}
    s_addc_u32 s{sKVb+1}, s{pWs+1}, 0
    s_lshl_b32 s{sJ}, s{sRB}, 13
    s_lshl1_add_u32 s{tb}, s{sRB}, s{sZ}
    s_lshl_b32 s{tb}, s{tb}, 6
    s_add_u32 s{tb}, s{tb}, s{ta}
    s_lshl_b32 s{tb}, s{tb}, 10
    s_add_u32 s{tb}, s{tb}, {WS_OF}
    v_add_u32 v{vOA}, s{tb}, v{vKA}
    v_add_u32 v{vOB}, 0x8000, v{vOA}
    s_mul_i32 s{ta}, s{sW}, {REDS}
    s_add_u32 s{ta}, s{ta}, {RED}
    v_add_u32 v{vRW}, s{ta}, v{vKA}
    v_lshl_add_u32 v{vRWl}, v1, 2, s{ta}
    s_xor_b32 s{ta}, s{sW}, 2
    s_mul_i32 s{ta}, s{ta}, {REDS}
    s_add_u32 s{ta}, s{ta}, {RED}
    v_add_u32 v{vRR}, s{ta}, v{vKA}
    v_lshl_add_u32 v{vRRl}, v1, 2, s{ta}
    s_lshl_b32 s{ta}, s{sRB}, 4
    s_add_u32 s{ta}, s{ta}, {F2}
    s_add_u32 s{tb}, s{ta}, s{sHP}
    s_lshl_b32 s{tb}, s{tb}, {FSH}
    v_mov_b32 v{vF2}, s{tb}
    v_mov_b32 v{vOne}, 1
    v_and_b32 v3, 15, v1
    v_add_u32 v2, s{ta}, v3
    v_lshlrev_b32 v{vF2P}, {FSH}, v2
    s_and_b32 s{tb}, s{sHP}, 3
    s_lshl2_add_u32 s{ta}, s{sRB}, s{tb}
    s_lshl_b32 s{ta}, s{ta}, 15
    s_add_u32 s{ta}, s{ta}, {WS_OF}
    v_add_u32 v{vOD}, s{ta}, v{vKA}
    v_mov_b32 v{vIDX}, 0xdddddddd
    v_and_b32 v2, 27, v1
    v_cmp_eq_u32 vcc, 16, v2
    v_mov_b32 v2, {CNT+32}
    v_mov_b32 v{vZer}, {CNT+16}
    s_mov_b32 s{sMask}, 0x0000ffff
    s_mov_b32 s{sMask+1}, 0x0000ffff
    v_cndmask_b32 v{vOnes}, v{vZer}, v2, vcc
    s_mov_b32 s{sCnt}, 8
    """)
    def kvaddr():
        return [f"s_add_u32 s{sJ}, s{sJ}, 0x2000", f"s_and_b32 s{sJ}, s{sJ}, 0x1e000",
                f"s_add_u32 s{sKV}, s{sKVb}, s{sJ}", f"s_addc_u32 s{sKV+1}, s{sKVb+1}, 0"]
    E(kvaddr())
    def reads(n):
        i, s = n >> 2, n & 3
        slot = i % NS
        a = vWA + (slot >> 1); so = (slot & 1) * SLOT + s * WPART
        f = vFB + 8 * (n % 3)
        o = [f"ds_read_b128 {vr(vXF+4*n,4)}, v{vXA+s} offset:{slot*SLOT}"]
        for c in range(2):
            o.append(f"ds_read_b64_tr_b16 {vr(f+4*c,2)}, v{a} offset:{so+1024*c}")
            o.append(f"ds_read_b64_tr_b16 {vr(f+2+4*c,2)}, v{a} offset:{so+1024*c+256}")
        return o
    def dmaq(h):
        return [[f"s_add_u32 s{sT}, s{sROT}, {i}", f"s_and_b32 s{sT}, s{sT}, 7", f"s_add_u32 m0, s{sXO}, {WQ+4096*i}",
                 f"s_mul_i32 s{sWO}, s{sT}, 196608", f"buffer_load_dwordx4 v{vWD+1}, {sr(SRDW,4)}, s{sWO} offen lds"] for i in range(4*h, 4*h+4)]
    E(f"v_subrev_u32 v{vWD+1}, 1024, v{vWD}")
    if held:
        E(f"s_waitcnt vmcnt({OPT['d1'] + 6 - OPT['d1w']})")
        for g in held: E(g)
    E("s_waitcnt vmcnt(6)")
    if STAMP == 5: stamp("m")
    E("s_barrier")
    stamp("m")
    E(reads(0) + reads(1))
    pend = dma(2)
    E(pend.pop(0)); E(pend.pop(0))
    for n in range(32):
        f = vFB + 8 * (n % 3); x = vXF + 4 * n
        c = (lambda a: "0" if n == 0 else vr(a, 16))
        m = [f"v_mfma_f32_32x32x16_bf16 {vr(aV,16)}, {vr(x,4)}, {vr(f+4,4)}, {c(aV)}",
             f"v_mfma_f32_32x32x16_bf16 {vr(aK,16)}, {vr(f,4)}, {vr(x,4)}, {c(aK)}"]
        r = reads(n + 2) if n + 2 < 32 else []
        E(f"s_waitcnt lgkmcnt({5 if n < 31 else 0})")
        E(m[0])
        if (n + 2) % 4 == 0 and n + 2 < 32:
            b = (n + 2) >> 2
            assert not pend
            E(f"s_waitcnt vmcnt({6 if b < 7 else 4}) lgkmcnt(0)")
            if STAMP == 3: stamp("m")
            E("s_barrier")
            if STAMP == 2: stamp("m")
            if b + 2 <= 7: pend = dma(b + 2)
            else:
                pend = dmaq(b - 6)
                if b == 6: E(f"s_lshl_b32 s{sXO}, s{sW}, 10")
        E(r[:3])
        if pend: E(pend.pop(0))
        E(m[1]); E(r[3:])
        if pend: E(pend.pop(0))
    stamp("m")
    ep = [f"v_cvt_pk_bf16_f32 v{vP+j}, v{aK+2*j}, v{aK+1+2*j}" for j in range(4)]
    ep += [f"global_store_dwordx4 v{vSA}, {vr(vP,4)}, {sr(pWs,2)} sc1"]
    ep += [f"v_cvt_pk_bf16_f32 v{vP+j}, v{aK+2*j}, v{aK+1+2*j}" for j in range(4, 8)]
    ep += [f"global_store_dwordx4 v{vSB}, {vr(vP+4,4)}, {sr(pWs,2)} sc1"]
    ep += [f"v_permlane32_swap_b32 v{vP+8+a}, v{vP+10+a}" for a in (0, 1)]
    ep += [f"global_store_dwordx4 v{vSV}, {vr(vP+8,4)}, {sr(pWs,2)} offset:1024 sc1"]
    ep += [f"v_permlane32_swap_b32 v{vP+8+a}, v{vP+10+a}" for a in (4, 5)]
    ep += [f"global_store_dwordx4 v{vSV}, {vr(vP+12,4)}, {sr(pWs,2)} offset:1536 sc1"]
    LQ = OPT["lq"]
    qb = [40, 44, 24, 28, 32, 36, 64, 68, 72]
    def qread(n):
        f = qb[n % 9]
        return [f"ds_read_b64_tr_b16 {vr(f,2)}, v{vQA} offset:{1024*n}", f"ds_read_b64_tr_b16 {vr(f+2,2)}, v{vQA} offset:{1024*n+256}"]
    E("s_nop 10")
    for j in range(8):
        E(f"v_cvt_pk_bf16_f32 v{vP+8+j}, v{aV+2*j}, v{aV+1+2*j}")
    cut = OPT["epc"]
    E(ep[:cut])
    E(f"s_waitcnt vmcnt({4 + sum('store' in x for x in ep[:cut])})\ns_barrier")
    if STAMP == 4: stamp("m")
    for n in range(LQ): E(qread(n))
    E(ep[cut:])
    late = [f"ds_read_b128 {vr(vO+16*q+8+4*e,4)}, v{vZer}" for q in range(4) for e in range(2)]
    late += [f"ds_write_b128 v{vEW}, {vr(vP+4*j,4)} offset:{2048+1024*j}" for j in range(4)]
    late += [f"ds_read_b128 {vr(vKV+12*st+4+4*e,4)}, v{vOnes}" for st in range(4) for e in range(2)]
    nl = 0
    for n in range(32):
        E(f"s_waitcnt lgkmcnt({min(15, 2*min(LQ-1, 31-n) + nl)})")
        E(f"v_mfma_f32_32x32x16_bf16 {vr(aQ,16)}, {vr(qb[n%9],4)}, {vr(vXF+4*n,4)}, {'0' if n == 0 else vr(aQ,16)}")
        if n == OPT["ackn"]:
            if STAMP == 4: stamp("m")
            E("s_waitcnt vmcnt(0)\ns_barrier")
            if STAMP == 4: stamp("m")
        if n + LQ < 32:
            if n + LQ == 16:
                if STAMP == 4: stamp("m")
                E("s_waitcnt vmcnt(4)\ns_barrier")
                if STAMP == 4: stamp("m")
            E(qread(n + LQ))
        else:
            E(late[:2]); late = late[2:]; nl += 2
        r0 = vXF + 4 * (n - 1)
        for r in range(r0, r0 + 4):
            if n >= 1 and r < vKV and (r - vO) % 16 < 8: E(f"v_mov_b32 v{r}, 0")
    E(late)
    E(f"s_nop {max(0, 11 - len(late))}")
    for o in (0, 1):
        for j in range(8):
            E(f"v_mul_f32 v{aQ+8*o+j}, s{sQS}, v{aQ+8*o+j}")
        for j in range(4):
            E(f"v_cvt_pk_bf16_f32 v{aK+4*o+j}, v{aQ+8*o+2*j}, v{aQ+8*o+1+2*j}")
        E(f"ds_write_b128 v{vEW}, {vr(aK+4*o,4)} offset:{1024*o}")
    if STAMP == 4: stamp("m"); E("s_waitcnt vmcnt(0)"); stamp("m")
    E("s_waitcnt vmcnt(0) lgkmcnt(0)\ns_barrier")
    stamp("m")
    E(f"""
    ds_read_b128 {vr(vQ,4)}, v{vER1}
    ds_read_b128 {vr(vKV,4)}, v{vER0} offset:2048
    ds_read_b128 {vr(vQ+4,4)}, v{vER1} offset:6144
    s_mov_b64 exec, {sr(sMask,2)}
    ds_read_b128 {vr(vKV+4,4)}, v{vERV} offset:4096
    ds_read_b128 {vr(vKV+8,4)}, v{vERV} offset:5120
    ds_read_b128 {vr(vKV+16,4)}, v{vERV} offset:{4096+6144}
    ds_read_b128 {vr(vKV+20,4)}, v{vERV} offset:{5120+6144}
    s_mov_b64 exec, -1
    ds_read_b128 {vr(vQ+8,4)}, v{vER0}
    ds_read_b128 {vr(vQ+12,4)}, v{vER0} offset:6144
    ds_read_b128 {vr(vKV+12,4)}, v{vER0} offset:{2048+6144}
    s_waitcnt lgkmcnt(8)
    v_mfma_f32_32x32x16_bf16 {vr(SA,16)}, {vr(vKV,4)}, {vr(vQ,4)}, 0
    s_nop 10
    s_waitcnt lgkmcnt(0)
    """)
    def kload(st, par):
        return [f"global_load_dwordx4 {vr(vKV+12*st,4)}, v{vKA}, {sr(sKV,2)} offset:{par*2048} sc1"]
    def vload(st, par):
        return [f"s_mov_b64 exec, {sr(sMask,2)}",
                f"global_load_dwordx4 {vr(vKV+12*st+4,4)}, v{vVA}, {sr(sKV,2)} offset:{par*2048+1024} sc1",
                f"global_load_dwordx4 {vr(vKV+12*st+8,4)}, v{vVA}, {sr(sKV,2)} offset:{par*2048+1536} sc1",
                "s_mov_b64 exec, -1"]
    def step(t, q, mode="loop", lo=0, hi=16, extra=None):
        cur, oth = (SA, SB) if q % 2 == 0 else (SB, SA)
        tp, qp = (t, q - 1) if q else ((t - 1) % 4, 3)
        tn, qn = (t, q + 1) if q < 3 else ((t + 1) % 4, 0)
        after2, afterq, after1 = extra or ([], [], [])
        st = (t + 3) % 4; par = (t + 3) & 1
        if mode == "loop":
            if q == 0:
                after2 = vload(st, par); afterq = kload(st, par)
            if q == 1 and par == 1:
                ka = kvaddr(); after2 = ka[:2]; after1 = ka[2:]
            if q == 3:
                after2 = ["s_waitcnt vmcnt(6)"]
                if t == 2:
                    after2 += [f"s_sub_u32 s{sCnt}, s{sCnt}, 1"]; afterq = [f"s_cmp_lg_u32 s{sCnt}, 0"]
        for i in range(lo, hi):
            E(f"v_exp_f32 v{cur+i}, v{cur+i}")
            if i == 1 and not (mode == "first" and q == 0):
                E(f"v_smfmac_f32_32x32x32_bf16 {vr(vO+16*qp,16)}, {vr(vKV+12*tp+8,4)}, {vr(oth+8,8)}, v{vIDX}")
                E(after2)
            if i == 4 and not (mode == "last" and q == 3):
                E(f"v_mfma_f32_32x32x16_bf16 {vr(oth,16)}, {vr(vKV+12*tn,4)}, {vr(vQ+4*qn,4)}, 0")
                E(afterq)
            if i == 10:
                E(f"v_smfmac_f32_32x32x32_bf16 {vr(vO+16*q,16)}, {vr(vKV+12*t+4,4)}, {vr(cur,8)}, v{vIDX}")
                E(after1)
    for q in range(4): step(0, q, "first")
    E("s_barrier")
    stamp("m")
    E(kload(2, 0) + vload(2, 0) + vload(3, 1) + kload(3, 1) + kvaddr())
    E("s_branch L_attn1\n.p2align 3\nL_attn:")
    step(2, 3, lo=11)
    for t in (3, 0, 1, 2):
        if t == 1: E("L_attn1:")
        for q in range(4): step(t, q, hi=(11 if (t, q) == (2, 3) else 16))
    if OPT.get("itst"):
        E(f"s_memtime s[90:91]\ns_mov_b32 m0, s{sCnt}\ns_waitcnt lgkmcnt(0)\nv_writelane_b32 v23, s90, m0")
    E("s_cbranch_scc1 L_attn")
    step(2, 3, lo=11)
    vR = 64
    def sendw(q): return [f"ds_write_b128 v{vRW}, {vr(vO+16*q,4)} offset:{2048*q}", f"ds_write_b128 v{vRW}, {vr(vO+16*q+4,4)} offset:{2048*q+1024}",
                          f"ds_write_b32 v{vRWl}, v{vO+16*q+8} offset:{4096+256*q}"]
    recv = ["s_waitcnt lgkmcnt(0)", "s_barrier",
            f"ds_read_b32 v{vR+16}, v{vRRl} offset:4096", f"ds_read_b128 {vr(vR,4)}, v{vRR}", f"ds_read_b128 {vr(vR+4,4)}, v{vRR} offset:1024",
            f"ds_read_b32 v{vR+17}, v{vRRl} offset:4352", f"ds_read_b128 {vr(vR+8,4)}, v{vRR} offset:2048", f"ds_read_b128 {vr(vR+12,4)}, v{vRR} offset:3072"]
    step(3, 0, "last"); step(3, 1, "last")
    w0 = sendw(0)
    step(3, 2, "last", extra=(w0[:1], w0[1:2], w0[2:]))
    step(3, 3, "last", extra=(sendw(1), [], recv))
    O2, O3 = vO + 32, vO + 48
    E(f"""
    s_waitcnt lgkmcnt(3)
    v_add_f32 v{O2+8}, v{O2+8}, v{vR+16}
    v_smfmac_f32_32x32x32_bf16 {vr(O3,16)}, {vr(vKV+36+8,4)}, {vr(SB+8,8)}, v{vIDX}
    """)
    stamp("m")
    def fin(o, r, rl, dst, addr):
        if rl is not None: E(f"v_add_f32 v{o+8}, v{o+8}, v{rl}")
        E(f"v_rcp_f32 v{vT}, v{o+8}")
        if r is not None:
            for j in range(8): E(f"v_add_f32 v{o+j}, v{o+j}, v{r+j}")
        else:
            E("s_nop 0")
        for j in range(8): E(f"v_mul_f32 v{o+j}, v{o+j}, v{vT}")
        for j in range(4): E(f"v_cvt_pk_bf16_f32 v{dst+j}, v{o+2*j}, v{o+2*j+1}")
        E(f"global_store_dwordx4 v{addr}, {vr(dst,4)}, {sr(pWs,2)} sc1")
    fin(O2, vR, None, SA, vOA)
    E("s_waitcnt lgkmcnt(0)")
    fin(O3, vR + 8, vR + 17, SA + 4, vOB)
    E(f"""
    s_mov_b32 s{ta}, {fbits(2.0**-30)}
    s_mov_b32 s{tb}, {fbits(2.0**50)}
    v_min_f32 v{vT+6}, v{O2+8}, v{O3+8}
    v_max_f32 v{vT+7}, v{O2+8}, v{O3+8}
    v_cmp_lt_f32 vcc, s{ta}, v{vT+6}
    v_cmp_gt_f32 {sr(tc,2)}, s{tb}, v{vT+7}
    v_pk_mul_f32 {vr(vT+2,2)}, {vr(O2,2)}, 0 op_sel_hi:[1,0]
    s_and_b64 {sr(tc,2)}, {sr(tc,2)}, vcc
    """)
    for j in (2, 4, 6, 16, 18, 20, 22):
        E(f"v_pk_fma_f32 {vr(vT+2,2)}, {vr(O2+j,2)}, 0, {vr(vT+2,2)} op_sel_hi:[1,0,1]")
    E(f"""
    v_cmp_o_f32 vcc, v{vT+2}, v{vT+3}
    s_nop 1
    s_and_b64 vcc, {sr(tc,2)}, vcc
    s_cmp_eq_u64 vcc, -1
    s_cbranch_scc0 L_safe
    L_pub:
    s_waitcnt vmcnt(0)
    s_barrier
    """)
    stamp("m")
    E(f"s_cmp_lg_u32 s{sW}, 0\ns_cbranch_scc1 L_mdone")
    put_flag(vF2, vOne)
    E("s_waitcnt vmcnt(0)")
    poll_global(vF2P, pFL, 2)
    E(f"s_mov_b32 s{sKV}, s{pWs}\ns_mov_b32 s{sKV+1}, s{pWs+1}")
    for g in range(8):
        E(f"s_mov_b32 m0, {OFL+4096*g}")
        if g: E(f"s_add_u32 s{sKV}, s{sKV}, 4096\ns_addc_u32 s{sKV+1}, s{sKV+1}, 0")
        else: E("s_nop 0")
        for j in range(4):
            E(f"global_load_lds_dwordx4 v{vOD}, {sr(sKV,2)} offset:{1024*j} sc1")
    for n in (24, 16, 8, 0):
        E(f"s_waitcnt vmcnt({n})\ns_barrier")
    if SPM >= 0:
        E("s_branch L_mdone2\nL_mdone:\ns_barrier\ns_barrier\ns_barrier\ns_barrier\nL_mdone2:")
    else:
        E("L_mdone:")
    stamp_flush("m"); spin_end("m")
    if OPT.get("itst"):
        E(f"v_lshl_add_u32 v2, v1, 2, v2\nv_add_u32 v2, 0x100000, v2\ns_mov_b64 exec, 0xff\nglobal_store_dword v2, v23, {sr(pWs,2)}")
    E("s_endpgm")
    vM, vC = vT + 6, 64
    vQ += 8; vO += 32
    E(f"""
    L_safe:
    s_waitcnt vmcnt(0)
    s_lshl_b32 s{ta}, s{sZ}, 12
    s_sub_u32 s{sKVb}, s{sKVb}, s{ta}
    s_subb_u32 s{sKVb+1}, s{sKVb+1}, 0
    s_mov_b32 s{sKV}, s{sKVb}
    s_mov_b32 s{sKV+1}, s{sKVb+1}
    s_mov_b32 s{sCnt}, 64
    v_mov_b32 v{vM}, 0xff800000
    v_mov_b32 v{vM+1}, 0xff800000
    L_safe1:
    global_load_dwordx4 {vr(vKV,4)}, v{vKA}, {sr(sKV,2)} sc1
    s_add_u32 s{sKV}, s{sKV}, 2048
    s_addc_u32 s{sKV+1}, s{sKV+1}, 0
    s_waitcnt vmcnt(0)
    v_mfma_f32_32x32x16_bf16 {vr(SA,16)}, {vr(vKV,4)}, {vr(vQ,4)}, 0
    v_mfma_f32_32x32x16_bf16 {vr(SB,16)}, {vr(vKV,4)}, {vr(vQ+4,4)}, 0
    s_nop 15
    """)
    for j in range(8):
        E(f"v_max3_f32 v{vM}, v{SA+2*j}, v{SA+2*j+1}, v{vM}\nv_max3_f32 v{vM+1}, v{SB+2*j}, v{SB+2*j+1}, v{vM+1}")
    E(f"""
    s_sub_u32 s{sCnt}, s{sCnt}, 1
    s_cmp_lg_u32 s{sCnt}, 0
    s_cbranch_scc1 L_safe1
    v_mov_b32 v{SA}, v{vM}
    v_mov_b32 v{SB}, v{vM+1}
    s_nop 1
    v_permlane32_swap_b32 v{SA}, v{vM}
    v_permlane32_swap_b32 v{SB}, v{vM+1}
    s_nop 1
    v_max_f32 v{vM}, v{vM}, v{SA}
    v_max_f32 v{vM+1}, v{vM+1}, v{SB}
    """)
    for j in range(16):
        E(f"v_sub_f32 v{vC+j}, 0, v{vM}\nv_sub_f32 v{vC+16+j}, 0, v{vM+1}\nv_mov_b32 v{vO+j}, 0\nv_mov_b32 v{vO+16+j}, 0")
    E(f"""
    s_mov_b32 s{sKV}, s{sKVb}
    s_mov_b32 s{sKV+1}, s{sKVb+1}
    s_mov_b32 s{sCnt}, 64
    L_safe2:
    """)
    E(kload(0, 0) + vload(0, 0))
    E(f"""
    s_add_u32 s{sKV}, s{sKV}, 2048
    s_addc_u32 s{sKV+1}, s{sKV+1}, 0
    s_waitcnt vmcnt(0)
    v_mfma_f32_32x32x16_bf16 {vr(SA,16)}, {vr(vKV,4)}, {vr(vQ,4)}, {vr(vC,16)}
    v_mfma_f32_32x32x16_bf16 {vr(SB,16)}, {vr(vKV,4)}, {vr(vQ+4,4)}, {vr(vC+16,16)}
    s_nop 15
    """)
    for j in range(32):
        E(f"v_exp_f32 v{SA+j}, v{SA+j}")
    E(f"""
    s_nop 1
    v_smfmac_f32_32x32x32_bf16 {vr(vO,16)}, {vr(vKV+4,4)}, {vr(SA,8)}, v{vIDX}
    v_smfmac_f32_32x32x32_bf16 {vr(vO,16)}, {vr(vKV+8,4)}, {vr(SA+8,8)}, v{vIDX}
    v_smfmac_f32_32x32x32_bf16 {vr(vO+16,16)}, {vr(vKV+4,4)}, {vr(SB,8)}, v{vIDX}
    v_smfmac_f32_32x32x32_bf16 {vr(vO+16,16)}, {vr(vKV+8,4)}, {vr(SB+8,8)}, v{vIDX}
    s_sub_u32 s{sCnt}, s{sCnt}, 1
    s_cmp_lg_u32 s{sCnt}, 0
    s_cbranch_scc1 L_safe2
    s_nop 15
    """)
    fin(O2, None, None, SA, vOA); fin(O3, None, None, SA + 4, vOB)
    E("s_branch L_pub")

def helper_wave():
    sH, sC, sMH, sRT, sCB, sD = sT, sT + 1, sT + 2, sT + 3, sT + 4, sT + 5
    sLd, sDs = sT + 6, sT + 7
    t0 = sT + 8
    sLead, sWst = 92, 93
    sAT = 100
    vGW = 156
    vGWA = 155
    vXF = 160
    vG, vGA0, vGA1 = 164, 165, 166
    vU = 168
    vF4, vF4P, vWqP, vWqG, vRdy, vF1, vF1P = range(141, 148)
    sWq = 94
    vTA, vTS = 148, 152
    sUW = sT + 13
    assert NS == 3
    vPar = 4
    E(f"""
    L_helper:
    s_lshr_b32 s{sC}, s{sH}, 1
    s_add_u32 s{sD}, s{sCH}, s{sC}
    s_and_b32 s{sRT}, s{sHP}, 3
    s_lshr_b32 s{sCB}, s{sHP}, 2
    v_lshrrev_b32 v3, 5, v1
    v_lshlrev_b32 v3, 4, v3
    s_lshl_b32 s{t0+2}, s{sROT}, 2
    s_add_u32 s{t0+2}, s{t0+2}, s{sH}
    s_lshl_b32 s{t0+2}, s{t0+2}, 5
    s_add_u32 s{t0+2}, s{t0+2}, {GW}
    v_add_u32 v{vGWA}, s{t0+2}, v3
    v_mov_b32 v12, 0
    v_mov_b32 v13, 0
    v_mov_b32 v14, 0
    v_mov_b32 v15, 0
    s_cmp_lt_u32 s2, 16
    s_cselect_b32 s{sLead}, s{sW}, 0
    """)
    E(f"s_add_u32 s{pFL}, s{pWs}, {WS_FL}\ns_addc_u32 s{pFL+1}, s{pWs+1}, 0")
    def claim_kv():
        E(f"""
        s_lshl2_add_u32 s{t0}, s{sRB}, s{sH}
        s_lshl_b32 s{t0}, s{t0}, 11
        s_lshl_b32 s{t0+1}, s{sHP}, 18
        s_add_u32 s{t0}, s{t0}, s{t0+1}
        """)
        if OPT["clm"] in (1, 3):
            E(f"""
            v_and_b32 v10, 31, v1
            v_lshl_add_u32 v10, v10, 6, s{t0}
            v_lshrrev_b32 v11, 5, v1
            v_lshl_add_u32 v10, v11, 17, v10
            global_store_dword v10, v12, {sr(pWs,2)} sc1
            """)
        else:
            E(f"""
            v_lshl_add_u32 v10, v1, 4, s{t0}
            v_add_u32 v11, 0x20000, v10
            global_store_dwordx4 v10, v[12:15], {sr(pWs,2)} sc1
            global_store_dwordx4 v10, v[12:15], {sr(pWs,2)} offset:1024 sc1
            global_store_dwordx4 v11, v[12:15], {sr(pWs,2)} sc1
            global_store_dwordx4 v11, v[12:15], {sr(pWs,2)} offset:1024 sc1
            """)
    NCL = {0: 0, 1: 1, 2: 4, 3: 0}[OPT["clm"]]
    if NCL: claim_kv()
    stamp("h")
    E(f"""
    s_mul_i32 s{t0}, s{sC}, {URS}
    s_add_u32 s{t0}, s{t0}, {UR+4096}
    v_lshl_add_u32 v10, v1, 4, s{t0}
    v_and_b32 v11, 1, v1
    v_lshlrev_b32 v11, 4, v11
    v_cmp_gt_u32 vcc, 30, v1
    v_add_u32 v11, {CNT}, v11
    v_mov_b32 v2, 0x3f803f80
    v_cndmask_b32 v10, v11, v10, vcc
    ds_write_b128 v10, v[12:15]
    v_and_b32 v11, 3, v1
    v_lshlrev_b32 v11, 2, v11
    ds_write_b32 v11, v2 offset:{CNT+32}
    """)
    vWA, vRA = 16, 17
    if "prio1" in OPT: E(f"s_setprio {OPT['prio1']}")
    E(f"""
    s_mul_i32 s{t0}, s{sRT}, {WPART}
    s_add_u32 s{t0}, s{t0}, {RING}
    v_and_b32 v10, 31, v1
    v_lshl_add_u32 v10, v10, 7, s{t0}
    v_bfe_u32 v11, v1, 1, 3
    v_lshrrev_b32 v3, 5, v1
    v_xor_b32 v11, v11, v3
    s_lshl_b32 s{t0}, s{sH}, 1
    v_xor_b32 v11, s{t0}, v11
    v_lshl_add_u32 v{vGA0}, v11, 4, v10
    v_mov_b32 v{vG}, 0
    """)
    if not OPT["gath"]: E(f"""
    s_lshr_b32 s{sUW}, s{sHP}, 1
    s_sub_u32 s{sUW}, s{sUW}, s{sROT}
    s_and_b32 s{sUW}, s{sUW}, 7
    s_mul_i32 s{t0}, s{sUW}, 11
    s_lshr_b32 s{t0}, s{t0}, 5
    s_mul_i32 s{t0}, s{t0}, 3
    s_sub_u32 s{t0}, s{sUW}, s{t0}
    s_mul_i32 s{t0}, s{t0}, {SLOT}
    s_mul_i32 s{t0+1}, s{sH}, {WPART}
    s_add_u32 s{t0}, s{t0}, s{t0+1}
    s_add_u32 s{t0}, s{t0}, {RING}
    v_and_b32 v10, 3, v1
    v_bfe_u32 v11, v1, 2, 2
    v_lshlrev_b32 v10, 3, v10
    v_sub_u32 v10, v10, v11
    v_add_u32 v10, 7, v10
    v_bfe_u32 v11, v10, 1, 3
    v_xor_b32 v11, v11, v3
    s_and_b32 s{t0+1}, s{sHP}, 1
    s_lshl_b32 s{t0+1}, s{t0+1}, 2
    v_xor_b32 v11, s{t0+1}, v11
    v_lshlrev_b32 v11, 4, v11
    v_lshl_add_u32 v11, v10, 7, v11
    v_bfe_u32 v10, v1, 4, 1
    v_lshl_add_u32 v11, v10, 3, v11
    v_add_u32 v{vTA}, s{t0}, v11
    v_xor_b32 v{vTA+1}, 32, v{vTA}
    v_subrev_u32 v{vTA+2}, 512, v{vTA}
    v_subrev_u32 v{vTA+3}, 512, v{vTA+1}
    """)
    E(f"""
    s_mul_i32 s{t0}, s{sH}, {KGS}
    s_add_u32 s{t0}, s{t0}, {KG}
    s_mov_b32 m0, s{t0}
    v_and_b32 v10, 31, v1
    v_mul_u32_u24 v10, 272, v10
    v_lshl_add_u32 v10, v3, 4, v10
    v_add_u32 v{vRA}, s{t0}, v10
    s_mul_i32 s{t0}, s{sC}, {2*KGS}
    s_add_u32 s{t0}, s{t0}, {KG+KGS}
    v_lshl_add_u32 v{vWA}, v1, 4, s{t0}
    """)
    K = []
    def k(s, c=None):
        if isinstance(s, list): s = "\n".join(s)
        for x in s.split("\n"):
            x = x.strip()
            if not x: continue
            cc = c if c is not None else (8 if any(t in x for t in ("v_exp", "v_sin", "v_cos", "v_rcp", "ds_")) else 4)
            K.append((cc, x))
    va, vb, vt = 220, 221, 222
    log2e = math.log2(math.e)
    c_hi = struct.unpack("<f", struct.pack("<f", log2e))[0]
    c_lo = log2e - c_hi
    k(f"""
    s_waitcnt lgkmcnt(0)
    s_lshl_b32 s{t0}, s{sC}, 4
    s_lshr_b32 s{sLd}, s{sLd}, s{t0}
    s_lshl_b32 s{sLd}, s{sLd}, 16
    s_lshr_b32 s{sDs}, s{sDs}, s{t0}
    s_lshl_b32 s{sDs}, s{sDs}, 16
    s_mov_b32 s{t0}, {fbits(c_hi)}
    v_mov_b32 v{vt}, s{sLd}
    v_mul_f32 v{vt+1}, s{t0}, v{vt}
    v_fma_f32 v{vt+2}, v{vt}, s{t0}, -v{vt+1}
    v_fmac_f32 v{vt+2}, {fbits(c_lo)}, v{vt}
    v_exp_f32 v{vt+1}, v{vt+1}
    v_mul_f32 v{vt+2}, {fbits(math.log(2.0))}, v{vt+2}
    v_fma_f32 v{vt+1}, v{vt+1}, v{vt+2}, v{vt+1}
    v_cvt_pk_bf16_f32 v{vt+1}, v{vt+1}, v{vt+1}
    v_lshlrev_b32 v{vt}, 16, v{vt+1}
    s_waitcnt vmcnt({1+NCL})
    """)
    for j in range(6):
        k(f"v_lshlrev_b32 v{vPar+j}, 16, v{vPar+j}")
    k(f"""
    v_mul_f32 v{va}, v{vt}, v{vPar}
    v_mul_f32 v{vb}, v{vt}, v{vPar+1}
    v_mul_f32 v{vPar+2}, v{vt}, v{vPar+2}
    v_mul_f32 v{vPar+3}, v{vt}, v{vPar+3}
    v_mul_f32 v{va}, {fbits(c_hi)}, v{va}
    v_mul_f32 v{vb}, 0.15915494, v{vb}
    """)
    pkm = [OPT["pk0"]]
    def cmul(z, x, w):
        if pkm[0]:
            return [f"v_pk_mul_f32 {vr(z,2)}, {vr(x,2)}, {vr(w,2)} op_sel_hi:[0,1]",
                    f"v_pk_fma_f32 {vr(z,2)}, {vr(x,2)}, {vr(w,2)}, {vr(z,2)} op_sel:[1,1,0] op_sel_hi:[1,0,1] neg_lo:[1,0,0]"]
        return [f"v_mul_f32 v{z}, v{x}, v{w}\nv_mul_f32 v{z+1}, v{x}, v{w+1}",
                f"v_fma_f32 v{z}, -v{x+1}, v{w+1}, v{z}\nv_fmac_f32 v{z+1}, v{x+1}, v{w}"]
    def cmuls(lst):
        cm = [cmul(*a) for a in lst]
        k([c[0] for c in cm]); k([c[1] for c in cm])
    def direct(z, x):
        k(f"""
        v_mul_f32 v{vt+2}, {fbits(x)}, v{vb}
        v_mul_f32 v{vt+1}, {fbits(x)}, v{va}
        v_fract_f32 v{vt+2}, v{vt+2}
        v_exp_f32 v{vt+1}, v{vt+1}
        v_cos_f32 v{z}, v{vt+2}
        v_sin_f32 v{z+1}, v{vt+2}
        s_nop 0
        v_mul_f32 v{z}, v{z}, v{vt+1}
        v_mul_f32 v{z+1}, v{z+1}, v{vt+1}
        """)
    E1, E32, E256 = 226, 228, 230
    vE = 232
    vPk = 64
    npk = [0]
    DW = {False: [], True: []}
    def puts(lst, neg):
        for z, rows in lst:
            p = vPk + npk[0]; npk[0] += 1
            k(f"v_cvt_pk_bf16_f32 v{p}, v{z}, {'-' if neg else ''}v{z+1}")
            DW[neg] += [f"ds_write_addtid_b32 v{p} offset:{272*r}" for r in rows]
    def e(j): return vE + 2 * (j % 8)
    direct(e(1), 8.0); direct(E32, 32.0)
    k(f"v_mov_b32 v{e(0)}, 1.0\nv_mov_b32 v{e(0)+1}, 0\nv_mov_b32 v{e(4)}, v{E32}\nv_mov_b32 v{e(4)+1}, v{E32+1}")
    cmuls([(e(2), e(1), e(1)), (e(5), e(1), E32)])
    cmuls([(e(3), e(2), e(1)), (e(6), e(2), E32)])
    cmuls([(e(7), e(3), E32)])
    puts([(e(j), [j]) for j in range(4)], False)
    for j0 in range(4, 32, 4):
        if j0 + 4 < 32: cmuls([(e(j + 4), e(j), E32) for j in range(j0, j0 + 4)])
        puts([(e(j), [j]) for j in range(j0, j0 + 4)], False)
    vEF, vGF, vD = 192, 224, 176
    direct(E1, 1.0); direct(E256, 256.0)
    def row(r, h): return 8 * (r >> 2) + 4 * h + (r & 3)
    vGv = 192
    g = {x: vGv + 2 * x for x in range(9)}
    E2 = e(0)
    cmuls([(g[0], vPar + 4, vPar + 2), (E2, E1, E1)])
    cmuls([(g[1], g[0], E1), (g[2], g[0], E2)])
    cmuls([(g[3], g[1], E2), (g[4], g[2], E2)])
    puts([(g[x], [row(x, 0)]) for x in range(4)], True)
    cmuls([(g[5], g[3], E2), (g[6], g[4], E2)])
    cmuls([(g[7], g[5], E2), (g[8], g[6], E2)])
    puts([(g[x], [row(x, 0)]) for x in range(4, 8)], True)
    A = {o: vGv + 18 + 2 * i for i, o in enumerate((0, 2, 4, 6, 8))}
    cmuls([(A[o], g[o], E256) for o in (0, 2, 4, 6, 8)])
    puts([(A[o], [row(r, 1) for r in rs]) for o, rs in ((0, (0, 1)), (2, (2,)), (4, (3, 4, 5)), (6, (6,)), (8, (7,)))], True)
    src, dst = A, g
    for os_, r0, h in (((0, 4, 8), 8, 0), ((0, 4, 8), 8, 1), ((0, 8), 11, 0), ((0, 8), 11, 1), ((0, 8), 13, 0), ((0, 8), 13, 1)):
        cmuls([(dst[o], src[o], E256) for o in os_])
        puts([(dst[o], [row(r0 + i, h)]) for i, o in enumerate(os_)], True)
        src, dst = dst, src
    def D1(): E(DW[False] + [f"ds_read_b128 {vr(vEF+4*s,4)}, v{vRA} offset:{32*s}" for s in range(8)])
    def D2(): E(DW[True] + [f"ds_read_b128 {vr(vGF+4*s,4)}, v{vRA} offset:{32*s}" for s in range(8)])
    PL = [int(c) for c in "%05d" % OPT["pl"]]
    psync = PL[2] == PL[3]
    def D3():
        E("s_waitcnt lgkmcnt(0)")
        for s in range(8):
            E(f"v_mfma_f32_32x32x16_bf16 {vr(vD,16)}, {vr(vGF+4*s,4)}, {vr(vEF+4*s,4)}, {'0' if s == 0 else vr(vD,16)}")
        lx = newlab("nx")
        E(f"s_nop 9\ns_cmp_eq_u32 s{sMH}, 0\ns_cbranch_scc1 {lx}")
        for j in range(4):
            E(f"ds_write_b128 v{vWA}, {vr(vD+4*j,4)} offset:{1024*j}")
        if psync: lds_arrive(vCP, vOne)
        E(f"s_waitcnt lgkmcnt(0)\n{lx}:")
    (vCA, vCP, vOne, vTm, vAA, vBA, vUW, vCW, vCR, vAT, vF3, vWoG, vWoL, vF3P, vAL, vOut, vg, vomg, vOL, vGPw, vGPr, vWoP, vUL, vClO) = range(24, 48)
    vA = 48; vAcc = 96
    ADDR = f"""
    s_lshr_b32 s{t0}, s2, 3
    s_lshl2_add_u32 s{t0}, s{t0}, s{sH}
    s_mul_i32 s{t0}, s{t0}, 12288
    s_lshr_b32 s{t0+1}, s{sHP}, 3
    s_lshl_b32 s{t0+1}, s{t0+1}, 9
    s_add_u32 s{t0}, s{t0}, s{t0+1}
    v_bfe_u32 v18, v1, 2, 2
    v_mul_u32_u24 v18, 3072, v18
    v_and_b32 v19, 3, v1
    v_lshl_add_u32 v18, v19, 7, v18
    v_add_u32 v{vWqP}, s{t0}, v18
    v_mov_b32 v{vCA}, {CNT}
    s_lshl_b32 s{t0}, s{sC}, 2
    s_add_u32 s{t0}, s{t0}, {CNT+4}
    v_mov_b32 v{vCP}, s{t0}
    v_mov_b32 v{vOne}, 1
    v_lshlrev_b32 v23, 4, v1
    s_lshl_b32 s{t0}, s{sH}, 10
    s_sub_u32 s{t0}, {UR+4080-512}, s{t0}
    v_lshrrev_b32 v18, 1, v1
    v_lshlrev_b32 v19, 4, v18
    v_sub_u32 v19, s{t0}, v19
    v_and_b32 v20, 1, v1
    v_mul_u32_u24 v21, {URS}, v20
    v_add_u32 v{vUW}, v19, v21
    s_lshr_b32 s{t0}, s{sCH}, 2
    s_lshl_b32 s{t0}, s{t0}, 14
    s_lshl_b32 s{t0+1}, s{sH}, 12
    s_add_u32 s{t0}, s{t0}, s{t0+1}
    s_and_b32 s{t0+1}, s{sRB}, 1
    s_lshl_b32 s{t0+1}, s{t0+1}, 5
    s_add_u32 s{t0}, s{t0}, s{t0+1}
    s_add_u32 s{t0}, s{t0}, {WS_UT}
    v_lshl_add_u32 v18, v18, 6, s{t0}
    v_lshl_add_u32 v{vUL}, v20, 4, v18
    v_and_b32 v18, 15, v1
    v_add_u32 v19, 1, v18
    v_and_b32 v20, 3, v19
    v_mul_u32_u24 v20, {KCP}, v20
    v_lshrrev_b32 v19, 2, v19
    v_lshl_add_u32 v20, v19, 3, v20
    v_lshrrev_b32 v21, 4, v1
    v_lshlrev_b32 v22, 4, v21
    s_mul_i32 s{t0}, s{sC}, {2*KGS}
    s_lshl_b32 s{t0+1}, s{sMH}, 8
    s_add_u32 s{t0}, s{t0}, s{t0+1}
    s_add_u32 s{t0}, s{t0}, {KG}
    v_add3_u32 v{vAA}, v20, v22, s{t0}
    s_mul_i32 s{t0}, s{sC}, {URS}
    s_add_u32 s{t0}, s{t0}, s{t0+1}
    s_add_u32 s{t0}, s{t0}, {UR+4064-3584}
    v_lshlrev_b32 v19, 5, v18
    v_sub_u32 v22, v22, v19
    v_add_u32 v{vBA}, s{t0}, v22
    s_lshl_b32 s{t0}, s{sH}, 12
    s_add_u32 s{t0}, s{t0}, {CRED}
    v_add_u32 v{vCW}, s{t0}, v23
    s_xor_b32 s{t0}, s{sH}, 1
    s_lshl_b32 s{t0}, s{t0}, 12
    s_add_u32 s{t0}, s{t0}, {CRED}
    v_add_u32 v{vCR}, s{t0}, v23
    v_add_u32 v{vOL}, {OFL}, v23
    v_lshrrev_b32 v19, 1, v18
    v_lshlrev_b32 v19, 15, v19
    v_and_b32 v20, 1, v1
    v_lshl_add_u32 v19, v20, 5, v19
    v_lshl_add_u32 v{vAT}, v21, 3, v19
    s_lshl_b32 s{t0}, s{sMH}, 20
    s_lshl_b32 s{t0+1}, s{sD}, 6
    s_add_u32 s{t0}, s{t0}, s{t0+1}
    s_add_u32 s{t0}, s{t0}, {WS_AT}
    s_add_u32 s{sAT}, s{pWs}, s{t0}
    s_addc_u32 s{sAT+1}, s{pWs+1}, 0
    s_lshl_b32 s{t0}, s{sMH}, 9
    s_add_u32 s{t0}, s{t0}, s{sD}
    s_add_u32 s{t0}, s{t0}, {F3}
    s_lshl_b32 s{t0}, s{t0}, 2
    v_mov_b32 v{vF3}, s{t0}
    s_mov_b32 s{SRDW}, s{pWo}
    s_mov_b32 s{SRDW+1}, s{pWo+1}
    s_mov_b32 s{SRDW+2}, {512*1024}
    s_mov_b32 s{SRDW+3}, 0x00020000
    s_lshl_b32 s{t0}, s{sCB}, 2
    s_add_u32 s{t0}, s{t0}, s{sH}
    s_lshl_b32 s{t0+1}, s{t0}, 6
    v_lshrrev_b32 v18, 2, v1
    v_lshl_add_u32 v18, v18, 10, s{t0+1}
    v_and_b32 v19, 3, v1
    v_lshl_add_u32 v{vWoG}, v19, 4, v18
    s_mul_i32 s{sWst}, s{sH}, {WSL*1024}
    s_add_u32 s{sWst}, s{sWst}, {WST}
    v_lshrrev_b32 v22, 5, v1
    v_lshlrev_b32 v20, 2, v22
    v_bfe_u32 v21, v1, 2, 2
    v_add_u32 v20, v20, v21
    v_lshl_add_u32 v20, v20, 6, s{sWst}
    v_lshl_add_u32 v20, v19, 3, v20
    v_bfe_u32 v21, v1, 4, 1
    v_lshl_add_u32 v{vWoL}, v21, 5, v20
    s_lshl_b32 s{t0}, s{t0}, 5
    s_lshr_b32 s{t0+1}, s{sRB}, 3
    s_lshl_b32 s{t0+1}, s{t0+1}, 9
    s_add_u32 s{t0+1}, s{t0+1}, s{t0}
    s_add_u32 s{t0+1}, s{t0+1}, {F3}
    v_and_b32 v18, 31, v1
    v_add_u32 v19, s{t0+1}, v18
    v_lshlrev_b32 v{vF3P}, 2, v19
    s_lshl_b32 s{t0+1}, s{sRB}, 2
    s_add_u32 s{t0+1}, s{t0+1}, s{sRT}
    s_lshl_b32 s{t0+2}, s{t0+1}, 15
    s_lshl_b32 s{t0+3}, s{t0}, 6
    s_add_u32 s{t0+3}, s{t0+3}, s{t0+2}
    s_add_u32 s{t0+3}, s{t0+3}, {WS_AT}
    v_lshlrev_b32 v20, 8, v22
    v_lshl_add_u32 v20, v18, 1, v20
    v_add_u32 v{vAL}, s{t0+3}, v20
    s_lshl_b32 s{t0}, s{t0}, 1
    s_add_u32 s{t0}, s{t0}, s{t0+2}
    v_lshl_add_u32 v20, v18, 10, s{t0}
    v_lshl_add_u32 v{vOut}, v22, 4, v20
    """.split("\n")
    ADDR += f"""
    s_lshl2_add_u32 s{t0}, s{sRB}, s{sH}
    s_lshl4_add_u32 s{t0}, s{t0}, s{sHP}
    s_lshl_b32 s{t0}, s{t0}, 11
    s_add_u32 s{t0}, s{t0}, {WS_OF}
    v_lshl_add_u32 v{vClO}, v1, 6, s{t0}
    s_lshl_b32 s{t0}, s{sRB}, 2
    s_add_u32 s{t0}, s{t0}, s{sH}
    s_lshl_b32 s{t0}, s{t0}, 8
    s_lshl_b32 s{t0+1}, s{sHP}, 17
    s_add_u32 s{t0}, s{t0}, s{t0+1}
    s_add_u32 s{t0}, s{t0}, {WS_UT}
    v_and_b32 v18, 15, v1
    v_lshl_add_u32 v18, v18, 4, s{t0}
    v_lshrrev_b32 v19, 4, v1
    v_lshl_add_u32 v{vTS}, v19, 14, v18
    v_add_u32 v{vTS+1}, 0x10000, v{vTS}
    v_and_b32 v18, 15, v1
    v_lshlrev_b32 v{vRdy}, 2, v18
    s_lshl_b32 s{t0}, s{sHP}, 4
    v_add_u32 v19, s{t0}, v18
    v_lshlrev_b32 v{vF1P}, {FSH}, v19
    s_add_u32 s{t0}, s{t0}, s{sRB}
    s_lshl2_add_u32 s{t0+1}, s{t0}, s{sH}
    s_add_u32 s{t0+1}, s{t0+1}, {F4}
    s_lshl_b32 s{t0+1}, s{t0+1}, 2
    v_mov_b32 v{vF4}, s{t0+1}
    s_lshl2_add_u32 s{t0+1}, s{sHP}, s{sH}
    s_lshl4_add_u32 s{t0+1}, s{t0+1}, {F4}
    v_add_lshl_u32 v{vF4P}, v18, s{t0+1}, 2
    s_lshl_b32 s{t0}, s{t0}, {FSH}
    v_mov_b32 v{vF1}, s{t0}
    v_and_b32 v18, 31, v1
    v_lshlrev_b32 v18, 5, v18
    v_lshrrev_b32 v19, 5, v1
    v_lshl_add_u32 v19, v19, 2, v18
    s_lshl_b32 s{t0}, s{sH}, 3
    s_add_u32 s{t0}, s{t0}, {GP}
    v_add_u32 v{vGPw}, s{t0}, v19
    v_add_u32 v{vGPr}, {GP}, v18
    s_lshr_b32 s{t0}, s2, 3
    s_lshl_b32 s{t0}, s{t0}, 2
    s_add_u32 s{t0}, s{t0}, s{sH}
    s_lshl_b32 s{t0}, s{t0}, 12
    s_lshr_b32 s{t0+1}, s{sHP}, 3
    s_lshl_b32 s{t0+1}, s{t0+1}, 9
    s_add_u32 s{t0}, s{t0}, s{t0+1}
    v_bfe_u32 v18, v1, 2, 2
    v_lshl_add_u32 v18, v18, 10, s{t0}
    v_and_b32 v19, 3, v1
    v_lshl_add_u32 v{vWoP}, v19, 7, v18
    """.split("\n") + [f"v_mov_b32 v{vA+j}, 0" for j in range(16)]
    if OPT["gath"]:
        ADDR += f"""
        s_lshl_b32 s{t0}, s{sH}, 19
        s_lshl_b32 s{t0+1}, s{sCH}, 1
        s_add_u32 s{t0}, s{t0}, s{t0+1}
        s_add_u32 s{t0}, s{t0}, 4096
        v_lshl_add_u32 v{vUL}, v1, 13, s{t0}
        s_lshl_b32 s{t0}, s{sH}, 10
        s_sub_u32 s{t0}, {UR+4080}, s{t0}
        v_lshlrev_b32 v18, 4, v1
        v_sub_u32 v{vUW}, s{t0}, v18
        s_mov_b32 s94, 0x05040100
        s_mov_b32 s95, 0x07060302
        """.split("\n")
    ADDR = [x.strip() for x in ADDR if x.strip()]
    def GATEF():
        E("s_waitcnt lgkmcnt(0)")
        for j in range(4):
            E(f"v_dot2_f32_bf16 v{vG}, v{vXF+j}, v{vGW+j}, v{vG}")
        E(f"s_nop 2\nds_write_b32 v{vGPw}, v{vG}")
    def SIG():
        E(f"""
        ds_read_b128 v[128:131], v{vGPr}
        ds_read_b128 v[132:135], v{vGPr} offset:16
        s_waitcnt lgkmcnt(0)
        v_add_f32 v128, v128, v129
        v_add_f32 v130, v130, v131
        v_add_f32 v132, v132, v133
        v_add_f32 v134, v134, v135
        v_add_f32 v128, v128, v130
        v_add_f32 v132, v132, v134
        v_add_f32 v128, v128, v132
        v_mul_f32 v128, {fbits(-log2e)}, v128
        v_exp_f32 v128, v128
        s_nop 0
        v_add_f32 v128, 1.0, v128
        v_rcp_f32 v{vg}, v128
        s_nop 0
        v_sub_f32 v{vomg}, 1.0, v{vg}
        """)
    vR = 64; vE0 = 64
    def KC1():
        lk = newlab("nk")
        E(f"s_cmp_eq_u32 s{sMH}, 0\ns_cbranch_scc0 {lk}")
        if psync: lds_wait(vCP, 2, 1)
        for j in range(4):
            E(f"ds_read_b128 {vr(vR+4*j,4)}, v{vWA} offset:{1024*j}")
        E(f"""
        s_mul_i32 s{t0}, s{sC}, {2*KGS}
        s_add_u32 s{t0}, s{t0}, {KG}
        v_lshl_add_u32 v2, v1, 4, s{t0}
        v_lshrrev_b32 v3, 1, v1
        v_mul_u32_u24 v3, {KCP}, v3
        v_and_b32 v10, 1, v1
        v_lshlrev_b32 v11, 4, v10
        v_add3_u32 v3, v3, v11, s{t0}
        v_cmp_eq_u32 {sr(t0+2,2)}, 1, v10
        s_mov_b64 exec, 1
        v_add_f32 v{vD}, s{sDs}, v{vD}
        s_waitcnt lgkmcnt(0)
        s_mov_b64 exec, 0xff
        ds_write_b128 v3, v[12:15]
        s_mov_b64 exec, -1
        """)
        for j in range(15):
            E(f"v_add_f32 v{vD+j}, v{vD+j}, v{vR+j}")
        E(f"""
        v_cndmask_b32 v10, v{vD+11}, v{vD+12}, {sr(t0+2,2)}
        v_cndmask_b32 v11, v{vD+13}, v{vD+14}, {sr(t0+2,2)}
        """)
        D = lambda j: vD + j
        pats = [[(D(0), D(1)), (D(2), D(3)), (D(4), D(5)), (D(6), D(7))],
                [(D(8), D(8)), (D(8), D(9)), (D(9), D(9)), (D(10), D(10))],
                [(D(11), D(11)), (D(11), D(11)), (10, D(12)), (D(12), D(12))],
                [(D(13), D(13)), (D(13), D(13)), (11, D(14)), (D(14), D(14))]]
        for u in range(4):
            for j, (a, b) in enumerate(pats[u]):
                E(f"v_cvt_pk_bf16_f32 v{vE0+8*u+j}, v{a}, v{b}")
            E(f"ds_write_b128 v2, {vr(vE0+8*u,4)} offset:{32+1024*u}")
        for u in range(4):
            E(f"ds_read_b64 {vr(vE0+8*u+4,2)}, v2 offset:{48+1024*u}")
        E(f"{lk}:")
    def KC2():
        lk = newlab("nk")
        E(f"s_cmp_eq_u32 s{sMH}, 0\ns_cbranch_scc0 {lk}\ns_waitcnt lgkmcnt(0)")
        for u in range(4):
            b = vE0 + 8 * u; o = 96 + 12 * (u & 1)
            for j in range(4):
                E(f"v_alignbit_b32 v{o+j}, v{b+j+1}, v{b+j}, 16")
            E(f"ds_write_b128 v2, {vr(o,4)} offset:{32+1024*u+KCP}")
            for j in range(4):
                E(f"v_mov_b32 v{o+4+j}, v{b+j+1}")
            E(f"ds_write_b128 v2, {vr(o+4,4)} offset:{32+1024*u+2*KCP}")
            for j in range(4):
                E(f"v_alignbit_b32 v{o+8+j}, v{b+j+2}, v{b+j+1}, 16")
            E(f"ds_write_b128 v2, {vr(o+8,4)} offset:{32+1024*u+3*KCP}")
            if u == 0:
                E(f"""
                v_lshlrev_b32 v10, 16, v{b}
                s_mov_b64 exec, 1
                ds_write_b32 v2, v10 offset:{28+KCP}
                ds_write_b32 v2, v{b} offset:{28+2*KCP}
                ds_write_b32 v2, v10 offset:{24+3*KCP}
                ds_write_b32 v2, v{o} offset:{28+3*KCP}
                s_mov_b64 exec, -1
                """)
        E(f"{lk}:")
    def gate_glue(i):
        E(f"s_waitcnt vmcnt({NCL}) lgkmcnt(0)" if i == 0 else "s_waitcnt vmcnt(0) lgkmcnt(0)" if i == 7 else "s_waitcnt lgkmcnt(0)")
        if OPT.get("hst"): stamp("h")
        E("s_barrier")
        if i == 0 and OPT["clm"] == 3: claim_kv()
        if i == 0:
            lq = newlab("nr")
            E(f"""
            s_cmp_eq_u32 s{sLead}, 7
            s_cbranch_scc0 {lq}
            s_lshl_b32 s{sSPIN}, s2, 5
            v_add_u32 v10, s{sSPIN}, v1
            v_lshlrev_b32 v10, {FSH}, v10
            s_lshl_b32 s{sSPIN}, s2, 9
            s_add_u32 s{sSPIN}, s{sSPIN}, {4*F3}
            v_lshl_add_u32 v11, v1, 3, s{sSPIN}
            global_store_dwordx2 v11, v[12:13], {sr(pFL,2)} sc1
            s_bfm_b64 exec, 32, 0
            global_store_dword v10, v12, {sr(pFL,2)} sc1
            s_mov_b64 exec, -1
            {lq}:
            """)
        if i == OPT["rdyw"]:
            lq = newlab("nr")
            E(f"""
            s_cmp_eq_u32 s{sLead}, 7
            s_cbranch_scc0 {lq}
            s_lshl_b32 s{sSPIN}, s2, 2
            v_mov_b32 v10, s{sSPIN}
            v_mov_b32 v11, 1
            s_waitcnt vmcnt(0)
            """)
            put_flag(10, 11, pDbg)
            E(f"{lq}:")
        if i >= 1:
            for j in range(4):
                E(f"v_dot2_f32_bf16 v{vG}, v{vXF+j}, v{vGW+j}, v{vG}")
        slot = i % NS
        E(f"ds_read_b128 {vr(vXF,4)}, v{vGA0} offset:{slot*SLOT}")
        E(f"ds_read_b128 {vr(vGW,4)}, v{vGWA} offset:{128*i}")
        if not OPT["gath"]: E(f"""
        s_cmp_eq_u32 s{sUW}, {i}
        s_cbranch_scc0 L_ut{i}
        ds_read_b64_tr_b16 {vr(vU,2)}, v{vTA}
        ds_read_b64_tr_b16 {vr(vU+2,2)}, v{vTA+3}
        ds_read_b64_tr_b16 {vr(vU+4,2)}, v{vTA+1}
        ds_read_b64_tr_b16 {vr(vU+6,2)}, v{vTA+2}
        L_ut{i}:
        """)
    E(ADDR)
    tot = sum(c for c, _ in K); nw = OPT["kw"]
    pre = tot * OPT["kpre"] / 100
    segs = [[] for _ in range(9)]; acc = 0
    for c, x in K:
        segs[0 if acc < pre else 1 + min(nw - 1, int((acc - pre) * nw / (tot - pre)))].append(x); acc += c
    items = [D1, D2, D3, KC1, KC2]
    def place(w):
        for it, p in zip(items, PL):
            if p == w: it()
    E(segs[0])
    for i in range(8):
        gate_glue(i)
        if i == OPT["wqpf"]:
            E(f"s_mov_b64 exec, 0xffff\nglobal_load_dword v167, v{vWqP}, {sr(pW,2)}\ns_mov_b64 exec, -1")
        E(segs[i + 1])
    stamp("h")
    GATEF()
    uts = f"""
    global_store_dwordx4 v{vTS}, {vr(vU,4)}, {sr(pWs,2)} sc1
    global_store_dwordx4 v{vTS+1}, {vr(vU+4,4)}, {sr(pWs,2)} sc1
    """
    E(f"global_load_dword v{vTm}, v{vRdy}, {sr(pDbg,2)} sc1")
    place(0)
    E(f"s_setprio {OPT['prioq']}\ns_waitcnt lgkmcnt(0)\ns_barrier")
    stamp("h")
    if not OPT["gath"] and not OPT["utl"]: E(uts)
    SIG()
    place(1)
    E("s_barrier")
    place(2)
    assert OPT["ackn"] > 16 - OPT["lq"]
    E(f"s_setprio {OPT['prio']}\ns_waitcnt vmcnt(0)\ns_barrier")
    stamp("h")
    lq = newlab("nf"); lr = newlab("rdy")
    E(f"""
    s_cmp_lg_u32 s{sH}, 1
    s_cbranch_scc1 {lq}
    v_cmp_ne_u32 vcc, 0, v{vTm}
    s_nop 1
    s_cmp_eq_u64 vcc, -1
    s_cbranch_scc1 {lr}
    """)
    poll_global(vRdy, pDbg, vTm)
    E(f"{lr}:")
    put_flag(vF1, vOne)
    E(f"{lq}:")
    place(3)
    E("s_barrier")
    place(4)
    lq = newlab("nf")
    E(f"s_cmp_lg_u32 s{sH}, 1\ns_cbranch_scc1 {lq}")
    poll_global(vF1P, pFL, vTm)
    E(f"{lq}:")
    E("s_setprio 0\ns_barrier")
    stamp("h")
    late = OPT["utl"] and not OPT["gath"]
    if PL[0] == 5: D1()
    if late: E(uts)
    E(f"s_setprio {OPT['prio']}")
    if PL[1] == 5: D2()
    if PL[2] == 5: D3()
    if late:
        E("s_waitcnt vmcnt(0)")
        put_flag(vF4, vOne)
    if PL[3] == 5: KC1()
    if PL[4] == 5: KC2()
    if late:
        lds_arrive(vCA, vOne)
        lds_wait(vCA, vTm, 4)
        E("s_waitcnt vmcnt(0)")
        poll_global(vF4P, pFL, vTm)
    if OPT["gath"]:
        for j in range(8):
            E(f"global_load_dword v{vU+j}, v{vUL}, {sr(pX,2)} offset:{1024*j-4096}\ns_waitcnt vmcnt({OPT['gd'] if j < 7 else 0})")
        E(f"s_setprio {OPT['prio']}")
        for j in range(4):
            E(f"v_perm_b32 v{12+j}, v{vU+6-2*j}, v{vU+7-2*j}, s94")
            E(f"v_perm_b32 v{16+j}, v{vU+6-2*j}, v{vU+7-2*j}, s95")
        E(f"ds_write_b128 v{vUW}, v[12:15]\nds_write_b128 v{vUW}, v[16:19] offset:{URS}")
    else: E(f"""
    global_load_dwordx4 v[12:15], v{vUL}, {sr(pWs,2)} sc1
    global_load_dwordx4 v[16:19], v{vUL}, {sr(pWs,2)} offset:2048 sc1
    s_waitcnt vmcnt(0)
    s_setprio {OPT['prio']}
    ds_write_b128 v{vUW}, v[12:15] offset:512
    ds_write_b128 v{vUW}, v[16:19]
    """)
    lds_arrive(vCA, vOne)
    lds_wait(vCA, vTm, 8 if late else 4)
    stamp("h")
    vY = 64
    vF = [96, 192]
    def creads(r):
        f = vF[r & 1]; o = []
        for gmm in range(8):
            o.append(f"ds_read_b64 {vr(f+4*gmm,2)}, v{vAA} offset:{512*gmm+64*r}")
            o.append(f"ds_read_b64 {vr(f+4*gmm+2,2)}, v{vAA} offset:{512*gmm+64*r+8}")
            o.append(f"ds_read_b128 {vr(f+32+4*gmm,4)}, v{vBA} offset:{3584-512*gmm+64*r}")
        return o
    E(creads(0))
    E(f"s_setprio {OPT.get('prio3', OPT['prio'])}")
    for r in range(4):
        f = vF[r & 1]
        nxt = creads(r + 1) if r < 3 else []
        if r == 2 and OPT["wopf"]:
            E(f"s_mov_b64 exec, 0xffff\nglobal_load_dword v20, v{vWoP}, {sr(pWo,2)}\ns_mov_b64 exec, -1")
        E("s_waitcnt lgkmcnt(0)")
        seen = set()
        for gmm in range(8):
            for dl in range(8 - gmm):
                tau = gmm + dl
                c = "0" if (r == 0 and tau not in seen) else vr(vY + 4 * tau, 4)
                seen.add(tau)
                if not OPT.get("noconv"): E(f"v_mfma_f32_16x16x32_bf16 {vr(vY+4*tau,4)}, {vr(f+4*gmm,4)}, {vr(f+32+4*dl,4)}, {c}")
                if nxt: E(nxt.pop(0))
    E(f"s_setprio {OPT['prio']}")
    l1 = newlab("c1"); l2 = newlab("c2")
    E(f"s_nop 5\ns_cmp_eq_u32 s{sMH}, 0\ns_cbranch_scc0 {l1}")
    def conv_fin(send, keep):
        for j in range(4):
            E(f"ds_write_b128 v{vCW}, {vr(send+4*j,4)} offset:{1024*j}")
        lds_arrive(vCP, vOne)
        lds_wait(vCP, vTm, 2 + psync)
        for j in range(4):
            E(f"ds_read_b128 {vr(96+4*j,4)}, v{vCR} offset:{1024*j}")
        E("s_waitcnt lgkmcnt(0)")
        for j in range(16):
            E(f"v_add_f32 v{96+j}, v{keep+j}, v{96+j}")
    conv_fin(vY + 16, vY)
    E(f"s_branch {l2}\n{l1}:")
    conv_fin(vY, vY + 16)
    E(f"{l2}:")
    for j in range(4):
        E(f"v_cvt_pk_bf16_f32 v{112+2*j}, v{96+4*j}, v{97+4*j}\nv_cvt_pk_bf16_f32 v{113+2*j}, v{98+4*j}, v{99+4*j}")
        E(f"global_store_dwordx2 v{vAT}, {vr(112+2*j,2)}, {sr(sAT,2)} sc1")
        if j < 3: E(f"s_add_u32 s{sAT}, s{sAT}, {8*32768}\ns_addc_u32 s{sAT+1}, s{sAT+1}, 0")
    E("s_waitcnt vmcnt(0)")
    put_flag(vF3, vOne)
    stamp("h")
    vWo = 128
    sO = t0 + 2
    WD = OPT["wod"]
    for hd in range(0 if OPT.get("nowo") else 32 + WD):
        if hd < 32:
            if hd % 4 == 0: E(f"s_add_u32 m0, s{sWst}, {(hd%WSL)*1024}")
            E(f"s_mov_b32 s{sO}, {hd*16384-(hd%4)*1024}")
            E(f"buffer_load_dwordx4 v{vWoG}, {sr(SRDW,4)}, s{sO} offen offset:{(hd%4)*1024} lds")
        r = hd - WD
        if r >= 0:
            E(f"s_waitcnt vmcnt({min(WD, 31-r)}) lgkmcnt(8)")
            E(f"ds_read_b64_tr_b16 {vr(vWo+4*r,2)}, v{vWoL} offset:{1024*(r%WSL)}")
            E(f"ds_read_b64_tr_b16 {vr(vWo+4*r+2,2)}, v{vWoL} offset:{1024*(r%WSL)+512}")
    E("s_waitcnt lgkmcnt(0)")
    stamp("h")
    if OPT["clo"] & 1:
        E(f"s_bfm_b64 exec, 32, 0\nglobal_store_dword v{vClO}, v{vOne}, {sr(pWs,2)} sc1\ns_mov_b64 exec, -1")
    if OPT["clo"] & 2:
        E(f"s_bfm_b64 exec, 32, 0\nglobal_store_dword v{vOut}, v{vOne}, {sr(pOut,2)} sc1\ns_mov_b64 exec, -1")
    poll_global(vF3P, pFL, vTm)
    for r in range(16):
        E(f"global_load_short_d16_hi v{vA+r}, v{vAL}, {sr(pWs,2)} offset:{(8*(r>>2)+(r&3))*64} sc1")
    E("s_waitcnt vmcnt(0)")
    stamp("h")
    E("s_barrier")
    for r in range(16):
        E(f"v_mul_f32 v{vA+r}, v{vg}, v{vA+r}")
    E("s_barrier")
    stamp("h")
    vB = 64
    def ord_(hd): return f"ds_read_b128 {vr(vB+4*(hd%8),4)}, v{vOL} offset:{1024*hd}"
    E("s_barrier")
    stamp("h")
    for j in range(8): E(ord_(j))
    for hd in range(32):
        out = min(hd + 4, 31) - hd if hd >= 4 else 7 - hd
        E(f"s_waitcnt lgkmcnt({out if hd < 4 else min(3, 31-hd)})")
        E(f"v_mfma_f32_32x32x16_bf16 {vr(vAcc,16)}, {vr(vWo+4*hd,4)}, {vr(vB+4*(hd%8),4)}, {'0' if hd == 0 else vr(vAcc,16)}")
        nx = hd + 4
        if 8 <= nx < 32:
            if nx % 8 == 0: E("s_barrier")
            E(ord_(nx))
    E("s_nop 11")
    for r in range(16):
        E(f"v_fma_f32 v{vAcc+r}, v{vAcc+r}, v{vomg}, v{vA+r}")
    for j in range(8):
        E(f"v_cvt_pk_bf16_f32 v{vB+j}, v{vAcc+2*j}, v{vAcc+2*j+1}")
    E("s_nop 1")
    for a in (0, 1, 4, 5):
        E(f"v_permlane32_swap_b32 v{vB+a}, v{vB+2+a}")
    fl = ["", "sc1", "nt", "sc0 sc1"][OPT["outsc"]]
    E(f"global_store_dwordx4 v{vOut}, {vr(vB,4)}, {sr(pOut,2)} {fl}\nglobal_store_dwordx4 v{vOut}, {vr(vB+4,4)}, {sr(pOut,2)} offset:32 {fl}")
    if STAMP:
        E("s_waitcnt vmcnt(0)")
    stamp("h")
    stamp_flush("h"); spin_end("h")
    E("s_endpgm")

hdr = open(f"cdna_kernels/{NAME}.s.ref").read().split("; Override launch")[0]
prologue(); main_wave()
if OPT["lay"]: helper_wave()
E("L_end:\ns_endpgm")
out = hdr + f"""; @launch grid=(256,1,1) block=(512,1,1) lds={LDS_BYTES}
.amdgcn_target "amdgcn-amd-amdhsa--gfx950"
.text
.globl {NAME}_kernel
.p2align 8
.type {NAME}_kernel,@function
{NAME}_kernel:
""" + "\n".join(L) + f"""
.section .rodata,"a"
.p2align 6
.amdhsa_kernel {NAME}_kernel
  .amdhsa_next_free_vgpr 256
  .amdhsa_next_free_sgpr 102
  .amdhsa_accum_offset 256
  .amdhsa_group_segment_fixed_size 0
  .amdhsa_kernarg_size 128
  .amdhsa_user_sgpr_count 2
  .amdhsa_user_sgpr_kernarg_segment_ptr 1
  .amdhsa_system_sgpr_workgroup_id_x 1
.end_amdhsa_kernel
"""
open(sys.argv[1], "w").write(out)
```

```python
import sys, math, struct

NAME = "gated_mix__ssm_conv_s4__mha_block__prompt"
OPT = dict(stamp=0, rot=3, fs=128, spin=200000, prio=2, outsc=0, prio3=0, pf=1, tlb=1, ksplit=90, pk0=0, wod=4, wopf=1, lay=2, prioq=0, eb=2, lq=7, epc=10, ackn=26, ute=0, kcp=1, gath=0, gd=0, d1=3, d1w=4, pl=55555, utl=1, kpre=5, kw=7, clm=1, clo=3, rdyw=5, wqpf=2, sigl=1)
for a in sys.argv[2:]:
    k, v = a.split("=")
    OPT[k] = int(v)
STAMP = OPT["stamp"]
FS = OPT["fs"]
FSH = int(math.log2(FS))

L = []
def E(s):
    if isinstance(s, list): s = "\n".join(s)
    for x in s.split("\n"):
        x = x.strip()
        if x:
            L.append(("" if x.endswith(":") else "    ") + x)
def fbits(x): return "0x%08x" % struct.unpack("<I", struct.pack("<f", x))[0]
def vr(a, n): return f"v[{a}:{a+n-1}]"
def sr(a, n): return f"s[{a}:{a+n-1}]"

WS_KV = 0
WS_OF = 4 << 20
WS_AT = 6 << 20
WS_FL = 8 << 20
WS_UT = 10 << 20
WS_ST = 16 << 20
F1, F2 = 0, 256
F3 = 512 * FS // 4
F4 = F3 + 1024
KG = 0; KGS = 8704
KCP = 4160
UR = KG + 4 * KGS; URS = 4576
GP = UR + 2 * URS
GW = GP + 1024
CNT = GW + 2048
RING = CNT + 64
SLOT = 24576; WPART = 6144; NS = 3
WQ = RING + NS * SLOT
LDS_BYTES = WQ + 32768
EXCH = RING; RED = WQ; REDS = 4608
CRED = RING; WST = RING + 16384; WSL = 12; OFL = RING
assert RING % 256 == 0 and WST + 4 * WSL * 1024 <= WQ and LDS_BYTES <= 163840
sW, sHP, sRB, sCH, sROT = 3, 4, 5, 6, 7
SRDX, SRDW = 8, 12
pX, pAre, pAim, pBre, pBim, pCre, pCim, pLdt = 16, 18, 20, 22, 24, 26, 28, 30
pDsk, pW, pWo, pGw, pOut, pDbg, pWs = 32, 36, 38, 40, 42, 44, 46
pFL = 34
sT = 48
sSPIN = 62
sST = 64

nstamp = {"m": 0, "h": 0}
SPM, SPH = OPT.get("spm", -1), OPT.get("sph", -1)
def spin_end(role):
    if (SPM if role == "m" else SPH) < 0: return
    l = newlab("sp")
    E(f"{l}:\ns_memrealtime s[98:99]\ns_waitcnt lgkmcnt(0)\ns_sub_u32 s98, s98, s96\ns_cmp_lt_u32 s98, 4000\ns_cbranch_scc1 {l}")
def stamp(role):
    if SPM >= 0 or SPH >= 0:
        i = nstamp[role]; nstamp[role] += 1
        if i == (SPM if role == "m" else SPH): E("s_memrealtime s[96:97]\ns_waitcnt lgkmcnt(0)")
        return
    if not STAMP or nstamp[role] >= 14: return
    i = nstamp[role]; nstamp[role] += 1
    E(f"s_memrealtime {sr(sST+2*i,2)}\ns_waitcnt lgkmcnt(0)")
def stamp_flush(role):
    if not STAMP: return
    E(f"s_lshl_b32 s{sT}, s2, 3\ns_add_u32 s{sT}, s{sT}, s{sW}\ns_lshl_b32 s{sT}, s{sT}, 6\ns_add_u32 s{sT}, s{sT}, {WS_ST}\nv_mov_b32 v2, s{sT}")
    for i in range(nstamp[role]):
        E(f"v_mov_b32 v3, s{sST+2*i}\nglobal_store_dword v2, v3, {sr(pWs,2)} offset:{4*i}")
    E(f"s_getreg_b32 s{sT}, hwreg(HW_REG_XCC_ID)\nv_mov_b32 v3, s{sT}\nglobal_store_dword v2, v3, {sr(pWs,2)} offset:60")

lab = [0]
def newlab(p):
    lab[0] += 1
    return f"L_{p}_{lab[0]}"

def poll_global(vaddr, base, vtmp):
    l = newlab("poll"); d = newlab("polld")
    E(f"""
    s_mov_b32 s{sSPIN}, {OPT['spin']}
    {l}:
    global_load_dword v{vtmp}, v{vaddr}, {sr(base,2)} sc1
    s_sub_u32 s{sSPIN}, s{sSPIN}, 1
    s_cbranch_scc1 {d}
    s_waitcnt vmcnt(0)
    v_cmp_ne_u32 vcc, 0, v{vtmp}
    s_nop 1
    s_cmp_eq_u64 vcc, -1
    s_cbranch_scc0 {l}
    {d}:
    s_waitcnt vmcnt(0)
    """)
def put_flag(vaddr, vone, base=None):
    E(f"""
    s_mov_b64 exec, 1
    global_store_dword v{vaddr}, v{vone}, {sr(pFL if base is None else base,2)} sc1
    s_mov_b64 exec, -1
    """)
def lds_arrive(vaddr, vone):
    E(f"""
    s_mov_b64 exec, 1
    ds_add_u32 v{vaddr}, v{vone}
    s_mov_b64 exec, -1
    """)
def lds_wait(vaddr, vtmp, n):
    l = newlab("lw"); d = newlab("lwd")
    E(f"""
    s_mov_b32 s{sSPIN}, {OPT['spin']*8}
    {l}:
    ds_read_b32 v{vtmp}, v{vaddr}
    s_sub_u32 s{sSPIN}, s{sSPIN}, 1
    s_cbranch_scc1 {d}
    s_waitcnt lgkmcnt(0)
    v_readfirstlane_b32 s{sSPIN+1}, v{vtmp}
    s_nop 1
    s_cmp_ge_u32 s{sSPIN+1}, {n}
    s_cbranch_scc0 {l}
    {d}:
    s_waitcnt lgkmcnt(0)
    """)

def helper_entry():
    sH, sC, sMH, sD, sLd, sDs, t0 = sT, sT + 1, sT + 2, sT + 5, sT + 6, sT + 7, sT + 8
    E(f"L_h0:\ns_setprio {OPT['prio']}\ns_sub_u32 s{sH}, s{sW}, 4")
    if OPT["pf"]:
        E(f"""
        s_getpc_b64 s[8:9]
        L_pc:
        s_andn2_b32 s10, s2, 7
        s_lshl1_add_u32 s10, s{sH}, s10
        v_and_b32 v2, 1, v1
        v_add_lshl_u32 v2, v2, s10, 7
        v_min_u32 v2, L_end-L_pc, v2
        v_mov_b32 v3, 0
        v_lshl_add_u64 v[2:3], v[2:3], 0, s[8:9]
        global_load_dword v167, v[2:3], off
        """)
    if OPT["gath"]:
        E(f"s_and_b32 s{sCH}, s2, 7\ns_lshl_b32 s{sCH}, s{sCH}, 5\ns_lshr_b32 s{t0}, s2, 3\ns_or_b32 s{sCH}, s{sCH}, s{t0}")
    else:
        E(f"s_lshl4_add_u32 s{sCH}, s{sHP}, s{sRB}")
    E(f"""
    s_lshl2_add_u32 s{t0}, s{sCH}, s{sH}
    s_lshl_b32 s{t0}, s{t0}, 7
    v_lshl_add_u32 v2, v1, 1, s{t0}
    s_lshl_b32 s{t0+1}, s{sCH}, 2
    s_and_b32 s{sMH}, s{sH}, 1
    s_lshl_b32 s{t0}, s{sMH}, 10
    s_add_u32 m0, s{t0}, {GW}
    v_lshlrev_b32 v3, 4, v1
    s_waitcnt lgkmcnt(0)
    """)
    for j, p in enumerate((pAre, pAim, pBre, pBim, pCre, pCim)):
        E(f"global_load_ushort v{4+j}, v2, {sr(p,2)}")
    E(f"""
    global_load_lds_dwordx4 v3, {sr(pGw,2)}
    {"s_barrier" if OPT["eb"] else ""}
    s_load_dword s{sLd}, {sr(pLdt,2)}, s{t0+1}
    s_load_dword s{sDs}, {sr(pDsk,2)}, s{t0+1}
    s_lshl_b32 s{sCH}, s{sCH}, 1
    """)

def prologue():
    if STAMP:
        E(f"s_memrealtime {sr(sST,2)}"); nstamp["m"] = nstamp["h"] = 1
    E(f"""
    s_cmpk_ge_u32 s2, 0x100
    s_cbranch_scc1 L_end
    s_load_dwordx16 s[16:31], s[0:1], 0
    s_load_dwordx16 s[32:47], s[0:1], 64
    """)
    if OPT.get("rndws"): E(f"""
    s_memrealtime s[98:99]
    s_waitcnt lgkmcnt(0)
    s_lshr_b32 s98, s98, 15
    s_mul_i32 s98, s98, 0x9e3779b1
    s_lshr_b32 s98, s98, 28
    s_mul_i32 s98, s98, {OPT["rndws"]-1}
    s_lshl_b32 s98, s98, 24
    s_add_u32 s{pWs}, s{pWs}, s98
    s_addc_u32 s{pWs+1}, s{pWs+1}, 0
    """)
    E(f"""
    v_lshrrev_b32 v2, 6, v0
    v_and_b32 v1, 63, v0
    v_readfirstlane_b32 s{sW}, v2
    s_bfe_u32 s{sHP}, s2, 0x30003
    s_and_b32 s{sT}, s2, 1
    s_lshl3_add_u32 s{sHP}, s{sT}, s{sHP}
    s_lshr_b32 s{sRB}, s2, 6
    s_and_b32 s{sT}, s2, 6
    s_lshl1_add_u32 s{sRB}, s{sT}, s{sRB}
    """)
    if OPT["rot"] == 0:
        E(f"s_mov_b32 s{sROT}, 0")
    elif OPT["rot"] == 1:
        E(f"s_xor_b32 s{sROT}, s{sHP}, s{sRB}\ns_and_b32 s{sROT}, s{sROT}, 1\ns_lshl_b32 s{sROT}, s{sROT}, 2")
    elif OPT["rot"] == 2:
        E(f"s_lshl1_add_u32 s{sROT}, s{sRB}, s{sHP}\ns_and_b32 s{sROT}, s{sROT}, 7")
    else:
        E(f"s_lshl1_add_u32 s{sROT}, s{sRB}, s{sHP}\ns_and_b32 s{sROT}, s{sROT}, 6")
    if OPT["lay"] == 2:
        E(f"s_cmp_lt_u32 s{sW}, 4\ns_cbranch_scc1 L_m0")
        helper_entry()
        E("s_branch L_helper\nL_m0:")
    else:
        E(f"s_cmp_ge_u32 s{sW}, 4\ns_cbranch_scc1 L_h0")

def main_wave():
    vXD, vWD, vXA, vWA, vQA = 4, 8, 10, 14, 16
    vFB = 24
    aK, aV, aQ = 48, 64, 80
    vP = 96
    vXF = 128
    sXO, sWO, sM0, sX, sZ, sQS = 92, 93, 94, 95, 100, 101
    sKVb, sKV, sJ, sCnt, sMask = sT + 2, sT + 4, sT + 6, sT + 7, sT + 8
    ta, tb, tc = sT + 10, sT + 11, sT + 12
    vO, vKV = 128, 192
    (vIDX, vKA, vVA, vSA, vSB, vSV, vEW, vER0, vER1, vERV, vRW, vRWl, vRR, vRRl, vOA, vOB) = range(112, 128)
    vF2, vOne, vF2P, vOD, vOnes, vZer = range(17, 23)
    vQ = 96; SA, SB = 24, 40; vT = 56
    E(f"""
    s_lshl2_add_u32 s{sT}, s{sRB}, s{sW}
    s_lshl_b32 s{sT}, s{sT}, 15
    v_lshrrev_b32 v2, 3, v1
    v_lshl_add_u32 v2, v2, 10, s{sT}
    v_lshrrev_b32 v3, 4, v1
    v_xor_b32 v3, v3, v1
    v_and_b32 v3, 7, v3
    v_lshl_add_u32 v{vXD}, v3, 4, v2
    v_xor_b32 v{vXD+1}, 64, v{vXD}
    s_movk_i32 s{sT}, 7168
    v_add_u32 v{vXD+1}, s{sT}, v{vXD+1}
    s_movk_i32 s{sT}, 14336
    v_add_u32 v{vXD+2}, s{sT}, v{vXD}
    v_add_u32 v{vXD+3}, s{sT}, v{vXD+1}
    v_lshrrev_b32 v2, 2, v0
    v_mul_u32_u24 v2, 3072, v2
    v_and_b32 v3, 3, v1
    s_lshl2_add_u32 s{sT}, s{sHP}, 64
    v_add_u32 v3, s{sT}, v3
    v_lshl_add_u32 v{vWD}, v3, 4, v2
    s_mul_i32 s{sM0}, s{sW}, {WPART}
    s_mov_b32 s{SRDX+2}, 0x200000
    s_mov_b32 s{SRDX+3}, 0x00020000
    s_mov_b64 {sr(SRDW+2,2)}, {sr(SRDX+2,2)}
    """)
    def dma(i, first=False):
        slot = i % NS
        g = []
        for seg in range(2):
            g.append([f"buffer_load_dwordx4 v{vWD}, {sr(SRDW,4)}, s{sWO} offen offset:{seg*1024} lds"])
        for j in range(4):
            g.append([f"buffer_load_dwordx4 v{vXD+j}, {sr(SRDX,4)}, s{sXO} offen offset:{j*1024} lds"])
        st = sROT if i == 0 else sT
        pre = [] if i == 0 else [f"s_add_u32 s{sT}, s{sROT}, {i}", f"s_and_b32 s{sT}, s{sT}, 7"]
        pre += [f"s_add_u32 m0, s{sM0}, {RING+slot*SLOT+4096}", f"s_mul_i32 s{sWO}, s{st}, 196608"]
        if first:
            pre += ["s_waitcnt lgkmcnt(0)", f"s_mov_b64 {sr(SRDW,2)}, {sr(pW,2)}", f"s_mov_b64 {sr(SRDX,2)}, {sr(pX,2)}"]
        g[0] = pre + g[0]
        g[2] = [f"s_add_u32 m0, s{sM0}, {RING+slot*SLOT}", f"s_lshl_b32 s{sXO}, s{st}, 7"] + g[2]
        return g
    for gi, g in enumerate(dma(0, True)):
        if gi == 0 and OPT["eb"] == 2: g.insert(len(g) - 1, "s_barrier")
        E(g)
    if OPT["eb"] == 1: E("s_barrier")
    if OPT["lay"] == 0:
        for g in dma(1): E(g)
        E("s_branch L_m1")
        helper_entry(); helper_wave()
        E("L_m1:")
        stamp("m")
    elif OPT["lay"] == 2:
        stamp("m")
        held = dma(1)
        for g in held[:OPT["d1"]]: E(g)
        held = held[OPT["d1"]:]
    else:
        E("s_branch L_m1")
        helper_entry()
        E("s_branch L_helper\nL_m1:")
        stamp("m")
        for g in dma(1): E(g)
    if OPT["tlb"]:
        E(f"""
        s_mov_b32 s{ta}, {WS_FL + 0x100000}
        s_load_dword s18, {sr(pWs,2)}, s{ta}
        s_load_dword s19, {sr(pDbg,2)}, 128
        s_load_dword s20, {sr(pOut,2)}, 0
        s_load_dword s21, {sr(pWo,2)}, 0
        """)
    E(f"""
    s_add_u32 s{pFL}, s{pWs}, {WS_FL}
    s_addc_u32 s{pFL+1}, s{pWs+1}, 0
    s_add_u32 s{ta}, s{sM0}, {RING}
    v_and_b32 v2, 31, v1
    v_lshl_add_u32 v2, v2, 7, s{ta}
    v_bfe_u32 v3, v1, 1, 3
    v_lshrrev_b32 v{vXA+1}, 5, v1
    v_xor_b32 v3, v3, v{vXA+1}
    v_lshl_add_u32 v{vXA}, v3, 4, v2
    v_xor_b32 v{vXA+1}, 32, v{vXA}
    v_xor_b32 v{vXA+2}, 64, v{vXA}
    v_xor_b32 v{vXA+3}, 0x60, v{vXA}
    v_lshrrev_b32 v2, 5, v1
    v_lshlrev_b32 v2, 3, v2
    v_bfe_u32 v3, v1, 2, 2
    v_add_u32 v2, v2, v3
    v_lshlrev_b32 v2, 6, v2
    v_and_b32 v3, 3, v1
    v_lshl_add_u32 v2, v3, 3, v2
    v_bfe_u32 v3, v1, 4, 1
    v_lshl_add_u32 v2, v3, 5, v2
    v_add_u32 v{vWA}, {RING+4096}, v2
    v_add_u32 v{vWA+1}, {RING+4096+2*SLOT}, v2
    v_add_u32 v{vQA}, {WQ}, v2
    """)
    E(f"""
    s_and_b32 s{sX}, s{sW}, 1
    s_lshr_b32 s{sZ}, s{sW}, 1
    s_mov_b32 s{sQS}, {fbits(0.25 * math.log2(math.e))}
    s_lshl2_add_u32 s{ta}, s{sRB}, s{sW}
    s_lshl_b32 s{ta}, s{ta}, 11
    s_lshl_b32 s{tb}, s{sHP}, 18
    s_add_u32 s{ta}, s{ta}, s{tb}
    v_lshlrev_b32 v{vKA}, 4, v1
    v_add_u32 v{vSA}, s{ta}, v{vKA}
    v_add_u32 v{vSB}, 0x20000, v{vSA}
    v_and_b32 v{vVA}, 15, v1
    v_lshrrev_b32 v2, 5, v1
    v_lshl_add_u32 v{vVA}, v2, 4, v{vVA}
    v_lshlrev_b32 v{vVA}, 4, v{vVA}
    v_bfe_u32 v2, v1, 4, 1
    v_lshlrev_b32 v2, 17, v2
    v_add3_u32 v{vSV}, v2, v{vVA}, s{ta}
    s_add_u32 s{tb}, s{sM0}, {EXCH}
    v_add_u32 v{vEW}, s{tb}, v{vKA}
    s_lshl_b32 s{ta}, s{sX}, 10
    s_add_u32 s{ta}, s{ta}, {EXCH}
    s_mul_i32 s{tb}, s{sZ}, 12288
    s_add_u32 s{tc}, s{ta}, s{tb}
    v_add_u32 v{vER0}, s{tc}, v{vKA}
    s_sub_u32 s{tc}, s{ta}, s{tb}
    s_add_u32 s{tc}, s{tc}, 12288
    v_add_u32 v{vER1}, s{tc}, v{vKA}
    s_lshl_b32 s{ta}, s{sX}, 8
    s_add_u32 s{tc}, s{ta}, s{tb}
    s_add_u32 s{tc}, s{tc}, {EXCH}
    v_add_u32 v{vERV}, s{tc}, v{vKA}
    s_lshl1_add_u32 s{ta}, s{sHP}, s{sX}
    s_lshl_b32 s{tb}, s{ta}, 17
    s_lshl_b32 s{tc}, s{sZ}, 12
    s_add_u32 s{tb}, s{tb}, s{tc}
    s_add_u32 s{sKVb}, s{pWs}, s{tb}
    s_addc_u32 s{sKVb+1}, s{pWs+1}, 0
    s_lshl_b32 s{sJ}, s{sRB}, 13
    s_lshl1_add_u32 s{tb}, s{sRB}, s{sZ}
    s_lshl_b32 s{tb}, s{tb}, 6
    s_add_u32 s{tb}, s{tb}, s{ta}
    s_lshl_b32 s{tb}, s{tb}, 10
    s_add_u32 s{tb}, s{tb}, {WS_OF}
    v_add_u32 v{vOA}, s{tb}, v{vKA}
    v_add_u32 v{vOB}, 0x8000, v{vOA}
    s_mul_i32 s{ta}, s{sW}, {REDS}
    s_add_u32 s{ta}, s{ta}, {RED}
    v_add_u32 v{vRW}, s{ta}, v{vKA}
    v_lshl_add_u32 v{vRWl}, v1, 2, s{ta}
    s_xor_b32 s{ta}, s{sW}, 2
    s_mul_i32 s{ta}, s{ta}, {REDS}
    s_add_u32 s{ta}, s{ta}, {RED}
    v_add_u32 v{vRR}, s{ta}, v{vKA}
    v_lshl_add_u32 v{vRRl}, v1, 2, s{ta}
    s_lshl_b32 s{ta}, s{sRB}, 4
    s_add_u32 s{ta}, s{ta}, {F2}
    s_add_u32 s{tb}, s{ta}, s{sHP}
    s_lshl_b32 s{tb}, s{tb}, {FSH}
    v_mov_b32 v{vF2}, s{tb}
    v_mov_b32 v{vOne}, 1
    v_and_b32 v3, 15, v1
    v_add_u32 v2, s{ta}, v3
    v_lshlrev_b32 v{vF2P}, {FSH}, v2
    s_and_b32 s{tb}, s{sHP}, 3
    s_lshl2_add_u32 s{ta}, s{sRB}, s{tb}
    s_lshl_b32 s{ta}, s{ta}, 15
    s_add_u32 s{ta}, s{ta}, {WS_OF}
    v_add_u32 v{vOD}, s{ta}, v{vKA}
    v_mov_b32 v{vIDX}, 0xdddddddd
    v_and_b32 v2, 27, v1
    v_cmp_eq_u32 vcc, 16, v2
    v_mov_b32 v2, {CNT+32}
    v_mov_b32 v{vZer}, {CNT+16}
    s_mov_b32 s{sMask}, 0x0000ffff
    s_mov_b32 s{sMask+1}, 0x0000ffff
    v_cndmask_b32 v{vOnes}, v{vZer}, v2, vcc
    s_mov_b32 s{sCnt}, 8
    """)
    def kvaddr():
        return [f"s_add_u32 s{sJ}, s{sJ}, 0x2000", f"s_and_b32 s{sJ}, s{sJ}, 0x1e000",
                f"s_add_u32 s{sKV}, s{sKVb}, s{sJ}", f"s_addc_u32 s{sKV+1}, s{sKVb+1}, 0"]
    E(kvaddr())
    def reads(n):
        i, s = n >> 2, n & 3
        slot = i % NS
        a = vWA + (slot >> 1); so = (slot & 1) * SLOT + s * WPART
        f = vFB + 8 * (n % 3)
        o = [f"ds_read_b128 {vr(vXF+4*n,4)}, v{vXA+s} offset:{slot*SLOT}"]
        for c in range(2):
            o.append(f"ds_read_b64_tr_b16 {vr(f+4*c,2)}, v{a} offset:{so+1024*c}")
            o.append(f"ds_read_b64_tr_b16 {vr(f+2+4*c,2)}, v{a} offset:{so+1024*c+256}")
        return o
    def dmaq(h):
        return [[f"s_add_u32 s{sT}, s{sROT}, {i}", f"s_and_b32 s{sT}, s{sT}, 7", f"s_add_u32 m0, s{sXO}, {WQ+4096*i}",
                 f"s_mul_i32 s{sWO}, s{sT}, 196608", f"buffer_load_dwordx4 v{vWD+1}, {sr(SRDW,4)}, s{sWO} offen lds"] for i in range(4*h, 4*h+4)]
    E(f"v_subrev_u32 v{vWD+1}, 1024, v{vWD}")
    if held:
        E(f"s_waitcnt vmcnt({OPT['d1'] + 6 - OPT['d1w']})")
        for g in held: E(g)
    E("s_waitcnt vmcnt(6)")
    if STAMP == 5: stamp("m")
    E("s_barrier")
    stamp("m")
    E(reads(0) + reads(1))
    pend = dma(2)
    E(pend.pop(0)); E(pend.pop(0))
    for n in range(32):
        f = vFB + 8 * (n % 3); x = vXF + 4 * n
        c = (lambda a: "0" if n == 0 else vr(a, 16))
        m = [f"v_mfma_f32_32x32x16_bf16 {vr(aV,16)}, {vr(x,4)}, {vr(f+4,4)}, {c(aV)}",
             f"v_mfma_f32_32x32x16_bf16 {vr(aK,16)}, {vr(f,4)}, {vr(x,4)}, {c(aK)}"]
        r = reads(n + 2) if n + 2 < 32 else []
        E(f"s_waitcnt lgkmcnt({5 if n < 31 else 0})")
        E(m[0])
        if (n + 2) % 4 == 0 and n + 2 < 32:
            b = (n + 2) >> 2
            assert not pend
            E(f"s_waitcnt vmcnt({6 if b < 7 else 4}) lgkmcnt(0)")
            if STAMP == 3: stamp("m")
            E("s_barrier")
            if STAMP == 2: stamp("m")
            if b + 2 <= 7: pend = dma(b + 2)
            else:
                pend = dmaq(b - 6)
                if b == 6: E(f"s_lshl_b32 s{sXO}, s{sW}, 10")
        E(r[:3])
        if pend: E(pend.pop(0))
        E(m[1]); E(r[3:])
        if pend: E(pend.pop(0))
    stamp("m")
    ep = [f"v_cvt_pk_bf16_f32 v{vP+j}, v{aK+2*j}, v{aK+1+2*j}" for j in range(4)]
    ep += [f"global_store_dwordx4 v{vSA}, {vr(vP,4)}, {sr(pWs,2)} sc1"]
    ep += [f"v_cvt_pk_bf16_f32 v{vP+j}, v{aK+2*j}, v{aK+1+2*j}" for j in range(4, 8)]
    ep += [f"global_store_dwordx4 v{vSB}, {vr(vP+4,4)}, {sr(pWs,2)} sc1"]
    ep += [f"v_permlane32_swap_b32 v{vP+8+a}, v{vP+10+a}" for a in (0, 1)]
    ep += [f"global_store_dwordx4 v{vSV}, {vr(vP+8,4)}, {sr(pWs,2)} offset:1024 sc1"]
    ep += [f"v_permlane32_swap_b32 v{vP+8+a}, v{vP+10+a}" for a in (4, 5)]
    ep += [f"global_store_dwordx4 v{vSV}, {vr(vP+12,4)}, {sr(pWs,2)} offset:1536 sc1"]
    LQ = OPT["lq"]
    qb = [40, 44, 24, 28, 32, 36, 64, 68, 72]
    def qread(n):
        f = qb[n % 9]
        return [f"ds_read_b64_tr_b16 {vr(f,2)}, v{vQA} offset:{1024*n}", f"ds_read_b64_tr_b16 {vr(f+2,2)}, v{vQA} offset:{1024*n+256}"]
    E("s_nop 10")
    for j in range(8):
        E(f"v_cvt_pk_bf16_f32 v{vP+8+j}, v{aV+2*j}, v{aV+1+2*j}")
    cut = OPT["epc"]
    E(ep[:cut])
    E(f"s_waitcnt vmcnt({4 + sum('store' in x for x in ep[:cut])})\ns_barrier")
    if STAMP == 4: stamp("m")
    for n in range(LQ): E(qread(n))
    E(ep[cut:])
    late = [f"ds_read_b128 {vr(vO+16*q+8+4*e,4)}, v{vZer}" for q in range(4) for e in range(2)]
    late += [f"ds_write_b128 v{vEW}, {vr(vP+4*j,4)} offset:{2048+1024*j}" for j in range(4)]
    late += [f"ds_read_b128 {vr(vKV+12*st+4+4*e,4)}, v{vOnes}" for st in range(4) for e in range(2)]
    nl = 0
    for n in range(32):
        E(f"s_waitcnt lgkmcnt({min(15, 2*min(LQ-1, 31-n) + nl)})")
        E(f"v_mfma_f32_32x32x16_bf16 {vr(aQ,16)}, {vr(qb[n%9],4)}, {vr(vXF+4*n,4)}, {'0' if n == 0 else vr(aQ,16)}")
        if n == OPT["ackn"]:
            if STAMP == 4: stamp("m")
            E("s_waitcnt vmcnt(0)\ns_barrier")
            if STAMP == 4: stamp("m")
        if n + LQ < 32:
            if n + LQ == 16:
                if STAMP == 4: stamp("m")
                E("s_waitcnt vmcnt(4)\ns_barrier")
                if STAMP == 4: stamp("m")
            E(qread(n + LQ))
        else:
            E(late[:2]); late = late[2:]; nl += 2
        r0 = vXF + 4 * (n - 1)
        for r in range(r0, r0 + 4):
            if n >= 1 and r < vKV and (r - vO) % 16 < 8: E(f"v_mov_b32 v{r}, 0")
    E(late)
    E(f"s_nop {max(0, 11 - len(late))}")
    for o in (0, 1):
        for j in range(8):
            E(f"v_mul_f32 v{aQ+8*o+j}, s{sQS}, v{aQ+8*o+j}")
        for j in range(4):
            E(f"v_cvt_pk_bf16_f32 v{aK+4*o+j}, v{aQ+8*o+2*j}, v{aQ+8*o+1+2*j}")
        E(f"ds_write_b128 v{vEW}, {vr(aK+4*o,4)} offset:{1024*o}")
    if STAMP == 4: stamp("m"); E("s_waitcnt vmcnt(0)"); stamp("m")
    E("s_waitcnt vmcnt(0) lgkmcnt(0)\ns_barrier")
    stamp("m")
    E(f"""
    ds_read_b128 {vr(vQ,4)}, v{vER1}
    ds_read_b128 {vr(vKV,4)}, v{vER0} offset:2048
    ds_read_b128 {vr(vQ+4,4)}, v{vER1} offset:6144
    s_mov_b64 exec, {sr(sMask,2)}
    ds_read_b128 {vr(vKV+4,4)}, v{vERV} offset:4096
    ds_read_b128 {vr(vKV+8,4)}, v{vERV} offset:5120
    ds_read_b128 {vr(vKV+16,4)}, v{vERV} offset:{4096+6144}
    ds_read_b128 {vr(vKV+20,4)}, v{vERV} offset:{5120+6144}
    s_mov_b64 exec, -1
    ds_read_b128 {vr(vQ+8,4)}, v{vER0}
    ds_read_b128 {vr(vQ+12,4)}, v{vER0} offset:6144
    ds_read_b128 {vr(vKV+12,4)}, v{vER0} offset:{2048+6144}
    s_waitcnt lgkmcnt(8)
    v_mfma_f32_32x32x16_bf16 {vr(SA,16)}, {vr(vKV,4)}, {vr(vQ,4)}, 0
    s_nop 10
    s_waitcnt lgkmcnt(0)
    """)
    def kload(st, par):
        return [f"global_load_dwordx4 {vr(vKV+12*st,4)}, v{vKA}, {sr(sKV,2)} offset:{par*2048} sc1"]
    def vload(st, par):
        return [f"s_mov_b64 exec, {sr(sMask,2)}",
                f"global_load_dwordx4 {vr(vKV+12*st+4,4)}, v{vVA}, {sr(sKV,2)} offset:{par*2048+1024} sc1",
                f"global_load_dwordx4 {vr(vKV+12*st+8,4)}, v{vVA}, {sr(sKV,2)} offset:{par*2048+1536} sc1",
                "s_mov_b64 exec, -1"]
    def step(t, q, mode="loop", lo=0, hi=16, extra=None):
        cur, oth = (SA, SB) if q % 2 == 0 else (SB, SA)
        tp, qp = (t, q - 1) if q else ((t - 1) % 4, 3)
        tn, qn = (t, q + 1) if q < 3 else ((t + 1) % 4, 0)
        after2, afterq, after1 = extra or ([], [], [])
        st = (t + 3) % 4; par = (t + 3) & 1
        if mode == "loop":
            if q == 0:
                after2 = vload(st, par); afterq = kload(st, par)
            if q == 1 and par == 1:
                ka = kvaddr(); after2 = ka[:2]; after1 = ka[2:]
            if q == 3:
                after2 = ["s_waitcnt vmcnt(6)"]
                if t == 2:
                    after2 += [f"s_sub_u32 s{sCnt}, s{sCnt}, 1"]; afterq = [f"s_cmp_lg_u32 s{sCnt}, 0"]
        for i in range(lo, hi):
            E(f"v_exp_f32 v{cur+i}, v{cur+i}")
            if i == 1 and not (mode == "first" and q == 0):
                E(f"v_smfmac_f32_32x32x32_bf16 {vr(vO+16*qp,16)}, {vr(vKV+12*tp+8,4)}, {vr(oth+8,8)}, v{vIDX}")
                E(after2)
            if i == 4 and not (mode == "last" and q == 3):
                E(f"v_mfma_f32_32x32x16_bf16 {vr(oth,16)}, {vr(vKV+12*tn,4)}, {vr(vQ+4*qn,4)}, 0")
                E(afterq)
            if i == 10:
                E(f"v_smfmac_f32_32x32x32_bf16 {vr(vO+16*q,16)}, {vr(vKV+12*t+4,4)}, {vr(cur,8)}, v{vIDX}")
                E(after1)
    for q in range(4): step(0, q, "first")
    E("s_barrier")
    stamp("m")
    E(kload(2, 0) + vload(2, 0) + vload(3, 1) + kload(3, 1) + kvaddr())
    E("s_branch L_attn1\n.p2align 3\nL_attn:")
    step(2, 3, lo=11)
    for t in (3, 0, 1, 2):
        if t == 1: E("L_attn1:")
        for q in range(4): step(t, q, hi=(11 if (t, q) == (2, 3) else 16))
    if OPT.get("itst"):
        E(f"s_memtime s[90:91]\ns_mov_b32 m0, s{sCnt}\ns_waitcnt lgkmcnt(0)\nv_writelane_b32 v23, s90, m0")
    E("s_cbranch_scc1 L_attn")
    step(2, 3, lo=11)
    vR = 64
    def sendw(q): return [f"ds_write_b128 v{vRW}, {vr(vO+16*q,4)} offset:{2048*q}", f"ds_write_b128 v{vRW}, {vr(vO+16*q+4,4)} offset:{2048*q+1024}",
                          f"ds_write_b32 v{vRWl}, v{vO+16*q+8} offset:{4096+256*q}"]
    recv = ["s_waitcnt lgkmcnt(0)", "s_barrier",
            f"ds_read_b32 v{vR+16}, v{vRRl} offset:4096", f"ds_read_b128 {vr(vR,4)}, v{vRR}", f"ds_read_b128 {vr(vR+4,4)}, v{vRR} offset:1024",
            f"ds_read_b32 v{vR+17}, v{vRRl} offset:4352", f"ds_read_b128 {vr(vR+8,4)}, v{vRR} offset:2048", f"ds_read_b128 {vr(vR+12,4)}, v{vRR} offset:3072"]
    step(3, 0, "last"); step(3, 1, "last")
    w0 = sendw(0)
    step(3, 2, "last", extra=(w0[:1], w0[1:2], w0[2:]))
    step(3, 3, "last", extra=(sendw(1), [], recv))
    O2, O3 = vO + 32, vO + 48
    E(f"""
    s_waitcnt lgkmcnt(3)
    v_add_f32 v{O2+8}, v{O2+8}, v{vR+16}
    v_smfmac_f32_32x32x32_bf16 {vr(O3,16)}, {vr(vKV+36+8,4)}, {vr(SB+8,8)}, v{vIDX}
    """)
    stamp("m")
    def fin(o, r, rl, dst, addr):
        if rl is not None: E(f"v_add_f32 v{o+8}, v{o+8}, v{rl}")
        E(f"v_rcp_f32 v{vT}, v{o+8}")
        if r is not None:
            for j in range(8): E(f"v_add_f32 v{o+j}, v{o+j}, v{r+j}")
        else:
            E("s_nop 0")
        for j in range(8): E(f"v_mul_f32 v{o+j}, v{o+j}, v{vT}")
        for j in range(4): E(f"v_cvt_pk_bf16_f32 v{dst+j}, v{o+2*j}, v{o+2*j+1}")
        E(f"global_store_dwordx4 v{addr}, {vr(dst,4)}, {sr(pWs,2)} sc1")
    fin(O2, vR, None, SA, vOA)
    E("s_waitcnt lgkmcnt(0)")
    fin(O3, vR + 8, vR + 17, SA + 4, vOB)
    E(f"""
    s_mov_b32 s{ta}, {fbits(2.0**-30)}
    s_mov_b32 s{tb}, {fbits(2.0**50)}
    v_min_f32 v{vT+6}, v{O2+8}, v{O3+8}
    v_max_f32 v{vT+7}, v{O2+8}, v{O3+8}
    v_cmp_lt_f32 vcc, s{ta}, v{vT+6}
    v_cmp_gt_f32 {sr(tc,2)}, s{tb}, v{vT+7}
    v_pk_mul_f32 {vr(vT+2,2)}, {vr(O2,2)}, 0 op_sel_hi:[1,0]
    s_and_b64 {sr(tc,2)}, {sr(tc,2)}, vcc
    """)
    for j in (2, 4, 6, 16, 18, 20, 22):
        E(f"v_pk_fma_f32 {vr(vT+2,2)}, {vr(O2+j,2)}, 0, {vr(vT+2,2)} op_sel_hi:[1,0,1]")
    E(f"""
    v_cmp_o_f32 vcc, v{vT+2}, v{vT+3}
    s_nop 1
    s_and_b64 vcc, {sr(tc,2)}, vcc
    s_cmp_eq_u64 vcc, -1
    s_cbranch_scc0 L_safe
    L_pub:
    s_waitcnt vmcnt(0)
    s_barrier
    """)
    stamp("m")
    E(f"s_cmp_lg_u32 s{sW}, 0\ns_cbranch_scc1 L_mdone")
    put_flag(vF2, vOne)
    E("s_waitcnt vmcnt(0)")
    poll_global(vF2P, pFL, 2)
    E(f"s_mov_b32 s{sKV}, s{pWs}\ns_mov_b32 s{sKV+1}, s{pWs+1}")
    for g in range(8):
        E(f"s_mov_b32 m0, {OFL+4096*g}")
        if g: E(f"s_add_u32 s{sKV}, s{sKV}, 4096\ns_addc_u32 s{sKV+1}, s{sKV+1}, 0")
        else: E("s_nop 0")
        for j in range(4):
            E(f"global_load_lds_dwordx4 v{vOD}, {sr(sKV,2)} offset:{1024*j} sc1")
    for n in (24, 16, 8, 0):
        E(f"s_waitcnt vmcnt({n})\ns_barrier")
    if SPM >= 0:
        E("s_branch L_mdone2\nL_mdone:\ns_barrier\ns_barrier\ns_barrier\ns_barrier\nL_mdone2:")
    else:
        E("L_mdone:")
    stamp_flush("m"); spin_end("m")
    if OPT.get("itst"):
        E(f"v_lshl_add_u32 v2, v1, 2, v2\nv_add_u32 v2, 0x100000, v2\ns_mov_b64 exec, 0xff\nglobal_store_dword v2, v23, {sr(pWs,2)}")
    E("s_endpgm")
    vM, vC = vT + 6, 64
    vQ += 8; vO += 32
    E(f"""
    L_safe:
    s_waitcnt vmcnt(0)
    s_lshl_b32 s{ta}, s{sZ}, 12
    s_sub_u32 s{sKVb}, s{sKVb}, s{ta}
    s_subb_u32 s{sKVb+1}, s{sKVb+1}, 0
    s_mov_b32 s{sKV}, s{sKVb}
    s_mov_b32 s{sKV+1}, s{sKVb+1}
    s_mov_b32 s{sCnt}, 64
    v_mov_b32 v{vM}, 0xff800000
    v_mov_b32 v{vM+1}, 0xff800000
    L_safe1:
    global_load_dwordx4 {vr(vKV,4)}, v{vKA}, {sr(sKV,2)} sc1
    s_add_u32 s{sKV}, s{sKV}, 2048
    s_addc_u32 s{sKV+1}, s{sKV+1}, 0
    s_waitcnt vmcnt(0)
    v_mfma_f32_32x32x16_bf16 {vr(SA,16)}, {vr(vKV,4)}, {vr(vQ,4)}, 0
    v_mfma_f32_32x32x16_bf16 {vr(SB,16)}, {vr(vKV,4)}, {vr(vQ+4,4)}, 0
    s_nop 15
    """)
    for j in range(8):
        E(f"v_max3_f32 v{vM}, v{SA+2*j}, v{SA+2*j+1}, v{vM}\nv_max3_f32 v{vM+1}, v{SB+2*j}, v{SB+2*j+1}, v{vM+1}")
    E(f"""
    s_sub_u32 s{sCnt}, s{sCnt}, 1
    s_cmp_lg_u32 s{sCnt}, 0
    s_cbranch_scc1 L_safe1
    v_mov_b32 v{SA}, v{vM}
    v_mov_b32 v{SB}, v{vM+1}
    s_nop 1
    v_permlane32_swap_b32 v{SA}, v{vM}
    v_permlane32_swap_b32 v{SB}, v{vM+1}
    s_nop 1
    v_max_f32 v{vM}, v{vM}, v{SA}
    v_max_f32 v{vM+1}, v{vM+1}, v{SB}
    """)
    for j in range(16):
        E(f"v_sub_f32 v{vC+j}, 0, v{vM}\nv_sub_f32 v{vC+16+j}, 0, v{vM+1}\nv_mov_b32 v{vO+j}, 0\nv_mov_b32 v{vO+16+j}, 0")
    E(f"""
    s_mov_b32 s{sKV}, s{sKVb}
    s_mov_b32 s{sKV+1}, s{sKVb+1}
    s_mov_b32 s{sCnt}, 64
    L_safe2:
    """)
    E(kload(0, 0) + vload(0, 0))
    E(f"""
    s_add_u32 s{sKV}, s{sKV}, 2048
    s_addc_u32 s{sKV+1}, s{sKV+1}, 0
    s_waitcnt vmcnt(0)
    v_mfma_f32_32x32x16_bf16 {vr(SA,16)}, {vr(vKV,4)}, {vr(vQ,4)}, {vr(vC,16)}
    v_mfma_f32_32x32x16_bf16 {vr(SB,16)}, {vr(vKV,4)}, {vr(vQ+4,4)}, {vr(vC+16,16)}
    s_nop 15
    """)
    for j in range(32):
        E(f"v_exp_f32 v{SA+j}, v{SA+j}")
    E(f"""
    s_nop 1
    v_smfmac_f32_32x32x32_bf16 {vr(vO,16)}, {vr(vKV+4,4)}, {vr(SA,8)}, v{vIDX}
    v_smfmac_f32_32x32x32_bf16 {vr(vO,16)}, {vr(vKV+8,4)}, {vr(SA+8,8)}, v{vIDX}
    v_smfmac_f32_32x32x32_bf16 {vr(vO+16,16)}, {vr(vKV+4,4)}, {vr(SB,8)}, v{vIDX}
    v_smfmac_f32_32x32x32_bf16 {vr(vO+16,16)}, {vr(vKV+8,4)}, {vr(SB+8,8)}, v{vIDX}
    s_sub_u32 s{sCnt}, s{sCnt}, 1
    s_cmp_lg_u32 s{sCnt}, 0
    s_cbranch_scc1 L_safe2
    s_nop 15
    """)
    fin(O2, None, None, SA, vOA); fin(O3, None, None, SA + 4, vOB)
    E("s_branch L_pub")

def helper_wave():
    sH, sC, sMH, sRT, sCB, sD = sT, sT + 1, sT + 2, sT + 3, sT + 4, sT + 5
    sLd, sDs = sT + 6, sT + 7
    t0 = sT + 8
    sLead, sWst = 92, 93
    sAT = 100
    vGW = 156
    vGWA = 155
    vXF = 160
    vG, vGA0, vGA1 = 164, 165, 166
    vU = 168
    vF4, vF4P, vWqP, vWqG, vRdy, vF1, vF1P = range(141, 148)
    sWq = 94
    vTA, vTS = 148, 152
    sUW = sT + 13
    assert NS == 3
    vPar = 4
    E(f"""
    L_helper:
    s_lshr_b32 s{sC}, s{sH}, 1
    s_add_u32 s{sD}, s{sCH}, s{sC}
    s_and_b32 s{sRT}, s{sHP}, 3
    s_lshr_b32 s{sCB}, s{sHP}, 2
    v_lshrrev_b32 v3, 5, v1
    v_lshlrev_b32 v3, 4, v3
    s_lshl_b32 s{t0+2}, s{sROT}, 2
    s_add_u32 s{t0+2}, s{t0+2}, s{sH}
    s_lshl_b32 s{t0+2}, s{t0+2}, 5
    s_add_u32 s{t0+2}, s{t0+2}, {GW}
    v_add_u32 v{vGWA}, s{t0+2}, v3
    v_mov_b32 v12, 0
    v_mov_b32 v13, 0
    v_mov_b32 v14, 0
    v_mov_b32 v15, 0
    s_cmp_lt_u32 s2, 16
    s_cselect_b32 s{sLead}, s{sW}, 0
    """)
    E(f"s_add_u32 s{pFL}, s{pWs}, {WS_FL}\ns_addc_u32 s{pFL+1}, s{pWs+1}, 0")
    def claim_kv():
        E(f"""
        s_lshl2_add_u32 s{t0}, s{sRB}, s{sH}
        s_lshl_b32 s{t0}, s{t0}, 11
        s_lshl_b32 s{t0+1}, s{sHP}, 18
        s_add_u32 s{t0}, s{t0}, s{t0+1}
        """)
        if OPT["clm"] in (1, 3):
            E(f"""
            v_and_b32 v10, 31, v1
            v_lshl_add_u32 v10, v10, 6, s{t0}
            v_lshrrev_b32 v11, 5, v1
            v_lshl_add_u32 v10, v11, 17, v10
            global_store_dword v10, v12, {sr(pWs,2)} sc1
            """)
        else:
            E(f"""
            v_lshl_add_u32 v10, v1, 4, s{t0}
            v_add_u32 v11, 0x20000, v10
            global_store_dwordx4 v10, v[12:15], {sr(pWs,2)} sc1
            global_store_dwordx4 v10, v[12:15], {sr(pWs,2)} offset:1024 sc1
            global_store_dwordx4 v11, v[12:15], {sr(pWs,2)} sc1
            global_store_dwordx4 v11, v[12:15], {sr(pWs,2)} offset:1024 sc1
            """)
    NCL = {0: 0, 1: 1, 2: 4, 3: 0}[OPT["clm"]]
    if NCL: claim_kv()
    stamp("h")
    E(f"""
    s_mul_i32 s{t0}, s{sC}, {URS}
    s_add_u32 s{t0}, s{t0}, {UR+4096}
    v_lshl_add_u32 v10, v1, 4, s{t0}
    v_and_b32 v11, 1, v1
    v_lshlrev_b32 v11, 4, v11
    v_cmp_gt_u32 vcc, 30, v1
    v_add_u32 v11, {CNT}, v11
    v_mov_b32 v2, 0x3f803f80
    v_cndmask_b32 v10, v11, v10, vcc
    ds_write_b128 v10, v[12:15]
    v_and_b32 v11, 3, v1
    v_lshlrev_b32 v11, 2, v11
    ds_write_b32 v11, v2 offset:{CNT+32}
    """)
    vWA, vRA = 16, 17
    if "prio1" in OPT: E(f"s_setprio {OPT['prio1']}")
    E(f"""
    s_mul_i32 s{t0}, s{sRT}, {WPART}
    s_add_u32 s{t0}, s{t0}, {RING}
    v_and_b32 v10, 31, v1
    v_lshl_add_u32 v10, v10, 7, s{t0}
    v_bfe_u32 v11, v1, 1, 3
    v_lshrrev_b32 v3, 5, v1
    v_xor_b32 v11, v11, v3
    s_lshl_b32 s{t0}, s{sH}, 1
    v_xor_b32 v11, s{t0}, v11
    v_lshl_add_u32 v{vGA0}, v11, 4, v10
    v_mov_b32 v{vG}, 0
    """)
    if not OPT["gath"]: E(f"""
    s_lshr_b32 s{sUW}, s{sHP}, 1
    s_sub_u32 s{sUW}, s{sUW}, s{sROT}
    s_and_b32 s{sUW}, s{sUW}, 7
    s_mul_i32 s{t0}, s{sUW}, 11
    s_lshr_b32 s{t0}, s{t0}, 5
    s_mul_i32 s{t0}, s{t0}, 3
    s_sub_u32 s{t0}, s{sUW}, s{t0}
    s_mul_i32 s{t0}, s{t0}, {SLOT}
    s_mul_i32 s{t0+1}, s{sH}, {WPART}
    s_add_u32 s{t0}, s{t0}, s{t0+1}
    s_add_u32 s{t0}, s{t0}, {RING}
    v_and_b32 v10, 3, v1
    v_bfe_u32 v11, v1, 2, 2
    v_lshlrev_b32 v10, 3, v10
    v_sub_u32 v10, v10, v11
    v_add_u32 v10, 7, v10
    v_bfe_u32 v11, v10, 1, 3
    v_xor_b32 v11, v11, v3
    s_and_b32 s{t0+1}, s{sHP}, 1
    s_lshl_b32 s{t0+1}, s{t0+1}, 2
    v_xor_b32 v11, s{t0+1}, v11
    v_lshlrev_b32 v11, 4, v11
    v_lshl_add_u32 v11, v10, 7, v11
    v_bfe_u32 v10, v1, 4, 1
    v_lshl_add_u32 v11, v10, 3, v11
    v_add_u32 v{vTA}, s{t0}, v11
    v_xor_b32 v{vTA+1}, 32, v{vTA}
    v_subrev_u32 v{vTA+2}, 512, v{vTA}
    v_subrev_u32 v{vTA+3}, 512, v{vTA+1}
    """)
    E(f"""
    s_mul_i32 s{t0}, s{sH}, {KGS}
    s_add_u32 s{t0}, s{t0}, {KG}
    s_mov_b32 m0, s{t0}
    v_and_b32 v10, 31, v1
    v_mul_u32_u24 v10, 272, v10
    v_lshl_add_u32 v10, v3, 4, v10
    v_add_u32 v{vRA}, s{t0}, v10
    s_mul_i32 s{t0}, s{sC}, {2*KGS}
    s_add_u32 s{t0}, s{t0}, {KG+KGS}
    v_lshl_add_u32 v{vWA}, v1, 4, s{t0}
    """)
    K = []
    def k(s, c=None):
        if isinstance(s, list): s = "\n".join(s)
        for x in s.split("\n"):
            x = x.strip()
            if not x: continue
            cc = c if c is not None else (8 if any(t in x for t in ("v_exp", "v_sin", "v_cos", "v_rcp", "ds_")) else 4)
            K.append((cc, x))
    va, vb, vt = 220, 221, 222
    log2e = math.log2(math.e)
    c_hi = struct.unpack("<f", struct.pack("<f", log2e))[0]
    c_lo = log2e - c_hi
    k(f"""
    s_waitcnt lgkmcnt(0)
    s_lshl_b32 s{t0}, s{sC}, 4
    s_lshr_b32 s{sLd}, s{sLd}, s{t0}
    s_lshl_b32 s{sLd}, s{sLd}, 16
    s_lshr_b32 s{sDs}, s{sDs}, s{t0}
    s_lshl_b32 s{sDs}, s{sDs}, 16
    s_mov_b32 s{t0}, {fbits(c_hi)}
    v_mov_b32 v{vt}, s{sLd}
    v_mul_f32 v{vt+1}, s{t0}, v{vt}
    v_fma_f32 v{vt+2}, v{vt}, s{t0}, -v{vt+1}
    v_fmac_f32 v{vt+2}, {fbits(c_lo)}, v{vt}
    v_exp_f32 v{vt+1}, v{vt+1}
    v_mul_f32 v{vt+2}, {fbits(math.log(2.0))}, v{vt+2}
    v_fma_f32 v{vt+1}, v{vt+1}, v{vt+2}, v{vt+1}
    v_cvt_pk_bf16_f32 v{vt+1}, v{vt+1}, v{vt+1}
    v_lshlrev_b32 v{vt}, 16, v{vt+1}
    s_waitcnt vmcnt({1+NCL})
    """)
    for j in range(6):
        k(f"v_lshlrev_b32 v{vPar+j}, 16, v{vPar+j}")
    k(f"""
    v_mul_f32 v{va}, v{vt}, v{vPar}
    v_mul_f32 v{vb}, v{vt}, v{vPar+1}
    v_mul_f32 v{vPar+2}, v{vt}, v{vPar+2}
    v_mul_f32 v{vPar+3}, v{vt}, v{vPar+3}
    v_mul_f32 v{va}, {fbits(c_hi)}, v{va}
    v_mul_f32 v{vb}, 0.15915494, v{vb}
    """)
    pkm = [OPT["pk0"]]
    def cmul(z, x, w):
        if pkm[0]:
            return [f"v_pk_mul_f32 {vr(z,2)}, {vr(x,2)}, {vr(w,2)} op_sel_hi:[0,1]",
                    f"v_pk_fma_f32 {vr(z,2)}, {vr(x,2)}, {vr(w,2)}, {vr(z,2)} op_sel:[1,1,0] op_sel_hi:[1,0,1] neg_lo:[1,0,0]"]
        return [f"v_mul_f32 v{z}, v{x}, v{w}\nv_mul_f32 v{z+1}, v{x}, v{w+1}",
                f"v_fma_f32 v{z}, -v{x+1}, v{w+1}, v{z}\nv_fmac_f32 v{z+1}, v{x+1}, v{w}"]
    def cmuls(lst):
        cm = [cmul(*a) for a in lst]
        k([c[0] for c in cm]); k([c[1] for c in cm])
    def direct(z, x):
        k(f"""
        v_mul_f32 v{vt+2}, {fbits(x)}, v{vb}
        v_mul_f32 v{vt+1}, {fbits(x)}, v{va}
        v_fract_f32 v{vt+2}, v{vt+2}
        v_exp_f32 v{vt+1}, v{vt+1}
        v_cos_f32 v{z}, v{vt+2}
        v_sin_f32 v{z+1}, v{vt+2}
        s_nop 0
        v_mul_f32 v{z}, v{z}, v{vt+1}
        v_mul_f32 v{z+1}, v{z+1}, v{vt+1}
        """)
    E1, E32, E256 = 226, 228, 230
    vE = 232
    vPk = 64
    npk = [0]
    DW = {False: [], True: []}
    def puts(lst, neg):
        for z, rows in lst:
            p = vPk + npk[0]; npk[0] += 1
            k(f"v_cvt_pk_bf16_f32 v{p}, v{z}, {'-' if neg else ''}v{z+1}")
            DW[neg] += [f"ds_write_addtid_b32 v{p} offset:{272*r}" for r in rows]
    def e(j): return vE + 2 * (j % 8)
    direct(e(1), 8.0); direct(E32, 32.0)
    k(f"v_mov_b32 v{e(0)}, 1.0\nv_mov_b32 v{e(0)+1}, 0\nv_mov_b32 v{e(4)}, v{E32}\nv_mov_b32 v{e(4)+1}, v{E32+1}")
    cmuls([(e(2), e(1), e(1)), (e(5), e(1), E32)])
    cmuls([(e(3), e(2), e(1)), (e(6), e(2), E32)])
    cmuls([(e(7), e(3), E32)])
    puts([(e(j), [j]) for j in range(4)], False)
    for j0 in range(4, 32, 4):
        if j0 + 4 < 32: cmuls([(e(j + 4), e(j), E32) for j in range(j0, j0 + 4)])
        puts([(e(j), [j]) for j in range(j0, j0 + 4)], False)
    vEF, vGF, vD = 192, 224, 176
    direct(E1, 1.0); direct(E256, 256.0)
    def row(r, h): return 8 * (r >> 2) + 4 * h + (r & 3)
    vGv = 192
    g = {x: vGv + 2 * x for x in range(9)}
    E2 = e(0)
    cmuls([(g[0], vPar + 4, vPar + 2), (E2, E1, E1)])
    cmuls([(g[1], g[0], E1), (g[2], g[0], E2)])
    cmuls([(g[3], g[1], E2), (g[4], g[2], E2)])
    puts([(g[x], [row(x, 0)]) for x in range(4)], True)
    cmuls([(g[5], g[3], E2), (g[6], g[4], E2)])
    cmuls([(g[7], g[5], E2), (g[8], g[6], E2)])
    puts([(g[x], [row(x, 0)]) for x in range(4, 8)], True)
    A = {o: vGv + 18 + 2 * i for i, o in enumerate((0, 2, 4, 6, 8))}
    cmuls([(A[o], g[o], E256) for o in (0, 2, 4, 6, 8)])
    puts([(A[o], [row(r, 1) for r in rs]) for o, rs in ((0, (0, 1)), (2, (2,)), (4, (3, 4, 5)), (6, (6,)), (8, (7,)))], True)
    src, dst = A, g
    for os_, r0, h in (((0, 4, 8), 8, 0), ((0, 4, 8), 8, 1), ((0, 8), 11, 0), ((0, 8), 11, 1), ((0, 8), 13, 0), ((0, 8), 13, 1)):
        cmuls([(dst[o], src[o], E256) for o in os_])
        puts([(dst[o], [row(r0 + i, h)]) for i, o in enumerate(os_)], True)
        src, dst = dst, src
    def D1(): E(DW[False] + [f"ds_read_b128 {vr(vEF+4*s,4)}, v{vRA} offset:{32*s}" for s in range(8)])
    def D2(): E(DW[True] + [f"ds_read_b128 {vr(vGF+4*s,4)}, v{vRA} offset:{32*s}" for s in range(8)])
    PL = [int(c) for c in "%05d" % OPT["pl"]]
    psync = PL[2] == PL[3]
    def D3():
        E("s_waitcnt lgkmcnt(0)")
        for s in range(8):
            E(f"v_mfma_f32_32x32x16_bf16 {vr(vD,16)}, {vr(vGF+4*s,4)}, {vr(vEF+4*s,4)}, {'0' if s == 0 else vr(vD,16)}")
        lx = newlab("nx")
        E(f"s_nop 9\ns_cmp_eq_u32 s{sMH}, 0\ns_cbranch_scc1 {lx}")
        for j in range(4):
            E(f"ds_write_b128 v{vWA}, {vr(vD+4*j,4)} offset:{1024*j}")
        if psync: lds_arrive(vCP, vOne)
        E(f"s_waitcnt lgkmcnt(0)\n{lx}:")
    (vCA, vCP, vOne, vTm, vAA, vBA, vUW, vCW, vCR, vAT, vF3, vWoG, vWoL, vF3P, vAL, vOut, vg, vomg, vOL, vGPw, vGPr, vWoP, vUL, vClO) = range(24, 48)
    vA = 48; vAcc = 96
    ADDR = f"""
    s_lshr_b32 s{t0}, s2, 3
    s_lshl2_add_u32 s{t0}, s{t0}, s{sH}
    s_mul_i32 s{t0}, s{t0}, 12288
    s_lshr_b32 s{t0+1}, s{sHP}, 3
    s_lshl_b32 s{t0+1}, s{t0+1}, 9
    s_add_u32 s{t0}, s{t0}, s{t0+1}
    v_bfe_u32 v18, v1, 2, 2
    v_mul_u32_u24 v18, 3072, v18
    v_and_b32 v19, 3, v1
    v_lshl_add_u32 v18, v19, 7, v18
    v_add_u32 v{vWqP}, s{t0}, v18
    v_mov_b32 v{vCA}, {CNT}
    s_lshl_b32 s{t0}, s{sC}, 2
    s_add_u32 s{t0}, s{t0}, {CNT+4}
    v_mov_b32 v{vCP}, s{t0}
    v_mov_b32 v{vOne}, 1
    v_lshlrev_b32 v23, 4, v1
    s_lshl_b32 s{t0}, s{sH}, 10
    s_sub_u32 s{t0}, {UR+4080-512}, s{t0}
    v_lshrrev_b32 v18, 1, v1
    v_lshlrev_b32 v19, 4, v18
    v_sub_u32 v19, s{t0}, v19
    v_and_b32 v20, 1, v1
    v_mul_u32_u24 v21, {URS}, v20
    v_add_u32 v{vUW}, v19, v21
    s_lshr_b32 s{t0}, s{sCH}, 2
    s_lshl_b32 s{t0}, s{t0}, 14
    s_lshl_b32 s{t0+1}, s{sH}, 12
    s_add_u32 s{t0}, s{t0}, s{t0+1}
    s_and_b32 s{t0+1}, s{sRB}, 1
    s_lshl_b32 s{t0+1}, s{t0+1}, 5
    s_add_u32 s{t0}, s{t0}, s{t0+1}
    s_add_u32 s{t0}, s{t0}, {WS_UT}
    v_lshl_add_u32 v18, v18, 6, s{t0}
    v_lshl_add_u32 v{vUL}, v20, 4, v18
    v_and_b32 v18, 15, v1
    v_add_u32 v19, 1, v18
    v_and_b32 v20, 3, v19
    v_mul_u32_u24 v20, {KCP}, v20
    v_lshrrev_b32 v19, 2, v19
    v_lshl_add_u32 v20, v19, 3, v20
    v_lshrrev_b32 v21, 4, v1
    v_lshlrev_b32 v22, 4, v21
    s_mul_i32 s{t0}, s{sC}, {2*KGS}
    s_lshl_b32 s{t0+1}, s{sMH}, 8
    s_add_u32 s{t0}, s{t0}, s{t0+1}
    s_add_u32 s{t0}, s{t0}, {KG}
    v_add3_u32 v{vAA}, v20, v22, s{t0}
    s_mul_i32 s{t0}, s{sC}, {URS}
    s_add_u32 s{t0}, s{t0}, s{t0+1}
    s_add_u32 s{t0}, s{t0}, {UR+4064-3584}
    v_lshlrev_b32 v19, 5, v18
    v_sub_u32 v22, v22, v19
    v_add_u32 v{vBA}, s{t0}, v22
    s_lshl_b32 s{t0}, s{sH}, 12
    s_add_u32 s{t0}, s{t0}, {CRED}
    v_add_u32 v{vCW}, s{t0}, v23
    s_xor_b32 s{t0}, s{sH}, 1
    s_lshl_b32 s{t0}, s{t0}, 12
    s_add_u32 s{t0}, s{t0}, {CRED}
    v_add_u32 v{vCR}, s{t0}, v23
    v_add_u32 v{vOL}, {OFL}, v23
    v_lshrrev_b32 v19, 1, v18
    v_lshlrev_b32 v19, 15, v19
    v_and_b32 v20, 1, v1
    v_lshl_add_u32 v19, v20, 5, v19
    v_lshl_add_u32 v{vAT}, v21, 3, v19
    s_lshl_b32 s{t0}, s{sMH}, 20
    s_lshl_b32 s{t0+1}, s{sD}, 6
    s_add_u32 s{t0}, s{t0}, s{t0+1}
    s_add_u32 s{t0}, s{t0}, {WS_AT}
    s_add_u32 s{sAT}, s{pWs}, s{t0}
    s_addc_u32 s{sAT+1}, s{pWs+1}, 0
    s_lshl_b32 s{t0}, s{sMH}, 9
    s_add_u32 s{t0}, s{t0}, s{sD}
    s_add_u32 s{t0}, s{t0}, {F3}
    s_lshl_b32 s{t0}, s{t0}, 2
    v_mov_b32 v{vF3}, s{t0}
    s_mov_b32 s{SRDW}, s{pWo}
    s_mov_b32 s{SRDW+1}, s{pWo+1}
    s_mov_b32 s{SRDW+2}, {512*1024}
    s_mov_b32 s{SRDW+3}, 0x00020000
    s_lshl_b32 s{t0}, s{sCB}, 2
    s_add_u32 s{t0}, s{t0}, s{sH}
    s_lshl_b32 s{t0+1}, s{t0}, 6
    v_lshrrev_b32 v18, 2, v1
    v_lshl_add_u32 v18, v18, 10, s{t0+1}
    v_and_b32 v19, 3, v1
    v_lshl_add_u32 v{vWoG}, v19, 4, v18
    s_mul_i32 s{sWst}, s{sH}, {WSL*1024}
    s_add_u32 s{sWst}, s{sWst}, {WST}
    v_lshrrev_b32 v22, 5, v1
    v_lshlrev_b32 v20, 2, v22
    v_bfe_u32 v21, v1, 2, 2
    v_add_u32 v20, v20, v21
    v_lshl_add_u32 v20, v20, 6, s{sWst}
    v_lshl_add_u32 v20, v19, 3, v20
    v_bfe_u32 v21, v1, 4, 1
    v_lshl_add_u32 v{vWoL}, v21, 5, v20
    s_lshl_b32 s{t0}, s{t0}, 5
    s_lshr_b32 s{t0+1}, s{sRB}, 3
    s_lshl_b32 s{t0+1}, s{t0+1}, 9
    s_add_u32 s{t0+1}, s{t0+1}, s{t0}
    s_add_u32 s{t0+1}, s{t0+1}, {F3}
    v_and_b32 v18, 31, v1
    v_add_u32 v19, s{t0+1}, v18
    v_lshlrev_b32 v{vF3P}, 2, v19
    s_lshl_b32 s{t0+1}, s{sRB}, 2
    s_add_u32 s{t0+1}, s{t0+1}, s{sRT}
    s_lshl_b32 s{t0+2}, s{t0+1}, 15
    s_lshl_b32 s{t0+3}, s{t0}, 6
    s_add_u32 s{t0+3}, s{t0+3}, s{t0+2}
    s_add_u32 s{t0+3}, s{t0+3}, {WS_AT}
    v_lshlrev_b32 v20, 8, v22
    v_lshl_add_u32 v20, v18, 1, v20
    v_add_u32 v{vAL}, s{t0+3}, v20
    s_lshl_b32 s{t0}, s{t0}, 1
    s_add_u32 s{t0}, s{t0}, s{t0+2}
    v_lshl_add_u32 v20, v18, 10, s{t0}
    v_lshl_add_u32 v{vOut}, v22, 4, v20
    """.split("\n")
    ADDR += f"""
    s_lshl2_add_u32 s{t0}, s{sRB}, s{sH}
    s_lshl4_add_u32 s{t0}, s{t0}, s{sHP}
    s_lshl_b32 s{t0}, s{t0}, 11
    s_add_u32 s{t0}, s{t0}, {WS_OF}
    v_lshl_add_u32 v{vClO}, v1, 6, s{t0}
    s_lshl_b32 s{t0}, s{sRB}, 2
    s_add_u32 s{t0}, s{t0}, s{sH}
    s_lshl_b32 s{t0}, s{t0}, 8
    s_lshl_b32 s{t0+1}, s{sHP}, 17
    s_add_u32 s{t0}, s{t0}, s{t0+1}
    s_add_u32 s{t0}, s{t0}, {WS_UT}
    v_and_b32 v18, 15, v1
    v_lshl_add_u32 v18, v18, 4, s{t0}
    v_lshrrev_b32 v19, 4, v1
    v_lshl_add_u32 v{vTS}, v19, 14, v18
    v_add_u32 v{vTS+1}, 0x10000, v{vTS}
    v_and_b32 v18, 15, v1
    v_lshlrev_b32 v{vRdy}, 2, v18
    s_lshl_b32 s{t0}, s{sHP}, 4
    v_add_u32 v19, s{t0}, v18
    v_lshlrev_b32 v{vF1P}, {FSH}, v19
    s_add_u32 s{t0}, s{t0}, s{sRB}
    s_lshl2_add_u32 s{t0+1}, s{t0}, s{sH}
    s_add_u32 s{t0+1}, s{t0+1}, {F4}
    s_lshl_b32 s{t0+1}, s{t0+1}, 2
    v_mov_b32 v{vF4}, s{t0+1}
    s_lshl2_add_u32 s{t0+1}, s{sHP}, s{sH}
    s_lshl4_add_u32 s{t0+1}, s{t0+1}, {F4}
    v_add_lshl_u32 v{vF4P}, v18, s{t0+1}, 2
    s_lshl_b32 s{t0}, s{t0}, {FSH}
    v_mov_b32 v{vF1}, s{t0}
    v_and_b32 v18, 31, v1
    v_lshlrev_b32 v18, 5, v18
    v_lshrrev_b32 v19, 5, v1
    v_lshl_add_u32 v19, v19, 2, v18
    s_lshl_b32 s{t0}, s{sH}, 3
    s_add_u32 s{t0}, s{t0}, {GP}
    v_add_u32 v{vGPw}, s{t0}, v19
    v_add_u32 v{vGPr}, {GP}, v18
    s_lshr_b32 s{t0}, s2, 3
    s_lshl_b32 s{t0}, s{t0}, 2
    s_add_u32 s{t0}, s{t0}, s{sH}
    s_lshl_b32 s{t0}, s{t0}, 12
    s_lshr_b32 s{t0+1}, s{sHP}, 3
    s_lshl_b32 s{t0+1}, s{t0+1}, 9
    s_add_u32 s{t0}, s{t0}, s{t0+1}
    v_bfe_u32 v18, v1, 2, 2
    v_lshl_add_u32 v18, v18, 10, s{t0}
    v_and_b32 v19, 3, v1
    v_lshl_add_u32 v{vWoP}, v19, 7, v18
    """.split("\n") + [f"v_mov_b32 v{vA+j}, 0" for j in range(16)]
    if OPT["gath"]:
        ADDR += f"""
        s_lshl_b32 s{t0}, s{sH}, 19
        s_lshl_b32 s{t0+1}, s{sCH}, 1
        s_add_u32 s{t0}, s{t0}, s{t0+1}
        s_add_u32 s{t0}, s{t0}, 4096
        v_lshl_add_u32 v{vUL}, v1, 13, s{t0}
        s_lshl_b32 s{t0}, s{sH}, 10
        s_sub_u32 s{t0}, {UR+4080}, s{t0}
        v_lshlrev_b32 v18, 4, v1
        v_sub_u32 v{vUW}, s{t0}, v18
        s_mov_b32 s94, 0x05040100
        s_mov_b32 s95, 0x07060302
        """.split("\n")
    ADDR = [x.strip() for x in ADDR if x.strip()]
    def GATEF():
        E("s_waitcnt lgkmcnt(0)")
        for j in range(4):
            E(f"v_dot2_f32_bf16 v{vG}, v{vXF+j}, v{vGW+j}, v{vG}")
        E(f"s_nop 2\nds_write_b32 v{vGPw}, v{vG}")
    def SIG():
        E(f"""
        ds_read_b128 v[128:131], v{vGPr}
        ds_read_b128 v[132:135], v{vGPr} offset:16
        s_waitcnt lgkmcnt(0)
        v_add_f32 v128, v128, v129
        v_add_f32 v130, v130, v131
        v_add_f32 v132, v132, v133
        v_add_f32 v134, v134, v135
        v_add_f32 v128, v128, v130
        v_add_f32 v132, v132, v134
        v_add_f32 v128, v128, v132
        v_mul_f32 v128, {fbits(-log2e)}, v128
        v_exp_f32 v128, v128
        s_nop 0
        v_add_f32 v128, 1.0, v128
        v_rcp_f32 v{vg}, v128
        s_nop 0
        v_sub_f32 v{vomg}, 1.0, v{vg}
        """)
    vR = 64; vE0 = 64
    def KC1():
        lk = newlab("nk")
        E(f"s_cmp_eq_u32 s{sMH}, 0\ns_cbranch_scc0 {lk}")
        if psync: lds_wait(vCP, 2, 1)
        for j in range(4):
            E(f"ds_read_b128 {vr(vR+4*j,4)}, v{vWA} offset:{1024*j}")
        E(f"""
        s_mul_i32 s{t0}, s{sC}, {2*KGS}
        s_add_u32 s{t0}, s{t0}, {KG}
        v_lshl_add_u32 v2, v1, 4, s{t0}
        v_lshrrev_b32 v3, 1, v1
        v_mul_u32_u24 v3, {KCP}, v3
        v_and_b32 v10, 1, v1
        v_lshlrev_b32 v11, 4, v10
        v_add3_u32 v3, v3, v11, s{t0}
        v_cmp_eq_u32 {sr(t0+2,2)}, 1, v10
        s_mov_b64 exec, 1
        v_add_f32 v{vD}, s{sDs}, v{vD}
        s_waitcnt lgkmcnt(0)
        s_mov_b64 exec, 0xff
        ds_write_b128 v3, v[12:15]
        s_mov_b64 exec, -1
        """)
        for j in range(15):
            E(f"v_add_f32 v{vD+j}, v{vD+j}, v{vR+j}")
        E(f"""
        v_cndmask_b32 v10, v{vD+11}, v{vD+12}, {sr(t0+2,2)}
        v_cndmask_b32 v11, v{vD+13}, v{vD+14}, {sr(t0+2,2)}
        """)
        D = lambda j: vD + j
        pats = [[(D(0), D(1)), (D(2), D(3)), (D(4), D(5)), (D(6), D(7))],
                [(D(8), D(8)), (D(8), D(9)), (D(9), D(9)), (D(10), D(10))],
                [(D(11), D(11)), (D(11), D(11)), (10, D(12)), (D(12), D(12))],
                [(D(13), D(13)), (D(13), D(13)), (11, D(14)), (D(14), D(14))]]
        for u in range(4):
            for j, (a, b) in enumerate(pats[u]):
                E(f"v_cvt_pk_bf16_f32 v{vE0+8*u+j}, v{a}, v{b}")
            E(f"ds_write_b128 v2, {vr(vE0+8*u,4)} offset:{32+1024*u}")
        for u in range(4):
            E(f"ds_read_b64 {vr(vE0+8*u+4,2)}, v2 offset:{48+1024*u}")
        E(f"{lk}:")
    def KC2():
        lk = newlab("nk")
        E(f"s_cmp_eq_u32 s{sMH}, 0\ns_cbranch_scc0 {lk}\ns_waitcnt lgkmcnt(0)")
        for u in range(4):
            b = vE0 + 8 * u; o = 96 + 12 * (u & 1)
            for j in range(4):
                E(f"v_alignbit_b32 v{o+j}, v{b+j+1}, v{b+j}, 16")
            E(f"ds_write_b128 v2, {vr(o,4)} offset:{32+1024*u+KCP}")
            for j in range(4):
                E(f"v_mov_b32 v{o+4+j}, v{b+j+1}")
            E(f"ds_write_b128 v2, {vr(o+4,4)} offset:{32+1024*u+2*KCP}")
            for j in range(4):
                E(f"v_alignbit_b32 v{o+8+j}, v{b+j+2}, v{b+j+1}, 16")
            E(f"ds_write_b128 v2, {vr(o+8,4)} offset:{32+1024*u+3*KCP}")
            if u == 0:
                E(f"""
                v_lshlrev_b32 v10, 16, v{b}
                s_mov_b64 exec, 1
                ds_write_b32 v2, v10 offset:{28+KCP}
                ds_write_b32 v2, v{b} offset:{28+2*KCP}
                ds_write_b32 v2, v10 offset:{24+3*KCP}
                ds_write_b32 v2, v{o} offset:{28+3*KCP}
                s_mov_b64 exec, -1
                """)
        E(f"{lk}:")
    def gate_glue(i):
        E(f"s_waitcnt vmcnt({NCL}) lgkmcnt(0)" if i == 0 else "s_waitcnt vmcnt(0) lgkmcnt(0)" if i == 7 else "s_waitcnt lgkmcnt(0)")
        if OPT.get("hst"): stamp("h")
        E("s_barrier")
        if i == 0 and OPT["clm"] == 3: claim_kv()
        if i == 0:
            lq = newlab("nr")
            E(f"""
            s_cmp_eq_u32 s{sLead}, 7
            s_cbranch_scc0 {lq}
            s_lshl_b32 s{sSPIN}, s2, 5
            v_add_u32 v10, s{sSPIN}, v1
            v_lshlrev_b32 v10, {FSH}, v10
            s_lshl_b32 s{sSPIN}, s2, 9
            s_add_u32 s{sSPIN}, s{sSPIN}, {4*F3}
            v_lshl_add_u32 v11, v1, 3, s{sSPIN}
            global_store_dwordx2 v11, v[12:13], {sr(pFL,2)} sc1
            s_bfm_b64 exec, 32, 0
            global_store_dword v10, v12, {sr(pFL,2)} sc1
            s_mov_b64 exec, -1
            {lq}:
            """)
        if i == OPT["rdyw"]:
            lq = newlab("nr")
            E(f"""
            s_cmp_eq_u32 s{sLead}, 7
            s_cbranch_scc0 {lq}
            s_lshl_b32 s{sSPIN}, s2, 2
            v_mov_b32 v10, s{sSPIN}
            v_mov_b32 v11, 1
            s_waitcnt vmcnt(0)
            """)
            put_flag(10, 11, pDbg)
            E(f"{lq}:")
        if i >= 1:
            for j in range(4):
                E(f"v_dot2_f32_bf16 v{vG}, v{vXF+j}, v{vGW+j}, v{vG}")
        slot = i % NS
        E(f"ds_read_b128 {vr(vXF,4)}, v{vGA0} offset:{slot*SLOT}")
        E(f"ds_read_b128 {vr(vGW,4)}, v{vGWA} offset:{128*i}")
        if not OPT["gath"]: E(f"""
        s_cmp_eq_u32 s{sUW}, {i}
        s_cbranch_scc0 L_ut{i}
        ds_read_b64_tr_b16 {vr(vU,2)}, v{vTA}
        ds_read_b64_tr_b16 {vr(vU+2,2)}, v{vTA+3}
        ds_read_b64_tr_b16 {vr(vU+4,2)}, v{vTA+1}
        ds_read_b64_tr_b16 {vr(vU+6,2)}, v{vTA+2}
        L_ut{i}:
        """)
    E(ADDR)
    tot = sum(c for c, _ in K); nw = OPT["kw"]
    pre = tot * OPT["kpre"] / 100
    segs = [[] for _ in range(9)]; acc = 0
    for c, x in K:
        segs[0 if acc < pre else 1 + min(nw - 1, int((acc - pre) * nw / (tot - pre)))].append(x); acc += c
    items = [D1, D2, D3, KC1, KC2]
    def place(w):
        for it, p in zip(items, PL):
            if p == w: it()
    E(segs[0])
    for i in range(8):
        gate_glue(i)
        if i == OPT["wqpf"]:
            E(f"s_mov_b64 exec, 0xffff\nglobal_load_dword v167, v{vWqP}, {sr(pW,2)}\ns_mov_b64 exec, -1")
        E(segs[i + 1])
    stamp("h")
    GATEF()
    uts = f"""
    global_store_dwordx4 v{vTS}, {vr(vU,4)}, {sr(pWs,2)} sc1
    global_store_dwordx4 v{vTS+1}, {vr(vU+4,4)}, {sr(pWs,2)} sc1
    """
    E(f"global_load_dword v{vTm}, v{vRdy}, {sr(pDbg,2)} sc1")
    place(0)
    E(f"s_setprio {OPT['prioq']}\ns_waitcnt lgkmcnt(0)\ns_barrier")
    stamp("h")
    if not OPT["gath"] and not OPT["utl"]: E(uts)
    SIG()
    place(1)
    E("s_barrier")
    place(2)
    assert OPT["ackn"] > 16 - OPT["lq"]
    E(f"s_setprio {OPT['prio']}\ns_waitcnt vmcnt(0)\ns_barrier")
    stamp("h")
    lq = newlab("nf"); lr = newlab("rdy")
    E(f"""
    s_cmp_lg_u32 s{sH}, 1
    s_cbranch_scc1 {lq}
    v_cmp_ne_u32 vcc, 0, v{vTm}
    s_nop 1
    s_cmp_eq_u64 vcc, -1
    s_cbranch_scc1 {lr}
    """)
    poll_global(vRdy, pDbg, vTm)
    E(f"{lr}:")
    put_flag(vF1, vOne)
    E(f"{lq}:")
    place(3)
    E("s_barrier")
    place(4)
    lq = newlab("nf")
    E(f"s_cmp_lg_u32 s{sH}, 1\ns_cbranch_scc1 {lq}")
    poll_global(vF1P, pFL, vTm)
    E(f"{lq}:")
    E("s_setprio 0\ns_barrier")
    stamp("h")
    late = OPT["utl"] and not OPT["gath"]
    if PL[0] == 5: D1()
    if late: E(uts)
    E(f"s_setprio {OPT['prio']}")
    if PL[1] == 5: D2()
    if PL[2] == 5: D3()
    if late:
        E("s_waitcnt vmcnt(0)")
        put_flag(vF4, vOne)
    if PL[3] == 5: KC1()
    if PL[4] == 5: KC2()
    if late:
        lds_arrive(vCA, vOne)
        lds_wait(vCA, vTm, 4)
        E("s_waitcnt vmcnt(0)")
        poll_global(vF4P, pFL, vTm)
    if OPT["gath"]:
        for j in range(8):
            E(f"global_load_dword v{vU+j}, v{vUL}, {sr(pX,2)} offset:{1024*j-4096}\ns_waitcnt vmcnt({OPT['gd'] if j < 7 else 0})")
        E(f"s_setprio {OPT['prio']}")
        for j in range(4):
            E(f"v_perm_b32 v{12+j}, v{vU+6-2*j}, v{vU+7-2*j}, s94")
            E(f"v_perm_b32 v{16+j}, v{vU+6-2*j}, v{vU+7-2*j}, s95")
        E(f"ds_write_b128 v{vUW}, v[12:15]\nds_write_b128 v{vUW}, v[16:19] offset:{URS}")
    else: E(f"""
    global_load_dwordx4 v[12:15], v{vUL}, {sr(pWs,2)} sc1
    global_load_dwordx4 v[16:19], v{vUL}, {sr(pWs,2)} offset:2048 sc1
    s_waitcnt vmcnt(0)
    s_setprio {OPT['prio']}
    ds_write_b128 v{vUW}, v[12:15] offset:512
    ds_write_b128 v{vUW}, v[16:19]
    """)
    lds_arrive(vCA, vOne)
    lds_wait(vCA, vTm, 8 if late else 4)
    stamp("h")
    vY = 64
    vF = [96, 192]
    def creads(r):
        f = vF[r & 1]; o = []
        for gmm in range(8):
            o.append(f"ds_read_b64 {vr(f+4*gmm,2)}, v{vAA} offset:{512*gmm+64*r}")
            o.append(f"ds_read_b64 {vr(f+4*gmm+2,2)}, v{vAA} offset:{512*gmm+64*r+8}")
            o.append(f"ds_read_b128 {vr(f+32+4*gmm,4)}, v{vBA} offset:{3584-512*gmm+64*r}")
        return o
    E(creads(0))
    E(f"s_setprio {OPT.get('prio3', OPT['prio'])}")
    for r in range(4):
        f = vF[r & 1]
        nxt = creads(r + 1) if r < 3 else []
        if r == 2 and OPT["wopf"]:
            E(f"s_mov_b64 exec, 0xffff\nglobal_load_dword v20, v{vWoP}, {sr(pWo,2)}\ns_mov_b64 exec, -1")
        E("s_waitcnt lgkmcnt(0)")
        seen = set()
        for gmm in range(8):
            for dl in range(8 - gmm):
                tau = gmm + dl
                c = "0" if (r == 0 and tau not in seen) else vr(vY + 4 * tau, 4)
                seen.add(tau)
                if not OPT.get("noconv"): E(f"v_mfma_f32_16x16x32_bf16 {vr(vY+4*tau,4)}, {vr(f+4*gmm,4)}, {vr(f+32+4*dl,4)}, {c}")
                if nxt: E(nxt.pop(0))
    E(f"s_setprio {OPT['prio']}")
    l1 = newlab("c1"); l2 = newlab("c2")
    E(f"s_nop 5\ns_cmp_eq_u32 s{sMH}, 0\ns_cbranch_scc0 {l1}")
    def conv_fin(send, keep):
        for j in range(4):
            E(f"ds_write_b128 v{vCW}, {vr(send+4*j,4)} offset:{1024*j}")
        lds_arrive(vCP, vOne)
        lds_wait(vCP, vTm, 2 + psync)
        for j in range(4):
            E(f"ds_read_b128 {vr(96+4*j,4)}, v{vCR} offset:{1024*j}")
        E("s_waitcnt lgkmcnt(0)")
        for j in range(16):
            E(f"v_add_f32 v{96+j}, v{keep+j}, v{96+j}")
    conv_fin(vY + 16, vY)
    E(f"s_branch {l2}\n{l1}:")
    conv_fin(vY, vY + 16)
    E(f"{l2}:")
    for j in range(4):
        E(f"v_cvt_pk_bf16_f32 v{112+2*j}, v{96+4*j}, v{97+4*j}\nv_cvt_pk_bf16_f32 v{113+2*j}, v{98+4*j}, v{99+4*j}")
        E(f"global_store_dwordx2 v{vAT}, {vr(112+2*j,2)}, {sr(sAT,2)} sc1")
        if j < 3: E(f"s_add_u32 s{sAT}, s{sAT}, {8*32768}\ns_addc_u32 s{sAT+1}, s{sAT+1}, 0")
    E("s_waitcnt vmcnt(0)")
    put_flag(vF3, vOne)
    stamp("h")
    vWo = 128
    sO = t0 + 2
    WD = OPT["wod"]
    for hd in range(0 if OPT.get("nowo") else 32 + WD):
        if hd < 32:
            if hd % 4 == 0: E(f"s_add_u32 m0, s{sWst}, {(hd%WSL)*1024}")
            E(f"s_mov_b32 s{sO}, {hd*16384-(hd%4)*1024}")
            E(f"buffer_load_dwordx4 v{vWoG}, {sr(SRDW,4)}, s{sO} offen offset:{(hd%4)*1024} lds")
        r = hd - WD
        if r >= 0:
            E(f"s_waitcnt vmcnt({min(WD, 31-r)}) lgkmcnt(8)")
            E(f"ds_read_b64_tr_b16 {vr(vWo+4*r,2)}, v{vWoL} offset:{1024*(r%WSL)}")
            E(f"ds_read_b64_tr_b16 {vr(vWo+4*r+2,2)}, v{vWoL} offset:{1024*(r%WSL)+512}")
    E("s_waitcnt lgkmcnt(0)")
    stamp("h")
    if OPT["clo"] & 1:
        E(f"s_bfm_b64 exec, 32, 0\nglobal_store_dword v{vClO}, v{vOne}, {sr(pWs,2)} sc1\ns_mov_b64 exec, -1")
    if OPT["clo"] & 2:
        E(f"s_bfm_b64 exec, 32, 0\nglobal_store_dword v{vOut}, v{vOne}, {sr(pOut,2)} sc1\ns_mov_b64 exec, -1")
    poll_global(vF3P, pFL, vTm)
    for r in range(16):
        E(f"global_load_short_d16_hi v{vA+r}, v{vAL}, {sr(pWs,2)} offset:{(8*(r>>2)+(r&3))*64} sc1")
    E("s_waitcnt vmcnt(0)")
    stamp("h")
    E("s_barrier")
    for r in range(16):
        E(f"v_mul_f32 v{vA+r}, v{vg}, v{vA+r}")
    E("s_barrier")
    stamp("h")
    vB = 64
    def ord_(hd): return f"ds_read_b128 {vr(vB+4*(hd%8),4)}, v{vOL} offset:{1024*hd}"
    E("s_barrier")
    stamp("h")
    for j in range(8): E(ord_(j))
    for hd in range(32):
        out = min(hd + 4, 31) - hd if hd >= 4 else 7 - hd
        E(f"s_waitcnt lgkmcnt({out if hd < 4 else min(3, 31-hd)})")
        E(f"v_mfma_f32_32x32x16_bf16 {vr(vAcc,16)}, {vr(vWo+4*hd,4)}, {vr(vB+4*(hd%8),4)}, {'0' if hd == 0 else vr(vAcc,16)}")
        nx = hd + 4
        if 8 <= nx < 32:
            if nx % 8 == 0: E("s_barrier")
            E(ord_(nx))
    E("s_nop 11")
    for r in range(16):
        E(f"v_fma_f32 v{vAcc+r}, v{vAcc+r}, v{vomg}, v{vA+r}")
    for j in range(8):
        E(f"v_cvt_pk_bf16_f32 v{vB+j}, v{vAcc+2*j}, v{vAcc+2*j+1}")
    E("s_nop 1")
    for a in (0, 1, 4, 5):
        E(f"v_permlane32_swap_b32 v{vB+a}, v{vB+2+a}")
    fl = ["", "sc1", "nt", "sc0 sc1"][OPT["outsc"]]
    E(f"global_store_dwordx4 v{vOut}, {vr(vB,4)}, {sr(pOut,2)} {fl}\nglobal_store_dwordx4 v{vOut}, {vr(vB+4,4)}, {sr(pOut,2)} offset:32 {fl}")
    if STAMP:
        E("s_waitcnt vmcnt(0)")
    stamp("h")
    stamp_flush("h"); spin_end("h")
    E("s_endpgm")

hdr = open(f"cdna_kernels/{NAME}.s.ref").read().split("; Override launch")[0]
prologue(); main_wave()
if OPT["lay"]: helper_wave()
E("L_end:\ns_endpgm")
out = hdr + f"""; @launch grid=(256,1,1) block=(512,1,1) lds={LDS_BYTES}
.amdgcn_target "amdgcn-amd-amdhsa--gfx950"
.text
.globl {NAME}_kernel
.p2align 8
.type {NAME}_kernel,@function
{NAME}_kernel:
""" + "\n".join(L) + f"""
.section .rodata,"a"
.p2align 6
.amdhsa_kernel {NAME}_kernel
  .amdhsa_next_free_vgpr 256
  .amdhsa_next_free_sgpr 102
  .amdhsa_accum_offset 256
  .amdhsa_group_segment_fixed_size 0
  .amdhsa_kernarg_size 128
  .amdhsa_user_sgpr_count 2
  .amdhsa_user_sgpr_kernarg_segment_ptr 1
  .amdhsa_system_sgpr_workgroup_id_x 1
.end_amdhsa_kernel
"""
open(sys.argv[1], "w").write(out)
```

```python
import sys, math, struct

NAME = "gated_mix__ssm_conv_s4__mha_block__prompt"
OPT = dict(stamp=0, rot=3, fs=128, spin=200000, prio=2, outsc=0, prio3=0, pf=1, tlb=1, ksplit=90, pk0=0, wod=4, wopf=1, lay=2, prioq=0, eb=2, lq=7, epc=10, ackn=26, ute=0, kcp=1, gath=0, gd=0, d1=3, d1w=4, pl=55555, utl=1, kpre=5, kw=7, clm=0, clo=0, rdyw=2, xm=0, wqpf=2, sigl=1)
for a in sys.argv[2:]:
    k, v = a.split("=")
    OPT[k] = int(v)
STAMP = OPT["stamp"]
FS = OPT["fs"]
FSH = int(math.log2(FS))

L = []
def E(s):
    if isinstance(s, list): s = "\n".join(s)
    for x in s.split("\n"):
        x = x.strip()
        if x:
            L.append(("" if x.endswith(":") else "    ") + x)
def fbits(x): return "0x%08x" % struct.unpack("<I", struct.pack("<f", x))[0]
def vr(a, n): return f"v[{a}:{a+n-1}]"
def sr(a, n): return f"s[{a}:{a+n-1}]"

WS_KV = 0
WS_OF = 4 << 20
WS_AT = 6 << 20
WS_FL = 8 << 20
WS_UT = 10 << 20
WS_ST = 16 << 20
F1, F2 = 0, 256
F3 = 512 * FS // 4
F4 = F3 + 1024
KG = 0; KGS = 8704
KCP = 4160
UR = KG + 4 * KGS; URS = 4576
GP = UR + 2 * URS
GW = GP + 1024
CNT = GW + 2048
RING = CNT + 64
SLOT = 24576; WPART = 6144; NS = 3
WQ = RING + NS * SLOT
LDS_BYTES = WQ + 32768
EXCH = RING; RED = WQ; REDS = 4608
CRED = RING; WST = RING + 16384; WSL = 12; OFL = RING
assert RING % 256 == 0 and WST + 4 * WSL * 1024 <= WQ and LDS_BYTES <= 163840
sW, sHP, sRB, sCH, sROT = 3, 4, 5, 6, 7
SRDX, SRDW = 8, 12
pX, pAre, pAim, pBre, pBim, pCre, pCim, pLdt = 16, 18, 20, 22, 24, 26, 28, 30
pDsk, pW, pWo, pGw, pOut, pDbg, pWs = 32, 36, 38, 40, 42, 44, 46
pFL = 34
sT = 48
sSPIN = 62
sST = 64

nstamp = {"m": 0, "h": 0}
SPM, SPH = OPT.get("spm", -1), OPT.get("sph", -1)
def spin_end(role):
    if (SPM if role == "m" else SPH) < 0: return
    l = newlab("sp")
    E(f"{l}:\ns_memrealtime s[98:99]\ns_waitcnt lgkmcnt(0)\ns_sub_u32 s98, s98, s96\ns_cmp_lt_u32 s98, 4000\ns_cbranch_scc1 {l}")
def stamp(role):
    if SPM >= 0 or SPH >= 0:
        i = nstamp[role]; nstamp[role] += 1
        if i == (SPM if role == "m" else SPH): E("s_memrealtime s[96:97]\ns_waitcnt lgkmcnt(0)")
        return
    if not STAMP or nstamp[role] >= 14: return
    i = nstamp[role]; nstamp[role] += 1
    E(f"s_memrealtime {sr(sST+2*i,2)}\ns_waitcnt lgkmcnt(0)")
def stamp_flush(role):
    if not STAMP: return
    E(f"s_lshl_b32 s{sT}, s2, 3\ns_add_u32 s{sT}, s{sT}, s{sW}\ns_lshl_b32 s{sT}, s{sT}, 6\ns_add_u32 s{sT}, s{sT}, {WS_ST}\nv_mov_b32 v2, s{sT}")
    for i in range(nstamp[role]):
        E(f"v_mov_b32 v3, s{sST+2*i}\nglobal_store_dword v2, v3, {sr(pWs,2)} offset:{4*i}")
    E(f"s_getreg_b32 s{sT}, hwreg(HW_REG_XCC_ID)\nv_mov_b32 v3, s{sT}\nglobal_store_dword v2, v3, {sr(pWs,2)} offset:60")

lab = [0]
def newlab(p):
    lab[0] += 1
    return f"L_{p}_{lab[0]}"

def poll_global(vaddr, base, vtmp):
    l = newlab("poll"); d = newlab("polld")
    E(f"""
    s_mov_b32 s{sSPIN}, {OPT['spin']}
    {l}:
    global_load_dword v{vtmp}, v{vaddr}, {sr(base,2)} sc1
    s_sub_u32 s{sSPIN}, s{sSPIN}, 1
    s_cbranch_scc1 {d}
    s_waitcnt vmcnt(0)
    v_cmp_ne_u32 vcc, 0, v{vtmp}
    s_nop 1
    s_cmp_eq_u64 vcc, -1
    s_cbranch_scc0 {l}
    {d}:
    s_waitcnt vmcnt(0)
    """)
def put_flag(vaddr, vone, base=None):
    E(f"""
    s_mov_b64 exec, 1
    global_store_dword v{vaddr}, v{vone}, {sr(pFL if base is None else base,2)} sc1
    s_mov_b64 exec, -1
    """)
def lds_arrive(vaddr, vone):
    E(f"""
    s_mov_b64 exec, 1
    ds_add_u32 v{vaddr}, v{vone}
    s_mov_b64 exec, -1
    """)
def lds_wait(vaddr, vtmp, n):
    l = newlab("lw"); d = newlab("lwd")
    E(f"""
    s_mov_b32 s{sSPIN}, {OPT['spin']*8}
    {l}:
    ds_read_b32 v{vtmp}, v{vaddr}
    s_sub_u32 s{sSPIN}, s{sSPIN}, 1
    s_cbranch_scc1 {d}
    s_waitcnt lgkmcnt(0)
    v_readfirstlane_b32 s{sSPIN+1}, v{vtmp}
    s_nop 1
    s_cmp_ge_u32 s{sSPIN+1}, {n}
    s_cbranch_scc0 {l}
    {d}:
    s_waitcnt lgkmcnt(0)
    """)

def helper_entry():
    sH, sC, sMH, sD, sLd, sDs, t0 = sT, sT + 1, sT + 2, sT + 5, sT + 6, sT + 7, sT + 8
    E(f"L_h0:\ns_setprio {OPT['prio']}\ns_sub_u32 s{sH}, s{sW}, 4")
    if OPT["pf"]:
        E(f"""
        s_getpc_b64 s[8:9]
        L_pc:
        s_andn2_b32 s10, s2, 7
        s_lshl1_add_u32 s10, s{sH}, s10
        v_and_b32 v2, 1, v1
        v_add_lshl_u32 v2, v2, s10, 7
        v_min_u32 v2, L_end-L_pc, v2
        v_mov_b32 v3, 0
        v_lshl_add_u64 v[2:3], v[2:3], 0, s[8:9]
        global_load_dword v167, v[2:3], off
        """)
    if OPT["gath"]:
        E(f"s_and_b32 s{sCH}, s2, 7\ns_lshl_b32 s{sCH}, s{sCH}, 5\ns_lshr_b32 s{t0}, s2, 3\ns_or_b32 s{sCH}, s{sCH}, s{t0}")
    else:
        E(f"s_lshl4_add_u32 s{sCH}, s{sHP}, s{sRB}")
    E(f"""
    s_lshl2_add_u32 s{t0}, s{sCH}, s{sH}
    s_lshl_b32 s{t0}, s{t0}, 7
    v_lshl_add_u32 v2, v1, 1, s{t0}
    s_lshl_b32 s{t0+1}, s{sCH}, 2
    s_and_b32 s{sMH}, s{sH}, 1
    s_lshl_b32 s{t0}, s{sMH}, 10
    s_add_u32 m0, s{t0}, {GW}
    v_lshlrev_b32 v3, 4, v1
    s_waitcnt lgkmcnt(0)
    """)
    for j, p in enumerate((pAre, pAim, pBre, pBim, pCre, pCim)):
        E(f"global_load_ushort v{4+j}, v2, {sr(p,2)}")
    E(f"""
    global_load_lds_dwordx4 v3, {sr(pGw,2)}
    {"s_barrier" if OPT["eb"] else ""}
    s_load_dword s{sLd}, {sr(pLdt,2)}, s{t0+1}
    s_load_dword s{sDs}, {sr(pDsk,2)}, s{t0+1}
    s_lshl_b32 s{sCH}, s{sCH}, 1
    """)

def prologue():
    if STAMP:
        E(f"s_memrealtime {sr(sST,2)}"); nstamp["m"] = nstamp["h"] = 1
    E(f"""
    s_cmpk_ge_u32 s2, 0x100
    s_cbranch_scc1 L_end
    s_load_dwordx16 s[16:31], s[0:1], 0
    s_load_dwordx16 s[32:47], s[0:1], 64
    """)
    if OPT.get("rndws"): E(f"""
    s_memrealtime s[98:99]
    s_waitcnt lgkmcnt(0)
    s_lshr_b32 s98, s98, 15
    s_mul_i32 s98, s98, 0x9e3779b1
    s_lshr_b32 s98, s98, 28
    s_mul_i32 s98, s98, {OPT["rndws"]-1}
    s_lshl_b32 s98, s98, 24
    s_add_u32 s{pWs}, s{pWs}, s98
    s_addc_u32 s{pWs+1}, s{pWs+1}, 0
    """)
    E(f"""
    v_lshrrev_b32 v2, 6, v0
    v_and_b32 v1, 63, v0
    v_readfirstlane_b32 s{sW}, v2
    """)
    if OPT["xm"] == 0: E(f"""
    s_bfe_u32 s{sHP}, s2, 0x30003
    s_and_b32 s{sT}, s2, 1
    s_lshl3_add_u32 s{sHP}, s{sT}, s{sHP}
    s_lshr_b32 s{sRB}, s2, 6
    s_and_b32 s{sT}, s2, 6
    s_lshl1_add_u32 s{sRB}, s{sT}, s{sRB}
    """)
    elif OPT["xm"] == 1: E(f"""
    s_bfe_u32 s{sHP}, s2, 0x10003
    s_and_b32 s{sT}, s2, 7
    s_lshl1_add_u32 s{sHP}, s{sT}, s{sHP}
    s_lshr_b32 s{sRB}, s2, 4
    """)
    else: E(f"""
    s_bfe_u32 s{sHP}, s2, 0x20003
    s_and_b32 s{sT}, s2, 3
    s_lshl2_add_u32 s{sHP}, s{sT}, s{sHP}
    s_lshr_b32 s{sRB}, s2, 5
    s_and_b32 s{sT}, s2, 4
    s_lshl1_add_u32 s{sRB}, s{sT}, s{sRB}
    """)
    if OPT["rot"] == 0:
        E(f"s_mov_b32 s{sROT}, 0")
    elif OPT["rot"] == 1:
        E(f"s_xor_b32 s{sROT}, s{sHP}, s{sRB}\ns_and_b32 s{sROT}, s{sROT}, 1\ns_lshl_b32 s{sROT}, s{sROT}, 2")
    elif OPT["rot"] == 2:
        E(f"s_lshl1_add_u32 s{sROT}, s{sRB}, s{sHP}\ns_and_b32 s{sROT}, s{sROT}, 7")
    elif OPT["rot"] == 3:
        E(f"s_lshl1_add_u32 s{sROT}, s{sRB}, s{sHP}\ns_and_b32 s{sROT}, s{sROT}, 6")
    elif OPT["rot"] == 4:
        E(f"s_lshl2_add_u32 s{sROT}, s{sHP}, s{sRB}\ns_and_b32 s{sROT}, s{sROT}, 7")
    else:
        E(f"s_add_u32 s{sROT}, s{sHP}, s{sRB}\ns_lshl_b32 s{sROT}, s{sROT}, 1\ns_and_b32 s{sROT}, s{sROT}, 6")
    if OPT["lay"] == 2:
        E(f"s_cmp_lt_u32 s{sW}, 4\ns_cbranch_scc1 L_m0")
        helper_entry()
        E("s_branch L_helper\nL_m0:")
    else:
        E(f"s_cmp_ge_u32 s{sW}, 4\ns_cbranch_scc1 L_h0")

def main_wave():
    vXD, vWD, vXA, vWA, vQA = 4, 8, 10, 14, 16
    vFB = 24
    aK, aV, aQ = 48, 64, 80
    vP = 96
    vXF = 128
    sXO, sWO, sM0, sX, sZ, sQS = 92, 93, 94, 95, 100, 101
    sKVb, sKV, sJ, sCnt, sMask = sT + 2, sT + 4, sT + 6, sT + 7, sT + 8
    ta, tb, tc = sT + 10, sT + 11, sT + 12
    vO, vKV = 128, 192
    (vIDX, vKA, vVA, vSA, vSB, vSV, vEW, vER0, vER1, vERV, vRW, vRWl, vRR, vRRl, vOA, vOB) = range(112, 128)
    vF2, vOne, vF2P, vOD, vOnes, vZer = range(17, 23)
    vQ = 96; SA, SB = 24, 40; vT = 56
    E(f"""
    s_lshl2_add_u32 s{sT}, s{sRB}, s{sW}
    s_lshl_b32 s{sT}, s{sT}, 15
    v_lshrrev_b32 v2, 3, v1
    v_lshl_add_u32 v2, v2, 10, s{sT}
    v_lshrrev_b32 v3, 4, v1
    v_xor_b32 v3, v3, v1
    v_and_b32 v3, 7, v3
    v_lshl_add_u32 v{vXD}, v3, 4, v2
    v_xor_b32 v{vXD+1}, 64, v{vXD}
    s_movk_i32 s{sT}, 7168
    v_add_u32 v{vXD+1}, s{sT}, v{vXD+1}
    s_movk_i32 s{sT}, 14336
    v_add_u32 v{vXD+2}, s{sT}, v{vXD}
    v_add_u32 v{vXD+3}, s{sT}, v{vXD+1}
    v_lshrrev_b32 v2, 2, v0
    v_mul_u32_u24 v2, 3072, v2
    v_and_b32 v3, 3, v1
    s_lshl2_add_u32 s{sT}, s{sHP}, 64
    v_add_u32 v3, s{sT}, v3
    v_lshl_add_u32 v{vWD}, v3, 4, v2
    s_mul_i32 s{sM0}, s{sW}, {WPART}
    s_mov_b32 s{SRDX+2}, 0x200000
    s_mov_b32 s{SRDX+3}, 0x00020000
    s_mov_b64 {sr(SRDW+2,2)}, {sr(SRDX+2,2)}
    """)
    def dma(i, first=False):
        slot = i % NS
        g = []
        for seg in range(2):
            g.append([f"buffer_load_dwordx4 v{vWD}, {sr(SRDW,4)}, s{sWO} offen offset:{seg*1024} lds"])
        for j in range(4):
            g.append([f"buffer_load_dwordx4 v{vXD+j}, {sr(SRDX,4)}, s{sXO} offen offset:{j*1024} lds"])
        st = sROT if i == 0 else sT
        pre = [] if i == 0 else [f"s_add_u32 s{sT}, s{sROT}, {i}", f"s_and_b32 s{sT}, s{sT}, 7"]
        pre += [f"s_add_u32 m0, s{sM0}, {RING+slot*SLOT+4096}", f"s_mul_i32 s{sWO}, s{st}, 196608"]
        if first:
            pre += ["s_waitcnt lgkmcnt(0)", f"s_mov_b64 {sr(SRDW,2)}, {sr(pW,2)}", f"s_mov_b64 {sr(SRDX,2)}, {sr(pX,2)}"]
        g[0] = pre + g[0]
        g[2] = [f"s_add_u32 m0, s{sM0}, {RING+slot*SLOT}", f"s_lshl_b32 s{sXO}, s{st}, 7"] + g[2]
        return g
    for gi, g in enumerate(dma(0, True)):
        if gi == 0 and OPT["eb"] == 2: g.insert(len(g) - 1, "s_barrier")
        E(g)
    if OPT["eb"] == 1: E("s_barrier")
    if OPT["lay"] == 0:
        for g in dma(1): E(g)
        E("s_branch L_m1")
        helper_entry(); helper_wave()
        E("L_m1:")
        stamp("m")
    elif OPT["lay"] == 2:
        stamp("m")
        held = dma(1)
        for g in held[:OPT["d1"]]: E(g)
        held = held[OPT["d1"]:]
    else:
        E("s_branch L_m1")
        helper_entry()
        E("s_branch L_helper\nL_m1:")
        stamp("m")
        for g in dma(1): E(g)
    if OPT["tlb"]:
        E(f"""
        s_mov_b32 s{ta}, {WS_FL + 0x100000}
        s_load_dword s18, {sr(pWs,2)}, s{ta}
        s_load_dword s19, {sr(pDbg,2)}, 128
        s_load_dword s20, {sr(pOut,2)}, 0
        s_load_dword s21, {sr(pWo,2)}, 0
        """)
    E(f"""
    s_add_u32 s{pFL}, s{pWs}, {WS_FL}
    s_addc_u32 s{pFL+1}, s{pWs+1}, 0
    s_add_u32 s{ta}, s{sM0}, {RING}
    v_and_b32 v2, 31, v1
    v_lshl_add_u32 v2, v2, 7, s{ta}
    v_bfe_u32 v3, v1, 1, 3
    v_lshrrev_b32 v{vXA+1}, 5, v1
    v_xor_b32 v3, v3, v{vXA+1}
    v_lshl_add_u32 v{vXA}, v3, 4, v2
    v_xor_b32 v{vXA+1}, 32, v{vXA}
    v_xor_b32 v{vXA+2}, 64, v{vXA}
    v_xor_b32 v{vXA+3}, 0x60, v{vXA}
    v_lshrrev_b32 v2, 5, v1
    v_lshlrev_b32 v2, 3, v2
    v_bfe_u32 v3, v1, 2, 2
    v_add_u32 v2, v2, v3
    v_lshlrev_b32 v2, 6, v2
    v_and_b32 v3, 3, v1
    v_lshl_add_u32 v2, v3, 3, v2
    v_bfe_u32 v3, v1, 4, 1
    v_lshl_add_u32 v2, v3, 5, v2
    v_add_u32 v{vWA}, {RING+4096}, v2
    v_add_u32 v{vWA+1}, {RING+4096+2*SLOT}, v2
    v_add_u32 v{vQA}, {WQ}, v2
    """)
    E(f"""
    s_and_b32 s{sX}, s{sW}, 1
    s_lshr_b32 s{sZ}, s{sW}, 1
    s_mov_b32 s{sQS}, {fbits(0.25 * math.log2(math.e))}
    s_lshl2_add_u32 s{ta}, s{sRB}, s{sW}
    s_lshl_b32 s{ta}, s{ta}, 11
    s_lshl_b32 s{tb}, s{sHP}, 18
    s_add_u32 s{ta}, s{ta}, s{tb}
    {f"s_load_dword s22, {sr(pWs,2)}, s{ta}" if OPT["tlb"] == 2 else ""}
    {f"s_add_u32 s{tb}, s{ta}, 0x20000" if OPT["tlb"] == 2 else ""}
    {f"s_load_dword s23, {sr(pWs,2)}, s{tb}" if OPT["tlb"] == 2 else ""}
    v_lshlrev_b32 v{vKA}, 4, v1
    v_add_u32 v{vSA}, s{ta}, v{vKA}
    v_add_u32 v{vSB}, 0x20000, v{vSA}
    v_and_b32 v{vVA}, 15, v1
    v_lshrrev_b32 v2, 5, v1
    v_lshl_add_u32 v{vVA}, v2, 4, v{vVA}
    v_lshlrev_b32 v{vVA}, 4, v{vVA}
    v_bfe_u32 v2, v1, 4, 1
    v_lshlrev_b32 v2, 17, v2
    v_add3_u32 v{vSV}, v2, v{vVA}, s{ta}
    s_add_u32 s{tb}, s{sM0}, {EXCH}
    v_add_u32 v{vEW}, s{tb}, v{vKA}
    s_lshl_b32 s{ta}, s{sX}, 10
    s_add_u32 s{ta}, s{ta}, {EXCH}
    s_mul_i32 s{tb}, s{sZ}, 12288
    s_add_u32 s{tc}, s{ta}, s{tb}
    v_add_u32 v{vER0}, s{tc}, v{vKA}
    s_sub_u32 s{tc}, s{ta}, s{tb}
    s_add_u32 s{tc}, s{tc}, 12288
    v_add_u32 v{vER1}, s{tc}, v{vKA}
    s_lshl_b32 s{ta}, s{sX}, 8
    s_add_u32 s{tc}, s{ta}, s{tb}
    s_add_u32 s{tc}, s{tc}, {EXCH}
    v_add_u32 v{vERV}, s{tc}, v{vKA}
    s_lshl1_add_u32 s{ta}, s{sHP}, s{sX}
    s_lshl_b32 s{tb}, s{ta}, 17
    s_lshl_b32 s{tc}, s{sZ}, 12
    s_add_u32 s{tb}, s{tb}, s{tc}
    s_add_u32 s{sKVb}, s{pWs}, s{tb}
    s_addc_u32 s{sKVb+1}, s{pWs+1}, 0
    s_lshl_b32 s{sJ}, s{sRB}, 13
    s_lshl1_add_u32 s{tb}, s{sRB}, s{sZ}
    s_lshl_b32 s{tb}, s{tb}, 6
    s_add_u32 s{tb}, s{tb}, s{ta}
    s_lshl_b32 s{tb}, s{tb}, 10
    s_add_u32 s{tb}, s{tb}, {WS_OF}
    v_add_u32 v{vOA}, s{tb}, v{vKA}
    v_add_u32 v{vOB}, 0x8000, v{vOA}
    s_mul_i32 s{ta}, s{sW}, {REDS}
    s_add_u32 s{ta}, s{ta}, {RED}
    v_add_u32 v{vRW}, s{ta}, v{vKA}
    v_lshl_add_u32 v{vRWl}, v1, 2, s{ta}
    s_xor_b32 s{ta}, s{sW}, 2
    s_mul_i32 s{ta}, s{ta}, {REDS}
    s_add_u32 s{ta}, s{ta}, {RED}
    v_add_u32 v{vRR}, s{ta}, v{vKA}
    v_lshl_add_u32 v{vRRl}, v1, 2, s{ta}
    s_lshl_b32 s{ta}, s{sRB}, 4
    s_add_u32 s{ta}, s{ta}, {F2}
    s_add_u32 s{tb}, s{ta}, s{sHP}
    s_lshl_b32 s{tb}, s{tb}, {FSH}
    v_mov_b32 v{vF2}, s{tb}
    v_mov_b32 v{vOne}, 1
    v_and_b32 v3, 15, v1
    v_add_u32 v2, s{ta}, v3
    v_lshlrev_b32 v{vF2P}, {FSH}, v2
    s_and_b32 s{tb}, s{sHP}, 3
    s_lshl2_add_u32 s{ta}, s{sRB}, s{tb}
    s_lshl_b32 s{ta}, s{ta}, 15
    s_add_u32 s{ta}, s{ta}, {WS_OF}
    v_add_u32 v{vOD}, s{ta}, v{vKA}
    v_mov_b32 v{vIDX}, 0xdddddddd
    v_and_b32 v2, 27, v1
    v_cmp_eq_u32 vcc, 16, v2
    v_mov_b32 v2, {CNT+32}
    v_mov_b32 v{vZer}, {CNT+16}
    s_mov_b32 s{sMask}, 0x0000ffff
    s_mov_b32 s{sMask+1}, 0x0000ffff
    v_cndmask_b32 v{vOnes}, v{vZer}, v2, vcc
    s_mov_b32 s{sCnt}, 8
    """)
    def kvaddr():
        return [f"s_add_u32 s{sJ}, s{sJ}, 0x2000", f"s_and_b32 s{sJ}, s{sJ}, 0x1e000",
                f"s_add_u32 s{sKV}, s{sKVb}, s{sJ}", f"s_addc_u32 s{sKV+1}, s{sKVb+1}, 0"]
    E(kvaddr())
    def reads(n):
        i, s = n >> 2, n & 3
        slot = i % NS
        a = vWA + (slot >> 1); so = (slot & 1) * SLOT + s * WPART
        f = vFB + 8 * (n % 3)
        o = [f"ds_read_b128 {vr(vXF+4*n,4)}, v{vXA+s} offset:{slot*SLOT}"]
        for c in range(2):
            o.append(f"ds_read_b64_tr_b16 {vr(f+4*c,2)}, v{a} offset:{so+1024*c}")
            o.append(f"ds_read_b64_tr_b16 {vr(f+2+4*c,2)}, v{a} offset:{so+1024*c+256}")
        return o
    def dmaq(h):
        return [[f"s_add_u32 s{sT}, s{sROT}, {i}", f"s_and_b32 s{sT}, s{sT}, 7", f"s_add_u32 m0, s{sXO}, {WQ+4096*i}",
                 f"s_mul_i32 s{sWO}, s{sT}, 196608", f"buffer_load_dwordx4 v{vWD+1}, {sr(SRDW,4)}, s{sWO} offen lds"] for i in range(4*h, 4*h+4)]
    E(f"v_subrev_u32 v{vWD+1}, 1024, v{vWD}")
    if held:
        E(f"s_waitcnt vmcnt({OPT['d1'] + 6 - OPT['d1w']})")
        for g in held: E(g)
    E("s_waitcnt vmcnt(6)")
    if STAMP == 5: stamp("m")
    E("s_barrier")
    stamp("m")
    E(reads(0) + reads(1))
    pend = dma(2)
    E(pend.pop(0)); E(pend.pop(0))
    for n in range(32):
        f = vFB + 8 * (n % 3); x = vXF + 4 * n
        c = (lambda a: "0" if n == 0 else vr(a, 16))
        m = [f"v_mfma_f32_32x32x16_bf16 {vr(aV,16)}, {vr(x,4)}, {vr(f+4,4)}, {c(aV)}",
             f"v_mfma_f32_32x32x16_bf16 {vr(aK,16)}, {vr(f,4)}, {vr(x,4)}, {c(aK)}"]
        r = reads(n + 2) if n + 2 < 32 else []
        E(f"s_waitcnt lgkmcnt({5 if n < 31 else 0})")
        E(m[0])
        if (n + 2) % 4 == 0 and n + 2 < 32:
            b = (n + 2) >> 2
            assert not pend
            E(f"s_waitcnt vmcnt({6 if b < 7 else 4}) lgkmcnt(0)")
            if STAMP == 3: stamp("m")
            E("s_barrier")
            if STAMP == 2: stamp("m")
            if b + 2 <= 7: pend = dma(b + 2)
            else:
                pend = dmaq(b - 6)
                if b == 6: E(f"s_lshl_b32 s{sXO}, s{sW}, 10")
        E(r[:3])
        if pend: E(pend.pop(0))
        E(m[1]); E(r[3:])
        if pend: E(pend.pop(0))
    stamp("m")
    ep = [f"v_cvt_pk_bf16_f32 v{vP+j}, v{aK+2*j}, v{aK+1+2*j}" for j in range(4)]
    ep += [f"global_store_dwordx4 v{vSA}, {vr(vP,4)}, {sr(pWs,2)} sc1"]
    ep += [f"v_cvt_pk_bf16_f32 v{vP+j}, v{aK+2*j}, v{aK+1+2*j}" for j in range(4, 8)]
    ep += [f"global_store_dwordx4 v{vSB}, {vr(vP+4,4)}, {sr(pWs,2)} sc1"]
    ep += [f"v_permlane32_swap_b32 v{vP+8+a}, v{vP+10+a}" for a in (0, 1)]
    ep += [f"global_store_dwordx4 v{vSV}, {vr(vP+8,4)}, {sr(pWs,2)} offset:1024 sc1"]
    ep += [f"v_permlane32_swap_b32 v{vP+8+a}, v{vP+10+a}" for a in (4, 5)]
    ep += [f"global_store_dwordx4 v{vSV}, {vr(vP+12,4)}, {sr(pWs,2)} offset:1536 sc1"]
    LQ = OPT["lq"]
    qb = [40, 44, 24, 28, 32, 36, 64, 68, 72]
    def qread(n):
        f = qb[n % 9]
        return [f"ds_read_b64_tr_b16 {vr(f,2)}, v{vQA} offset:{1024*n}", f"ds_read_b64_tr_b16 {vr(f+2,2)}, v{vQA} offset:{1024*n+256}"]
    E("s_nop 10")
    for j in range(8):
        E(f"v_cvt_pk_bf16_f32 v{vP+8+j}, v{aV+2*j}, v{aV+1+2*j}")
    cut = OPT["epc"]
    E(ep[:cut])
    E(f"s_waitcnt vmcnt({4 + sum('store' in x for x in ep[:cut])})\ns_barrier")
    if STAMP == 4: stamp("m")
    for n in range(LQ): E(qread(n))
    E(ep[cut:])
    late = [f"ds_read_b128 {vr(vO+16*q+8+4*e,4)}, v{vZer}" for q in range(4) for e in range(2)]
    late += [f"ds_write_b128 v{vEW}, {vr(vP+4*j,4)} offset:{2048+1024*j}" for j in range(4)]
    late += [f"ds_read_b128 {vr(vKV+12*st+4+4*e,4)}, v{vOnes}" for st in range(4) for e in range(2)]
    nl = 0
    for n in range(32):
        E(f"s_waitcnt lgkmcnt({min(15, 2*min(LQ-1, 31-n) + nl)})")
        E(f"v_mfma_f32_32x32x16_bf16 {vr(aQ,16)}, {vr(qb[n%9],4)}, {vr(vXF+4*n,4)}, {'0' if n == 0 else vr(aQ,16)}")
        if n == OPT["ackn"]:
            if STAMP == 4: stamp("m")
            E("s_waitcnt vmcnt(0)\ns_barrier")
            if STAMP == 4: stamp("m")
        if n + LQ < 32:
            if n + LQ == 16:
                if STAMP == 4: stamp("m")
                E("s_waitcnt vmcnt(4)\ns_barrier")
                if STAMP == 4: stamp("m")
            E(qread(n + LQ))
        else:
            E(late[:2]); late = late[2:]; nl += 2
        r0 = vXF + 4 * (n - 1)
        for r in range(r0, r0 + 4):
            if n >= 1 and r < vKV and (r - vO) % 16 < 8: E(f"v_mov_b32 v{r}, 0")
    E(late)
    E(f"s_nop {max(0, 11 - len(late))}")
    for o in (0, 1):
        for j in range(8):
            E(f"v_mul_f32 v{aQ+8*o+j}, s{sQS}, v{aQ+8*o+j}")
        for j in range(4):
            E(f"v_cvt_pk_bf16_f32 v{aK+4*o+j}, v{aQ+8*o+2*j}, v{aQ+8*o+1+2*j}")
        E(f"ds_write_b128 v{vEW}, {vr(aK+4*o,4)} offset:{1024*o}")
    if STAMP == 4: stamp("m"); E("s_waitcnt vmcnt(0)"); stamp("m")
    E("s_waitcnt vmcnt(0) lgkmcnt(0)\ns_barrier")
    stamp("m")
    E(f"""
    ds_read_b128 {vr(vQ,4)}, v{vER1}
    ds_read_b128 {vr(vKV,4)}, v{vER0} offset:2048
    ds_read_b128 {vr(vQ+4,4)}, v{vER1} offset:6144
    s_mov_b64 exec, {sr(sMask,2)}
    ds_read_b128 {vr(vKV+4,4)}, v{vERV} offset:4096
    ds_read_b128 {vr(vKV+8,4)}, v{vERV} offset:5120
    ds_read_b128 {vr(vKV+16,4)}, v{vERV} offset:{4096+6144}
    ds_read_b128 {vr(vKV+20,4)}, v{vERV} offset:{5120+6144}
    s_mov_b64 exec, -1
    ds_read_b128 {vr(vQ+8,4)}, v{vER0}
    ds_read_b128 {vr(vQ+12,4)}, v{vER0} offset:6144
    ds_read_b128 {vr(vKV+12,4)}, v{vER0} offset:{2048+6144}
    s_waitcnt lgkmcnt(8)
    v_mfma_f32_32x32x16_bf16 {vr(SA,16)}, {vr(vKV,4)}, {vr(vQ,4)}, 0
    s_nop 10
    s_waitcnt lgkmcnt(0)
    """)
    def kload(st, par):
        return [f"global_load_dwordx4 {vr(vKV+12*st,4)}, v{vKA}, {sr(sKV,2)} offset:{par*2048} sc1"]
    def vload(st, par):
        return [f"s_mov_b64 exec, {sr(sMask,2)}",
                f"global_load_dwordx4 {vr(vKV+12*st+4,4)}, v{vVA}, {sr(sKV,2)} offset:{par*2048+1024} sc1",
                f"global_load_dwordx4 {vr(vKV+12*st+8,4)}, v{vVA}, {sr(sKV,2)} offset:{par*2048+1536} sc1",
                "s_mov_b64 exec, -1"]
    def step(t, q, mode="loop", lo=0, hi=16, extra=None):
        cur, oth = (SA, SB) if q % 2 == 0 else (SB, SA)
        tp, qp = (t, q - 1) if q else ((t - 1) % 4, 3)
        tn, qn = (t, q + 1) if q < 3 else ((t + 1) % 4, 0)
        after2, afterq, after1 = extra or ([], [], [])
        st = (t + 3) % 4; par = (t + 3) & 1
        if mode == "loop":
            if q == 0:
                after2 = vload(st, par); afterq = kload(st, par)
            if q == 1 and par == 1:
                ka = kvaddr(); after2 = ka[:2]; after1 = ka[2:]
            if q == 3:
                after2 = ["s_waitcnt vmcnt(6)"]
                if t == 2:
                    after2 += [f"s_sub_u32 s{sCnt}, s{sCnt}, 1"]; afterq = [f"s_cmp_lg_u32 s{sCnt}, 0"]
        for i in range(lo, hi):
            E(f"v_exp_f32 v{cur+i}, v{cur+i}")
            if i == 1 and not (mode == "first" and q == 0):
                E(f"v_smfmac_f32_32x32x32_bf16 {vr(vO+16*qp,16)}, {vr(vKV+12*tp+8,4)}, {vr(oth+8,8)}, v{vIDX}")
                E(after2)
            if i == 4 and not (mode == "last" and q == 3):
                E(f"v_mfma_f32_32x32x16_bf16 {vr(oth,16)}, {vr(vKV+12*tn,4)}, {vr(vQ+4*qn,4)}, 0")
                E(afterq)
            if i == 10:
                E(f"v_smfmac_f32_32x32x32_bf16 {vr(vO+16*q,16)}, {vr(vKV+12*t+4,4)}, {vr(cur,8)}, v{vIDX}")
                E(after1)
    for q in range(4): step(0, q, "first")
    E("s_barrier")
    stamp("m")
    E(kload(2, 0) + vload(2, 0) + vload(3, 1) + kload(3, 1) + kvaddr())
    E("s_branch L_attn1\n.p2align 3\nL_attn:")
    step(2, 3, lo=11)
    for t in (3, 0, 1, 2):
        if t == 1: E("L_attn1:")
        for q in range(4): step(t, q, hi=(11 if (t, q) == (2, 3) else 16))
    if OPT.get("itst"):
        E(f"s_memtime s[90:91]\ns_mov_b32 m0, s{sCnt}\ns_waitcnt lgkmcnt(0)\nv_writelane_b32 v23, s90, m0")
    E("s_cbranch_scc1 L_attn")
    step(2, 3, lo=11)
    vR = 64
    def sendw(q): return [f"ds_write_b128 v{vRW}, {vr(vO+16*q,4)} offset:{2048*q}", f"ds_write_b128 v{vRW}, {vr(vO+16*q+4,4)} offset:{2048*q+1024}",
                          f"ds_write_b32 v{vRWl}, v{vO+16*q+8} offset:{4096+256*q}"]
    recv = ["s_waitcnt lgkmcnt(0)", "s_barrier",
            f"ds_read_b32 v{vR+16}, v{vRRl} offset:4096", f"ds_read_b128 {vr(vR,4)}, v{vRR}", f"ds_read_b128 {vr(vR+4,4)}, v{vRR} offset:1024",
            f"ds_read_b32 v{vR+17}, v{vRRl} offset:4352", f"ds_read_b128 {vr(vR+8,4)}, v{vRR} offset:2048", f"ds_read_b128 {vr(vR+12,4)}, v{vRR} offset:3072"]
    step(3, 0, "last"); step(3, 1, "last")
    w0 = sendw(0)
    step(3, 2, "last", extra=(w0[:1], w0[1:2], w0[2:]))
    step(3, 3, "last", extra=(sendw(1), [], recv))
    O2, O3 = vO + 32, vO + 48
    E(f"""
    s_waitcnt lgkmcnt(3)
    v_add_f32 v{O2+8}, v{O2+8}, v{vR+16}
    v_smfmac_f32_32x32x32_bf16 {vr(O3,16)}, {vr(vKV+36+8,4)}, {vr(SB+8,8)}, v{vIDX}
    """)
    stamp("m")
    def fin(o, r, rl, dst, addr):
        if rl is not None: E(f"v_add_f32 v{o+8}, v{o+8}, v{rl}")
        E(f"v_rcp_f32 v{vT}, v{o+8}")
        if r is not None:
            for j in range(8): E(f"v_add_f32 v{o+j}, v{o+j}, v{r+j}")
        else:
            E("s_nop 0")
        for j in range(8): E(f"v_mul_f32 v{o+j}, v{o+j}, v{vT}")
        for j in range(4): E(f"v_cvt_pk_bf16_f32 v{dst+j}, v{o+2*j}, v{o+2*j+1}")
        E(f"global_store_dwordx4 v{addr}, {vr(dst,4)}, {sr(pWs,2)} sc1")
    fin(O2, vR, None, SA, vOA)
    E("s_waitcnt lgkmcnt(0)")
    fin(O3, vR + 8, vR + 17, SA + 4, vOB)
    E(f"""
    s_mov_b32 s{ta}, {fbits(2.0**-30)}
    s_mov_b32 s{tb}, {fbits(2.0**50)}
    v_min_f32 v{vT+6}, v{O2+8}, v{O3+8}
    v_max_f32 v{vT+7}, v{O2+8}, v{O3+8}
    v_cmp_lt_f32 vcc, s{ta}, v{vT+6}
    v_cmp_gt_f32 {sr(tc,2)}, s{tb}, v{vT+7}
    v_pk_mul_f32 {vr(vT+2,2)}, {vr(O2,2)}, 0 op_sel_hi:[1,0]
    s_and_b64 {sr(tc,2)}, {sr(tc,2)}, vcc
    """)
    for j in (2, 4, 6, 16, 18, 20, 22):
        E(f"v_pk_fma_f32 {vr(vT+2,2)}, {vr(O2+j,2)}, 0, {vr(vT+2,2)} op_sel_hi:[1,0,1]")
    E(f"""
    v_cmp_o_f32 vcc, v{vT+2}, v{vT+3}
    s_nop 1
    s_and_b64 vcc, {sr(tc,2)}, vcc
    s_cmp_eq_u64 vcc, -1
    s_cbranch_scc0 L_safe
    L_pub:
    s_waitcnt vmcnt(0)
    s_barrier
    """)
    stamp("m")
    E(f"s_cmp_lg_u32 s{sW}, 0\ns_cbranch_scc1 L_mdone")
    put_flag(vF2, vOne)
    E("s_waitcnt vmcnt(0)")
    poll_global(vF2P, pFL, 2)
    E(f"s_mov_b32 s{sKV}, s{pWs}\ns_mov_b32 s{sKV+1}, s{pWs+1}")
    for g in range(8):
        E(f"s_mov_b32 m0, {OFL+4096*g}")
        if g: E(f"s_add_u32 s{sKV}, s{sKV}, 4096\ns_addc_u32 s{sKV+1}, s{sKV+1}, 0")
        else: E("s_nop 0")
        for j in range(4):
            E(f"global_load_lds_dwordx4 v{vOD}, {sr(sKV,2)} offset:{1024*j} sc1")
    for n in (24, 16, 8, 0):
        E(f"s_waitcnt vmcnt({n})\ns_barrier")
    if SPM >= 0:
        E("s_branch L_mdone2\nL_mdone:\ns_barrier\ns_barrier\ns_barrier\ns_barrier\nL_mdone2:")
    else:
        E("L_mdone:")
    stamp_flush("m"); spin_end("m")
    if OPT.get("itst"):
        E(f"v_lshl_add_u32 v2, v1, 2, v2\nv_add_u32 v2, 0x100000, v2\ns_mov_b64 exec, 0xff\nglobal_store_dword v2, v23, {sr(pWs,2)}")
    E("s_endpgm")
    vM, vC = vT + 6, 64
    vQ += 8; vO += 32
    E(f"""
    L_safe:
    s_waitcnt vmcnt(0)
    s_lshl_b32 s{ta}, s{sZ}, 12
    s_sub_u32 s{sKVb}, s{sKVb}, s{ta}
    s_subb_u32 s{sKVb+1}, s{sKVb+1}, 0
    s_mov_b32 s{sKV}, s{sKVb}
    s_mov_b32 s{sKV+1}, s{sKVb+1}
    s_mov_b32 s{sCnt}, 64
    v_mov_b32 v{vM}, 0xff800000
    v_mov_b32 v{vM+1}, 0xff800000
    L_safe1:
    global_load_dwordx4 {vr(vKV,4)}, v{vKA}, {sr(sKV,2)} sc1
    s_add_u32 s{sKV}, s{sKV}, 2048
    s_addc_u32 s{sKV+1}, s{sKV+1}, 0
    s_waitcnt vmcnt(0)
    v_mfma_f32_32x32x16_bf16 {vr(SA,16)}, {vr(vKV,4)}, {vr(vQ,4)}, 0
    v_mfma_f32_32x32x16_bf16 {vr(SB,16)}, {vr(vKV,4)}, {vr(vQ+4,4)}, 0
    s_nop 15
    """)
    for j in range(8):
        E(f"v_max3_f32 v{vM}, v{SA+2*j}, v{SA+2*j+1}, v{vM}\nv_max3_f32 v{vM+1}, v{SB+2*j}, v{SB+2*j+1}, v{vM+1}")
    E(f"""
    s_sub_u32 s{sCnt}, s{sCnt}, 1
    s_cmp_lg_u32 s{sCnt}, 0
    s_cbranch_scc1 L_safe1
    v_mov_b32 v{SA}, v{vM}
    v_mov_b32 v{SB}, v{vM+1}
    s_nop 1
    v_permlane32_swap_b32 v{SA}, v{vM}
    v_permlane32_swap_b32 v{SB}, v{vM+1}
    s_nop 1
    v_max_f32 v{vM}, v{vM}, v{SA}
    v_max_f32 v{vM+1}, v{vM+1}, v{SB}
    """)
    for j in range(16):
        E(f"v_sub_f32 v{vC+j}, 0, v{vM}\nv_sub_f32 v{vC+16+j}, 0, v{vM+1}\nv_mov_b32 v{vO+j}, 0\nv_mov_b32 v{vO+16+j}, 0")
    E(f"""
    s_mov_b32 s{sKV}, s{sKVb}
    s_mov_b32 s{sKV+1}, s{sKVb+1}
    s_mov_b32 s{sCnt}, 64
    L_safe2:
    """)
    E(kload(0, 0) + vload(0, 0))
    E(f"""
    s_add_u32 s{sKV}, s{sKV}, 2048
    s_addc_u32 s{sKV+1}, s{sKV+1}, 0
    s_waitcnt vmcnt(0)
    v_mfma_f32_32x32x16_bf16 {vr(SA,16)}, {vr(vKV,4)}, {vr(vQ,4)}, {vr(vC,16)}
    v_mfma_f32_32x32x16_bf16 {vr(SB,16)}, {vr(vKV,4)}, {vr(vQ+4,4)}, {vr(vC+16,16)}
    s_nop 15
    """)
    for j in range(32):
        E(f"v_exp_f32 v{SA+j}, v{SA+j}")
    E(f"""
    s_nop 1
    v_smfmac_f32_32x32x32_bf16 {vr(vO,16)}, {vr(vKV+4,4)}, {vr(SA,8)}, v{vIDX}
    v_smfmac_f32_32x32x32_bf16 {vr(vO,16)}, {vr(vKV+8,4)}, {vr(SA+8,8)}, v{vIDX}
    v_smfmac_f32_32x32x32_bf16 {vr(vO+16,16)}, {vr(vKV+4,4)}, {vr(SB,8)}, v{vIDX}
    v_smfmac_f32_32x32x32_bf16 {vr(vO+16,16)}, {vr(vKV+8,4)}, {vr(SB+8,8)}, v{vIDX}
    s_sub_u32 s{sCnt}, s{sCnt}, 1
    s_cmp_lg_u32 s{sCnt}, 0
    s_cbranch_scc1 L_safe2
    s_nop 15
    """)
    fin(O2, None, None, SA, vOA); fin(O3, None, None, SA + 4, vOB)
    E("s_branch L_pub")

def helper_wave():
    sH, sC, sMH, sRT, sCB, sD = sT, sT + 1, sT + 2, sT + 3, sT + 4, sT + 5
    sLd, sDs = sT + 6, sT + 7
    t0 = sT + 8
    sLead, sWst = 92, 93
    sAT = 100
    vGW = 156
    vGWA = 155
    vXF = 160
    vG, vGA0, vGA1 = 164, 165, 166
    vU = 168
    vF4, vF4P, vWqP, vWqG, vRdy, vF1, vF1P = range(141, 148)
    sWq = 94
    vTA, vTS = 148, 152
    sUW = sT + 13
    assert NS == 3
    vPar = 4
    E(f"""
    L_helper:
    s_lshr_b32 s{sC}, s{sH}, 1
    s_add_u32 s{sD}, s{sCH}, s{sC}
    s_and_b32 s{sRT}, s{sHP}, 3
    s_lshr_b32 s{sCB}, s{sHP}, 2
    v_lshrrev_b32 v3, 5, v1
    v_lshlrev_b32 v3, 4, v3
    s_lshl_b32 s{t0+2}, s{sROT}, 2
    s_add_u32 s{t0+2}, s{t0+2}, s{sH}
    s_lshl_b32 s{t0+2}, s{t0+2}, 5
    s_add_u32 s{t0+2}, s{t0+2}, {GW}
    v_add_u32 v{vGWA}, s{t0+2}, v3
    v_mov_b32 v12, 0
    v_mov_b32 v13, 0
    v_mov_b32 v14, 0
    v_mov_b32 v15, 0
    s_cmp_lt_u32 s2, 16
    s_cselect_b32 s{sLead}, s{sW}, 0
    """)
    E(f"s_add_u32 s{pFL}, s{pWs}, {WS_FL}\ns_addc_u32 s{pFL+1}, s{pWs+1}, 0")
    def claim_kv():
        E(f"""
        s_lshl2_add_u32 s{t0}, s{sRB}, s{sH}
        s_lshl_b32 s{t0}, s{t0}, 11
        s_lshl_b32 s{t0+1}, s{sHP}, 18
        s_add_u32 s{t0}, s{t0}, s{t0+1}
        """)
        if OPT["clm"] in (1, 3):
            E(f"""
            v_and_b32 v10, 31, v1
            v_lshl_add_u32 v10, v10, 6, s{t0}
            v_lshrrev_b32 v11, 5, v1
            v_lshl_add_u32 v10, v11, 17, v10
            global_store_dword v10, v12, {sr(pWs,2)} sc1
            """)
        else:
            E(f"""
            v_lshl_add_u32 v10, v1, 4, s{t0}
            v_add_u32 v11, 0x20000, v10
            global_store_dwordx4 v10, v[12:15], {sr(pWs,2)} sc1
            global_store_dwordx4 v10, v[12:15], {sr(pWs,2)} offset:1024 sc1
            global_store_dwordx4 v11, v[12:15], {sr(pWs,2)} sc1
            global_store_dwordx4 v11, v[12:15], {sr(pWs,2)} offset:1024 sc1
            """)
    NCL = {0: 0, 1: 1, 2: 4, 3: 0}[OPT["clm"]]
    if NCL: claim_kv()
    stamp("h")
    E(f"""
    s_mul_i32 s{t0}, s{sC}, {URS}
    s_add_u32 s{t0}, s{t0}, {UR+4096}
    v_lshl_add_u32 v10, v1, 4, s{t0}
    v_and_b32 v11, 1, v1
    v_lshlrev_b32 v11, 4, v11
    v_cmp_gt_u32 vcc, 30, v1
    v_add_u32 v11, {CNT}, v11
    v_mov_b32 v2, 0x3f803f80
    v_cndmask_b32 v10, v11, v10, vcc
    ds_write_b128 v10, v[12:15]
    v_and_b32 v11, 3, v1
    v_lshlrev_b32 v11, 2, v11
    ds_write_b32 v11, v2 offset:{CNT+32}
    """)
    vWA, vRA = 16, 17
    if "prio1" in OPT: E(f"s_setprio {OPT['prio1']}")
    E(f"""
    s_mul_i32 s{t0}, s{sRT}, {WPART}
    s_add_u32 s{t0}, s{t0}, {RING}
    v_and_b32 v10, 31, v1
    v_lshl_add_u32 v10, v10, 7, s{t0}
    v_bfe_u32 v11, v1, 1, 3
    v_lshrrev_b32 v3, 5, v1
    v_xor_b32 v11, v11, v3
    s_lshl_b32 s{t0}, s{sH}, 1
    v_xor_b32 v11, s{t0}, v11
    v_lshl_add_u32 v{vGA0}, v11, 4, v10
    v_mov_b32 v{vG}, 0
    """)
    if not OPT["gath"]: E(f"""
    s_lshr_b32 s{sUW}, s{sHP}, 1
    s_sub_u32 s{sUW}, s{sUW}, s{sROT}
    s_and_b32 s{sUW}, s{sUW}, 7
    s_mul_i32 s{t0}, s{sUW}, 11
    s_lshr_b32 s{t0}, s{t0}, 5
    s_mul_i32 s{t0}, s{t0}, 3
    s_sub_u32 s{t0}, s{sUW}, s{t0}
    s_mul_i32 s{t0}, s{t0}, {SLOT}
    s_mul_i32 s{t0+1}, s{sH}, {WPART}
    s_add_u32 s{t0}, s{t0}, s{t0+1}
    s_add_u32 s{t0}, s{t0}, {RING}
    v_and_b32 v10, 3, v1
    v_bfe_u32 v11, v1, 2, 2
    v_lshlrev_b32 v10, 3, v10
    v_sub_u32 v10, v10, v11
    v_add_u32 v10, 7, v10
    v_bfe_u32 v11, v10, 1, 3
    v_xor_b32 v11, v11, v3
    s_and_b32 s{t0+1}, s{sHP}, 1
    s_lshl_b32 s{t0+1}, s{t0+1}, 2
    v_xor_b32 v11, s{t0+1}, v11
    v_lshlrev_b32 v11, 4, v11
    v_lshl_add_u32 v11, v10, 7, v11
    v_bfe_u32 v10, v1, 4, 1
    v_lshl_add_u32 v11, v10, 3, v11
    v_add_u32 v{vTA}, s{t0}, v11
    v_xor_b32 v{vTA+1}, 32, v{vTA}
    v_subrev_u32 v{vTA+2}, 512, v{vTA}
    v_subrev_u32 v{vTA+3}, 512, v{vTA+1}
    """)
    E(f"""
    s_mul_i32 s{t0}, s{sH}, {KGS}
    s_add_u32 s{t0}, s{t0}, {KG}
    s_mov_b32 m0, s{t0}
    v_and_b32 v10, 31, v1
    v_mul_u32_u24 v10, 272, v10
    v_lshl_add_u32 v10, v3, 4, v10
    v_add_u32 v{vRA}, s{t0}, v10
    s_mul_i32 s{t0}, s{sC}, {2*KGS}
    s_add_u32 s{t0}, s{t0}, {KG+KGS}
    v_lshl_add_u32 v{vWA}, v1, 4, s{t0}
    """)
    K = []
    def k(s, c=None):
        if isinstance(s, list): s = "\n".join(s)
        for x in s.split("\n"):
            x = x.strip()
            if not x: continue
            cc = c if c is not None else (8 if any(t in x for t in ("v_exp", "v_sin", "v_cos", "v_rcp", "ds_")) else 4)
            K.append((cc, x))
    va, vb, vt = 220, 221, 222
    log2e = math.log2(math.e)
    c_hi = struct.unpack("<f", struct.pack("<f", log2e))[0]
    c_lo = log2e - c_hi
    k(f"""
    s_waitcnt lgkmcnt(0)
    s_lshl_b32 s{t0}, s{sC}, 4
    s_lshr_b32 s{sLd}, s{sLd}, s{t0}
    s_lshl_b32 s{sLd}, s{sLd}, 16
    s_lshr_b32 s{sDs}, s{sDs}, s{t0}
    s_lshl_b32 s{sDs}, s{sDs}, 16
    s_mov_b32 s{t0}, {fbits(c_hi)}
    v_mov_b32 v{vt}, s{sLd}
    v_mul_f32 v{vt+1}, s{t0}, v{vt}
    v_fma_f32 v{vt+2}, v{vt}, s{t0}, -v{vt+1}
    v_fmac_f32 v{vt+2}, {fbits(c_lo)}, v{vt}
    v_exp_f32 v{vt+1}, v{vt+1}
    v_mul_f32 v{vt+2}, {fbits(math.log(2.0))}, v{vt+2}
    v_fma_f32 v{vt+1}, v{vt+1}, v{vt+2}, v{vt+1}
    v_cvt_pk_bf16_f32 v{vt+1}, v{vt+1}, v{vt+1}
    v_lshlrev_b32 v{vt}, 16, v{vt+1}
    s_waitcnt vmcnt({1+NCL})
    """)
    for j in range(6):
        k(f"v_lshlrev_b32 v{vPar+j}, 16, v{vPar+j}")
    k(f"""
    v_mul_f32 v{va}, v{vt}, v{vPar}
    v_mul_f32 v{vb}, v{vt}, v{vPar+1}
    v_mul_f32 v{vPar+2}, v{vt}, v{vPar+2}
    v_mul_f32 v{vPar+3}, v{vt}, v{vPar+3}
    v_mul_f32 v{va}, {fbits(c_hi)}, v{va}
    v_mul_f32 v{vb}, 0.15915494, v{vb}
    """)
    pkm = [OPT["pk0"]]
    def cmul(z, x, w):
        if pkm[0]:
            return [f"v_pk_mul_f32 {vr(z,2)}, {vr(x,2)}, {vr(w,2)} op_sel_hi:[0,1]",
                    f"v_pk_fma_f32 {vr(z,2)}, {vr(x,2)}, {vr(w,2)}, {vr(z,2)} op_sel:[1,1,0] op_sel_hi:[1,0,1] neg_lo:[1,0,0]"]
        return [f"v_mul_f32 v{z}, v{x}, v{w}\nv_mul_f32 v{z+1}, v{x}, v{w+1}",
                f"v_fma_f32 v{z}, -v{x+1}, v{w+1}, v{z}\nv_fmac_f32 v{z+1}, v{x+1}, v{w}"]
    def cmuls(lst):
        cm = [cmul(*a) for a in lst]
        k([c[0] for c in cm]); k([c[1] for c in cm])
    def direct(z, x):
        k(f"""
        v_mul_f32 v{vt+2}, {fbits(x)}, v{vb}
        v_mul_f32 v{vt+1}, {fbits(x)}, v{va}
        v_fract_f32 v{vt+2}, v{vt+2}
        v_exp_f32 v{vt+1}, v{vt+1}
        v_cos_f32 v{z}, v{vt+2}
        v_sin_f32 v{z+1}, v{vt+2}
        s_nop 0
        v_mul_f32 v{z}, v{z}, v{vt+1}
        v_mul_f32 v{z+1}, v{z+1}, v{vt+1}
        """)
    E1, E32, E256 = 226, 228, 230
    vE = 232
    vPk = 64
    npk = [0]
    DW = {False: [], True: []}
    def puts(lst, neg):
        for z, rows in lst:
            p = vPk + npk[0]; npk[0] += 1
            k(f"v_cvt_pk_bf16_f32 v{p}, v{z}, {'-' if neg else ''}v{z+1}")
            DW[neg] += [f"ds_write_addtid_b32 v{p} offset:{272*r}" for r in rows]
    def e(j): return vE + 2 * (j % 8)
    direct(e(1), 8.0); direct(E32, 32.0)
    k(f"v_mov_b32 v{e(0)}, 1.0\nv_mov_b32 v{e(0)+1}, 0\nv_mov_b32 v{e(4)}, v{E32}\nv_mov_b32 v{e(4)+1}, v{E32+1}")
    cmuls([(e(2), e(1), e(1)), (e(5), e(1), E32)])
    cmuls([(e(3), e(2), e(1)), (e(6), e(2), E32)])
    cmuls([(e(7), e(3), E32)])
    puts([(e(j), [j]) for j in range(4)], False)
    for j0 in range(4, 32, 4):
        if j0 + 4 < 32: cmuls([(e(j + 4), e(j), E32) for j in range(j0, j0 + 4)])
        puts([(e(j), [j]) for j in range(j0, j0 + 4)], False)
    vEF, vGF, vD = 192, 224, 176
    direct(E1, 1.0); direct(E256, 256.0)
    def row(r, h): return 8 * (r >> 2) + 4 * h + (r & 3)
    vGv = 192
    g = {x: vGv + 2 * x for x in range(9)}
    E2 = e(0)
    cmuls([(g[0], vPar + 4, vPar + 2), (E2, E1, E1)])
    cmuls([(g[1], g[0], E1), (g[2], g[0], E2)])
    cmuls([(g[3], g[1], E2), (g[4], g[2], E2)])
    puts([(g[x], [row(x, 0)]) for x in range(4)], True)
    cmuls([(g[5], g[3], E2), (g[6], g[4], E2)])
    cmuls([(g[7], g[5], E2), (g[8], g[6], E2)])
    puts([(g[x], [row(x, 0)]) for x in range(4, 8)], True)
    A = {o: vGv + 18 + 2 * i for i, o in enumerate((0, 2, 4, 6, 8))}
    cmuls([(A[o], g[o], E256) for o in (0, 2, 4, 6, 8)])
    puts([(A[o], [row(r, 1) for r in rs]) for o, rs in ((0, (0, 1)), (2, (2,)), (4, (3, 4, 5)), (6, (6,)), (8, (7,)))], True)
    src, dst = A, g
    for os_, r0, h in (((0, 4, 8), 8, 0), ((0, 4, 8), 8, 1), ((0, 8), 11, 0), ((0, 8), 11, 1), ((0, 8), 13, 0), ((0, 8), 13, 1)):
        cmuls([(dst[o], src[o], E256) for o in os_])
        puts([(dst[o], [row(r0 + i, h)]) for i, o in enumerate(os_)], True)
        src, dst = dst, src
    def D1(): E(DW[False] + [f"ds_read_b128 {vr(vEF+4*s,4)}, v{vRA} offset:{32*s}" for s in range(8)])
    def D2(): E(DW[True] + [f"ds_read_b128 {vr(vGF+4*s,4)}, v{vRA} offset:{32*s}" for s in range(8)])
    PL = [int(c) for c in "%05d" % OPT["pl"]]
    psync = PL[2] == PL[3]
    def D3():
        E("s_waitcnt lgkmcnt(0)")
        for s in range(8):
            E(f"v_mfma_f32_32x32x16_bf16 {vr(vD,16)}, {vr(vGF+4*s,4)}, {vr(vEF+4*s,4)}, {'0' if s == 0 else vr(vD,16)}")
        lx = newlab("nx")
        E(f"s_nop 9\ns_cmp_eq_u32 s{sMH}, 0\ns_cbranch_scc1 {lx}")
        for j in range(4):
            E(f"ds_write_b128 v{vWA}, {vr(vD+4*j,4)} offset:{1024*j}")
        if psync: lds_arrive(vCP, vOne)
        E(f"s_waitcnt lgkmcnt(0)\n{lx}:")
    (vCA, vCP, vOne, vTm, vAA, vBA, vUW, vCW, vCR, vAT, vF3, vWoG, vWoL, vF3P, vAL, vOut, vg, vomg, vOL, vGPw, vGPr, vWoP, vUL, vClO) = range(24, 48)
    vA = 48; vAcc = 96
    ADDR = f"""
    s_lshr_b32 s{t0}, s2, 3
    s_lshl2_add_u32 s{t0}, s{t0}, s{sH}
    s_mul_i32 s{t0}, s{t0}, 12288
    s_lshr_b32 s{t0+1}, s{sHP}, 3
    s_lshl_b32 s{t0+1}, s{t0+1}, 9
    s_add_u32 s{t0}, s{t0}, s{t0+1}
    v_bfe_u32 v18, v1, 2, 2
    v_mul_u32_u24 v18, 3072, v18
    v_and_b32 v19, 3, v1
    v_lshl_add_u32 v18, v19, 7, v18
    v_add_u32 v{vWqP}, s{t0}, v18
    v_mov_b32 v{vCA}, {CNT}
    s_lshl_b32 s{t0}, s{sC}, 2
    s_add_u32 s{t0}, s{t0}, {CNT+4}
    v_mov_b32 v{vCP}, s{t0}
    v_mov_b32 v{vOne}, 1
    v_lshlrev_b32 v23, 4, v1
    s_lshl_b32 s{t0}, s{sH}, 10
    s_sub_u32 s{t0}, {UR+4080-512}, s{t0}
    v_lshrrev_b32 v18, 1, v1
    v_lshlrev_b32 v19, 4, v18
    v_sub_u32 v19, s{t0}, v19
    v_and_b32 v20, 1, v1
    v_mul_u32_u24 v21, {URS}, v20
    v_add_u32 v{vUW}, v19, v21
    s_lshr_b32 s{t0}, s{sCH}, 2
    s_lshl_b32 s{t0}, s{t0}, 14
    s_lshl_b32 s{t0+1}, s{sH}, 12
    s_add_u32 s{t0}, s{t0}, s{t0+1}
    s_and_b32 s{t0+1}, s{sRB}, 1
    s_lshl_b32 s{t0+1}, s{t0+1}, 5
    s_add_u32 s{t0}, s{t0}, s{t0+1}
    s_add_u32 s{t0}, s{t0}, {WS_UT}
    v_lshl_add_u32 v18, v18, 6, s{t0}
    v_lshl_add_u32 v{vUL}, v20, 4, v18
    v_and_b32 v18, 15, v1
    v_add_u32 v19, 1, v18
    v_and_b32 v20, 3, v19
    v_mul_u32_u24 v20, {KCP}, v20
    v_lshrrev_b32 v19, 2, v19
    v_lshl_add_u32 v20, v19, 3, v20
    v_lshrrev_b32 v21, 4, v1
    v_lshlrev_b32 v22, 4, v21
    s_mul_i32 s{t0}, s{sC}, {2*KGS}
    s_lshl_b32 s{t0+1}, s{sMH}, 8
    s_add_u32 s{t0}, s{t0}, s{t0+1}
    s_add_u32 s{t0}, s{t0}, {KG}
    v_add3_u32 v{vAA}, v20, v22, s{t0}
    s_mul_i32 s{t0}, s{sC}, {URS}
    s_add_u32 s{t0}, s{t0}, s{t0+1}
    s_add_u32 s{t0}, s{t0}, {UR+4064-3584}
    v_lshlrev_b32 v19, 5, v18
    v_sub_u32 v22, v22, v19
    v_add_u32 v{vBA}, s{t0}, v22
    s_lshl_b32 s{t0}, s{sH}, 12
    s_add_u32 s{t0}, s{t0}, {CRED}
    v_add_u32 v{vCW}, s{t0}, v23
    s_xor_b32 s{t0}, s{sH}, 1
    s_lshl_b32 s{t0}, s{t0}, 12
    s_add_u32 s{t0}, s{t0}, {CRED}
    v_add_u32 v{vCR}, s{t0}, v23
    v_add_u32 v{vOL}, {OFL}, v23
    v_lshrrev_b32 v19, 1, v18
    v_lshlrev_b32 v19, 15, v19
    v_and_b32 v20, 1, v1
    v_lshl_add_u32 v19, v20, 5, v19
    v_lshl_add_u32 v{vAT}, v21, 3, v19
    s_lshl_b32 s{t0}, s{sMH}, 20
    s_lshl_b32 s{t0+1}, s{sD}, 6
    s_add_u32 s{t0}, s{t0}, s{t0+1}
    s_add_u32 s{t0}, s{t0}, {WS_AT}
    s_add_u32 s{sAT}, s{pWs}, s{t0}
    s_addc_u32 s{sAT+1}, s{pWs+1}, 0
    s_lshl_b32 s{t0}, s{sMH}, 9
    s_add_u32 s{t0}, s{t0}, s{sD}
    s_add_u32 s{t0}, s{t0}, {F3}
    s_lshl_b32 s{t0}, s{t0}, 2
    v_mov_b32 v{vF3}, s{t0}
    s_mov_b32 s{SRDW}, s{pWo}
    s_mov_b32 s{SRDW+1}, s{pWo+1}
    s_mov_b32 s{SRDW+2}, {512*1024}
    s_mov_b32 s{SRDW+3}, 0x00020000
    s_lshl_b32 s{t0}, s{sCB}, 2
    s_add_u32 s{t0}, s{t0}, s{sH}
    s_lshl_b32 s{t0+1}, s{t0}, 6
    v_lshrrev_b32 v18, 2, v1
    v_lshl_add_u32 v18, v18, 10, s{t0+1}
    v_and_b32 v19, 3, v1
    v_lshl_add_u32 v{vWoG}, v19, 4, v18
    s_mul_i32 s{sWst}, s{sH}, {WSL*1024}
    s_add_u32 s{sWst}, s{sWst}, {WST}
    v_lshrrev_b32 v22, 5, v1
    v_lshlrev_b32 v20, 2, v22
    v_bfe_u32 v21, v1, 2, 2
    v_add_u32 v20, v20, v21
    v_lshl_add_u32 v20, v20, 6, s{sWst}
    v_lshl_add_u32 v20, v19, 3, v20
    v_bfe_u32 v21, v1, 4, 1
    v_lshl_add_u32 v{vWoL}, v21, 5, v20
    s_lshl_b32 s{t0}, s{t0}, 5
    s_lshr_b32 s{t0+1}, s{sRB}, 3
    s_lshl_b32 s{t0+1}, s{t0+1}, 9
    s_add_u32 s{t0+1}, s{t0+1}, s{t0}
    s_add_u32 s{t0+1}, s{t0+1}, {F3}
    v_and_b32 v18, 31, v1
    v_add_u32 v19, s{t0+1}, v18
    v_lshlrev_b32 v{vF3P}, 2, v19
    s_lshl_b32 s{t0+1}, s{sRB}, 2
    s_add_u32 s{t0+1}, s{t0+1}, s{sRT}
    s_lshl_b32 s{t0+2}, s{t0+1}, 15
    s_lshl_b32 s{t0+3}, s{t0}, 6
    s_add_u32 s{t0+3}, s{t0+3}, s{t0+2}
    s_add_u32 s{t0+3}, s{t0+3}, {WS_AT}
    v_lshlrev_b32 v20, 8, v22
    v_lshl_add_u32 v20, v18, 1, v20
    v_add_u32 v{vAL}, s{t0+3}, v20
    s_lshl_b32 s{t0}, s{t0}, 1
    s_add_u32 s{t0}, s{t0}, s{t0+2}
    v_lshl_add_u32 v20, v18, 10, s{t0}
    v_lshl_add_u32 v{vOut}, v22, 4, v20
    """.split("\n")
    ADDR += f"""
    s_lshl2_add_u32 s{t0}, s{sRB}, s{sH}
    s_lshl4_add_u32 s{t0}, s{t0}, s{sHP}
    s_lshl_b32 s{t0}, s{t0}, 11
    s_add_u32 s{t0}, s{t0}, {WS_OF}
    v_lshl_add_u32 v{vClO}, v1, 6, s{t0}
    s_lshl_b32 s{t0}, s{sRB}, 2
    s_add_u32 s{t0}, s{t0}, s{sH}
    s_lshl_b32 s{t0}, s{t0}, 8
    s_lshl_b32 s{t0+1}, s{sHP}, 17
    s_add_u32 s{t0}, s{t0}, s{t0+1}
    s_add_u32 s{t0}, s{t0}, {WS_UT}
    v_and_b32 v18, 15, v1
    v_lshl_add_u32 v18, v18, 4, s{t0}
    v_lshrrev_b32 v19, 4, v1
    v_lshl_add_u32 v{vTS}, v19, 14, v18
    v_add_u32 v{vTS+1}, 0x10000, v{vTS}
    v_and_b32 v18, 15, v1
    v_lshlrev_b32 v{vRdy}, 2, v18
    s_lshl_b32 s{t0}, s{sHP}, 4
    v_add_u32 v19, s{t0}, v18
    v_lshlrev_b32 v{vF1P}, {FSH}, v19
    s_add_u32 s{t0}, s{t0}, s{sRB}
    s_lshl2_add_u32 s{t0+1}, s{t0}, s{sH}
    s_add_u32 s{t0+1}, s{t0+1}, {F4}
    s_lshl_b32 s{t0+1}, s{t0+1}, 2
    v_mov_b32 v{vF4}, s{t0+1}
    s_lshl2_add_u32 s{t0+1}, s{sHP}, s{sH}
    s_lshl4_add_u32 s{t0+1}, s{t0+1}, {F4}
    v_add_lshl_u32 v{vF4P}, v18, s{t0+1}, 2
    s_lshl_b32 s{t0}, s{t0}, {FSH}
    v_mov_b32 v{vF1}, s{t0}
    v_and_b32 v18, 31, v1
    v_lshlrev_b32 v18, 5, v18
    v_lshrrev_b32 v19, 5, v1
    v_lshl_add_u32 v19, v19, 2, v18
    s_lshl_b32 s{t0}, s{sH}, 3
    s_add_u32 s{t0}, s{t0}, {GP}
    v_add_u32 v{vGPw}, s{t0}, v19
    v_add_u32 v{vGPr}, {GP}, v18
    s_lshr_b32 s{t0}, s2, 3
    s_lshl_b32 s{t0}, s{t0}, 2
    s_add_u32 s{t0}, s{t0}, s{sH}
    s_lshl_b32 s{t0}, s{t0}, 12
    s_lshr_b32 s{t0+1}, s{sHP}, 3
    s_lshl_b32 s{t0+1}, s{t0+1}, 9
    s_add_u32 s{t0}, s{t0}, s{t0+1}
    v_bfe_u32 v18, v1, 2, 2
    v_lshl_add_u32 v18, v18, 10, s{t0}
    v_and_b32 v19, 3, v1
    v_lshl_add_u32 v{vWoP}, v19, 7, v18
    """.split("\n") + [f"v_mov_b32 v{vA+j}, 0" for j in range(16)]
    if OPT["gath"]:
        ADDR += f"""
        s_lshl_b32 s{t0}, s{sH}, 19
        s_lshl_b32 s{t0+1}, s{sCH}, 1
        s_add_u32 s{t0}, s{t0}, s{t0+1}
        s_add_u32 s{t0}, s{t0}, 4096
        v_lshl_add_u32 v{vUL}, v1, 13, s{t0}
        s_lshl_b32 s{t0}, s{sH}, 10
        s_sub_u32 s{t0}, {UR+4080}, s{t0}
        v_lshlrev_b32 v18, 4, v1
        v_sub_u32 v{vUW}, s{t0}, v18
        s_mov_b32 s94, 0x05040100
        s_mov_b32 s95, 0x07060302
        """.split("\n")
    ADDR = [x.strip() for x in ADDR if x.strip()]
    def GATEF():
        E("s_waitcnt lgkmcnt(0)")
        for j in range(4):
            E(f"v_dot2_f32_bf16 v{vG}, v{vXF+j}, v{vGW+j}, v{vG}")
        E(f"s_nop 2\nds_write_b32 v{vGPw}, v{vG}")
    def SIG():
        E(f"""
        ds_read_b128 v[128:131], v{vGPr}
        ds_read_b128 v[132:135], v{vGPr} offset:16
        s_waitcnt lgkmcnt(0)
        v_add_f32 v128, v128, v129
        v_add_f32 v130, v130, v131
        v_add_f32 v132, v132, v133
        v_add_f32 v134, v134, v135
        v_add_f32 v128, v128, v130
        v_add_f32 v132, v132, v134
        v_add_f32 v128, v128, v132
        v_mul_f32 v128, {fbits(-log2e)}, v128
        v_exp_f32 v128, v128
        s_nop 0
        v_add_f32 v128, 1.0, v128
        v_rcp_f32 v{vg}, v128
        s_nop 0
        v_sub_f32 v{vomg}, 1.0, v{vg}
        """)
    vR = 64; vE0 = 64
    def KC1():
        lk = newlab("nk")
        E(f"s_cmp_eq_u32 s{sMH}, 0\ns_cbranch_scc0 {lk}")
        if psync: lds_wait(vCP, 2, 1)
        for j in range(4):
            E(f"ds_read_b128 {vr(vR+4*j,4)}, v{vWA} offset:{1024*j}")
        E(f"""
        s_mul_i32 s{t0}, s{sC}, {2*KGS}
        s_add_u32 s{t0}, s{t0}, {KG}
        v_lshl_add_u32 v2, v1, 4, s{t0}
        v_lshrrev_b32 v3, 1, v1
        v_mul_u32_u24 v3, {KCP}, v3
        v_and_b32 v10, 1, v1
        v_lshlrev_b32 v11, 4, v10
        v_add3_u32 v3, v3, v11, s{t0}
        v_cmp_eq_u32 {sr(t0+2,2)}, 1, v10
        s_mov_b64 exec, 1
        v_add_f32 v{vD}, s{sDs}, v{vD}
        s_waitcnt lgkmcnt(0)
        s_mov_b64 exec, 0xff
        ds_write_b128 v3, v[12:15]
        s_mov_b64 exec, -1
        """)
        for j in range(15):
            E(f"v_add_f32 v{vD+j}, v{vD+j}, v{vR+j}")
        E(f"""
        v_cndmask_b32 v10, v{vD+11}, v{vD+12}, {sr(t0+2,2)}
        v_cndmask_b32 v11, v{vD+13}, v{vD+14}, {sr(t0+2,2)}
        """)
        D = lambda j: vD + j
        pats = [[(D(0), D(1)), (D(2), D(3)), (D(4), D(5)), (D(6), D(7))],
                [(D(8), D(8)), (D(8), D(9)), (D(9), D(9)), (D(10), D(10))],
                [(D(11), D(11)), (D(11), D(11)), (10, D(12)), (D(12), D(12))],
                [(D(13), D(13)), (D(13), D(13)), (11, D(14)), (D(14), D(14))]]
        for u in range(4):
            for j, (a, b) in enumerate(pats[u]):
                E(f"v_cvt_pk_bf16_f32 v{vE0+8*u+j}, v{a}, v{b}")
            E(f"ds_write_b128 v2, {vr(vE0+8*u,4)} offset:{32+1024*u}")
        for u in range(4):
            E(f"ds_read_b64 {vr(vE0+8*u+4,2)}, v2 offset:{48+1024*u}")
        E(f"{lk}:")
    def KC2():
        lk = newlab("nk")
        E(f"s_cmp_eq_u32 s{sMH}, 0\ns_cbranch_scc0 {lk}\ns_waitcnt lgkmcnt(0)")
        for u in range(4):
            b = vE0 + 8 * u; o = 96 + 12 * (u & 1)
            for j in range(4):
                E(f"v_alignbit_b32 v{o+j}, v{b+j+1}, v{b+j}, 16")
            E(f"ds_write_b128 v2, {vr(o,4)} offset:{32+1024*u+KCP}")
            for j in range(4):
                E(f"v_mov_b32 v{o+4+j}, v{b+j+1}")
            E(f"ds_write_b128 v2, {vr(o+4,4)} offset:{32+1024*u+2*KCP}")
            for j in range(4):
                E(f"v_alignbit_b32 v{o+8+j}, v{b+j+2}, v{b+j+1}, 16")
            E(f"ds_write_b128 v2, {vr(o+8,4)} offset:{32+1024*u+3*KCP}")
            if u == 0:
                E(f"""
                v_lshlrev_b32 v10, 16, v{b}
                s_mov_b64 exec, 1
                ds_write_b32 v2, v10 offset:{28+KCP}
                ds_write_b32 v2, v{b} offset:{28+2*KCP}
                ds_write_b32 v2, v10 offset:{24+3*KCP}
                ds_write_b32 v2, v{o} offset:{28+3*KCP}
                s_mov_b64 exec, -1
                """)
        E(f"{lk}:")
    def gate_glue(i):
        E(f"s_waitcnt vmcnt({NCL}) lgkmcnt(0)" if i == 0 else "s_waitcnt vmcnt(0) lgkmcnt(0)" if i == 7 else "s_waitcnt lgkmcnt(0)")
        if OPT.get("hst"): stamp("h")
        E("s_barrier")
        if i == 0 and OPT["clm"] == 3: claim_kv()
        if i == 0:
            lq = newlab("nr")
            E(f"""
            s_cmp_eq_u32 s{sLead}, 7
            s_cbranch_scc0 {lq}
            s_lshl_b32 s{sSPIN}, s2, 5
            v_add_u32 v10, s{sSPIN}, v1
            v_lshlrev_b32 v10, {FSH}, v10
            s_lshl_b32 s{sSPIN}, s2, 9
            s_add_u32 s{sSPIN}, s{sSPIN}, {4*F3}
            v_lshl_add_u32 v11, v1, 3, s{sSPIN}
            global_store_dwordx2 v11, v[12:13], {sr(pFL,2)} sc1
            s_bfm_b64 exec, 32, 0
            global_store_dword v10, v12, {sr(pFL,2)} sc1
            s_mov_b64 exec, -1
            {lq}:
            """)
        if i == OPT["rdyw"]:
            lq = newlab("nr")
            E(f"""
            s_cmp_eq_u32 s{sLead}, 7
            s_cbranch_scc0 {lq}
            s_lshl_b32 s{sSPIN}, s2, 2
            v_mov_b32 v10, s{sSPIN}
            v_mov_b32 v11, 1
            s_waitcnt vmcnt(0)
            """)
            put_flag(10, 11, pDbg)
            E(f"{lq}:")
        if i >= 1:
            for j in range(4):
                E(f"v_dot2_f32_bf16 v{vG}, v{vXF+j}, v{vGW+j}, v{vG}")
        slot = i % NS
        E(f"ds_read_b128 {vr(vXF,4)}, v{vGA0} offset:{slot*SLOT}")
        E(f"ds_read_b128 {vr(vGW,4)}, v{vGWA} offset:{128*i}")
        if not OPT["gath"]: E(f"""
        s_cmp_eq_u32 s{sUW}, {i}
        s_cbranch_scc0 L_ut{i}
        ds_read_b64_tr_b16 {vr(vU,2)}, v{vTA}
        ds_read_b64_tr_b16 {vr(vU+2,2)}, v{vTA+3}
        ds_read_b64_tr_b16 {vr(vU+4,2)}, v{vTA+1}
        ds_read_b64_tr_b16 {vr(vU+6,2)}, v{vTA+2}
        L_ut{i}:
        """)
    E(ADDR)
    tot = sum(c for c, _ in K); nw = OPT["kw"]
    pre = tot * OPT["kpre"] / 100
    segs = [[] for _ in range(9)]; acc = 0
    for c, x in K:
        segs[0 if acc < pre else 1 + min(nw - 1, int((acc - pre) * nw / (tot - pre)))].append(x); acc += c
    items = [D1, D2, D3, KC1, KC2]
    def place(w):
        for it, p in zip(items, PL):
            if p == w: it()
    E(segs[0])
    for i in range(8):
        gate_glue(i)
        if i == OPT["wqpf"]:
            E(f"s_mov_b64 exec, 0xffff\nglobal_load_dword v167, v{vWqP}, {sr(pW,2)}\ns_mov_b64 exec, -1")
        E(segs[i + 1])
    stamp("h")
    GATEF()
    uts = f"""
    global_store_dwordx4 v{vTS}, {vr(vU,4)}, {sr(pWs,2)} sc1
    global_store_dwordx4 v{vTS+1}, {vr(vU+4,4)}, {sr(pWs,2)} sc1
    """
    E(f"global_load_dword v{vTm}, v{vRdy}, {sr(pDbg,2)} sc1")
    place(0)
    E(f"s_setprio {OPT['prioq']}\ns_waitcnt lgkmcnt(0)\ns_barrier")
    stamp("h")
    if not OPT["gath"] and not OPT["utl"]: E(uts)
    SIG()
    place(1)
    E("s_barrier")
    place(2)
    assert OPT["ackn"] > 16 - OPT["lq"]
    E(f"s_setprio {OPT['prio']}\ns_waitcnt vmcnt(0)\ns_barrier")
    stamp("h")
    lq = newlab("nf"); lr = newlab("rdy")
    E(f"""
    s_cmp_lg_u32 s{sH}, 1
    s_cbranch_scc1 {lq}
    v_cmp_ne_u32 vcc, 0, v{vTm}
    s_nop 1
    s_cmp_eq_u64 vcc, -1
    s_cbranch_scc1 {lr}
    """)
    poll_global(vRdy, pDbg, vTm)
    E(f"{lr}:")
    put_flag(vF1, vOne)
    E(f"{lq}:")
    place(3)
    E("s_barrier")
    place(4)
    lq = newlab("nf")
    E(f"s_cmp_lg_u32 s{sH}, 1\ns_cbranch_scc1 {lq}")
    poll_global(vF1P, pFL, vTm)
    E(f"{lq}:")
    E("s_setprio 0\ns_barrier")
    stamp("h")
    late = OPT["utl"] and not OPT["gath"]
    if PL[0] == 5: D1()
    if late: E(uts)
    E(f"s_setprio {OPT['prio']}")
    if PL[1] == 5: D2()
    if PL[2] == 5: D3()
    if late:
        E("s_waitcnt vmcnt(0)")
        put_flag(vF4, vOne)
    if PL[3] == 5: KC1()
    if PL[4] == 5: KC2()
    if late:
        lds_arrive(vCA, vOne)
        lds_wait(vCA, vTm, 4)
        E("s_waitcnt vmcnt(0)")
        poll_global(vF4P, pFL, vTm)
    if OPT["gath"]:
        for j in range(8):
            E(f"global_load_dword v{vU+j}, v{vUL}, {sr(pX,2)} offset:{1024*j-4096}\ns_waitcnt vmcnt({OPT['gd'] if j < 7 else 0})")
        E(f"s_setprio {OPT['prio']}")
        for j in range(4):
            E(f"v_perm_b32 v{12+j}, v{vU+6-2*j}, v{vU+7-2*j}, s94")
            E(f"v_perm_b32 v{16+j}, v{vU+6-2*j}, v{vU+7-2*j}, s95")
        E(f"ds_write_b128 v{vUW}, v[12:15]\nds_write_b128 v{vUW}, v[16:19] offset:{URS}")
    else: E(f"""
    global_load_dwordx4 v[12:15], v{vUL}, {sr(pWs,2)} sc1
    global_load_dwordx4 v[16:19], v{vUL}, {sr(pWs,2)} offset:2048 sc1
    s_waitcnt vmcnt(0)
    s_setprio {OPT['prio']}
    ds_write_b128 v{vUW}, v[12:15] offset:512
    ds_write_b128 v{vUW}, v[16:19]
    """)
    lds_arrive(vCA, vOne)
    lds_wait(vCA, vTm, 8 if late else 4)
    stamp("h")
    vY = 64
    vF = [96, 192]
    def creads(r):
        f = vF[r & 1]; o = []
        for gmm in range(8):
            o.append(f"ds_read_b64 {vr(f+4*gmm,2)}, v{vAA} offset:{512*gmm+64*r}")
            o.append(f"ds_read_b64 {vr(f+4*gmm+2,2)}, v{vAA} offset:{512*gmm+64*r+8}")
            o.append(f"ds_read_b128 {vr(f+32+4*gmm,4)}, v{vBA} offset:{3584-512*gmm+64*r}")
        return o
    E(creads(0))
    E(f"s_setprio {OPT.get('prio3', OPT['prio'])}")
    for r in range(4):
        f = vF[r & 1]
        nxt = creads(r + 1) if r < 3 else []
        if r == 2 and OPT["wopf"]:
            E(f"s_mov_b64 exec, 0xffff\nglobal_load_dword v20, v{vWoP}, {sr(pWo,2)}\ns_mov_b64 exec, -1")
        E("s_waitcnt lgkmcnt(0)")
        seen = set()
        for gmm in range(8):
            for dl in range(8 - gmm):
                tau = gmm + dl
                c = "0" if (r == 0 and tau not in seen) else vr(vY + 4 * tau, 4)
                seen.add(tau)
                if not OPT.get("noconv"): E(f"v_mfma_f32_16x16x32_bf16 {vr(vY+4*tau,4)}, {vr(f+4*gmm,4)}, {vr(f+32+4*dl,4)}, {c}")
                if nxt: E(nxt.pop(0))
    E(f"s_setprio {OPT['prio']}")
    l1 = newlab("c1"); l2 = newlab("c2")
    E(f"s_nop 5\ns_cmp_eq_u32 s{sMH}, 0\ns_cbranch_scc0 {l1}")
    def conv_fin(send, keep):
        for j in range(4):
            E(f"ds_write_b128 v{vCW}, {vr(send+4*j,4)} offset:{1024*j}")
        lds_arrive(vCP, vOne)
        lds_wait(vCP, vTm, 2 + psync)
        for j in range(4):
            E(f"ds_read_b128 {vr(96+4*j,4)}, v{vCR} offset:{1024*j}")
        E("s_waitcnt lgkmcnt(0)")
        for j in range(16):
            E(f"v_add_f32 v{96+j}, v{keep+j}, v{96+j}")
    conv_fin(vY + 16, vY)
    E(f"s_branch {l2}\n{l1}:")
    conv_fin(vY, vY + 16)
    E(f"{l2}:")
    for j in range(4):
        E(f"v_cvt_pk_bf16_f32 v{112+2*j}, v{96+4*j}, v{97+4*j}\nv_cvt_pk_bf16_f32 v{113+2*j}, v{98+4*j}, v{99+4*j}")
        E(f"global_store_dwordx2 v{vAT}, {vr(112+2*j,2)}, {sr(sAT,2)} sc1")
        if j < 3: E(f"s_add_u32 s{sAT}, s{sAT}, {8*32768}\ns_addc_u32 s{sAT+1}, s{sAT+1}, 0")
    E("s_waitcnt vmcnt(0)")
    put_flag(vF3, vOne)
    stamp("h")
    vWo = 128
    sO = t0 + 2
    WD = OPT["wod"]
    for hd in range(0 if OPT.get("nowo") else 32 + WD):
        if hd < 32:
            if hd % 4 == 0: E(f"s_add_u32 m0, s{sWst}, {(hd%WSL)*1024}")
            E(f"s_mov_b32 s{sO}, {hd*16384-(hd%4)*1024}")
            E(f"buffer_load_dwordx4 v{vWoG}, {sr(SRDW,4)}, s{sO} offen offset:{(hd%4)*1024} lds")
        r = hd - WD
        if r >= 0:
            E(f"s_waitcnt vmcnt({min(WD, 31-r)}) lgkmcnt(8)")
            E(f"ds_read_b64_tr_b16 {vr(vWo+4*r,2)}, v{vWoL} offset:{1024*(r%WSL)}")
            E(f"ds_read_b64_tr_b16 {vr(vWo+4*r+2,2)}, v{vWoL} offset:{1024*(r%WSL)+512}")
    E("s_waitcnt lgkmcnt(0)")
    stamp("h")
    if OPT["clo"] & 1:
        E(f"s_bfm_b64 exec, 32, 0\nglobal_store_dword v{vClO}, v{vOne}, {sr(pWs,2)} sc1\ns_mov_b64 exec, -1")
    if OPT["clo"] & 2:
        E(f"s_bfm_b64 exec, 32, 0\nglobal_store_dword v{vOut}, v{vOne}, {sr(pOut,2)} sc1\ns_mov_b64 exec, -1")
    poll_global(vF3P, pFL, vTm)
    for r in range(16):
        E(f"global_load_short_d16_hi v{vA+r}, v{vAL}, {sr(pWs,2)} offset:{(8*(r>>2)+(r&3))*64} sc1")
    E("s_waitcnt vmcnt(0)")
    stamp("h")
    E("s_barrier")
    for r in range(16):
        E(f"v_mul_f32 v{vA+r}, v{vg}, v{vA+r}")
    E("s_barrier")
    stamp("h")
    vB = 64
    def ord_(hd): return f"ds_read_b128 {vr(vB+4*(hd%8),4)}, v{vOL} offset:{1024*hd}"
    E("s_barrier")
    stamp("h")
    for j in range(8): E(ord_(j))
    for hd in range(32):
        out = min(hd + 4, 31) - hd if hd >= 4 else 7 - hd
        E(f"s_waitcnt lgkmcnt({out if hd < 4 else min(3, 31-hd)})")
        E(f"v_mfma_f32_32x32x16_bf16 {vr(vAcc,16)}, {vr(vWo+4*hd,4)}, {vr(vB+4*(hd%8),4)}, {'0' if hd == 0 else vr(vAcc,16)}")
        nx = hd + 4
        if 8 <= nx < 32:
            if nx % 8 == 0: E("s_barrier")
            E(ord_(nx))
    E("s_nop 11")
    for r in range(16):
        E(f"v_fma_f32 v{vAcc+r}, v{vAcc+r}, v{vomg}, v{vA+r}")
    for j in range(8):
        E(f"v_cvt_pk_bf16_f32 v{vB+j}, v{vAcc+2*j}, v{vAcc+2*j+1}")
    E("s_nop 1")
    for a in (0, 1, 4, 5):
        E(f"v_permlane32_swap_b32 v{vB+a}, v{vB+2+a}")
    fl = ["", "sc1", "nt", "sc0 sc1"][OPT["outsc"]]
    E(f"global_store_dwordx4 v{vOut}, {vr(vB,4)}, {sr(pOut,2)} {fl}\nglobal_store_dwordx4 v{vOut}, {vr(vB+4,4)}, {sr(pOut,2)} offset:32 {fl}")
    if STAMP:
        E("s_waitcnt vmcnt(0)")
    stamp("h")
    stamp_flush("h"); spin_end("h")
    E("s_endpgm")

hdr = open(f"cdna_kernels/{NAME}.s.ref").read().split("; Override launch")[0]
prologue(); main_wave()
if OPT["lay"]: helper_wave()
E("L_end:\ns_endpgm")
out = hdr + f"""; @launch grid=(256,1,1) block=(512,1,1) lds={LDS_BYTES}
.amdgcn_target "amdgcn-amd-amdhsa--gfx950"
.text
.globl {NAME}_kernel
.p2align 8
.type {NAME}_kernel,@function
{NAME}_kernel:
""" + "\n".join(L) + f"""
.section .rodata,"a"
.p2align 6
.amdhsa_kernel {NAME}_kernel
  .amdhsa_next_free_vgpr 256
  .amdhsa_next_free_sgpr 102
  .amdhsa_accum_offset 256
  .amdhsa_group_segment_fixed_size 0
  .amdhsa_kernarg_size 128
  .amdhsa_user_sgpr_count 2
  .amdhsa_user_sgpr_kernarg_segment_ptr 1
  .amdhsa_system_sgpr_workgroup_id_x 1
.end_amdhsa_kernel
"""
open(sys.argv[1], "w").write(out)
```

```python
import sys, math, struct

NAME = "gated_mix__ssm_conv_s4__mha_block__prompt"
OPT = dict(stamp=0, rot=3, fs=128, spin=200000, prio=2, outsc=0, prio3=0, pf=1, tlb=1, ksplit=90, pk0=0, wod=4, wopf=1, lay=2, prioq=0, eb=2, lq=7, epc=10, ackn=26, ute=0, kcp=1, gath=0, gd=0, d1=3, d1w=4, pl=55555, utl=1, kpre=5, kw=7, clm=0, clo=0, rdyw=2, xm=0, wqpf=2, sigl=1)
for a in sys.argv[2:]:
    k, v = a.split("=")
    OPT[k] = int(v)
STAMP = OPT["stamp"]
FS = OPT["fs"]
FSH = int(math.log2(FS))

L = []
def E(s):
    if isinstance(s, list): s = "\n".join(s)
    for x in s.split("\n"):
        x = x.strip()
        if x:
            L.append(("" if x.endswith(":") else "    ") + x)
def fbits(x): return "0x%08x" % struct.unpack("<I", struct.pack("<f", x))[0]
def vr(a, n): return f"v[{a}:{a+n-1}]"
def sr(a, n): return f"s[{a}:{a+n-1}]"

WS_KV = 0
WS_OF = 4 << 20
WS_AT = 6 << 20
WS_FL = 8 << 20
WS_UT = 10 << 20
WS_ST = 16 << 20
F1, F2 = 0, 256
F3 = 512 * FS // 4
F4 = F3 + 1024
KG = 0; KGS = 8704
KCP = 4160
UR = KG + 4 * KGS; URS = 4576
GP = UR + 2 * URS
GW = GP + 1024
CNT = GW + 2048
RING = CNT + 64
SLOT = 24576; WPART = 6144; NS = 3
WQ = RING + NS * SLOT
LDS_BYTES = WQ + 32768
EXCH = RING; RED = WQ; REDS = 4608
CRED = RING; WST = RING + 16384; WSL = 12; OFL = RING
assert RING % 256 == 0 and WST + 4 * WSL * 1024 <= WQ and LDS_BYTES <= 163840
sW, sHP, sRB, sCH, sROT = 3, 4, 5, 6, 7
SRDX, SRDW = 8, 12
pX, pAre, pAim, pBre, pBim, pCre, pCim, pLdt = 16, 18, 20, 22, 24, 26, 28, 30
pDsk, pW, pWo, pGw, pOut, pDbg, pWs = 32, 36, 38, 40, 42, 44, 46
pFL = 34
sT = 48
sSPIN = 62
sST = 64

nstamp = {"m": 0, "h": 0}
SPM, SPH = OPT.get("spm", -1), OPT.get("sph", -1)
def spin_end(role):
    if (SPM if role == "m" else SPH) < 0: return
    l = newlab("sp")
    E(f"{l}:\ns_memrealtime s[98:99]\ns_waitcnt lgkmcnt(0)\ns_sub_u32 s98, s98, s96\ns_cmp_lt_i32 s98, 4000\ns_cbranch_scc1 {l}")
def stamp(role):
    if SPM >= 0 or SPH >= 0:
        i = nstamp[role]; nstamp[role] += 1
        if i == (SPM if role == "m" else SPH): E("s_memrealtime s[96:97]\ns_waitcnt lgkmcnt(0)")
        return
    if not STAMP or nstamp[role] >= 14: return
    i = nstamp[role]; nstamp[role] += 1
    E(f"s_memrealtime {sr(sST+2*i,2)}\ns_waitcnt lgkmcnt(0)")
def stamp_flush(role):
    if not STAMP: return
    E(f"s_lshl_b32 s{sT}, s2, 3\ns_add_u32 s{sT}, s{sT}, s{sW}\ns_lshl_b32 s{sT}, s{sT}, 6\ns_add_u32 s{sT}, s{sT}, {WS_ST}\nv_mov_b32 v2, s{sT}")
    for i in range(nstamp[role]):
        E(f"v_mov_b32 v3, s{sST+2*i}\nglobal_store_dword v2, v3, {sr(pWs,2)} offset:{4*i}")
    E(f"s_getreg_b32 s{sT}, hwreg(HW_REG_XCC_ID)\nv_mov_b32 v3, s{sT}\nglobal_store_dword v2, v3, {sr(pWs,2)} offset:60")

lab = [0]
def newlab(p):
    lab[0] += 1
    return f"L_{p}_{lab[0]}"

def poll_global(vaddr, base, vtmp):
    l = newlab("poll"); d = newlab("polld")
    E(f"""
    s_mov_b32 s{sSPIN}, {OPT['spin']}
    {l}:
    global_load_dword v{vtmp}, v{vaddr}, {sr(base,2)} sc1
    s_sub_u32 s{sSPIN}, s{sSPIN}, 1
    s_cbranch_scc1 {d}
    s_waitcnt vmcnt(0)
    v_cmp_ne_u32 vcc, 0, v{vtmp}
    s_nop 1
    s_cmp_eq_u64 vcc, -1
    s_cbranch_scc0 {l}
    {d}:
    s_waitcnt vmcnt(0)
    """)
def put_flag(vaddr, vone, base=None):
    E(f"""
    s_mov_b64 exec, 1
    global_store_dword v{vaddr}, v{vone}, {sr(pFL if base is None else base,2)} sc1
    s_mov_b64 exec, -1
    """)
def lds_arrive(vaddr, vone):
    E(f"""
    s_mov_b64 exec, 1
    ds_add_u32 v{vaddr}, v{vone}
    s_mov_b64 exec, -1
    """)
def lds_wait(vaddr, vtmp, n):
    l = newlab("lw"); d = newlab("lwd")
    E(f"""
    s_mov_b32 s{sSPIN}, {OPT['spin']*8}
    {l}:
    ds_read_b32 v{vtmp}, v{vaddr}
    s_sub_u32 s{sSPIN}, s{sSPIN}, 1
    s_cbranch_scc1 {d}
    s_waitcnt lgkmcnt(0)
    v_readfirstlane_b32 s{sSPIN+1}, v{vtmp}
    s_nop 1
    s_cmp_ge_u32 s{sSPIN+1}, {n}
    s_cbranch_scc0 {l}
    {d}:
    s_waitcnt lgkmcnt(0)
    """)

def helper_entry():
    sH, sC, sMH, sD, sLd, sDs, t0 = sT, sT + 1, sT + 2, sT + 5, sT + 6, sT + 7, sT + 8
    E(f"L_h0:\ns_setprio {OPT['prio']}\ns_sub_u32 s{sH}, s{sW}, 4")
    if OPT["pf"]:
        E(f"""
        s_getpc_b64 s[8:9]
        L_pc:
        s_andn2_b32 s10, s2, 7
        s_lshl1_add_u32 s10, s{sH}, s10
        v_and_b32 v2, 1, v1
        v_add_lshl_u32 v2, v2, s10, 7
        v_min_u32 v2, L_end-L_pc, v2
        v_mov_b32 v3, 0
        v_lshl_add_u64 v[2:3], v[2:3], 0, s[8:9]
        global_load_dword v167, v[2:3], off
        """)
    if OPT["gath"]:
        E(f"s_and_b32 s{sCH}, s2, 7\ns_lshl_b32 s{sCH}, s{sCH}, 5\ns_lshr_b32 s{t0}, s2, 3\ns_or_b32 s{sCH}, s{sCH}, s{t0}")
    else:
        E(f"s_lshl4_add_u32 s{sCH}, s{sHP}, s{sRB}")
    E(f"""
    s_lshl2_add_u32 s{t0}, s{sCH}, s{sH}
    s_lshl_b32 s{t0}, s{t0}, 7
    v_lshl_add_u32 v2, v1, 1, s{t0}
    s_lshl_b32 s{t0+1}, s{sCH}, 2
    s_and_b32 s{sMH}, s{sH}, 1
    s_lshl_b32 s{t0}, s{sMH}, 10
    s_add_u32 m0, s{t0}, {GW}
    v_lshlrev_b32 v3, 4, v1
    s_waitcnt lgkmcnt(0)
    """)
    for j, p in enumerate((pAre, pAim, pBre, pBim, pCre, pCim)):
        E(f"global_load_ushort v{4+j}, v2, {sr(p,2)}")
    E(f"""
    global_load_lds_dwordx4 v3, {sr(pGw,2)}
    {"s_barrier" if OPT["eb"] else ""}
    s_load_dword s{sLd}, {sr(pLdt,2)}, s{t0+1}
    s_load_dword s{sDs}, {sr(pDsk,2)}, s{t0+1}
    s_lshl_b32 s{sCH}, s{sCH}, 1
    """)

def prologue():
    if STAMP:
        E(f"s_memrealtime {sr(sST,2)}"); nstamp["m"] = nstamp["h"] = 1
    E(f"""
    s_cmpk_ge_u32 s2, 0x100
    s_cbranch_scc1 L_end
    s_load_dwordx16 s[16:31], s[0:1], 0
    s_load_dwordx16 s[32:47], s[0:1], 64
    """)
    if OPT.get("rndws"): E(f"""
    s_memrealtime s[98:99]
    s_waitcnt lgkmcnt(0)
    s_lshr_b32 s98, s98, 15
    s_mul_i32 s98, s98, 0x9e3779b1
    s_lshr_b32 s98, s98, 28
    s_mul_i32 s98, s98, {OPT["rndws"]-1}
    s_lshl_b32 s98, s98, 24
    s_add_u32 s{pWs}, s{pWs}, s98
    s_addc_u32 s{pWs+1}, s{pWs+1}, 0
    """)
    E(f"""
    v_lshrrev_b32 v2, 6, v0
    v_and_b32 v1, 63, v0
    v_readfirstlane_b32 s{sW}, v2
    """)
    if OPT.get("probe"):
        po = OPT["probe"] - 1
        fl = ["sc1", "sc1 nt", "", "sc0 sc1"][OPT.get("pfl", 0)]
        E(f"""
        s_waitcnt lgkmcnt(0)
        s_lshl_b32 s98, s2, 14
        s_add_u32 s98, s98, {po << 20}
        v_lshl_add_u32 v3, v0, 4, s98
        v_add_u32 v4, 0x2000, v3
        s_memrealtime s[96:97]
        s_waitcnt lgkmcnt(0)
        """)
        if OPT.get("prd"):
            E(f"global_load_dwordx4 v[8:11], v3, {sr(pX if OPT['prd'] == 2 else pWs,2)}")
            if OPT["prd"] == 1: E(f"global_load_dwordx4 v[12:15], v4, {sr(pWs,2)}")
        else:
            E(f"global_store_dwordx4 v3, v[8:11], {sr(pWs,2)} {fl}\nglobal_store_dwordx4 v4, v[8:11], {sr(pWs,2)} {fl}")
        E(f"""
        s_waitcnt vmcnt(0)
        s_memrealtime s[98:99]
        s_waitcnt lgkmcnt(0)
        s_sub_u32 s98, s98, s96
        s_mul_i32 s98, s98, 10
        s_add_u32 s96, s96, s98
        s_barrier
        """)
    if OPT["xm"] == 0: E(f"""
    s_bfe_u32 s{sHP}, s2, 0x30003
    s_and_b32 s{sT}, s2, 1
    s_lshl3_add_u32 s{sHP}, s{sT}, s{sHP}
    s_lshr_b32 s{sRB}, s2, 6
    s_and_b32 s{sT}, s2, 6
    s_lshl1_add_u32 s{sRB}, s{sT}, s{sRB}
    """)
    elif OPT["xm"] == 1: E(f"""
    s_bfe_u32 s{sHP}, s2, 0x10003
    s_and_b32 s{sT}, s2, 7
    s_lshl1_add_u32 s{sHP}, s{sT}, s{sHP}
    s_lshr_b32 s{sRB}, s2, 4
    """)
    else: E(f"""
    s_bfe_u32 s{sHP}, s2, 0x20003
    s_and_b32 s{sT}, s2, 3
    s_lshl2_add_u32 s{sHP}, s{sT}, s{sHP}
    s_lshr_b32 s{sRB}, s2, 5
    s_and_b32 s{sT}, s2, 4
    s_lshl1_add_u32 s{sRB}, s{sT}, s{sRB}
    """)
    if OPT["rot"] == 0:
        E(f"s_mov_b32 s{sROT}, 0")
    elif OPT["rot"] == 1:
        E(f"s_xor_b32 s{sROT}, s{sHP}, s{sRB}\ns_and_b32 s{sROT}, s{sROT}, 1\ns_lshl_b32 s{sROT}, s{sROT}, 2")
    elif OPT["rot"] == 2:
        E(f"s_lshl1_add_u32 s{sROT}, s{sRB}, s{sHP}\ns_and_b32 s{sROT}, s{sROT}, 7")
    elif OPT["rot"] == 3:
        E(f"s_lshl1_add_u32 s{sROT}, s{sRB}, s{sHP}\ns_and_b32 s{sROT}, s{sROT}, 6")
    elif OPT["rot"] == 4:
        E(f"s_lshl2_add_u32 s{sROT}, s{sHP}, s{sRB}\ns_and_b32 s{sROT}, s{sROT}, 7")
    else:
        E(f"s_add_u32 s{sROT}, s{sHP}, s{sRB}\ns_lshl_b32 s{sROT}, s{sROT}, 1\ns_and_b32 s{sROT}, s{sROT}, 6")
    if OPT["lay"] == 2:
        E(f"s_cmp_lt_u32 s{sW}, 4\ns_cbranch_scc1 L_m0")
        helper_entry()
        E("s_branch L_helper\nL_m0:")
    else:
        E(f"s_cmp_ge_u32 s{sW}, 4\ns_cbranch_scc1 L_h0")

def main_wave():
    vXD, vWD, vXA, vWA, vQA = 4, 8, 10, 14, 16
    vFB = 24
    aK, aV, aQ = 48, 64, 80
    vP = 96
    vXF = 128
    sXO, sWO, sM0, sX, sZ, sQS = 92, 93, 94, 95, 100, 101
    sKVb, sKV, sJ, sCnt, sMask = sT + 2, sT + 4, sT + 6, sT + 7, sT + 8
    ta, tb, tc = sT + 10, sT + 11, sT + 12
    vO, vKV = 128, 192
    (vIDX, vKA, vVA, vSA, vSB, vSV, vEW, vER0, vER1, vERV, vRW, vRWl, vRR, vRRl, vOA, vOB) = range(112, 128)
    vF2, vOne, vF2P, vOD, vOnes, vZer = range(17, 23)
    vQ = 96; SA, SB = 24, 40; vT = 56
    E(f"""
    s_lshl2_add_u32 s{sT}, s{sRB}, s{sW}
    s_lshl_b32 s{sT}, s{sT}, 15
    v_lshrrev_b32 v2, 3, v1
    v_lshl_add_u32 v2, v2, 10, s{sT}
    v_lshrrev_b32 v3, 4, v1
    v_xor_b32 v3, v3, v1
    v_and_b32 v3, 7, v3
    v_lshl_add_u32 v{vXD}, v3, 4, v2
    v_xor_b32 v{vXD+1}, 64, v{vXD}
    s_movk_i32 s{sT}, 7168
    v_add_u32 v{vXD+1}, s{sT}, v{vXD+1}
    s_movk_i32 s{sT}, 14336
    v_add_u32 v{vXD+2}, s{sT}, v{vXD}
    v_add_u32 v{vXD+3}, s{sT}, v{vXD+1}
    v_lshrrev_b32 v2, 2, v0
    v_mul_u32_u24 v2, 3072, v2
    v_and_b32 v3, 3, v1
    s_lshl2_add_u32 s{sT}, s{sHP}, 64
    v_add_u32 v3, s{sT}, v3
    v_lshl_add_u32 v{vWD}, v3, 4, v2
    s_mul_i32 s{sM0}, s{sW}, {WPART}
    s_mov_b32 s{SRDX+2}, 0x200000
    s_mov_b32 s{SRDX+3}, 0x00020000
    s_mov_b64 {sr(SRDW+2,2)}, {sr(SRDX+2,2)}
    """)
    def dma(i, first=False):
        slot = i % NS
        g = []
        for seg in range(2):
            g.append([f"buffer_load_dwordx4 v{vWD}, {sr(SRDW,4)}, s{sWO} offen offset:{seg*1024} lds"])
        for j in range(4):
            g.append([f"buffer_load_dwordx4 v{vXD+j}, {sr(SRDX,4)}, s{sXO} offen offset:{j*1024} lds"])
        st = sROT if i == 0 else sT
        pre = [] if i == 0 else [f"s_add_u32 s{sT}, s{sROT}, {i}", f"s_and_b32 s{sT}, s{sT}, 7"]
        pre += [f"s_add_u32 m0, s{sM0}, {RING+slot*SLOT+4096}", f"s_mul_i32 s{sWO}, s{st}, 196608"]
        if first:
            pre += ["s_waitcnt lgkmcnt(0)", f"s_mov_b64 {sr(SRDW,2)}, {sr(pW,2)}", f"s_mov_b64 {sr(SRDX,2)}, {sr(pX,2)}"]
        g[0] = pre + g[0]
        g[2] = [f"s_add_u32 m0, s{sM0}, {RING+slot*SLOT}", f"s_lshl_b32 s{sXO}, s{st}, 7"] + g[2]
        return g
    for gi, g in enumerate(dma(0, True)):
        if gi == 0 and OPT["eb"] == 2: g.insert(len(g) - 1, "s_barrier")
        E(g)
    if OPT["eb"] == 1: E("s_barrier")
    if OPT["lay"] == 0:
        for g in dma(1): E(g)
        E("s_branch L_m1")
        helper_entry(); helper_wave()
        E("L_m1:")
        stamp("m")
    elif OPT["lay"] == 2:
        stamp("m")
        held = dma(1)
        for g in held[:OPT["d1"]]: E(g)
        held = held[OPT["d1"]:]
    else:
        E("s_branch L_m1")
        helper_entry()
        E("s_branch L_helper\nL_m1:")
        stamp("m")
        for g in dma(1): E(g)
    if OPT["tlb"]:
        E(f"""
        s_mov_b32 s{ta}, {WS_FL + 0x100000}
        s_load_dword s18, {sr(pWs,2)}, s{ta}
        s_load_dword s19, {sr(pDbg,2)}, 128
        s_load_dword s20, {sr(pOut,2)}, 0
        s_load_dword s21, {sr(pWo,2)}, 0
        """)
    E(f"""
    s_add_u32 s{pFL}, s{pWs}, {WS_FL}
    s_addc_u32 s{pFL+1}, s{pWs+1}, 0
    s_add_u32 s{ta}, s{sM0}, {RING}
    v_and_b32 v2, 31, v1
    v_lshl_add_u32 v2, v2, 7, s{ta}
    v_bfe_u32 v3, v1, 1, 3
    v_lshrrev_b32 v{vXA+1}, 5, v1
    v_xor_b32 v3, v3, v{vXA+1}
    v_lshl_add_u32 v{vXA}, v3, 4, v2
    v_xor_b32 v{vXA+1}, 32, v{vXA}
    v_xor_b32 v{vXA+2}, 64, v{vXA}
    v_xor_b32 v{vXA+3}, 0x60, v{vXA}
    v_lshrrev_b32 v2, 5, v1
    v_lshlrev_b32 v2, 3, v2
    v_bfe_u32 v3, v1, 2, 2
    v_add_u32 v2, v2, v3
    v_lshlrev_b32 v2, 6, v2
    v_and_b32 v3, 3, v1
    v_lshl_add_u32 v2, v3, 3, v2
    v_bfe_u32 v3, v1, 4, 1
    v_lshl_add_u32 v2, v3, 5, v2
    v_add_u32 v{vWA}, {RING+4096}, v2
    v_add_u32 v{vWA+1}, {RING+4096+2*SLOT}, v2
    v_add_u32 v{vQA}, {WQ}, v2
    """)
    E(f"""
    s_and_b32 s{sX}, s{sW}, 1
    s_lshr_b32 s{sZ}, s{sW}, 1
    s_mov_b32 s{sQS}, {fbits(0.25 * math.log2(math.e))}
    s_lshl2_add_u32 s{ta}, s{sRB}, s{sW}
    s_lshl_b32 s{ta}, s{ta}, 11
    s_lshl_b32 s{tb}, s{sHP}, 18
    s_add_u32 s{ta}, s{ta}, s{tb}
    {f"s_load_dword s22, {sr(pWs,2)}, s{ta}" if OPT["tlb"] == 2 else ""}
    {f"s_add_u32 s{tb}, s{ta}, 0x20000" if OPT["tlb"] == 2 else ""}
    {f"s_load_dword s23, {sr(pWs,2)}, s{tb}" if OPT["tlb"] == 2 else ""}
    v_lshlrev_b32 v{vKA}, 4, v1
    v_add_u32 v{vSA}, s{ta}, v{vKA}
    v_add_u32 v{vSB}, 0x20000, v{vSA}
    v_and_b32 v{vVA}, 15, v1
    v_lshrrev_b32 v2, 5, v1
    v_lshl_add_u32 v{vVA}, v2, 4, v{vVA}
    v_lshlrev_b32 v{vVA}, 4, v{vVA}
    v_bfe_u32 v2, v1, 4, 1
    v_lshlrev_b32 v2, 17, v2
    v_add3_u32 v{vSV}, v2, v{vVA}, s{ta}
    s_add_u32 s{tb}, s{sM0}, {EXCH}
    v_add_u32 v{vEW}, s{tb}, v{vKA}
    s_lshl_b32 s{ta}, s{sX}, 10
    s_add_u32 s{ta}, s{ta}, {EXCH}
    s_mul_i32 s{tb}, s{sZ}, 12288
    s_add_u32 s{tc}, s{ta}, s{tb}
    v_add_u32 v{vER0}, s{tc}, v{vKA}
    s_sub_u32 s{tc}, s{ta}, s{tb}
    s_add_u32 s{tc}, s{tc}, 12288
    v_add_u32 v{vER1}, s{tc}, v{vKA}
    s_lshl_b32 s{ta}, s{sX}, 8
    s_add_u32 s{tc}, s{ta}, s{tb}
    s_add_u32 s{tc}, s{tc}, {EXCH}
    v_add_u32 v{vERV}, s{tc}, v{vKA}
    s_lshl1_add_u32 s{ta}, s{sHP}, s{sX}
    s_lshl_b32 s{tb}, s{ta}, 17
    s_lshl_b32 s{tc}, s{sZ}, 12
    s_add_u32 s{tb}, s{tb}, s{tc}
    s_add_u32 s{sKVb}, s{pWs}, s{tb}
    s_addc_u32 s{sKVb+1}, s{pWs+1}, 0
    s_lshl_b32 s{sJ}, s{sRB}, 13
    s_lshl1_add_u32 s{tb}, s{sRB}, s{sZ}
    s_lshl_b32 s{tb}, s{tb}, 6
    s_add_u32 s{tb}, s{tb}, s{ta}
    s_lshl_b32 s{tb}, s{tb}, 10
    s_add_u32 s{tb}, s{tb}, {WS_OF}
    v_add_u32 v{vOA}, s{tb}, v{vKA}
    v_add_u32 v{vOB}, 0x8000, v{vOA}
    s_mul_i32 s{ta}, s{sW}, {REDS}
    s_add_u32 s{ta}, s{ta}, {RED}
    v_add_u32 v{vRW}, s{ta}, v{vKA}
    v_lshl_add_u32 v{vRWl}, v1, 2, s{ta}
    s_xor_b32 s{ta}, s{sW}, 2
    s_mul_i32 s{ta}, s{ta}, {REDS}
    s_add_u32 s{ta}, s{ta}, {RED}
    v_add_u32 v{vRR}, s{ta}, v{vKA}
    v_lshl_add_u32 v{vRRl}, v1, 2, s{ta}
    s_lshl_b32 s{ta}, s{sRB}, 4
    s_add_u32 s{ta}, s{ta}, {F2}
    s_add_u32 s{tb}, s{ta}, s{sHP}
    s_lshl_b32 s{tb}, s{tb}, {FSH}
    v_mov_b32 v{vF2}, s{tb}
    v_mov_b32 v{vOne}, 1
    v_and_b32 v3, 15, v1
    v_add_u32 v2, s{ta}, v3
    v_lshlrev_b32 v{vF2P}, {FSH}, v2
    s_and_b32 s{tb}, s{sHP}, 3
    s_lshl2_add_u32 s{ta}, s{sRB}, s{tb}
    s_lshl_b32 s{ta}, s{ta}, 15
    s_add_u32 s{ta}, s{ta}, {WS_OF}
    v_add_u32 v{vOD}, s{ta}, v{vKA}
    v_mov_b32 v{vIDX}, 0xdddddddd
    v_and_b32 v2, 27, v1
    v_cmp_eq_u32 vcc, 16, v2
    v_mov_b32 v2, {CNT+32}
    v_mov_b32 v{vZer}, {CNT+16}
    s_mov_b32 s{sMask}, 0x0000ffff
    s_mov_b32 s{sMask+1}, 0x0000ffff
    v_cndmask_b32 v{vOnes}, v{vZer}, v2, vcc
    s_mov_b32 s{sCnt}, 8
    """)
    def kvaddr():
        return [f"s_add_u32 s{sJ}, s{sJ}, 0x2000", f"s_and_b32 s{sJ}, s{sJ}, 0x1e000",
                f"s_add_u32 s{sKV}, s{sKVb}, s{sJ}", f"s_addc_u32 s{sKV+1}, s{sKVb+1}, 0"]
    E(kvaddr())
    def reads(n):
        i, s = n >> 2, n & 3
        slot = i % NS
        a = vWA + (slot >> 1); so = (slot & 1) * SLOT + s * WPART
        f = vFB + 8 * (n % 3)
        o = [f"ds_read_b128 {vr(vXF+4*n,4)}, v{vXA+s} offset:{slot*SLOT}"]
        for c in range(2):
            o.append(f"ds_read_b64_tr_b16 {vr(f+4*c,2)}, v{a} offset:{so+1024*c}")
            o.append(f"ds_read_b64_tr_b16 {vr(f+2+4*c,2)}, v{a} offset:{so+1024*c+256}")
        return o
    def dmaq(h):
        return [[f"s_add_u32 s{sT}, s{sROT}, {i}", f"s_and_b32 s{sT}, s{sT}, 7", f"s_add_u32 m0, s{sXO}, {WQ+4096*i}",
                 f"s_mul_i32 s{sWO}, s{sT}, 196608", f"buffer_load_dwordx4 v{vWD+1}, {sr(SRDW,4)}, s{sWO} offen lds"] for i in range(4*h, 4*h+4)]
    E(f"v_subrev_u32 v{vWD+1}, 1024, v{vWD}")
    if held:
        E(f"s_waitcnt vmcnt({OPT['d1'] + 6 - OPT['d1w']})")
        for g in held: E(g)
    E("s_waitcnt vmcnt(6)")
    if STAMP == 5: stamp("m")
    E("s_barrier")
    stamp("m")
    E(reads(0) + reads(1))
    pend = dma(2)
    E(pend.pop(0)); E(pend.pop(0))
    for n in range(32):
        f = vFB + 8 * (n % 3); x = vXF + 4 * n
        c = (lambda a: "0" if n == 0 else vr(a, 16))
        m = [f"v_mfma_f32_32x32x16_bf16 {vr(aV,16)}, {vr(x,4)}, {vr(f+4,4)}, {c(aV)}",
             f"v_mfma_f32_32x32x16_bf16 {vr(aK,16)}, {vr(f,4)}, {vr(x,4)}, {c(aK)}"]
        r = reads(n + 2) if n + 2 < 32 else []
        E(f"s_waitcnt lgkmcnt({5 if n < 31 else 0})")
        E(m[0])
        if (n + 2) % 4 == 0 and n + 2 < 32:
            b = (n + 2) >> 2
            assert not pend
            E(f"s_waitcnt vmcnt({6 if b < 7 else 4}) lgkmcnt(0)")
            if STAMP == 3: stamp("m")
            E("s_barrier")
            if STAMP == 2: stamp("m")
            if b + 2 <= 7: pend = dma(b + 2)
            else:
                pend = dmaq(b - 6)
                if b == 6: E(f"s_lshl_b32 s{sXO}, s{sW}, 10")
        E(r[:3])
        if pend: E(pend.pop(0))
        E(m[1]); E(r[3:])
        if pend: E(pend.pop(0))
    stamp("m")
    ep = [f"v_cvt_pk_bf16_f32 v{vP+j}, v{aK+2*j}, v{aK+1+2*j}" for j in range(4)]
    ep += [f"global_store_dwordx4 v{vSA}, {vr(vP,4)}, {sr(pWs,2)} sc1"]
    ep += [f"v_cvt_pk_bf16_f32 v{vP+j}, v{aK+2*j}, v{aK+1+2*j}" for j in range(4, 8)]
    ep += [f"global_store_dwordx4 v{vSB}, {vr(vP+4,4)}, {sr(pWs,2)} sc1"]
    ep += [f"v_permlane32_swap_b32 v{vP+8+a}, v{vP+10+a}" for a in (0, 1)]
    ep += [f"global_store_dwordx4 v{vSV}, {vr(vP+8,4)}, {sr(pWs,2)} offset:1024 sc1"]
    ep += [f"v_permlane32_swap_b32 v{vP+8+a}, v{vP+10+a}" for a in (4, 5)]
    ep += [f"global_store_dwordx4 v{vSV}, {vr(vP+12,4)}, {sr(pWs,2)} offset:1536 sc1"]
    LQ = OPT["lq"]
    qb = [40, 44, 24, 28, 32, 36, 64, 68, 72]
    def qread(n):
        f = qb[n % 9]
        return [f"ds_read_b64_tr_b16 {vr(f,2)}, v{vQA} offset:{1024*n}", f"ds_read_b64_tr_b16 {vr(f+2,2)}, v{vQA} offset:{1024*n+256}"]
    E("s_nop 10")
    for j in range(8):
        E(f"v_cvt_pk_bf16_f32 v{vP+8+j}, v{aV+2*j}, v{aV+1+2*j}")
    cut = OPT["epc"]
    E(ep[:cut])
    E(f"s_waitcnt vmcnt({4 + sum('store' in x for x in ep[:cut])})\ns_barrier")
    if STAMP == 4: stamp("m")
    for n in range(LQ): E(qread(n))
    E(ep[cut:])
    late = [f"ds_read_b128 {vr(vO+16*q+8+4*e,4)}, v{vZer}" for q in range(4) for e in range(2)]
    late += [f"ds_write_b128 v{vEW}, {vr(vP+4*j,4)} offset:{2048+1024*j}" for j in range(4)]
    late += [f"ds_read_b128 {vr(vKV+12*st+4+4*e,4)}, v{vOnes}" for st in range(4) for e in range(2)]
    nl = 0
    for n in range(32):
        E(f"s_waitcnt lgkmcnt({min(15, 2*min(LQ-1, 31-n) + nl)})")
        E(f"v_mfma_f32_32x32x16_bf16 {vr(aQ,16)}, {vr(qb[n%9],4)}, {vr(vXF+4*n,4)}, {'0' if n == 0 else vr(aQ,16)}")
        if n == OPT["ackn"]:
            if STAMP == 4: stamp("m")
            E("s_waitcnt vmcnt(0)\ns_barrier")
            if STAMP == 4: stamp("m")
        if n + LQ < 32:
            if n + LQ == 16:
                if STAMP == 4: stamp("m")
                E("s_waitcnt vmcnt(4)\ns_barrier")
                if STAMP == 4: stamp("m")
            E(qread(n + LQ))
        else:
            E(late[:2]); late = late[2:]; nl += 2
        r0 = vXF + 4 * (n - 1)
        for r in range(r0, r0 + 4):
            if n >= 1 and r < vKV and (r - vO) % 16 < 8: E(f"v_mov_b32 v{r}, 0")
    E(late)
    E(f"s_nop {max(0, 11 - len(late))}")
    for o in (0, 1):
        for j in range(8):
            E(f"v_mul_f32 v{aQ+8*o+j}, s{sQS}, v{aQ+8*o+j}")
        for j in range(4):
            E(f"v_cvt_pk_bf16_f32 v{aK+4*o+j}, v{aQ+8*o+2*j}, v{aQ+8*o+1+2*j}")
        E(f"ds_write_b128 v{vEW}, {vr(aK+4*o,4)} offset:{1024*o}")
    if STAMP == 4: stamp("m"); E("s_waitcnt vmcnt(0)"); stamp("m")
    E("s_waitcnt vmcnt(0) lgkmcnt(0)\ns_barrier")
    stamp("m")
    E(f"""
    ds_read_b128 {vr(vQ,4)}, v{vER1}
    ds_read_b128 {vr(vKV,4)}, v{vER0} offset:2048
    ds_read_b128 {vr(vQ+4,4)}, v{vER1} offset:6144
    s_mov_b64 exec, {sr(sMask,2)}
    ds_read_b128 {vr(vKV+4,4)}, v{vERV} offset:4096
    ds_read_b128 {vr(vKV+8,4)}, v{vERV} offset:5120
    ds_read_b128 {vr(vKV+16,4)}, v{vERV} offset:{4096+6144}
    ds_read_b128 {vr(vKV+20,4)}, v{vERV} offset:{5120+6144}
    s_mov_b64 exec, -1
    ds_read_b128 {vr(vQ+8,4)}, v{vER0}
    ds_read_b128 {vr(vQ+12,4)}, v{vER0} offset:6144
    ds_read_b128 {vr(vKV+12,4)}, v{vER0} offset:{2048+6144}
    s_waitcnt lgkmcnt(8)
    v_mfma_f32_32x32x16_bf16 {vr(SA,16)}, {vr(vKV,4)}, {vr(vQ,4)}, 0
    s_nop 10
    s_waitcnt lgkmcnt(0)
    """)
    def kload(st, par):
        return [f"global_load_dwordx4 {vr(vKV+12*st,4)}, v{vKA}, {sr(sKV,2)} offset:{par*2048} sc1"]
    def vload(st, par):
        return [f"s_mov_b64 exec, {sr(sMask,2)}",
                f"global_load_dwordx4 {vr(vKV+12*st+4,4)}, v{vVA}, {sr(sKV,2)} offset:{par*2048+1024} sc1",
                f"global_load_dwordx4 {vr(vKV+12*st+8,4)}, v{vVA}, {sr(sKV,2)} offset:{par*2048+1536} sc1",
                "s_mov_b64 exec, -1"]
    def step(t, q, mode="loop", lo=0, hi=16, extra=None):
        cur, oth = (SA, SB) if q % 2 == 0 else (SB, SA)
        tp, qp = (t, q - 1) if q else ((t - 1) % 4, 3)
        tn, qn = (t, q + 1) if q < 3 else ((t + 1) % 4, 0)
        after2, afterq, after1 = extra or ([], [], [])
        st = (t + 3) % 4; par = (t + 3) & 1
        if mode == "loop":
            if q == 0:
                after2 = vload(st, par); afterq = kload(st, par)
            if q == 1 and par == 1:
                ka = kvaddr(); after2 = ka[:2]; after1 = ka[2:]
            if q == 3:
                after2 = ["s_waitcnt vmcnt(6)"]
                if t == 2:
                    after2 += [f"s_sub_u32 s{sCnt}, s{sCnt}, 1"]; afterq = [f"s_cmp_lg_u32 s{sCnt}, 0"]
        for i in range(lo, hi):
            E(f"v_exp_f32 v{cur+i}, v{cur+i}")
            if i == 1 and not (mode == "first" and q == 0):
                E(f"v_smfmac_f32_32x32x32_bf16 {vr(vO+16*qp,16)}, {vr(vKV+12*tp+8,4)}, {vr(oth+8,8)}, v{vIDX}")
                E(after2)
            if i == 4 and not (mode == "last" and q == 3):
                E(f"v_mfma_f32_32x32x16_bf16 {vr(oth,16)}, {vr(vKV+12*tn,4)}, {vr(vQ+4*qn,4)}, 0")
                E(afterq)
            if i == 10:
                E(f"v_smfmac_f32_32x32x32_bf16 {vr(vO+16*q,16)}, {vr(vKV+12*t+4,4)}, {vr(cur,8)}, v{vIDX}")
                E(after1)
    for q in range(4): step(0, q, "first")
    E("s_barrier")
    stamp("m")
    E(kload(2, 0) + vload(2, 0) + vload(3, 1) + kload(3, 1) + kvaddr())
    E("s_branch L_attn1\n.p2align 3\nL_attn:")
    step(2, 3, lo=11)
    for t in (3, 0, 1, 2):
        if t == 1: E("L_attn1:")
        for q in range(4): step(t, q, hi=(11 if (t, q) == (2, 3) else 16))
    if OPT.get("itst"):
        E(f"s_memtime s[90:91]\ns_mov_b32 m0, s{sCnt}\ns_waitcnt lgkmcnt(0)\nv_writelane_b32 v23, s90, m0")
    E("s_cbranch_scc1 L_attn")
    step(2, 3, lo=11)
    vR = 64
    def sendw(q): return [f"ds_write_b128 v{vRW}, {vr(vO+16*q,4)} offset:{2048*q}", f"ds_write_b128 v{vRW}, {vr(vO+16*q+4,4)} offset:{2048*q+1024}",
                          f"ds_write_b32 v{vRWl}, v{vO+16*q+8} offset:{4096+256*q}"]
    recv = ["s_waitcnt lgkmcnt(0)", "s_barrier",
            f"ds_read_b32 v{vR+16}, v{vRRl} offset:4096", f"ds_read_b128 {vr(vR,4)}, v{vRR}", f"ds_read_b128 {vr(vR+4,4)}, v{vRR} offset:1024",
            f"ds_read_b32 v{vR+17}, v{vRRl} offset:4352", f"ds_read_b128 {vr(vR+8,4)}, v{vRR} offset:2048", f"ds_read_b128 {vr(vR+12,4)}, v{vRR} offset:3072"]
    step(3, 0, "last"); step(3, 1, "last")
    w0 = sendw(0)
    step(3, 2, "last", extra=(w0[:1], w0[1:2], w0[2:]))
    step(3, 3, "last", extra=(sendw(1), [], recv))
    O2, O3 = vO + 32, vO + 48
    E(f"""
    s_waitcnt lgkmcnt(3)
    v_add_f32 v{O2+8}, v{O2+8}, v{vR+16}
    v_smfmac_f32_32x32x32_bf16 {vr(O3,16)}, {vr(vKV+36+8,4)}, {vr(SB+8,8)}, v{vIDX}
    """)
    stamp("m")
    def fin(o, r, rl, dst, addr):
        if rl is not None: E(f"v_add_f32 v{o+8}, v{o+8}, v{rl}")
        E(f"v_rcp_f32 v{vT}, v{o+8}")
        if r is not None:
            for j in range(8): E(f"v_add_f32 v{o+j}, v{o+j}, v{r+j}")
        else:
            E("s_nop 0")
        for j in range(8): E(f"v_mul_f32 v{o+j}, v{o+j}, v{vT}")
        for j in range(4): E(f"v_cvt_pk_bf16_f32 v{dst+j}, v{o+2*j}, v{o+2*j+1}")
        E(f"global_store_dwordx4 v{addr}, {vr(dst,4)}, {sr(pWs,2)} sc1")
    fin(O2, vR, None, SA, vOA)
    E("s_waitcnt lgkmcnt(0)")
    fin(O3, vR + 8, vR + 17, SA + 4, vOB)
    E(f"""
    s_mov_b32 s{ta}, {fbits(2.0**-30)}
    s_mov_b32 s{tb}, {fbits(2.0**50)}
    v_min_f32 v{vT+6}, v{O2+8}, v{O3+8}
    v_max_f32 v{vT+7}, v{O2+8}, v{O3+8}
    v_cmp_lt_f32 vcc, s{ta}, v{vT+6}
    v_cmp_gt_f32 {sr(tc,2)}, s{tb}, v{vT+7}
    v_pk_mul_f32 {vr(vT+2,2)}, {vr(O2,2)}, 0 op_sel_hi:[1,0]
    s_and_b64 {sr(tc,2)}, {sr(tc,2)}, vcc
    """)
    for j in (2, 4, 6, 16, 18, 20, 22):
        E(f"v_pk_fma_f32 {vr(vT+2,2)}, {vr(O2+j,2)}, 0, {vr(vT+2,2)} op_sel_hi:[1,0,1]")
    E(f"""
    v_cmp_o_f32 vcc, v{vT+2}, v{vT+3}
    s_nop 1
    s_and_b64 vcc, {sr(tc,2)}, vcc
    s_cmp_eq_u64 vcc, -1
    s_cbranch_scc0 L_safe
    L_pub:
    s_waitcnt vmcnt(0)
    s_barrier
    """)
    stamp("m")
    E(f"s_cmp_lg_u32 s{sW}, 0\ns_cbranch_scc1 L_mdone")
    put_flag(vF2, vOne)
    E("s_waitcnt vmcnt(0)")
    poll_global(vF2P, pFL, 2)
    E(f"s_mov_b32 s{sKV}, s{pWs}\ns_mov_b32 s{sKV+1}, s{pWs+1}")
    for g in range(8):
        E(f"s_mov_b32 m0, {OFL+4096*g}")
        if g: E(f"s_add_u32 s{sKV}, s{sKV}, 4096\ns_addc_u32 s{sKV+1}, s{sKV+1}, 0")
        else: E("s_nop 0")
        for j in range(4):
            E(f"global_load_lds_dwordx4 v{vOD}, {sr(sKV,2)} offset:{1024*j} sc1")
    for n in (24, 16, 8, 0):
        E(f"s_waitcnt vmcnt({n})\ns_barrier")
    if SPM >= 0:
        E("s_branch L_mdone2\nL_mdone:\ns_barrier\ns_barrier\ns_barrier\ns_barrier\nL_mdone2:")
    else:
        E("L_mdone:")
    stamp_flush("m"); spin_end("m")
    if OPT.get("itst"):
        E(f"v_lshl_add_u32 v2, v1, 2, v2\nv_add_u32 v2, 0x100000, v2\ns_mov_b64 exec, 0xff\nglobal_store_dword v2, v23, {sr(pWs,2)}")
    E("s_endpgm")
    vM, vC = vT + 6, 64
    vQ += 8; vO += 32
    E(f"""
    L_safe:
    s_waitcnt vmcnt(0)
    s_lshl_b32 s{ta}, s{sZ}, 12
    s_sub_u32 s{sKVb}, s{sKVb}, s{ta}
    s_subb_u32 s{sKVb+1}, s{sKVb+1}, 0
    s_mov_b32 s{sKV}, s{sKVb}
    s_mov_b32 s{sKV+1}, s{sKVb+1}
    s_mov_b32 s{sCnt}, 64
    v_mov_b32 v{vM}, 0xff800000
    v_mov_b32 v{vM+1}, 0xff800000
    L_safe1:
    global_load_dwordx4 {vr(vKV,4)}, v{vKA}, {sr(sKV,2)} sc1
    s_add_u32 s{sKV}, s{sKV}, 2048
    s_addc_u32 s{sKV+1}, s{sKV+1}, 0
    s_waitcnt vmcnt(0)
    v_mfma_f32_32x32x16_bf16 {vr(SA,16)}, {vr(vKV,4)}, {vr(vQ,4)}, 0
    v_mfma_f32_32x32x16_bf16 {vr(SB,16)}, {vr(vKV,4)}, {vr(vQ+4,4)}, 0
    s_nop 15
    """)
    for j in range(8):
        E(f"v_max3_f32 v{vM}, v{SA+2*j}, v{SA+2*j+1}, v{vM}\nv_max3_f32 v{vM+1}, v{SB+2*j}, v{SB+2*j+1}, v{vM+1}")
    E(f"""
    s_sub_u32 s{sCnt}, s{sCnt}, 1
    s_cmp_lg_u32 s{sCnt}, 0
    s_cbranch_scc1 L_safe1
    v_mov_b32 v{SA}, v{vM}
    v_mov_b32 v{SB}, v{vM+1}
    s_nop 1
    v_permlane32_swap_b32 v{SA}, v{vM}
    v_permlane32_swap_b32 v{SB}, v{vM+1}
    s_nop 1
    v_max_f32 v{vM}, v{vM}, v{SA}
    v_max_f32 v{vM+1}, v{vM+1}, v{SB}
    """)
    for j in range(16):
        E(f"v_sub_f32 v{vC+j}, 0, v{vM}\nv_sub_f32 v{vC+16+j}, 0, v{vM+1}\nv_mov_b32 v{vO+j}, 0\nv_mov_b32 v{vO+16+j}, 0")
    E(f"""
    s_mov_b32 s{sKV}, s{sKVb}
    s_mov_b32 s{sKV+1}, s{sKVb+1}
    s_mov_b32 s{sCnt}, 64
    L_safe2:
    """)
    E(kload(0, 0) + vload(0, 0))
    E(f"""
    s_add_u32 s{sKV}, s{sKV}, 2048
    s_addc_u32 s{sKV+1}, s{sKV+1}, 0
    s_waitcnt vmcnt(0)
    v_mfma_f32_32x32x16_bf16 {vr(SA,16)}, {vr(vKV,4)}, {vr(vQ,4)}, {vr(vC,16)}
    v_mfma_f32_32x32x16_bf16 {vr(SB,16)}, {vr(vKV,4)}, {vr(vQ+4,4)}, {vr(vC+16,16)}
    s_nop 15
    """)
    for j in range(32):
        E(f"v_exp_f32 v{SA+j}, v{SA+j}")
    E(f"""
    s_nop 1
    v_smfmac_f32_32x32x32_bf16 {vr(vO,16)}, {vr(vKV+4,4)}, {vr(SA,8)}, v{vIDX}
    v_smfmac_f32_32x32x32_bf16 {vr(vO,16)}, {vr(vKV+8,4)}, {vr(SA+8,8)}, v{vIDX}
    v_smfmac_f32_32x32x32_bf16 {vr(vO+16,16)}, {vr(vKV+4,4)}, {vr(SB,8)}, v{vIDX}
    v_smfmac_f32_32x32x32_bf16 {vr(vO+16,16)}, {vr(vKV+8,4)}, {vr(SB+8,8)}, v{vIDX}
    s_sub_u32 s{sCnt}, s{sCnt}, 1
    s_cmp_lg_u32 s{sCnt}, 0
    s_cbranch_scc1 L_safe2
    s_nop 15
    """)
    fin(O2, None, None, SA, vOA); fin(O3, None, None, SA + 4, vOB)
    E("s_branch L_pub")

def helper_wave():
    sH, sC, sMH, sRT, sCB, sD = sT, sT + 1, sT + 2, sT + 3, sT + 4, sT + 5
    sLd, sDs = sT + 6, sT + 7
    t0 = sT + 8
    sLead, sWst = 92, 93
    sAT = 100
    vGW = 156
    vGWA = 155
    vXF = 160
    vG, vGA0, vGA1 = 164, 165, 166
    vU = 168
    vF4, vF4P, vWqP, vWqG, vRdy, vF1, vF1P = range(141, 148)
    sWq = 94
    vTA, vTS = 148, 152
    sUW = sT + 13
    assert NS == 3
    vPar = 4
    E(f"""
    L_helper:
    s_lshr_b32 s{sC}, s{sH}, 1
    s_add_u32 s{sD}, s{sCH}, s{sC}
    s_and_b32 s{sRT}, s{sHP}, 3
    s_lshr_b32 s{sCB}, s{sHP}, 2
    v_lshrrev_b32 v3, 5, v1
    v_lshlrev_b32 v3, 4, v3
    s_lshl_b32 s{t0+2}, s{sROT}, 2
    s_add_u32 s{t0+2}, s{t0+2}, s{sH}
    s_lshl_b32 s{t0+2}, s{t0+2}, 5
    s_add_u32 s{t0+2}, s{t0+2}, {GW}
    v_add_u32 v{vGWA}, s{t0+2}, v3
    v_mov_b32 v12, 0
    v_mov_b32 v13, 0
    v_mov_b32 v14, 0
    v_mov_b32 v15, 0
    s_cmp_lt_u32 s2, 16
    s_cselect_b32 s{sLead}, s{sW}, 0
    """)
    E(f"s_add_u32 s{pFL}, s{pWs}, {WS_FL}\ns_addc_u32 s{pFL+1}, s{pWs+1}, 0")
    def claim_kv():
        E(f"""
        s_lshl2_add_u32 s{t0}, s{sRB}, s{sH}
        s_lshl_b32 s{t0}, s{t0}, 11
        s_lshl_b32 s{t0+1}, s{sHP}, 18
        s_add_u32 s{t0}, s{t0}, s{t0+1}
        """)
        if OPT["clm"] in (1, 3):
            E(f"""
            v_and_b32 v10, 31, v1
            v_lshl_add_u32 v10, v10, 6, s{t0}
            v_lshrrev_b32 v11, 5, v1
            v_lshl_add_u32 v10, v11, 17, v10
            global_store_dword v10, v12, {sr(pWs,2)} sc1
            """)
        else:
            E(f"""
            v_lshl_add_u32 v10, v1, 4, s{t0}
            v_add_u32 v11, 0x20000, v10
            global_store_dwordx4 v10, v[12:15], {sr(pWs,2)} sc1
            global_store_dwordx4 v10, v[12:15], {sr(pWs,2)} offset:1024 sc1
            global_store_dwordx4 v11, v[12:15], {sr(pWs,2)} sc1
            global_store_dwordx4 v11, v[12:15], {sr(pWs,2)} offset:1024 sc1
            """)
    NCL = {0: 0, 1: 1, 2: 4, 3: 0}[OPT["clm"]]
    if NCL: claim_kv()
    stamp("h")
    E(f"""
    s_mul_i32 s{t0}, s{sC}, {URS}
    s_add_u32 s{t0}, s{t0}, {UR+4096}
    v_lshl_add_u32 v10, v1, 4, s{t0}
    v_and_b32 v11, 1, v1
    v_lshlrev_b32 v11, 4, v11
    v_cmp_gt_u32 vcc, 30, v1
    v_add_u32 v11, {CNT}, v11
    v_mov_b32 v2, 0x3f803f80
    v_cndmask_b32 v10, v11, v10, vcc
    ds_write_b128 v10, v[12:15]
    v_and_b32 v11, 3, v1
    v_lshlrev_b32 v11, 2, v11
    ds_write_b32 v11, v2 offset:{CNT+32}
    """)
    vWA, vRA = 16, 17
    if "prio1" in OPT: E(f"s_setprio {OPT['prio1']}")
    E(f"""
    s_mul_i32 s{t0}, s{sRT}, {WPART}
    s_add_u32 s{t0}, s{t0}, {RING}
    v_and_b32 v10, 31, v1
    v_lshl_add_u32 v10, v10, 7, s{t0}
    v_bfe_u32 v11, v1, 1, 3
    v_lshrrev_b32 v3, 5, v1
    v_xor_b32 v11, v11, v3
    s_lshl_b32 s{t0}, s{sH}, 1
    v_xor_b32 v11, s{t0}, v11
    v_lshl_add_u32 v{vGA0}, v11, 4, v10
    v_mov_b32 v{vG}, 0
    """)
    if not OPT["gath"]: E(f"""
    s_lshr_b32 s{sUW}, s{sHP}, 1
    s_sub_u32 s{sUW}, s{sUW}, s{sROT}
    s_and_b32 s{sUW}, s{sUW}, 7
    s_mul_i32 s{t0}, s{sUW}, 11
    s_lshr_b32 s{t0}, s{t0}, 5
    s_mul_i32 s{t0}, s{t0}, 3
    s_sub_u32 s{t0}, s{sUW}, s{t0}
    s_mul_i32 s{t0}, s{t0}, {SLOT}
    s_mul_i32 s{t0+1}, s{sH}, {WPART}
    s_add_u32 s{t0}, s{t0}, s{t0+1}
    s_add_u32 s{t0}, s{t0}, {RING}
    v_and_b32 v10, 3, v1
    v_bfe_u32 v11, v1, 2, 2
    v_lshlrev_b32 v10, 3, v10
    v_sub_u32 v10, v10, v11
    v_add_u32 v10, 7, v10
    v_bfe_u32 v11, v10, 1, 3
    v_xor_b32 v11, v11, v3
    s_and_b32 s{t0+1}, s{sHP}, 1
    s_lshl_b32 s{t0+1}, s{t0+1}, 2
    v_xor_b32 v11, s{t0+1}, v11
    v_lshlrev_b32 v11, 4, v11
    v_lshl_add_u32 v11, v10, 7, v11
    v_bfe_u32 v10, v1, 4, 1
    v_lshl_add_u32 v11, v10, 3, v11
    v_add_u32 v{vTA}, s{t0}, v11
    v_xor_b32 v{vTA+1}, 32, v{vTA}
    v_subrev_u32 v{vTA+2}, 512, v{vTA}
    v_subrev_u32 v{vTA+3}, 512, v{vTA+1}
    """)
    E(f"""
    s_mul_i32 s{t0}, s{sH}, {KGS}
    s_add_u32 s{t0}, s{t0}, {KG}
    s_mov_b32 m0, s{t0}
    v_and_b32 v10, 31, v1
    v_mul_u32_u24 v10, 272, v10
    v_lshl_add_u32 v10, v3, 4, v10
    v_add_u32 v{vRA}, s{t0}, v10
    s_mul_i32 s{t0}, s{sC}, {2*KGS}
    s_add_u32 s{t0}, s{t0}, {KG+KGS}
    v_lshl_add_u32 v{vWA}, v1, 4, s{t0}
    """)
    K = []
    def k(s, c=None):
        if isinstance(s, list): s = "\n".join(s)
        for x in s.split("\n"):
            x = x.strip()
            if not x: continue
            cc = c if c is not None else (8 if any(t in x for t in ("v_exp", "v_sin", "v_cos", "v_rcp", "ds_")) else 4)
            K.append((cc, x))
    va, vb, vt = 220, 221, 222
    log2e = math.log2(math.e)
    c_hi = struct.unpack("<f", struct.pack("<f", log2e))[0]
    c_lo = log2e - c_hi
    k(f"""
    s_waitcnt lgkmcnt(0)
    s_lshl_b32 s{t0}, s{sC}, 4
    s_lshr_b32 s{sLd}, s{sLd}, s{t0}
    s_lshl_b32 s{sLd}, s{sLd}, 16
    s_lshr_b32 s{sDs}, s{sDs}, s{t0}
    s_lshl_b32 s{sDs}, s{sDs}, 16
    s_mov_b32 s{t0}, {fbits(c_hi)}
    v_mov_b32 v{vt}, s{sLd}
    v_mul_f32 v{vt+1}, s{t0}, v{vt}
    v_fma_f32 v{vt+2}, v{vt}, s{t0}, -v{vt+1}
    v_fmac_f32 v{vt+2}, {fbits(c_lo)}, v{vt}
    v_exp_f32 v{vt+1}, v{vt+1}
    v_mul_f32 v{vt+2}, {fbits(math.log(2.0))}, v{vt+2}
    v_fma_f32 v{vt+1}, v{vt+1}, v{vt+2}, v{vt+1}
    v_cvt_pk_bf16_f32 v{vt+1}, v{vt+1}, v{vt+1}
    v_lshlrev_b32 v{vt}, 16, v{vt+1}
    s_waitcnt vmcnt({1+NCL})
    """)
    for j in range(6):
        k(f"v_lshlrev_b32 v{vPar+j}, 16, v{vPar+j}")
    k(f"""
    v_mul_f32 v{va}, v{vt}, v{vPar}
    v_mul_f32 v{vb}, v{vt}, v{vPar+1}
    v_mul_f32 v{vPar+2}, v{vt}, v{vPar+2}
    v_mul_f32 v{vPar+3}, v{vt}, v{vPar+3}
    v_mul_f32 v{va}, {fbits(c_hi)}, v{va}
    v_mul_f32 v{vb}, 0.15915494, v{vb}
    """)
    pkm = [OPT["pk0"]]
    def cmul(z, x, w):
        if pkm[0]:
            return [f"v_pk_mul_f32 {vr(z,2)}, {vr(x,2)}, {vr(w,2)} op_sel_hi:[0,1]",
                    f"v_pk_fma_f32 {vr(z,2)}, {vr(x,2)}, {vr(w,2)}, {vr(z,2)} op_sel:[1,1,0] op_sel_hi:[1,0,1] neg_lo:[1,0,0]"]
        return [f"v_mul_f32 v{z}, v{x}, v{w}\nv_mul_f32 v{z+1}, v{x}, v{w+1}",
                f"v_fma_f32 v{z}, -v{x+1}, v{w+1}, v{z}\nv_fmac_f32 v{z+1}, v{x+1}, v{w}"]
    def cmuls(lst):
        cm = [cmul(*a) for a in lst]
        k([c[0] for c in cm]); k([c[1] for c in cm])
    def direct(z, x):
        k(f"""
        v_mul_f32 v{vt+2}, {fbits(x)}, v{vb}
        v_mul_f32 v{vt+1}, {fbits(x)}, v{va}
        v_fract_f32 v{vt+2}, v{vt+2}
        v_exp_f32 v{vt+1}, v{vt+1}
        v_cos_f32 v{z}, v{vt+2}
        v_sin_f32 v{z+1}, v{vt+2}
        s_nop 0
        v_mul_f32 v{z}, v{z}, v{vt+1}
        v_mul_f32 v{z+1}, v{z+1}, v{vt+1}
        """)
    E1, E32, E256 = 226, 228, 230
    vE = 232
    vPk = 64
    npk = [0]
    DW = {False: [], True: []}
    def puts(lst, neg):
        for z, rows in lst:
            p = vPk + npk[0]; npk[0] += 1
            k(f"v_cvt_pk_bf16_f32 v{p}, v{z}, {'-' if neg else ''}v{z+1}")
            DW[neg] += [f"ds_write_addtid_b32 v{p} offset:{272*r}" for r in rows]
    def e(j): return vE + 2 * (j % 8)
    direct(e(1), 8.0); direct(E32, 32.0)
    k(f"v_mov_b32 v{e(0)}, 1.0\nv_mov_b32 v{e(0)+1}, 0\nv_mov_b32 v{e(4)}, v{E32}\nv_mov_b32 v{e(4)+1}, v{E32+1}")
    cmuls([(e(2), e(1), e(1)), (e(5), e(1), E32)])
    cmuls([(e(3), e(2), e(1)), (e(6), e(2), E32)])
    cmuls([(e(7), e(3), E32)])
    puts([(e(j), [j]) for j in range(4)], False)
    for j0 in range(4, 32, 4):
        if j0 + 4 < 32: cmuls([(e(j + 4), e(j), E32) for j in range(j0, j0 + 4)])
        puts([(e(j), [j]) for j in range(j0, j0 + 4)], False)
    vEF, vGF, vD = 192, 224, 176
    direct(E1, 1.0); direct(E256, 256.0)
    def row(r, h): return 8 * (r >> 2) + 4 * h + (r & 3)
    vGv = 192
    g = {x: vGv + 2 * x for x in range(9)}
    E2 = e(0)
    cmuls([(g[0], vPar + 4, vPar + 2), (E2, E1, E1)])
    cmuls([(g[1], g[0], E1), (g[2], g[0], E2)])
    cmuls([(g[3], g[1], E2), (g[4], g[2], E2)])
    puts([(g[x], [row(x, 0)]) for x in range(4)], True)
    cmuls([(g[5], g[3], E2), (g[6], g[4], E2)])
    cmuls([(g[7], g[5], E2), (g[8], g[6], E2)])
    puts([(g[x], [row(x, 0)]) for x in range(4, 8)], True)
    A = {o: vGv + 18 + 2 * i for i, o in enumerate((0, 2, 4, 6, 8))}
    cmuls([(A[o], g[o], E256) for o in (0, 2, 4, 6, 8)])
    puts([(A[o], [row(r, 1) for r in rs]) for o, rs in ((0, (0, 1)), (2, (2,)), (4, (3, 4, 5)), (6, (6,)), (8, (7,)))], True)
    src, dst = A, g
    for os_, r0, h in (((0, 4, 8), 8, 0), ((0, 4, 8), 8, 1), ((0, 8), 11, 0), ((0, 8), 11, 1), ((0, 8), 13, 0), ((0, 8), 13, 1)):
        cmuls([(dst[o], src[o], E256) for o in os_])
        puts([(dst[o], [row(r0 + i, h)]) for i, o in enumerate(os_)], True)
        src, dst = dst, src
    def D1(): E(DW[False] + [f"ds_read_b128 {vr(vEF+4*s,4)}, v{vRA} offset:{32*s}" for s in range(8)])
    def D2(): E(DW[True] + [f"ds_read_b128 {vr(vGF+4*s,4)}, v{vRA} offset:{32*s}" for s in range(8)])
    PL = [int(c) for c in "%05d" % OPT["pl"]]
    psync = PL[2] == PL[3]
    def D3():
        E("s_waitcnt lgkmcnt(0)")
        for s in range(8):
            E(f"v_mfma_f32_32x32x16_bf16 {vr(vD,16)}, {vr(vGF+4*s,4)}, {vr(vEF+4*s,4)}, {'0' if s == 0 else vr(vD,16)}")
        lx = newlab("nx")
        E(f"s_nop 9\ns_cmp_eq_u32 s{sMH}, 0\ns_cbranch_scc1 {lx}")
        for j in range(4):
            E(f"ds_write_b128 v{vWA}, {vr(vD+4*j,4)} offset:{1024*j}")
        if psync: lds_arrive(vCP, vOne)
        E(f"s_waitcnt lgkmcnt(0)\n{lx}:")
    (vCA, vCP, vOne, vTm, vAA, vBA, vUW, vCW, vCR, vAT, vF3, vWoG, vWoL, vF3P, vAL, vOut, vg, vomg, vOL, vGPw, vGPr, vWoP, vUL, vClO) = range(24, 48)
    vA = 48; vAcc = 96
    ADDR = f"""
    s_lshr_b32 s{t0}, s2, 3
    s_lshl2_add_u32 s{t0}, s{t0}, s{sH}
    s_mul_i32 s{t0}, s{t0}, 12288
    s_lshr_b32 s{t0+1}, s{sHP}, 3
    s_lshl_b32 s{t0+1}, s{t0+1}, 9
    s_add_u32 s{t0}, s{t0}, s{t0+1}
    v_bfe_u32 v18, v1, 2, 2
    v_mul_u32_u24 v18, 3072, v18
    v_and_b32 v19, 3, v1
    v_lshl_add_u32 v18, v19, 7, v18
    v_add_u32 v{vWqP}, s{t0}, v18
    v_mov_b32 v{vCA}, {CNT}
    s_lshl_b32 s{t0}, s{sC}, 2
    s_add_u32 s{t0}, s{t0}, {CNT+4}
    v_mov_b32 v{vCP}, s{t0}
    v_mov_b32 v{vOne}, 1
    v_lshlrev_b32 v23, 4, v1
    s_lshl_b32 s{t0}, s{sH}, 10
    s_sub_u32 s{t0}, {UR+4080-512}, s{t0}
    v_lshrrev_b32 v18, 1, v1
    v_lshlrev_b32 v19, 4, v18
    v_sub_u32 v19, s{t0}, v19
    v_and_b32 v20, 1, v1
    v_mul_u32_u24 v21, {URS}, v20
    v_add_u32 v{vUW}, v19, v21
    s_lshr_b32 s{t0}, s{sCH}, 2
    s_lshl_b32 s{t0}, s{t0}, 14
    s_lshl_b32 s{t0+1}, s{sH}, 12
    s_add_u32 s{t0}, s{t0}, s{t0+1}
    s_and_b32 s{t0+1}, s{sRB}, 1
    s_lshl_b32 s{t0+1}, s{t0+1}, 5
    s_add_u32 s{t0}, s{t0}, s{t0+1}
    s_add_u32 s{t0}, s{t0}, {WS_UT}
    v_lshl_add_u32 v18, v18, 6, s{t0}
    v_lshl_add_u32 v{vUL}, v20, 4, v18
    v_and_b32 v18, 15, v1
    v_add_u32 v19, 1, v18
    v_and_b32 v20, 3, v19
    v_mul_u32_u24 v20, {KCP}, v20
    v_lshrrev_b32 v19, 2, v19
    v_lshl_add_u32 v20, v19, 3, v20
    v_lshrrev_b32 v21, 4, v1
    v_lshlrev_b32 v22, 4, v21
    s_mul_i32 s{t0}, s{sC}, {2*KGS}
    s_lshl_b32 s{t0+1}, s{sMH}, 8
    s_add_u32 s{t0}, s{t0}, s{t0+1}
    s_add_u32 s{t0}, s{t0}, {KG}
    v_add3_u32 v{vAA}, v20, v22, s{t0}
    s_mul_i32 s{t0}, s{sC}, {URS}
    s_add_u32 s{t0}, s{t0}, s{t0+1}
    s_add_u32 s{t0}, s{t0}, {UR+4064-3584}
    v_lshlrev_b32 v19, 5, v18
    v_sub_u32 v22, v22, v19
    v_add_u32 v{vBA}, s{t0}, v22
    s_lshl_b32 s{t0}, s{sH}, 12
    s_add_u32 s{t0}, s{t0}, {CRED}
    v_add_u32 v{vCW}, s{t0}, v23
    s_xor_b32 s{t0}, s{sH}, 1
    s_lshl_b32 s{t0}, s{t0}, 12
    s_add_u32 s{t0}, s{t0}, {CRED}
    v_add_u32 v{vCR}, s{t0}, v23
    v_add_u32 v{vOL}, {OFL}, v23
    v_lshrrev_b32 v19, 1, v18
    v_lshlrev_b32 v19, 15, v19
    v_and_b32 v20, 1, v1
    v_lshl_add_u32 v19, v20, 5, v19
    v_lshl_add_u32 v{vAT}, v21, 3, v19
    s_lshl_b32 s{t0}, s{sMH}, 20
    s_lshl_b32 s{t0+1}, s{sD}, 6
    s_add_u32 s{t0}, s{t0}, s{t0+1}
    s_add_u32 s{t0}, s{t0}, {WS_AT}
    s_add_u32 s{sAT}, s{pWs}, s{t0}
    s_addc_u32 s{sAT+1}, s{pWs+1}, 0
    s_lshl_b32 s{t0}, s{sMH}, 9
    s_add_u32 s{t0}, s{t0}, s{sD}
    s_add_u32 s{t0}, s{t0}, {F3}
    s_lshl_b32 s{t0}, s{t0}, 2
    v_mov_b32 v{vF3}, s{t0}
    s_mov_b32 s{SRDW}, s{pWo}
    s_mov_b32 s{SRDW+1}, s{pWo+1}
    s_mov_b32 s{SRDW+2}, {512*1024}
    s_mov_b32 s{SRDW+3}, 0x00020000
    s_lshl_b32 s{t0}, s{sCB}, 2
    s_add_u32 s{t0}, s{t0}, s{sH}
    s_lshl_b32 s{t0+1}, s{t0}, 6
    v_lshrrev_b32 v18, 2, v1
    v_lshl_add_u32 v18, v18, 10, s{t0+1}
    v_and_b32 v19, 3, v1
    v_lshl_add_u32 v{vWoG}, v19, 4, v18
    s_mul_i32 s{sWst}, s{sH}, {WSL*1024}
    s_add_u32 s{sWst}, s{sWst}, {WST}
    v_lshrrev_b32 v22, 5, v1
    v_lshlrev_b32 v20, 2, v22
    v_bfe_u32 v21, v1, 2, 2
    v_add_u32 v20, v20, v21
    v_lshl_add_u32 v20, v20, 6, s{sWst}
    v_lshl_add_u32 v20, v19, 3, v20
    v_bfe_u32 v21, v1, 4, 1
    v_lshl_add_u32 v{vWoL}, v21, 5, v20
    s_lshl_b32 s{t0}, s{t0}, 5
    s_lshr_b32 s{t0+1}, s{sRB}, 3
    s_lshl_b32 s{t0+1}, s{t0+1}, 9
    s_add_u32 s{t0+1}, s{t0+1}, s{t0}
    s_add_u32 s{t0+1}, s{t0+1}, {F3}
    v_and_b32 v18, 31, v1
    v_add_u32 v19, s{t0+1}, v18
    v_lshlrev_b32 v{vF3P}, 2, v19
    s_lshl_b32 s{t0+1}, s{sRB}, 2
    s_add_u32 s{t0+1}, s{t0+1}, s{sRT}
    s_lshl_b32 s{t0+2}, s{t0+1}, 15
    s_lshl_b32 s{t0+3}, s{t0}, 6
    s_add_u32 s{t0+3}, s{t0+3}, s{t0+2}
    s_add_u32 s{t0+3}, s{t0+3}, {WS_AT}
    v_lshlrev_b32 v20, 8, v22
    v_lshl_add_u32 v20, v18, 1, v20
    v_add_u32 v{vAL}, s{t0+3}, v20
    s_lshl_b32 s{t0}, s{t0}, 1
    s_add_u32 s{t0}, s{t0}, s{t0+2}
    v_lshl_add_u32 v20, v18, 10, s{t0}
    v_lshl_add_u32 v{vOut}, v22, 4, v20
    """.split("\n")
    ADDR += f"""
    s_lshl2_add_u32 s{t0}, s{sRB}, s{sH}
    s_lshl4_add_u32 s{t0}, s{t0}, s{sHP}
    s_lshl_b32 s{t0}, s{t0}, 11
    s_add_u32 s{t0}, s{t0}, {WS_OF}
    v_lshl_add_u32 v{vClO}, v1, 6, s{t0}
    s_lshl_b32 s{t0}, s{sRB}, 2
    s_add_u32 s{t0}, s{t0}, s{sH}
    s_lshl_b32 s{t0}, s{t0}, 8
    s_lshl_b32 s{t0+1}, s{sHP}, 17
    s_add_u32 s{t0}, s{t0}, s{t0+1}
    s_add_u32 s{t0}, s{t0}, {WS_UT}
    v_and_b32 v18, 15, v1
    v_lshl_add_u32 v18, v18, 4, s{t0}
    v_lshrrev_b32 v19, 4, v1
    v_lshl_add_u32 v{vTS}, v19, 14, v18
    v_add_u32 v{vTS+1}, 0x10000, v{vTS}
    v_and_b32 v18, 15, v1
    v_lshlrev_b32 v{vRdy}, 2, v18
    s_lshl_b32 s{t0}, s{sHP}, 4
    v_add_u32 v19, s{t0}, v18
    v_lshlrev_b32 v{vF1P}, {FSH}, v19
    s_add_u32 s{t0}, s{t0}, s{sRB}
    s_lshl2_add_u32 s{t0+1}, s{t0}, s{sH}
    s_add_u32 s{t0+1}, s{t0+1}, {F4}
    s_lshl_b32 s{t0+1}, s{t0+1}, 2
    v_mov_b32 v{vF4}, s{t0+1}
    s_lshl2_add_u32 s{t0+1}, s{sHP}, s{sH}
    s_lshl4_add_u32 s{t0+1}, s{t0+1}, {F4}
    v_add_lshl_u32 v{vF4P}, v18, s{t0+1}, 2
    s_lshl_b32 s{t0}, s{t0}, {FSH}
    v_mov_b32 v{vF1}, s{t0}
    v_and_b32 v18, 31, v1
    v_lshlrev_b32 v18, 5, v18
    v_lshrrev_b32 v19, 5, v1
    v_lshl_add_u32 v19, v19, 2, v18
    s_lshl_b32 s{t0}, s{sH}, 3
    s_add_u32 s{t0}, s{t0}, {GP}
    v_add_u32 v{vGPw}, s{t0}, v19
    v_add_u32 v{vGPr}, {GP}, v18
    s_lshr_b32 s{t0}, s2, 3
    s_lshl_b32 s{t0}, s{t0}, 2
    s_add_u32 s{t0}, s{t0}, s{sH}
    s_lshl_b32 s{t0}, s{t0}, 12
    s_lshr_b32 s{t0+1}, s{sHP}, 3
    s_lshl_b32 s{t0+1}, s{t0+1}, 9
    s_add_u32 s{t0}, s{t0}, s{t0+1}
    v_bfe_u32 v18, v1, 2, 2
    v_lshl_add_u32 v18, v18, 10, s{t0}
    v_and_b32 v19, 3, v1
    v_lshl_add_u32 v{vWoP}, v19, 7, v18
    """.split("\n") + [f"v_mov_b32 v{vA+j}, 0" for j in range(16)]
    if OPT["gath"]:
        ADDR += f"""
        s_lshl_b32 s{t0}, s{sH}, 19
        s_lshl_b32 s{t0+1}, s{sCH}, 1
        s_add_u32 s{t0}, s{t0}, s{t0+1}
        s_add_u32 s{t0}, s{t0}, 4096
        v_lshl_add_u32 v{vUL}, v1, 13, s{t0}
        s_lshl_b32 s{t0}, s{sH}, 10
        s_sub_u32 s{t0}, {UR+4080}, s{t0}
        v_lshlrev_b32 v18, 4, v1
        v_sub_u32 v{vUW}, s{t0}, v18
        s_mov_b32 s94, 0x05040100
        s_mov_b32 s95, 0x07060302
        """.split("\n")
    ADDR = [x.strip() for x in ADDR if x.strip()]
    def GATEF():
        E("s_waitcnt lgkmcnt(0)")
        for j in range(4):
            E(f"v_dot2_f32_bf16 v{vG}, v{vXF+j}, v{vGW+j}, v{vG}")
        E(f"s_nop 2\nds_write_b32 v{vGPw}, v{vG}")
    def SIG():
        E(f"""
        ds_read_b128 v[128:131], v{vGPr}
        ds_read_b128 v[132:135], v{vGPr} offset:16
        s_waitcnt lgkmcnt(0)
        v_add_f32 v128, v128, v129
        v_add_f32 v130, v130, v131
        v_add_f32 v132, v132, v133
        v_add_f32 v134, v134, v135
        v_add_f32 v128, v128, v130
        v_add_f32 v132, v132, v134
        v_add_f32 v128, v128, v132
        v_mul_f32 v128, {fbits(-log2e)}, v128
        v_exp_f32 v128, v128
        s_nop 0
        v_add_f32 v128, 1.0, v128
        v_rcp_f32 v{vg}, v128
        s_nop 0
        v_sub_f32 v{vomg}, 1.0, v{vg}
        """)
    vR = 64; vE0 = 64
    def KC1():
        lk = newlab("nk")
        E(f"s_cmp_eq_u32 s{sMH}, 0\ns_cbranch_scc0 {lk}")
        if psync: lds_wait(vCP, 2, 1)
        for j in range(4):
            E(f"ds_read_b128 {vr(vR+4*j,4)}, v{vWA} offset:{1024*j}")
        E(f"""
        s_mul_i32 s{t0}, s{sC}, {2*KGS}
        s_add_u32 s{t0}, s{t0}, {KG}
        v_lshl_add_u32 v2, v1, 4, s{t0}
        v_lshrrev_b32 v3, 1, v1
        v_mul_u32_u24 v3, {KCP}, v3
        v_and_b32 v10, 1, v1
        v_lshlrev_b32 v11, 4, v10
        v_add3_u32 v3, v3, v11, s{t0}
        v_cmp_eq_u32 {sr(t0+2,2)}, 1, v10
        s_mov_b64 exec, 1
        v_add_f32 v{vD}, s{sDs}, v{vD}
        s_waitcnt lgkmcnt(0)
        s_mov_b64 exec, 0xff
        ds_write_b128 v3, v[12:15]
        s_mov_b64 exec, -1
        """)
        for j in range(15):
            E(f"v_add_f32 v{vD+j}, v{vD+j}, v{vR+j}")
        E(f"""
        v_cndmask_b32 v10, v{vD+11}, v{vD+12}, {sr(t0+2,2)}
        v_cndmask_b32 v11, v{vD+13}, v{vD+14}, {sr(t0+2,2)}
        """)
        D = lambda j: vD + j
        pats = [[(D(0), D(1)), (D(2), D(3)), (D(4), D(5)), (D(6), D(7))],
                [(D(8), D(8)), (D(8), D(9)), (D(9), D(9)), (D(10), D(10))],
                [(D(11), D(11)), (D(11), D(11)), (10, D(12)), (D(12), D(12))],
                [(D(13), D(13)), (D(13), D(13)), (11, D(14)), (D(14), D(14))]]
        for u in range(4):
            for j, (a, b) in enumerate(pats[u]):
                E(f"v_cvt_pk_bf16_f32 v{vE0+8*u+j}, v{a}, v{b}")
            E(f"ds_write_b128 v2, {vr(vE0+8*u,4)} offset:{32+1024*u}")
        for u in range(4):
            E(f"ds_read_b64 {vr(vE0+8*u+4,2)}, v2 offset:{48+1024*u}")
        E(f"{lk}:")
    def KC2():
        lk = newlab("nk")
        E(f"s_cmp_eq_u32 s{sMH}, 0\ns_cbranch_scc0 {lk}\ns_waitcnt lgkmcnt(0)")
        for u in range(4):
            b = vE0 + 8 * u; o = 96 + 12 * (u & 1)
            for j in range(4):
                E(f"v_alignbit_b32 v{o+j}, v{b+j+1}, v{b+j}, 16")
            E(f"ds_write_b128 v2, {vr(o,4)} offset:{32+1024*u+KCP}")
            for j in range(4):
                E(f"v_mov_b32 v{o+4+j}, v{b+j+1}")
            E(f"ds_write_b128 v2, {vr(o+4,4)} offset:{32+1024*u+2*KCP}")
            for j in range(4):
                E(f"v_alignbit_b32 v{o+8+j}, v{b+j+2}, v{b+j+1}, 16")
            E(f"ds_write_b128 v2, {vr(o+8,4)} offset:{32+1024*u+3*KCP}")
            if u == 0:
                E(f"""
                v_lshlrev_b32 v10, 16, v{b}
                s_mov_b64 exec, 1
                ds_write_b32 v2, v10 offset:{28+KCP}
                ds_write_b32 v2, v{b} offset:{28+2*KCP}
                ds_write_b32 v2, v10 offset:{24+3*KCP}
                ds_write_b32 v2, v{o} offset:{28+3*KCP}
                s_mov_b64 exec, -1
                """)
        E(f"{lk}:")
    def gate_glue(i):
        E(f"s_waitcnt vmcnt({NCL}) lgkmcnt(0)" if i == 0 else "s_waitcnt vmcnt(0) lgkmcnt(0)" if i == 7 else "s_waitcnt lgkmcnt(0)")
        if OPT.get("hst"): stamp("h")
        E("s_barrier")
        if i == 0 and OPT["clm"] == 3: claim_kv()
        if i == 0:
            lq = newlab("nr")
            E(f"""
            s_cmp_eq_u32 s{sLead}, 7
            s_cbranch_scc0 {lq}
            s_lshl_b32 s{sSPIN}, s2, 5
            v_add_u32 v10, s{sSPIN}, v1
            v_lshlrev_b32 v10, {FSH}, v10
            s_lshl_b32 s{sSPIN}, s2, 9
            s_add_u32 s{sSPIN}, s{sSPIN}, {4*F3}
            v_lshl_add_u32 v11, v1, 3, s{sSPIN}
            global_store_dwordx2 v11, v[12:13], {sr(pFL,2)} sc1
            s_bfm_b64 exec, 32, 0
            global_store_dword v10, v12, {sr(pFL,2)} sc1
            s_mov_b64 exec, -1
            {lq}:
            """)
        if i == OPT["rdyw"]:
            lq = newlab("nr")
            E(f"""
            s_cmp_eq_u32 s{sLead}, 7
            s_cbranch_scc0 {lq}
            s_lshl_b32 s{sSPIN}, s2, 2
            v_mov_b32 v10, s{sSPIN}
            v_mov_b32 v11, 1
            s_waitcnt vmcnt(0)
            """)
            put_flag(10, 11, pDbg)
            E(f"{lq}:")
        if i >= 1:
            for j in range(4):
                E(f"v_dot2_f32_bf16 v{vG}, v{vXF+j}, v{vGW+j}, v{vG}")
        slot = i % NS
        E(f"ds_read_b128 {vr(vXF,4)}, v{vGA0} offset:{slot*SLOT}")
        E(f"ds_read_b128 {vr(vGW,4)}, v{vGWA} offset:{128*i}")
        if not OPT["gath"]: E(f"""
        s_cmp_eq_u32 s{sUW}, {i}
        s_cbranch_scc0 L_ut{i}
        ds_read_b64_tr_b16 {vr(vU,2)}, v{vTA}
        ds_read_b64_tr_b16 {vr(vU+2,2)}, v{vTA+3}
        ds_read_b64_tr_b16 {vr(vU+4,2)}, v{vTA+1}
        ds_read_b64_tr_b16 {vr(vU+6,2)}, v{vTA+2}
        L_ut{i}:
        """)
    E(ADDR)
    tot = sum(c for c, _ in K); nw = OPT["kw"]
    pre = tot * OPT["kpre"] / 100
    segs = [[] for _ in range(9)]; acc = 0
    for c, x in K:
        segs[0 if acc < pre else 1 + min(nw - 1, int((acc - pre) * nw / (tot - pre)))].append(x); acc += c
    items = [D1, D2, D3, KC1, KC2]
    def place(w):
        for it, p in zip(items, PL):
            if p == w: it()
    E(segs[0])
    for i in range(8):
        gate_glue(i)
        if i == OPT["wqpf"]:
            E(f"s_mov_b64 exec, 0xffff\nglobal_load_dword v167, v{vWqP}, {sr(pW,2)}\ns_mov_b64 exec, -1")
        E(segs[i + 1])
    stamp("h")
    GATEF()
    uts = f"""
    global_store_dwordx4 v{vTS}, {vr(vU,4)}, {sr(pWs,2)} sc1
    global_store_dwordx4 v{vTS+1}, {vr(vU+4,4)}, {sr(pWs,2)} sc1
    """
    E(f"global_load_dword v{vTm}, v{vRdy}, {sr(pDbg,2)} sc1")
    place(0)
    E(f"s_setprio {OPT['prioq']}\ns_waitcnt lgkmcnt(0)\ns_barrier")
    stamp("h")
    if not OPT["gath"] and not OPT["utl"]: E(uts)
    SIG()
    place(1)
    E("s_barrier")
    place(2)
    assert OPT["ackn"] > 16 - OPT["lq"]
    E(f"s_setprio {OPT['prio']}\ns_waitcnt vmcnt(0)\ns_barrier")
    stamp("h")
    lq = newlab("nf"); lr = newlab("rdy")
    E(f"""
    s_cmp_lg_u32 s{sH}, 1
    s_cbranch_scc1 {lq}
    v_cmp_ne_u32 vcc, 0, v{vTm}
    s_nop 1
    s_cmp_eq_u64 vcc, -1
    s_cbranch_scc1 {lr}
    """)
    poll_global(vRdy, pDbg, vTm)
    E(f"{lr}:")
    put_flag(vF1, vOne)
    E(f"{lq}:")
    place(3)
    E("s_barrier")
    place(4)
    lq = newlab("nf")
    E(f"s_cmp_lg_u32 s{sH}, 1\ns_cbranch_scc1 {lq}")
    poll_global(vF1P, pFL, vTm)
    E(f"{lq}:")
    E("s_setprio 0\ns_barrier")
    stamp("h")
    late = OPT["utl"] and not OPT["gath"]
    if PL[0] == 5: D1()
    if late: E(uts)
    E(f"s_setprio {OPT['prio']}")
    if PL[1] == 5: D2()
    if PL[2] == 5: D3()
    if late:
        E("s_waitcnt vmcnt(0)")
        put_flag(vF4, vOne)
    if PL[3] == 5: KC1()
    if PL[4] == 5: KC2()
    if late:
        lds_arrive(vCA, vOne)
        lds_wait(vCA, vTm, 4)
        E("s_waitcnt vmcnt(0)")
        poll_global(vF4P, pFL, vTm)
    if OPT["gath"]:
        for j in range(8):
            E(f"global_load_dword v{vU+j}, v{vUL}, {sr(pX,2)} offset:{1024*j-4096}\ns_waitcnt vmcnt({OPT['gd'] if j < 7 else 0})")
        E(f"s_setprio {OPT['prio']}")
        for j in range(4):
            E(f"v_perm_b32 v{12+j}, v{vU+6-2*j}, v{vU+7-2*j}, s94")
            E(f"v_perm_b32 v{16+j}, v{vU+6-2*j}, v{vU+7-2*j}, s95")
        E(f"ds_write_b128 v{vUW}, v[12:15]\nds_write_b128 v{vUW}, v[16:19] offset:{URS}")
    else: E(f"""
    global_load_dwordx4 v[12:15], v{vUL}, {sr(pWs,2)} sc1
    global_load_dwordx4 v[16:19], v{vUL}, {sr(pWs,2)} offset:2048 sc1
    s_waitcnt vmcnt(0)
    s_setprio {OPT['prio']}
    ds_write_b128 v{vUW}, v[12:15] offset:512
    ds_write_b128 v{vUW}, v[16:19]
    """)
    lds_arrive(vCA, vOne)
    lds_wait(vCA, vTm, 8 if late else 4)
    stamp("h")
    vY = 64
    vF = [96, 192]
    def creads(r):
        f = vF[r & 1]; o = []
        for gmm in range(8):
            o.append(f"ds_read_b64 {vr(f+4*gmm,2)}, v{vAA} offset:{512*gmm+64*r}")
            o.append(f"ds_read_b64 {vr(f+4*gmm+2,2)}, v{vAA} offset:{512*gmm+64*r+8}")
            o.append(f"ds_read_b128 {vr(f+32+4*gmm,4)}, v{vBA} offset:{3584-512*gmm+64*r}")
        return o
    E(creads(0))
    E(f"s_setprio {OPT.get('prio3', OPT['prio'])}")
    for r in range(4):
        f = vF[r & 1]
        nxt = creads(r + 1) if r < 3 else []
        if r == 2 and OPT["wopf"]:
            E(f"s_mov_b64 exec, 0xffff\nglobal_load_dword v20, v{vWoP}, {sr(pWo,2)}\ns_mov_b64 exec, -1")
        E("s_waitcnt lgkmcnt(0)")
        seen = set()
        for gmm in range(8):
            for dl in range(8 - gmm):
                tau = gmm + dl
                c = "0" if (r == 0 and tau not in seen) else vr(vY + 4 * tau, 4)
                seen.add(tau)
                if not OPT.get("noconv"): E(f"v_mfma_f32_16x16x32_bf16 {vr(vY+4*tau,4)}, {vr(f+4*gmm,4)}, {vr(f+32+4*dl,4)}, {c}")
                if nxt: E(nxt.pop(0))
    E(f"s_setprio {OPT['prio']}")
    l1 = newlab("c1"); l2 = newlab("c2")
    E(f"s_nop 5\ns_cmp_eq_u32 s{sMH}, 0\ns_cbranch_scc0 {l1}")
    def conv_fin(send, keep):
        for j in range(4):
            E(f"ds_write_b128 v{vCW}, {vr(send+4*j,4)} offset:{1024*j}")
        lds_arrive(vCP, vOne)
        lds_wait(vCP, vTm, 2 + psync)
        for j in range(4):
            E(f"ds_read_b128 {vr(96+4*j,4)}, v{vCR} offset:{1024*j}")
        E("s_waitcnt lgkmcnt(0)")
        for j in range(16):
            E(f"v_add_f32 v{96+j}, v{keep+j}, v{96+j}")
    conv_fin(vY + 16, vY)
    E(f"s_branch {l2}\n{l1}:")
    conv_fin(vY, vY + 16)
    E(f"{l2}:")
    for j in range(4):
        E(f"v_cvt_pk_bf16_f32 v{112+2*j}, v{96+4*j}, v{97+4*j}\nv_cvt_pk_bf16_f32 v{113+2*j}, v{98+4*j}, v{99+4*j}")
        E(f"global_store_dwordx2 v{vAT}, {vr(112+2*j,2)}, {sr(sAT,2)} sc1")
        if j < 3: E(f"s_add_u32 s{sAT}, s{sAT}, {8*32768}\ns_addc_u32 s{sAT+1}, s{sAT+1}, 0")
    E("s_waitcnt vmcnt(0)")
    put_flag(vF3, vOne)
    stamp("h")
    vWo = 128
    sO = t0 + 2
    WD = OPT["wod"]
    for hd in range(0 if OPT.get("nowo") else 32 + WD):
        if hd < 32:
            if hd % 4 == 0: E(f"s_add_u32 m0, s{sWst}, {(hd%WSL)*1024}")
            E(f"s_mov_b32 s{sO}, {hd*16384-(hd%4)*1024}")
            E(f"buffer_load_dwordx4 v{vWoG}, {sr(SRDW,4)}, s{sO} offen offset:{(hd%4)*1024} lds")
        r = hd - WD
        if r >= 0:
            E(f"s_waitcnt vmcnt({min(WD, 31-r)}) lgkmcnt(8)")
            E(f"ds_read_b64_tr_b16 {vr(vWo+4*r,2)}, v{vWoL} offset:{1024*(r%WSL)}")
            E(f"ds_read_b64_tr_b16 {vr(vWo+4*r+2,2)}, v{vWoL} offset:{1024*(r%WSL)+512}")
    E("s_waitcnt lgkmcnt(0)")
    stamp("h")
    if OPT["clo"] & 1:
        E(f"s_bfm_b64 exec, 32, 0\nglobal_store_dword v{vClO}, v{vOne}, {sr(pWs,2)} sc1\ns_mov_b64 exec, -1")
    if OPT["clo"] & 2:
        E(f"s_bfm_b64 exec, 32, 0\nglobal_store_dword v{vOut}, v{vOne}, {sr(pOut,2)} sc1\ns_mov_b64 exec, -1")
    poll_global(vF3P, pFL, vTm)
    for r in range(16):
        E(f"global_load_short_d16_hi v{vA+r}, v{vAL}, {sr(pWs,2)} offset:{(8*(r>>2)+(r&3))*64} sc1")
    E("s_waitcnt vmcnt(0)")
    stamp("h")
    E("s_barrier")
    for r in range(16):
        E(f"v_mul_f32 v{vA+r}, v{vg}, v{vA+r}")
    E("s_barrier")
    stamp("h")
    vB = 64
    def ord_(hd): return f"ds_read_b128 {vr(vB+4*(hd%8),4)}, v{vOL} offset:{1024*hd}"
    E("s_barrier")
    stamp("h")
    for j in range(8): E(ord_(j))
    for hd in range(32):
        out = min(hd + 4, 31) - hd if hd >= 4 else 7 - hd
        E(f"s_waitcnt lgkmcnt({out if hd < 4 else min(3, 31-hd)})")
        E(f"v_mfma_f32_32x32x16_bf16 {vr(vAcc,16)}, {vr(vWo+4*hd,4)}, {vr(vB+4*(hd%8),4)}, {'0' if hd == 0 else vr(vAcc,16)}")
        nx = hd + 4
        if 8 <= nx < 32:
            if nx % 8 == 0: E("s_barrier")
            E(ord_(nx))
    E("s_nop 11")
    for r in range(16):
        E(f"v_fma_f32 v{vAcc+r}, v{vAcc+r}, v{vomg}, v{vA+r}")
    for j in range(8):
        E(f"v_cvt_pk_bf16_f32 v{vB+j}, v{vAcc+2*j}, v{vAcc+2*j+1}")
    E("s_nop 1")
    for a in (0, 1, 4, 5):
        E(f"v_permlane32_swap_b32 v{vB+a}, v{vB+2+a}")
    fl = ["", "sc1", "nt", "sc0 sc1"][OPT["outsc"]]
    E(f"global_store_dwordx4 v{vOut}, {vr(vB,4)}, {sr(pOut,2)} {fl}\nglobal_store_dwordx4 v{vOut}, {vr(vB+4,4)}, {sr(pOut,2)} offset:32 {fl}")
    if STAMP:
        E("s_waitcnt vmcnt(0)")
    stamp("h")
    stamp_flush("h"); spin_end("h")
    E("s_endpgm")

hdr = open(f"cdna_kernels/{NAME}.s.ref").read().split("; Override launch")[0]
prologue(); main_wave()
if OPT["lay"]: helper_wave()
E("L_end:\ns_endpgm")
out = hdr + f"""; @launch grid=(256,1,1) block=(512,1,1) lds={LDS_BYTES}
.amdgcn_target "amdgcn-amd-amdhsa--gfx950"
.text
.globl {NAME}_kernel
.p2align 8
.type {NAME}_kernel,@function
{NAME}_kernel:
""" + "\n".join(L) + f"""
.section .rodata,"a"
.p2align 6
.amdhsa_kernel {NAME}_kernel
  .amdhsa_next_free_vgpr 256
  .amdhsa_next_free_sgpr 102
  .amdhsa_accum_offset 256
  .amdhsa_group_segment_fixed_size 0
  .amdhsa_kernarg_size 128
  .amdhsa_user_sgpr_count 2
  .amdhsa_user_sgpr_kernarg_segment_ptr 1
  .amdhsa_system_sgpr_workgroup_id_x 1
.end_amdhsa_kernel
"""
open(sys.argv[1], "w").write(out)
```

```python
import sys, math, struct

NAME = "gated_mix__ssm_conv_s4__mha_block__prompt"
OPT = dict(stamp=0, rot=3, fs=128, spin=200000, prio=2, outsc=0, prio3=0, pf=1, tlb=1, ksplit=90, pk0=0, wod=4, wopf=1, lay=2, prioq=0, eb=2, lq=7, epc=10, ackn=26, ute=0, kcp=1, gath=0, gd=0, d1=3, d1w=4, pl=55555, utl=1, kpre=5, kw=7, clm=0, clo=0, rdyw=2, xm=0, wqpf=2, sigl=1)
for a in sys.argv[2:]:
    k, v = a.split("=")
    OPT[k] = int(v)
STAMP = OPT["stamp"]
FS = OPT["fs"]
FSH = int(math.log2(FS))

L = []
def E(s):
    if isinstance(s, list): s = "\n".join(s)
    for x in s.split("\n"):
        x = x.strip()
        if x:
            L.append(("" if x.endswith(":") else "    ") + x)
def fbits(x): return "0x%08x" % struct.unpack("<I", struct.pack("<f", x))[0]
def vr(a, n): return f"v[{a}:{a+n-1}]"
def sr(a, n): return f"s[{a}:{a+n-1}]"

WS_KV = 0
WS_OF = 4 << 20
WS_AT = 6 << 20
WS_FL = 8 << 20
WS_UT = 10 << 20
WS_ST = 16 << 20
F1, F2 = 0, 256
F3 = 512 * FS // 4
F4 = F3 + 1024
KG = 0; KGS = 8704
KCP = 4160
UR = KG + 4 * KGS; URS = 4576
GP = UR + 2 * URS
GW = GP + 1024
CNT = GW + 2048
RING = CNT + 64
SLOT = 24576; WPART = 6144; NS = 3
WQ = RING + NS * SLOT
LDS_BYTES = WQ + 32768
EXCH = RING; RED = WQ; REDS = 4608
CRED = RING; WST = RING + 16384; WSL = 12; OFL = RING
assert RING % 256 == 0 and WST + 4 * WSL * 1024 <= WQ and LDS_BYTES <= 163840
sW, sHP, sRB, sCH, sROT = 3, 4, 5, 6, 7
SRDX, SRDW = 8, 12
pX, pAre, pAim, pBre, pBim, pCre, pCim, pLdt = 16, 18, 20, 22, 24, 26, 28, 30
pDsk, pW, pWo, pGw, pOut, pDbg, pWs = 32, 36, 38, 40, 42, 44, 46
pFL = 34
sT = 48
sSPIN = 62
sST = 64

nstamp = {"m": 0, "h": 0}
SPM, SPH = OPT.get("spm", -1), OPT.get("sph", -1)
def spin_end(role):
    if (SPM if role == "m" else SPH) < 0: return
    l = newlab("sp")
    E(f"{l}:\ns_memrealtime s[98:99]\ns_waitcnt lgkmcnt(0)\ns_sub_u32 s98, s98, s96\ns_cmp_lt_i32 s98, 4000\ns_cbranch_scc1 {l}")
def stamp(role):
    if SPM >= 0 or SPH >= 0:
        i = nstamp[role]; nstamp[role] += 1
        if i == (SPM if role == "m" else SPH): E("s_memrealtime s[96:97]\ns_waitcnt lgkmcnt(0)")
        return
    if not STAMP or nstamp[role] >= 14: return
    i = nstamp[role]; nstamp[role] += 1
    E(f"s_memrealtime {sr(sST+2*i,2)}\ns_waitcnt lgkmcnt(0)")
def stamp_flush(role):
    if not STAMP: return
    E(f"s_lshl_b32 s{sT}, s2, 3\ns_add_u32 s{sT}, s{sT}, s{sW}\ns_lshl_b32 s{sT}, s{sT}, 6\ns_add_u32 s{sT}, s{sT}, {WS_ST}\nv_mov_b32 v2, s{sT}")
    for i in range(nstamp[role]):
        E(f"v_mov_b32 v3, s{sST+2*i}\nglobal_store_dword v2, v3, {sr(pWs,2)} offset:{4*i}")
    E(f"s_getreg_b32 s{sT}, hwreg(HW_REG_XCC_ID)\nv_mov_b32 v3, s{sT}\nglobal_store_dword v2, v3, {sr(pWs,2)} offset:60")

lab = [0]
def newlab(p):
    lab[0] += 1
    return f"L_{p}_{lab[0]}"

def poll_global(vaddr, base, vtmp):
    l = newlab("poll"); d = newlab("polld")
    E(f"""
    s_mov_b32 s{sSPIN}, {OPT['spin']}
    {l}:
    global_load_dword v{vtmp}, v{vaddr}, {sr(base,2)} sc1
    s_sub_u32 s{sSPIN}, s{sSPIN}, 1
    s_cbranch_scc1 {d}
    s_waitcnt vmcnt(0)
    v_cmp_ne_u32 vcc, 0, v{vtmp}
    s_nop 1
    s_cmp_eq_u64 vcc, -1
    s_cbranch_scc0 {l}
    {d}:
    s_waitcnt vmcnt(0)
    """)
def put_flag(vaddr, vone, base=None):
    E(f"""
    s_mov_b64 exec, 1
    global_store_dword v{vaddr}, v{vone}, {sr(pFL if base is None else base,2)} sc1
    s_mov_b64 exec, -1
    """)
def lds_arrive(vaddr, vone):
    E(f"""
    s_mov_b64 exec, 1
    ds_add_u32 v{vaddr}, v{vone}
    s_mov_b64 exec, -1
    """)
def lds_wait(vaddr, vtmp, n):
    l = newlab("lw"); d = newlab("lwd")
    E(f"""
    s_mov_b32 s{sSPIN}, {OPT['spin']*8}
    {l}:
    ds_read_b32 v{vtmp}, v{vaddr}
    s_sub_u32 s{sSPIN}, s{sSPIN}, 1
    s_cbranch_scc1 {d}
    s_waitcnt lgkmcnt(0)
    v_readfirstlane_b32 s{sSPIN+1}, v{vtmp}
    s_nop 1
    s_cmp_ge_u32 s{sSPIN+1}, {n}
    s_cbranch_scc0 {l}
    {d}:
    s_waitcnt lgkmcnt(0)
    """)

def helper_entry():
    sH, sC, sMH, sD, sLd, sDs, t0 = sT, sT + 1, sT + 2, sT + 5, sT + 6, sT + 7, sT + 8
    E(f"L_h0:\ns_setprio {OPT['prio']}\ns_sub_u32 s{sH}, s{sW}, 4")
    if OPT["pf"]:
        E(f"""
        s_getpc_b64 s[8:9]
        L_pc:
        s_andn2_b32 s10, s2, 7
        s_lshl1_add_u32 s10, s{sH}, s10
        v_and_b32 v2, 1, v1
        v_add_lshl_u32 v2, v2, s10, 7
        v_min_u32 v2, L_end-L_pc, v2
        v_mov_b32 v3, 0
        v_lshl_add_u64 v[2:3], v[2:3], 0, s[8:9]
        global_load_dword v167, v[2:3], off
        """)
    if OPT["gath"]:
        E(f"s_and_b32 s{sCH}, s2, 7\ns_lshl_b32 s{sCH}, s{sCH}, 5\ns_lshr_b32 s{t0}, s2, 3\ns_or_b32 s{sCH}, s{sCH}, s{t0}")
    else:
        E(f"s_lshl4_add_u32 s{sCH}, s{sHP}, s{sRB}")
    E(f"""
    s_lshl2_add_u32 s{t0}, s{sCH}, s{sH}
    s_lshl_b32 s{t0}, s{t0}, 7
    v_lshl_add_u32 v2, v1, 1, s{t0}
    s_lshl_b32 s{t0+1}, s{sCH}, 2
    s_and_b32 s{sMH}, s{sH}, 1
    s_lshl_b32 s{t0}, s{sMH}, 10
    s_add_u32 m0, s{t0}, {GW}
    v_lshlrev_b32 v3, 4, v1
    s_waitcnt lgkmcnt(0)
    """)
    for j, p in enumerate((pAre, pAim, pBre, pBim, pCre, pCim)):
        E(f"global_load_ushort v{4+j}, v2, {sr(p,2)}")
    E(f"""
    global_load_lds_dwordx4 v3, {sr(pGw,2)}
    {"s_barrier" if OPT["eb"] else ""}
    s_load_dword s{sLd}, {sr(pLdt,2)}, s{t0+1}
    s_load_dword s{sDs}, {sr(pDsk,2)}, s{t0+1}
    s_lshl_b32 s{sCH}, s{sCH}, 1
    """)

def prologue():
    if STAMP:
        E(f"s_memrealtime {sr(sST,2)}"); nstamp["m"] = nstamp["h"] = 1
    E(f"""
    s_cmpk_ge_u32 s2, 0x100
    s_cbranch_scc1 L_end
    s_load_dwordx16 s[16:31], s[0:1], 0
    s_load_dwordx16 s[32:47], s[0:1], 64
    """)
    if OPT.get("rndws"): E(f"""
    s_memrealtime s[98:99]
    s_waitcnt lgkmcnt(0)
    s_lshr_b32 s98, s98, 15
    s_mul_i32 s98, s98, 0x9e3779b1
    s_lshr_b32 s98, s98, 28
    s_mul_i32 s98, s98, {OPT["rndws"]-1}
    s_lshl_b32 s98, s98, 24
    s_add_u32 s{pWs}, s{pWs}, s98
    s_addc_u32 s{pWs+1}, s{pWs+1}, 0
    """)
    E(f"""
    v_lshrrev_b32 v2, 6, v0
    v_and_b32 v1, 63, v0
    v_readfirstlane_b32 s{sW}, v2
    """)
    if OPT.get("probe"):
        po = OPT["probe"] - 1
        fl = ["sc1", "sc1 nt", "", "sc0 sc1"][OPT.get("pfl", 0)]
        E(f"""
        s_waitcnt lgkmcnt(0)
        s_add_u32 s98, s2, {OPT.get("psh", 0)}
        s_and_b32 s98, s98, 7
        s_lshl_b32 s98, s98, 5
        s_lshr_b32 s99, s2, 3
        s_add_u32 s98, s98, s99
        s_lshl_b32 s98, s98, 14
        s_add_u32 s98, s98, {po << 20}
        v_lshl_add_u32 v3, v0, 4, s98
        v_add_u32 v4, 0x2000, v3
        s_memrealtime s[96:97]
        s_waitcnt lgkmcnt(0)
        """)
        if OPT.get("prd"):
            E(f"global_load_dwordx4 v[8:11], v3, {sr(pX if OPT['prd'] == 2 else pWs,2)}")
            if OPT["prd"] == 1: E(f"global_load_dwordx4 v[12:15], v4, {sr(pWs,2)}")
        else:
            E(f"global_store_dwordx4 v3, v[8:11], {sr(pWs,2)} {fl}\nglobal_store_dwordx4 v4, v[8:11], {sr(pWs,2)} {fl}")
        E(f"""
        s_waitcnt vmcnt(0)
        s_memrealtime s[98:99]
        s_waitcnt lgkmcnt(0)
        s_sub_u32 s98, s98, s96
        s_mul_i32 s98, s98, 10
        """)
        if OPT.get("pxcc"): E(f"""
        s_getreg_b32 s98, hwreg(HW_REG_XCC_ID)
        s_sub_u32 s98, s98, s2
        s_and_b32 s98, s98, 7
        s_mul_i32 s98, s98, 500
        """)
        E(f"""
        s_add_u32 s96, s96, s98
        s_barrier
        """)
    if OPT["xm"] == 0: E(f"""
    s_bfe_u32 s{sHP}, s2, 0x30003
    s_and_b32 s{sT}, s2, 1
    s_lshl3_add_u32 s{sHP}, s{sT}, s{sHP}
    s_lshr_b32 s{sRB}, s2, 6
    s_and_b32 s{sT}, s2, 6
    s_lshl1_add_u32 s{sRB}, s{sT}, s{sRB}
    """)
    elif OPT["xm"] == 1: E(f"""
    s_bfe_u32 s{sHP}, s2, 0x10003
    s_and_b32 s{sT}, s2, 7
    s_lshl1_add_u32 s{sHP}, s{sT}, s{sHP}
    s_lshr_b32 s{sRB}, s2, 4
    """)
    else: E(f"""
    s_bfe_u32 s{sHP}, s2, 0x20003
    s_and_b32 s{sT}, s2, 3
    s_lshl2_add_u32 s{sHP}, s{sT}, s{sHP}
    s_lshr_b32 s{sRB}, s2, 5
    s_and_b32 s{sT}, s2, 4
    s_lshl1_add_u32 s{sRB}, s{sT}, s{sRB}
    """)
    if OPT["rot"] == 0:
        E(f"s_mov_b32 s{sROT}, 0")
    elif OPT["rot"] == 1:
        E(f"s_xor_b32 s{sROT}, s{sHP}, s{sRB}\ns_and_b32 s{sROT}, s{sROT}, 1\ns_lshl_b32 s{sROT}, s{sROT}, 2")
    elif OPT["rot"] == 2:
        E(f"s_lshl1_add_u32 s{sROT}, s{sRB}, s{sHP}\ns_and_b32 s{sROT}, s{sROT}, 7")
    elif OPT["rot"] == 3:
        E(f"s_lshl1_add_u32 s{sROT}, s{sRB}, s{sHP}\ns_and_b32 s{sROT}, s{sROT}, 6")
    elif OPT["rot"] == 4:
        E(f"s_lshl2_add_u32 s{sROT}, s{sHP}, s{sRB}\ns_and_b32 s{sROT}, s{sROT}, 7")
    else:
        E(f"s_add_u32 s{sROT}, s{sHP}, s{sRB}\ns_lshl_b32 s{sROT}, s{sROT}, 1\ns_and_b32 s{sROT}, s{sROT}, 6")
    if OPT["lay"] == 2:
        E(f"s_cmp_lt_u32 s{sW}, 4\ns_cbranch_scc1 L_m0")
        helper_entry()
        E("s_branch L_helper\nL_m0:")
    else:
        E(f"s_cmp_ge_u32 s{sW}, 4\ns_cbranch_scc1 L_h0")

def main_wave():
    vXD, vWD, vXA, vWA, vQA = 4, 8, 10, 14, 16
    vFB = 24
    aK, aV, aQ = 48, 64, 80
    vP = 96
    vXF = 128
    sXO, sWO, sM0, sX, sZ, sQS = 92, 93, 94, 95, 100, 101
    sKVb, sKV, sJ, sCnt, sMask = sT + 2, sT + 4, sT + 6, sT + 7, sT + 8
    ta, tb, tc = sT + 10, sT + 11, sT + 12
    vO, vKV = 128, 192
    (vIDX, vKA, vVA, vSA, vSB, vSV, vEW, vER0, vER1, vERV, vRW, vRWl, vRR, vRRl, vOA, vOB) = range(112, 128)
    vF2, vOne, vF2P, vOD, vOnes, vZer = range(17, 23)
    vQ = 96; SA, SB = 24, 40; vT = 56
    E(f"""
    s_lshl2_add_u32 s{sT}, s{sRB}, s{sW}
    s_lshl_b32 s{sT}, s{sT}, 15
    v_lshrrev_b32 v2, 3, v1
    v_lshl_add_u32 v2, v2, 10, s{sT}
    v_lshrrev_b32 v3, 4, v1
    v_xor_b32 v3, v3, v1
    v_and_b32 v3, 7, v3
    v_lshl_add_u32 v{vXD}, v3, 4, v2
    v_xor_b32 v{vXD+1}, 64, v{vXD}
    s_movk_i32 s{sT}, 7168
    v_add_u32 v{vXD+1}, s{sT}, v{vXD+1}
    s_movk_i32 s{sT}, 14336
    v_add_u32 v{vXD+2}, s{sT}, v{vXD}
    v_add_u32 v{vXD+3}, s{sT}, v{vXD+1}
    v_lshrrev_b32 v2, 2, v0
    v_mul_u32_u24 v2, 3072, v2
    v_and_b32 v3, 3, v1
    s_lshl2_add_u32 s{sT}, s{sHP}, 64
    v_add_u32 v3, s{sT}, v3
    v_lshl_add_u32 v{vWD}, v3, 4, v2
    s_mul_i32 s{sM0}, s{sW}, {WPART}
    s_mov_b32 s{SRDX+2}, 0x200000
    s_mov_b32 s{SRDX+3}, 0x00020000
    s_mov_b64 {sr(SRDW+2,2)}, {sr(SRDX+2,2)}
    """)
    def dma(i, first=False):
        slot = i % NS
        g = []
        for seg in range(2):
            g.append([f"buffer_load_dwordx4 v{vWD}, {sr(SRDW,4)}, s{sWO} offen offset:{seg*1024} lds"])
        for j in range(4):
            g.append([f"buffer_load_dwordx4 v{vXD+j}, {sr(SRDX,4)}, s{sXO} offen offset:{j*1024} lds"])
        st = sROT if i == 0 else sT
        pre = [] if i == 0 else [f"s_add_u32 s{sT}, s{sROT}, {i}", f"s_and_b32 s{sT}, s{sT}, 7"]
        pre += [f"s_add_u32 m0, s{sM0}, {RING+slot*SLOT+4096}", f"s_mul_i32 s{sWO}, s{st}, 196608"]
        if first:
            pre += ["s_waitcnt lgkmcnt(0)", f"s_mov_b64 {sr(SRDW,2)}, {sr(pW,2)}", f"s_mov_b64 {sr(SRDX,2)}, {sr(pX,2)}"]
        g[0] = pre + g[0]
        g[2] = [f"s_add_u32 m0, s{sM0}, {RING+slot*SLOT}", f"s_lshl_b32 s{sXO}, s{st}, 7"] + g[2]
        return g
    for gi, g in enumerate(dma(0, True)):
        if gi == 0 and OPT["eb"] == 2: g.insert(len(g) - 1, "s_barrier")
        E(g)
    if OPT["eb"] == 1: E("s_barrier")
    if OPT["lay"] == 0:
        for g in dma(1): E(g)
        E("s_branch L_m1")
        helper_entry(); helper_wave()
        E("L_m1:")
        stamp("m")
    elif OPT["lay"] == 2:
        stamp("m")
        held = dma(1)
        for g in held[:OPT["d1"]]: E(g)
        held = held[OPT["d1"]:]
    else:
        E("s_branch L_m1")
        helper_entry()
        E("s_branch L_helper\nL_m1:")
        stamp("m")
        for g in dma(1): E(g)
    if OPT["tlb"]:
        E(f"""
        s_mov_b32 s{ta}, {WS_FL + 0x100000}
        s_load_dword s18, {sr(pWs,2)}, s{ta}
        s_load_dword s19, {sr(pDbg,2)}, 128
        s_load_dword s20, {sr(pOut,2)}, 0
        s_load_dword s21, {sr(pWo,2)}, 0
        """)
    E(f"""
    s_add_u32 s{pFL}, s{pWs}, {WS_FL}
    s_addc_u32 s{pFL+1}, s{pWs+1}, 0
    s_add_u32 s{ta}, s{sM0}, {RING}
    v_and_b32 v2, 31, v1
    v_lshl_add_u32 v2, v2, 7, s{ta}
    v_bfe_u32 v3, v1, 1, 3
    v_lshrrev_b32 v{vXA+1}, 5, v1
    v_xor_b32 v3, v3, v{vXA+1}
    v_lshl_add_u32 v{vXA}, v3, 4, v2
    v_xor_b32 v{vXA+1}, 32, v{vXA}
    v_xor_b32 v{vXA+2}, 64, v{vXA}
    v_xor_b32 v{vXA+3}, 0x60, v{vXA}
    v_lshrrev_b32 v2, 5, v1
    v_lshlrev_b32 v2, 3, v2
    v_bfe_u32 v3, v1, 2, 2
    v_add_u32 v2, v2, v3
    v_lshlrev_b32 v2, 6, v2
    v_and_b32 v3, 3, v1
    v_lshl_add_u32 v2, v3, 3, v2
    v_bfe_u32 v3, v1, 4, 1
    v_lshl_add_u32 v2, v3, 5, v2
    v_add_u32 v{vWA}, {RING+4096}, v2
    v_add_u32 v{vWA+1}, {RING+4096+2*SLOT}, v2
    v_add_u32 v{vQA}, {WQ}, v2
    """)
    E(f"""
    s_and_b32 s{sX}, s{sW}, 1
    s_lshr_b32 s{sZ}, s{sW}, 1
    s_mov_b32 s{sQS}, {fbits(0.25 * math.log2(math.e))}
    s_lshl2_add_u32 s{ta}, s{sRB}, s{sW}
    s_lshl_b32 s{ta}, s{ta}, 11
    s_lshl_b32 s{tb}, s{sHP}, 18
    s_add_u32 s{ta}, s{ta}, s{tb}
    {f"s_load_dword s22, {sr(pWs,2)}, s{ta}" if OPT["tlb"] == 2 else ""}
    {f"s_add_u32 s{tb}, s{ta}, 0x20000" if OPT["tlb"] == 2 else ""}
    {f"s_load_dword s23, {sr(pWs,2)}, s{tb}" if OPT["tlb"] == 2 else ""}
    v_lshlrev_b32 v{vKA}, 4, v1
    v_add_u32 v{vSA}, s{ta}, v{vKA}
    v_add_u32 v{vSB}, 0x20000, v{vSA}
    v_and_b32 v{vVA}, 15, v1
    v_lshrrev_b32 v2, 5, v1
    v_lshl_add_u32 v{vVA}, v2, 4, v{vVA}
    v_lshlrev_b32 v{vVA}, 4, v{vVA}
    v_bfe_u32 v2, v1, 4, 1
    v_lshlrev_b32 v2, 17, v2
    v_add3_u32 v{vSV}, v2, v{vVA}, s{ta}
    s_add_u32 s{tb}, s{sM0}, {EXCH}
    v_add_u32 v{vEW}, s{tb}, v{vKA}
    s_lshl_b32 s{ta}, s{sX}, 10
    s_add_u32 s{ta}, s{ta}, {EXCH}
    s_mul_i32 s{tb}, s{sZ}, 12288
    s_add_u32 s{tc}, s{ta}, s{tb}
    v_add_u32 v{vER0}, s{tc}, v{vKA}
    s_sub_u32 s{tc}, s{ta}, s{tb}
    s_add_u32 s{tc}, s{tc}, 12288
    v_add_u32 v{vER1}, s{tc}, v{vKA}
    s_lshl_b32 s{ta}, s{sX}, 8
    s_add_u32 s{tc}, s{ta}, s{tb}
    s_add_u32 s{tc}, s{tc}, {EXCH}
    v_add_u32 v{vERV}, s{tc}, v{vKA}
    s_lshl1_add_u32 s{ta}, s{sHP}, s{sX}
    s_lshl_b32 s{tb}, s{ta}, 17
    s_lshl_b32 s{tc}, s{sZ}, 12
    s_add_u32 s{tb}, s{tb}, s{tc}
    s_add_u32 s{sKVb}, s{pWs}, s{tb}
    s_addc_u32 s{sKVb+1}, s{pWs+1}, 0
    s_lshl_b32 s{sJ}, s{sRB}, 13
    s_lshl1_add_u32 s{tb}, s{sRB}, s{sZ}
    s_lshl_b32 s{tb}, s{tb}, 6
    s_add_u32 s{tb}, s{tb}, s{ta}
    s_lshl_b32 s{tb}, s{tb}, 10
    s_add_u32 s{tb}, s{tb}, {WS_OF}
    v_add_u32 v{vOA}, s{tb}, v{vKA}
    v_add_u32 v{vOB}, 0x8000, v{vOA}
    s_mul_i32 s{ta}, s{sW}, {REDS}
    s_add_u32 s{ta}, s{ta}, {RED}
    v_add_u32 v{vRW}, s{ta}, v{vKA}
    v_lshl_add_u32 v{vRWl}, v1, 2, s{ta}
    s_xor_b32 s{ta}, s{sW}, 2
    s_mul_i32 s{ta}, s{ta}, {REDS}
    s_add_u32 s{ta}, s{ta}, {RED}
    v_add_u32 v{vRR}, s{ta}, v{vKA}
    v_lshl_add_u32 v{vRRl}, v1, 2, s{ta}
    s_lshl_b32 s{ta}, s{sRB}, 4
    s_add_u32 s{ta}, s{ta}, {F2}
    s_add_u32 s{tb}, s{ta}, s{sHP}
    s_lshl_b32 s{tb}, s{tb}, {FSH}
    v_mov_b32 v{vF2}, s{tb}
    v_mov_b32 v{vOne}, 1
    v_and_b32 v3, 15, v1
    v_add_u32 v2, s{ta}, v3
    v_lshlrev_b32 v{vF2P}, {FSH}, v2
    s_and_b32 s{tb}, s{sHP}, 3
    s_lshl2_add_u32 s{ta}, s{sRB}, s{tb}
    s_lshl_b32 s{ta}, s{ta}, 15
    s_add_u32 s{ta}, s{ta}, {WS_OF}
    v_add_u32 v{vOD}, s{ta}, v{vKA}
    v_mov_b32 v{vIDX}, 0xdddddddd
    v_and_b32 v2, 27, v1
    v_cmp_eq_u32 vcc, 16, v2
    v_mov_b32 v2, {CNT+32}
    v_mov_b32 v{vZer}, {CNT+16}
    s_mov_b32 s{sMask}, 0x0000ffff
    s_mov_b32 s{sMask+1}, 0x0000ffff
    v_cndmask_b32 v{vOnes}, v{vZer}, v2, vcc
    s_mov_b32 s{sCnt}, 8
    """)
    def kvaddr():
        return [f"s_add_u32 s{sJ}, s{sJ}, 0x2000", f"s_and_b32 s{sJ}, s{sJ}, 0x1e000",
                f"s_add_u32 s{sKV}, s{sKVb}, s{sJ}", f"s_addc_u32 s{sKV+1}, s{sKVb+1}, 0"]
    E(kvaddr())
    def reads(n):
        i, s = n >> 2, n & 3
        slot = i % NS
        a = vWA + (slot >> 1); so = (slot & 1) * SLOT + s * WPART
        f = vFB + 8 * (n % 3)
        o = [f"ds_read_b128 {vr(vXF+4*n,4)}, v{vXA+s} offset:{slot*SLOT}"]
        for c in range(2):
            o.append(f"ds_read_b64_tr_b16 {vr(f+4*c,2)}, v{a} offset:{so+1024*c}")
            o.append(f"ds_read_b64_tr_b16 {vr(f+2+4*c,2)}, v{a} offset:{so+1024*c+256}")
        return o
    def dmaq(h):
        return [[f"s_add_u32 s{sT}, s{sROT}, {i}", f"s_and_b32 s{sT}, s{sT}, 7", f"s_add_u32 m0, s{sXO}, {WQ+4096*i}",
                 f"s_mul_i32 s{sWO}, s{sT}, 196608", f"buffer_load_dwordx4 v{vWD+1}, {sr(SRDW,4)}, s{sWO} offen lds"] for i in range(4*h, 4*h+4)]
    E(f"v_subrev_u32 v{vWD+1}, 1024, v{vWD}")
    if held:
        E(f"s_waitcnt vmcnt({OPT['d1'] + 6 - OPT['d1w']})")
        for g in held: E(g)
    E("s_waitcnt vmcnt(6)")
    if STAMP == 5: stamp("m")
    E("s_barrier")
    stamp("m")
    E(reads(0) + reads(1))
    pend = dma(2)
    E(pend.pop(0)); E(pend.pop(0))
    for n in range(32):
        f = vFB + 8 * (n % 3); x = vXF + 4 * n
        c = (lambda a: "0" if n == 0 else vr(a, 16))
        m = [f"v_mfma_f32_32x32x16_bf16 {vr(aV,16)}, {vr(x,4)}, {vr(f+4,4)}, {c(aV)}",
             f"v_mfma_f32_32x32x16_bf16 {vr(aK,16)}, {vr(f,4)}, {vr(x,4)}, {c(aK)}"]
        r = reads(n + 2) if n + 2 < 32 else []
        E(f"s_waitcnt lgkmcnt({5 if n < 31 else 0})")
        E(m[0])
        if (n + 2) % 4 == 0 and n + 2 < 32:
            b = (n + 2) >> 2
            assert not pend
            E(f"s_waitcnt vmcnt({6 if b < 7 else 4}) lgkmcnt(0)")
            if STAMP == 3: stamp("m")
            E("s_barrier")
            if STAMP == 2: stamp("m")
            if b + 2 <= 7: pend = dma(b + 2)
            else:
                pend = dmaq(b - 6)
                if b == 6: E(f"s_lshl_b32 s{sXO}, s{sW}, 10")
        E(r[:3])
        if pend: E(pend.pop(0))
        E(m[1]); E(r[3:])
        if pend: E(pend.pop(0))
    stamp("m")
    ep = [f"v_cvt_pk_bf16_f32 v{vP+j}, v{aK+2*j}, v{aK+1+2*j}" for j in range(4)]
    ep += [f"global_store_dwordx4 v{vSA}, {vr(vP,4)}, {sr(pWs,2)} sc1"]
    ep += [f"v_cvt_pk_bf16_f32 v{vP+j}, v{aK+2*j}, v{aK+1+2*j}" for j in range(4, 8)]
    ep += [f"global_store_dwordx4 v{vSB}, {vr(vP+4,4)}, {sr(pWs,2)} sc1"]
    ep += [f"v_permlane32_swap_b32 v{vP+8+a}, v{vP+10+a}" for a in (0, 1)]
    ep += [f"global_store_dwordx4 v{vSV}, {vr(vP+8,4)}, {sr(pWs,2)} offset:1024 sc1"]
    ep += [f"v_permlane32_swap_b32 v{vP+8+a}, v{vP+10+a}" for a in (4, 5)]
    ep += [f"global_store_dwordx4 v{vSV}, {vr(vP+12,4)}, {sr(pWs,2)} offset:1536 sc1"]
    LQ = OPT["lq"]
    qb = [40, 44, 24, 28, 32, 36, 64, 68, 72]
    def qread(n):
        f = qb[n % 9]
        return [f"ds_read_b64_tr_b16 {vr(f,2)}, v{vQA} offset:{1024*n}", f"ds_read_b64_tr_b16 {vr(f+2,2)}, v{vQA} offset:{1024*n+256}"]
    E("s_nop 10")
    for j in range(8):
        E(f"v_cvt_pk_bf16_f32 v{vP+8+j}, v{aV+2*j}, v{aV+1+2*j}")
    cut = OPT["epc"]
    E(ep[:cut])
    E(f"s_waitcnt vmcnt({4 + sum('store' in x for x in ep[:cut])})\ns_barrier")
    if STAMP == 4: stamp("m")
    for n in range(LQ): E(qread(n))
    E(ep[cut:])
    late = [f"ds_read_b128 {vr(vO+16*q+8+4*e,4)}, v{vZer}" for q in range(4) for e in range(2)]
    late += [f"ds_write_b128 v{vEW}, {vr(vP+4*j,4)} offset:{2048+1024*j}" for j in range(4)]
    late += [f"ds_read_b128 {vr(vKV+12*st+4+4*e,4)}, v{vOnes}" for st in range(4) for e in range(2)]
    nl = 0
    for n in range(32):
        E(f"s_waitcnt lgkmcnt({min(15, 2*min(LQ-1, 31-n) + nl)})")
        E(f"v_mfma_f32_32x32x16_bf16 {vr(aQ,16)}, {vr(qb[n%9],4)}, {vr(vXF+4*n,4)}, {'0' if n == 0 else vr(aQ,16)}")
        if n == OPT["ackn"]:
            if STAMP == 4: stamp("m")
            E("s_waitcnt vmcnt(0)\ns_barrier")
            if STAMP == 4: stamp("m")
        if n + LQ < 32:
            if n + LQ == 16:
                if STAMP == 4: stamp("m")
                E("s_waitcnt vmcnt(4)\ns_barrier")
                if STAMP == 4: stamp("m")
            E(qread(n + LQ))
        else:
            E(late[:2]); late = late[2:]; nl += 2
        r0 = vXF + 4 * (n - 1)
        for r in range(r0, r0 + 4):
            if n >= 1 and r < vKV and (r - vO) % 16 < 8: E(f"v_mov_b32 v{r}, 0")
    E(late)
    E(f"s_nop {max(0, 11 - len(late))}")
    for o in (0, 1):
        for j in range(8):
            E(f"v_mul_f32 v{aQ+8*o+j}, s{sQS}, v{aQ+8*o+j}")
        for j in range(4):
            E(f"v_cvt_pk_bf16_f32 v{aK+4*o+j}, v{aQ+8*o+2*j}, v{aQ+8*o+1+2*j}")
        E(f"ds_write_b128 v{vEW}, {vr(aK+4*o,4)} offset:{1024*o}")
    if STAMP == 4: stamp("m"); E("s_waitcnt vmcnt(0)"); stamp("m")
    E("s_waitcnt vmcnt(0) lgkmcnt(0)\ns_barrier")
    stamp("m")
    E(f"""
    ds_read_b128 {vr(vQ,4)}, v{vER1}
    ds_read_b128 {vr(vKV,4)}, v{vER0} offset:2048
    ds_read_b128 {vr(vQ+4,4)}, v{vER1} offset:6144
    s_mov_b64 exec, {sr(sMask,2)}
    ds_read_b128 {vr(vKV+4,4)}, v{vERV} offset:4096
    ds_read_b128 {vr(vKV+8,4)}, v{vERV} offset:5120
    ds_read_b128 {vr(vKV+16,4)}, v{vERV} offset:{4096+6144}
    ds_read_b128 {vr(vKV+20,4)}, v{vERV} offset:{5120+6144}
    s_mov_b64 exec, -1
    ds_read_b128 {vr(vQ+8,4)}, v{vER0}
    ds_read_b128 {vr(vQ+12,4)}, v{vER0} offset:6144
    ds_read_b128 {vr(vKV+12,4)}, v{vER0} offset:{2048+6144}
    s_waitcnt lgkmcnt(8)
    v_mfma_f32_32x32x16_bf16 {vr(SA,16)}, {vr(vKV,4)}, {vr(vQ,4)}, 0
    s_nop 10
    s_waitcnt lgkmcnt(0)
    """)
    def kload(st, par):
        return [f"global_load_dwordx4 {vr(vKV+12*st,4)}, v{vKA}, {sr(sKV,2)} offset:{par*2048} sc1"]
    def vload(st, par):
        return [f"s_mov_b64 exec, {sr(sMask,2)}",
                f"global_load_dwordx4 {vr(vKV+12*st+4,4)}, v{vVA}, {sr(sKV,2)} offset:{par*2048+1024} sc1",
                f"global_load_dwordx4 {vr(vKV+12*st+8,4)}, v{vVA}, {sr(sKV,2)} offset:{par*2048+1536} sc1",
                "s_mov_b64 exec, -1"]
    def step(t, q, mode="loop", lo=0, hi=16, extra=None):
        cur, oth = (SA, SB) if q % 2 == 0 else (SB, SA)
        tp, qp = (t, q - 1) if q else ((t - 1) % 4, 3)
        tn, qn = (t, q + 1) if q < 3 else ((t + 1) % 4, 0)
        after2, afterq, after1 = extra or ([], [], [])
        st = (t + 3) % 4; par = (t + 3) & 1
        if mode == "loop":
            if q == 0:
                after2 = vload(st, par); afterq = kload(st, par)
            if q == 1 and par == 1:
                ka = kvaddr(); after2 = ka[:2]; after1 = ka[2:]
            if q == 3:
                after2 = ["s_waitcnt vmcnt(6)"]
                if t == 2:
                    after2 += [f"s_sub_u32 s{sCnt}, s{sCnt}, 1"]; afterq = [f"s_cmp_lg_u32 s{sCnt}, 0"]
        for i in range(lo, hi):
            E(f"v_exp_f32 v{cur+i}, v{cur+i}")
            if i == 1 and not (mode == "first" and q == 0):
                E(f"v_smfmac_f32_32x32x32_bf16 {vr(vO+16*qp,16)}, {vr(vKV+12*tp+8,4)}, {vr(oth+8,8)}, v{vIDX}")
                E(after2)
            if i == 4 and not (mode == "last" and q == 3):
                E(f"v_mfma_f32_32x32x16_bf16 {vr(oth,16)}, {vr(vKV+12*tn,4)}, {vr(vQ+4*qn,4)}, 0")
                E(afterq)
            if i == 10:
                E(f"v_smfmac_f32_32x32x32_bf16 {vr(vO+16*q,16)}, {vr(vKV+12*t+4,4)}, {vr(cur,8)}, v{vIDX}")
                E(after1)
    for q in range(4): step(0, q, "first")
    E("s_barrier")
    stamp("m")
    E(kload(2, 0) + vload(2, 0) + vload(3, 1) + kload(3, 1) + kvaddr())
    E("s_branch L_attn1\n.p2align 3\nL_attn:")
    step(2, 3, lo=11)
    for t in (3, 0, 1, 2):
        if t == 1: E("L_attn1:")
        for q in range(4): step(t, q, hi=(11 if (t, q) == (2, 3) else 16))
    if OPT.get("itst"):
        E(f"s_memtime s[90:91]\ns_mov_b32 m0, s{sCnt}\ns_waitcnt lgkmcnt(0)\nv_writelane_b32 v23, s90, m0")
    E("s_cbranch_scc1 L_attn")
    step(2, 3, lo=11)
    vR = 64
    def sendw(q): return [f"ds_write_b128 v{vRW}, {vr(vO+16*q,4)} offset:{2048*q}", f"ds_write_b128 v{vRW}, {vr(vO+16*q+4,4)} offset:{2048*q+1024}",
                          f"ds_write_b32 v{vRWl}, v{vO+16*q+8} offset:{4096+256*q}"]
    recv = ["s_waitcnt lgkmcnt(0)", "s_barrier",
            f"ds_read_b32 v{vR+16}, v{vRRl} offset:4096", f"ds_read_b128 {vr(vR,4)}, v{vRR}", f"ds_read_b128 {vr(vR+4,4)}, v{vRR} offset:1024",
            f"ds_read_b32 v{vR+17}, v{vRRl} offset:4352", f"ds_read_b128 {vr(vR+8,4)}, v{vRR} offset:2048", f"ds_read_b128 {vr(vR+12,4)}, v{vRR} offset:3072"]
    step(3, 0, "last"); step(3, 1, "last")
    w0 = sendw(0)
    step(3, 2, "last", extra=(w0[:1], w0[1:2], w0[2:]))
    step(3, 3, "last", extra=(sendw(1), [], recv))
    O2, O3 = vO + 32, vO + 48
    E(f"""
    s_waitcnt lgkmcnt(3)
    v_add_f32 v{O2+8}, v{O2+8}, v{vR+16}
    v_smfmac_f32_32x32x32_bf16 {vr(O3,16)}, {vr(vKV+36+8,4)}, {vr(SB+8,8)}, v{vIDX}
    """)
    stamp("m")
    def fin(o, r, rl, dst, addr):
        if rl is not None: E(f"v_add_f32 v{o+8}, v{o+8}, v{rl}")
        E(f"v_rcp_f32 v{vT}, v{o+8}")
        if r is not None:
            for j in range(8): E(f"v_add_f32 v{o+j}, v{o+j}, v{r+j}")
        else:
            E("s_nop 0")
        for j in range(8): E(f"v_mul_f32 v{o+j}, v{o+j}, v{vT}")
        for j in range(4): E(f"v_cvt_pk_bf16_f32 v{dst+j}, v{o+2*j}, v{o+2*j+1}")
        E(f"global_store_dwordx4 v{addr}, {vr(dst,4)}, {sr(pWs,2)} sc1")
    fin(O2, vR, None, SA, vOA)
    E("s_waitcnt lgkmcnt(0)")
    fin(O3, vR + 8, vR + 17, SA + 4, vOB)
    E(f"""
    s_mov_b32 s{ta}, {fbits(2.0**-30)}
    s_mov_b32 s{tb}, {fbits(2.0**50)}
    v_min_f32 v{vT+6}, v{O2+8}, v{O3+8}
    v_max_f32 v{vT+7}, v{O2+8}, v{O3+8}
    v_cmp_lt_f32 vcc, s{ta}, v{vT+6}
    v_cmp_gt_f32 {sr(tc,2)}, s{tb}, v{vT+7}
    v_pk_mul_f32 {vr(vT+2,2)}, {vr(O2,2)}, 0 op_sel_hi:[1,0]
    s_and_b64 {sr(tc,2)}, {sr(tc,2)}, vcc
    """)
    for j in (2, 4, 6, 16, 18, 20, 22):
        E(f"v_pk_fma_f32 {vr(vT+2,2)}, {vr(O2+j,2)}, 0, {vr(vT+2,2)} op_sel_hi:[1,0,1]")
    E(f"""
    v_cmp_o_f32 vcc, v{vT+2}, v{vT+3}
    s_nop 1
    s_and_b64 vcc, {sr(tc,2)}, vcc
    s_cmp_eq_u64 vcc, -1
    s_cbranch_scc0 L_safe
    L_pub:
    s_waitcnt vmcnt(0)
    s_barrier
    """)
    stamp("m")
    E(f"s_cmp_lg_u32 s{sW}, 0\ns_cbranch_scc1 L_mdone")
    put_flag(vF2, vOne)
    E("s_waitcnt vmcnt(0)")
    poll_global(vF2P, pFL, 2)
    E(f"s_mov_b32 s{sKV}, s{pWs}\ns_mov_b32 s{sKV+1}, s{pWs+1}")
    for g in range(8):
        E(f"s_mov_b32 m0, {OFL+4096*g}")
        if g: E(f"s_add_u32 s{sKV}, s{sKV}, 4096\ns_addc_u32 s{sKV+1}, s{sKV+1}, 0")
        else: E("s_nop 0")
        for j in range(4):
            E(f"global_load_lds_dwordx4 v{vOD}, {sr(sKV,2)} offset:{1024*j} sc1")
    for n in (24, 16, 8, 0):
        E(f"s_waitcnt vmcnt({n})\ns_barrier")
    if SPM >= 0:
        E("s_branch L_mdone2\nL_mdone:\ns_barrier\ns_barrier\ns_barrier\ns_barrier\nL_mdone2:")
    else:
        E("L_mdone:")
    stamp_flush("m"); spin_end("m")
    if OPT.get("itst"):
        E(f"v_lshl_add_u32 v2, v1, 2, v2\nv_add_u32 v2, 0x100000, v2\ns_mov_b64 exec, 0xff\nglobal_store_dword v2, v23, {sr(pWs,2)}")
    E("s_endpgm")
    vM, vC = vT + 6, 64
    vQ += 8; vO += 32
    E(f"""
    L_safe:
    s_waitcnt vmcnt(0)
    s_lshl_b32 s{ta}, s{sZ}, 12
    s_sub_u32 s{sKVb}, s{sKVb}, s{ta}
    s_subb_u32 s{sKVb+1}, s{sKVb+1}, 0
    s_mov_b32 s{sKV}, s{sKVb}
    s_mov_b32 s{sKV+1}, s{sKVb+1}
    s_mov_b32 s{sCnt}, 64
    v_mov_b32 v{vM}, 0xff800000
    v_mov_b32 v{vM+1}, 0xff800000
    L_safe1:
    global_load_dwordx4 {vr(vKV,4)}, v{vKA}, {sr(sKV,2)} sc1
    s_add_u32 s{sKV}, s{sKV}, 2048
    s_addc_u32 s{sKV+1}, s{sKV+1}, 0
    s_waitcnt vmcnt(0)
    v_mfma_f32_32x32x16_bf16 {vr(SA,16)}, {vr(vKV,4)}, {vr(vQ,4)}, 0
    v_mfma_f32_32x32x16_bf16 {vr(SB,16)}, {vr(vKV,4)}, {vr(vQ+4,4)}, 0
    s_nop 15
    """)
    for j in range(8):
        E(f"v_max3_f32 v{vM}, v{SA+2*j}, v{SA+2*j+1}, v{vM}\nv_max3_f32 v{vM+1}, v{SB+2*j}, v{SB+2*j+1}, v{vM+1}")
    E(f"""
    s_sub_u32 s{sCnt}, s{sCnt}, 1
    s_cmp_lg_u32 s{sCnt}, 0
    s_cbranch_scc1 L_safe1
    v_mov_b32 v{SA}, v{vM}
    v_mov_b32 v{SB}, v{vM+1}
    s_nop 1
    v_permlane32_swap_b32 v{SA}, v{vM}
    v_permlane32_swap_b32 v{SB}, v{vM+1}
    s_nop 1
    v_max_f32 v{vM}, v{vM}, v{SA}
    v_max_f32 v{vM+1}, v{vM+1}, v{SB}
    """)
    for j in range(16):
        E(f"v_sub_f32 v{vC+j}, 0, v{vM}\nv_sub_f32 v{vC+16+j}, 0, v{vM+1}\nv_mov_b32 v{vO+j}, 0\nv_mov_b32 v{vO+16+j}, 0")
    E(f"""
    s_mov_b32 s{sKV}, s{sKVb}
    s_mov_b32 s{sKV+1}, s{sKVb+1}
    s_mov_b32 s{sCnt}, 64
    L_safe2:
    """)
    E(kload(0, 0) + vload(0, 0))
    E(f"""
    s_add_u32 s{sKV}, s{sKV}, 2048
    s_addc_u32 s{sKV+1}, s{sKV+1}, 0
    s_waitcnt vmcnt(0)
    v_mfma_f32_32x32x16_bf16 {vr(SA,16)}, {vr(vKV,4)}, {vr(vQ,4)}, {vr(vC,16)}
    v_mfma_f32_32x32x16_bf16 {vr(SB,16)}, {vr(vKV,4)}, {vr(vQ+4,4)}, {vr(vC+16,16)}
    s_nop 15
    """)
    for j in range(32):
        E(f"v_exp_f32 v{SA+j}, v{SA+j}")
    E(f"""
    s_nop 1
    v_smfmac_f32_32x32x32_bf16 {vr(vO,16)}, {vr(vKV+4,4)}, {vr(SA,8)}, v{vIDX}
    v_smfmac_f32_32x32x32_bf16 {vr(vO,16)}, {vr(vKV+8,4)}, {vr(SA+8,8)}, v{vIDX}
    v_smfmac_f32_32x32x32_bf16 {vr(vO+16,16)}, {vr(vKV+4,4)}, {vr(SB,8)}, v{vIDX}
    v_smfmac_f32_32x32x32_bf16 {vr(vO+16,16)}, {vr(vKV+8,4)}, {vr(SB+8,8)}, v{vIDX}
    s_sub_u32 s{sCnt}, s{sCnt}, 1
    s_cmp_lg_u32 s{sCnt}, 0
    s_cbranch_scc1 L_safe2
    s_nop 15
    """)
    fin(O2, None, None, SA, vOA); fin(O3, None, None, SA + 4, vOB)
    E("s_branch L_pub")

def helper_wave():
    sH, sC, sMH, sRT, sCB, sD = sT, sT + 1, sT + 2, sT + 3, sT + 4, sT + 5
    sLd, sDs = sT + 6, sT + 7
    t0 = sT + 8
    sLead, sWst = 92, 93
    sAT = 100
    vGW = 156
    vGWA = 155
    vXF = 160
    vG, vGA0, vGA1 = 164, 165, 166
    vU = 168
    vF4, vF4P, vWqP, vWqG, vRdy, vF1, vF1P = range(141, 148)
    sWq = 94
    vTA, vTS = 148, 152
    sUW = sT + 13
    assert NS == 3
    vPar = 4
    E(f"""
    L_helper:
    s_lshr_b32 s{sC}, s{sH}, 1
    s_add_u32 s{sD}, s{sCH}, s{sC}
    s_and_b32 s{sRT}, s{sHP}, 3
    s_lshr_b32 s{sCB}, s{sHP}, 2
    v_lshrrev_b32 v3, 5, v1
    v_lshlrev_b32 v3, 4, v3
    s_lshl_b32 s{t0+2}, s{sROT}, 2
    s_add_u32 s{t0+2}, s{t0+2}, s{sH}
    s_lshl_b32 s{t0+2}, s{t0+2}, 5
    s_add_u32 s{t0+2}, s{t0+2}, {GW}
    v_add_u32 v{vGWA}, s{t0+2}, v3
    v_mov_b32 v12, 0
    v_mov_b32 v13, 0
    v_mov_b32 v14, 0
    v_mov_b32 v15, 0
    s_cmp_lt_u32 s2, 16
    s_cselect_b32 s{sLead}, s{sW}, 0
    """)
    E(f"s_add_u32 s{pFL}, s{pWs}, {WS_FL}\ns_addc_u32 s{pFL+1}, s{pWs+1}, 0")
    def claim_kv():
        E(f"""
        s_lshl2_add_u32 s{t0}, s{sRB}, s{sH}
        s_lshl_b32 s{t0}, s{t0}, 11
        s_lshl_b32 s{t0+1}, s{sHP}, 18
        s_add_u32 s{t0}, s{t0}, s{t0+1}
        """)
        if OPT["clm"] in (1, 3):
            E(f"""
            v_and_b32 v10, 31, v1
            v_lshl_add_u32 v10, v10, 6, s{t0}
            v_lshrrev_b32 v11, 5, v1
            v_lshl_add_u32 v10, v11, 17, v10
            global_store_dword v10, v12, {sr(pWs,2)} sc1
            """)
        else:
            E(f"""
            v_lshl_add_u32 v10, v1, 4, s{t0}
            v_add_u32 v11, 0x20000, v10
            global_store_dwordx4 v10, v[12:15], {sr(pWs,2)} sc1
            global_store_dwordx4 v10, v[12:15], {sr(pWs,2)} offset:1024 sc1
            global_store_dwordx4 v11, v[12:15], {sr(pWs,2)} sc1
            global_store_dwordx4 v11, v[12:15], {sr(pWs,2)} offset:1024 sc1
            """)
    NCL = {0: 0, 1: 1, 2: 4, 3: 0}[OPT["clm"]]
    if NCL: claim_kv()
    stamp("h")
    E(f"""
    s_mul_i32 s{t0}, s{sC}, {URS}
    s_add_u32 s{t0}, s{t0}, {UR+4096}
    v_lshl_add_u32 v10, v1, 4, s{t0}
    v_and_b32 v11, 1, v1
    v_lshlrev_b32 v11, 4, v11
    v_cmp_gt_u32 vcc, 30, v1
    v_add_u32 v11, {CNT}, v11
    v_mov_b32 v2, 0x3f803f80
    v_cndmask_b32 v10, v11, v10, vcc
    ds_write_b128 v10, v[12:15]
    v_and_b32 v11, 3, v1
    v_lshlrev_b32 v11, 2, v11
    ds_write_b32 v11, v2 offset:{CNT+32}
    """)
    vWA, vRA = 16, 17
    if "prio1" in OPT: E(f"s_setprio {OPT['prio1']}")
    E(f"""
    s_mul_i32 s{t0}, s{sRT}, {WPART}
    s_add_u32 s{t0}, s{t0}, {RING}
    v_and_b32 v10, 31, v1
    v_lshl_add_u32 v10, v10, 7, s{t0}
    v_bfe_u32 v11, v1, 1, 3
    v_lshrrev_b32 v3, 5, v1
    v_xor_b32 v11, v11, v3
    s_lshl_b32 s{t0}, s{sH}, 1
    v_xor_b32 v11, s{t0}, v11
    v_lshl_add_u32 v{vGA0}, v11, 4, v10
    v_mov_b32 v{vG}, 0
    """)
    if not OPT["gath"]: E(f"""
    s_lshr_b32 s{sUW}, s{sHP}, 1
    s_sub_u32 s{sUW}, s{sUW}, s{sROT}
    s_and_b32 s{sUW}, s{sUW}, 7
    s_mul_i32 s{t0}, s{sUW}, 11
    s_lshr_b32 s{t0}, s{t0}, 5
    s_mul_i32 s{t0}, s{t0}, 3
    s_sub_u32 s{t0}, s{sUW}, s{t0}
    s_mul_i32 s{t0}, s{t0}, {SLOT}
    s_mul_i32 s{t0+1}, s{sH}, {WPART}
    s_add_u32 s{t0}, s{t0}, s{t0+1}
    s_add_u32 s{t0}, s{t0}, {RING}
    v_and_b32 v10, 3, v1
    v_bfe_u32 v11, v1, 2, 2
    v_lshlrev_b32 v10, 3, v10
    v_sub_u32 v10, v10, v11
    v_add_u32 v10, 7, v10
    v_bfe_u32 v11, v10, 1, 3
    v_xor_b32 v11, v11, v3
    s_and_b32 s{t0+1}, s{sHP}, 1
    s_lshl_b32 s{t0+1}, s{t0+1}, 2
    v_xor_b32 v11, s{t0+1}, v11
    v_lshlrev_b32 v11, 4, v11
    v_lshl_add_u32 v11, v10, 7, v11
    v_bfe_u32 v10, v1, 4, 1
    v_lshl_add_u32 v11, v10, 3, v11
    v_add_u32 v{vTA}, s{t0}, v11
    v_xor_b32 v{vTA+1}, 32, v{vTA}
    v_subrev_u32 v{vTA+2}, 512, v{vTA}
    v_subrev_u32 v{vTA+3}, 512, v{vTA+1}
    """)
    E(f"""
    s_mul_i32 s{t0}, s{sH}, {KGS}
    s_add_u32 s{t0}, s{t0}, {KG}
    s_mov_b32 m0, s{t0}
    v_and_b32 v10, 31, v1
    v_mul_u32_u24 v10, 272, v10
    v_lshl_add_u32 v10, v3, 4, v10
    v_add_u32 v{vRA}, s{t0}, v10
    s_mul_i32 s{t0}, s{sC}, {2*KGS}
    s_add_u32 s{t0}, s{t0}, {KG+KGS}
    v_lshl_add_u32 v{vWA}, v1, 4, s{t0}
    """)
    K = []
    def k(s, c=None):
        if isinstance(s, list): s = "\n".join(s)
        for x in s.split("\n"):
            x = x.strip()
            if not x: continue
            cc = c if c is not None else (8 if any(t in x for t in ("v_exp", "v_sin", "v_cos", "v_rcp", "ds_")) else 4)
            K.append((cc, x))
    va, vb, vt = 220, 221, 222
    log2e = math.log2(math.e)
    c_hi = struct.unpack("<f", struct.pack("<f", log2e))[0]
    c_lo = log2e - c_hi
    k(f"""
    s_waitcnt lgkmcnt(0)
    s_lshl_b32 s{t0}, s{sC}, 4
    s_lshr_b32 s{sLd}, s{sLd}, s{t0}
    s_lshl_b32 s{sLd}, s{sLd}, 16
    s_lshr_b32 s{sDs}, s{sDs}, s{t0}
    s_lshl_b32 s{sDs}, s{sDs}, 16
    s_mov_b32 s{t0}, {fbits(c_hi)}
    v_mov_b32 v{vt}, s{sLd}
    v_mul_f32 v{vt+1}, s{t0}, v{vt}
    v_fma_f32 v{vt+2}, v{vt}, s{t0}, -v{vt+1}
    v_fmac_f32 v{vt+2}, {fbits(c_lo)}, v{vt}
    v_exp_f32 v{vt+1}, v{vt+1}
    v_mul_f32 v{vt+2}, {fbits(math.log(2.0))}, v{vt+2}
    v_fma_f32 v{vt+1}, v{vt+1}, v{vt+2}, v{vt+1}
    v_cvt_pk_bf16_f32 v{vt+1}, v{vt+1}, v{vt+1}
    v_lshlrev_b32 v{vt}, 16, v{vt+1}
    s_waitcnt vmcnt({1+NCL})
    """)
    for j in range(6):
        k(f"v_lshlrev_b32 v{vPar+j}, 16, v{vPar+j}")
    k(f"""
    v_mul_f32 v{va}, v{vt}, v{vPar}
    v_mul_f32 v{vb}, v{vt}, v{vPar+1}
    v_mul_f32 v{vPar+2}, v{vt}, v{vPar+2}
    v_mul_f32 v{vPar+3}, v{vt}, v{vPar+3}
    v_mul_f32 v{va}, {fbits(c_hi)}, v{va}
    v_mul_f32 v{vb}, 0.15915494, v{vb}
    """)
    pkm = [OPT["pk0"]]
    def cmul(z, x, w):
        if pkm[0]:
            return [f"v_pk_mul_f32 {vr(z,2)}, {vr(x,2)}, {vr(w,2)} op_sel_hi:[0,1]",
                    f"v_pk_fma_f32 {vr(z,2)}, {vr(x,2)}, {vr(w,2)}, {vr(z,2)} op_sel:[1,1,0] op_sel_hi:[1,0,1] neg_lo:[1,0,0]"]
        return [f"v_mul_f32 v{z}, v{x}, v{w}\nv_mul_f32 v{z+1}, v{x}, v{w+1}",
                f"v_fma_f32 v{z}, -v{x+1}, v{w+1}, v{z}\nv_fmac_f32 v{z+1}, v{x+1}, v{w}"]
    def cmuls(lst):
        cm = [cmul(*a) for a in lst]
        k([c[0] for c in cm]); k([c[1] for c in cm])
    def direct(z, x):
        k(f"""
        v_mul_f32 v{vt+2}, {fbits(x)}, v{vb}
        v_mul_f32 v{vt+1}, {fbits(x)}, v{va}
        v_fract_f32 v{vt+2}, v{vt+2}
        v_exp_f32 v{vt+1}, v{vt+1}
        v_cos_f32 v{z}, v{vt+2}
        v_sin_f32 v{z+1}, v{vt+2}
        s_nop 0
        v_mul_f32 v{z}, v{z}, v{vt+1}
        v_mul_f32 v{z+1}, v{z+1}, v{vt+1}
        """)
    E1, E32, E256 = 226, 228, 230
    vE = 232
    vPk = 64
    npk = [0]
    DW = {False: [], True: []}
    def puts(lst, neg):
        for z, rows in lst:
            p = vPk + npk[0]; npk[0] += 1
            k(f"v_cvt_pk_bf16_f32 v{p}, v{z}, {'-' if neg else ''}v{z+1}")
            DW[neg] += [f"ds_write_addtid_b32 v{p} offset:{272*r}" for r in rows]
    def e(j): return vE + 2 * (j % 8)
    direct(e(1), 8.0); direct(E32, 32.0)
    k(f"v_mov_b32 v{e(0)}, 1.0\nv_mov_b32 v{e(0)+1}, 0\nv_mov_b32 v{e(4)}, v{E32}\nv_mov_b32 v{e(4)+1}, v{E32+1}")
    cmuls([(e(2), e(1), e(1)), (e(5), e(1), E32)])
    cmuls([(e(3), e(2), e(1)), (e(6), e(2), E32)])
    cmuls([(e(7), e(3), E32)])
    puts([(e(j), [j]) for j in range(4)], False)
    for j0 in range(4, 32, 4):
        if j0 + 4 < 32: cmuls([(e(j + 4), e(j), E32) for j in range(j0, j0 + 4)])
        puts([(e(j), [j]) for j in range(j0, j0 + 4)], False)
    vEF, vGF, vD = 192, 224, 176
    direct(E1, 1.0); direct(E256, 256.0)
    def row(r, h): return 8 * (r >> 2) + 4 * h + (r & 3)
    vGv = 192
    g = {x: vGv + 2 * x for x in range(9)}
    E2 = e(0)
    cmuls([(g[0], vPar + 4, vPar + 2), (E2, E1, E1)])
    cmuls([(g[1], g[0], E1), (g[2], g[0], E2)])
    cmuls([(g[3], g[1], E2), (g[4], g[2], E2)])
    puts([(g[x], [row(x, 0)]) for x in range(4)], True)
    cmuls([(g[5], g[3], E2), (g[6], g[4], E2)])
    cmuls([(g[7], g[5], E2), (g[8], g[6], E2)])
    puts([(g[x], [row(x, 0)]) for x in range(4, 8)], True)
    A = {o: vGv + 18 + 2 * i for i, o in enumerate((0, 2, 4, 6, 8))}
    cmuls([(A[o], g[o], E256) for o in (0, 2, 4, 6, 8)])
    puts([(A[o], [row(r, 1) for r in rs]) for o, rs in ((0, (0, 1)), (2, (2,)), (4, (3, 4, 5)), (6, (6,)), (8, (7,)))], True)
    src, dst = A, g
    for os_, r0, h in (((0, 4, 8), 8, 0), ((0, 4, 8), 8, 1), ((0, 8), 11, 0), ((0, 8), 11, 1), ((0, 8), 13, 0), ((0, 8), 13, 1)):
        cmuls([(dst[o], src[o], E256) for o in os_])
        puts([(dst[o], [row(r0 + i, h)]) for i, o in enumerate(os_)], True)
        src, dst = dst, src
    def D1(): E(DW[False] + [f"ds_read_b128 {vr(vEF+4*s,4)}, v{vRA} offset:{32*s}" for s in range(8)])
    def D2(): E(DW[True] + [f"ds_read_b128 {vr(vGF+4*s,4)}, v{vRA} offset:{32*s}" for s in range(8)])
    PL = [int(c) for c in "%05d" % OPT["pl"]]
    psync = PL[2] == PL[3]
    def D3():
        E("s_waitcnt lgkmcnt(0)")
        for s in range(8):
            E(f"v_mfma_f32_32x32x16_bf16 {vr(vD,16)}, {vr(vGF+4*s,4)}, {vr(vEF+4*s,4)}, {'0' if s == 0 else vr(vD,16)}")
        lx = newlab("nx")
        E(f"s_nop 9\ns_cmp_eq_u32 s{sMH}, 0\ns_cbranch_scc1 {lx}")
        for j in range(4):
            E(f"ds_write_b128 v{vWA}, {vr(vD+4*j,4)} offset:{1024*j}")
        if psync: lds_arrive(vCP, vOne)
        E(f"s_waitcnt lgkmcnt(0)\n{lx}:")
    (vCA, vCP, vOne, vTm, vAA, vBA, vUW, vCW, vCR, vAT, vF3, vWoG, vWoL, vF3P, vAL, vOut, vg, vomg, vOL, vGPw, vGPr, vWoP, vUL, vClO) = range(24, 48)
    vA = 48; vAcc = 96
    ADDR = f"""
    s_lshr_b32 s{t0}, s2, 3
    s_lshl2_add_u32 s{t0}, s{t0}, s{sH}
    s_mul_i32 s{t0}, s{t0}, 12288
    s_lshr_b32 s{t0+1}, s{sHP}, 3
    s_lshl_b32 s{t0+1}, s{t0+1}, 9
    s_add_u32 s{t0}, s{t0}, s{t0+1}
    v_bfe_u32 v18, v1, 2, 2
    v_mul_u32_u24 v18, 3072, v18
    v_and_b32 v19, 3, v1
    v_lshl_add_u32 v18, v19, 7, v18
    v_add_u32 v{vWqP}, s{t0}, v18
    v_mov_b32 v{vCA}, {CNT}
    s_lshl_b32 s{t0}, s{sC}, 2
    s_add_u32 s{t0}, s{t0}, {CNT+4}
    v_mov_b32 v{vCP}, s{t0}
    v_mov_b32 v{vOne}, 1
    v_lshlrev_b32 v23, 4, v1
    s_lshl_b32 s{t0}, s{sH}, 10
    s_sub_u32 s{t0}, {UR+4080-512}, s{t0}
    v_lshrrev_b32 v18, 1, v1
    v_lshlrev_b32 v19, 4, v18
    v_sub_u32 v19, s{t0}, v19
    v_and_b32 v20, 1, v1
    v_mul_u32_u24 v21, {URS}, v20
    v_add_u32 v{vUW}, v19, v21
    s_lshr_b32 s{t0}, s{sCH}, 2
    s_lshl_b32 s{t0}, s{t0}, 14
    s_lshl_b32 s{t0+1}, s{sH}, 12
    s_add_u32 s{t0}, s{t0}, s{t0+1}
    s_and_b32 s{t0+1}, s{sRB}, 1
    s_lshl_b32 s{t0+1}, s{t0+1}, 5
    s_add_u32 s{t0}, s{t0}, s{t0+1}
    s_add_u32 s{t0}, s{t0}, {WS_UT}
    v_lshl_add_u32 v18, v18, 6, s{t0}
    v_lshl_add_u32 v{vUL}, v20, 4, v18
    v_and_b32 v18, 15, v1
    v_add_u32 v19, 1, v18
    v_and_b32 v20, 3, v19
    v_mul_u32_u24 v20, {KCP}, v20
    v_lshrrev_b32 v19, 2, v19
    v_lshl_add_u32 v20, v19, 3, v20
    v_lshrrev_b32 v21, 4, v1
    v_lshlrev_b32 v22, 4, v21
    s_mul_i32 s{t0}, s{sC}, {2*KGS}
    s_lshl_b32 s{t0+1}, s{sMH}, 8
    s_add_u32 s{t0}, s{t0}, s{t0+1}
    s_add_u32 s{t0}, s{t0}, {KG}
    v_add3_u32 v{vAA}, v20, v22, s{t0}
    s_mul_i32 s{t0}, s{sC}, {URS}
    s_add_u32 s{t0}, s{t0}, s{t0+1}
    s_add_u32 s{t0}, s{t0}, {UR+4064-3584}
    v_lshlrev_b32 v19, 5, v18
    v_sub_u32 v22, v22, v19
    v_add_u32 v{vBA}, s{t0}, v22
    s_lshl_b32 s{t0}, s{sH}, 12
    s_add_u32 s{t0}, s{t0}, {CRED}
    v_add_u32 v{vCW}, s{t0}, v23
    s_xor_b32 s{t0}, s{sH}, 1
    s_lshl_b32 s{t0}, s{t0}, 12
    s_add_u32 s{t0}, s{t0}, {CRED}
    v_add_u32 v{vCR}, s{t0}, v23
    v_add_u32 v{vOL}, {OFL}, v23
    v_lshrrev_b32 v19, 1, v18
    v_lshlrev_b32 v19, 15, v19
    v_and_b32 v20, 1, v1
    v_lshl_add_u32 v19, v20, 5, v19
    v_lshl_add_u32 v{vAT}, v21, 3, v19
    s_lshl_b32 s{t0}, s{sMH}, 20
    s_lshl_b32 s{t0+1}, s{sD}, 6
    s_add_u32 s{t0}, s{t0}, s{t0+1}
    s_add_u32 s{t0}, s{t0}, {WS_AT}
    s_add_u32 s{sAT}, s{pWs}, s{t0}
    s_addc_u32 s{sAT+1}, s{pWs+1}, 0
    s_lshl_b32 s{t0}, s{sMH}, 9
    s_add_u32 s{t0}, s{t0}, s{sD}
    s_add_u32 s{t0}, s{t0}, {F3}
    s_lshl_b32 s{t0}, s{t0}, 2
    v_mov_b32 v{vF3}, s{t0}
    s_mov_b32 s{SRDW}, s{pWo}
    s_mov_b32 s{SRDW+1}, s{pWo+1}
    s_mov_b32 s{SRDW+2}, {512*1024}
    s_mov_b32 s{SRDW+3}, 0x00020000
    s_lshl_b32 s{t0}, s{sCB}, 2
    s_add_u32 s{t0}, s{t0}, s{sH}
    s_lshl_b32 s{t0+1}, s{t0}, 6
    v_lshrrev_b32 v18, 2, v1
    v_lshl_add_u32 v18, v18, 10, s{t0+1}
    v_and_b32 v19, 3, v1
    v_lshl_add_u32 v{vWoG}, v19, 4, v18
    s_mul_i32 s{sWst}, s{sH}, {WSL*1024}
    s_add_u32 s{sWst}, s{sWst}, {WST}
    v_lshrrev_b32 v22, 5, v1
    v_lshlrev_b32 v20, 2, v22
    v_bfe_u32 v21, v1, 2, 2
    v_add_u32 v20, v20, v21
    v_lshl_add_u32 v20, v20, 6, s{sWst}
    v_lshl_add_u32 v20, v19, 3, v20
    v_bfe_u32 v21, v1, 4, 1
    v_lshl_add_u32 v{vWoL}, v21, 5, v20
    s_lshl_b32 s{t0}, s{t0}, 5
    s_lshr_b32 s{t0+1}, s{sRB}, 3
    s_lshl_b32 s{t0+1}, s{t0+1}, 9
    s_add_u32 s{t0+1}, s{t0+1}, s{t0}
    s_add_u32 s{t0+1}, s{t0+1}, {F3}
    v_and_b32 v18, 31, v1
    v_add_u32 v19, s{t0+1}, v18
    v_lshlrev_b32 v{vF3P}, 2, v19
    s_lshl_b32 s{t0+1}, s{sRB}, 2
    s_add_u32 s{t0+1}, s{t0+1}, s{sRT}
    s_lshl_b32 s{t0+2}, s{t0+1}, 15
    s_lshl_b32 s{t0+3}, s{t0}, 6
    s_add_u32 s{t0+3}, s{t0+3}, s{t0+2}
    s_add_u32 s{t0+3}, s{t0+3}, {WS_AT}
    v_lshlrev_b32 v20, 8, v22
    v_lshl_add_u32 v20, v18, 1, v20
    v_add_u32 v{vAL}, s{t0+3}, v20
    s_lshl_b32 s{t0}, s{t0}, 1
    s_add_u32 s{t0}, s{t0}, s{t0+2}
    v_lshl_add_u32 v20, v18, 10, s{t0}
    v_lshl_add_u32 v{vOut}, v22, 4, v20
    """.split("\n")
    ADDR += f"""
    s_lshl2_add_u32 s{t0}, s{sRB}, s{sH}
    s_lshl4_add_u32 s{t0}, s{t0}, s{sHP}
    s_lshl_b32 s{t0}, s{t0}, 11
    s_add_u32 s{t0}, s{t0}, {WS_OF}
    v_lshl_add_u32 v{vClO}, v1, 6, s{t0}
    s_lshl_b32 s{t0}, s{sRB}, 2
    s_add_u32 s{t0}, s{t0}, s{sH}
    s_lshl_b32 s{t0}, s{t0}, 8
    s_lshl_b32 s{t0+1}, s{sHP}, 17
    s_add_u32 s{t0}, s{t0}, s{t0+1}
    s_add_u32 s{t0}, s{t0}, {WS_UT}
    v_and_b32 v18, 15, v1
    v_lshl_add_u32 v18, v18, 4, s{t0}
    v_lshrrev_b32 v19, 4, v1
    v_lshl_add_u32 v{vTS}, v19, 14, v18
    v_add_u32 v{vTS+1}, 0x10000, v{vTS}
    v_and_b32 v18, 15, v1
    v_lshlrev_b32 v{vRdy}, 2, v18
    s_lshl_b32 s{t0}, s{sHP}, 4
    v_add_u32 v19, s{t0}, v18
    v_lshlrev_b32 v{vF1P}, {FSH}, v19
    s_add_u32 s{t0}, s{t0}, s{sRB}
    s_lshl2_add_u32 s{t0+1}, s{t0}, s{sH}
    s_add_u32 s{t0+1}, s{t0+1}, {F4}
    s_lshl_b32 s{t0+1}, s{t0+1}, 2
    v_mov_b32 v{vF4}, s{t0+1}
    s_lshl2_add_u32 s{t0+1}, s{sHP}, s{sH}
    s_lshl4_add_u32 s{t0+1}, s{t0+1}, {F4}
    v_add_lshl_u32 v{vF4P}, v18, s{t0+1}, 2
    s_lshl_b32 s{t0}, s{t0}, {FSH}
    v_mov_b32 v{vF1}, s{t0}
    v_and_b32 v18, 31, v1
    v_lshlrev_b32 v18, 5, v18
    v_lshrrev_b32 v19, 5, v1
    v_lshl_add_u32 v19, v19, 2, v18
    s_lshl_b32 s{t0}, s{sH}, 3
    s_add_u32 s{t0}, s{t0}, {GP}
    v_add_u32 v{vGPw}, s{t0}, v19
    v_add_u32 v{vGPr}, {GP}, v18
    s_lshr_b32 s{t0}, s2, 3
    s_lshl_b32 s{t0}, s{t0}, 2
    s_add_u32 s{t0}, s{t0}, s{sH}
    s_lshl_b32 s{t0}, s{t0}, 12
    s_lshr_b32 s{t0+1}, s{sHP}, 3
    s_lshl_b32 s{t0+1}, s{t0+1}, 9
    s_add_u32 s{t0}, s{t0}, s{t0+1}
    v_bfe_u32 v18, v1, 2, 2
    v_lshl_add_u32 v18, v18, 10, s{t0}
    v_and_b32 v19, 3, v1
    v_lshl_add_u32 v{vWoP}, v19, 7, v18
    """.split("\n") + [f"v_mov_b32 v{vA+j}, 0" for j in range(16)]
    if OPT["gath"]:
        ADDR += f"""
        s_lshl_b32 s{t0}, s{sH}, 19
        s_lshl_b32 s{t0+1}, s{sCH}, 1
        s_add_u32 s{t0}, s{t0}, s{t0+1}
        s_add_u32 s{t0}, s{t0}, 4096
        v_lshl_add_u32 v{vUL}, v1, 13, s{t0}
        s_lshl_b32 s{t0}, s{sH}, 10
        s_sub_u32 s{t0}, {UR+4080}, s{t0}
        v_lshlrev_b32 v18, 4, v1
        v_sub_u32 v{vUW}, s{t0}, v18
        s_mov_b32 s94, 0x05040100
        s_mov_b32 s95, 0x07060302
        """.split("\n")
    ADDR = [x.strip() for x in ADDR if x.strip()]
    def GATEF():
        E("s_waitcnt lgkmcnt(0)")
        for j in range(4):
            E(f"v_dot2_f32_bf16 v{vG}, v{vXF+j}, v{vGW+j}, v{vG}")
        E(f"s_nop 2\nds_write_b32 v{vGPw}, v{vG}")
    def SIG():
        E(f"""
        ds_read_b128 v[128:131], v{vGPr}
        ds_read_b128 v[132:135], v{vGPr} offset:16
        s_waitcnt lgkmcnt(0)
        v_add_f32 v128, v128, v129
        v_add_f32 v130, v130, v131
        v_add_f32 v132, v132, v133
        v_add_f32 v134, v134, v135
        v_add_f32 v128, v128, v130
        v_add_f32 v132, v132, v134
        v_add_f32 v128, v128, v132
        v_mul_f32 v128, {fbits(-log2e)}, v128
        v_exp_f32 v128, v128
        s_nop 0
        v_add_f32 v128, 1.0, v128
        v_rcp_f32 v{vg}, v128
        s_nop 0
        v_sub_f32 v{vomg}, 1.0, v{vg}
        """)
    vR = 64; vE0 = 64
    def KC1():
        lk = newlab("nk")
        E(f"s_cmp_eq_u32 s{sMH}, 0\ns_cbranch_scc0 {lk}")
        if psync: lds_wait(vCP, 2, 1)
        for j in range(4):
            E(f"ds_read_b128 {vr(vR+4*j,4)}, v{vWA} offset:{1024*j}")
        E(f"""
        s_mul_i32 s{t0}, s{sC}, {2*KGS}
        s_add_u32 s{t0}, s{t0}, {KG}
        v_lshl_add_u32 v2, v1, 4, s{t0}
        v_lshrrev_b32 v3, 1, v1
        v_mul_u32_u24 v3, {KCP}, v3
        v_and_b32 v10, 1, v1
        v_lshlrev_b32 v11, 4, v10
        v_add3_u32 v3, v3, v11, s{t0}
        v_cmp_eq_u32 {sr(t0+2,2)}, 1, v10
        s_mov_b64 exec, 1
        v_add_f32 v{vD}, s{sDs}, v{vD}
        s_waitcnt lgkmcnt(0)
        s_mov_b64 exec, 0xff
        ds_write_b128 v3, v[12:15]
        s_mov_b64 exec, -1
        """)
        for j in range(15):
            E(f"v_add_f32 v{vD+j}, v{vD+j}, v{vR+j}")
        E(f"""
        v_cndmask_b32 v10, v{vD+11}, v{vD+12}, {sr(t0+2,2)}
        v_cndmask_b32 v11, v{vD+13}, v{vD+14}, {sr(t0+2,2)}
        """)
        D = lambda j: vD + j
        pats = [[(D(0), D(1)), (D(2), D(3)), (D(4), D(5)), (D(6), D(7))],
                [(D(8), D(8)), (D(8), D(9)), (D(9), D(9)), (D(10), D(10))],
                [(D(11), D(11)), (D(11), D(11)), (10, D(12)), (D(12), D(12))],
                [(D(13), D(13)), (D(13), D(13)), (11, D(14)), (D(14), D(14))]]
        for u in range(4):
            for j, (a, b) in enumerate(pats[u]):
                E(f"v_cvt_pk_bf16_f32 v{vE0+8*u+j}, v{a}, v{b}")
            E(f"ds_write_b128 v2, {vr(vE0+8*u,4)} offset:{32+1024*u}")
        for u in range(4):
            E(f"ds_read_b64 {vr(vE0+8*u+4,2)}, v2 offset:{48+1024*u}")
        E(f"{lk}:")
    def KC2():
        lk = newlab("nk")
        E(f"s_cmp_eq_u32 s{sMH}, 0\ns_cbranch_scc0 {lk}\ns_waitcnt lgkmcnt(0)")
        for u in range(4):
            b = vE0 + 8 * u; o = 96 + 12 * (u & 1)
            for j in range(4):
                E(f"v_alignbit_b32 v{o+j}, v{b+j+1}, v{b+j}, 16")
            E(f"ds_write_b128 v2, {vr(o,4)} offset:{32+1024*u+KCP}")
            for j in range(4):
                E(f"v_mov_b32 v{o+4+j}, v{b+j+1}")
            E(f"ds_write_b128 v2, {vr(o+4,4)} offset:{32+1024*u+2*KCP}")
            for j in range(4):
                E(f"v_alignbit_b32 v{o+8+j}, v{b+j+2}, v{b+j+1}, 16")
            E(f"ds_write_b128 v2, {vr(o+8,4)} offset:{32+1024*u+3*KCP}")
            if u == 0:
                E(f"""
                v_lshlrev_b32 v10, 16, v{b}
                s_mov_b64 exec, 1
                ds_write_b32 v2, v10 offset:{28+KCP}
                ds_write_b32 v2, v{b} offset:{28+2*KCP}
                ds_write_b32 v2, v10 offset:{24+3*KCP}
                ds_write_b32 v2, v{o} offset:{28+3*KCP}
                s_mov_b64 exec, -1
                """)
        E(f"{lk}:")
    def gate_glue(i):
        E(f"s_waitcnt vmcnt({NCL}) lgkmcnt(0)" if i == 0 else "s_waitcnt vmcnt(0) lgkmcnt(0)" if i == 7 else "s_waitcnt lgkmcnt(0)")
        if OPT.get("hst"): stamp("h")
        E("s_barrier")
        if i == 0 and OPT["clm"] == 3: claim_kv()
        if i == 0:
            lq = newlab("nr")
            E(f"""
            s_cmp_eq_u32 s{sLead}, 7
            s_cbranch_scc0 {lq}
            s_lshl_b32 s{sSPIN}, s2, 5
            v_add_u32 v10, s{sSPIN}, v1
            v_lshlrev_b32 v10, {FSH}, v10
            s_lshl_b32 s{sSPIN}, s2, 9
            s_add_u32 s{sSPIN}, s{sSPIN}, {4*F3}
            v_lshl_add_u32 v11, v1, 3, s{sSPIN}
            global_store_dwordx2 v11, v[12:13], {sr(pFL,2)} sc1
            s_bfm_b64 exec, 32, 0
            global_store_dword v10, v12, {sr(pFL,2)} sc1
            s_mov_b64 exec, -1
            {lq}:
            """)
        if i == OPT["rdyw"]:
            lq = newlab("nr")
            E(f"""
            s_cmp_eq_u32 s{sLead}, 7
            s_cbranch_scc0 {lq}
            s_lshl_b32 s{sSPIN}, s2, 2
            v_mov_b32 v10, s{sSPIN}
            v_mov_b32 v11, 1
            s_waitcnt vmcnt(0)
            """)
            put_flag(10, 11, pDbg)
            E(f"{lq}:")
        if i >= 1:
            for j in range(4):
                E(f"v_dot2_f32_bf16 v{vG}, v{vXF+j}, v{vGW+j}, v{vG}")
        slot = i % NS
        E(f"ds_read_b128 {vr(vXF,4)}, v{vGA0} offset:{slot*SLOT}")
        E(f"ds_read_b128 {vr(vGW,4)}, v{vGWA} offset:{128*i}")
        if not OPT["gath"]: E(f"""
        s_cmp_eq_u32 s{sUW}, {i}
        s_cbranch_scc0 L_ut{i}
        ds_read_b64_tr_b16 {vr(vU,2)}, v{vTA}
        ds_read_b64_tr_b16 {vr(vU+2,2)}, v{vTA+3}
        ds_read_b64_tr_b16 {vr(vU+4,2)}, v{vTA+1}
        ds_read_b64_tr_b16 {vr(vU+6,2)}, v{vTA+2}
        L_ut{i}:
        """)
    E(ADDR)
    tot = sum(c for c, _ in K); nw = OPT["kw"]
    pre = tot * OPT["kpre"] / 100
    segs = [[] for _ in range(9)]; acc = 0
    for c, x in K:
        segs[0 if acc < pre else 1 + min(nw - 1, int((acc - pre) * nw / (tot - pre)))].append(x); acc += c
    items = [D1, D2, D3, KC1, KC2]
    def place(w):
        for it, p in zip(items, PL):
            if p == w: it()
    E(segs[0])
    for i in range(8):
        gate_glue(i)
        if i == OPT["wqpf"]:
            E(f"s_mov_b64 exec, 0xffff\nglobal_load_dword v167, v{vWqP}, {sr(pW,2)}\ns_mov_b64 exec, -1")
        E(segs[i + 1])
    stamp("h")
    GATEF()
    uts = f"""
    global_store_dwordx4 v{vTS}, {vr(vU,4)}, {sr(pWs,2)} sc1
    global_store_dwordx4 v{vTS+1}, {vr(vU+4,4)}, {sr(pWs,2)} sc1
    """
    E(f"global_load_dword v{vTm}, v{vRdy}, {sr(pDbg,2)} sc1")
    place(0)
    E(f"s_setprio {OPT['prioq']}\ns_waitcnt lgkmcnt(0)\ns_barrier")
    stamp("h")
    if not OPT["gath"] and not OPT["utl"]: E(uts)
    SIG()
    place(1)
    E("s_barrier")
    place(2)
    assert OPT["ackn"] > 16 - OPT["lq"]
    E(f"s_setprio {OPT['prio']}\ns_waitcnt vmcnt(0)\ns_barrier")
    stamp("h")
    lq = newlab("nf"); lr = newlab("rdy")
    E(f"""
    s_cmp_lg_u32 s{sH}, 1
    s_cbranch_scc1 {lq}
    v_cmp_ne_u32 vcc, 0, v{vTm}
    s_nop 1
    s_cmp_eq_u64 vcc, -1
    s_cbranch_scc1 {lr}
    """)
    poll_global(vRdy, pDbg, vTm)
    E(f"{lr}:")
    put_flag(vF1, vOne)
    E(f"{lq}:")
    place(3)
    E("s_barrier")
    place(4)
    lq = newlab("nf")
    E(f"s_cmp_lg_u32 s{sH}, 1\ns_cbranch_scc1 {lq}")
    poll_global(vF1P, pFL, vTm)
    E(f"{lq}:")
    E("s_setprio 0\ns_barrier")
    stamp("h")
    late = OPT["utl"] and not OPT["gath"]
    if PL[0] == 5: D1()
    if late: E(uts)
    E(f"s_setprio {OPT['prio']}")
    if PL[1] == 5: D2()
    if PL[2] == 5: D3()
    if late:
        E("s_waitcnt vmcnt(0)")
        put_flag(vF4, vOne)
    if PL[3] == 5: KC1()
    if PL[4] == 5: KC2()
    if late:
        lds_arrive(vCA, vOne)
        lds_wait(vCA, vTm, 4)
        E("s_waitcnt vmcnt(0)")
        poll_global(vF4P, pFL, vTm)
    if OPT["gath"]:
        for j in range(8):
            E(f"global_load_dword v{vU+j}, v{vUL}, {sr(pX,2)} offset:{1024*j-4096}\ns_waitcnt vmcnt({OPT['gd'] if j < 7 else 0})")
        E(f"s_setprio {OPT['prio']}")
        for j in range(4):
            E(f"v_perm_b32 v{12+j}, v{vU+6-2*j}, v{vU+7-2*j}, s94")
            E(f"v_perm_b32 v{16+j}, v{vU+6-2*j}, v{vU+7-2*j}, s95")
        E(f"ds_write_b128 v{vUW}, v[12:15]\nds_write_b128 v{vUW}, v[16:19] offset:{URS}")
    else: E(f"""
    global_load_dwordx4 v[12:15], v{vUL}, {sr(pWs,2)} sc1
    global_load_dwordx4 v[16:19], v{vUL}, {sr(pWs,2)} offset:2048 sc1
    s_waitcnt vmcnt(0)
    s_setprio {OPT['prio']}
    ds_write_b128 v{vUW}, v[12:15] offset:512
    ds_write_b128 v{vUW}, v[16:19]
    """)
    lds_arrive(vCA, vOne)
    lds_wait(vCA, vTm, 8 if late else 4)
    stamp("h")
    vY = 64
    vF = [96, 192]
    def creads(r):
        f = vF[r & 1]; o = []
        for gmm in range(8):
            o.append(f"ds_read_b64 {vr(f+4*gmm,2)}, v{vAA} offset:{512*gmm+64*r}")
            o.append(f"ds_read_b64 {vr(f+4*gmm+2,2)}, v{vAA} offset:{512*gmm+64*r+8}")
            o.append(f"ds_read_b128 {vr(f+32+4*gmm,4)}, v{vBA} offset:{3584-512*gmm+64*r}")
        return o
    E(creads(0))
    E(f"s_setprio {OPT.get('prio3', OPT['prio'])}")
    for r in range(4):
        f = vF[r & 1]
        nxt = creads(r + 1) if r < 3 else []
        if r == 2 and OPT["wopf"]:
            E(f"s_mov_b64 exec, 0xffff\nglobal_load_dword v20, v{vWoP}, {sr(pWo,2)}\ns_mov_b64 exec, -1")
        E("s_waitcnt lgkmcnt(0)")
        seen = set()
        for gmm in range(8):
            for dl in range(8 - gmm):
                tau = gmm + dl
                c = "0" if (r == 0 and tau not in seen) else vr(vY + 4 * tau, 4)
                seen.add(tau)
                if not OPT.get("noconv"): E(f"v_mfma_f32_16x16x32_bf16 {vr(vY+4*tau,4)}, {vr(f+4*gmm,4)}, {vr(f+32+4*dl,4)}, {c}")
                if nxt: E(nxt.pop(0))
    E(f"s_setprio {OPT['prio']}")
    l1 = newlab("c1"); l2 = newlab("c2")
    E(f"s_nop 5\ns_cmp_eq_u32 s{sMH}, 0\ns_cbranch_scc0 {l1}")
    def conv_fin(send, keep):
        for j in range(4):
            E(f"ds_write_b128 v{vCW}, {vr(send+4*j,4)} offset:{1024*j}")
        lds_arrive(vCP, vOne)
        lds_wait(vCP, vTm, 2 + psync)
        for j in range(4):
            E(f"ds_read_b128 {vr(96+4*j,4)}, v{vCR} offset:{1024*j}")
        E("s_waitcnt lgkmcnt(0)")
        for j in range(16):
            E(f"v_add_f32 v{96+j}, v{keep+j}, v{96+j}")
    conv_fin(vY + 16, vY)
    E(f"s_branch {l2}\n{l1}:")
    conv_fin(vY, vY + 16)
    E(f"{l2}:")
    for j in range(4):
        E(f"v_cvt_pk_bf16_f32 v{112+2*j}, v{96+4*j}, v{97+4*j}\nv_cvt_pk_bf16_f32 v{113+2*j}, v{98+4*j}, v{99+4*j}")
        E(f"global_store_dwordx2 v{vAT}, {vr(112+2*j,2)}, {sr(sAT,2)} sc1")
        if j < 3: E(f"s_add_u32 s{sAT}, s{sAT}, {8*32768}\ns_addc_u32 s{sAT+1}, s{sAT+1}, 0")
    E("s_waitcnt vmcnt(0)")
    put_flag(vF3, vOne)
    stamp("h")
    vWo = 128
    sO = t0 + 2
    WD = OPT["wod"]
    for hd in range(0 if OPT.get("nowo") else 32 + WD):
        if hd < 32:
            if hd % 4 == 0: E(f"s_add_u32 m0, s{sWst}, {(hd%WSL)*1024}")
            E(f"s_mov_b32 s{sO}, {hd*16384-(hd%4)*1024}")
            E(f"buffer_load_dwordx4 v{vWoG}, {sr(SRDW,4)}, s{sO} offen offset:{(hd%4)*1024} lds")
        r = hd - WD
        if r >= 0:
            E(f"s_waitcnt vmcnt({min(WD, 31-r)}) lgkmcnt(8)")
            E(f"ds_read_b64_tr_b16 {vr(vWo+4*r,2)}, v{vWoL} offset:{1024*(r%WSL)}")
            E(f"ds_read_b64_tr_b16 {vr(vWo+4*r+2,2)}, v{vWoL} offset:{1024*(r%WSL)+512}")
    E("s_waitcnt lgkmcnt(0)")
    stamp("h")
    if OPT["clo"] & 1:
        E(f"s_bfm_b64 exec, 32, 0\nglobal_store_dword v{vClO}, v{vOne}, {sr(pWs,2)} sc1\ns_mov_b64 exec, -1")
    if OPT["clo"] & 2:
        E(f"s_bfm_b64 exec, 32, 0\nglobal_store_dword v{vOut}, v{vOne}, {sr(pOut,2)} sc1\ns_mov_b64 exec, -1")
    poll_global(vF3P, pFL, vTm)
    for r in range(16):
        E(f"global_load_short_d16_hi v{vA+r}, v{vAL}, {sr(pWs,2)} offset:{(8*(r>>2)+(r&3))*64} sc1")
    E("s_waitcnt vmcnt(0)")
    stamp("h")
    E("s_barrier")
    for r in range(16):
        E(f"v_mul_f32 v{vA+r}, v{vg}, v{vA+r}")
    E("s_barrier")
    stamp("h")
    vB = 64
    def ord_(hd): return f"ds_read_b128 {vr(vB+4*(hd%8),4)}, v{vOL} offset:{1024*hd}"
    E("s_barrier")
    stamp("h")
    for j in range(8): E(ord_(j))
    for hd in range(32):
        out = min(hd + 4, 31) - hd if hd >= 4 else 7 - hd
        E(f"s_waitcnt lgkmcnt({out if hd < 4 else min(3, 31-hd)})")
        E(f"v_mfma_f32_32x32x16_bf16 {vr(vAcc,16)}, {vr(vWo+4*hd,4)}, {vr(vB+4*(hd%8),4)}, {'0' if hd == 0 else vr(vAcc,16)}")
        nx = hd + 4
        if 8 <= nx < 32:
            if nx % 8 == 0: E("s_barrier")
            E(ord_(nx))
    E("s_nop 11")
    for r in range(16):
        E(f"v_fma_f32 v{vAcc+r}, v{vAcc+r}, v{vomg}, v{vA+r}")
    for j in range(8):
        E(f"v_cvt_pk_bf16_f32 v{vB+j}, v{vAcc+2*j}, v{vAcc+2*j+1}")
    E("s_nop 1")
    for a in (0, 1, 4, 5):
        E(f"v_permlane32_swap_b32 v{vB+a}, v{vB+2+a}")
    fl = ["", "sc1", "nt", "sc0 sc1"][OPT["outsc"]]
    E(f"global_store_dwordx4 v{vOut}, {vr(vB,4)}, {sr(pOut,2)} {fl}\nglobal_store_dwordx4 v{vOut}, {vr(vB+4,4)}, {sr(pOut,2)} offset:32 {fl}")
    if STAMP:
        E("s_waitcnt vmcnt(0)")
    stamp("h")
    stamp_flush("h"); spin_end("h")
    E("s_endpgm")

hdr = open(f"cdna_kernels/{NAME}.s.ref").read().split("; Override launch")[0]
prologue(); main_wave()
if OPT["lay"]: helper_wave()
E("L_end:\ns_endpgm")
out = hdr + f"""; @launch grid=(256,1,1) block=(512,1,1) lds={LDS_BYTES}
.amdgcn_target "amdgcn-amd-amdhsa--gfx950"
.text
.globl {NAME}_kernel
.p2align 8
.type {NAME}_kernel,@function
{NAME}_kernel:
""" + "\n".join(L) + f"""
.section .rodata,"a"
.p2align 6
.amdhsa_kernel {NAME}_kernel
  .amdhsa_next_free_vgpr 256
  .amdhsa_next_free_sgpr 102
  .amdhsa_accum_offset 256
  .amdhsa_group_segment_fixed_size 0
  .amdhsa_kernarg_size 128
  .amdhsa_user_sgpr_count 2
  .amdhsa_user_sgpr_kernarg_segment_ptr 1
  .amdhsa_system_sgpr_workgroup_id_x 1
.end_amdhsa_kernel
"""
open(sys.argv[1], "w").write(out)
```

```python
import sys, math, struct

NAME = "gated_mix__ssm_conv_s4__mha_block__prompt"
OPT = dict(stamp=0, rot=3, fs=128, spin=200000, prio=2, outsc=0, prio3=0, pf=1, tlb=1, ksplit=90, pk0=0, wod=4, wopf=1, lay=2, prioq=0, eb=2, lq=7, epc=10, ackn=26, ute=0, kcp=1, gath=0, gd=0, d1=3, d1w=4, pl=55555, utl=1, kpre=5, kw=7, clm=0, clo=0, rdyw=2, xm=0, fm=0, wqpf=2, sigl=1)
for a in sys.argv[2:]:
    k, v = a.split("=")
    OPT[k] = int(v)
STAMP = OPT["stamp"]
FS = OPT["fs"]
FSH = int(math.log2(FS))

L = []
def E(s):
    if isinstance(s, list): s = "\n".join(s)
    for x in s.split("\n"):
        x = x.strip()
        if x:
            L.append(("" if x.endswith(":") else "    ") + x)
def fbits(x): return "0x%08x" % struct.unpack("<I", struct.pack("<f", x))[0]
def vr(a, n): return f"v[{a}:{a+n-1}]"
def sr(a, n): return f"s[{a}:{a+n-1}]"

WS_KV = 0
WS_OF = 4 << 20
WS_AT = 6 << 20
WS_FL = 8 << 20
WS_UT = 10 << 20
WS_ST = 16 << 20
F1, F2 = 0, 256
F3 = 512 * FS // 4
F4 = F3 + 1024
KG = 0; KGS = 8704
KCP = 4160
UR = KG + 4 * KGS; URS = 4576
GP = UR + 2 * URS
GW = GP + 1024
CNT = GW + 2048
RING = CNT + 64
SLOT = 24576; WPART = 6144; NS = 3
WQ = RING + NS * SLOT
LDS_BYTES = WQ + 32768
EXCH = RING; RED = WQ; REDS = 4608
CRED = RING; WST = RING + 16384; WSL = 12; OFL = RING
assert RING % 256 == 0 and WST + 4 * WSL * 1024 <= WQ and LDS_BYTES <= 163840
sW, sHP, sRB, sCH, sROT = 3, 4, 5, 6, 7
SRDX, SRDW = 8, 12
pX, pAre, pAim, pBre, pBim, pCre, pCim, pLdt = 16, 18, 20, 22, 24, 26, 28, 30
pDsk, pW, pWo, pGw, pOut, pDbg, pWs = 32, 36, 38, 40, 42, 44, 46
pFL = 34
sT = 48
sSPIN = 62
sST = 64

nstamp = {"m": 0, "h": 0}
SPM, SPH = OPT.get("spm", -1), OPT.get("sph", -1)
def spin_end(role):
    if (SPM if role == "m" else SPH) < 0: return
    l = newlab("sp")
    E(f"{l}:\ns_memrealtime s[98:99]\ns_waitcnt lgkmcnt(0)\ns_sub_u32 s98, s98, s96\ns_cmp_lt_i32 s98, 4000\ns_cbranch_scc1 {l}")
def stamp(role):
    if SPM >= 0 or SPH >= 0:
        i = nstamp[role]; nstamp[role] += 1
        if i == (SPM if role == "m" else SPH): E("s_memrealtime s[96:97]\ns_waitcnt lgkmcnt(0)")
        return
    if not STAMP or nstamp[role] >= 14: return
    i = nstamp[role]; nstamp[role] += 1
    E(f"s_memrealtime {sr(sST+2*i,2)}\ns_waitcnt lgkmcnt(0)")
def stamp_flush(role):
    if not STAMP: return
    E(f"s_lshl_b32 s{sT}, s2, 3\ns_add_u32 s{sT}, s{sT}, s{sW}\ns_lshl_b32 s{sT}, s{sT}, 6\ns_add_u32 s{sT}, s{sT}, {WS_ST}\nv_mov_b32 v2, s{sT}")
    for i in range(nstamp[role]):
        E(f"v_mov_b32 v3, s{sST+2*i}\nglobal_store_dword v2, v3, {sr(pWs,2)} offset:{4*i}")
    E(f"s_getreg_b32 s{sT}, hwreg(HW_REG_XCC_ID)\nv_mov_b32 v3, s{sT}\nglobal_store_dword v2, v3, {sr(pWs,2)} offset:60")

lab = [0]
def newlab(p):
    lab[0] += 1
    return f"L_{p}_{lab[0]}"

def poll_global(vaddr, base, vtmp):
    l = newlab("poll"); d = newlab("polld")
    E(f"""
    s_mov_b32 s{sSPIN}, {OPT['spin']}
    {l}:
    global_load_dword v{vtmp}, v{vaddr}, {sr(base,2)} sc1
    s_sub_u32 s{sSPIN}, s{sSPIN}, 1
    s_cbranch_scc1 {d}
    s_waitcnt vmcnt(0)
    v_cmp_ne_u32 vcc, 0, v{vtmp}
    s_nop 1
    s_cmp_eq_u64 vcc, -1
    s_cbranch_scc0 {l}
    {d}:
    s_waitcnt vmcnt(0)
    """)
def put_flag(vaddr, vone, base=None):
    E(f"""
    s_mov_b64 exec, 1
    global_store_dword v{vaddr}, v{vone}, {sr(pFL if base is None else base,2)} sc1
    s_mov_b64 exec, -1
    """)
def lds_arrive(vaddr, vone):
    E(f"""
    s_mov_b64 exec, 1
    ds_add_u32 v{vaddr}, v{vone}
    s_mov_b64 exec, -1
    """)
def lds_wait(vaddr, vtmp, n):
    l = newlab("lw"); d = newlab("lwd")
    E(f"""
    s_mov_b32 s{sSPIN}, {OPT['spin']*8}
    {l}:
    ds_read_b32 v{vtmp}, v{vaddr}
    s_sub_u32 s{sSPIN}, s{sSPIN}, 1
    s_cbranch_scc1 {d}
    s_waitcnt lgkmcnt(0)
    v_readfirstlane_b32 s{sSPIN+1}, v{vtmp}
    s_nop 1
    s_cmp_ge_u32 s{sSPIN+1}, {n}
    s_cbranch_scc0 {l}
    {d}:
    s_waitcnt lgkmcnt(0)
    """)

def helper_entry():
    sH, sC, sMH, sD, sLd, sDs, t0 = sT, sT + 1, sT + 2, sT + 5, sT + 6, sT + 7, sT + 8
    E(f"L_h0:\ns_setprio {OPT['prio']}\ns_sub_u32 s{sH}, s{sW}, 4")
    if OPT["pf"]:
        E(f"""
        s_getpc_b64 s[8:9]
        L_pc:
        s_andn2_b32 s10, s2, 7
        s_lshl1_add_u32 s10, s{sH}, s10
        v_and_b32 v2, 1, v1
        v_add_lshl_u32 v2, v2, s10, 7
        v_min_u32 v2, L_end-L_pc, v2
        v_mov_b32 v3, 0
        v_lshl_add_u64 v[2:3], v[2:3], 0, s[8:9]
        global_load_dword v167, v[2:3], off
        """)
    if OPT["gath"]:
        E(f"s_and_b32 s{sCH}, s2, 7\ns_lshl_b32 s{sCH}, s{sCH}, 5\ns_lshr_b32 s{t0}, s2, 3\ns_or_b32 s{sCH}, s{sCH}, s{t0}")
    else:
        E(f"s_lshl4_add_u32 s{sCH}, s{sHP}, s{sRB}")
    E(f"""
    s_lshl2_add_u32 s{t0}, s{sCH}, s{sH}
    s_lshl_b32 s{t0}, s{t0}, 7
    v_lshl_add_u32 v2, v1, 1, s{t0}
    s_lshl_b32 s{t0+1}, s{sCH}, 2
    s_and_b32 s{sMH}, s{sH}, 1
    s_lshl_b32 s{t0}, s{sMH}, 10
    s_add_u32 m0, s{t0}, {GW}
    v_lshlrev_b32 v3, 4, v1
    s_waitcnt lgkmcnt(0)
    """)
    for j, p in enumerate((pAre, pAim, pBre, pBim, pCre, pCim)):
        E(f"global_load_ushort v{4+j}, v2, {sr(p,2)}")
    E(f"""
    global_load_lds_dwordx4 v3, {sr(pGw,2)}
    {"s_barrier" if OPT["eb"] else ""}
    s_load_dword s{sLd}, {sr(pLdt,2)}, s{t0+1}
    s_load_dword s{sDs}, {sr(pDsk,2)}, s{t0+1}
    s_lshl_b32 s{sCH}, s{sCH}, 1
    """)

def prologue():
    if STAMP:
        E(f"s_memrealtime {sr(sST,2)}"); nstamp["m"] = nstamp["h"] = 1
    E(f"""
    s_cmpk_ge_u32 s2, 0x100
    s_cbranch_scc1 L_end
    s_load_dwordx16 s[16:31], s[0:1], 0
    s_load_dwordx16 s[32:47], s[0:1], 64
    """)
    if OPT.get("rndws"): E(f"""
    s_memrealtime s[98:99]
    s_waitcnt lgkmcnt(0)
    s_lshr_b32 s98, s98, 15
    s_mul_i32 s98, s98, 0x9e3779b1
    s_lshr_b32 s98, s98, 28
    s_mul_i32 s98, s98, {OPT["rndws"]-1}
    s_lshl_b32 s98, s98, 24
    s_add_u32 s{pWs}, s{pWs}, s98
    s_addc_u32 s{pWs+1}, s{pWs+1}, 0
    """)
    E(f"""
    v_lshrrev_b32 v2, 6, v0
    v_and_b32 v1, 63, v0
    v_readfirstlane_b32 s{sW}, v2
    """)
    if OPT.get("probe"):
        po = OPT["probe"] - 1
        fl = ["sc1", "sc1 nt", "", "sc0 sc1"][OPT.get("pfl", 0)]
        E(f"""
        s_waitcnt lgkmcnt(0)
        s_add_u32 s98, s2, {OPT.get("psh", 0)}
        s_and_b32 s98, s98, 7
        s_lshl_b32 s98, s98, 5
        s_lshr_b32 s99, s2, 3
        s_add_u32 s98, s98, s99
        s_lshl_b32 s98, s98, 14
        s_add_u32 s98, s98, {po << 20}
        v_lshl_add_u32 v3, v0, 4, s98
        v_add_u32 v4, 0x2000, v3
        s_memrealtime s[96:97]
        s_waitcnt lgkmcnt(0)
        """)
        if OPT.get("prd"):
            E(f"global_load_dwordx4 v[8:11], v3, {sr(pX if OPT['prd'] == 2 else pWs,2)}")
            if OPT["prd"] == 1: E(f"global_load_dwordx4 v[12:15], v4, {sr(pWs,2)}")
        else:
            E(f"global_store_dwordx4 v3, v[8:11], {sr(pWs,2)} {fl}\nglobal_store_dwordx4 v4, v[8:11], {sr(pWs,2)} {fl}")
        E(f"""
        s_waitcnt vmcnt(0)
        s_memrealtime s[98:99]
        s_waitcnt lgkmcnt(0)
        s_sub_u32 s98, s98, s96
        s_mul_i32 s98, s98, 10
        """)
        if OPT.get("pxcc"): E(f"""
        s_getreg_b32 s98, hwreg(HW_REG_XCC_ID)
        s_sub_u32 s98, s98, s2
        s_and_b32 s98, s98, 7
        s_mul_i32 s98, s98, 500
        """)
        E(f"""
        s_add_u32 s96, s96, s98
        s_barrier
        """)
    if OPT["xm"] == 0: E(f"""
    s_bfe_u32 s{sHP}, s2, 0x30003
    s_and_b32 s{sT}, s2, 1
    s_lshl3_add_u32 s{sHP}, s{sT}, s{sHP}
    s_lshr_b32 s{sRB}, s2, 6
    s_and_b32 s{sT}, s2, 6
    s_lshl1_add_u32 s{sRB}, s{sT}, s{sRB}
    """)
    elif OPT["xm"] == 1: E(f"""
    s_bfe_u32 s{sHP}, s2, 0x10003
    s_and_b32 s{sT}, s2, 7
    s_lshl1_add_u32 s{sHP}, s{sT}, s{sHP}
    s_lshr_b32 s{sRB}, s2, 4
    """)
    else: E(f"""
    s_bfe_u32 s{sHP}, s2, 0x20003
    s_and_b32 s{sT}, s2, 3
    s_lshl2_add_u32 s{sHP}, s{sT}, s{sHP}
    s_lshr_b32 s{sRB}, s2, 5
    s_and_b32 s{sT}, s2, 4
    s_lshl1_add_u32 s{sRB}, s{sT}, s{sRB}
    """)
    if OPT["rot"] == 0:
        E(f"s_mov_b32 s{sROT}, 0")
    elif OPT["rot"] == 1:
        E(f"s_xor_b32 s{sROT}, s{sHP}, s{sRB}\ns_and_b32 s{sROT}, s{sROT}, 1\ns_lshl_b32 s{sROT}, s{sROT}, 2")
    elif OPT["rot"] == 2:
        E(f"s_lshl1_add_u32 s{sROT}, s{sRB}, s{sHP}\ns_and_b32 s{sROT}, s{sROT}, 7")
    elif OPT["rot"] == 3:
        E(f"s_lshl1_add_u32 s{sROT}, s{sRB}, s{sHP}\ns_and_b32 s{sROT}, s{sROT}, 6")
    elif OPT["rot"] == 4:
        E(f"s_lshl2_add_u32 s{sROT}, s{sHP}, s{sRB}\ns_and_b32 s{sROT}, s{sROT}, 7")
    else:
        E(f"s_add_u32 s{sROT}, s{sHP}, s{sRB}\ns_lshl_b32 s{sROT}, s{sROT}, 1\ns_and_b32 s{sROT}, s{sROT}, 6")
    if OPT["lay"] == 2:
        E(f"s_cmp_lt_u32 s{sW}, 4\ns_cbranch_scc1 L_m0")
        helper_entry()
        E("s_branch L_helper\nL_m0:")
    else:
        E(f"s_cmp_ge_u32 s{sW}, 4\ns_cbranch_scc1 L_h0")

def main_wave():
    vXD, vWD, vXA, vWA, vQA = 4, 8, 10, 14, 16
    vFB = 24
    aK, aV, aQ = 48, 64, 80
    vP = 96
    vXF = 128
    sXO, sWO, sM0, sX, sZ, sQS = 92, 93, 94, 95, 100, 101
    sKVb, sKV, sJ, sCnt, sMask = sT + 2, sT + 4, sT + 6, sT + 7, sT + 8
    ta, tb, tc = sT + 10, sT + 11, sT + 12
    vO, vKV = 128, 192
    (vIDX, vKA, vVA, vSA, vSB, vSV, vEW, vER0, vER1, vERV, vRW, vRWl, vRR, vRRl, vOA, vOB) = range(112, 128)
    vF2, vOne, vF2P, vOD, vOnes, vZer = range(17, 23)
    vQ = 96; SA, SB = 24, 40; vT = 56
    E(f"""
    s_lshl2_add_u32 s{sT}, s{sRB}, s{sW}
    s_lshl_b32 s{sT}, s{sT}, 15
    v_lshrrev_b32 v2, 3, v1
    v_lshl_add_u32 v2, v2, 10, s{sT}
    v_lshrrev_b32 v3, 4, v1
    v_xor_b32 v3, v3, v1
    v_and_b32 v3, 7, v3
    v_lshl_add_u32 v{vXD}, v3, 4, v2
    v_xor_b32 v{vXD+1}, 64, v{vXD}
    s_movk_i32 s{sT}, 7168
    v_add_u32 v{vXD+1}, s{sT}, v{vXD+1}
    s_movk_i32 s{sT}, 14336
    v_add_u32 v{vXD+2}, s{sT}, v{vXD}
    v_add_u32 v{vXD+3}, s{sT}, v{vXD+1}
    v_lshrrev_b32 v2, 2, v0
    v_mul_u32_u24 v2, 3072, v2
    v_and_b32 v3, 3, v1
    s_lshl2_add_u32 s{sT}, s{sHP}, 64
    v_add_u32 v3, s{sT}, v3
    v_lshl_add_u32 v{vWD}, v3, 4, v2
    s_mul_i32 s{sM0}, s{sW}, {WPART}
    s_mov_b32 s{SRDX+2}, 0x200000
    s_mov_b32 s{SRDX+3}, 0x00020000
    s_mov_b64 {sr(SRDW+2,2)}, {sr(SRDX+2,2)}
    """)
    def dma(i, first=False):
        slot = i % NS
        g = []
        for seg in range(2):
            g.append([f"buffer_load_dwordx4 v{vWD}, {sr(SRDW,4)}, s{sWO} offen offset:{seg*1024} lds"])
        for j in range(4):
            g.append([f"buffer_load_dwordx4 v{vXD+j}, {sr(SRDX,4)}, s{sXO} offen offset:{j*1024} lds"])
        st = sROT if i == 0 else sT
        pre = [] if i == 0 else [f"s_add_u32 s{sT}, s{sROT}, {i}", f"s_and_b32 s{sT}, s{sT}, 7"]
        pre += [f"s_add_u32 m0, s{sM0}, {RING+slot*SLOT+4096}", f"s_mul_i32 s{sWO}, s{st}, 196608"]
        if first:
            pre += ["s_waitcnt lgkmcnt(0)", f"s_mov_b64 {sr(SRDW,2)}, {sr(pW,2)}", f"s_mov_b64 {sr(SRDX,2)}, {sr(pX,2)}"]
        g[0] = pre + g[0]
        g[2] = [f"s_add_u32 m0, s{sM0}, {RING+slot*SLOT}", f"s_lshl_b32 s{sXO}, s{st}, 7"] + g[2]
        return g
    for gi, g in enumerate(dma(0, True)):
        if gi == 0 and OPT["eb"] == 2: g.insert(len(g) - 1, "s_barrier")
        E(g)
    if OPT["eb"] == 1: E("s_barrier")
    if OPT["lay"] == 0:
        for g in dma(1): E(g)
        E("s_branch L_m1")
        helper_entry(); helper_wave()
        E("L_m1:")
        stamp("m")
    elif OPT["lay"] == 2:
        stamp("m")
        held = dma(1)
        for g in held[:OPT["d1"]]: E(g)
        held = held[OPT["d1"]:]
    else:
        E("s_branch L_m1")
        helper_entry()
        E("s_branch L_helper\nL_m1:")
        stamp("m")
        for g in dma(1): E(g)
    if OPT["tlb"]:
        E(f"""
        s_mov_b32 s{ta}, {WS_FL + 0x100000}
        s_load_dword s18, {sr(pWs,2)}, s{ta}
        s_load_dword s19, {sr(pDbg,2)}, 128
        s_load_dword s20, {sr(pOut,2)}, 0
        s_load_dword s21, {sr(pWo,2)}, 0
        """)
    E(f"""
    s_add_u32 s{pFL}, s{pWs}, {WS_FL}
    s_addc_u32 s{pFL+1}, s{pWs+1}, 0
    s_add_u32 s{ta}, s{sM0}, {RING}
    v_and_b32 v2, 31, v1
    v_lshl_add_u32 v2, v2, 7, s{ta}
    v_bfe_u32 v3, v1, 1, 3
    v_lshrrev_b32 v{vXA+1}, 5, v1
    v_xor_b32 v3, v3, v{vXA+1}
    v_lshl_add_u32 v{vXA}, v3, 4, v2
    v_xor_b32 v{vXA+1}, 32, v{vXA}
    v_xor_b32 v{vXA+2}, 64, v{vXA}
    v_xor_b32 v{vXA+3}, 0x60, v{vXA}
    v_lshrrev_b32 v2, 5, v1
    v_lshlrev_b32 v2, 3, v2
    v_bfe_u32 v3, v1, 2, 2
    v_add_u32 v2, v2, v3
    v_lshlrev_b32 v2, 6, v2
    v_and_b32 v3, 3, v1
    v_lshl_add_u32 v2, v3, 3, v2
    v_bfe_u32 v3, v1, 4, 1
    v_lshl_add_u32 v2, v3, 5, v2
    v_add_u32 v{vWA}, {RING+4096}, v2
    v_add_u32 v{vWA+1}, {RING+4096+2*SLOT}, v2
    v_add_u32 v{vQA}, {WQ}, v2
    """)
    E(f"""
    s_and_b32 s{sX}, s{sW}, 1
    s_lshr_b32 s{sZ}, s{sW}, 1
    s_mov_b32 s{sQS}, {fbits(0.25 * math.log2(math.e))}
    s_lshl2_add_u32 s{ta}, s{sRB}, s{sW}
    s_lshl_b32 s{ta}, s{ta}, 11
    s_lshl_b32 s{tb}, s{sHP}, 18
    s_add_u32 s{ta}, s{ta}, s{tb}
    {f"s_load_dword s22, {sr(pWs,2)}, s{ta}" if OPT["tlb"] == 2 else ""}
    {f"s_add_u32 s{tb}, s{ta}, 0x20000" if OPT["tlb"] == 2 else ""}
    {f"s_load_dword s23, {sr(pWs,2)}, s{tb}" if OPT["tlb"] == 2 else ""}
    v_lshlrev_b32 v{vKA}, 4, v1
    v_add_u32 v{vSA}, s{ta}, v{vKA}
    v_add_u32 v{vSB}, 0x20000, v{vSA}
    v_and_b32 v{vVA}, 15, v1
    v_lshrrev_b32 v2, 5, v1
    v_lshl_add_u32 v{vVA}, v2, 4, v{vVA}
    v_lshlrev_b32 v{vVA}, 4, v{vVA}
    v_bfe_u32 v2, v1, 4, 1
    v_lshlrev_b32 v2, 17, v2
    v_add3_u32 v{vSV}, v2, v{vVA}, s{ta}
    s_add_u32 s{tb}, s{sM0}, {EXCH}
    v_add_u32 v{vEW}, s{tb}, v{vKA}
    s_lshl_b32 s{ta}, s{sX}, 10
    s_add_u32 s{ta}, s{ta}, {EXCH}
    s_mul_i32 s{tb}, s{sZ}, 12288
    s_add_u32 s{tc}, s{ta}, s{tb}
    v_add_u32 v{vER0}, s{tc}, v{vKA}
    s_sub_u32 s{tc}, s{ta}, s{tb}
    s_add_u32 s{tc}, s{tc}, 12288
    v_add_u32 v{vER1}, s{tc}, v{vKA}
    s_lshl_b32 s{ta}, s{sX}, 8
    s_add_u32 s{tc}, s{ta}, s{tb}
    s_add_u32 s{tc}, s{tc}, {EXCH}
    v_add_u32 v{vERV}, s{tc}, v{vKA}
    s_lshl1_add_u32 s{ta}, s{sHP}, s{sX}
    s_lshl_b32 s{tb}, s{ta}, 17
    s_lshl_b32 s{tc}, s{sZ}, 12
    s_add_u32 s{tb}, s{tb}, s{tc}
    s_add_u32 s{sKVb}, s{pWs}, s{tb}
    s_addc_u32 s{sKVb+1}, s{pWs+1}, 0
    s_lshl_b32 s{sJ}, s{sRB}, 13
    s_lshl1_add_u32 s{tb}, s{sRB}, s{sZ}
    s_lshl_b32 s{tb}, s{tb}, 6
    s_add_u32 s{tb}, s{tb}, s{ta}
    s_lshl_b32 s{tb}, s{tb}, 10
    s_add_u32 s{tb}, s{tb}, {WS_OF}
    v_add_u32 v{vOA}, s{tb}, v{vKA}
    v_add_u32 v{vOB}, 0x8000, v{vOA}
    s_mul_i32 s{ta}, s{sW}, {REDS}
    s_add_u32 s{ta}, s{ta}, {RED}
    v_add_u32 v{vRW}, s{ta}, v{vKA}
    v_lshl_add_u32 v{vRWl}, v1, 2, s{ta}
    s_xor_b32 s{ta}, s{sW}, 2
    s_mul_i32 s{ta}, s{ta}, {REDS}
    s_add_u32 s{ta}, s{ta}, {RED}
    v_add_u32 v{vRR}, s{ta}, v{vKA}
    v_lshl_add_u32 v{vRRl}, v1, 2, s{ta}
    s_lshl_b32 s{ta}, s{sRB}, 4
    s_add_u32 s{ta}, s{ta}, {F2}
    s_add_u32 s{tb}, s{ta}, s{sHP}
    s_lshl_b32 s{tb}, s{tb}, {FSH}
    v_mov_b32 v{vF2}, s{tb}
    v_mov_b32 v{vOne}, 1
    v_and_b32 v3, 15, v1
    v_add_u32 v2, s{ta}, v3
    v_lshlrev_b32 v{vF2P}, {FSH}, v2
    {f"s_lshr_b32 s{tb}, s{sHP}, 2" if OPT["fm"] else f"s_and_b32 s{tb}, s{sHP}, 3"}
    s_lshl2_add_u32 s{ta}, s{sRB}, s{tb}
    s_lshl_b32 s{ta}, s{ta}, 15
    s_add_u32 s{ta}, s{ta}, {WS_OF}
    v_add_u32 v{vOD}, s{ta}, v{vKA}
    v_mov_b32 v{vIDX}, 0xdddddddd
    v_and_b32 v2, 27, v1
    v_cmp_eq_u32 vcc, 16, v2
    v_mov_b32 v2, {CNT+32}
    v_mov_b32 v{vZer}, {CNT+16}
    s_mov_b32 s{sMask}, 0x0000ffff
    s_mov_b32 s{sMask+1}, 0x0000ffff
    v_cndmask_b32 v{vOnes}, v{vZer}, v2, vcc
    s_mov_b32 s{sCnt}, 8
    """)
    def kvaddr():
        return [f"s_add_u32 s{sJ}, s{sJ}, 0x2000", f"s_and_b32 s{sJ}, s{sJ}, 0x1e000",
                f"s_add_u32 s{sKV}, s{sKVb}, s{sJ}", f"s_addc_u32 s{sKV+1}, s{sKVb+1}, 0"]
    E(kvaddr())
    def reads(n):
        i, s = n >> 2, n & 3
        slot = i % NS
        a = vWA + (slot >> 1); so = (slot & 1) * SLOT + s * WPART
        f = vFB + 8 * (n % 3)
        o = [f"ds_read_b128 {vr(vXF+4*n,4)}, v{vXA+s} offset:{slot*SLOT}"]
        for c in range(2):
            o.append(f"ds_read_b64_tr_b16 {vr(f+4*c,2)}, v{a} offset:{so+1024*c}")
            o.append(f"ds_read_b64_tr_b16 {vr(f+2+4*c,2)}, v{a} offset:{so+1024*c+256}")
        return o
    def dmaq(h):
        return [[f"s_add_u32 s{sT}, s{sROT}, {i}", f"s_and_b32 s{sT}, s{sT}, 7", f"s_add_u32 m0, s{sXO}, {WQ+4096*i}",
                 f"s_mul_i32 s{sWO}, s{sT}, 196608", f"buffer_load_dwordx4 v{vWD+1}, {sr(SRDW,4)}, s{sWO} offen lds"] for i in range(4*h, 4*h+4)]
    E(f"v_subrev_u32 v{vWD+1}, 1024, v{vWD}")
    if held:
        E(f"s_waitcnt vmcnt({OPT['d1'] + 6 - OPT['d1w']})")
        for g in held: E(g)
    E("s_waitcnt vmcnt(6)")
    if STAMP == 5: stamp("m")
    E("s_barrier")
    stamp("m")
    E(reads(0) + reads(1))
    pend = dma(2)
    E(pend.pop(0)); E(pend.pop(0))
    for n in range(32):
        f = vFB + 8 * (n % 3); x = vXF + 4 * n
        c = (lambda a: "0" if n == 0 else vr(a, 16))
        m = [f"v_mfma_f32_32x32x16_bf16 {vr(aV,16)}, {vr(x,4)}, {vr(f+4,4)}, {c(aV)}",
             f"v_mfma_f32_32x32x16_bf16 {vr(aK,16)}, {vr(f,4)}, {vr(x,4)}, {c(aK)}"]
        r = reads(n + 2) if n + 2 < 32 else []
        E(f"s_waitcnt lgkmcnt({5 if n < 31 else 0})")
        E(m[0])
        if (n + 2) % 4 == 0 and n + 2 < 32:
            b = (n + 2) >> 2
            assert not pend
            E(f"s_waitcnt vmcnt({6 if b < 7 else 4}) lgkmcnt(0)")
            if STAMP == 3: stamp("m")
            E("s_barrier")
            if STAMP == 2: stamp("m")
            if b + 2 <= 7: pend = dma(b + 2)
            else:
                pend = dmaq(b - 6)
                if b == 6: E(f"s_lshl_b32 s{sXO}, s{sW}, 10")
        E(r[:3])
        if pend: E(pend.pop(0))
        E(m[1]); E(r[3:])
        if pend: E(pend.pop(0))
    stamp("m")
    ep = [f"v_cvt_pk_bf16_f32 v{vP+j}, v{aK+2*j}, v{aK+1+2*j}" for j in range(4)]
    ep += [f"global_store_dwordx4 v{vSA}, {vr(vP,4)}, {sr(pWs,2)} sc1"]
    ep += [f"v_cvt_pk_bf16_f32 v{vP+j}, v{aK+2*j}, v{aK+1+2*j}" for j in range(4, 8)]
    ep += [f"global_store_dwordx4 v{vSB}, {vr(vP+4,4)}, {sr(pWs,2)} sc1"]
    ep += [f"v_permlane32_swap_b32 v{vP+8+a}, v{vP+10+a}" for a in (0, 1)]
    ep += [f"global_store_dwordx4 v{vSV}, {vr(vP+8,4)}, {sr(pWs,2)} offset:1024 sc1"]
    ep += [f"v_permlane32_swap_b32 v{vP+8+a}, v{vP+10+a}" for a in (4, 5)]
    ep += [f"global_store_dwordx4 v{vSV}, {vr(vP+12,4)}, {sr(pWs,2)} offset:1536 sc1"]
    LQ = OPT["lq"]
    qb = [40, 44, 24, 28, 32, 36, 64, 68, 72]
    def qread(n):
        f = qb[n % 9]
        return [f"ds_read_b64_tr_b16 {vr(f,2)}, v{vQA} offset:{1024*n}", f"ds_read_b64_tr_b16 {vr(f+2,2)}, v{vQA} offset:{1024*n+256}"]
    E("s_nop 10")
    for j in range(8):
        E(f"v_cvt_pk_bf16_f32 v{vP+8+j}, v{aV+2*j}, v{aV+1+2*j}")
    cut = OPT["epc"]
    E(ep[:cut])
    E(f"s_waitcnt vmcnt({4 + sum('store' in x for x in ep[:cut])})\ns_barrier")
    if STAMP == 4: stamp("m")
    for n in range(LQ): E(qread(n))
    E(ep[cut:])
    late = [f"ds_read_b128 {vr(vO+16*q+8+4*e,4)}, v{vZer}" for q in range(4) for e in range(2)]
    late += [f"ds_write_b128 v{vEW}, {vr(vP+4*j,4)} offset:{2048+1024*j}" for j in range(4)]
    late += [f"ds_read_b128 {vr(vKV+12*st+4+4*e,4)}, v{vOnes}" for st in range(4) for e in range(2)]
    nl = 0
    for n in range(32):
        E(f"s_waitcnt lgkmcnt({min(15, 2*min(LQ-1, 31-n) + nl)})")
        E(f"v_mfma_f32_32x32x16_bf16 {vr(aQ,16)}, {vr(qb[n%9],4)}, {vr(vXF+4*n,4)}, {'0' if n == 0 else vr(aQ,16)}")
        if n == OPT["ackn"]:
            if STAMP == 4: stamp("m")
            E("s_waitcnt vmcnt(0)\ns_barrier")
            if STAMP == 4: stamp("m")
        if n + LQ < 32:
            if n + LQ == 16:
                if STAMP == 4: stamp("m")
                E("s_waitcnt vmcnt(4)\ns_barrier")
                if STAMP == 4: stamp("m")
            E(qread(n + LQ))
        else:
            E(late[:2]); late = late[2:]; nl += 2
        r0 = vXF + 4 * (n - 1)
        for r in range(r0, r0 + 4):
            if n >= 1 and r < vKV and (r - vO) % 16 < 8: E(f"v_mov_b32 v{r}, 0")
    E(late)
    E(f"s_nop {max(0, 11 - len(late))}")
    for o in (0, 1):
        for j in range(8):
            E(f"v_mul_f32 v{aQ+8*o+j}, s{sQS}, v{aQ+8*o+j}")
        for j in range(4):
            E(f"v_cvt_pk_bf16_f32 v{aK+4*o+j}, v{aQ+8*o+2*j}, v{aQ+8*o+1+2*j}")
        E(f"ds_write_b128 v{vEW}, {vr(aK+4*o,4)} offset:{1024*o}")
    if STAMP == 4: stamp("m"); E("s_waitcnt vmcnt(0)"); stamp("m")
    E("s_waitcnt vmcnt(0) lgkmcnt(0)\ns_barrier")
    stamp("m")
    E(f"""
    ds_read_b128 {vr(vQ,4)}, v{vER1}
    ds_read_b128 {vr(vKV,4)}, v{vER0} offset:2048
    ds_read_b128 {vr(vQ+4,4)}, v{vER1} offset:6144
    s_mov_b64 exec, {sr(sMask,2)}
    ds_read_b128 {vr(vKV+4,4)}, v{vERV} offset:4096
    ds_read_b128 {vr(vKV+8,4)}, v{vERV} offset:5120
    ds_read_b128 {vr(vKV+16,4)}, v{vERV} offset:{4096+6144}
    ds_read_b128 {vr(vKV+20,4)}, v{vERV} offset:{5120+6144}
    s_mov_b64 exec, -1
    ds_read_b128 {vr(vQ+8,4)}, v{vER0}
    ds_read_b128 {vr(vQ+12,4)}, v{vER0} offset:6144
    ds_read_b128 {vr(vKV+12,4)}, v{vER0} offset:{2048+6144}
    s_waitcnt lgkmcnt(8)
    v_mfma_f32_32x32x16_bf16 {vr(SA,16)}, {vr(vKV,4)}, {vr(vQ,4)}, 0
    s_nop 10
    s_waitcnt lgkmcnt(0)
    """)
    def kload(st, par):
        return [f"global_load_dwordx4 {vr(vKV+12*st,4)}, v{vKA}, {sr(sKV,2)} offset:{par*2048} sc1"]
    def vload(st, par):
        return [f"s_mov_b64 exec, {sr(sMask,2)}",
                f"global_load_dwordx4 {vr(vKV+12*st+4,4)}, v{vVA}, {sr(sKV,2)} offset:{par*2048+1024} sc1",
                f"global_load_dwordx4 {vr(vKV+12*st+8,4)}, v{vVA}, {sr(sKV,2)} offset:{par*2048+1536} sc1",
                "s_mov_b64 exec, -1"]
    def step(t, q, mode="loop", lo=0, hi=16, extra=None):
        cur, oth = (SA, SB) if q % 2 == 0 else (SB, SA)
        tp, qp = (t, q - 1) if q else ((t - 1) % 4, 3)
        tn, qn = (t, q + 1) if q < 3 else ((t + 1) % 4, 0)
        after2, afterq, after1 = extra or ([], [], [])
        st = (t + 3) % 4; par = (t + 3) & 1
        if mode == "loop":
            if q == 0:
                after2 = vload(st, par); afterq = kload(st, par)
            if q == 1 and par == 1:
                ka = kvaddr(); after2 = ka[:2]; after1 = ka[2:]
            if q == 3:
                after2 = ["s_waitcnt vmcnt(6)"]
                if t == 2:
                    after2 += [f"s_sub_u32 s{sCnt}, s{sCnt}, 1"]; afterq = [f"s_cmp_lg_u32 s{sCnt}, 0"]
        for i in range(lo, hi):
            E(f"v_exp_f32 v{cur+i}, v{cur+i}")
            if i == 1 and not (mode == "first" and q == 0):
                E(f"v_smfmac_f32_32x32x32_bf16 {vr(vO+16*qp,16)}, {vr(vKV+12*tp+8,4)}, {vr(oth+8,8)}, v{vIDX}")
                E(after2)
            if i == 4 and not (mode == "last" and q == 3):
                E(f"v_mfma_f32_32x32x16_bf16 {vr(oth,16)}, {vr(vKV+12*tn,4)}, {vr(vQ+4*qn,4)}, 0")
                E(afterq)
            if i == 10:
                E(f"v_smfmac_f32_32x32x32_bf16 {vr(vO+16*q,16)}, {vr(vKV+12*t+4,4)}, {vr(cur,8)}, v{vIDX}")
                E(after1)
    for q in range(4): step(0, q, "first")
    E("s_barrier")
    stamp("m")
    E(kload(2, 0) + vload(2, 0) + vload(3, 1) + kload(3, 1) + kvaddr())
    E("s_branch L_attn1\n.p2align 3\nL_attn:")
    step(2, 3, lo=11)
    for t in (3, 0, 1, 2):
        if t == 1: E("L_attn1:")
        for q in range(4): step(t, q, hi=(11 if (t, q) == (2, 3) else 16))
    if OPT.get("itst"):
        E(f"s_memtime s[90:91]\ns_mov_b32 m0, s{sCnt}\ns_waitcnt lgkmcnt(0)\nv_writelane_b32 v23, s90, m0")
    E("s_cbranch_scc1 L_attn")
    step(2, 3, lo=11)
    vR = 64
    def sendw(q): return [f"ds_write_b128 v{vRW}, {vr(vO+16*q,4)} offset:{2048*q}", f"ds_write_b128 v{vRW}, {vr(vO+16*q+4,4)} offset:{2048*q+1024}",
                          f"ds_write_b32 v{vRWl}, v{vO+16*q+8} offset:{4096+256*q}"]
    recv = ["s_waitcnt lgkmcnt(0)", "s_barrier",
            f"ds_read_b32 v{vR+16}, v{vRRl} offset:4096", f"ds_read_b128 {vr(vR,4)}, v{vRR}", f"ds_read_b128 {vr(vR+4,4)}, v{vRR} offset:1024",
            f"ds_read_b32 v{vR+17}, v{vRRl} offset:4352", f"ds_read_b128 {vr(vR+8,4)}, v{vRR} offset:2048", f"ds_read_b128 {vr(vR+12,4)}, v{vRR} offset:3072"]
    step(3, 0, "last"); step(3, 1, "last")
    w0 = sendw(0)
    step(3, 2, "last", extra=(w0[:1], w0[1:2], w0[2:]))
    step(3, 3, "last", extra=(sendw(1), [], recv))
    O2, O3 = vO + 32, vO + 48
    E(f"""
    s_waitcnt lgkmcnt(3)
    v_add_f32 v{O2+8}, v{O2+8}, v{vR+16}
    v_smfmac_f32_32x32x32_bf16 {vr(O3,16)}, {vr(vKV+36+8,4)}, {vr(SB+8,8)}, v{vIDX}
    """)
    stamp("m")
    def fin(o, r, rl, dst, addr):
        if rl is not None: E(f"v_add_f32 v{o+8}, v{o+8}, v{rl}")
        E(f"v_rcp_f32 v{vT}, v{o+8}")
        if r is not None:
            for j in range(8): E(f"v_add_f32 v{o+j}, v{o+j}, v{r+j}")
        else:
            E("s_nop 0")
        for j in range(8): E(f"v_mul_f32 v{o+j}, v{o+j}, v{vT}")
        for j in range(4): E(f"v_cvt_pk_bf16_f32 v{dst+j}, v{o+2*j}, v{o+2*j+1}")
        E(f"global_store_dwordx4 v{addr}, {vr(dst,4)}, {sr(pWs,2)} sc1")
    fin(O2, vR, None, SA, vOA)
    E("s_waitcnt lgkmcnt(0)")
    fin(O3, vR + 8, vR + 17, SA + 4, vOB)
    E(f"""
    s_mov_b32 s{ta}, {fbits(2.0**-30)}
    s_mov_b32 s{tb}, {fbits(2.0**50)}
    v_min_f32 v{vT+6}, v{O2+8}, v{O3+8}
    v_max_f32 v{vT+7}, v{O2+8}, v{O3+8}
    v_cmp_lt_f32 vcc, s{ta}, v{vT+6}
    v_cmp_gt_f32 {sr(tc,2)}, s{tb}, v{vT+7}
    v_pk_mul_f32 {vr(vT+2,2)}, {vr(O2,2)}, 0 op_sel_hi:[1,0]
    s_and_b64 {sr(tc,2)}, {sr(tc,2)}, vcc
    """)
    for j in (2, 4, 6, 16, 18, 20, 22):
        E(f"v_pk_fma_f32 {vr(vT+2,2)}, {vr(O2+j,2)}, 0, {vr(vT+2,2)} op_sel_hi:[1,0,1]")
    E(f"""
    v_cmp_o_f32 vcc, v{vT+2}, v{vT+3}
    s_nop 1
    s_and_b64 vcc, {sr(tc,2)}, vcc
    s_cmp_eq_u64 vcc, -1
    s_cbranch_scc0 L_safe
    L_pub:
    s_waitcnt vmcnt(0)
    s_barrier
    """)
    stamp("m")
    E(f"s_cmp_lg_u32 s{sW}, 0\ns_cbranch_scc1 L_mdone")
    put_flag(vF2, vOne)
    E("s_waitcnt vmcnt(0)")
    poll_global(vF2P, pFL, 2)
    E(f"s_mov_b32 s{sKV}, s{pWs}\ns_mov_b32 s{sKV+1}, s{pWs+1}")
    for g in range(8):
        E(f"s_mov_b32 m0, {OFL+4096*g}")
        if g: E(f"s_add_u32 s{sKV}, s{sKV}, 4096\ns_addc_u32 s{sKV+1}, s{sKV+1}, 0")
        else: E("s_nop 0")
        for j in range(4):
            E(f"global_load_lds_dwordx4 v{vOD}, {sr(sKV,2)} offset:{1024*j} sc1")
    for n in (24, 16, 8, 0):
        E(f"s_waitcnt vmcnt({n})\ns_barrier")
    if SPM >= 0:
        E("s_branch L_mdone2\nL_mdone:\ns_barrier\ns_barrier\ns_barrier\ns_barrier\nL_mdone2:")
    else:
        E("L_mdone:")
    stamp_flush("m"); spin_end("m")
    if OPT.get("itst"):
        E(f"v_lshl_add_u32 v2, v1, 2, v2\nv_add_u32 v2, 0x100000, v2\ns_mov_b64 exec, 0xff\nglobal_store_dword v2, v23, {sr(pWs,2)}")
    E("s_endpgm")
    vM, vC = vT + 6, 64
    vQ += 8; vO += 32
    E(f"""
    L_safe:
    s_waitcnt vmcnt(0)
    s_lshl_b32 s{ta}, s{sZ}, 12
    s_sub_u32 s{sKVb}, s{sKVb}, s{ta}
    s_subb_u32 s{sKVb+1}, s{sKVb+1}, 0
    s_mov_b32 s{sKV}, s{sKVb}
    s_mov_b32 s{sKV+1}, s{sKVb+1}
    s_mov_b32 s{sCnt}, 64
    v_mov_b32 v{vM}, 0xff800000
    v_mov_b32 v{vM+1}, 0xff800000
    L_safe1:
    global_load_dwordx4 {vr(vKV,4)}, v{vKA}, {sr(sKV,2)} sc1
    s_add_u32 s{sKV}, s{sKV}, 2048
    s_addc_u32 s{sKV+1}, s{sKV+1}, 0
    s_waitcnt vmcnt(0)
    v_mfma_f32_32x32x16_bf16 {vr(SA,16)}, {vr(vKV,4)}, {vr(vQ,4)}, 0
    v_mfma_f32_32x32x16_bf16 {vr(SB,16)}, {vr(vKV,4)}, {vr(vQ+4,4)}, 0
    s_nop 15
    """)
    for j in range(8):
        E(f"v_max3_f32 v{vM}, v{SA+2*j}, v{SA+2*j+1}, v{vM}\nv_max3_f32 v{vM+1}, v{SB+2*j}, v{SB+2*j+1}, v{vM+1}")
    E(f"""
    s_sub_u32 s{sCnt}, s{sCnt}, 1
    s_cmp_lg_u32 s{sCnt}, 0
    s_cbranch_scc1 L_safe1
    v_mov_b32 v{SA}, v{vM}
    v_mov_b32 v{SB}, v{vM+1}
    s_nop 1
    v_permlane32_swap_b32 v{SA}, v{vM}
    v_permlane32_swap_b32 v{SB}, v{vM+1}
    s_nop 1
    v_max_f32 v{vM}, v{vM}, v{SA}
    v_max_f32 v{vM+1}, v{vM+1}, v{SB}
    """)
    for j in range(16):
        E(f"v_sub_f32 v{vC+j}, 0, v{vM}\nv_sub_f32 v{vC+16+j}, 0, v{vM+1}\nv_mov_b32 v{vO+j}, 0\nv_mov_b32 v{vO+16+j}, 0")
    E(f"""
    s_mov_b32 s{sKV}, s{sKVb}
    s_mov_b32 s{sKV+1}, s{sKVb+1}
    s_mov_b32 s{sCnt}, 64
    L_safe2:
    """)
    E(kload(0, 0) + vload(0, 0))
    E(f"""
    s_add_u32 s{sKV}, s{sKV}, 2048
    s_addc_u32 s{sKV+1}, s{sKV+1}, 0
    s_waitcnt vmcnt(0)
    v_mfma_f32_32x32x16_bf16 {vr(SA,16)}, {vr(vKV,4)}, {vr(vQ,4)}, {vr(vC,16)}
    v_mfma_f32_32x32x16_bf16 {vr(SB,16)}, {vr(vKV,4)}, {vr(vQ+4,4)}, {vr(vC+16,16)}
    s_nop 15
    """)
    for j in range(32):
        E(f"v_exp_f32 v{SA+j}, v{SA+j}")
    E(f"""
    s_nop 1
    v_smfmac_f32_32x32x32_bf16 {vr(vO,16)}, {vr(vKV+4,4)}, {vr(SA,8)}, v{vIDX}
    v_smfmac_f32_32x32x32_bf16 {vr(vO,16)}, {vr(vKV+8,4)}, {vr(SA+8,8)}, v{vIDX}
    v_smfmac_f32_32x32x32_bf16 {vr(vO+16,16)}, {vr(vKV+4,4)}, {vr(SB,8)}, v{vIDX}
    v_smfmac_f32_32x32x32_bf16 {vr(vO+16,16)}, {vr(vKV+8,4)}, {vr(SB+8,8)}, v{vIDX}
    s_sub_u32 s{sCnt}, s{sCnt}, 1
    s_cmp_lg_u32 s{sCnt}, 0
    s_cbranch_scc1 L_safe2
    s_nop 15
    """)
    fin(O2, None, None, SA, vOA); fin(O3, None, None, SA + 4, vOB)
    E("s_branch L_pub")

def helper_wave():
    sH, sC, sMH, sRT, sCB, sD = sT, sT + 1, sT + 2, sT + 3, sT + 4, sT + 5
    sLd, sDs = sT + 6, sT + 7
    t0 = sT + 8
    sLead, sWst = 92, 93
    sAT = 100
    vGW = 156
    vGWA = 155
    vXF = 160
    vG, vGA0, vGA1 = 164, 165, 166
    vU = 168
    vF4, vF4P, vWqP, vWqG, vRdy, vF1, vF1P = range(141, 148)
    sWq = 94
    vTA, vTS = 148, 152
    sUW = sT + 13
    assert NS == 3
    vPar = 4
    E(f"""
    L_helper:
    s_lshr_b32 s{sC}, s{sH}, 1
    s_add_u32 s{sD}, s{sCH}, s{sC}
    s_and_b32 s{sCB if OPT["fm"] else sRT}, s{sHP}, 3
    s_lshr_b32 s{sRT if OPT["fm"] else sCB}, s{sHP}, 2
    v_lshrrev_b32 v3, 5, v1
    v_lshlrev_b32 v3, 4, v3
    s_lshl_b32 s{t0+2}, s{sROT}, 2
    s_add_u32 s{t0+2}, s{t0+2}, s{sH}
    s_lshl_b32 s{t0+2}, s{t0+2}, 5
    s_add_u32 s{t0+2}, s{t0+2}, {GW}
    v_add_u32 v{vGWA}, s{t0+2}, v3
    v_mov_b32 v12, 0
    v_mov_b32 v13, 0
    v_mov_b32 v14, 0
    v_mov_b32 v15, 0
    s_cmp_lt_u32 s2, 16
    s_cselect_b32 s{sLead}, s{sW}, 0
    """)
    E(f"s_add_u32 s{pFL}, s{pWs}, {WS_FL}\ns_addc_u32 s{pFL+1}, s{pWs+1}, 0")
    def claim_kv():
        E(f"""
        s_lshl2_add_u32 s{t0}, s{sRB}, s{sH}
        s_lshl_b32 s{t0}, s{t0}, 11
        s_lshl_b32 s{t0+1}, s{sHP}, 18
        s_add_u32 s{t0}, s{t0}, s{t0+1}
        """)
        if OPT["clm"] in (1, 3):
            E(f"""
            v_and_b32 v10, 31, v1
            v_lshl_add_u32 v10, v10, 6, s{t0}
            v_lshrrev_b32 v11, 5, v1
            v_lshl_add_u32 v10, v11, 17, v10
            global_store_dword v10, v12, {sr(pWs,2)} sc1
            """)
        else:
            E(f"""
            v_lshl_add_u32 v10, v1, 4, s{t0}
            v_add_u32 v11, 0x20000, v10
            global_store_dwordx4 v10, v[12:15], {sr(pWs,2)} sc1
            global_store_dwordx4 v10, v[12:15], {sr(pWs,2)} offset:1024 sc1
            global_store_dwordx4 v11, v[12:15], {sr(pWs,2)} sc1
            global_store_dwordx4 v11, v[12:15], {sr(pWs,2)} offset:1024 sc1
            """)
    NCL = {0: 0, 1: 1, 2: 4, 3: 0}[OPT["clm"]]
    if NCL: claim_kv()
    stamp("h")
    E(f"""
    s_mul_i32 s{t0}, s{sC}, {URS}
    s_add_u32 s{t0}, s{t0}, {UR+4096}
    v_lshl_add_u32 v10, v1, 4, s{t0}
    v_and_b32 v11, 1, v1
    v_lshlrev_b32 v11, 4, v11
    v_cmp_gt_u32 vcc, 30, v1
    v_add_u32 v11, {CNT}, v11
    v_mov_b32 v2, 0x3f803f80
    v_cndmask_b32 v10, v11, v10, vcc
    ds_write_b128 v10, v[12:15]
    v_and_b32 v11, 3, v1
    v_lshlrev_b32 v11, 2, v11
    ds_write_b32 v11, v2 offset:{CNT+32}
    """)
    vWA, vRA = 16, 17
    if "prio1" in OPT: E(f"s_setprio {OPT['prio1']}")
    E(f"""
    s_mul_i32 s{t0}, s{sRT}, {WPART}
    s_add_u32 s{t0}, s{t0}, {RING}
    v_and_b32 v10, 31, v1
    v_lshl_add_u32 v10, v10, 7, s{t0}
    v_bfe_u32 v11, v1, 1, 3
    v_lshrrev_b32 v3, 5, v1
    v_xor_b32 v11, v11, v3
    s_lshl_b32 s{t0}, s{sH}, 1
    v_xor_b32 v11, s{t0}, v11
    v_lshl_add_u32 v{vGA0}, v11, 4, v10
    v_mov_b32 v{vG}, 0
    """)
    if not OPT["gath"]: E(f"""
    s_lshr_b32 s{sUW}, s{sHP}, 1
    s_sub_u32 s{sUW}, s{sUW}, s{sROT}
    s_and_b32 s{sUW}, s{sUW}, 7
    s_mul_i32 s{t0}, s{sUW}, 11
    s_lshr_b32 s{t0}, s{t0}, 5
    s_mul_i32 s{t0}, s{t0}, 3
    s_sub_u32 s{t0}, s{sUW}, s{t0}
    s_mul_i32 s{t0}, s{t0}, {SLOT}
    s_mul_i32 s{t0+1}, s{sH}, {WPART}
    s_add_u32 s{t0}, s{t0}, s{t0+1}
    s_add_u32 s{t0}, s{t0}, {RING}
    v_and_b32 v10, 3, v1
    v_bfe_u32 v11, v1, 2, 2
    v_lshlrev_b32 v10, 3, v10
    v_sub_u32 v10, v10, v11
    v_add_u32 v10, 7, v10
    v_bfe_u32 v11, v10, 1, 3
    v_xor_b32 v11, v11, v3
    s_and_b32 s{t0+1}, s{sHP}, 1
    s_lshl_b32 s{t0+1}, s{t0+1}, 2
    v_xor_b32 v11, s{t0+1}, v11
    v_lshlrev_b32 v11, 4, v11
    v_lshl_add_u32 v11, v10, 7, v11
    v_bfe_u32 v10, v1, 4, 1
    v_lshl_add_u32 v11, v10, 3, v11
    v_add_u32 v{vTA}, s{t0}, v11
    v_xor_b32 v{vTA+1}, 32, v{vTA}
    v_subrev_u32 v{vTA+2}, 512, v{vTA}
    v_subrev_u32 v{vTA+3}, 512, v{vTA+1}
    """)
    E(f"""
    s_mul_i32 s{t0}, s{sH}, {KGS}
    s_add_u32 s{t0}, s{t0}, {KG}
    s_mov_b32 m0, s{t0}
    v_and_b32 v10, 31, v1
    v_mul_u32_u24 v10, 272, v10
    v_lshl_add_u32 v10, v3, 4, v10
    v_add_u32 v{vRA}, s{t0}, v10
    s_mul_i32 s{t0}, s{sC}, {2*KGS}
    s_add_u32 s{t0}, s{t0}, {KG+KGS}
    v_lshl_add_u32 v{vWA}, v1, 4, s{t0}
    """)
    K = []
    def k(s, c=None):
        if isinstance(s, list): s = "\n".join(s)
        for x in s.split("\n"):
            x = x.strip()
            if not x: continue
            cc = c if c is not None else (8 if any(t in x for t in ("v_exp", "v_sin", "v_cos", "v_rcp", "ds_")) else 4)
            K.append((cc, x))
    va, vb, vt = 220, 221, 222
    log2e = math.log2(math.e)
    c_hi = struct.unpack("<f", struct.pack("<f", log2e))[0]
    c_lo = log2e - c_hi
    k(f"""
    s_waitcnt lgkmcnt(0)
    s_lshl_b32 s{t0}, s{sC}, 4
    s_lshr_b32 s{sLd}, s{sLd}, s{t0}
    s_lshl_b32 s{sLd}, s{sLd}, 16
    s_lshr_b32 s{sDs}, s{sDs}, s{t0}
    s_lshl_b32 s{sDs}, s{sDs}, 16
    s_mov_b32 s{t0}, {fbits(c_hi)}
    v_mov_b32 v{vt}, s{sLd}
    v_mul_f32 v{vt+1}, s{t0}, v{vt}
    v_fma_f32 v{vt+2}, v{vt}, s{t0}, -v{vt+1}
    v_fmac_f32 v{vt+2}, {fbits(c_lo)}, v{vt}
    v_exp_f32 v{vt+1}, v{vt+1}
    v_mul_f32 v{vt+2}, {fbits(math.log(2.0))}, v{vt+2}
    v_fma_f32 v{vt+1}, v{vt+1}, v{vt+2}, v{vt+1}
    v_cvt_pk_bf16_f32 v{vt+1}, v{vt+1}, v{vt+1}
    v_lshlrev_b32 v{vt}, 16, v{vt+1}
    s_waitcnt vmcnt({1+NCL})
    """)
    for j in range(6):
        k(f"v_lshlrev_b32 v{vPar+j}, 16, v{vPar+j}")
    k(f"""
    v_mul_f32 v{va}, v{vt}, v{vPar}
    v_mul_f32 v{vb}, v{vt}, v{vPar+1}
    v_mul_f32 v{vPar+2}, v{vt}, v{vPar+2}
    v_mul_f32 v{vPar+3}, v{vt}, v{vPar+3}
    v_mul_f32 v{va}, {fbits(c_hi)}, v{va}
    v_mul_f32 v{vb}, 0.15915494, v{vb}
    """)
    pkm = [OPT["pk0"]]
    def cmul(z, x, w):
        if pkm[0]:
            return [f"v_pk_mul_f32 {vr(z,2)}, {vr(x,2)}, {vr(w,2)} op_sel_hi:[0,1]",
                    f"v_pk_fma_f32 {vr(z,2)}, {vr(x,2)}, {vr(w,2)}, {vr(z,2)} op_sel:[1,1,0] op_sel_hi:[1,0,1] neg_lo:[1,0,0]"]
        return [f"v_mul_f32 v{z}, v{x}, v{w}\nv_mul_f32 v{z+1}, v{x}, v{w+1}",
                f"v_fma_f32 v{z}, -v{x+1}, v{w+1}, v{z}\nv_fmac_f32 v{z+1}, v{x+1}, v{w}"]
    def cmuls(lst):
        cm = [cmul(*a) for a in lst]
        k([c[0] for c in cm]); k([c[1] for c in cm])
    def direct(z, x):
        k(f"""
        v_mul_f32 v{vt+2}, {fbits(x)}, v{vb}
        v_mul_f32 v{vt+1}, {fbits(x)}, v{va}
        v_fract_f32 v{vt+2}, v{vt+2}
        v_exp_f32 v{vt+1}, v{vt+1}
        v_cos_f32 v{z}, v{vt+2}
        v_sin_f32 v{z+1}, v{vt+2}
        s_nop 0
        v_mul_f32 v{z}, v{z}, v{vt+1}
        v_mul_f32 v{z+1}, v{z+1}, v{vt+1}
        """)
    E1, E32, E256 = 226, 228, 230
    vE = 232
    vPk = 64
    npk = [0]
    DW = {False: [], True: []}
    def puts(lst, neg):
        for z, rows in lst:
            p = vPk + npk[0]; npk[0] += 1
            k(f"v_cvt_pk_bf16_f32 v{p}, v{z}, {'-' if neg else ''}v{z+1}")
            DW[neg] += [f"ds_write_addtid_b32 v{p} offset:{272*r}" for r in rows]
    def e(j): return vE + 2 * (j % 8)
    direct(e(1), 8.0); direct(E32, 32.0)
    k(f"v_mov_b32 v{e(0)}, 1.0\nv_mov_b32 v{e(0)+1}, 0\nv_mov_b32 v{e(4)}, v{E32}\nv_mov_b32 v{e(4)+1}, v{E32+1}")
    cmuls([(e(2), e(1), e(1)), (e(5), e(1), E32)])
    cmuls([(e(3), e(2), e(1)), (e(6), e(2), E32)])
    cmuls([(e(7), e(3), E32)])
    puts([(e(j), [j]) for j in range(4)], False)
    for j0 in range(4, 32, 4):
        if j0 + 4 < 32: cmuls([(e(j + 4), e(j), E32) for j in range(j0, j0 + 4)])
        puts([(e(j), [j]) for j in range(j0, j0 + 4)], False)
    vEF, vGF, vD = 192, 224, 176
    direct(E1, 1.0); direct(E256, 256.0)
    def row(r, h): return 8 * (r >> 2) + 4 * h + (r & 3)
    vGv = 192
    g = {x: vGv + 2 * x for x in range(9)}
    E2 = e(0)
    cmuls([(g[0], vPar + 4, vPar + 2), (E2, E1, E1)])
    cmuls([(g[1], g[0], E1), (g[2], g[0], E2)])
    cmuls([(g[3], g[1], E2), (g[4], g[2], E2)])
    puts([(g[x], [row(x, 0)]) for x in range(4)], True)
    cmuls([(g[5], g[3], E2), (g[6], g[4], E2)])
    cmuls([(g[7], g[5], E2), (g[8], g[6], E2)])
    puts([(g[x], [row(x, 0)]) for x in range(4, 8)], True)
    A = {o: vGv + 18 + 2 * i for i, o in enumerate((0, 2, 4, 6, 8))}
    cmuls([(A[o], g[o], E256) for o in (0, 2, 4, 6, 8)])
    puts([(A[o], [row(r, 1) for r in rs]) for o, rs in ((0, (0, 1)), (2, (2,)), (4, (3, 4, 5)), (6, (6,)), (8, (7,)))], True)
    src, dst = A, g
    for os_, r0, h in (((0, 4, 8), 8, 0), ((0, 4, 8), 8, 1), ((0, 8), 11, 0), ((0, 8), 11, 1), ((0, 8), 13, 0), ((0, 8), 13, 1)):
        cmuls([(dst[o], src[o], E256) for o in os_])
        puts([(dst[o], [row(r0 + i, h)]) for i, o in enumerate(os_)], True)
        src, dst = dst, src
    def D1(): E(DW[False] + [f"ds_read_b128 {vr(vEF+4*s,4)}, v{vRA} offset:{32*s}" for s in range(8)])
    def D2(): E(DW[True] + [f"ds_read_b128 {vr(vGF+4*s,4)}, v{vRA} offset:{32*s}" for s in range(8)])
    PL = [int(c) for c in "%05d" % OPT["pl"]]
    psync = PL[2] == PL[3]
    def D3():
        E("s_waitcnt lgkmcnt(0)")
        for s in range(8):
            E(f"v_mfma_f32_32x32x16_bf16 {vr(vD,16)}, {vr(vGF+4*s,4)}, {vr(vEF+4*s,4)}, {'0' if s == 0 else vr(vD,16)}")
        lx = newlab("nx")
        E(f"s_nop 9\ns_cmp_eq_u32 s{sMH}, 0\ns_cbranch_scc1 {lx}")
        for j in range(4):
            E(f"ds_write_b128 v{vWA}, {vr(vD+4*j,4)} offset:{1024*j}")
        if psync: lds_arrive(vCP, vOne)
        E(f"s_waitcnt lgkmcnt(0)\n{lx}:")
    (vCA, vCP, vOne, vTm, vAA, vBA, vUW, vCW, vCR, vAT, vF3, vWoG, vWoL, vF3P, vAL, vOut, vg, vomg, vOL, vGPw, vGPr, vWoP, vUL, vClO) = range(24, 48)
    vA = 48; vAcc = 96
    LQH = {0: 2, 1: 0, 2: 1}[OPT["xm"]]
    LOH = [{0: 2, 1: 1, 2: 1}, {0: 3, 1: 2, 2: 3}][OPT["fm"]][OPT["xm"]]
    ADDR = f"""
    s_lshr_b32 s{t0}, s2, 3
    s_lshl2_add_u32 s{t0}, s{t0}, s{sH}
    s_mul_i32 s{t0}, s{t0}, 12288
    s_lshr_b32 s{t0+1}, s{sHP}, {LQH+1}
    s_lshl_b32 s{t0+1}, s{t0+1}, {7+LQH}
    s_add_u32 s{t0}, s{t0}, s{t0+1}
    v_bfe_u32 v18, v1, {LQH}, 2
    v_mul_u32_u24 v18, 3072, v18
    v_and_b32 v19, {(1<<LQH)-1}, v1
    v_lshl_add_u32 v18, v19, 7, v18
    v_add_u32 v{vWqP}, s{t0}, v18
    v_mov_b32 v{vCA}, {CNT}
    s_lshl_b32 s{t0}, s{sC}, 2
    s_add_u32 s{t0}, s{t0}, {CNT+4}
    v_mov_b32 v{vCP}, s{t0}
    v_mov_b32 v{vOne}, 1
    v_lshlrev_b32 v23, 4, v1
    s_lshl_b32 s{t0}, s{sH}, 10
    s_sub_u32 s{t0}, {UR+4080-512}, s{t0}
    v_lshrrev_b32 v18, 1, v1
    v_lshlrev_b32 v19, 4, v18
    v_sub_u32 v19, s{t0}, v19
    v_and_b32 v20, 1, v1
    v_mul_u32_u24 v21, {URS}, v20
    v_add_u32 v{vUW}, v19, v21
    s_lshr_b32 s{t0}, s{sCH}, 2
    s_lshl_b32 s{t0}, s{t0}, 14
    s_lshl_b32 s{t0+1}, s{sH}, 12
    s_add_u32 s{t0}, s{t0}, s{t0+1}
    s_and_b32 s{t0+1}, s{sRB}, 1
    s_lshl_b32 s{t0+1}, s{t0+1}, 5
    s_add_u32 s{t0}, s{t0}, s{t0+1}
    s_add_u32 s{t0}, s{t0}, {WS_UT}
    v_lshl_add_u32 v18, v18, 6, s{t0}
    v_lshl_add_u32 v{vUL}, v20, 4, v18
    v_and_b32 v18, 15, v1
    v_add_u32 v19, 1, v18
    v_and_b32 v20, 3, v19
    v_mul_u32_u24 v20, {KCP}, v20
    v_lshrrev_b32 v19, 2, v19
    v_lshl_add_u32 v20, v19, 3, v20
    v_lshrrev_b32 v21, 4, v1
    v_lshlrev_b32 v22, 4, v21
    s_mul_i32 s{t0}, s{sC}, {2*KGS}
    s_lshl_b32 s{t0+1}, s{sMH}, 8
    s_add_u32 s{t0}, s{t0}, s{t0+1}
    s_add_u32 s{t0}, s{t0}, {KG}
    v_add3_u32 v{vAA}, v20, v22, s{t0}
    s_mul_i32 s{t0}, s{sC}, {URS}
    s_add_u32 s{t0}, s{t0}, s{t0+1}
    s_add_u32 s{t0}, s{t0}, {UR+4064-3584}
    v_lshlrev_b32 v19, 5, v18
    v_sub_u32 v22, v22, v19
    v_add_u32 v{vBA}, s{t0}, v22
    s_lshl_b32 s{t0}, s{sH}, 12
    s_add_u32 s{t0}, s{t0}, {CRED}
    v_add_u32 v{vCW}, s{t0}, v23
    s_xor_b32 s{t0}, s{sH}, 1
    s_lshl_b32 s{t0}, s{t0}, 12
    s_add_u32 s{t0}, s{t0}, {CRED}
    v_add_u32 v{vCR}, s{t0}, v23
    v_add_u32 v{vOL}, {OFL}, v23
    v_lshrrev_b32 v19, 1, v18
    v_lshlrev_b32 v19, 15, v19
    v_and_b32 v20, 1, v1
    v_lshl_add_u32 v19, v20, 5, v19
    v_lshl_add_u32 v{vAT}, v21, 3, v19
    s_lshl_b32 s{t0}, s{sMH}, 20
    s_lshl_b32 s{t0+1}, s{sD}, 6
    s_add_u32 s{t0}, s{t0}, s{t0+1}
    s_add_u32 s{t0}, s{t0}, {WS_AT}
    s_add_u32 s{sAT}, s{pWs}, s{t0}
    s_addc_u32 s{sAT+1}, s{pWs+1}, 0
    s_lshl_b32 s{t0}, s{sMH}, 9
    s_add_u32 s{t0}, s{t0}, s{sD}
    s_add_u32 s{t0}, s{t0}, {F3}
    s_lshl_b32 s{t0}, s{t0}, 2
    v_mov_b32 v{vF3}, s{t0}
    s_mov_b32 s{SRDW}, s{pWo}
    s_mov_b32 s{SRDW+1}, s{pWo+1}
    s_mov_b32 s{SRDW+2}, {512*1024}
    s_mov_b32 s{SRDW+3}, 0x00020000
    s_lshl_b32 s{t0}, s{sCB}, 2
    s_add_u32 s{t0}, s{t0}, s{sH}
    s_lshl_b32 s{t0+1}, s{t0}, 6
    v_lshrrev_b32 v18, 2, v1
    v_lshl_add_u32 v18, v18, 10, s{t0+1}
    v_and_b32 v19, 3, v1
    v_lshl_add_u32 v{vWoG}, v19, 4, v18
    s_mul_i32 s{sWst}, s{sH}, {WSL*1024}
    s_add_u32 s{sWst}, s{sWst}, {WST}
    v_lshrrev_b32 v22, 5, v1
    v_lshlrev_b32 v20, 2, v22
    v_bfe_u32 v21, v1, 2, 2
    v_add_u32 v20, v20, v21
    v_lshl_add_u32 v20, v20, 6, s{sWst}
    v_lshl_add_u32 v20, v19, 3, v20
    v_bfe_u32 v21, v1, 4, 1
    v_lshl_add_u32 v{vWoL}, v21, 5, v20
    s_lshl_b32 s{t0}, s{t0}, 5
    s_lshr_b32 s{t0+1}, s{sRB}, 3
    s_lshl_b32 s{t0+1}, s{t0+1}, 9
    s_add_u32 s{t0+1}, s{t0+1}, s{t0}
    s_add_u32 s{t0+1}, s{t0+1}, {F3}
    v_and_b32 v18, 31, v1
    v_add_u32 v19, s{t0+1}, v18
    v_lshlrev_b32 v{vF3P}, 2, v19
    s_lshl_b32 s{t0+1}, s{sRB}, 2
    s_add_u32 s{t0+1}, s{t0+1}, s{sRT}
    s_lshl_b32 s{t0+2}, s{t0+1}, 15
    s_lshl_b32 s{t0+3}, s{t0}, 6
    s_add_u32 s{t0+3}, s{t0+3}, s{t0+2}
    s_add_u32 s{t0+3}, s{t0+3}, {WS_AT}
    v_lshlrev_b32 v20, 8, v22
    v_lshl_add_u32 v20, v18, 1, v20
    v_add_u32 v{vAL}, s{t0+3}, v20
    s_lshl_b32 s{t0}, s{t0}, 1
    s_add_u32 s{t0}, s{t0}, s{t0+2}
    v_lshl_add_u32 v20, v18, 10, s{t0}
    v_lshl_add_u32 v{vOut}, v22, 4, v20
    """.split("\n")
    ADDR += f"""
    s_lshl2_add_u32 s{t0}, s{sRB}, s{sH}
    s_lshl4_add_u32 s{t0}, s{t0}, s{sHP}
    s_lshl_b32 s{t0}, s{t0}, 11
    s_add_u32 s{t0}, s{t0}, {WS_OF}
    v_lshl_add_u32 v{vClO}, v1, 6, s{t0}
    s_lshl_b32 s{t0}, s{sRB}, 2
    s_add_u32 s{t0}, s{t0}, s{sH}
    s_lshl_b32 s{t0}, s{t0}, 8
    s_lshl_b32 s{t0+1}, s{sHP}, 17
    s_add_u32 s{t0}, s{t0}, s{t0+1}
    s_add_u32 s{t0}, s{t0}, {WS_UT}
    v_and_b32 v18, 15, v1
    v_lshl_add_u32 v18, v18, 4, s{t0}
    v_lshrrev_b32 v19, 4, v1
    v_lshl_add_u32 v{vTS}, v19, 14, v18
    v_add_u32 v{vTS+1}, 0x10000, v{vTS}
    v_and_b32 v18, 15, v1
    v_lshlrev_b32 v{vRdy}, 2, v18
    s_lshl_b32 s{t0}, s{sHP}, 4
    v_add_u32 v19, s{t0}, v18
    v_lshlrev_b32 v{vF1P}, {FSH}, v19
    s_add_u32 s{t0}, s{t0}, s{sRB}
    s_lshl2_add_u32 s{t0+1}, s{t0}, s{sH}
    s_add_u32 s{t0+1}, s{t0+1}, {F4}
    s_lshl_b32 s{t0+1}, s{t0+1}, 2
    v_mov_b32 v{vF4}, s{t0+1}
    s_lshl2_add_u32 s{t0+1}, s{sHP}, s{sH}
    s_lshl4_add_u32 s{t0+1}, s{t0+1}, {F4}
    v_add_lshl_u32 v{vF4P}, v18, s{t0+1}, 2
    s_lshl_b32 s{t0}, s{t0}, {FSH}
    v_mov_b32 v{vF1}, s{t0}
    v_and_b32 v18, 31, v1
    v_lshlrev_b32 v18, 5, v18
    v_lshrrev_b32 v19, 5, v1
    v_lshl_add_u32 v19, v19, 2, v18
    s_lshl_b32 s{t0}, s{sH}, 3
    s_add_u32 s{t0}, s{t0}, {GP}
    v_add_u32 v{vGPw}, s{t0}, v19
    v_add_u32 v{vGPr}, {GP}, v18
    s_lshr_b32 s{t0}, s2, 3
    s_lshl_b32 s{t0}, s{t0}, 2
    s_add_u32 s{t0}, s{t0}, s{sH}
    s_lshl_b32 s{t0}, s{t0}, 12
    s_lshr_b32 s{t0+1}, s{sCB}, {LOH-1}
    s_lshl_b32 s{t0+1}, s{t0+1}, {7+LOH}
    s_add_u32 s{t0}, s{t0}, s{t0+1}
    v_bfe_u32 v18, v1, {LOH}, 2
    v_lshl_add_u32 v18, v18, 10, s{t0}
    v_and_b32 v19, {(1<<LOH)-1}, v1
    v_lshl_add_u32 v{vWoP}, v19, 7, v18
    """.split("\n") + [f"v_mov_b32 v{vA+j}, 0" for j in range(16)]
    if OPT["gath"]:
        ADDR += f"""
        s_lshl_b32 s{t0}, s{sH}, 19
        s_lshl_b32 s{t0+1}, s{sCH}, 1
        s_add_u32 s{t0}, s{t0}, s{t0+1}
        s_add_u32 s{t0}, s{t0}, 4096
        v_lshl_add_u32 v{vUL}, v1, 13, s{t0}
        s_lshl_b32 s{t0}, s{sH}, 10
        s_sub_u32 s{t0}, {UR+4080}, s{t0}
        v_lshlrev_b32 v18, 4, v1
        v_sub_u32 v{vUW}, s{t0}, v18
        s_mov_b32 s94, 0x05040100
        s_mov_b32 s95, 0x07060302
        """.split("\n")
    ADDR = [x.strip() for x in ADDR if x.strip()]
    def GATEF():
        E("s_waitcnt lgkmcnt(0)")
        for j in range(4):
            E(f"v_dot2_f32_bf16 v{vG}, v{vXF+j}, v{vGW+j}, v{vG}")
        E(f"s_nop 2\nds_write_b32 v{vGPw}, v{vG}")
    def SIG():
        E(f"""
        ds_read_b128 v[128:131], v{vGPr}
        ds_read_b128 v[132:135], v{vGPr} offset:16
        s_waitcnt lgkmcnt(0)
        v_add_f32 v128, v128, v129
        v_add_f32 v130, v130, v131
        v_add_f32 v132, v132, v133
        v_add_f32 v134, v134, v135
        v_add_f32 v128, v128, v130
        v_add_f32 v132, v132, v134
        v_add_f32 v128, v128, v132
        v_mul_f32 v128, {fbits(-log2e)}, v128
        v_exp_f32 v128, v128
        s_nop 0
        v_add_f32 v128, 1.0, v128
        v_rcp_f32 v{vg}, v128
        s_nop 0
        v_sub_f32 v{vomg}, 1.0, v{vg}
        """)
    vR = 64; vE0 = 64
    def KC1():
        lk = newlab("nk")
        E(f"s_cmp_eq_u32 s{sMH}, 0\ns_cbranch_scc0 {lk}")
        if psync: lds_wait(vCP, 2, 1)
        for j in range(4):
            E(f"ds_read_b128 {vr(vR+4*j,4)}, v{vWA} offset:{1024*j}")
        E(f"""
        s_mul_i32 s{t0}, s{sC}, {2*KGS}
        s_add_u32 s{t0}, s{t0}, {KG}
        v_lshl_add_u32 v2, v1, 4, s{t0}
        v_lshrrev_b32 v3, 1, v1
        v_mul_u32_u24 v3, {KCP}, v3
        v_and_b32 v10, 1, v1
        v_lshlrev_b32 v11, 4, v10
        v_add3_u32 v3, v3, v11, s{t0}
        v_cmp_eq_u32 {sr(t0+2,2)}, 1, v10
        s_mov_b64 exec, 1
        v_add_f32 v{vD}, s{sDs}, v{vD}
        s_waitcnt lgkmcnt(0)
        s_mov_b64 exec, 0xff
        ds_write_b128 v3, v[12:15]
        s_mov_b64 exec, -1
        """)
        for j in range(15):
            E(f"v_add_f32 v{vD+j}, v{vD+j}, v{vR+j}")
        E(f"""
        v_cndmask_b32 v10, v{vD+11}, v{vD+12}, {sr(t0+2,2)}
        v_cndmask_b32 v11, v{vD+13}, v{vD+14}, {sr(t0+2,2)}
        """)
        D = lambda j: vD + j
        pats = [[(D(0), D(1)), (D(2), D(3)), (D(4), D(5)), (D(6), D(7))],
                [(D(8), D(8)), (D(8), D(9)), (D(9), D(9)), (D(10), D(10))],
                [(D(11), D(11)), (D(11), D(11)), (10, D(12)), (D(12), D(12))],
                [(D(13), D(13)), (D(13), D(13)), (11, D(14)), (D(14), D(14))]]
        for u in range(4):
            for j, (a, b) in enumerate(pats[u]):
                E(f"v_cvt_pk_bf16_f32 v{vE0+8*u+j}, v{a}, v{b}")
            E(f"ds_write_b128 v2, {vr(vE0+8*u,4)} offset:{32+1024*u}")
        for u in range(4):
            E(f"ds_read_b64 {vr(vE0+8*u+4,2)}, v2 offset:{48+1024*u}")
        E(f"{lk}:")
    def KC2():
        lk = newlab("nk")
        E(f"s_cmp_eq_u32 s{sMH}, 0\ns_cbranch_scc0 {lk}\ns_waitcnt lgkmcnt(0)")
        for u in range(4):
            b = vE0 + 8 * u; o = 96 + 12 * (u & 1)
            for j in range(4):
                E(f"v_alignbit_b32 v{o+j}, v{b+j+1}, v{b+j}, 16")
            E(f"ds_write_b128 v2, {vr(o,4)} offset:{32+1024*u+KCP}")
            for j in range(4):
                E(f"v_mov_b32 v{o+4+j}, v{b+j+1}")
            E(f"ds_write_b128 v2, {vr(o+4,4)} offset:{32+1024*u+2*KCP}")
            for j in range(4):
                E(f"v_alignbit_b32 v{o+8+j}, v{b+j+2}, v{b+j+1}, 16")
            E(f"ds_write_b128 v2, {vr(o+8,4)} offset:{32+1024*u+3*KCP}")
            if u == 0:
                E(f"""
                v_lshlrev_b32 v10, 16, v{b}
                s_mov_b64 exec, 1
                ds_write_b32 v2, v10 offset:{28+KCP}
                ds_write_b32 v2, v{b} offset:{28+2*KCP}
                ds_write_b32 v2, v10 offset:{24+3*KCP}
                ds_write_b32 v2, v{o} offset:{28+3*KCP}
                s_mov_b64 exec, -1
                """)
        E(f"{lk}:")
    def gate_glue(i):
        E(f"s_waitcnt vmcnt({NCL}) lgkmcnt(0)" if i == 0 else "s_waitcnt vmcnt(0) lgkmcnt(0)" if i == 7 else "s_waitcnt lgkmcnt(0)")
        if OPT.get("hst"): stamp("h")
        E("s_barrier")
        if i == 0 and OPT["clm"] == 3: claim_kv()
        if i == 0:
            lq = newlab("nr")
            E(f"""
            s_cmp_eq_u32 s{sLead}, 7
            s_cbranch_scc0 {lq}
            s_lshl_b32 s{sSPIN}, s2, 5
            v_add_u32 v10, s{sSPIN}, v1
            v_lshlrev_b32 v10, {FSH}, v10
            s_lshl_b32 s{sSPIN}, s2, 9
            s_add_u32 s{sSPIN}, s{sSPIN}, {4*F3}
            v_lshl_add_u32 v11, v1, 3, s{sSPIN}
            global_store_dwordx2 v11, v[12:13], {sr(pFL,2)} sc1
            s_bfm_b64 exec, 32, 0
            global_store_dword v10, v12, {sr(pFL,2)} sc1
            s_mov_b64 exec, -1
            {lq}:
            """)
        if i == OPT["rdyw"]:
            lq = newlab("nr")
            E(f"""
            s_cmp_eq_u32 s{sLead}, 7
            s_cbranch_scc0 {lq}
            s_lshl_b32 s{sSPIN}, s2, 2
            v_mov_b32 v10, s{sSPIN}
            v_mov_b32 v11, 1
            s_waitcnt vmcnt(0)
            """)
            put_flag(10, 11, pDbg)
            E(f"{lq}:")
        if i >= 1:
            for j in range(4):
                E(f"v_dot2_f32_bf16 v{vG}, v{vXF+j}, v{vGW+j}, v{vG}")
        slot = i % NS
        E(f"ds_read_b128 {vr(vXF,4)}, v{vGA0} offset:{slot*SLOT}")
        E(f"ds_read_b128 {vr(vGW,4)}, v{vGWA} offset:{128*i}")
        if not OPT["gath"]: E(f"""
        s_cmp_eq_u32 s{sUW}, {i}
        s_cbranch_scc0 L_ut{i}
        ds_read_b64_tr_b16 {vr(vU,2)}, v{vTA}
        ds_read_b64_tr_b16 {vr(vU+2,2)}, v{vTA+3}
        ds_read_b64_tr_b16 {vr(vU+4,2)}, v{vTA+1}
        ds_read_b64_tr_b16 {vr(vU+6,2)}, v{vTA+2}
        L_ut{i}:
        """)
    E(ADDR)
    tot = sum(c for c, _ in K); nw = OPT["kw"]
    pre = tot * OPT["kpre"] / 100
    segs = [[] for _ in range(9)]; acc = 0
    for c, x in K:
        segs[0 if acc < pre else 1 + min(nw - 1, int((acc - pre) * nw / (tot - pre)))].append(x); acc += c
    items = [D1, D2, D3, KC1, KC2]
    def place(w):
        for it, p in zip(items, PL):
            if p == w: it()
    E(segs[0])
    for i in range(8):
        gate_glue(i)
        if i == OPT["wqpf"]:
            E(f"s_bfm_b64 exec, {4<<LQH}, 0\nglobal_load_dword v167, v{vWqP}, {sr(pW,2)}\ns_mov_b64 exec, -1")
        E(segs[i + 1])
    stamp("h")
    GATEF()
    uts = f"""
    global_store_dwordx4 v{vTS}, {vr(vU,4)}, {sr(pWs,2)} sc1
    global_store_dwordx4 v{vTS+1}, {vr(vU+4,4)}, {sr(pWs,2)} sc1
    """
    E(f"global_load_dword v{vTm}, v{vRdy}, {sr(pDbg,2)} sc1")
    place(0)
    E(f"s_setprio {OPT['prioq']}\ns_waitcnt lgkmcnt(0)\ns_barrier")
    stamp("h")
    if not OPT["gath"] and not OPT["utl"]: E(uts)
    SIG()
    place(1)
    E("s_barrier")
    place(2)
    assert OPT["ackn"] > 16 - OPT["lq"]
    E(f"s_setprio {OPT['prio']}\ns_waitcnt vmcnt(0)\ns_barrier")
    stamp("h")
    lq = newlab("nf"); lr = newlab("rdy")
    E(f"""
    s_cmp_lg_u32 s{sH}, 1
    s_cbranch_scc1 {lq}
    v_cmp_ne_u32 vcc, 0, v{vTm}
    s_nop 1
    s_cmp_eq_u64 vcc, -1
    s_cbranch_scc1 {lr}
    """)
    poll_global(vRdy, pDbg, vTm)
    E(f"{lr}:")
    put_flag(vF1, vOne)
    E(f"{lq}:")
    place(3)
    E("s_barrier")
    place(4)
    lq = newlab("nf")
    E(f"s_cmp_lg_u32 s{sH}, 1\ns_cbranch_scc1 {lq}")
    poll_global(vF1P, pFL, vTm)
    E(f"{lq}:")
    E("s_setprio 0\ns_barrier")
    stamp("h")
    late = OPT["utl"] and not OPT["gath"]
    if PL[0] == 5: D1()
    if late: E(uts)
    E(f"s_setprio {OPT['prio']}")
    if PL[1] == 5: D2()
    if PL[2] == 5: D3()
    if late:
        E("s_waitcnt vmcnt(0)")
        put_flag(vF4, vOne)
    if PL[3] == 5: KC1()
    if PL[4] == 5: KC2()
    if late:
        lds_arrive(vCA, vOne)
        lds_wait(vCA, vTm, 4)
        E("s_waitcnt vmcnt(0)")
        poll_global(vF4P, pFL, vTm)
    if OPT["gath"]:
        for j in range(8):
            E(f"global_load_dword v{vU+j}, v{vUL}, {sr(pX,2)} offset:{1024*j-4096}\ns_waitcnt vmcnt({OPT['gd'] if j < 7 else 0})")
        E(f"s_setprio {OPT['prio']}")
        for j in range(4):
            E(f"v_perm_b32 v{12+j}, v{vU+6-2*j}, v{vU+7-2*j}, s94")
            E(f"v_perm_b32 v{16+j}, v{vU+6-2*j}, v{vU+7-2*j}, s95")
        E(f"ds_write_b128 v{vUW}, v[12:15]\nds_write_b128 v{vUW}, v[16:19] offset:{URS}")
    else: E(f"""
    global_load_dwordx4 v[12:15], v{vUL}, {sr(pWs,2)} sc1
    global_load_dwordx4 v[16:19], v{vUL}, {sr(pWs,2)} offset:2048 sc1
    s_waitcnt vmcnt(0)
    s_setprio {OPT['prio']}
    ds_write_b128 v{vUW}, v[12:15] offset:512
    ds_write_b128 v{vUW}, v[16:19]
    """)
    lds_arrive(vCA, vOne)
    lds_wait(vCA, vTm, 8 if late else 4)
    stamp("h")
    vY = 64
    vF = [96, 192]
    def creads(r):
        f = vF[r & 1]; o = []
        for gmm in range(8):
            o.append(f"ds_read_b64 {vr(f+4*gmm,2)}, v{vAA} offset:{512*gmm+64*r}")
            o.append(f"ds_read_b64 {vr(f+4*gmm+2,2)}, v{vAA} offset:{512*gmm+64*r+8}")
            o.append(f"ds_read_b128 {vr(f+32+4*gmm,4)}, v{vBA} offset:{3584-512*gmm+64*r}")
        return o
    E(creads(0))
    E(f"s_setprio {OPT.get('prio3', OPT['prio'])}")
    for r in range(4):
        f = vF[r & 1]
        nxt = creads(r + 1) if r < 3 else []
        if r == 2 and OPT["wopf"]:
            E(f"s_bfm_b64 exec, {4<<LOH}, 0\nglobal_load_dword v20, v{vWoP}, {sr(pWo,2)}\ns_mov_b64 exec, -1")
        E("s_waitcnt lgkmcnt(0)")
        seen = set()
        for gmm in range(8):
            for dl in range(8 - gmm):
                tau = gmm + dl
                c = "0" if (r == 0 and tau not in seen) else vr(vY + 4 * tau, 4)
                seen.add(tau)
                if not OPT.get("noconv"): E(f"v_mfma_f32_16x16x32_bf16 {vr(vY+4*tau,4)}, {vr(f+4*gmm,4)}, {vr(f+32+4*dl,4)}, {c}")
                if nxt: E(nxt.pop(0))
    E(f"s_setprio {OPT['prio']}")
    l1 = newlab("c1"); l2 = newlab("c2")
    E(f"s_nop 5\ns_cmp_eq_u32 s{sMH}, 0\ns_cbranch_scc0 {l1}")
    def conv_fin(send, keep):
        for j in range(4):
            E(f"ds_write_b128 v{vCW}, {vr(send+4*j,4)} offset:{1024*j}")
        lds_arrive(vCP, vOne)
        lds_wait(vCP, vTm, 2 + psync)
        for j in range(4):
            E(f"ds_read_b128 {vr(96+4*j,4)}, v{vCR} offset:{1024*j}")
        E("s_waitcnt lgkmcnt(0)")
        for j in range(16):
            E(f"v_add_f32 v{96+j}, v{keep+j}, v{96+j}")
    conv_fin(vY + 16, vY)
    E(f"s_branch {l2}\n{l1}:")
    conv_fin(vY, vY + 16)
    E(f"{l2}:")
    for j in range(4):
        E(f"v_cvt_pk_bf16_f32 v{112+2*j}, v{96+4*j}, v{97+4*j}\nv_cvt_pk_bf16_f32 v{113+2*j}, v{98+4*j}, v{99+4*j}")
        E(f"global_store_dwordx2 v{vAT}, {vr(112+2*j,2)}, {sr(sAT,2)} sc1")
        if j < 3: E(f"s_add_u32 s{sAT}, s{sAT}, {8*32768}\ns_addc_u32 s{sAT+1}, s{sAT+1}, 0")
    E("s_waitcnt vmcnt(0)")
    put_flag(vF3, vOne)
    stamp("h")
    vWo = 128
    sO = t0 + 2
    WD = OPT["wod"]
    for hd in range(0 if OPT.get("nowo") else 32 + WD):
        if hd < 32:
            if hd % 4 == 0: E(f"s_add_u32 m0, s{sWst}, {(hd%WSL)*1024}")
            E(f"s_mov_b32 s{sO}, {hd*16384-(hd%4)*1024}")
            E(f"buffer_load_dwordx4 v{vWoG}, {sr(SRDW,4)}, s{sO} offen offset:{(hd%4)*1024} lds")
        r = hd - WD
        if r >= 0:
            E(f"s_waitcnt vmcnt({min(WD, 31-r)}) lgkmcnt(8)")
            E(f"ds_read_b64_tr_b16 {vr(vWo+4*r,2)}, v{vWoL} offset:{1024*(r%WSL)}")
            E(f"ds_read_b64_tr_b16 {vr(vWo+4*r+2,2)}, v{vWoL} offset:{1024*(r%WSL)+512}")
    E("s_waitcnt lgkmcnt(0)")
    stamp("h")
    if OPT["clo"] & 1:
        E(f"s_bfm_b64 exec, 32, 0\nglobal_store_dword v{vClO}, v{vOne}, {sr(pWs,2)} sc1\ns_mov_b64 exec, -1")
    if OPT["clo"] & 2:
        E(f"s_bfm_b64 exec, 32, 0\nglobal_store_dword v{vOut}, v{vOne}, {sr(pOut,2)} sc1\ns_mov_b64 exec, -1")
    poll_global(vF3P, pFL, vTm)
    for r in range(16):
        E(f"global_load_short_d16_hi v{vA+r}, v{vAL}, {sr(pWs,2)} offset:{(8*(r>>2)+(r&3))*64} sc1")
    E("s_waitcnt vmcnt(0)")
    stamp("h")
    E("s_barrier")
    for r in range(16):
        E(f"v_mul_f32 v{vA+r}, v{vg}, v{vA+r}")
    E("s_barrier")
    stamp("h")
    vB = 64
    def ord_(hd): return f"ds_read_b128 {vr(vB+4*(hd%8),4)}, v{vOL} offset:{1024*hd}"
    E("s_barrier")
    stamp("h")
    for j in range(8): E(ord_(j))
    for hd in range(32):
        out = min(hd + 4, 31) - hd if hd >= 4 else 7 - hd
        E(f"s_waitcnt lgkmcnt({out if hd < 4 else min(3, 31-hd)})")
        E(f"v_mfma_f32_32x32x16_bf16 {vr(vAcc,16)}, {vr(vWo+4*hd,4)}, {vr(vB+4*(hd%8),4)}, {'0' if hd == 0 else vr(vAcc,16)}")
        nx = hd + 4
        if 8 <= nx < 32:
            if nx % 8 == 0: E("s_barrier")
            E(ord_(nx))
    E("s_nop 11")
    for r in range(16):
        E(f"v_fma_f32 v{vAcc+r}, v{vAcc+r}, v{vomg}, v{vA+r}")
    for j in range(8):
        E(f"v_cvt_pk_bf16_f32 v{vB+j}, v{vAcc+2*j}, v{vAcc+2*j+1}")
    E("s_nop 1")
    for a in (0, 1, 4, 5):
        E(f"v_permlane32_swap_b32 v{vB+a}, v{vB+2+a}")
    fl = ["", "sc1", "nt", "sc0 sc1"][OPT["outsc"]]
    E(f"global_store_dwordx4 v{vOut}, {vr(vB,4)}, {sr(pOut,2)} {fl}\nglobal_store_dwordx4 v{vOut}, {vr(vB+4,4)}, {sr(pOut,2)} offset:32 {fl}")
    if STAMP:
        E("s_waitcnt vmcnt(0)")
    stamp("h")
    stamp_flush("h"); spin_end("h")
    E("s_endpgm")

hdr = open(f"cdna_kernels/{NAME}.s.ref").read().split("; Override launch")[0]
prologue(); main_wave()
if OPT["lay"]: helper_wave()
E("L_end:\ns_endpgm")
out = hdr + f"""; @launch grid=(256,1,1) block=(512,1,1) lds={LDS_BYTES}
.amdgcn_target "amdgcn-amd-amdhsa--gfx950"
.text
.globl {NAME}_kernel
.p2align 8
.type {NAME}_kernel,@function
{NAME}_kernel:
""" + "\n".join(L) + f"""
.section .rodata,"a"
.p2align 6
.amdhsa_kernel {NAME}_kernel
  .amdhsa_next_free_vgpr 256
  .amdhsa_next_free_sgpr 102
  .amdhsa_accum_offset 256
  .amdhsa_group_segment_fixed_size 0
  .amdhsa_kernarg_size 128
  .amdhsa_user_sgpr_count 2
  .amdhsa_user_sgpr_kernarg_segment_ptr 1
  .amdhsa_system_sgpr_workgroup_id_x 1
.end_amdhsa_kernel
"""
open(sys.argv[1], "w").write(out)
```

```python
import sys, math, struct

NAME = "gated_mix__ssm_conv_s4__mha_block__prompt"
OPT = dict(stamp=0, rot=3, fs=128, spin=200000, prio=2, outsc=0, prio3=0, pf=1, tlb=1, ksplit=90, pk0=0, wod=4, wopf=1, lay=2, prioq=0, eb=2, lq=7, epc=10, ackn=26, ute=0, kcp=1, gath=0, gd=0, d1=3, d1w=4, pl=55555, utl=1, kpre=5, kw=7, clm=0, clo=0, rdyw=2, xm=0, fm=0, wqpf=2, sigl=1)
for a in sys.argv[2:]:
    k, v = a.split("=")
    OPT[k] = int(v)
STAMP = OPT["stamp"]
FS = OPT["fs"]
FSH = int(math.log2(FS))

L = []
def E(s):
    if isinstance(s, list): s = "\n".join(s)
    for x in s.split("\n"):
        x = x.strip()
        if x:
            L.append(("" if x.endswith(":") else "    ") + x)
def fbits(x): return "0x%08x" % struct.unpack("<I", struct.pack("<f", x))[0]
def vr(a, n): return f"v[{a}:{a+n-1}]"
def sr(a, n): return f"s[{a}:{a+n-1}]"

WS_KV = 0
WS_OF = 4 << 20
WS_AT = 6 << 20
WS_FL = 8 << 20
WS_UT = 10 << 20
WS_ST = 16 << 20
F1, F2 = 0, 256
F3 = 512 * FS // 4
F4 = F3 + 1024
KG = 0; KGS = 8704
KCP = 4160
UR = KG + 4 * KGS; URS = 4576
GP = UR + 2 * URS
GW = GP + 1024
CNT = GW + 2048
RING = CNT + 64
SLOT = 24576; WPART = 6144; NS = 3
WQ = RING + NS * SLOT
LDS_BYTES = WQ + 32768
EXCH = RING; RED = WQ; REDS = 4608
CRED = RING; WST = RING + 16384; WSL = 12; OFL = RING
assert RING % 256 == 0 and WST + 4 * WSL * 1024 <= WQ and LDS_BYTES <= 163840
sW, sHP, sRB, sCH, sROT = 3, 4, 5, 6, 7
SRDX, SRDW = 8, 12
pX, pAre, pAim, pBre, pBim, pCre, pCim, pLdt = 16, 18, 20, 22, 24, 26, 28, 30
pDsk, pW, pWo, pGw, pOut, pDbg, pWs = 32, 36, 38, 40, 42, 44, 46
pFL = 34
sT = 48
sSPIN = 62
sST = 64

nstamp = {"m": 0, "h": 0}
SPM, SPH = OPT.get("spm", -1), OPT.get("sph", -1)
def spin_end(role):
    if (SPM if role == "m" else SPH) < 0: return
    l = newlab("sp")
    E(f"{l}:\ns_memrealtime s[98:99]\ns_waitcnt lgkmcnt(0)\ns_sub_u32 s98, s98, s96\ns_cmp_lt_i32 s98, 4000\ns_cbranch_scc1 {l}")
def stamp(role):
    if SPM >= 0 or SPH >= 0:
        i = nstamp[role]; nstamp[role] += 1
        if i == (SPM if role == "m" else SPH):
            if OPT.get("amp"): E(f"s_memrealtime s[98:99]\ns_waitcnt lgkmcnt(0)\ns_sub_u32 s98, s98, s96\ns_mul_i32 s98, s98, {OPT['amp']}\ns_sub_u32 s98, s98, {OPT.get('sub',0)*100}\ns_add_u32 s96, s96, s98")
            else: E("s_memrealtime s[96:97]\ns_waitcnt lgkmcnt(0)")
        return
    if not STAMP or nstamp[role] >= 14: return
    i = nstamp[role]; nstamp[role] += 1
    E(f"s_memrealtime {sr(sST+2*i,2)}\ns_waitcnt lgkmcnt(0)")
def stamp_flush(role):
    if not STAMP: return
    E(f"s_lshl_b32 s{sT}, s2, 3\ns_add_u32 s{sT}, s{sT}, s{sW}\ns_lshl_b32 s{sT}, s{sT}, 6\ns_add_u32 s{sT}, s{sT}, {WS_ST}\nv_mov_b32 v2, s{sT}")
    for i in range(nstamp[role]):
        E(f"v_mov_b32 v3, s{sST+2*i}\nglobal_store_dword v2, v3, {sr(pWs,2)} offset:{4*i}")
    E(f"s_getreg_b32 s{sT}, hwreg(HW_REG_XCC_ID)\nv_mov_b32 v3, s{sT}\nglobal_store_dword v2, v3, {sr(pWs,2)} offset:60")

lab = [0]
def newlab(p):
    lab[0] += 1
    return f"L_{p}_{lab[0]}"

def poll_global(vaddr, base, vtmp):
    l = newlab("poll"); d = newlab("polld")
    E(f"""
    s_mov_b32 s{sSPIN}, {OPT['spin']}
    {l}:
    global_load_dword v{vtmp}, v{vaddr}, {sr(base,2)} sc1
    s_sub_u32 s{sSPIN}, s{sSPIN}, 1
    s_cbranch_scc1 {d}
    s_waitcnt vmcnt(0)
    v_cmp_ne_u32 vcc, 0, v{vtmp}
    s_nop 1
    s_cmp_eq_u64 vcc, -1
    s_cbranch_scc0 {l}
    {d}:
    s_waitcnt vmcnt(0)
    """)
def put_flag(vaddr, vone, base=None):
    E(f"""
    s_mov_b64 exec, 1
    global_store_dword v{vaddr}, v{vone}, {sr(pFL if base is None else base,2)} sc1
    s_mov_b64 exec, -1
    """)
def lds_arrive(vaddr, vone):
    E(f"""
    s_mov_b64 exec, 1
    ds_add_u32 v{vaddr}, v{vone}
    s_mov_b64 exec, -1
    """)
def lds_wait(vaddr, vtmp, n):
    l = newlab("lw"); d = newlab("lwd")
    E(f"""
    s_mov_b32 s{sSPIN}, {OPT['spin']*8}
    {l}:
    ds_read_b32 v{vtmp}, v{vaddr}
    s_sub_u32 s{sSPIN}, s{sSPIN}, 1
    s_cbranch_scc1 {d}
    s_waitcnt lgkmcnt(0)
    v_readfirstlane_b32 s{sSPIN+1}, v{vtmp}
    s_nop 1
    s_cmp_ge_u32 s{sSPIN+1}, {n}
    s_cbranch_scc0 {l}
    {d}:
    s_waitcnt lgkmcnt(0)
    """)

def helper_entry():
    sH, sC, sMH, sD, sLd, sDs, t0 = sT, sT + 1, sT + 2, sT + 5, sT + 6, sT + 7, sT + 8
    E(f"L_h0:\ns_setprio {OPT['prio']}\ns_sub_u32 s{sH}, s{sW}, 4")
    if OPT["pf"]:
        E(f"""
        s_getpc_b64 s[8:9]
        L_pc:
        s_andn2_b32 s10, s2, 7
        s_lshl1_add_u32 s10, s{sH}, s10
        v_and_b32 v2, 1, v1
        v_add_lshl_u32 v2, v2, s10, 7
        v_min_u32 v2, L_end-L_pc, v2
        v_mov_b32 v3, 0
        v_lshl_add_u64 v[2:3], v[2:3], 0, s[8:9]
        global_load_dword v167, v[2:3], off
        """)
    if OPT["gath"]:
        E(f"s_and_b32 s{sCH}, s2, 7\ns_lshl_b32 s{sCH}, s{sCH}, 5\ns_lshr_b32 s{t0}, s2, 3\ns_or_b32 s{sCH}, s{sCH}, s{t0}")
    else:
        E(f"s_lshl4_add_u32 s{sCH}, s{sHP}, s{sRB}")
    E(f"""
    s_lshl2_add_u32 s{t0}, s{sCH}, s{sH}
    s_lshl_b32 s{t0}, s{t0}, 7
    v_lshl_add_u32 v2, v1, 1, s{t0}
    s_lshl_b32 s{t0+1}, s{sCH}, 2
    s_and_b32 s{sMH}, s{sH}, 1
    s_lshl_b32 s{t0}, s{sMH}, 10
    s_add_u32 m0, s{t0}, {GW}
    v_lshlrev_b32 v3, 4, v1
    s_waitcnt lgkmcnt(0)
    """)
    for j, p in enumerate((pAre, pAim, pBre, pBim, pCre, pCim)):
        E(f"global_load_ushort v{4+j}, v2, {sr(p,2)}")
    E(f"""
    global_load_lds_dwordx4 v3, {sr(pGw,2)}
    {"s_barrier" if OPT["eb"] else ""}
    s_load_dword s{sLd}, {sr(pLdt,2)}, s{t0+1}
    s_load_dword s{sDs}, {sr(pDsk,2)}, s{t0+1}
    s_lshl_b32 s{sCH}, s{sCH}, 1
    """)

def prologue():
    if OPT.get("amp"): E("s_memrealtime s[96:97]")
    if STAMP:
        E(f"s_memrealtime {sr(sST,2)}"); nstamp["m"] = nstamp["h"] = 1
    E(f"""
    s_cmpk_ge_u32 s2, 0x100
    s_cbranch_scc1 L_end
    s_load_dwordx16 s[16:31], s[0:1], 0
    s_load_dwordx16 s[32:47], s[0:1], 64
    """)
    if OPT.get("rndws"): E(f"""
    s_memrealtime s[98:99]
    s_waitcnt lgkmcnt(0)
    s_lshr_b32 s98, s98, 15
    s_mul_i32 s98, s98, 0x9e3779b1
    s_lshr_b32 s98, s98, 28
    s_mul_i32 s98, s98, {OPT["rndws"]-1}
    s_lshl_b32 s98, s98, 24
    s_add_u32 s{pWs}, s{pWs}, s98
    s_addc_u32 s{pWs+1}, s{pWs+1}, 0
    """)
    E(f"""
    v_lshrrev_b32 v2, 6, v0
    v_and_b32 v1, 63, v0
    v_readfirstlane_b32 s{sW}, v2
    """)
    if OPT.get("probe"):
        po = OPT["probe"] - 1
        fl = ["sc1", "sc1 nt", "", "sc0 sc1"][OPT.get("pfl", 0)]
        E(f"""
        s_waitcnt lgkmcnt(0)
        s_add_u32 s98, s2, {OPT.get("psh", 0)}
        s_and_b32 s98, s98, 7
        s_lshl_b32 s98, s98, 5
        s_lshr_b32 s99, s2, 3
        s_add_u32 s98, s98, s99
        s_lshl_b32 s98, s98, 14
        s_add_u32 s98, s98, {po << 20}
        v_lshl_add_u32 v3, v0, 4, s98
        v_add_u32 v4, 0x2000, v3
        s_memrealtime s[96:97]
        s_waitcnt lgkmcnt(0)
        """)
        if OPT.get("prd"):
            E(f"global_load_dwordx4 v[8:11], v3, {sr(pX if OPT['prd'] == 2 else pWs,2)}")
            if OPT["prd"] == 1: E(f"global_load_dwordx4 v[12:15], v4, {sr(pWs,2)}")
        else:
            E(f"global_store_dwordx4 v3, v[8:11], {sr(pWs,2)} {fl}\nglobal_store_dwordx4 v4, v[8:11], {sr(pWs,2)} {fl}")
        E(f"""
        s_waitcnt vmcnt(0)
        s_memrealtime s[98:99]
        s_waitcnt lgkmcnt(0)
        s_sub_u32 s98, s98, s96
        s_mul_i32 s98, s98, 10
        """)
        if OPT.get("pxcc"): E(f"""
        s_getreg_b32 s98, hwreg(HW_REG_XCC_ID)
        s_sub_u32 s98, s98, s2
        s_and_b32 s98, s98, 7
        s_mul_i32 s98, s98, 500
        """)
        E(f"""
        s_add_u32 s96, s96, s98
        s_barrier
        """)
    if OPT["xm"] == 0: E(f"""
    s_bfe_u32 s{sHP}, s2, 0x30003
    s_and_b32 s{sT}, s2, 1
    s_lshl3_add_u32 s{sHP}, s{sT}, s{sHP}
    s_lshr_b32 s{sRB}, s2, 6
    s_and_b32 s{sT}, s2, 6
    s_lshl1_add_u32 s{sRB}, s{sT}, s{sRB}
    """)
    elif OPT["xm"] == 1: E(f"""
    s_bfe_u32 s{sHP}, s2, 0x10003
    s_and_b32 s{sT}, s2, 7
    s_lshl1_add_u32 s{sHP}, s{sT}, s{sHP}
    s_lshr_b32 s{sRB}, s2, 4
    """)
    else: E(f"""
    s_bfe_u32 s{sHP}, s2, 0x20003
    s_and_b32 s{sT}, s2, 3
    s_lshl2_add_u32 s{sHP}, s{sT}, s{sHP}
    s_lshr_b32 s{sRB}, s2, 5
    s_and_b32 s{sT}, s2, 4
    s_lshl1_add_u32 s{sRB}, s{sT}, s{sRB}
    """)
    if OPT["rot"] == 0:
        E(f"s_mov_b32 s{sROT}, 0")
    elif OPT["rot"] == 1:
        E(f"s_xor_b32 s{sROT}, s{sHP}, s{sRB}\ns_and_b32 s{sROT}, s{sROT}, 1\ns_lshl_b32 s{sROT}, s{sROT}, 2")
    elif OPT["rot"] == 2:
        E(f"s_lshl1_add_u32 s{sROT}, s{sRB}, s{sHP}\ns_and_b32 s{sROT}, s{sROT}, 7")
    elif OPT["rot"] == 3:
        E(f"s_lshl1_add_u32 s{sROT}, s{sRB}, s{sHP}\ns_and_b32 s{sROT}, s{sROT}, 6")
    elif OPT["rot"] == 4:
        E(f"s_lshl2_add_u32 s{sROT}, s{sHP}, s{sRB}\ns_and_b32 s{sROT}, s{sROT}, 7")
    else:
        E(f"s_add_u32 s{sROT}, s{sHP}, s{sRB}\ns_lshl_b32 s{sROT}, s{sROT}, 1\ns_and_b32 s{sROT}, s{sROT}, 6")
    if OPT["lay"] == 2:
        E(f"s_cmp_lt_u32 s{sW}, 4\ns_cbranch_scc1 L_m0")
        helper_entry()
        E("s_branch L_helper\nL_m0:")
    else:
        E(f"s_cmp_ge_u32 s{sW}, 4\ns_cbranch_scc1 L_h0")

def main_wave():
    vXD, vWD, vXA, vWA, vQA = 4, 8, 10, 14, 16
    vFB = 24
    aK, aV, aQ = 48, 64, 80
    vP = 96
    vXF = 128
    sXO, sWO, sM0, sX, sZ, sQS = 92, 93, 94, 95, 100, 101
    sKVb, sKV, sJ, sCnt, sMask = sT + 2, sT + 4, sT + 6, sT + 7, sT + 8
    ta, tb, tc = sT + 10, sT + 11, sT + 12
    vO, vKV = 128, 192
    (vIDX, vKA, vVA, vSA, vSB, vSV, vEW, vER0, vER1, vERV, vRW, vRWl, vRR, vRRl, vOA, vOB) = range(112, 128)
    vF2, vOne, vF2P, vOD, vOnes, vZer = range(17, 23)
    vQ = 96; SA, SB = 24, 40; vT = 56
    E(f"""
    s_lshl2_add_u32 s{sT}, s{sRB}, s{sW}
    s_lshl_b32 s{sT}, s{sT}, 15
    v_lshrrev_b32 v2, 3, v1
    v_lshl_add_u32 v2, v2, 10, s{sT}
    v_lshrrev_b32 v3, 4, v1
    v_xor_b32 v3, v3, v1
    v_and_b32 v3, 7, v3
    v_lshl_add_u32 v{vXD}, v3, 4, v2
    v_xor_b32 v{vXD+1}, 64, v{vXD}
    s_movk_i32 s{sT}, 7168
    v_add_u32 v{vXD+1}, s{sT}, v{vXD+1}
    s_movk_i32 s{sT}, 14336
    v_add_u32 v{vXD+2}, s{sT}, v{vXD}
    v_add_u32 v{vXD+3}, s{sT}, v{vXD+1}
    v_lshrrev_b32 v2, 2, v0
    v_mul_u32_u24 v2, 3072, v2
    v_and_b32 v3, 3, v1
    s_lshl2_add_u32 s{sT}, s{sHP}, 64
    v_add_u32 v3, s{sT}, v3
    v_lshl_add_u32 v{vWD}, v3, 4, v2
    s_mul_i32 s{sM0}, s{sW}, {WPART}
    s_mov_b32 s{SRDX+2}, 0x200000
    s_mov_b32 s{SRDX+3}, 0x00020000
    s_mov_b64 {sr(SRDW+2,2)}, {sr(SRDX+2,2)}
    """)
    def dma(i, first=False):
        slot = i % NS
        g = []
        for seg in range(2):
            g.append([f"buffer_load_dwordx4 v{vWD}, {sr(SRDW,4)}, s{sWO} offen offset:{seg*1024} lds"])
        for j in range(4):
            g.append([f"buffer_load_dwordx4 v{vXD+j}, {sr(SRDX,4)}, s{sXO} offen offset:{j*1024} lds"])
        st = sROT if i == 0 else sT
        pre = [] if i == 0 else [f"s_add_u32 s{sT}, s{sROT}, {i}", f"s_and_b32 s{sT}, s{sT}, 7"]
        pre += [f"s_add_u32 m0, s{sM0}, {RING+slot*SLOT+4096}", f"s_mul_i32 s{sWO}, s{st}, 196608"]
        if first:
            pre += ["s_waitcnt lgkmcnt(0)", f"s_mov_b64 {sr(SRDW,2)}, {sr(pW,2)}", f"s_mov_b64 {sr(SRDX,2)}, {sr(pX,2)}"]
        g[0] = pre + g[0]
        g[2] = [f"s_add_u32 m0, s{sM0}, {RING+slot*SLOT}", f"s_lshl_b32 s{sXO}, s{st}, 7"] + g[2]
        return g
    for gi, g in enumerate(dma(0, True)):
        if gi == 0 and OPT["eb"] == 2: g.insert(len(g) - 1, "s_barrier")
        E(g)
    if OPT["eb"] == 1: E("s_barrier")
    if OPT["lay"] == 0:
        for g in dma(1): E(g)
        E("s_branch L_m1")
        helper_entry(); helper_wave()
        E("L_m1:")
        stamp("m")
    elif OPT["lay"] == 2:
        stamp("m")
        held = dma(1)
        for g in held[:OPT["d1"]]: E(g)
        held = held[OPT["d1"]:]
    else:
        E("s_branch L_m1")
        helper_entry()
        E("s_branch L_helper\nL_m1:")
        stamp("m")
        for g in dma(1): E(g)
    if OPT["tlb"]:
        E(f"""
        s_mov_b32 s{ta}, {WS_FL + 0x100000}
        s_load_dword s18, {sr(pWs,2)}, s{ta}
        s_load_dword s19, {sr(pDbg,2)}, 128
        s_load_dword s20, {sr(pOut,2)}, 0
        s_load_dword s21, {sr(pWo,2)}, 0
        """)
    E(f"""
    s_add_u32 s{pFL}, s{pWs}, {WS_FL}
    s_addc_u32 s{pFL+1}, s{pWs+1}, 0
    s_add_u32 s{ta}, s{sM0}, {RING}
    v_and_b32 v2, 31, v1
    v_lshl_add_u32 v2, v2, 7, s{ta}
    v_bfe_u32 v3, v1, 1, 3
    v_lshrrev_b32 v{vXA+1}, 5, v1
    v_xor_b32 v3, v3, v{vXA+1}
    v_lshl_add_u32 v{vXA}, v3, 4, v2
    v_xor_b32 v{vXA+1}, 32, v{vXA}
    v_xor_b32 v{vXA+2}, 64, v{vXA}
    v_xor_b32 v{vXA+3}, 0x60, v{vXA}
    v_lshrrev_b32 v2, 5, v1
    v_lshlrev_b32 v2, 3, v2
    v_bfe_u32 v3, v1, 2, 2
    v_add_u32 v2, v2, v3
    v_lshlrev_b32 v2, 6, v2
    v_and_b32 v3, 3, v1
    v_lshl_add_u32 v2, v3, 3, v2
    v_bfe_u32 v3, v1, 4, 1
    v_lshl_add_u32 v2, v3, 5, v2
    v_add_u32 v{vWA}, {RING+4096}, v2
    v_add_u32 v{vWA+1}, {RING+4096+2*SLOT}, v2
    v_add_u32 v{vQA}, {WQ}, v2
    """)
    E(f"""
    s_and_b32 s{sX}, s{sW}, 1
    s_lshr_b32 s{sZ}, s{sW}, 1
    s_mov_b32 s{sQS}, {fbits(0.25 * math.log2(math.e))}
    s_lshl2_add_u32 s{ta}, s{sRB}, s{sW}
    s_lshl_b32 s{ta}, s{ta}, 11
    s_lshl_b32 s{tb}, s{sHP}, 18
    s_add_u32 s{ta}, s{ta}, s{tb}
    {f"s_load_dword s22, {sr(pWs,2)}, s{ta}" if OPT["tlb"] == 2 else ""}
    {f"s_add_u32 s{tb}, s{ta}, 0x20000" if OPT["tlb"] == 2 else ""}
    {f"s_load_dword s23, {sr(pWs,2)}, s{tb}" if OPT["tlb"] == 2 else ""}
    v_lshlrev_b32 v{vKA}, 4, v1
    v_add_u32 v{vSA}, s{ta}, v{vKA}
    v_add_u32 v{vSB}, 0x20000, v{vSA}
    v_and_b32 v{vVA}, 15, v1
    v_lshrrev_b32 v2, 5, v1
    v_lshl_add_u32 v{vVA}, v2, 4, v{vVA}
    v_lshlrev_b32 v{vVA}, 4, v{vVA}
    v_bfe_u32 v2, v1, 4, 1
    v_lshlrev_b32 v2, 17, v2
    v_add3_u32 v{vSV}, v2, v{vVA}, s{ta}
    s_add_u32 s{tb}, s{sM0}, {EXCH}
    v_add_u32 v{vEW}, s{tb}, v{vKA}
    s_lshl_b32 s{ta}, s{sX}, 10
    s_add_u32 s{ta}, s{ta}, {EXCH}
    s_mul_i32 s{tb}, s{sZ}, 12288
    s_add_u32 s{tc}, s{ta}, s{tb}
    v_add_u32 v{vER0}, s{tc}, v{vKA}
    s_sub_u32 s{tc}, s{ta}, s{tb}
    s_add_u32 s{tc}, s{tc}, 12288
    v_add_u32 v{vER1}, s{tc}, v{vKA}
    s_lshl_b32 s{ta}, s{sX}, 8
    s_add_u32 s{tc}, s{ta}, s{tb}
    s_add_u32 s{tc}, s{tc}, {EXCH}
    v_add_u32 v{vERV}, s{tc}, v{vKA}
    s_lshl1_add_u32 s{ta}, s{sHP}, s{sX}
    s_lshl_b32 s{tb}, s{ta}, 17
    s_lshl_b32 s{tc}, s{sZ}, 12
    s_add_u32 s{tb}, s{tb}, s{tc}
    s_add_u32 s{sKVb}, s{pWs}, s{tb}
    s_addc_u32 s{sKVb+1}, s{pWs+1}, 0
    s_lshl_b32 s{sJ}, s{sRB}, 13
    s_lshl1_add_u32 s{tb}, s{sRB}, s{sZ}
    s_lshl_b32 s{tb}, s{tb}, 6
    s_add_u32 s{tb}, s{tb}, s{ta}
    s_lshl_b32 s{tb}, s{tb}, 10
    s_add_u32 s{tb}, s{tb}, {WS_OF}
    v_add_u32 v{vOA}, s{tb}, v{vKA}
    v_add_u32 v{vOB}, 0x8000, v{vOA}
    s_mul_i32 s{ta}, s{sW}, {REDS}
    s_add_u32 s{ta}, s{ta}, {RED}
    v_add_u32 v{vRW}, s{ta}, v{vKA}
    v_lshl_add_u32 v{vRWl}, v1, 2, s{ta}
    s_xor_b32 s{ta}, s{sW}, 2
    s_mul_i32 s{ta}, s{ta}, {REDS}
    s_add_u32 s{ta}, s{ta}, {RED}
    v_add_u32 v{vRR}, s{ta}, v{vKA}
    v_lshl_add_u32 v{vRRl}, v1, 2, s{ta}
    s_lshl_b32 s{ta}, s{sRB}, 4
    s_add_u32 s{ta}, s{ta}, {F2}
    s_add_u32 s{tb}, s{ta}, s{sHP}
    s_lshl_b32 s{tb}, s{tb}, {FSH}
    v_mov_b32 v{vF2}, s{tb}
    v_mov_b32 v{vOne}, 1
    v_and_b32 v3, 15, v1
    v_add_u32 v2, s{ta}, v3
    v_lshlrev_b32 v{vF2P}, {FSH}, v2
    {f"s_lshr_b32 s{tb}, s{sHP}, 2" if OPT["fm"] else f"s_and_b32 s{tb}, s{sHP}, 3"}
    s_lshl2_add_u32 s{ta}, s{sRB}, s{tb}
    s_lshl_b32 s{ta}, s{ta}, 15
    s_add_u32 s{ta}, s{ta}, {WS_OF}
    v_add_u32 v{vOD}, s{ta}, v{vKA}
    v_mov_b32 v{vIDX}, 0xdddddddd
    v_and_b32 v2, 27, v1
    v_cmp_eq_u32 vcc, 16, v2
    v_mov_b32 v2, {CNT+32}
    v_mov_b32 v{vZer}, {CNT+16}
    s_mov_b32 s{sMask}, 0x0000ffff
    s_mov_b32 s{sMask+1}, 0x0000ffff
    v_cndmask_b32 v{vOnes}, v{vZer}, v2, vcc
    s_mov_b32 s{sCnt}, 8
    """)
    def kvaddr():
        return [f"s_add_u32 s{sJ}, s{sJ}, 0x2000", f"s_and_b32 s{sJ}, s{sJ}, 0x1e000",
                f"s_add_u32 s{sKV}, s{sKVb}, s{sJ}", f"s_addc_u32 s{sKV+1}, s{sKVb+1}, 0"]
    E(kvaddr())
    def reads(n):
        i, s = n >> 2, n & 3
        slot = i % NS
        a = vWA + (slot >> 1); so = (slot & 1) * SLOT + s * WPART
        f = vFB + 8 * (n % 3)
        o = [f"ds_read_b128 {vr(vXF+4*n,4)}, v{vXA+s} offset:{slot*SLOT}"]
        for c in range(2):
            o.append(f"ds_read_b64_tr_b16 {vr(f+4*c,2)}, v{a} offset:{so+1024*c}")
            o.append(f"ds_read_b64_tr_b16 {vr(f+2+4*c,2)}, v{a} offset:{so+1024*c+256}")
        return o
    def dmaq(h):
        return [[f"s_add_u32 s{sT}, s{sROT}, {i}", f"s_and_b32 s{sT}, s{sT}, 7", f"s_add_u32 m0, s{sXO}, {WQ+4096*i}",
                 f"s_mul_i32 s{sWO}, s{sT}, 196608", f"buffer_load_dwordx4 v{vWD+1}, {sr(SRDW,4)}, s{sWO} offen lds"] for i in range(4*h, 4*h+4)]
    E(f"v_subrev_u32 v{vWD+1}, 1024, v{vWD}")
    if held:
        E(f"s_waitcnt vmcnt({OPT['d1'] + 6 - OPT['d1w']})")
        for g in held: E(g)
    E("s_waitcnt vmcnt(6)")
    if STAMP == 5: stamp("m")
    E("s_barrier")
    stamp("m")
    E(reads(0) + reads(1))
    pend = dma(2)
    E(pend.pop(0)); E(pend.pop(0))
    for n in range(32):
        f = vFB + 8 * (n % 3); x = vXF + 4 * n
        c = (lambda a: "0" if n == 0 else vr(a, 16))
        m = [f"v_mfma_f32_32x32x16_bf16 {vr(aV,16)}, {vr(x,4)}, {vr(f+4,4)}, {c(aV)}",
             f"v_mfma_f32_32x32x16_bf16 {vr(aK,16)}, {vr(f,4)}, {vr(x,4)}, {c(aK)}"]
        r = reads(n + 2) if n + 2 < 32 else []
        E(f"s_waitcnt lgkmcnt({5 if n < 31 else 0})")
        E(m[0])
        if (n + 2) % 4 == 0 and n + 2 < 32:
            b = (n + 2) >> 2
            assert not pend
            E(f"s_waitcnt vmcnt({6 if b < 7 else 4}) lgkmcnt(0)")
            if STAMP == 3: stamp("m")
            E("s_barrier")
            if STAMP == 2: stamp("m")
            if b + 2 <= 7: pend = dma(b + 2)
            else:
                pend = dmaq(b - 6)
                if b == 6: E(f"s_lshl_b32 s{sXO}, s{sW}, 10")
        E(r[:3])
        if pend: E(pend.pop(0))
        E(m[1]); E(r[3:])
        if pend: E(pend.pop(0))
    stamp("m")
    ep = [f"v_cvt_pk_bf16_f32 v{vP+j}, v{aK+2*j}, v{aK+1+2*j}" for j in range(4)]
    ep += [f"global_store_dwordx4 v{vSA}, {vr(vP,4)}, {sr(pWs,2)} sc1"]
    ep += [f"v_cvt_pk_bf16_f32 v{vP+j}, v{aK+2*j}, v{aK+1+2*j}" for j in range(4, 8)]
    ep += [f"global_store_dwordx4 v{vSB}, {vr(vP+4,4)}, {sr(pWs,2)} sc1"]
    ep += [f"v_permlane32_swap_b32 v{vP+8+a}, v{vP+10+a}" for a in (0, 1)]
    ep += [f"global_store_dwordx4 v{vSV}, {vr(vP+8,4)}, {sr(pWs,2)} offset:1024 sc1"]
    ep += [f"v_permlane32_swap_b32 v{vP+8+a}, v{vP+10+a}" for a in (4, 5)]
    ep += [f"global_store_dwordx4 v{vSV}, {vr(vP+12,4)}, {sr(pWs,2)} offset:1536 sc1"]
    LQ = OPT["lq"]
    qb = [40, 44, 24, 28, 32, 36, 64, 68, 72]
    def qread(n):
        f = qb[n % 9]
        return [f"ds_read_b64_tr_b16 {vr(f,2)}, v{vQA} offset:{1024*n}", f"ds_read_b64_tr_b16 {vr(f+2,2)}, v{vQA} offset:{1024*n+256}"]
    E("s_nop 10")
    for j in range(8):
        E(f"v_cvt_pk_bf16_f32 v{vP+8+j}, v{aV+2*j}, v{aV+1+2*j}")
    cut = OPT["epc"]
    E(ep[:cut])
    E(f"s_waitcnt vmcnt({4 + sum('store' in x for x in ep[:cut])})\ns_barrier")
    if STAMP == 4: stamp("m")
    for n in range(LQ): E(qread(n))
    E(ep[cut:])
    late = [f"ds_read_b128 {vr(vO+16*q+8+4*e,4)}, v{vZer}" for q in range(4) for e in range(2)]
    late += [f"ds_write_b128 v{vEW}, {vr(vP+4*j,4)} offset:{2048+1024*j}" for j in range(4)]
    late += [f"ds_read_b128 {vr(vKV+12*st+4+4*e,4)}, v{vOnes}" for st in range(4) for e in range(2)]
    nl = 0
    for n in range(32):
        E(f"s_waitcnt lgkmcnt({min(15, 2*min(LQ-1, 31-n) + nl)})")
        E(f"v_mfma_f32_32x32x16_bf16 {vr(aQ,16)}, {vr(qb[n%9],4)}, {vr(vXF+4*n,4)}, {'0' if n == 0 else vr(aQ,16)}")
        if n == OPT["ackn"]:
            if STAMP == 4: stamp("m")
            E("s_waitcnt vmcnt(0)\ns_barrier")
            if STAMP == 4: stamp("m")
        if n + LQ < 32:
            if n + LQ == 16:
                if STAMP == 4: stamp("m")
                E("s_waitcnt vmcnt(4)\ns_barrier")
                if STAMP == 4: stamp("m")
            E(qread(n + LQ))
        else:
            E(late[:2]); late = late[2:]; nl += 2
        r0 = vXF + 4 * (n - 1)
        for r in range(r0, r0 + 4):
            if n >= 1 and r < vKV and (r - vO) % 16 < 8: E(f"v_mov_b32 v{r}, 0")
    E(late)
    E(f"s_nop {max(0, 11 - len(late))}")
    for o in (0, 1):
        for j in range(8):
            E(f"v_mul_f32 v{aQ+8*o+j}, s{sQS}, v{aQ+8*o+j}")
        for j in range(4):
            E(f"v_cvt_pk_bf16_f32 v{aK+4*o+j}, v{aQ+8*o+2*j}, v{aQ+8*o+1+2*j}")
        E(f"ds_write_b128 v{vEW}, {vr(aK+4*o,4)} offset:{1024*o}")
    if STAMP == 4: stamp("m"); E("s_waitcnt vmcnt(0)"); stamp("m")
    E("s_waitcnt vmcnt(0) lgkmcnt(0)\ns_barrier")
    stamp("m")
    E(f"""
    ds_read_b128 {vr(vQ,4)}, v{vER1}
    ds_read_b128 {vr(vKV,4)}, v{vER0} offset:2048
    ds_read_b128 {vr(vQ+4,4)}, v{vER1} offset:6144
    s_mov_b64 exec, {sr(sMask,2)}
    ds_read_b128 {vr(vKV+4,4)}, v{vERV} offset:4096
    ds_read_b128 {vr(vKV+8,4)}, v{vERV} offset:5120
    ds_read_b128 {vr(vKV+16,4)}, v{vERV} offset:{4096+6144}
    ds_read_b128 {vr(vKV+20,4)}, v{vERV} offset:{5120+6144}
    s_mov_b64 exec, -1
    ds_read_b128 {vr(vQ+8,4)}, v{vER0}
    ds_read_b128 {vr(vQ+12,4)}, v{vER0} offset:6144
    ds_read_b128 {vr(vKV+12,4)}, v{vER0} offset:{2048+6144}
    s_waitcnt lgkmcnt(8)
    v_mfma_f32_32x32x16_bf16 {vr(SA,16)}, {vr(vKV,4)}, {vr(vQ,4)}, 0
    s_nop 10
    s_waitcnt lgkmcnt(0)
    """)
    def kload(st, par):
        return [f"global_load_dwordx4 {vr(vKV+12*st,4)}, v{vKA}, {sr(sKV,2)} offset:{par*2048} sc1"]
    def vload(st, par):
        return [f"s_mov_b64 exec, {sr(sMask,2)}",
                f"global_load_dwordx4 {vr(vKV+12*st+4,4)}, v{vVA}, {sr(sKV,2)} offset:{par*2048+1024} sc1",
                f"global_load_dwordx4 {vr(vKV+12*st+8,4)}, v{vVA}, {sr(sKV,2)} offset:{par*2048+1536} sc1",
                "s_mov_b64 exec, -1"]
    def step(t, q, mode="loop", lo=0, hi=16, extra=None):
        cur, oth = (SA, SB) if q % 2 == 0 else (SB, SA)
        tp, qp = (t, q - 1) if q else ((t - 1) % 4, 3)
        tn, qn = (t, q + 1) if q < 3 else ((t + 1) % 4, 0)
        after2, afterq, after1 = extra or ([], [], [])
        st = (t + 3) % 4; par = (t + 3) & 1
        if mode == "loop":
            if q == 0:
                after2 = vload(st, par); afterq = kload(st, par)
            if q == 1 and par == 1:
                ka = kvaddr(); after2 = ka[:2]; after1 = ka[2:]
            if q == 3:
                after2 = ["s_waitcnt vmcnt(6)"]
                if t == 2:
                    after2 += [f"s_sub_u32 s{sCnt}, s{sCnt}, 1"]; afterq = [f"s_cmp_lg_u32 s{sCnt}, 0"]
        for i in range(lo, hi):
            E(f"v_exp_f32 v{cur+i}, v{cur+i}")
            if i == 1 and not (mode == "first" and q == 0):
                E(f"v_smfmac_f32_32x32x32_bf16 {vr(vO+16*qp,16)}, {vr(vKV+12*tp+8,4)}, {vr(oth+8,8)}, v{vIDX}")
                E(after2)
            if i == 4 and not (mode == "last" and q == 3):
                E(f"v_mfma_f32_32x32x16_bf16 {vr(oth,16)}, {vr(vKV+12*tn,4)}, {vr(vQ+4*qn,4)}, 0")
                E(afterq)
            if i == 10:
                E(f"v_smfmac_f32_32x32x32_bf16 {vr(vO+16*q,16)}, {vr(vKV+12*t+4,4)}, {vr(cur,8)}, v{vIDX}")
                E(after1)
    for q in range(4): step(0, q, "first")
    E("s_barrier")
    stamp("m")
    E(kload(2, 0) + vload(2, 0) + vload(3, 1) + kload(3, 1) + kvaddr())
    E("s_branch L_attn1\n.p2align 3\nL_attn:")
    step(2, 3, lo=11)
    for t in (3, 0, 1, 2):
        if t == 1: E("L_attn1:")
        for q in range(4): step(t, q, hi=(11 if (t, q) == (2, 3) else 16))
    if OPT.get("itst"):
        E(f"s_memtime s[90:91]\ns_mov_b32 m0, s{sCnt}\ns_waitcnt lgkmcnt(0)\nv_writelane_b32 v23, s90, m0")
    E("s_cbranch_scc1 L_attn")
    step(2, 3, lo=11)
    vR = 64
    def sendw(q): return [f"ds_write_b128 v{vRW}, {vr(vO+16*q,4)} offset:{2048*q}", f"ds_write_b128 v{vRW}, {vr(vO+16*q+4,4)} offset:{2048*q+1024}",
                          f"ds_write_b32 v{vRWl}, v{vO+16*q+8} offset:{4096+256*q}"]
    recv = ["s_waitcnt lgkmcnt(0)", "s_barrier",
            f"ds_read_b32 v{vR+16}, v{vRRl} offset:4096", f"ds_read_b128 {vr(vR,4)}, v{vRR}", f"ds_read_b128 {vr(vR+4,4)}, v{vRR} offset:1024",
            f"ds_read_b32 v{vR+17}, v{vRRl} offset:4352", f"ds_read_b128 {vr(vR+8,4)}, v{vRR} offset:2048", f"ds_read_b128 {vr(vR+12,4)}, v{vRR} offset:3072"]
    step(3, 0, "last"); step(3, 1, "last")
    w0 = sendw(0)
    step(3, 2, "last", extra=(w0[:1], w0[1:2], w0[2:]))
    step(3, 3, "last", extra=(sendw(1), [], recv))
    O2, O3 = vO + 32, vO + 48
    E(f"""
    s_waitcnt lgkmcnt(3)
    v_add_f32 v{O2+8}, v{O2+8}, v{vR+16}
    v_smfmac_f32_32x32x32_bf16 {vr(O3,16)}, {vr(vKV+36+8,4)}, {vr(SB+8,8)}, v{vIDX}
    """)
    stamp("m")
    def fin(o, r, rl, dst, addr):
        if rl is not None: E(f"v_add_f32 v{o+8}, v{o+8}, v{rl}")
        E(f"v_rcp_f32 v{vT}, v{o+8}")
        if r is not None:
            for j in range(8): E(f"v_add_f32 v{o+j}, v{o+j}, v{r+j}")
        else:
            E("s_nop 0")
        for j in range(8): E(f"v_mul_f32 v{o+j}, v{o+j}, v{vT}")
        for j in range(4): E(f"v_cvt_pk_bf16_f32 v{dst+j}, v{o+2*j}, v{o+2*j+1}")
        E(f"global_store_dwordx4 v{addr}, {vr(dst,4)}, {sr(pWs,2)} sc1")
    fin(O2, vR, None, SA, vOA)
    E("s_waitcnt lgkmcnt(0)")
    fin(O3, vR + 8, vR + 17, SA + 4, vOB)
    E(f"""
    s_mov_b32 s{ta}, {fbits(2.0**-30)}
    s_mov_b32 s{tb}, {fbits(2.0**50)}
    v_min_f32 v{vT+6}, v{O2+8}, v{O3+8}
    v_max_f32 v{vT+7}, v{O2+8}, v{O3+8}
    v_cmp_lt_f32 vcc, s{ta}, v{vT+6}
    v_cmp_gt_f32 {sr(tc,2)}, s{tb}, v{vT+7}
    v_pk_mul_f32 {vr(vT+2,2)}, {vr(O2,2)}, 0 op_sel_hi:[1,0]
    s_and_b64 {sr(tc,2)}, {sr(tc,2)}, vcc
    """)
    for j in (2, 4, 6, 16, 18, 20, 22):
        E(f"v_pk_fma_f32 {vr(vT+2,2)}, {vr(O2+j,2)}, 0, {vr(vT+2,2)} op_sel_hi:[1,0,1]")
    E(f"""
    v_cmp_o_f32 vcc, v{vT+2}, v{vT+3}
    s_nop 1
    s_and_b64 vcc, {sr(tc,2)}, vcc
    s_cmp_eq_u64 vcc, -1
    s_cbranch_scc0 L_safe
    L_pub:
    s_waitcnt vmcnt(0)
    s_barrier
    """)
    stamp("m")
    E(f"s_cmp_lg_u32 s{sW}, 0\ns_cbranch_scc1 L_mdone")
    put_flag(vF2, vOne)
    E("s_waitcnt vmcnt(0)")
    poll_global(vF2P, pFL, 2)
    E(f"s_mov_b32 s{sKV}, s{pWs}\ns_mov_b32 s{sKV+1}, s{pWs+1}")
    for g in range(8):
        E(f"s_mov_b32 m0, {OFL+4096*g}")
        if g: E(f"s_add_u32 s{sKV}, s{sKV}, 4096\ns_addc_u32 s{sKV+1}, s{sKV+1}, 0")
        else: E("s_nop 0")
        for j in range(4):
            E(f"global_load_lds_dwordx4 v{vOD}, {sr(sKV,2)} offset:{1024*j} sc1")
    for n in (24, 16, 8, 0):
        E(f"s_waitcnt vmcnt({n})\ns_barrier")
    if SPM >= 0:
        E("s_branch L_mdone2\nL_mdone:\ns_barrier\ns_barrier\ns_barrier\ns_barrier\nL_mdone2:")
    else:
        E("L_mdone:")
    stamp_flush("m"); spin_end("m")
    if OPT.get("itst"):
        E(f"v_lshl_add_u32 v2, v1, 2, v2\nv_add_u32 v2, 0x100000, v2\ns_mov_b64 exec, 0xff\nglobal_store_dword v2, v23, {sr(pWs,2)}")
    E("s_endpgm")
    vM, vC = vT + 6, 64
    vQ += 8; vO += 32
    E(f"""
    L_safe:
    s_waitcnt vmcnt(0)
    s_lshl_b32 s{ta}, s{sZ}, 12
    s_sub_u32 s{sKVb}, s{sKVb}, s{ta}
    s_subb_u32 s{sKVb+1}, s{sKVb+1}, 0
    s_mov_b32 s{sKV}, s{sKVb}
    s_mov_b32 s{sKV+1}, s{sKVb+1}
    s_mov_b32 s{sCnt}, 64
    v_mov_b32 v{vM}, 0xff800000
    v_mov_b32 v{vM+1}, 0xff800000
    L_safe1:
    global_load_dwordx4 {vr(vKV,4)}, v{vKA}, {sr(sKV,2)} sc1
    s_add_u32 s{sKV}, s{sKV}, 2048
    s_addc_u32 s{sKV+1}, s{sKV+1}, 0
    s_waitcnt vmcnt(0)
    v_mfma_f32_32x32x16_bf16 {vr(SA,16)}, {vr(vKV,4)}, {vr(vQ,4)}, 0
    v_mfma_f32_32x32x16_bf16 {vr(SB,16)}, {vr(vKV,4)}, {vr(vQ+4,4)}, 0
    s_nop 15
    """)
    for j in range(8):
        E(f"v_max3_f32 v{vM}, v{SA+2*j}, v{SA+2*j+1}, v{vM}\nv_max3_f32 v{vM+1}, v{SB+2*j}, v{SB+2*j+1}, v{vM+1}")
    E(f"""
    s_sub_u32 s{sCnt}, s{sCnt}, 1
    s_cmp_lg_u32 s{sCnt}, 0
    s_cbranch_scc1 L_safe1
    v_mov_b32 v{SA}, v{vM}
    v_mov_b32 v{SB}, v{vM+1}
    s_nop 1
    v_permlane32_swap_b32 v{SA}, v{vM}
    v_permlane32_swap_b32 v{SB}, v{vM+1}
    s_nop 1
    v_max_f32 v{vM}, v{vM}, v{SA}
    v_max_f32 v{vM+1}, v{vM+1}, v{SB}
    """)
    for j in range(16):
        E(f"v_sub_f32 v{vC+j}, 0, v{vM}\nv_sub_f32 v{vC+16+j}, 0, v{vM+1}\nv_mov_b32 v{vO+j}, 0\nv_mov_b32 v{vO+16+j}, 0")
    E(f"""
    s_mov_b32 s{sKV}, s{sKVb}
    s_mov_b32 s{sKV+1}, s{sKVb+1}
    s_mov_b32 s{sCnt}, 64
    L_safe2:
    """)
    E(kload(0, 0) + vload(0, 0))
    E(f"""
    s_add_u32 s{sKV}, s{sKV}, 2048
    s_addc_u32 s{sKV+1}, s{sKV+1}, 0
    s_waitcnt vmcnt(0)
    v_mfma_f32_32x32x16_bf16 {vr(SA,16)}, {vr(vKV,4)}, {vr(vQ,4)}, {vr(vC,16)}
    v_mfma_f32_32x32x16_bf16 {vr(SB,16)}, {vr(vKV,4)}, {vr(vQ+4,4)}, {vr(vC+16,16)}
    s_nop 15
    """)
    for j in range(32):
        E(f"v_exp_f32 v{SA+j}, v{SA+j}")
    E(f"""
    s_nop 1
    v_smfmac_f32_32x32x32_bf16 {vr(vO,16)}, {vr(vKV+4,4)}, {vr(SA,8)}, v{vIDX}
    v_smfmac_f32_32x32x32_bf16 {vr(vO,16)}, {vr(vKV+8,4)}, {vr(SA+8,8)}, v{vIDX}
    v_smfmac_f32_32x32x32_bf16 {vr(vO+16,16)}, {vr(vKV+4,4)}, {vr(SB,8)}, v{vIDX}
    v_smfmac_f32_32x32x32_bf16 {vr(vO+16,16)}, {vr(vKV+8,4)}, {vr(SB+8,8)}, v{vIDX}
    s_sub_u32 s{sCnt}, s{sCnt}, 1
    s_cmp_lg_u32 s{sCnt}, 0
    s_cbranch_scc1 L_safe2
    s_nop 15
    """)
    fin(O2, None, None, SA, vOA); fin(O3, None, None, SA + 4, vOB)
    E("s_branch L_pub")

def helper_wave():
    sH, sC, sMH, sRT, sCB, sD = sT, sT + 1, sT + 2, sT + 3, sT + 4, sT + 5
    sLd, sDs = sT + 6, sT + 7
    t0 = sT + 8
    sLead, sWst = 92, 93
    sAT = 100
    vGW = 156
    vGWA = 155
    vXF = 160
    vG, vGA0, vGA1 = 164, 165, 166
    vU = 168
    vF4, vF4P, vWqP, vWqG, vRdy, vF1, vF1P = range(141, 148)
    sWq = 94
    vTA, vTS = 148, 152
    sUW = sT + 13
    assert NS == 3
    vPar = 4
    E(f"""
    L_helper:
    s_lshr_b32 s{sC}, s{sH}, 1
    s_add_u32 s{sD}, s{sCH}, s{sC}
    s_and_b32 s{sCB if OPT["fm"] else sRT}, s{sHP}, 3
    s_lshr_b32 s{sRT if OPT["fm"] else sCB}, s{sHP}, 2
    v_lshrrev_b32 v3, 5, v1
    v_lshlrev_b32 v3, 4, v3
    s_lshl_b32 s{t0+2}, s{sROT}, 2
    s_add_u32 s{t0+2}, s{t0+2}, s{sH}
    s_lshl_b32 s{t0+2}, s{t0+2}, 5
    s_add_u32 s{t0+2}, s{t0+2}, {GW}
    v_add_u32 v{vGWA}, s{t0+2}, v3
    v_mov_b32 v12, 0
    v_mov_b32 v13, 0
    v_mov_b32 v14, 0
    v_mov_b32 v15, 0
    s_cmp_lt_u32 s2, 16
    s_cselect_b32 s{sLead}, s{sW}, 0
    """)
    E(f"s_add_u32 s{pFL}, s{pWs}, {WS_FL}\ns_addc_u32 s{pFL+1}, s{pWs+1}, 0")
    def claim_kv():
        E(f"""
        s_lshl2_add_u32 s{t0}, s{sRB}, s{sH}
        s_lshl_b32 s{t0}, s{t0}, 11
        s_lshl_b32 s{t0+1}, s{sHP}, 18
        s_add_u32 s{t0}, s{t0}, s{t0+1}
        """)
        if OPT["clm"] in (1, 3):
            E(f"""
            v_and_b32 v10, 31, v1
            v_lshl_add_u32 v10, v10, 6, s{t0}
            v_lshrrev_b32 v11, 5, v1
            v_lshl_add_u32 v10, v11, 17, v10
            global_store_dword v10, v12, {sr(pWs,2)} sc1
            """)
        else:
            E(f"""
            v_lshl_add_u32 v10, v1, 4, s{t0}
            v_add_u32 v11, 0x20000, v10
            global_store_dwordx4 v10, v[12:15], {sr(pWs,2)} sc1
            global_store_dwordx4 v10, v[12:15], {sr(pWs,2)} offset:1024 sc1
            global_store_dwordx4 v11, v[12:15], {sr(pWs,2)} sc1
            global_store_dwordx4 v11, v[12:15], {sr(pWs,2)} offset:1024 sc1
            """)
    NCL = {0: 0, 1: 1, 2: 4, 3: 0}[OPT["clm"]]
    if NCL: claim_kv()
    stamp("h")
    E(f"""
    s_mul_i32 s{t0}, s{sC}, {URS}
    s_add_u32 s{t0}, s{t0}, {UR+4096}
    v_lshl_add_u32 v10, v1, 4, s{t0}
    v_and_b32 v11, 1, v1
    v_lshlrev_b32 v11, 4, v11
    v_cmp_gt_u32 vcc, 30, v1
    v_add_u32 v11, {CNT}, v11
    v_mov_b32 v2, 0x3f803f80
    v_cndmask_b32 v10, v11, v10, vcc
    ds_write_b128 v10, v[12:15]
    v_and_b32 v11, 3, v1
    v_lshlrev_b32 v11, 2, v11
    ds_write_b32 v11, v2 offset:{CNT+32}
    """)
    vWA, vRA = 16, 17
    if "prio1" in OPT: E(f"s_setprio {OPT['prio1']}")
    E(f"""
    s_mul_i32 s{t0}, s{sRT}, {WPART}
    s_add_u32 s{t0}, s{t0}, {RING}
    v_and_b32 v10, 31, v1
    v_lshl_add_u32 v10, v10, 7, s{t0}
    v_bfe_u32 v11, v1, 1, 3
    v_lshrrev_b32 v3, 5, v1
    v_xor_b32 v11, v11, v3
    s_lshl_b32 s{t0}, s{sH}, 1
    v_xor_b32 v11, s{t0}, v11
    v_lshl_add_u32 v{vGA0}, v11, 4, v10
    v_mov_b32 v{vG}, 0
    """)
    if not OPT["gath"]: E(f"""
    s_lshr_b32 s{sUW}, s{sHP}, 1
    s_sub_u32 s{sUW}, s{sUW}, s{sROT}
    s_and_b32 s{sUW}, s{sUW}, 7
    s_mul_i32 s{t0}, s{sUW}, 11
    s_lshr_b32 s{t0}, s{t0}, 5
    s_mul_i32 s{t0}, s{t0}, 3
    s_sub_u32 s{t0}, s{sUW}, s{t0}
    s_mul_i32 s{t0}, s{t0}, {SLOT}
    s_mul_i32 s{t0+1}, s{sH}, {WPART}
    s_add_u32 s{t0}, s{t0}, s{t0+1}
    s_add_u32 s{t0}, s{t0}, {RING}
    v_and_b32 v10, 3, v1
    v_bfe_u32 v11, v1, 2, 2
    v_lshlrev_b32 v10, 3, v10
    v_sub_u32 v10, v10, v11
    v_add_u32 v10, 7, v10
    v_bfe_u32 v11, v10, 1, 3
    v_xor_b32 v11, v11, v3
    s_and_b32 s{t0+1}, s{sHP}, 1
    s_lshl_b32 s{t0+1}, s{t0+1}, 2
    v_xor_b32 v11, s{t0+1}, v11
    v_lshlrev_b32 v11, 4, v11
    v_lshl_add_u32 v11, v10, 7, v11
    v_bfe_u32 v10, v1, 4, 1
    v_lshl_add_u32 v11, v10, 3, v11
    v_add_u32 v{vTA}, s{t0}, v11
    v_xor_b32 v{vTA+1}, 32, v{vTA}
    v_subrev_u32 v{vTA+2}, 512, v{vTA}
    v_subrev_u32 v{vTA+3}, 512, v{vTA+1}
    """)
    E(f"""
    s_mul_i32 s{t0}, s{sH}, {KGS}
    s_add_u32 s{t0}, s{t0}, {KG}
    s_mov_b32 m0, s{t0}
    v_and_b32 v10, 31, v1
    v_mul_u32_u24 v10, 272, v10
    v_lshl_add_u32 v10, v3, 4, v10
    v_add_u32 v{vRA}, s{t0}, v10
    s_mul_i32 s{t0}, s{sC}, {2*KGS}
    s_add_u32 s{t0}, s{t0}, {KG+KGS}
    v_lshl_add_u32 v{vWA}, v1, 4, s{t0}
    """)
    K = []
    def k(s, c=None):
        if isinstance(s, list): s = "\n".join(s)
        for x in s.split("\n"):
            x = x.strip()
            if not x: continue
            cc = c if c is not None else (8 if any(t in x for t in ("v_exp", "v_sin", "v_cos", "v_rcp", "ds_")) else 4)
            K.append((cc, x))
    va, vb, vt = 220, 221, 222
    log2e = math.log2(math.e)
    c_hi = struct.unpack("<f", struct.pack("<f", log2e))[0]
    c_lo = log2e - c_hi
    k(f"""
    s_waitcnt lgkmcnt(0)
    s_lshl_b32 s{t0}, s{sC}, 4
    s_lshr_b32 s{sLd}, s{sLd}, s{t0}
    s_lshl_b32 s{sLd}, s{sLd}, 16
    s_lshr_b32 s{sDs}, s{sDs}, s{t0}
    s_lshl_b32 s{sDs}, s{sDs}, 16
    s_mov_b32 s{t0}, {fbits(c_hi)}
    v_mov_b32 v{vt}, s{sLd}
    v_mul_f32 v{vt+1}, s{t0}, v{vt}
    v_fma_f32 v{vt+2}, v{vt}, s{t0}, -v{vt+1}
    v_fmac_f32 v{vt+2}, {fbits(c_lo)}, v{vt}
    v_exp_f32 v{vt+1}, v{vt+1}
    v_mul_f32 v{vt+2}, {fbits(math.log(2.0))}, v{vt+2}
    v_fma_f32 v{vt+1}, v{vt+1}, v{vt+2}, v{vt+1}
    v_cvt_pk_bf16_f32 v{vt+1}, v{vt+1}, v{vt+1}
    v_lshlrev_b32 v{vt}, 16, v{vt+1}
    s_waitcnt vmcnt({1+NCL})
    """)
    for j in range(6):
        k(f"v_lshlrev_b32 v{vPar+j}, 16, v{vPar+j}")
    k(f"""
    v_mul_f32 v{va}, v{vt}, v{vPar}
    v_mul_f32 v{vb}, v{vt}, v{vPar+1}
    v_mul_f32 v{vPar+2}, v{vt}, v{vPar+2}
    v_mul_f32 v{vPar+3}, v{vt}, v{vPar+3}
    v_mul_f32 v{va}, {fbits(c_hi)}, v{va}
    v_mul_f32 v{vb}, 0.15915494, v{vb}
    """)
    pkm = [OPT["pk0"]]
    def cmul(z, x, w):
        if pkm[0]:
            return [f"v_pk_mul_f32 {vr(z,2)}, {vr(x,2)}, {vr(w,2)} op_sel_hi:[0,1]",
                    f"v_pk_fma_f32 {vr(z,2)}, {vr(x,2)}, {vr(w,2)}, {vr(z,2)} op_sel:[1,1,0] op_sel_hi:[1,0,1] neg_lo:[1,0,0]"]
        return [f"v_mul_f32 v{z}, v{x}, v{w}\nv_mul_f32 v{z+1}, v{x}, v{w+1}",
                f"v_fma_f32 v{z}, -v{x+1}, v{w+1}, v{z}\nv_fmac_f32 v{z+1}, v{x+1}, v{w}"]
    def cmuls(lst):
        cm = [cmul(*a) for a in lst]
        k([c[0] for c in cm]); k([c[1] for c in cm])
    def direct(z, x):
        k(f"""
        v_mul_f32 v{vt+2}, {fbits(x)}, v{vb}
        v_mul_f32 v{vt+1}, {fbits(x)}, v{va}
        v_fract_f32 v{vt+2}, v{vt+2}
        v_exp_f32 v{vt+1}, v{vt+1}
        v_cos_f32 v{z}, v{vt+2}
        v_sin_f32 v{z+1}, v{vt+2}
        s_nop 0
        v_mul_f32 v{z}, v{z}, v{vt+1}
        v_mul_f32 v{z+1}, v{z+1}, v{vt+1}
        """)
    E1, E32, E256 = 226, 228, 230
    vE = 232
    vPk = 64
    npk = [0]
    DW = {False: [], True: []}
    def puts(lst, neg):
        for z, rows in lst:
            p = vPk + npk[0]; npk[0] += 1
            k(f"v_cvt_pk_bf16_f32 v{p}, v{z}, {'-' if neg else ''}v{z+1}")
            DW[neg] += [f"ds_write_addtid_b32 v{p} offset:{272*r}" for r in rows]
    def e(j): return vE + 2 * (j % 8)
    direct(e(1), 8.0); direct(E32, 32.0)
    k(f"v_mov_b32 v{e(0)}, 1.0\nv_mov_b32 v{e(0)+1}, 0\nv_mov_b32 v{e(4)}, v{E32}\nv_mov_b32 v{e(4)+1}, v{E32+1}")
    cmuls([(e(2), e(1), e(1)), (e(5), e(1), E32)])
    cmuls([(e(3), e(2), e(1)), (e(6), e(2), E32)])
    cmuls([(e(7), e(3), E32)])
    puts([(e(j), [j]) for j in range(4)], False)
    for j0 in range(4, 32, 4):
        if j0 + 4 < 32: cmuls([(e(j + 4), e(j), E32) for j in range(j0, j0 + 4)])
        puts([(e(j), [j]) for j in range(j0, j0 + 4)], False)
    vEF, vGF, vD = 192, 224, 176
    direct(E1, 1.0); direct(E256, 256.0)
    def row(r, h): return 8 * (r >> 2) + 4 * h + (r & 3)
    vGv = 192
    g = {x: vGv + 2 * x for x in range(9)}
    E2 = e(0)
    cmuls([(g[0], vPar + 4, vPar + 2), (E2, E1, E1)])
    cmuls([(g[1], g[0], E1), (g[2], g[0], E2)])
    cmuls([(g[3], g[1], E2), (g[4], g[2], E2)])
    puts([(g[x], [row(x, 0)]) for x in range(4)], True)
    cmuls([(g[5], g[3], E2), (g[6], g[4], E2)])
    cmuls([(g[7], g[5], E2), (g[8], g[6], E2)])
    puts([(g[x], [row(x, 0)]) for x in range(4, 8)], True)
    A = {o: vGv + 18 + 2 * i for i, o in enumerate((0, 2, 4, 6, 8))}
    cmuls([(A[o], g[o], E256) for o in (0, 2, 4, 6, 8)])
    puts([(A[o], [row(r, 1) for r in rs]) for o, rs in ((0, (0, 1)), (2, (2,)), (4, (3, 4, 5)), (6, (6,)), (8, (7,)))], True)
    src, dst = A, g
    for os_, r0, h in (((0, 4, 8), 8, 0), ((0, 4, 8), 8, 1), ((0, 8), 11, 0), ((0, 8), 11, 1), ((0, 8), 13, 0), ((0, 8), 13, 1)):
        cmuls([(dst[o], src[o], E256) for o in os_])
        puts([(dst[o], [row(r0 + i, h)]) for i, o in enumerate(os_)], True)
        src, dst = dst, src
    def D1(): E(DW[False] + [f"ds_read_b128 {vr(vEF+4*s,4)}, v{vRA} offset:{32*s}" for s in range(8)])
    def D2(): E(DW[True] + [f"ds_read_b128 {vr(vGF+4*s,4)}, v{vRA} offset:{32*s}" for s in range(8)])
    PL = [int(c) for c in "%05d" % OPT["pl"]]
    psync = PL[2] == PL[3]
    def D3():
        E("s_waitcnt lgkmcnt(0)")
        for s in range(8):
            E(f"v_mfma_f32_32x32x16_bf16 {vr(vD,16)}, {vr(vGF+4*s,4)}, {vr(vEF+4*s,4)}, {'0' if s == 0 else vr(vD,16)}")
        lx = newlab("nx")
        E(f"s_nop 9\ns_cmp_eq_u32 s{sMH}, 0\ns_cbranch_scc1 {lx}")
        for j in range(4):
            E(f"ds_write_b128 v{vWA}, {vr(vD+4*j,4)} offset:{1024*j}")
        if psync: lds_arrive(vCP, vOne)
        E(f"s_waitcnt lgkmcnt(0)\n{lx}:")
    (vCA, vCP, vOne, vTm, vAA, vBA, vUW, vCW, vCR, vAT, vF3, vWoG, vWoL, vF3P, vAL, vOut, vg, vomg, vOL, vGPw, vGPr, vWoP, vUL, vClO) = range(24, 48)
    vA = 48; vAcc = 96
    LQH = {0: 2, 1: 0, 2: 1}[OPT["xm"]]
    LOH = [{0: 2, 1: 1, 2: 1}, {0: 3, 1: 2, 2: 3}][OPT["fm"]][OPT["xm"]]
    ADDR = f"""
    s_lshr_b32 s{t0}, s2, 3
    s_lshl2_add_u32 s{t0}, s{t0}, s{sH}
    s_mul_i32 s{t0}, s{t0}, 12288
    s_lshr_b32 s{t0+1}, s{sHP}, {LQH+1}
    s_lshl_b32 s{t0+1}, s{t0+1}, {7+LQH}
    s_add_u32 s{t0}, s{t0}, s{t0+1}
    v_bfe_u32 v18, v1, {LQH}, 2
    v_mul_u32_u24 v18, 3072, v18
    v_and_b32 v19, {(1<<LQH)-1}, v1
    v_lshl_add_u32 v18, v19, 7, v18
    v_add_u32 v{vWqP}, s{t0}, v18
    v_mov_b32 v{vCA}, {CNT}
    s_lshl_b32 s{t0}, s{sC}, 2
    s_add_u32 s{t0}, s{t0}, {CNT+4}
    v_mov_b32 v{vCP}, s{t0}
    v_mov_b32 v{vOne}, 1
    v_lshlrev_b32 v23, 4, v1
    s_lshl_b32 s{t0}, s{sH}, 10
    s_sub_u32 s{t0}, {UR+4080-512}, s{t0}
    v_lshrrev_b32 v18, 1, v1
    v_lshlrev_b32 v19, 4, v18
    v_sub_u32 v19, s{t0}, v19
    v_and_b32 v20, 1, v1
    v_mul_u32_u24 v21, {URS}, v20
    v_add_u32 v{vUW}, v19, v21
    s_lshr_b32 s{t0}, s{sCH}, 2
    s_lshl_b32 s{t0}, s{t0}, 14
    s_lshl_b32 s{t0+1}, s{sH}, 12
    s_add_u32 s{t0}, s{t0}, s{t0+1}
    s_and_b32 s{t0+1}, s{sRB}, 1
    s_lshl_b32 s{t0+1}, s{t0+1}, 5
    s_add_u32 s{t0}, s{t0}, s{t0+1}
    s_add_u32 s{t0}, s{t0}, {WS_UT}
    v_lshl_add_u32 v18, v18, 6, s{t0}
    v_lshl_add_u32 v{vUL}, v20, 4, v18
    v_and_b32 v18, 15, v1
    v_add_u32 v19, 1, v18
    v_and_b32 v20, 3, v19
    v_mul_u32_u24 v20, {KCP}, v20
    v_lshrrev_b32 v19, 2, v19
    v_lshl_add_u32 v20, v19, 3, v20
    v_lshrrev_b32 v21, 4, v1
    v_lshlrev_b32 v22, 4, v21
    s_mul_i32 s{t0}, s{sC}, {2*KGS}
    s_lshl_b32 s{t0+1}, s{sMH}, 8
    s_add_u32 s{t0}, s{t0}, s{t0+1}
    s_add_u32 s{t0}, s{t0}, {KG}
    v_add3_u32 v{vAA}, v20, v22, s{t0}
    s_mul_i32 s{t0}, s{sC}, {URS}
    s_add_u32 s{t0}, s{t0}, s{t0+1}
    s_add_u32 s{t0}, s{t0}, {UR+4064-3584}
    v_lshlrev_b32 v19, 5, v18
    v_sub_u32 v22, v22, v19
    v_add_u32 v{vBA}, s{t0}, v22
    s_lshl_b32 s{t0}, s{sH}, 12
    s_add_u32 s{t0}, s{t0}, {CRED}
    v_add_u32 v{vCW}, s{t0}, v23
    s_xor_b32 s{t0}, s{sH}, 1
    s_lshl_b32 s{t0}, s{t0}, 12
    s_add_u32 s{t0}, s{t0}, {CRED}
    v_add_u32 v{vCR}, s{t0}, v23
    v_add_u32 v{vOL}, {OFL}, v23
    v_lshrrev_b32 v19, 1, v18
    v_lshlrev_b32 v19, 15, v19
    v_and_b32 v20, 1, v1
    v_lshl_add_u32 v19, v20, 5, v19
    v_lshl_add_u32 v{vAT}, v21, 3, v19
    s_lshl_b32 s{t0}, s{sMH}, 20
    s_lshl_b32 s{t0+1}, s{sD}, 6
    s_add_u32 s{t0}, s{t0}, s{t0+1}
    s_add_u32 s{t0}, s{t0}, {WS_AT}
    s_add_u32 s{sAT}, s{pWs}, s{t0}
    s_addc_u32 s{sAT+1}, s{pWs+1}, 0
    s_lshl_b32 s{t0}, s{sMH}, 9
    s_add_u32 s{t0}, s{t0}, s{sD}
    s_add_u32 s{t0}, s{t0}, {F3}
    s_lshl_b32 s{t0}, s{t0}, 2
    v_mov_b32 v{vF3}, s{t0}
    s_mov_b32 s{SRDW}, s{pWo}
    s_mov_b32 s{SRDW+1}, s{pWo+1}
    s_mov_b32 s{SRDW+2}, {512*1024}
    s_mov_b32 s{SRDW+3}, 0x00020000
    s_lshl_b32 s{t0}, s{sCB}, 2
    s_add_u32 s{t0}, s{t0}, s{sH}
    s_lshl_b32 s{t0+1}, s{t0}, 6
    v_lshrrev_b32 v18, 2, v1
    v_lshl_add_u32 v18, v18, 10, s{t0+1}
    v_and_b32 v19, 3, v1
    v_lshl_add_u32 v{vWoG}, v19, 4, v18
    s_mul_i32 s{sWst}, s{sH}, {WSL*1024}
    s_add_u32 s{sWst}, s{sWst}, {WST}
    v_lshrrev_b32 v22, 5, v1
    v_lshlrev_b32 v20, 2, v22
    v_bfe_u32 v21, v1, 2, 2
    v_add_u32 v20, v20, v21
    v_lshl_add_u32 v20, v20, 6, s{sWst}
    v_lshl_add_u32 v20, v19, 3, v20
    v_bfe_u32 v21, v1, 4, 1
    v_lshl_add_u32 v{vWoL}, v21, 5, v20
    s_lshl_b32 s{t0}, s{t0}, 5
    s_lshr_b32 s{t0+1}, s{sRB}, 3
    s_lshl_b32 s{t0+1}, s{t0+1}, 9
    s_add_u32 s{t0+1}, s{t0+1}, s{t0}
    s_add_u32 s{t0+1}, s{t0+1}, {F3}
    v_and_b32 v18, 31, v1
    v_add_u32 v19, s{t0+1}, v18
    v_lshlrev_b32 v{vF3P}, 2, v19
    s_lshl_b32 s{t0+1}, s{sRB}, 2
    s_add_u32 s{t0+1}, s{t0+1}, s{sRT}
    s_lshl_b32 s{t0+2}, s{t0+1}, 15
    s_lshl_b32 s{t0+3}, s{t0}, 6
    s_add_u32 s{t0+3}, s{t0+3}, s{t0+2}
    s_add_u32 s{t0+3}, s{t0+3}, {WS_AT}
    v_lshlrev_b32 v20, 8, v22
    v_lshl_add_u32 v20, v18, 1, v20
    v_add_u32 v{vAL}, s{t0+3}, v20
    s_lshl_b32 s{t0}, s{t0}, 1
    s_add_u32 s{t0}, s{t0}, s{t0+2}
    v_lshl_add_u32 v20, v18, 10, s{t0}
    v_lshl_add_u32 v{vOut}, v22, 4, v20
    """.split("\n")
    ADDR += f"""
    s_lshl2_add_u32 s{t0}, s{sRB}, s{sH}
    s_lshl4_add_u32 s{t0}, s{t0}, s{sHP}
    s_lshl_b32 s{t0}, s{t0}, 11
    s_add_u32 s{t0}, s{t0}, {WS_OF}
    v_lshl_add_u32 v{vClO}, v1, 6, s{t0}
    s_lshl_b32 s{t0}, s{sRB}, 2
    s_add_u32 s{t0}, s{t0}, s{sH}
    s_lshl_b32 s{t0}, s{t0}, 8
    s_lshl_b32 s{t0+1}, s{sHP}, 17
    s_add_u32 s{t0}, s{t0}, s{t0+1}
    s_add_u32 s{t0}, s{t0}, {WS_UT}
    v_and_b32 v18, 15, v1
    v_lshl_add_u32 v18, v18, 4, s{t0}
    v_lshrrev_b32 v19, 4, v1
    v_lshl_add_u32 v{vTS}, v19, 14, v18
    v_add_u32 v{vTS+1}, 0x10000, v{vTS}
    v_and_b32 v18, 15, v1
    v_lshlrev_b32 v{vRdy}, 2, v18
    s_lshl_b32 s{t0}, s{sHP}, 4
    v_add_u32 v19, s{t0}, v18
    v_lshlrev_b32 v{vF1P}, {FSH}, v19
    s_add_u32 s{t0}, s{t0}, s{sRB}
    s_lshl2_add_u32 s{t0+1}, s{t0}, s{sH}
    s_add_u32 s{t0+1}, s{t0+1}, {F4}
    s_lshl_b32 s{t0+1}, s{t0+1}, 2
    v_mov_b32 v{vF4}, s{t0+1}
    s_lshl2_add_u32 s{t0+1}, s{sHP}, s{sH}
    s_lshl4_add_u32 s{t0+1}, s{t0+1}, {F4}
    v_add_lshl_u32 v{vF4P}, v18, s{t0+1}, 2
    s_lshl_b32 s{t0}, s{t0}, {FSH}
    v_mov_b32 v{vF1}, s{t0}
    v_and_b32 v18, 31, v1
    v_lshlrev_b32 v18, 5, v18
    v_lshrrev_b32 v19, 5, v1
    v_lshl_add_u32 v19, v19, 2, v18
    s_lshl_b32 s{t0}, s{sH}, 3
    s_add_u32 s{t0}, s{t0}, {GP}
    v_add_u32 v{vGPw}, s{t0}, v19
    v_add_u32 v{vGPr}, {GP}, v18
    s_lshr_b32 s{t0}, s2, 3
    s_lshl_b32 s{t0}, s{t0}, 2
    s_add_u32 s{t0}, s{t0}, s{sH}
    s_lshl_b32 s{t0}, s{t0}, 12
    s_lshr_b32 s{t0+1}, s{sCB}, {LOH-1}
    s_lshl_b32 s{t0+1}, s{t0+1}, {7+LOH}
    s_add_u32 s{t0}, s{t0}, s{t0+1}
    v_bfe_u32 v18, v1, {LOH}, 2
    v_lshl_add_u32 v18, v18, 10, s{t0}
    v_and_b32 v19, {(1<<LOH)-1}, v1
    v_lshl_add_u32 v{vWoP}, v19, 7, v18
    """.split("\n") + [f"v_mov_b32 v{vA+j}, 0" for j in range(16)]
    if OPT["gath"]:
        ADDR += f"""
        s_lshl_b32 s{t0}, s{sH}, 19
        s_lshl_b32 s{t0+1}, s{sCH}, 1
        s_add_u32 s{t0}, s{t0}, s{t0+1}
        s_add_u32 s{t0}, s{t0}, 4096
        v_lshl_add_u32 v{vUL}, v1, 13, s{t0}
        s_lshl_b32 s{t0}, s{sH}, 10
        s_sub_u32 s{t0}, {UR+4080}, s{t0}
        v_lshlrev_b32 v18, 4, v1
        v_sub_u32 v{vUW}, s{t0}, v18
        s_mov_b32 s94, 0x05040100
        s_mov_b32 s95, 0x07060302
        """.split("\n")
    ADDR = [x.strip() for x in ADDR if x.strip()]
    def GATEF():
        E("s_waitcnt lgkmcnt(0)")
        for j in range(4):
            E(f"v_dot2_f32_bf16 v{vG}, v{vXF+j}, v{vGW+j}, v{vG}")
        E(f"s_nop 2\nds_write_b32 v{vGPw}, v{vG}")
    def SIG():
        E(f"""
        ds_read_b128 v[128:131], v{vGPr}
        ds_read_b128 v[132:135], v{vGPr} offset:16
        s_waitcnt lgkmcnt(0)
        v_add_f32 v128, v128, v129
        v_add_f32 v130, v130, v131
        v_add_f32 v132, v132, v133
        v_add_f32 v134, v134, v135
        v_add_f32 v128, v128, v130
        v_add_f32 v132, v132, v134
        v_add_f32 v128, v128, v132
        v_mul_f32 v128, {fbits(-log2e)}, v128
        v_exp_f32 v128, v128
        s_nop 0
        v_add_f32 v128, 1.0, v128
        v_rcp_f32 v{vg}, v128
        s_nop 0
        v_sub_f32 v{vomg}, 1.0, v{vg}
        """)
    vR = 64; vE0 = 64
    def KC1():
        lk = newlab("nk")
        E(f"s_cmp_eq_u32 s{sMH}, 0\ns_cbranch_scc0 {lk}")
        if psync: lds_wait(vCP, 2, 1)
        for j in range(4):
            E(f"ds_read_b128 {vr(vR+4*j,4)}, v{vWA} offset:{1024*j}")
        E(f"""
        s_mul_i32 s{t0}, s{sC}, {2*KGS}
        s_add_u32 s{t0}, s{t0}, {KG}
        v_lshl_add_u32 v2, v1, 4, s{t0}
        v_lshrrev_b32 v3, 1, v1
        v_mul_u32_u24 v3, {KCP}, v3
        v_and_b32 v10, 1, v1
        v_lshlrev_b32 v11, 4, v10
        v_add3_u32 v3, v3, v11, s{t0}
        v_cmp_eq_u32 {sr(t0+2,2)}, 1, v10
        s_mov_b64 exec, 1
        v_add_f32 v{vD}, s{sDs}, v{vD}
        s_waitcnt lgkmcnt(0)
        s_mov_b64 exec, 0xff
        ds_write_b128 v3, v[12:15]
        s_mov_b64 exec, -1
        """)
        for j in range(15):
            E(f"v_add_f32 v{vD+j}, v{vD+j}, v{vR+j}")
        E(f"""
        v_cndmask_b32 v10, v{vD+11}, v{vD+12}, {sr(t0+2,2)}
        v_cndmask_b32 v11, v{vD+13}, v{vD+14}, {sr(t0+2,2)}
        """)
        D = lambda j: vD + j
        pats = [[(D(0), D(1)), (D(2), D(3)), (D(4), D(5)), (D(6), D(7))],
                [(D(8), D(8)), (D(8), D(9)), (D(9), D(9)), (D(10), D(10))],
                [(D(11), D(11)), (D(11), D(11)), (10, D(12)), (D(12), D(12))],
                [(D(13), D(13)), (D(13), D(13)), (11, D(14)), (D(14), D(14))]]
        for u in range(4):
            for j, (a, b) in enumerate(pats[u]):
                E(f"v_cvt_pk_bf16_f32 v{vE0+8*u+j}, v{a}, v{b}")
            E(f"ds_write_b128 v2, {vr(vE0+8*u,4)} offset:{32+1024*u}")
        for u in range(4):
            E(f"ds_read_b64 {vr(vE0+8*u+4,2)}, v2 offset:{48+1024*u}")
        E(f"{lk}:")
    def KC2():
        lk = newlab("nk")
        E(f"s_cmp_eq_u32 s{sMH}, 0\ns_cbranch_scc0 {lk}\ns_waitcnt lgkmcnt(0)")
        for u in range(4):
            b = vE0 + 8 * u; o = 96 + 12 * (u & 1)
            for j in range(4):
                E(f"v_alignbit_b32 v{o+j}, v{b+j+1}, v{b+j}, 16")
            E(f"ds_write_b128 v2, {vr(o,4)} offset:{32+1024*u+KCP}")
            for j in range(4):
                E(f"v_mov_b32 v{o+4+j}, v{b+j+1}")
            E(f"ds_write_b128 v2, {vr(o+4,4)} offset:{32+1024*u+2*KCP}")
            for j in range(4):
                E(f"v_alignbit_b32 v{o+8+j}, v{b+j+2}, v{b+j+1}, 16")
            E(f"ds_write_b128 v2, {vr(o+8,4)} offset:{32+1024*u+3*KCP}")
            if u == 0:
                E(f"""
                v_lshlrev_b32 v10, 16, v{b}
                s_mov_b64 exec, 1
                ds_write_b32 v2, v10 offset:{28+KCP}
                ds_write_b32 v2, v{b} offset:{28+2*KCP}
                ds_write_b32 v2, v10 offset:{24+3*KCP}
                ds_write_b32 v2, v{o} offset:{28+3*KCP}
                s_mov_b64 exec, -1
                """)
        E(f"{lk}:")
    def gate_glue(i):
        E(f"s_waitcnt vmcnt({NCL}) lgkmcnt(0)" if i == 0 else "s_waitcnt vmcnt(0) lgkmcnt(0)" if i == 7 else "s_waitcnt lgkmcnt(0)")
        if OPT.get("hst"): stamp("h")
        E("s_barrier")
        if i == 0 and OPT["clm"] == 3: claim_kv()
        if i == 0:
            lq = newlab("nr")
            E(f"""
            s_cmp_eq_u32 s{sLead}, 7
            s_cbranch_scc0 {lq}
            s_lshl_b32 s{sSPIN}, s2, 5
            v_add_u32 v10, s{sSPIN}, v1
            v_lshlrev_b32 v10, {FSH}, v10
            s_lshl_b32 s{sSPIN}, s2, 9
            s_add_u32 s{sSPIN}, s{sSPIN}, {4*F3}
            v_lshl_add_u32 v11, v1, 3, s{sSPIN}
            global_store_dwordx2 v11, v[12:13], {sr(pFL,2)} sc1
            s_bfm_b64 exec, 32, 0
            global_store_dword v10, v12, {sr(pFL,2)} sc1
            s_mov_b64 exec, -1
            {lq}:
            """)
        if i == OPT["rdyw"]:
            lq = newlab("nr")
            E(f"""
            s_cmp_eq_u32 s{sLead}, 7
            s_cbranch_scc0 {lq}
            s_lshl_b32 s{sSPIN}, s2, 2
            v_mov_b32 v10, s{sSPIN}
            v_mov_b32 v11, 1
            s_waitcnt vmcnt(0)
            """)
            put_flag(10, 11, pDbg)
            E(f"{lq}:")
        if i >= 1:
            for j in range(4):
                E(f"v_dot2_f32_bf16 v{vG}, v{vXF+j}, v{vGW+j}, v{vG}")
        slot = i % NS
        E(f"ds_read_b128 {vr(vXF,4)}, v{vGA0} offset:{slot*SLOT}")
        E(f"ds_read_b128 {vr(vGW,4)}, v{vGWA} offset:{128*i}")
        if not OPT["gath"]: E(f"""
        s_cmp_eq_u32 s{sUW}, {i}
        s_cbranch_scc0 L_ut{i}
        ds_read_b64_tr_b16 {vr(vU,2)}, v{vTA}
        ds_read_b64_tr_b16 {vr(vU+2,2)}, v{vTA+3}
        ds_read_b64_tr_b16 {vr(vU+4,2)}, v{vTA+1}
        ds_read_b64_tr_b16 {vr(vU+6,2)}, v{vTA+2}
        L_ut{i}:
        """)
    E(ADDR)
    tot = sum(c for c, _ in K); nw = OPT["kw"]
    pre = tot * OPT["kpre"] / 100
    segs = [[] for _ in range(9)]; acc = 0
    for c, x in K:
        segs[0 if acc < pre else 1 + min(nw - 1, int((acc - pre) * nw / (tot - pre)))].append(x); acc += c
    items = [D1, D2, D3, KC1, KC2]
    def place(w):
        for it, p in zip(items, PL):
            if p == w: it()
    E(segs[0])
    for i in range(8):
        gate_glue(i)
        if i == OPT["wqpf"]:
            E(f"s_bfm_b64 exec, {4<<LQH}, 0\nglobal_load_dword v167, v{vWqP}, {sr(pW,2)}\ns_mov_b64 exec, -1")
        E(segs[i + 1])
    stamp("h")
    GATEF()
    uts = f"""
    global_store_dwordx4 v{vTS}, {vr(vU,4)}, {sr(pWs,2)} sc1
    global_store_dwordx4 v{vTS+1}, {vr(vU+4,4)}, {sr(pWs,2)} sc1
    """
    E(f"global_load_dword v{vTm}, v{vRdy}, {sr(pDbg,2)} sc1")
    place(0)
    E(f"s_setprio {OPT['prioq']}\ns_waitcnt lgkmcnt(0)\ns_barrier")
    stamp("h")
    if not OPT["gath"] and not OPT["utl"]: E(uts)
    SIG()
    place(1)
    E("s_barrier")
    place(2)
    assert OPT["ackn"] > 16 - OPT["lq"]
    E(f"s_setprio {OPT['prio']}\ns_waitcnt vmcnt(0)\ns_barrier")
    stamp("h")
    lq = newlab("nf"); lr = newlab("rdy")
    E(f"""
    s_cmp_lg_u32 s{sH}, 1
    s_cbranch_scc1 {lq}
    v_cmp_ne_u32 vcc, 0, v{vTm}
    s_nop 1
    s_cmp_eq_u64 vcc, -1
    s_cbranch_scc1 {lr}
    """)
    poll_global(vRdy, pDbg, vTm)
    E(f"{lr}:")
    put_flag(vF1, vOne)
    E(f"{lq}:")
    place(3)
    E("s_barrier")
    place(4)
    lq = newlab("nf")
    E(f"s_cmp_lg_u32 s{sH}, 1\ns_cbranch_scc1 {lq}")
    poll_global(vF1P, pFL, vTm)
    E(f"{lq}:")
    E("s_setprio 0\ns_barrier")
    stamp("h")
    late = OPT["utl"] and not OPT["gath"]
    if PL[0] == 5: D1()
    if late: E(uts)
    E(f"s_setprio {OPT['prio']}")
    if PL[1] == 5: D2()
    if PL[2] == 5: D3()
    if late:
        E("s_waitcnt vmcnt(0)")
        put_flag(vF4, vOne)
    if PL[3] == 5: KC1()
    if PL[4] == 5: KC2()
    if late:
        lds_arrive(vCA, vOne)
        lds_wait(vCA, vTm, 4)
        E("s_waitcnt vmcnt(0)")
        poll_global(vF4P, pFL, vTm)
    if OPT["gath"]:
        for j in range(8):
            E(f"global_load_dword v{vU+j}, v{vUL}, {sr(pX,2)} offset:{1024*j-4096}\ns_waitcnt vmcnt({OPT['gd'] if j < 7 else 0})")
        E(f"s_setprio {OPT['prio']}")
        for j in range(4):
            E(f"v_perm_b32 v{12+j}, v{vU+6-2*j}, v{vU+7-2*j}, s94")
            E(f"v_perm_b32 v{16+j}, v{vU+6-2*j}, v{vU+7-2*j}, s95")
        E(f"ds_write_b128 v{vUW}, v[12:15]\nds_write_b128 v{vUW}, v[16:19] offset:{URS}")
    else: E(f"""
    global_load_dwordx4 v[12:15], v{vUL}, {sr(pWs,2)} sc1
    global_load_dwordx4 v[16:19], v{vUL}, {sr(pWs,2)} offset:2048 sc1
    s_waitcnt vmcnt(0)
    s_setprio {OPT['prio']}
    ds_write_b128 v{vUW}, v[12:15] offset:512
    ds_write_b128 v{vUW}, v[16:19]
    """)
    lds_arrive(vCA, vOne)
    lds_wait(vCA, vTm, 8 if late else 4)
    stamp("h")
    vY = 64
    vF = [96, 192]
    def creads(r):
        f = vF[r & 1]; o = []
        for gmm in range(8):
            o.append(f"ds_read_b64 {vr(f+4*gmm,2)}, v{vAA} offset:{512*gmm+64*r}")
            o.append(f"ds_read_b64 {vr(f+4*gmm+2,2)}, v{vAA} offset:{512*gmm+64*r+8}")
            o.append(f"ds_read_b128 {vr(f+32+4*gmm,4)}, v{vBA} offset:{3584-512*gmm+64*r}")
        return o
    E(creads(0))
    E(f"s_setprio {OPT.get('prio3', OPT['prio'])}")
    for r in range(4):
        f = vF[r & 1]
        nxt = creads(r + 1) if r < 3 else []
        if r == 2 and OPT["wopf"]:
            E(f"s_bfm_b64 exec, {4<<LOH}, 0\nglobal_load_dword v20, v{vWoP}, {sr(pWo,2)}\ns_mov_b64 exec, -1")
        E("s_waitcnt lgkmcnt(0)")
        seen = set()
        for gmm in range(8):
            for dl in range(8 - gmm):
                tau = gmm + dl
                c = "0" if (r == 0 and tau not in seen) else vr(vY + 4 * tau, 4)
                seen.add(tau)
                if not OPT.get("noconv"): E(f"v_mfma_f32_16x16x32_bf16 {vr(vY+4*tau,4)}, {vr(f+4*gmm,4)}, {vr(f+32+4*dl,4)}, {c}")
                if nxt: E(nxt.pop(0))
    E(f"s_setprio {OPT['prio']}")
    l1 = newlab("c1"); l2 = newlab("c2")
    E(f"s_nop 5\ns_cmp_eq_u32 s{sMH}, 0\ns_cbranch_scc0 {l1}")
    def conv_fin(send, keep):
        for j in range(4):
            E(f"ds_write_b128 v{vCW}, {vr(send+4*j,4)} offset:{1024*j}")
        lds_arrive(vCP, vOne)
        lds_wait(vCP, vTm, 2 + psync)
        for j in range(4):
            E(f"ds_read_b128 {vr(96+4*j,4)}, v{vCR} offset:{1024*j}")
        E("s_waitcnt lgkmcnt(0)")
        for j in range(16):
            E(f"v_add_f32 v{96+j}, v{keep+j}, v{96+j}")
    conv_fin(vY + 16, vY)
    E(f"s_branch {l2}\n{l1}:")
    conv_fin(vY, vY + 16)
    E(f"{l2}:")
    for j in range(4):
        E(f"v_cvt_pk_bf16_f32 v{112+2*j}, v{96+4*j}, v{97+4*j}\nv_cvt_pk_bf16_f32 v{113+2*j}, v{98+4*j}, v{99+4*j}")
        E(f"global_store_dwordx2 v{vAT}, {vr(112+2*j,2)}, {sr(sAT,2)} sc1")
        if j < 3: E(f"s_add_u32 s{sAT}, s{sAT}, {8*32768}\ns_addc_u32 s{sAT+1}, s{sAT+1}, 0")
    E("s_waitcnt vmcnt(0)")
    put_flag(vF3, vOne)
    stamp("h")
    vWo = 128
    sO = t0 + 2
    WD = OPT["wod"]
    for hd in range(0 if OPT.get("nowo") else 32 + WD):
        if hd < 32:
            if hd % 4 == 0: E(f"s_add_u32 m0, s{sWst}, {(hd%WSL)*1024}")
            E(f"s_mov_b32 s{sO}, {hd*16384-(hd%4)*1024}")
            E(f"buffer_load_dwordx4 v{vWoG}, {sr(SRDW,4)}, s{sO} offen offset:{(hd%4)*1024} lds")
        r = hd - WD
        if r >= 0:
            E(f"s_waitcnt vmcnt({min(WD, 31-r)}) lgkmcnt(8)")
            E(f"ds_read_b64_tr_b16 {vr(vWo+4*r,2)}, v{vWoL} offset:{1024*(r%WSL)}")
            E(f"ds_read_b64_tr_b16 {vr(vWo+4*r+2,2)}, v{vWoL} offset:{1024*(r%WSL)+512}")
    E("s_waitcnt lgkmcnt(0)")
    stamp("h")
    if OPT["clo"] & 1:
        E(f"s_bfm_b64 exec, 32, 0\nglobal_store_dword v{vClO}, v{vOne}, {sr(pWs,2)} sc1\ns_mov_b64 exec, -1")
    if OPT["clo"] & 2:
        E(f"s_bfm_b64 exec, 32, 0\nglobal_store_dword v{vOut}, v{vOne}, {sr(pOut,2)} sc1\ns_mov_b64 exec, -1")
    poll_global(vF3P, pFL, vTm)
    for r in range(16):
        E(f"global_load_short_d16_hi v{vA+r}, v{vAL}, {sr(pWs,2)} offset:{(8*(r>>2)+(r&3))*64} sc1")
    E("s_waitcnt vmcnt(0)")
    stamp("h")
    E("s_barrier")
    for r in range(16):
        E(f"v_mul_f32 v{vA+r}, v{vg}, v{vA+r}")
    E("s_barrier")
    stamp("h")
    vB = 64
    def ord_(hd): return f"ds_read_b128 {vr(vB+4*(hd%8),4)}, v{vOL} offset:{1024*hd}"
    E("s_barrier")
    stamp("h")
    for j in range(8): E(ord_(j))
    for hd in range(32):
        out = min(hd + 4, 31) - hd if hd >= 4 else 7 - hd
        E(f"s_waitcnt lgkmcnt({out if hd < 4 else min(3, 31-hd)})")
        E(f"v_mfma_f32_32x32x16_bf16 {vr(vAcc,16)}, {vr(vWo+4*hd,4)}, {vr(vB+4*(hd%8),4)}, {'0' if hd == 0 else vr(vAcc,16)}")
        nx = hd + 4
        if 8 <= nx < 32:
            if nx % 8 == 0: E("s_barrier")
            E(ord_(nx))
    E("s_nop 11")
    for r in range(16):
        E(f"v_fma_f32 v{vAcc+r}, v{vAcc+r}, v{vomg}, v{vA+r}")
    for j in range(8):
        E(f"v_cvt_pk_bf16_f32 v{vB+j}, v{vAcc+2*j}, v{vAcc+2*j+1}")
    E("s_nop 1")
    for a in (0, 1, 4, 5):
        E(f"v_permlane32_swap_b32 v{vB+a}, v{vB+2+a}")
    fl = ["", "sc1", "nt", "sc0 sc1"][OPT["outsc"]]
    E(f"global_store_dwordx4 v{vOut}, {vr(vB,4)}, {sr(pOut,2)} {fl}\nglobal_store_dwordx4 v{vOut}, {vr(vB+4,4)}, {sr(pOut,2)} offset:32 {fl}")
    if STAMP:
        E("s_waitcnt vmcnt(0)")
    stamp("h")
    stamp_flush("h"); spin_end("h")
    E("s_endpgm")

hdr = open(f"cdna_kernels/{NAME}.s.ref").read().split("; Override launch")[0]
prologue(); main_wave()
if OPT["lay"]: helper_wave()
E("L_end:\ns_endpgm")
out = hdr + f"""; @launch grid=(256,1,1) block=(512,1,1) lds={LDS_BYTES}
.amdgcn_target "amdgcn-amd-amdhsa--gfx950"
.text
.globl {NAME}_kernel
.p2align 8
.type {NAME}_kernel,@function
{NAME}_kernel:
""" + "\n".join(L) + f"""
.section .rodata,"a"
.p2align 6
.amdhsa_kernel {NAME}_kernel
  .amdhsa_next_free_vgpr 256
  .amdhsa_next_free_sgpr 102
  .amdhsa_accum_offset 256
  .amdhsa_group_segment_fixed_size 0
  .amdhsa_kernarg_size 128
  .amdhsa_user_sgpr_count 2
  .amdhsa_user_sgpr_kernarg_segment_ptr 1
  .amdhsa_system_sgpr_workgroup_id_x 1
.end_amdhsa_kernel
"""
open(sys.argv[1], "w").write(out)
```

```python
import sys, math, struct

NAME = "gated_mix__ssm_conv_s4__mha_block__prompt"
OPT = dict(stamp=0, rot=3, fs=128, spin=200000, prio=2, outsc=0, prio3=0, pf=1, tlb=1, ksplit=90, pk0=0, wod=4, wopf=1, lay=2, prioq=0, eb=2, lq=7, epc=10, ackn=26, ute=0, kcp=1, gath=0, gd=0, d1=3, d1w=4, pl=55555, utl=1, kpre=5, kw=7, clm=0, clo=0, rdyw=2, xm=0, fm=0, wqpf=2, sigl=1)
for a in sys.argv[2:]:
    k, v = a.split("=")
    OPT[k] = int(v)
STAMP = OPT["stamp"]
FS = OPT["fs"]
FSH = int(math.log2(FS))

L = []
def E(s):
    if isinstance(s, list): s = "\n".join(s)
    for x in s.split("\n"):
        x = x.strip()
        if x:
            L.append(("" if x.endswith(":") else "    ") + x)
def fbits(x): return "0x%08x" % struct.unpack("<I", struct.pack("<f", x))[0]
def vr(a, n): return f"v[{a}:{a+n-1}]"
def sr(a, n): return f"s[{a}:{a+n-1}]"

WS_KV = 0
WS_OF = 4 << 20
WS_AT = 6 << 20
WS_FL = 8 << 20
WS_UT = 10 << 20
WS_ST = 16 << 20
F1, F2 = 0, 256
F3 = 512 * FS // 4
F4 = F3 + 1024
KG = 0; KGS = 8704
KCP = 4160
UR = KG + 4 * KGS; URS = 4576
GP = UR + 2 * URS
GW = GP + 1024
CNT = GW + 2048
RING = CNT + 64
SLOT = 24576; WPART = 6144; NS = 3
WQ = RING + NS * SLOT
LDS_BYTES = WQ + 32768
EXCH = RING; RED = WQ; REDS = 4608
CRED = RING; WST = RING + 16384; WSL = 12; OFL = RING
assert RING % 256 == 0 and WST + 4 * WSL * 1024 <= WQ and LDS_BYTES <= 163840
sW, sHP, sRB, sCH, sROT = 3, 4, 5, 6, 7
SRDX, SRDW = 8, 12
pX, pAre, pAim, pBre, pBim, pCre, pCim, pLdt = 16, 18, 20, 22, 24, 26, 28, 30
pDsk, pW, pWo, pGw, pOut, pDbg, pWs = 32, 36, 38, 40, 42, 44, 46
pFL = 34
sT = 48
sSPIN = 62
sST = 64

nstamp = {"m": 0, "h": 0}
SPM, SPH = OPT.get("spm", -1), OPT.get("sph", -1)
def spin_end(role):
    if (SPM if role == "m" else SPH) < 0: return
    l = newlab("sp")
    E(f"{l}:\ns_memrealtime s[98:99]\ns_waitcnt lgkmcnt(0)\ns_sub_u32 s98, s98, s96\ns_cmp_lt_i32 s98, 4000\ns_cbranch_scc1 {l}")
def stamp(role):
    if SPM >= 0 or SPH >= 0:
        i = nstamp[role]; nstamp[role] += 1
        if i == (SPM if role == "m" else SPH):
            if OPT.get("amp"): E(f"s_memrealtime s[98:99]\ns_waitcnt lgkmcnt(0)\ns_sub_u32 s98, s98, s96\ns_mul_i32 s98, s98, {OPT['amp']}\ns_sub_u32 s98, s98, {OPT.get('sub',0)*100}\ns_add_u32 s96, s96, s98")
            else: E("s_memrealtime s[96:97]\ns_waitcnt lgkmcnt(0)")
        return
    if not STAMP or nstamp[role] >= 14: return
    i = nstamp[role]; nstamp[role] += 1
    E(f"s_memrealtime {sr(sST+2*i,2)}\ns_waitcnt lgkmcnt(0)")
def stamp_flush(role):
    if not STAMP: return
    E(f"s_lshl_b32 s{sT}, s2, 3\ns_add_u32 s{sT}, s{sT}, s{sW}\ns_lshl_b32 s{sT}, s{sT}, 6\ns_add_u32 s{sT}, s{sT}, {WS_ST}\nv_mov_b32 v2, s{sT}")
    for i in range(nstamp[role]):
        E(f"v_mov_b32 v3, s{sST+2*i}\nglobal_store_dword v2, v3, {sr(pWs,2)} offset:{4*i}")
    E(f"s_getreg_b32 s{sT}, hwreg(HW_REG_XCC_ID)\nv_mov_b32 v3, s{sT}\nglobal_store_dword v2, v3, {sr(pWs,2)} offset:60")

lab = [0]
def newlab(p):
    lab[0] += 1
    return f"L_{p}_{lab[0]}"

def poll_global(vaddr, base, vtmp):
    l = newlab("poll"); d = newlab("polld")
    E(f"""
    s_mov_b32 s{sSPIN}, {OPT['spin']}
    {l}:
    global_load_dword v{vtmp}, v{vaddr}, {sr(base,2)} sc1
    s_sub_u32 s{sSPIN}, s{sSPIN}, 1
    s_cbranch_scc1 {d}
    s_waitcnt vmcnt(0)
    v_cmp_ne_u32 vcc, 0, v{vtmp}
    s_nop 1
    s_cmp_eq_u64 vcc, -1
    s_cbranch_scc0 {l}
    {d}:
    s_waitcnt vmcnt(0)
    """)
def put_flag(vaddr, vone, base=None):
    E(f"""
    s_mov_b64 exec, 1
    global_store_dword v{vaddr}, v{vone}, {sr(pFL if base is None else base,2)} sc1
    s_mov_b64 exec, -1
    """)
def lds_arrive(vaddr, vone):
    E(f"""
    s_mov_b64 exec, 1
    ds_add_u32 v{vaddr}, v{vone}
    s_mov_b64 exec, -1
    """)
def lds_wait(vaddr, vtmp, n):
    l = newlab("lw"); d = newlab("lwd")
    E(f"""
    s_mov_b32 s{sSPIN}, {OPT['spin']*8}
    {l}:
    ds_read_b32 v{vtmp}, v{vaddr}
    s_sub_u32 s{sSPIN}, s{sSPIN}, 1
    s_cbranch_scc1 {d}
    s_waitcnt lgkmcnt(0)
    v_readfirstlane_b32 s{sSPIN+1}, v{vtmp}
    s_nop 1
    s_cmp_ge_u32 s{sSPIN+1}, {n}
    s_cbranch_scc0 {l}
    {d}:
    s_waitcnt lgkmcnt(0)
    """)

def helper_entry():
    sH, sC, sMH, sD, sLd, sDs, t0 = sT, sT + 1, sT + 2, sT + 5, sT + 6, sT + 7, sT + 8
    E(f"L_h0:\ns_setprio {OPT['prio']}\ns_sub_u32 s{sH}, s{sW}, 4")
    if OPT["pf"]:
        E(f"""
        s_getpc_b64 s[8:9]
        L_pc:
        s_andn2_b32 s10, s2, 7
        s_lshl1_add_u32 s10, s{sH}, s10
        v_and_b32 v2, 1, v1
        v_add_lshl_u32 v2, v2, s10, 7
        v_min_u32 v2, L_end-L_pc, v2
        v_mov_b32 v3, 0
        v_lshl_add_u64 v[2:3], v[2:3], 0, s[8:9]
        global_load_dword v167, v[2:3], off
        """)
    if OPT["gath"]:
        E(f"s_and_b32 s{sCH}, s2, 7\ns_lshl_b32 s{sCH}, s{sCH}, 5\ns_lshr_b32 s{t0}, s2, 3\ns_or_b32 s{sCH}, s{sCH}, s{t0}")
    else:
        E(f"s_lshl4_add_u32 s{sCH}, s{sHP}, s{sRB}")
    E(f"""
    s_lshl2_add_u32 s{t0}, s{sCH}, s{sH}
    s_lshl_b32 s{t0}, s{t0}, 7
    v_lshl_add_u32 v2, v1, 1, s{t0}
    s_lshl_b32 s{t0+1}, s{sCH}, 2
    s_and_b32 s{sMH}, s{sH}, 1
    s_lshl_b32 s{t0}, s{sMH}, 10
    s_add_u32 m0, s{t0}, {GW}
    v_lshlrev_b32 v3, 4, v1
    s_waitcnt lgkmcnt(0)
    """)
    for j, p in enumerate((pAre, pAim, pBre, pBim, pCre, pCim)):
        E(f"global_load_ushort v{4+j}, v2, {sr(p,2)}")
    E(f"""
    global_load_lds_dwordx4 v3, {sr(pGw,2)}
    {"s_barrier" if OPT["eb"] else ""}
    s_load_dword s{sLd}, {sr(pLdt,2)}, s{t0+1}
    s_load_dword s{sDs}, {sr(pDsk,2)}, s{t0+1}
    s_lshl_b32 s{sCH}, s{sCH}, 1
    """)

def prologue():
    if OPT.get("amp"): E("s_memrealtime s[96:97]")
    if STAMP:
        E(f"s_memrealtime {sr(sST,2)}"); nstamp["m"] = nstamp["h"] = 1
    E(f"""
    s_cmpk_ge_u32 s2, 0x100
    s_cbranch_scc1 L_end
    s_load_dwordx16 s[16:31], s[0:1], 0
    s_load_dwordx16 s[32:47], s[0:1], 64
    """)
    if OPT.get("rndws"): E(f"""
    s_memrealtime s[98:99]
    s_waitcnt lgkmcnt(0)
    s_lshr_b32 s98, s98, 15
    s_mul_i32 s98, s98, 0x9e3779b1
    s_lshr_b32 s98, s98, 28
    s_mul_i32 s98, s98, {OPT["rndws"]-1}
    s_lshl_b32 s98, s98, 24
    s_add_u32 s{pWs}, s{pWs}, s98
    s_addc_u32 s{pWs+1}, s{pWs+1}, 0
    """)
    E(f"""
    v_lshrrev_b32 v2, 6, v0
    v_and_b32 v1, 63, v0
    v_readfirstlane_b32 s{sW}, v2
    """)
    if OPT.get("probe"):
        po = OPT["probe"] - 1
        fl = ["sc1", "sc1 nt", "", "sc0 sc1"][OPT.get("pfl", 0)]
        E(f"""
        s_waitcnt lgkmcnt(0)
        s_add_u32 s98, s2, {OPT.get("psh", 0)}
        s_and_b32 s98, s98, 7
        s_lshl_b32 s98, s98, 5
        s_lshr_b32 s99, s2, 3
        s_add_u32 s98, s98, s99
        s_lshl_b32 s98, s98, 14
        s_add_u32 s98, s98, {po << 20}
        v_lshl_add_u32 v3, v0, 4, s98
        v_add_u32 v4, 0x2000, v3
        s_memrealtime s[96:97]
        s_waitcnt lgkmcnt(0)
        """)
        if OPT.get("prd"):
            E(f"global_load_dwordx4 v[8:11], v3, {sr(pX if OPT['prd'] == 2 else pWs,2)}")
            if OPT["prd"] == 1: E(f"global_load_dwordx4 v[12:15], v4, {sr(pWs,2)}")
        else:
            E(f"global_store_dwordx4 v3, v[8:11], {sr(pWs,2)} {fl}\nglobal_store_dwordx4 v4, v[8:11], {sr(pWs,2)} {fl}")
        E(f"""
        s_waitcnt vmcnt(0)
        s_memrealtime s[98:99]
        s_waitcnt lgkmcnt(0)
        s_sub_u32 s98, s98, s96
        s_mul_i32 s98, s98, 10
        """)
        if OPT.get("pxcc"): E(f"""
        s_getreg_b32 s98, hwreg(HW_REG_XCC_ID)
        s_sub_u32 s98, s98, s2
        s_and_b32 s98, s98, 7
        s_mul_i32 s98, s98, 500
        """)
        E(f"""
        s_add_u32 s96, s96, s98
        s_barrier
        """)
    if OPT.get("mark"):
        E(f"""
        s_waitcnt lgkmcnt(0)
        s_lshl3_add_u32 s98, s2, s{sW}
        s_lshl_b32 s98, s98, 7
        s_add_u32 s98, s98, {40 << 20}
        v_mov_b32 v3, s98
        v_mov_b32 v4, 0x12345678
        global_load_dword v5, v3, {sr(pWs,2)} sc1
        s_memrealtime s[96:97]
        s_waitcnt vmcnt(0) lgkmcnt(0)
        global_store_dword v3, v4, {sr(pWs,2)} sc1
        v_readfirstlane_b32 s98, v5
        s_waitcnt vmcnt(0)
        s_cmp_eq_u32 s98, 0x12345678
        s_cselect_b32 s98, {"2000, 0" if OPT["mark"] == 1 else "0, 2000" if OPT["mark"] == 2 else "0, 0"}
        s_add_u32 s96, s96, s98
        """)
    if OPT["xm"] == 0: E(f"""
    s_bfe_u32 s{sHP}, s2, 0x30003
    s_and_b32 s{sT}, s2, 1
    s_lshl3_add_u32 s{sHP}, s{sT}, s{sHP}
    s_lshr_b32 s{sRB}, s2, 6
    s_and_b32 s{sT}, s2, 6
    s_lshl1_add_u32 s{sRB}, s{sT}, s{sRB}
    """)
    elif OPT["xm"] == 1: E(f"""
    s_bfe_u32 s{sHP}, s2, 0x10003
    s_and_b32 s{sT}, s2, 7
    s_lshl1_add_u32 s{sHP}, s{sT}, s{sHP}
    s_lshr_b32 s{sRB}, s2, 4
    """)
    else: E(f"""
    s_bfe_u32 s{sHP}, s2, 0x20003
    s_and_b32 s{sT}, s2, 3
    s_lshl2_add_u32 s{sHP}, s{sT}, s{sHP}
    s_lshr_b32 s{sRB}, s2, 5
    s_and_b32 s{sT}, s2, 4
    s_lshl1_add_u32 s{sRB}, s{sT}, s{sRB}
    """)
    if OPT["rot"] == 0:
        E(f"s_mov_b32 s{sROT}, 0")
    elif OPT["rot"] == 1:
        E(f"s_xor_b32 s{sROT}, s{sHP}, s{sRB}\ns_and_b32 s{sROT}, s{sROT}, 1\ns_lshl_b32 s{sROT}, s{sROT}, 2")
    elif OPT["rot"] == 2:
        E(f"s_lshl1_add_u32 s{sROT}, s{sRB}, s{sHP}\ns_and_b32 s{sROT}, s{sROT}, 7")
    elif OPT["rot"] == 3:
        E(f"s_lshl1_add_u32 s{sROT}, s{sRB}, s{sHP}\ns_and_b32 s{sROT}, s{sROT}, 6")
    elif OPT["rot"] == 4:
        E(f"s_lshl2_add_u32 s{sROT}, s{sHP}, s{sRB}\ns_and_b32 s{sROT}, s{sROT}, 7")
    else:
        E(f"s_add_u32 s{sROT}, s{sHP}, s{sRB}\ns_lshl_b32 s{sROT}, s{sROT}, 1\ns_and_b32 s{sROT}, s{sROT}, 6")
    if OPT["lay"] == 2:
        E(f"s_cmp_lt_u32 s{sW}, 4\ns_cbranch_scc1 L_m0")
        helper_entry()
        E("s_branch L_helper\nL_m0:")
    else:
        E(f"s_cmp_ge_u32 s{sW}, 4\ns_cbranch_scc1 L_h0")

def main_wave():
    vXD, vWD, vXA, vWA, vQA = 4, 8, 10, 14, 16
    vFB = 24
    aK, aV, aQ = 48, 64, 80
    vP = 96
    vXF = 128
    sXO, sWO, sM0, sX, sZ, sQS = 92, 93, 94, 95, 100, 101
    sKVb, sKV, sJ, sCnt, sMask = sT + 2, sT + 4, sT + 6, sT + 7, sT + 8
    ta, tb, tc = sT + 10, sT + 11, sT + 12
    vO, vKV = 128, 192
    (vIDX, vKA, vVA, vSA, vSB, vSV, vEW, vER0, vER1, vERV, vRW, vRWl, vRR, vRRl, vOA, vOB) = range(112, 128)
    vF2, vOne, vF2P, vOD, vOnes, vZer = range(17, 23)
    vQ = 96; SA, SB = 24, 40; vT = 56
    E(f"""
    s_lshl2_add_u32 s{sT}, s{sRB}, s{sW}
    s_lshl_b32 s{sT}, s{sT}, 15
    v_lshrrev_b32 v2, 3, v1
    v_lshl_add_u32 v2, v2, 10, s{sT}
    v_lshrrev_b32 v3, 4, v1
    v_xor_b32 v3, v3, v1
    v_and_b32 v3, 7, v3
    v_lshl_add_u32 v{vXD}, v3, 4, v2
    v_xor_b32 v{vXD+1}, 64, v{vXD}
    s_movk_i32 s{sT}, 7168
    v_add_u32 v{vXD+1}, s{sT}, v{vXD+1}
    s_movk_i32 s{sT}, 14336
    v_add_u32 v{vXD+2}, s{sT}, v{vXD}
    v_add_u32 v{vXD+3}, s{sT}, v{vXD+1}
    v_lshrrev_b32 v2, 2, v0
    v_mul_u32_u24 v2, 3072, v2
    v_and_b32 v3, 3, v1
    s_lshl2_add_u32 s{sT}, s{sHP}, 64
    v_add_u32 v3, s{sT}, v3
    v_lshl_add_u32 v{vWD}, v3, 4, v2
    s_mul_i32 s{sM0}, s{sW}, {WPART}
    s_mov_b32 s{SRDX+2}, 0x200000
    s_mov_b32 s{SRDX+3}, 0x00020000
    s_mov_b64 {sr(SRDW+2,2)}, {sr(SRDX+2,2)}
    """)
    def dma(i, first=False):
        slot = i % NS
        g = []
        for seg in range(2):
            g.append([f"buffer_load_dwordx4 v{vWD}, {sr(SRDW,4)}, s{sWO} offen offset:{seg*1024} lds"])
        for j in range(4):
            g.append([f"buffer_load_dwordx4 v{vXD+j}, {sr(SRDX,4)}, s{sXO} offen offset:{j*1024} lds"])
        st = sROT if i == 0 else sT
        pre = [] if i == 0 else [f"s_add_u32 s{sT}, s{sROT}, {i}", f"s_and_b32 s{sT}, s{sT}, 7"]
        pre += [f"s_add_u32 m0, s{sM0}, {RING+slot*SLOT+4096}", f"s_mul_i32 s{sWO}, s{st}, 196608"]
        if first:
            pre += ["s_waitcnt lgkmcnt(0)", f"s_mov_b64 {sr(SRDW,2)}, {sr(pW,2)}", f"s_mov_b64 {sr(SRDX,2)}, {sr(pX,2)}"]
        g[0] = pre + g[0]
        g[2] = [f"s_add_u32 m0, s{sM0}, {RING+slot*SLOT}", f"s_lshl_b32 s{sXO}, s{st}, 7"] + g[2]
        return g
    for gi, g in enumerate(dma(0, True)):
        if gi == 0 and OPT["eb"] == 2: g.insert(len(g) - 1, "s_barrier")
        E(g)
    if OPT["eb"] == 1: E("s_barrier")
    if OPT["lay"] == 0:
        for g in dma(1): E(g)
        E("s_branch L_m1")
        helper_entry(); helper_wave()
        E("L_m1:")
        stamp("m")
    elif OPT["lay"] == 2:
        stamp("m")
        held = dma(1)
        for g in held[:OPT["d1"]]: E(g)
        held = held[OPT["d1"]:]
    else:
        E("s_branch L_m1")
        helper_entry()
        E("s_branch L_helper\nL_m1:")
        stamp("m")
        for g in dma(1): E(g)
    if OPT["tlb"]:
        E(f"""
        s_mov_b32 s{ta}, {WS_FL + 0x100000}
        s_load_dword s18, {sr(pWs,2)}, s{ta}
        s_load_dword s19, {sr(pDbg,2)}, 128
        s_load_dword s20, {sr(pOut,2)}, 0
        s_load_dword s21, {sr(pWo,2)}, 0
        """)
    E(f"""
    s_add_u32 s{pFL}, s{pWs}, {WS_FL}
    s_addc_u32 s{pFL+1}, s{pWs+1}, 0
    s_add_u32 s{ta}, s{sM0}, {RING}
    v_and_b32 v2, 31, v1
    v_lshl_add_u32 v2, v2, 7, s{ta}
    v_bfe_u32 v3, v1, 1, 3
    v_lshrrev_b32 v{vXA+1}, 5, v1
    v_xor_b32 v3, v3, v{vXA+1}
    v_lshl_add_u32 v{vXA}, v3, 4, v2
    v_xor_b32 v{vXA+1}, 32, v{vXA}
    v_xor_b32 v{vXA+2}, 64, v{vXA}
    v_xor_b32 v{vXA+3}, 0x60, v{vXA}
    v_lshrrev_b32 v2, 5, v1
    v_lshlrev_b32 v2, 3, v2
    v_bfe_u32 v3, v1, 2, 2
    v_add_u32 v2, v2, v3
    v_lshlrev_b32 v2, 6, v2
    v_and_b32 v3, 3, v1
    v_lshl_add_u32 v2, v3, 3, v2
    v_bfe_u32 v3, v1, 4, 1
    v_lshl_add_u32 v2, v3, 5, v2
    v_add_u32 v{vWA}, {RING+4096}, v2
    v_add_u32 v{vWA+1}, {RING+4096+2*SLOT}, v2
    v_add_u32 v{vQA}, {WQ}, v2
    """)
    E(f"""
    s_and_b32 s{sX}, s{sW}, 1
    s_lshr_b32 s{sZ}, s{sW}, 1
    s_mov_b32 s{sQS}, {fbits(0.25 * math.log2(math.e))}
    s_lshl2_add_u32 s{ta}, s{sRB}, s{sW}
    s_lshl_b32 s{ta}, s{ta}, 11
    s_lshl_b32 s{tb}, s{sHP}, 18
    s_add_u32 s{ta}, s{ta}, s{tb}
    {f"s_load_dword s22, {sr(pWs,2)}, s{ta}" if OPT["tlb"] == 2 else ""}
    {f"s_add_u32 s{tb}, s{ta}, 0x20000" if OPT["tlb"] == 2 else ""}
    {f"s_load_dword s23, {sr(pWs,2)}, s{tb}" if OPT["tlb"] == 2 else ""}
    v_lshlrev_b32 v{vKA}, 4, v1
    v_add_u32 v{vSA}, s{ta}, v{vKA}
    v_add_u32 v{vSB}, 0x20000, v{vSA}
    v_and_b32 v{vVA}, 15, v1
    v_lshrrev_b32 v2, 5, v1
    v_lshl_add_u32 v{vVA}, v2, 4, v{vVA}
    v_lshlrev_b32 v{vVA}, 4, v{vVA}
    v_bfe_u32 v2, v1, 4, 1
    v_lshlrev_b32 v2, 17, v2
    v_add3_u32 v{vSV}, v2, v{vVA}, s{ta}
    s_add_u32 s{tb}, s{sM0}, {EXCH}
    v_add_u32 v{vEW}, s{tb}, v{vKA}
    s_lshl_b32 s{ta}, s{sX}, 10
    s_add_u32 s{ta}, s{ta}, {EXCH}
    s_mul_i32 s{tb}, s{sZ}, 12288
    s_add_u32 s{tc}, s{ta}, s{tb}
    v_add_u32 v{vER0}, s{tc}, v{vKA}
    s_sub_u32 s{tc}, s{ta}, s{tb}
    s_add_u32 s{tc}, s{tc}, 12288
    v_add_u32 v{vER1}, s{tc}, v{vKA}
    s_lshl_b32 s{ta}, s{sX}, 8
    s_add_u32 s{tc}, s{ta}, s{tb}
    s_add_u32 s{tc}, s{tc}, {EXCH}
    v_add_u32 v{vERV}, s{tc}, v{vKA}
    s_lshl1_add_u32 s{ta}, s{sHP}, s{sX}
    s_lshl_b32 s{tb}, s{ta}, 17
    s_lshl_b32 s{tc}, s{sZ}, 12
    s_add_u32 s{tb}, s{tb}, s{tc}
    s_add_u32 s{sKVb}, s{pWs}, s{tb}
    s_addc_u32 s{sKVb+1}, s{pWs+1}, 0
    s_lshl_b32 s{sJ}, s{sRB}, 13
    s_lshl1_add_u32 s{tb}, s{sRB}, s{sZ}
    s_lshl_b32 s{tb}, s{tb}, 6
    s_add_u32 s{tb}, s{tb}, s{ta}
    s_lshl_b32 s{tb}, s{tb}, 10
    s_add_u32 s{tb}, s{tb}, {WS_OF}
    v_add_u32 v{vOA}, s{tb}, v{vKA}
    v_add_u32 v{vOB}, 0x8000, v{vOA}
    s_mul_i32 s{ta}, s{sW}, {REDS}
    s_add_u32 s{ta}, s{ta}, {RED}
    v_add_u32 v{vRW}, s{ta}, v{vKA}
    v_lshl_add_u32 v{vRWl}, v1, 2, s{ta}
    s_xor_b32 s{ta}, s{sW}, 2
    s_mul_i32 s{ta}, s{ta}, {REDS}
    s_add_u32 s{ta}, s{ta}, {RED}
    v_add_u32 v{vRR}, s{ta}, v{vKA}
    v_lshl_add_u32 v{vRRl}, v1, 2, s{ta}
    s_lshl_b32 s{ta}, s{sRB}, 4
    s_add_u32 s{ta}, s{ta}, {F2}
    s_add_u32 s{tb}, s{ta}, s{sHP}
    s_lshl_b32 s{tb}, s{tb}, {FSH}
    v_mov_b32 v{vF2}, s{tb}
    v_mov_b32 v{vOne}, 1
    v_and_b32 v3, 15, v1
    v_add_u32 v2, s{ta}, v3
    v_lshlrev_b32 v{vF2P}, {FSH}, v2
    {f"s_lshr_b32 s{tb}, s{sHP}, 2" if OPT["fm"] else f"s_and_b32 s{tb}, s{sHP}, 3"}
    s_lshl2_add_u32 s{ta}, s{sRB}, s{tb}
    s_lshl_b32 s{ta}, s{ta}, 15
    s_add_u32 s{ta}, s{ta}, {WS_OF}
    v_add_u32 v{vOD}, s{ta}, v{vKA}
    v_mov_b32 v{vIDX}, 0xdddddddd
    v_and_b32 v2, 27, v1
    v_cmp_eq_u32 vcc, 16, v2
    v_mov_b32 v2, {CNT+32}
    v_mov_b32 v{vZer}, {CNT+16}
    s_mov_b32 s{sMask}, 0x0000ffff
    s_mov_b32 s{sMask+1}, 0x0000ffff
    v_cndmask_b32 v{vOnes}, v{vZer}, v2, vcc
    s_mov_b32 s{sCnt}, 8
    """)
    def kvaddr():
        return [f"s_add_u32 s{sJ}, s{sJ}, 0x2000", f"s_and_b32 s{sJ}, s{sJ}, 0x1e000",
                f"s_add_u32 s{sKV}, s{sKVb}, s{sJ}", f"s_addc_u32 s{sKV+1}, s{sKVb+1}, 0"]
    E(kvaddr())
    def reads(n):
        i, s = n >> 2, n & 3
        slot = i % NS
        a = vWA + (slot >> 1); so = (slot & 1) * SLOT + s * WPART
        f = vFB + 8 * (n % 3)
        o = [f"ds_read_b128 {vr(vXF+4*n,4)}, v{vXA+s} offset:{slot*SLOT}"]
        for c in range(2):
            o.append(f"ds_read_b64_tr_b16 {vr(f+4*c,2)}, v{a} offset:{so+1024*c}")
            o.append(f"ds_read_b64_tr_b16 {vr(f+2+4*c,2)}, v{a} offset:{so+1024*c+256}")
        return o
    def dmaq(h):
        return [[f"s_add_u32 s{sT}, s{sROT}, {i}", f"s_and_b32 s{sT}, s{sT}, 7", f"s_add_u32 m0, s{sXO}, {WQ+4096*i}",
                 f"s_mul_i32 s{sWO}, s{sT}, 196608", f"buffer_load_dwordx4 v{vWD+1}, {sr(SRDW,4)}, s{sWO} offen lds"] for i in range(4*h, 4*h+4)]
    E(f"v_subrev_u32 v{vWD+1}, 1024, v{vWD}")
    if held:
        E(f"s_waitcnt vmcnt({OPT['d1'] + 6 - OPT['d1w']})")
        for g in held: E(g)
    E("s_waitcnt vmcnt(6)")
    if STAMP == 5: stamp("m")
    E("s_barrier")
    stamp("m")
    E(reads(0) + reads(1))
    pend = dma(2)
    E(pend.pop(0)); E(pend.pop(0))
    for n in range(32):
        f = vFB + 8 * (n % 3); x = vXF + 4 * n
        c = (lambda a: "0" if n == 0 else vr(a, 16))
        m = [f"v_mfma_f32_32x32x16_bf16 {vr(aV,16)}, {vr(x,4)}, {vr(f+4,4)}, {c(aV)}",
             f"v_mfma_f32_32x32x16_bf16 {vr(aK,16)}, {vr(f,4)}, {vr(x,4)}, {c(aK)}"]
        r = reads(n + 2) if n + 2 < 32 else []
        E(f"s_waitcnt lgkmcnt({5 if n < 31 else 0})")
        E(m[0])
        if (n + 2) % 4 == 0 and n + 2 < 32:
            b = (n + 2) >> 2
            assert not pend
            E(f"s_waitcnt vmcnt({6 if b < 7 else 4}) lgkmcnt(0)")
            if STAMP == 3: stamp("m")
            E("s_barrier")
            if STAMP == 2: stamp("m")
            if b + 2 <= 7: pend = dma(b + 2)
            else:
                pend = dmaq(b - 6)
                if b == 6: E(f"s_lshl_b32 s{sXO}, s{sW}, 10")
        E(r[:3])
        if pend: E(pend.pop(0))
        E(m[1]); E(r[3:])
        if pend: E(pend.pop(0))
    stamp("m")
    ep = [f"v_cvt_pk_bf16_f32 v{vP+j}, v{aK+2*j}, v{aK+1+2*j}" for j in range(4)]
    ep += [f"global_store_dwordx4 v{vSA}, {vr(vP,4)}, {sr(pWs,2)} sc1"]
    ep += [f"v_cvt_pk_bf16_f32 v{vP+j}, v{aK+2*j}, v{aK+1+2*j}" for j in range(4, 8)]
    ep += [f"global_store_dwordx4 v{vSB}, {vr(vP+4,4)}, {sr(pWs,2)} sc1"]
    ep += [f"v_permlane32_swap_b32 v{vP+8+a}, v{vP+10+a}" for a in (0, 1)]
    ep += [f"global_store_dwordx4 v{vSV}, {vr(vP+8,4)}, {sr(pWs,2)} offset:1024 sc1"]
    ep += [f"v_permlane32_swap_b32 v{vP+8+a}, v{vP+10+a}" for a in (4, 5)]
    ep += [f"global_store_dwordx4 v{vSV}, {vr(vP+12,4)}, {sr(pWs,2)} offset:1536 sc1"]
    LQ = OPT["lq"]
    qb = [40, 44, 24, 28, 32, 36, 64, 68, 72]
    def qread(n):
        f = qb[n % 9]
        return [f"ds_read_b64_tr_b16 {vr(f,2)}, v{vQA} offset:{1024*n}", f"ds_read_b64_tr_b16 {vr(f+2,2)}, v{vQA} offset:{1024*n+256}"]
    E("s_nop 10")
    for j in range(8):
        E(f"v_cvt_pk_bf16_f32 v{vP+8+j}, v{aV+2*j}, v{aV+1+2*j}")
    cut = OPT["epc"]
    E(ep[:cut])
    E(f"s_waitcnt vmcnt({4 + sum('store' in x for x in ep[:cut])})\ns_barrier")
    if STAMP == 4: stamp("m")
    for n in range(LQ): E(qread(n))
    E(ep[cut:])
    late = [f"ds_read_b128 {vr(vO+16*q+8+4*e,4)}, v{vZer}" for q in range(4) for e in range(2)]
    late += [f"ds_write_b128 v{vEW}, {vr(vP+4*j,4)} offset:{2048+1024*j}" for j in range(4)]
    late += [f"ds_read_b128 {vr(vKV+12*st+4+4*e,4)}, v{vOnes}" for st in range(4) for e in range(2)]
    nl = 0
    for n in range(32):
        E(f"s_waitcnt lgkmcnt({min(15, 2*min(LQ-1, 31-n) + nl)})")
        E(f"v_mfma_f32_32x32x16_bf16 {vr(aQ,16)}, {vr(qb[n%9],4)}, {vr(vXF+4*n,4)}, {'0' if n == 0 else vr(aQ,16)}")
        if n == OPT["ackn"]:
            if STAMP == 4: stamp("m")
            E("s_waitcnt vmcnt(0)\ns_barrier")
            if STAMP == 4: stamp("m")
        if n + LQ < 32:
            if n + LQ == 16:
                if STAMP == 4: stamp("m")
                E("s_waitcnt vmcnt(4)\ns_barrier")
                if STAMP == 4: stamp("m")
            E(qread(n + LQ))
        else:
            E(late[:2]); late = late[2:]; nl += 2
        r0 = vXF + 4 * (n - 1)
        for r in range(r0, r0 + 4):
            if n >= 1 and r < vKV and (r - vO) % 16 < 8: E(f"v_mov_b32 v{r}, 0")
    E(late)
    E(f"s_nop {max(0, 11 - len(late))}")
    for o in (0, 1):
        for j in range(8):
            E(f"v_mul_f32 v{aQ+8*o+j}, s{sQS}, v{aQ+8*o+j}")
        for j in range(4):
            E(f"v_cvt_pk_bf16_f32 v{aK+4*o+j}, v{aQ+8*o+2*j}, v{aQ+8*o+1+2*j}")
        E(f"ds_write_b128 v{vEW}, {vr(aK+4*o,4)} offset:{1024*o}")
    if STAMP == 4: stamp("m"); E("s_waitcnt vmcnt(0)"); stamp("m")
    E("s_waitcnt vmcnt(0) lgkmcnt(0)\ns_barrier")
    stamp("m")
    E(f"""
    ds_read_b128 {vr(vQ,4)}, v{vER1}
    ds_read_b128 {vr(vKV,4)}, v{vER0} offset:2048
    ds_read_b128 {vr(vQ+4,4)}, v{vER1} offset:6144
    s_mov_b64 exec, {sr(sMask,2)}
    ds_read_b128 {vr(vKV+4,4)}, v{vERV} offset:4096
    ds_read_b128 {vr(vKV+8,4)}, v{vERV} offset:5120
    ds_read_b128 {vr(vKV+16,4)}, v{vERV} offset:{4096+6144}
    ds_read_b128 {vr(vKV+20,4)}, v{vERV} offset:{5120+6144}
    s_mov_b64 exec, -1
    ds_read_b128 {vr(vQ+8,4)}, v{vER0}
    ds_read_b128 {vr(vQ+12,4)}, v{vER0} offset:6144
    ds_read_b128 {vr(vKV+12,4)}, v{vER0} offset:{2048+6144}
    s_waitcnt lgkmcnt(8)
    v_mfma_f32_32x32x16_bf16 {vr(SA,16)}, {vr(vKV,4)}, {vr(vQ,4)}, 0
    s_nop 10
    s_waitcnt lgkmcnt(0)
    """)
    def kload(st, par):
        return [f"global_load_dwordx4 {vr(vKV+12*st,4)}, v{vKA}, {sr(sKV,2)} offset:{par*2048} sc1"]
    def vload(st, par):
        return [f"s_mov_b64 exec, {sr(sMask,2)}",
                f"global_load_dwordx4 {vr(vKV+12*st+4,4)}, v{vVA}, {sr(sKV,2)} offset:{par*2048+1024} sc1",
                f"global_load_dwordx4 {vr(vKV+12*st+8,4)}, v{vVA}, {sr(sKV,2)} offset:{par*2048+1536} sc1",
                "s_mov_b64 exec, -1"]
    def step(t, q, mode="loop", lo=0, hi=16, extra=None):
        cur, oth = (SA, SB) if q % 2 == 0 else (SB, SA)
        tp, qp = (t, q - 1) if q else ((t - 1) % 4, 3)
        tn, qn = (t, q + 1) if q < 3 else ((t + 1) % 4, 0)
        after2, afterq, after1 = extra or ([], [], [])
        st = (t + 3) % 4; par = (t + 3) & 1
        if mode == "loop":
            if q == 0:
                after2 = vload(st, par); afterq = kload(st, par)
            if q == 1 and par == 1:
                ka = kvaddr(); after2 = ka[:2]; after1 = ka[2:]
            if q == 3:
                after2 = ["s_waitcnt vmcnt(6)"]
                if t == 2:
                    after2 += [f"s_sub_u32 s{sCnt}, s{sCnt}, 1"]; afterq = [f"s_cmp_lg_u32 s{sCnt}, 0"]
        for i in range(lo, hi):
            E(f"v_exp_f32 v{cur+i}, v{cur+i}")
            if i == 1 and not (mode == "first" and q == 0):
                E(f"v_smfmac_f32_32x32x32_bf16 {vr(vO+16*qp,16)}, {vr(vKV+12*tp+8,4)}, {vr(oth+8,8)}, v{vIDX}")
                E(after2)
            if i == 4 and not (mode == "last" and q == 3):
                E(f"v_mfma_f32_32x32x16_bf16 {vr(oth,16)}, {vr(vKV+12*tn,4)}, {vr(vQ+4*qn,4)}, 0")
                E(afterq)
            if i == 10:
                E(f"v_smfmac_f32_32x32x32_bf16 {vr(vO+16*q,16)}, {vr(vKV+12*t+4,4)}, {vr(cur,8)}, v{vIDX}")
                E(after1)
    for q in range(4): step(0, q, "first")
    E("s_barrier")
    stamp("m")
    E(kload(2, 0) + vload(2, 0) + vload(3, 1) + kload(3, 1) + kvaddr())
    E("s_branch L_attn1\n.p2align 3\nL_attn:")
    step(2, 3, lo=11)
    for t in (3, 0, 1, 2):
        if t == 1: E("L_attn1:")
        for q in range(4): step(t, q, hi=(11 if (t, q) == (2, 3) else 16))
    if OPT.get("itst"):
        E(f"s_memtime s[90:91]\ns_mov_b32 m0, s{sCnt}\ns_waitcnt lgkmcnt(0)\nv_writelane_b32 v23, s90, m0")
    E("s_cbranch_scc1 L_attn")
    step(2, 3, lo=11)
    vR = 64
    def sendw(q): return [f"ds_write_b128 v{vRW}, {vr(vO+16*q,4)} offset:{2048*q}", f"ds_write_b128 v{vRW}, {vr(vO+16*q+4,4)} offset:{2048*q+1024}",
                          f"ds_write_b32 v{vRWl}, v{vO+16*q+8} offset:{4096+256*q}"]
    recv = ["s_waitcnt lgkmcnt(0)", "s_barrier",
            f"ds_read_b32 v{vR+16}, v{vRRl} offset:4096", f"ds_read_b128 {vr(vR,4)}, v{vRR}", f"ds_read_b128 {vr(vR+4,4)}, v{vRR} offset:1024",
            f"ds_read_b32 v{vR+17}, v{vRRl} offset:4352", f"ds_read_b128 {vr(vR+8,4)}, v{vRR} offset:2048", f"ds_read_b128 {vr(vR+12,4)}, v{vRR} offset:3072"]
    step(3, 0, "last"); step(3, 1, "last")
    w0 = sendw(0)
    step(3, 2, "last", extra=(w0[:1], w0[1:2], w0[2:]))
    step(3, 3, "last", extra=(sendw(1), [], recv))
    O2, O3 = vO + 32, vO + 48
    E(f"""
    s_waitcnt lgkmcnt(3)
    v_add_f32 v{O2+8}, v{O2+8}, v{vR+16}
    v_smfmac_f32_32x32x32_bf16 {vr(O3,16)}, {vr(vKV+36+8,4)}, {vr(SB+8,8)}, v{vIDX}
    """)
    stamp("m")
    def fin(o, r, rl, dst, addr):
        if rl is not None: E(f"v_add_f32 v{o+8}, v{o+8}, v{rl}")
        E(f"v_rcp_f32 v{vT}, v{o+8}")
        if r is not None:
            for j in range(8): E(f"v_add_f32 v{o+j}, v{o+j}, v{r+j}")
        else:
            E("s_nop 0")
        for j in range(8): E(f"v_mul_f32 v{o+j}, v{o+j}, v{vT}")
        for j in range(4): E(f"v_cvt_pk_bf16_f32 v{dst+j}, v{o+2*j}, v{o+2*j+1}")
        E(f"global_store_dwordx4 v{addr}, {vr(dst,4)}, {sr(pWs,2)} sc1")
    fin(O2, vR, None, SA, vOA)
    E("s_waitcnt lgkmcnt(0)")
    fin(O3, vR + 8, vR + 17, SA + 4, vOB)
    E(f"""
    s_mov_b32 s{ta}, {fbits(2.0**-30)}
    s_mov_b32 s{tb}, {fbits(2.0**50)}
    v_min_f32 v{vT+6}, v{O2+8}, v{O3+8}
    v_max_f32 v{vT+7}, v{O2+8}, v{O3+8}
    v_cmp_lt_f32 vcc, s{ta}, v{vT+6}
    v_cmp_gt_f32 {sr(tc,2)}, s{tb}, v{vT+7}
    v_pk_mul_f32 {vr(vT+2,2)}, {vr(O2,2)}, 0 op_sel_hi:[1,0]
    s_and_b64 {sr(tc,2)}, {sr(tc,2)}, vcc
    """)
    for j in (2, 4, 6, 16, 18, 20, 22):
        E(f"v_pk_fma_f32 {vr(vT+2,2)}, {vr(O2+j,2)}, 0, {vr(vT+2,2)} op_sel_hi:[1,0,1]")
    E(f"""
    v_cmp_o_f32 vcc, v{vT+2}, v{vT+3}
    s_nop 1
    s_and_b64 vcc, {sr(tc,2)}, vcc
    s_cmp_eq_u64 vcc, -1
    s_cbranch_scc0 L_safe
    L_pub:
    s_waitcnt vmcnt(0)
    s_barrier
    """)
    stamp("m")
    E(f"s_cmp_lg_u32 s{sW}, 0\ns_cbranch_scc1 L_mdone")
    put_flag(vF2, vOne)
    E("s_waitcnt vmcnt(0)")
    poll_global(vF2P, pFL, 2)
    E(f"s_mov_b32 s{sKV}, s{pWs}\ns_mov_b32 s{sKV+1}, s{pWs+1}")
    for g in range(8):
        E(f"s_mov_b32 m0, {OFL+4096*g}")
        if g: E(f"s_add_u32 s{sKV}, s{sKV}, 4096\ns_addc_u32 s{sKV+1}, s{sKV+1}, 0")
        else: E("s_nop 0")
        for j in range(4):
            E(f"global_load_lds_dwordx4 v{vOD}, {sr(sKV,2)} offset:{1024*j} sc1")
    for n in (24, 16, 8, 0):
        E(f"s_waitcnt vmcnt({n})\ns_barrier")
    if SPM >= 0:
        E("s_branch L_mdone2\nL_mdone:\ns_barrier\ns_barrier\ns_barrier\ns_barrier\nL_mdone2:")
    else:
        E("L_mdone:")
    stamp_flush("m"); spin_end("m")
    if OPT.get("itst"):
        E(f"v_lshl_add_u32 v2, v1, 2, v2\nv_add_u32 v2, 0x100000, v2\ns_mov_b64 exec, 0xff\nglobal_store_dword v2, v23, {sr(pWs,2)}")
    E("s_endpgm")
    vM, vC = vT + 6, 64
    vQ += 8; vO += 32
    E(f"""
    L_safe:
    s_waitcnt vmcnt(0)
    s_lshl_b32 s{ta}, s{sZ}, 12
    s_sub_u32 s{sKVb}, s{sKVb}, s{ta}
    s_subb_u32 s{sKVb+1}, s{sKVb+1}, 0
    s_mov_b32 s{sKV}, s{sKVb}
    s_mov_b32 s{sKV+1}, s{sKVb+1}
    s_mov_b32 s{sCnt}, 64
    v_mov_b32 v{vM}, 0xff800000
    v_mov_b32 v{vM+1}, 0xff800000
    L_safe1:
    global_load_dwordx4 {vr(vKV,4)}, v{vKA}, {sr(sKV,2)} sc1
    s_add_u32 s{sKV}, s{sKV}, 2048
    s_addc_u32 s{sKV+1}, s{sKV+1}, 0
    s_waitcnt vmcnt(0)
    v_mfma_f32_32x32x16_bf16 {vr(SA,16)}, {vr(vKV,4)}, {vr(vQ,4)}, 0
    v_mfma_f32_32x32x16_bf16 {vr(SB,16)}, {vr(vKV,4)}, {vr(vQ+4,4)}, 0
    s_nop 15
    """)
    for j in range(8):
        E(f"v_max3_f32 v{vM}, v{SA+2*j}, v{SA+2*j+1}, v{vM}\nv_max3_f32 v{vM+1}, v{SB+2*j}, v{SB+2*j+1}, v{vM+1}")
    E(f"""
    s_sub_u32 s{sCnt}, s{sCnt}, 1
    s_cmp_lg_u32 s{sCnt}, 0
    s_cbranch_scc1 L_safe1
    v_mov_b32 v{SA}, v{vM}
    v_mov_b32 v{SB}, v{vM+1}
    s_nop 1
    v_permlane32_swap_b32 v{SA}, v{vM}
    v_permlane32_swap_b32 v{SB}, v{vM+1}
    s_nop 1
    v_max_f32 v{vM}, v{vM}, v{SA}
    v_max_f32 v{vM+1}, v{vM+1}, v{SB}
    """)
    for j in range(16):
        E(f"v_sub_f32 v{vC+j}, 0, v{vM}\nv_sub_f32 v{vC+16+j}, 0, v{vM+1}\nv_mov_b32 v{vO+j}, 0\nv_mov_b32 v{vO+16+j}, 0")
    E(f"""
    s_mov_b32 s{sKV}, s{sKVb}
    s_mov_b32 s{sKV+1}, s{sKVb+1}
    s_mov_b32 s{sCnt}, 64
    L_safe2:
    """)
    E(kload(0, 0) + vload(0, 0))
    E(f"""
    s_add_u32 s{sKV}, s{sKV}, 2048
    s_addc_u32 s{sKV+1}, s{sKV+1}, 0
    s_waitcnt vmcnt(0)
    v_mfma_f32_32x32x16_bf16 {vr(SA,16)}, {vr(vKV,4)}, {vr(vQ,4)}, {vr(vC,16)}
    v_mfma_f32_32x32x16_bf16 {vr(SB,16)}, {vr(vKV,4)}, {vr(vQ+4,4)}, {vr(vC+16,16)}
    s_nop 15
    """)
    for j in range(32):
        E(f"v_exp_f32 v{SA+j}, v{SA+j}")
    E(f"""
    s_nop 1
    v_smfmac_f32_32x32x32_bf16 {vr(vO,16)}, {vr(vKV+4,4)}, {vr(SA,8)}, v{vIDX}
    v_smfmac_f32_32x32x32_bf16 {vr(vO,16)}, {vr(vKV+8,4)}, {vr(SA+8,8)}, v{vIDX}
    v_smfmac_f32_32x32x32_bf16 {vr(vO+16,16)}, {vr(vKV+4,4)}, {vr(SB,8)}, v{vIDX}
    v_smfmac_f32_32x32x32_bf16 {vr(vO+16,16)}, {vr(vKV+8,4)}, {vr(SB+8,8)}, v{vIDX}
    s_sub_u32 s{sCnt}, s{sCnt}, 1
    s_cmp_lg_u32 s{sCnt}, 0
    s_cbranch_scc1 L_safe2
    s_nop 15
    """)
    fin(O2, None, None, SA, vOA); fin(O3, None, None, SA + 4, vOB)
    E("s_branch L_pub")

def helper_wave():
    sH, sC, sMH, sRT, sCB, sD = sT, sT + 1, sT + 2, sT + 3, sT + 4, sT + 5
    sLd, sDs = sT + 6, sT + 7
    t0 = sT + 8
    sLead, sWst = 92, 93
    sAT = 100
    vGW = 156
    vGWA = 155
    vXF = 160
    vG, vGA0, vGA1 = 164, 165, 166
    vU = 168
    vF4, vF4P, vWqP, vWqG, vRdy, vF1, vF1P = range(141, 148)
    sWq = 94
    vTA, vTS = 148, 152
    sUW = sT + 13
    assert NS == 3
    vPar = 4
    E(f"""
    L_helper:
    s_lshr_b32 s{sC}, s{sH}, 1
    s_add_u32 s{sD}, s{sCH}, s{sC}
    s_and_b32 s{sCB if OPT["fm"] else sRT}, s{sHP}, 3
    s_lshr_b32 s{sRT if OPT["fm"] else sCB}, s{sHP}, 2
    v_lshrrev_b32 v3, 5, v1
    v_lshlrev_b32 v3, 4, v3
    s_lshl_b32 s{t0+2}, s{sROT}, 2
    s_add_u32 s{t0+2}, s{t0+2}, s{sH}
    s_lshl_b32 s{t0+2}, s{t0+2}, 5
    s_add_u32 s{t0+2}, s{t0+2}, {GW}
    v_add_u32 v{vGWA}, s{t0+2}, v3
    v_mov_b32 v12, 0
    v_mov_b32 v13, 0
    v_mov_b32 v14, 0
    v_mov_b32 v15, 0
    s_cmp_lt_u32 s2, 16
    s_cselect_b32 s{sLead}, s{sW}, 0
    """)
    E(f"s_add_u32 s{pFL}, s{pWs}, {WS_FL}\ns_addc_u32 s{pFL+1}, s{pWs+1}, 0")
    def claim_kv():
        E(f"""
        s_lshl2_add_u32 s{t0}, s{sRB}, s{sH}
        s_lshl_b32 s{t0}, s{t0}, 11
        s_lshl_b32 s{t0+1}, s{sHP}, 18
        s_add_u32 s{t0}, s{t0}, s{t0+1}
        """)
        if OPT["clm"] in (1, 3):
            E(f"""
            v_and_b32 v10, 31, v1
            v_lshl_add_u32 v10, v10, 6, s{t0}
            v_lshrrev_b32 v11, 5, v1
            v_lshl_add_u32 v10, v11, 17, v10
            global_store_dword v10, v12, {sr(pWs,2)} sc1
            """)
        else:
            E(f"""
            v_lshl_add_u32 v10, v1, 4, s{t0}
            v_add_u32 v11, 0x20000, v10
            global_store_dwordx4 v10, v[12:15], {sr(pWs,2)} sc1
            global_store_dwordx4 v10, v[12:15], {sr(pWs,2)} offset:1024 sc1
            global_store_dwordx4 v11, v[12:15], {sr(pWs,2)} sc1
            global_store_dwordx4 v11, v[12:15], {sr(pWs,2)} offset:1024 sc1
            """)
    NCL = {0: 0, 1: 1, 2: 4, 3: 0}[OPT["clm"]]
    if NCL: claim_kv()
    stamp("h")
    E(f"""
    s_mul_i32 s{t0}, s{sC}, {URS}
    s_add_u32 s{t0}, s{t0}, {UR+4096}
    v_lshl_add_u32 v10, v1, 4, s{t0}
    v_and_b32 v11, 1, v1
    v_lshlrev_b32 v11, 4, v11
    v_cmp_gt_u32 vcc, 30, v1
    v_add_u32 v11, {CNT}, v11
    v_mov_b32 v2, 0x3f803f80
    v_cndmask_b32 v10, v11, v10, vcc
    ds_write_b128 v10, v[12:15]
    v_and_b32 v11, 3, v1
    v_lshlrev_b32 v11, 2, v11
    ds_write_b32 v11, v2 offset:{CNT+32}
    """)
    vWA, vRA = 16, 17
    if "prio1" in OPT: E(f"s_setprio {OPT['prio1']}")
    E(f"""
    s_mul_i32 s{t0}, s{sRT}, {WPART}
    s_add_u32 s{t0}, s{t0}, {RING}
    v_and_b32 v10, 31, v1
    v_lshl_add_u32 v10, v10, 7, s{t0}
    v_bfe_u32 v11, v1, 1, 3
    v_lshrrev_b32 v3, 5, v1
    v_xor_b32 v11, v11, v3
    s_lshl_b32 s{t0}, s{sH}, 1
    v_xor_b32 v11, s{t0}, v11
    v_lshl_add_u32 v{vGA0}, v11, 4, v10
    v_mov_b32 v{vG}, 0
    """)
    if not OPT["gath"]: E(f"""
    s_lshr_b32 s{sUW}, s{sHP}, 1
    s_sub_u32 s{sUW}, s{sUW}, s{sROT}
    s_and_b32 s{sUW}, s{sUW}, 7
    s_mul_i32 s{t0}, s{sUW}, 11
    s_lshr_b32 s{t0}, s{t0}, 5
    s_mul_i32 s{t0}, s{t0}, 3
    s_sub_u32 s{t0}, s{sUW}, s{t0}
    s_mul_i32 s{t0}, s{t0}, {SLOT}
    s_mul_i32 s{t0+1}, s{sH}, {WPART}
    s_add_u32 s{t0}, s{t0}, s{t0+1}
    s_add_u32 s{t0}, s{t0}, {RING}
    v_and_b32 v10, 3, v1
    v_bfe_u32 v11, v1, 2, 2
    v_lshlrev_b32 v10, 3, v10
    v_sub_u32 v10, v10, v11
    v_add_u32 v10, 7, v10
    v_bfe_u32 v11, v10, 1, 3
    v_xor_b32 v11, v11, v3
    s_and_b32 s{t0+1}, s{sHP}, 1
    s_lshl_b32 s{t0+1}, s{t0+1}, 2
    v_xor_b32 v11, s{t0+1}, v11
    v_lshlrev_b32 v11, 4, v11
    v_lshl_add_u32 v11, v10, 7, v11
    v_bfe_u32 v10, v1, 4, 1
    v_lshl_add_u32 v11, v10, 3, v11
    v_add_u32 v{vTA}, s{t0}, v11
    v_xor_b32 v{vTA+1}, 32, v{vTA}
    v_subrev_u32 v{vTA+2}, 512, v{vTA}
    v_subrev_u32 v{vTA+3}, 512, v{vTA+1}
    """)
    E(f"""
    s_mul_i32 s{t0}, s{sH}, {KGS}
    s_add_u32 s{t0}, s{t0}, {KG}
    s_mov_b32 m0, s{t0}
    v_and_b32 v10, 31, v1
    v_mul_u32_u24 v10, 272, v10
    v_lshl_add_u32 v10, v3, 4, v10
    v_add_u32 v{vRA}, s{t0}, v10
    s_mul_i32 s{t0}, s{sC}, {2*KGS}
    s_add_u32 s{t0}, s{t0}, {KG+KGS}
    v_lshl_add_u32 v{vWA}, v1, 4, s{t0}
    """)
    K = []
    def k(s, c=None):
        if isinstance(s, list): s = "\n".join(s)
        for x in s.split("\n"):
            x = x.strip()
            if not x: continue
            cc = c if c is not None else (8 if any(t in x for t in ("v_exp", "v_sin", "v_cos", "v_rcp", "ds_")) else 4)
            K.append((cc, x))
    va, vb, vt = 220, 221, 222
    log2e = math.log2(math.e)
    c_hi = struct.unpack("<f", struct.pack("<f", log2e))[0]
    c_lo = log2e - c_hi
    k(f"""
    s_waitcnt lgkmcnt(0)
    s_lshl_b32 s{t0}, s{sC}, 4
    s_lshr_b32 s{sLd}, s{sLd}, s{t0}
    s_lshl_b32 s{sLd}, s{sLd}, 16
    s_lshr_b32 s{sDs}, s{sDs}, s{t0}
    s_lshl_b32 s{sDs}, s{sDs}, 16
    s_mov_b32 s{t0}, {fbits(c_hi)}
    v_mov_b32 v{vt}, s{sLd}
    v_mul_f32 v{vt+1}, s{t0}, v{vt}
    v_fma_f32 v{vt+2}, v{vt}, s{t0}, -v{vt+1}
    v_fmac_f32 v{vt+2}, {fbits(c_lo)}, v{vt}
    v_exp_f32 v{vt+1}, v{vt+1}
    v_mul_f32 v{vt+2}, {fbits(math.log(2.0))}, v{vt+2}
    v_fma_f32 v{vt+1}, v{vt+1}, v{vt+2}, v{vt+1}
    v_cvt_pk_bf16_f32 v{vt+1}, v{vt+1}, v{vt+1}
    v_lshlrev_b32 v{vt}, 16, v{vt+1}
    s_waitcnt vmcnt({1+NCL})
    """)
    for j in range(6):
        k(f"v_lshlrev_b32 v{vPar+j}, 16, v{vPar+j}")
    k(f"""
    v_mul_f32 v{va}, v{vt}, v{vPar}
    v_mul_f32 v{vb}, v{vt}, v{vPar+1}
    v_mul_f32 v{vPar+2}, v{vt}, v{vPar+2}
    v_mul_f32 v{vPar+3}, v{vt}, v{vPar+3}
    v_mul_f32 v{va}, {fbits(c_hi)}, v{va}
    v_mul_f32 v{vb}, 0.15915494, v{vb}
    """)
    pkm = [OPT["pk0"]]
    def cmul(z, x, w):
        if pkm[0]:
            return [f"v_pk_mul_f32 {vr(z,2)}, {vr(x,2)}, {vr(w,2)} op_sel_hi:[0,1]",
                    f"v_pk_fma_f32 {vr(z,2)}, {vr(x,2)}, {vr(w,2)}, {vr(z,2)} op_sel:[1,1,0] op_sel_hi:[1,0,1] neg_lo:[1,0,0]"]
        return [f"v_mul_f32 v{z}, v{x}, v{w}\nv_mul_f32 v{z+1}, v{x}, v{w+1}",
                f"v_fma_f32 v{z}, -v{x+1}, v{w+1}, v{z}\nv_fmac_f32 v{z+1}, v{x+1}, v{w}"]
    def cmuls(lst):
        cm = [cmul(*a) for a in lst]
        k([c[0] for c in cm]); k([c[1] for c in cm])
    def direct(z, x):
        k(f"""
        v_mul_f32 v{vt+2}, {fbits(x)}, v{vb}
        v_mul_f32 v{vt+1}, {fbits(x)}, v{va}
        v_fract_f32 v{vt+2}, v{vt+2}
        v_exp_f32 v{vt+1}, v{vt+1}
        v_cos_f32 v{z}, v{vt+2}
        v_sin_f32 v{z+1}, v{vt+2}
        s_nop 0
        v_mul_f32 v{z}, v{z}, v{vt+1}
        v_mul_f32 v{z+1}, v{z+1}, v{vt+1}
        """)
    E1, E32, E256 = 226, 228, 230
    vE = 232
    vPk = 64
    npk = [0]
    DW = {False: [], True: []}
    def puts(lst, neg):
        for z, rows in lst:
            p = vPk + npk[0]; npk[0] += 1
            k(f"v_cvt_pk_bf16_f32 v{p}, v{z}, {'-' if neg else ''}v{z+1}")
            DW[neg] += [f"ds_write_addtid_b32 v{p} offset:{272*r}" for r in rows]
    def e(j): return vE + 2 * (j % 8)
    direct(e(1), 8.0); direct(E32, 32.0)
    k(f"v_mov_b32 v{e(0)}, 1.0\nv_mov_b32 v{e(0)+1}, 0\nv_mov_b32 v{e(4)}, v{E32}\nv_mov_b32 v{e(4)+1}, v{E32+1}")
    cmuls([(e(2), e(1), e(1)), (e(5), e(1), E32)])
    cmuls([(e(3), e(2), e(1)), (e(6), e(2), E32)])
    cmuls([(e(7), e(3), E32)])
    puts([(e(j), [j]) for j in range(4)], False)
    for j0 in range(4, 32, 4):
        if j0 + 4 < 32: cmuls([(e(j + 4), e(j), E32) for j in range(j0, j0 + 4)])
        puts([(e(j), [j]) for j in range(j0, j0 + 4)], False)
    vEF, vGF, vD = 192, 224, 176
    direct(E1, 1.0); direct(E256, 256.0)
    def row(r, h): return 8 * (r >> 2) + 4 * h + (r & 3)
    vGv = 192
    g = {x: vGv + 2 * x for x in range(9)}
    E2 = e(0)
    cmuls([(g[0], vPar + 4, vPar + 2), (E2, E1, E1)])
    cmuls([(g[1], g[0], E1), (g[2], g[0], E2)])
    cmuls([(g[3], g[1], E2), (g[4], g[2], E2)])
    puts([(g[x], [row(x, 0)]) for x in range(4)], True)
    cmuls([(g[5], g[3], E2), (g[6], g[4], E2)])
    cmuls([(g[7], g[5], E2), (g[8], g[6], E2)])
    puts([(g[x], [row(x, 0)]) for x in range(4, 8)], True)
    A = {o: vGv + 18 + 2 * i for i, o in enumerate((0, 2, 4, 6, 8))}
    cmuls([(A[o], g[o], E256) for o in (0, 2, 4, 6, 8)])
    puts([(A[o], [row(r, 1) for r in rs]) for o, rs in ((0, (0, 1)), (2, (2,)), (4, (3, 4, 5)), (6, (6,)), (8, (7,)))], True)
    src, dst = A, g
    for os_, r0, h in (((0, 4, 8), 8, 0), ((0, 4, 8), 8, 1), ((0, 8), 11, 0), ((0, 8), 11, 1), ((0, 8), 13, 0), ((0, 8), 13, 1)):
        cmuls([(dst[o], src[o], E256) for o in os_])
        puts([(dst[o], [row(r0 + i, h)]) for i, o in enumerate(os_)], True)
        src, dst = dst, src
    def D1(): E(DW[False] + [f"ds_read_b128 {vr(vEF+4*s,4)}, v{vRA} offset:{32*s}" for s in range(8)])
    def D2(): E(DW[True] + [f"ds_read_b128 {vr(vGF+4*s,4)}, v{vRA} offset:{32*s}" for s in range(8)])
    PL = [int(c) for c in "%05d" % OPT["pl"]]
    psync = PL[2] == PL[3]
    def D3():
        E("s_waitcnt lgkmcnt(0)")
        for s in range(8):
            E(f"v_mfma_f32_32x32x16_bf16 {vr(vD,16)}, {vr(vGF+4*s,4)}, {vr(vEF+4*s,4)}, {'0' if s == 0 else vr(vD,16)}")
        lx = newlab("nx")
        E(f"s_nop 9\ns_cmp_eq_u32 s{sMH}, 0\ns_cbranch_scc1 {lx}")
        for j in range(4):
            E(f"ds_write_b128 v{vWA}, {vr(vD+4*j,4)} offset:{1024*j}")
        if psync: lds_arrive(vCP, vOne)
        E(f"s_waitcnt lgkmcnt(0)\n{lx}:")
    (vCA, vCP, vOne, vTm, vAA, vBA, vUW, vCW, vCR, vAT, vF3, vWoG, vWoL, vF3P, vAL, vOut, vg, vomg, vOL, vGPw, vGPr, vWoP, vUL, vClO) = range(24, 48)
    vA = 48; vAcc = 96
    LQH = {0: 2, 1: 0, 2: 1}[OPT["xm"]]
    LOH = [{0: 2, 1: 1, 2: 1}, {0: 3, 1: 2, 2: 3}][OPT["fm"]][OPT["xm"]]
    ADDR = f"""
    s_lshr_b32 s{t0}, s2, 3
    s_lshl2_add_u32 s{t0}, s{t0}, s{sH}
    s_mul_i32 s{t0}, s{t0}, 12288
    s_lshr_b32 s{t0+1}, s{sHP}, {LQH+1}
    s_lshl_b32 s{t0+1}, s{t0+1}, {7+LQH}
    s_add_u32 s{t0}, s{t0}, s{t0+1}
    v_bfe_u32 v18, v1, {LQH}, 2
    v_mul_u32_u24 v18, 3072, v18
    v_and_b32 v19, {(1<<LQH)-1}, v1
    v_lshl_add_u32 v18, v19, 7, v18
    v_add_u32 v{vWqP}, s{t0}, v18
    v_mov_b32 v{vCA}, {CNT}
    s_lshl_b32 s{t0}, s{sC}, 2
    s_add_u32 s{t0}, s{t0}, {CNT+4}
    v_mov_b32 v{vCP}, s{t0}
    v_mov_b32 v{vOne}, 1
    v_lshlrev_b32 v23, 4, v1
    s_lshl_b32 s{t0}, s{sH}, 10
    s_sub_u32 s{t0}, {UR+4080-512}, s{t0}
    v_lshrrev_b32 v18, 1, v1
    v_lshlrev_b32 v19, 4, v18
    v_sub_u32 v19, s{t0}, v19
    v_and_b32 v20, 1, v1
    v_mul_u32_u24 v21, {URS}, v20
    v_add_u32 v{vUW}, v19, v21
    s_lshr_b32 s{t0}, s{sCH}, 2
    s_lshl_b32 s{t0}, s{t0}, 14
    s_lshl_b32 s{t0+1}, s{sH}, 12
    s_add_u32 s{t0}, s{t0}, s{t0+1}
    s_and_b32 s{t0+1}, s{sRB}, 1
    s_lshl_b32 s{t0+1}, s{t0+1}, 5
    s_add_u32 s{t0}, s{t0}, s{t0+1}
    s_add_u32 s{t0}, s{t0}, {WS_UT}
    v_lshl_add_u32 v18, v18, 6, s{t0}
    v_lshl_add_u32 v{vUL}, v20, 4, v18
    v_and_b32 v18, 15, v1
    v_add_u32 v19, 1, v18
    v_and_b32 v20, 3, v19
    v_mul_u32_u24 v20, {KCP}, v20
    v_lshrrev_b32 v19, 2, v19
    v_lshl_add_u32 v20, v19, 3, v20
    v_lshrrev_b32 v21, 4, v1
    v_lshlrev_b32 v22, 4, v21
    s_mul_i32 s{t0}, s{sC}, {2*KGS}
    s_lshl_b32 s{t0+1}, s{sMH}, 8
    s_add_u32 s{t0}, s{t0}, s{t0+1}
    s_add_u32 s{t0}, s{t0}, {KG}
    v_add3_u32 v{vAA}, v20, v22, s{t0}
    s_mul_i32 s{t0}, s{sC}, {URS}
    s_add_u32 s{t0}, s{t0}, s{t0+1}
    s_add_u32 s{t0}, s{t0}, {UR+4064-3584}
    v_lshlrev_b32 v19, 5, v18
    v_sub_u32 v22, v22, v19
    v_add_u32 v{vBA}, s{t0}, v22
    s_lshl_b32 s{t0}, s{sH}, 12
    s_add_u32 s{t0}, s{t0}, {CRED}
    v_add_u32 v{vCW}, s{t0}, v23
    s_xor_b32 s{t0}, s{sH}, 1
    s_lshl_b32 s{t0}, s{t0}, 12
    s_add_u32 s{t0}, s{t0}, {CRED}
    v_add_u32 v{vCR}, s{t0}, v23
    v_add_u32 v{vOL}, {OFL}, v23
    v_lshrrev_b32 v19, 1, v18
    v_lshlrev_b32 v19, 15, v19
    v_and_b32 v20, 1, v1
    v_lshl_add_u32 v19, v20, 5, v19
    v_lshl_add_u32 v{vAT}, v21, 3, v19
    s_lshl_b32 s{t0}, s{sMH}, 20
    s_lshl_b32 s{t0+1}, s{sD}, 6
    s_add_u32 s{t0}, s{t0}, s{t0+1}
    s_add_u32 s{t0}, s{t0}, {WS_AT}
    s_add_u32 s{sAT}, s{pWs}, s{t0}
    s_addc_u32 s{sAT+1}, s{pWs+1}, 0
    s_lshl_b32 s{t0}, s{sMH}, 9
    s_add_u32 s{t0}, s{t0}, s{sD}
    s_add_u32 s{t0}, s{t0}, {F3}
    s_lshl_b32 s{t0}, s{t0}, 2
    v_mov_b32 v{vF3}, s{t0}
    s_mov_b32 s{SRDW}, s{pWo}
    s_mov_b32 s{SRDW+1}, s{pWo+1}
    s_mov_b32 s{SRDW+2}, {512*1024}
    s_mov_b32 s{SRDW+3}, 0x00020000
    s_lshl_b32 s{t0}, s{sCB}, 2
    s_add_u32 s{t0}, s{t0}, s{sH}
    s_lshl_b32 s{t0+1}, s{t0}, 6
    v_lshrrev_b32 v18, 2, v1
    v_lshl_add_u32 v18, v18, 10, s{t0+1}
    v_and_b32 v19, 3, v1
    v_lshl_add_u32 v{vWoG}, v19, 4, v18
    s_mul_i32 s{sWst}, s{sH}, {WSL*1024}
    s_add_u32 s{sWst}, s{sWst}, {WST}
    v_lshrrev_b32 v22, 5, v1
    v_lshlrev_b32 v20, 2, v22
    v_bfe_u32 v21, v1, 2, 2
    v_add_u32 v20, v20, v21
    v_lshl_add_u32 v20, v20, 6, s{sWst}
    v_lshl_add_u32 v20, v19, 3, v20
    v_bfe_u32 v21, v1, 4, 1
    v_lshl_add_u32 v{vWoL}, v21, 5, v20
    s_lshl_b32 s{t0}, s{t0}, 5
    s_lshr_b32 s{t0+1}, s{sRB}, 3
    s_lshl_b32 s{t0+1}, s{t0+1}, 9
    s_add_u32 s{t0+1}, s{t0+1}, s{t0}
    s_add_u32 s{t0+1}, s{t0+1}, {F3}
    v_and_b32 v18, 31, v1
    v_add_u32 v19, s{t0+1}, v18
    v_lshlrev_b32 v{vF3P}, 2, v19
    s_lshl_b32 s{t0+1}, s{sRB}, 2
    s_add_u32 s{t0+1}, s{t0+1}, s{sRT}
    s_lshl_b32 s{t0+2}, s{t0+1}, 15
    s_lshl_b32 s{t0+3}, s{t0}, 6
    s_add_u32 s{t0+3}, s{t0+3}, s{t0+2}
    s_add_u32 s{t0+3}, s{t0+3}, {WS_AT}
    v_lshlrev_b32 v20, 8, v22
    v_lshl_add_u32 v20, v18, 1, v20
    v_add_u32 v{vAL}, s{t0+3}, v20
    s_lshl_b32 s{t0}, s{t0}, 1
    s_add_u32 s{t0}, s{t0}, s{t0+2}
    v_lshl_add_u32 v20, v18, 10, s{t0}
    v_lshl_add_u32 v{vOut}, v22, 4, v20
    """.split("\n")
    ADDR += f"""
    s_lshl2_add_u32 s{t0}, s{sRB}, s{sH}
    s_lshl4_add_u32 s{t0}, s{t0}, s{sHP}
    s_lshl_b32 s{t0}, s{t0}, 11
    s_add_u32 s{t0}, s{t0}, {WS_OF}
    v_lshl_add_u32 v{vClO}, v1, 6, s{t0}
    s_lshl_b32 s{t0}, s{sRB}, 2
    s_add_u32 s{t0}, s{t0}, s{sH}
    s_lshl_b32 s{t0}, s{t0}, 8
    s_lshl_b32 s{t0+1}, s{sHP}, 17
    s_add_u32 s{t0}, s{t0}, s{t0+1}
    s_add_u32 s{t0}, s{t0}, {WS_UT}
    v_and_b32 v18, 15, v1
    v_lshl_add_u32 v18, v18, 4, s{t0}
    v_lshrrev_b32 v19, 4, v1
    v_lshl_add_u32 v{vTS}, v19, 14, v18
    v_add_u32 v{vTS+1}, 0x10000, v{vTS}
    v_and_b32 v18, 15, v1
    v_lshlrev_b32 v{vRdy}, 2, v18
    s_lshl_b32 s{t0}, s{sHP}, 4
    v_add_u32 v19, s{t0}, v18
    v_lshlrev_b32 v{vF1P}, {FSH}, v19
    s_add_u32 s{t0}, s{t0}, s{sRB}
    s_lshl2_add_u32 s{t0+1}, s{t0}, s{sH}
    s_add_u32 s{t0+1}, s{t0+1}, {F4}
    s_lshl_b32 s{t0+1}, s{t0+1}, 2
    v_mov_b32 v{vF4}, s{t0+1}
    s_lshl2_add_u32 s{t0+1}, s{sHP}, s{sH}
    s_lshl4_add_u32 s{t0+1}, s{t0+1}, {F4}
    v_add_lshl_u32 v{vF4P}, v18, s{t0+1}, 2
    s_lshl_b32 s{t0}, s{t0}, {FSH}
    v_mov_b32 v{vF1}, s{t0}
    v_and_b32 v18, 31, v1
    v_lshlrev_b32 v18, 5, v18
    v_lshrrev_b32 v19, 5, v1
    v_lshl_add_u32 v19, v19, 2, v18
    s_lshl_b32 s{t0}, s{sH}, 3
    s_add_u32 s{t0}, s{t0}, {GP}
    v_add_u32 v{vGPw}, s{t0}, v19
    v_add_u32 v{vGPr}, {GP}, v18
    s_lshr_b32 s{t0}, s2, 3
    s_lshl_b32 s{t0}, s{t0}, 2
    s_add_u32 s{t0}, s{t0}, s{sH}
    s_lshl_b32 s{t0}, s{t0}, 12
    s_lshr_b32 s{t0+1}, s{sCB}, {LOH-1}
    s_lshl_b32 s{t0+1}, s{t0+1}, {7+LOH}
    s_add_u32 s{t0}, s{t0}, s{t0+1}
    v_bfe_u32 v18, v1, {LOH}, 2
    v_lshl_add_u32 v18, v18, 10, s{t0}
    v_and_b32 v19, {(1<<LOH)-1}, v1
    v_lshl_add_u32 v{vWoP}, v19, 7, v18
    """.split("\n") + [f"v_mov_b32 v{vA+j}, 0" for j in range(16)]
    if OPT["gath"]:
        ADDR += f"""
        s_lshl_b32 s{t0}, s{sH}, 19
        s_lshl_b32 s{t0+1}, s{sCH}, 1
        s_add_u32 s{t0}, s{t0}, s{t0+1}
        s_add_u32 s{t0}, s{t0}, 4096
        v_lshl_add_u32 v{vUL}, v1, 13, s{t0}
        s_lshl_b32 s{t0}, s{sH}, 10
        s_sub_u32 s{t0}, {UR+4080}, s{t0}
        v_lshlrev_b32 v18, 4, v1
        v_sub_u32 v{vUW}, s{t0}, v18
        s_mov_b32 s94, 0x05040100
        s_mov_b32 s95, 0x07060302
        """.split("\n")
    ADDR = [x.strip() for x in ADDR if x.strip()]
    def GATEF():
        E("s_waitcnt lgkmcnt(0)")
        for j in range(4):
            E(f"v_dot2_f32_bf16 v{vG}, v{vXF+j}, v{vGW+j}, v{vG}")
        E(f"s_nop 2\nds_write_b32 v{vGPw}, v{vG}")
    def SIG():
        E(f"""
        ds_read_b128 v[128:131], v{vGPr}
        ds_read_b128 v[132:135], v{vGPr} offset:16
        s_waitcnt lgkmcnt(0)
        v_add_f32 v128, v128, v129
        v_add_f32 v130, v130, v131
        v_add_f32 v132, v132, v133
        v_add_f32 v134, v134, v135
        v_add_f32 v128, v128, v130
        v_add_f32 v132, v132, v134
        v_add_f32 v128, v128, v132
        v_mul_f32 v128, {fbits(-log2e)}, v128
        v_exp_f32 v128, v128
        s_nop 0
        v_add_f32 v128, 1.0, v128
        v_rcp_f32 v{vg}, v128
        s_nop 0
        v_sub_f32 v{vomg}, 1.0, v{vg}
        """)
    vR = 64; vE0 = 64
    def KC1():
        lk = newlab("nk")
        E(f"s_cmp_eq_u32 s{sMH}, 0\ns_cbranch_scc0 {lk}")
        if psync: lds_wait(vCP, 2, 1)
        for j in range(4):
            E(f"ds_read_b128 {vr(vR+4*j,4)}, v{vWA} offset:{1024*j}")
        E(f"""
        s_mul_i32 s{t0}, s{sC}, {2*KGS}
        s_add_u32 s{t0}, s{t0}, {KG}
        v_lshl_add_u32 v2, v1, 4, s{t0}
        v_lshrrev_b32 v3, 1, v1
        v_mul_u32_u24 v3, {KCP}, v3
        v_and_b32 v10, 1, v1
        v_lshlrev_b32 v11, 4, v10
        v_add3_u32 v3, v3, v11, s{t0}
        v_cmp_eq_u32 {sr(t0+2,2)}, 1, v10
        s_mov_b64 exec, 1
        v_add_f32 v{vD}, s{sDs}, v{vD}
        s_waitcnt lgkmcnt(0)
        s_mov_b64 exec, 0xff
        ds_write_b128 v3, v[12:15]
        s_mov_b64 exec, -1
        """)
        for j in range(15):
            E(f"v_add_f32 v{vD+j}, v{vD+j}, v{vR+j}")
        E(f"""
        v_cndmask_b32 v10, v{vD+11}, v{vD+12}, {sr(t0+2,2)}
        v_cndmask_b32 v11, v{vD+13}, v{vD+14}, {sr(t0+2,2)}
        """)
        D = lambda j: vD + j
        pats = [[(D(0), D(1)), (D(2), D(3)), (D(4), D(5)), (D(6), D(7))],
                [(D(8), D(8)), (D(8), D(9)), (D(9), D(9)), (D(10), D(10))],
                [(D(11), D(11)), (D(11), D(11)), (10, D(12)), (D(12), D(12))],
                [(D(13), D(13)), (D(13), D(13)), (11, D(14)), (D(14), D(14))]]
        for u in range(4):
            for j, (a, b) in enumerate(pats[u]):
                E(f"v_cvt_pk_bf16_f32 v{vE0+8*u+j}, v{a}, v{b}")
            E(f"ds_write_b128 v2, {vr(vE0+8*u,4)} offset:{32+1024*u}")
        for u in range(4):
            E(f"ds_read_b64 {vr(vE0+8*u+4,2)}, v2 offset:{48+1024*u}")
        E(f"{lk}:")
    def KC2():
        lk = newlab("nk")
        E(f"s_cmp_eq_u32 s{sMH}, 0\ns_cbranch_scc0 {lk}\ns_waitcnt lgkmcnt(0)")
        for u in range(4):
            b = vE0 + 8 * u; o = 96 + 12 * (u & 1)
            for j in range(4):
                E(f"v_alignbit_b32 v{o+j}, v{b+j+1}, v{b+j}, 16")
            E(f"ds_write_b128 v2, {vr(o,4)} offset:{32+1024*u+KCP}")
            for j in range(4):
                E(f"v_mov_b32 v{o+4+j}, v{b+j+1}")
            E(f"ds_write_b128 v2, {vr(o+4,4)} offset:{32+1024*u+2*KCP}")
            for j in range(4):
                E(f"v_alignbit_b32 v{o+8+j}, v{b+j+2}, v{b+j+1}, 16")
            E(f"ds_write_b128 v2, {vr(o+8,4)} offset:{32+1024*u+3*KCP}")
            if u == 0:
                E(f"""
                v_lshlrev_b32 v10, 16, v{b}
                s_mov_b64 exec, 1
                ds_write_b32 v2, v10 offset:{28+KCP}
                ds_write_b32 v2, v{b} offset:{28+2*KCP}
                ds_write_b32 v2, v10 offset:{24+3*KCP}
                ds_write_b32 v2, v{o} offset:{28+3*KCP}
                s_mov_b64 exec, -1
                """)
        E(f"{lk}:")
    def gate_glue(i):
        E(f"s_waitcnt vmcnt({NCL}) lgkmcnt(0)" if i == 0 else "s_waitcnt vmcnt(0) lgkmcnt(0)" if i == 7 else "s_waitcnt lgkmcnt(0)")
        if OPT.get("hst"): stamp("h")
        E("s_barrier")
        if i == 0 and OPT["clm"] == 3: claim_kv()
        if i == 0:
            lq = newlab("nr")
            E(f"""
            s_cmp_eq_u32 s{sLead}, 7
            s_cbranch_scc0 {lq}
            s_lshl_b32 s{sSPIN}, s2, 5
            v_add_u32 v10, s{sSPIN}, v1
            v_lshlrev_b32 v10, {FSH}, v10
            s_lshl_b32 s{sSPIN}, s2, 9
            s_add_u32 s{sSPIN}, s{sSPIN}, {4*F3}
            v_lshl_add_u32 v11, v1, 3, s{sSPIN}
            global_store_dwordx2 v11, v[12:13], {sr(pFL,2)} sc1
            s_bfm_b64 exec, 32, 0
            global_store_dword v10, v12, {sr(pFL,2)} sc1
            s_mov_b64 exec, -1
            {lq}:
            """)
        if i == OPT["rdyw"]:
            lq = newlab("nr")
            E(f"""
            s_cmp_eq_u32 s{sLead}, 7
            s_cbranch_scc0 {lq}
            s_lshl_b32 s{sSPIN}, s2, 2
            v_mov_b32 v10, s{sSPIN}
            v_mov_b32 v11, 1
            s_waitcnt vmcnt(0)
            """)
            put_flag(10, 11, pDbg)
            E(f"{lq}:")
        if i >= 1:
            for j in range(4):
                E(f"v_dot2_f32_bf16 v{vG}, v{vXF+j}, v{vGW+j}, v{vG}")
        slot = i % NS
        E(f"ds_read_b128 {vr(vXF,4)}, v{vGA0} offset:{slot*SLOT}")
        E(f"ds_read_b128 {vr(vGW,4)}, v{vGWA} offset:{128*i}")
        if not OPT["gath"]: E(f"""
        s_cmp_eq_u32 s{sUW}, {i}
        s_cbranch_scc0 L_ut{i}
        ds_read_b64_tr_b16 {vr(vU,2)}, v{vTA}
        ds_read_b64_tr_b16 {vr(vU+2,2)}, v{vTA+3}
        ds_read_b64_tr_b16 {vr(vU+4,2)}, v{vTA+1}
        ds_read_b64_tr_b16 {vr(vU+6,2)}, v{vTA+2}
        L_ut{i}:
        """)
    E(ADDR)
    tot = sum(c for c, _ in K); nw = OPT["kw"]
    pre = tot * OPT["kpre"] / 100
    segs = [[] for _ in range(9)]; acc = 0
    for c, x in K:
        segs[0 if acc < pre else 1 + min(nw - 1, int((acc - pre) * nw / (tot - pre)))].append(x); acc += c
    items = [D1, D2, D3, KC1, KC2]
    def place(w):
        for it, p in zip(items, PL):
            if p == w: it()
    E(segs[0])
    for i in range(8):
        gate_glue(i)
        if i == OPT["wqpf"]:
            E(f"s_bfm_b64 exec, {4<<LQH}, 0\nglobal_load_dword v167, v{vWqP}, {sr(pW,2)}\ns_mov_b64 exec, -1")
        E(segs[i + 1])
    stamp("h")
    GATEF()
    uts = f"""
    global_store_dwordx4 v{vTS}, {vr(vU,4)}, {sr(pWs,2)} sc1
    global_store_dwordx4 v{vTS+1}, {vr(vU+4,4)}, {sr(pWs,2)} sc1
    """
    E(f"global_load_dword v{vTm}, v{vRdy}, {sr(pDbg,2)} sc1")
    place(0)
    E(f"s_setprio {OPT['prioq']}\ns_waitcnt lgkmcnt(0)\ns_barrier")
    stamp("h")
    if not OPT["gath"] and not OPT["utl"]: E(uts)
    SIG()
    place(1)
    E("s_barrier")
    place(2)
    assert OPT["ackn"] > 16 - OPT["lq"]
    E(f"s_setprio {OPT['prio']}\ns_waitcnt vmcnt(0)\ns_barrier")
    stamp("h")
    lq = newlab("nf"); lr = newlab("rdy")
    E(f"""
    s_cmp_lg_u32 s{sH}, 1
    s_cbranch_scc1 {lq}
    v_cmp_ne_u32 vcc, 0, v{vTm}
    s_nop 1
    s_cmp_eq_u64 vcc, -1
    s_cbranch_scc1 {lr}
    """)
    poll_global(vRdy, pDbg, vTm)
    E(f"{lr}:")
    put_flag(vF1, vOne)
    E(f"{lq}:")
    place(3)
    E("s_barrier")
    place(4)
    lq = newlab("nf")
    E(f"s_cmp_lg_u32 s{sH}, 1\ns_cbranch_scc1 {lq}")
    poll_global(vF1P, pFL, vTm)
    E(f"{lq}:")
    E("s_setprio 0\ns_barrier")
    stamp("h")
    late = OPT["utl"] and not OPT["gath"]
    if PL[0] == 5: D1()
    if late: E(uts)
    E(f"s_setprio {OPT['prio']}")
    if PL[1] == 5: D2()
    if PL[2] == 5: D3()
    if late:
        E("s_waitcnt vmcnt(0)")
        put_flag(vF4, vOne)
    if PL[3] == 5: KC1()
    if PL[4] == 5: KC2()
    if late:
        lds_arrive(vCA, vOne)
        lds_wait(vCA, vTm, 4)
        E("s_waitcnt vmcnt(0)")
        poll_global(vF4P, pFL, vTm)
    if OPT["gath"]:
        for j in range(8):
            E(f"global_load_dword v{vU+j}, v{vUL}, {sr(pX,2)} offset:{1024*j-4096}\ns_waitcnt vmcnt({OPT['gd'] if j < 7 else 0})")
        E(f"s_setprio {OPT['prio']}")
        for j in range(4):
            E(f"v_perm_b32 v{12+j}, v{vU+6-2*j}, v{vU+7-2*j}, s94")
            E(f"v_perm_b32 v{16+j}, v{vU+6-2*j}, v{vU+7-2*j}, s95")
        E(f"ds_write_b128 v{vUW}, v[12:15]\nds_write_b128 v{vUW}, v[16:19] offset:{URS}")
    else: E(f"""
    global_load_dwordx4 v[12:15], v{vUL}, {sr(pWs,2)} sc1
    global_load_dwordx4 v[16:19], v{vUL}, {sr(pWs,2)} offset:2048 sc1
    s_waitcnt vmcnt(0)
    s_setprio {OPT['prio']}
    ds_write_b128 v{vUW}, v[12:15] offset:512
    ds_write_b128 v{vUW}, v[16:19]
    """)
    lds_arrive(vCA, vOne)
    lds_wait(vCA, vTm, 8 if late else 4)
    stamp("h")
    vY = 64
    vF = [96, 192]
    def creads(r):
        f = vF[r & 1]; o = []
        for gmm in range(8):
            o.append(f"ds_read_b64 {vr(f+4*gmm,2)}, v{vAA} offset:{512*gmm+64*r}")
            o.append(f"ds_read_b64 {vr(f+4*gmm+2,2)}, v{vAA} offset:{512*gmm+64*r+8}")
            o.append(f"ds_read_b128 {vr(f+32+4*gmm,4)}, v{vBA} offset:{3584-512*gmm+64*r}")
        return o
    E(creads(0))
    E(f"s_setprio {OPT.get('prio3', OPT['prio'])}")
    for r in range(4):
        f = vF[r & 1]
        nxt = creads(r + 1) if r < 3 else []
        if r == 2 and OPT["wopf"]:
            E(f"s_bfm_b64 exec, {4<<LOH}, 0\nglobal_load_dword v20, v{vWoP}, {sr(pWo,2)}\ns_mov_b64 exec, -1")
        E("s_waitcnt lgkmcnt(0)")
        seen = set()
        for gmm in range(8):
            for dl in range(8 - gmm):
                tau = gmm + dl
                c = "0" if (r == 0 and tau not in seen) else vr(vY + 4 * tau, 4)
                seen.add(tau)
                if not OPT.get("noconv"): E(f"v_mfma_f32_16x16x32_bf16 {vr(vY+4*tau,4)}, {vr(f+4*gmm,4)}, {vr(f+32+4*dl,4)}, {c}")
                if nxt: E(nxt.pop(0))
    E(f"s_setprio {OPT['prio']}")
    l1 = newlab("c1"); l2 = newlab("c2")
    E(f"s_nop 5\ns_cmp_eq_u32 s{sMH}, 0\ns_cbranch_scc0 {l1}")
    def conv_fin(send, keep):
        for j in range(4):
            E(f"ds_write_b128 v{vCW}, {vr(send+4*j,4)} offset:{1024*j}")
        lds_arrive(vCP, vOne)
        lds_wait(vCP, vTm, 2 + psync)
        for j in range(4):
            E(f"ds_read_b128 {vr(96+4*j,4)}, v{vCR} offset:{1024*j}")
        E("s_waitcnt lgkmcnt(0)")
        for j in range(16):
            E(f"v_add_f32 v{96+j}, v{keep+j}, v{96+j}")
    conv_fin(vY + 16, vY)
    E(f"s_branch {l2}\n{l1}:")
    conv_fin(vY, vY + 16)
    E(f"{l2}:")
    for j in range(4):
        E(f"v_cvt_pk_bf16_f32 v{112+2*j}, v{96+4*j}, v{97+4*j}\nv_cvt_pk_bf16_f32 v{113+2*j}, v{98+4*j}, v{99+4*j}")
        E(f"global_store_dwordx2 v{vAT}, {vr(112+2*j,2)}, {sr(sAT,2)} sc1")
        if j < 3: E(f"s_add_u32 s{sAT}, s{sAT}, {8*32768}\ns_addc_u32 s{sAT+1}, s{sAT+1}, 0")
    E("s_waitcnt vmcnt(0)")
    put_flag(vF3, vOne)
    stamp("h")
    vWo = 128
    sO = t0 + 2
    WD = OPT["wod"]
    for hd in range(0 if OPT.get("nowo") else 32 + WD):
        if hd < 32:
            if hd % 4 == 0: E(f"s_add_u32 m0, s{sWst}, {(hd%WSL)*1024}")
            E(f"s_mov_b32 s{sO}, {hd*16384-(hd%4)*1024}")
            E(f"buffer_load_dwordx4 v{vWoG}, {sr(SRDW,4)}, s{sO} offen offset:{(hd%4)*1024} lds")
        r = hd - WD
        if r >= 0:
            E(f"s_waitcnt vmcnt({min(WD, 31-r)}) lgkmcnt(8)")
            E(f"ds_read_b64_tr_b16 {vr(vWo+4*r,2)}, v{vWoL} offset:{1024*(r%WSL)}")
            E(f"ds_read_b64_tr_b16 {vr(vWo+4*r+2,2)}, v{vWoL} offset:{1024*(r%WSL)+512}")
    E("s_waitcnt lgkmcnt(0)")
    stamp("h")
    if OPT["clo"] & 1:
        E(f"s_bfm_b64 exec, 32, 0\nglobal_store_dword v{vClO}, v{vOne}, {sr(pWs,2)} sc1\ns_mov_b64 exec, -1")
    if OPT["clo"] & 2:
        E(f"s_bfm_b64 exec, 32, 0\nglobal_store_dword v{vOut}, v{vOne}, {sr(pOut,2)} sc1\ns_mov_b64 exec, -1")
    poll_global(vF3P, pFL, vTm)
    for r in range(16):
        E(f"global_load_short_d16_hi v{vA+r}, v{vAL}, {sr(pWs,2)} offset:{(8*(r>>2)+(r&3))*64} sc1")
    E("s_waitcnt vmcnt(0)")
    stamp("h")
    E("s_barrier")
    for r in range(16):
        E(f"v_mul_f32 v{vA+r}, v{vg}, v{vA+r}")
    E("s_barrier")
    stamp("h")
    vB = 64
    def ord_(hd): return f"ds_read_b128 {vr(vB+4*(hd%8),4)}, v{vOL} offset:{1024*hd}"
    E("s_barrier")
    stamp("h")
    for j in range(8): E(ord_(j))
    for hd in range(32):
        out = min(hd + 4, 31) - hd if hd >= 4 else 7 - hd
        E(f"s_waitcnt lgkmcnt({out if hd < 4 else min(3, 31-hd)})")
        E(f"v_mfma_f32_32x32x16_bf16 {vr(vAcc,16)}, {vr(vWo+4*hd,4)}, {vr(vB+4*(hd%8),4)}, {'0' if hd == 0 else vr(vAcc,16)}")
        nx = hd + 4
        if 8 <= nx < 32:
            if nx % 8 == 0: E("s_barrier")
            E(ord_(nx))
    E("s_nop 11")
    for r in range(16):
        E(f"v_fma_f32 v{vAcc+r}, v{vAcc+r}, v{vomg}, v{vA+r}")
    for j in range(8):
        E(f"v_cvt_pk_bf16_f32 v{vB+j}, v{vAcc+2*j}, v{vAcc+2*j+1}")
    E("s_nop 1")
    for a in (0, 1, 4, 5):
        E(f"v_permlane32_swap_b32 v{vB+a}, v{vB+2+a}")
    fl = ["", "sc1", "nt", "sc0 sc1"][OPT["outsc"]]
    E(f"global_store_dwordx4 v{vOut}, {vr(vB,4)}, {sr(pOut,2)} {fl}\nglobal_store_dwordx4 v{vOut}, {vr(vB+4,4)}, {sr(pOut,2)} offset:32 {fl}")
    if STAMP:
        E("s_waitcnt vmcnt(0)")
    stamp("h")
    stamp_flush("h"); spin_end("h")
    E("s_endpgm")

hdr = open(f"cdna_kernels/{NAME}.s.ref").read().split("; Override launch")[0]
prologue(); main_wave()
if OPT["lay"]: helper_wave()
E("L_end:\ns_endpgm")
out = hdr + f"""; @launch grid=(256,1,1) block=(512,1,1) lds={LDS_BYTES}
.amdgcn_target "amdgcn-amd-amdhsa--gfx950"
.text
.globl {NAME}_kernel
.p2align 8
.type {NAME}_kernel,@function
{NAME}_kernel:
""" + "\n".join(L) + f"""
.section .rodata,"a"
.p2align 6
.amdhsa_kernel {NAME}_kernel
  .amdhsa_next_free_vgpr 256
  .amdhsa_next_free_sgpr 102
  .amdhsa_accum_offset 256
  .amdhsa_group_segment_fixed_size 0
  .amdhsa_kernarg_size 128
  .amdhsa_user_sgpr_count 2
  .amdhsa_user_sgpr_kernarg_segment_ptr 1
  .amdhsa_system_sgpr_workgroup_id_x 1
.end_amdhsa_kernel
"""
open(sys.argv[1], "w").write(out)
```

```python
import sys, math, struct

NAME = "gated_mix__ssm_conv_s4__mha_block__prompt"
OPT = dict(stamp=0, rot=3, fs=128, spin=200000, prio=2, outsc=0, prio3=0, pf=1, tlb=1, ksplit=90, pk0=0, wod=4, wopf=1, lay=2, prioq=0, eb=2, lq=7, epc=10, ackn=26, ute=0, kcp=1, gath=0, gd=0, d1=3, d1w=4, pl=55555, utl=1, kpre=5, kw=7, clm=0, clo=0, rdyw=2, xm=0, fm=0, wqpf=2, sigl=1)
for a in sys.argv[2:]:
    k, v = a.split("=")
    OPT[k] = int(v)
STAMP = OPT["stamp"]
FS = OPT["fs"]
FSH = int(math.log2(FS))

L = []
def E(s):
    if isinstance(s, list): s = "\n".join(s)
    for x in s.split("\n"):
        x = x.strip()
        if x:
            L.append(("" if x.endswith(":") else "    ") + x)
def fbits(x): return "0x%08x" % struct.unpack("<I", struct.pack("<f", x))[0]
def vr(a, n): return f"v[{a}:{a+n-1}]"
def sr(a, n): return f"s[{a}:{a+n-1}]"

WS_KV = 0
WS_OF = 4 << 20
WS_AT = 6 << 20
WS_FL = 8 << 20
WS_UT = 10 << 20
WS_ST = 16 << 20
F1, F2 = 0, 256
F3 = 512 * FS // 4
F4 = F3 + 1024
KG = 0; KGS = 8704
KCP = 4160
UR = KG + 4 * KGS; URS = 4576
GP = UR + 2 * URS
GW = GP + 1024
CNT = GW + 2048
RING = CNT + 64
SLOT = 24576; WPART = 6144; NS = 3
WQ = RING + NS * SLOT
LDS_BYTES = WQ + 32768
EXCH = RING; RED = WQ; REDS = 4608
CRED = RING; WST = RING + 16384; WSL = 12; OFL = RING
assert RING % 256 == 0 and WST + 4 * WSL * 1024 <= WQ and LDS_BYTES <= 163840
sW, sHP, sRB, sCH, sROT = 3, 4, 5, 6, 7
SRDX, SRDW = 8, 12
pX, pAre, pAim, pBre, pBim, pCre, pCim, pLdt = 16, 18, 20, 22, 24, 26, 28, 30
pDsk, pW, pWo, pGw, pOut, pDbg, pWs = 32, 36, 38, 40, 42, 44, 46
pFL = 34
sT = 48
sSPIN = 62
sST = 64

nstamp = {"m": 0, "h": 0}
SPM, SPH = OPT.get("spm", -1), OPT.get("sph", -1)
def spin_end(role):
    if (SPM if role == "m" else SPH) < 0: return
    l = newlab("sp")
    if OPT.get("sel"):
        E(f"""
        s_lshl3_add_u32 s98, s2, s{sW}
        s_lshl_b32 s98, s98, 7
        s_add_u32 s98, s98, {40 << 20}
        v_mov_b32 v3, s98
        v_mov_b32 v4, 0x12345678
        global_load_dword v5, v3, {sr(pWs,2)} sc1
        s_waitcnt vmcnt(0)
        global_store_dword v3, v4, {sr(pWs,2)} sc1
        v_readfirstlane_b32 s98, v5
        s_waitcnt vmcnt(0)
        s_cmp_eq_u32 s98, 0x12345678
        s_cbranch_scc{OPT["sel"]-1} L_end
        """)
    E(f"{l}:\ns_memrealtime s[98:99]\ns_waitcnt lgkmcnt(0)\ns_sub_u32 s98, s98, s96\ns_cmp_lt_i32 s98, 4000\ns_cbranch_scc1 {l}")
def stamp(role):
    if SPM >= 0 or SPH >= 0:
        i = nstamp[role]; nstamp[role] += 1
        if i == (SPM if role == "m" else SPH):
            if OPT.get("amp"): E(f"s_memrealtime s[98:99]\ns_waitcnt lgkmcnt(0)\ns_sub_u32 s98, s98, s96\ns_mul_i32 s98, s98, {OPT['amp']}\ns_sub_u32 s98, s98, {OPT.get('sub',0)*100}\ns_add_u32 s96, s96, s98")
            else: E("s_memrealtime s[96:97]\ns_waitcnt lgkmcnt(0)")
        return
    if not STAMP or nstamp[role] >= 14: return
    i = nstamp[role]; nstamp[role] += 1
    E(f"s_memrealtime {sr(sST+2*i,2)}\ns_waitcnt lgkmcnt(0)")
def stamp_flush(role):
    if not STAMP: return
    E(f"s_lshl_b32 s{sT}, s2, 3\ns_add_u32 s{sT}, s{sT}, s{sW}\ns_lshl_b32 s{sT}, s{sT}, 6\ns_add_u32 s{sT}, s{sT}, {WS_ST}\nv_mov_b32 v2, s{sT}")
    for i in range(nstamp[role]):
        E(f"v_mov_b32 v3, s{sST+2*i}\nglobal_store_dword v2, v3, {sr(pWs,2)} offset:{4*i}")
    E(f"s_getreg_b32 s{sT}, hwreg(HW_REG_XCC_ID)\nv_mov_b32 v3, s{sT}\nglobal_store_dword v2, v3, {sr(pWs,2)} offset:60")

lab = [0]
def newlab(p):
    lab[0] += 1
    return f"L_{p}_{lab[0]}"

def poll_global(vaddr, base, vtmp):
    l = newlab("poll"); d = newlab("polld")
    E(f"""
    s_mov_b32 s{sSPIN}, {OPT['spin']}
    {l}:
    global_load_dword v{vtmp}, v{vaddr}, {sr(base,2)} sc1
    s_sub_u32 s{sSPIN}, s{sSPIN}, 1
    s_cbranch_scc1 {d}
    s_waitcnt vmcnt(0)
    v_cmp_ne_u32 vcc, 0, v{vtmp}
    s_nop 1
    s_cmp_eq_u64 vcc, -1
    s_cbranch_scc0 {l}
    {d}:
    s_waitcnt vmcnt(0)
    """)
def put_flag(vaddr, vone, base=None):
    E(f"""
    s_mov_b64 exec, 1
    global_store_dword v{vaddr}, v{vone}, {sr(pFL if base is None else base,2)} sc1
    s_mov_b64 exec, -1
    """)
def lds_arrive(vaddr, vone):
    E(f"""
    s_mov_b64 exec, 1
    ds_add_u32 v{vaddr}, v{vone}
    s_mov_b64 exec, -1
    """)
def lds_wait(vaddr, vtmp, n):
    l = newlab("lw"); d = newlab("lwd")
    E(f"""
    s_mov_b32 s{sSPIN}, {OPT['spin']*8}
    {l}:
    ds_read_b32 v{vtmp}, v{vaddr}
    s_sub_u32 s{sSPIN}, s{sSPIN}, 1
    s_cbranch_scc1 {d}
    s_waitcnt lgkmcnt(0)
    v_readfirstlane_b32 s{sSPIN+1}, v{vtmp}
    s_nop 1
    s_cmp_ge_u32 s{sSPIN+1}, {n}
    s_cbranch_scc0 {l}
    {d}:
    s_waitcnt lgkmcnt(0)
    """)

def helper_entry():
    sH, sC, sMH, sD, sLd, sDs, t0 = sT, sT + 1, sT + 2, sT + 5, sT + 6, sT + 7, sT + 8
    E(f"L_h0:\ns_setprio {OPT['prio']}\ns_sub_u32 s{sH}, s{sW}, 4")
    if OPT["pf"]:
        E(f"""
        s_getpc_b64 s[8:9]
        L_pc:
        s_andn2_b32 s10, s2, 7
        s_lshl1_add_u32 s10, s{sH}, s10
        v_and_b32 v2, 1, v1
        v_add_lshl_u32 v2, v2, s10, 7
        v_min_u32 v2, L_end-L_pc, v2
        v_mov_b32 v3, 0
        v_lshl_add_u64 v[2:3], v[2:3], 0, s[8:9]
        global_load_dword v167, v[2:3], off
        """)
    if OPT["gath"]:
        E(f"s_and_b32 s{sCH}, s2, 7\ns_lshl_b32 s{sCH}, s{sCH}, 5\ns_lshr_b32 s{t0}, s2, 3\ns_or_b32 s{sCH}, s{sCH}, s{t0}")
    else:
        E(f"s_lshl4_add_u32 s{sCH}, s{sHP}, s{sRB}")
    E(f"""
    s_lshl2_add_u32 s{t0}, s{sCH}, s{sH}
    s_lshl_b32 s{t0}, s{t0}, 7
    v_lshl_add_u32 v2, v1, 1, s{t0}
    s_lshl_b32 s{t0+1}, s{sCH}, 2
    s_and_b32 s{sMH}, s{sH}, 1
    s_lshl_b32 s{t0}, s{sMH}, 10
    s_add_u32 m0, s{t0}, {GW}
    v_lshlrev_b32 v3, 4, v1
    s_waitcnt lgkmcnt(0)
    """)
    for j, p in enumerate((pAre, pAim, pBre, pBim, pCre, pCim)):
        E(f"global_load_ushort v{4+j}, v2, {sr(p,2)}")
    E(f"""
    global_load_lds_dwordx4 v3, {sr(pGw,2)}
    {"s_barrier" if OPT["eb"] else ""}
    s_load_dword s{sLd}, {sr(pLdt,2)}, s{t0+1}
    s_load_dword s{sDs}, {sr(pDsk,2)}, s{t0+1}
    s_lshl_b32 s{sCH}, s{sCH}, 1
    """)

def prologue():
    if OPT.get("amp"): E("s_memrealtime s[96:97]")
    if STAMP:
        E(f"s_memrealtime {sr(sST,2)}"); nstamp["m"] = nstamp["h"] = 1
    E(f"""
    s_cmpk_ge_u32 s2, 0x100
    s_cbranch_scc1 L_end
    s_load_dwordx16 s[16:31], s[0:1], 0
    s_load_dwordx16 s[32:47], s[0:1], 64
    """)
    if OPT.get("rndws"): E(f"""
    s_memrealtime s[98:99]
    s_waitcnt lgkmcnt(0)
    s_lshr_b32 s98, s98, 15
    s_mul_i32 s98, s98, 0x9e3779b1
    s_lshr_b32 s98, s98, 28
    s_mul_i32 s98, s98, {OPT["rndws"]-1}
    s_lshl_b32 s98, s98, 24
    s_add_u32 s{pWs}, s{pWs}, s98
    s_addc_u32 s{pWs+1}, s{pWs+1}, 0
    """)
    E(f"""
    v_lshrrev_b32 v2, 6, v0
    v_and_b32 v1, 63, v0
    v_readfirstlane_b32 s{sW}, v2
    """)
    if OPT.get("probe"):
        po = OPT["probe"] - 1
        fl = ["sc1", "sc1 nt", "", "sc0 sc1"][OPT.get("pfl", 0)]
        E(f"""
        s_waitcnt lgkmcnt(0)
        s_add_u32 s98, s2, {OPT.get("psh", 0)}
        s_and_b32 s98, s98, 7
        s_lshl_b32 s98, s98, 5
        s_lshr_b32 s99, s2, 3
        s_add_u32 s98, s98, s99
        s_lshl_b32 s98, s98, 14
        s_add_u32 s98, s98, {po << 20}
        v_lshl_add_u32 v3, v0, 4, s98
        v_add_u32 v4, 0x2000, v3
        s_memrealtime s[96:97]
        s_waitcnt lgkmcnt(0)
        """)
        if OPT.get("prd"):
            E(f"global_load_dwordx4 v[8:11], v3, {sr(pX if OPT['prd'] == 2 else pWs,2)}")
            if OPT["prd"] == 1: E(f"global_load_dwordx4 v[12:15], v4, {sr(pWs,2)}")
        else:
            E(f"global_store_dwordx4 v3, v[8:11], {sr(pWs,2)} {fl}\nglobal_store_dwordx4 v4, v[8:11], {sr(pWs,2)} {fl}")
        E(f"""
        s_waitcnt vmcnt(0)
        s_memrealtime s[98:99]
        s_waitcnt lgkmcnt(0)
        s_sub_u32 s98, s98, s96
        s_mul_i32 s98, s98, 10
        """)
        if OPT.get("pxcc"): E(f"""
        s_getreg_b32 s98, hwreg(HW_REG_XCC_ID)
        s_sub_u32 s98, s98, s2
        s_and_b32 s98, s98, 7
        s_mul_i32 s98, s98, 500
        """)
        E(f"""
        s_add_u32 s96, s96, s98
        s_barrier
        """)
    if OPT.get("mark"):
        E(f"""
        s_waitcnt lgkmcnt(0)
        s_lshl3_add_u32 s98, s2, s{sW}
        s_lshl_b32 s98, s98, 7
        s_add_u32 s98, s98, {40 << 20}
        v_mov_b32 v3, s98
        v_mov_b32 v4, 0x12345678
        global_load_dword v5, v3, {sr(pWs,2)} sc1
        s_memrealtime s[96:97]
        s_waitcnt vmcnt(0) lgkmcnt(0)
        global_store_dword v3, v4, {sr(pWs,2)} sc1
        v_readfirstlane_b32 s98, v5
        s_waitcnt vmcnt(0)
        s_cmp_eq_u32 s98, 0x12345678
        s_cselect_b32 s98, {"2000, 0" if OPT["mark"] == 1 else "0, 2000" if OPT["mark"] == 2 else "0, 0"}
        s_add_u32 s96, s96, s98
        """)
    if OPT["xm"] == 0: E(f"""
    s_bfe_u32 s{sHP}, s2, 0x30003
    s_and_b32 s{sT}, s2, 1
    s_lshl3_add_u32 s{sHP}, s{sT}, s{sHP}
    s_lshr_b32 s{sRB}, s2, 6
    s_and_b32 s{sT}, s2, 6
    s_lshl1_add_u32 s{sRB}, s{sT}, s{sRB}
    """)
    elif OPT["xm"] == 1: E(f"""
    s_bfe_u32 s{sHP}, s2, 0x10003
    s_and_b32 s{sT}, s2, 7
    s_lshl1_add_u32 s{sHP}, s{sT}, s{sHP}
    s_lshr_b32 s{sRB}, s2, 4
    """)
    else: E(f"""
    s_bfe_u32 s{sHP}, s2, 0x20003
    s_and_b32 s{sT}, s2, 3
    s_lshl2_add_u32 s{sHP}, s{sT}, s{sHP}
    s_lshr_b32 s{sRB}, s2, 5
    s_and_b32 s{sT}, s2, 4
    s_lshl1_add_u32 s{sRB}, s{sT}, s{sRB}
    """)
    if OPT["rot"] == 0:
        E(f"s_mov_b32 s{sROT}, 0")
    elif OPT["rot"] == 1:
        E(f"s_xor_b32 s{sROT}, s{sHP}, s{sRB}\ns_and_b32 s{sROT}, s{sROT}, 1\ns_lshl_b32 s{sROT}, s{sROT}, 2")
    elif OPT["rot"] == 2:
        E(f"s_lshl1_add_u32 s{sROT}, s{sRB}, s{sHP}\ns_and_b32 s{sROT}, s{sROT}, 7")
    elif OPT["rot"] == 3:
        E(f"s_lshl1_add_u32 s{sROT}, s{sRB}, s{sHP}\ns_and_b32 s{sROT}, s{sROT}, 6")
    elif OPT["rot"] == 4:
        E(f"s_lshl2_add_u32 s{sROT}, s{sHP}, s{sRB}\ns_and_b32 s{sROT}, s{sROT}, 7")
    else:
        E(f"s_add_u32 s{sROT}, s{sHP}, s{sRB}\ns_lshl_b32 s{sROT}, s{sROT}, 1\ns_and_b32 s{sROT}, s{sROT}, 6")
    if OPT["lay"] == 2:
        E(f"s_cmp_lt_u32 s{sW}, 4\ns_cbranch_scc1 L_m0")
        helper_entry()
        E("s_branch L_helper\nL_m0:")
    else:
        E(f"s_cmp_ge_u32 s{sW}, 4\ns_cbranch_scc1 L_h0")

def main_wave():
    vXD, vWD, vXA, vWA, vQA = 4, 8, 10, 14, 16
    vFB = 24
    aK, aV, aQ = 48, 64, 80
    vP = 96
    vXF = 128
    sXO, sWO, sM0, sX, sZ, sQS = 92, 93, 94, 95, 100, 101
    sKVb, sKV, sJ, sCnt, sMask = sT + 2, sT + 4, sT + 6, sT + 7, sT + 8
    ta, tb, tc = sT + 10, sT + 11, sT + 12
    vO, vKV = 128, 192
    (vIDX, vKA, vVA, vSA, vSB, vSV, vEW, vER0, vER1, vERV, vRW, vRWl, vRR, vRRl, vOA, vOB) = range(112, 128)
    vF2, vOne, vF2P, vOD, vOnes, vZer = range(17, 23)
    vQ = 96; SA, SB = 24, 40; vT = 56
    E(f"""
    s_lshl2_add_u32 s{sT}, s{sRB}, s{sW}
    s_lshl_b32 s{sT}, s{sT}, 15
    v_lshrrev_b32 v2, 3, v1
    v_lshl_add_u32 v2, v2, 10, s{sT}
    v_lshrrev_b32 v3, 4, v1
    v_xor_b32 v3, v3, v1
    v_and_b32 v3, 7, v3
    v_lshl_add_u32 v{vXD}, v3, 4, v2
    v_xor_b32 v{vXD+1}, 64, v{vXD}
    s_movk_i32 s{sT}, 7168
    v_add_u32 v{vXD+1}, s{sT}, v{vXD+1}
    s_movk_i32 s{sT}, 14336
    v_add_u32 v{vXD+2}, s{sT}, v{vXD}
    v_add_u32 v{vXD+3}, s{sT}, v{vXD+1}
    v_lshrrev_b32 v2, 2, v0
    v_mul_u32_u24 v2, 3072, v2
    v_and_b32 v3, 3, v1
    s_lshl2_add_u32 s{sT}, s{sHP}, 64
    v_add_u32 v3, s{sT}, v3
    v_lshl_add_u32 v{vWD}, v3, 4, v2
    s_mul_i32 s{sM0}, s{sW}, {WPART}
    s_mov_b32 s{SRDX+2}, 0x200000
    s_mov_b32 s{SRDX+3}, 0x00020000
    s_mov_b64 {sr(SRDW+2,2)}, {sr(SRDX+2,2)}
    """)
    def dma(i, first=False):
        slot = i % NS
        g = []
        for seg in range(2):
            g.append([f"buffer_load_dwordx4 v{vWD}, {sr(SRDW,4)}, s{sWO} offen offset:{seg*1024} lds"])
        for j in range(4):
            g.append([f"buffer_load_dwordx4 v{vXD+j}, {sr(SRDX,4)}, s{sXO} offen offset:{j*1024} lds"])
        st = sROT if i == 0 else sT
        pre = [] if i == 0 else [f"s_add_u32 s{sT}, s{sROT}, {i}", f"s_and_b32 s{sT}, s{sT}, 7"]
        pre += [f"s_add_u32 m0, s{sM0}, {RING+slot*SLOT+4096}", f"s_mul_i32 s{sWO}, s{st}, 196608"]
        if first:
            pre += ["s_waitcnt lgkmcnt(0)", f"s_mov_b64 {sr(SRDW,2)}, {sr(pW,2)}", f"s_mov_b64 {sr(SRDX,2)}, {sr(pX,2)}"]
        g[0] = pre + g[0]
        g[2] = [f"s_add_u32 m0, s{sM0}, {RING+slot*SLOT}", f"s_lshl_b32 s{sXO}, s{st}, 7"] + g[2]
        return g
    for gi, g in enumerate(dma(0, True)):
        if gi == 0 and OPT["eb"] == 2: g.insert(len(g) - 1, "s_barrier")
        E(g)
    if OPT["eb"] == 1: E("s_barrier")
    if OPT["lay"] == 0:
        for g in dma(1): E(g)
        E("s_branch L_m1")
        helper_entry(); helper_wave()
        E("L_m1:")
        stamp("m")
    elif OPT["lay"] == 2:
        stamp("m")
        held = dma(1)
        for g in held[:OPT["d1"]]: E(g)
        held = held[OPT["d1"]:]
    else:
        E("s_branch L_m1")
        helper_entry()
        E("s_branch L_helper\nL_m1:")
        stamp("m")
        for g in dma(1): E(g)
    if OPT["tlb"]:
        E(f"""
        s_mov_b32 s{ta}, {WS_FL + 0x100000}
        s_load_dword s18, {sr(pWs,2)}, s{ta}
        s_load_dword s19, {sr(pDbg,2)}, 128
        s_load_dword s20, {sr(pOut,2)}, 0
        s_load_dword s21, {sr(pWo,2)}, 0
        """)
    E(f"""
    s_add_u32 s{pFL}, s{pWs}, {WS_FL}
    s_addc_u32 s{pFL+1}, s{pWs+1}, 0
    s_add_u32 s{ta}, s{sM0}, {RING}
    v_and_b32 v2, 31, v1
    v_lshl_add_u32 v2, v2, 7, s{ta}
    v_bfe_u32 v3, v1, 1, 3
    v_lshrrev_b32 v{vXA+1}, 5, v1
    v_xor_b32 v3, v3, v{vXA+1}
    v_lshl_add_u32 v{vXA}, v3, 4, v2
    v_xor_b32 v{vXA+1}, 32, v{vXA}
    v_xor_b32 v{vXA+2}, 64, v{vXA}
    v_xor_b32 v{vXA+3}, 0x60, v{vXA}
    v_lshrrev_b32 v2, 5, v1
    v_lshlrev_b32 v2, 3, v2
    v_bfe_u32 v3, v1, 2, 2
    v_add_u32 v2, v2, v3
    v_lshlrev_b32 v2, 6, v2
    v_and_b32 v3, 3, v1
    v_lshl_add_u32 v2, v3, 3, v2
    v_bfe_u32 v3, v1, 4, 1
    v_lshl_add_u32 v2, v3, 5, v2
    v_add_u32 v{vWA}, {RING+4096}, v2
    v_add_u32 v{vWA+1}, {RING+4096+2*SLOT}, v2
    v_add_u32 v{vQA}, {WQ}, v2
    """)
    E(f"""
    s_and_b32 s{sX}, s{sW}, 1
    s_lshr_b32 s{sZ}, s{sW}, 1
    s_mov_b32 s{sQS}, {fbits(0.25 * math.log2(math.e))}
    s_lshl2_add_u32 s{ta}, s{sRB}, s{sW}
    s_lshl_b32 s{ta}, s{ta}, 11
    s_lshl_b32 s{tb}, s{sHP}, 18
    s_add_u32 s{ta}, s{ta}, s{tb}
    {f"s_load_dword s22, {sr(pWs,2)}, s{ta}" if OPT["tlb"] == 2 else ""}
    {f"s_add_u32 s{tb}, s{ta}, 0x20000" if OPT["tlb"] == 2 else ""}
    {f"s_load_dword s23, {sr(pWs,2)}, s{tb}" if OPT["tlb"] == 2 else ""}
    v_lshlrev_b32 v{vKA}, 4, v1
    v_add_u32 v{vSA}, s{ta}, v{vKA}
    v_add_u32 v{vSB}, 0x20000, v{vSA}
    v_and_b32 v{vVA}, 15, v1
    v_lshrrev_b32 v2, 5, v1
    v_lshl_add_u32 v{vVA}, v2, 4, v{vVA}
    v_lshlrev_b32 v{vVA}, 4, v{vVA}
    v_bfe_u32 v2, v1, 4, 1
    v_lshlrev_b32 v2, 17, v2
    v_add3_u32 v{vSV}, v2, v{vVA}, s{ta}
    s_add_u32 s{tb}, s{sM0}, {EXCH}
    v_add_u32 v{vEW}, s{tb}, v{vKA}
    s_lshl_b32 s{ta}, s{sX}, 10
    s_add_u32 s{ta}, s{ta}, {EXCH}
    s_mul_i32 s{tb}, s{sZ}, 12288
    s_add_u32 s{tc}, s{ta}, s{tb}
    v_add_u32 v{vER0}, s{tc}, v{vKA}
    s_sub_u32 s{tc}, s{ta}, s{tb}
    s_add_u32 s{tc}, s{tc}, 12288
    v_add_u32 v{vER1}, s{tc}, v{vKA}
    s_lshl_b32 s{ta}, s{sX}, 8
    s_add_u32 s{tc}, s{ta}, s{tb}
    s_add_u32 s{tc}, s{tc}, {EXCH}
    v_add_u32 v{vERV}, s{tc}, v{vKA}
    s_lshl1_add_u32 s{ta}, s{sHP}, s{sX}
    s_lshl_b32 s{tb}, s{ta}, 17
    s_lshl_b32 s{tc}, s{sZ}, 12
    s_add_u32 s{tb}, s{tb}, s{tc}
    s_add_u32 s{sKVb}, s{pWs}, s{tb}
    s_addc_u32 s{sKVb+1}, s{pWs+1}, 0
    s_lshl_b32 s{sJ}, s{sRB}, 13
    s_lshl1_add_u32 s{tb}, s{sRB}, s{sZ}
    s_lshl_b32 s{tb}, s{tb}, 6
    s_add_u32 s{tb}, s{tb}, s{ta}
    s_lshl_b32 s{tb}, s{tb}, 10
    s_add_u32 s{tb}, s{tb}, {WS_OF}
    v_add_u32 v{vOA}, s{tb}, v{vKA}
    v_add_u32 v{vOB}, 0x8000, v{vOA}
    s_mul_i32 s{ta}, s{sW}, {REDS}
    s_add_u32 s{ta}, s{ta}, {RED}
    v_add_u32 v{vRW}, s{ta}, v{vKA}
    v_lshl_add_u32 v{vRWl}, v1, 2, s{ta}
    s_xor_b32 s{ta}, s{sW}, 2
    s_mul_i32 s{ta}, s{ta}, {REDS}
    s_add_u32 s{ta}, s{ta}, {RED}
    v_add_u32 v{vRR}, s{ta}, v{vKA}
    v_lshl_add_u32 v{vRRl}, v1, 2, s{ta}
    s_lshl_b32 s{ta}, s{sRB}, 4
    s_add_u32 s{ta}, s{ta}, {F2}
    s_add_u32 s{tb}, s{ta}, s{sHP}
    s_lshl_b32 s{tb}, s{tb}, {FSH}
    v_mov_b32 v{vF2}, s{tb}
    v_mov_b32 v{vOne}, 1
    v_and_b32 v3, 15, v1
    v_add_u32 v2, s{ta}, v3
    v_lshlrev_b32 v{vF2P}, {FSH}, v2
    {f"s_lshr_b32 s{tb}, s{sHP}, 2" if OPT["fm"] else f"s_and_b32 s{tb}, s{sHP}, 3"}
    s_lshl2_add_u32 s{ta}, s{sRB}, s{tb}
    s_lshl_b32 s{ta}, s{ta}, 15
    s_add_u32 s{ta}, s{ta}, {WS_OF}
    v_add_u32 v{vOD}, s{ta}, v{vKA}
    v_mov_b32 v{vIDX}, 0xdddddddd
    v_and_b32 v2, 27, v1
    v_cmp_eq_u32 vcc, 16, v2
    v_mov_b32 v2, {CNT+32}
    v_mov_b32 v{vZer}, {CNT+16}
    s_mov_b32 s{sMask}, 0x0000ffff
    s_mov_b32 s{sMask+1}, 0x0000ffff
    v_cndmask_b32 v{vOnes}, v{vZer}, v2, vcc
    s_mov_b32 s{sCnt}, 8
    """)
    def kvaddr():
        return [f"s_add_u32 s{sJ}, s{sJ}, 0x2000", f"s_and_b32 s{sJ}, s{sJ}, 0x1e000",
                f"s_add_u32 s{sKV}, s{sKVb}, s{sJ}", f"s_addc_u32 s{sKV+1}, s{sKVb+1}, 0"]
    E(kvaddr())
    def reads(n):
        i, s = n >> 2, n & 3
        slot = i % NS
        a = vWA + (slot >> 1); so = (slot & 1) * SLOT + s * WPART
        f = vFB + 8 * (n % 3)
        o = [f"ds_read_b128 {vr(vXF+4*n,4)}, v{vXA+s} offset:{slot*SLOT}"]
        for c in range(2):
            o.append(f"ds_read_b64_tr_b16 {vr(f+4*c,2)}, v{a} offset:{so+1024*c}")
            o.append(f"ds_read_b64_tr_b16 {vr(f+2+4*c,2)}, v{a} offset:{so+1024*c+256}")
        return o
    def dmaq(h):
        return [[f"s_add_u32 s{sT}, s{sROT}, {i}", f"s_and_b32 s{sT}, s{sT}, 7", f"s_add_u32 m0, s{sXO}, {WQ+4096*i}",
                 f"s_mul_i32 s{sWO}, s{sT}, 196608", f"buffer_load_dwordx4 v{vWD+1}, {sr(SRDW,4)}, s{sWO} offen lds"] for i in range(4*h, 4*h+4)]
    E(f"v_subrev_u32 v{vWD+1}, 1024, v{vWD}")
    if held:
        E(f"s_waitcnt vmcnt({OPT['d1'] + 6 - OPT['d1w']})")
        for g in held: E(g)
    E("s_waitcnt vmcnt(6)")
    if STAMP == 5: stamp("m")
    E("s_barrier")
    stamp("m")
    E(reads(0) + reads(1))
    pend = dma(2)
    E(pend.pop(0)); E(pend.pop(0))
    for n in range(32):
        f = vFB + 8 * (n % 3); x = vXF + 4 * n
        c = (lambda a: "0" if n == 0 else vr(a, 16))
        m = [f"v_mfma_f32_32x32x16_bf16 {vr(aV,16)}, {vr(x,4)}, {vr(f+4,4)}, {c(aV)}",
             f"v_mfma_f32_32x32x16_bf16 {vr(aK,16)}, {vr(f,4)}, {vr(x,4)}, {c(aK)}"]
        r = reads(n + 2) if n + 2 < 32 else []
        E(f"s_waitcnt lgkmcnt({5 if n < 31 else 0})")
        E(m[0])
        if (n + 2) % 4 == 0 and n + 2 < 32:
            b = (n + 2) >> 2
            assert not pend
            E(f"s_waitcnt vmcnt({6 if b < 7 else 4}) lgkmcnt(0)")
            if STAMP == 3: stamp("m")
            E("s_barrier")
            if STAMP == 2: stamp("m")
            if b + 2 <= 7: pend = dma(b + 2)
            else:
                pend = dmaq(b - 6)
                if b == 6: E(f"s_lshl_b32 s{sXO}, s{sW}, 10")
        E(r[:3])
        if pend: E(pend.pop(0))
        E(m[1]); E(r[3:])
        if pend: E(pend.pop(0))
    stamp("m")
    ep = [f"v_cvt_pk_bf16_f32 v{vP+j}, v{aK+2*j}, v{aK+1+2*j}" for j in range(4)]
    ep += [f"global_store_dwordx4 v{vSA}, {vr(vP,4)}, {sr(pWs,2)} sc1"]
    ep += [f"v_cvt_pk_bf16_f32 v{vP+j}, v{aK+2*j}, v{aK+1+2*j}" for j in range(4, 8)]
    ep += [f"global_store_dwordx4 v{vSB}, {vr(vP+4,4)}, {sr(pWs,2)} sc1"]
    ep += [f"v_permlane32_swap_b32 v{vP+8+a}, v{vP+10+a}" for a in (0, 1)]
    ep += [f"global_store_dwordx4 v{vSV}, {vr(vP+8,4)}, {sr(pWs,2)} offset:1024 sc1"]
    ep += [f"v_permlane32_swap_b32 v{vP+8+a}, v{vP+10+a}" for a in (4, 5)]
    ep += [f"global_store_dwordx4 v{vSV}, {vr(vP+12,4)}, {sr(pWs,2)} offset:1536 sc1"]
    LQ = OPT["lq"]
    qb = [40, 44, 24, 28, 32, 36, 64, 68, 72]
    def qread(n):
        f = qb[n % 9]
        return [f"ds_read_b64_tr_b16 {vr(f,2)}, v{vQA} offset:{1024*n}", f"ds_read_b64_tr_b16 {vr(f+2,2)}, v{vQA} offset:{1024*n+256}"]
    E("s_nop 10")
    for j in range(8):
        E(f"v_cvt_pk_bf16_f32 v{vP+8+j}, v{aV+2*j}, v{aV+1+2*j}")
    cut = OPT["epc"]
    E(ep[:cut])
    E(f"s_waitcnt vmcnt({4 + sum('store' in x for x in ep[:cut])})\ns_barrier")
    if STAMP == 4: stamp("m")
    for n in range(LQ): E(qread(n))
    E(ep[cut:])
    late = [f"ds_read_b128 {vr(vO+16*q+8+4*e,4)}, v{vZer}" for q in range(4) for e in range(2)]
    late += [f"ds_write_b128 v{vEW}, {vr(vP+4*j,4)} offset:{2048+1024*j}" for j in range(4)]
    late += [f"ds_read_b128 {vr(vKV+12*st+4+4*e,4)}, v{vOnes}" for st in range(4) for e in range(2)]
    nl = 0
    for n in range(32):
        E(f"s_waitcnt lgkmcnt({min(15, 2*min(LQ-1, 31-n) + nl)})")
        E(f"v_mfma_f32_32x32x16_bf16 {vr(aQ,16)}, {vr(qb[n%9],4)}, {vr(vXF+4*n,4)}, {'0' if n == 0 else vr(aQ,16)}")
        if n == OPT["ackn"]:
            if STAMP == 4: stamp("m")
            E("s_waitcnt vmcnt(0)\ns_barrier")
            if STAMP == 4: stamp("m")
        if n + LQ < 32:
            if n + LQ == 16:
                if STAMP == 4: stamp("m")
                E("s_waitcnt vmcnt(4)\ns_barrier")
                if STAMP == 4: stamp("m")
            E(qread(n + LQ))
        else:
            E(late[:2]); late = late[2:]; nl += 2
        r0 = vXF + 4 * (n - 1)
        for r in range(r0, r0 + 4):
            if n >= 1 and r < vKV and (r - vO) % 16 < 8: E(f"v_mov_b32 v{r}, 0")
    E(late)
    E(f"s_nop {max(0, 11 - len(late))}")
    for o in (0, 1):
        for j in range(8):
            E(f"v_mul_f32 v{aQ+8*o+j}, s{sQS}, v{aQ+8*o+j}")
        for j in range(4):
            E(f"v_cvt_pk_bf16_f32 v{aK+4*o+j}, v{aQ+8*o+2*j}, v{aQ+8*o+1+2*j}")
        E(f"ds_write_b128 v{vEW}, {vr(aK+4*o,4)} offset:{1024*o}")
    if STAMP == 4: stamp("m"); E("s_waitcnt vmcnt(0)"); stamp("m")
    E("s_waitcnt vmcnt(0) lgkmcnt(0)\ns_barrier")
    stamp("m")
    E(f"""
    ds_read_b128 {vr(vQ,4)}, v{vER1}
    ds_read_b128 {vr(vKV,4)}, v{vER0} offset:2048
    ds_read_b128 {vr(vQ+4,4)}, v{vER1} offset:6144
    s_mov_b64 exec, {sr(sMask,2)}
    ds_read_b128 {vr(vKV+4,4)}, v{vERV} offset:4096
    ds_read_b128 {vr(vKV+8,4)}, v{vERV} offset:5120
    ds_read_b128 {vr(vKV+16,4)}, v{vERV} offset:{4096+6144}
    ds_read_b128 {vr(vKV+20,4)}, v{vERV} offset:{5120+6144}
    s_mov_b64 exec, -1
    ds_read_b128 {vr(vQ+8,4)}, v{vER0}
    ds_read_b128 {vr(vQ+12,4)}, v{vER0} offset:6144
    ds_read_b128 {vr(vKV+12,4)}, v{vER0} offset:{2048+6144}
    s_waitcnt lgkmcnt(8)
    v_mfma_f32_32x32x16_bf16 {vr(SA,16)}, {vr(vKV,4)}, {vr(vQ,4)}, 0
    s_nop 10
    s_waitcnt lgkmcnt(0)
    """)
    def kload(st, par):
        return [f"global_load_dwordx4 {vr(vKV+12*st,4)}, v{vKA}, {sr(sKV,2)} offset:{par*2048} sc1"]
    def vload(st, par):
        return [f"s_mov_b64 exec, {sr(sMask,2)}",
                f"global_load_dwordx4 {vr(vKV+12*st+4,4)}, v{vVA}, {sr(sKV,2)} offset:{par*2048+1024} sc1",
                f"global_load_dwordx4 {vr(vKV+12*st+8,4)}, v{vVA}, {sr(sKV,2)} offset:{par*2048+1536} sc1",
                "s_mov_b64 exec, -1"]
    def step(t, q, mode="loop", lo=0, hi=16, extra=None):
        cur, oth = (SA, SB) if q % 2 == 0 else (SB, SA)
        tp, qp = (t, q - 1) if q else ((t - 1) % 4, 3)
        tn, qn = (t, q + 1) if q < 3 else ((t + 1) % 4, 0)
        after2, afterq, after1 = extra or ([], [], [])
        st = (t + 3) % 4; par = (t + 3) & 1
        if mode == "loop":
            if q == 0:
                after2 = vload(st, par); afterq = kload(st, par)
            if q == 1 and par == 1:
                ka = kvaddr(); after2 = ka[:2]; after1 = ka[2:]
            if q == 3:
                after2 = ["s_waitcnt vmcnt(6)"]
                if t == 2:
                    after2 += [f"s_sub_u32 s{sCnt}, s{sCnt}, 1"]; afterq = [f"s_cmp_lg_u32 s{sCnt}, 0"]
        for i in range(lo, hi):
            E(f"v_exp_f32 v{cur+i}, v{cur+i}")
            if i == 1 and not (mode == "first" and q == 0):
                E(f"v_smfmac_f32_32x32x32_bf16 {vr(vO+16*qp,16)}, {vr(vKV+12*tp+8,4)}, {vr(oth+8,8)}, v{vIDX}")
                E(after2)
            if i == 4 and not (mode == "last" and q == 3):
                E(f"v_mfma_f32_32x32x16_bf16 {vr(oth,16)}, {vr(vKV+12*tn,4)}, {vr(vQ+4*qn,4)}, 0")
                E(afterq)
            if i == 10:
                E(f"v_smfmac_f32_32x32x32_bf16 {vr(vO+16*q,16)}, {vr(vKV+12*t+4,4)}, {vr(cur,8)}, v{vIDX}")
                E(after1)
    for q in range(4): step(0, q, "first")
    E("s_barrier")
    stamp("m")
    E(kload(2, 0) + vload(2, 0) + vload(3, 1) + kload(3, 1) + kvaddr())
    E("s_branch L_attn1\n.p2align 3\nL_attn:")
    step(2, 3, lo=11)
    for t in (3, 0, 1, 2):
        if t == 1: E("L_attn1:")
        for q in range(4): step(t, q, hi=(11 if (t, q) == (2, 3) else 16))
    if OPT.get("itst"):
        E(f"s_memtime s[90:91]\ns_mov_b32 m0, s{sCnt}\ns_waitcnt lgkmcnt(0)\nv_writelane_b32 v23, s90, m0")
    E("s_cbranch_scc1 L_attn")
    step(2, 3, lo=11)
    vR = 64
    def sendw(q): return [f"ds_write_b128 v{vRW}, {vr(vO+16*q,4)} offset:{2048*q}", f"ds_write_b128 v{vRW}, {vr(vO+16*q+4,4)} offset:{2048*q+1024}",
                          f"ds_write_b32 v{vRWl}, v{vO+16*q+8} offset:{4096+256*q}"]
    recv = ["s_waitcnt lgkmcnt(0)", "s_barrier",
            f"ds_read_b32 v{vR+16}, v{vRRl} offset:4096", f"ds_read_b128 {vr(vR,4)}, v{vRR}", f"ds_read_b128 {vr(vR+4,4)}, v{vRR} offset:1024",
            f"ds_read_b32 v{vR+17}, v{vRRl} offset:4352", f"ds_read_b128 {vr(vR+8,4)}, v{vRR} offset:2048", f"ds_read_b128 {vr(vR+12,4)}, v{vRR} offset:3072"]
    step(3, 0, "last"); step(3, 1, "last")
    w0 = sendw(0)
    step(3, 2, "last", extra=(w0[:1], w0[1:2], w0[2:]))
    step(3, 3, "last", extra=(sendw(1), [], recv))
    O2, O3 = vO + 32, vO + 48
    E(f"""
    s_waitcnt lgkmcnt(3)
    v_add_f32 v{O2+8}, v{O2+8}, v{vR+16}
    v_smfmac_f32_32x32x32_bf16 {vr(O3,16)}, {vr(vKV+36+8,4)}, {vr(SB+8,8)}, v{vIDX}
    """)
    stamp("m")
    def fin(o, r, rl, dst, addr):
        if rl is not None: E(f"v_add_f32 v{o+8}, v{o+8}, v{rl}")
        E(f"v_rcp_f32 v{vT}, v{o+8}")
        if r is not None:
            for j in range(8): E(f"v_add_f32 v{o+j}, v{o+j}, v{r+j}")
        else:
            E("s_nop 0")
        for j in range(8): E(f"v_mul_f32 v{o+j}, v{o+j}, v{vT}")
        for j in range(4): E(f"v_cvt_pk_bf16_f32 v{dst+j}, v{o+2*j}, v{o+2*j+1}")
        E(f"global_store_dwordx4 v{addr}, {vr(dst,4)}, {sr(pWs,2)} sc1")
    fin(O2, vR, None, SA, vOA)
    E("s_waitcnt lgkmcnt(0)")
    fin(O3, vR + 8, vR + 17, SA + 4, vOB)
    E(f"""
    s_mov_b32 s{ta}, {fbits(2.0**-30)}
    s_mov_b32 s{tb}, {fbits(2.0**50)}
    v_min_f32 v{vT+6}, v{O2+8}, v{O3+8}
    v_max_f32 v{vT+7}, v{O2+8}, v{O3+8}
    v_cmp_lt_f32 vcc, s{ta}, v{vT+6}
    v_cmp_gt_f32 {sr(tc,2)}, s{tb}, v{vT+7}
    v_pk_mul_f32 {vr(vT+2,2)}, {vr(O2,2)}, 0 op_sel_hi:[1,0]
    s_and_b64 {sr(tc,2)}, {sr(tc,2)}, vcc
    """)
    for j in (2, 4, 6, 16, 18, 20, 22):
        E(f"v_pk_fma_f32 {vr(vT+2,2)}, {vr(O2+j,2)}, 0, {vr(vT+2,2)} op_sel_hi:[1,0,1]")
    E(f"""
    v_cmp_o_f32 vcc, v{vT+2}, v{vT+3}
    s_nop 1
    s_and_b64 vcc, {sr(tc,2)}, vcc
    s_cmp_eq_u64 vcc, -1
    s_cbranch_scc0 L_safe
    L_pub:
    s_waitcnt vmcnt(0)
    s_barrier
    """)
    stamp("m")
    E(f"s_cmp_lg_u32 s{sW}, 0\ns_cbranch_scc1 L_mdone")
    put_flag(vF2, vOne)
    E("s_waitcnt vmcnt(0)")
    poll_global(vF2P, pFL, 2)
    E(f"s_mov_b32 s{sKV}, s{pWs}\ns_mov_b32 s{sKV+1}, s{pWs+1}")
    for g in range(8):
        E(f"s_mov_b32 m0, {OFL+4096*g}")
        if g: E(f"s_add_u32 s{sKV}, s{sKV}, 4096\ns_addc_u32 s{sKV+1}, s{sKV+1}, 0")
        else: E("s_nop 0")
        for j in range(4):
            E(f"global_load_lds_dwordx4 v{vOD}, {sr(sKV,2)} offset:{1024*j} sc1")
    for n in (24, 16, 8, 0):
        E(f"s_waitcnt vmcnt({n})\ns_barrier")
    if SPM >= 0:
        E("s_branch L_mdone2\nL_mdone:\ns_barrier\ns_barrier\ns_barrier\ns_barrier\nL_mdone2:")
    else:
        E("L_mdone:")
    stamp_flush("m"); spin_end("m")
    if OPT.get("itst"):
        E(f"v_lshl_add_u32 v2, v1, 2, v2\nv_add_u32 v2, 0x100000, v2\ns_mov_b64 exec, 0xff\nglobal_store_dword v2, v23, {sr(pWs,2)}")
    E("s_endpgm")
    vM, vC = vT + 6, 64
    vQ += 8; vO += 32
    E(f"""
    L_safe:
    s_waitcnt vmcnt(0)
    s_lshl_b32 s{ta}, s{sZ}, 12
    s_sub_u32 s{sKVb}, s{sKVb}, s{ta}
    s_subb_u32 s{sKVb+1}, s{sKVb+1}, 0
    s_mov_b32 s{sKV}, s{sKVb}
    s_mov_b32 s{sKV+1}, s{sKVb+1}
    s_mov_b32 s{sCnt}, 64
    v_mov_b32 v{vM}, 0xff800000
    v_mov_b32 v{vM+1}, 0xff800000
    L_safe1:
    global_load_dwordx4 {vr(vKV,4)}, v{vKA}, {sr(sKV,2)} sc1
    s_add_u32 s{sKV}, s{sKV}, 2048
    s_addc_u32 s{sKV+1}, s{sKV+1}, 0
    s_waitcnt vmcnt(0)
    v_mfma_f32_32x32x16_bf16 {vr(SA,16)}, {vr(vKV,4)}, {vr(vQ,4)}, 0
    v_mfma_f32_32x32x16_bf16 {vr(SB,16)}, {vr(vKV,4)}, {vr(vQ+4,4)}, 0
    s_nop 15
    """)
    for j in range(8):
        E(f"v_max3_f32 v{vM}, v{SA+2*j}, v{SA+2*j+1}, v{vM}\nv_max3_f32 v{vM+1}, v{SB+2*j}, v{SB+2*j+1}, v{vM+1}")
    E(f"""
    s_sub_u32 s{sCnt}, s{sCnt}, 1
    s_cmp_lg_u32 s{sCnt}, 0
    s_cbranch_scc1 L_safe1
    v_mov_b32 v{SA}, v{vM}
    v_mov_b32 v{SB}, v{vM+1}
    s_nop 1
    v_permlane32_swap_b32 v{SA}, v{vM}
    v_permlane32_swap_b32 v{SB}, v{vM+1}
    s_nop 1
    v_max_f32 v{vM}, v{vM}, v{SA}
    v_max_f32 v{vM+1}, v{vM+1}, v{SB}
    """)
    for j in range(16):
        E(f"v_sub_f32 v{vC+j}, 0, v{vM}\nv_sub_f32 v{vC+16+j}, 0, v{vM+1}\nv_mov_b32 v{vO+j}, 0\nv_mov_b32 v{vO+16+j}, 0")
    E(f"""
    s_mov_b32 s{sKV}, s{sKVb}
    s_mov_b32 s{sKV+1}, s{sKVb+1}
    s_mov_b32 s{sCnt}, 64
    L_safe2:
    """)
    E(kload(0, 0) + vload(0, 0))
    E(f"""
    s_add_u32 s{sKV}, s{sKV}, 2048
    s_addc_u32 s{sKV+1}, s{sKV+1}, 0
    s_waitcnt vmcnt(0)
    v_mfma_f32_32x32x16_bf16 {vr(SA,16)}, {vr(vKV,4)}, {vr(vQ,4)}, {vr(vC,16)}
    v_mfma_f32_32x32x16_bf16 {vr(SB,16)}, {vr(vKV,4)}, {vr(vQ+4,4)}, {vr(vC+16,16)}
    s_nop 15
    """)
    for j in range(32):
        E(f"v_exp_f32 v{SA+j}, v{SA+j}")
    E(f"""
    s_nop 1
    v_smfmac_f32_32x32x32_bf16 {vr(vO,16)}, {vr(vKV+4,4)}, {vr(SA,8)}, v{vIDX}
    v_smfmac_f32_32x32x32_bf16 {vr(vO,16)}, {vr(vKV+8,4)}, {vr(SA+8,8)}, v{vIDX}
    v_smfmac_f32_32x32x32_bf16 {vr(vO+16,16)}, {vr(vKV+4,4)}, {vr(SB,8)}, v{vIDX}
    v_smfmac_f32_32x32x32_bf16 {vr(vO+16,16)}, {vr(vKV+8,4)}, {vr(SB+8,8)}, v{vIDX}
    s_sub_u32 s{sCnt}, s{sCnt}, 1
    s_cmp_lg_u32 s{sCnt}, 0
    s_cbranch_scc1 L_safe2
    s_nop 15
    """)
    fin(O2, None, None, SA, vOA); fin(O3, None, None, SA + 4, vOB)
    E("s_branch L_pub")

def helper_wave():
    sH, sC, sMH, sRT, sCB, sD = sT, sT + 1, sT + 2, sT + 3, sT + 4, sT + 5
    sLd, sDs = sT + 6, sT + 7
    t0 = sT + 8
    sLead, sWst = 92, 93
    sAT = 100
    vGW = 156
    vGWA = 155
    vXF = 160
    vG, vGA0, vGA1 = 164, 165, 166
    vU = 168
    vF4, vF4P, vWqP, vWqG, vRdy, vF1, vF1P = range(141, 148)
    sWq = 94
    vTA, vTS = 148, 152
    sUW = sT + 13
    assert NS == 3
    vPar = 4
    E(f"""
    L_helper:
    s_lshr_b32 s{sC}, s{sH}, 1
    s_add_u32 s{sD}, s{sCH}, s{sC}
    s_and_b32 s{sCB if OPT["fm"] else sRT}, s{sHP}, 3
    s_lshr_b32 s{sRT if OPT["fm"] else sCB}, s{sHP}, 2
    v_lshrrev_b32 v3, 5, v1
    v_lshlrev_b32 v3, 4, v3
    s_lshl_b32 s{t0+2}, s{sROT}, 2
    s_add_u32 s{t0+2}, s{t0+2}, s{sH}
    s_lshl_b32 s{t0+2}, s{t0+2}, 5
    s_add_u32 s{t0+2}, s{t0+2}, {GW}
    v_add_u32 v{vGWA}, s{t0+2}, v3
    v_mov_b32 v12, 0
    v_mov_b32 v13, 0
    v_mov_b32 v14, 0
    v_mov_b32 v15, 0
    s_cmp_lt_u32 s2, 16
    s_cselect_b32 s{sLead}, s{sW}, 0
    """)
    E(f"s_add_u32 s{pFL}, s{pWs}, {WS_FL}\ns_addc_u32 s{pFL+1}, s{pWs+1}, 0")
    def claim_kv():
        E(f"""
        s_lshl2_add_u32 s{t0}, s{sRB}, s{sH}
        s_lshl_b32 s{t0}, s{t0}, 11
        s_lshl_b32 s{t0+1}, s{sHP}, 18
        s_add_u32 s{t0}, s{t0}, s{t0+1}
        """)
        if OPT["clm"] in (1, 3):
            E(f"""
            v_and_b32 v10, 31, v1
            v_lshl_add_u32 v10, v10, 6, s{t0}
            v_lshrrev_b32 v11, 5, v1
            v_lshl_add_u32 v10, v11, 17, v10
            global_store_dword v10, v12, {sr(pWs,2)} sc1
            """)
        else:
            E(f"""
            v_lshl_add_u32 v10, v1, 4, s{t0}
            v_add_u32 v11, 0x20000, v10
            global_store_dwordx4 v10, v[12:15], {sr(pWs,2)} sc1
            global_store_dwordx4 v10, v[12:15], {sr(pWs,2)} offset:1024 sc1
            global_store_dwordx4 v11, v[12:15], {sr(pWs,2)} sc1
            global_store_dwordx4 v11, v[12:15], {sr(pWs,2)} offset:1024 sc1
            """)
    NCL = {0: 0, 1: 1, 2: 4, 3: 0}[OPT["clm"]]
    if NCL: claim_kv()
    stamp("h")
    E(f"""
    s_mul_i32 s{t0}, s{sC}, {URS}
    s_add_u32 s{t0}, s{t0}, {UR+4096}
    v_lshl_add_u32 v10, v1, 4, s{t0}
    v_and_b32 v11, 1, v1
    v_lshlrev_b32 v11, 4, v11
    v_cmp_gt_u32 vcc, 30, v1
    v_add_u32 v11, {CNT}, v11
    v_mov_b32 v2, 0x3f803f80
    v_cndmask_b32 v10, v11, v10, vcc
    ds_write_b128 v10, v[12:15]
    v_and_b32 v11, 3, v1
    v_lshlrev_b32 v11, 2, v11
    ds_write_b32 v11, v2 offset:{CNT+32}
    """)
    vWA, vRA = 16, 17
    if "prio1" in OPT: E(f"s_setprio {OPT['prio1']}")
    E(f"""
    s_mul_i32 s{t0}, s{sRT}, {WPART}
    s_add_u32 s{t0}, s{t0}, {RING}
    v_and_b32 v10, 31, v1
    v_lshl_add_u32 v10, v10, 7, s{t0}
    v_bfe_u32 v11, v1, 1, 3
    v_lshrrev_b32 v3, 5, v1
    v_xor_b32 v11, v11, v3
    s_lshl_b32 s{t0}, s{sH}, 1
    v_xor_b32 v11, s{t0}, v11
    v_lshl_add_u32 v{vGA0}, v11, 4, v10
    v_mov_b32 v{vG}, 0
    """)
    if not OPT["gath"]: E(f"""
    s_lshr_b32 s{sUW}, s{sHP}, 1
    s_sub_u32 s{sUW}, s{sUW}, s{sROT}
    s_and_b32 s{sUW}, s{sUW}, 7
    s_mul_i32 s{t0}, s{sUW}, 11
    s_lshr_b32 s{t0}, s{t0}, 5
    s_mul_i32 s{t0}, s{t0}, 3
    s_sub_u32 s{t0}, s{sUW}, s{t0}
    s_mul_i32 s{t0}, s{t0}, {SLOT}
    s_mul_i32 s{t0+1}, s{sH}, {WPART}
    s_add_u32 s{t0}, s{t0}, s{t0+1}
    s_add_u32 s{t0}, s{t0}, {RING}
    v_and_b32 v10, 3, v1
    v_bfe_u32 v11, v1, 2, 2
    v_lshlrev_b32 v10, 3, v10
    v_sub_u32 v10, v10, v11
    v_add_u32 v10, 7, v10
    v_bfe_u32 v11, v10, 1, 3
    v_xor_b32 v11, v11, v3
    s_and_b32 s{t0+1}, s{sHP}, 1
    s_lshl_b32 s{t0+1}, s{t0+1}, 2
    v_xor_b32 v11, s{t0+1}, v11
    v_lshlrev_b32 v11, 4, v11
    v_lshl_add_u32 v11, v10, 7, v11
    v_bfe_u32 v10, v1, 4, 1
    v_lshl_add_u32 v11, v10, 3, v11
    v_add_u32 v{vTA}, s{t0}, v11
    v_xor_b32 v{vTA+1}, 32, v{vTA}
    v_subrev_u32 v{vTA+2}, 512, v{vTA}
    v_subrev_u32 v{vTA+3}, 512, v{vTA+1}
    """)
    E(f"""
    s_mul_i32 s{t0}, s{sH}, {KGS}
    s_add_u32 s{t0}, s{t0}, {KG}
    s_mov_b32 m0, s{t0}
    v_and_b32 v10, 31, v1
    v_mul_u32_u24 v10, 272, v10
    v_lshl_add_u32 v10, v3, 4, v10
    v_add_u32 v{vRA}, s{t0}, v10
    s_mul_i32 s{t0}, s{sC}, {2*KGS}
    s_add_u32 s{t0}, s{t0}, {KG+KGS}
    v_lshl_add_u32 v{vWA}, v1, 4, s{t0}
    """)
    K = []
    def k(s, c=None):
        if isinstance(s, list): s = "\n".join(s)
        for x in s.split("\n"):
            x = x.strip()
            if not x: continue
            cc = c if c is not None else (8 if any(t in x for t in ("v_exp", "v_sin", "v_cos", "v_rcp", "ds_")) else 4)
            K.append((cc, x))
    va, vb, vt = 220, 221, 222
    log2e = math.log2(math.e)
    c_hi = struct.unpack("<f", struct.pack("<f", log2e))[0]
    c_lo = log2e - c_hi
    k(f"""
    s_waitcnt lgkmcnt(0)
    s_lshl_b32 s{t0}, s{sC}, 4
    s_lshr_b32 s{sLd}, s{sLd}, s{t0}
    s_lshl_b32 s{sLd}, s{sLd}, 16
    s_lshr_b32 s{sDs}, s{sDs}, s{t0}
    s_lshl_b32 s{sDs}, s{sDs}, 16
    s_mov_b32 s{t0}, {fbits(c_hi)}
    v_mov_b32 v{vt}, s{sLd}
    v_mul_f32 v{vt+1}, s{t0}, v{vt}
    v_fma_f32 v{vt+2}, v{vt}, s{t0}, -v{vt+1}
    v_fmac_f32 v{vt+2}, {fbits(c_lo)}, v{vt}
    v_exp_f32 v{vt+1}, v{vt+1}
    v_mul_f32 v{vt+2}, {fbits(math.log(2.0))}, v{vt+2}
    v_fma_f32 v{vt+1}, v{vt+1}, v{vt+2}, v{vt+1}
    v_cvt_pk_bf16_f32 v{vt+1}, v{vt+1}, v{vt+1}
    v_lshlrev_b32 v{vt}, 16, v{vt+1}
    s_waitcnt vmcnt({1+NCL})
    """)
    for j in range(6):
        k(f"v_lshlrev_b32 v{vPar+j}, 16, v{vPar+j}")
    k(f"""
    v_mul_f32 v{va}, v{vt}, v{vPar}
    v_mul_f32 v{vb}, v{vt}, v{vPar+1}
    v_mul_f32 v{vPar+2}, v{vt}, v{vPar+2}
    v_mul_f32 v{vPar+3}, v{vt}, v{vPar+3}
    v_mul_f32 v{va}, {fbits(c_hi)}, v{va}
    v_mul_f32 v{vb}, 0.15915494, v{vb}
    """)
    pkm = [OPT["pk0"]]
    def cmul(z, x, w):
        if pkm[0]:
            return [f"v_pk_mul_f32 {vr(z,2)}, {vr(x,2)}, {vr(w,2)} op_sel_hi:[0,1]",
                    f"v_pk_fma_f32 {vr(z,2)}, {vr(x,2)}, {vr(w,2)}, {vr(z,2)} op_sel:[1,1,0] op_sel_hi:[1,0,1] neg_lo:[1,0,0]"]
        return [f"v_mul_f32 v{z}, v{x}, v{w}\nv_mul_f32 v{z+1}, v{x}, v{w+1}",
                f"v_fma_f32 v{z}, -v{x+1}, v{w+1}, v{z}\nv_fmac_f32 v{z+1}, v{x+1}, v{w}"]
    def cmuls(lst):
        cm = [cmul(*a) for a in lst]
        k([c[0] for c in cm]); k([c[1] for c in cm])
    def direct(z, x):
        k(f"""
        v_mul_f32 v{vt+2}, {fbits(x)}, v{vb}
        v_mul_f32 v{vt+1}, {fbits(x)}, v{va}
        v_fract_f32 v{vt+2}, v{vt+2}
        v_exp_f32 v{vt+1}, v{vt+1}
        v_cos_f32 v{z}, v{vt+2}
        v_sin_f32 v{z+1}, v{vt+2}
        s_nop 0
        v_mul_f32 v{z}, v{z}, v{vt+1}
        v_mul_f32 v{z+1}, v{z+1}, v{vt+1}
        """)
    E1, E32, E256 = 226, 228, 230
    vE = 232
    vPk = 64
    npk = [0]
    DW = {False: [], True: []}
    def puts(lst, neg):
        for z, rows in lst:
            p = vPk + npk[0]; npk[0] += 1
            k(f"v_cvt_pk_bf16_f32 v{p}, v{z}, {'-' if neg else ''}v{z+1}")
            DW[neg] += [f"ds_write_addtid_b32 v{p} offset:{272*r}" for r in rows]
    def e(j): return vE + 2 * (j % 8)
    direct(e(1), 8.0); direct(E32, 32.0)
    k(f"v_mov_b32 v{e(0)}, 1.0\nv_mov_b32 v{e(0)+1}, 0\nv_mov_b32 v{e(4)}, v{E32}\nv_mov_b32 v{e(4)+1}, v{E32+1}")
    cmuls([(e(2), e(1), e(1)), (e(5), e(1), E32)])
    cmuls([(e(3), e(2), e(1)), (e(6), e(2), E32)])
    cmuls([(e(7), e(3), E32)])
    puts([(e(j), [j]) for j in range(4)], False)
    for j0 in range(4, 32, 4):
        if j0 + 4 < 32: cmuls([(e(j + 4), e(j), E32) for j in range(j0, j0 + 4)])
        puts([(e(j), [j]) for j in range(j0, j0 + 4)], False)
    vEF, vGF, vD = 192, 224, 176
    direct(E1, 1.0); direct(E256, 256.0)
    def row(r, h): return 8 * (r >> 2) + 4 * h + (r & 3)
    vGv = 192
    g = {x: vGv + 2 * x for x in range(9)}
    E2 = e(0)
    cmuls([(g[0], vPar + 4, vPar + 2), (E2, E1, E1)])
    cmuls([(g[1], g[0], E1), (g[2], g[0], E2)])
    cmuls([(g[3], g[1], E2), (g[4], g[2], E2)])
    puts([(g[x], [row(x, 0)]) for x in range(4)], True)
    cmuls([(g[5], g[3], E2), (g[6], g[4], E2)])
    cmuls([(g[7], g[5], E2), (g[8], g[6], E2)])
    puts([(g[x], [row(x, 0)]) for x in range(4, 8)], True)
    A = {o: vGv + 18 + 2 * i for i, o in enumerate((0, 2, 4, 6, 8))}
    cmuls([(A[o], g[o], E256) for o in (0, 2, 4, 6, 8)])
    puts([(A[o], [row(r, 1) for r in rs]) for o, rs in ((0, (0, 1)), (2, (2,)), (4, (3, 4, 5)), (6, (6,)), (8, (7,)))], True)
    src, dst = A, g
    for os_, r0, h in (((0, 4, 8), 8, 0), ((0, 4, 8), 8, 1), ((0, 8), 11, 0), ((0, 8), 11, 1), ((0, 8), 13, 0), ((0, 8), 13, 1)):
        cmuls([(dst[o], src[o], E256) for o in os_])
        puts([(dst[o], [row(r0 + i, h)]) for i, o in enumerate(os_)], True)
        src, dst = dst, src
    def D1(): E(DW[False] + [f"ds_read_b128 {vr(vEF+4*s,4)}, v{vRA} offset:{32*s}" for s in range(8)])
    def D2(): E(DW[True] + [f"ds_read_b128 {vr(vGF+4*s,4)}, v{vRA} offset:{32*s}" for s in range(8)])
    PL = [int(c) for c in "%05d" % OPT["pl"]]
    psync = PL[2] == PL[3]
    def D3():
        E("s_waitcnt lgkmcnt(0)")
        for s in range(8):
            E(f"v_mfma_f32_32x32x16_bf16 {vr(vD,16)}, {vr(vGF+4*s,4)}, {vr(vEF+4*s,4)}, {'0' if s == 0 else vr(vD,16)}")
        lx = newlab("nx")
        E(f"s_nop 9\ns_cmp_eq_u32 s{sMH}, 0\ns_cbranch_scc1 {lx}")
        for j in range(4):
            E(f"ds_write_b128 v{vWA}, {vr(vD+4*j,4)} offset:{1024*j}")
        if psync: lds_arrive(vCP, vOne)
        E(f"s_waitcnt lgkmcnt(0)\n{lx}:")
    (vCA, vCP, vOne, vTm, vAA, vBA, vUW, vCW, vCR, vAT, vF3, vWoG, vWoL, vF3P, vAL, vOut, vg, vomg, vOL, vGPw, vGPr, vWoP, vUL, vClO) = range(24, 48)
    vA = 48; vAcc = 96
    LQH = {0: 2, 1: 0, 2: 1}[OPT["xm"]]
    LOH = [{0: 2, 1: 1, 2: 1}, {0: 3, 1: 2, 2: 3}][OPT["fm"]][OPT["xm"]]
    ADDR = f"""
    s_lshr_b32 s{t0}, s2, 3
    s_lshl2_add_u32 s{t0}, s{t0}, s{sH}
    s_mul_i32 s{t0}, s{t0}, 12288
    s_lshr_b32 s{t0+1}, s{sHP}, {LQH+1}
    s_lshl_b32 s{t0+1}, s{t0+1}, {7+LQH}
    s_add_u32 s{t0}, s{t0}, s{t0+1}
    v_bfe_u32 v18, v1, {LQH}, 2
    v_mul_u32_u24 v18, 3072, v18
    v_and_b32 v19, {(1<<LQH)-1}, v1
    v_lshl_add_u32 v18, v19, 7, v18
    v_add_u32 v{vWqP}, s{t0}, v18
    v_mov_b32 v{vCA}, {CNT}
    s_lshl_b32 s{t0}, s{sC}, 2
    s_add_u32 s{t0}, s{t0}, {CNT+4}
    v_mov_b32 v{vCP}, s{t0}
    v_mov_b32 v{vOne}, 1
    v_lshlrev_b32 v23, 4, v1
    s_lshl_b32 s{t0}, s{sH}, 10
    s_sub_u32 s{t0}, {UR+4080-512}, s{t0}
    v_lshrrev_b32 v18, 1, v1
    v_lshlrev_b32 v19, 4, v18
    v_sub_u32 v19, s{t0}, v19
    v_and_b32 v20, 1, v1
    v_mul_u32_u24 v21, {URS}, v20
    v_add_u32 v{vUW}, v19, v21
    s_lshr_b32 s{t0}, s{sCH}, 2
    s_lshl_b32 s{t0}, s{t0}, 14
    s_lshl_b32 s{t0+1}, s{sH}, 12
    s_add_u32 s{t0}, s{t0}, s{t0+1}
    s_and_b32 s{t0+1}, s{sRB}, 1
    s_lshl_b32 s{t0+1}, s{t0+1}, 5
    s_add_u32 s{t0}, s{t0}, s{t0+1}
    s_add_u32 s{t0}, s{t0}, {WS_UT}
    v_lshl_add_u32 v18, v18, 6, s{t0}
    v_lshl_add_u32 v{vUL}, v20, 4, v18
    v_and_b32 v18, 15, v1
    v_add_u32 v19, 1, v18
    v_and_b32 v20, 3, v19
    v_mul_u32_u24 v20, {KCP}, v20
    v_lshrrev_b32 v19, 2, v19
    v_lshl_add_u32 v20, v19, 3, v20
    v_lshrrev_b32 v21, 4, v1
    v_lshlrev_b32 v22, 4, v21
    s_mul_i32 s{t0}, s{sC}, {2*KGS}
    s_lshl_b32 s{t0+1}, s{sMH}, 8
    s_add_u32 s{t0}, s{t0}, s{t0+1}
    s_add_u32 s{t0}, s{t0}, {KG}
    v_add3_u32 v{vAA}, v20, v22, s{t0}
    s_mul_i32 s{t0}, s{sC}, {URS}
    s_add_u32 s{t0}, s{t0}, s{t0+1}
    s_add_u32 s{t0}, s{t0}, {UR+4064-3584}
    v_lshlrev_b32 v19, 5, v18
    v_sub_u32 v22, v22, v19
    v_add_u32 v{vBA}, s{t0}, v22
    s_lshl_b32 s{t0}, s{sH}, 12
    s_add_u32 s{t0}, s{t0}, {CRED}
    v_add_u32 v{vCW}, s{t0}, v23
    s_xor_b32 s{t0}, s{sH}, 1
    s_lshl_b32 s{t0}, s{t0}, 12
    s_add_u32 s{t0}, s{t0}, {CRED}
    v_add_u32 v{vCR}, s{t0}, v23
    v_add_u32 v{vOL}, {OFL}, v23
    v_lshrrev_b32 v19, 1, v18
    v_lshlrev_b32 v19, 15, v19
    v_and_b32 v20, 1, v1
    v_lshl_add_u32 v19, v20, 5, v19
    v_lshl_add_u32 v{vAT}, v21, 3, v19
    s_lshl_b32 s{t0}, s{sMH}, 20
    s_lshl_b32 s{t0+1}, s{sD}, 6
    s_add_u32 s{t0}, s{t0}, s{t0+1}
    s_add_u32 s{t0}, s{t0}, {WS_AT}
    s_add_u32 s{sAT}, s{pWs}, s{t0}
    s_addc_u32 s{sAT+1}, s{pWs+1}, 0
    s_lshl_b32 s{t0}, s{sMH}, 9
    s_add_u32 s{t0}, s{t0}, s{sD}
    s_add_u32 s{t0}, s{t0}, {F3}
    s_lshl_b32 s{t0}, s{t0}, 2
    v_mov_b32 v{vF3}, s{t0}
    s_mov_b32 s{SRDW}, s{pWo}
    s_mov_b32 s{SRDW+1}, s{pWo+1}
    s_mov_b32 s{SRDW+2}, {512*1024}
    s_mov_b32 s{SRDW+3}, 0x00020000
    s_lshl_b32 s{t0}, s{sCB}, 2
    s_add_u32 s{t0}, s{t0}, s{sH}
    s_lshl_b32 s{t0+1}, s{t0}, 6
    v_lshrrev_b32 v18, 2, v1
    v_lshl_add_u32 v18, v18, 10, s{t0+1}
    v_and_b32 v19, 3, v1
    v_lshl_add_u32 v{vWoG}, v19, 4, v18
    s_mul_i32 s{sWst}, s{sH}, {WSL*1024}
    s_add_u32 s{sWst}, s{sWst}, {WST}
    v_lshrrev_b32 v22, 5, v1
    v_lshlrev_b32 v20, 2, v22
    v_bfe_u32 v21, v1, 2, 2
    v_add_u32 v20, v20, v21
    v_lshl_add_u32 v20, v20, 6, s{sWst}
    v_lshl_add_u32 v20, v19, 3, v20
    v_bfe_u32 v21, v1, 4, 1
    v_lshl_add_u32 v{vWoL}, v21, 5, v20
    s_lshl_b32 s{t0}, s{t0}, 5
    s_lshr_b32 s{t0+1}, s{sRB}, 3
    s_lshl_b32 s{t0+1}, s{t0+1}, 9
    s_add_u32 s{t0+1}, s{t0+1}, s{t0}
    s_add_u32 s{t0+1}, s{t0+1}, {F3}
    v_and_b32 v18, 31, v1
    v_add_u32 v19, s{t0+1}, v18
    v_lshlrev_b32 v{vF3P}, 2, v19
    s_lshl_b32 s{t0+1}, s{sRB}, 2
    s_add_u32 s{t0+1}, s{t0+1}, s{sRT}
    s_lshl_b32 s{t0+2}, s{t0+1}, 15
    s_lshl_b32 s{t0+3}, s{t0}, 6
    s_add_u32 s{t0+3}, s{t0+3}, s{t0+2}
    s_add_u32 s{t0+3}, s{t0+3}, {WS_AT}
    v_lshlrev_b32 v20, 8, v22
    v_lshl_add_u32 v20, v18, 1, v20
    v_add_u32 v{vAL}, s{t0+3}, v20
    s_lshl_b32 s{t0}, s{t0}, 1
    s_add_u32 s{t0}, s{t0}, s{t0+2}
    v_lshl_add_u32 v20, v18, 10, s{t0}
    v_lshl_add_u32 v{vOut}, v22, 4, v20
    """.split("\n")
    ADDR += f"""
    s_lshl2_add_u32 s{t0}, s{sRB}, s{sH}
    s_lshl4_add_u32 s{t0}, s{t0}, s{sHP}
    s_lshl_b32 s{t0}, s{t0}, 11
    s_add_u32 s{t0}, s{t0}, {WS_OF}
    v_lshl_add_u32 v{vClO}, v1, 6, s{t0}
    s_lshl_b32 s{t0}, s{sRB}, 2
    s_add_u32 s{t0}, s{t0}, s{sH}
    s_lshl_b32 s{t0}, s{t0}, 8
    s_lshl_b32 s{t0+1}, s{sHP}, 17
    s_add_u32 s{t0}, s{t0}, s{t0+1}
    s_add_u32 s{t0}, s{t0}, {WS_UT}
    v_and_b32 v18, 15, v1
    v_lshl_add_u32 v18, v18, 4, s{t0}
    v_lshrrev_b32 v19, 4, v1
    v_lshl_add_u32 v{vTS}, v19, 14, v18
    v_add_u32 v{vTS+1}, 0x10000, v{vTS}
    v_and_b32 v18, 15, v1
    v_lshlrev_b32 v{vRdy}, 2, v18
    s_lshl_b32 s{t0}, s{sHP}, 4
    v_add_u32 v19, s{t0}, v18
    v_lshlrev_b32 v{vF1P}, {FSH}, v19
    s_add_u32 s{t0}, s{t0}, s{sRB}
    s_lshl2_add_u32 s{t0+1}, s{t0}, s{sH}
    s_add_u32 s{t0+1}, s{t0+1}, {F4}
    s_lshl_b32 s{t0+1}, s{t0+1}, 2
    v_mov_b32 v{vF4}, s{t0+1}
    s_lshl2_add_u32 s{t0+1}, s{sHP}, s{sH}
    s_lshl4_add_u32 s{t0+1}, s{t0+1}, {F4}
    v_add_lshl_u32 v{vF4P}, v18, s{t0+1}, 2
    s_lshl_b32 s{t0}, s{t0}, {FSH}
    v_mov_b32 v{vF1}, s{t0}
    v_and_b32 v18, 31, v1
    v_lshlrev_b32 v18, 5, v18
    v_lshrrev_b32 v19, 5, v1
    v_lshl_add_u32 v19, v19, 2, v18
    s_lshl_b32 s{t0}, s{sH}, 3
    s_add_u32 s{t0}, s{t0}, {GP}
    v_add_u32 v{vGPw}, s{t0}, v19
    v_add_u32 v{vGPr}, {GP}, v18
    s_lshr_b32 s{t0}, s2, 3
    s_lshl_b32 s{t0}, s{t0}, 2
    s_add_u32 s{t0}, s{t0}, s{sH}
    s_lshl_b32 s{t0}, s{t0}, 12
    s_lshr_b32 s{t0+1}, s{sCB}, {LOH-1}
    s_lshl_b32 s{t0+1}, s{t0+1}, {7+LOH}
    s_add_u32 s{t0}, s{t0}, s{t0+1}
    v_bfe_u32 v18, v1, {LOH}, 2
    v_lshl_add_u32 v18, v18, 10, s{t0}
    v_and_b32 v19, {(1<<LOH)-1}, v1
    v_lshl_add_u32 v{vWoP}, v19, 7, v18
    """.split("\n") + [f"v_mov_b32 v{vA+j}, 0" for j in range(16)]
    if OPT["gath"]:
        ADDR += f"""
        s_lshl_b32 s{t0}, s{sH}, 19
        s_lshl_b32 s{t0+1}, s{sCH}, 1
        s_add_u32 s{t0}, s{t0}, s{t0+1}
        s_add_u32 s{t0}, s{t0}, 4096
        v_lshl_add_u32 v{vUL}, v1, 13, s{t0}
        s_lshl_b32 s{t0}, s{sH}, 10
        s_sub_u32 s{t0}, {UR+4080}, s{t0}
        v_lshlrev_b32 v18, 4, v1
        v_sub_u32 v{vUW}, s{t0}, v18
        s_mov_b32 s94, 0x05040100
        s_mov_b32 s95, 0x07060302
        """.split("\n")
    ADDR = [x.strip() for x in ADDR if x.strip()]
    def GATEF():
        E("s_waitcnt lgkmcnt(0)")
        for j in range(4):
            E(f"v_dot2_f32_bf16 v{vG}, v{vXF+j}, v{vGW+j}, v{vG}")
        E(f"s_nop 2\nds_write_b32 v{vGPw}, v{vG}")
    def SIG():
        E(f"""
        ds_read_b128 v[128:131], v{vGPr}
        ds_read_b128 v[132:135], v{vGPr} offset:16
        s_waitcnt lgkmcnt(0)
        v_add_f32 v128, v128, v129
        v_add_f32 v130, v130, v131
        v_add_f32 v132, v132, v133
        v_add_f32 v134, v134, v135
        v_add_f32 v128, v128, v130
        v_add_f32 v132, v132, v134
        v_add_f32 v128, v128, v132
        v_mul_f32 v128, {fbits(-log2e)}, v128
        v_exp_f32 v128, v128
        s_nop 0
        v_add_f32 v128, 1.0, v128
        v_rcp_f32 v{vg}, v128
        s_nop 0
        v_sub_f32 v{vomg}, 1.0, v{vg}
        """)
    vR = 64; vE0 = 64
    def KC1():
        lk = newlab("nk")
        E(f"s_cmp_eq_u32 s{sMH}, 0\ns_cbranch_scc0 {lk}")
        if psync: lds_wait(vCP, 2, 1)
        for j in range(4):
            E(f"ds_read_b128 {vr(vR+4*j,4)}, v{vWA} offset:{1024*j}")
        E(f"""
        s_mul_i32 s{t0}, s{sC}, {2*KGS}
        s_add_u32 s{t0}, s{t0}, {KG}
        v_lshl_add_u32 v2, v1, 4, s{t0}
        v_lshrrev_b32 v3, 1, v1
        v_mul_u32_u24 v3, {KCP}, v3
        v_and_b32 v10, 1, v1
        v_lshlrev_b32 v11, 4, v10
        v_add3_u32 v3, v3, v11, s{t0}
        v_cmp_eq_u32 {sr(t0+2,2)}, 1, v10
        s_mov_b64 exec, 1
        v_add_f32 v{vD}, s{sDs}, v{vD}
        s_waitcnt lgkmcnt(0)
        s_mov_b64 exec, 0xff
        ds_write_b128 v3, v[12:15]
        s_mov_b64 exec, -1
        """)
        for j in range(15):
            E(f"v_add_f32 v{vD+j}, v{vD+j}, v{vR+j}")
        E(f"""
        v_cndmask_b32 v10, v{vD+11}, v{vD+12}, {sr(t0+2,2)}
        v_cndmask_b32 v11, v{vD+13}, v{vD+14}, {sr(t0+2,2)}
        """)
        D = lambda j: vD + j
        pats = [[(D(0), D(1)), (D(2), D(3)), (D(4), D(5)), (D(6), D(7))],
                [(D(8), D(8)), (D(8), D(9)), (D(9), D(9)), (D(10), D(10))],
                [(D(11), D(11)), (D(11), D(11)), (10, D(12)), (D(12), D(12))],
                [(D(13), D(13)), (D(13), D(13)), (11, D(14)), (D(14), D(14))]]
        for u in range(4):
            for j, (a, b) in enumerate(pats[u]):
                E(f"v_cvt_pk_bf16_f32 v{vE0+8*u+j}, v{a}, v{b}")
            E(f"ds_write_b128 v2, {vr(vE0+8*u,4)} offset:{32+1024*u}")
        for u in range(4):
            E(f"ds_read_b64 {vr(vE0+8*u+4,2)}, v2 offset:{48+1024*u}")
        E(f"{lk}:")
    def KC2():
        lk = newlab("nk")
        E(f"s_cmp_eq_u32 s{sMH}, 0\ns_cbranch_scc0 {lk}\ns_waitcnt lgkmcnt(0)")
        for u in range(4):
            b = vE0 + 8 * u; o = 96 + 12 * (u & 1)
            for j in range(4):
                E(f"v_alignbit_b32 v{o+j}, v{b+j+1}, v{b+j}, 16")
            E(f"ds_write_b128 v2, {vr(o,4)} offset:{32+1024*u+KCP}")
            for j in range(4):
                E(f"v_mov_b32 v{o+4+j}, v{b+j+1}")
            E(f"ds_write_b128 v2, {vr(o+4,4)} offset:{32+1024*u+2*KCP}")
            for j in range(4):
                E(f"v_alignbit_b32 v{o+8+j}, v{b+j+2}, v{b+j+1}, 16")
            E(f"ds_write_b128 v2, {vr(o+8,4)} offset:{32+1024*u+3*KCP}")
            if u == 0:
                E(f"""
                v_lshlrev_b32 v10, 16, v{b}
                s_mov_b64 exec, 1
                ds_write_b32 v2, v10 offset:{28+KCP}
                ds_write_b32 v2, v{b} offset:{28+2*KCP}
                ds_write_b32 v2, v10 offset:{24+3*KCP}
                ds_write_b32 v2, v{o} offset:{28+3*KCP}
                s_mov_b64 exec, -1
                """)
        E(f"{lk}:")
    def gate_glue(i):
        E(f"s_waitcnt vmcnt({NCL}) lgkmcnt(0)" if i == 0 else "s_waitcnt vmcnt(0) lgkmcnt(0)" if i == 7 else "s_waitcnt lgkmcnt(0)")
        if OPT.get("hst"): stamp("h")
        E("s_barrier")
        if i == 0 and OPT["clm"] == 3: claim_kv()
        if i == 0:
            lq = newlab("nr")
            E(f"""
            s_cmp_eq_u32 s{sLead}, 7
            s_cbranch_scc0 {lq}
            s_lshl_b32 s{sSPIN}, s2, 5
            v_add_u32 v10, s{sSPIN}, v1
            v_lshlrev_b32 v10, {FSH}, v10
            s_lshl_b32 s{sSPIN}, s2, 9
            s_add_u32 s{sSPIN}, s{sSPIN}, {4*F3}
            v_lshl_add_u32 v11, v1, 3, s{sSPIN}
            global_store_dwordx2 v11, v[12:13], {sr(pFL,2)} sc1
            s_bfm_b64 exec, 32, 0
            global_store_dword v10, v12, {sr(pFL,2)} sc1
            s_mov_b64 exec, -1
            {lq}:
            """)
        if i == OPT["rdyw"]:
            lq = newlab("nr")
            E(f"""
            s_cmp_eq_u32 s{sLead}, 7
            s_cbranch_scc0 {lq}
            s_lshl_b32 s{sSPIN}, s2, 2
            v_mov_b32 v10, s{sSPIN}
            v_mov_b32 v11, 1
            s_waitcnt vmcnt(0)
            """)
            put_flag(10, 11, pDbg)
            E(f"{lq}:")
        if i >= 1:
            for j in range(4):
                E(f"v_dot2_f32_bf16 v{vG}, v{vXF+j}, v{vGW+j}, v{vG}")
        slot = i % NS
        E(f"ds_read_b128 {vr(vXF,4)}, v{vGA0} offset:{slot*SLOT}")
        E(f"ds_read_b128 {vr(vGW,4)}, v{vGWA} offset:{128*i}")
        if not OPT["gath"]: E(f"""
        s_cmp_eq_u32 s{sUW}, {i}
        s_cbranch_scc0 L_ut{i}
        ds_read_b64_tr_b16 {vr(vU,2)}, v{vTA}
        ds_read_b64_tr_b16 {vr(vU+2,2)}, v{vTA+3}
        ds_read_b64_tr_b16 {vr(vU+4,2)}, v{vTA+1}
        ds_read_b64_tr_b16 {vr(vU+6,2)}, v{vTA+2}
        L_ut{i}:
        """)
    E(ADDR)
    tot = sum(c for c, _ in K); nw = OPT["kw"]
    pre = tot * OPT["kpre"] / 100
    segs = [[] for _ in range(9)]; acc = 0
    for c, x in K:
        segs[0 if acc < pre else 1 + min(nw - 1, int((acc - pre) * nw / (tot - pre)))].append(x); acc += c
    items = [D1, D2, D3, KC1, KC2]
    def place(w):
        for it, p in zip(items, PL):
            if p == w: it()
    E(segs[0])
    for i in range(8):
        gate_glue(i)
        if i == OPT["wqpf"]:
            E(f"s_bfm_b64 exec, {4<<LQH}, 0\nglobal_load_dword v167, v{vWqP}, {sr(pW,2)}\ns_mov_b64 exec, -1")
        E(segs[i + 1])
    stamp("h")
    GATEF()
    uts = f"""
    global_store_dwordx4 v{vTS}, {vr(vU,4)}, {sr(pWs,2)} sc1
    global_store_dwordx4 v{vTS+1}, {vr(vU+4,4)}, {sr(pWs,2)} sc1
    """
    E(f"global_load_dword v{vTm}, v{vRdy}, {sr(pDbg,2)} sc1")
    place(0)
    E(f"s_setprio {OPT['prioq']}\ns_waitcnt lgkmcnt(0)\ns_barrier")
    stamp("h")
    if not OPT["gath"] and not OPT["utl"]: E(uts)
    SIG()
    place(1)
    E("s_barrier")
    place(2)
    assert OPT["ackn"] > 16 - OPT["lq"]
    E(f"s_setprio {OPT['prio']}\ns_waitcnt vmcnt(0)\ns_barrier")
    stamp("h")
    lq = newlab("nf"); lr = newlab("rdy")
    E(f"""
    s_cmp_lg_u32 s{sH}, 1
    s_cbranch_scc1 {lq}
    v_cmp_ne_u32 vcc, 0, v{vTm}
    s_nop 1
    s_cmp_eq_u64 vcc, -1
    s_cbranch_scc1 {lr}
    """)
    poll_global(vRdy, pDbg, vTm)
    E(f"{lr}:")
    put_flag(vF1, vOne)
    E(f"{lq}:")
    place(3)
    E("s_barrier")
    place(4)
    lq = newlab("nf")
    E(f"s_cmp_lg_u32 s{sH}, 1\ns_cbranch_scc1 {lq}")
    poll_global(vF1P, pFL, vTm)
    E(f"{lq}:")
    E("s_setprio 0\ns_barrier")
    stamp("h")
    late = OPT["utl"] and not OPT["gath"]
    if PL[0] == 5: D1()
    if late: E(uts)
    E(f"s_setprio {OPT['prio']}")
    if PL[1] == 5: D2()
    if PL[2] == 5: D3()
    if late:
        E("s_waitcnt vmcnt(0)")
        put_flag(vF4, vOne)
    if PL[3] == 5: KC1()
    if PL[4] == 5: KC2()
    if late:
        lds_arrive(vCA, vOne)
        lds_wait(vCA, vTm, 4)
        E("s_waitcnt vmcnt(0)")
        poll_global(vF4P, pFL, vTm)
    if OPT["gath"]:
        for j in range(8):
            E(f"global_load_dword v{vU+j}, v{vUL}, {sr(pX,2)} offset:{1024*j-4096}\ns_waitcnt vmcnt({OPT['gd'] if j < 7 else 0})")
        E(f"s_setprio {OPT['prio']}")
        for j in range(4):
            E(f"v_perm_b32 v{12+j}, v{vU+6-2*j}, v{vU+7-2*j}, s94")
            E(f"v_perm_b32 v{16+j}, v{vU+6-2*j}, v{vU+7-2*j}, s95")
        E(f"ds_write_b128 v{vUW}, v[12:15]\nds_write_b128 v{vUW}, v[16:19] offset:{URS}")
    else: E(f"""
    global_load_dwordx4 v[12:15], v{vUL}, {sr(pWs,2)} sc1
    global_load_dwordx4 v[16:19], v{vUL}, {sr(pWs,2)} offset:2048 sc1
    s_waitcnt vmcnt(0)
    s_setprio {OPT['prio']}
    ds_write_b128 v{vUW}, v[12:15] offset:512
    ds_write_b128 v{vUW}, v[16:19]
    """)
    lds_arrive(vCA, vOne)
    lds_wait(vCA, vTm, 8 if late else 4)
    stamp("h")
    vY = 64
    vF = [96, 192]
    def creads(r):
        f = vF[r & 1]; o = []
        for gmm in range(8):
            o.append(f"ds_read_b64 {vr(f+4*gmm,2)}, v{vAA} offset:{512*gmm+64*r}")
            o.append(f"ds_read_b64 {vr(f+4*gmm+2,2)}, v{vAA} offset:{512*gmm+64*r+8}")
            o.append(f"ds_read_b128 {vr(f+32+4*gmm,4)}, v{vBA} offset:{3584-512*gmm+64*r}")
        return o
    E(creads(0))
    E(f"s_setprio {OPT.get('prio3', OPT['prio'])}")
    for r in range(4):
        f = vF[r & 1]
        nxt = creads(r + 1) if r < 3 else []
        if r == 2 and OPT["wopf"]:
            E(f"s_bfm_b64 exec, {4<<LOH}, 0\nglobal_load_dword v20, v{vWoP}, {sr(pWo,2)}\ns_mov_b64 exec, -1")
        E("s_waitcnt lgkmcnt(0)")
        seen = set()
        for gmm in range(8):
            for dl in range(8 - gmm):
                tau = gmm + dl
                c = "0" if (r == 0 and tau not in seen) else vr(vY + 4 * tau, 4)
                seen.add(tau)
                if not OPT.get("noconv"): E(f"v_mfma_f32_16x16x32_bf16 {vr(vY+4*tau,4)}, {vr(f+4*gmm,4)}, {vr(f+32+4*dl,4)}, {c}")
                if nxt: E(nxt.pop(0))
    E(f"s_setprio {OPT['prio']}")
    l1 = newlab("c1"); l2 = newlab("c2")
    E(f"s_nop 5\ns_cmp_eq_u32 s{sMH}, 0\ns_cbranch_scc0 {l1}")
    def conv_fin(send, keep):
        for j in range(4):
            E(f"ds_write_b128 v{vCW}, {vr(send+4*j,4)} offset:{1024*j}")
        lds_arrive(vCP, vOne)
        lds_wait(vCP, vTm, 2 + psync)
        for j in range(4):
            E(f"ds_read_b128 {vr(96+4*j,4)}, v{vCR} offset:{1024*j}")
        E("s_waitcnt lgkmcnt(0)")
        for j in range(16):
            E(f"v_add_f32 v{96+j}, v{keep+j}, v{96+j}")
    conv_fin(vY + 16, vY)
    E(f"s_branch {l2}\n{l1}:")
    conv_fin(vY, vY + 16)
    E(f"{l2}:")
    for j in range(4):
        E(f"v_cvt_pk_bf16_f32 v{112+2*j}, v{96+4*j}, v{97+4*j}\nv_cvt_pk_bf16_f32 v{113+2*j}, v{98+4*j}, v{99+4*j}")
        E(f"global_store_dwordx2 v{vAT}, {vr(112+2*j,2)}, {sr(sAT,2)} sc1")
        if j < 3: E(f"s_add_u32 s{sAT}, s{sAT}, {8*32768}\ns_addc_u32 s{sAT+1}, s{sAT+1}, 0")
    E("s_waitcnt vmcnt(0)")
    put_flag(vF3, vOne)
    stamp("h")
    vWo = 128
    sO = t0 + 2
    WD = OPT["wod"]
    for hd in range(0 if OPT.get("nowo") else 32 + WD):
        if hd < 32:
            if hd % 4 == 0: E(f"s_add_u32 m0, s{sWst}, {(hd%WSL)*1024}")
            E(f"s_mov_b32 s{sO}, {hd*16384-(hd%4)*1024}")
            E(f"buffer_load_dwordx4 v{vWoG}, {sr(SRDW,4)}, s{sO} offen offset:{(hd%4)*1024} lds")
        r = hd - WD
        if r >= 0:
            E(f"s_waitcnt vmcnt({min(WD, 31-r)}) lgkmcnt(8)")
            E(f"ds_read_b64_tr_b16 {vr(vWo+4*r,2)}, v{vWoL} offset:{1024*(r%WSL)}")
            E(f"ds_read_b64_tr_b16 {vr(vWo+4*r+2,2)}, v{vWoL} offset:{1024*(r%WSL)+512}")
    E("s_waitcnt lgkmcnt(0)")
    stamp("h")
    if OPT["clo"] & 1:
        E(f"s_bfm_b64 exec, 32, 0\nglobal_store_dword v{vClO}, v{vOne}, {sr(pWs,2)} sc1\ns_mov_b64 exec, -1")
    if OPT["clo"] & 2:
        E(f"s_bfm_b64 exec, 32, 0\nglobal_store_dword v{vOut}, v{vOne}, {sr(pOut,2)} sc1\ns_mov_b64 exec, -1")
    poll_global(vF3P, pFL, vTm)
    for r in range(16):
        E(f"global_load_short_d16_hi v{vA+r}, v{vAL}, {sr(pWs,2)} offset:{(8*(r>>2)+(r&3))*64} sc1")
    E("s_waitcnt vmcnt(0)")
    stamp("h")
    E("s_barrier")
    for r in range(16):
        E(f"v_mul_f32 v{vA+r}, v{vg}, v{vA+r}")
    E("s_barrier")
    stamp("h")
    vB = 64
    def ord_(hd): return f"ds_read_b128 {vr(vB+4*(hd%8),4)}, v{vOL} offset:{1024*hd}"
    E("s_barrier")
    stamp("h")
    for j in range(8): E(ord_(j))
    for hd in range(32):
        out = min(hd + 4, 31) - hd if hd >= 4 else 7 - hd
        E(f"s_waitcnt lgkmcnt({out if hd < 4 else min(3, 31-hd)})")
        E(f"v_mfma_f32_32x32x16_bf16 {vr(vAcc,16)}, {vr(vWo+4*hd,4)}, {vr(vB+4*(hd%8),4)}, {'0' if hd == 0 else vr(vAcc,16)}")
        nx = hd + 4
        if 8 <= nx < 32:
            if nx % 8 == 0: E("s_barrier")
            E(ord_(nx))
    E("s_nop 11")
    for r in range(16):
        E(f"v_fma_f32 v{vAcc+r}, v{vAcc+r}, v{vomg}, v{vA+r}")
    for j in range(8):
        E(f"v_cvt_pk_bf16_f32 v{vB+j}, v{vAcc+2*j}, v{vAcc+2*j+1}")
    E("s_nop 1")
    for a in (0, 1, 4, 5):
        E(f"v_permlane32_swap_b32 v{vB+a}, v{vB+2+a}")
    fl = ["", "sc1", "nt", "sc0 sc1"][OPT["outsc"]]
    E(f"global_store_dwordx4 v{vOut}, {vr(vB,4)}, {sr(pOut,2)} {fl}\nglobal_store_dwordx4 v{vOut}, {vr(vB+4,4)}, {sr(pOut,2)} offset:32 {fl}")
    if STAMP:
        E("s_waitcnt vmcnt(0)")
    stamp("h")
    stamp_flush("h"); spin_end("h")
    E("s_endpgm")

hdr = open(f"cdna_kernels/{NAME}.s.ref").read().split("; Override launch")[0]
prologue(); main_wave()
if OPT["lay"]: helper_wave()
E("L_end:\ns_endpgm")
out = hdr + f"""; @launch grid=(256,1,1) block=(512,1,1) lds={LDS_BYTES}
.amdgcn_target "amdgcn-amd-amdhsa--gfx950"
.text
.globl {NAME}_kernel
.p2align 8
.type {NAME}_kernel,@function
{NAME}_kernel:
""" + "\n".join(L) + f"""
.section .rodata,"a"
.p2align 6
.amdhsa_kernel {NAME}_kernel
  .amdhsa_next_free_vgpr 256
  .amdhsa_next_free_sgpr 102
  .amdhsa_accum_offset 256
  .amdhsa_group_segment_fixed_size 0
  .amdhsa_kernarg_size 128
  .amdhsa_user_sgpr_count 2
  .amdhsa_user_sgpr_kernarg_segment_ptr 1
  .amdhsa_system_sgpr_workgroup_id_x 1
.end_amdhsa_kernel
"""
open(sys.argv[1], "w").write(out)
```

```python
import sys, math, struct

NAME = "gated_mix__ssm_conv_s4__mha_block__prompt"
OPT = dict(stamp=0, rot=5, fs=256, spin=200000, prio=2, outsc=0, prio3=0, pf=1, tlb=1, wod=4, wopf=1, prioq=0, lq=7, epc=16, ackn=22,
           d1=3, d1w=4, kw=7, clo=1, rdyw=3, xm=2, fm=1, bp=2, hop=1, ep=1, pd=1, psl=3, hs=0, e1=1, q2=1, hsp=2)
for a in sys.argv[2:]:
    k, v = a.split("=")
    OPT[k] = int(v)
STAMP = OPT["stamp"]
FS = OPT["fs"]
FSH = int(math.log2(FS))

L = []
def E(s):
    if isinstance(s, list): s = "\n".join(s)
    for x in s.split("\n"):
        x = x.strip()
        if x:
            L.append(("" if x.endswith(":") else "    ") + x)
def fbits(x): return "0x%08x" % struct.unpack("<I", struct.pack("<f", x))[0]
def vr(a, n): return f"v[{a}:{a+n-1}]"
def sr(a, n): return f"s[{a}:{a+n-1}]"

WS_KV = 0
WS_OF = 4 << 20
WS_AT = 6 << 20
WS_FL = 8 << 20
WS_UT = 10 << 20
WS_ST = 16 << 20
F1, F2 = 0, 256
F3, F4 = 512, 544
KG = 0; KGS = 8704
KCP = 4160
UR = KG + 4 * KGS; URS = 4576
GP = UR + 2 * URS
GW = GP + 1024
CNT = GW + 2048
RING = CNT + 64
SLOT = 24576; WPART = 6144; NS = 3
WQ = RING + NS * SLOT
LDS_BYTES = WQ + 32768
EXCH = RING; RED = WQ; REDS = 4608
CRED = RING; WST = RING + 16384; WSL = 12; OFL = RING
assert RING % 256 == 0 and WST + 4 * WSL * 1024 <= WQ and LDS_BYTES <= 163840
sW, sHP, sRB, sCH, sROT = 3, 4, 5, 6, 7
SRDX, SRDW = 8, 12
pX, pAre, pAim, pBre, pBim, pCre, pCim, pLdt = 16, 18, 20, 22, 24, 26, 28, 30
pDsk, pW, pWo, pGw, pOut, pDbg, pWs = 32, 36, 38, 40, 42, 44, 46
pFL = 34
sT = 48
sSPIN = 62
sST = 64

nstamp = {"m": 0, "h": 0}
SPM, SPH = OPT.get("spm", -1), OPT.get("sph", -1)
def spin_end(role):
    if (SPM if role == "m" else SPH) < 0: return
    l = newlab("sp")
    if OPT.get("sel"):
        E(f"""
        s_lshl3_add_u32 s98, s2, s{sW}
        s_lshl_b32 s98, s98, 7
        s_add_u32 s98, s98, {40 << 20}
        v_mov_b32 v3, s98
        v_mov_b32 v4, 0x12345678
        global_load_dword v5, v3, {sr(pWs,2)} sc1
        s_waitcnt vmcnt(0)
        global_store_dword v3, v4, {sr(pWs,2)} sc1
        v_readfirstlane_b32 s98, v5
        s_waitcnt vmcnt(0)
        s_cmp_eq_u32 s98, 0x12345678
        s_cbranch_scc{OPT["sel"]-1} L_end
        """)
    E(f"{l}:\ns_memrealtime s[98:99]\ns_waitcnt lgkmcnt(0)\ns_sub_u32 s98, s98, s96\ns_cmp_lt_i32 s98, 4000\ns_cbranch_scc1 {l}")
def stamp(role):
    if SPM >= 0 or SPH >= 0:
        i = nstamp[role]; nstamp[role] += 1
        if i == (SPM if role == "m" else SPH):
            if OPT.get("amp"): E(f"s_memrealtime s[98:99]\ns_waitcnt lgkmcnt(0)\ns_sub_u32 s98, s98, s96\ns_mul_i32 s98, s98, {OPT['amp']}\ns_sub_u32 s98, s98, {OPT.get('sub',0)*100}\ns_add_u32 s96, s96, s98")
            else: E("s_memrealtime s[96:97]\ns_waitcnt lgkmcnt(0)")
        return
    if not STAMP or nstamp[role] >= 14: return
    i = nstamp[role]; nstamp[role] += 1
    E(f"s_memrealtime {sr(sST+2*i,2)}\ns_waitcnt lgkmcnt(0)")
def stamp_flush(role):
    if not STAMP: return
    E(f"s_lshl_b32 s{sT}, s2, 3\ns_add_u32 s{sT}, s{sT}, s{sW}\ns_lshl_b32 s{sT}, s{sT}, 6\ns_add_u32 s{sT}, s{sT}, {WS_ST}\nv_mov_b32 v2, s{sT}")
    for i in range(nstamp[role]):
        E(f"v_mov_b32 v3, s{sST+2*i}\nglobal_store_dword v2, v3, {sr(pWs,2)} offset:{4*i}")
    E(f"s_getreg_b32 s{sT}, hwreg(HW_REG_XCC_ID)\nv_mov_b32 v3, s{sT}\nglobal_store_dword v2, v3, {sr(pWs,2)} offset:60")

lab = [0]
def newlab(p):
    lab[0] += 1
    return f"L_{p}_{lab[0]}"

nhop = [0]
def hop():
    if not OPT["hop"]: return []
    nhop[0] += 1
    return [f"L_hop{nhop[0]-1}:", f"s_cbranch_execz L_hop{nhop[0]}"]

def poll_global(vaddr, base, vtmp):
    l = newlab("poll"); d = newlab("polld")
    E(f"""
    s_mov_b32 s{sSPIN}, {OPT['spin']}
    {l}:
    global_load_dword v{vtmp}, v{vaddr}, {sr(base,2)} sc1
    s_sub_u32 s{sSPIN}, s{sSPIN}, 1
    s_cbranch_scc1 {d}
    s_waitcnt vmcnt(0)
    v_cmp_ne_u32 vcc, 0, v{vtmp}
    s_nop 1
    s_cmp_eq_u64 vcc, -1
    s_cbranch_scc0 {l}
    {d}:
    s_waitcnt vmcnt(0)
    """)
def poll_ctr(vaddr, vtmp, test, depth=1, first=False):
    l = newlab("pc"); d = newlab("pcd"); c = newlab("pcc")
    at = lambda r: [f"v_mov_b32 v{r}, 0", f"global_atomic_add v{r}, v{vaddr}, v{r}, {sr(pFL,2)} sc0 sc1"]
    E(f"s_mov_b32 s{sSPIN}, {OPT['spin']}\ns_mov_b64 exec, 1")
    if depth == 1:
        if first: E(f"s_branch {c}")
        E(f"{l}:"); E(at(vtmp))
        E(f"{c}:\ns_sub_u32 s{sSPIN}, s{sSPIN}, 1\ns_cbranch_scc1 {d}\ns_waitcnt vmcnt(0)\nv_readfirstlane_b32 s{sSPIN+1}, v{vtmp}\ns_nop 0")
        E(test(sSPIN + 1)); E(f"s_cbranch_scc0 {l}")
    else:
        for i in range(1 if first else 0, depth - 1):
            if i: E(f"s_sleep {OPT['psl']}")
            E(at(vtmp + i))
        E(f"{l}:\ns_sub_u32 s{sSPIN}, s{sSPIN}, 1\ns_cbranch_scc1 {d}")
        for i in range(depth):
            E(at(vtmp + (i - 1) % depth))
            E(f"s_waitcnt vmcnt({depth-1})\nv_readfirstlane_b32 s{sSPIN+1}, v{vtmp+i}\ns_nop 0")
            E(test(sSPIN + 1))
            E(f"s_cbranch_scc1 {d}" if i < depth - 1 else f"s_cbranch_scc0 {l}")
    E(f"{d}:\ns_mov_b64 exec, -1")
def add_ctr(vaddr, vval, lanes):
    E(f"s_bfm_b64 exec, {lanes}, 0\nglobal_atomic_add v{vaddr}, v{vval}, {sr(pFL,2)} sc1\ns_mov_b64 exec, -1")
def put_flag(vaddr, vone, base=None):
    E(f"""
    s_mov_b64 exec, 1
    global_store_dword v{vaddr}, v{vone}, {sr(pFL if base is None else base,2)} sc1
    s_mov_b64 exec, -1
    """)
def lds_arrive(vaddr, vone):
    E(f"""
    s_mov_b64 exec, 1
    ds_add_u32 v{vaddr}, v{vone}
    s_mov_b64 exec, -1
    """)
def lds_wait(vaddr, vtmp, n):
    l = newlab("lw"); d = newlab("lwd")
    E(f"""
    s_mov_b32 s{sSPIN}, {OPT['spin']*8}
    {l}:
    ds_read_b32 v{vtmp}, v{vaddr}
    s_sub_u32 s{sSPIN}, s{sSPIN}, 1
    s_cbranch_scc1 {d}
    s_waitcnt lgkmcnt(0)
    v_readfirstlane_b32 s{sSPIN+1}, v{vtmp}
    s_nop 1
    s_cmp_ge_u32 s{sSPIN+1}, {n}
    s_cbranch_scc0 {l}
    {d}:
    s_waitcnt lgkmcnt(0)
    """)

def helper_entry():
    sH, sC, sMH, sD, sLd, sDs, t0 = sT, sT + 1, sT + 2, sT + 5, sT + 6, sT + 7, sT + 8
    E(f"L_h0:\ns_setprio {OPT['prio']}\ns_sub_u32 s{sH}, s{sW}, 4")
    if OPT["pf"]:
        E(f"""
        s_getpc_b64 s[8:9]
        L_pc:
        s_andn2_b32 s10, s2, 7
        s_lshl1_add_u32 s10, s{sH}, s10
        v_and_b32 v2, 1, v1
        v_add_lshl_u32 v2, v2, s10, 7
        v_min_u32 v2, L_end-L_pc, v2
        v_mov_b32 v3, 0
        v_lshl_add_u64 v[2:3], v[2:3], 0, s[8:9]
        global_load_dword v167, v[2:3], off
        """)
    E(f"""
    s_lshl4_add_u32 s{sCH}, s{sHP}, s{sRB}
    s_lshl2_add_u32 s{t0}, s{sCH}, s{sH}
    s_lshl_b32 s{t0}, s{t0}, 7
    v_lshl_add_u32 v2, v1, 1, s{t0}
    s_lshl_b32 s{t0+1}, s{sCH}, 2
    s_waitcnt lgkmcnt(0)
    s_load_dword s{sLd}, {sr(pLdt,2)}, s{t0+1}
    s_load_dword s{sDs}, {sr(pDsk,2)}, s{t0+1}
    """)
    for j, p in enumerate((pAre, pAim, pBre, pBim, pCre, pCim)):
        E(f"global_load_ushort v{4+j}, v2, {sr(p,2)}")
    E(f"s_and_b32 s{sMH}, s{sH}, 1\ns_lshl_b32 s{sCH}, s{sCH}, 1")

def prologue():
    if OPT.get("amp"): E("s_memrealtime s[96:97]")
    if STAMP:
        E(f"s_memrealtime {sr(sST,2)}"); nstamp["m"] = nstamp["h"] = 1
    E(f"""
    s_cmpk_ge_u32 s2, 0x100
    s_cbranch_scc1 L_end
    s_load_dwordx16 s[16:31], s[0:1], 0
    s_load_dwordx16 s[32:47], s[0:1], 64
    """)
    E(f"""
    v_lshrrev_b32 v2, 6, v0
    v_and_b32 v1, 63, v0
    v_readfirstlane_b32 s{sW}, v2
    """)
    if OPT["xm"] == 0: E(f"""
    s_bfe_u32 s{sHP}, s2, 0x30003
    s_and_b32 s{sT}, s2, 1
    s_lshl3_add_u32 s{sHP}, s{sT}, s{sHP}
    s_lshr_b32 s{sRB}, s2, 6
    s_and_b32 s{sT}, s2, 6
    s_lshl1_add_u32 s{sRB}, s{sT}, s{sRB}
    """)
    elif OPT["xm"] == 1: E(f"""
    s_bfe_u32 s{sHP}, s2, 0x10003
    s_and_b32 s{sT}, s2, 7
    s_lshl1_add_u32 s{sHP}, s{sT}, s{sHP}
    s_lshr_b32 s{sRB}, s2, 4
    """)
    else: E(f"""
    s_bfe_u32 s{sHP}, s2, 0x20003
    s_and_b32 s{sT}, s2, 3
    s_lshl2_add_u32 s{sHP}, s{sT}, s{sHP}
    s_lshr_b32 s{sRB}, s2, 5
    s_and_b32 s{sT}, s2, 4
    s_lshl1_add_u32 s{sRB}, s{sT}, s{sRB}
    """)
    if OPT["rot"] == 0:
        E(f"s_mov_b32 s{sROT}, 0")
    elif OPT["rot"] == 1:
        E(f"s_xor_b32 s{sROT}, s{sHP}, s{sRB}\ns_and_b32 s{sROT}, s{sROT}, 1\ns_lshl_b32 s{sROT}, s{sROT}, 2")
    elif OPT["rot"] == 2:
        E(f"s_lshl1_add_u32 s{sROT}, s{sRB}, s{sHP}\ns_and_b32 s{sROT}, s{sROT}, 7")
    elif OPT["rot"] == 3:
        E(f"s_lshl1_add_u32 s{sROT}, s{sRB}, s{sHP}\ns_and_b32 s{sROT}, s{sROT}, 6")
    elif OPT["rot"] == 4:
        E(f"s_lshl2_add_u32 s{sROT}, s{sHP}, s{sRB}\ns_and_b32 s{sROT}, s{sROT}, 7")
    elif OPT["rot"] == 5:
        E(f"s_add_u32 s{sROT}, s{sHP}, s{sRB}\ns_lshl_b32 s{sROT}, s{sROT}, 1\ns_and_b32 s{sROT}, s{sROT}, 6")
    elif OPT["rot"] == 6:
        E(f"s_lshl1_add_u32 s{sROT}, s{sHP}, s{sRB}\ns_and_b32 s{sROT}, s{sROT}, 7")
    elif OPT["rot"] == 7:
        E(f"s_add_u32 s{sROT}, s{sHP}, s{sRB}\ns_lshr_b32 s{sT}, s2, 2\ns_xor_b32 s{sT}, s{sT}, s2\ns_and_b32 s{sT}, s{sT}, 1\ns_lshl1_add_u32 s{sROT}, s{sROT}, s{sT}\ns_and_b32 s{sROT}, s{sROT}, 7")
    elif OPT["rot"] == 8:
        assert OPT["xm"] == 2
        E(f"s_add_u32 s{sROT}, s{sHP}, s{sRB}\ns_lshr_b32 s{sT}, s{sT}, 1\ns_add_u32 s{sT}, s{sT}, s2\ns_lshl2_add_u32 s{sROT}, s{sROT}, s{sT}\ns_and_b32 s{sROT}, s{sROT}, 7")
    else:
        E(f"s_and_b32 s{sT}, s2, 4\ns_lshl1_add_u32 s{sROT}, s2, s{sT}\ns_and_b32 s{sROT}, s{sROT}, 7")
    E(f"s_cmp_ge_u32 s{sW}, 4\ns_cbranch_scc1 L_h0")

def main_wave():
    vXD, vWD, vXA, vWA, vQA = 4, 8, 10, 14, 16
    vFB = 24
    aK, aV, aQ = 48, 64, 80
    vP = 96
    vXF = 128
    sXO, sWO, sM0, sX, sZ, sQS = 92, 93, 94, 95, 100, 101
    sKVb, sKV, sJ, sCnt, sMask = sT + 2, sT + 4, sT + 6, sT + 7, sT + 8
    ta, tb, tc = sT + 10, sT + 11, sT + 12
    sExp, sBfe = 24, 25
    vO, vKV = 128, 192
    (vIDX, vKA, vVA, vSA, vSB, vSV, vEW, vER0, vER1, vERV, vRW, vRWl, vRR, vRRl, vOA, vOB) = range(112, 128)
    vF2, vOne, vF2P, vOD, vOnes, vZer = range(17, 23); vOD2 = 3
    vQ = 96; SA, SB = 24, 40; vT = 56
    E(f"""
    s_lshl2_add_u32 s{sT}, s{sRB}, s{sW}
    s_lshl_b32 s{sT}, s{sT}, 15
    v_lshrrev_b32 v2, 3, v1
    v_lshl_add_u32 v2, v2, 10, s{sT}
    v_lshrrev_b32 v3, 4, v1
    v_xor_b32 v3, v3, v1
    v_and_b32 v3, 7, v3
    v_lshl_add_u32 v{vXD}, v3, 4, v2
    v_xor_b32 v{vXD+1}, 64, v{vXD}
    s_movk_i32 s{sT}, 7168
    v_add_u32 v{vXD+1}, s{sT}, v{vXD+1}
    s_movk_i32 s{sT}, 14336
    v_add_u32 v{vXD+2}, s{sT}, v{vXD}
    v_add_u32 v{vXD+3}, s{sT}, v{vXD+1}
    v_lshrrev_b32 v2, 2, v0
    v_mul_u32_u24 v2, 3072, v2
    v_and_b32 v3, 3, v1
    s_lshl2_add_u32 s{sT}, s{sHP}, 64
    v_add_u32 v3, s{sT}, v3
    v_lshl_add_u32 v{vWD}, v3, 4, v2
    s_mul_i32 s{sM0}, s{sW}, {WPART}
    s_mov_b32 s{SRDX+2}, 0x200000
    s_mov_b32 s{SRDX+3}, 0x00020000
    s_mov_b64 {sr(SRDW+2,2)}, {sr(SRDX+2,2)}
    """)
    def dma(i, first=False):
        slot = i % NS
        g = []
        for seg in range(2):
            g.append([f"buffer_load_dwordx4 v{vWD}, {sr(SRDW,4)}, s{sWO} offen offset:{seg*1024} {'nt' if OPT.get('nt',0) & 1 and i < OPT.get('nts',8) else ''} lds"])
        for j in range(4):
            g.append([f"buffer_load_dwordx4 v{vXD+j}, {sr(SRDX,4)}, s{sXO} offen offset:{j*1024} {'nt' if OPT.get('nt',0) & 2 and i < OPT.get('nts',8) else ''} lds"])
        st = sROT if i == 0 else sT
        pre = [] if i == 0 else [f"s_add_u32 s{sT}, s{sROT}, {i}", f"s_and_b32 s{sT}, s{sT}, 7"]
        pre += [f"s_add_u32 m0, s{sM0}, {RING+slot*SLOT+4096}", f"s_mul_i32 s{sWO}, s{st}, 196608"]
        if first:
            pre += ["s_waitcnt lgkmcnt(0)", f"s_mov_b64 {sr(SRDW,2)}, {sr(pW,2)}", f"s_mov_b64 {sr(SRDX,2)}, {sr(pX,2)}"]
        g[0] = pre + g[0]
        g[2] = [f"s_add_u32 m0, s{sM0}, {RING+slot*SLOT}", f"s_lshl_b32 s{sXO}, s{st}, 7"] + g[2]
        return g
    for g in dma(0, True): E(g)
    E(f"""
    s_and_b32 s{sX}, s{sW}, 1
    s_lshl_b32 s{sT}, s{sX}, 10
    s_add_u32 m0, s{sT}, {GW}
    v_lshlrev_b32 v{vKA}, 4, v1
    global_load_lds_dwordx4 v{vKA}, {sr(pGw,2)}
    """)
    held = dma(1)
    for g in held[:OPT["d1"]]: E(g)
    held = held[OPT["d1"]:]
    E("s_branch L_m1")
    helper_entry(); helper_wave()
    E("L_m1:")
    stamp("m")
    if OPT["tlb"]:
        E(f"""
        s_mov_b32 s{ta}, {WS_FL + 0x100000}
        s_load_dword s18, {sr(pWs,2)}, s{ta}
        s_load_dword s19, {sr(pDbg,2)}, 128
        s_load_dword s20, {sr(pOut,2)}, 0
        s_load_dword s21, {sr(pWo,2)}, 0
        """)
    E(f"""
    s_add_u32 s{pFL}, s{pWs}, {WS_FL}
    s_addc_u32 s{pFL+1}, s{pWs+1}, 0
    s_add_u32 s{ta}, s{sM0}, {RING}
    v_and_b32 v2, 31, v1
    v_lshl_add_u32 v2, v2, 7, s{ta}
    v_bfe_u32 v3, v1, 1, 3
    v_lshrrev_b32 v{vXA+1}, 5, v1
    v_xor_b32 v3, v3, v{vXA+1}
    v_lshl_add_u32 v{vXA}, v3, 4, v2
    v_xor_b32 v{vXA+1}, 32, v{vXA}
    v_xor_b32 v{vXA+2}, 64, v{vXA}
    v_xor_b32 v{vXA+3}, 0x60, v{vXA}
    v_lshrrev_b32 v2, 5, v1
    v_lshlrev_b32 v2, 3, v2
    v_bfe_u32 v3, v1, 2, 2
    v_add_u32 v2, v2, v3
    v_lshlrev_b32 v2, 6, v2
    v_and_b32 v3, 3, v1
    v_lshl_add_u32 v2, v3, 3, v2
    v_bfe_u32 v3, v1, 4, 1
    v_lshl_add_u32 v2, v3, 5, v2
    v_add_u32 v{vWA}, {RING+4096}, v2
    v_add_u32 v{vWA+1}, {RING+4096+2*SLOT}, v2
    v_add_u32 v{vQA}, {WQ}, v2
    """)
    E(f"""
    s_lshr_b32 s{sZ}, s{sW}, 1
    s_mov_b32 s{sQS}, {fbits(0.25 * math.log2(math.e))}
    s_lshl2_add_u32 s{ta}, s{sRB}, s{sW}
    s_lshl_b32 s{ta}, s{ta}, 11
    s_lshl_b32 s{tb}, s{sHP}, 18
    s_add_u32 s{ta}, s{ta}, s{tb}
    v_add_u32 v{vSA}, s{ta}, v{vKA}
    v_add_u32 v{vSB}, 0x20000, v{vSA}
    v_and_b32 v{vVA}, 15, v1
    v_lshrrev_b32 v2, 5, v1
    v_lshl_add_u32 v{vVA}, v2, 4, v{vVA}
    v_lshlrev_b32 v{vVA}, 4, v{vVA}
    v_bfe_u32 v2, v1, 4, 1
    v_lshlrev_b32 v2, 17, v2
    v_add3_u32 v{vSV}, v2, v{vVA}, s{ta}
    s_add_u32 s{tb}, s{sM0}, {EXCH}
    v_add_u32 v{vEW}, s{tb}, v{vKA}
    s_lshl_b32 s{ta}, s{sX}, 10
    s_add_u32 s{ta}, s{ta}, {EXCH}
    s_mul_i32 s{tb}, s{sZ}, 12288
    s_add_u32 s{tc}, s{ta}, s{tb}
    v_add_u32 v{vER0}, s{tc}, v{vKA}
    s_sub_u32 s{tc}, s{ta}, s{tb}
    s_add_u32 s{tc}, s{tc}, 12288
    v_add_u32 v{vER1}, s{tc}, v{vKA}
    s_lshl_b32 s{ta}, s{sX}, 8
    s_add_u32 s{tc}, s{ta}, s{tb}
    s_add_u32 s{tc}, s{tc}, {EXCH}
    v_add_u32 v{vERV}, s{tc}, v{vKA}
    s_lshl1_add_u32 s{ta}, s{sHP}, s{sX}
    s_lshl_b32 s{tb}, s{ta}, 17
    s_lshl_b32 s{tc}, s{sZ}, 12
    s_add_u32 s{tb}, s{tb}, s{tc}
    s_add_u32 s{sKVb}, s{pWs}, s{tb}
    s_addc_u32 s{sKVb+1}, s{pWs+1}, 0
    s_lshl_b32 s{sJ}, s{sRB}, 13
    s_lshl1_add_u32 s{tb}, s{sRB}, s{sZ}
    s_lshl_b32 s{tb}, s{tb}, 6
    s_add_u32 s{tb}, s{tb}, s{ta}
    s_lshl_b32 s{tb}, s{tb}, 10
    s_add_u32 s{tb}, s{tb}, {WS_OF}
    v_add_u32 v{vOA}, s{tb}, v{vKA}
    v_add_u32 v{vOB}, 0x8000, v{vOA}
    s_mul_i32 s{ta}, s{sW}, {REDS}
    s_add_u32 s{ta}, s{ta}, {RED}
    v_add_u32 v{vRW}, s{ta}, v{vKA}
    v_lshl_add_u32 v{vRWl}, v1, 2, s{ta}
    s_xor_b32 s{ta}, s{sW}, 2
    s_mul_i32 s{ta}, s{ta}, {REDS}
    s_add_u32 s{ta}, s{ta}, {RED}
    v_add_u32 v{vRR}, s{ta}, v{vKA}
    v_lshl_add_u32 v{vRRl}, v1, 2, s{ta}
    s_lshl4_add_u32 s{ta}, s{sRB}, s{sHP}
    s_add_u32 s{ta}, s{ta}, {F2}
    s_lshl_b32 s{ta}, s{ta}, {FSH}
    v_mov_b32 v{vF2P}, s{ta}
    v_mov_b32 v{vOne}, 1
    s_lshr_b32 s{ta}, s{sHP}, 2
    s_cmp_eq_u32 s{ta}, s{sW}
    s_cselect_b32 s{sExp}, 3, 4
    s_lshl3_add_u32 s{sBfe}, s{sW}, 0x80000
    {f"s_lshr_b32 s{tb}, s{sHP}, 2" if OPT["fm"] else f"s_and_b32 s{tb}, s{sHP}, 3"}
    s_lshl2_add_u32 s{ta}, s{sRB}, s{tb}
    s_lshl2_add_u32 s{ta}, s{ta}, s{sW}
    s_lshl_b32 s{ta}, s{ta}, 13
    s_add_u32 s{ta}, s{ta}, {WS_OF}
    v_add_u32 v{vOD}, s{ta}, v{vKA}
    v_mov_b32 v{vIDX}, 0xdddddddd
    v_and_b32 v2, 27, v1
    v_cmp_eq_u32 vcc, 16, v2
    v_mov_b32 v2, {CNT+32}
    v_mov_b32 v{vZer}, {CNT+16}
    s_mov_b32 s{sMask}, 0x0000ffff
    s_mov_b32 s{sMask+1}, 0x0000ffff
    v_cndmask_b32 v{vOnes}, v{vZer}, v2, vcc
    s_mov_b32 s{sCnt}, 8
    v_add_u32 v{vOD2}, 4096, v{vOD}
    """)
    def kvaddr():
        return [f"s_add_u32 s{sJ}, s{sJ}, 0x2000", f"s_and_b32 s{sJ}, s{sJ}, 0x1e000",
                f"s_add_u32 s{sKV}, s{sKVb}, s{sJ}", f"s_addc_u32 s{sKV+1}, s{sKVb+1}, 0"]
    E(kvaddr())
    def reads(n):
        i, s = n >> 2, n & 3
        slot = i % NS
        a = vWA + (slot >> 1); so = (slot & 1) * SLOT + s * WPART
        f = vFB + 8 * (n % 3)
        o = [f"ds_read_b128 {vr(vXF+4*n,4)}, v{vXA+s} offset:{slot*SLOT}"]
        for c in range(2):
            o.append(f"ds_read_b64_tr_b16 {vr(f+4*c,2)}, v{a} offset:{so+1024*c}")
            o.append(f"ds_read_b64_tr_b16 {vr(f+2+4*c,2)}, v{a} offset:{so+1024*c+256}")
        return o
    def dmaq(h):
        return [[f"s_add_u32 s{sT}, s{sROT}, {i}", f"s_and_b32 s{sT}, s{sT}, 7", f"s_add_u32 m0, s{sXO}, {WQ+4096*i}",
                 f"s_mul_i32 s{sWO}, s{sT}, 196608", f"buffer_load_dwordx4 v{vWD+1}, {sr(SRDW,4)}, s{sWO} offen lds"] for i in range(4*h, 4*h+4)]
    E(f"v_subrev_u32 v{vWD+1}, 1024, v{vWD}")
    if held:
        E(f"s_waitcnt vmcnt({OPT['d1'] + 7 - OPT['d1w']})")
        for g in held: E(g)
    E("s_waitcnt vmcnt(6)")
    if STAMP == 5: stamp("m")
    E("s_barrier")
    stamp("m")
    E(reads(0) + reads(1))
    pend = dma(2)
    E(pend.pop(0)); E(pend.pop(0))
    for n in range(32):
        f = vFB + 8 * (n % 3); x = vXF + 4 * n
        c = (lambda a: "0" if n == 0 else vr(a, 16))
        m = [f"v_mfma_f32_32x32x16_bf16 {vr(aV,16)}, {vr(x,4)}, {vr(f+4,4)}, {c(aV)}",
             f"v_mfma_f32_32x32x16_bf16 {vr(aK,16)}, {vr(f,4)}, {vr(x,4)}, {c(aK)}"]
        r = reads(n + 2) if n + 2 < 32 else []
        E(f"s_waitcnt lgkmcnt({5 if n < 31 else 0})")
        E(m[0])
        if (n + 2) % 4 == 0 and n + 2 < 32:
            b = (n + 2) >> 2
            assert not pend
            E(f"s_waitcnt vmcnt({6 if b < 7 else 4}) lgkmcnt(0)")
            if STAMP == 3: stamp("m")
            E("s_barrier")
            if STAMP == 2: stamp("m")
            if b + 2 <= 7: pend = dma(b + 2)
            else:
                pend = dmaq(b - 6)
                if b == 6: E(f"s_lshl_b32 s{sXO}, s{sW}, 10")
        E(r[:3])
        if pend: E(pend.pop(0))
        E(m[1]); E(r[3:])
        if pend: E(pend.pop(0))
    stamp("m")
    ep = [f"v_cvt_pk_bf16_f32 v{vP+j}, v{aK+2*j}, v{aK+1+2*j}" for j in range(4)]
    ep += [f"global_store_dwordx4 v{vSA}, {vr(vP,4)}, {sr(pWs,2)} sc1"]
    ep += [f"v_cvt_pk_bf16_f32 v{vP+j}, v{aK+2*j}, v{aK+1+2*j}" for j in range(4, 8)]
    ep += [f"global_store_dwordx4 v{vSB}, {vr(vP+4,4)}, {sr(pWs,2)} sc1"]
    ep += [f"v_permlane32_swap_b32 v{vP+8+a}, v{vP+10+a}" for a in (0, 1)]
    ep += [f"global_store_dwordx4 v{vSV}, {vr(vP+8,4)}, {sr(pWs,2)} offset:1024 sc1"]
    ep += [f"v_permlane32_swap_b32 v{vP+8+a}, v{vP+10+a}" for a in (4, 5)]
    ep += [f"global_store_dwordx4 v{vSV}, {vr(vP+12,4)}, {sr(pWs,2)} offset:1536 sc1"]
    LQ = OPT["lq"]
    qb = [40, 44, 24, 28, 32, 36, 64, 68, 72]
    def qread(n):
        f = qb[n % 9]
        return [f"ds_read_b64_tr_b16 {vr(f,2)}, v{vQA} offset:{1024*n}", f"ds_read_b64_tr_b16 {vr(f+2,2)}, v{vQA} offset:{1024*n+256}"]
    E("s_nop 10")
    for j in range(8):
        E(f"v_cvt_pk_bf16_f32 v{vP+8+j}, v{aV+2*j}, v{aV+1+2*j}")
    cut = OPT["epc"]
    HS = OPT["hs"]
    if HS:
        wr = [f"ds_write_b128 v{vEW}, {vr(vP+4*j,4)} offset:{2048+1024*j}" for j in range(4)]
        ep = [wr.pop(0) if "store" in x else x for x in ep]
        cut = len(ep)
        E(ep)
        E(f"s_waitcnt vmcnt({4 if OPT['q2'] else 0}) lgkmcnt(0)\ns_barrier")
    else:
        E(ep[:cut])
        E(f"s_waitcnt vmcnt({4 + sum('store' in x for x in ep[:cut])})\ns_barrier")
    if STAMP == 4: stamp("m")
    for n in range(LQ): E(qread(n))
    E(ep[cut:])
    late = [f"ds_read_b128 {vr(vO+16*q+8+4*e,4)}, v{vZer}" for q in range(4) for e in range(2)]
    if not HS: late += [f"ds_write_b128 v{vEW}, {vr(vP+4*j,4)} offset:{2048+1024*j}" for j in range(4)]
    late += [f"ds_read_b128 {vr(vKV+12*st+4+4*e,4)}, v{vOnes}" for st in range(4) for e in range(2)]
    nl = 0
    for n in range(32):
        E(f"s_waitcnt lgkmcnt({min(15, 2*min(LQ-1, 31-n) + nl)})")
        E(f"v_mfma_f32_32x32x16_bf16 {vr(aQ,16)}, {vr(qb[n%9],4)}, {vr(vXF+4*n,4)}, {'0' if n == 0 else vr(aQ,16)}")
        if n == OPT["ackn"] and not HS:
            if STAMP == 4: stamp("m")
            E("s_waitcnt vmcnt(0)\ns_barrier")
            if STAMP == 4: stamp("m")
        if n + LQ < 32:
            if n + LQ == 16 and (OPT["q2"] or not HS):
                if STAMP == 4: stamp("m")
                E(f"s_waitcnt vmcnt({0 if HS else 4})\ns_barrier")
                if STAMP == 4: stamp("m")
            E(qread(n + LQ))
        else:
            E(late[:2]); late = late[2:]; nl += 2
        r0 = vXF + 4 * (n - 1)
        for r in range(r0, r0 + 4):
            if n >= 1 and r < vKV and (r - vO) % 16 < 8: E(f"v_mov_b32 v{r}, 0")
    E(late)
    E(f"s_nop {max(0, 11 - len(late))}")
    for o in (0, 1):
        for j in range(8):
            E(f"v_mul_f32 v{aQ+8*o+j}, s{sQS}, v{aQ+8*o+j}")
        for j in range(4):
            E(f"v_cvt_pk_bf16_f32 v{aK+4*o+j}, v{aQ+8*o+2*j}, v{aQ+8*o+1+2*j}")
        E(f"ds_write_b128 v{vEW}, {vr(aK+4*o,4)} offset:{1024*o}")
    if STAMP == 4: stamp("m"); E("s_waitcnt vmcnt(0)"); stamp("m")
    E("s_waitcnt vmcnt(0) lgkmcnt(0)\ns_barrier")
    stamp("m")
    E(f"""
    ds_read_b128 {vr(vQ,4)}, v{vER1}
    ds_read_b128 {vr(vKV,4)}, v{vER0} offset:2048
    ds_read_b128 {vr(vQ+4,4)}, v{vER1} offset:6144
    s_mov_b64 exec, {sr(sMask,2)}
    ds_read_b128 {vr(vKV+4,4)}, v{vERV} offset:4096
    ds_read_b128 {vr(vKV+8,4)}, v{vERV} offset:5120
    ds_read_b128 {vr(vKV+16,4)}, v{vERV} offset:{4096+6144}
    ds_read_b128 {vr(vKV+20,4)}, v{vERV} offset:{5120+6144}
    s_mov_b64 exec, -1
    ds_read_b128 {vr(vQ+8,4)}, v{vER0}
    ds_read_b128 {vr(vQ+12,4)}, v{vER0} offset:6144
    ds_read_b128 {vr(vKV+12,4)}, v{vER0} offset:{2048+6144}
    s_waitcnt lgkmcnt(8)
    v_mfma_f32_32x32x16_bf16 {vr(SA,16)}, {vr(vKV,4)}, {vr(vQ,4)}, 0
    s_nop 10
    s_waitcnt lgkmcnt(0)
    """)
    def kload(st, par):
        return [f"global_load_dwordx4 {vr(vKV+12*st,4)}, v{vKA}, {sr(sKV,2)} offset:{par*2048} sc1"]
    def vload(st, par):
        return [f"s_mov_b64 exec, {sr(sMask,2)}",
                f"global_load_dwordx4 {vr(vKV+12*st+4,4)}, v{vVA}, {sr(sKV,2)} offset:{par*2048+1024} sc1",
                f"global_load_dwordx4 {vr(vKV+12*st+8,4)}, v{vVA}, {sr(sKV,2)} offset:{par*2048+1536} sc1",
                "s_mov_b64 exec, -1"]
    def step(t, q, mode="loop", lo=0, hi=16, extra=None):
        cur, oth = (SA, SB) if q % 2 == 0 else (SB, SA)
        tp, qp = (t, q - 1) if q else ((t - 1) % 4, 3)
        tn, qn = (t, q + 1) if q < 3 else ((t + 1) % 4, 0)
        after2, afterq, after1 = extra or ([], [], [])
        st = (t + 3) % 4; par = (t + 3) & 1
        if mode == "loop":
            if q == 0:
                after2 = vload(st, par); afterq = kload(st, par)
            if q == 1 and par == 1:
                ka = kvaddr(); after2 = ka[:2]; after1 = ka[2:]
            if q == 3:
                after2 = ["s_waitcnt vmcnt(6)"]
                if t == 2:
                    after2 += [f"s_sub_u32 s{sCnt}, s{sCnt}, 1"]; afterq = [f"s_cmp_lg_u32 s{sCnt}, 0"]
        for i in range(lo, hi):
            E(f"v_exp_f32 v{cur+i}, v{cur+i}")
            if i == 1 and not (mode == "first" and q == 0):
                E(f"v_smfmac_f32_32x32x32_bf16 {vr(vO+16*qp,16)}, {vr(vKV+12*tp+8,4)}, {vr(oth+8,8)}, v{vIDX}")
                E(after2)
            if i == 4 and not (mode == "last" and q == 3):
                E(f"v_mfma_f32_32x32x16_bf16 {vr(oth,16)}, {vr(vKV+12*tn,4)}, {vr(vQ+4*qn,4)}, 0")
                E(afterq)
            if i == 10:
                E(f"v_smfmac_f32_32x32x32_bf16 {vr(vO+16*q,16)}, {vr(vKV+12*t+4,4)}, {vr(cur,8)}, v{vIDX}")
                E(after1)
    for q in range(4):
        if q == OPT["bp"] - 1:
            step(0, q, "first", hi=11)
            E("s_barrier")
            stamp("m")
            E(kload(2, 0) + vload(2, 0)[:3] + vload(3, 1)[1:] + kload(3, 1) + kvaddr())
            step(0, q, "first", lo=11)
        else:
            step(0, q, "first")
    E("s_branch L_attn1\n.p2align 3\nL_attn:")
    step(2, 3, lo=11)
    for t in (3, 0, 1, 2):
        if t == 1: E("L_attn1:")
        for q in range(4): step(t, q, hi=(11 if (t, q) == (2, 3) else 16))
    if OPT.get("itst"):
        E(f"s_memtime s[90:91]\ns_mov_b32 m0, s{sCnt}\ns_waitcnt lgkmcnt(0)\nv_writelane_b32 v23, s90, m0")
    E("s_cbranch_scc1 L_attn")
    step(2, 3, lo=11)
    vR = 64
    def sendw(q): return [f"ds_write_b128 v{vRW}, {vr(vO+16*q,4)} offset:{2048*q}", f"ds_write_b128 v{vRW}, {vr(vO+16*q+4,4)} offset:{2048*q+1024}",
                          f"ds_write_b32 v{vRWl}, v{vO+16*q+8} offset:{4096+256*q}"]
    recv = ["s_waitcnt lgkmcnt(0)", "s_barrier",
            f"ds_read_b32 v{vR+16}, v{vRRl} offset:4096", f"ds_read_b128 {vr(vR,4)}, v{vRR}", f"ds_read_b128 {vr(vR+4,4)}, v{vRR} offset:1024",
            f"ds_read_b32 v{vR+17}, v{vRRl} offset:4352", f"ds_read_b128 {vr(vR+8,4)}, v{vRR} offset:2048", f"ds_read_b128 {vr(vR+12,4)}, v{vRR} offset:3072"]
    step(3, 0, "last", extra=(hop(), [], [])); step(3, 1, "last", extra=([], [], hop()))
    w0 = sendw(0)
    step(3, 2, "last", extra=(w0[:1], w0[1:2], w0[2:]))
    step(3, 3, "last", extra=(hop() + sendw(1), [], recv))
    O2, O3 = vO + 32, vO + 48
    E(f"""
    s_waitcnt lgkmcnt(3)
    v_add_f32 v{O2+8}, v{O2+8}, v{vR+16}
    v_smfmac_f32_32x32x32_bf16 {vr(O3,16)}, {vr(vKV+36+8,4)}, {vr(SB+8,8)}, v{vIDX}
    """)
    E(hop())
    stamp("m")
    def fin(o, r, rl, dst, addr):
        if rl is not None: E(f"v_add_f32 v{o+8}, v{o+8}, v{rl}")
        E(f"v_rcp_f32 v{vT}, v{o+8}")
        if r is not None:
            for j in range(8): E(f"v_add_f32 v{o+j}, v{o+j}, v{r+j}")
        else:
            E("s_nop 0")
        for j in range(8): E(f"v_mul_f32 v{o+j}, v{o+j}, v{vT}")
        for j in range(4): E(f"v_cvt_pk_bf16_f32 v{dst+j}, v{o+2*j}, v{o+2*j+1}")
        E(f"global_store_dwordx4 v{addr}, {vr(dst,4)}, {sr(pWs,2)} sc1")
    fin(O2, vR, None, SA, vOA)
    E("s_waitcnt lgkmcnt(0)")
    E(hop())
    fin(O3, vR + 8, vR + 17, SA + 4, vOB)
    if OPT["ep"]: E(f"v_mov_b32 v4, 0\ns_mov_b64 exec, 1\nglobal_atomic_add v4, v{vF2P}, v4, {sr(pFL,2)} sc0 sc1\ns_mov_b64 exec, -1")
    E(hop())
    E(f"""
    s_mov_b32 s{ta}, {fbits(2.0**-30)}
    s_mov_b32 s{tb}, {fbits(2.0**50)}
    v_min_f32 v{vT+6}, v{O2+8}, v{O3+8}
    v_max_f32 v{vT+7}, v{O2+8}, v{O3+8}
    v_cmp_lt_f32 vcc, s{ta}, v{vT+6}
    v_cmp_gt_f32 {sr(tc,2)}, s{tb}, v{vT+7}
    v_pk_mul_f32 {vr(vT+2,2)}, {vr(O2,2)}, 0 op_sel_hi:[1,0]
    s_and_b64 {sr(tc,2)}, {sr(tc,2)}, vcc
    """)
    for j in (2, 4, 6, 16, 18, 20, 22):
        E(f"v_pk_fma_f32 {vr(vT+2,2)}, {vr(O2+j,2)}, 0, {vr(vT+2,2)} op_sel_hi:[1,0,1]")
    E(f"""
    v_cmp_o_f32 vcc, v{vT+2}, v{vT+3}
    s_nop 1
    s_and_b64 vcc, {sr(tc,2)}, vcc
    s_cmp_eq_u64 vcc, -1
    s_cbranch_scc0 L_safe
    s_waitcnt vmcnt({OPT["ep"]})
    L_pub:
    s_barrier
    """)
    stamp("m")
    E(f"s_lshl_b32 s{tb}, s{sW}, 13\ns_add_u32 m0, s{tb}, {OFL}")
    poll_ctr(vF2P, 4, lambda r: [f"s_bfe_u32 s{r}, s{r}, s{sBfe}", f"s_cmp_eq_u32 s{r}, s{sExp}"], OPT["pd"], OPT["ep"])
    for j in range(4):
        E(f"global_load_lds_dwordx4 v{vOD}, {sr(pWs,2)} offset:{1024*j} sc1")
    E(f"s_add_u32 m0, s{tb}, {OFL+4096}")
    E(hop() or ["s_nop 0"])
    for j in range(4):
        E(f"global_load_lds_dwordx4 v{vOD2}, {sr(pWs,2)} offset:{1024*j} sc1")
    E(f"""
    v_mov_b32 v2, s{sW}
    s_waitcnt vmcnt(0)
    ds_write_b8 v2, v{vOne} offset:{CNT+12}
    """)
    if OPT["hop"]: E(f"L_hop{nhop[0]}:\ns_cbranch_execz L_hopdone")
    stamp_flush("m"); spin_end("m")
    if OPT.get("itst"):
        E(f"v_lshl_add_u32 v2, v1, 2, v2\nv_add_u32 v2, 0x100000, v2\ns_mov_b64 exec, 0xff\nglobal_store_dword v2, v23, {sr(pWs,2)}")
    E("s_endpgm")
    vM, vC = vT + 6, 64
    vQ += 8; vO += 32
    E(f"""
    L_safe:
    s_waitcnt vmcnt(0)
    s_lshl_b32 s{ta}, s{sZ}, 12
    s_sub_u32 s{sKVb}, s{sKVb}, s{ta}
    s_subb_u32 s{sKVb+1}, s{sKVb+1}, 0
    s_mov_b32 s{sKV}, s{sKVb}
    s_mov_b32 s{sKV+1}, s{sKVb+1}
    s_mov_b32 s{sCnt}, 64
    v_mov_b32 v{vM}, 0xff800000
    v_mov_b32 v{vM+1}, 0xff800000
    L_safe1:
    global_load_dwordx4 {vr(vKV,4)}, v{vKA}, {sr(sKV,2)} sc1
    s_add_u32 s{sKV}, s{sKV}, 2048
    s_addc_u32 s{sKV+1}, s{sKV+1}, 0
    s_waitcnt vmcnt(0)
    v_mfma_f32_32x32x16_bf16 {vr(SA,16)}, {vr(vKV,4)}, {vr(vQ,4)}, 0
    v_mfma_f32_32x32x16_bf16 {vr(SB,16)}, {vr(vKV,4)}, {vr(vQ+4,4)}, 0
    s_nop 15
    """)
    for j in range(8):
        E(f"v_max3_f32 v{vM}, v{SA+2*j}, v{SA+2*j+1}, v{vM}\nv_max3_f32 v{vM+1}, v{SB+2*j}, v{SB+2*j+1}, v{vM+1}")
    E(f"""
    s_sub_u32 s{sCnt}, s{sCnt}, 1
    s_cmp_lg_u32 s{sCnt}, 0
    s_cbranch_scc1 L_safe1
    v_mov_b32 v{SA}, v{vM}
    v_mov_b32 v{SB}, v{vM+1}
    s_nop 1
    v_permlane32_swap_b32 v{SA}, v{vM}
    v_permlane32_swap_b32 v{SB}, v{vM+1}
    s_nop 1
    v_max_f32 v{vM}, v{vM}, v{SA}
    v_max_f32 v{vM+1}, v{vM+1}, v{SB}
    """)
    for j in range(16):
        E(f"v_sub_f32 v{vC+j}, 0, v{vM}\nv_sub_f32 v{vC+16+j}, 0, v{vM+1}\nv_mov_b32 v{vO+j}, 0\nv_mov_b32 v{vO+16+j}, 0")
    E(f"""
    s_mov_b32 s{sKV}, s{sKVb}
    s_mov_b32 s{sKV+1}, s{sKVb+1}
    s_mov_b32 s{sCnt}, 64
    L_safe2:
    """)
    E(kload(0, 0) + vload(0, 0))
    E(f"""
    s_add_u32 s{sKV}, s{sKV}, 2048
    s_addc_u32 s{sKV+1}, s{sKV+1}, 0
    s_waitcnt vmcnt(0)
    v_mfma_f32_32x32x16_bf16 {vr(SA,16)}, {vr(vKV,4)}, {vr(vQ,4)}, {vr(vC,16)}
    v_mfma_f32_32x32x16_bf16 {vr(SB,16)}, {vr(vKV,4)}, {vr(vQ+4,4)}, {vr(vC+16,16)}
    s_nop 15
    """)
    for j in range(32):
        E(f"v_exp_f32 v{SA+j}, v{SA+j}")
    E(f"""
    s_nop 1
    v_smfmac_f32_32x32x32_bf16 {vr(vO,16)}, {vr(vKV+4,4)}, {vr(SA,8)}, v{vIDX}
    v_smfmac_f32_32x32x32_bf16 {vr(vO,16)}, {vr(vKV+8,4)}, {vr(SA+8,8)}, v{vIDX}
    v_smfmac_f32_32x32x32_bf16 {vr(vO+16,16)}, {vr(vKV+4,4)}, {vr(SB,8)}, v{vIDX}
    v_smfmac_f32_32x32x32_bf16 {vr(vO+16,16)}, {vr(vKV+8,4)}, {vr(SB+8,8)}, v{vIDX}
    s_sub_u32 s{sCnt}, s{sCnt}, 1
    s_cmp_lg_u32 s{sCnt}, 0
    s_cbranch_scc1 L_safe2
    s_nop 15
    """)
    fin(O2, None, None, SA, vOA); fin(O3, None, None, SA + 4, vOB)
    E("s_waitcnt vmcnt(0)\ns_branch L_pub")

def helper_wave():
    sH, sC, sMH, sRT, sCB, sD = sT, sT + 1, sT + 2, sT + 3, sT + 4, sT + 5
    sLd, sDs = sT + 6, sT + 7
    t0 = sT + 8
    sLead, sWst, sPar = 92, 93, 94
    sAT = 100
    vGW = 156
    vGWA = 155
    vXF = 160
    vG, vGA0, vGA1 = 164, 165, 166
    vU = 168
    vKW = 128
    vNb, vPad, vF4, vF4P, vRdy, vF1, vF1P = range(141, 148)
    vTA, vTS = 148, 152
    sUW = sT + 13
    assert NS == 3
    vPar = 4
    E(f"""
    L_helper:
    s_lshr_b32 s{sC}, s{sH}, 1
    s_add_u32 s{sD}, s{sCH}, s{sC}
    s_and_b32 s{sCB if OPT["fm"] else sRT}, s{sHP}, 3
    s_lshr_b32 s{sRT if OPT["fm"] else sCB}, s{sHP}, 2
    v_lshrrev_b32 v3, 5, v1
    v_lshlrev_b32 v3, 4, v3
    s_lshl_b32 s{t0+2}, s{sROT}, 2
    s_add_u32 s{t0+2}, s{t0+2}, s{sH}
    s_lshl_b32 s{t0+2}, s{t0+2}, 5
    s_add_u32 s{t0+2}, s{t0+2}, {GW}
    v_add_u32 v{vGWA}, s{t0+2}, v3
    v_mov_b32 v12, 0
    v_mov_b32 v13, 0
    v_mov_b32 v14, 0
    v_mov_b32 v15, 0
    s_cmp_lt_u32 s2, 16
    s_cselect_b32 s{sLead}, s{sW}, 0
    """)
    E(f"s_add_u32 s{pFL}, s{pWs}, {WS_FL}\ns_addc_u32 s{pFL+1}, s{pWs+1}, 0")
    stamp("h")
    E(f"""
    s_mul_i32 s{t0}, s{sC}, {URS}
    s_add_u32 s{t0}, s{t0}, {UR+4096}
    v_lshl_add_u32 v10, v1, 4, s{t0}
    v_and_b32 v11, 1, v1
    v_lshlrev_b32 v11, 4, v11
    v_cmp_gt_u32 vcc, 30, v1
    v_add_u32 v11, {CNT}, v11
    v_mov_b32 v2, 0x3f803f80
    v_cndmask_b32 v10, v11, v10, vcc
    ds_write_b128 v10, v[12:15]
    v_and_b32 v11, 3, v1
    v_lshlrev_b32 v11, 2, v11
    ds_write_b32 v11, v2 offset:{CNT+32}
    """)
    vWA, vRA = 16, 17
    if "prio1" in OPT: E(f"s_setprio {OPT['prio1']}")
    E(f"""
    s_mul_i32 s{t0}, s{sRT}, {WPART}
    s_add_u32 s{t0}, s{t0}, {RING}
    v_and_b32 v10, 31, v1
    v_lshl_add_u32 v10, v10, 7, s{t0}
    v_bfe_u32 v11, v1, 1, 3
    v_lshrrev_b32 v3, 5, v1
    v_xor_b32 v11, v11, v3
    s_lshl_b32 s{t0}, s{sH}, 1
    v_xor_b32 v11, s{t0}, v11
    v_lshl_add_u32 v{vGA0}, v11, 4, v10
    v_mov_b32 v{vG}, 0
    s_lshr_b32 s{sUW}, s{sHP}, 1
    s_sub_u32 s{sUW}, s{sUW}, s{sROT}
    s_and_b32 s{sUW}, s{sUW}, 7
    s_mul_i32 s{t0}, s{sUW}, 11
    s_lshr_b32 s{t0}, s{t0}, 5
    s_mul_i32 s{t0}, s{t0}, 3
    s_sub_u32 s{t0}, s{sUW}, s{t0}
    s_mul_i32 s{t0}, s{t0}, {SLOT}
    s_mul_i32 s{t0+1}, s{sH}, {WPART}
    s_add_u32 s{t0}, s{t0}, s{t0+1}
    s_add_u32 s{t0}, s{t0}, {RING}
    v_and_b32 v10, 3, v1
    v_bfe_u32 v11, v1, 2, 2
    v_lshlrev_b32 v10, 3, v10
    v_sub_u32 v10, v10, v11
    v_add_u32 v10, 7, v10
    v_bfe_u32 v11, v10, 1, 3
    v_xor_b32 v11, v11, v3
    s_and_b32 s{t0+1}, s{sHP}, 1
    s_lshl_b32 s{t0+1}, s{t0+1}, 2
    v_xor_b32 v11, s{t0+1}, v11
    v_lshlrev_b32 v11, 4, v11
    v_lshl_add_u32 v11, v10, 7, v11
    v_bfe_u32 v10, v1, 4, 1
    v_lshl_add_u32 v11, v10, 3, v11
    v_add_u32 v{vTA}, s{t0}, v11
    v_xor_b32 v{vTA+1}, 32, v{vTA}
    v_subrev_u32 v{vTA+2}, 512, v{vTA}
    v_subrev_u32 v{vTA+3}, 512, v{vTA+1}
    s_mul_i32 s{t0}, s{sH}, {KGS}
    s_add_u32 s{t0}, s{t0}, {KG}
    s_mov_b32 m0, s{t0}
    v_and_b32 v10, 31, v1
    v_mul_u32_u24 v10, 272, v10
    v_lshl_add_u32 v10, v3, 4, v10
    v_add_u32 v{vRA}, s{t0}, v10
    """)
    K = []
    def k(s, c=None):
        if isinstance(s, list): s = "\n".join(s)
        for x in s.split("\n"):
            x = x.strip()
            if not x: continue
            cc = c if c is not None else (8 if any(t in x for t in ("v_exp", "v_sin", "v_cos", "v_rcp", "ds_")) else 4)
            K.append((cc, x))
    va, vb, vt = 220, 221, 222
    log2e = math.log2(math.e)
    c_hi = struct.unpack("<f", struct.pack("<f", log2e))[0]
    c_lo = log2e - c_hi
    k(f"""
    s_waitcnt lgkmcnt(0)
    s_lshl_b32 s{t0}, s{sC}, 4
    s_lshr_b32 s{sLd}, s{sLd}, s{t0}
    s_lshl_b32 s{sLd}, s{sLd}, 16
    s_lshr_b32 s{sDs}, s{sDs}, s{t0}
    s_lshl_b32 s{sDs}, s{sDs}, 16
    s_mov_b32 s{t0}, {fbits(c_hi)}
    v_mov_b32 v{vt}, s{sLd}
    v_mul_f32 v{vt+1}, s{t0}, v{vt}
    v_fma_f32 v{vt+2}, v{vt}, s{t0}, -v{vt+1}
    v_fmac_f32 v{vt+2}, {fbits(c_lo)}, v{vt}
    v_exp_f32 v{vt+1}, v{vt+1}
    v_mul_f32 v{vt+2}, {fbits(math.log(2.0))}, v{vt+2}
    v_fma_f32 v{vt+1}, v{vt+1}, v{vt+2}, v{vt+1}
    v_cvt_pk_bf16_f32 v{vt+1}, v{vt+1}, v{vt+1}
    v_lshlrev_b32 v{vt}, 16, v{vt+1}
    """)
    KPRE = [x for _, x in K]; K.clear()
    k("s_waitcnt vmcnt(0)")
    for j in range(6):
        k(f"v_lshlrev_b32 v{vPar+j}, 16, v{vPar+j}")
    k(f"""
    v_mul_f32 v{va}, v{vt}, v{vPar}
    v_mul_f32 v{vb}, v{vt}, v{vPar+1}
    v_mul_f32 v{vPar+2}, v{vt}, v{vPar+2}
    v_mul_f32 v{vPar+3}, v{vt}, v{vPar+3}
    v_mul_f32 v{va}, {fbits(c_hi)}, v{va}
    v_mul_f32 v{vb}, 0.15915494, v{vb}
    """)
    def cmul(z, x, w):
        return [f"v_mul_f32 v{z}, v{x}, v{w}\nv_mul_f32 v{z+1}, v{x}, v{w+1}",
                f"v_fma_f32 v{z}, -v{x+1}, v{w+1}, v{z}\nv_fmac_f32 v{z+1}, v{x+1}, v{w}"]
    def cmuls(lst):
        cm = [cmul(*a) for a in lst]
        k([c[0] for c in cm]); k([c[1] for c in cm])
    def direct(z, x):
        k(f"""
        v_mul_f32 v{vt+2}, {fbits(x)}, v{vb}
        v_mul_f32 v{vt+1}, {fbits(x)}, v{va}
        v_fract_f32 v{vt+2}, v{vt+2}
        v_exp_f32 v{vt+1}, v{vt+1}
        v_cos_f32 v{z}, v{vt+2}
        v_sin_f32 v{z+1}, v{vt+2}
        s_nop 0
        v_mul_f32 v{z}, v{z}, v{vt+1}
        v_mul_f32 v{z+1}, v{z+1}, v{vt+1}
        """)
    E1, E32, E256 = 226, 228, 230
    vE = 232
    vPk = 64
    npk = [0]
    DW = {False: [], True: []}
    def puts(lst, neg):
        for z, rows in lst:
            p = vPk + npk[0]; npk[0] += 1
            k(f"v_cvt_pk_bf16_f32 v{p}, v{z}, {'-' if neg else ''}v{z+1}")
            DW[neg] += [f"ds_write_addtid_b32 v{p} offset:{272*r}" for r in rows]
    def e(j): return vE + 2 * (j % 8)
    direct(e(1), 8.0); direct(E32, 32.0)
    k(f"v_mov_b32 v{e(0)}, 1.0\nv_mov_b32 v{e(0)+1}, 0\nv_mov_b32 v{e(4)}, v{E32}\nv_mov_b32 v{e(4)+1}, v{E32+1}")
    cmuls([(e(2), e(1), e(1)), (e(5), e(1), E32)])
    cmuls([(e(3), e(2), e(1)), (e(6), e(2), E32)])
    cmuls([(e(7), e(3), E32)])
    puts([(e(j), [j]) for j in range(4)], False)
    for j0 in range(4, 32, 4):
        if j0 + 4 < 32: cmuls([(e(j + 4), e(j), E32) for j in range(j0, j0 + 4)])
        puts([(e(j), [j]) for j in range(j0, j0 + 4)], False)
    vEF, vGF, vD = 192, 224, 176
    direct(E1, 1.0); direct(E256, 256.0)
    def row(r, h): return 8 * (r >> 2) + 4 * h + (r & 3)
    vGv = 192
    g = {x: vGv + 2 * x for x in range(9)}
    E2 = e(0)
    cmuls([(g[0], vPar + 4, vPar + 2), (E2, E1, E1)])
    cmuls([(g[1], g[0], E1), (g[2], g[0], E2)])
    cmuls([(g[3], g[1], E2), (g[4], g[2], E2)])
    puts([(g[x], [row(x, 0)]) for x in range(4)], True)
    cmuls([(g[5], g[3], E2), (g[6], g[4], E2)])
    cmuls([(g[7], g[5], E2), (g[8], g[6], E2)])
    puts([(g[x], [row(x, 0)]) for x in range(4, 8)], True)
    A = {o: vGv + 18 + 2 * i for i, o in enumerate((0, 2, 4, 6, 8))}
    cmuls([(A[o], g[o], E256) for o in (0, 2, 4, 6, 8)])
    puts([(A[o], [row(r, 1) for r in rs]) for o, rs in ((0, (0, 1)), (2, (2,)), (4, (3, 4, 5)), (6, (6,)), (8, (7,)))], True)
    src, dst = A, g
    for os_, r0, h in (((0, 4, 8), 8, 0), ((0, 4, 8), 8, 1), ((0, 8), 11, 0), ((0, 8), 11, 1), ((0, 8), 13, 0), ((0, 8), 13, 1)):
        cmuls([(dst[o], src[o], E256) for o in os_])
        puts([(dst[o], [row(r0 + i, h)]) for i, o in enumerate(os_)], True)
        src, dst = dst, src
    def D1(): E(DW[False] + [f"ds_read_b128 {vr(vEF+4*s,4)}, v{vRA} offset:{32*s}" for s in range(8)])
    def D2(): E(DW[True] + [f"ds_read_b128 {vr(vGF+4*s,4)}, v{vRA} offset:{32*s}" for s in range(8)])
    (vCA, vCP, vOne, vTm, vAA, vBA, vUW, vCW, vCR, vAT, vF3, vWoG, vWoL, vF3P, vAL, vOut, vg, vomg, vOL, vGPw, vGPr, vWoP, vUL, vClO) = range(24, 48)
    vA = 48; vAcc = 96; vF2 = 3; vON = 2; vF2v = 23; vXR, vSA, vSB, vSV = 124, 125, 126, 127
    LQH = {0: 2, 1: 0, 2: 1}[OPT["xm"]]
    LOH = [{0: 2, 1: 1, 2: 1}, {0: 3, 1: 2, 2: 3}][OPT["fm"]][OPT["xm"]]
    ADDR = f"""
    v_mov_b32 v{vCA}, {CNT}
    s_lshl_b32 s{t0}, s{sC}, 2
    s_add_u32 s{t0}, s{t0}, {CNT+4}
    v_mov_b32 v{vCP}, s{t0}
    v_mov_b32 v{vOne}, 1
    v_lshlrev_b32 v23, 4, v1
    s_lshl_b32 s{t0}, s{sH}, 10
    s_sub_u32 s{t0}, {UR+4080-512}, s{t0}
    v_lshrrev_b32 v18, 1, v1
    v_lshlrev_b32 v19, 4, v18
    v_sub_u32 v19, s{t0}, v19
    v_and_b32 v20, 1, v1
    v_mul_u32_u24 v21, {URS}, v20
    v_add_u32 v{vUW}, v19, v21
    s_lshr_b32 s{t0}, s{sCH}, 2
    s_lshl_b32 s{t0}, s{t0}, 14
    s_lshl_b32 s{t0+1}, s{sH}, 12
    s_add_u32 s{t0}, s{t0}, s{t0+1}
    s_and_b32 s{t0+1}, s{sRB}, 1
    s_lshl_b32 s{t0+1}, s{t0+1}, 5
    s_add_u32 s{t0}, s{t0}, s{t0+1}
    s_add_u32 s{t0}, s{t0}, {WS_UT}
    v_lshl_add_u32 v18, v18, 6, s{t0}
    v_lshl_add_u32 v{vUL}, v20, 4, v18
    v_and_b32 v18, 15, v1
    v_add_u32 v19, 1, v18
    v_and_b32 v20, 3, v19
    v_mul_u32_u24 v20, {KCP}, v20
    v_lshrrev_b32 v19, 2, v19
    v_lshl_add_u32 v20, v19, 3, v20
    v_lshrrev_b32 v21, 4, v1
    v_lshlrev_b32 v22, 4, v21
    s_mul_i32 s{t0}, s{sC}, {2*KGS}
    s_lshl_b32 s{t0+1}, s{sMH}, 8
    s_add_u32 s{t0}, s{t0}, s{t0+1}
    s_add_u32 s{t0}, s{t0}, {KG}
    v_add3_u32 v{vAA}, v20, v22, s{t0}
    s_mul_i32 s{t0}, s{sC}, {URS}
    s_add_u32 s{t0}, s{t0}, s{t0+1}
    s_add_u32 s{t0}, s{t0}, {UR+4064-3584}
    v_lshlrev_b32 v19, 5, v18
    v_sub_u32 v22, v22, v19
    v_add_u32 v{vBA}, s{t0}, v22
    s_lshl_b32 s{t0}, s{sH}, 12
    s_add_u32 s{t0}, s{t0}, {CRED}
    v_add_u32 v{vCW}, s{t0}, v23
    s_xor_b32 s{t0}, s{sH}, 1
    s_lshl_b32 s{t0}, s{t0}, 12
    s_add_u32 s{t0}, s{t0}, {CRED}
    v_add_u32 v{vCR}, s{t0}, v23
    v_add_u32 v{vOL}, {OFL}, v23
    v_lshrrev_b32 v19, 1, v18
    v_lshlrev_b32 v19, 15, v19
    v_and_b32 v20, 1, v1
    v_lshl_add_u32 v19, v20, 5, v19
    v_lshl_add_u32 v{vAT}, v21, 3, v19
    s_lshl_b32 s{t0}, s{sMH}, 20
    s_lshl_b32 s{t0+1}, s{sD}, 6
    s_add_u32 s{t0}, s{t0}, s{t0+1}
    s_add_u32 s{t0}, s{t0}, {WS_AT}
    s_add_u32 s{sAT}, s{pWs}, s{t0}
    s_addc_u32 s{sAT+1}, s{pWs+1}, 0
    s_lshl4_add_u32 s{t0}, s{sMH}, s{sHP}
    s_add_u32 s{t0}, s{t0}, {F3}
    s_lshl_b32 s{t0}, s{t0}, {FSH}
    v_mov_b32 v{vF3}, s{t0}
    s_mov_b32 s{SRDW}, s{pWo}
    s_mov_b32 s{SRDW+1}, s{pWo+1}
    s_mov_b32 s{SRDW+2}, {512*1024}
    s_mov_b32 s{SRDW+3}, 0x00020000
    s_lshl_b32 s{t0}, s{sCB}, 2
    s_add_u32 s{t0}, s{t0}, s{sH}
    s_lshl_b32 s{t0+1}, s{t0}, 6
    v_lshrrev_b32 v18, 2, v1
    v_lshl_add_u32 v18, v18, 10, s{t0+1}
    v_and_b32 v19, 3, v1
    v_lshl_add_u32 v{vWoG}, v19, 4, v18
    s_mul_i32 s{sWst}, s{sH}, {WSL*1024}
    s_add_u32 s{sWst}, s{sWst}, {WST}
    v_lshrrev_b32 v22, 5, v1
    v_lshlrev_b32 v20, 2, v22
    v_bfe_u32 v21, v1, 2, 2
    v_add_u32 v20, v20, v21
    v_lshl_add_u32 v20, v20, 6, s{sWst}
    v_lshl_add_u32 v20, v19, 3, v20
    v_bfe_u32 v21, v1, 4, 1
    v_lshl_add_u32 v{vWoL}, v21, 5, v20
    s_lshr_b32 s{t0+1}, s{sRB}, 3
    s_lshl4_add_u32 s{t0+1}, s{t0+1}, s{t0}
    s_add_u32 s{t0+1}, s{t0+1}, {F3}
    s_lshl_b32 s{t0+1}, s{t0+1}, {FSH}
    v_mov_b32 v{vF3P}, s{t0+1}
    s_lshl_b32 s{t0}, s{t0}, 5
    v_and_b32 v18, 31, v1
    s_lshl_b32 s{t0+1}, s{sRB}, 2
    s_add_u32 s{t0+1}, s{t0+1}, s{sRT}
    s_lshl_b32 s{t0+2}, s{t0+1}, 15
    s_lshl_b32 s{t0+3}, s{t0}, 6
    s_add_u32 s{t0+3}, s{t0+3}, s{t0+2}
    s_add_u32 s{t0+3}, s{t0+3}, {WS_AT}
    v_lshlrev_b32 v20, 8, v22
    v_lshl_add_u32 v20, v18, 1, v20
    v_add_u32 v{vAL}, s{t0+3}, v20
    s_lshl_b32 s{t0}, s{t0}, 1
    s_add_u32 s{t0}, s{t0}, s{t0+2}
    v_lshl_add_u32 v20, v18, 10, s{t0}
    v_lshl_add_u32 v{vOut}, v22, 4, v20
    """.split("\n")
    ADDR += f"""
    s_lshl2_add_u32 s{t0}, s{sRB}, s{sH}
    s_lshl4_add_u32 s{t0}, s{t0}, s{sHP}
    s_lshl_b32 s{t0}, s{t0}, 11
    s_add_u32 s{t0}, s{t0}, {WS_OF}
    v_lshl_add_u32 v{vClO}, v1, 6, s{t0}
    s_lshl_b32 s{t0}, s{sRB}, 2
    s_add_u32 s{t0}, s{t0}, s{sH}
    s_lshl_b32 s{t0}, s{t0}, 8
    s_lshl_b32 s{t0+1}, s{sHP}, 17
    s_add_u32 s{t0}, s{t0}, s{t0+1}
    s_add_u32 s{t0}, s{t0}, {WS_UT}
    v_and_b32 v18, 15, v1
    v_lshl_add_u32 v18, v18, 4, s{t0}
    v_lshrrev_b32 v19, 4, v1
    v_lshl_add_u32 v{vTS}, v19, 14, v18
    v_add_u32 v{vTS+1}, 0x10000, v{vTS}
    v_and_b32 v18, 15, v1
    v_lshlrev_b32 v{vRdy}, 2, v18
    s_lshl_b32 s{t0}, s{sHP}, 4
    v_add_u32 v19, s{t0}, v18
    v_lshlrev_b32 v{vF1P}, {FSH}, v19
    s_add_u32 s{t0}, s{t0}, s{sRB}
    s_lshr_b32 s{t0+1}, s{t0}, 2
    s_add_u32 s{t0+1}, s{t0+1}, {F4}
    s_lshl_b32 s{t0+1}, s{t0+1}, {FSH}
    v_mov_b32 v{vF4}, s{t0+1}
    s_lshl2_add_u32 s{t0+1}, s{sHP}, s{sH}
    s_add_u32 s{t0+1}, s{t0+1}, {F4}
    s_lshl_b32 s{t0+1}, s{t0+1}, {FSH}
    v_mov_b32 v{vF4P}, s{t0+1}
    s_lshl_b32 s{t0}, s{t0}, {FSH}
    v_mov_b32 v{vF1}, s{t0}
    v_and_b32 v18, 31, v1
    v_lshlrev_b32 v18, 5, v18
    v_lshrrev_b32 v19, 5, v1
    v_lshl_add_u32 v19, v19, 2, v18
    s_lshl_b32 s{t0}, s{sH}, 3
    s_add_u32 s{t0}, s{t0}, {GP}
    v_add_u32 v{vGPw}, s{t0}, v19
    v_add_u32 v{vGPr}, {GP}, v18
    s_lshr_b32 s{t0}, s2, 3
    s_lshl_b32 s{t0}, s{t0}, 2
    s_add_u32 s{t0}, s{t0}, s{sH}
    s_lshl_b32 s{t0}, s{t0}, 12
    s_lshr_b32 s{t0+1}, s{sCB}, {LOH-1}
    s_lshl_b32 s{t0+1}, s{t0+1}, {7+LOH}
    s_add_u32 s{t0}, s{t0}, s{t0+1}
    v_bfe_u32 v18, v1, {LOH}, 2
    v_lshl_add_u32 v18, v18, 10, s{t0}
    v_and_b32 v19, {(1<<LOH)-1}, v1
    v_lshl_add_u32 v{vWoP}, v19, 7, v18
    """.split("\n") + [f"v_mov_b32 v{vA+j}, 0" for j in range(16)]
    ADDR += f"""
    s_mul_i32 s{t0}, s{sH}, {WPART}
    s_add_u32 s{t0}, s{t0}, {EXCH+2048}
    v_lshl_add_u32 v{vXR}, v1, 4, s{t0}
    s_lshl2_add_u32 s{t0}, s{sRB}, s{sH}
    s_lshl_b32 s{t0}, s{t0}, 11
    s_lshl_b32 s{t0+1}, s{sHP}, 18
    s_add_u32 s{t0}, s{t0}, s{t0+1}
    v_lshl_add_u32 v{vSA}, v1, 4, s{t0}
    v_add_u32 v{vSB}, 0x20000, v{vSA}
    v_and_b32 v18, 15, v1
    v_lshrrev_b32 v19, 5, v1
    v_lshl_add_u32 v18, v19, 4, v18
    v_lshl_add_u32 v18, v18, 4, s{t0}
    v_bfe_u32 v19, v1, 4, 1
    v_lshl_add_u32 v{vSV}, v19, 17, v18
    s_lshl4_add_u32 s{t0}, s{sRB}, {F2}
    v_add_lshl_u32 v{vF2}, v1, s{t0}, {FSH}
    s_and_b32 s{t0}, s{sHP}, 12
    s_lshl_b32 s{t0}, s{t0}, 1
    s_lshl_b32 s{t0}, 1, s{t0}
    v_cmp_ne_u32 vcc, s{sHP}, v1
    v_mov_b32 v18, s{t0}
    s_nop 0
    v_cndmask_b32 v{vF2v}, 0, v18, vcc
    s_mul_i32 s{t0}, s{sC}, {2*KGS}
    v_lshrrev_b32 v18, 1, v1
    v_mul_u32_u24 v18, {KCP}, v18
    v_and_b32 v19, 1, v1
    v_cmp_eq_u32 {sr(sPar,2)}, 1, v19
    v_lshlrev_b32 v19, 4, v19
    v_add3_u32 v{vPad}, v18, v19, s{t0}
    s_lshl_b32 s{t0+1}, s{sMH}, 10
    s_add_u32 s{t0}, s{t0}, s{t0+1}
    s_add_u32 s{t0}, s{t0}, {KG+32}
    v_lshl_add_u32 v{vKW}, v1, 4, s{t0}
    s_lshl_b32 s{t0}, s{sH}, 12
    s_add_u32 s{t0}, s{t0}, {CRED+2048}
    v_lshl_add_u32 v{vNb}, v1, 3, s{t0}
    """.split("\n") + [f"v_add_u32 v{vKW+3*c+u}, {c*KCP+u*1024}, v{vKW}" for c in range(4) for u in range(3) if c or u]
    assert KG == 0
    ADDR = [x.strip() for x in ADDR if x.strip()]
    def GATEF():
        E("s_waitcnt lgkmcnt(0)")
        for j in range(4):
            E(f"v_dot2_f32_bf16 v{vG}, v{vXF+j}, v{vGW+j}, v{vG}")
        E(f"s_nop 2\nds_write_b32 v{vGPw}, v{vG}")
    def SIG():
        E(f"""
        ds_read_b128 v[4:7], v{vGPr}
        ds_read_b128 v[8:11], v{vGPr} offset:16
        s_waitcnt lgkmcnt(0)
        v_add_f32 v4, v4, v5
        v_add_f32 v6, v6, v7
        v_add_f32 v8, v8, v9
        v_add_f32 v10, v10, v11
        v_add_f32 v4, v4, v6
        v_add_f32 v8, v8, v10
        v_add_f32 v4, v4, v8
        v_mul_f32 v4, {fbits(-log2e)}, v4
        v_exp_f32 v4, v4
        s_nop 0
        v_add_f32 v4, 1.0, v4
        v_rcp_f32 v{vg}, v4
        s_nop 0
        v_sub_f32 v{vomg}, 1.0, v{vg}
        """)
    def KD():
        E("s_setprio 0\ns_waitcnt lgkmcnt(0)")
        for s in range(8):
            E(f"v_mfma_f32_32x32x16_bf16 {vr(vD,16)}, {vr(vGF+4*s,4)}, {vr(vEF+4*s,4)}, {'0' if s == 0 else vr(vD,16)}")
        E(f"s_setprio {OPT['prio']}")
        l1 = newlab("k1"); l2 = newlab("k2")
        R = 64
        def xch(send, keep, n):
            E(f"ds_write_b128 v{vCW}, {vr(send,4)}\nds_write_b128 v{vCW}, {vr(send+4,4)} offset:1024")
            lds_arrive(vCP, vOne)
            lds_wait(vCP, vTm, 2)
            E(f"ds_read_b128 {vr(R,4)}, v{vCR}\nds_read_b128 {vr(R+4,4)}, v{vCR} offset:1024\ns_waitcnt lgkmcnt(0)")
            for j in range(n): E(f"v_add_f32 v{R+j}, v{R+j}, v{keep+j}")
        def w2(c, u, r):
            E(f"ds_write2_b32 v{vKW+3*c+u}, v{r[0]}, v{r[1]} offset0:0 offset1:1\nds_write2_b32 v{vKW+3*c+u}, v{r[2]}, v{r[3]} offset0:2 offset1:3")
        E(f"s_nop 8\ns_cmp_eq_u32 s{sMH}, 0\ns_cbranch_scc0 {l1}")
        xch(vD + 8, vD, 8)
        e, o = 72, 80
        E(f"""
        s_mov_b64 exec, 0xff
        ds_write_b128 v{vPad}, v[12:15]
        s_mov_b64 exec, 1
        v_add_f32 v{R}, s{sDs}, v{R}
        s_mov_b64 exec, -1
        """)
        for j in range(4): E(f"v_cvt_pk_bf16_f32 v{e+j}, v{R+2*j}, v{R+2*j+1}")
        E(f"""
        v_cvt_pk_bf16_f32 v{o+6}, v{R+7}, v{R+7}
        ds_write2_b32 v{vNb}, v{o+6}, v{o+6} offset0:2 offset1:3
        ds_write_b64 v{vNb}, {vr(e,2)}
        ds_read_b64 {vr(e+4,2)}, v{vNb} offset:8
        ds_write_b128 v{vKW}, {vr(e,4)}
        s_waitcnt lgkmcnt(1)
        """)
        for j in range(5): E(f"v_alignbit_b32 v{o+j}, v{e+j+1}, v{e+j}, 16")
        E(f"ds_write_b128 v{vKW+3}, {vr(o,4)}")
        w2(2, 0, [e + 1, e + 2, e + 3, e + 4]); w2(3, 0, [o + 1, o + 2, o + 3, o + 4])
        E(f"""
        s_mov_b64 exec, 1
        v_lshlrev_b32 v{o+6}, 16, v{e}
        ds_write_b32 v{vPad}, v{o+6} offset:{28+KCP}
        ds_write_b32 v{vPad}, v{e} offset:{28+2*KCP}
        ds_write_b32 v{vPad}, v{o+6} offset:{24+3*KCP}
        ds_write_b32 v{vPad}, v{o} offset:{28+3*KCP}
        s_mov_b64 exec, -1
        s_branch {l2}
        {l1}:
        """)
        xch(vD, vD + 8, 7)
        aa, ab, bb, bc, cc = range(72, 77)
        for d, x, y in ((aa, 0, 0), (ab, 0, 1), (bb, 1, 1), (bc, 1, 2), (cc, 2, 2)):
            E(f"v_cvt_pk_bf16_f32 v{d}, v{R+x}, v{R+y}")
        for c, r in enumerate(([aa, ab, bb, cc], [aa, bb, bc, cc], [ab, bb, cc, cc], [bb, bc, cc, cc])): w2(c, 0, r)
        for u in (1, 2):
            a_, c_ = R + 1 + 2 * u, R + 2 + 2 * u
            sel, aa, as_, sc, cc = range(72 + 5 * u, 77 + 5 * u)
            E(f"v_cndmask_b32 v{sel}, v{a_}, v{c_}, {sr(sPar,2)}")
            for d, x, y in ((aa, a_, a_), (cc, c_, c_), (as_, a_, sel), (sc, sel, c_)):
                E(f"v_cvt_pk_bf16_f32 v{d}, v{x}, v{y}")
            for c, r in enumerate(([aa, aa, sc, cc], [aa, as_, cc, cc], [aa, sc, cc, cc], [as_, cc, cc, cc])): w2(c, u, r)
        E(f"{l2}:")
    def gate_glue(i):
        E("s_waitcnt lgkmcnt(0)")
        if OPT.get("hst"): stamp("h")
        E("s_barrier")
        if i == 1:
            lq = newlab("nr")
            E(f"""
            s_cmp_eq_u32 s{sLead}, 7
            s_cbranch_scc0 {lq}
            s_mul_i32 s{sSPIN}, s2, 40
            v_add_lshl_u32 v10, v1, s{sSPIN}, {FSH}
            s_bfm_b64 exec, 40, 0
            global_store_dword v10, v12, {sr(pFL,2)} sc1
            s_mov_b64 exec, -1
            {lq}:
            """)
        if i == OPT["rdyw"]:
            lq = newlab("nr")
            E(f"""
            s_cmp_eq_u32 s{sLead}, 7
            s_cbranch_scc0 {lq}
            s_lshl_b32 s{sSPIN}, s2, 2
            v_mov_b32 v10, s{sSPIN}
            v_mov_b32 v11, 1
            s_waitcnt vmcnt(0)
            """)
            put_flag(10, 11, pDbg)
            E(f"{lq}:")
        if i >= 1:
            for j in range(4):
                E(f"v_dot2_f32_bf16 v{vG}, v{vXF+j}, v{vGW+j}, v{vG}")
        slot = i % NS
        E(f"ds_read_b128 {vr(vXF,4)}, v{vGA0} offset:{slot*SLOT}")
        E(f"ds_read_b128 {vr(vGW,4)}, v{vGWA} offset:{128*i}")
        E(f"""
        s_cmp_eq_u32 s{sUW}, {i}
        s_cbranch_scc0 L_ut{i}
        ds_read_b64_tr_b16 {vr(vU,2)}, v{vTA}
        ds_read_b64_tr_b16 {vr(vU+2,2)}, v{vTA+3}
        ds_read_b64_tr_b16 {vr(vU+4,2)}, v{vTA+1}
        ds_read_b64_tr_b16 {vr(vU+6,2)}, v{vTA+2}
        L_ut{i}:
        """)
    E(ADDR); E(KPRE)
    tot = sum(c for c, _ in K); nw = OPT["kw"]
    segs = [[] for _ in range(8)]; acc = 0
    for c, x in K:
        segs[min(nw - 1, int(acc * nw / tot))].append(x); acc += c
    for i in range(8):
        gate_glue(i)
        E(segs[i])
    stamp("h")
    GATEF()
    E(f"global_load_dword v{vTm}, v{vRdy}, {sr(pDbg,2)} sc1")
    E(f"s_setprio {OPT['prioq']}\ns_waitcnt lgkmcnt(0)\ns_barrier")
    stamp("h")
    lq = newlab("nf"); lr = newlab("rdy")
    if OPT["hs"]:
        E([f"ds_read_b128 {vr(192+4*j,4)}, v{vXR} offset:{1024*j}" for j in range(4)])
        st = [f"global_store_dwordx4 v{vSA}, {vr(192,4)}, {sr(pWs,2)} sc1", f"global_store_dwordx4 v{vSB}, {vr(196,4)}, {sr(pWs,2)} sc1",
              f"global_store_dwordx4 v{vSV}, {vr(200,4)}, {sr(pWs,2)} offset:1024 sc1", f"global_store_dwordx4 v{vSV}, {vr(204,4)}, {sr(pWs,2)} offset:1536 sc1"]
        for j in range(4):
            E(f"s_waitcnt lgkmcnt({3-j})\n{st[j]}")
            if j + 1 == OPT["hsp"] and OPT["q2"]: E("s_barrier")
        SIG()
        E(f"""
        s_setprio {OPT['prio']}
        s_mov_b64 exec, 1
        s_waitcnt vmcnt(0)
        ds_add_rtn_u32 v4, v{vCA}, v{vOne}
        s_waitcnt lgkmcnt(0)
        v_readfirstlane_b32 s{t0}, v4
        s_mov_b64 exec, -1
        """)
        stamp("h")
        E(f"s_cmp_lg_u32 s{t0}, 3")
    else:
        SIG()
        E("s_barrier")
        assert OPT["ackn"] > 16 - OPT["lq"]
        E(f"s_setprio {OPT['prio']}\ns_waitcnt vmcnt(0)\ns_barrier")
        stamp("h")
        E(f"s_cmp_lg_u32 s{sH}, 1")
    E(f"""
    s_cbranch_scc1 {lq}
    v_cmp_ne_u32 vcc, 0, v{vTm}
    s_nop 1
    s_cmp_eq_u64 vcc, -1
    s_cbranch_scc1 {lr}
    """)
    poll_global(vRdy, pDbg, vTm)
    E(f"{lr}:")
    add_ctr(vF1P, vOne, 16)
    if OPT["e1"]:
        assert not OPT["hs"]
        if OPT["e1"] == 2: E("s_waitcnt vmcnt(0)")
        E(f"v_mov_b32 v4, 0\ns_mov_b64 exec, 1\nglobal_atomic_add v4, v{vF1}, v4, {sr(pFL,2)} sc0 sc1\ns_mov_b64 exec, -1")
    E(f"{lq}:")
    E("s_barrier")
    lq = newlab("nf")
    E(f"s_cmp_lg_u32 s{sH}, 1\ns_cbranch_scc1 {lq}")
    poll_ctr(vF1, 4, lambda r: [f"s_cmp_eq_u32 s{r}, 16"], OPT["pd"], OPT["e1"])
    E(f"{lq}:")
    E("s_setprio 0\ns_barrier")
    stamp("h")
    E(f"""
    global_store_dwordx4 v{vTS}, {vr(vU,4)}, {sr(pWs,2)} sc1
    global_store_dwordx4 v{vTS+1}, {vr(vU+4,4)}, {sr(pWs,2)} sc1
    """)
    E("s_waitcnt vmcnt(0)")
    add_ctr(vF4, vOne, 1)
    D1(); D2(); KD()
    poll_ctr(vF4P, vTm, lambda r: [f"s_cmp_eq_u32 s{r}, 16"])
    E(f"""
    global_load_dwordx4 v[12:15], v{vUL}, {sr(pWs,2)} sc1
    global_load_dwordx4 v[16:19], v{vUL}, {sr(pWs,2)} offset:2048 sc1
    s_waitcnt vmcnt(0)
    ds_write_b128 v{vUW}, v[12:15] offset:512
    ds_write_b128 v{vUW}, v[16:19]
    """)
    lds_arrive(vCA, vOne)
    lds_wait(vCA, vTm, 4 + 4 * OPT["hs"])
    stamp("h")
    vY = 64
    vF = [96, 192]
    def creads(r):
        f = vF[r & 1]; o = []
        for gmm in range(8):
            o.append(f"ds_read_b64 {vr(f+4*gmm,2)}, v{vAA} offset:{512*gmm+64*r}")
            o.append(f"ds_read_b64 {vr(f+4*gmm+2,2)}, v{vAA} offset:{512*gmm+64*r+8}")
            o.append(f"ds_read_b128 {vr(f+32+4*gmm,4)}, v{vBA} offset:{3584-512*gmm+64*r}")
        return o
    E(creads(0))
    E(f"s_setprio {OPT.get('prio3', OPT['prio'])}")
    for r in range(4):
        f = vF[r & 1]
        nxt = creads(r + 1) if r < 3 else []
        if r == 2 and OPT["wopf"]:
            E(f"s_bfm_b64 exec, {4<<LOH}, 0\nglobal_load_dword v20, v{vWoP}, {sr(pWo,2)}\ns_mov_b64 exec, -1")
        E("s_waitcnt lgkmcnt(0)")
        seen = set()
        for gmm in range(8):
            for dl in range(8 - gmm):
                tau = gmm + dl
                c = "0" if (r == 0 and tau not in seen) else vr(vY + 4 * tau, 4)
                seen.add(tau)
                if not OPT.get("noconv"): E(f"v_mfma_f32_16x16x32_bf16 {vr(vY+4*tau,4)}, {vr(f+4*gmm,4)}, {vr(f+32+4*dl,4)}, {c}")
                if nxt: E(nxt.pop(0))
    E(f"s_setprio {OPT['prio']}")
    l1 = newlab("c1"); l2 = newlab("c2")
    E(f"s_nop 5\ns_cmp_eq_u32 s{sMH}, 0\ns_cbranch_scc0 {l1}")
    def conv_fin(send, keep):
        for j in range(4):
            E(f"ds_write_b128 v{vCW}, {vr(send+4*j,4)} offset:{1024*j}")
        lds_arrive(vCP, vOne)
        lds_wait(vCP, vTm, 4)
        for j in range(4):
            E(f"ds_read_b128 {vr(96+4*j,4)}, v{vCR} offset:{1024*j}")
        E("s_waitcnt lgkmcnt(0)")
        for j in range(16):
            E(f"v_add_f32 v{96+j}, v{keep+j}, v{96+j}")
    conv_fin(vY + 16, vY)
    E(f"s_branch {l2}\n{l1}:")
    conv_fin(vY, vY + 16)
    E(f"{l2}:")
    for j in range(4):
        E(f"v_cvt_pk_bf16_f32 v{112+2*j}, v{96+4*j}, v{97+4*j}\nv_cvt_pk_bf16_f32 v{113+2*j}, v{98+4*j}, v{99+4*j}")
        E(f"global_store_dwordx2 v{vAT}, {vr(112+2*j,2)}, {sr(sAT,2)} sc1")
        if j < 3: E(f"s_add_u32 s{sAT}, s{sAT}, {8*32768}\ns_addc_u32 s{sAT+1}, s{sAT+1}, 0")
    E("s_waitcnt vmcnt(0)")
    add_ctr(vF3, vOne, 1)
    stamp("h")
    vWo = 128
    sO = t0 + 2
    WD = OPT["wod"]
    for hd in range(0 if OPT.get("nowo") else 32 + WD):
        if hd < 32:
            if hd % 4 == 0: E(f"s_add_u32 m0, s{sWst}, {(hd%WSL)*1024}")
            E(f"s_mov_b32 s{sO}, {hd*16384-(hd%4)*1024}")
            E(f"buffer_load_dwordx4 v{vWoG}, {sr(SRDW,4)}, s{sO} offen offset:{(hd%4)*1024} lds")
        r = hd - WD
        if r >= 0:
            E(f"s_waitcnt vmcnt({min(WD, 31-r)}) lgkmcnt(8)")
            E(f"ds_read_b64_tr_b16 {vr(vWo+4*r,2)}, v{vWoL} offset:{1024*(r%WSL)}")
            E(f"ds_read_b64_tr_b16 {vr(vWo+4*r+2,2)}, v{vWoL} offset:{1024*(r%WSL)+512}")
    E("s_waitcnt lgkmcnt(0)")
    stamp("h")
    if OPT["clo"] & 1:
        E(f"s_bfm_b64 exec, 32, 0\nglobal_store_dword v{vClO}, v{vOne}, {sr(pWs,2)} sc1\ns_mov_b64 exec, -1")
    if OPT["clo"] & 2:
        E(f"s_bfm_b64 exec, 32, 0\nglobal_store_dword v{vOut}, v{vOne}, {sr(pOut,2)} sc1\ns_mov_b64 exec, -1")
    poll_ctr(vF3P, vTm, lambda r: [f"s_cmp_eq_u32 s{r}, 32"])
    for r in range(16):
        E(f"global_load_short_d16_hi v{vA+r}, v{vAL}, {sr(pWs,2)} offset:{(8*(r>>2)+(r&3))*64} sc1")
    for j in range(4): E(f"ds_read_b128 {vr(vAcc+4*j,4)}, v{vCA} offset:16")
    if OPT["hop"]: E("s_mov_b64 exec, 0\ns_branch L_hop0\nL_hopdone:\ns_mov_b64 exec, -1")
    sTodo, sId = t0, t0 + 2
    E(f"s_mov_b32 s{sTodo}, 0x01010101\ns_mov_b32 s{sSPIN}, {OPT['spin']*8}\ns_waitcnt vmcnt(0) lgkmcnt(0)")
    stamp("h")
    lq = newlab("nf")
    E(f"s_barrier\ns_cmp_lg_u32 s{sH}, 0\ns_barrier\ns_cbranch_scc1 {lq}")
    add_ctr(vF2, vF2v, 16)
    E(f"{lq}:\ns_setprio 0")
    stamp("h")
    for r in range(16):
        E(f"v_mul_f32 v{vA+r}, v{vg}, v{vA+r}")
    vB = 64
    def ord_(j): return f"ds_read_b128 {vr(vB+4*j,4)}, v{vON} offset:{1024*j}"
    def pick(skip):
        return [f"v_readfirstlane_b32 s{sId}, v{vTm}", "s_nop 0", f"s_and_b32 s{sId}, s{sId}, s{sTodo}", f"s_cbranch_scc0 {skip}",
                f"s_ff1_i32_b32 s{sId}, s{sId}", f"v_lshl_add_u32 v{vON}, s{sId}, 10, v{vOL}"] + [ord_(j) for j in range(4)]
    E(hop())
    E(f"""
    L_fwait:
    ds_read_b32 v{vTm}, v{vCA} offset:12
    s_sub_u32 s{sSPIN}, s{sSPIN}, 1
    s_cbranch_scc1 L_fend
    s_waitcnt lgkmcnt(0)
    """)
    E(pick("L_fwait"))
    E("L_fdisp:")
    E([ord_(j) for j in range(4, 8)])
    E(f"""
    ds_read_b32 v{vTm}, v{vCA} offset:12
    s_bitset0_b32 s{sTodo}, s{sId}
    s_cmp_eq_u32 s{sId}, 8
    s_cbranch_scc1 L_fb1
    s_cmp_eq_u32 s{sId}, 16
    s_cbranch_scc1 L_fb2
    s_cmp_eq_u32 s{sId}, 24
    s_cbranch_scc1 L_fb3
    """)
    for c in range(4):
        E(f"L_fb{c}:")
        for j in range(8):
            if j <= 4: E(f"s_waitcnt lgkmcnt({8-j if j < 4 else 0})")
            E(f"v_mfma_f32_32x32x16_bf16 {vr(vAcc,16)}, {vr(vWo+4*(8*c+j),4)}, {vr(vB+4*j,4)}, {vr(vAcc,16)}")
            if j in (0, 5): E(hop())
            if j == 4:
                E(pick(f"L_fs{c}"))
                E(f"L_fs{c}:")
        E("s_cbranch_scc1 L_fdisp")
        if c < 3: E("s_branch L_fnext")
    E(f"""
    L_fnext:
    s_cmp_lg_u32 s{sTodo}, 0
    s_cbranch_scc1 L_fwait
    L_fend:
    """)
    stamp("h")
    E("s_nop 8")
    for r in range(16):
        E(f"v_fma_f32 v{vAcc+r}, v{vAcc+r}, v{vomg}, v{vA+r}")
    for j in range(8):
        E(f"v_cvt_pk_bf16_f32 v{vB+j}, v{vAcc+2*j}, v{vAcc+2*j+1}")
    E(hop() or ["s_nop 0"]); E("s_nop 0")
    for a in (0, 1, 4, 5):
        E(f"v_permlane32_swap_b32 v{vB+a}, v{vB+2+a}")
    fl = ["", "sc1", "nt", "sc0 sc1"][OPT["outsc"]]
    E(f"global_store_dwordx4 v{vOut}, {vr(vB,4)}, {sr(pOut,2)} {fl}\nglobal_store_dwordx4 v{vOut}, {vr(vB+4,4)}, {sr(pOut,2)} offset:32 {fl}")
    if STAMP:
        E("s_waitcnt vmcnt(0)")
    stamp("h")
    stamp_flush("h"); spin_end("h")
    E("s_endpgm")

hdr = open(f"cdna_kernels/{NAME}.s.ref").read().split("; Override launch")[0]
prologue(); main_wave()
E("L_end:\ns_endpgm")
out = hdr + f"""; @launch grid=(256,1,1) block=(512,1,1) lds={LDS_BYTES}
.amdgcn_target "amdgcn-amd-amdhsa--gfx950"
.text
.globl {NAME}_kernel
.p2align 8
.type {NAME}_kernel,@function
{NAME}_kernel:
""" + "\n".join(L) + f"""
.section .rodata,"a"
.p2align 6
.amdhsa_kernel {NAME}_kernel
  .amdhsa_next_free_vgpr 256
  .amdhsa_next_free_sgpr 102
  .amdhsa_accum_offset 256
  .amdhsa_group_segment_fixed_size 0
  .amdhsa_kernarg_size 128
  .amdhsa_user_sgpr_count 2
  .amdhsa_user_sgpr_kernarg_segment_ptr 1
  .amdhsa_system_sgpr_workgroup_id_x 1
.end_amdhsa_kernel
"""
open(sys.argv[1], "w").write(out)
```

```python
import sys, math, struct

NAME = "gated_mix__ssm_conv_s4__mha_block__prompt"
OPT = dict(stamp=0, rot=5, fs=256, spin=200000, prio=2, outsc=1, prio3=0, pf=1, tlb=0, wod=4, wopf=1, prioq=0, lq=7, epc=16, ackn=22,
           d1=3, d1w=4, kw=7, clo=1, rdyw=3, xm=2, fm=1, bp=2, hop=0, ep=1, pd=1, psl=3, hs=0, e1=1, pw=1, utp=2, pre=1, q3=0, a0=0, ackr=10, otr=1, q2=1, hsp=2)
for a in sys.argv[2:]:
    k, v = a.split("=")
    OPT[k] = int(v)
STAMP = OPT["stamp"]
FS = OPT["fs"]
FSH = int(math.log2(FS))

L = []
def E(s):
    if isinstance(s, list): s = "\n".join(s)
    for x in s.split("\n"):
        x = x.strip()
        if x:
            L.append(("" if x.endswith(":") else "    ") + x)
def fbits(x): return "0x%08x" % struct.unpack("<I", struct.pack("<f", x))[0]
def vr(a, n): return f"v[{a}:{a+n-1}]"
def sr(a, n): return f"s[{a}:{a+n-1}]"

WS_KV = 0
WS_OF = 4 << 20
WS_AT = 6 << 20
WS_FL = 8 << 20
WS_UT = 10 << 20
WS_ST = 16 << 20
F1, F2 = 0, 256
F3, F4 = 512, 544
KG = 0; KGS = 8704
KCP = 4160
UR = KG + 4 * KGS; URS = 4576
GP = UR + 2 * URS
GW = GP + 1024
CNT = GW + 2048
RING = CNT + 64
SLOT = 24576; WPART = 6144; NS = 3
WQ = RING + NS * SLOT
LDS_BYTES = WQ + 32768
EXCH = RING; RED = WQ; REDS = 4608
CRED = RING; WST = RING + 16384; WSL = 12; OFL = RING
assert RING % 256 == 0 and WST + 4 * WSL * 1024 <= WQ and LDS_BYTES <= 163840
sW, sHP, sRB, sCH, sROT = 3, 4, 5, 6, 7
SRDX, SRDW = 8, 12
pX, pAre, pAim, pBre, pBim, pCre, pCim, pLdt = 16, 18, 20, 22, 24, 26, 28, 30
pDsk, pW, pWo, pGw, pOut, pDbg, pWs = 32, 36, 38, 40, 42, 44, 46
pFL = 34
sT = 48
sSPIN = 62
sST = 64

nstamp = {"m": 0, "h": 0}
SPM, SPH = OPT.get("spm", -1), OPT.get("sph", -1)
def spin_end(role):
    if (SPM if role == "m" else SPH) < 0: return
    l = newlab("sp")
    if OPT.get("sel"):
        E(f"""
        s_lshl3_add_u32 s98, s2, s{sW}
        s_lshl_b32 s98, s98, 7
        s_add_u32 s98, s98, {40 << 20}
        v_mov_b32 v3, s98
        v_mov_b32 v4, 0x12345678
        global_load_dword v5, v3, {sr(pWs,2)} sc1
        s_waitcnt vmcnt(0)
        global_store_dword v3, v4, {sr(pWs,2)} sc1
        v_readfirstlane_b32 s98, v5
        s_waitcnt vmcnt(0)
        s_cmp_eq_u32 s98, 0x12345678
        s_cbranch_scc{OPT["sel"]-1} L_end
        """)
    E(f"{l}:\ns_memrealtime s[98:99]\ns_waitcnt lgkmcnt(0)\ns_sub_u32 s98, s98, s96\ns_cmp_lt_i32 s98, 4000\ns_cbranch_scc1 {l}")
def stamp(role):
    if SPM >= 0 or SPH >= 0:
        i = nstamp[role]; nstamp[role] += 1
        if i == (SPM if role == "m" else SPH):
            if OPT.get("amp"): E(f"s_memrealtime s[98:99]\ns_waitcnt lgkmcnt(0)\ns_sub_u32 s98, s98, s96\ns_mul_i32 s98, s98, {OPT['amp']}\ns_sub_u32 s98, s98, {OPT.get('sub',0)*100}\ns_add_u32 s96, s96, s98")
            else: E("s_memrealtime s[96:97]\ns_waitcnt lgkmcnt(0)")
        return
    if not STAMP or nstamp[role] >= 14: return
    i = nstamp[role]; nstamp[role] += 1
    E(f"s_memrealtime {sr(sST+2*i,2)}\ns_waitcnt lgkmcnt(0)")
def stamp_flush(role):
    if not STAMP: return
    E(f"s_lshl_b32 s{sT}, s2, 3\ns_add_u32 s{sT}, s{sT}, s{sW}\ns_lshl_b32 s{sT}, s{sT}, 6\ns_add_u32 s{sT}, s{sT}, {WS_ST}\nv_mov_b32 v2, s{sT}")
    for i in range(nstamp[role]):
        E(f"v_mov_b32 v3, s{sST+2*i}\nglobal_store_dword v2, v3, {sr(pWs,2)} offset:{4*i}")
    E(f"s_getreg_b32 s{sT}, hwreg(HW_REG_XCC_ID)\nv_mov_b32 v3, s{sT}\nglobal_store_dword v2, v3, {sr(pWs,2)} offset:60")

lab = [0]
def newlab(p):
    lab[0] += 1
    return f"L_{p}_{lab[0]}"

nhop = [0]
def hop():
    if not OPT["hop"]: return []
    nhop[0] += 1
    return [f"L_hop{nhop[0]-1}:", f"s_cbranch_execz L_hop{nhop[0]}"]

def poll_global(vaddr, base, vtmp):
    l = newlab("poll"); d = newlab("polld")
    E(f"""
    s_mov_b32 s{sSPIN}, {OPT['spin']}
    {l}:
    global_load_dword v{vtmp}, v{vaddr}, {sr(base,2)} sc1
    s_sub_u32 s{sSPIN}, s{sSPIN}, 1
    s_cbranch_scc1 {d}
    s_waitcnt vmcnt(0)
    v_cmp_ne_u32 vcc, 0, v{vtmp}
    s_nop 1
    s_cmp_eq_u64 vcc, -1
    s_cbranch_scc0 {l}
    {d}:
    s_waitcnt vmcnt(0)
    """)
def poll_ctr(vaddr, vtmp, test, depth=1, first=False):
    l = newlab("pc"); d = newlab("pcd"); c = newlab("pcc")
    at = lambda r: [f"v_mov_b32 v{r}, 0", f"global_atomic_add v{r}, v{vaddr}, v{r}, {sr(pFL,2)} sc0 sc1"]
    E(f"s_mov_b32 s{sSPIN}, {OPT['spin']}\ns_mov_b64 exec, 1")
    if depth == 1:
        if first: E(f"s_branch {c}")
        E(f"{l}:"); E(at(vtmp))
        if first == 2: E("s_waitcnt vmcnt(0)")
        E(f"{c}:\ns_sub_u32 s{sSPIN}, s{sSPIN}, 1\ns_cbranch_scc1 {d}\ns_waitcnt vmcnt({1 if first == 2 else 0})\nv_readfirstlane_b32 s{sSPIN+1}, v{vtmp}\ns_nop 0")
        E(test(sSPIN + 1)); E(f"s_cbranch_scc0 {l}")
    else:
        for i in range(1 if first else 0, depth - 1):
            if i: E(f"s_sleep {OPT['psl']}")
            E(at(vtmp + i))
        E(f"{l}:\ns_sub_u32 s{sSPIN}, s{sSPIN}, 1\ns_cbranch_scc1 {d}")
        for i in range(depth):
            E(at(vtmp + (i - 1) % depth))
            E(f"s_waitcnt vmcnt({depth-1})\nv_readfirstlane_b32 s{sSPIN+1}, v{vtmp+i}\ns_nop 0")
            E(test(sSPIN + 1))
            E(f"s_cbranch_scc1 {d}" if i < depth - 1 else f"s_cbranch_scc0 {l}")
    E(f"{d}:\ns_mov_b64 exec, -1")
def add_ctr(vaddr, vval, lanes):
    E(f"s_bfm_b64 exec, {lanes}, 0\nglobal_atomic_add v{vaddr}, v{vval}, {sr(pFL,2)} sc1\ns_mov_b64 exec, -1")
def put_flag(vaddr, vone, base=None):
    E(f"""
    s_mov_b64 exec, 1
    global_store_dword v{vaddr}, v{vone}, {sr(pFL if base is None else base,2)} sc1
    s_mov_b64 exec, -1
    """)
def lds_arrive(vaddr, vone):
    E(f"""
    s_mov_b64 exec, 1
    ds_add_u32 v{vaddr}, v{vone}
    s_mov_b64 exec, -1
    """)
def lds_wait(vaddr, vtmp, n):
    l = newlab("lw"); d = newlab("lwd")
    E(f"""
    s_mov_b32 s{sSPIN}, {OPT['spin']*8}
    {l}:
    ds_read_b32 v{vtmp}, v{vaddr}
    s_sub_u32 s{sSPIN}, s{sSPIN}, 1
    s_cbranch_scc1 {d}
    s_waitcnt lgkmcnt(0)
    v_readfirstlane_b32 s{sSPIN+1}, v{vtmp}
    s_nop 1
    s_cmp_ge_u32 s{sSPIN+1}, {n}
    s_cbranch_scc0 {l}
    {d}:
    s_waitcnt lgkmcnt(0)
    """)

def helper_entry():
    sH, sC, sMH, sD, sLd, sDs, t0 = sT, sT + 1, sT + 2, sT + 5, sT + 6, sT + 7, sT + 8
    E(f"L_h0:\ns_setprio {OPT['prio']}\ns_sub_u32 s{sH}, s{sW}, 4")
    if OPT["pf"]:
        E(f"""
        s_getpc_b64 s[8:9]
        L_pc:
        s_andn2_b32 s10, s2, 7
        s_lshl1_add_u32 s10, s{sH}, s10
        v_and_b32 v2, 1, v1
        v_add_lshl_u32 v2, v2, s10, 7
        v_min_u32 v2, L_end-L_pc, v2
        v_mov_b32 v3, 0
        v_lshl_add_u64 v[2:3], v[2:3], 0, s[8:9]
        global_load_dword v167, v[2:3], off
        """)
    E(f"""
    s_lshl4_add_u32 s{sCH}, s{sHP}, s{sRB}
    s_lshl2_add_u32 s{t0}, s{sCH}, s{sH}
    s_lshl_b32 s{t0}, s{t0}, 7
    v_lshl_add_u32 v2, v1, 1, s{t0}
    s_lshl_b32 s{t0+1}, s{sCH}, 2
    s_waitcnt lgkmcnt(0)
    s_load_dword s{sLd}, {sr(pLdt,2)}, s{t0+1}
    s_load_dword s{sDs}, {sr(pDsk,2)}, s{t0+1}
    """)
    for j, p in enumerate((pAre, pAim, pBre, pBim, pCre, pCim)):
        E(f"global_load_ushort v{4+j}, v2, {sr(p,2)}")
    E(f"s_and_b32 s{sMH}, s{sH}, 1\ns_lshl_b32 s{sCH}, s{sCH}, 1")

def prologue():
    if OPT.get("amp"): E("s_memrealtime s[96:97]")
    if STAMP:
        E(f"s_memrealtime {sr(sST,2)}"); nstamp["m"] = nstamp["h"] = 1
    E(f"""
    s_cmpk_ge_u32 s2, 0x100
    s_cbranch_scc1 L_end
    s_load_dwordx16 s[16:31], s[0:1], 0
    s_load_dwordx16 s[32:47], s[0:1], 64
    """)
    E(f"""
    v_lshrrev_b32 v2, 6, v0
    v_and_b32 v1, 63, v0
    v_readfirstlane_b32 s{sW}, v2
    """)
    if OPT["xm"] == 0: E(f"""
    s_bfe_u32 s{sHP}, s2, 0x30003
    s_and_b32 s{sT}, s2, 1
    s_lshl3_add_u32 s{sHP}, s{sT}, s{sHP}
    s_lshr_b32 s{sRB}, s2, 6
    s_and_b32 s{sT}, s2, 6
    s_lshl1_add_u32 s{sRB}, s{sT}, s{sRB}
    """)
    elif OPT["xm"] == 1: E(f"""
    s_bfe_u32 s{sHP}, s2, 0x10003
    s_and_b32 s{sT}, s2, 7
    s_lshl1_add_u32 s{sHP}, s{sT}, s{sHP}
    s_lshr_b32 s{sRB}, s2, 4
    """)
    else: E(f"""
    s_bfe_u32 s{sHP}, s2, 0x20003
    s_and_b32 s{sT}, s2, 3
    s_lshl2_add_u32 s{sHP}, s{sT}, s{sHP}
    s_lshr_b32 s{sRB}, s2, 5
    s_and_b32 s{sT}, s2, 4
    s_lshl1_add_u32 s{sRB}, s{sT}, s{sRB}
    """)
    if OPT["rot"] == 0:
        E(f"s_mov_b32 s{sROT}, 0")
    elif OPT["rot"] == 1:
        E(f"s_xor_b32 s{sROT}, s{sHP}, s{sRB}\ns_and_b32 s{sROT}, s{sROT}, 1\ns_lshl_b32 s{sROT}, s{sROT}, 2")
    elif OPT["rot"] == 2:
        E(f"s_lshl1_add_u32 s{sROT}, s{sRB}, s{sHP}\ns_and_b32 s{sROT}, s{sROT}, 7")
    elif OPT["rot"] == 3:
        E(f"s_lshl1_add_u32 s{sROT}, s{sRB}, s{sHP}\ns_and_b32 s{sROT}, s{sROT}, 6")
    elif OPT["rot"] == 4:
        E(f"s_lshl2_add_u32 s{sROT}, s{sHP}, s{sRB}\ns_and_b32 s{sROT}, s{sROT}, 7")
    elif OPT["rot"] == 5:
        E(f"s_add_u32 s{sROT}, s{sHP}, s{sRB}\ns_lshl_b32 s{sROT}, s{sROT}, 1\ns_and_b32 s{sROT}, s{sROT}, 6")
    elif OPT["rot"] == 6:
        E(f"s_lshl1_add_u32 s{sROT}, s{sHP}, s{sRB}\ns_and_b32 s{sROT}, s{sROT}, 7")
    elif OPT["rot"] == 7:
        E(f"s_add_u32 s{sROT}, s{sHP}, s{sRB}\ns_lshr_b32 s{sT}, s2, 2\ns_xor_b32 s{sT}, s{sT}, s2\ns_and_b32 s{sT}, s{sT}, 1\ns_lshl1_add_u32 s{sROT}, s{sROT}, s{sT}\ns_and_b32 s{sROT}, s{sROT}, 7")
    elif OPT["rot"] == 8:
        assert OPT["xm"] == 2
        E(f"s_add_u32 s{sROT}, s{sHP}, s{sRB}\ns_lshr_b32 s{sT}, s{sT}, 1\ns_add_u32 s{sT}, s{sT}, s2\ns_lshl2_add_u32 s{sROT}, s{sROT}, s{sT}\ns_and_b32 s{sROT}, s{sROT}, 7")
    else:
        E(f"s_and_b32 s{sT}, s2, 4\ns_lshl1_add_u32 s{sROT}, s2, s{sT}\ns_and_b32 s{sROT}, s{sROT}, 7")
    E(f"s_cmp_ge_u32 s{sW}, 4\ns_cbranch_scc1 L_h0")

def main_wave():
    vXD, vWD, vXA, vWA, vQA = 4, 8, 10, 14, 16
    vFB = 24
    aK, aV, aQ = 48, 64, 80
    vP = 96
    vXF = 128
    sXO, sWO, sM0, sX, sZ, sQS = 92, 93, 94, 95, 100, 101
    sKVb, sKV, sJ, sCnt, sMask = sT + 2, sT + 4, sT + 6, sT + 7, sT + 8
    ta, tb, tc = sT + 10, sT + 11, sT + 12
    sExp, sBfe, sVal = 24, 25, 26
    assert OPT['fm'] == 1
    vO, vKV = 128, 192
    (vIDX, vKA, vVA, vSA, vSB, vSV, vEW, vER0, vER1, vERV, vRW, vRWl, vRR, vRRl, vOA, vOB) = range(112, 128)
    vF2, vOne, vF2P, vOD, vOnes, vZer = range(17, 23); vOD2 = 3
    vQ = 240; SA, SB = 24, 40; vT = 56
    E(f"""
    s_lshl2_add_u32 s{sT}, s{sRB}, s{sW}
    s_lshl_b32 s{sT}, s{sT}, 15
    v_lshrrev_b32 v2, 3, v1
    v_lshl_add_u32 v2, v2, 10, s{sT}
    v_lshrrev_b32 v3, 4, v1
    v_xor_b32 v3, v3, v1
    v_and_b32 v3, 7, v3
    v_lshl_add_u32 v{vXD}, v3, 4, v2
    v_xor_b32 v{vXD+1}, 64, v{vXD}
    s_movk_i32 s{sT}, 7168
    v_add_u32 v{vXD+1}, s{sT}, v{vXD+1}
    s_movk_i32 s{sT}, 14336
    v_add_u32 v{vXD+2}, s{sT}, v{vXD}
    v_add_u32 v{vXD+3}, s{sT}, v{vXD+1}
    v_lshrrev_b32 v2, 2, v0
    v_mul_u32_u24 v2, 3072, v2
    v_and_b32 v3, 3, v1
    s_lshl2_add_u32 s{sT}, s{sHP}, 64
    v_add_u32 v3, s{sT}, v3
    v_lshl_add_u32 v{vWD}, v3, 4, v2
    s_mul_i32 s{sM0}, s{sW}, {WPART}
    s_mov_b32 s{SRDX+2}, 0x200000
    s_mov_b32 s{SRDX+3}, 0x00020000
    s_mov_b64 {sr(SRDW+2,2)}, {sr(SRDX+2,2)}
    """)
    Q3, A0 = OPT["q3"], OPT["a0"]
    assert Q3 + A0 <= 8
    rest = list(range(Q3, 8))
    att = {i: [] for i in range(10)}
    for j in range(Q3): att[j + A0].append(j)
    att[8], att[9] = rest[:4], rest[4:]
    cnt = {i: (6 if i < 8 else 0) + len(att[i]) for i in range(10)}
    sWQ = 27
    def dmaq(j):
        return [f"s_add_u32 s{sT+1}, s{sROT}, {j}", f"s_and_b32 s{sT+1}, s{sT+1}, 7", f"s_add_u32 m0, s{sWQ}, {WQ+4096*j}",
                f"s_mul_i32 s{sT+1}, s{sT+1}, 196608", f"buffer_load_dwordx4 v{vWD+1}, {sr(SRDW,4)}, s{sT+1} offen lds"]
    def dma(i, first=False):
        if i >= 8: return [dmaq(j) for j in att[i]]
        slot = i % NS
        g = []
        for seg in range(2):
            g.append([f"buffer_load_dwordx4 v{vWD}, {sr(SRDW,4)}, s{sWO} offen offset:{seg*1024} {'nt' if OPT.get('nt',0) & 1 and i < OPT.get('nts',8) else ''} lds"])
        for j in range(4):
            g.append([f"buffer_load_dwordx4 v{vXD+j}, {sr(SRDX,4)}, s{sXO} offen offset:{j*1024} {'nt' if OPT.get('nt',0) & 2 and i < OPT.get('nts',8) else ''} lds"])
        st = sROT if i == 0 else sT
        pre = [] if i == 0 else [f"s_add_u32 s{sT}, s{sROT}, {i}", f"s_and_b32 s{sT}, s{sT}, 7"]
        pre += [f"s_add_u32 m0, s{sM0}, {RING+slot*SLOT+4096}", f"s_mul_i32 s{sWO}, s{st}, 196608"]
        if first:
            pre += ["s_waitcnt lgkmcnt(0)", f"s_mov_b64 {sr(SRDW,2)}, {sr(pW,2)}", f"s_mov_b64 {sr(SRDX,2)}, {sr(pX,2)}"]
        g[0] = pre + g[0]
        g[2] = [f"s_add_u32 m0, s{sM0}, {RING+slot*SLOT}", f"s_lshl_b32 s{sXO}, s{st}, 7"] + g[2]
        if first: g[5] += [f"v_subrev_u32 v{vWD+1}, 1024, v{vWD}", f"s_lshl_b32 s{sWQ}, s{sW}, 10"]
        return g + [dmaq(j) for j in att[i]]
    for g in dma(0, True): E(g)
    E(f"""
    s_and_b32 s{sX}, s{sW}, 1
    s_lshl_b32 s{sT}, s{sX}, 10
    s_add_u32 m0, s{sT}, {GW}
    v_lshlrev_b32 v{vKA}, 4, v1
    global_load_lds_dwordx4 v{vKA}, {sr(pGw,2)}
    """)
    held = dma(1)
    for g in held[:OPT["d1"]]: E(g)
    held = held[OPT["d1"]:]
    E("s_branch L_m1")
    helper_entry(); helper_wave()
    E("L_m1:")
    stamp("m")
    if OPT["tlb"]:
        E(f"""
        s_mov_b32 s{ta}, {WS_FL + 0x100000}
        s_load_dword s18, {sr(pWs,2)}, s{ta}
        s_load_dword s19, {sr(pDbg,2)}, 128
        s_load_dword s20, {sr(pOut,2)}, 0
        s_load_dword s21, {sr(pWo,2)}, 0
        """)
    E(f"""
    s_add_u32 s{pFL}, s{pWs}, {WS_FL}
    s_addc_u32 s{pFL+1}, s{pWs+1}, 0
    s_add_u32 s{ta}, s{sM0}, {RING}
    v_and_b32 v2, 31, v1
    v_lshl_add_u32 v2, v2, 7, s{ta}
    v_bfe_u32 v3, v1, 1, 3
    v_lshrrev_b32 v{vXA+1}, 5, v1
    v_xor_b32 v3, v3, v{vXA+1}
    v_lshl_add_u32 v{vXA}, v3, 4, v2
    v_xor_b32 v{vXA+1}, 32, v{vXA}
    v_xor_b32 v{vXA+2}, 64, v{vXA}
    v_xor_b32 v{vXA+3}, 0x60, v{vXA}
    v_lshrrev_b32 v2, 5, v1
    v_lshlrev_b32 v2, 3, v2
    v_bfe_u32 v3, v1, 2, 2
    v_add_u32 v2, v2, v3
    v_lshlrev_b32 v2, 6, v2
    v_and_b32 v3, 3, v1
    v_lshl_add_u32 v2, v3, 3, v2
    v_bfe_u32 v3, v1, 4, 1
    v_lshl_add_u32 v2, v3, 5, v2
    v_add_u32 v{vWA}, {RING+4096}, v2
    v_add_u32 v{vWA+1}, {RING+4096+2*SLOT}, v2
    v_add_u32 v{vQA}, {WQ}, v2
    """)
    E(f"""
    s_lshr_b32 s{sZ}, s{sW}, 1
    s_mov_b32 s{sQS}, {fbits(0.25 * math.log2(math.e))}
    s_lshl2_add_u32 s{ta}, s{sRB}, s{sW}
    s_lshl_b32 s{ta}, s{ta}, 11
    s_lshl_b32 s{tb}, s{sHP}, 18
    s_add_u32 s{ta}, s{ta}, s{tb}
    v_add_u32 v{vSA}, s{ta}, v{vKA}
    v_add_u32 v{vSB}, 0x20000, v{vSA}
    v_and_b32 v{vVA}, 15, v1
    v_lshrrev_b32 v2, 5, v1
    v_lshl_add_u32 v{vVA}, v2, 4, v{vVA}
    v_lshlrev_b32 v{vVA}, 4, v{vVA}
    v_bfe_u32 v2, v1, 4, 1
    v_lshlrev_b32 v2, 17, v2
    v_add3_u32 v{vSV}, v2, v{vVA}, s{ta}
    s_add_u32 s{tb}, s{sM0}, {EXCH}
    v_add_u32 v{vEW}, s{tb}, v{vKA}
    s_lshl_b32 s{ta}, s{sX}, 10
    s_add_u32 s{ta}, s{ta}, {EXCH}
    s_mul_i32 s{tb}, s{sZ}, 12288
    s_add_u32 s{tc}, s{ta}, s{tb}
    v_add_u32 v{vER0}, s{tc}, v{vKA}
    s_sub_u32 s{tc}, s{ta}, s{tb}
    s_add_u32 s{tc}, s{tc}, 12288
    v_add_u32 v{vER1}, s{tc}, v{vKA}
    s_lshl_b32 s{ta}, s{sX}, 8
    s_add_u32 s{tc}, s{ta}, s{tb}
    s_add_u32 s{tc}, s{tc}, {EXCH}
    v_add_u32 v{vERV}, s{tc}, v{vKA}
    s_lshl1_add_u32 s{ta}, s{sHP}, s{sX}
    s_lshl_b32 s{tb}, s{ta}, 17
    s_lshl_b32 s{tc}, s{sZ}, 12
    s_add_u32 s{tb}, s{tb}, s{tc}
    s_add_u32 s{sKVb}, s{pWs}, s{tb}
    s_addc_u32 s{sKVb+1}, s{pWs+1}, 0
    s_lshl_b32 s{sJ}, s{sRB}, 13
    s_lshl1_add_u32 s{tb}, s{sRB}, s{sZ}
    s_lshl_b32 s{tb}, s{tb}, 6
    s_add_u32 s{tb}, s{tb}, s{ta}
    s_lshl_b32 s{tb}, s{tb}, 10
    s_add_u32 s{tb}, s{tb}, {WS_OF}
    v_add_u32 v{vOA}, s{tb}, v{vKA}
    v_add_u32 v{vOB}, 0x8000, v{vOA}
    s_mul_i32 s{ta}, s{sW}, {REDS}
    s_add_u32 s{ta}, s{ta}, {RED}
    v_add_u32 v{vRW}, s{ta}, v{vKA}
    v_lshl_add_u32 v{vRWl}, v1, 2, s{ta}
    s_xor_b32 s{ta}, s{sW}, 2
    s_mul_i32 s{ta}, s{ta}, {REDS}
    s_add_u32 s{ta}, s{ta}, {RED}
    v_add_u32 v{vRR}, s{ta}, v{vKA}
    v_lshl_add_u32 v{vRRl}, v1, 2, s{ta}
    s_lshl4_add_u32 s{ta}, s{sRB}, s{sHP}
    s_add_u32 s{ta}, s{ta}, {F2}
    s_lshl_b32 s{ta}, s{ta}, {FSH}
    v_mov_b32 v{vF2P}, s{ta}
    v_mov_b32 v{vOne}, 1
    s_lshr_b32 s{ta}, s{sHP}, 2
    s_cmp_eq_u32 s{ta}, s{sW}
    s_cselect_b32 s{sExp}, {"8, 8" if OPT["pw"] else "3, 4"}
    s_lshl_b32 s{ta}, s{ta}, 3
    s_lshl_b32 s{sVal}, 1, s{ta}
    s_lshl1_add_u32 s{ta}, s{sRB}, s{sZ}
    s_lshl3_add_u32 s{ta}, s{ta}, {F2}
    v_add_lshl_u32 v{vF2}, v1, s{ta}, {FSH}
    s_lshl3_add_u32 s{sBfe}, s{sW}, 0x80000
    {f"s_lshr_b32 s{tb}, s{sHP}, 2" if OPT["fm"] else f"s_and_b32 s{tb}, s{sHP}, 3"}
    s_lshl2_add_u32 s{ta}, s{sRB}, s{tb}
    s_lshl2_add_u32 s{ta}, s{ta}, s{sW}
    s_lshl_b32 s{ta}, s{ta}, 13
    s_add_u32 s{ta}, s{ta}, {WS_OF}
    v_add_u32 v{vOD}, s{ta}, v{vKA}
    v_mov_b32 v{vIDX}, 0xdddddddd
    v_and_b32 v2, 27, v1
    v_cmp_eq_u32 vcc, 16, v2
    v_mov_b32 v2, {CNT+32}
    v_mov_b32 v{vZer}, {CNT+16}
    s_mov_b32 s{sMask}, 0x0000ffff
    s_mov_b32 s{sMask+1}, 0x0000ffff
    v_cndmask_b32 v{vOnes}, v{vZer}, v2, vcc
    s_mov_b32 s{sCnt}, 8
    v_add_u32 v{vOD2}, 4096, v{vOD}
    """)
    def kvaddr():
        return [f"s_add_u32 s{sJ}, s{sJ}, 0x2000", f"s_and_b32 s{sJ}, s{sJ}, 0x1e000",
                f"s_add_u32 s{sKV}, s{sKVb}, s{sJ}", f"s_addc_u32 s{sKV+1}, s{sKVb+1}, 0"]
    E(kvaddr())
    def reads(n):
        i, s = n >> 2, n & 3
        slot = i % NS
        a = vWA + (slot >> 1); so = (slot & 1) * SLOT + s * WPART
        f = vFB + 8 * (n % 3)
        o = [f"ds_read_b128 {vr(vXF+4*n,4)}, v{vXA+s} offset:{slot*SLOT}"]
        for c in range(2):
            o.append(f"ds_read_b64_tr_b16 {vr(f+4*c,2)}, v{a} offset:{so+1024*c}")
            o.append(f"ds_read_b64_tr_b16 {vr(f+2+4*c,2)}, v{a} offset:{so+1024*c+256}")
        return o
    def qread(n, f):
        return [f"ds_read_b64_tr_b16 {vr(f,2)}, v{vQA} offset:{1024*n}", f"ds_read_b64_tr_b16 {vr(f+2,2)}, v{vQA} offset:{1024*n+256}"]
    def qmf(n, f): return f"v_mfma_f32_32x32x16_bf16 {vr(aQ,16)}, {vr(f,4)}, {vr(vXF+4*n,4)}, {'0' if n == 0 else vr(aQ,16)}"
    def inq(n): return n - 4 * A0 if 0 <= n - 4 * A0 < 4 * Q3 else None
    def allreads(n): return reads(n) + (qread(inq(n), vP + 4 * (n % 3)) if inq(n) is not None else [])
    def xdead(n): return [f"v_mov_b32 v{r}, 0" for r in range(vXF + 4 * n, vXF + 4 * n + 4) if r < vKV and (r - vO) % 16 < 8]
    if held:
        E(f"s_waitcnt vmcnt({OPT['d1'] + cnt[0] + 1 - OPT['d1w']})")
        for g in held: E(g)
    E(f"s_waitcnt vmcnt({cnt[1]})")
    if STAMP == 5: stamp("m")
    E("s_barrier")
    stamp("m")
    E(allreads(0) + allreads(1))
    pend = dma(2)
    while len(pend) > 4: E(pend.pop(0))
    for n in range(32):
        f = vFB + 8 * (n % 3); x = vXF + 4 * n
        c = (lambda a: "0" if n == 0 else vr(a, 16))
        m = [f"v_mfma_f32_32x32x16_bf16 {vr(aV,16)}, {vr(x,4)}, {vr(f+4,4)}, {c(aV)}",
             f"v_mfma_f32_32x32x16_bf16 {vr(aK,16)}, {vr(f,4)}, {vr(x,4)}, {c(aK)}"]
        r = allreads(n + 2) if n + 2 < 32 else []
        E(f"s_waitcnt lgkmcnt({len(allreads(n+1)) if n < 31 else 0})")
        E(m[0])
        if (n + 2) % 4 == 0 and n + 2 < 32:
            b = (n + 2) >> 2
            assert not pend
            E(f"s_waitcnt vmcnt({cnt[b+1]}) lgkmcnt(0)")
            if STAMP == 3: stamp("m")
            E("s_barrier")
            if STAMP == 2: stamp("m")
            pend = dma(b + 2)
        E(r[:3])
        if pend: E(pend.pop(0))
        E(m[1]); E(r[3:5])
        if inq(n) is not None:
            E(qmf(inq(n), vP + 4 * (n % 3)))
            if inq(n) >= 1: E(xdead(inq(n) - 1))
        E(r[5:])
        if pend: E(pend.pop(0))
    stamp("m")
    ep = [f"v_cvt_pk_bf16_f32 v{vP+j}, v{aK+2*j}, v{aK+1+2*j}" for j in range(4)]
    ep += [f"global_store_dwordx4 v{vSA}, {vr(vP,4)}, {sr(pWs,2)} sc1"]
    ep += [f"v_cvt_pk_bf16_f32 v{vP+j}, v{aK+2*j}, v{aK+1+2*j}" for j in range(4, 8)]
    ep += [f"global_store_dwordx4 v{vSB}, {vr(vP+4,4)}, {sr(pWs,2)} sc1"]
    ep += [f"v_permlane32_swap_b32 v{vP+8+a}, v{vP+10+a}" for a in (0, 1)]
    ep += [f"global_store_dwordx4 v{vSV}, {vr(vP+8,4)}, {sr(pWs,2)} offset:1024 sc1"]
    ep += [f"v_permlane32_swap_b32 v{vP+8+a}, v{vP+10+a}" for a in (4, 5)]
    ep += [f"global_store_dwordx4 v{vSV}, {vr(vP+12,4)}, {sr(pWs,2)} offset:1536 sc1"]
    LQ = OPT["lq"]
    qb = [40, 44, 24, 28, 32, 36, 64, 68, 72]
    E("s_nop 10")
    for j in range(8):
        E(f"v_cvt_pk_bf16_f32 v{vP+8+j}, v{aV+2*j}, v{aV+1+2*j}")
    cut = OPT["epc"]
    E(ep[:cut])
    E(f"s_waitcnt vmcnt({cnt[9] + sum('store' in x for x in ep[:cut])})\ns_barrier")
    if STAMP == 4: stamp("m")
    n0 = 4 * Q3
    for n in range(n0, min(32, n0 + LQ)): E(qread(n, qb[(n - n0) % 9]))
    E(ep[cut:])
    late = [f"ds_read_b128 {vr(vO+16*q+8+4*e,4)}, v{vZer}" for q in range(4) for e in range(2)]
    late += [f"ds_write_b128 v{vEW}, {vr(vP+4*j,4)} offset:{2048+1024*j}" for j in range(4)]
    late += [f"ds_read_b128 {vr(vKV+12*st+4+4*e,4)}, v{vOnes}" for st in range(4) for e in range(2)]
    nl = 0
    ackn = 32 - OPT["ackr"]
    assert not att[9] or ackn > n0 + 16 - LQ
    for n in range(n0, 32):
        E(f"s_waitcnt lgkmcnt({min(15, 2*min(LQ-1, 31-n) + nl)})")
        E(qmf(n, qb[(n - n0) % 9]))
        if n == max(n0, ackn):
            if STAMP == 4: stamp("m")
            E("s_waitcnt vmcnt(0)\ns_barrier")
            if STAMP == 4: stamp("m")
        if n + LQ < 32:
            if n + LQ == n0 + 16:
                if STAMP == 4: stamp("m")
                E("s_waitcnt vmcnt(4)\ns_barrier")
                if STAMP == 4: stamp("m")
            E(qread(n + LQ, qb[(n + LQ - n0) % 9]))
        else:
            E(late[:2]); late = late[2:]; nl += 2
        if n >= 1: E(xdead(n - 1))
    E(late)
    E(f"s_nop {max(0, 11 - len(late))}")
    for o in (0, 1):
        for j in range(8):
            E(f"v_mul_f32 v{aQ+8*o+j}, s{sQS}, v{aQ+8*o+j}")
        for j in range(4):
            E(f"v_cvt_pk_bf16_f32 v{aK+4*o+j}, v{aQ+8*o+2*j}, v{aQ+8*o+1+2*j}")
        E(f"ds_write_b128 v{vEW}, {vr(aK+4*o,4)} offset:{1024*o}")
    if STAMP == 4: stamp("m"); E("s_waitcnt vmcnt(0)"); stamp("m")
    LATE = ackn > 31 or n0 == 32
    E("s_waitcnt lgkmcnt(0)\ns_barrier")
    stamp("m")
    E(f"""
    ds_read_b128 {vr(vQ,4)}, v{vER1}
    ds_read_b128 {vr(vKV,4)}, v{vER0} offset:2048
    ds_read_b128 {vr(vQ+4,4)}, v{vER1} offset:6144
    s_mov_b64 exec, {sr(sMask,2)}
    ds_read_b128 {vr(vKV+4,4)}, v{vERV} offset:4096
    ds_read_b128 {vr(vKV+8,4)}, v{vERV} offset:5120
    ds_read_b128 {vr(vKV+16,4)}, v{vERV} offset:{4096+6144}
    ds_read_b128 {vr(vKV+20,4)}, v{vERV} offset:{5120+6144}
    s_mov_b64 exec, -1
    ds_read_b128 {vr(vQ+8,4)}, v{vER0}
    ds_read_b128 {vr(vQ+12,4)}, v{vER0} offset:6144
    ds_read_b128 {vr(vKV+12,4)}, v{vER0} offset:{2048+6144}
    s_waitcnt lgkmcnt(8)
    v_mfma_f32_32x32x16_bf16 {vr(SA,16)}, {vr(vKV,4)}, {vr(vQ,4)}, 0
    v_mov_b32 v6, 0
    v_mov_b32 v4, 0
    v_mov_b32 v5, s{sVal}
    v_mov_b32 v2, s{sW}
    s_lshl_b32 s{sXO}, s{sW}, 13
    s_add_u32 m0, s{sXO}, {OFL}
    s_nop 4
    s_waitcnt lgkmcnt(0)
    """)
    def kload(st, par):
        return [f"global_load_dwordx4 {vr(vKV+12*st,4)}, v{vKA}, {sr(sKV,2)} offset:{par*2048} sc1"]
    def vload(st, par):
        return [f"s_mov_b64 exec, {sr(sMask,2)}",
                f"global_load_dwordx4 {vr(vKV+12*st+4,4)}, v{vVA}, {sr(sKV,2)} offset:{par*2048+1024} sc1",
                f"global_load_dwordx4 {vr(vKV+12*st+8,4)}, v{vVA}, {sr(sKV,2)} offset:{par*2048+1536} sc1",
                "s_mov_b64 exec, -1"]
    def step(t, q, mode="loop", lo=0, hi=16, extra=None):
        cur, oth = (SA, SB) if q % 2 == 0 else (SB, SA)
        tp, qp = (t, q - 1) if q else ((t - 1) % 4, 3)
        tn, qn = (t, q + 1) if q < 3 else ((t + 1) % 4, 0)
        after2, afterq, after1 = extra or ([], [], [])
        st = (t + 3) % 4; par = (t + 3) & 1
        if mode == "loop":
            if q == 0:
                after2 = vload(st, par); afterq = kload(st, par)
            if q == 1 and par == 1:
                ka = kvaddr(); after2 = ka[:2]; after1 = ka[2:]
            if q == 3:
                after2 = ["s_waitcnt vmcnt(6)"]
                if t == 2:
                    after2 += [f"s_sub_u32 s{sCnt}, s{sCnt}, 1"]; afterq = [f"s_cmp_lg_u32 s{sCnt}, 0"]
        for i in range(lo, hi):
            E(f"v_exp_f32 v{cur+i}, v{cur+i}")
            if i == 1 and not (mode == "first" and q == 0):
                E(f"v_smfmac_f32_32x32x32_bf16 {vr(vO+16*qp,16)}, {vr(vKV+12*tp+8,4)}, {vr(oth+8,8)}, v{vIDX}")
                E(after2)
            if i == 4 and not (mode == "last" and q == 3):
                E(f"v_mfma_f32_32x32x16_bf16 {vr(oth,16)}, {vr(vKV+12*tn,4)}, {vr(vQ+4*qn,4)}, 0")
                E(afterq)
            if i == 10:
                E(f"v_smfmac_f32_32x32x32_bf16 {vr(vO+16*q,16)}, {vr(vKV+12*t+4,4)}, {vr(cur,8)}, v{vIDX}")
                E(after1)
    ackq = -OPT["ackr"] if LATE else -1
    assert ackq < OPT["bp"]
    for q in range(4):
        if q == ackq: E("s_waitcnt vmcnt(0)\ns_barrier")
        if q == OPT["bp"] - 1:
            step(0, q, "first", hi=11)
            E("s_barrier")
            stamp("m")
            E(kload(2, 0) + vload(2, 0)[:3] + vload(3, 1)[1:] + kload(3, 1) + kvaddr())
            step(0, q, "first", lo=11)
        else:
            step(0, q, "first")
    E("s_branch L_attn1\n.p2align 3\nL_attn:")
    step(2, 3, lo=11)
    for t in (3, 0, 1, 2):
        if t == 1: E("L_attn1:")
        for q in range(4): step(t, q, hi=(11 if (t, q) == (2, 3) else 16))
    if OPT.get("itst"):
        E(f"s_memtime s[90:91]\ns_mov_b32 s89, m0\ns_mov_b32 m0, s{sCnt}\ns_waitcnt lgkmcnt(0)\nv_writelane_b32 v23, s90, m0\ns_mov_b32 m0, s89")
    E("s_cbranch_scc1 L_attn")
    step(2, 3, lo=11)
    vR = 64
    def sendw(q): return [f"ds_write_b128 v{vRW}, {vr(vO+16*q,4)} offset:{2048*q}", f"ds_write_b128 v{vRW}, {vr(vO+16*q+4,4)} offset:{2048*q+1024}",
                          f"ds_write_b32 v{vRWl}, v{vO+16*q+8} offset:{4096+256*q}"]
    recv = ["s_waitcnt lgkmcnt(0)", "s_barrier",
            f"ds_read_b32 v{vR+16}, v{vRRl} offset:4096", f"ds_read_b128 {vr(vR,4)}, v{vRR}", f"ds_read_b128 {vr(vR+4,4)}, v{vRR} offset:1024",
            f"ds_read_b32 v{vR+17}, v{vRRl} offset:4352", f"ds_read_b128 {vr(vR+8,4)}, v{vRR} offset:2048", f"ds_read_b128 {vr(vR+12,4)}, v{vRR} offset:3072"]
    pol0 = ["s_mov_b64 exec, 1", f"global_atomic_add v6, v{vF2P}, v6, {sr(pFL,2)} sc0 sc1", "s_mov_b64 exec, -1"]
    step(3, 0, "last", extra=(hop(), [], [])); step(3, 1, "last", extra=(pol0 if OPT["pre"] == 1 else [], [], hop()))
    w0 = sendw(0)
    step(3, 2, "last", extra=(w0[:1], w0[1:2], (pol0 if OPT["pre"] == 2 else []) + w0[2:]))
    step(3, 3, "last", extra=(hop() + sendw(1), [], recv))
    O2, O3 = vO + 32, vO + 48
    E(f"""
    s_waitcnt lgkmcnt(3)
    v_add_f32 v{O2+8}, v{O2+8}, v{vR+16}
    v_smfmac_f32_32x32x32_bf16 {vr(O3,16)}, {vr(vKV+36+8,4)}, {vr(SB+8,8)}, v{vIDX}
    """)
    E(hop())
    stamp("m")
    def fin(o, r, rl, dst, addr):
        if rl is not None: E(f"v_add_f32 v{o+8}, v{o+8}, v{rl}")
        E(f"v_rcp_f32 v{vT}, v{o+8}")
        if rl is not None:
            for j in range(0, 8, 2): E(f"v_pk_add_f32 {vr(o+j,2)}, {vr(o+j,2)}, {vr(r+j,2)}")
            for j in range(0, 8, 2): E(f"v_pk_mul_f32 {vr(o+j,2)}, {vr(o+j,2)}, {vr(vT,2)} op_sel_hi:[1,0]")
            for j in range(4): E(f"v_cvt_pk_bf16_f32 v{dst+j}, v{o+2*j}, v{o+2*j+1}")
            E(f"global_store_dwordx4 v{addr}, {vr(dst,4)}, {sr(pWs,2)} sc1")
            return
        if r is not None:
            for j in range(8): E(f"v_add_f32 v{o+j}, v{o+j}, v{r+j}")
        else:
            E("s_nop 0")
        for j in range(8): E(f"v_mul_f32 v{o+j}, v{o+j}, v{vT}")
        for j in range(4): E(f"v_cvt_pk_bf16_f32 v{dst+j}, v{o+2*j}, v{o+2*j+1}")
        E(f"global_store_dwordx4 v{addr}, {vr(dst,4)}, {sr(pWs,2)} sc1")
    fin(O2, vR, None, SA, vOA)
    E("s_waitcnt lgkmcnt(0)")
    E(hop())
    fin(O3, vR + 8, vR + 17, SA + 4, vOB)
    assert OPT["ep"] and OPT["pw"]
    if OPT["ep"]: E(f"s_mov_b64 exec, 1\nglobal_atomic_add v4, v{vF2P}, v4, {sr(pFL,2)} sc0 sc1\ns_mov_b64 exec, -1")
    E(hop())
    E(f"""
    s_mov_b32 s{ta}, {fbits(2.0**-30)}
    s_mov_b32 s{tb}, {fbits(2.0**50)}
    v_min_f32 v{vT+6}, v{O2+8}, v{O3+8}
    v_max_f32 v{vT+7}, v{O2+8}, v{O3+8}
    v_cmp_lt_f32 vcc, s{ta}, v{vT+6}
    v_cmp_gt_f32 {sr(tc,2)}, s{tb}, v{vT+7}
    v_pk_mul_f32 {vr(vT+2,2)}, {vr(O2,2)}, 0 op_sel_hi:[1,0]
    s_and_b64 {sr(tc,2)}, {sr(tc,2)}, vcc
    """)
    for j in (2, 4, 6, 16, 18, 20, 22):
        E(f"v_pk_fma_f32 {vr(vT+2,2)}, {vr(O2+j,2)}, 0, {vr(vT+2,2)} op_sel_hi:[1,0,1]")
    E(f"""
    v_cmp_o_f32 vcc, v{vT+2}, v{vT+3}
    s_nop 1
    s_and_b64 vcc, {sr(tc,2)}, vcc
    s_cmp_eq_u64 vcc, -1
    s_cbranch_scc0 L_safe
    """)
    test = lambda r: [f"s_bfe_u32 s{r}, s{r}, s{sBfe}", f"s_cmp_eq_u32 s{r}, s{sExp}"]
    def odma():
        for j in range(4):
            E(f"global_load_lds_dwordx4 v{vOD}, {sr(pWs,2)} offset:{1024*j} sc1")
        E(f"s_add_u32 m0, s{sXO}, {OFL+4096}")
        E(hop() or ["s_nop 0"])
        for j in range(4):
            E(f"global_load_lds_dwordx4 v{vOD2}, {sr(pWs,2)} offset:{1024*j} sc1")
    if OPT["pre"]:
        E(f"s_waitcnt vmcnt(3)\nv_readfirstlane_b32 s{ta}, v6\ns_nop 0")
        E(test(ta)); E("s_cbranch_scc0 L_late")
        odma()
        E("s_waitcnt vmcnt(9)")
        add_ctr(vF2, 5, 8)
        n0 = nstamp["m"]; stamp("m"); stamp("m"); nstamp["m"] = n0
        E("s_waitcnt vmcnt(1)\ns_branch L_got\nL_late:")
    E("s_waitcnt vmcnt(1)\nL_pub:")
    add_ctr(vF2, 5, 8)
    stamp("m")
    poll_ctr(vF2P, 4, test, OPT["pd"], 2)
    stamp("m")
    odma()
    E(f"s_waitcnt vmcnt(0)\nL_got:\nds_write_b8 v2, v{vOne} offset:{CNT+12}")
    stamp("m")
    if OPT["hop"]: E(f"L_hop{nhop[0]}:\ns_cbranch_execz L_hopdone")
    stamp_flush("m"); spin_end("m")
    if OPT.get("itst"):
        E(f"v_lshl_add_u32 v2, v1, 2, v2\nv_add_u32 v2, 0x100000, v2\ns_mov_b64 exec, 0xff\nglobal_store_dword v2, v23, {sr(pWs,2)}")
    E("s_endpgm")
    vM, vC = vT + 6, 64
    vQ += 8; vO += 32
    E(f"""
    L_safe:
    s_waitcnt vmcnt(0)
    s_lshl_b32 s{ta}, s{sZ}, 12
    s_sub_u32 s{sKVb}, s{sKVb}, s{ta}
    s_subb_u32 s{sKVb+1}, s{sKVb+1}, 0
    s_mov_b32 s{sKV}, s{sKVb}
    s_mov_b32 s{sKV+1}, s{sKVb+1}
    s_mov_b32 s{sCnt}, 64
    v_mov_b32 v{vM}, 0xff800000
    v_mov_b32 v{vM+1}, 0xff800000
    L_safe1:
    global_load_dwordx4 {vr(vKV,4)}, v{vKA}, {sr(sKV,2)} sc1
    s_add_u32 s{sKV}, s{sKV}, 2048
    s_addc_u32 s{sKV+1}, s{sKV+1}, 0
    s_waitcnt vmcnt(0)
    v_mfma_f32_32x32x16_bf16 {vr(SA,16)}, {vr(vKV,4)}, {vr(vQ,4)}, 0
    v_mfma_f32_32x32x16_bf16 {vr(SB,16)}, {vr(vKV,4)}, {vr(vQ+4,4)}, 0
    s_nop 15
    """)
    for j in range(8):
        E(f"v_max3_f32 v{vM}, v{SA+2*j}, v{SA+2*j+1}, v{vM}\nv_max3_f32 v{vM+1}, v{SB+2*j}, v{SB+2*j+1}, v{vM+1}")
    E(f"""
    s_sub_u32 s{sCnt}, s{sCnt}, 1
    s_cmp_lg_u32 s{sCnt}, 0
    s_cbranch_scc1 L_safe1
    v_mov_b32 v{SA}, v{vM}
    v_mov_b32 v{SB}, v{vM+1}
    s_nop 1
    v_permlane32_swap_b32 v{SA}, v{vM}
    v_permlane32_swap_b32 v{SB}, v{vM+1}
    s_nop 1
    v_max_f32 v{vM}, v{vM}, v{SA}
    v_max_f32 v{vM+1}, v{vM+1}, v{SB}
    """)
    for j in range(16):
        E(f"v_sub_f32 v{vC+j}, 0, v{vM}\nv_sub_f32 v{vC+16+j}, 0, v{vM+1}\nv_mov_b32 v{vO+j}, 0\nv_mov_b32 v{vO+16+j}, 0")
    E(f"""
    s_mov_b32 s{sKV}, s{sKVb}
    s_mov_b32 s{sKV+1}, s{sKVb+1}
    s_mov_b32 s{sCnt}, 64
    L_safe2:
    """)
    E(kload(0, 0) + vload(0, 0))
    E(f"""
    s_add_u32 s{sKV}, s{sKV}, 2048
    s_addc_u32 s{sKV+1}, s{sKV+1}, 0
    s_waitcnt vmcnt(0)
    v_mfma_f32_32x32x16_bf16 {vr(SA,16)}, {vr(vKV,4)}, {vr(vQ,4)}, {vr(vC,16)}
    v_mfma_f32_32x32x16_bf16 {vr(SB,16)}, {vr(vKV,4)}, {vr(vQ+4,4)}, {vr(vC+16,16)}
    s_nop 15
    """)
    for j in range(32):
        E(f"v_exp_f32 v{SA+j}, v{SA+j}")
    E(f"""
    s_nop 1
    v_smfmac_f32_32x32x32_bf16 {vr(vO,16)}, {vr(vKV+4,4)}, {vr(SA,8)}, v{vIDX}
    v_smfmac_f32_32x32x32_bf16 {vr(vO,16)}, {vr(vKV+8,4)}, {vr(SA+8,8)}, v{vIDX}
    v_smfmac_f32_32x32x32_bf16 {vr(vO+16,16)}, {vr(vKV+4,4)}, {vr(SB,8)}, v{vIDX}
    v_smfmac_f32_32x32x32_bf16 {vr(vO+16,16)}, {vr(vKV+8,4)}, {vr(SB+8,8)}, v{vIDX}
    s_sub_u32 s{sCnt}, s{sCnt}, 1
    s_cmp_lg_u32 s{sCnt}, 0
    s_cbranch_scc1 L_safe2
    s_nop 15
    """)
    fin(O2, None, None, SA, vOA); fin(O3, None, None, SA + 4, vOB)
    E("s_waitcnt vmcnt(0)\ns_branch L_pub")

def helper_wave():
    sH, sC, sMH, sRT, sCB, sD = sT, sT + 1, sT + 2, sT + 3, sT + 4, sT + 5
    sLd, sDs = sT + 6, sT + 7
    t0 = sT + 8
    sLead, sWst, sPar = 92, 93, 94
    sAT = 100
    vGW = 156
    vGWA = 155
    vXF = 160
    vG, vGA0, vGA1 = 164, 165, 166
    vU = 168
    vKW = 128
    vNb, vPad, vF4, vF4P, vRdy, vF1, vF1P = range(141, 148)
    vTA, vTS = 148, 152
    sUW = sT + 13; sOut = sT + 12
    assert NS == 3
    vPar = 4
    E(f"""
    L_helper:
    s_lshr_b32 s{sC}, s{sH}, 1
    s_add_u32 s{sD}, s{sCH}, s{sC}
    s_and_b32 s{sCB if OPT["fm"] else sRT}, s{sHP}, 3
    s_lshr_b32 s{sRT if OPT["fm"] else sCB}, s{sHP}, 2
    v_lshrrev_b32 v3, 5, v1
    v_lshlrev_b32 v3, 4, v3
    s_lshl_b32 s{t0+2}, s{sROT}, 2
    s_add_u32 s{t0+2}, s{t0+2}, s{sH}
    s_lshl_b32 s{t0+2}, s{t0+2}, 5
    s_add_u32 s{t0+2}, s{t0+2}, {GW}
    v_add_u32 v{vGWA}, s{t0+2}, v3
    v_mov_b32 v12, 0
    v_mov_b32 v13, 0
    v_mov_b32 v14, 0
    v_mov_b32 v15, 0
    s_cmp_lt_u32 s2, 16
    s_cselect_b32 s{sLead}, s{sW}, 0
    """)
    E(f"s_add_u32 s{pFL}, s{pWs}, {WS_FL}\ns_addc_u32 s{pFL+1}, s{pWs+1}, 0")
    stamp("h")
    E(f"""
    s_mul_i32 s{t0}, s{sC}, {URS}
    s_add_u32 s{t0}, s{t0}, {UR+4096}
    v_lshl_add_u32 v10, v1, 4, s{t0}
    v_and_b32 v11, 1, v1
    v_lshlrev_b32 v11, 4, v11
    v_cmp_gt_u32 vcc, 30, v1
    v_add_u32 v11, {CNT}, v11
    v_mov_b32 v2, 0x3f803f80
    v_cndmask_b32 v10, v11, v10, vcc
    ds_write_b128 v10, v[12:15]
    v_and_b32 v11, 3, v1
    v_lshlrev_b32 v11, 2, v11
    ds_write_b32 v11, v2 offset:{CNT+32}
    """)
    vWA, vRA = 16, 17
    if "prio1" in OPT: E(f"s_setprio {OPT['prio1']}")
    E(f"""
    s_mul_i32 s{t0}, s{sRT}, {WPART}
    s_add_u32 s{t0}, s{t0}, {RING}
    v_and_b32 v10, 31, v1
    v_lshl_add_u32 v10, v10, 7, s{t0}
    v_bfe_u32 v11, v1, 1, 3
    v_lshrrev_b32 v3, 5, v1
    v_xor_b32 v11, v11, v3
    s_lshl_b32 s{t0}, s{sH}, 1
    v_xor_b32 v11, s{t0}, v11
    v_lshl_add_u32 v{vGA0}, v11, 4, v10
    v_mov_b32 v{vG}, 0
    s_lshr_b32 s{sUW}, s{sHP}, 1
    s_sub_u32 s{sUW}, s{sUW}, s{sROT}
    s_and_b32 s{sUW}, s{sUW}, 7
    s_mul_i32 s{t0}, s{sUW}, 11
    s_lshr_b32 s{t0}, s{t0}, 5
    s_mul_i32 s{t0}, s{t0}, 3
    s_sub_u32 s{t0}, s{sUW}, s{t0}
    s_mul_i32 s{t0}, s{t0}, {SLOT}
    s_mul_i32 s{t0+1}, s{sH}, {WPART}
    s_add_u32 s{t0}, s{t0}, s{t0+1}
    s_add_u32 s{t0}, s{t0}, {RING}
    v_and_b32 v10, 3, v1
    v_bfe_u32 v11, v1, 2, 2
    v_lshlrev_b32 v10, 3, v10
    v_sub_u32 v10, v10, v11
    v_add_u32 v10, 7, v10
    v_bfe_u32 v11, v10, 1, 3
    v_xor_b32 v11, v11, v3
    s_and_b32 s{t0+1}, s{sHP}, 1
    s_lshl_b32 s{t0+1}, s{t0+1}, 2
    v_xor_b32 v11, s{t0+1}, v11
    v_lshlrev_b32 v11, 4, v11
    v_lshl_add_u32 v11, v10, 7, v11
    v_bfe_u32 v10, v1, 4, 1
    v_lshl_add_u32 v11, v10, 3, v11
    v_add_u32 v{vTA}, s{t0}, v11
    v_xor_b32 v{vTA+1}, 32, v{vTA}
    v_subrev_u32 v{vTA+2}, 512, v{vTA}
    v_subrev_u32 v{vTA+3}, 512, v{vTA+1}
    s_mul_i32 s{t0}, s{sH}, {KGS}
    s_add_u32 s{t0}, s{t0}, {KG}
    s_mov_b32 m0, s{t0}
    v_and_b32 v10, 31, v1
    v_mul_u32_u24 v10, 272, v10
    v_lshl_add_u32 v10, v3, 4, v10
    v_add_u32 v{vRA}, s{t0}, v10
    """)
    K = []
    def k(s, c=None):
        if isinstance(s, list): s = "\n".join(s)
        for x in s.split("\n"):
            x = x.strip()
            if not x: continue
            cc = c if c is not None else (8 if any(t in x for t in ("v_exp", "v_sin", "v_cos", "v_rcp", "ds_")) else 4)
            K.append((cc, x))
    va, vb, vt = 220, 221, 222
    log2e = math.log2(math.e)
    c_hi = struct.unpack("<f", struct.pack("<f", log2e))[0]
    c_lo = log2e - c_hi
    k(f"""
    s_waitcnt lgkmcnt(0)
    s_lshl_b32 s{t0}, s{sC}, 4
    s_lshr_b32 s{sLd}, s{sLd}, s{t0}
    s_lshl_b32 s{sLd}, s{sLd}, 16
    s_lshr_b32 s{sDs}, s{sDs}, s{t0}
    s_lshl_b32 s{sDs}, s{sDs}, 16
    s_mov_b32 s{t0}, {fbits(c_hi)}
    v_mov_b32 v{vt}, s{sLd}
    v_mul_f32 v{vt+1}, s{t0}, v{vt}
    v_fma_f32 v{vt+2}, v{vt}, s{t0}, -v{vt+1}
    v_fmac_f32 v{vt+2}, {fbits(c_lo)}, v{vt}
    v_exp_f32 v{vt+1}, v{vt+1}
    v_mul_f32 v{vt+2}, {fbits(math.log(2.0))}, v{vt+2}
    v_fma_f32 v{vt+1}, v{vt+1}, v{vt+2}, v{vt+1}
    v_cvt_pk_bf16_f32 v{vt+1}, v{vt+1}, v{vt+1}
    v_lshlrev_b32 v{vt}, 16, v{vt+1}
    """)
    KPRE = [x for _, x in K]; K.clear()
    k("s_waitcnt vmcnt(0)")
    for j in range(6):
        k(f"v_lshlrev_b32 v{vPar+j}, 16, v{vPar+j}")
    k(f"""
    v_mul_f32 v{va}, v{vt}, v{vPar}
    v_mul_f32 v{vb}, v{vt}, v{vPar+1}
    v_mul_f32 v{vPar+2}, v{vt}, v{vPar+2}
    v_mul_f32 v{vPar+3}, v{vt}, v{vPar+3}
    v_mul_f32 v{va}, {fbits(c_hi)}, v{va}
    v_mul_f32 v{vb}, 0.15915494, v{vb}
    """)
    def cmul(z, x, w):
        return [f"v_mul_f32 v{z}, v{x}, v{w}\nv_mul_f32 v{z+1}, v{x}, v{w+1}",
                f"v_fma_f32 v{z}, -v{x+1}, v{w+1}, v{z}\nv_fmac_f32 v{z+1}, v{x+1}, v{w}"]
    def cmuls(lst):
        cm = [cmul(*a) for a in lst]
        k([c[0] for c in cm]); k([c[1] for c in cm])
    def direct(z, x):
        k(f"""
        v_mul_f32 v{vt+2}, {fbits(x)}, v{vb}
        v_mul_f32 v{vt+1}, {fbits(x)}, v{va}
        v_fract_f32 v{vt+2}, v{vt+2}
        v_exp_f32 v{vt+1}, v{vt+1}
        v_cos_f32 v{z}, v{vt+2}
        v_sin_f32 v{z+1}, v{vt+2}
        s_nop 0
        v_mul_f32 v{z}, v{z}, v{vt+1}
        v_mul_f32 v{z+1}, v{z+1}, v{vt+1}
        """)
    E1, E32, E256 = 226, 228, 230
    vE = 232
    vPk = 64
    npk = [0]
    DW = {False: [], True: []}
    def puts(lst, neg):
        for z, rows in lst:
            p = vPk + npk[0]; npk[0] += 1
            k(f"v_cvt_pk_bf16_f32 v{p}, v{z}, {'-' if neg else ''}v{z+1}")
            DW[neg] += [f"ds_write_addtid_b32 v{p} offset:{272*r}" for r in rows]
    def e(j): return vE + 2 * (j % 8)
    direct(e(1), 8.0); direct(E32, 32.0)
    k(f"v_mov_b32 v{e(0)}, 1.0\nv_mov_b32 v{e(0)+1}, 0\nv_mov_b32 v{e(4)}, v{E32}\nv_mov_b32 v{e(4)+1}, v{E32+1}")
    cmuls([(e(2), e(1), e(1)), (e(5), e(1), E32)])
    cmuls([(e(3), e(2), e(1)), (e(6), e(2), E32)])
    cmuls([(e(7), e(3), E32)])
    puts([(e(j), [j]) for j in range(4)], False)
    for j0 in range(4, 32, 4):
        if j0 + 4 < 32: cmuls([(e(j + 4), e(j), E32) for j in range(j0, j0 + 4)])
        puts([(e(j), [j]) for j in range(j0, j0 + 4)], False)
    vEF, vGF, vD = 192, 224, 176
    direct(E1, 1.0); direct(E256, 256.0)
    def row(r, h): return 8 * (r >> 2) + 4 * h + (r & 3)
    vGv = 192
    g = {x: vGv + 2 * x for x in range(9)}
    E2 = e(0)
    cmuls([(g[0], vPar + 4, vPar + 2), (E2, E1, E1)])
    cmuls([(g[1], g[0], E1), (g[2], g[0], E2)])
    cmuls([(g[3], g[1], E2), (g[4], g[2], E2)])
    puts([(g[x], [row(x, 0)]) for x in range(4)], True)
    cmuls([(g[5], g[3], E2), (g[6], g[4], E2)])
    cmuls([(g[7], g[5], E2), (g[8], g[6], E2)])
    puts([(g[x], [row(x, 0)]) for x in range(4, 8)], True)
    A = {o: vGv + 18 + 2 * i for i, o in enumerate((0, 2, 4, 6, 8))}
    cmuls([(A[o], g[o], E256) for o in (0, 2, 4, 6, 8)])
    puts([(A[o], [row(r, 1) for r in rs]) for o, rs in ((0, (0, 1)), (2, (2,)), (4, (3, 4, 5)), (6, (6,)), (8, (7,)))], True)
    src, dst = A, g
    for os_, r0, h in (((0, 4, 8), 8, 0), ((0, 4, 8), 8, 1), ((0, 8), 11, 0), ((0, 8), 11, 1), ((0, 8), 13, 0), ((0, 8), 13, 1)):
        cmuls([(dst[o], src[o], E256) for o in os_])
        puts([(dst[o], [row(r0 + i, h)]) for i, o in enumerate(os_)], True)
        src, dst = dst, src
    def D1(): E(DW[False] + [f"ds_read_b128 {vr(vEF+4*s,4)}, v{vRA} offset:{32*s}" for s in range(8)])
    def D2(): E(DW[True] + [f"ds_read_b128 {vr(vGF+4*s,4)}, v{vRA} offset:{32*s}" for s in range(8)])
    (vCP, vAA, vBA, vUW, vCW, vCR, vAT, vF3, vWoG, vWoL, vF3P, vAL, vGPw, vGPr, vWoP, vUL, vClO, vOne, vCA, vTm, vomg, vg, vOut, vOL) = range(24, 48)
    vA = 48; vAcc = 96; vF2 = 3; vON = 2; vF2v = 23; vXR, vSA, vSB, vSV = 124, 125, 126, 127
    LQH = {0: 2, 1: 0, 2: 1}[OPT["xm"]]
    LOH = [{0: 2, 1: 1, 2: 1}, {0: 3, 1: 2, 2: 3}][OPT["fm"]][OPT["xm"]]
    ADDR = f"""
    v_mov_b32 v{vCA}, {CNT}
    s_lshl_b32 s{t0}, s{sC}, 2
    s_add_u32 s{t0}, s{t0}, {CNT+4}
    v_mov_b32 v{vCP}, s{t0}
    v_mov_b32 v{vOne}, 1
    v_lshlrev_b32 v23, 4, v1
    s_lshl_b32 s{t0}, s{sH}, 10
    s_sub_u32 s{t0}, {UR+4080-512}, s{t0}
    v_lshrrev_b32 v18, 1, v1
    v_lshlrev_b32 v19, 4, v18
    v_sub_u32 v19, s{t0}, v19
    v_and_b32 v20, 1, v1
    v_mul_u32_u24 v21, {URS}, v20
    v_add_u32 v{vUW}, v19, v21
    s_lshr_b32 s{t0}, s{sCH}, 2
    s_lshl_b32 s{t0}, s{t0}, 14
    s_lshl_b32 s{t0+1}, s{sH}, 12
    s_add_u32 s{t0}, s{t0}, s{t0+1}
    s_and_b32 s{t0+1}, s{sRB}, 1
    s_lshl_b32 s{t0+1}, s{t0+1}, 5
    s_add_u32 s{t0}, s{t0}, s{t0+1}
    s_add_u32 s{t0}, s{t0}, {WS_UT}
    v_lshl_add_u32 v18, v18, 6, s{t0}
    v_lshl_add_u32 v{vUL}, v20, 4, v18
    v_and_b32 v18, 15, v1
    v_add_u32 v19, 1, v18
    v_and_b32 v20, 3, v19
    v_mul_u32_u24 v20, {KCP}, v20
    v_lshrrev_b32 v19, 2, v19
    v_lshl_add_u32 v20, v19, 3, v20
    v_lshrrev_b32 v21, 4, v1
    v_lshlrev_b32 v22, 4, v21
    s_mul_i32 s{t0}, s{sC}, {2*KGS}
    s_lshl_b32 s{t0+1}, s{sMH}, 8
    s_add_u32 s{t0}, s{t0}, s{t0+1}
    s_add_u32 s{t0}, s{t0}, {KG}
    v_add3_u32 v{vAA}, v20, v22, s{t0}
    s_mul_i32 s{t0}, s{sC}, {URS}
    s_add_u32 s{t0}, s{t0}, s{t0+1}
    s_add_u32 s{t0}, s{t0}, {UR+4064-3584}
    v_lshlrev_b32 v19, 5, v18
    v_sub_u32 v22, v22, v19
    v_add_u32 v{vBA}, s{t0}, v22
    s_lshl_b32 s{t0}, s{sH}, 12
    s_add_u32 s{t0}, s{t0}, {CRED}
    v_add_u32 v{vCW}, s{t0}, v23
    s_xor_b32 s{t0}, s{sH}, 1
    s_lshl_b32 s{t0}, s{t0}, 12
    s_add_u32 s{t0}, s{t0}, {CRED}
    v_add_u32 v{vCR}, s{t0}, v23
    v_add_u32 v{vOL}, {OFL}, v23
    v_lshrrev_b32 v19, 1, v18
    v_lshlrev_b32 v19, 15, v19
    v_and_b32 v20, 1, v1
    v_lshl_add_u32 v19, v20, 5, v19
    v_lshl_add_u32 v{vAT}, v21, 3, v19
    s_lshl_b32 s{t0}, s{sMH}, 20
    s_lshl_b32 s{t0+1}, s{sD}, 6
    s_add_u32 s{t0}, s{t0}, s{t0+1}
    s_add_u32 s{t0}, s{t0}, {WS_AT}
    s_add_u32 s{sAT}, s{pWs}, s{t0}
    s_addc_u32 s{sAT+1}, s{pWs+1}, 0
    s_lshl4_add_u32 s{t0}, s{sMH}, s{sHP}
    s_add_u32 s{t0}, s{t0}, {F3}
    s_lshl_b32 s{t0}, s{t0}, {FSH}
    v_mov_b32 v{vF3}, s{t0}
    s_mov_b32 s{SRDW}, s{pWo}
    s_mov_b32 s{SRDW+1}, s{pWo+1}
    s_mov_b32 s{SRDW+2}, {512*1024}
    s_mov_b32 s{SRDW+3}, 0x00020000
    s_lshl_b32 s{t0}, s{sCB}, 2
    s_add_u32 s{t0}, s{t0}, s{sH}
    s_lshl_b32 s{t0+1}, s{t0}, 6
    v_lshrrev_b32 v18, 2, v1
    v_lshl_add_u32 v18, v18, 10, s{t0+1}
    v_and_b32 v19, 3, v1
    v_lshl_add_u32 v{vWoG}, v19, 4, v18
    s_mul_i32 s{sWst}, s{sH}, {WSL*1024}
    s_add_u32 s{sWst}, s{sWst}, {WST}
    v_lshrrev_b32 v22, 5, v1
    v_lshlrev_b32 v20, 2, v22
    v_bfe_u32 v21, v1, 2, 2
    v_add_u32 v20, v20, v21
    v_lshl_add_u32 v20, v20, 6, s{sWst}
    v_lshl_add_u32 v20, v19, 3, v20
    v_bfe_u32 v21, v1, 4, 1
    v_lshl_add_u32 v{vWoL}, v21, 5, v20
    s_lshr_b32 s{t0+1}, s{sRB}, 3
    s_lshl4_add_u32 s{t0+1}, s{t0+1}, s{t0}
    s_add_u32 s{t0+1}, s{t0+1}, {F3}
    s_lshl_b32 s{t0+1}, s{t0+1}, {FSH}
    v_mov_b32 v{vF3P}, s{t0+1}
    s_lshl_b32 s{t0}, s{t0}, 5
    v_and_b32 v18, 31, v1
    s_lshl_b32 s{t0+1}, s{sRB}, 2
    s_add_u32 s{t0+1}, s{t0+1}, s{sRT}
    s_lshl_b32 s{t0+2}, s{t0+1}, 15
    s_lshl_b32 s{t0+3}, s{t0}, 6
    s_add_u32 s{t0+3}, s{t0+3}, s{t0+2}
    s_add_u32 s{t0+3}, s{t0+3}, {WS_AT}
    v_lshlrev_b32 v20, 8, v22
    v_lshl_add_u32 v20, v18, 1, v20
    v_add_u32 v{vAL}, s{t0+3}, v20
    s_lshl_b32 s{t0}, s{t0}, 1
    s_add_u32 s{t0}, s{t0}, s{t0+2}
    s_mov_b32 s{sOut}, s{t0}
    v_lshl_add_u32 v20, v18, 10, s{t0}
    v_lshl_add_u32 v{vOut}, v22, 4, v20
    """.split("\n")
    ADDR += f"""
    s_lshl2_add_u32 s{t0}, s{sRB}, s{sH}
    s_lshl4_add_u32 s{t0}, s{t0}, s{sHP}
    s_lshl_b32 s{t0}, s{t0}, 11
    s_add_u32 s{t0}, s{t0}, {WS_OF}
    v_lshl_add_u32 v{vClO}, v1, 6, s{t0}
    s_lshl_b32 s{t0}, s{sRB}, 2
    s_add_u32 s{t0}, s{t0}, s{sH}
    s_lshl_b32 s{t0}, s{t0}, 8
    s_lshl_b32 s{t0+1}, s{sHP}, 17
    s_add_u32 s{t0}, s{t0}, s{t0+1}
    s_add_u32 s{t0}, s{t0}, {WS_UT}
    v_and_b32 v18, 15, v1
    v_lshl_add_u32 v18, v18, 4, s{t0}
    v_lshrrev_b32 v19, 4, v1
    v_lshl_add_u32 v{vTS}, v19, 14, v18
    v_add_u32 v{vTS+1}, 0x10000, v{vTS}
    v_and_b32 v18, 15, v1
    v_lshlrev_b32 v{vRdy}, 2, v18
    s_lshl_b32 s{t0}, s{sHP}, 4
    v_add_u32 v19, s{t0}, v18
    v_lshlrev_b32 v{vF1P}, {FSH}, v19
    s_add_u32 s{t0}, s{t0}, s{sRB}
    s_lshr_b32 s{t0+1}, s{t0}, 2
    s_add_u32 s{t0+1}, s{t0+1}, {F4}
    s_lshl_b32 s{t0+1}, s{t0+1}, {FSH}
    v_mov_b32 v{vF4}, s{t0+1}
    s_lshl2_add_u32 s{t0+1}, s{sHP}, s{sH}
    s_add_u32 s{t0+1}, s{t0+1}, {F4}
    s_lshl_b32 s{t0+1}, s{t0+1}, {FSH}
    v_mov_b32 v{vF4P}, s{t0+1}
    s_lshl_b32 s{t0}, s{t0}, {FSH}
    v_mov_b32 v{vF1}, s{t0}
    v_and_b32 v18, 31, v1
    v_lshlrev_b32 v18, 5, v18
    v_lshrrev_b32 v19, 5, v1
    v_lshl_add_u32 v19, v19, 2, v18
    s_lshl_b32 s{t0}, s{sH}, 3
    s_add_u32 s{t0}, s{t0}, {GP}
    v_add_u32 v{vGPw}, s{t0}, v19
    v_add_u32 v{vGPr}, {GP}, v18
    s_lshr_b32 s{t0}, s2, 3
    s_lshl_b32 s{t0}, s{t0}, 2
    s_add_u32 s{t0}, s{t0}, s{sH}
    s_lshl_b32 s{t0}, s{t0}, 12
    s_lshr_b32 s{t0+1}, s{sCB}, {LOH-1}
    s_lshl_b32 s{t0+1}, s{t0+1}, {7+LOH}
    s_add_u32 s{t0}, s{t0}, s{t0+1}
    v_bfe_u32 v18, v1, {LOH}, 2
    v_lshl_add_u32 v18, v18, 10, s{t0}
    v_and_b32 v19, {(1<<LOH)-1}, v1
    v_lshl_add_u32 v{vWoP}, v19, 7, v18
    """.split("\n") + [f"v_mov_b32 v{vA+j}, 0" for j in range(16)]
    ADDR += f"""
    s_lshl4_add_u32 s{t0}, s{sRB}, {F2}
    v_add_lshl_u32 v{vF2}, v1, s{t0}, {FSH}
    s_and_b32 s{t0}, s{sHP}, 12
    s_lshl_b32 s{t0}, s{t0}, 1
    s_lshl_b32 s{t0}, 1, s{t0}
    v_cmp_ne_u32 vcc, s{sHP}, v1
    v_mov_b32 v18, s{t0}
    s_nop 0
    v_cndmask_b32 v{vF2v}, 0, v18, vcc
    s_mul_i32 s{t0}, s{sC}, {2*KGS}
    v_lshrrev_b32 v18, 1, v1
    v_mul_u32_u24 v18, {KCP}, v18
    v_and_b32 v19, 1, v1
    v_cmp_eq_u32 {sr(sPar,2)}, 1, v19
    v_lshlrev_b32 v19, 4, v19
    v_add3_u32 v{vPad}, v18, v19, s{t0}
    s_lshl_b32 s{t0+1}, s{sMH}, 10
    s_add_u32 s{t0}, s{t0}, s{t0+1}
    s_add_u32 s{t0}, s{t0}, {KG+32}
    v_lshl_add_u32 v{vKW}, v1, 4, s{t0}
    s_lshl_b32 s{t0}, s{sH}, 12
    s_add_u32 s{t0}, s{t0}, {CRED+2048}
    v_lshl_add_u32 v{vNb}, v1, 3, s{t0}
    """.split("\n") + [f"v_add_u32 v{vKW+3*c+u}, {c*KCP+u*1024}, v{vKW}" for c in range(4) for u in range(3) if c or u]
    assert KG == 0
    ADDR = [x.strip() for x in ADDR if x.strip()]
    def GATEF():
        E("s_waitcnt lgkmcnt(0)")
        for j in range(4):
            E(f"v_dot2_f32_bf16 v{vG}, v{vXF+j}, v{vGW+j}, v{vG}")
        E(f"s_nop 2\nds_write_b32 v{vGPw}, v{vG}")
    def SIG():
        E(f"""
        ds_read_b128 v[4:7], v{vGPr}
        ds_read_b128 v[8:11], v{vGPr} offset:16
        s_waitcnt lgkmcnt(0)
        v_add_f32 v4, v4, v5
        v_add_f32 v6, v6, v7
        v_add_f32 v8, v8, v9
        v_add_f32 v10, v10, v11
        v_add_f32 v4, v4, v6
        v_add_f32 v8, v8, v10
        v_add_f32 v4, v4, v8
        v_mul_f32 v4, {fbits(-log2e)}, v4
        v_exp_f32 v4, v4
        s_nop 0
        v_add_f32 v4, 1.0, v4
        v_rcp_f32 v{vg}, v4
        s_nop 0
        v_sub_f32 v{vomg}, 1.0, v{vg}
        """)
    def KD():
        E("s_setprio 0\ns_waitcnt lgkmcnt(0)")
        for s in range(8):
            E(f"v_mfma_f32_32x32x16_bf16 {vr(vD,16)}, {vr(vGF+4*s,4)}, {vr(vEF+4*s,4)}, {'0' if s == 0 else vr(vD,16)}")
        E(f"s_setprio {OPT['prio']}")
        l1 = newlab("k1"); l2 = newlab("k2")
        R = 64
        def xch(send, keep, n):
            E(f"ds_write_b128 v{vCW}, {vr(send,4)}\nds_write_b128 v{vCW}, {vr(send+4,4)} offset:1024")
            lds_arrive(vCP, vOne)
            lds_wait(vCP, vTm, 2)
            E(f"ds_read_b128 {vr(R,4)}, v{vCR}\nds_read_b128 {vr(R+4,4)}, v{vCR} offset:1024\ns_waitcnt lgkmcnt(0)")
            for j in range(n): E(f"v_add_f32 v{R+j}, v{R+j}, v{keep+j}")
        def w2(c, u, r):
            E(f"ds_write2_b32 v{vKW+3*c+u}, v{r[0]}, v{r[1]} offset0:0 offset1:1\nds_write2_b32 v{vKW+3*c+u}, v{r[2]}, v{r[3]} offset0:2 offset1:3")
        E(f"s_nop 8\ns_cmp_eq_u32 s{sMH}, 0\ns_cbranch_scc0 {l1}")
        xch(vD + 8, vD, 8)
        e, o = 72, 80
        E(f"""
        s_mov_b64 exec, 0xff
        ds_write_b128 v{vPad}, v[12:15]
        s_mov_b64 exec, 1
        v_add_f32 v{R}, s{sDs}, v{R}
        s_mov_b64 exec, -1
        """)
        for j in range(4): E(f"v_cvt_pk_bf16_f32 v{e+j}, v{R+2*j}, v{R+2*j+1}")
        E(f"""
        v_cvt_pk_bf16_f32 v{o+6}, v{R+7}, v{R+7}
        ds_write2_b32 v{vNb}, v{o+6}, v{o+6} offset0:2 offset1:3
        ds_write_b64 v{vNb}, {vr(e,2)}
        ds_read_b64 {vr(e+4,2)}, v{vNb} offset:8
        ds_write_b128 v{vKW}, {vr(e,4)}
        s_waitcnt lgkmcnt(1)
        """)
        for j in range(5): E(f"v_alignbit_b32 v{o+j}, v{e+j+1}, v{e+j}, 16")
        E(f"ds_write_b128 v{vKW+3}, {vr(o,4)}")
        w2(2, 0, [e + 1, e + 2, e + 3, e + 4]); w2(3, 0, [o + 1, o + 2, o + 3, o + 4])
        E(f"""
        s_mov_b64 exec, 1
        v_lshlrev_b32 v{o+6}, 16, v{e}
        ds_write_b32 v{vPad}, v{o+6} offset:{28+KCP}
        ds_write_b32 v{vPad}, v{e} offset:{28+2*KCP}
        ds_write_b32 v{vPad}, v{o+6} offset:{24+3*KCP}
        ds_write_b32 v{vPad}, v{o} offset:{28+3*KCP}
        s_mov_b64 exec, -1
        s_branch {l2}
        {l1}:
        """)
        xch(vD, vD + 8, 7)
        aa, ab, bb, bc, cc = range(72, 77)
        for d, x, y in ((aa, 0, 0), (ab, 0, 1), (bb, 1, 1), (bc, 1, 2), (cc, 2, 2)):
            E(f"v_cvt_pk_bf16_f32 v{d}, v{R+x}, v{R+y}")
        for c, r in enumerate(([aa, ab, bb, cc], [aa, bb, bc, cc], [ab, bb, cc, cc], [bb, bc, cc, cc])): w2(c, 0, r)
        for u in (1, 2):
            a_, c_ = R + 1 + 2 * u, R + 2 + 2 * u
            sel, aa, as_, sc, cc = range(72 + 5 * u, 77 + 5 * u)
            E(f"v_cndmask_b32 v{sel}, v{a_}, v{c_}, {sr(sPar,2)}")
            for d, x, y in ((aa, a_, a_), (cc, c_, c_), (as_, a_, sel), (sc, sel, c_)):
                E(f"v_cvt_pk_bf16_f32 v{d}, v{x}, v{y}")
            for c, r in enumerate(([aa, aa, sc, cc], [aa, as_, cc, cc], [aa, sc, cc, cc], [as_, cc, cc, cc])): w2(c, u, r)
        E(f"{l2}:")
    def gate_glue(i):
        E("s_waitcnt lgkmcnt(0)")
        if OPT.get("hst"): stamp("h")
        E("s_barrier")
        if i == 1:
            lq = newlab("nr")
            E(f"""
            s_cmp_eq_u32 s{sLead}, 7
            s_cbranch_scc0 {lq}
            s_mul_i32 s{sSPIN}, s2, 40
            v_add_lshl_u32 v10, v1, s{sSPIN}, {FSH}
            s_bfm_b64 exec, 40, 0
            global_store_dword v10, v12, {sr(pFL,2)} sc1
            s_mov_b64 exec, -1
            {lq}:
            """)
        if i == OPT["rdyw"]:
            lq = newlab("nr")
            E(f"""
            s_cmp_eq_u32 s{sLead}, 7
            s_cbranch_scc0 {lq}
            s_lshl_b32 s{sSPIN}, s2, 2
            v_mov_b32 v10, s{sSPIN}
            v_mov_b32 v11, 1
            s_waitcnt vmcnt(0)
            """)
            put_flag(10, 11, pDbg)
            E(f"{lq}:")
        if i >= 1:
            for j in range(4):
                E(f"v_dot2_f32_bf16 v{vG}, v{vXF+j}, v{vGW+j}, v{vG}")
        slot = i % NS
        E(f"ds_read_b128 {vr(vXF,4)}, v{vGA0} offset:{slot*SLOT}")
        E(f"ds_read_b128 {vr(vGW,4)}, v{vGWA} offset:{128*i}")
        E(f"""
        s_cmp_eq_u32 s{sUW}, {i}
        s_cbranch_scc0 L_ut{i}
        ds_read_b64_tr_b16 {vr(vU,2)}, v{vTA}
        ds_read_b64_tr_b16 {vr(vU+2,2)}, v{vTA+3}
        ds_read_b64_tr_b16 {vr(vU+4,2)}, v{vTA+1}
        ds_read_b64_tr_b16 {vr(vU+6,2)}, v{vTA+2}
        L_ut{i}:
        """)
    E(ADDR); E(KPRE)
    tot = sum(c for c, _ in K); nw = OPT["kw"]
    segs = [[] for _ in range(8)]; acc = 0
    for c, x in K:
        segs[min(nw - 1, int(acc * nw / tot))].append(x); acc += c
    for i in range(8):
        gate_glue(i)
        E(segs[i])
    stamp("h")
    GATEF()
    E(f"global_load_dword v{vTm}, v{vRdy}, {sr(pDbg,2)} sc1")
    E(f"s_setprio {OPT['prioq']}\ns_waitcnt lgkmcnt(0)\ns_barrier")
    stamp("h")
    lq = newlab("nf"); lr = newlab("rdy")
    LATE = OPT["ackr"] <= 0
    assert LATE or OPT["q3"] < 8
    SIG()
    if OPT["q3"] < 4: E("s_barrier")
    if LATE: E("s_barrier")
    E(f"s_setprio {OPT['prio']}\ns_waitcnt vmcnt(0)\ns_barrier")
    stamp("h")
    E(f"s_cmp_lg_u32 s{sH}, 1")
    E(f"""
    s_cbranch_scc1 {lq}
    v_cmp_ne_u32 vcc, 0, v{vTm}
    s_nop 1
    s_cmp_eq_u64 vcc, -1
    s_cbranch_scc1 {lr}
    """)
    poll_global(vRdy, pDbg, vTm)
    E(f"{lr}:")
    add_ctr(vF1P, vOne, 16)
    if OPT["e1"]:
        assert not OPT["hs"]
        if OPT["e1"] == 2: E("s_waitcnt vmcnt(0)")
        E(f"v_mov_b32 v4, 0\ns_mov_b64 exec, 1\nglobal_atomic_add v4, v{vF1}, v4, {sr(pFL,2)} sc0 sc1\ns_mov_b64 exec, -1")
    E(f"{lq}:")
    uts = f"""
    global_store_dwordx4 v{vTS}, {vr(vU,4)}, {sr(pWs,2)} sc1
    global_store_dwordx4 v{vTS+1}, {vr(vU+4,4)}, {sr(pWs,2)} sc1
    """
    if OPT["utp"] == 1: E(uts)
    if not LATE: E("s_barrier")
    lq = newlab("nf")
    E(f"s_cmp_lg_u32 s{sH}, 1\ns_cbranch_scc1 {lq}")
    poll_ctr(vF1, 4, lambda r: [f"s_cmp_eq_u32 s{r}, 16"], OPT["pd"], min(1, OPT["e1"]))
    E(f"{lq}:")
    E("s_setprio 0\ns_barrier")
    stamp("h")
    if OPT["utp"] == 2:
        D1(); E("s_waitcnt lgkmcnt(0)"); E(uts); D2()
        E("s_waitcnt vmcnt(0)")
        add_ctr(vF4, vOne, 1)
        KD()
    elif OPT["utp"] == 3:
        E(f"global_load_dword v{vTm}, v{vRdy}, {sr(pDbg,2)} sc1\ns_waitcnt vmcnt(0)")
        E(uts); D1(); D2()
        E("s_waitcnt vmcnt(0)")
        add_ctr(vF4, vOne, 1)
        KD()
    else:
        if OPT["utp"] == 0: E(uts)
        E("s_waitcnt vmcnt(0)")
        add_ctr(vF4, vOne, 1)
        if OPT["utp"] == 1: E("s_waitcnt vmcnt(0)")
        D1(); D2(); KD()
    poll_ctr(vF4P, vTm, lambda r: [f"s_cmp_eq_u32 s{r}, 16"])
    E(f"""
    global_load_dwordx4 v[12:15], v{vUL}, {sr(pWs,2)} sc1
    global_load_dwordx4 v[16:19], v{vUL}, {sr(pWs,2)} offset:2048 sc1
    s_waitcnt vmcnt(0)
    ds_write_b128 v{vUW}, v[12:15] offset:512
    ds_write_b128 v{vUW}, v[16:19]
    """)
    lds_arrive(vCA, vOne)
    lds_wait(vCA, vTm, 4 + 4 * OPT["hs"])
    stamp("h")
    vY = 64
    vF = [96, 192]
    def creads(r):
        f = vF[r & 1]; o = []
        for gmm in range(8):
            o.append(f"ds_read_b64 {vr(f+4*gmm,2)}, v{vAA} offset:{512*gmm+64*r}")
            o.append(f"ds_read_b64 {vr(f+4*gmm+2,2)}, v{vAA} offset:{512*gmm+64*r+8}")
            o.append(f"ds_read_b128 {vr(f+32+4*gmm,4)}, v{vBA} offset:{3584-512*gmm+64*r}")
        return o
    E(creads(0))
    E(f"s_setprio {OPT.get('prio3', OPT['prio'])}")
    for r in range(4):
        f = vF[r & 1]
        nxt = creads(r + 1) if r < 3 else []
        if r == 2 and OPT["wopf"]:
            E(f"s_bfm_b64 exec, {4<<LOH}, 0\nglobal_load_dword v20, v{vWoP}, {sr(pWo,2)}\ns_mov_b64 exec, -1")
        E("s_waitcnt lgkmcnt(0)")
        seen = set()
        for gmm in range(8):
            for dl in range(8 - gmm):
                tau = gmm + dl
                c = "0" if (r == 0 and tau not in seen) else vr(vY + 4 * tau, 4)
                seen.add(tau)
                if not OPT.get("noconv"): E(f"v_mfma_f32_16x16x32_bf16 {vr(vY+4*tau,4)}, {vr(f+4*gmm,4)}, {vr(f+32+4*dl,4)}, {c}")
                if nxt: E(nxt.pop(0))
    E(f"s_setprio {OPT['prio']}")
    l1 = newlab("c1"); l2 = newlab("c2")
    E(f"s_nop 5\ns_cmp_eq_u32 s{sMH}, 0\ns_cbranch_scc0 {l1}")
    def conv_fin(send, keep):
        for j in range(4):
            E(f"ds_write_b128 v{vCW}, {vr(send+4*j,4)} offset:{1024*j}")
        lds_arrive(vCP, vOne)
        lds_wait(vCP, vTm, 4)
        for j in range(4):
            E(f"ds_read_b128 {vr(96+4*j,4)}, v{vCR} offset:{1024*j}")
        E("s_waitcnt lgkmcnt(0)")
        for j in range(16):
            E(f"v_add_f32 v{96+j}, v{keep+j}, v{96+j}")
    conv_fin(vY + 16, vY)
    E(f"s_branch {l2}\n{l1}:")
    conv_fin(vY, vY + 16)
    E(f"{l2}:")
    for j in range(4):
        E(f"v_cvt_pk_bf16_f32 v{112+2*j}, v{96+4*j}, v{97+4*j}\nv_cvt_pk_bf16_f32 v{113+2*j}, v{98+4*j}, v{99+4*j}")
        E(f"global_store_dwordx2 v{vAT}, {vr(112+2*j,2)}, {sr(sAT,2)} sc1")
        if j < 3: E(f"s_add_u32 s{sAT}, s{sAT}, {8*32768}\ns_addc_u32 s{sAT+1}, s{sAT+1}, 0")
    E("s_waitcnt vmcnt(0)")
    add_ctr(vF3, vOne, 1)
    stamp("h")
    vWo = 128
    sO = t0 + 2
    WD = OPT["wod"]
    for hd in range(0 if OPT.get("nowo") else 32 + WD):
        if hd < 32:
            if hd % 4 == 0: E(f"s_add_u32 m0, s{sWst}, {(hd%WSL)*1024}")
            E(f"s_mov_b32 s{sO}, {hd*16384-(hd%4)*1024}")
            E(f"buffer_load_dwordx4 v{vWoG}, {sr(SRDW,4)}, s{sO} offen offset:{(hd%4)*1024} lds")
        r = hd - WD
        if r >= 0:
            E(f"s_waitcnt vmcnt({min(WD, 31-r)}) lgkmcnt(8)")
            E(f"ds_read_b64_tr_b16 {vr(vWo+4*r,2)}, v{vWoL} offset:{1024*(r%WSL)}")
            E(f"ds_read_b64_tr_b16 {vr(vWo+4*r+2,2)}, v{vWoL} offset:{1024*(r%WSL)+512}")
    E("s_waitcnt lgkmcnt(0)")
    stamp("h")
    if OPT["clo"] & 1:
        E(f"s_bfm_b64 exec, 32, 0\nglobal_store_dword v{vClO}, v{vOne}, {sr(pWs,2)} sc1\ns_mov_b64 exec, -1")
    if OPT["clo"] & 2:
        E(f"s_bfm_b64 exec, 32, 0\nglobal_store_dword v{vOut}, v{vOne}, {sr(pOut,2)} sc1\ns_mov_b64 exec, -1")
    poll_ctr(vF3P, vTm, lambda r: [f"s_cmp_eq_u32 s{r}, 32"])
    for r in range(16):
        E(f"global_load_short_d16_hi v{vA+r}, v{vAL}, {sr(pWs,2)} offset:{(8*(r>>2)+(r&3))*64} sc1")
    if OPT["hop"]: E("s_mov_b64 exec, 0\ns_branch L_hop0\nL_hopdone:\ns_mov_b64 exec, -1")
    sTodo, sId = t0, t0 + 2
    E(f"s_mov_b32 s{sTodo}, 0x01010101\ns_mov_b32 s{sSPIN}, {OPT['spin']*8}\ns_waitcnt vmcnt(0) lgkmcnt(0)")
    stamp("h")
    lq = newlab("nf")
    if OPT["pw"]:
        E("s_setprio 0\ns_barrier")
    else:
        E(f"s_barrier\ns_cmp_lg_u32 s{sH}, 0\ns_barrier\ns_cbranch_scc1 {lq}")
        add_ctr(vF2, vF2v, 16)
        E(f"{lq}:\ns_setprio 0")
    stamp("h")
    for r in range(16):
        E(f"v_mul_f32 v{vA+r}, v{vg}, v{vA+r}")
    vTW, vTR, vOu2 = 4, 5, 6
    if OPT["otr"]: E(f"""
    s_mul_i32 s{sId}, s{sH}, 2560
    v_and_b32 v7, 31, v1
    v_mul_u32_u24 v7, 80, v7
    v_lshrrev_b32 v{vTW}, 5, v1
    v_lshlrev_b32 v{vTW}, 3, v{vTW}
    v_add3_u32 v{vTW}, v{vTW}, v7, s{sId}
    v_lshrrev_b32 v7, 2, v1
    v_lshl_add_u32 v{vOut}, v7, 10, s{sOut}
    v_mul_u32_u24 v7, 80, v7
    v_and_b32 v{vTR}, 3, v1
    v_lshlrev_b32 v{vTR}, 4, v{vTR}
    v_add_u32 v{vOut}, v{vOut}, v{vTR}
    v_add_u32 v{vOu2}, 0x4000, v{vOut}
    v_add3_u32 v{vTR}, v{vTR}, v7, s{sId}
    """)
    vB = 64; vAc = [96, 112, 8, 24]
    def ord_(j): return f"ds_read_b128 {vr(vB+4*j,4)}, v{vON} offset:{1024*j}"
    def pick(skip):
        return [f"v_readfirstlane_b32 s{sId}, v{vTm}", "s_nop 0", f"s_and_b32 s{sId}, s{sId}, s{sTodo}", f"s_cbranch_scc0 {skip}",
                f"s_ff1_i32_b32 s{sId}, s{sId}", f"v_lshl_add_u32 v{vON}, s{sId}, 10, v{vOL}"] + [ord_(j) for j in range(4)]
    E(hop())
    E(f"""
    L_fwait:
    ds_read_b32 v{vTm}, v{vCA} offset:12
    s_sub_u32 s{sSPIN}, s{sSPIN}, 1
    s_cbranch_scc1 L_fend
    s_waitcnt lgkmcnt(0)
    """)
    E(pick("L_fwait"))
    E("L_fdisp:")
    E([ord_(j) for j in range(4, 8)])
    E(f"""
    ds_read_b32 v{vTm}, v{vCA} offset:12
    s_bitset0_b32 s{sTodo}, s{sId}
    s_cmp_eq_u32 s{sId}, 8
    s_cbranch_scc1 L_fb1
    s_cmp_eq_u32 s{sId}, 16
    s_cbranch_scc1 L_fb2
    s_cmp_eq_u32 s{sId}, 24
    s_cbranch_scc1 L_fb3
    """)
    for c in range(4):
        E(f"L_fb{c}:")
        for j in range(8):
            if j <= 4: E(f"s_waitcnt lgkmcnt({8-j if j < 4 else 0})")
            E(f"v_mfma_f32_32x32x16_bf16 {vr(vAc[c],16)}, {vr(vWo+4*(8*c+j),4)}, {vr(vB+4*j,4)}, {vr(vAc[c],16) if j else 0}")
            if j in (0, 5): E(hop())
            if j == 4:
                E(pick(f"L_fs{c}"))
                E(f"L_fs{c}:")
        E("s_cbranch_scc1 L_fdisp")
        if c < 3: E("s_branch L_fnext")
    E(f"""
    L_fnext:
    s_cmp_lg_u32 s{sTodo}, 0
    s_cbranch_scc1 L_fwait
    L_fend:
    """)
    stamp("h")
    E("s_nop 8")
    assert vomg % 2 == 0
    fl = ["", "sc1", "nt", "sc0 sc1", "sc1 nt"][OPT["outsc"]]
    for hf in (0, 8):
        for x, y in ((0, 1), (2, 3), (0, 2)):
            for r in range(hf, hf + 8, 2):
                E(f"v_pk_add_f32 {vr(vAc[x]+r,2)}, {vr(vAc[x]+r,2)}, {vr(vAc[y]+r,2)}")
        for r in range(hf, hf + 8, 2):
            E(f"v_pk_fma_f32 {vr(vAcc+r,2)}, {vr(vAcc+r,2)}, {vr(vomg,2)}, {vr(vA+r,2)} op_sel_hi:[1,0,1]")
        p = vB + hf // 2
        if OPT["otr"]:
            for j in range(4):
                E(f"v_cvt_pk_bf16_f32 v{p+j}, v{vAcc+hf+2*j}, v{vAcc+hf+2*j+1}")
                if j & 1: E(f"ds_write_b64 v{vTW}, {vr(p+j-1,2)} offset:{4*hf+8*(j-1)}")
            continue
        for j in (0, 2, 1, 3):
            E(f"v_cvt_pk_bf16_f32 v{p+j}, v{vAcc+hf+2*j}, v{vAcc+hf+2*j+1}")
        E(f"v_permlane32_swap_b32 v{p}, v{p+2}")
        E(hop() or ["s_nop 0"])
        E(f"v_permlane32_swap_b32 v{p+1}, v{p+3}")
        E(f"global_store_dwordx4 v{vOut}, {vr(p,4)}, {sr(pOut,2)} offset:{4*hf} {fl}")
    if OPT["otr"]:
        E(f"""
        ds_read_b128 {vr(vB+8,4)}, v{vTR}
        ds_read_b128 {vr(vB+12,4)}, v{vTR} offset:1280
        s_waitcnt lgkmcnt(1)
        global_store_dwordx4 v{vOut}, {vr(vB+8,4)}, {sr(pOut,2)} {fl}
        s_waitcnt lgkmcnt(0)
        global_store_dwordx4 v{vOu2}, {vr(vB+12,4)}, {sr(pOut,2)} {fl}
        """)
    stamp("h")
    if STAMP:
        E("s_waitcnt vmcnt(0)"); stamp("h")
    stamp_flush("h"); spin_end("h")
    E("s_endpgm")

hdr = open(f"cdna_kernels/{NAME}.s.ref").read().split("; Override launch")[0]
prologue(); main_wave()
E("L_end:\ns_endpgm")
out = hdr + f"""; @launch grid=(256,1,1) block=(512,1,1) lds={LDS_BYTES}
.amdgcn_target "amdgcn-amd-amdhsa--gfx950"
.text
.globl {NAME}_kernel
.p2align 8
.type {NAME}_kernel,@function
{NAME}_kernel:
""" + "\n".join(L) + f"""
.section .rodata,"a"
.p2align 6
.amdhsa_kernel {NAME}_kernel
  .amdhsa_next_free_vgpr 256
  .amdhsa_next_free_sgpr 102
  .amdhsa_accum_offset 256
  .amdhsa_group_segment_fixed_size 0
  .amdhsa_kernarg_size 128
  .amdhsa_user_sgpr_count 2
  .amdhsa_user_sgpr_kernarg_segment_ptr 1
  .amdhsa_system_sgpr_workgroup_id_x 1
.end_amdhsa_kernel
"""
open(sys.argv[1], "w").write(out)
```

```python
import sys, math, struct

NAME = "gated_mix__ssm_conv_s4__mha_block__prompt"
OPT = dict(stamp=0, rot=5, fs=256, spin=200000, prio=2, outsc=1, prio3=0, pf=1, tlb=0, wod=4, wopf=1, prioq=0, lq=7, epc=16, ackn=22,
           d1=3, d1w=4, kw=7, clo=0, rdyw=3, xm=2, fm=1, bp=2, hop=0, ep=1, pd=1, psl=3, hs=0, e1=1, pw=1, utp=0, pre=1, q3=0, a0=0, ackr=10, otr=1, al=1, lay=2, xf=0, co=1, seq=1, kp=30, k0=70, kds=0, pk=1, atr=1, q2=1, hsp=2)
for a in sys.argv[2:]:
    k, v = a.split("=")
    OPT[k] = int(v)
STAMP = OPT["stamp"]
FS = OPT["fs"]
FSH = int(math.log2(FS))

L = []
def E(s):
    if isinstance(s, list): s = "\n".join(s)
    for x in s.split("\n"):
        x = x.strip()
        if x:
            L.append(("" if x.endswith(":") else "    ") + x)
def fbits(x): return "0x%08x" % struct.unpack("<I", struct.pack("<f", x))[0]
def vr(a, n): return f"v[{a}:{a+n-1}]"
def sr(a, n): return f"s[{a}:{a+n-1}]"

WS_KV = 0
WS_OF = 4 << 20
WS_AT = 6 << 20
WS_FL = 8 << 20
WS_UT = 10 << 20
WS_ST = 16 << 20
F1, F2 = 0, 256
F3, F4 = 512, 544
KG = 0; KGS = 8704
KCP = 4160
UR = KG + 4 * KGS; URS = 4576
GP = UR + 2 * URS
GW = GP + 1024
CNT = GW + 2048
RING = CNT + 64
SLOT = 24576; WPART = 6144; NS = 3
WQ = RING + NS * SLOT
LDS_BYTES = WQ + 32768
EXCH = RING; RED = WQ; REDS = 4608
CRED = RING; WST = RING + 16384; WSL = 12; OFL = RING
assert RING % 256 == 0 and WST + 4 * WSL * 1024 <= WQ and LDS_BYTES <= 163840
sW, sHP, sRB, sCH, sROT = 3, 4, 5, 6, 7
SRDX, SRDW = 8, 12
pX, pAre, pAim, pBre, pBim, pCre, pCim, pLdt = 16, 18, 20, 22, 24, 26, 28, 30
pDsk, pW, pWo, pGw, pOut, pDbg, pWs = 32, 36, 38, 40, 42, 44, 46
pFL = 34
sT = 48
sSPIN = 62
sST = 64

nstamp = {"m": 0, "h": 0}
SPM, SPH = OPT.get("spm", -1), OPT.get("sph", -1)
def spin_end(role):
    if (SPM if role == "m" else SPH) < 0: return
    l = newlab("sp")
    if OPT.get("sel"):
        E(f"""
        s_lshl3_add_u32 s98, s2, s{sW}
        s_lshl_b32 s98, s98, 7
        s_add_u32 s98, s98, {40 << 20}
        v_mov_b32 v3, s98
        v_mov_b32 v4, 0x12345678
        global_load_dword v5, v3, {sr(pWs,2)} sc1
        s_waitcnt vmcnt(0)
        global_store_dword v3, v4, {sr(pWs,2)} sc1
        v_readfirstlane_b32 s98, v5
        s_waitcnt vmcnt(0)
        s_cmp_eq_u32 s98, 0x12345678
        s_cbranch_scc{OPT["sel"]-1} L_end
        """)
    E(f"{l}:\ns_memrealtime s[98:99]\ns_waitcnt lgkmcnt(0)\ns_sub_u32 s98, s98, s96\ns_cmp_lt_i32 s98, 4000\ns_cbranch_scc1 {l}")
def stamp(role):
    if SPM >= 0 or SPH >= 0:
        i = nstamp[role]; nstamp[role] += 1
        if i == (SPM if role == "m" else SPH):
            if OPT.get("amp"): E(f"s_memrealtime s[98:99]\ns_waitcnt lgkmcnt(0)\ns_sub_u32 s98, s98, s96\ns_mul_i32 s98, s98, {OPT['amp']}\ns_sub_u32 s98, s98, {OPT.get('sub',0)*100}\ns_add_u32 s96, s96, s98")
            else: E("s_memrealtime s[96:97]\ns_waitcnt lgkmcnt(0)")
        return
    if not STAMP or nstamp[role] >= 14: return
    i = nstamp[role]; nstamp[role] += 1
    E(f"s_memrealtime {sr(sST+2*i,2)}\ns_waitcnt lgkmcnt(0)")
def stamp_flush(role):
    if not STAMP: return
    E(f"s_lshl_b32 s{sT}, s2, 3\ns_add_u32 s{sT}, s{sT}, s{sW}\ns_lshl_b32 s{sT}, s{sT}, 6\ns_add_u32 s{sT}, s{sT}, {WS_ST}\nv_mov_b32 v2, s{sT}")
    for i in range(nstamp[role]):
        E(f"v_mov_b32 v3, s{sST+2*i}\nglobal_store_dword v2, v3, {sr(pWs,2)} offset:{4*i}")
    E(f"s_getreg_b32 s{sT}, hwreg(HW_REG_XCC_ID)\nv_mov_b32 v3, s{sT}\nglobal_store_dword v2, v3, {sr(pWs,2)} offset:60")

lab = [0]
def newlab(p):
    lab[0] += 1
    return f"L_{p}_{lab[0]}"

nhop = [0]
def hop():
    if not OPT["hop"]: return []
    nhop[0] += 1
    return [f"L_hop{nhop[0]-1}:", f"s_cbranch_execz L_hop{nhop[0]}"]

def poll_global(vaddr, base, vtmp):
    l = newlab("poll"); d = newlab("polld")
    E(f"""
    s_mov_b32 s{sSPIN}, {OPT['spin']}
    {l}:
    global_load_dword v{vtmp}, v{vaddr}, {sr(base,2)} sc1
    s_sub_u32 s{sSPIN}, s{sSPIN}, 1
    s_cbranch_scc1 {d}
    s_waitcnt vmcnt(0)
    v_cmp_ne_u32 vcc, 0, v{vtmp}
    s_nop 1
    s_cmp_eq_u64 vcc, -1
    s_cbranch_scc0 {l}
    {d}:
    s_waitcnt vmcnt(0)
    """)
def poll_ctr(vaddr, vtmp, test, depth=1, first=False):
    l = newlab("pc"); d = newlab("pcd"); c = newlab("pcc")
    at = lambda r: [f"v_mov_b32 v{r}, 0", f"global_atomic_add v{r}, v{vaddr}, v{r}, {sr(pFL,2)} sc0 sc1"]
    E(f"s_mov_b32 s{sSPIN}, {OPT['spin']}\ns_mov_b64 exec, 1")
    if depth == 1:
        if first: E(f"s_branch {c}")
        E(f"{l}:"); E(at(vtmp))
        if first == 2: E("s_waitcnt vmcnt(0)")
        E(f"{c}:\ns_sub_u32 s{sSPIN}, s{sSPIN}, 1\ns_cbranch_scc1 {d}\ns_waitcnt vmcnt({1 if first == 2 else 0})\nv_readfirstlane_b32 s{sSPIN+1}, v{vtmp}\ns_nop 0")
        E(test(sSPIN + 1)); E(f"s_cbranch_scc0 {l}")
    else:
        for i in range(1 if first else 0, depth - 1):
            if i: E(f"s_sleep {OPT['psl']}")
            E(at(vtmp + i))
        E(f"{l}:\ns_sub_u32 s{sSPIN}, s{sSPIN}, 1\ns_cbranch_scc1 {d}")
        for i in range(depth):
            E(at(vtmp + (i - 1) % depth))
            E(f"s_waitcnt vmcnt({depth-1})\nv_readfirstlane_b32 s{sSPIN+1}, v{vtmp+i}\ns_nop 0")
            E(test(sSPIN + 1))
            E(f"s_cbranch_scc1 {d}" if i < depth - 1 else f"s_cbranch_scc0 {l}")
    E(f"{d}:\ns_mov_b64 exec, -1")
def add_ctr(vaddr, vval, lanes):
    E(f"s_bfm_b64 exec, {lanes}, 0\nglobal_atomic_add v{vaddr}, v{vval}, {sr(pFL,2)} sc1\ns_mov_b64 exec, -1")
def put_flag(vaddr, vone, base=None):
    E(f"""
    s_mov_b64 exec, 1
    global_store_dword v{vaddr}, v{vone}, {sr(pFL if base is None else base,2)} sc1
    s_mov_b64 exec, -1
    """)
def lds_arrive(vaddr, vone):
    E(f"""
    s_mov_b64 exec, 1
    ds_add_u32 v{vaddr}, v{vone}
    s_mov_b64 exec, -1
    """)
def lds_wait(vaddr, vtmp, n):
    l = newlab("lw"); d = newlab("lwd")
    E(f"""
    s_mov_b32 s{sSPIN}, {OPT['spin']*8}
    {l}:
    ds_read_b32 v{vtmp}, v{vaddr}
    s_sub_u32 s{sSPIN}, s{sSPIN}, 1
    s_cbranch_scc1 {d}
    s_waitcnt lgkmcnt(0)
    v_readfirstlane_b32 s{sSPIN+1}, v{vtmp}
    s_nop 1
    s_cmp_ge_u32 s{sSPIN+1}, {n}
    s_cbranch_scc0 {l}
    {d}:
    s_waitcnt lgkmcnt(0)
    """)

def helper_entry():
    sH, sC, sMH, sD, sLd, sDs, t0 = sT, sT + 1, sT + 2, sT + 5, sT + 6, sT + 7, sT + 8
    E(f"L_h0:\ns_setprio {OPT['prio']}\ns_sub_u32 s{sH}, s{sW}, 4")
    if OPT["pf"]:
        E(f"""
        s_getpc_b64 s[8:9]
        L_pc:
        s_andn2_b32 s10, s2, 7
        s_lshl1_add_u32 s10, s{sH}, s10
        v_and_b32 v2, 1, v1
        v_add_lshl_u32 v2, v2, s10, 7
        v_min_u32 v2, L_end-L_pc, v2
        v_mov_b32 v3, 0
        v_lshl_add_u64 v[2:3], v[2:3], 0, s[8:9]
        global_load_dword v167, v[2:3], off
        """)
    E(f"""
    s_lshl4_add_u32 s{sCH}, s{sHP}, s{sRB}
    s_lshl2_add_u32 s{t0}, s{sCH}, s{sH}
    s_lshl_b32 s{t0}, s{t0}, 7
    v_lshl_add_u32 v2, v1, 1, s{t0}
    s_lshl_b32 s{t0+1}, s{sCH}, 2
    s_waitcnt lgkmcnt(0)
    s_load_dword s{sLd}, {sr(pLdt,2)}, s{t0+1}
    s_load_dword s{sDs}, {sr(pDsk,2)}, s{t0+1}
    """)
    for j, p in enumerate((pAre, pAim, pBre, pBim, pCre, pCim)):
        E(f"global_load_ushort v{4+j}, v2, {sr(p,2)}")
    E(f"s_and_b32 s{sMH}, s{sH}, 1\ns_lshl_b32 s{sCH}, s{sCH}, 1")

def prologue():
    if OPT.get("amp"): E("s_memrealtime s[96:97]")
    if STAMP:
        E(f"s_memrealtime {sr(sST,2)}"); nstamp["m"] = nstamp["h"] = 1
    E(f"""
    s_cmpk_ge_u32 s2, 0x100
    s_cbranch_scc1 L_end
    s_load_dwordx16 s[16:31], s[0:1], 0
    s_load_dwordx16 s[32:47], s[0:1], 64
    """)
    E(f"""
    v_lshrrev_b32 v2, 6, v0
    v_and_b32 v1, 63, v0
    v_readfirstlane_b32 s{sW}, v2
    """)
    if OPT["xm"] == 0: E(f"""
    s_bfe_u32 s{sHP}, s2, 0x30003
    s_and_b32 s{sT}, s2, 1
    s_lshl3_add_u32 s{sHP}, s{sT}, s{sHP}
    s_lshr_b32 s{sRB}, s2, 6
    s_and_b32 s{sT}, s2, 6
    s_lshl1_add_u32 s{sRB}, s{sT}, s{sRB}
    """)
    elif OPT["xm"] == 1: E(f"""
    s_bfe_u32 s{sHP}, s2, 0x10003
    s_and_b32 s{sT}, s2, 7
    s_lshl1_add_u32 s{sHP}, s{sT}, s{sHP}
    s_lshr_b32 s{sRB}, s2, 4
    """)
    else: E(f"""
    s_bfe_u32 s{sHP}, s2, 0x20003
    s_and_b32 s{sT}, s2, 3
    s_lshl2_add_u32 s{sHP}, s{sT}, s{sHP}
    s_lshr_b32 s{sRB}, s2, 5
    s_and_b32 s{sT}, s2, 4
    s_lshl1_add_u32 s{sRB}, s{sT}, s{sRB}
    """)
    if OPT["rot"] == 0:
        E(f"s_mov_b32 s{sROT}, 0")
    elif OPT["rot"] == 1:
        E(f"s_xor_b32 s{sROT}, s{sHP}, s{sRB}\ns_and_b32 s{sROT}, s{sROT}, 1\ns_lshl_b32 s{sROT}, s{sROT}, 2")
    elif OPT["rot"] == 2:
        E(f"s_lshl1_add_u32 s{sROT}, s{sRB}, s{sHP}\ns_and_b32 s{sROT}, s{sROT}, 7")
    elif OPT["rot"] == 3:
        E(f"s_lshl1_add_u32 s{sROT}, s{sRB}, s{sHP}\ns_and_b32 s{sROT}, s{sROT}, 6")
    elif OPT["rot"] == 4:
        E(f"s_lshl2_add_u32 s{sROT}, s{sHP}, s{sRB}\ns_and_b32 s{sROT}, s{sROT}, 7")
    elif OPT["rot"] == 5:
        E(f"s_add_u32 s{sROT}, s{sHP}, s{sRB}\ns_lshl_b32 s{sROT}, s{sROT}, 1\ns_and_b32 s{sROT}, s{sROT}, 6")
    elif OPT["rot"] == 6:
        E(f"s_lshl1_add_u32 s{sROT}, s{sHP}, s{sRB}\ns_and_b32 s{sROT}, s{sROT}, 7")
    elif OPT["rot"] == 7:
        E(f"s_add_u32 s{sROT}, s{sHP}, s{sRB}\ns_lshr_b32 s{sT}, s2, 2\ns_xor_b32 s{sT}, s{sT}, s2\ns_and_b32 s{sT}, s{sT}, 1\ns_lshl1_add_u32 s{sROT}, s{sROT}, s{sT}\ns_and_b32 s{sROT}, s{sROT}, 7")
    elif OPT["rot"] == 8:
        assert OPT["xm"] == 2
        E(f"s_add_u32 s{sROT}, s{sHP}, s{sRB}\ns_lshr_b32 s{sT}, s{sT}, 1\ns_add_u32 s{sT}, s{sT}, s2\ns_lshl2_add_u32 s{sROT}, s{sROT}, s{sT}\ns_and_b32 s{sROT}, s{sROT}, 7")
    else:
        E(f"s_and_b32 s{sT}, s2, 4\ns_lshl1_add_u32 s{sROT}, s2, s{sT}\ns_and_b32 s{sROT}, s{sROT}, 7")
    if OPT["lay"] == 2:
        E(f"s_cmp_lt_u32 s{sW}, 4\ns_cbranch_scc1 L_m0")
        helper_entry()
        E("s_branch L_helper\nL_m0:")
    else:
        E(f"s_cmp_ge_u32 s{sW}, 4\ns_cbranch_scc1 L_h0")

def main_wave():
    vXD, vWD, vXA, vWA, vQA = 4, 8, 10, 14, 16
    vFB = 24
    aK, aV, aQ = 48, 64, 80
    vP = 96
    vXF = 128
    sXO, sWO, sM0, sX, sZ, sQS = 92, 93, 94, 95, 100, 101
    sKVb, sKV, sJ, sCnt, sMask = sT + 2, sT + 4, sT + 6, sT + 7, sT + 8
    ta, tb, tc = sT + 10, sT + 11, sT + 12
    sExp, sBfe, sVal = 24, 25, 26
    assert OPT['fm'] == 1
    vO, vKV = 128, 192
    (vIDX, vKA, vVA, vSA, vSB, vSV, vEW, vER0, vER1, vERV, vRW, vRWl, vRR, vRRl, vOA, vOB) = range(112, 128)
    vF2, vOne, vF2P, vOD, vOnes, vZer = range(17, 23); vOD2 = 3
    vQ = 240; SA, SB = 24, 40; vT = 56
    E(f"""
    s_lshl2_add_u32 s{sT}, s{sRB}, s{sW}
    s_lshl_b32 s{sT}, s{sT}, 15
    v_lshrrev_b32 v2, 3, v1
    v_lshl_add_u32 v2, v2, 10, s{sT}
    v_lshrrev_b32 v3, 4, v1
    v_xor_b32 v3, v3, v1
    v_and_b32 v3, 7, v3
    v_lshl_add_u32 v{vXD}, v3, 4, v2
    v_xor_b32 v{vXD+1}, 64, v{vXD}
    s_movk_i32 s{sT}, 7168
    v_add_u32 v{vXD+1}, s{sT}, v{vXD+1}
    s_movk_i32 s{sT}, 14336
    v_add_u32 v{vXD+2}, s{sT}, v{vXD}
    v_add_u32 v{vXD+3}, s{sT}, v{vXD+1}
    v_lshrrev_b32 v2, 2, v0
    v_mul_u32_u24 v2, 3072, v2
    v_and_b32 v3, 3, v1
    s_lshl2_add_u32 s{sT}, s{sHP}, 64
    v_add_u32 v3, s{sT}, v3
    v_lshl_add_u32 v{vWD}, v3, 4, v2
    s_mul_i32 s{sM0}, s{sW}, {WPART}
    s_mov_b32 s{SRDX+2}, 0x200000
    s_mov_b32 s{SRDX+3}, 0x00020000
    s_mov_b64 {sr(SRDW+2,2)}, {sr(SRDX+2,2)}
    """)
    Q3, A0 = OPT["q3"], OPT["a0"]
    assert Q3 + A0 <= 8
    rest = list(range(Q3, 8))
    att = {i: [] for i in range(10)}
    for j in range(Q3): att[j + A0].append(j)
    att[8], att[9] = rest[:4], rest[4:]
    cnt = {i: (6 if i < 8 else 0) + len(att[i]) for i in range(10)}
    sWQ = 27
    def dmaq(j):
        return [f"s_add_u32 s{sT+1}, s{sROT}, {j}", f"s_and_b32 s{sT+1}, s{sT+1}, 7", f"s_add_u32 m0, s{sWQ}, {WQ+4096*j}",
                f"s_mul_i32 s{sT+1}, s{sT+1}, 196608", f"buffer_load_dwordx4 v{vWD+1}, {sr(SRDW,4)}, s{sT+1} offen lds"]
    def dma(i, first=False):
        if i >= 8: return [dmaq(j) for j in att[i]]
        slot = i % NS
        g = []
        for seg in range(2):
            g.append([f"buffer_load_dwordx4 v{vWD}, {sr(SRDW,4)}, s{sWO} offen offset:{seg*1024} {'nt' if OPT.get('nt',0) & 1 and i < OPT.get('nts',8) else ''} lds"])
        for j in range(4):
            g.append([f"buffer_load_dwordx4 v{vXD+j}, {sr(SRDX,4)}, s{sXO} offen offset:{j*1024} {'nt' if OPT.get('nt',0) & 2 and i < OPT.get('nts',8) else ''} lds"])
        st = sROT if i == 0 else sT
        pre = [] if i == 0 else [f"s_add_u32 s{sT}, s{sROT}, {i}", f"s_and_b32 s{sT}, s{sT}, 7"]
        pre += [f"s_add_u32 m0, s{sM0}, {RING+slot*SLOT+4096}", f"s_mul_i32 s{sWO}, s{st}, 196608"]
        if first:
            pre += ["s_waitcnt lgkmcnt(0)", f"s_mov_b64 {sr(SRDW,2)}, {sr(pW,2)}", f"s_mov_b64 {sr(SRDX,2)}, {sr(pX,2)}"]
        prex = [f"s_add_u32 m0, s{sM0}, {RING+slot*SLOT}", f"s_lshl_b32 s{sXO}, s{st}, 7"]
        if OPT["xf"] >> i & 1:
            n = 0 if i == 0 else 2
            g[2] = pre[:n] + prex + pre[n+2:] + g[2]
            g[0] = pre[n:n+2] + g[0]
            g = g[2:] + g[:2]
        else:
            g[0] = pre + g[0]
            g[2] = prex + g[2]
        if first: g[5] += [f"v_subrev_u32 v{vWD+1}, 1024, v{vWD}", f"s_lshl_b32 s{sWQ}, s{sW}, 10"]
        return g + [dmaq(j) for j in att[i]]
    for g in dma(0, True): E(g)
    E(f"""
    s_and_b32 s{sX}, s{sW}, 1
    s_lshl_b32 s{sT}, s{sX}, 10
    s_add_u32 m0, s{sT}, {GW}
    v_lshlrev_b32 v{vKA}, 4, v1
    global_load_lds_dwordx4 v{vKA}, {sr(pGw,2)}
    """)
    held = dma(1)
    for g in held[:OPT["d1"]]: E(g)
    held = held[OPT["d1"]:]
    if OPT["lay"] == 0:
        E("s_branch L_m1")
        helper_entry(); helper_wave()
        E("L_m1:")
    elif OPT["lay"] == 1:
        E("s_branch L_m1")
        helper_entry()
        E("s_branch L_helper\nL_m1:")
    stamp("m")
    if OPT["tlb"]:
        E(f"""
        s_mov_b32 s{ta}, {WS_FL + 0x100000}
        s_load_dword s18, {sr(pWs,2)}, s{ta}
        s_load_dword s19, {sr(pDbg,2)}, 128
        s_load_dword s20, {sr(pOut,2)}, 0
        s_load_dword s21, {sr(pWo,2)}, 0
        """)
    E(f"""
    s_add_u32 s{pFL}, s{pWs}, {WS_FL}
    s_addc_u32 s{pFL+1}, s{pWs+1}, 0
    s_add_u32 s{ta}, s{sM0}, {RING}
    v_and_b32 v2, 31, v1
    v_lshl_add_u32 v2, v2, 7, s{ta}
    v_bfe_u32 v3, v1, 1, 3
    v_lshrrev_b32 v{vXA+1}, 5, v1
    v_xor_b32 v3, v3, v{vXA+1}
    v_lshl_add_u32 v{vXA}, v3, 4, v2
    v_xor_b32 v{vXA+1}, 32, v{vXA}
    v_xor_b32 v{vXA+2}, 64, v{vXA}
    v_xor_b32 v{vXA+3}, 0x60, v{vXA}
    v_lshrrev_b32 v2, 5, v1
    v_lshlrev_b32 v2, 3, v2
    v_bfe_u32 v3, v1, 2, 2
    v_add_u32 v2, v2, v3
    v_lshlrev_b32 v2, 6, v2
    v_and_b32 v3, 3, v1
    v_lshl_add_u32 v2, v3, 3, v2
    v_bfe_u32 v3, v1, 4, 1
    v_lshl_add_u32 v2, v3, 5, v2
    v_add_u32 v{vWA}, {RING+4096}, v2
    v_add_u32 v{vWA+1}, {RING+4096+2*SLOT}, v2
    v_add_u32 v{vQA}, {WQ}, v2
    """)
    E(f"""
    s_lshr_b32 s{sZ}, s{sW}, 1
    s_mov_b32 s{sQS}, {fbits(0.25 * math.log2(math.e))}
    s_lshl2_add_u32 s{ta}, s{sRB}, s{sW}
    s_lshl_b32 s{ta}, s{ta}, 11
    s_lshl_b32 s{tb}, s{sHP}, 18
    s_add_u32 s{ta}, s{ta}, s{tb}
    v_add_u32 v{vSA}, s{ta}, v{vKA}
    v_add_u32 v{vSB}, 0x20000, v{vSA}
    v_and_b32 v{vVA}, 15, v1
    v_lshrrev_b32 v2, 5, v1
    v_lshl_add_u32 v{vVA}, v2, 4, v{vVA}
    v_lshlrev_b32 v{vVA}, 4, v{vVA}
    v_bfe_u32 v2, v1, 4, 1
    v_lshlrev_b32 v2, 17, v2
    v_add3_u32 v{vSV}, v2, v{vVA}, s{ta}
    s_add_u32 s{tb}, s{sM0}, {EXCH}
    v_add_u32 v{vEW}, s{tb}, v{vKA}
    s_lshl_b32 s{ta}, s{sX}, 10
    s_add_u32 s{ta}, s{ta}, {EXCH}
    s_mul_i32 s{tb}, s{sZ}, 12288
    s_add_u32 s{tc}, s{ta}, s{tb}
    v_add_u32 v{vER0}, s{tc}, v{vKA}
    s_sub_u32 s{tc}, s{ta}, s{tb}
    s_add_u32 s{tc}, s{tc}, 12288
    v_add_u32 v{vER1}, s{tc}, v{vKA}
    s_lshl_b32 s{ta}, s{sX}, 8
    s_add_u32 s{tc}, s{ta}, s{tb}
    s_add_u32 s{tc}, s{tc}, {EXCH}
    v_add_u32 v{vERV}, s{tc}, v{vKA}
    s_lshl1_add_u32 s{ta}, s{sHP}, s{sX}
    s_lshl_b32 s{tb}, s{ta}, 17
    s_lshl_b32 s{tc}, s{sZ}, 12
    s_add_u32 s{tb}, s{tb}, s{tc}
    s_add_u32 s{sKVb}, s{pWs}, s{tb}
    s_addc_u32 s{sKVb+1}, s{pWs+1}, 0
    s_lshl_b32 s{sJ}, s{sRB}, 13
    s_lshl1_add_u32 s{tb}, s{sRB}, s{sZ}
    s_lshl_b32 s{tb}, s{tb}, 6
    s_add_u32 s{tb}, s{tb}, s{ta}
    s_lshl_b32 s{tb}, s{tb}, 10
    s_add_u32 s{tb}, s{tb}, {WS_OF}
    v_add_u32 v{vOA}, s{tb}, v{vKA}
    v_add_u32 v{vOB}, 0x8000, v{vOA}
    s_mul_i32 s{ta}, s{sW}, {REDS}
    s_add_u32 s{ta}, s{ta}, {RED}
    v_add_u32 v{vRW}, s{ta}, v{vKA}
    v_lshl_add_u32 v{vRWl}, v1, 2, s{ta}
    s_xor_b32 s{ta}, s{sW}, 2
    s_mul_i32 s{ta}, s{ta}, {REDS}
    s_add_u32 s{ta}, s{ta}, {RED}
    v_add_u32 v{vRR}, s{ta}, v{vKA}
    v_lshl_add_u32 v{vRRl}, v1, 2, s{ta}
    s_lshl4_add_u32 s{ta}, s{sRB}, s{sHP}
    s_add_u32 s{ta}, s{ta}, {F2}
    s_lshl_b32 s{ta}, s{ta}, {FSH}
    v_mov_b32 v{vF2P}, s{ta}
    v_mov_b32 v{vOne}, 1
    s_lshr_b32 s{ta}, s{sHP}, 2
    s_cmp_eq_u32 s{ta}, s{sW}
    s_cselect_b32 s{sExp}, {"8, 8" if OPT["pw"] else "3, 4"}
    s_lshl_b32 s{ta}, s{ta}, 3
    s_lshl_b32 s{sVal}, 1, s{ta}
    s_lshl1_add_u32 s{ta}, s{sRB}, s{sZ}
    s_lshl3_add_u32 s{ta}, s{ta}, {F2}
    v_add_lshl_u32 v{vF2}, v1, s{ta}, {FSH}
    s_lshl3_add_u32 s{sBfe}, s{sW}, 0x80000
    {f"s_lshr_b32 s{tb}, s{sHP}, 2" if OPT["fm"] else f"s_and_b32 s{tb}, s{sHP}, 3"}
    s_lshl2_add_u32 s{ta}, s{sRB}, s{tb}
    s_lshl2_add_u32 s{ta}, s{ta}, s{sW}
    s_lshl_b32 s{ta}, s{ta}, 13
    s_add_u32 s{ta}, s{ta}, {WS_OF}
    v_add_u32 v{vOD}, s{ta}, v{vKA}
    v_mov_b32 v{vIDX}, 0xdddddddd
    v_and_b32 v2, 27, v1
    v_cmp_eq_u32 vcc, 16, v2
    v_mov_b32 v2, {CNT+32}
    v_mov_b32 v{vZer}, {CNT+16}
    s_mov_b32 s{sMask}, 0x0000ffff
    s_mov_b32 s{sMask+1}, 0x0000ffff
    v_cndmask_b32 v{vOnes}, v{vZer}, v2, vcc
    s_mov_b32 s{sCnt}, 8
    v_add_u32 v{vOD2}, 4096, v{vOD}
    """)
    sOwn = 28
    if OPT["co"]:
        E(f"""
        s_andn2_b32 s{sJ}, 8, s{sRB}
        s_lshl1_add_u32 s{sOwn}, s{sJ}, s{sRB}
        s_sub_u32 s{sJ}, s{sJ}, 1
        """)
    def kvaddr():
        if OPT["co"]:
            return [f"s_add_u32 s{sJ}, s{sJ}, 1", f"s_cmp_eq_u32 s{sJ}, s{sOwn}", f"s_addc_u32 s{sJ}, s{sJ}, 0",
                    f"s_lshl_b32 s29, s{sJ}, 13", f"s_and_b32 s29, s29, 0x1e000",
                    f"s_add_u32 s{sKV}, s{sKVb}, s29", f"s_addc_u32 s{sKV+1}, s{sKVb+1}, 0"]
        return [f"s_add_u32 s{sJ}, s{sJ}, 0x2000", f"s_and_b32 s{sJ}, s{sJ}, 0x1e000",
                f"s_add_u32 s{sKV}, s{sKVb}, s{sJ}", f"s_addc_u32 s{sKV+1}, s{sKVb+1}, 0"]
    E(kvaddr())
    def reads(n):
        i, s = n >> 2, n & 3
        slot = i % NS
        a = vWA + (slot >> 1); so = (slot & 1) * SLOT + s * WPART
        f = vFB + 8 * (n % 3)
        o = [f"ds_read_b128 {vr(vXF+4*n,4)}, v{vXA+s} offset:{slot*SLOT}"]
        for c in range(2):
            o.append(f"ds_read_b64_tr_b16 {vr(f+4*c,2)}, v{a} offset:{so+1024*c}")
            o.append(f"ds_read_b64_tr_b16 {vr(f+2+4*c,2)}, v{a} offset:{so+1024*c+256}")
        return o
    def qread(n, f):
        return [f"ds_read_b64_tr_b16 {vr(f,2)}, v{vQA} offset:{1024*n}", f"ds_read_b64_tr_b16 {vr(f+2,2)}, v{vQA} offset:{1024*n+256}"]
    def qmf(n, f): return f"v_mfma_f32_32x32x16_bf16 {vr(aQ,16)}, {vr(f,4)}, {vr(vXF+4*n,4)}, {'0' if n == 0 else vr(aQ,16)}"
    def inq(n): return n - 4 * A0 if 0 <= n - 4 * A0 < 4 * Q3 else None
    def allreads(n): return reads(n) + (qread(inq(n), vP + 4 * (n % 3)) if inq(n) is not None else [])
    def xdead(n): return [f"v_mov_b32 v{r}, 0" for r in range(vXF + 4 * n, vXF + 4 * n + 4) if r < vKV and (r - vO) % 16 < 8]
    if held:
        E(f"s_waitcnt vmcnt({OPT['d1'] + cnt[0] + 1 - OPT['d1w']})")
        for g in held: E(g)
    E(f"s_waitcnt vmcnt({cnt[1]})")
    if STAMP == 5: stamp("m")
    E("s_barrier")
    stamp("m")
    E(allreads(0) + allreads(1))
    pend = dma(2)
    while len(pend) > 4: E(pend.pop(0))
    for n in range(32):
        f = vFB + 8 * (n % 3); x = vXF + 4 * n
        c = (lambda a: "0" if n == 0 else vr(a, 16))
        m = [f"v_mfma_f32_32x32x16_bf16 {vr(aV,16)}, {vr(x,4)}, {vr(f+4,4)}, {c(aV)}",
             f"v_mfma_f32_32x32x16_bf16 {vr(aK,16)}, {vr(f,4)}, {vr(x,4)}, {c(aK)}"]
        r = allreads(n + 2) if n + 2 < 32 else []
        E(f"s_waitcnt lgkmcnt({len(allreads(n+1)) if n < 31 else 0})")
        E(m[0])
        if (n + 2) % 4 == 0 and n + 2 < 32:
            b = (n + 2) >> 2
            assert not pend
            E(f"s_waitcnt vmcnt({cnt[b+1]}) lgkmcnt(0)")
            if STAMP == 3: stamp("m")
            E("s_barrier")
            if STAMP == 2: stamp("m")
            pend = dma(b + 2)
        E(r[:3])
        if pend: E(pend.pop(0))
        E(m[1]); E(r[3:5])
        if inq(n) is not None:
            E(qmf(inq(n), vP + 4 * (n % 3)))
            if inq(n) >= 1: E(xdead(inq(n) - 1))
        E(r[5:])
        if pend: E(pend.pop(0))
    stamp("m")
    ep = [f"v_cvt_pk_bf16_f32 v{vP+j}, v{aK+2*j}, v{aK+1+2*j}" for j in range(4)]
    ep += [f"global_store_dwordx4 v{vSA}, {vr(vP,4)}, {sr(pWs,2)} sc1"]
    ep += [f"v_cvt_pk_bf16_f32 v{vP+j}, v{aK+2*j}, v{aK+1+2*j}" for j in range(4, 8)]
    ep += [f"global_store_dwordx4 v{vSB}, {vr(vP+4,4)}, {sr(pWs,2)} sc1"]
    ep += [f"v_permlane32_swap_b32 v{vP+8+a}, v{vP+10+a}" for a in (0, 1)]
    ep += [f"global_store_dwordx4 v{vSV}, {vr(vP+8,4)}, {sr(pWs,2)} offset:1024 sc1"]
    ep += [f"v_permlane32_swap_b32 v{vP+8+a}, v{vP+10+a}" for a in (4, 5)]
    ep += [f"global_store_dwordx4 v{vSV}, {vr(vP+12,4)}, {sr(pWs,2)} offset:1536 sc1"]
    LQ = OPT["lq"]
    qb = [40, 44, 24, 28, 32, 36, 64, 68, 72]
    E("s_nop 10")
    for j in range(8):
        E(f"v_cvt_pk_bf16_f32 v{vP+8+j}, v{aV+2*j}, v{aV+1+2*j}")
    cut = OPT["epc"]
    E(ep[:cut])
    E(f"s_waitcnt vmcnt({cnt[9] + sum('store' in x for x in ep[:cut])})\ns_barrier")
    if STAMP == 4: stamp("m")
    n0 = 4 * Q3
    for n in range(n0, min(32, n0 + LQ)): E(qread(n, qb[(n - n0) % 9]))
    E(ep[cut:])
    late = [f"ds_read_b128 {vr(vO+16*q+8+4*e,4)}, v{vZer}" for q in range(4) for e in range(2)]
    late += [f"ds_write_b128 v{vEW}, {vr(vP+4*j,4)} offset:{2048+1024*j}" for j in range(4)]
    late += [f"ds_read_b128 {vr(vKV+12*st+4+4*e,4)}, v{vOnes}" for st in range(4) for e in range(2)]
    nl = 0
    ackn = 32 - OPT["ackr"]
    assert not att[9] or ackn > n0 + 16 - LQ
    for n in range(n0, 32):
        E(f"s_waitcnt lgkmcnt({min(15, 2*min(LQ-1, 31-n) + nl)})")
        E(qmf(n, qb[(n - n0) % 9]))
        if n == max(n0, ackn):
            if STAMP == 4: stamp("m")
            E("s_waitcnt vmcnt(0)\ns_barrier")
            if STAMP == 4: stamp("m")
        if n + LQ < 32:
            if n + LQ == n0 + 16:
                if STAMP == 4: stamp("m")
                E("s_waitcnt vmcnt(4)\ns_barrier")
                if STAMP == 4: stamp("m")
            E(qread(n + LQ, qb[(n + LQ - n0) % 9]))
        else:
            E(late[:2]); late = late[2:]; nl += 2
        if n >= 1: E(xdead(n - 1))
    E(late)
    E(f"s_nop {max(0, 11 - len(late))}")
    for o in (0, 1):
        for j in range(8):
            E(f"v_mul_f32 v{aQ+8*o+j}, s{sQS}, v{aQ+8*o+j}")
        for j in range(4):
            E(f"v_cvt_pk_bf16_f32 v{aK+4*o+j}, v{aQ+8*o+2*j}, v{aQ+8*o+1+2*j}")
        E(f"ds_write_b128 v{vEW}, {vr(aK+4*o,4)} offset:{1024*o}")
    if STAMP == 4: stamp("m"); E("s_waitcnt vmcnt(0)"); stamp("m")
    LATE = ackn > 31 or n0 == 32
    E("s_waitcnt lgkmcnt(0)\ns_barrier")
    stamp("m")
    E(f"""
    ds_read_b128 {vr(vQ,4)}, v{vER1}
    ds_read_b128 {vr(vKV,4)}, v{vER0} offset:2048
    ds_read_b128 {vr(vQ+4,4)}, v{vER1} offset:6144
    s_mov_b64 exec, {sr(sMask,2)}
    ds_read_b128 {vr(vKV+4,4)}, v{vERV} offset:4096
    ds_read_b128 {vr(vKV+8,4)}, v{vERV} offset:5120
    ds_read_b128 {vr(vKV+16,4)}, v{vERV} offset:{4096+6144}
    ds_read_b128 {vr(vKV+20,4)}, v{vERV} offset:{5120+6144}
    s_mov_b64 exec, -1
    ds_read_b128 {vr(vQ+8,4)}, v{vER0}
    ds_read_b128 {vr(vQ+12,4)}, v{vER0} offset:6144
    ds_read_b128 {vr(vKV+12,4)}, v{vER0} offset:{2048+6144}
    s_waitcnt lgkmcnt(8)
    v_mfma_f32_32x32x16_bf16 {vr(SA,16)}, {vr(vKV,4)}, {vr(vQ,4)}, 0
    v_mov_b32 v6, 0
    v_mov_b32 v4, 0
    v_mov_b32 v5, s{sVal}
    v_mov_b32 v2, s{sW}
    s_lshl_b32 s{sXO}, s{sW}, 13
    s_add_u32 m0, s{sXO}, {OFL}
    s_nop 4
    s_waitcnt lgkmcnt(0)
    """)
    def kload(st, par):
        return [f"global_load_dwordx4 {vr(vKV+12*st,4)}, v{vKA}, {sr(sKV,2)} offset:{par*2048} sc1"]
    def vload(st, par):
        return [f"s_mov_b64 exec, {sr(sMask,2)}",
                f"global_load_dwordx4 {vr(vKV+12*st+4,4)}, v{vVA}, {sr(sKV,2)} offset:{par*2048+1024} sc1",
                f"global_load_dwordx4 {vr(vKV+12*st+8,4)}, v{vVA}, {sr(sKV,2)} offset:{par*2048+1536} sc1",
                "s_mov_b64 exec, -1"]
    def step(t, q, mode="loop", lo=0, hi=16, extra=None):
        cur, oth = (SA, SB) if q % 2 == 0 else (SB, SA)
        tp, qp = (t, q - 1) if q else ((t - 1) % 4, 3)
        tn, qn = (t, q + 1) if q < 3 else ((t + 1) % 4, 0)
        after2, afterq, after1 = extra or ([], [], [])
        st = (t + 3) % 4; par = (t + 3) & 1
        if mode == "loop":
            if q == 0:
                after2 = vload(st, par); afterq = kload(st, par)
            if q == 1 and par == 1:
                ka = kvaddr(); after2 = ka[:2]; after1 = ka[2:]
                if OPT["co"]: afterq = ka[2:3]; after1 = ka[3:5]
            if q == 2 and par == 1 and OPT["co"]: after2 = kvaddr()[5:]
            if q == 3:
                after2 = ["s_waitcnt vmcnt(6)"]
                if t == 2:
                    after2 += [f"s_sub_u32 s{sCnt}, s{sCnt}, 1"]; afterq = [f"s_cmp_lg_u32 s{sCnt}, 0"]
        for i in range(lo, hi):
            E(f"v_exp_f32 v{cur+i}, v{cur+i}")
            if i == 1 and not (mode == "first" and q == 0):
                E(f"v_smfmac_f32_32x32x32_bf16 {vr(vO+16*qp,16)}, {vr(vKV+12*tp+8,4)}, {vr(oth+8,8)}, v{vIDX}")
                E(after2)
            if i == 4 and not (mode == "last" and q == 3):
                E(f"v_mfma_f32_32x32x16_bf16 {vr(oth,16)}, {vr(vKV+12*tn,4)}, {vr(vQ+4*qn,4)}, 0")
                E(afterq)
            if i == 10:
                E(f"v_smfmac_f32_32x32x32_bf16 {vr(vO+16*q,16)}, {vr(vKV+12*t+4,4)}, {vr(cur,8)}, v{vIDX}")
                E(after1)
    ackq = -OPT["ackr"] if LATE else -1
    assert ackq < OPT["bp"]
    for q in range(4):
        if q == ackq: E("s_waitcnt vmcnt(0)\ns_barrier")
        if q == OPT["bp"] - 1:
            step(0, q, "first", hi=11)
            E("s_barrier")
            stamp("m")
            E(kload(2, 0) + vload(2, 0)[:3] + vload(3, 1)[1:] + kload(3, 1) + kvaddr())
            step(0, q, "first", lo=11)
        else:
            step(0, q, "first", hi=(11 if q == 3 and OPT["seq"] else 16))
    def itst():
        if OPT.get("itst"):
            E(f"s_memtime s[90:91]\ns_mov_b32 s89, m0\ns_mov_b32 m0, s{sCnt}\ns_waitcnt lgkmcnt(0)\nv_writelane_b32 v23, s90, m0\ns_mov_b32 m0, s89")
    if OPT["seq"]:
        assert OPT["bp"] < 4
        E(".p2align 3\nL_attn:")
        step(0, 3, lo=11)
        for t in (1, 2, 3, 0):
            for q in range(4):
                if (t, q) == (2, 3):
                    step(t, q, hi=11); itst(); E("s_cbranch_scc0 L_last"); step(t, q, lo=11)
                else:
                    step(t, q, hi=(11 if (t, q) == (0, 3) else 16))
        E("s_branch L_attn\nL_last:")
    else:
        E("s_branch L_attn1\n.p2align 3\nL_attn:")
        step(2, 3, lo=11)
        for t in (3, 0, 1, 2):
            if t == 1: E("L_attn1:")
            for q in range(4): step(t, q, hi=(11 if (t, q) == (2, 3) else 16))
        itst()
        E("s_cbranch_scc1 L_attn")
    step(2, 3, lo=11)
    vR = 64
    def sendw(q): return [f"ds_write_b128 v{vRW}, {vr(vO+16*q,4)} offset:{2048*q}", f"ds_write_b128 v{vRW}, {vr(vO+16*q+4,4)} offset:{2048*q+1024}",
                          f"ds_write_b32 v{vRWl}, v{vO+16*q+8} offset:{4096+256*q}"]
    recv = ["s_waitcnt lgkmcnt(0)", "s_barrier",
            f"ds_read_b32 v{vR+16}, v{vRRl} offset:4096", f"ds_read_b128 {vr(vR,4)}, v{vRR}", f"ds_read_b128 {vr(vR+4,4)}, v{vRR} offset:1024",
            f"ds_read_b32 v{vR+17}, v{vRRl} offset:4352", f"ds_read_b128 {vr(vR+8,4)}, v{vRR} offset:2048", f"ds_read_b128 {vr(vR+12,4)}, v{vRR} offset:3072"]
    pol0 = ["s_mov_b64 exec, 1", f"global_atomic_add v6, v{vF2P}, v6, {sr(pFL,2)} sc0 sc1", "s_mov_b64 exec, -1"]
    es = OPT.get("es", 0)
    sig0 = ["s_bfm_b64 exec, 8, 0", f"global_atomic_add v{vF2}, v5, {sr(pFL,2)} sc1", "s_mov_b64 exec, -1"]
    step(3, 0, "last", extra=(hop() + (sig0 if es == 1 else []), [], [])); step(3, 1, "last", extra=(pol0 if OPT["pre"] == 1 else [], [], hop() + (sig0 if es == 2 else [])))
    w0 = sendw(0)
    step(3, 2, "last", extra=(w0[:1], w0[1:2], (pol0 if OPT["pre"] == 2 else []) + w0[2:]))
    step(3, 3, "last", extra=(hop() + (sig0 if es == 3 else []) + sendw(1), [], recv + (sig0 if es == 4 else [])))
    O2, O3 = vO + 32, vO + 48
    E(f"""
    s_waitcnt lgkmcnt(3)
    v_add_f32 v{O2+8}, v{O2+8}, v{vR+16}
    v_smfmac_f32_32x32x32_bf16 {vr(O3,16)}, {vr(vKV+36+8,4)}, {vr(SB+8,8)}, v{vIDX}
    """)
    E(hop())
    stamp("m")
    def fin(o, r, rl, dst, addr):
        if rl is not None: E(f"v_add_f32 v{o+8}, v{o+8}, v{rl}")
        E(f"v_rcp_f32 v{vT}, v{o+8}")
        if rl is not None:
            for j in range(0, 8, 2): E(f"v_pk_add_f32 {vr(o+j,2)}, {vr(o+j,2)}, {vr(r+j,2)}")
            for j in range(0, 8, 2): E(f"v_pk_mul_f32 {vr(o+j,2)}, {vr(o+j,2)}, {vr(vT,2)} op_sel_hi:[1,0]")
            for j in range(4): E(f"v_cvt_pk_bf16_f32 v{dst+j}, v{o+2*j}, v{o+2*j+1}")
            E(f"global_store_dwordx4 v{addr}, {vr(dst,4)}, {sr(pWs,2)} sc1")
            return
        if r is not None:
            for j in range(8): E(f"v_add_f32 v{o+j}, v{o+j}, v{r+j}")
        else:
            E("s_nop 0")
        for j in range(8): E(f"v_mul_f32 v{o+j}, v{o+j}, v{vT}")
        for j in range(4): E(f"v_cvt_pk_bf16_f32 v{dst+j}, v{o+2*j}, v{o+2*j+1}")
        E(f"global_store_dwordx4 v{addr}, {vr(dst,4)}, {sr(pWs,2)} sc1")
    fin(O2, vR, None, SA, vOA)
    E("s_waitcnt lgkmcnt(0)")
    E(hop())
    fin(O3, vR + 8, vR + 17, SA + 4, vOB)
    assert OPT["ep"] and OPT["pw"]
    if OPT["ep"]: E(f"s_mov_b64 exec, 1\nglobal_atomic_add v4, v{vF2P}, v4, {sr(pFL,2)} sc0 sc1\ns_mov_b64 exec, -1")
    E(hop())
    E(f"""
    s_mov_b32 s{ta}, {fbits(2.0**-30)}
    s_mov_b32 s{tb}, {fbits(2.0**50)}
    v_min_f32 v{vT+6}, v{O2+8}, v{O3+8}
    v_max_f32 v{vT+7}, v{O2+8}, v{O3+8}
    v_cmp_lt_f32 vcc, s{ta}, v{vT+6}
    v_cmp_gt_f32 {sr(tc,2)}, s{tb}, v{vT+7}
    v_pk_mul_f32 {vr(vT+2,2)}, {vr(O2,2)}, 0 op_sel_hi:[1,0]
    s_and_b64 {sr(tc,2)}, {sr(tc,2)}, vcc
    """)
    for j in (2, 4, 6, 16, 18, 20, 22):
        E(f"v_pk_fma_f32 {vr(vT+2,2)}, {vr(O2+j,2)}, 0, {vr(vT+2,2)} op_sel_hi:[1,0,1]")
    E(f"""
    v_cmp_o_f32 vcc, v{vT+2}, v{vT+3}
    s_nop 1
    s_and_b64 vcc, {sr(tc,2)}, vcc
    s_cmp_eq_u64 vcc, -1
    s_cbranch_scc0 L_safe
    """)
    test = lambda r: [f"s_bfe_u32 s{r}, s{r}, s{sBfe}", f"s_cmp_eq_u32 s{r}, s{sExp}"]
    def odma():
        for j in range(4):
            E(f"global_load_lds_dwordx4 v{vOD}, {sr(pWs,2)} offset:{1024*j} sc1")
        E(f"s_add_u32 m0, s{sXO}, {OFL+4096}")
        E(hop() or ["s_nop 0"])
        for j in range(4):
            E(f"global_load_lds_dwordx4 v{vOD2}, {sr(pWs,2)} offset:{1024*j} sc1")
    if OPT["pre"]:
        E(f"s_waitcnt vmcnt({4 if es >= 2 + (OPT['pre'] == 2) else 3})\nv_readfirstlane_b32 s{ta}, v6\ns_nop 0")
        E(test(ta)); E("s_cbranch_scc0 L_late")
        if OPT.get("noack") and not es: add_ctr(vF2, 5, 8)
        odma()
        if OPT.get("noack"): E("s_waitcnt vmcnt(0)")
        else:
            E("s_waitcnt vmcnt(9)")
            add_ctr(vF2, 5, 8)
        n0 = nstamp["m"]; stamp("m"); stamp("m"); nstamp["m"] = n0
        E("s_waitcnt vmcnt(1)\ns_branch L_got\nL_late:")
    E("L_pub:" if OPT.get("noack") else "s_waitcnt vmcnt(1)\nL_pub:")
    if not es: add_ctr(vF2, 5, 8)
    stamp("m")
    poll_ctr(vF2P, 4, test, OPT["pd"], 1 if es else 2)
    stamp("m")
    odma()
    E(f"s_waitcnt vmcnt(0)\nL_got:\nds_write_b8 v2, v{vOne} offset:{CNT+12}")
    stamp("m")
    if OPT["hop"]: E(f"L_hop{nhop[0]}:\ns_cbranch_execz L_hopdone")
    stamp_flush("m"); spin_end("m")
    if OPT.get("itst"):
        E(f"v_lshl_add_u32 v2, v1, 2, v2\nv_add_u32 v2, 0x100000, v2\ns_mov_b64 exec, 0xff\nglobal_store_dword v2, v23, {sr(pWs,2)}")
    E("s_endpgm")
    vM, vC = vT + 6, 64
    vQ += 8; vO += 32
    E(f"""
    L_safe:
    s_waitcnt vmcnt(0)
    s_lshl_b32 s{ta}, s{sZ}, 12
    s_sub_u32 s{sKVb}, s{sKVb}, s{ta}
    s_subb_u32 s{sKVb+1}, s{sKVb+1}, 0
    s_mov_b32 s{sKV}, s{sKVb}
    s_mov_b32 s{sKV+1}, s{sKVb+1}
    s_mov_b32 s{sCnt}, 64
    v_mov_b32 v{vM}, 0xff800000
    v_mov_b32 v{vM+1}, 0xff800000
    L_safe1:
    global_load_dwordx4 {vr(vKV,4)}, v{vKA}, {sr(sKV,2)} sc1
    s_add_u32 s{sKV}, s{sKV}, 2048
    s_addc_u32 s{sKV+1}, s{sKV+1}, 0
    s_waitcnt vmcnt(0)
    v_mfma_f32_32x32x16_bf16 {vr(SA,16)}, {vr(vKV,4)}, {vr(vQ,4)}, 0
    v_mfma_f32_32x32x16_bf16 {vr(SB,16)}, {vr(vKV,4)}, {vr(vQ+4,4)}, 0
    s_nop 15
    """)
    for j in range(8):
        E(f"v_max3_f32 v{vM}, v{SA+2*j}, v{SA+2*j+1}, v{vM}\nv_max3_f32 v{vM+1}, v{SB+2*j}, v{SB+2*j+1}, v{vM+1}")
    E(f"""
    s_sub_u32 s{sCnt}, s{sCnt}, 1
    s_cmp_lg_u32 s{sCnt}, 0
    s_cbranch_scc1 L_safe1
    v_mov_b32 v{SA}, v{vM}
    v_mov_b32 v{SB}, v{vM+1}
    s_nop 1
    v_permlane32_swap_b32 v{SA}, v{vM}
    v_permlane32_swap_b32 v{SB}, v{vM+1}
    s_nop 1
    v_max_f32 v{vM}, v{vM}, v{SA}
    v_max_f32 v{vM+1}, v{vM+1}, v{SB}
    """)
    for j in range(16):
        E(f"v_sub_f32 v{vC+j}, 0, v{vM}\nv_sub_f32 v{vC+16+j}, 0, v{vM+1}\nv_mov_b32 v{vO+j}, 0\nv_mov_b32 v{vO+16+j}, 0")
    E(f"""
    s_mov_b32 s{sKV}, s{sKVb}
    s_mov_b32 s{sKV+1}, s{sKVb+1}
    s_mov_b32 s{sCnt}, 64
    L_safe2:
    """)
    E(kload(0, 0) + vload(0, 0))
    E(f"""
    s_add_u32 s{sKV}, s{sKV}, 2048
    s_addc_u32 s{sKV+1}, s{sKV+1}, 0
    s_waitcnt vmcnt(0)
    v_mfma_f32_32x32x16_bf16 {vr(SA,16)}, {vr(vKV,4)}, {vr(vQ,4)}, {vr(vC,16)}
    v_mfma_f32_32x32x16_bf16 {vr(SB,16)}, {vr(vKV,4)}, {vr(vQ+4,4)}, {vr(vC+16,16)}
    s_nop 15
    """)
    for j in range(32):
        E(f"v_exp_f32 v{SA+j}, v{SA+j}")
    E(f"""
    s_nop 1
    v_smfmac_f32_32x32x32_bf16 {vr(vO,16)}, {vr(vKV+4,4)}, {vr(SA,8)}, v{vIDX}
    v_smfmac_f32_32x32x32_bf16 {vr(vO,16)}, {vr(vKV+8,4)}, {vr(SA+8,8)}, v{vIDX}
    v_smfmac_f32_32x32x32_bf16 {vr(vO+16,16)}, {vr(vKV+4,4)}, {vr(SB,8)}, v{vIDX}
    v_smfmac_f32_32x32x32_bf16 {vr(vO+16,16)}, {vr(vKV+8,4)}, {vr(SB+8,8)}, v{vIDX}
    s_sub_u32 s{sCnt}, s{sCnt}, 1
    s_cmp_lg_u32 s{sCnt}, 0
    s_cbranch_scc1 L_safe2
    s_nop 15
    """)
    fin(O2, None, None, SA, vOA); fin(O3, None, None, SA + 4, vOB)
    E("s_waitcnt vmcnt(0)\ns_branch L_pub")

def helper_wave():
    sH, sC, sMH, sRT, sCB, sD = sT, sT + 1, sT + 2, sT + 3, sT + 4, sT + 5
    sLd, sDs = sT + 6, sT + 7
    t0 = sT + 8
    sLead, sWst, sPar = 92, 93, 94
    sAT = 100
    vGW = 156
    vGWA = 155
    vXF = 160
    vG, vGA0, vGA1 = 164, 165, 166
    vU = 168
    vKW = 128
    vNb, vPad, vF4, vF4P, vRdy, vF1, vF1P = range(141, 148)
    vTA, vTS = 148, 152
    sUW = sT + 13; sOut = sT + 12
    assert NS == 3
    vPar = 4
    E(f"""
    L_helper:
    s_lshr_b32 s{sC}, s{sH}, 1
    s_add_u32 s{sD}, s{sCH}, s{sC}
    s_and_b32 s{sCB if OPT["fm"] else sRT}, s{sHP}, 3
    s_lshr_b32 s{sRT if OPT["fm"] else sCB}, s{sHP}, 2
    v_lshrrev_b32 v3, 5, v1
    v_lshlrev_b32 v3, 4, v3
    s_lshl_b32 s{t0+2}, s{sROT}, 2
    s_add_u32 s{t0+2}, s{t0+2}, s{sH}
    s_lshl_b32 s{t0+2}, s{t0+2}, 5
    s_add_u32 s{t0+2}, s{t0+2}, {GW}
    v_add_u32 v{vGWA}, s{t0+2}, v3
    v_mov_b32 v12, 0
    v_mov_b32 v13, 0
    v_mov_b32 v14, 0
    v_mov_b32 v15, 0
    s_cmp_lt_u32 s2, 16
    s_cselect_b32 s{sLead}, s{sW}, 0
    """)
    E(f"s_add_u32 s{pFL}, s{pWs}, {WS_FL}\ns_addc_u32 s{pFL+1}, s{pWs+1}, 0")
    stamp("h")
    E(f"""
    s_mul_i32 s{t0}, s{sC}, {URS}
    s_add_u32 s{t0}, s{t0}, {UR+4096}
    v_lshl_add_u32 v10, v1, 4, s{t0}
    v_and_b32 v11, 1, v1
    v_lshlrev_b32 v11, 4, v11
    v_cmp_gt_u32 vcc, 30, v1
    v_add_u32 v11, {CNT}, v11
    v_mov_b32 v2, 0x3f803f80
    v_cndmask_b32 v10, v11, v10, vcc
    ds_write_b128 v10, v[12:15]
    v_and_b32 v11, 3, v1
    v_lshlrev_b32 v11, 2, v11
    ds_write_b32 v11, v2 offset:{CNT+32}
    """)
    vWA, vRA = 16, 17
    if "prio1" in OPT: E(f"s_setprio {OPT['prio1']}")
    E(f"""
    s_mul_i32 s{t0}, s{sRT}, {WPART}
    s_add_u32 s{t0}, s{t0}, {RING}
    v_and_b32 v10, 31, v1
    v_lshl_add_u32 v10, v10, 7, s{t0}
    v_bfe_u32 v11, v1, 1, 3
    v_lshrrev_b32 v3, 5, v1
    v_xor_b32 v11, v11, v3
    s_lshl_b32 s{t0}, s{sH}, 1
    v_xor_b32 v11, s{t0}, v11
    v_lshl_add_u32 v{vGA0}, v11, 4, v10
    v_mov_b32 v{vG}, 0
    s_lshr_b32 s{sUW}, s{sHP}, 1
    s_sub_u32 s{sUW}, s{sUW}, s{sROT}
    s_and_b32 s{sUW}, s{sUW}, 7
    s_mul_i32 s{t0}, s{sUW}, 11
    s_lshr_b32 s{t0}, s{t0}, 5
    s_mul_i32 s{t0}, s{t0}, 3
    s_sub_u32 s{t0}, s{sUW}, s{t0}
    s_mul_i32 s{t0}, s{t0}, {SLOT}
    s_mul_i32 s{t0+1}, s{sH}, {WPART}
    s_add_u32 s{t0}, s{t0}, s{t0+1}
    s_add_u32 s{t0}, s{t0}, {RING}
    v_and_b32 v10, 3, v1
    v_bfe_u32 v11, v1, 2, 2
    v_lshlrev_b32 v10, 3, v10
    v_sub_u32 v10, v10, v11
    v_add_u32 v10, 7, v10
    v_bfe_u32 v11, v10, 1, 3
    v_xor_b32 v11, v11, v3
    s_and_b32 s{t0+1}, s{sHP}, 1
    s_lshl_b32 s{t0+1}, s{t0+1}, 2
    v_xor_b32 v11, s{t0+1}, v11
    v_lshlrev_b32 v11, 4, v11
    v_lshl_add_u32 v11, v10, 7, v11
    v_bfe_u32 v10, v1, 4, 1
    v_lshl_add_u32 v11, v10, 3, v11
    v_add_u32 v{vTA}, s{t0}, v11
    v_xor_b32 v{vTA+1}, 32, v{vTA}
    v_subrev_u32 v{vTA+2}, 512, v{vTA}
    v_subrev_u32 v{vTA+3}, 512, v{vTA+1}
    s_mul_i32 s{t0}, s{sH}, {KGS}
    s_add_u32 s{t0}, s{t0}, {KG}
    s_mov_b32 m0, s{t0}
    v_and_b32 v10, 31, v1
    v_mul_u32_u24 v10, 272, v10
    v_lshl_add_u32 v10, v3, 4, v10
    v_add_u32 v{vRA}, s{t0}, v10
    """)
    K = []
    def k(s, c=None):
        if isinstance(s, list): s = "\n".join(s)
        for x in s.split("\n"):
            x = x.strip()
            if not x: continue
            cc = c if c is not None else (8 if any(t in x for t in ("v_exp", "v_sin", "v_cos", "v_rcp", "ds_")) else 4)
            K.append((cc, x))
    va, vb, vt = 220, 221, 222
    log2e = math.log2(math.e)
    c_hi = struct.unpack("<f", struct.pack("<f", log2e))[0]
    c_lo = log2e - c_hi
    k(f"""
    s_waitcnt lgkmcnt(0)
    s_lshl_b32 s{t0}, s{sC}, 4
    s_lshr_b32 s{sLd}, s{sLd}, s{t0}
    s_lshl_b32 s{sLd}, s{sLd}, 16
    s_lshr_b32 s{sDs}, s{sDs}, s{t0}
    s_lshl_b32 s{sDs}, s{sDs}, 16
    s_mov_b32 s{t0}, {fbits(c_hi)}
    v_mov_b32 v{vt}, s{sLd}
    v_mul_f32 v{vt+1}, s{t0}, v{vt}
    v_fma_f32 v{vt+2}, v{vt}, s{t0}, -v{vt+1}
    v_fmac_f32 v{vt+2}, {fbits(c_lo)}, v{vt}
    v_exp_f32 v{vt+1}, v{vt+1}
    v_mul_f32 v{vt+2}, {fbits(math.log(2.0))}, v{vt+2}
    v_fma_f32 v{vt+1}, v{vt+1}, v{vt+2}, v{vt+1}
    v_cvt_pk_bf16_f32 v{vt+1}, v{vt+1}, v{vt+1}
    v_lshlrev_b32 v{vt}, 16, v{vt+1}
    """)
    KPRE = [x for _, x in K]; K.clear()
    k("s_waitcnt vmcnt(0)")
    for j in range(6):
        k(f"v_lshlrev_b32 v{vPar+j}, 16, v{vPar+j}")
    k(f"""
    v_mul_f32 v{va}, v{vt}, v{vPar}
    v_mul_f32 v{vb}, v{vt}, v{vPar+1}
    v_mul_f32 v{vPar+2}, v{vt}, v{vPar+2}
    v_mul_f32 v{vPar+3}, v{vt}, v{vPar+3}
    v_mul_f32 v{va}, {fbits(c_hi)}, v{va}
    v_mul_f32 v{vb}, 0.15915494, v{vb}
    """)
    def cmul(z, x, w):
        if OPT["pk"]:
            return [f"v_pk_mul_f32 {vr(z,2)}, {vr(x,2)}, {vr(w,2)} op_sel_hi:[0,1]",
                    f"v_pk_fma_f32 {vr(z,2)}, {vr(x,2)}, {vr(w,2)}, {vr(z,2)} op_sel:[1,1,0] op_sel_hi:[1,0,1] neg_lo:[1,0,0]"]
        return [f"v_mul_f32 v{z}, v{x}, v{w}\nv_mul_f32 v{z+1}, v{x}, v{w+1}",
                f"v_fma_f32 v{z}, -v{x+1}, v{w+1}, v{z}\nv_fmac_f32 v{z+1}, v{x+1}, v{w}"]
    def cmuls(lst):
        cm = [cmul(*a) for a in lst]
        k([c[0] for c in cm]); k([c[1] for c in cm])
    def direct(z, x):
        k(f"""
        v_mul_f32 v{vt+2}, {fbits(x)}, v{vb}
        v_mul_f32 v{vt+1}, {fbits(x)}, v{va}
        v_fract_f32 v{vt+2}, v{vt+2}
        v_exp_f32 v{vt+1}, v{vt+1}
        v_cos_f32 v{z}, v{vt+2}
        v_sin_f32 v{z+1}, v{vt+2}
        s_nop 0
        v_mul_f32 v{z}, v{z}, v{vt+1}
        v_mul_f32 v{z+1}, v{z+1}, v{vt+1}
        """)
    E1, E32, E256 = 226, 228, 230
    vE = 232
    vPk = 64
    npk = [0]
    DW = {False: [], True: []}
    def puts(lst, neg):
        for z, rows in lst:
            p = vPk + npk[0]; npk[0] += 1
            k(f"v_cvt_pk_bf16_f32 v{p}, v{z}, {'-' if neg else ''}v{z+1}")
            DW[neg] += [f"ds_write_addtid_b32 v{p} offset:{272*r}" for r in rows]
        if OPT["kds"] > neg: k(DW[neg]); DW[neg] = []
    def e(j): return vE + 2 * (j % 8)
    direct(e(1), 8.0); direct(E32, 32.0)
    k(f"v_mov_b32 v{e(0)}, 1.0\nv_mov_b32 v{e(0)+1}, 0\nv_mov_b32 v{e(4)}, v{E32}\nv_mov_b32 v{e(4)+1}, v{E32+1}")
    cmuls([(e(2), e(1), e(1)), (e(5), e(1), E32)])
    cmuls([(e(3), e(2), e(1)), (e(6), e(2), E32)])
    cmuls([(e(7), e(3), E32)])
    puts([(e(j), [j]) for j in range(4)], False)
    for j0 in range(4, 32, 4):
        if j0 + 4 < 32: cmuls([(e(j + 4), e(j), E32) for j in range(j0, j0 + 4)])
        puts([(e(j), [j]) for j in range(j0, j0 + 4)], False)
    vEF, vGF, vD = (64 if OPT["kds"] else 192), 224, 176
    if OPT["kds"]: k([f"ds_read_b128 {vr(vEF+4*s,4)}, v{vRA} offset:{32*s}" for s in range(8)])
    direct(E1, 1.0); direct(E256, 256.0)
    def row(r, h): return 8 * (r >> 2) + 4 * h + (r & 3)
    vGv = 192
    g = {x: vGv + 2 * x for x in range(9)}
    E2 = e(0)
    cmuls([(g[0], vPar + 4, vPar + 2), (E2, E1, E1)])
    cmuls([(g[1], g[0], E1), (g[2], g[0], E2)])
    cmuls([(g[3], g[1], E2), (g[4], g[2], E2)])
    puts([(g[x], [row(x, 0)]) for x in range(4)], True)
    cmuls([(g[5], g[3], E2), (g[6], g[4], E2)])
    cmuls([(g[7], g[5], E2), (g[8], g[6], E2)])
    puts([(g[x], [row(x, 0)]) for x in range(4, 8)], True)
    A = {o: vGv + 18 + 2 * i for i, o in enumerate((0, 2, 4, 6, 8))}
    cmuls([(A[o], g[o], E256) for o in (0, 2, 4, 6, 8)])
    puts([(A[o], [row(r, 1) for r in rs]) for o, rs in ((0, (0, 1)), (2, (2,)), (4, (3, 4, 5)), (6, (6,)), (8, (7,)))], True)
    src, dst = A, g
    for os_, r0, h in (((0, 4, 8), 8, 0), ((0, 4, 8), 8, 1), ((0, 8), 11, 0), ((0, 8), 11, 1), ((0, 8), 13, 0), ((0, 8), 13, 1)):
        cmuls([(dst[o], src[o], E256) for o in os_])
        puts([(dst[o], [row(r0 + i, h)]) for i, o in enumerate(os_)], True)
        src, dst = dst, src
    if OPT["kds"] == 2: k([f"ds_read_b128 {vr(vGF+4*s,4)}, v{vRA} offset:{32*s}" for s in range(8)])
    def D1():
        if not OPT["kds"]: E(DW[False] + [f"ds_read_b128 {vr(vEF+4*s,4)}, v{vRA} offset:{32*s}" for s in range(8)])
    def D2():
        if OPT["kds"] < 2: E(DW[True] + [f"ds_read_b128 {vr(vGF+4*s,4)}, v{vRA} offset:{32*s}" for s in range(8)])
    (vCP, vAA, vBA, vUW, vCW, vCR, vAT, vF3, vWoG, vWoL, vF3P, vAL, vGPw, vGPr, vWoP, vUL, vClO, vOne, vCA, vTm, vomg, vg, vOut, vOL) = range(24, 48)
    vA = 48; vAcc = 96; vF2 = 3; vON = 2; vF2v = 23; vATW = 166; vXR, vSA, vSB, vSV = 124, 125, 126, 127
    LQH = {0: 2, 1: 0, 2: 1}[OPT["xm"]]
    LOH = [{0: 2, 1: 1, 2: 1}, {0: 3, 1: 2, 2: 3}][OPT["fm"]][OPT["xm"]]
    ADDR = f"""
    v_mov_b32 v{vCA}, {CNT}
    s_lshl_b32 s{t0}, s{sC}, 2
    s_add_u32 s{t0}, s{t0}, {CNT+4}
    v_mov_b32 v{vCP}, s{t0}
    v_mov_b32 v{vOne}, 1
    v_lshlrev_b32 v23, 4, v1
    s_lshl_b32 s{t0}, s{sH}, 10
    s_sub_u32 s{t0}, {UR+4080-512}, s{t0}
    v_lshrrev_b32 v18, 1, v1
    v_lshlrev_b32 v19, 4, v18
    v_sub_u32 v19, s{t0}, v19
    v_and_b32 v20, 1, v1
    v_mul_u32_u24 v21, {URS}, v20
    v_add_u32 v{vUW}, v19, v21
    s_lshr_b32 s{t0}, s{sCH}, 2
    s_lshl_b32 s{t0}, s{t0}, 14
    s_lshl_b32 s{t0+1}, s{sH}, 12
    s_add_u32 s{t0}, s{t0}, s{t0+1}
    s_and_b32 s{t0+1}, s{sRB}, 1
    s_lshl_b32 s{t0+1}, s{t0+1}, 5
    s_add_u32 s{t0}, s{t0}, s{t0+1}
    s_add_u32 s{t0}, s{t0}, {WS_UT}
    v_lshl_add_u32 v18, v18, 6, s{t0}
    v_lshl_add_u32 v{vUL}, v20, 4, v18
    v_and_b32 v18, 15, v1
    v_add_u32 v19, 1, v18
    v_and_b32 v20, 3, v19
    v_mul_u32_u24 v20, {KCP}, v20
    v_lshrrev_b32 v19, 2, v19
    v_lshl_add_u32 v20, v19, 3, v20
    v_lshrrev_b32 v21, 4, v1
    v_lshlrev_b32 v22, 4, v21
    s_mul_i32 s{t0}, s{sC}, {2*KGS}
    s_lshl_b32 s{t0+1}, s{sMH}, 8
    s_add_u32 s{t0}, s{t0}, s{t0+1}
    s_add_u32 s{t0}, s{t0}, {KG}
    v_add3_u32 v{vAA}, v20, v22, s{t0}
    s_mul_i32 s{t0}, s{sC}, {URS}
    s_add_u32 s{t0}, s{t0}, s{t0+1}
    s_add_u32 s{t0}, s{t0}, {UR+4064-3584}
    v_lshlrev_b32 v19, 5, v18
    v_sub_u32 v22, v22, v19
    v_add_u32 v{vBA}, s{t0}, v22
    s_lshl_b32 s{t0}, s{sH}, 12
    s_add_u32 s{t0}, s{t0}, {CRED}
    v_add_u32 v{vCW}, s{t0}, v23
    s_xor_b32 s{t0}, s{sH}, 1
    s_lshl_b32 s{t0}, s{t0}, 12
    s_add_u32 s{t0}, s{t0}, {CRED}
    v_add_u32 v{vCR}, s{t0}, v23
    v_lshl_add_u32 v19, v18, 5, s{t0}
    v_lshl_add_u32 v{vATW}, v21, 3, v19
    v_add_u32 v{vOL}, {OFL}, v23
    v_lshrrev_b32 v19, 1, v18
    v_lshlrev_b32 v19, 15, v19
    v_and_b32 v20, 1, v1
    v_lshl_add_u32 v19, v20, 5, v19
    v_lshl_add_u32 v{vAT}, v21, 3, v19
    {f"v_lshrrev_b32 v19, 2, v1" if OPT["atr"] else ""}
    {f"v_lshlrev_b32 v19, 15, v19" if OPT["atr"] else ""}
    {f"v_and_b32 v20, 48, v23" if OPT["atr"] else ""}
    {f"v_add_u32 v{vAT}, v19, v20" if OPT["atr"] else ""}
    s_lshl_b32 s{t0}, s{sMH}, 20
    s_lshl_b32 s{t0+1}, s{sD}, 6
    s_add_u32 s{t0}, s{t0}, s{t0+1}
    s_add_u32 s{t0}, s{t0}, {WS_AT}
    s_add_u32 s{sAT}, s{pWs}, s{t0}
    s_addc_u32 s{sAT+1}, s{pWs+1}, 0
    s_lshl4_add_u32 s{t0}, s{sMH}, s{sHP}
    s_add_u32 s{t0}, s{t0}, {F3}
    s_lshl_b32 s{t0}, s{t0}, {FSH}
    v_mov_b32 v{vF3}, s{t0}
    s_mov_b32 s{SRDW}, s{pWo}
    s_mov_b32 s{SRDW+1}, s{pWo+1}
    s_mov_b32 s{SRDW+2}, {512*1024}
    s_mov_b32 s{SRDW+3}, 0x00020000
    s_lshl_b32 s{t0}, s{sCB}, 2
    s_add_u32 s{t0}, s{t0}, s{sH}
    s_lshl_b32 s{t0+1}, s{t0}, 6
    v_lshrrev_b32 v18, 2, v1
    v_lshl_add_u32 v18, v18, 10, s{t0+1}
    v_and_b32 v19, 3, v1
    v_lshl_add_u32 v{vWoG}, v19, 4, v18
    s_mul_i32 s{sWst}, s{sH}, {WSL*1024}
    s_add_u32 s{sWst}, s{sWst}, {WST}
    v_lshrrev_b32 v22, 5, v1
    v_lshlrev_b32 v20, 2, v22
    v_bfe_u32 v21, v1, 2, 2
    v_add_u32 v20, v20, v21
    v_lshl_add_u32 v20, v20, 6, s{sWst}
    v_lshl_add_u32 v20, v19, 3, v20
    v_bfe_u32 v21, v1, 4, 1
    v_lshl_add_u32 v{vWoL}, v21, 5, v20
    s_lshr_b32 s{t0+1}, s{sRB}, 3
    s_lshl4_add_u32 s{t0+1}, s{t0+1}, s{t0}
    s_add_u32 s{t0+1}, s{t0+1}, {F3}
    s_lshl_b32 s{t0+1}, s{t0+1}, {FSH}
    v_mov_b32 v{vF3P}, s{t0+1}
    s_lshl_b32 s{t0}, s{t0}, 5
    v_and_b32 v18, 31, v1
    s_lshl_b32 s{t0+1}, s{sRB}, 2
    s_add_u32 s{t0+1}, s{t0+1}, s{sRT}
    s_lshl_b32 s{t0+2}, s{t0+1}, 15
    s_lshl_b32 s{t0+3}, s{t0}, 6
    s_add_u32 s{t0+3}, s{t0+3}, s{t0+2}
    s_add_u32 s{t0+3}, s{t0+3}, {WS_AT}
    v_lshlrev_b32 v20, 8, v22
    v_lshl_add_u32 v20, v18, 1, v20
    v_add_u32 v{vAL}, s{t0+3}, v20
    s_lshl_b32 s{t0}, s{t0}, 1
    s_add_u32 s{t0}, s{t0}, s{t0+2}
    s_mov_b32 s{sOut}, s{t0}
    v_lshl_add_u32 v20, v18, 10, s{t0}
    v_lshl_add_u32 v{vOut}, v22, 4, v20
    """.split("\n")
    ADDR += f"""
    s_lshl2_add_u32 s{t0}, s{sRB}, s{sH}
    s_lshl4_add_u32 s{t0}, s{t0}, s{sHP}
    s_lshl_b32 s{t0}, s{t0}, 11
    s_add_u32 s{t0}, s{t0}, {WS_OF}
    v_lshl_add_u32 v{vClO}, v1, 6, s{t0}
    s_lshl_b32 s{t0}, s{sRB}, 2
    s_add_u32 s{t0}, s{t0}, s{sH}
    s_lshl_b32 s{t0}, s{t0}, 8
    s_lshl_b32 s{t0+1}, s{sHP}, 17
    s_add_u32 s{t0}, s{t0}, s{t0+1}
    s_add_u32 s{t0}, s{t0}, {WS_UT}
    v_and_b32 v18, 15, v1
    v_lshl_add_u32 v18, v18, 4, s{t0}
    v_lshrrev_b32 v19, 4, v1
    v_lshl_add_u32 v{vTS}, v19, 14, v18
    v_add_u32 v{vTS+1}, 0x10000, v{vTS}
    v_and_b32 v18, 15, v1
    v_lshlrev_b32 v{vRdy}, 2, v18
    s_lshl_b32 s{t0}, s{sHP}, 4
    v_add_u32 v19, s{t0}, v18
    v_lshlrev_b32 v{vF1P}, {FSH}, v19
    s_add_u32 s{t0}, s{t0}, s{sRB}
    s_lshr_b32 s{t0+1}, s{t0}, 2
    s_add_u32 s{t0+1}, s{t0+1}, {F4}
    s_lshl_b32 s{t0+1}, s{t0+1}, {FSH}
    v_mov_b32 v{vF4}, s{t0+1}
    s_lshl2_add_u32 s{t0+1}, s{sHP}, s{sH}
    s_add_u32 s{t0+1}, s{t0+1}, {F4}
    s_lshl_b32 s{t0+1}, s{t0+1}, {FSH}
    v_mov_b32 v{vF4P}, s{t0+1}
    s_lshl_b32 s{t0}, s{t0}, {FSH}
    v_mov_b32 v{vF1}, s{t0}
    v_and_b32 v18, 31, v1
    v_lshlrev_b32 v18, 5, v18
    v_lshrrev_b32 v19, 5, v1
    v_lshl_add_u32 v19, v19, 2, v18
    s_lshl_b32 s{t0}, s{sH}, 3
    s_add_u32 s{t0}, s{t0}, {GP}
    v_add_u32 v{vGPw}, s{t0}, v19
    v_add_u32 v{vGPr}, {GP}, v18
    s_lshr_b32 s{t0}, s2, 3
    s_lshl_b32 s{t0}, s{t0}, 2
    s_add_u32 s{t0}, s{t0}, s{sH}
    s_lshl_b32 s{t0}, s{t0}, 12
    s_lshr_b32 s{t0+1}, s{sCB}, {LOH-1}
    s_lshl_b32 s{t0+1}, s{t0+1}, {7+LOH}
    s_add_u32 s{t0}, s{t0}, s{t0+1}
    v_bfe_u32 v18, v1, {LOH}, 2
    v_lshl_add_u32 v18, v18, 10, s{t0}
    v_and_b32 v19, {(1<<LOH)-1}, v1
    v_lshl_add_u32 v{vWoP}, v19, 7, v18
    """.split("\n") + [f"v_mov_b32 v{vA+j}, 0" for j in range(16)]
    ADDR += f"""
    s_lshl4_add_u32 s{t0}, s{sRB}, {F2}
    v_add_lshl_u32 v{vF2}, v1, s{t0}, {FSH}
    s_and_b32 s{t0}, s{sHP}, 12
    s_lshl_b32 s{t0}, s{t0}, 1
    s_lshl_b32 s{t0}, 1, s{t0}
    v_cmp_ne_u32 vcc, s{sHP}, v1
    v_mov_b32 v18, s{t0}
    s_nop 0
    v_cndmask_b32 v{vF2v}, 0, v18, vcc
    s_mul_i32 s{t0}, s{sC}, {2*KGS}
    v_lshrrev_b32 v18, 1, v1
    v_mul_u32_u24 v18, {KCP}, v18
    v_and_b32 v19, 1, v1
    v_cmp_eq_u32 {sr(sPar,2)}, 1, v19
    v_lshlrev_b32 v19, 4, v19
    v_add3_u32 v{vPad}, v18, v19, s{t0}
    s_lshl_b32 s{t0+1}, s{sMH}, 10
    s_add_u32 s{t0}, s{t0}, s{t0+1}
    s_add_u32 s{t0}, s{t0}, {KG+32}
    v_lshl_add_u32 v{vKW}, v1, 4, s{t0}
    s_lshl_b32 s{t0}, s{sH}, 12
    s_add_u32 s{t0}, s{t0}, {CRED+2048}
    v_lshl_add_u32 v{vNb}, v1, 3, s{t0}
    """.split("\n") + [f"v_add_u32 v{vKW+3*c+u}, {c*KCP+u*1024}, v{vKW}" for c in range(4) for u in range(3) if c or u]
    assert KG == 0
    ADDR = [x.strip() for x in ADDR if x.strip()]
    def GATEF():
        E("s_waitcnt lgkmcnt(0)")
        for j in range(4):
            E(f"v_dot2_f32_bf16 v{vG}, v{vXF+j}, v{vGW+j}, v{vG}")
        E(f"s_nop 2\nds_write_b32 v{vGPw}, v{vG}")
    def SIG():
        E(f"""
        ds_read_b128 v[4:7], v{vGPr}
        ds_read_b128 v[8:11], v{vGPr} offset:16
        s_waitcnt lgkmcnt(0)
        v_add_f32 v4, v4, v5
        v_add_f32 v6, v6, v7
        v_add_f32 v8, v8, v9
        v_add_f32 v10, v10, v11
        v_add_f32 v4, v4, v6
        v_add_f32 v8, v8, v10
        v_add_f32 v4, v4, v8
        v_mul_f32 v4, {fbits(-log2e)}, v4
        v_exp_f32 v4, v4
        s_nop 0
        v_add_f32 v4, 1.0, v4
        v_rcp_f32 v{vg}, v4
        s_nop 0
        v_sub_f32 v{vomg}, 1.0, v{vg}
        """)
    def KD():
        E("s_setprio 0\ns_waitcnt lgkmcnt(0)")
        for s in range(8):
            E(f"v_mfma_f32_32x32x16_bf16 {vr(vD,16)}, {vr(vGF+4*s,4)}, {vr(vEF+4*s,4)}, {'0' if s == 0 else vr(vD,16)}")
        E(f"s_setprio {OPT['prio']}")
        l1 = newlab("k1"); l2 = newlab("k2")
        R = 64
        def xch(send, keep, n):
            E(f"ds_write_b128 v{vCW}, {vr(send,4)}\nds_write_b128 v{vCW}, {vr(send+4,4)} offset:1024")
            lds_arrive(vCP, vOne)
            lds_wait(vCP, vTm, 2)
            E(f"ds_read_b128 {vr(R,4)}, v{vCR}\nds_read_b128 {vr(R+4,4)}, v{vCR} offset:1024\ns_waitcnt lgkmcnt(0)")
            for j in range(n): E(f"v_add_f32 v{R+j}, v{R+j}, v{keep+j}")
        def w2(c, u, r):
            E(f"ds_write2_b32 v{vKW+3*c+u}, v{r[0]}, v{r[1]} offset0:0 offset1:1\nds_write2_b32 v{vKW+3*c+u}, v{r[2]}, v{r[3]} offset0:2 offset1:3")
        E(f"s_nop 8\ns_cmp_eq_u32 s{sMH}, 0\ns_cbranch_scc0 {l1}")
        xch(vD + 8, vD, 8)
        e, o = 72, 80
        E(f"""
        s_mov_b64 exec, 0xff
        ds_write_b128 v{vPad}, v[12:15]
        s_mov_b64 exec, 1
        v_add_f32 v{R}, s{sDs}, v{R}
        s_mov_b64 exec, -1
        """)
        for j in range(4): E(f"v_cvt_pk_bf16_f32 v{e+j}, v{R+2*j}, v{R+2*j+1}")
        E(f"""
        v_cvt_pk_bf16_f32 v{o+6}, v{R+7}, v{R+7}
        ds_write2_b32 v{vNb}, v{o+6}, v{o+6} offset0:2 offset1:3
        ds_write_b64 v{vNb}, {vr(e,2)}
        ds_read_b64 {vr(e+4,2)}, v{vNb} offset:8
        ds_write_b128 v{vKW}, {vr(e,4)}
        s_waitcnt lgkmcnt(1)
        """)
        for j in range(5): E(f"v_alignbit_b32 v{o+j}, v{e+j+1}, v{e+j}, 16")
        E(f"ds_write_b128 v{vKW+3}, {vr(o,4)}")
        w2(2, 0, [e + 1, e + 2, e + 3, e + 4]); w2(3, 0, [o + 1, o + 2, o + 3, o + 4])
        E(f"""
        s_mov_b64 exec, 1
        v_lshlrev_b32 v{o+6}, 16, v{e}
        ds_write_b32 v{vPad}, v{o+6} offset:{28+KCP}
        ds_write_b32 v{vPad}, v{e} offset:{28+2*KCP}
        ds_write_b32 v{vPad}, v{o+6} offset:{24+3*KCP}
        ds_write_b32 v{vPad}, v{o} offset:{28+3*KCP}
        s_mov_b64 exec, -1
        s_branch {l2}
        {l1}:
        """)
        xch(vD, vD + 8, 7)
        aa, ab, bb, bc, cc = range(72, 77)
        for d, x, y in ((aa, 0, 0), (ab, 0, 1), (bb, 1, 1), (bc, 1, 2), (cc, 2, 2)):
            E(f"v_cvt_pk_bf16_f32 v{d}, v{R+x}, v{R+y}")
        for c, r in enumerate(([aa, ab, bb, cc], [aa, bb, bc, cc], [ab, bb, cc, cc], [bb, bc, cc, cc])): w2(c, 0, r)
        for u in (1, 2):
            a_, c_ = R + 1 + 2 * u, R + 2 + 2 * u
            sel, aa, as_, sc, cc = range(72 + 5 * u, 77 + 5 * u)
            E(f"v_cndmask_b32 v{sel}, v{a_}, v{c_}, {sr(sPar,2)}")
            for d, x, y in ((aa, a_, a_), (cc, c_, c_), (as_, a_, sel), (sc, sel, c_)):
                E(f"v_cvt_pk_bf16_f32 v{d}, v{x}, v{y}")
            for c, r in enumerate(([aa, aa, sc, cc], [aa, as_, cc, cc], [aa, sc, cc, cc], [as_, cc, cc, cc])): w2(c, u, r)
        E(f"{l2}:")
    def gate_glue(i):
        E("s_waitcnt lgkmcnt(0)")
        if OPT.get("hst"): stamp("h")
        E("s_barrier")
        if i == 1:
            lq = newlab("nr")
            E(f"""
            s_cmp_eq_u32 s{sLead}, 7
            s_cbranch_scc0 {lq}
            s_mul_i32 s{sSPIN}, s2, 40
            v_add_lshl_u32 v10, v1, s{sSPIN}, {FSH}
            s_bfm_b64 exec, 40, 0
            global_store_dword v10, v12, {sr(pFL,2)} sc1
            s_mov_b64 exec, -1
            {lq}:
            """)
        if i == OPT["rdyw"]:
            lq = newlab("nr")
            E(f"""
            s_cmp_eq_u32 s{sLead}, 7
            s_cbranch_scc0 {lq}
            s_lshl_b32 s{sSPIN}, s2, 2
            v_mov_b32 v10, s{sSPIN}
            v_mov_b32 v11, 1
            s_waitcnt vmcnt(0)
            """)
            put_flag(10, 11, pDbg)
            E(f"{lq}:")
        if i >= 1:
            for j in range(4):
                E(f"v_dot2_f32_bf16 v{vG}, v{vXF+j}, v{vGW+j}, v{vG}")
        slot = i % NS
        E(f"ds_read_b128 {vr(vXF,4)}, v{vGA0} offset:{slot*SLOT}")
        E(f"ds_read_b128 {vr(vGW,4)}, v{vGWA} offset:{128*i}")
        E(f"""
        s_cmp_eq_u32 s{sUW}, {i}
        s_cbranch_scc0 L_ut{i}
        ds_read_b64_tr_b16 {vr(vU,2)}, v{vTA}
        ds_read_b64_tr_b16 {vr(vU+2,2)}, v{vTA+3}
        ds_read_b64_tr_b16 {vr(vU+4,2)}, v{vTA+1}
        ds_read_b64_tr_b16 {vr(vU+6,2)}, v{vTA+2}
        L_ut{i}:
        """)
    E(ADDR); E(KPRE)
    tot = sum(c for c, _ in K); nw = OPT["kw"]
    segs = [[] for _ in range(8)]; acc = 0
    kp = tot * OPT["kp"] / 100; k0 = kp + tot * OPT["k0"] / 100
    for c, x in K:
        if acc < kp: E(x)
        elif acc < k0: segs[0].append(x)
        else: segs[1 + min(nw - 2, int((acc - k0) * (nw - 1) / (tot - k0)))].append(x)
        acc += c
    for i in range(8):
        gate_glue(i)
        if not OPT.get("nokg"): E(segs[i])
    stamp("h")
    GATEF()
    E(f"global_load_dword v{vTm}, v{vRdy}, {sr(pDbg,2)} sc1")
    E(f"s_setprio {OPT['prioq']}\ns_waitcnt lgkmcnt(0)\ns_barrier")
    stamp("h")
    lq = newlab("nf"); lr = newlab("rdy")
    LATE = OPT["ackr"] <= 0
    assert LATE or OPT["q3"] < 8
    SIG()
    if OPT["q3"] < 4: E("s_barrier")
    if LATE: E("s_barrier")
    E(f"s_setprio {OPT['prio']}\ns_waitcnt vmcnt(0)\ns_barrier")
    stamp("h")
    E(f"s_cmp_lg_u32 s{sH}, 1")
    E(f"""
    s_cbranch_scc1 {lq}
    v_cmp_ne_u32 vcc, 0, v{vTm}
    s_nop 1
    s_cmp_eq_u64 vcc, -1
    s_cbranch_scc1 {lr}
    """)
    poll_global(vRdy, pDbg, vTm)
    E(f"{lr}:")
    add_ctr(vF1P, vOne, 16)
    if OPT["e1"]:
        assert not OPT["hs"]
        if OPT["e1"] == 2: E("s_waitcnt vmcnt(0)")
        E(f"v_mov_b32 v4, 0\ns_mov_b64 exec, 1\nglobal_atomic_add v4, v{vF1}, v4, {sr(pFL,2)} sc0 sc1\ns_mov_b64 exec, -1")
    E(f"{lq}:")
    uts = f"""
    global_store_dwordx4 v{vTS}, {vr(vU,4)}, {sr(pWs,2)} sc1
    global_store_dwordx4 v{vTS+1}, {vr(vU+4,4)}, {sr(pWs,2)} sc1
    """
    if OPT["utp"] == 1: E(uts)
    if not LATE: E("s_barrier")
    lq = newlab("nf")
    E(f"s_cmp_lg_u32 s{sH}, 1\ns_cbranch_scc1 {lq}")
    poll_ctr(vF1, 4, lambda r: [f"s_cmp_eq_u32 s{r}, 16"], OPT["pd"], min(1, OPT["e1"]))
    E(f"{lq}:")
    E("s_setprio 0\ns_barrier")
    stamp("h")
    if OPT["utp"] == 2:
        D1(); E("s_waitcnt lgkmcnt(0)"); E(uts); D2()
        E("s_waitcnt vmcnt(0)")
        add_ctr(vF4, vOne, 1)
        KD()
    elif OPT["utp"] == 3:
        E(f"global_load_dword v{vTm}, v{vRdy}, {sr(pDbg,2)} sc1\ns_waitcnt vmcnt(0)")
        E(uts); D1(); D2()
        E("s_waitcnt vmcnt(0)")
        add_ctr(vF4, vOne, 1)
        KD()
    else:
        if OPT["utp"] == 0: E(uts)
        E("s_waitcnt vmcnt(0)")
        add_ctr(vF4, vOne, 1)
        if OPT["utp"] == 1: E("s_waitcnt vmcnt(0)")
        D1(); D2(); KD()
    poll_ctr(vF4P, vTm, lambda r: [f"s_cmp_eq_u32 s{r}, 16"])
    E(f"""
    global_load_dwordx4 v[12:15], v{vUL}, {sr(pWs,2)} sc1
    global_load_dwordx4 v[16:19], v{vUL}, {sr(pWs,2)} offset:2048 sc1
    s_waitcnt vmcnt(0)
    ds_write_b128 v{vUW}, v[12:15] offset:512
    ds_write_b128 v{vUW}, v[16:19]
    """)
    lds_arrive(vCA, vOne)
    lds_wait(vCA, vTm, 4 + 4 * OPT["hs"])
    stamp("h")
    vY = 64
    vF = [96, 192]
    def creads(r):
        f = vF[r & 1]; o = []
        for gmm in range(8):
            o.append(f"ds_read_b64 {vr(f+4*gmm,2)}, v{vAA} offset:{512*gmm+64*r}")
            o.append(f"ds_read_b64 {vr(f+4*gmm+2,2)}, v{vAA} offset:{512*gmm+64*r+8}")
            o.append(f"ds_read_b128 {vr(f+32+4*gmm,4)}, v{vBA} offset:{3584-512*gmm+64*r}")
        return o
    E(creads(0))
    E(f"s_setprio {OPT.get('prio3', OPT['prio'])}")
    for r in range(4):
        f = vF[r & 1]
        nxt = creads(r + 1) if r < 3 else []
        if r == 2 and OPT["wopf"]:
            E(f"s_bfm_b64 exec, {4<<LOH}, 0\nglobal_load_dword v20, v{vWoP}, {sr(pWo,2)}\ns_mov_b64 exec, -1")
        E("s_waitcnt lgkmcnt(0)")
        seen = set()
        for gmm in range(8):
            for dl in range(8 - gmm):
                tau = gmm + dl
                c = "0" if (r == 0 and tau not in seen) else vr(vY + 4 * tau, 4)
                seen.add(tau)
                if not OPT.get("noconv") or (OPT["noconv"] == 2 and gmm < 2): E(f"v_mfma_f32_16x16x32_bf16 {vr(vY+4*tau,4)}, {vr(f+4*gmm,4)}, {vr(f+32+4*dl,4)}, {c}")
                if nxt: E(nxt.pop(0))
    E(f"s_setprio {OPT['prio']}")
    l1 = newlab("c1"); l2 = newlab("c2")
    E(f"s_nop 5\ns_cmp_eq_u32 s{sMH}, 0\ns_cbranch_scc0 {l1}")
    def conv_fin(send, keep):
        for j in range(4):
            E(f"ds_write_b128 v{vCW}, {vr(send+4*j,4)} offset:{1024*j}")
        lds_arrive(vCP, vOne)
        lds_wait(vCP, vTm, 4)
        for j in range(4):
            E(f"ds_read_b128 {vr(96+4*j,4)}, v{vCR} offset:{1024*j}")
        E("s_waitcnt lgkmcnt(0)")
        for j in range(16):
            E(f"v_add_f32 v{96+j}, v{keep+j}, v{96+j}")
    conv_fin(vY + 16, vY)
    E(f"s_branch {l2}\n{l1}:")
    conv_fin(vY, vY + 16)
    E(f"{l2}:")
    for j in range(4):
        E(f"v_cvt_pk_bf16_f32 v{112+2*j}, v{96+4*j}, v{97+4*j}\nv_cvt_pk_bf16_f32 v{113+2*j}, v{98+4*j}, v{99+4*j}")
        if OPT["atr"]:
            E(f"ds_write_b64 v{vATW}, {vr(112+2*j,2)} offset:{512*j}")
            continue
        E(f"global_store_dwordx2 v{vAT}, {vr(112+2*j,2)}, {sr(sAT,2)} sc1")
        if j < 3: E(f"s_add_u32 s{sAT}, s{sAT}, {8*32768}\ns_addc_u32 s{sAT+1}, s{sAT+1}, 0")
    if OPT["atr"]:
        E(f"""
        ds_read_b128 v[96:99], v{vCR}
        ds_read_b128 v[100:103], v{vCR} offset:1024
        s_waitcnt lgkmcnt(1)
        global_store_dwordx4 v{vAT}, v[96:99], {sr(sAT,2)} sc1
        s_add_u32 s{sAT}, s{sAT}, {16*32768}
        s_addc_u32 s{sAT+1}, s{sAT+1}, 0
        s_waitcnt lgkmcnt(0)
        global_store_dwordx4 v{vAT}, v[100:103], {sr(sAT,2)} sc1
        """)
    E("s_waitcnt vmcnt(0)")
    add_ctr(vF3, vOne, 1)
    stamp("h")
    vWo = 128
    sO = t0 + 2
    WD = OPT["wod"]
    for hd in range(0 if OPT.get("nowo") else 32 + WD):
        if hd < 32:
            if hd % 4 == 0: E(f"s_add_u32 m0, s{sWst}, {(hd%WSL)*1024}")
            E(f"s_mov_b32 s{sO}, {hd*16384-(hd%4)*1024}")
            E(f"buffer_load_dwordx4 v{vWoG}, {sr(SRDW,4)}, s{sO} offen offset:{(hd%4)*1024} lds")
        r = hd - WD
        if r >= 0:
            E(f"s_waitcnt vmcnt({min(WD, 31-r)}) lgkmcnt(8)")
            E(f"ds_read_b64_tr_b16 {vr(vWo+4*r,2)}, v{vWoL} offset:{1024*(r%WSL)}")
            E(f"ds_read_b64_tr_b16 {vr(vWo+4*r+2,2)}, v{vWoL} offset:{1024*(r%WSL)+512}")
    E("s_waitcnt lgkmcnt(0)")
    stamp("h")
    if OPT["clo"] & 1:
        E(f"s_bfm_b64 exec, 32, 0\nglobal_store_dword v{vClO}, v{vOne}, {sr(pWs,2)} sc1\ns_mov_b64 exec, -1")
    if OPT["clo"] & 2:
        E(f"s_bfm_b64 exec, 32, 0\nglobal_store_dword v{vOut}, v{vOne}, {sr(pOut,2)} sc1\ns_mov_b64 exec, -1")
    poll_ctr(vF3P, vTm, lambda r: [f"s_cmp_eq_u32 s{r}, 32"])
    for r in range(16):
        E(f"global_load_short_d16_hi v{vA+r}, v{vAL}, {sr(pWs,2)} offset:{(8*(r>>2)+(r&3))*64} sc1")
    if OPT["hop"]: E("s_mov_b64 exec, 0\ns_branch L_hop0\nL_hopdone:\ns_mov_b64 exec, -1")
    sTodo, sId = t0, t0 + 2
    E(f"s_mov_b32 s{sTodo}, 0x01010101\ns_mov_b32 s{sSPIN}, {OPT['spin']*8}\ns_waitcnt vmcnt(0) lgkmcnt(0)")
    stamp("h")
    lq = newlab("nf")
    if OPT["pw"]:
        E("s_setprio 0\ns_barrier")
    else:
        E(f"s_barrier\ns_cmp_lg_u32 s{sH}, 0\ns_barrier\ns_cbranch_scc1 {lq}")
        add_ctr(vF2, vF2v, 16)
        E(f"{lq}:\ns_setprio 0")
    stamp("h")
    for r in range(16):
        E(f"v_mul_f32 v{vA+r}, v{vg}, v{vA+r}")
    vTW, vTR, vOu2 = 4, 5, 6
    if OPT["otr"]: E(f"""
    s_mul_i32 s{sId}, s{sH}, 2560
    v_and_b32 v7, 31, v1
    v_mul_u32_u24 v7, 80, v7
    v_lshrrev_b32 v{vTW}, 5, v1
    v_lshlrev_b32 v{vTW}, 3, v{vTW}
    v_add3_u32 v{vTW}, v{vTW}, v7, s{sId}
    v_lshrrev_b32 v7, 2, v1
    v_lshl_add_u32 v{vOut}, v7, 10, s{sOut}
    v_mul_u32_u24 v7, 80, v7
    v_and_b32 v{vTR}, 3, v1
    v_lshlrev_b32 v{vTR}, 4, v{vTR}
    v_add_u32 v{vOut}, v{vOut}, v{vTR}
    v_add_u32 v{vOu2}, 0x4000, v{vOut}
    v_add3_u32 v{vTR}, v{vTR}, v7, s{sId}
    """)
    vB = 64; vAc = [96, 112, 8, 24]
    def ord_(j): return f"ds_read_b128 {vr(vB+4*j,4)}, v{vON} offset:{1024*j}"
    def pick(skip):
        return [f"v_readfirstlane_b32 s{sId}, v{vTm}", "s_nop 0", f"s_and_b32 s{sId}, s{sId}, s{sTodo}", f"s_cbranch_scc0 {skip}",
                f"s_ff1_i32_b32 s{sId}, s{sId}", f"v_lshl_add_u32 v{vON}, s{sId}, 10, v{vOL}"] + [ord_(j) for j in range(4)]
    E(hop())
    E(f"""
    L_fwait:
    ds_read_b32 v{vTm}, v{vCA} offset:12
    s_sub_u32 s{sSPIN}, s{sSPIN}, 1
    s_cbranch_scc1 L_fend
    s_waitcnt lgkmcnt(0)
    """)
    E(pick("L_fwait"))
    E("L_fdisp:")
    E([ord_(j) for j in range(4, 8)])
    E(f"""
    ds_read_b32 v{vTm}, v{vCA} offset:12
    s_bitset0_b32 s{sTodo}, s{sId}
    s_cmp_eq_u32 s{sId}, 8
    s_cbranch_scc1 L_fb1
    s_cmp_eq_u32 s{sId}, 16
    s_cbranch_scc1 L_fb2
    s_cmp_eq_u32 s{sId}, 24
    s_cbranch_scc1 L_fb3
    """)
    for c in range(4):
        E(f"L_fb{c}:")
        for j in range(8):
            if j <= 4: E(f"s_waitcnt lgkmcnt({8-j if j < 4 else 0})")
            E(f"v_mfma_f32_32x32x16_bf16 {vr(vAc[c],16)}, {vr(vWo+4*(8*c+j),4)}, {vr(vB+4*j,4)}, {vr(vAc[c],16) if j else 0}")
            if j in (0, 5): E(hop())
            if j == 4:
                E(pick(f"L_fs{c}"))
                E(f"L_fs{c}:")
        E("s_cbranch_scc1 L_fdisp")
        if c < 3: E("s_branch L_fnext")
    E(f"""
    L_fnext:
    s_cmp_lg_u32 s{sTodo}, 0
    s_cbranch_scc1 L_fwait
    L_fend:
    """)
    stamp("h")
    E("s_nop 8")
    assert vomg % 2 == 0
    fl = ["", "sc1", "nt", "sc0 sc1", "sc1 nt"][OPT["outsc"]]
    for hf in (0, 8):
        for x, y in ((0, 1), (2, 3), (0, 2)):
            for r in range(hf, hf + 8, 2):
                E(f"v_pk_add_f32 {vr(vAc[x]+r,2)}, {vr(vAc[x]+r,2)}, {vr(vAc[y]+r,2)}")
        for r in range(hf, hf + 8, 2):
            E(f"v_pk_fma_f32 {vr(vAcc+r,2)}, {vr(vAcc+r,2)}, {vr(vomg,2)}, {vr(vA+r,2)} op_sel_hi:[1,0,1]")
        p = vB + hf // 2
        if OPT["otr"]:
            for j in range(4):
                E(f"v_cvt_pk_bf16_f32 v{p+j}, v{vAcc+hf+2*j}, v{vAcc+hf+2*j+1}")
                if j & 1: E(f"ds_write_b64 v{vTW}, {vr(p+j-1,2)} offset:{4*hf+8*(j-1)}")
            continue
        for j in (0, 2, 1, 3):
            E(f"v_cvt_pk_bf16_f32 v{p+j}, v{vAcc+hf+2*j}, v{vAcc+hf+2*j+1}")
        E(f"v_permlane32_swap_b32 v{p}, v{p+2}")
        E(hop() or ["s_nop 0"])
        E(f"v_permlane32_swap_b32 v{p+1}, v{p+3}")
        E(f"global_store_dwordx4 v{vOut}, {vr(p,4)}, {sr(pOut,2)} offset:{4*hf} {fl}")
    if OPT["otr"]:
        E(f"""
        ds_read_b128 {vr(vB+8,4)}, v{vTR}
        ds_read_b128 {vr(vB+12,4)}, v{vTR} offset:1280
        s_waitcnt lgkmcnt(1)
        global_store_dwordx4 v{vOut}, {vr(vB+8,4)}, {sr(pOut,2)} {fl}
        s_waitcnt lgkmcnt(0)
        global_store_dwordx4 v{vOu2}, {vr(vB+12,4)}, {sr(pOut,2)} {fl}
        """)
    stamp("h")
    if STAMP:
        E("s_waitcnt vmcnt(0)"); stamp("h")
    stamp_flush("h"); spin_end("h")
    E("s_endpgm")

hdr = open(f"cdna_kernels/{NAME}.s.ref").read().split("; Override launch")[0]
prologue(); main_wave()
if OPT['lay']: helper_wave()
E("L_end:\ns_endpgm")
out = hdr + f"""; @launch grid=(256,1,1) block=(512,1,1) lds={LDS_BYTES}
.amdgcn_target "amdgcn-amd-amdhsa--gfx950"
.text
.globl {NAME}_kernel
{".p2align 12" if OPT["al"] else ""}
.p2align 8
.type {NAME}_kernel,@function
{NAME}_kernel:
""" + "\n".join(L) + f"""
.section .rodata,"a"
.p2align 6
.amdhsa_kernel {NAME}_kernel
  .amdhsa_next_free_vgpr 256
  .amdhsa_next_free_sgpr 102
  .amdhsa_accum_offset 256
  .amdhsa_group_segment_fixed_size 0
  .amdhsa_kernarg_size 128
  .amdhsa_user_sgpr_count 2
  .amdhsa_user_sgpr_kernarg_segment_ptr 1
  .amdhsa_system_sgpr_workgroup_id_x 1
.end_amdhsa_kernel
"""
open(sys.argv[1], "w").write(out)
```

```python
import sys, math, struct

NAME = "gated_mix__ssm_conv_s4__mha_block__prompt"
OPT = dict(stamp=0, rot=5, fs=256, spin=200000, prio=2, outsc=1, prio3=0, pf=1, tlb=0, wod=2, wopf=1, prioq=0, lq=7, epc=16, ackn=22,
           d1=3, d1w=4, kw=7, clo=0, rdyw=3, xm=2, fm=1, bp=2, hop=0, ep=1, pd=1, psl=3, hs=0, e1=1, pw=1, utp=2, pre=1, q3=0, a0=0, ackr=10, otr=1, al=1, lay=2, xf=0, co=1, seq=1, kp=30, k0=70, kds=0, pk=1, atr=1, wp=0, ad=8, lp=1, sq=9, q2=1, hsp=2)
for a in sys.argv[2:]:
    k, v = a.split("=")
    OPT[k] = int(v)
assert OPT['atr'] and OPT['otr'] and OPT['pw'] and OPT['co'] and not OPT['clo']
STAMP = OPT["stamp"]
FS = OPT["fs"]
FSH = int(math.log2(FS))

L = []
def E(s):
    if isinstance(s, list): s = "\n".join(s)
    for x in s.split("\n"):
        x = x.strip()
        if x:
            L.append(("" if x.endswith(":") else "    ") + x)
def C(s):
    for x in s.strip("\n").split("\n"): L.append("; " + x.strip())
def fbits(x): return "0x%08x" % struct.unpack("<I", struct.pack("<f", x))[0]
def vr(a, n): return f"v[{a}:{a+n-1}]"
def sr(a, n): return f"s[{a}:{a+n-1}]"

WS_KV = 0
WS_OF = 4 << 20
WS_AT = 6 << 20
WS_FL = 8 << 20
WS_UT = 10 << 20
WS_ST = 16 << 20
F1, F2 = 0, 256
F3, F4 = 512, 544
KG = 0; KGS = 8704
KCP = 4160
UR = KG + 4 * KGS; URS = 4576
GP = UR + 2 * URS
GW = GP + 1024
CNT = GW + 2048
RING = CNT + 64
SLOT = 24576; WPART = 6144; NS = 3
WQ = RING + NS * SLOT
LDS_BYTES = WQ + 32768
EXCH = RING; RED = WQ; REDS = 4608
CRED = RING; WST = RING + 16384; WSL = 12; OFL = RING
assert RING % 256 == 0 and WST + 4 * WSL * 1024 <= WQ and LDS_BYTES <= 163840
sW, sHP, sRB, sCH, sROT = 3, 4, 5, 6, 7
SRDX, SRDW = 8, 12
pX, pAre, pAim, pBre, pBim, pCre, pCim, pLdt = 16, 18, 20, 22, 24, 26, 28, 30
pDsk, pW, pWo, pGw, pOut, pDbg, pWs = 32, 36, 38, 40, 42, 44, 46
pFL = 34
sT = 48
sSPIN = 62
sST = 64

nstamp = {"m": 0, "h": 0}
SPM, SPH = OPT.get("spm", -1), OPT.get("sph", -1)
def spin_end(role):
    if (SPM if role == "m" else SPH) < 0: return
    l = newlab("sp")
    if OPT.get("sel"):
        E(f"""
        s_lshl3_add_u32 s98, s2, s{sW}
        s_lshl_b32 s98, s98, 7
        s_add_u32 s98, s98, {40 << 20}
        v_mov_b32 v3, s98
        v_mov_b32 v4, 0x12345678
        global_load_dword v5, v3, {sr(pWs,2)} sc1
        s_waitcnt vmcnt(0)
        global_store_dword v3, v4, {sr(pWs,2)} sc1
        v_readfirstlane_b32 s98, v5
        s_waitcnt vmcnt(0)
        s_cmp_eq_u32 s98, 0x12345678
        s_cbranch_scc{OPT["sel"]-1} L_end
        """)
    E(f"{l}:\ns_memrealtime s[98:99]\ns_waitcnt lgkmcnt(0)\ns_sub_u32 s98, s98, s96\ns_cmp_lt_i32 s98, 4000\ns_cbranch_scc1 {l}")
def stamp(role):
    if SPM >= 0 or SPH >= 0:
        i = nstamp[role]; nstamp[role] += 1
        if i == (SPM if role == "m" else SPH):
            if OPT.get("amp"): E(f"s_memrealtime s[98:99]\ns_waitcnt lgkmcnt(0)\ns_sub_u32 s98, s98, s96\ns_mul_i32 s98, s98, {OPT['amp']}\ns_sub_u32 s98, s98, {OPT.get('sub',0)*100}\ns_add_u32 s96, s96, s98")
            else: E("s_memrealtime s[96:97]\ns_waitcnt lgkmcnt(0)")
        return
    if not STAMP or nstamp[role] >= 14: return
    i = nstamp[role]; nstamp[role] += 1
    E(f"s_memrealtime {sr(sST+2*i,2)}\ns_waitcnt lgkmcnt(0)")
def stamp_flush(role):
    if not STAMP: return
    E(f"s_lshl_b32 s{sT}, s2, 3\ns_add_u32 s{sT}, s{sT}, s{sW}\ns_lshl_b32 s{sT}, s{sT}, 6\ns_add_u32 s{sT}, s{sT}, {WS_ST}\nv_mov_b32 v2, s{sT}")
    for i in range(nstamp[role]):
        E(f"v_mov_b32 v3, s{sST+2*i}\nglobal_store_dword v2, v3, {sr(pWs,2)} offset:{4*i}")
    E(f"s_getreg_b32 s{sT}, hwreg(HW_REG_XCC_ID)\nv_mov_b32 v3, s{sT}\nglobal_store_dword v2, v3, {sr(pWs,2)} offset:60")

lab = [0]
def newlab(p):
    lab[0] += 1
    return f"L_{p}_{lab[0]}"

nhop = [0]
def hop():
    if not OPT["hop"]: return []
    nhop[0] += 1
    return [f"L_hop{nhop[0]-1}:", f"s_cbranch_execz L_hop{nhop[0]}"]

def poll_global(vaddr, base, vtmp):
    l = newlab("poll"); d = newlab("polld")
    E(f"""
    s_mov_b32 s{sSPIN}, {OPT['spin']}
    {l}:
    global_load_dword v{vtmp}, v{vaddr}, {sr(base,2)} sc1
    s_sub_u32 s{sSPIN}, s{sSPIN}, 1
    s_cbranch_scc1 {d}
    s_waitcnt vmcnt(0)
    v_cmp_ne_u32 vcc, 0, v{vtmp}
    s_nop 1
    s_cmp_eq_u64 vcc, -1
    s_cbranch_scc0 {l}
    {d}:
    s_waitcnt vmcnt(0)
    """)
def poll_ctr(vaddr, vtmp, test, depth=1, first=False):
    l = newlab("pc"); d = newlab("pcd"); c = newlab("pcc")
    at = lambda r: [f"v_mov_b32 v{r}, 0", f"global_atomic_add v{r}, v{vaddr}, v{r}, {sr(pFL,2)} sc0 sc1"]
    E(f"s_mov_b32 s{sSPIN}, {OPT['spin']}\ns_mov_b64 exec, 1")
    if depth == 1:
        if first: E(f"s_branch {c}")
        E(f"{l}:"); E(at(vtmp))
        if first == 2: E("s_waitcnt vmcnt(0)")
        E(f"{c}:\ns_sub_u32 s{sSPIN}, s{sSPIN}, 1\ns_cbranch_scc1 {d}\ns_waitcnt vmcnt({1 if first == 2 else 0})\nv_readfirstlane_b32 s{sSPIN+1}, v{vtmp}\ns_nop 0")
        E(test(sSPIN + 1)); E(f"s_cbranch_scc0 {l}")
    else:
        for i in range(1 if first else 0, depth - 1):
            if i: E(f"s_sleep {OPT['psl']}")
            E(at(vtmp + i))
        E(f"{l}:\ns_sub_u32 s{sSPIN}, s{sSPIN}, 1\ns_cbranch_scc1 {d}")
        for i in range(depth):
            E(at(vtmp + (i - 1) % depth))
            E(f"s_waitcnt vmcnt({depth-1})\nv_readfirstlane_b32 s{sSPIN+1}, v{vtmp+i}\ns_nop 0")
            E(test(sSPIN + 1))
            E(f"s_cbranch_scc1 {d}" if i < depth - 1 else f"s_cbranch_scc0 {l}")
    E(f"{d}:\ns_mov_b64 exec, -1")
def add_ctr(vaddr, vval, lanes):
    E(f"s_bfm_b64 exec, {lanes}, 0\nglobal_atomic_add v{vaddr}, v{vval}, {sr(pFL,2)} sc1\ns_mov_b64 exec, -1")
def put_flag(vaddr, vone, base=None):
    E(f"""
    s_mov_b64 exec, 1
    global_store_dword v{vaddr}, v{vone}, {sr(pFL if base is None else base,2)} sc1
    s_mov_b64 exec, -1
    """)
def lds_arrive(vaddr, vone):
    E(f"""
    s_mov_b64 exec, 1
    ds_add_u32 v{vaddr}, v{vone}
    s_mov_b64 exec, -1
    """)
def lds_wait(vaddr, vtmp, n):
    l = newlab("lw"); d = newlab("lwd")
    E(f"""
    s_mov_b32 s{sSPIN}, {OPT['spin']*8}
    {l}:
    ds_read_b32 v{vtmp}, v{vaddr}
    s_sub_u32 s{sSPIN}, s{sSPIN}, 1
    s_cbranch_scc1 {d}
    s_waitcnt lgkmcnt(0)
    v_readfirstlane_b32 s{sSPIN+1}, v{vtmp}
    s_nop 1
    s_cmp_ge_u32 s{sSPIN+1}, {n}
    s_cbranch_scc0 {l}
    {d}:
    s_waitcnt lgkmcnt(0)
    """)

def helper_entry():
    sH, sC, sMH, sD, sLd, sDs, t0 = sT, sT + 1, sT + 2, sT + 5, sT + 6, sT + 7, sT + 8
    C("""---- helper waves (4..7): touch this kernel's code once so that it sits in L2, then load the SSM parameters""")
    E(f"L_h0:\ns_setprio {OPT['prio']}\ns_sub_u32 s{sH}, s{sW}, 4")
    if OPT["pf"]:
        E(f"""
        s_getpc_b64 s[8:9]
        L_pc:
        s_andn2_b32 s10, s2, 7
        s_lshl1_add_u32 s10, s{sH}, s10
        v_and_b32 v2, 1, v1
        v_add_lshl_u32 v2, v2, s10, 7
        v_min_u32 v2, L_end-L_pc, v2
        v_mov_b32 v3, 0
        v_lshl_add_u64 v[2:3], v[2:3], 0, s[8:9]
        global_load_dword v167, v[2:3], off
        """)
    E(f"""
    s_lshl4_add_u32 s{sCH}, s{sHP}, s{sRB}
    s_lshl2_add_u32 s{t0}, s{sCH}, s{sH}
    s_lshl_b32 s{t0}, s{t0}, 7
    v_lshl_add_u32 v2, v1, 1, s{t0}
    s_lshl_b32 s{t0+1}, s{sCH}, 2
    s_waitcnt lgkmcnt(0)
    s_load_dword s{sLd}, {sr(pLdt,2)}, s{t0+1}
    s_load_dword s{sDs}, {sr(pDsk,2)}, s{t0+1}
    """)
    for j, p in enumerate((pAre, pAim, pBre, pBim, pCre, pCim)):
        E(f"global_load_ushort v{4+j}, v2, {sr(p,2)}")
    E(f"s_and_b32 s{sMH}, s{sH}, 1\ns_lshl_b32 s{sCH}, s{sCH}, 1")

def prologue():
    if OPT.get("amp"): E("s_memrealtime s[96:97]")
    if STAMP:
        E(f"s_memrealtime {sr(sST,2)}"); nstamp["m"] = nstamp["h"] = 1
    E(f"""
    s_cmpk_ge_u32 s2, 0x100
    s_cbranch_scc1 L_end
    s_load_dwordx16 s[16:31], s[0:1], 0
    s_load_dwordx16 s[32:47], s[0:1], 64
    """)
    E(f"""
    v_lshrrev_b32 v2, 6, v0
    v_and_b32 v1, 63, v0
    v_readfirstlane_b32 s{sW}, v2
    """)
    C("""s4 = head pair hp (0..15), s5 = row block rb (128 rows), s7 = first 64-wide k stage, s3 = wave.
The mapping only serves L2 locality under round-robin placement; nothing below depends on it.""")
    if OPT["xm"] == 0: E(f"""
    s_bfe_u32 s{sHP}, s2, 0x30003
    s_and_b32 s{sT}, s2, 1
    s_lshl3_add_u32 s{sHP}, s{sT}, s{sHP}
    s_lshr_b32 s{sRB}, s2, 6
    s_and_b32 s{sT}, s2, 6
    s_lshl1_add_u32 s{sRB}, s{sT}, s{sRB}
    """)
    elif OPT["xm"] == 1: E(f"""
    s_bfe_u32 s{sHP}, s2, 0x10003
    s_and_b32 s{sT}, s2, 7
    s_lshl1_add_u32 s{sHP}, s{sT}, s{sHP}
    s_lshr_b32 s{sRB}, s2, 4
    """)
    else: E(f"""
    s_bfe_u32 s{sHP}, s2, 0x20003
    s_and_b32 s{sT}, s2, 3
    s_lshl2_add_u32 s{sHP}, s{sT}, s{sHP}
    s_lshr_b32 s{sRB}, s2, 5
    s_and_b32 s{sT}, s2, 4
    s_lshl1_add_u32 s{sRB}, s{sT}, s{sRB}
    """)
    if OPT["rot"] == 0:
        E(f"s_mov_b32 s{sROT}, 0")
    elif OPT["rot"] == 1:
        E(f"s_xor_b32 s{sROT}, s{sHP}, s{sRB}\ns_and_b32 s{sROT}, s{sROT}, 1\ns_lshl_b32 s{sROT}, s{sROT}, 2")
    elif OPT["rot"] == 2:
        E(f"s_lshl1_add_u32 s{sROT}, s{sRB}, s{sHP}\ns_and_b32 s{sROT}, s{sROT}, 7")
    elif OPT["rot"] == 3:
        E(f"s_lshl1_add_u32 s{sROT}, s{sRB}, s{sHP}\ns_and_b32 s{sROT}, s{sROT}, 6")
    elif OPT["rot"] == 4:
        E(f"s_lshl2_add_u32 s{sROT}, s{sHP}, s{sRB}\ns_and_b32 s{sROT}, s{sROT}, 7")
    elif OPT["rot"] == 5:
        E(f"s_add_u32 s{sROT}, s{sHP}, s{sRB}\ns_lshl_b32 s{sROT}, s{sROT}, 1\ns_and_b32 s{sROT}, s{sROT}, 6")
    elif OPT["rot"] == 6:
        E(f"s_lshl1_add_u32 s{sROT}, s{sHP}, s{sRB}\ns_and_b32 s{sROT}, s{sROT}, 7")
    elif OPT["rot"] == 7:
        E(f"s_add_u32 s{sROT}, s{sHP}, s{sRB}\ns_lshr_b32 s{sT}, s2, 2\ns_xor_b32 s{sT}, s{sT}, s2\ns_and_b32 s{sT}, s{sT}, 1\ns_lshl1_add_u32 s{sROT}, s{sROT}, s{sT}\ns_and_b32 s{sROT}, s{sROT}, 7")
    elif OPT["rot"] == 8:
        assert OPT["xm"] == 2
        E(f"s_add_u32 s{sROT}, s{sHP}, s{sRB}\ns_lshr_b32 s{sT}, s{sT}, 1\ns_add_u32 s{sT}, s{sT}, s2\ns_lshl2_add_u32 s{sROT}, s{sROT}, s{sT}\ns_and_b32 s{sROT}, s{sROT}, 7")
    else:
        E(f"s_and_b32 s{sT}, s2, 4\ns_lshl1_add_u32 s{sROT}, s2, s{sT}\ns_and_b32 s{sROT}, s{sROT}, 7")
    if OPT["lay"] == 2:
        E(f"s_cmp_lt_u32 s{sW}, 4\ns_cbranch_scc1 L_m0")
        helper_entry()
        E("s_branch L_helper\nL_m0:")
    else:
        E(f"s_cmp_ge_u32 s{sW}, 4\ns_cbranch_scc1 L_h0")

def main_wave():
    vXD, vWD, vXA, vWA, vQA = 4, 8, 10, 14, 16
    vFB = 24
    aK, aV, aQ = 48, 64, 80
    vP = 96
    vXF = 128
    sXO, sWO, sM0, sX, sZ, sQS = 92, 93, 94, 95, 100, 101
    sKVb, sKV, sJ, sCnt, sMask = sT + 2, sT + 4, sT + 6, sT + 7, sT + 8
    ta, tb, tc = sT + 10, sT + 11, sT + 12
    sExp, sBfe, sVal = 24, 25, 26
    assert OPT['fm'] == 1
    vO, vKV = 128, 192
    (vIDX, vKA, vVA, vSA, vSB, vSV, vEW, vER0, vER1, vERV, vRW, vRWl, vRR, vRRl, vOA, vOB) = range(112, 128)
    vF2, vOne, vF2P, vOD, vOnes, vZer = range(17, 23); vOD2 = 3
    vQ = 240; SA, SB = 24, 40; vT = 56
    C("""==== main waves (0..3): wave w projects rows 32w..32w+31 of the row block for both heads ====
x and W_k / W_v stream through a 3-slot LDS ring (LDS-DMA, XOR-swizzled x, transposing reads for W)""")
    E(f"""
    s_lshl2_add_u32 s{sT}, s{sRB}, s{sW}
    s_lshl_b32 s{sT}, s{sT}, 15
    v_lshrrev_b32 v2, 3, v1
    v_lshl_add_u32 v2, v2, 10, s{sT}
    v_lshrrev_b32 v3, 4, v1
    v_xor_b32 v3, v3, v1
    v_and_b32 v3, 7, v3
    v_lshl_add_u32 v{vXD}, v3, 4, v2
    v_xor_b32 v{vXD+1}, 64, v{vXD}
    s_movk_i32 s{sT}, 7168
    v_add_u32 v{vXD+1}, s{sT}, v{vXD+1}
    s_movk_i32 s{sT}, 14336
    v_add_u32 v{vXD+2}, s{sT}, v{vXD}
    v_add_u32 v{vXD+3}, s{sT}, v{vXD+1}
    v_lshrrev_b32 v2, 2, v0
    v_mul_u32_u24 v2, 3072, v2
    v_and_b32 v3, 3, v1
    s_lshl2_add_u32 s{sT}, s{sHP}, 64
    v_add_u32 v3, s{sT}, v3
    v_lshl_add_u32 v{vWD}, v3, 4, v2
    s_mul_i32 s{sM0}, s{sW}, {WPART}
    s_mov_b32 s{SRDX+2}, 0x200000
    s_mov_b32 s{SRDX+3}, 0x00020000
    s_mov_b32 s{SRDW+2}, 0x180000
    s_mov_b32 s{SRDW+3}, s{SRDX+3}
    """)
    Q3, A0 = OPT["q3"], OPT["a0"]
    assert Q3 + A0 <= 8
    rest = list(range(Q3, 8))
    att = {i: [] for i in range(10)}
    for j in range(Q3): att[j + A0].append(j)
    att[8], att[9] = rest[:4], rest[4:]
    cnt = {i: (6 if i < 8 else 0) + len(att[i]) for i in range(10)}
    sWQ = 27
    def dmaq(j):
        return [f"s_add_u32 s{sT+1}, s{sROT}, {j}", f"s_and_b32 s{sT+1}, s{sT+1}, 7", f"s_add_u32 m0, s{sWQ}, {WQ+4096*j}",
                f"s_mul_i32 s{sT+1}, s{sT+1}, 196608", f"buffer_load_dwordx4 v{vWD+1}, {sr(SRDW,4)}, s{sT+1} offen lds"]
    def dma(i, first=False):
        if i >= 8: return [dmaq(j) for j in att[i]]
        slot = i % NS
        g = []
        for seg in range(2):
            g.append([f"buffer_load_dwordx4 v{vWD}, {sr(SRDW,4)}, s{sWO} offen offset:{seg*1024} {'nt' if OPT.get('nt',0) & 1 and i < OPT.get('nts',8) else ''} lds"])
        for j in range(4):
            g.append([f"buffer_load_dwordx4 v{vXD+j}, {sr(SRDX,4)}, s{sXO} offen offset:{j*1024} {'nt' if OPT.get('nt',0) & 2 and i < OPT.get('nts',8) else ''} lds"])
        st = sROT if i == 0 else sT
        pre = [] if i == 0 else [f"s_add_u32 s{sT}, s{sROT}, {i}", f"s_and_b32 s{sT}, s{sT}, 7"]
        pre += [f"s_add_u32 m0, s{sM0}, {RING+slot*SLOT+4096}", f"s_mul_i32 s{sWO}, s{st}, 196608"]
        if first:
            pre += ["s_waitcnt lgkmcnt(0)", f"s_mov_b64 {sr(SRDW,2)}, {sr(pW,2)}", f"s_mov_b64 {sr(SRDX,2)}, {sr(pX,2)}"]
        prex = [f"s_add_u32 m0, s{sM0}, {RING+slot*SLOT}", f"s_lshl_b32 s{sXO}, s{st}, 7"]
        if OPT["xf"] >> i & 1:
            n = 0 if i == 0 else 2
            g[2] = pre[:n] + prex + pre[n+2:] + g[2]
            g[0] = pre[n:n+2] + g[0]
            g = g[2:] + g[:2]
        else:
            g[0] = pre + g[0]
            g[2] = prex + g[2]
        if first: g[5] += [f"v_subrev_u32 v{vWD+1}, 1024, v{vWD}", f"s_lshl_b32 s{sWQ}, s{sW}, 10"]
        return g + [dmaq(j) for j in att[i]]
    for g in dma(0, True): E(g)
    E(f"""
    s_and_b32 s{sX}, s{sW}, 1
    s_lshl_b32 s{sT}, s{sX}, 10
    s_add_u32 m0, s{sT}, {GW}
    v_lshlrev_b32 v{vKA}, 4, v1
    global_load_lds_dwordx4 v{vKA}, {sr(pGw,2)}
    """)
    held = dma(1)
    for g in held[:OPT["d1"]]: E(g)
    held = held[OPT["d1"]:]
    if OPT["lay"] == 0:
        E("s_branch L_m1")
        helper_entry(); helper_wave()
        E("L_m1:")
    elif OPT["lay"] == 1:
        E("s_branch L_m1")
        helper_entry()
        E("s_branch L_helper\nL_m1:")
    stamp("m")
    if OPT["tlb"]:
        E(f"""
        s_mov_b32 s{ta}, {WS_FL + 0x100000}
        s_load_dword s18, {sr(pWs,2)}, s{ta}
        s_load_dword s19, {sr(pDbg,2)}, 128
        s_load_dword s20, {sr(pOut,2)}, 0
        s_load_dword s21, {sr(pWo,2)}, 0
        """)
    C("""addresses of all later phases, in the shadow of the first loads""")
    E(f"""
    s_add_u32 s{pFL}, s{pWs}, {WS_FL}
    s_addc_u32 s{pFL+1}, s{pWs+1}, 0
    s_add_u32 s{ta}, s{sM0}, {RING}
    v_and_b32 v2, 31, v1
    v_lshl_add_u32 v2, v2, 7, s{ta}
    v_bfe_u32 v3, v1, 1, 3
    v_lshrrev_b32 v{vXA+1}, 5, v1
    v_xor_b32 v3, v3, v{vXA+1}
    v_lshl_add_u32 v{vXA}, v3, 4, v2
    v_xor_b32 v{vXA+1}, 32, v{vXA}
    v_xor_b32 v{vXA+2}, 64, v{vXA}
    v_xor_b32 v{vXA+3}, 0x60, v{vXA}
    v_lshrrev_b32 v2, 5, v1
    v_lshlrev_b32 v2, 3, v2
    v_bfe_u32 v3, v1, 2, 2
    v_add_u32 v2, v2, v3
    v_lshlrev_b32 v2, 6, v2
    v_and_b32 v3, 3, v1
    v_lshl_add_u32 v2, v3, 3, v2
    v_bfe_u32 v3, v1, 4, 1
    v_lshl_add_u32 v2, v3, 5, v2
    v_add_u32 v{vWA}, {RING+4096}, v2
    v_add_u32 v{vWA+1}, {RING+4096+2*SLOT}, v2
    v_add_u32 v{vQA}, {WQ}, v2
    """)
    E(f"""
    s_lshr_b32 s{sZ}, s{sW}, 1
    s_mov_b32 s{sQS}, {fbits(0.25 * math.log2(math.e))}
    s_lshl2_add_u32 s{ta}, s{sRB}, s{sW}
    s_lshl_b32 s{ta}, s{ta}, 11
    s_lshl_b32 s{tb}, s{sHP}, 18
    s_add_u32 s{ta}, s{ta}, s{tb}
    v_add_u32 v{vSA}, s{ta}, v{vKA}
    v_add_u32 v{vSB}, 0x20000, v{vSA}
    v_and_b32 v{vVA}, 15, v1
    v_lshrrev_b32 v2, 5, v1
    v_lshl_add_u32 v{vVA}, v2, 4, v{vVA}
    v_lshlrev_b32 v{vVA}, 4, v{vVA}
    v_bfe_u32 v2, v1, 4, 1
    v_lshlrev_b32 v2, 17, v2
    v_add3_u32 v{vSV}, v2, v{vVA}, s{ta}
    s_add_u32 s{tb}, s{sM0}, {EXCH}
    v_add_u32 v{vEW}, s{tb}, v{vKA}
    s_lshl_b32 s{ta}, s{sX}, 10
    s_add_u32 s{ta}, s{ta}, {EXCH}
    s_mul_i32 s{tb}, s{sZ}, 12288
    s_add_u32 s{tc}, s{ta}, s{tb}
    v_add_u32 v{vER0}, s{tc}, v{vKA}
    s_sub_u32 s{tc}, s{ta}, s{tb}
    s_add_u32 s{tc}, s{tc}, 12288
    v_add_u32 v{vER1}, s{tc}, v{vKA}
    s_lshl_b32 s{ta}, s{sX}, 8
    s_add_u32 s{tc}, s{ta}, s{tb}
    s_add_u32 s{tc}, s{tc}, {EXCH}
    v_add_u32 v{vERV}, s{tc}, v{vKA}
    s_lshl1_add_u32 s{ta}, s{sHP}, s{sX}
    s_lshl_b32 s{tb}, s{ta}, 17
    s_lshl_b32 s{tc}, s{sZ}, 12
    s_add_u32 s{tb}, s{tb}, s{tc}
    s_add_u32 s{sKVb}, s{pWs}, s{tb}
    s_addc_u32 s{sKVb+1}, s{pWs+1}, 0
    s_lshl1_add_u32 s{tb}, s{sRB}, s{sZ}
    s_lshl_b32 s{tb}, s{tb}, 6
    s_add_u32 s{tb}, s{tb}, s{ta}
    s_lshl_b32 s{tb}, s{tb}, 10
    s_add_u32 s{tb}, s{tb}, {WS_OF}
    v_add_u32 v{vOA}, s{tb}, v{vKA}
    v_add_u32 v{vOB}, 0x8000, v{vOA}
    s_mul_i32 s{ta}, s{sW}, {REDS}
    s_add_u32 s{ta}, s{ta}, {RED}
    v_add_u32 v{vRW}, s{ta}, v{vKA}
    v_lshl_add_u32 v{vRWl}, v1, 2, s{ta}
    s_xor_b32 s{ta}, s{sW}, 2
    s_mul_i32 s{ta}, s{ta}, {REDS}
    s_add_u32 s{ta}, s{ta}, {RED}
    v_add_u32 v{vRR}, s{ta}, v{vKA}
    v_lshl_add_u32 v{vRRl}, v1, 2, s{ta}
    s_lshl4_add_u32 s{ta}, s{sRB}, s{sHP}
    s_add_u32 s{ta}, s{ta}, {F2}
    s_lshl_b32 s{ta}, s{ta}, {FSH}
    v_mov_b32 v{vF2P}, s{ta}
    v_mov_b32 v{vOne}, 1
    s_lshr_b32 s{ta}, s{sHP}, 2
    s_lshl_b32 s{ta}, s{ta}, 3
    s_lshl_b32 s{sVal}, 1, s{ta}
    s_lshl1_add_u32 s{ta}, s{sRB}, s{sZ}
    s_lshl3_add_u32 s{ta}, s{ta}, {F2}
    v_add_lshl_u32 v{vF2}, v1, s{ta}, {FSH}
    s_lshl3_add_u32 s{sBfe}, s{sW}, 0x80000
    {f"s_lshr_b32 s{tb}, s{sHP}, 2" if OPT["fm"] else f"s_and_b32 s{tb}, s{sHP}, 3"}
    s_lshl2_add_u32 s{ta}, s{sRB}, s{tb}
    s_lshl2_add_u32 s{ta}, s{ta}, s{sW}
    s_lshl_b32 s{ta}, s{ta}, 13
    s_add_u32 s{ta}, s{ta}, {WS_OF}
    v_add_u32 v{vOD}, s{ta}, v{vKA}
    v_mov_b32 v{vIDX}, 0xdddddddd
    v_and_b32 v2, 27, v1
    v_cmp_eq_u32 vcc, 16, v2
    v_mov_b32 v2, {CNT+32}
    v_mov_b32 v{vZer}, {CNT+16}
    s_mov_b32 s{sMask}, 0x0000ffff
    s_mov_b32 s{sMask+1}, 0x0000ffff
    v_cndmask_b32 v{vOnes}, v{vZer}, v2, vcc
    s_mov_b32 s{sCnt}, 8
    v_add_u32 v{vOD2}, 4096, v{vOD}
    """)
    sOwn = 28
    if OPT["co"]:
        E(f"""
        s_andn2_b32 s{sJ}, 8, s{sRB}
        s_lshl1_add_u32 s{sOwn}, s{sJ}, s{sRB}
        s_sub_u32 s{sJ}, s{sJ}, 1
        """)
    def kvaddr():
        if OPT["co"]:
            return [f"s_add_u32 s{sJ}, s{sJ}, 1", f"s_cmp_eq_u32 s{sJ}, s{sOwn}", f"s_addc_u32 s{sJ}, s{sJ}, 0",
                    f"s_lshl_b32 s29, s{sJ}, 13", f"s_and_b32 s29, s29, 0x1e000",
                    f"s_add_u32 s{sKV}, s{sKVb}, s29", f"s_addc_u32 s{sKV+1}, s{sKVb+1}, 0"]
        return [f"s_add_u32 s{sJ}, s{sJ}, 0x2000", f"s_and_b32 s{sJ}, s{sJ}, 0x1e000",
                f"s_add_u32 s{sKV}, s{sKVb}, s{sJ}", f"s_addc_u32 s{sKV+1}, s{sKVb+1}, 0"]
    E(kvaddr())
    def reads(n):
        i, s = n >> 2, n & 3
        slot = i % NS
        a = vWA + (slot >> 1); so = (slot & 1) * SLOT + s * WPART
        f = vFB + 8 * (n % 3)
        o = [f"ds_read_b128 {vr(vXF+4*n,4)}, v{vXA+s} offset:{slot*SLOT}"]
        for c in range(2):
            o.append(f"ds_read_b64_tr_b16 {vr(f+4*c,2)}, v{a} offset:{so+1024*c}")
            o.append(f"ds_read_b64_tr_b16 {vr(f+2+4*c,2)}, v{a} offset:{so+1024*c+256}")
        return o
    def qread(n, f):
        return [f"ds_read_b64_tr_b16 {vr(f,2)}, v{vQA} offset:{1024*n}", f"ds_read_b64_tr_b16 {vr(f+2,2)}, v{vQA} offset:{1024*n+256}"]
    def qmf(n, f): return f"v_mfma_f32_32x32x16_bf16 {vr(aQ,16)}, {vr(f,4)}, {vr(vXF+4*n,4)}, {'0' if n == 0 else vr(aQ,16)}"
    def inq(n): return n - 4 * A0 if 0 <= n - 4 * A0 < 4 * Q3 else None
    def allreads(n): return reads(n) + (qread(inq(n), vP + 4 * (n % 3)) if inq(n) is not None else [])
    def xdead(n): return [f"v_mov_b32 v{r}, 0" for r in range(vXF + 4 * n, vXF + 4 * n + 4) if r < vKV and (r - vO) % 16 < 8]
    if held:
        E(f"s_waitcnt vmcnt({OPT['d1'] + cnt[0] + 1 - OPT['d1w']})")
        for g in held: E(g)
    E(f"s_waitcnt vmcnt({cnt[1]})")
    if STAMP == 5: stamp("m")
    E("s_barrier")
    stamp("m")
    C("""---- K^T and V for 32 rows x 2 heads; the x fragments stay in v[128:255] for the Q projection""")
    E(allreads(0) + allreads(1))
    pend = dma(2)
    while len(pend) > 4: E(pend.pop(0))
    for n in range(32):
        f = vFB + 8 * (n % 3); x = vXF + 4 * n
        c = (lambda a: "0" if n == 0 else vr(a, 16))
        m = [f"v_mfma_f32_32x32x16_bf16 {vr(aV,16)}, {vr(x,4)}, {vr(f+4,4)}, {c(aV)}",
             f"v_mfma_f32_32x32x16_bf16 {vr(aK,16)}, {vr(f,4)}, {vr(x,4)}, {c(aK)}"]
        r = allreads(n + 2) if n + 2 < 32 else []
        E(f"s_waitcnt lgkmcnt({len(allreads(n+1)) if n < 31 else 0})")
        E(m[0])
        if (n + 2) % 4 == 0 and n + 2 < 32:
            b = (n + 2) >> 2
            assert not pend
            E(f"s_waitcnt vmcnt({cnt[b+1]}) lgkmcnt(0)")
            if STAMP == 3: stamp("m")
            E("s_barrier")
            if STAMP == 2: stamp("m")
            pend = dma(b + 2)
        E(r[:3])
        if pend: E(pend.pop(0))
        E(m[1]); E(r[3:5])
        if inq(n) is not None:
            E(qmf(inq(n), vP + 4 * (n % 3)))
            if inq(n) >= 1: E(xdead(inq(n) - 1))
        E(r[5:])
        if pend: E(pend.pop(0))
    stamp("m")
    ep = [f"v_cvt_pk_bf16_f32 v{vP+j}, v{aK+2*j}, v{aK+1+2*j}" for j in range(4)]
    ep += [f"global_store_dwordx4 v{vSA}, {vr(vP,4)}, {sr(pWs,2)} sc1"]
    ep += [f"v_cvt_pk_bf16_f32 v{vP+j}, v{aK+2*j}, v{aK+1+2*j}" for j in range(4, 8)]
    ep += [f"global_store_dwordx4 v{vSB}, {vr(vP+4,4)}, {sr(pWs,2)} sc1"]
    ep += [f"v_permlane32_swap_b32 v{vP+8+a}, v{vP+10+a}" for a in (0, 1)]
    ep += [f"global_store_dwordx4 v{vSV}, {vr(vP+8,4)}, {sr(pWs,2)} offset:1024 sc1"]
    ep += [f"v_permlane32_swap_b32 v{vP+8+a}, v{vP+10+a}" for a in (4, 5)]
    ep += [f"global_store_dwordx4 v{vSV}, {vr(vP+12,4)}, {sr(pWs,2)} offset:1536 sc1"]
    LQ = OPT["lq"]
    qb = [40, 44, 24, 28, 32, 36, 64, 68, 72]
    C("""---- publish K / V as MFMA fragments (write-through), then project Q while the stores are acknowledged""")
    E("s_nop 10")
    for j in range(8):
        E(f"v_cvt_pk_bf16_f32 v{vP+8+j}, v{aV+2*j}, v{aV+1+2*j}")
    cut = OPT["epc"]
    E(ep[:cut])
    E(f"s_waitcnt vmcnt({cnt[9] + sum('store' in x for x in ep[:cut])})\ns_barrier")
    if STAMP == 4: stamp("m")
    n0 = 4 * Q3
    for n in range(n0, min(32, n0 + LQ)): E(qread(n, qb[(n - n0) % 9]))
    E(ep[cut:])
    late = [f"ds_read_b128 {vr(vO+16*q+8+4*e,4)}, v{vZer}" for q in range(4) for e in range(2)]
    late += [f"ds_write_b128 v{vEW}, {vr(vP+4*j,4)} offset:{2048+1024*j}" for j in range(4)]
    late += [f"ds_read_b128 {vr(vKV+12*st+4+4*e,4)}, v{vOnes}" for st in range(4) for e in range(2)]
    nl = 0
    ackn = 32 - OPT["ackr"]
    assert not att[9] or ackn > n0 + 16 - LQ
    for n in range(n0, 32):
        E(f"s_waitcnt lgkmcnt({min(15, 2*min(LQ-1, 31-n) + nl)})")
        E(qmf(n, qb[(n - n0) % 9]))
        if n == max(n0, ackn):
            if STAMP == 4: stamp("m")
            E("s_waitcnt vmcnt(0)\ns_barrier")
            if STAMP == 4: stamp("m")
        if n + LQ < 32:
            if n + LQ == n0 + 16:
                if STAMP == 4: stamp("m")
                E("s_waitcnt vmcnt(4)\ns_barrier")
                if STAMP == 4: stamp("m")
            E(qread(n + LQ, qb[(n + LQ - n0) % 9]))
        else:
            E(late[:2]); late = late[2:]; nl += 2
        if n >= 1: E(xdead(n - 1))
    E(late)
    E(f"s_nop {max(0, 11 - len(late))}")
    for o in (0, 1):
        for j in range(8):
            E(f"v_mul_f32 v{aQ+8*o+j}, s{sQS}, v{aQ+8*o+j}")
        for j in range(4):
            E(f"v_cvt_pk_bf16_f32 v{aK+4*o+j}, v{aQ+8*o+2*j}, v{aQ+8*o+1+2*j}")
        E(f"ds_write_b128 v{vEW}, {vr(aK+4*o,4)} offset:{1024*o}")
    if STAMP == 4: stamp("m"); E("s_waitcnt vmcnt(0)"); stamp("m")
    C("""---- exchange Q (scaled by log2(e)/4) and this block's own K / V through LDS""")
    LATE = ackn > 31 or n0 == 32
    E("s_waitcnt lgkmcnt(0)\ns_barrier")
    stamp("m")
    E(f"""
    ds_read_b128 {vr(vQ,4)}, v{vER1}
    ds_read_b128 {vr(vKV,4)}, v{vER0} offset:2048
    ds_read_b128 {vr(vQ+4,4)}, v{vER1} offset:6144
    s_mov_b64 exec, {sr(sMask,2)}
    ds_read_b128 {vr(vKV+4,4)}, v{vERV} offset:4096
    ds_read_b128 {vr(vKV+8,4)}, v{vERV} offset:5120
    ds_read_b128 {vr(vKV+16,4)}, v{vERV} offset:{4096+6144}
    ds_read_b128 {vr(vKV+20,4)}, v{vERV} offset:{5120+6144}
    s_mov_b64 exec, -1
    ds_read_b128 {vr(vQ+8,4)}, v{vER0}
    ds_read_b128 {vr(vQ+12,4)}, v{vER0} offset:6144
    ds_read_b128 {vr(vKV+12,4)}, v{vER0} offset:{2048+6144}
    s_waitcnt lgkmcnt(8)
    v_mfma_f32_32x32x16_bf16 {vr(SA,16)}, {vr(vKV,4)}, {vr(vQ,4)}, 0
    v_mov_b32 v6, 0
    v_mov_b32 v4, 0
    v_mov_b32 v5, s{sVal}
    v_mov_b32 v2, s{sW}
    s_lshl_b32 s{sXO}, s{sW}, 13
    s_add_u32 m0, s{sXO}, {OFL}
    s_nop 4
    s_waitcnt lgkmcnt(0)
    """)
    def kload(st, par):
        return [f"global_load_dwordx4 {vr(vKV+12*st,4)}, v{vKA}, {sr(sKV,2)} offset:{par*2048} sc1"]
    def vload(st, par):
        return [f"s_mov_b64 exec, {sr(sMask,2)}",
                f"global_load_dwordx4 {vr(vKV+12*st+4,4)}, v{vVA}, {sr(sKV,2)} offset:{par*2048+1024} sc1",
                f"global_load_dwordx4 {vr(vKV+12*st+8,4)}, v{vVA}, {sr(sKV,2)} offset:{par*2048+1536} sc1",
                "s_mov_b64 exec, -1"]
    def step(t, q, mode="loop", lo=0, hi=16, extra=None):
        cur, oth = (SA, SB) if q % 2 == 0 else (SB, SA)
        tp, qp = (t, q - 1) if q else ((t - 1) % 4, 3)
        tn, qn = (t, q + 1) if q < 3 else ((t + 1) % 4, 0)
        after2, afterq, after1 = extra or ([], [], [])
        st = (t + 3) % 4; par = (t + 3) & 1
        if mode == "loop":
            if q == 0:
                after2 = vload(st, par); afterq = kload(st, par)
            if q == 1 and par == 1:
                ka = kvaddr(); after2 = ka[:2]; after1 = ka[2:]
                if OPT["co"]: afterq = ka[2:3]; after1 = ka[3:5]
            if q == 2 and par == 1 and OPT["co"]: after2 = kvaddr()[5:]
            if q == 3:
                after2 = ["s_waitcnt vmcnt(6)"]
                if t == 2:
                    after2 += [f"s_sub_u32 s{sCnt}, s{sCnt}, 1"]; afterq = [f"s_cmp_lg_u32 s{sCnt}, 0"]
        for i in range(lo, hi):
            E(f"v_exp_f32 v{cur+i}, v{cur+i}")
            if i == 1 and not (mode == "first" and q == 0):
                E(f"v_smfmac_f32_32x32x32_bf16 {vr(vO+16*qp,16)}, {vr(vKV+12*tp+8,4)}, {vr(oth+8,8)}, v{vIDX}")
                E(after2)
            if i == 4 and not (mode == "last" and q == 3):
                E(f"v_mfma_f32_32x32x16_bf16 {vr(oth,16)}, {vr(vKV+12*tn,4)}, {vr(vQ+4*qn,4)}, 0")
                E(afterq)
            if i == 10:
                E(f"v_smfmac_f32_32x32x32_bf16 {vr(vO+16*q,16)}, {vr(vKV+12*t+4,4)}, {vr(cur,8)}, v{vIDX}")
                E(after1)
    C("""==== attention: wave (X = w&1, z = w>>1) = head X, 128 queries, half of the keys ====
per 32x32 tile: S^T = K Q^T, p = exp2(S^T) in place, O^T += [V^T; 1] p.  The sparse MFMA picks the high half of every
fp32 p (= p as bf16), and the row of ones yields the row sum of exactly those p.
No shift is subtracted here: the row sums are checked below, and a wave whose sums left the safe range
redoes its rows with the true row maximum (L_safe).""")
    ackq = -OPT["ackr"] if LATE else -1
    assert ackq < OPT["bp"]
    for q in range(4):
        if q == ackq: E("s_waitcnt vmcnt(0)\ns_barrier")
        if q == OPT["bp"] - 1:
            step(0, q, "first", hi=11)
            E("s_barrier")
            stamp("m")
            E(kload(2, 0) + vload(2, 0)[:3] + vload(3, 1)[1:] + kload(3, 1) + kvaddr())
            step(0, q, "first", lo=11)
        else:
            step(0, q, "first", hi=(11 if q == 3 and OPT["seq"] else 16))
    def itst():
        if OPT.get("itst"):
            E(f"s_memtime s[90:91]\ns_memrealtime s[86:87]\ns_mov_b32 s89, m0\ns_mov_b32 m0, s{sCnt}\ns_waitcnt lgkmcnt(0)\nv_writelane_b32 v23, s90, m0\ns_bitset1_b32 m0, 3\ns_nop 0\nv_writelane_b32 v23, s86, m0\ns_mov_b32 m0, s89")
    if OPT["seq"]:
        assert OPT["bp"] < 4
        E(".p2align 3\nL_attn:")
        step(0, 3, lo=11)
        for t in (1, 2, 3, 0):
            for q in range(4):
                if (t, q) == (2, 3):
                    step(t, q, hi=11); itst(); E("s_cbranch_scc0 L_last"); step(t, q, lo=11)
                else:
                    step(t, q, hi=(11 if (t, q) == (0, 3) else 16))
        E("s_branch L_attn\nL_last:")
    else:
        E("s_branch L_attn1\n.p2align 3\nL_attn:")
        step(2, 3, lo=11)
        for t in (3, 0, 1, 2):
            if t == 1: E("L_attn1:")
            for q in range(4): step(t, q, hi=(11 if (t, q) == (2, 3) else 16))
        itst()
        E("s_cbranch_scc1 L_attn")
    step(2, 3, lo=11)
    C("""---- last key tile: query tiles 0,1 go to the partner wave while 2,3 are still being computed""")
    vR = 64
    def sendw(q): return [f"ds_write_b128 v{vRW}, {vr(vO+16*q,4)} offset:{2048*q}", f"ds_write_b128 v{vRW}, {vr(vO+16*q+4,4)} offset:{2048*q+1024}",
                          f"ds_write_b32 v{vRWl}, v{vO+16*q+8} offset:{4096+256*q}"]
    recv = ["s_waitcnt lgkmcnt(0)", "s_barrier",
            f"ds_read_b32 v{vR+16}, v{vRRl} offset:4096", f"ds_read_b128 {vr(vR,4)}, v{vRR}", f"ds_read_b128 {vr(vR+4,4)}, v{vRR} offset:1024",
            f"ds_read_b32 v{vR+17}, v{vRRl} offset:4352", f"ds_read_b128 {vr(vR+8,4)}, v{vRR} offset:2048", f"ds_read_b128 {vr(vR+12,4)}, v{vRR} offset:3072"]
    pol0 = ["s_mov_b64 exec, 1", f"global_atomic_add v6, v{vF2P}, v6, {sr(pFL,2)} sc0 sc1", "s_mov_b64 exec, -1"]
    es = OPT.get("es", 0)
    sig0 = ["s_bfm_b64 exec, 8, 0", f"global_atomic_add v{vF2}, v5, {sr(pFL,2)} sc1", "s_mov_b64 exec, -1"]
    step(3, 0, "last", extra=(hop() + (sig0 if es == 1 else []), [], [])); step(3, 1, "last", extra=(pol0 if OPT["pre"] == 1 else [], [], hop() + (sig0 if es == 2 else [])))
    w0 = sendw(0)
    step(3, 2, "last", extra=(w0[:1], w0[1:2], (pol0 if OPT["pre"] == 2 else []) + w0[2:]))
    step(3, 3, "last", extra=(hop() + (sig0 if es == 3 else []) + sendw(1), [], recv + (sig0 if es == 4 else [])))
    O2, O3 = vO + 32, vO + 48
    E(f"""
    s_waitcnt lgkmcnt(3)
    v_add_f32 v{O2+8}, v{O2+8}, v{vR+16}
    v_smfmac_f32_32x32x32_bf16 {vr(O3,16)}, {vr(vKV+36+8,4)}, {vr(SB+8,8)}, v{vIDX}
    """)
    E(hop())
    stamp("m")
    def fin(o, r, rl, dst, addr):
        if rl is not None: E(f"v_add_f32 v{o+8}, v{o+8}, v{rl}")
        E(f"v_rcp_f32 v{vT}, v{o+8}")
        if rl is not None:
            for j in range(0, 8, 2): E(f"v_pk_add_f32 {vr(o+j,2)}, {vr(o+j,2)}, {vr(r+j,2)}")
            for j in range(0, 8, 2): E(f"v_pk_mul_f32 {vr(o+j,2)}, {vr(o+j,2)}, {vr(vT,2)} op_sel_hi:[1,0]")
            for j in range(4): E(f"v_cvt_pk_bf16_f32 v{dst+j}, v{o+2*j}, v{o+2*j+1}")
            E(f"global_store_dwordx4 v{addr}, {vr(dst,4)}, {sr(pWs,2)} sc1")
            return
        if r is not None:
            for j in range(8): E(f"v_add_f32 v{o+j}, v{o+j}, v{r+j}")
        else:
            E("s_nop 0")
        for j in range(8): E(f"v_mul_f32 v{o+j}, v{o+j}, v{vT}")
        for j in range(4): E(f"v_cvt_pk_bf16_f32 v{dst+j}, v{o+2*j}, v{o+2*j+1}")
        E(f"global_store_dwordx4 v{addr}, {vr(dst,4)}, {sr(pWs,2)} sc1")
    fin(O2, vR, None, SA, vOA)
    E("s_waitcnt lgkmcnt(0)")
    E(hop())
    fin(O3, vR + 8, vR + 17, SA + 4, vOB)
    assert OPT["ep"] and OPT["pw"]
    if OPT["ep"]: E(f"s_mov_b64 exec, 1\nglobal_atomic_add v4, v{vF2P}, v4, {sr(pFL,2)} sc0 sc1\ns_mov_b64 exec, -1")
    E(hop())
    C("""---- guard: 2^-30 < row sum < 2^110 and finite results, else the exact max-subtracted path""")
    E(f"""
    s_mov_b32 s{ta}, {fbits(2.0**-30)}
    s_mov_b32 s{tb}, {fbits(2.0**110)}
    v_min_f32 v{vT+6}, v{O2+8}, v{O3+8}
    v_max_f32 v{vT+7}, v{O2+8}, v{O3+8}
    v_cmp_lt_f32 vcc, s{ta}, v{vT+6}
    v_cmp_gt_f32 {sr(tc,2)}, s{tb}, v{vT+7}
    v_pk_mul_f32 {vr(vT+2,2)}, {vr(O2,2)}, 0 op_sel_hi:[1,0]
    s_and_b64 {sr(tc,2)}, {sr(tc,2)}, vcc
    """)
    for j in (2, 4, 6, 16, 18, 20, 22):
        E(f"v_pk_fma_f32 {vr(vT+2,2)}, {vr(O2+j,2)}, 0, {vr(vT+2,2)} op_sel_hi:[1,0,1]")
    E(f"""
    v_cmp_o_f32 vcc, v{vT+2}, v{vT+3}
    s_nop 1
    s_and_b64 vcc, {sr(tc,2)}, vcc
    s_cmp_eq_u64 vcc, -1
    s_cbranch_scc0 L_safe
    """)
    C("""---- signal my O fragments once they are acknowledged; fetch those of head pairs 4w..4w+3 when all were signalled""")
    test = lambda r: [f"s_bfe_u32 s{r}, s{r}, s{sBfe}", f"s_cmp_eq_u32 s{r}, 8"]
    def odma():
        for j in range(4):
            E(f"global_load_lds_dwordx4 v{vOD}, {sr(pWs,2)} offset:{1024*j} sc1")
        E(f"s_add_u32 m0, s{sXO}, {OFL+4096}")
        E(hop() or ["s_nop 0"])
        for j in range(4):
            E(f"global_load_lds_dwordx4 v{vOD2}, {sr(pWs,2)} offset:{1024*j} sc1")
    if OPT["pre"]:
        E(f"s_waitcnt vmcnt({4 if es >= 2 + (OPT['pre'] == 2) else 3})\nv_readfirstlane_b32 s{ta}, v6\ns_nop 0")
        E(test(ta)); E("s_cbranch_scc0 L_late")
        if OPT.get("noack") and not es: add_ctr(vF2, 5, 8)
        odma()
        if OPT.get("noack"): E("s_waitcnt vmcnt(0)")
        else:
            E("s_waitcnt vmcnt(9)")
            add_ctr(vF2, 5, 8)
        n0 = nstamp["m"]; stamp("m"); stamp("m"); nstamp["m"] = n0
        E("s_waitcnt vmcnt(1)\ns_branch L_got\nL_late:")
    E("L_pub:" if OPT.get("noack") else "s_waitcnt vmcnt(1)\nL_pub:")
    if not es: add_ctr(vF2, 5, 8)
    stamp("m")
    poll_ctr(vF2P, 4, test, OPT["pd"], 1 if es else 2)
    stamp("m")
    odma()
    E(f"s_waitcnt vmcnt(0)\nL_got:\nds_write_b8 v2, v{vOne} offset:{CNT+12}")
    stamp("m")
    if OPT["hop"]: E(f"L_hop{nhop[0]}:\ns_cbranch_execz L_hopdone")
    stamp_flush("m"); spin_end("m")
    if OPT.get("itst"):
        E(f"v_lshl_add_u32 v2, v1, 2, v2\nv_add_u32 v2, 0x100000, v2\ns_mov_b64 exec, 0xffff\nglobal_store_dword v2, v23, {sr(pWs,2)}")
    E("s_endpgm")
    C("""==== fallback: softmax with the true row maximum, this wave's 64 queries over all 2048 keys ====""")
    vM, vC = vT + 6, 64
    vQ += 8; vO += 32
    E(f"""
    L_safe:
    s_waitcnt vmcnt(0)
    s_lshl_b32 s{ta}, s{sZ}, 12
    s_sub_u32 s{sKVb}, s{sKVb}, s{ta}
    s_subb_u32 s{sKVb+1}, s{sKVb+1}, 0
    s_mov_b32 s{sKV}, s{sKVb}
    s_mov_b32 s{sKV+1}, s{sKVb+1}
    s_mov_b32 s{sCnt}, 64
    v_mov_b32 v{vM}, 0xff800000
    v_mov_b32 v{vM+1}, 0xff800000
    L_safe1:
    global_load_dwordx4 {vr(vKV,4)}, v{vKA}, {sr(sKV,2)} sc1
    s_add_u32 s{sKV}, s{sKV}, 2048
    s_addc_u32 s{sKV+1}, s{sKV+1}, 0
    s_waitcnt vmcnt(0)
    v_mfma_f32_32x32x16_bf16 {vr(SA,16)}, {vr(vKV,4)}, {vr(vQ,4)}, 0
    v_mfma_f32_32x32x16_bf16 {vr(SB,16)}, {vr(vKV,4)}, {vr(vQ+4,4)}, 0
    s_nop 15
    """)
    for j in range(8):
        E(f"v_max3_f32 v{vM}, v{SA+2*j}, v{SA+2*j+1}, v{vM}\nv_max3_f32 v{vM+1}, v{SB+2*j}, v{SB+2*j+1}, v{vM+1}")
    E(f"""
    s_sub_u32 s{sCnt}, s{sCnt}, 1
    s_cmp_lg_u32 s{sCnt}, 0
    s_cbranch_scc1 L_safe1
    v_mov_b32 v{SA}, v{vM}
    v_mov_b32 v{SB}, v{vM+1}
    s_nop 1
    v_permlane32_swap_b32 v{SA}, v{vM}
    v_permlane32_swap_b32 v{SB}, v{vM+1}
    s_nop 1
    v_max_f32 v{vM}, v{vM}, v{SA}
    v_max_f32 v{vM+1}, v{vM+1}, v{SB}
    """)
    for j in range(16):
        E(f"v_sub_f32 v{vC+j}, 0, v{vM}\nv_sub_f32 v{vC+16+j}, 0, v{vM+1}\nv_mov_b32 v{vO+j}, 0\nv_mov_b32 v{vO+16+j}, 0")
    E(f"""
    s_mov_b32 s{sKV}, s{sKVb}
    s_mov_b32 s{sKV+1}, s{sKVb+1}
    s_mov_b32 s{sCnt}, 64
    L_safe2:
    """)
    E(kload(0, 0) + vload(0, 0))
    E(f"""
    s_add_u32 s{sKV}, s{sKV}, 2048
    s_addc_u32 s{sKV+1}, s{sKV+1}, 0
    s_waitcnt vmcnt(0)
    v_mfma_f32_32x32x16_bf16 {vr(SA,16)}, {vr(vKV,4)}, {vr(vQ,4)}, {vr(vC,16)}
    v_mfma_f32_32x32x16_bf16 {vr(SB,16)}, {vr(vKV,4)}, {vr(vQ+4,4)}, {vr(vC+16,16)}
    s_nop 15
    """)
    for j in range(32):
        E(f"v_exp_f32 v{SA+j}, v{SA+j}")
    E(f"""
    s_nop 1
    v_smfmac_f32_32x32x32_bf16 {vr(vO,16)}, {vr(vKV+4,4)}, {vr(SA,8)}, v{vIDX}
    v_smfmac_f32_32x32x32_bf16 {vr(vO,16)}, {vr(vKV+8,4)}, {vr(SA+8,8)}, v{vIDX}
    v_smfmac_f32_32x32x32_bf16 {vr(vO+16,16)}, {vr(vKV+4,4)}, {vr(SB,8)}, v{vIDX}
    v_smfmac_f32_32x32x32_bf16 {vr(vO+16,16)}, {vr(vKV+8,4)}, {vr(SB+8,8)}, v{vIDX}
    s_sub_u32 s{sCnt}, s{sCnt}, 1
    s_cmp_lg_u32 s{sCnt}, 0
    s_cbranch_scc1 L_safe2
    s_nop 15
    """)
    fin(O2, None, None, SA, vOA); fin(O3, None, None, SA + 4, vOB)
    E("s_waitcnt vmcnt(0)\ns_branch L_pub")

def helper_wave():
    sH, sC, sMH, sRT, sCB, sD = sT, sT + 1, sT + 2, sT + 3, sT + 4, sT + 5
    sLd, sDs = sT + 6, sT + 7
    t0 = sT + 8
    sLead, sWst, sPar = 92, 93, 94
    sAT = 100
    vGW = 156
    vGWA = 155
    vXF = 160
    vG, vGA0, vGA1 = 164, 165, 166
    vU = 168
    vKW = 128
    vNb, vPad, vF4, vF4P, vRdy, vF1, vF1P = range(141, 148)
    vTA, vTS = 148, 152
    sUW = sT + 13; sOut = sT + 12
    assert NS == 3
    vPar = 4
    C("""==== helper waves: wave h = (channel c = h>>1, mode half = h&1); SSM branch, gate, output projection ====""")
    E(f"""
    L_helper:
    s_lshr_b32 s{sC}, s{sH}, 1
    s_add_u32 s{sD}, s{sCH}, s{sC}
    s_and_b32 s{sCB if OPT["fm"] else sRT}, s{sHP}, 3
    s_lshr_b32 s{sRT if OPT["fm"] else sCB}, s{sHP}, 2
    v_lshrrev_b32 v3, 5, v1
    v_lshlrev_b32 v3, 4, v3
    s_lshl_b32 s{t0+2}, s{sROT}, 2
    s_add_u32 s{t0+2}, s{t0+2}, s{sH}
    s_lshl_b32 s{t0+2}, s{t0+2}, 5
    s_add_u32 s{t0+2}, s{t0+2}, {GW}
    v_add_u32 v{vGWA}, s{t0+2}, v3
    v_mov_b32 v12, 0
    v_mov_b32 v13, 0
    v_mov_b32 v14, 0
    v_mov_b32 v15, 0
    s_cmp_lt_u32 s2, 16
    s_cselect_b32 s{sLead}, s{sW}, 0
    """)
    E(f"s_add_u32 s{pFL}, s{pWs}, {WS_FL}\ns_addc_u32 s{pFL+1}, s{pWs+1}, 0")
    stamp("h")
    E(f"""
    s_mul_i32 s{t0}, s{sC}, {URS}
    s_add_u32 s{t0}, s{t0}, {UR+4096}
    v_lshl_add_u32 v10, v1, 4, s{t0}
    v_and_b32 v11, 1, v1
    v_lshlrev_b32 v11, 4, v11
    v_cmp_gt_u32 vcc, 30, v1
    v_add_u32 v11, {CNT}, v11
    v_mov_b32 v2, 0x3f803f80
    v_cndmask_b32 v10, v11, v10, vcc
    ds_write_b128 v10, v[12:15]
    v_and_b32 v11, 3, v1
    v_lshlrev_b32 v11, 2, v11
    ds_write_b32 v11, v2 offset:{CNT+32}
    """)
    vWA, vRA = 16, 17
    if "prio1" in OPT: E(f"s_setprio {OPT['prio1']}")
    E(f"""
    s_mul_i32 s{t0}, s{sRT}, {WPART}
    s_add_u32 s{t0}, s{t0}, {RING}
    v_and_b32 v10, 31, v1
    v_lshl_add_u32 v10, v10, 7, s{t0}
    v_bfe_u32 v11, v1, 1, 3
    v_lshrrev_b32 v3, 5, v1
    v_xor_b32 v11, v11, v3
    s_lshl_b32 s{t0}, s{sH}, 1
    v_xor_b32 v11, s{t0}, v11
    v_lshl_add_u32 v{vGA0}, v11, 4, v10
    v_mov_b32 v{vG}, 0
    s_lshr_b32 s{sUW}, s{sHP}, 1
    s_sub_u32 s{sUW}, s{sUW}, s{sROT}
    s_and_b32 s{sUW}, s{sUW}, 7
    s_mul_i32 s{t0}, s{sUW}, 11
    s_lshr_b32 s{t0}, s{t0}, 5
    s_mul_i32 s{t0}, s{t0}, 3
    s_sub_u32 s{t0}, s{sUW}, s{t0}
    s_mul_i32 s{t0}, s{t0}, {SLOT}
    s_mul_i32 s{t0+1}, s{sH}, {WPART}
    s_add_u32 s{t0}, s{t0}, s{t0+1}
    s_add_u32 s{t0}, s{t0}, {RING}
    v_and_b32 v10, 3, v1
    v_bfe_u32 v11, v1, 2, 2
    v_lshlrev_b32 v10, 3, v10
    v_sub_u32 v10, v10, v11
    v_add_u32 v10, 7, v10
    v_bfe_u32 v11, v10, 1, 3
    v_xor_b32 v11, v11, v3
    s_and_b32 s{t0+1}, s{sHP}, 1
    s_lshl_b32 s{t0+1}, s{t0+1}, 2
    v_xor_b32 v11, s{t0+1}, v11
    v_lshlrev_b32 v11, 4, v11
    v_lshl_add_u32 v11, v10, 7, v11
    v_bfe_u32 v10, v1, 4, 1
    v_lshl_add_u32 v11, v10, 3, v11
    v_add_u32 v{vTA}, s{t0}, v11
    v_xor_b32 v{vTA+1}, 32, v{vTA}
    v_subrev_u32 v{vTA+2}, 512, v{vTA}
    v_subrev_u32 v{vTA+3}, 512, v{vTA+1}
    s_mul_i32 s{t0}, s{sH}, {KGS}
    s_add_u32 s{t0}, s{t0}, {KG}
    s_mov_b32 m0, s{t0}
    v_and_b32 v10, 31, v1
    v_mul_u32_u24 v10, 272, v10
    v_lshl_add_u32 v10, v3, 4, v10
    v_add_u32 v{vRA}, s{t0}, v10
    """)
    K = []
    def k(s, c=None):
        if isinstance(s, list): s = "\n".join(s)
        for x in s.split("\n"):
            x = x.strip()
            if not x: continue
            cc = c if c is not None else (8 if any(t in x for t in ("v_exp", "v_sin", "v_cos", "v_rcp", "ds_")) else 4)
            K.append((cc, x))
    va, vb, vt = 220, 221, 222
    log2e = math.log2(math.e)
    c_hi = struct.unpack("<f", struct.pack("<f", log2e))[0]
    c_lo = log2e - c_hi
    k(f"""
    s_waitcnt lgkmcnt(0)
    s_lshl_b32 s{t0}, s{sC}, 4
    s_lshr_b32 s{sLd}, s{sLd}, s{t0}
    s_lshl_b32 s{sLd}, s{sLd}, 16
    s_lshr_b32 s{sDs}, s{sDs}, s{t0}
    s_lshl_b32 s{sDs}, s{sDs}, 16
    s_mov_b32 s{t0}, {fbits(c_hi)}
    v_mov_b32 v{vt}, s{sLd}
    v_mul_f32 v{vt+1}, s{t0}, v{vt}
    v_fma_f32 v{vt+2}, v{vt}, s{t0}, -v{vt+1}
    v_fmac_f32 v{vt+2}, {fbits(c_lo)}, v{vt}
    v_exp_f32 v{vt+1}, v{vt+1}
    v_mul_f32 v{vt+2}, {fbits(math.log(2.0))}, v{vt+2}
    v_fma_f32 v{vt+1}, v{vt+1}, v{vt+2}, v{vt+1}
    v_cvt_pk_bf16_f32 v{vt+1}, v{vt+1}, v{vt+1}
    v_lshlrev_b32 v{vt}, 16, v{vt+1}
    """)
    KPRE = [x for _, x in K]; K.clear()
    k("s_waitcnt vmcnt(0)")
    for j in range(6):
        k(f"v_lshlrev_b32 v{vPar+j}, 16, v{vPar+j}")
    k(f"""
    v_mul_f32 v{va}, v{vt}, v{vPar}
    v_mul_f32 v{vb}, v{vt}, v{vPar+1}
    v_mul_f32 v{vPar+2}, v{vt}, v{vPar+2}
    v_mul_f32 v{vPar+3}, v{vt}, v{vPar+3}
    v_mul_f32 v{va}, {fbits(c_hi)}, v{va}
    v_mul_f32 v{vb}, 0.15915494, v{vb}
    """)
    def cmul(z, x, w):
        if OPT["pk"]:
            return [f"v_pk_mul_f32 {vr(z,2)}, {vr(x,2)}, {vr(w,2)} op_sel_hi:[0,1]",
                    f"v_pk_fma_f32 {vr(z,2)}, {vr(x,2)}, {vr(w,2)}, {vr(z,2)} op_sel:[1,1,0] op_sel_hi:[1,0,1] neg_lo:[1,0,0]"]
        return [f"v_mul_f32 v{z}, v{x}, v{w}\nv_mul_f32 v{z+1}, v{x}, v{w+1}",
                f"v_fma_f32 v{z}, -v{x+1}, v{w+1}, v{z}\nv_fmac_f32 v{z+1}, v{x+1}, v{w}"]
    def cmuls(lst):
        cm = [cmul(*a) for a in lst]
        k([c[0] for c in cm]); k([c[1] for c in cm])
    def direct(z, x):
        k(f"""
        v_mul_f32 v{vt+2}, {fbits(x)}, v{vb}
        v_mul_f32 v{vt+1}, {fbits(x)}, v{va}
        v_fract_f32 v{vt+2}, v{vt+2}
        v_exp_f32 v{vt+1}, v{vt+1}
        v_cos_f32 v{z}, v{vt+2}
        v_sin_f32 v{z+1}, v{vt+2}
        s_nop 0
        v_mul_f32 v{z}, v{z}, v{vt+1}
        v_mul_f32 v{z+1}, v{z+1}, v{vt+1}
        """)
    E1, E32, E256 = 226, 228, 230
    vE = 232
    vPk = 64
    npk = [0]
    DW = {False: [], True: []}
    def puts(lst, neg):
        for z, rows in lst:
            p = vPk + npk[0]; npk[0] += 1
            k(f"v_cvt_pk_bf16_f32 v{p}, v{z}, {'-' if neg else ''}v{z+1}")
            DW[neg] += [f"ds_write_addtid_b32 v{p} offset:{272*r}" for r in rows]
        if OPT["kds"] > neg: k(DW[neg]); DW[neg] = []
    def e(j): return vE + 2 * (j % 8)
    direct(e(1), 8.0); direct(E32, 32.0)
    k(f"v_mov_b32 v{e(0)}, 1.0\nv_mov_b32 v{e(0)+1}, 0\nv_mov_b32 v{e(4)}, v{E32}\nv_mov_b32 v{e(4)+1}, v{E32+1}")
    cmuls([(e(2), e(1), e(1)), (e(5), e(1), E32)])
    cmuls([(e(3), e(2), e(1)), (e(6), e(2), E32)])
    cmuls([(e(7), e(3), E32)])
    puts([(e(j), [j]) for j in range(4)], False)
    for j0 in range(4, 32, 4):
        if j0 + 4 < 32: cmuls([(e(j + 4), e(j), E32) for j in range(j0, j0 + 4)])
        puts([(e(j), [j]) for j in range(j0, j0 + 4)], False)
    vEF, vGF, vD = (64 if OPT["kds"] else 192), 224, 176
    if OPT["kds"]: k([f"ds_read_b128 {vr(vEF+4*s,4)}, v{vRA} offset:{32*s}" for s in range(8)])
    direct(E1, 1.0); direct(E256, 256.0)
    def row(r, h): return 8 * (r >> 2) + 4 * h + (r & 3)
    vGv = 192
    g = {x: vGv + 2 * x for x in range(9)}
    E2 = e(0)
    cmuls([(g[0], vPar + 4, vPar + 2), (E2, E1, E1)])
    cmuls([(g[1], g[0], E1), (g[2], g[0], E2)])
    cmuls([(g[3], g[1], E2), (g[4], g[2], E2)])
    puts([(g[x], [row(x, 0)]) for x in range(4)], True)
    cmuls([(g[5], g[3], E2), (g[6], g[4], E2)])
    cmuls([(g[7], g[5], E2), (g[8], g[6], E2)])
    puts([(g[x], [row(x, 0)]) for x in range(4, 8)], True)
    A = {o: vGv + 18 + 2 * i for i, o in enumerate((0, 2, 4, 6, 8))}
    cmuls([(A[o], g[o], E256) for o in (0, 2, 4, 6, 8)])
    puts([(A[o], [row(r, 1) for r in rs]) for o, rs in ((0, (0, 1)), (2, (2,)), (4, (3, 4, 5)), (6, (6,)), (8, (7,)))], True)
    src, dst = A, g
    for os_, r0, h in (((0, 4, 8), 8, 0), ((0, 4, 8), 8, 1), ((0, 8), 11, 0), ((0, 8), 11, 1), ((0, 8), 13, 0), ((0, 8), 13, 1)):
        cmuls([(dst[o], src[o], E256) for o in os_])
        puts([(dst[o], [row(r0 + i, h)]) for i, o in enumerate(os_)], True)
        src, dst = dst, src
    if OPT["kds"] == 2: k([f"ds_read_b128 {vr(vGF+4*s,4)}, v{vRA} offset:{32*s}" for s in range(8)])
    def D1():
        if not OPT["kds"]: E(DW[False] + [f"ds_read_b128 {vr(vEF+4*s,4)}, v{vRA} offset:{32*s}" for s in range(8)])
    def D2():
        if OPT["kds"] < 2: E(DW[True] + [f"ds_read_b128 {vr(vGF+4*s,4)}, v{vRA} offset:{32*s}" for s in range(8)])
    (vCP, vAA, vBA, vUW, vCW, vCR, vAT, vF3, vWoG, vWoL, vF3P, vAL, vGPw, vGPr, vWoP, vUL, vClO, vOne, vCA, vTm, vomg, vg, vOut, vOL) = range(24, 48)
    vA = 48; vAcc = 96; vF2 = 3; vON = 2; vF2v = 23; vATW = 166; vWoL2 = vClO; sWs2 = 10; vXR, vSA, vSB, vSV = 124, 125, 126, 127
    LQH = {0: 2, 1: 0, 2: 1}[OPT["xm"]]
    LOH = [{0: 2, 1: 1, 2: 1}, {0: 3, 1: 2, 2: 3}][OPT["fm"]][OPT["xm"]]
    ADDR = f"""
    v_mov_b32 v{vCA}, {CNT}
    s_lshl_b32 s{t0}, s{sC}, 2
    s_add_u32 s{t0}, s{t0}, {CNT+4}
    v_mov_b32 v{vCP}, s{t0}
    v_mov_b32 v{vOne}, 1
    v_lshlrev_b32 v23, 4, v1
    s_lshl_b32 s{t0}, s{sH}, 10
    s_sub_u32 s{t0}, {UR+4080-512}, s{t0}
    v_lshrrev_b32 v18, 1, v1
    v_lshlrev_b32 v19, 4, v18
    v_sub_u32 v19, s{t0}, v19
    v_and_b32 v20, 1, v1
    v_mul_u32_u24 v21, {URS}, v20
    v_add_u32 v{vUW}, v19, v21
    s_lshr_b32 s{t0}, s{sCH}, 2
    s_lshl_b32 s{t0}, s{t0}, 14
    s_lshl_b32 s{t0+1}, s{sH}, 12
    s_add_u32 s{t0}, s{t0}, s{t0+1}
    s_and_b32 s{t0+1}, s{sRB}, 1
    s_lshl_b32 s{t0+1}, s{t0+1}, 5
    s_add_u32 s{t0}, s{t0}, s{t0+1}
    s_add_u32 s{t0}, s{t0}, {WS_UT}
    v_lshl_add_u32 v18, v18, 6, s{t0}
    v_lshl_add_u32 v{vUL}, v20, 4, v18
    v_and_b32 v18, 15, v1
    v_add_u32 v19, 1, v18
    v_and_b32 v20, 3, v19
    v_mul_u32_u24 v20, {KCP}, v20
    v_lshrrev_b32 v19, 2, v19
    v_lshl_add_u32 v20, v19, 3, v20
    v_lshrrev_b32 v21, 4, v1
    v_lshlrev_b32 v22, 4, v21
    s_mul_i32 s{t0}, s{sC}, {2*KGS}
    s_lshl_b32 s{t0+1}, s{sMH}, 8
    s_add_u32 s{t0}, s{t0}, s{t0+1}
    s_add_u32 s{t0}, s{t0}, {KG}
    v_add3_u32 v{vAA}, v20, v22, s{t0}
    s_mul_i32 s{t0}, s{sC}, {URS}
    s_add_u32 s{t0}, s{t0}, s{t0+1}
    s_add_u32 s{t0}, s{t0}, {UR+4064-3584}
    v_lshlrev_b32 v19, 5, v18
    v_sub_u32 v22, v22, v19
    v_add_u32 v{vBA}, s{t0}, v22
    s_lshl_b32 s{t0}, s{sH}, 12
    s_add_u32 s{t0}, s{t0}, {CRED}
    v_add_u32 v{vCW}, s{t0}, v23
    s_xor_b32 s{t0}, s{sH}, 1
    s_lshl_b32 s{t0}, s{t0}, 12
    s_add_u32 s{t0}, s{t0}, {CRED}
    v_add_u32 v{vCR}, s{t0}, v23
    v_lshl_add_u32 v19, v18, 5, s{t0}
    v_lshl_add_u32 v{vATW}, v21, 3, v19
    v_add_u32 v{vOL}, {OFL}, v23
    {f"v_lshrrev_b32 v19, 2, v1" if OPT["atr"] else ""}
    {f"v_lshlrev_b32 v19, 15, v19" if OPT["atr"] else ""}
    {f"v_and_b32 v20, 48, v23" if OPT["atr"] else ""}
    {f"v_add_u32 v{vAT}, v19, v20" if OPT["atr"] else ""}
    s_lshl_b32 s{t0}, s{sMH}, 20
    s_lshl_b32 s{t0+1}, s{sD}, 6
    s_add_u32 s{t0}, s{t0}, s{t0+1}
    s_add_u32 s{t0}, s{t0}, {WS_AT}
    s_add_u32 s{sAT}, s{pWs}, s{t0}
    s_addc_u32 s{sAT+1}, s{pWs+1}, 0
    s_lshl4_add_u32 s{t0}, s{sMH}, s{sHP}
    s_add_u32 s{t0}, s{t0}, {F3}
    s_lshl_b32 s{t0}, s{t0}, {FSH}
    v_mov_b32 v{vF3}, s{t0}
    s_mov_b32 s{SRDW}, s{pWo}
    s_mov_b32 s{SRDW+1}, s{pWo+1}
    s_mov_b32 s{SRDW+2}, {512*1024}
    s_mov_b32 s{SRDW+3}, 0x00020000
    s_lshl_b32 s{t0}, s{sCB}, 2
    s_add_u32 s{t0}, s{t0}, s{sH}
    s_lshl_b32 s{t0+1}, s{t0}, 6
    v_lshrrev_b32 v18, 2, v1
    v_lshl_add_u32 v18, v18, 10, s{t0+1}
    v_and_b32 v19, 3, v1
    v_lshl_add_u32 v{vWoG}, v19, 4, v18
    s_mul_i32 s{sWst}, s{sH}, {WSL*1024}
    s_add_u32 s{sWst}, s{sWst}, {WST}
    v_lshrrev_b32 v22, 5, v1
    v_lshlrev_b32 v20, 2, v22
    v_bfe_u32 v21, v1, 2, 2
    v_add_u32 v20, v20, v21
    v_lshl_add_u32 v20, v20, 6, s{sWst}
    v_lshl_add_u32 v20, v19, 3, v20
    v_bfe_u32 v21, v1, 4, 1
    v_lshl_add_u32 v{vWoL}, v21, 5, v20
    s_lshr_b32 s{t0+1}, s{sRB}, 3
    s_lshl4_add_u32 s{t0+1}, s{t0+1}, s{t0}
    s_add_u32 s{t0+1}, s{t0+1}, {F3}
    s_lshl_b32 s{t0+1}, s{t0+1}, {FSH}
    v_mov_b32 v{vF3P}, s{t0+1}
    s_lshl_b32 s{t0}, s{t0}, 5
    v_and_b32 v18, 31, v1
    s_lshl_b32 s{t0+1}, s{sRB}, 2
    s_add_u32 s{t0+1}, s{t0+1}, s{sRT}
    s_lshl_b32 s{t0+2}, s{t0+1}, 15
    s_lshl_b32 s{t0+3}, s{t0}, 6
    s_add_u32 s{t0+3}, s{t0+3}, s{t0+2}
    s_add_u32 s{t0+3}, s{t0+3}, {WS_AT}
    v_lshlrev_b32 v20, 8, v22
    v_lshl_add_u32 v20, v18, 1, v20
    v_add_u32 v{vAL}, s{t0+3}, v20
    s_lshl_b32 s{t0}, s{t0}, 1
    s_add_u32 s{sOut}, s{t0}, s{t0+2}
    """.split("\n")
    ADDR += f"""
    s_lshl_b32 s{t0}, s{sRB}, 2
    s_add_u32 s{t0}, s{t0}, s{sH}
    s_lshl_b32 s{t0}, s{t0}, 8
    s_lshl_b32 s{t0+1}, s{sHP}, 17
    s_add_u32 s{t0}, s{t0}, s{t0+1}
    s_add_u32 s{t0}, s{t0}, {WS_UT}
    v_and_b32 v18, 15, v1
    v_lshl_add_u32 v18, v18, 4, s{t0}
    v_lshrrev_b32 v19, 4, v1
    v_lshl_add_u32 v{vTS}, v19, 14, v18
    v_add_u32 v{vTS+1}, 0x10000, v{vTS}
    v_and_b32 v18, 15, v1
    v_lshlrev_b32 v{vRdy}, 2, v18
    s_lshl_b32 s{t0}, s{sHP}, 4
    v_add_u32 v19, s{t0}, v18
    v_lshlrev_b32 v{vF1P}, {FSH}, v19
    s_add_u32 s{t0}, s{t0}, s{sRB}
    s_lshr_b32 s{t0+1}, s{t0}, 2
    s_add_u32 s{t0+1}, s{t0+1}, {F4}
    s_lshl_b32 s{t0+1}, s{t0+1}, {FSH}
    v_mov_b32 v{vF4}, s{t0+1}
    s_lshl2_add_u32 s{t0+1}, s{sHP}, s{sH}
    s_add_u32 s{t0+1}, s{t0+1}, {F4}
    s_lshl_b32 s{t0+1}, s{t0+1}, {FSH}
    v_mov_b32 v{vF4P}, s{t0+1}
    s_lshl_b32 s{t0}, s{t0}, {FSH}
    v_mov_b32 v{vF1}, s{t0}
    v_and_b32 v18, 31, v1
    v_lshlrev_b32 v18, 5, v18
    v_lshrrev_b32 v19, 5, v1
    v_lshl_add_u32 v19, v19, 2, v18
    s_lshl_b32 s{t0}, s{sH}, 3
    s_add_u32 s{t0}, s{t0}, {GP}
    v_add_u32 v{vGPw}, s{t0}, v19
    v_add_u32 v{vGPr}, {GP}, v18
    s_lshr_b32 s{t0}, s2, 3
    s_lshl_b32 s{t0}, s{t0}, 2
    s_add_u32 s{t0}, s{t0}, s{sH}
    s_lshl_b32 s{t0}, s{t0}, 12
    s_lshr_b32 s{t0+1}, s{sCB}, {LOH-1}
    s_lshl_b32 s{t0+1}, s{t0+1}, {7+LOH}
    s_add_u32 s{t0}, s{t0}, s{t0+1}
    v_bfe_u32 v18, v1, {LOH}, 2
    v_lshl_add_u32 v18, v18, 10, s{t0}
    v_and_b32 v19, {(1<<LOH)-1}, v1
    v_lshl_add_u32 v{vWoP}, v19, 7, v18
    """.split("\n") + [f"v_mov_b32 v{vA+j}, 0" for j in range(16)]
    ADDR += f"""
    s_mul_i32 s{t0}, s{sC}, {2*KGS}
    v_lshrrev_b32 v18, 1, v1
    v_mul_u32_u24 v18, {KCP}, v18
    v_and_b32 v19, 1, v1
    v_cmp_eq_u32 {sr(sPar,2)}, 1, v19
    v_lshlrev_b32 v19, 4, v19
    v_add3_u32 v{vPad}, v18, v19, s{t0}
    s_lshl_b32 s{t0+1}, s{sMH}, 10
    s_add_u32 s{t0}, s{t0}, s{t0+1}
    s_add_u32 s{t0}, s{t0}, {KG+32}
    v_lshl_add_u32 v{vKW}, v1, 4, s{t0}
    s_lshl_b32 s{t0}, s{sH}, 12
    s_add_u32 s{t0}, s{t0}, {CRED+2048}
    v_lshl_add_u32 v{vNb}, v1, 3, s{t0}
    """.split("\n") + [f"v_add_u32 v{vKW+3*c+u}, {c*KCP+u*1024}, v{vKW}" for c in range(4) for u in range(3) if c or u]
    if OPT["wp"]:
        ADDR += f"""
        s_lshl1_add_u32 s{t0}, s{sCB}, s{sC}
        s_lshl_b32 s{t0}, s{t0}, 7
        s_lshl_b32 s{t0+1}, s{sMH}, 13
        s_add_u32 s{t0}, s{t0}, s{t0+1}
        v_lshrrev_b32 v18, 3, v1
        v_lshl_add_u32 v18, v18, 10, s{t0}
        v_lshrrev_b32 v19, 2, v1
        v_and_b32 v19, 4, v19
        v_xor_b32 v19, v19, v1
        v_and_b32 v19, 7, v19
        v_lshl_add_u32 v{vWoG}, v19, 4, v18
        v_lshrrev_b32 v18, 5, v1
        v_bfe_u32 v19, v1, 2, 2
        v_lshl_add_u32 v18, v18, 2, v19
        v_lshlrev_b32 v18, 7, v18
        v_bfe_u32 v19, v1, 3, 1
        v_xor_b32 v19, s{sMH}, v19
        v_lshl_add_u32 v18, v19, 6, v18
        v_bfe_u32 v19, v1, 4, 1
        v_lshl_add_u32 v18, v19, 5, v18
        v_and_b32 v19, 3, v1
        v_lshl_add_u32 v18, v19, 3, v18
        s_mul_i32 s{sWs2}, s{sC}, {2*KGS}
        v_add_u32 v{vWoL2}, s{sWs2}, v18
        s_lshl_b32 s{sWst}, s{sC}, 14
        s_add_u32 s{sWst}, s{sWst}, {WST}
        v_add_u32 v{vWoL}, s{sWst}, v18
        s_lshl_b32 s{t0}, s{sMH}, 10
        s_add_u32 s{sWst}, s{sWst}, s{t0}
        s_add_u32 s{sWs2}, s{sWs2}, s{t0}
        """.split("\n")
    assert KG == 0
    ADDR = [x.strip() for x in ADDR if x.strip()]
    def GATEF():
        E("s_waitcnt lgkmcnt(0)")
        for j in range(4):
            E(f"v_dot2_f32_bf16 v{vG}, v{vXF+j}, v{vGW+j}, v{vG}")
        E(f"s_nop 2\nds_write_b32 v{vGPw}, v{vG}")
    def SIG():
        E(f"""
        ds_read_b128 v[4:7], v{vGPr}
        ds_read_b128 v[8:11], v{vGPr} offset:16
        s_waitcnt lgkmcnt(0)
        v_add_f32 v4, v4, v5
        v_add_f32 v6, v6, v7
        v_add_f32 v8, v8, v9
        v_add_f32 v10, v10, v11
        v_add_f32 v4, v4, v6
        v_add_f32 v8, v8, v10
        v_add_f32 v4, v4, v8
        v_mul_f32 v4, {fbits(-log2e)}, v4
        v_exp_f32 v4, v4
        s_nop 0
        v_add_f32 v4, 1.0, v4
        v_rcp_f32 v{vg}, v4
        s_nop 0
        v_sub_f32 v{vomg}, 1.0, v{vg}
        """)
    def KD():
        E("s_setprio 0\ns_waitcnt lgkmcnt(0)")
        for s in range(8):
            E(f"v_mfma_f32_32x32x16_bf16 {vr(vD,16)}, {vr(vGF+4*s,4)}, {vr(vEF+4*s,4)}, {'0' if s == 0 else vr(vD,16)}")
        E(f"s_setprio {OPT['prio']}")
        l1 = newlab("k1"); l2 = newlab("k2")
        R = 64
        def xch(send, keep, n):
            E(f"ds_write_b128 v{vCW}, {vr(send,4)}\nds_write_b128 v{vCW}, {vr(send+4,4)} offset:1024")
            lds_arrive(vCP, vOne)
            lds_wait(vCP, vTm, 2)
            E(f"ds_read_b128 {vr(R,4)}, v{vCR}\nds_read_b128 {vr(R+4,4)}, v{vCR} offset:1024\ns_waitcnt lgkmcnt(0)")
            for j in range(n): E(f"v_add_f32 v{R+j}, v{R+j}, v{keep+j}")
        def w2(c, u, r):
            E(f"ds_write2_b32 v{vKW+3*c+u}, v{r[0]}, v{r[1]} offset0:0 offset1:1\nds_write2_b32 v{vKW+3*c+u}, v{r[2]}, v{r[3]} offset0:2 offset1:3")
        E(f"s_nop 8\ns_cmp_eq_u32 s{sMH}, 0\ns_cbranch_scc0 {l1}")
        xch(vD + 8, vD, 8)
        e, o = 72, 80
        E(f"""
        s_mov_b64 exec, 0xff
        ds_write_b128 v{vPad}, v[12:15]
        s_mov_b64 exec, 1
        v_add_f32 v{R}, s{sDs}, v{R}
        s_mov_b64 exec, -1
        """)
        for j in range(4): E(f"v_cvt_pk_bf16_f32 v{e+j}, v{R+2*j}, v{R+2*j+1}")
        E(f"""
        v_cvt_pk_bf16_f32 v{o+6}, v{R+7}, v{R+7}
        ds_write2_b32 v{vNb}, v{o+6}, v{o+6} offset0:2 offset1:3
        ds_write_b64 v{vNb}, {vr(e,2)}
        ds_read_b64 {vr(e+4,2)}, v{vNb} offset:8
        ds_write_b128 v{vKW}, {vr(e,4)}
        s_waitcnt lgkmcnt(1)
        """)
        for j in range(5): E(f"v_alignbit_b32 v{o+j}, v{e+j+1}, v{e+j}, 16")
        E(f"ds_write_b128 v{vKW+3}, {vr(o,4)}")
        w2(2, 0, [e + 1, e + 2, e + 3, e + 4]); w2(3, 0, [o + 1, o + 2, o + 3, o + 4])
        E(f"""
        s_mov_b64 exec, 1
        v_lshlrev_b32 v{o+6}, 16, v{e}
        ds_write_b32 v{vPad}, v{o+6} offset:{28+KCP}
        ds_write_b32 v{vPad}, v{e} offset:{28+2*KCP}
        ds_write_b32 v{vPad}, v{o+6} offset:{24+3*KCP}
        ds_write_b32 v{vPad}, v{o} offset:{28+3*KCP}
        s_mov_b64 exec, -1
        s_branch {l2}
        {l1}:
        """)
        xch(vD, vD + 8, 7)
        aa, ab, bb, bc, cc = range(72, 77)
        for d, x, y in ((aa, 0, 0), (ab, 0, 1), (bb, 1, 1), (bc, 1, 2), (cc, 2, 2)):
            E(f"v_cvt_pk_bf16_f32 v{d}, v{R+x}, v{R+y}")
        for c, r in enumerate(([aa, ab, bb, cc], [aa, bb, bc, cc], [ab, bb, cc, cc], [bb, bc, cc, cc])): w2(c, 0, r)
        for u in (1, 2):
            a_, c_ = R + 1 + 2 * u, R + 2 + 2 * u
            sel, aa, as_, sc, cc = range(72 + 5 * u, 77 + 5 * u)
            E(f"v_cndmask_b32 v{sel}, v{a_}, v{c_}, {sr(sPar,2)}")
            for d, x, y in ((aa, a_, a_), (cc, c_, c_), (as_, a_, sel), (sc, sel, c_)):
                E(f"v_cvt_pk_bf16_f32 v{d}, v{x}, v{y}")
            for c, r in enumerate(([aa, aa, sc, cc], [aa, as_, cc, cc], [aa, sc, cc, cc], [as_, cc, cc, cc])): w2(c, u, r)
        E(f"{l2}:")
    def gate_glue(i):
        if i != OPT["sq"] + 1: E("s_waitcnt lgkmcnt(0)")
        if OPT.get("hst"): stamp("h")
        E("s_barrier")
        if i == 1:
            lq = newlab("nr")
            E(f"""
            s_cmp_eq_u32 s{sLead}, 7
            s_cbranch_scc0 {lq}
            s_mul_i32 s{sSPIN}, s2, 40
            v_add_lshl_u32 v10, v1, s{sSPIN}, {FSH}
            s_bfm_b64 exec, 40, 0
            global_store_dword v10, v12, {sr(pFL,2)} sc1
            s_mov_b64 exec, -1
            {lq}:
            """)
        if i == OPT["rdyw"]:
            lq = newlab("nr")
            E(f"""
            s_cmp_eq_u32 s{sLead}, 7
            s_cbranch_scc0 {lq}
            s_lshl_b32 s{sSPIN}, s2, 2
            v_mov_b32 v10, s{sSPIN}
            v_mov_b32 v11, 1
            s_waitcnt vmcnt(0)
            """)
            put_flag(10, 11, pDbg)
            E(f"{lq}:")
        if i >= 1:
            for j in range(4):
                E(f"v_dot2_f32_bf16 v{vG}, v{vXF+j}, v{vGW+j}, v{vG}")
        slot = i % NS
        E(f"ds_read_b128 {vr(vXF,4)}, v{vGA0} offset:{slot*SLOT}")
        E(f"ds_read_b128 {vr(vGW,4)}, v{vGWA} offset:{128*i}")
        E(f"""
        s_cmp_eq_u32 s{sUW}, {i}
        s_cbranch_scc0 L_ut{i}
        ds_read_b64_tr_b16 {vr(vU,2)}, v{vTA}
        ds_read_b64_tr_b16 {vr(vU+2,2)}, v{vTA+3}
        ds_read_b64_tr_b16 {vr(vU+4,2)}, v{vTA+1}
        ds_read_b64_tr_b16 {vr(vU+6,2)}, v{vTA+2}
        L_ut{i}:
        """)
        if i == OPT["sq"]:
            E(f"""
            s_lshr_b32 s{t0}, s2, 3
            s_lshl2_add_u32 s{t0}, s{t0}, s{sH}
            s_mul_i32 s{t0}, s{t0}, 12288
            s_lshr_b32 s{t0+1}, s{sHP}, 2
            s_lshl_b32 s{t0+1}, s{t0+1}, 8
            s_add_u32 s{t0}, s{t0}, s{t0+1}
            s_add_u32 s8, s{pW}, s{t0}
            s_addc_u32 s9, s{pW+1}, 0
            s_waitcnt lgkmcnt(0)
            """)
            for j in range(8):
                E(f"s_load_dwordx2 s[{18+2*(j%4)}:{19+2*(j%4)}], s[8:9], {(j>>1)*3072+(j&1)*128+60}")
    C("""addresses of all later phases; dt = bf16(exp(log_dt))""")
    E(ADDR); E(KPRE)
    C("""---- S4 kernel: K(hi + 8j) = Re sum_n G_n(hi) E_n(8j), E(x) = exp(dt A x), G = C dt B E, lane = mode n.
The lag is rounded to bf16 as in the reference, so 27 values of hi cover all lags.
Between the ring barriers: gate dot products and the transposed piece of u; 16 workgroups clear the hand-off counters.""")
    tot = sum(c for c, _ in K); nw = OPT["kw"]
    segs = [[] for _ in range(8)]; acc = 0
    kp = tot * OPT["kp"] / 100; k0 = kp + tot * OPT["k0"] / 100
    for c, x in K:
        if acc < kp: E(x)
        elif acc < k0: segs[0].append(x)
        else: segs[1 + min(nw - 2, int((acc - k0) * (nw - 1) / (tot - k0)))].append(x)
        acc += c
    for i in range(8):
        gate_glue(i)
        if not OPT.get("nokg"): E(segs[i])
    stamp("h")
    GATEF()
    E(f"global_load_dword v{vTm}, v{vRdy}, {sr(pDbg,2)} sc1")
    E(f"s_setprio {OPT['prioq']}\ns_waitcnt lgkmcnt(0)\ns_barrier")
    stamp("h")
    lq = newlab("nf"); lr = newlab("rdy")
    LATE = OPT["ackr"] <= 0
    assert LATE or OPT["q3"] < 8
    SIG()
    if OPT["q3"] < 4: E("s_barrier")
    if LATE: E("s_barrier")
    E(f"s_setprio {OPT['prio']}\ns_waitcnt vmcnt(0)\ns_barrier")
    stamp("h")
    C("""---- K / V hand-off: counters are used only after all 16 clears were announced in d_debug""")
    E(f"s_cmp_lg_u32 s{sH}, 1")
    E(f"""
    s_cbranch_scc1 {lq}
    v_cmp_ne_u32 vcc, 0, v{vTm}
    s_nop 1
    s_cmp_eq_u64 vcc, -1
    s_cbranch_scc1 {lr}
    """)
    poll_global(vRdy, pDbg, vTm)
    E(f"{lr}:")
    add_ctr(vF1P, vOne, 16)
    if OPT["e1"]:
        assert not OPT["hs"]
        if OPT["e1"] == 2: E("s_waitcnt vmcnt(0)")
        E(f"v_mov_b32 v4, 0\ns_mov_b64 exec, 1\nglobal_atomic_add v4, v{vF1}, v4, {sr(pFL,2)} sc0 sc1\ns_mov_b64 exec, -1")
    E(f"{lq}:")
    uts = f"""
    global_store_dwordx4 v{vTS}, {vr(vU,4)}, {sr(pWs,2)} sc1
    global_store_dwordx4 v{vTS+1}, {vr(vU+4,4)}, {sr(pWs,2)} sc1
    """
    if OPT["utp"] == 1: E(uts)
    if not LATE: E("s_barrier")
    lq = newlab("nf")
    E(f"s_cmp_lg_u32 s{sH}, 1\ns_cbranch_scc1 {lq}")
    poll_ctr(vF1, 4, lambda r: [f"s_cmp_eq_u32 s{r}, 16"], OPT["pd"], min(1, OPT["e1"]))
    E(f"{lq}:")
    E("s_setprio 0\ns_barrier")
    stamp("h")
    C("""---- publish u^T; transpose E / G through LDS, sum the modes on the matrix core, build 4 shifted copies of K (+ Dskip)""")
    if OPT["utp"] == 2:
        D1(); E("s_waitcnt lgkmcnt(0)"); E(uts); D2()
        E("s_waitcnt vmcnt(0)")
        add_ctr(vF4, vOne, 1)
        KD()
    elif OPT["utp"] == 3:
        E(f"global_load_dword v{vTm}, v{vRdy}, {sr(pDbg,2)} sc1\ns_waitcnt vmcnt(0)")
        E(uts); D1(); D2()
        E("s_waitcnt vmcnt(0)")
        add_ctr(vF4, vOne, 1)
        KD()
    else:
        if OPT["utp"] == 0: E(uts)
        E("s_waitcnt vmcnt(0)")
        add_ctr(vF4, vOne, 1)
        if OPT["utp"] == 1: E("s_waitcnt vmcnt(0)")
        D1(); D2(); KD()
    if OPT["wopf"] == 2:
        E(f"""
        s_lshr_b32 s{t0}, s2, 3
        s_lshl2_add_u32 s{t0}, s{t0}, s{sH}
        s_lshl_b32 s{t0}, s{t0}, 12
        s_add_u32 s8, s{pWo}, s{t0}
        s_addc_u32 s9, s{pWo+1}, 0
        """)
        for j in range(32):
            E(f"s_load_dwordx2 s[{18+2*(j%4)}:{19+2*(j%4)}], s[8:9], {j*128+60}")
    poll_ctr(vF4P, vTm, lambda r: [f"s_cmp_eq_u32 s{r}, 16"])
    E(f"""
    global_load_dwordx4 v[12:15], v{vUL}, {sr(pWs,2)} sc1
    global_load_dwordx4 v[16:19], v{vUL}, {sr(pWs,2)} offset:2048 sc1
    s_waitcnt vmcnt(0)
    ds_write_b128 v{vUW}, v[12:15] offset:512
    ds_write_b128 v{vUW}, v[16:19]
    """)
    lds_arrive(vCA, vOne)
    lds_wait(vCA, vTm, 4 + 4 * OPT["hs"])
    stamp("h")
    vY = 64
    vF = [96, 192]
    def creads(r):
        f = vF[r & 1]; o = []
        for gmm in range(8):
            o.append(f"ds_read_b64 {vr(f+4*gmm,2)}, v{vAA} offset:{512*gmm+64*r}")
            o.append(f"ds_read_b64 {vr(f+4*gmm+2,2)}, v{vAA} offset:{512*gmm+64*r+8}")
            o.append(f"ds_read_b128 {vr(f+32+4*gmm,4)}, v{vBA} offset:{3584-512*gmm+64*r}")
        return o
    C("""---- causal convolution as Toeplitz MFMAs: y[16a+b] += K[32c-15+b+k] u[16a-32c+15-k]""")
    E(creads(0))
    E(f"s_setprio {OPT.get('prio3', OPT['prio'])}")
    for r in range(4):
        f = vF[r & 1]
        nxt = creads(r + 1) if r < 3 else []
        if r == 2 and OPT["wopf"] == 1:
            E(f"s_bfm_b64 exec, {4<<LOH}, 0\nglobal_load_dword v20, v{vWoP}, {sr(pWo,2)}\ns_mov_b64 exec, -1")
        E("s_waitcnt lgkmcnt(0)")
        seen = set()
        for gmm in range(8):
            for dl in range(8 - gmm):
                tau = gmm + dl
                c = "0" if (r == 0 and tau not in seen) else vr(vY + 4 * tau, 4)
                seen.add(tau)
                if not OPT.get("noconv") or (OPT["noconv"] == 2 and gmm < 2): E(f"v_mfma_f32_16x16x32_bf16 {vr(vY+4*tau,4)}, {vr(f+4*gmm,4)}, {vr(f+32+4*dl,4)}, {c}")
                if nxt: E(nxt.pop(0))
    E(f"s_setprio {OPT['prio']}")
    l1 = newlab("c1"); l2 = newlab("c2")
    E(f"s_nop 5\ns_cmp_eq_u32 s{sMH}, 0\ns_cbranch_scc0 {l1}")
    def conv_fin(send, keep):
        for j in range(4):
            E(f"ds_write_b128 v{vCW}, {vr(send+4*j,4)} offset:{1024*j}")
        lds_arrive(vCP, vOne)
        lds_wait(vCP, vTm, 4)
        for j in range(4):
            E(f"ds_read_b128 {vr(96+4*j,4)}, v{vCR} offset:{1024*j}")
        E("s_waitcnt lgkmcnt(0)")
        for j in range(16):
            E(f"v_add_f32 v{96+j}, v{keep+j}, v{96+j}")
    conv_fin(vY + 16, vY)
    E(f"s_branch {l2}\n{l1}:")
    conv_fin(vY, vY + 16)
    E(f"{l2}:")
    for j in range(4):
        E(f"v_cvt_pk_bf16_f32 v{112+2*j}, v{96+4*j}, v{97+4*j}\nv_cvt_pk_bf16_f32 v{113+2*j}, v{98+4*j}, v{99+4*j}")
        if OPT["atr"]:
            E(f"ds_write_b64 v{vATW}, {vr(112+2*j,2)} offset:{512*j}")
            continue
        E(f"global_store_dwordx2 v{vAT}, {vr(112+2*j,2)}, {sr(sAT,2)} sc1")
        if j < 3: E(f"s_add_u32 s{sAT}, s{sAT}, {8*32768}\ns_addc_u32 s{sAT+1}, s{sAT+1}, 0")
    if OPT["atr"]:
        E(f"""
        ds_read_b128 v[96:99], v{vCR}
        ds_read_b128 v[100:103], v{vCR} offset:1024
        s_waitcnt lgkmcnt(1)
        global_store_dwordx4 v{vAT}, v[96:99], {sr(sAT,2)} sc1
        s_add_u32 s{sAT}, s{sAT}, {16*32768}
        s_addc_u32 s{sAT+1}, s{sAT+1}, 0
        s_waitcnt lgkmcnt(0)
        global_store_dwordx4 v{vAT}, v[100:103], {sr(sAT,2)} sc1
        """)
    E("s_waitcnt vmcnt(0)")
    add_ctr(vF3, vOne, 1)
    stamp("h")
    C("""---- W_o slice (32 columns per wave) into registers""")
    vWo = 128
    sO = t0 + 2
    WD = OPT["wod"]
    if OPT["wp"] and not OPT.get("nowo"):
        def wiss(b, j):
            if j >= WD: E(f"s_waitcnt vmcnt({WD-1})")
            E(f"s_add_u32 m0, s{sWs2 if b & 1 else sWst}, {2048*j}\ns_mov_b32 s{sO}, {(8*b+j)*16384}")
            E(f"buffer_load_dwordx4 v{vWoG}, {sr(SRDW,4)}, s{sO} offen lds")
        if OPT["lp"]: E("s_setprio 0")
        for j in range(8): wiss(0, j)
        for b in range(4):
            E("s_waitcnt vmcnt(0) lgkmcnt(0)")
            if OPT["lp"]: E(f"s_setprio {OPT['prio']}")
            lds_arrive(vCP, vOne); lds_wait(vCP, vTm, 6 + 2 * b)
            if OPT["lp"]: E("s_setprio 0")
            for j in range(8):
                if b < 3: wiss(b + 1, j)
                a = vWoL2 if b & 1 else vWoL
                E(f"ds_read_b64_tr_b16 {vr(vWo+4*(8*b+j),2)}, v{a} offset:{2048*j}")
                E(f"ds_read_b64_tr_b16 {vr(vWo+4*(8*b+j)+2,2)}, v{a} offset:{2048*j+1024}")
        if OPT["lp"]: E(f"s_setprio {OPT['prio']}")
    if OPT["lp"] and not OPT["wp"]: E("s_setprio 0")
    for hd in range(0 if OPT.get("nowo") or OPT["wp"] else 32 + WD):
        if hd < 32:
            if hd % 4 == 0: E(f"s_add_u32 m0, s{sWst}, {(hd%WSL)*1024}")
            E(f"s_mov_b32 s{sO}, {hd*16384-(hd%4)*1024}")
            E(f"buffer_load_dwordx4 v{vWoG}, {sr(SRDW,4)}, s{sO} offen offset:{(hd%4)*1024} lds")
        r = hd - WD
        if r >= 0:
            E(f"s_waitcnt vmcnt({min(WD, 31-r)}) lgkmcnt(8)")
            E(f"ds_read_b64_tr_b16 {vr(vWo+4*r,2)}, v{vWoL} offset:{1024*(r%WSL)}")
            E(f"ds_read_b64_tr_b16 {vr(vWo+4*r+2,2)}, v{vWoL} offset:{1024*(r%WSL)+512}")
    E("s_waitcnt lgkmcnt(0)")
    if OPT["lp"] and not OPT["wp"]: E(f"s_setprio {OPT['prio']}")
    stamp("h")
    if OPT["clo"] & 1:
        E(f"s_bfm_b64 exec, 32, 0\nglobal_store_dword v{vClO}, v{vOne}, {sr(pWs,2)} sc1\ns_mov_b64 exec, -1")
    if OPT["clo"] & 2:
        E(f"s_bfm_b64 exec, 32, 0\nglobal_store_dword v{vOut}, v{vOne}, {sr(pOut,2)} sc1\ns_mov_b64 exec, -1")
    C("""---- a = y + u Dskip for my 32 x 32 output tile""")
    poll_ctr(vF3P, vTm, lambda r: [f"s_cmp_eq_u32 s{r}, 32"])
    if OPT["lp"]: E("s_setprio 0")
    for r in range(16):
        if r >= OPT["ad"]: E(f"s_waitcnt vmcnt({OPT['ad']-1})")
        E(f"global_load_short_d16_hi v{vA+r}, v{vAL}, {sr(pWs,2)} offset:{(8*(r>>2)+(r&3))*64} sc1")
    if OPT["hop"]: E("s_mov_b64 exec, 0\ns_branch L_hop0\nL_hopdone:\ns_mov_b64 exec, -1")
    sTodo, sId = t0, t0 + 2
    E(f"s_mov_b32 s{sTodo}, 0x01010101\ns_mov_b32 s{sSPIN}, {OPT['spin']*8}\ns_waitcnt vmcnt(0) lgkmcnt(0)")
    stamp("h")
    lq = newlab("nf")
    if OPT["pw"]:
        E("s_setprio 0\ns_barrier")
    else:
        E(f"s_barrier\ns_cmp_lg_u32 s{sH}, 0\ns_barrier\ns_cbranch_scc1 {lq}")
        add_ctr(vF2, vF2v, 16)
        E(f"{lq}:\ns_setprio 0")
    stamp("h")
    for r in range(16):
        E(f"v_mul_f32 v{vA+r}, v{vg}, v{vA+r}")
    vTW, vTR, vOu2 = 4, 5, 6
    if OPT["otr"]: E(f"""
    s_mul_i32 s{sId}, s{sH}, 2560
    v_and_b32 v7, 31, v1
    v_mul_u32_u24 v7, 80, v7
    v_lshrrev_b32 v{vTW}, 5, v1
    v_lshlrev_b32 v{vTW}, 3, v{vTW}
    v_add3_u32 v{vTW}, v{vTW}, v7, s{sId}
    v_lshrrev_b32 v7, 2, v1
    v_lshl_add_u32 v{vOut}, v7, 10, s{sOut}
    v_mul_u32_u24 v7, 80, v7
    v_and_b32 v{vTR}, 3, v1
    v_lshlrev_b32 v{vTR}, 4, v{vTR}
    v_add_u32 v{vOut}, v{vOut}, v{vTR}
    v_add_u32 v{vOu2}, 0x4000, v{vOut}
    v_add3_u32 v{vTR}, v{vTR}, v7, s{sId}
    """)
    vB = 64; vAc = [96, 112, 8, 24]
    def ord_(j): return f"ds_read_b128 {vr(vB+4*j,4)}, v{vON} offset:{1024*j}"
    def pick(skip):
        return [f"v_readfirstlane_b32 s{sId}, v{vTm}", "s_nop 0", f"s_and_b32 s{sId}, s{sId}, s{sTodo}", f"s_cbranch_scc0 {skip}",
                f"s_ff1_i32_b32 s{sId}, s{sId}", f"v_lshl_add_u32 v{vON}, s{sId}, 10, v{vOL}"] + [ord_(j) for j in range(4)]
    E(hop())
    C("""---- output projection, one group of 8 heads at a time in arrival order, one accumulator per group""")
    E(f"""
    L_fwait:
    ds_read_b32 v{vTm}, v{vCA} offset:12
    s_sub_u32 s{sSPIN}, s{sSPIN}, 1
    s_cbranch_scc1 L_fend
    s_waitcnt lgkmcnt(0)
    """)
    E(pick("L_fwait"))
    E("L_fdisp:")
    E([ord_(j) for j in range(4, 8)])
    E(f"""
    ds_read_b32 v{vTm}, v{vCA} offset:12
    s_bitset0_b32 s{sTodo}, s{sId}
    s_cmp_eq_u32 s{sId}, 8
    s_cbranch_scc1 L_fb1
    s_cmp_eq_u32 s{sId}, 16
    s_cbranch_scc1 L_fb2
    s_cmp_eq_u32 s{sId}, 24
    s_cbranch_scc1 L_fb3
    """)
    for c in range(4):
        E(f"L_fb{c}:")
        for j in range(8):
            if j <= 4: E(f"s_waitcnt lgkmcnt({8-j if j < 4 else 0})")
            E(f"v_mfma_f32_32x32x16_bf16 {vr(vAc[c],16)}, {vr(vWo+4*(8*c+j),4)}, {vr(vB+4*j,4)}, {vr(vAc[c],16) if j else 0}")
            if j in (0, 5): E(hop())
            if j == 4:
                E(pick(f"L_fs{c}"))
                E(f"L_fs{c}:")
        E("s_cbranch_scc1 L_fdisp")
        if c < 3: E("s_branch L_fnext")
    E(f"""
    L_fnext:
    s_cmp_lg_u32 s{sTodo}, 0
    s_cbranch_scc1 L_fwait
    L_fend:
    """)
    stamp("h")
    E("s_nop 8")
    C("""---- out = g a + (1 - g) b""")
    assert vomg % 2 == 0
    fl = ["", "sc1", "nt", "sc0 sc1", "sc1 nt"][OPT["outsc"]]
    for hf in (0, 8):
        for x, y in ((0, 1), (2, 3), (0, 2)):
            for r in range(hf, hf + 8, 2):
                E(f"v_pk_add_f32 {vr(vAc[x]+r,2)}, {vr(vAc[x]+r,2)}, {vr(vAc[y]+r,2)}")
        for r in range(hf, hf + 8, 2):
            E(f"v_pk_fma_f32 {vr(vAcc+r,2)}, {vr(vAcc+r,2)}, {vr(vomg,2)}, {vr(vA+r,2)} op_sel_hi:[1,0,1]")
        p = vB + hf // 2
        if OPT["otr"]:
            for j in range(4):
                E(f"v_cvt_pk_bf16_f32 v{p+j}, v{vAcc+hf+2*j}, v{vAcc+hf+2*j+1}")
                if j & 1: E(f"ds_write_b64 v{vTW}, {vr(p+j-1,2)} offset:{4*hf+8*(j-1)}")
            continue
        for j in (0, 2, 1, 3):
            E(f"v_cvt_pk_bf16_f32 v{p+j}, v{vAcc+hf+2*j}, v{vAcc+hf+2*j+1}")
        E(f"v_permlane32_swap_b32 v{p}, v{p+2}")
        E(hop() or ["s_nop 0"])
        E(f"v_permlane32_swap_b32 v{p+1}, v{p+3}")
        E(f"global_store_dwordx4 v{vOut}, {vr(p,4)}, {sr(pOut,2)} offset:{4*hf} {fl}")
    if OPT["otr"]:
        E(f"""
        ds_read_b128 {vr(vB+8,4)}, v{vTR}
        ds_read_b128 {vr(vB+12,4)}, v{vTR} offset:1280
        s_waitcnt lgkmcnt(1)
        global_store_dwordx4 v{vOut}, {vr(vB+8,4)}, {sr(pOut,2)} {fl}
        s_waitcnt lgkmcnt(0)
        global_store_dwordx4 v{vOu2}, {vr(vB+12,4)}, {sr(pOut,2)} {fl}
        """)
    stamp("h")
    if STAMP:
        E("s_waitcnt vmcnt(0)"); stamp("h")
    stamp_flush("h"); spin_end("h")
    E("s_endpgm")

hdr = open(f"cdna_kernels/{NAME}.s.ref").read().split("; Override launch")[0]
prologue(); main_wave()
if OPT['lay']: helper_wave()
E("L_end:\ns_endpgm")
out = hdr + f"""; One persistent launch: 256 workgroups (one per CU) x 8 waves; hand-offs through d_ws with bounded waits.
; @launch grid=(256,1,1) block=(512,1,1) lds={LDS_BYTES}
.amdgcn_target "amdgcn-amd-amdhsa--gfx950"
.text
.globl {NAME}_kernel
{".p2align 12" if OPT["al"] else ""}
.p2align 8
.type {NAME}_kernel,@function
{NAME}_kernel:
""" + "\n".join(L) + f"""
.section .rodata,"a"
.p2align 6
.amdhsa_kernel {NAME}_kernel
  .amdhsa_next_free_vgpr 256
  .amdhsa_next_free_sgpr 102
  .amdhsa_accum_offset 256
  .amdhsa_group_segment_fixed_size 0
  .amdhsa_kernarg_size 128
  .amdhsa_user_sgpr_count 2
  .amdhsa_user_sgpr_kernarg_segment_ptr 1
  .amdhsa_system_sgpr_workgroup_id_x 1
.end_amdhsa_kernel
"""
open(sys.argv[1], "w").write(out)
```

```python
import sys, math, struct

NAME = "gated_mix__ssm_conv_s4__mha_block__prompt"
OPT = dict(stamp=0, rot=5, fs=256, spin=200000, prio=2, outsc=1, prio3=0, pf=1, tlb=0, wod=2, wopf=1, prioq=0, lq=7, epc=16, ackn=22,
           d1=3, d1w=4, kw=7, clo=0, rdyw=3, xm=2, fm=1, bp=2, hop=0, ep=1, pd=1, psl=3, hs=0, e1=1, pw=1, utp=2, pre=1, q3=0, a0=0, ackr=10, otr=1, al=1, lay=2, xf=0, co=1, seq=1, kp=30, k0=70, kds=0, pk=1, atr=1, wp=0, ad=8, lp=1, sep=0, m16=1, pg=9, sq=9, q2=1, hsp=2)
for a in sys.argv[2:]:
    k, v = a.split("=")
    OPT[k] = int(v)
assert OPT['atr'] and OPT['otr'] and OPT['pw'] and OPT['co'] and not OPT['clo']
STAMP = OPT["stamp"]
FS = OPT["fs"]
FSH = int(math.log2(FS))

L = []
def E(s):
    if isinstance(s, list): s = "\n".join(s)
    for x in s.split("\n"):
        x = x.strip()
        if x:
            L.append(("" if x.endswith(":") else "    ") + x)
def C(s):
    for x in s.strip("\n").split("\n"): L.append("; " + x.strip())
def fbits(x): return "0x%08x" % struct.unpack("<I", struct.pack("<f", x))[0]
def vr(a, n): return f"v[{a}:{a+n-1}]"
def sr(a, n): return f"s[{a}:{a+n-1}]"

WS_KV = 0
WS_OF = 4 << 20
WS_AT = 6 << 20
WS_FL = 8 << 20
WS_UT = 10 << 20
WS_ST = 16 << 20
F1, F2 = 0, 256
F3, F4 = 512, 544
KG = 0; KGS = 8704
KCP = 4160
UR = KG + 4 * KGS; URS = 4576
GP = UR + 2 * URS
GW = GP + 1024
CNT = GW + 2048
RING = CNT + 64
SLOT = 24576; WPART = 6144; NS = 3
WQ = RING + NS * SLOT
LDS_BYTES = WQ + 32768
EXCH = RING; RED = WQ; REDS = 4608
CRED = RING; WST = RING + 16384; WSL = 12; OFL = RING
assert RING % 256 == 0 and WST + 4 * WSL * 1024 <= WQ and LDS_BYTES <= 163840
sW, sHP, sRB, sCH, sROT = 3, 4, 5, 6, 7
SRDX, SRDW = 8, 12
pX, pAre, pAim, pBre, pBim, pCre, pCim, pLdt = 16, 18, 20, 22, 24, 26, 28, 30
pDsk, pW, pWo, pGw, pOut, pDbg, pWs = 32, 36, 38, 40, 42, 44, 46
pFL = 34
sT = 48
sSPIN = 62
sST = 64

nstamp = {"m": 0, "h": 0}
SPM, SPH = OPT.get("spm", -1), OPT.get("sph", -1)
def spin_end(role):
    if (SPM if role == "m" else SPH) < 0: return
    l = newlab("sp")
    if OPT.get("sel"):
        E(f"""
        s_lshl3_add_u32 s98, s2, s{sW}
        s_lshl_b32 s98, s98, 7
        s_add_u32 s98, s98, {40 << 20}
        v_mov_b32 v3, s98
        v_mov_b32 v4, 0x12345678
        global_load_dword v5, v3, {sr(pWs,2)} sc1
        s_waitcnt vmcnt(0)
        global_store_dword v3, v4, {sr(pWs,2)} sc1
        v_readfirstlane_b32 s98, v5
        s_waitcnt vmcnt(0)
        s_cmp_eq_u32 s98, 0x12345678
        s_cbranch_scc{OPT["sel"]-1} L_end
        """)
    E(f"{l}:\ns_memrealtime s[98:99]\ns_waitcnt lgkmcnt(0)\ns_sub_u32 s98, s98, s96\ns_cmp_lt_i32 s98, 4000\ns_cbranch_scc1 {l}")
def stamp(role):
    if SPM >= 0 or SPH >= 0:
        i = nstamp[role]; nstamp[role] += 1
        if i == (SPM if role == "m" else SPH):
            if OPT.get("amp"): E(f"s_memrealtime s[98:99]\ns_waitcnt lgkmcnt(0)\ns_sub_u32 s98, s98, s96\ns_mul_i32 s98, s98, {OPT['amp']}\ns_sub_u32 s98, s98, {OPT.get('sub',0)*100}\ns_add_u32 s96, s96, s98")
            else: E("s_memrealtime s[96:97]\ns_waitcnt lgkmcnt(0)")
        return
    if not STAMP or nstamp[role] >= 14: return
    i = nstamp[role]; nstamp[role] += 1
    E(f"s_memrealtime {sr(sST+2*i,2)}\ns_waitcnt lgkmcnt(0)")
def stamp_flush(role):
    if not STAMP: return
    E(f"s_lshl_b32 s{sT}, s2, 3\ns_add_u32 s{sT}, s{sT}, s{sW}\ns_lshl_b32 s{sT}, s{sT}, 6\ns_add_u32 s{sT}, s{sT}, {WS_ST}\nv_mov_b32 v2, s{sT}")
    for i in range(nstamp[role]):
        E(f"v_mov_b32 v3, s{sST+2*i}\nglobal_store_dword v2, v3, {sr(pWs,2)} offset:{4*i}")
    E(f"s_getreg_b32 s{sT}, hwreg(HW_REG_XCC_ID)\nv_mov_b32 v3, s{sT}\nglobal_store_dword v2, v3, {sr(pWs,2)} offset:60")

lab = [0]
def newlab(p):
    lab[0] += 1
    return f"L_{p}_{lab[0]}"

nhop = [0]
def hop():
    if not OPT["hop"]: return []
    nhop[0] += 1
    return [f"L_hop{nhop[0]-1}:", f"s_cbranch_execz L_hop{nhop[0]}"]

def poll_global(vaddr, base, vtmp):
    l = newlab("poll"); d = newlab("polld")
    E(f"""
    s_mov_b32 s{sSPIN}, {OPT['spin']}
    {l}:
    global_load_dword v{vtmp}, v{vaddr}, {sr(base,2)} sc1
    s_sub_u32 s{sSPIN}, s{sSPIN}, 1
    s_cbranch_scc1 {d}
    s_waitcnt vmcnt(0)
    v_cmp_ne_u32 vcc, 0, v{vtmp}
    s_nop 1
    s_cmp_eq_u64 vcc, -1
    s_cbranch_scc0 {l}
    {d}:
    s_waitcnt vmcnt(0)
    """)
def poll_ctr(vaddr, vtmp, test, depth=1, first=False):
    l = newlab("pc"); d = newlab("pcd"); c = newlab("pcc")
    at = lambda r: [f"v_mov_b32 v{r}, 0", f"global_atomic_add v{r}, v{vaddr}, v{r}, {sr(pFL,2)} sc0 sc1"]
    E(f"s_mov_b32 s{sSPIN}, {OPT['spin']}\ns_mov_b64 exec, 1")
    if depth == 1:
        if first: E(f"s_branch {c}")
        E(f"{l}:"); E(at(vtmp))
        if first == 2: E("s_waitcnt vmcnt(0)")
        E(f"{c}:\ns_sub_u32 s{sSPIN}, s{sSPIN}, 1\ns_cbranch_scc1 {d}\ns_waitcnt vmcnt({1 if first == 2 else 0})\nv_readfirstlane_b32 s{sSPIN+1}, v{vtmp}\ns_nop 0")
        E(test(sSPIN + 1)); E(f"s_cbranch_scc0 {l}")
    else:
        for i in range(1 if first else 0, depth - 1):
            if i: E(f"s_sleep {OPT['psl']}")
            E(at(vtmp + i))
        E(f"{l}:\ns_sub_u32 s{sSPIN}, s{sSPIN}, 1\ns_cbranch_scc1 {d}")
        for i in range(depth):
            E(at(vtmp + (i - 1) % depth))
            E(f"s_waitcnt vmcnt({depth-1})\nv_readfirstlane_b32 s{sSPIN+1}, v{vtmp+i}\ns_nop 0")
            E(test(sSPIN + 1))
            E(f"s_cbranch_scc1 {d}" if i < depth - 1 else f"s_cbranch_scc0 {l}")
    E(f"{d}:\ns_mov_b64 exec, -1")
def add_ctr(vaddr, vval, lanes):
    E(f"s_bfm_b64 exec, {lanes}, 0\nglobal_atomic_add v{vaddr}, v{vval}, {sr(pFL,2)} sc1\ns_mov_b64 exec, -1")
def put_flag(vaddr, vone, base=None):
    E(f"""
    s_mov_b64 exec, 1
    global_store_dword v{vaddr}, v{vone}, {sr(pFL if base is None else base,2)} sc1
    s_mov_b64 exec, -1
    """)
def lds_arrive(vaddr, vone):
    E(f"""
    s_mov_b64 exec, 1
    ds_add_u32 v{vaddr}, v{vone}
    s_mov_b64 exec, -1
    """)
def lds_wait(vaddr, vtmp, n):
    l = newlab("lw"); d = newlab("lwd")
    E(f"""
    s_mov_b32 s{sSPIN}, {OPT['spin']*8}
    {l}:
    ds_read_b32 v{vtmp}, v{vaddr}
    s_sub_u32 s{sSPIN}, s{sSPIN}, 1
    s_cbranch_scc1 {d}
    s_waitcnt lgkmcnt(0)
    v_readfirstlane_b32 s{sSPIN+1}, v{vtmp}
    s_nop 1
    s_cmp_ge_u32 s{sSPIN+1}, {n}
    s_cbranch_scc0 {l}
    {d}:
    s_waitcnt lgkmcnt(0)
    """)

def helper_entry():
    sH, sC, sMH, sD, sLd, sDs, t0 = sT, sT + 1, sT + 2, sT + 5, sT + 6, sT + 7, sT + 8
    C("""---- helper waves (4..7): touch this kernel's code once so that it sits in L2, then load the SSM parameters""")
    E(f"L_h0:\ns_setprio {OPT['prio']}\ns_sub_u32 s{sH}, s{sW}, 4")
    if OPT["pf"]:
        E(f"""
        s_getpc_b64 s[8:9]
        L_pc:
        s_andn2_b32 s10, s2, 7
        s_lshl1_add_u32 s10, s{sH}, s10
        v_and_b32 v2, 1, v1
        v_add_lshl_u32 v2, v2, s10, 7
        v_min_u32 v2, L_end-L_pc, v2
        v_mov_b32 v3, 0
        v_lshl_add_u64 v[2:3], v[2:3], 0, s[8:9]
        global_load_dword v167, v[2:3], off
        """)
    E(f"""
    s_lshl4_add_u32 s{sCH}, s{sHP}, s{sRB}
    s_lshl2_add_u32 s{t0}, s{sCH}, s{sH}
    s_lshl_b32 s{t0}, s{t0}, 7
    v_lshl_add_u32 v2, v1, 1, s{t0}
    s_lshl_b32 s{t0+1}, s{sCH}, 2
    s_waitcnt lgkmcnt(0)
    s_load_dword s{sLd}, {sr(pLdt,2)}, s{t0+1}
    s_load_dword s{sDs}, {sr(pDsk,2)}, s{t0+1}
    """)
    for j, p in enumerate((pAre, pAim, pBre, pBim, pCre, pCim)):
        E(f"global_load_ushort v{4+j}, v2, {sr(p,2)}")
    E(f"s_and_b32 s{sMH}, s{sH}, 1\ns_lshl_b32 s{sCH}, s{sCH}, 1")

def prologue():
    if OPT.get("amp"): E("s_memrealtime s[96:97]")
    if STAMP:
        E(f"s_memrealtime {sr(sST,2)}"); nstamp["m"] = nstamp["h"] = 1
    E(f"""
    s_cmpk_ge_u32 s2, 0x100
    s_cbranch_scc1 L_end
    s_load_dwordx16 s[16:31], s[0:1], 0
    s_load_dwordx16 s[32:47], s[0:1], 64
    """)
    E(f"""
    v_lshrrev_b32 v2, 6, v0
    v_and_b32 v1, 63, v0
    v_readfirstlane_b32 s{sW}, v2
    """)
    C("""s4 = head pair hp (0..15), s5 = row block rb (128 rows), s7 = first 64-wide k stage, s3 = wave.
The mapping only serves L2 locality under round-robin placement; nothing below depends on it.""")
    if OPT["xm"] == 0: E(f"""
    s_bfe_u32 s{sHP}, s2, 0x30003
    s_and_b32 s{sT}, s2, 1
    s_lshl3_add_u32 s{sHP}, s{sT}, s{sHP}
    s_lshr_b32 s{sRB}, s2, 6
    s_and_b32 s{sT}, s2, 6
    s_lshl1_add_u32 s{sRB}, s{sT}, s{sRB}
    """)
    elif OPT["xm"] == 1: E(f"""
    s_bfe_u32 s{sHP}, s2, 0x10003
    s_and_b32 s{sT}, s2, 7
    s_lshl1_add_u32 s{sHP}, s{sT}, s{sHP}
    s_lshr_b32 s{sRB}, s2, 4
    """)
    else: E(f"""
    s_bfe_u32 s{sHP}, s2, 0x20003
    s_and_b32 s{sT}, s2, 3
    s_lshl2_add_u32 s{sHP}, s{sT}, s{sHP}
    s_lshr_b32 s{sRB}, s2, 5
    s_and_b32 s{sT}, s2, 4
    s_lshl1_add_u32 s{sRB}, s{sT}, s{sRB}
    """)
    if OPT["rot"] == 0:
        E(f"s_mov_b32 s{sROT}, 0")
    elif OPT["rot"] == 1:
        E(f"s_xor_b32 s{sROT}, s{sHP}, s{sRB}\ns_and_b32 s{sROT}, s{sROT}, 1\ns_lshl_b32 s{sROT}, s{sROT}, 2")
    elif OPT["rot"] == 2:
        E(f"s_lshl1_add_u32 s{sROT}, s{sRB}, s{sHP}\ns_and_b32 s{sROT}, s{sROT}, 7")
    elif OPT["rot"] == 3:
        E(f"s_lshl1_add_u32 s{sROT}, s{sRB}, s{sHP}\ns_and_b32 s{sROT}, s{sROT}, 6")
    elif OPT["rot"] == 4:
        E(f"s_lshl2_add_u32 s{sROT}, s{sHP}, s{sRB}\ns_and_b32 s{sROT}, s{sROT}, 7")
    elif OPT["rot"] == 5:
        E(f"s_add_u32 s{sROT}, s{sHP}, s{sRB}\ns_lshl_b32 s{sROT}, s{sROT}, 1\ns_and_b32 s{sROT}, s{sROT}, 6")
    elif OPT["rot"] == 6:
        E(f"s_lshl1_add_u32 s{sROT}, s{sHP}, s{sRB}\ns_and_b32 s{sROT}, s{sROT}, 7")
    elif OPT["rot"] == 7:
        E(f"s_add_u32 s{sROT}, s{sHP}, s{sRB}\ns_lshr_b32 s{sT}, s2, 2\ns_xor_b32 s{sT}, s{sT}, s2\ns_and_b32 s{sT}, s{sT}, 1\ns_lshl1_add_u32 s{sROT}, s{sROT}, s{sT}\ns_and_b32 s{sROT}, s{sROT}, 7")
    elif OPT["rot"] == 8:
        assert OPT["xm"] == 2
        E(f"s_add_u32 s{sROT}, s{sHP}, s{sRB}\ns_lshr_b32 s{sT}, s{sT}, 1\ns_add_u32 s{sT}, s{sT}, s2\ns_lshl2_add_u32 s{sROT}, s{sROT}, s{sT}\ns_and_b32 s{sROT}, s{sROT}, 7")
    else:
        E(f"s_and_b32 s{sT}, s2, 4\ns_lshl1_add_u32 s{sROT}, s2, s{sT}\ns_and_b32 s{sROT}, s{sROT}, 7")
    if OPT["lay"] == 2:
        E(f"s_cmp_lt_u32 s{sW}, 4\ns_cbranch_scc1 L_m0")
        helper_entry()
        E("s_branch L_helper\nL_m0:")
    else:
        E(f"s_cmp_ge_u32 s{sW}, 4\ns_cbranch_scc1 L_h0")

def main_wave():
    vXD, vWD, vXA, vWA, vQA = 4, 8, 10, 14, 16
    vFB = 24
    aK, aV, aQ = 48, 64, 80
    vP = 96
    vXF = 128
    sXO, sWO, sM0, sX, sZ, sQS = 92, 93, 94, 95, 100, 101
    sKVb, sKV, sJ, sCnt, sMask = sT + 2, sT + 4, sT + 6, sT + 7, sT + 8
    ta, tb, tc = sT + 10, sT + 11, sT + 12
    sExp, sBfe, sVal = 24, 25, 26
    assert OPT['fm'] == 1
    vO, vKV = 128, 192
    M16 = OPT['m16']; vQX = 23
    assert not (M16 and (OPT['q3'] or OPT.get('itst')))
    (vIDX, vKA, vVA, vSA, vSB, vSV, vEW, vER0, vER1, vERV, vRW, vRWl, vRR, vRRl, vOA, vOB) = range(112, 128)
    vF2, vOne, vF2P, vOD, vOnes, vZer = range(17, 23); vOD2 = 3
    vQ = 240; SA, SB = 24, 40; vT = 56
    C("""==== main waves (0..3): wave w projects rows 32w..32w+31 of the row block for both heads ====
x and W_k / W_v stream through a 3-slot LDS ring (LDS-DMA, XOR-swizzled x, transposing reads for W)""")
    E(f"""
    s_lshl2_add_u32 s{sT}, s{sRB}, s{sW}
    s_lshl_b32 s{sT}, s{sT}, 15
    v_lshrrev_b32 v2, 3, v1
    v_lshl_add_u32 v2, v2, 10, s{sT}
    v_lshrrev_b32 v3, 4, v1
    v_xor_b32 v3, v3, v1
    v_and_b32 v3, 7, v3
    v_lshl_add_u32 v{vXD}, v3, 4, v2
    v_xor_b32 v{vXD+1}, 64, v{vXD}
    s_movk_i32 s{sT}, 7168
    v_add_u32 v{vXD+1}, s{sT}, v{vXD+1}
    s_movk_i32 s{sT}, 14336
    v_add_u32 v{vXD+2}, s{sT}, v{vXD}
    v_add_u32 v{vXD+3}, s{sT}, v{vXD+1}
    v_lshrrev_b32 v2, 2, v0
    v_mul_u32_u24 v2, 3072, v2
    {"v_lshrrev_b32 v3, 4, v1" if M16 else ""}
    {"v_and_b32 v3, 2, v3" if M16 else ""}
    {"v_xor_b32 v3, v3, v1" if M16 else ""}
    v_and_b32 v3, 3, {"v3" if M16 else "v1"}
    s_lshl2_add_u32 s{sT}, s{sHP}, 64
    v_add_u32 v3, s{sT}, v3
    v_lshl_add_u32 v{vWD}, v3, 4, v2
    s_mul_i32 s{sM0}, s{sW}, {WPART}
    s_mov_b32 s{SRDX+2}, 0x200000
    s_mov_b32 s{SRDX+3}, 0x00020000
    s_mov_b32 s{SRDW+2}, 0x180000
    s_mov_b32 s{SRDW+3}, s{SRDX+3}
    """)
    Q3, A0 = OPT["q3"], OPT["a0"]
    assert Q3 + A0 <= 8
    rest = list(range(Q3, 8))
    att = {i: [] for i in range(10)}
    for j in range(Q3): att[j + A0].append(j)
    att[8], att[9] = rest[:4], rest[4:]
    cnt = {i: (6 if i < 8 else 0) + len(att[i]) for i in range(10)}
    sWQ = 27
    def dmaq(j):
        return [f"s_add_u32 s{sT+1}, s{sROT}, {j}", f"s_and_b32 s{sT+1}, s{sT+1}, 7", f"s_add_u32 m0, s{sWQ}, {WQ+4096*j}",
                f"s_mul_i32 s{sT+1}, s{sT+1}, 196608", f"buffer_load_dwordx4 v{vWD+1}, {sr(SRDW,4)}, s{sT+1} offen lds"]
    def dma(i, first=False):
        if i >= 8: return [dmaq(j) for j in att[i]]
        slot = i % NS
        g = []
        for seg in range(2):
            g.append([f"buffer_load_dwordx4 v{vWD}, {sr(SRDW,4)}, s{sWO} offen offset:{seg*1024} {'nt' if OPT.get('nt',0) & 1 and i < OPT.get('nts',8) else ''} lds"])
        for j in range(4):
            g.append([f"buffer_load_dwordx4 v{vXD+j}, {sr(SRDX,4)}, s{sXO} offen offset:{j*1024} {'nt' if OPT.get('nt',0) & 2 and i < OPT.get('nts',8) else ''} lds"])
        st = sROT if i == 0 else sT
        pre = [] if i == 0 else [f"s_add_u32 s{sT}, s{sROT}, {i}", f"s_and_b32 s{sT}, s{sT}, 7"]
        pre += [f"s_add_u32 m0, s{sM0}, {RING+slot*SLOT+4096}", f"s_mul_i32 s{sWO}, s{st}, 196608"]
        if first:
            pre += ["s_waitcnt lgkmcnt(0)", f"s_mov_b64 {sr(SRDW,2)}, {sr(pW,2)}", f"s_mov_b64 {sr(SRDX,2)}, {sr(pX,2)}"]
        prex = [f"s_add_u32 m0, s{sM0}, {RING+slot*SLOT}", f"s_lshl_b32 s{sXO}, s{st}, 7"]
        if OPT["xf"] >> i & 1:
            n = 0 if i == 0 else 2
            g[2] = pre[:n] + prex + pre[n+2:] + g[2]
            g[0] = pre[n:n+2] + g[0]
            g = g[2:] + g[:2]
        else:
            g[0] = pre + g[0]
            g[2] = prex + g[2]
        if first: g[5] += [f"v_subrev_u32 v{vWD+1}, 1024, v{vWD}", f"s_lshl_b32 s{sWQ}, s{sW}, 10"]
        return g + [dmaq(j) for j in att[i]]
    for g in dma(0, True): E(g)
    E(f"""
    s_and_b32 s{sX}, s{sW}, 1
    s_lshl_b32 s{sT}, s{sX}, 10
    s_add_u32 m0, s{sT}, {GW}
    v_lshlrev_b32 v{vKA}, 4, v1
    global_load_lds_dwordx4 v{vKA}, {sr(pGw,2)}
    """)
    held = dma(1)
    for g in held[:OPT["d1"]]: E(g)
    held = held[OPT["d1"]:]
    if OPT["lay"] == 0:
        E("s_branch L_m1")
        helper_entry(); helper_wave()
        E("L_m1:")
    elif OPT["lay"] == 1:
        E("s_branch L_m1")
        helper_entry()
        E("s_branch L_helper\nL_m1:")
    stamp("m")
    if OPT["tlb"]:
        E(f"""
        s_mov_b32 s{ta}, {WS_FL + 0x100000}
        s_load_dword s18, {sr(pWs,2)}, s{ta}
        s_load_dword s19, {sr(pDbg,2)}, 128
        s_load_dword s20, {sr(pOut,2)}, 0
        s_load_dword s21, {sr(pWo,2)}, 0
        """)
    C("""addresses of all later phases, in the shadow of the first loads""")
    E(f"""
    s_add_u32 s{pFL}, s{pWs}, {WS_FL}
    s_addc_u32 s{pFL+1}, s{pWs+1}, 0
    s_add_u32 s{ta}, s{sM0}, {RING}
    """)
    if M16: E(f"""
    v_and_b32 v2, 15, v1
    v_lshl_add_u32 v2, v2, 7, s{ta}
    v_bfe_u32 v3, v1, 1, 3
    v_lshrrev_b32 v{vXA+1}, 4, v1
    v_xor_b32 v3, v3, v{vXA+1}
    v_lshl_add_u32 v{vXA}, v3, 4, v2
    v_xor_b32 v{vXA+1}, 64, v{vXA}
    v_bfe_u32 v2, v1, 4, 1
    v_mul_u32_u24 v2, 544, v2
    v_bfe_u32 v3, v1, 2, 2
    v_lshl_add_u32 v2, v3, 6, v2
    v_and_b32 v3, 3, v1
    v_lshl_add_u32 v2, v3, 3, v2
    v_lshrrev_b32 v3, 5, v1
    v_lshl_add_u32 v{vQA}, v3, 10, v2
    v_add_u32 v{vQA}, {WQ}, v{vQA}
    v_xor_b32 v{vQX}, 32, v{vQA}
    v_mul_u32_u24 v3, {WPART}, v3
    v_add_u32 v2, v2, v3
    v_add_u32 v{vWA}, {RING+4096}, v2
    v_add_u32 v{vWA+1}, {RING+4096+2*SLOT}, v2
    v_xor_b32 v{vXA+2}, 32, v{vWA}
    v_xor_b32 v{vXA+3}, 32, v{vWA+1}
    """)
    else: E(f"""
    v_and_b32 v2, 31, v1
    v_lshl_add_u32 v2, v2, 7, s{ta}
    v_bfe_u32 v3, v1, 1, 3
    v_lshrrev_b32 v{vXA+1}, 5, v1
    v_xor_b32 v3, v3, v{vXA+1}
    v_lshl_add_u32 v{vXA}, v3, 4, v2
    v_xor_b32 v{vXA+1}, 32, v{vXA}
    v_xor_b32 v{vXA+2}, 64, v{vXA}
    v_xor_b32 v{vXA+3}, 0x60, v{vXA}
    v_lshrrev_b32 v2, 5, v1
    v_lshlrev_b32 v2, 3, v2
    v_bfe_u32 v3, v1, 2, 2
    v_add_u32 v2, v2, v3
    v_lshlrev_b32 v2, 6, v2
    v_and_b32 v3, 3, v1
    v_lshl_add_u32 v2, v3, 3, v2
    v_bfe_u32 v3, v1, 4, 1
    v_lshl_add_u32 v2, v3, 5, v2
    v_add_u32 v{vWA}, {RING+4096}, v2
    v_add_u32 v{vWA+1}, {RING+4096+2*SLOT}, v2
    v_add_u32 v{vQA}, {WQ}, v2
    """)
    E(f"""
    s_lshr_b32 s{sZ}, s{sW}, 1
    s_mov_b32 s{sQS}, {fbits(0.25 * math.log2(math.e))}
    s_lshl2_add_u32 s{ta}, s{sRB}, s{sW}
    s_lshl_b32 s{ta}, s{ta}, 11
    s_lshl_b32 s{tb}, s{sHP}, 18
    s_add_u32 s{ta}, s{ta}, s{tb}
    v_add_u32 v{vSA}, s{ta}, v{vKA}
    v_add_u32 v{vSB}, 0x20000, v{vSA}
    v_and_b32 v{vVA}, 15, v1
    v_lshrrev_b32 v2, 5, v1
    v_lshl_add_u32 v{vVA}, v2, 4, v{vVA}
    v_lshlrev_b32 v{vVA}, 4, v{vVA}
    v_bfe_u32 v2, v1, 4, 1
    v_lshlrev_b32 v2, 17, v2
    v_add3_u32 v{vSV}, v2, v{vVA}, s{ta}
    s_add_u32 s{tb}, s{sM0}, {EXCH}
    v_add_u32 v{vEW}, s{tb}, v{vKA}
    s_lshl_b32 s{ta}, s{sX}, 10
    s_add_u32 s{ta}, s{ta}, {EXCH}
    s_mul_i32 s{tb}, s{sZ}, 12288
    s_add_u32 s{tc}, s{ta}, s{tb}
    v_add_u32 v{vER0}, s{tc}, v{vKA}
    s_sub_u32 s{tc}, s{ta}, s{tb}
    s_add_u32 s{tc}, s{tc}, 12288
    v_add_u32 v{vER1}, s{tc}, v{vKA}
    s_lshl_b32 s{ta}, s{sX}, 8
    s_add_u32 s{tc}, s{ta}, s{tb}
    s_add_u32 s{tc}, s{tc}, {EXCH}
    v_add_u32 v{vERV}, s{tc}, v{vKA}
    s_lshl1_add_u32 s{ta}, s{sHP}, s{sX}
    s_lshl_b32 s{tb}, s{ta}, 17
    s_lshl_b32 s{tc}, s{sZ}, 12
    s_add_u32 s{tb}, s{tb}, s{tc}
    s_add_u32 s{sKVb}, s{pWs}, s{tb}
    s_addc_u32 s{sKVb+1}, s{pWs+1}, 0
    s_lshl1_add_u32 s{tb}, s{sRB}, s{sZ}
    s_lshl_b32 s{tb}, s{tb}, 6
    s_add_u32 s{tb}, s{tb}, s{ta}
    s_lshl_b32 s{tb}, s{tb}, 10
    s_add_u32 s{tb}, s{tb}, {WS_OF}
    v_add_u32 v{vOA}, s{tb}, v{vKA}
    v_add_u32 v{vOB}, 0x8000, v{vOA}
    s_mul_i32 s{ta}, s{sW}, {REDS}
    s_add_u32 s{ta}, s{ta}, {RED}
    v_add_u32 v{vRW}, s{ta}, v{vKA}
    v_lshl_add_u32 v{vRWl}, v1, 2, s{ta}
    s_xor_b32 s{ta}, s{sW}, 2
    s_mul_i32 s{ta}, s{ta}, {REDS}
    s_add_u32 s{ta}, s{ta}, {RED}
    v_add_u32 v{vRR}, s{ta}, v{vKA}
    v_lshl_add_u32 v{vRRl}, v1, 2, s{ta}
    s_lshl4_add_u32 s{ta}, s{sRB}, s{sHP}
    s_add_u32 s{ta}, s{ta}, {F2}
    s_lshl_b32 s{ta}, s{ta}, {FSH}
    {f"s_lshl_b32 s{tb}, s{sW}, {FSH-2}" if OPT["sep"] else ""}
    {f"s_add_u32 s{ta}, s{ta}, s{tb}" if OPT["sep"] else ""}
    v_mov_b32 v{vF2P}, s{ta}
    v_mov_b32 v{vOne}, 1
    s_lshr_b32 s{ta}, s{sHP}, 2
    s_lshl_b32 s{ta}, s{ta}, 3
    s_lshl_b32 s{sVal}, 1, s{ta}
    s_lshl1_add_u32 s{ta}, s{sRB}, s{sZ}
    s_lshl3_add_u32 s{ta}, s{ta}, {F2}
    v_add_lshl_u32 v{vF2}, v1, s{ta}, {FSH}
    {f"s_lshr_b32 s{ta}, s{sHP}, 2" if OPT["sep"] else ""}
    {f"v_lshl_add_u32 v{vF2}, s{ta}, {FSH-2}, v{vF2}" if OPT["sep"] else ""}
    s_lshl3_add_u32 s{sBfe}, s{sW}, 0x80000
    {f"s_lshr_b32 s{tb}, s{sHP}, 2" if OPT["fm"] else f"s_and_b32 s{tb}, s{sHP}, 3"}
    s_lshl2_add_u32 s{ta}, s{sRB}, s{tb}
    s_lshl2_add_u32 s{ta}, s{ta}, s{sW}
    s_lshl_b32 s{ta}, s{ta}, 13
    s_add_u32 s{ta}, s{ta}, {WS_OF}
    v_add_u32 v{vOD}, s{ta}, v{vKA}
    v_mov_b32 v{vIDX}, 0xdddddddd
    v_and_b32 v2, 27, v1
    v_cmp_eq_u32 vcc, 16, v2
    v_mov_b32 v2, {CNT+32}
    v_mov_b32 v{vZer}, {CNT+16}
    s_mov_b32 s{sMask}, 0x0000ffff
    s_mov_b32 s{sMask+1}, 0x0000ffff
    v_cndmask_b32 v{vOnes}, v{vZer}, v2, vcc
    s_mov_b32 s{sCnt}, 8
    v_add_u32 v{vOD2}, 4096, v{vOD}
    """)
    sOwn = 28
    if OPT["co"]:
        E(f"""
        s_andn2_b32 s{sJ}, 8, s{sRB}
        s_lshl1_add_u32 s{sOwn}, s{sJ}, s{sRB}
        s_sub_u32 s{sJ}, s{sJ}, 1
        """)
    def kvaddr():
        if OPT["co"]:
            return [f"s_add_u32 s{sJ}, s{sJ}, 1", f"s_cmp_eq_u32 s{sJ}, s{sOwn}", f"s_addc_u32 s{sJ}, s{sJ}, 0",
                    f"s_lshl_b32 s29, s{sJ}, 13", f"s_and_b32 s29, s29, 0x1e000",
                    f"s_add_u32 s{sKV}, s{sKVb}, s29", f"s_addc_u32 s{sKV+1}, s{sKVb+1}, 0"]
        return [f"s_add_u32 s{sJ}, s{sJ}, 0x2000", f"s_and_b32 s{sJ}, s{sJ}, 0x1e000",
                f"s_add_u32 s{sKV}, s{sKVb}, s{sJ}", f"s_addc_u32 s{sKV+1}, s{sKVb+1}, 0"]
    E(kvaddr())
    def reads(n):
        i, s = n >> 2, n & 3
        slot = i % NS
        if M16:
            f = vFB + 8 * (n % 3); s2 = s >> 1
            so = (slot & 1) * SLOT + 2 * s2 * WPART + (0 if n & 1 else 1024)
            o = [] if n & 1 else [f"ds_read_b128 {vr(vXF+4*n+4*a,4)}, v{vXA+s2} offset:{slot*SLOT+2048*a}" for a in range(2)]
            for X in range(2):
                a = (vXA + 2 if X else vWA) + (slot >> 1)
                o += [f"ds_read_b64_tr_b16 {vr(f+4*X+2*e,2)}, v{a} offset:{so+256*e}" for e in range(2)]
            return o
        a = vWA + (slot >> 1); so = (slot & 1) * SLOT + s * WPART
        f = vFB + 8 * (n % 3)
        o = [f"ds_read_b128 {vr(vXF+4*n,4)}, v{vXA+s} offset:{slot*SLOT}"]
        for c in range(2):
            o.append(f"ds_read_b64_tr_b16 {vr(f+4*c,2)}, v{a} offset:{so+1024*c}")
            o.append(f"ds_read_b64_tr_b16 {vr(f+2+4*c,2)}, v{a} offset:{so+1024*c+256}")
        return o
    def qread(n, f):
        if M16: return [f"ds_read_b64_tr_b16 {vr(f+2*e,2)}, v{vQX if n & 1 else vQA} offset:{2048*(n>>1)+256*e}" for e in range(2)]
        return [f"ds_read_b64_tr_b16 {vr(f,2)}, v{vQA} offset:{1024*n}", f"ds_read_b64_tr_b16 {vr(f+2,2)}, v{vQA} offset:{1024*n+256}"]
    def qmf(n, f):
        if M16: return [f"v_mfma_f32_16x16x32_bf16 {vr(aQ+8*(n&1)+4*a,4)}, {vr(f,4)}, {vr(vXF+8*(n>>1)+4*a,4)}, {'0' if n < 2 else vr(aQ+8*(n&1)+4*a,4)}" for a in range(2)]
        return f"v_mfma_f32_32x32x16_bf16 {vr(aQ,16)}, {vr(f,4)}, {vr(vXF+4*n,4)}, {'0' if n == 0 else vr(aQ,16)}"
    def inq(n): return n - 4 * A0 if 0 <= n - 4 * A0 < 4 * Q3 else None
    def allreads(n): return reads(n) + (qread(inq(n), vP + 4 * (n % 3)) if inq(n) is not None else [])
    def xdead(n): return [f"v_mov_b32 v{r}, 0" for r in range(vXF + 4 * n, vXF + 4 * n + 4) if r < vKV and (r - vO) % 16 < 8]
    if held:
        E(f"s_waitcnt vmcnt({OPT['d1'] + cnt[0] + 1 - OPT['d1w']})")
        for g in held: E(g)
    E(f"s_waitcnt vmcnt({cnt[1]})")
    if STAMP == 5: stamp("m")
    E("s_barrier")
    stamp("m")
    C("""---- K^T and V for 32 rows x 2 heads; the x fragments stay in v[128:255] for the Q projection""")
    E(allreads(0) + allreads(1))
    pend = dma(2)
    while len(pend) > 4: E(pend.pop(0))
    for n in range(32):
        f = vFB + 8 * (n % 3); x = vXF + 4 * n
        c = (lambda a: "0" if n == 0 else vr(a, 16))
        m = [f"v_mfma_f32_32x32x16_bf16 {vr(aV,16)}, {vr(x,4)}, {vr(f+4,4)}, {c(aV)}",
             f"v_mfma_f32_32x32x16_bf16 {vr(aK,16)}, {vr(f,4)}, {vr(x,4)}, {c(aK)}"]
        if M16:
            x = vXF + 8 * (n >> 1); m = []
            for X in range(2):
                mm = []
                for a in range(2):
                    if n & 1: d, A_, B_ = aK + 8 * X + 4 * a, f + 4 * X, x + 4 * a
                    else: d, A_, B_ = aV + 8 * a + 4 * X, x + 4 * a, f + 4 * X
                    mm.append(f"v_mfma_f32_16x16x32_bf16 {vr(d,4)}, {vr(A_,4)}, {vr(B_,4)}, {'0' if n < 2 else vr(d,4)}")
                m.append(mm)
        r = allreads(n + 2) if n + 2 < 32 else []
        E(f"s_waitcnt lgkmcnt({len(allreads(n+1)) if n < 31 else 0})")
        E(m[0])
        if (n + 2) % 4 == 0 and n + 2 < 32:
            b = (n + 2) >> 2
            assert not pend
            E(f"s_waitcnt vmcnt({cnt[b+1]}) lgkmcnt(0)")
            if STAMP == 3: stamp("m")
            E("s_barrier")
            if STAMP == 2: stamp("m")
            pend = dma(b + 2)
        E(r[:3])
        if pend: E(pend.pop(0))
        E(m[1]); E(r[3:5])
        if inq(n) is not None:
            E(qmf(inq(n), vP + 4 * (n % 3)))
            if inq(n) >= 1: E(xdead(inq(n) - 1))
        E(r[5:])
        if pend: E(pend.pop(0))
    stamp("m")
    ep = [f"v_cvt_pk_bf16_f32 v{vP+j}, v{aK+2*j}, v{aK+1+2*j}" for j in range(4)]
    ep += [f"global_store_dwordx4 v{vSA}, {vr(vP,4)}, {sr(pWs,2)} sc1"]
    ep += [f"v_cvt_pk_bf16_f32 v{vP+j}, v{aK+2*j}, v{aK+1+2*j}" for j in range(4, 8)]
    ep += [f"global_store_dwordx4 v{vSB}, {vr(vP+4,4)}, {sr(pWs,2)} sc1"]
    ep += [f"v_permlane32_swap_b32 v{vP+8+a}, v{vP+10+a}" for a in (0, 1)]
    ep += [f"global_store_dwordx4 v{vSV}, {vr(vP+8,4)}, {sr(pWs,2)} offset:1024 sc1"]
    ep += [f"v_permlane32_swap_b32 v{vP+8+a}, v{vP+10+a}" for a in (4, 5)]
    ep += [f"global_store_dwordx4 v{vSV}, {vr(vP+12,4)}, {sr(pWs,2)} offset:1536 sc1"]
    if M16:
        sw = lambda p: [f"v_permlane16_swap_b32 v{p}, v{p+2}", f"v_permlane16_swap_b32 v{p+1}, v{p+3}"]
        st = [x for x in ep if "store" in x]
        ep = [f"v_cvt_pk_bf16_f32 v{vP+j}, v{aK+2*j}, v{aK+1+2*j}" for j in range(4)] + sw(vP + 8) + [st[2]]
        ep += [f"v_cvt_pk_bf16_f32 v{vP+j}, v{aK+2*j}, v{aK+1+2*j}" for j in range(4, 8)] + sw(vP + 12) + [st[3]]
        ep += sw(vP) + [st[0]] + sw(vP + 4) + [st[1]]
        OPT["epc"] = len(ep)
    LQ = OPT["lq"]
    qb = [40, 44, 24, 28, 32, 36, 64, 68, 72]
    C("""---- publish K / V as MFMA fragments (write-through), then project Q while the stores are acknowledged""")
    E("s_nop 2" if M16 else "s_nop 10")
    for j in range(8):
        E(f"v_cvt_pk_bf16_f32 v{vP+8+j}, v{aV+2*j}, v{aV+1+2*j}")
    cut = OPT["epc"]
    E(ep[:cut])
    E(f"s_waitcnt vmcnt({cnt[9] + sum('store' in x for x in ep[:cut])})\ns_barrier")
    if STAMP == 4: stamp("m")
    n0 = 4 * Q3
    for n in range(n0, min(32, n0 + LQ)): E(qread(n, qb[(n - n0) % 9]))
    E(ep[cut:])
    late = [f"ds_read_b128 {vr(vO+16*q+8+4*e,4)}, v{vZer}" for q in range(4) for e in range(2)]
    late += [f"ds_write_b128 v{vEW}, {vr(vP+4*j,4)} offset:{2048+1024*j}" for j in range(4)]
    late += [f"ds_read_b128 {vr(vKV+12*st+4+4*e,4)}, v{vOnes}" for st in range(4) for e in range(2)]
    nl = 0
    ackn = 32 - OPT["ackr"]
    assert not att[9] or ackn > n0 + 16 - LQ
    for n in range(n0, 32):
        E(f"s_waitcnt lgkmcnt({min(15, 2*min(LQ-1, 31-n) + nl)})")
        E(qmf(n, qb[(n - n0) % 9]))
        if n == max(n0, ackn):
            if STAMP == 4: stamp("m")
            E("s_waitcnt vmcnt(0)\ns_barrier")
            if STAMP == 4: stamp("m")
        if n + LQ < 32:
            if n + LQ == n0 + 16:
                if STAMP == 4: stamp("m")
                E("s_waitcnt vmcnt(4)\ns_barrier")
                if STAMP == 4: stamp("m")
            E(qread(n + LQ, qb[(n + LQ - n0) % 9]))
        else:
            E(late[:2]); late = late[2:]; nl += 2
        if n >= 1 + M16: E(xdead(n - 1 - M16))
    E(late)
    if not M16: E(f"s_nop {max(0, 11 - len(late))}")
    for o in (0, 1):
        for j in range(8):
            E(f"v_mul_f32 v{aQ+8*o+j}, s{sQS}, v{aQ+8*o+j}")
        for j in ((0, 2, 1, 3) if M16 else range(4)):
            E(f"v_cvt_pk_bf16_f32 v{aK+4*o+j}, v{aQ+8*o+2*j}, v{aQ+8*o+1+2*j}")
        if M16: E([sw(aK + 4 * o)[0], "s_nop 0", sw(aK + 4 * o)[1]])
        E(f"ds_write_b128 v{vEW}, {vr(aK+4*o,4)} offset:{1024*o}")
    if STAMP == 4: stamp("m"); E("s_waitcnt vmcnt(0)"); stamp("m")
    C("""---- exchange Q (scaled by log2(e)/4) and this block's own K / V through LDS""")
    LATE = ackn > 31 or n0 == 32
    E("s_waitcnt lgkmcnt(0)\ns_barrier")
    stamp("m")
    E(f"""
    ds_read_b128 {vr(vQ,4)}, v{vER1}
    ds_read_b128 {vr(vKV,4)}, v{vER0} offset:2048
    ds_read_b128 {vr(vQ+4,4)}, v{vER1} offset:6144
    s_mov_b64 exec, {sr(sMask,2)}
    ds_read_b128 {vr(vKV+4,4)}, v{vERV} offset:4096
    ds_read_b128 {vr(vKV+8,4)}, v{vERV} offset:5120
    ds_read_b128 {vr(vKV+16,4)}, v{vERV} offset:{4096+6144}
    ds_read_b128 {vr(vKV+20,4)}, v{vERV} offset:{5120+6144}
    s_mov_b64 exec, -1
    ds_read_b128 {vr(vQ+8,4)}, v{vER0}
    ds_read_b128 {vr(vQ+12,4)}, v{vER0} offset:6144
    ds_read_b128 {vr(vKV+12,4)}, v{vER0} offset:{2048+6144}
    s_waitcnt lgkmcnt(8)
    v_mfma_f32_32x32x16_bf16 {vr(SA,16)}, {vr(vKV,4)}, {vr(vQ,4)}, 0
    v_mov_b32 v6, 0
    v_mov_b32 v4, 0
    v_mov_b32 v5, s{sVal}
    v_mov_b32 v2, s{sW}
    s_lshl_b32 s{sXO}, s{sW}, 13
    s_add_u32 m0, s{sXO}, {OFL}
    s_nop 4
    s_waitcnt lgkmcnt(0)
    """)
    def kload(st, par):
        return [f"global_load_dwordx4 {vr(vKV+12*st,4)}, v{vKA}, {sr(sKV,2)} offset:{par*2048} sc1"]
    def vload(st, par):
        return [f"s_mov_b64 exec, {sr(sMask,2)}",
                f"global_load_dwordx4 {vr(vKV+12*st+4,4)}, v{vVA}, {sr(sKV,2)} offset:{par*2048+1024} sc1",
                f"global_load_dwordx4 {vr(vKV+12*st+8,4)}, v{vVA}, {sr(sKV,2)} offset:{par*2048+1536} sc1",
                "s_mov_b64 exec, -1"]
    def step(t, q, mode="loop", lo=0, hi=16, extra=None):
        cur, oth = (SA, SB) if q % 2 == 0 else (SB, SA)
        tp, qp = (t, q - 1) if q else ((t - 1) % 4, 3)
        tn, qn = (t, q + 1) if q < 3 else ((t + 1) % 4, 0)
        after2, afterq, after1 = extra or ([], [], [])
        st = (t + 3) % 4; par = (t + 3) & 1
        if mode == "loop":
            if q == 0:
                after2 = vload(st, par); afterq = kload(st, par)
            if q == 1 and par == 1:
                ka = kvaddr(); after2 = ka[:2]; after1 = ka[2:]
                if OPT["co"]: afterq = ka[2:3]; after1 = ka[3:5]
            if q == 2 and par == 1 and OPT["co"]: after2 = kvaddr()[5:]
            if q == 3:
                after2 = ["s_waitcnt vmcnt(6)"]
                if t == 2:
                    after2 += [f"s_sub_u32 s{sCnt}, s{sCnt}, 1"]; afterq = [f"s_cmp_lg_u32 s{sCnt}, 0"]
        for i in range(lo, hi):
            E(f"v_exp_f32 v{cur+i}, v{cur+i}")
            if i == 1 and not (mode == "first" and q == 0):
                E(f"v_smfmac_f32_32x32x32_bf16 {vr(vO+16*qp,16)}, {vr(vKV+12*tp+8,4)}, {vr(oth+8,8)}, v{vIDX}")
                E(after2)
            if i == 4 and not (mode == "last" and q == 3):
                E(f"v_mfma_f32_32x32x16_bf16 {vr(oth,16)}, {vr(vKV+12*tn,4)}, {vr(vQ+4*qn,4)}, 0")
                E(afterq)
            if i == 10:
                E(f"v_smfmac_f32_32x32x32_bf16 {vr(vO+16*q,16)}, {vr(vKV+12*t+4,4)}, {vr(cur,8)}, v{vIDX}")
                E(after1)
    C("""==== attention: wave (X = w&1, z = w>>1) = head X, 128 queries, half of the keys ====
per 32x32 tile: S^T = K Q^T, p = exp2(S^T) in place, O^T += [V^T; 1] p.  The sparse MFMA picks the high half of every
fp32 p (= p as bf16), and the row of ones yields the row sum of exactly those p.
No shift is subtracted here: the row sums are checked below, and a wave whose sums left the safe range
redoes its rows with the true row maximum (L_safe).""")
    ackq = -OPT["ackr"] if LATE else -1
    assert ackq < OPT["bp"]
    for q in range(4):
        if q == ackq: E("s_waitcnt vmcnt(0)\ns_barrier")
        if q == OPT["bp"] - 1:
            step(0, q, "first", hi=11)
            E("s_barrier")
            stamp("m")
            E(kload(2, 0) + vload(2, 0)[:3] + vload(3, 1)[1:] + kload(3, 1) + kvaddr())
            step(0, q, "first", lo=11)
        else:
            step(0, q, "first", hi=(11 if q == 3 and OPT["seq"] else 16))
    def itst():
        if OPT.get("itst"):
            E(f"s_memtime s[90:91]\ns_memrealtime s[86:87]\ns_mov_b32 s89, m0\ns_mov_b32 m0, s{sCnt}\ns_waitcnt lgkmcnt(0)\nv_writelane_b32 v23, s90, m0\ns_bitset1_b32 m0, 3\ns_nop 0\nv_writelane_b32 v23, s86, m0\ns_mov_b32 m0, s89")
    if OPT["seq"]:
        assert OPT["bp"] < 4
        E(".p2align 3\nL_attn:")
        step(0, 3, lo=11)
        for t in (1, 2, 3, 0):
            for q in range(4):
                if (t, q) == (2, 3):
                    step(t, q, hi=11); itst(); E("s_cbranch_scc0 L_last"); step(t, q, lo=11)
                else:
                    step(t, q, hi=(11 if (t, q) == (0, 3) else 16))
        E("s_branch L_attn\nL_last:")
    else:
        E("s_branch L_attn1\n.p2align 3\nL_attn:")
        step(2, 3, lo=11)
        for t in (3, 0, 1, 2):
            if t == 1: E("L_attn1:")
            for q in range(4): step(t, q, hi=(11 if (t, q) == (2, 3) else 16))
        itst()
        E("s_cbranch_scc1 L_attn")
    step(2, 3, lo=11)
    C("""---- last key tile: query tiles 0,1 go to the partner wave while 2,3 are still being computed""")
    vR = 64
    def sendw(q): return [f"ds_write_b128 v{vRW}, {vr(vO+16*q,4)} offset:{2048*q}", f"ds_write_b128 v{vRW}, {vr(vO+16*q+4,4)} offset:{2048*q+1024}",
                          f"ds_write_b32 v{vRWl}, v{vO+16*q+8} offset:{4096+256*q}"]
    recv = ["s_waitcnt lgkmcnt(0)", "s_barrier",
            f"ds_read_b32 v{vR+16}, v{vRRl} offset:4096", f"ds_read_b128 {vr(vR,4)}, v{vRR}", f"ds_read_b128 {vr(vR+4,4)}, v{vRR} offset:1024",
            f"ds_read_b32 v{vR+17}, v{vRRl} offset:4352", f"ds_read_b128 {vr(vR+8,4)}, v{vRR} offset:2048", f"ds_read_b128 {vr(vR+12,4)}, v{vRR} offset:3072"]
    pol0 = ["s_mov_b64 exec, 1", f"global_atomic_add v6, v{vF2P}, v6, {sr(pFL,2)} sc0 sc1", "s_mov_b64 exec, -1"]
    es = OPT.get("es", 0)
    sig0 = ["s_bfm_b64 exec, 8, 0", f"global_atomic_add v{vF2}, v5, {sr(pFL,2)} sc1", "s_mov_b64 exec, -1"]
    step(3, 0, "last", extra=(hop() + (sig0 if es == 1 else []), [], [])); step(3, 1, "last", extra=(pol0 if OPT["pre"] == 1 else [], [], hop() + (sig0 if es == 2 else [])))
    w0 = sendw(0)
    step(3, 2, "last", extra=(w0[:1], w0[1:2], (pol0 if OPT["pre"] == 2 else []) + w0[2:]))
    step(3, 3, "last", extra=(hop() + (sig0 if es == 3 else []) + sendw(1), [], recv + (sig0 if es == 4 else [])))
    O2, O3 = vO + 32, vO + 48
    E(f"""
    s_waitcnt lgkmcnt(3)
    v_add_f32 v{O2+8}, v{O2+8}, v{vR+16}
    v_smfmac_f32_32x32x32_bf16 {vr(O3,16)}, {vr(vKV+36+8,4)}, {vr(SB+8,8)}, v{vIDX}
    """)
    E(hop())
    stamp("m")
    def fin(o, r, rl, dst, addr):
        if rl is not None: E(f"v_add_f32 v{o+8}, v{o+8}, v{rl}")
        E(f"v_rcp_f32 v{vT}, v{o+8}")
        if rl is not None:
            for j in range(0, 8, 2): E(f"v_pk_add_f32 {vr(o+j,2)}, {vr(o+j,2)}, {vr(r+j,2)}")
            for j in range(0, 8, 2): E(f"v_pk_mul_f32 {vr(o+j,2)}, {vr(o+j,2)}, {vr(vT,2)} op_sel_hi:[1,0]")
            for j in range(4): E(f"v_cvt_pk_bf16_f32 v{dst+j}, v{o+2*j}, v{o+2*j+1}")
            E(f"global_store_dwordx4 v{addr}, {vr(dst,4)}, {sr(pWs,2)} sc1")
            return
        if r is not None:
            for j in range(8): E(f"v_add_f32 v{o+j}, v{o+j}, v{r+j}")
        else:
            E("s_nop 0")
        for j in range(8): E(f"v_mul_f32 v{o+j}, v{o+j}, v{vT}")
        for j in range(4): E(f"v_cvt_pk_bf16_f32 v{dst+j}, v{o+2*j}, v{o+2*j+1}")
        E(f"global_store_dwordx4 v{addr}, {vr(dst,4)}, {sr(pWs,2)} sc1")
    fin(O2, vR, None, SA, vOA)
    E("s_waitcnt lgkmcnt(0)")
    E(hop())
    fin(O3, vR + 8, vR + 17, SA + 4, vOB)
    assert OPT["ep"] and OPT["pw"]
    if OPT["ep"]: E(f"s_mov_b64 exec, 1\nglobal_atomic_add v4, v{vF2P}, v4, {sr(pFL,2)} sc0 sc1\ns_mov_b64 exec, -1")
    E(hop())
    C("""---- guard: 2^-30 < row sum < 2^110 and finite results, else the exact max-subtracted path""")
    E(f"""
    s_mov_b32 s{ta}, {fbits(2.0**-30)}
    s_mov_b32 s{tb}, {fbits(2.0**110)}
    v_min_f32 v{vT+6}, v{O2+8}, v{O3+8}
    v_max_f32 v{vT+7}, v{O2+8}, v{O3+8}
    v_cmp_lt_f32 vcc, s{ta}, v{vT+6}
    v_cmp_gt_f32 {sr(tc,2)}, s{tb}, v{vT+7}
    v_pk_mul_f32 {vr(vT+2,2)}, {vr(O2,2)}, 0 op_sel_hi:[1,0]
    s_and_b64 {sr(tc,2)}, {sr(tc,2)}, vcc
    """)
    for j in (2, 4, 6, 16, 18, 20, 22):
        E(f"v_pk_fma_f32 {vr(vT+2,2)}, {vr(O2+j,2)}, 0, {vr(vT+2,2)} op_sel_hi:[1,0,1]")
    E(f"""
    v_cmp_o_f32 vcc, v{vT+2}, v{vT+3}
    s_nop 1
    s_and_b64 vcc, {sr(tc,2)}, vcc
    s_cmp_eq_u64 vcc, -1
    s_cbranch_scc0 L_safe
    """)
    C("""---- signal my O fragments once they are acknowledged; fetch those of head pairs 4w..4w+3 when all were signalled""")
    test = lambda r: [f"s_bfe_u32 s{r}, s{r}, s{sBfe}", f"s_cmp_eq_u32 s{r}, 8"]
    def odma():
        for j in range(4):
            E(f"global_load_lds_dwordx4 v{vOD}, {sr(pWs,2)} offset:{1024*j} sc1")
        E(f"s_add_u32 m0, s{sXO}, {OFL+4096}")
        E(hop() or ["s_nop 0"])
        for j in range(4):
            E(f"global_load_lds_dwordx4 v{vOD2}, {sr(pWs,2)} offset:{1024*j} sc1")
    if OPT["pre"]:
        E(f"s_waitcnt vmcnt({4 if es >= 2 + (OPT['pre'] == 2) else 3})\nv_readfirstlane_b32 s{ta}, v6\ns_nop 0")
        E(test(ta)); E("s_cbranch_scc0 L_late")
        if OPT.get("noack") and not es: add_ctr(vF2, 5, 8)
        odma()
        if OPT.get("noack"): E("s_waitcnt vmcnt(0)")
        else:
            E("s_waitcnt vmcnt(9)")
            add_ctr(vF2, 5, 8)
        n0 = nstamp["m"]; stamp("m"); stamp("m"); nstamp["m"] = n0
        E("s_waitcnt vmcnt(1)\ns_branch L_got\nL_late:")
    E("L_pub:" if OPT.get("noack") else "s_waitcnt vmcnt(1)\nL_pub:")
    if not es: add_ctr(vF2, 5, 8)
    stamp("m")
    poll_ctr(vF2P, 4, test, OPT["pd"], 1 if es else 2)
    stamp("m")
    odma()
    E(f"s_waitcnt vmcnt(0)\nL_got:\nds_write_b8 v2, v{vOne} offset:{CNT+12}")
    stamp("m")
    if OPT["hop"]: E(f"L_hop{nhop[0]}:\ns_cbranch_execz L_hopdone")
    stamp_flush("m"); spin_end("m")
    if OPT.get("itst"):
        E(f"v_lshl_add_u32 v2, v1, 2, v2\nv_add_u32 v2, 0x100000, v2\ns_mov_b64 exec, 0xffff\nglobal_store_dword v2, v23, {sr(pWs,2)}")
    E("s_endpgm")
    C("""==== fallback: softmax with the true row maximum, this wave's 64 queries over all 2048 keys ====""")
    vM, vC = vT + 6, 64
    vQ += 8; vO += 32
    E(f"""
    L_safe:
    s_waitcnt vmcnt(0)
    s_lshl_b32 s{ta}, s{sZ}, 12
    s_sub_u32 s{sKVb}, s{sKVb}, s{ta}
    s_subb_u32 s{sKVb+1}, s{sKVb+1}, 0
    s_mov_b32 s{sKV}, s{sKVb}
    s_mov_b32 s{sKV+1}, s{sKVb+1}
    s_mov_b32 s{sCnt}, 64
    v_mov_b32 v{vM}, 0xff800000
    v_mov_b32 v{vM+1}, 0xff800000
    L_safe1:
    global_load_dwordx4 {vr(vKV,4)}, v{vKA}, {sr(sKV,2)} sc1
    s_add_u32 s{sKV}, s{sKV}, 2048
    s_addc_u32 s{sKV+1}, s{sKV+1}, 0
    s_waitcnt vmcnt(0)
    v_mfma_f32_32x32x16_bf16 {vr(SA,16)}, {vr(vKV,4)}, {vr(vQ,4)}, 0
    v_mfma_f32_32x32x16_bf16 {vr(SB,16)}, {vr(vKV,4)}, {vr(vQ+4,4)}, 0
    s_nop 15
    """)
    for j in range(8):
        E(f"v_max3_f32 v{vM}, v{SA+2*j}, v{SA+2*j+1}, v{vM}\nv_max3_f32 v{vM+1}, v{SB+2*j}, v{SB+2*j+1}, v{vM+1}")
    E(f"""
    s_sub_u32 s{sCnt}, s{sCnt}, 1
    s_cmp_lg_u32 s{sCnt}, 0
    s_cbranch_scc1 L_safe1
    v_mov_b32 v{SA}, v{vM}
    v_mov_b32 v{SB}, v{vM+1}
    s_nop 1
    v_permlane32_swap_b32 v{SA}, v{vM}
    v_permlane32_swap_b32 v{SB}, v{vM+1}
    s_nop 1
    v_max_f32 v{vM}, v{vM}, v{SA}
    v_max_f32 v{vM+1}, v{vM+1}, v{SB}
    """)
    for j in range(16):
        E(f"v_sub_f32 v{vC+j}, 0, v{vM}\nv_sub_f32 v{vC+16+j}, 0, v{vM+1}\nv_mov_b32 v{vO+j}, 0\nv_mov_b32 v{vO+16+j}, 0")
    E(f"""
    s_mov_b32 s{sKV}, s{sKVb}
    s_mov_b32 s{sKV+1}, s{sKVb+1}
    s_mov_b32 s{sCnt}, 64
    L_safe2:
    """)
    E(kload(0, 0) + vload(0, 0))
    E(f"""
    s_add_u32 s{sKV}, s{sKV}, 2048
    s_addc_u32 s{sKV+1}, s{sKV+1}, 0
    s_waitcnt vmcnt(0)
    v_mfma_f32_32x32x16_bf16 {vr(SA,16)}, {vr(vKV,4)}, {vr(vQ,4)}, {vr(vC,16)}
    v_mfma_f32_32x32x16_bf16 {vr(SB,16)}, {vr(vKV,4)}, {vr(vQ+4,4)}, {vr(vC+16,16)}
    s_nop 15
    """)
    for j in range(32):
        E(f"v_exp_f32 v{SA+j}, v{SA+j}")
    E(f"""
    s_nop 1
    v_smfmac_f32_32x32x32_bf16 {vr(vO,16)}, {vr(vKV+4,4)}, {vr(SA,8)}, v{vIDX}
    v_smfmac_f32_32x32x32_bf16 {vr(vO,16)}, {vr(vKV+8,4)}, {vr(SA+8,8)}, v{vIDX}
    v_smfmac_f32_32x32x32_bf16 {vr(vO+16,16)}, {vr(vKV+4,4)}, {vr(SB,8)}, v{vIDX}
    v_smfmac_f32_32x32x32_bf16 {vr(vO+16,16)}, {vr(vKV+8,4)}, {vr(SB+8,8)}, v{vIDX}
    s_sub_u32 s{sCnt}, s{sCnt}, 1
    s_cmp_lg_u32 s{sCnt}, 0
    s_cbranch_scc1 L_safe2
    s_nop 15
    """)
    fin(O2, None, None, SA, vOA); fin(O3, None, None, SA + 4, vOB)
    E("s_waitcnt vmcnt(0)\ns_branch L_pub")

def helper_wave():
    sH, sC, sMH, sRT, sCB, sD = sT, sT + 1, sT + 2, sT + 3, sT + 4, sT + 5
    sLd, sDs = sT + 6, sT + 7
    t0 = sT + 8
    sLead, sWst, sPar = 92, 93, 94
    sAT = 100
    vGW = 156
    vGWA = 155
    vXF = 160
    vG, vGA0, vGA1 = 164, 165, 166
    vU = 168
    vKW = 128
    vNb, vPad, vF4, vF4P, vRdy, vF1, vF1P = range(141, 148)
    vTA, vTS = 148, 152
    sUW = sT + 13; sOut = sT + 12
    assert NS == 3
    vPar = 4
    C("""==== helper waves: wave h = (channel c = h>>1, mode half = h&1); SSM branch, gate, output projection ====""")
    E(f"""
    L_helper:
    s_lshr_b32 s{sC}, s{sH}, 1
    s_add_u32 s{sD}, s{sCH}, s{sC}
    s_and_b32 s{sCB if OPT["fm"] else sRT}, s{sHP}, 3
    s_lshr_b32 s{sRT if OPT["fm"] else sCB}, s{sHP}, 2
    v_lshrrev_b32 v3, 5, v1
    v_lshlrev_b32 v3, 4, v3
    s_lshl_b32 s{t0+2}, s{sROT}, 2
    s_add_u32 s{t0+2}, s{t0+2}, s{sH}
    s_lshl_b32 s{t0+2}, s{t0+2}, 5
    s_add_u32 s{t0+2}, s{t0+2}, {GW}
    v_add_u32 v{vGWA}, s{t0+2}, v3
    v_mov_b32 v12, 0
    v_mov_b32 v13, 0
    v_mov_b32 v14, 0
    v_mov_b32 v15, 0
    s_cmp_lt_u32 s2, 16
    s_cselect_b32 s{sLead}, s{sW}, 0
    """)
    E(f"s_add_u32 s{pFL}, s{pWs}, {WS_FL}\ns_addc_u32 s{pFL+1}, s{pWs+1}, 0")
    stamp("h")
    E(f"""
    s_mul_i32 s{t0}, s{sC}, {URS}
    s_add_u32 s{t0}, s{t0}, {UR+4096}
    v_lshl_add_u32 v10, v1, 4, s{t0}
    v_and_b32 v11, 1, v1
    v_lshlrev_b32 v11, 4, v11
    v_cmp_gt_u32 vcc, 30, v1
    v_add_u32 v11, {CNT}, v11
    v_mov_b32 v2, 0x3f803f80
    v_cndmask_b32 v10, v11, v10, vcc
    ds_write_b128 v10, v[12:15]
    v_and_b32 v11, 3, v1
    v_lshlrev_b32 v11, 2, v11
    ds_write_b32 v11, v2 offset:{CNT+32}
    """)
    vWA, vRA = 16, 17
    if "prio1" in OPT: E(f"s_setprio {OPT['prio1']}")
    E(f"""
    s_mul_i32 s{t0}, s{sRT}, {WPART}
    s_add_u32 s{t0}, s{t0}, {RING}
    v_and_b32 v10, 31, v1
    v_lshl_add_u32 v10, v10, 7, s{t0}
    v_bfe_u32 v11, v1, 1, 3
    v_lshrrev_b32 v3, 5, v1
    v_xor_b32 v11, v11, v3
    s_lshl_b32 s{t0}, s{sH}, 1
    v_xor_b32 v11, s{t0}, v11
    v_lshl_add_u32 v{vGA0}, v11, 4, v10
    v_mov_b32 v{vG}, 0
    s_lshr_b32 s{sUW}, s{sHP}, 1
    s_sub_u32 s{sUW}, s{sUW}, s{sROT}
    s_and_b32 s{sUW}, s{sUW}, 7
    s_mul_i32 s{t0}, s{sUW}, 11
    s_lshr_b32 s{t0}, s{t0}, 5
    s_mul_i32 s{t0}, s{t0}, 3
    s_sub_u32 s{t0}, s{sUW}, s{t0}
    s_mul_i32 s{t0}, s{t0}, {SLOT}
    s_mul_i32 s{t0+1}, s{sH}, {WPART}
    s_add_u32 s{t0}, s{t0}, s{t0+1}
    s_add_u32 s{t0}, s{t0}, {RING}
    v_and_b32 v10, 3, v1
    v_bfe_u32 v11, v1, 2, 2
    v_lshlrev_b32 v10, 3, v10
    v_sub_u32 v10, v10, v11
    v_add_u32 v10, 7, v10
    v_bfe_u32 v11, v10, 1, 3
    v_xor_b32 v11, v11, v3
    s_and_b32 s{t0+1}, s{sHP}, 1
    s_lshl_b32 s{t0+1}, s{t0+1}, 2
    v_xor_b32 v11, s{t0+1}, v11
    v_lshlrev_b32 v11, 4, v11
    v_lshl_add_u32 v11, v10, 7, v11
    v_bfe_u32 v10, v1, 4, 1
    v_lshl_add_u32 v11, v10, 3, v11
    v_add_u32 v{vTA}, s{t0}, v11
    v_xor_b32 v{vTA+1}, 32, v{vTA}
    v_subrev_u32 v{vTA+2}, 512, v{vTA}
    v_subrev_u32 v{vTA+3}, 512, v{vTA+1}
    s_mul_i32 s{t0}, s{sH}, {KGS}
    s_add_u32 s{t0}, s{t0}, {KG}
    s_mov_b32 m0, s{t0}
    v_and_b32 v10, 31, v1
    v_mul_u32_u24 v10, 272, v10
    v_lshl_add_u32 v10, v3, 4, v10
    v_add_u32 v{vRA}, s{t0}, v10
    """)
    K = []
    def k(s, c=None):
        if isinstance(s, list): s = "\n".join(s)
        for x in s.split("\n"):
            x = x.strip()
            if not x: continue
            cc = c if c is not None else (8 if any(t in x for t in ("v_exp", "v_sin", "v_cos", "v_rcp", "ds_")) else 4)
            K.append((cc, x))
    va, vb, vt = 220, 221, 222
    log2e = math.log2(math.e)
    c_hi = struct.unpack("<f", struct.pack("<f", log2e))[0]
    c_lo = log2e - c_hi
    k(f"""
    s_waitcnt lgkmcnt(0)
    s_lshl_b32 s{t0}, s{sC}, 4
    s_lshr_b32 s{sLd}, s{sLd}, s{t0}
    s_lshl_b32 s{sLd}, s{sLd}, 16
    s_lshr_b32 s{sDs}, s{sDs}, s{t0}
    s_lshl_b32 s{sDs}, s{sDs}, 16
    s_mov_b32 s{t0}, {fbits(c_hi)}
    v_mov_b32 v{vt}, s{sLd}
    v_mul_f32 v{vt+1}, s{t0}, v{vt}
    v_fma_f32 v{vt+2}, v{vt}, s{t0}, -v{vt+1}
    v_fmac_f32 v{vt+2}, {fbits(c_lo)}, v{vt}
    v_exp_f32 v{vt+1}, v{vt+1}
    v_mul_f32 v{vt+2}, {fbits(math.log(2.0))}, v{vt+2}
    v_fma_f32 v{vt+1}, v{vt+1}, v{vt+2}, v{vt+1}
    v_cvt_pk_bf16_f32 v{vt+1}, v{vt+1}, v{vt+1}
    v_lshlrev_b32 v{vt}, 16, v{vt+1}
    """)
    KPRE = [x for _, x in K]; K.clear()
    k("s_waitcnt vmcnt(0)")
    for j in range(6):
        k(f"v_lshlrev_b32 v{vPar+j}, 16, v{vPar+j}")
    k(f"""
    v_mul_f32 v{va}, v{vt}, v{vPar}
    v_mul_f32 v{vb}, v{vt}, v{vPar+1}
    v_mul_f32 v{vPar+2}, v{vt}, v{vPar+2}
    v_mul_f32 v{vPar+3}, v{vt}, v{vPar+3}
    v_mul_f32 v{va}, {fbits(c_hi)}, v{va}
    v_mul_f32 v{vb}, 0.15915494, v{vb}
    """)
    def cmul(z, x, w):
        if OPT["pk"]:
            return [f"v_pk_mul_f32 {vr(z,2)}, {vr(x,2)}, {vr(w,2)} op_sel_hi:[0,1]",
                    f"v_pk_fma_f32 {vr(z,2)}, {vr(x,2)}, {vr(w,2)}, {vr(z,2)} op_sel:[1,1,0] op_sel_hi:[1,0,1] neg_lo:[1,0,0]"]
        return [f"v_mul_f32 v{z}, v{x}, v{w}\nv_mul_f32 v{z+1}, v{x}, v{w+1}",
                f"v_fma_f32 v{z}, -v{x+1}, v{w+1}, v{z}\nv_fmac_f32 v{z+1}, v{x+1}, v{w}"]
    def cmuls(lst):
        cm = [cmul(*a) for a in lst]
        k([c[0] for c in cm]); k([c[1] for c in cm])
    def direct(z, x):
        k(f"""
        v_mul_f32 v{vt+2}, {fbits(x)}, v{vb}
        v_mul_f32 v{vt+1}, {fbits(x)}, v{va}
        v_fract_f32 v{vt+2}, v{vt+2}
        v_exp_f32 v{vt+1}, v{vt+1}
        v_cos_f32 v{z}, v{vt+2}
        v_sin_f32 v{z+1}, v{vt+2}
        s_nop 0
        v_mul_f32 v{z}, v{z}, v{vt+1}
        v_mul_f32 v{z+1}, v{z+1}, v{vt+1}
        """)
    E1, E32, E256 = 226, 228, 230
    vE = 232
    vPk = 64
    npk = [0]
    DW = {False: [], True: []}
    def puts(lst, neg):
        for z, rows in lst:
            p = vPk + npk[0]; npk[0] += 1
            k(f"v_cvt_pk_bf16_f32 v{p}, v{z}, {'-' if neg else ''}v{z+1}")
            DW[neg] += [f"ds_write_addtid_b32 v{p} offset:{272*r}" for r in rows]
        if OPT["kds"] > neg: k(DW[neg]); DW[neg] = []
    def e(j): return vE + 2 * (j % 8)
    direct(e(1), 8.0); direct(E32, 32.0)
    k(f"v_mov_b32 v{e(0)}, 1.0\nv_mov_b32 v{e(0)+1}, 0\nv_mov_b32 v{e(4)}, v{E32}\nv_mov_b32 v{e(4)+1}, v{E32+1}")
    cmuls([(e(2), e(1), e(1)), (e(5), e(1), E32)])
    cmuls([(e(3), e(2), e(1)), (e(6), e(2), E32)])
    cmuls([(e(7), e(3), E32)])
    puts([(e(j), [j]) for j in range(4)], False)
    for j0 in range(4, 32, 4):
        if j0 + 4 < 32: cmuls([(e(j + 4), e(j), E32) for j in range(j0, j0 + 4)])
        puts([(e(j), [j]) for j in range(j0, j0 + 4)], False)
    vEF, vGF, vD = (64 if OPT["kds"] else 192), 224, 176
    if OPT["kds"]: k([f"ds_read_b128 {vr(vEF+4*s,4)}, v{vRA} offset:{32*s}" for s in range(8)])
    direct(E1, 1.0); direct(E256, 256.0)
    def row(r, h): return 8 * (r >> 2) + 4 * h + (r & 3)
    vGv = 192
    g = {x: vGv + 2 * x for x in range(9)}
    E2 = e(0)
    cmuls([(g[0], vPar + 4, vPar + 2), (E2, E1, E1)])
    cmuls([(g[1], g[0], E1), (g[2], g[0], E2)])
    cmuls([(g[3], g[1], E2), (g[4], g[2], E2)])
    puts([(g[x], [row(x, 0)]) for x in range(4)], True)
    cmuls([(g[5], g[3], E2), (g[6], g[4], E2)])
    cmuls([(g[7], g[5], E2), (g[8], g[6], E2)])
    puts([(g[x], [row(x, 0)]) for x in range(4, 8)], True)
    A = {o: vGv + 18 + 2 * i for i, o in enumerate((0, 2, 4, 6, 8))}
    cmuls([(A[o], g[o], E256) for o in (0, 2, 4, 6, 8)])
    puts([(A[o], [row(r, 1) for r in rs]) for o, rs in ((0, (0, 1)), (2, (2,)), (4, (3, 4, 5)), (6, (6,)), (8, (7,)))], True)
    src, dst = A, g
    for os_, r0, h in (((0, 4, 8), 8, 0), ((0, 4, 8), 8, 1), ((0, 8), 11, 0), ((0, 8), 11, 1), ((0, 8), 13, 0), ((0, 8), 13, 1)):
        cmuls([(dst[o], src[o], E256) for o in os_])
        puts([(dst[o], [row(r0 + i, h)]) for i, o in enumerate(os_)], True)
        src, dst = dst, src
    if OPT["kds"] == 2: k([f"ds_read_b128 {vr(vGF+4*s,4)}, v{vRA} offset:{32*s}" for s in range(8)])
    def D1():
        if not OPT["kds"]: E(DW[False] + [f"ds_read_b128 {vr(vEF+4*s,4)}, v{vRA} offset:{32*s}" for s in range(8)])
    def D2():
        if OPT["kds"] < 2: E(DW[True] + [f"ds_read_b128 {vr(vGF+4*s,4)}, v{vRA} offset:{32*s}" for s in range(8)])
    (vCP, vAA, vBA, vUW, vCW, vCR, vAT, vF3, vWoG, vWoL, vF3P, vAL, vGPw, vGPr, vWoP, vUL, vClO, vOne, vCA, vTm, vomg, vg, vOut, vOL) = range(24, 48)
    vA = 48; vAcc = 96; vF2 = 3; vON = 2; vF2v = 23; vATW = 166; vWoL2 = vClO; sWs2 = 10; vXR, vSA, vSB, vSV = 124, 125, 126, 127
    LQH = {0: 2, 1: 0, 2: 1}[OPT["xm"]]
    LOH = [{0: 2, 1: 1, 2: 1}, {0: 3, 1: 2, 2: 3}][OPT["fm"]][OPT["xm"]]
    ADDR = f"""
    v_mov_b32 v{vCA}, {CNT}
    s_lshl_b32 s{t0}, s{sC}, 2
    s_add_u32 s{t0}, s{t0}, {CNT+4}
    v_mov_b32 v{vCP}, s{t0}
    v_mov_b32 v{vOne}, 1
    v_lshlrev_b32 v23, 4, v1
    s_lshl_b32 s{t0}, s{sH}, 10
    s_sub_u32 s{t0}, {UR+4080-512}, s{t0}
    v_lshrrev_b32 v18, 1, v1
    v_lshlrev_b32 v19, 4, v18
    v_sub_u32 v19, s{t0}, v19
    v_and_b32 v20, 1, v1
    v_mul_u32_u24 v21, {URS}, v20
    v_add_u32 v{vUW}, v19, v21
    s_lshr_b32 s{t0}, s{sCH}, 2
    s_lshl_b32 s{t0}, s{t0}, 14
    s_lshl_b32 s{t0+1}, s{sH}, 12
    s_add_u32 s{t0}, s{t0}, s{t0+1}
    s_and_b32 s{t0+1}, s{sRB}, 1
    s_lshl_b32 s{t0+1}, s{t0+1}, 5
    s_add_u32 s{t0}, s{t0}, s{t0+1}
    s_add_u32 s{t0}, s{t0}, {WS_UT}
    v_lshl_add_u32 v18, v18, 6, s{t0}
    v_lshl_add_u32 v{vUL}, v20, 4, v18
    v_and_b32 v18, 15, v1
    v_add_u32 v19, 1, v18
    v_and_b32 v20, 3, v19
    v_mul_u32_u24 v20, {KCP}, v20
    v_lshrrev_b32 v19, 2, v19
    v_lshl_add_u32 v20, v19, 3, v20
    v_lshrrev_b32 v21, 4, v1
    v_lshlrev_b32 v22, 4, v21
    s_mul_i32 s{t0}, s{sC}, {2*KGS}
    s_lshl_b32 s{t0+1}, s{sMH}, 8
    s_add_u32 s{t0}, s{t0}, s{t0+1}
    s_add_u32 s{t0}, s{t0}, {KG}
    v_add3_u32 v{vAA}, v20, v22, s{t0}
    s_mul_i32 s{t0}, s{sC}, {URS}
    s_add_u32 s{t0}, s{t0}, s{t0+1}
    s_add_u32 s{t0}, s{t0}, {UR+4064-3584}
    v_lshlrev_b32 v19, 5, v18
    v_sub_u32 v22, v22, v19
    v_add_u32 v{vBA}, s{t0}, v22
    s_lshl_b32 s{t0}, s{sH}, 12
    s_add_u32 s{t0}, s{t0}, {CRED}
    v_add_u32 v{vCW}, s{t0}, v23
    s_xor_b32 s{t0}, s{sH}, 1
    s_lshl_b32 s{t0}, s{t0}, 12
    s_add_u32 s{t0}, s{t0}, {CRED}
    v_add_u32 v{vCR}, s{t0}, v23
    v_lshl_add_u32 v19, v18, 5, s{t0}
    v_lshl_add_u32 v{vATW}, v21, 3, v19
    v_add_u32 v{vOL}, {OFL}, v23
    {f"v_lshrrev_b32 v19, 2, v1" if OPT["atr"] else ""}
    {f"v_lshlrev_b32 v19, 15, v19" if OPT["atr"] else ""}
    {f"v_and_b32 v20, 48, v23" if OPT["atr"] else ""}
    {f"v_add_u32 v{vAT}, v19, v20" if OPT["atr"] else ""}
    s_lshl_b32 s{t0}, s{sMH}, 20
    s_lshl_b32 s{t0+1}, s{sD}, 6
    s_add_u32 s{t0}, s{t0}, s{t0+1}
    s_add_u32 s{t0}, s{t0}, {WS_AT}
    s_add_u32 s{sAT}, s{pWs}, s{t0}
    s_addc_u32 s{sAT+1}, s{pWs+1}, 0
    s_lshl4_add_u32 s{t0}, s{sMH}, s{sHP}
    s_add_u32 s{t0}, s{t0}, {F3}
    s_lshl_b32 s{t0}, s{t0}, {FSH}
    v_mov_b32 v{vF3}, s{t0}
    s_mov_b32 s{SRDW}, s{pWo}
    s_mov_b32 s{SRDW+1}, s{pWo+1}
    s_mov_b32 s{SRDW+2}, {512*1024}
    s_mov_b32 s{SRDW+3}, 0x00020000
    s_lshl_b32 s{t0}, s{sCB}, 2
    s_add_u32 s{t0}, s{t0}, s{sH}
    s_lshl_b32 s{t0+1}, s{t0}, 6
    v_lshrrev_b32 v18, 2, v1
    v_lshl_add_u32 v18, v18, 10, s{t0+1}
    v_and_b32 v19, 3, v1
    v_lshl_add_u32 v{vWoG}, v19, 4, v18
    s_mul_i32 s{sWst}, s{sH}, {WSL*1024}
    s_add_u32 s{sWst}, s{sWst}, {WST}
    v_lshrrev_b32 v22, 5, v1
    v_lshlrev_b32 v20, 2, v22
    v_bfe_u32 v21, v1, 2, 2
    v_add_u32 v20, v20, v21
    v_lshl_add_u32 v20, v20, 6, s{sWst}
    v_lshl_add_u32 v20, v19, 3, v20
    v_bfe_u32 v21, v1, 4, 1
    v_lshl_add_u32 v{vWoL}, v21, 5, v20
    s_lshr_b32 s{t0+1}, s{sRB}, 3
    s_lshl4_add_u32 s{t0+1}, s{t0+1}, s{t0}
    s_add_u32 s{t0+1}, s{t0+1}, {F3}
    s_lshl_b32 s{t0+1}, s{t0+1}, {FSH}
    v_mov_b32 v{vF3P}, s{t0+1}
    s_lshl_b32 s{t0}, s{t0}, 5
    v_and_b32 v18, 31, v1
    s_lshl_b32 s{t0+1}, s{sRB}, 2
    s_add_u32 s{t0+1}, s{t0+1}, s{sRT}
    s_lshl_b32 s{t0+2}, s{t0+1}, 15
    s_lshl_b32 s{t0+3}, s{t0}, 6
    s_add_u32 s{t0+3}, s{t0+3}, s{t0+2}
    s_add_u32 s{t0+3}, s{t0+3}, {WS_AT}
    v_lshlrev_b32 v20, 8, v22
    v_lshl_add_u32 v20, v18, 1, v20
    v_add_u32 v{vAL}, s{t0+3}, v20
    s_lshl_b32 s{t0}, s{t0}, 1
    s_add_u32 s{sOut}, s{t0}, s{t0+2}
    """.split("\n")
    ADDR += f"""
    s_lshl_b32 s{t0}, s{sRB}, 2
    s_add_u32 s{t0}, s{t0}, s{sH}
    s_lshl_b32 s{t0}, s{t0}, 8
    s_lshl_b32 s{t0+1}, s{sHP}, 17
    s_add_u32 s{t0}, s{t0}, s{t0+1}
    s_add_u32 s{t0}, s{t0}, {WS_UT}
    v_and_b32 v18, 15, v1
    v_lshl_add_u32 v18, v18, 4, s{t0}
    v_lshrrev_b32 v19, 4, v1
    v_lshl_add_u32 v{vTS}, v19, 14, v18
    v_add_u32 v{vTS+1}, 0x10000, v{vTS}
    v_and_b32 v18, 15, v1
    v_lshlrev_b32 v{vRdy}, 2, v18
    s_lshl_b32 s{t0}, s{sHP}, 4
    v_add_u32 v19, s{t0}, v18
    v_lshlrev_b32 v{vF1P}, {FSH}, v19
    s_add_u32 s{t0}, s{t0}, s{sRB}
    s_lshr_b32 s{t0+1}, s{t0}, 2
    s_add_u32 s{t0+1}, s{t0+1}, {F4}
    s_lshl_b32 s{t0+1}, s{t0+1}, {FSH}
    v_mov_b32 v{vF4}, s{t0+1}
    s_lshl2_add_u32 s{t0+1}, s{sHP}, s{sH}
    s_add_u32 s{t0+1}, s{t0+1}, {F4}
    s_lshl_b32 s{t0+1}, s{t0+1}, {FSH}
    v_mov_b32 v{vF4P}, s{t0+1}
    s_lshl_b32 s{t0}, s{t0}, {FSH}
    v_mov_b32 v{vF1}, s{t0}
    v_and_b32 v18, 31, v1
    v_lshlrev_b32 v18, 5, v18
    v_lshrrev_b32 v19, 5, v1
    v_lshl_add_u32 v19, v19, 2, v18
    s_lshl_b32 s{t0}, s{sH}, 3
    s_add_u32 s{t0}, s{t0}, {GP}
    v_add_u32 v{vGPw}, s{t0}, v19
    v_add_u32 v{vGPr}, {GP}, v18
    s_lshr_b32 s{t0}, s2, 3
    s_lshl_b32 s{t0}, s{t0}, 2
    s_add_u32 s{t0}, s{t0}, s{sH}
    s_lshl_b32 s{t0}, s{t0}, 12
    s_lshr_b32 s{t0+1}, s{sCB}, {LOH-1}
    s_lshl_b32 s{t0+1}, s{t0+1}, {7+LOH}
    s_add_u32 s{t0}, s{t0}, s{t0+1}
    v_bfe_u32 v18, v1, {LOH}, 2
    v_lshl_add_u32 v18, v18, 10, s{t0}
    v_and_b32 v19, {(1<<LOH)-1}, v1
    v_lshl_add_u32 v{vWoP}, v19, 7, v18
    """.split("\n") + [f"v_mov_b32 v{vA+j}, 0" for j in range(16)]
    ADDR += f"""
    s_mul_i32 s{t0}, s{sC}, {2*KGS}
    v_lshrrev_b32 v18, 1, v1
    v_mul_u32_u24 v18, {KCP}, v18
    v_and_b32 v19, 1, v1
    v_cmp_eq_u32 {sr(sPar,2)}, 1, v19
    v_lshlrev_b32 v19, 4, v19
    v_add3_u32 v{vPad}, v18, v19, s{t0}
    s_lshl_b32 s{t0+1}, s{sMH}, 10
    s_add_u32 s{t0}, s{t0}, s{t0+1}
    s_add_u32 s{t0}, s{t0}, {KG+32}
    v_lshl_add_u32 v{vKW}, v1, 4, s{t0}
    s_lshl_b32 s{t0}, s{sH}, 12
    s_add_u32 s{t0}, s{t0}, {CRED+2048}
    v_lshl_add_u32 v{vNb}, v1, 3, s{t0}
    """.split("\n") + [f"v_add_u32 v{vKW+3*c+u}, {c*KCP+u*1024}, v{vKW}" for c in range(4) for u in range(3) if c or u]
    if OPT["wp"]:
        ADDR += f"""
        s_lshl1_add_u32 s{t0}, s{sCB}, s{sC}
        s_lshl_b32 s{t0}, s{t0}, 7
        s_lshl_b32 s{t0+1}, s{sMH}, 13
        s_add_u32 s{t0}, s{t0}, s{t0+1}
        v_lshrrev_b32 v18, 3, v1
        v_lshl_add_u32 v18, v18, 10, s{t0}
        v_lshrrev_b32 v19, 2, v1
        v_and_b32 v19, 4, v19
        v_xor_b32 v19, v19, v1
        v_and_b32 v19, 7, v19
        v_lshl_add_u32 v{vWoG}, v19, 4, v18
        v_lshrrev_b32 v18, 5, v1
        v_bfe_u32 v19, v1, 2, 2
        v_lshl_add_u32 v18, v18, 2, v19
        v_lshlrev_b32 v18, 7, v18
        v_bfe_u32 v19, v1, 3, 1
        v_xor_b32 v19, s{sMH}, v19
        v_lshl_add_u32 v18, v19, 6, v18
        v_bfe_u32 v19, v1, 4, 1
        v_lshl_add_u32 v18, v19, 5, v18
        v_and_b32 v19, 3, v1
        v_lshl_add_u32 v18, v19, 3, v18
        s_mul_i32 s{sWs2}, s{sC}, {2*KGS}
        v_add_u32 v{vWoL2}, s{sWs2}, v18
        s_lshl_b32 s{sWst}, s{sC}, 14
        s_add_u32 s{sWst}, s{sWst}, {WST}
        v_add_u32 v{vWoL}, s{sWst}, v18
        s_lshl_b32 s{t0}, s{sMH}, 10
        s_add_u32 s{sWst}, s{sWst}, s{t0}
        s_add_u32 s{sWs2}, s{sWs2}, s{t0}
        """.split("\n")
    assert KG == 0
    ADDR = [x.strip() for x in ADDR if x.strip()]
    def GATEF():
        E("s_waitcnt lgkmcnt(0)")
        for j in range(4):
            E(f"v_dot2_f32_bf16 v{vG}, v{vXF+j}, v{vGW+j}, v{vG}")
        E(f"s_nop 2\nds_write_b32 v{vGPw}, v{vG}")
    def SIG():
        E(f"""
        ds_read_b128 v[4:7], v{vGPr}
        ds_read_b128 v[8:11], v{vGPr} offset:16
        s_waitcnt lgkmcnt(0)
        v_add_f32 v4, v4, v5
        v_add_f32 v6, v6, v7
        v_add_f32 v8, v8, v9
        v_add_f32 v10, v10, v11
        v_add_f32 v4, v4, v6
        v_add_f32 v8, v8, v10
        v_add_f32 v4, v4, v8
        v_mul_f32 v4, {fbits(-log2e)}, v4
        v_exp_f32 v4, v4
        s_nop 0
        v_add_f32 v4, 1.0, v4
        v_rcp_f32 v{vg}, v4
        s_nop 0
        v_sub_f32 v{vomg}, 1.0, v{vg}
        """)
    def KD():
        E("s_setprio 0\ns_waitcnt lgkmcnt(0)")
        for s in range(8):
            E(f"v_mfma_f32_32x32x16_bf16 {vr(vD,16)}, {vr(vGF+4*s,4)}, {vr(vEF+4*s,4)}, {'0' if s == 0 else vr(vD,16)}")
        E(f"s_setprio {OPT['prio']}")
        l1 = newlab("k1"); l2 = newlab("k2")
        R = 64
        def xch(send, keep, n):
            E(f"ds_write_b128 v{vCW}, {vr(send,4)}\nds_write_b128 v{vCW}, {vr(send+4,4)} offset:1024")
            lds_arrive(vCP, vOne)
            lds_wait(vCP, vTm, 2)
            E(f"ds_read_b128 {vr(R,4)}, v{vCR}\nds_read_b128 {vr(R+4,4)}, v{vCR} offset:1024\ns_waitcnt lgkmcnt(0)")
            for j in range(n): E(f"v_add_f32 v{R+j}, v{R+j}, v{keep+j}")
        def w2(c, u, r):
            E(f"ds_write2_b32 v{vKW+3*c+u}, v{r[0]}, v{r[1]} offset0:0 offset1:1\nds_write2_b32 v{vKW+3*c+u}, v{r[2]}, v{r[3]} offset0:2 offset1:3")
        E(f"s_nop 8\ns_cmp_eq_u32 s{sMH}, 0\ns_cbranch_scc0 {l1}")
        xch(vD + 8, vD, 8)
        e, o = 72, 80
        E(f"""
        s_mov_b64 exec, 0xff
        ds_write_b128 v{vPad}, v[12:15]
        s_mov_b64 exec, 1
        v_add_f32 v{R}, s{sDs}, v{R}
        s_mov_b64 exec, -1
        """)
        for j in range(4): E(f"v_cvt_pk_bf16_f32 v{e+j}, v{R+2*j}, v{R+2*j+1}")
        E(f"""
        v_cvt_pk_bf16_f32 v{o+6}, v{R+7}, v{R+7}
        ds_write2_b32 v{vNb}, v{o+6}, v{o+6} offset0:2 offset1:3
        ds_write_b64 v{vNb}, {vr(e,2)}
        ds_read_b64 {vr(e+4,2)}, v{vNb} offset:8
        ds_write_b128 v{vKW}, {vr(e,4)}
        s_waitcnt lgkmcnt(1)
        """)
        for j in range(5): E(f"v_alignbit_b32 v{o+j}, v{e+j+1}, v{e+j}, 16")
        E(f"ds_write_b128 v{vKW+3}, {vr(o,4)}")
        w2(2, 0, [e + 1, e + 2, e + 3, e + 4]); w2(3, 0, [o + 1, o + 2, o + 3, o + 4])
        E(f"""
        s_mov_b64 exec, 1
        v_lshlrev_b32 v{o+6}, 16, v{e}
        ds_write_b32 v{vPad}, v{o+6} offset:{28+KCP}
        ds_write_b32 v{vPad}, v{e} offset:{28+2*KCP}
        ds_write_b32 v{vPad}, v{o+6} offset:{24+3*KCP}
        ds_write_b32 v{vPad}, v{o} offset:{28+3*KCP}
        s_mov_b64 exec, -1
        s_branch {l2}
        {l1}:
        """)
        xch(vD, vD + 8, 7)
        aa, ab, bb, bc, cc = range(72, 77)
        for d, x, y in ((aa, 0, 0), (ab, 0, 1), (bb, 1, 1), (bc, 1, 2), (cc, 2, 2)):
            E(f"v_cvt_pk_bf16_f32 v{d}, v{R+x}, v{R+y}")
        for c, r in enumerate(([aa, ab, bb, cc], [aa, bb, bc, cc], [ab, bb, cc, cc], [bb, bc, cc, cc])): w2(c, 0, r)
        for u in (1, 2):
            a_, c_ = R + 1 + 2 * u, R + 2 + 2 * u
            sel, aa, as_, sc, cc = range(72 + 5 * u, 77 + 5 * u)
            E(f"v_cndmask_b32 v{sel}, v{a_}, v{c_}, {sr(sPar,2)}")
            for d, x, y in ((aa, a_, a_), (cc, c_, c_), (as_, a_, sel), (sc, sel, c_)):
                E(f"v_cvt_pk_bf16_f32 v{d}, v{x}, v{y}")
            for c, r in enumerate(([aa, aa, sc, cc], [aa, as_, cc, cc], [aa, sc, cc, cc], [as_, cc, cc, cc])): w2(c, u, r)
        E(f"{l2}:")
    def gate_glue(i):
        SQW = [int(c) for c in str(OPT["sq"])]
        if i - 1 not in SQW: E("s_waitcnt lgkmcnt(0)")
        if OPT.get("hst"): stamp("h")
        E("s_barrier")
        if i == 1:
            lq = newlab("nr")
            E(f"""
            s_cmp_eq_u32 s{sLead}, 7
            s_cbranch_scc0 {lq}
            s_mul_i32 s{sSPIN}, s2, 40
            v_add_lshl_u32 v10, v1, s{sSPIN}, {FSH}
            s_bfm_b64 exec, 40, 0
            global_store_dword v10, v12, {sr(pFL,2)} sc1
            s_mov_b64 exec, -1
            {f"s_lshl_b32 s{sSPIN}, s2, 6" if OPT["sep"] else ""}
            {f"s_add_u32 s{sSPIN}, s{sSPIN}, {4*F2}" if OPT["sep"] else ""}
            {f"v_add_lshl_u32 v10, v1, s{sSPIN}, {FSH-2}" if OPT["sep"] else ""}
            {f"global_store_dword v10, v12, {sr(pFL,2)} sc1" if OPT["sep"] else ""}
            {lq}:
            """)
        if i == OPT["rdyw"]:
            lq = newlab("nr")
            E(f"""
            s_cmp_eq_u32 s{sLead}, 7
            s_cbranch_scc0 {lq}
            s_lshl_b32 s{sSPIN}, s2, 2
            v_mov_b32 v10, s{sSPIN}
            v_mov_b32 v11, 1
            s_waitcnt vmcnt(0)
            """)
            put_flag(10, 11, pDbg)
            E(f"{lq}:")
        if i >= 1:
            for j in range(4):
                E(f"v_dot2_f32_bf16 v{vG}, v{vXF+j}, v{vGW+j}, v{vG}")
        slot = i % NS
        E(f"ds_read_b128 {vr(vXF,4)}, v{vGA0} offset:{slot*SLOT}")
        E(f"ds_read_b128 {vr(vGW,4)}, v{vGWA} offset:{128*i}")
        E(f"""
        s_cmp_eq_u32 s{sUW}, {i}
        s_cbranch_scc0 L_ut{i}
        ds_read_b64_tr_b16 {vr(vU,2)}, v{vTA}
        ds_read_b64_tr_b16 {vr(vU+2,2)}, v{vTA+3}
        ds_read_b64_tr_b16 {vr(vU+4,2)}, v{vTA+1}
        ds_read_b64_tr_b16 {vr(vU+6,2)}, v{vTA+2}
        L_ut{i}:
        """)
        if i in SQW:
            if i == SQW[0]: E(f"""
            s_lshr_b32 s{t0}, s2, 3
            s_lshl2_add_u32 s{t0}, s{t0}, s{sH}
            s_mul_i32 s{t0}, s{t0}, 12288
            s_lshr_b32 s{t0+1}, s{sHP}, 2
            s_lshl_b32 s{t0+1}, s{t0+1}, 8
            s_add_u32 s{t0}, s{t0}, s{t0+1}
            s_add_u32 s8, s{pW}, s{t0}
            s_addc_u32 s9, s{pW+1}, 0
            """)
            E("s_waitcnt lgkmcnt(0)")
            k_ = SQW.index(i); n_ = len(SQW)
            if OPT.get("sqm", 0) == 0:
                for j in range(16 * k_ // n_, 16 * (k_ + 1) // n_):
                    E(f"s_load_dword s{18+j%8}, s[8:9], {(j>>2)*3072+(j&3)*64}")
            else:
                for j in range(8 * k_ // n_, 8 * (k_ + 1) // n_):
                    E(f"s_load_dwordx2 s[{18+2*(j%4)}:{19+2*(j%4)}], s[8:9], {(j>>1)*3072+(j&1)*128+60}")
    C("""addresses of all later phases; dt = bf16(exp(log_dt))""")
    E(ADDR); E(KPRE)
    C("""---- S4 kernel: K(hi + 8j) = Re sum_n G_n(hi) E_n(8j), E(x) = exp(dt A x), G = C dt B E, lane = mode n.
The lag is rounded to bf16 as in the reference, so 27 values of hi cover all lags.
Between the ring barriers: gate dot products and the transposed piece of u; 16 workgroups clear the hand-off counters.""")
    tot = sum(c for c, _ in K); nw = OPT["kw"]
    segs = [[] for _ in range(8)]; acc = 0
    kp = tot * OPT["kp"] / 100; k0 = kp + tot * OPT["k0"] / 100
    for c, x in K:
        if acc < kp: E(x)
        elif acc < k0: segs[0].append(x)
        else: segs[1 + min(nw - 2, int((acc - k0) * (nw - 1) / (tot - k0)))].append(x)
        acc += c
    for i in range(8):
        gate_glue(i)
        if not OPT.get("nokg"): E(segs[i])
        if i == OPT["pg"]:
            C("instruction prefetch does not cross a 4-KB page: visit the first line of each later page once (no lane active, branches only)")
            E("s_mov_b64 exec, 0\ns_branch L_pg0\nL_pgdone:\ns_mov_b64 exec, -1")
    stamp("h")
    GATEF()
    E(f"global_load_dword v{vTm}, v{vRdy}, {sr(pDbg,2)} sc1")
    E(f"s_setprio {OPT['prioq']}\ns_waitcnt lgkmcnt(0)\ns_barrier")
    stamp("h")
    lq = newlab("nf"); lr = newlab("rdy")
    LATE = OPT["ackr"] <= 0
    assert LATE or OPT["q3"] < 8
    SIG()
    if OPT["q3"] < 4: E("s_barrier")
    if LATE: E("s_barrier")
    E(f"s_setprio {OPT['prio']}\ns_waitcnt vmcnt(0)\ns_barrier")
    stamp("h")
    C("""---- K / V hand-off: counters are used only after all 16 clears were announced in d_debug""")
    E(f"s_cmp_lg_u32 s{sH}, 1")
    E(f"""
    s_cbranch_scc1 {lq}
    v_cmp_ne_u32 vcc, 0, v{vTm}
    s_nop 1
    s_cmp_eq_u64 vcc, -1
    s_cbranch_scc1 {lr}
    """)
    poll_global(vRdy, pDbg, vTm)
    E(f"{lr}:")
    add_ctr(vF1P, vOne, 16)
    if OPT["e1"]:
        assert not OPT["hs"]
        if OPT["e1"] == 2: E("s_waitcnt vmcnt(0)")
        E(f"v_mov_b32 v4, 0\ns_mov_b64 exec, 1\nglobal_atomic_add v4, v{vF1}, v4, {sr(pFL,2)} sc0 sc1\ns_mov_b64 exec, -1")
    E(f"{lq}:")
    uts = f"""
    global_store_dwordx4 v{vTS}, {vr(vU,4)}, {sr(pWs,2)} sc1
    global_store_dwordx4 v{vTS+1}, {vr(vU+4,4)}, {sr(pWs,2)} sc1
    """
    if OPT["utp"] == 1: E(uts)
    if not LATE: E("s_barrier")
    lq = newlab("nf")
    E(f"s_cmp_lg_u32 s{sH}, 1\ns_cbranch_scc1 {lq}")
    poll_ctr(vF1, 4, lambda r: [f"s_cmp_eq_u32 s{r}, 16"], OPT["pd"], min(1, OPT["e1"]))
    E(f"{lq}:")
    E("s_setprio 0\ns_barrier")
    stamp("h")
    C("""---- publish u^T; transpose E / G through LDS, sum the modes on the matrix core, build 4 shifted copies of K (+ Dskip)""")
    if OPT["utp"] == 2:
        D1(); E("s_waitcnt lgkmcnt(0)"); E(uts); D2()
        E("s_waitcnt vmcnt(0)")
        add_ctr(vF4, vOne, 1)
        KD()
    elif OPT["utp"] == 3:
        E(f"global_load_dword v{vTm}, v{vRdy}, {sr(pDbg,2)} sc1\ns_waitcnt vmcnt(0)")
        E(uts); D1(); D2()
        E("s_waitcnt vmcnt(0)")
        add_ctr(vF4, vOne, 1)
        KD()
    else:
        if OPT["utp"] == 0: E(uts)
        E("s_waitcnt vmcnt(0)")
        add_ctr(vF4, vOne, 1)
        if OPT["utp"] == 1: E("s_waitcnt vmcnt(0)")
        D1(); D2(); KD()
    if OPT["wopf"] == 2:
        E(f"""
        s_lshr_b32 s{t0}, s2, 3
        s_lshl2_add_u32 s{t0}, s{t0}, s{sH}
        s_lshl_b32 s{t0}, s{t0}, 12
        s_add_u32 s8, s{pWo}, s{t0}
        s_addc_u32 s9, s{pWo+1}, 0
        """)
        for j in range(32):
            E(f"s_load_dwordx2 s[{18+2*(j%4)}:{19+2*(j%4)}], s[8:9], {j*128+60}")
    poll_ctr(vF4P, vTm, lambda r: [f"s_cmp_eq_u32 s{r}, 16"])
    E(f"""
    global_load_dwordx4 v[12:15], v{vUL}, {sr(pWs,2)} sc1
    global_load_dwordx4 v[16:19], v{vUL}, {sr(pWs,2)} offset:2048 sc1
    s_waitcnt vmcnt(0)
    ds_write_b128 v{vUW}, v[12:15] offset:512
    ds_write_b128 v{vUW}, v[16:19]
    """)
    lds_arrive(vCA, vOne)
    lds_wait(vCA, vTm, 4 + 4 * OPT["hs"])
    stamp("h")
    vY = 64
    vF = [96, 192]
    def creads(r):
        f = vF[r & 1]; o = []
        for gmm in range(8):
            o.append(f"ds_read_b64 {vr(f+4*gmm,2)}, v{vAA} offset:{512*gmm+64*r}")
            o.append(f"ds_read_b64 {vr(f+4*gmm+2,2)}, v{vAA} offset:{512*gmm+64*r+8}")
            o.append(f"ds_read_b128 {vr(f+32+4*gmm,4)}, v{vBA} offset:{3584-512*gmm+64*r}")
        return o
    C("""---- causal convolution as Toeplitz MFMAs: y[16a+b] += K[32c-15+b+k] u[16a-32c+15-k]""")
    E(creads(0))
    E(f"s_setprio {OPT.get('prio3', OPT['prio'])}")
    for r in range(4):
        f = vF[r & 1]
        nxt = creads(r + 1) if r < 3 else []
        if r == 2 and OPT["wopf"] == 1:
            E(f"s_bfm_b64 exec, {4<<LOH}, 0\nglobal_load_dword v20, v{vWoP}, {sr(pWo,2)}\ns_mov_b64 exec, -1")
        E("s_waitcnt lgkmcnt(0)")
        seen = set()
        for gmm in range(8):
            for dl in range(8 - gmm):
                tau = gmm + dl
                c = "0" if (r == 0 and tau not in seen) else vr(vY + 4 * tau, 4)
                seen.add(tau)
                if not OPT.get("noconv") or (OPT["noconv"] == 2 and gmm < 2): E(f"v_mfma_f32_16x16x32_bf16 {vr(vY+4*tau,4)}, {vr(f+4*gmm,4)}, {vr(f+32+4*dl,4)}, {c}")
                if nxt: E(nxt.pop(0))
    E(f"s_setprio {OPT['prio']}")
    l1 = newlab("c1"); l2 = newlab("c2")
    E(f"s_nop 5\ns_cmp_eq_u32 s{sMH}, 0\ns_cbranch_scc0 {l1}")
    def conv_fin(send, keep):
        for j in range(4):
            E(f"ds_write_b128 v{vCW}, {vr(send+4*j,4)} offset:{1024*j}")
        lds_arrive(vCP, vOne)
        lds_wait(vCP, vTm, 4)
        for j in range(4):
            E(f"ds_read_b128 {vr(96+4*j,4)}, v{vCR} offset:{1024*j}")
        E("s_waitcnt lgkmcnt(0)")
        for j in range(16):
            E(f"v_add_f32 v{96+j}, v{keep+j}, v{96+j}")
    conv_fin(vY + 16, vY)
    E(f"s_branch {l2}\n{l1}:")
    conv_fin(vY, vY + 16)
    E(f"{l2}:")
    for j in range(4):
        E(f"v_cvt_pk_bf16_f32 v{112+2*j}, v{96+4*j}, v{97+4*j}\nv_cvt_pk_bf16_f32 v{113+2*j}, v{98+4*j}, v{99+4*j}")
        if OPT["atr"]:
            E(f"ds_write_b64 v{vATW}, {vr(112+2*j,2)} offset:{512*j}")
            continue
        E(f"global_store_dwordx2 v{vAT}, {vr(112+2*j,2)}, {sr(sAT,2)} sc1")
        if j < 3: E(f"s_add_u32 s{sAT}, s{sAT}, {8*32768}\ns_addc_u32 s{sAT+1}, s{sAT+1}, 0")
    if OPT["atr"]:
        E(f"""
        ds_read_b128 v[96:99], v{vCR}
        ds_read_b128 v[100:103], v{vCR} offset:1024
        s_waitcnt lgkmcnt(1)
        global_store_dwordx4 v{vAT}, v[96:99], {sr(sAT,2)} sc1
        s_add_u32 s{sAT}, s{sAT}, {16*32768}
        s_addc_u32 s{sAT+1}, s{sAT+1}, 0
        s_waitcnt lgkmcnt(0)
        global_store_dwordx4 v{vAT}, v[100:103], {sr(sAT,2)} sc1
        """)
    E("s_waitcnt vmcnt(0)")
    add_ctr(vF3, vOne, 1)
    stamp("h")
    C("""---- W_o slice (32 columns per wave) into registers""")
    vWo = 128
    sO = t0 + 2
    WD = OPT["wod"]
    if OPT["wp"] and not OPT.get("nowo"):
        def wiss(b, j):
            if j >= WD: E(f"s_waitcnt vmcnt({WD-1})")
            E(f"s_add_u32 m0, s{sWs2 if b & 1 else sWst}, {2048*j}\ns_mov_b32 s{sO}, {(8*b+j)*16384}")
            E(f"buffer_load_dwordx4 v{vWoG}, {sr(SRDW,4)}, s{sO} offen lds")
        if OPT["lp"]: E("s_setprio 0")
        for j in range(8): wiss(0, j)
        for b in range(4):
            E("s_waitcnt vmcnt(0) lgkmcnt(0)")
            if OPT["lp"]: E(f"s_setprio {OPT['prio']}")
            lds_arrive(vCP, vOne); lds_wait(vCP, vTm, 6 + 2 * b)
            if OPT["lp"]: E("s_setprio 0")
            for j in range(8):
                if b < 3: wiss(b + 1, j)
                a = vWoL2 if b & 1 else vWoL
                E(f"ds_read_b64_tr_b16 {vr(vWo+4*(8*b+j),2)}, v{a} offset:{2048*j}")
                E(f"ds_read_b64_tr_b16 {vr(vWo+4*(8*b+j)+2,2)}, v{a} offset:{2048*j+1024}")
        if OPT["lp"]: E(f"s_setprio {OPT['prio']}")
    if OPT["lp"] and not OPT["wp"]: E("s_setprio 0")
    for hd in range(0 if OPT.get("nowo") or OPT["wp"] else 32 + WD):
        if hd < 32:
            if hd % 4 == 0: E(f"s_add_u32 m0, s{sWst}, {(hd%WSL)*1024}")
            E(f"s_mov_b32 s{sO}, {hd*16384-(hd%4)*1024}")
            E(f"buffer_load_dwordx4 v{vWoG}, {sr(SRDW,4)}, s{sO} offen offset:{(hd%4)*1024} lds")
        r = hd - WD
        if r >= 0:
            E(f"s_waitcnt vmcnt({min(WD, 31-r)}) lgkmcnt(8)")
            E(f"ds_read_b64_tr_b16 {vr(vWo+4*r,2)}, v{vWoL} offset:{1024*(r%WSL)}")
            E(f"ds_read_b64_tr_b16 {vr(vWo+4*r+2,2)}, v{vWoL} offset:{1024*(r%WSL)+512}")
    E("s_waitcnt lgkmcnt(0)")
    if OPT["lp"] and not OPT["wp"]: E(f"s_setprio {OPT['prio']}")
    stamp("h")
    if OPT["clo"] & 1:
        E(f"s_bfm_b64 exec, 32, 0\nglobal_store_dword v{vClO}, v{vOne}, {sr(pWs,2)} sc1\ns_mov_b64 exec, -1")
    if OPT["clo"] & 2:
        E(f"s_bfm_b64 exec, 32, 0\nglobal_store_dword v{vOut}, v{vOne}, {sr(pOut,2)} sc1\ns_mov_b64 exec, -1")
    C("""---- a = y + u Dskip for my 32 x 32 output tile""")
    poll_ctr(vF3P, vTm, lambda r: [f"s_cmp_eq_u32 s{r}, 32"])
    if OPT["lp"]: E("s_setprio 0")
    for r in range(16):
        if r >= OPT["ad"]: E(f"s_waitcnt vmcnt({OPT['ad']-1})")
        E(f"global_load_short_d16_hi v{vA+r}, v{vAL}, {sr(pWs,2)} offset:{(8*(r>>2)+(r&3))*64} sc1")
    if OPT["hop"]: E("s_mov_b64 exec, 0\ns_branch L_hop0\nL_hopdone:\ns_mov_b64 exec, -1")
    sTodo, sId = t0, t0 + 2
    E(f"s_mov_b32 s{sTodo}, 0x01010101\ns_mov_b32 s{sSPIN}, {OPT['spin']*8}\ns_waitcnt vmcnt(0) lgkmcnt(0)")
    stamp("h")
    lq = newlab("nf")
    if OPT["pw"]:
        E("s_setprio 0\ns_barrier")
    else:
        E(f"s_barrier\ns_cmp_lg_u32 s{sH}, 0\ns_barrier\ns_cbranch_scc1 {lq}")
        add_ctr(vF2, vF2v, 16)
        E(f"{lq}:\ns_setprio 0")
    stamp("h")
    for r in range(16):
        E(f"v_mul_f32 v{vA+r}, v{vg}, v{vA+r}")
    vTW, vTR, vOu2 = 4, 5, 6
    if OPT["otr"]: E(f"""
    s_mul_i32 s{sId}, s{sH}, 2560
    v_and_b32 v7, 31, v1
    v_mul_u32_u24 v7, 80, v7
    v_lshrrev_b32 v{vTW}, 5, v1
    v_lshlrev_b32 v{vTW}, 3, v{vTW}
    v_add3_u32 v{vTW}, v{vTW}, v7, s{sId}
    v_lshrrev_b32 v7, 2, v1
    v_lshl_add_u32 v{vOut}, v7, 10, s{sOut}
    v_mul_u32_u24 v7, 80, v7
    v_and_b32 v{vTR}, 3, v1
    v_lshlrev_b32 v{vTR}, 4, v{vTR}
    v_add_u32 v{vOut}, v{vOut}, v{vTR}
    v_add_u32 v{vOu2}, 0x4000, v{vOut}
    v_add3_u32 v{vTR}, v{vTR}, v7, s{sId}
    """)
    vB = 64; vAc = [96, 112, 8, 24]
    def ord_(j): return f"ds_read_b128 {vr(vB+4*j,4)}, v{vON} offset:{1024*j}"
    def pick(skip):
        return [f"v_readfirstlane_b32 s{sId}, v{vTm}", "s_nop 0", f"s_and_b32 s{sId}, s{sId}, s{sTodo}", f"s_cbranch_scc0 {skip}",
                f"s_ff1_i32_b32 s{sId}, s{sId}", f"v_lshl_add_u32 v{vON}, s{sId}, 10, v{vOL}"] + [ord_(j) for j in range(4)]
    E(hop())
    C("""---- output projection, one group of 8 heads at a time in arrival order, one accumulator per group""")
    E(f"""
    L_fwait:
    ds_read_b32 v{vTm}, v{vCA} offset:12
    s_sub_u32 s{sSPIN}, s{sSPIN}, 1
    s_cbranch_scc1 L_fend
    s_waitcnt lgkmcnt(0)
    """)
    E(pick("L_fwait"))
    E("L_fdisp:")
    E([ord_(j) for j in range(4, 8)])
    E(f"""
    ds_read_b32 v{vTm}, v{vCA} offset:12
    s_bitset0_b32 s{sTodo}, s{sId}
    s_cmp_eq_u32 s{sId}, 8
    s_cbranch_scc1 L_fb1
    s_cmp_eq_u32 s{sId}, 16
    s_cbranch_scc1 L_fb2
    s_cmp_eq_u32 s{sId}, 24
    s_cbranch_scc1 L_fb3
    """)
    for c in range(4):
        E(f"L_fb{c}:")
        for j in range(8):
            if j <= 4: E(f"s_waitcnt lgkmcnt({8-j if j < 4 else 0})")
            if j % OPT.get("fsk", 1) == 0: E(f"v_mfma_f32_32x32x16_bf16 {vr(vAc[c],16)}, {vr(vWo+4*(8*c+j),4)}, {vr(vB+4*j,4)}, {vr(vAc[c],16) if j else 0}")
            if j in (0, 5): E(hop())
            if j == 4:
                E(pick(f"L_fs{c}"))
                E(f"L_fs{c}:")
        E("s_cbranch_scc1 L_fdisp")
        if c < 3: E("s_branch L_fnext")
    E(f"""
    L_fnext:
    s_cmp_lg_u32 s{sTodo}, 0
    s_cbranch_scc1 L_fwait
    L_fend:
    """)
    stamp("h")
    E("s_nop 8")
    C("""---- out = g a + (1 - g) b""")
    assert vomg % 2 == 0
    fl = ["", "sc1", "nt", "sc0 sc1", "sc1 nt"][OPT["outsc"]]
    for hf in (0, 8):
        for x, y in ((0, 1), (2, 3), (0, 2)):
            for r in range(hf, hf + 8, 2):
                E(f"v_pk_add_f32 {vr(vAc[x]+r,2)}, {vr(vAc[x]+r,2)}, {vr(vAc[y]+r,2)}")
        for r in range(hf, hf + 8, 2):
            E(f"v_pk_fma_f32 {vr(vAcc+r,2)}, {vr(vAcc+r,2)}, {vr(vomg,2)}, {vr(vA+r,2)} op_sel_hi:[1,0,1]")
        p = vB + hf // 2
        if OPT["otr"]:
            for j in range(4):
                E(f"v_cvt_pk_bf16_f32 v{p+j}, v{vAcc+hf+2*j}, v{vAcc+hf+2*j+1}")
                if j & 1: E(f"ds_write_b64 v{vTW}, {vr(p+j-1,2)} offset:{4*hf+8*(j-1)}")
            continue
        for j in (0, 2, 1, 3):
            E(f"v_cvt_pk_bf16_f32 v{p+j}, v{vAcc+hf+2*j}, v{vAcc+hf+2*j+1}")
        E(f"v_permlane32_swap_b32 v{p}, v{p+2}")
        E(hop() or ["s_nop 0"])
        E(f"v_permlane32_swap_b32 v{p+1}, v{p+3}")
        E(f"global_store_dwordx4 v{vOut}, {vr(p,4)}, {sr(pOut,2)} offset:{4*hf} {fl}")
    if OPT["otr"]:
        E(f"""
        ds_read_b128 {vr(vB+8,4)}, v{vTR}
        ds_read_b128 {vr(vB+12,4)}, v{vTR} offset:1280
        s_waitcnt lgkmcnt(1)
        global_store_dwordx4 v{vOut}, {vr(vB+8,4)}, {sr(pOut,2)} {fl}
        s_waitcnt lgkmcnt(0)
        global_store_dwordx4 v{vOu2}, {vr(vB+12,4)}, {sr(pOut,2)} {fl}
        """)
    stamp("h")
    if STAMP:
        E("s_waitcnt vmcnt(0)"); stamp("h")
    stamp_flush("h"); spin_end("h")
    E("s_endpgm")

hdr = open(f"cdna_kernels/{NAME}.s.ref").read().split("; Override launch")[0]
prologue(); main_wave()
if OPT['lay']: helper_wave()
E("L_end:\ns_endpgm")
if 1 <= OPT["pg"] <= 6:
    import subprocess, os, tempfile
    KOFF = 0x300
    def addrs(lines):
        t = tempfile.mkdtemp()
        body = "\n".join(f"T_{i}:\n{x}" for i, x in enumerate(lines))
        need = "" if any(x.startswith("L_pg0:") for x in lines) else "L_pg0:\n"
        open(t + "/a.s", "w").write('.amdgcn_target "amdgcn-amd-amdhsa--gfx950"\n.text\n' + body + "\n" + need)
        subprocess.run(["clang", "-x", "assembler", "-target", "amdgcn-amd-amdhsa", "-mcpu=gfx950", "-c", t + "/a.s", "-o", t + "/a.o"], check=True)
        o = subprocess.run(["llvm-objdump", "-t", t + "/a.o"], capture_output=True, text=True).stdout
        return {int(l.split()[-1][2:]): int(l.split()[0], 16) + KOFF for l in o.split("\n") if l.split() and l.split()[-1].startswith("T_")}
    npg = 0; page = 0x1000
    while True:
        ad = addrs(L)
        idx = [i for i in range(len(L)) if ad[i] >= page and L[i].startswith("    ") and not L[i].strip().startswith(".")]
        if not idx: break
        i = idx[0]
        if L.index("L_safe:") < i < L.index("L_fwait:"):
            page += 0x1000; continue
        good = [j for j in idx if ad[j] < page + 60 and "mfma" in L[j-1]]
        if good: i = good[0]
        if npg: L[last] = f"    s_cbranch_execz L_pg{npg}"
        L[i:i] = [f"L_pg{npg}:", "    s_cbranch_execz L_pgdone"]
        last = i + 1; npg += 1; page += 0x1000
out = hdr + f"""; One persistent launch: 256 workgroups (one per CU) x 8 waves; hand-offs through d_ws with bounded waits.
; @launch grid=(256,1,1) block=(512,1,1) lds={LDS_BYTES}
.amdgcn_target "amdgcn-amd-amdhsa--gfx950"
.text
.globl {NAME}_kernel
{".p2align 12" if OPT["al"] else ""}
.p2align 8
.type {NAME}_kernel,@function
{NAME}_kernel:
""" + "\n".join(L) + f"""
.section .rodata,"a"
.p2align 6
.amdhsa_kernel {NAME}_kernel
  .amdhsa_next_free_vgpr 256
  .amdhsa_next_free_sgpr 102
  .amdhsa_accum_offset 256
  .amdhsa_group_segment_fixed_size 0
  .amdhsa_kernarg_size 128
  .amdhsa_user_sgpr_count 2
  .amdhsa_user_sgpr_kernarg_segment_ptr 1
  .amdhsa_system_sgpr_workgroup_id_x 1
.end_amdhsa_kernel
"""
open(sys.argv[1], "w").write(out)
```

```python
import sys, math, struct

NAME = "gated_mix__ssm_conv_s4__mha_block__prompt"
OPT = dict(stamp=0, rot=5, fs=256, spin=200000, prio=2, outsc=1, prio3=0, pf=1, tlb=0, wod=2, wopf=1, prioq=0, lq=7, epc=16, ackn=22,
           d1=3, d1w=4, kw=7, clo=0, rdyw=3, xm=2, fm=1, bp=2, hop=0, ep=1, pd=1, psl=3, hs=0, e1=1, pw=1, utp=2, pre=1, q3=0, a0=0, ackr=10, otr=1, al=1, lay=2, xf=0, co=1, seq=1, kp=30, k0=70, kds=0, pk=1, atr=1, wp=0, ad=8, lp=1, sep=0, m16=1, pg=9, wt=0, ord=0, sq=9, q2=1, hsp=2)
for a in sys.argv[2:]:
    k, v = a.split("=")
    OPT[k] = int(v)
assert OPT['atr'] and OPT['otr'] and OPT['pw'] and OPT['co'] and not OPT['clo']
STAMP = OPT["stamp"]
FS = OPT["fs"]
FSH = int(math.log2(FS))

L = []
def E(s):
    if isinstance(s, list): s = "\n".join(s)
    for x in s.split("\n"):
        x = x.strip()
        if x:
            L.append(("" if x.endswith(":") else "    ") + x)
def C(s):
    for x in s.strip("\n").split("\n"): L.append("; " + x.strip())
def fbits(x): return "0x%08x" % struct.unpack("<I", struct.pack("<f", x))[0]
def vr(a, n): return f"v[{a}:{a+n-1}]"
def sr(a, n): return f"s[{a}:{a+n-1}]"

WS_KV = 0
WS_OF = 4 << 20
WS_AT = 6 << 20
WS_FL = 8 << 20
WS_UT = 10 << 20
WS_ST = 16 << 20
F1, F2 = 0, 256
F3, F4 = 512, 544
KG = 0; KGS = 8704
KCP = 4160
UR = KG + 4 * KGS; URS = 4576
GP = UR + 2 * URS
GW = GP + 1024
CNT = GW + 2048
RING = CNT + 64
SLOT = 24576; WPART = 6144; NS = 3
WQ = RING + NS * SLOT
LDS_BYTES = WQ + 32768
EXCH = RING; RED = WQ; REDS = 4608
CRED = RING; WST = RING + 16384; WSL = 12; OFL = RING
assert RING % 256 == 0 and WST + 4 * WSL * 1024 <= WQ and LDS_BYTES <= 163840
sW, sHP, sRB, sCH, sROT = 3, 4, 5, 6, 7
SRDX, SRDW = 8, 12
pX, pAre, pAim, pBre, pBim, pCre, pCim, pLdt = 16, 18, 20, 22, 24, 26, 28, 30
pDsk, pW, pWo, pGw, pOut, pDbg, pWs = 32, 36, 38, 40, 42, 44, 46
pFL = 34
sT = 48
sSPIN = 62
sST = 64

nstamp = {"m": 0, "h": 0}
SPM, SPH = OPT.get("spm", -1), OPT.get("sph", -1)
def spin_end(role):
    if (SPM if role == "m" else SPH) < 0: return
    l = newlab("sp")
    if OPT.get("sel"):
        E(f"""
        s_lshl3_add_u32 s98, s2, s{sW}
        s_lshl_b32 s98, s98, 7
        s_add_u32 s98, s98, {40 << 20}
        v_mov_b32 v3, s98
        v_mov_b32 v4, 0x12345678
        global_load_dword v5, v3, {sr(pWs,2)} sc1
        s_waitcnt vmcnt(0)
        global_store_dword v3, v4, {sr(pWs,2)} sc1
        v_readfirstlane_b32 s98, v5
        s_waitcnt vmcnt(0)
        s_cmp_eq_u32 s98, 0x12345678
        s_cbranch_scc{OPT["sel"]-1} L_end
        """)
    E(f"{l}:\ns_memrealtime s[98:99]\ns_waitcnt lgkmcnt(0)\ns_sub_u32 s98, s98, s96\ns_cmp_lt_i32 s98, 4000\ns_cbranch_scc1 {l}")
def stamp(role):
    if SPM >= 0 or SPH >= 0:
        i = nstamp[role]; nstamp[role] += 1
        if i == (SPM if role == "m" else SPH):
            if OPT.get("amp"): E(f"s_memrealtime s[98:99]\ns_waitcnt lgkmcnt(0)\ns_sub_u32 s98, s98, s96\ns_mul_i32 s98, s98, {OPT['amp']}\ns_sub_u32 s98, s98, {OPT.get('sub',0)*100}\ns_add_u32 s96, s96, s98")
            else: E("s_memrealtime s[96:97]\ns_waitcnt lgkmcnt(0)")
        return
    if not STAMP or nstamp[role] >= 14: return
    i = nstamp[role]; nstamp[role] += 1
    E(f"s_memrealtime {sr(sST+2*i,2)}\ns_waitcnt lgkmcnt(0)")
def stamp_flush(role):
    if not STAMP: return
    E(f"s_lshl_b32 s{sT}, s2, 3\ns_add_u32 s{sT}, s{sT}, s{sW}\ns_lshl_b32 s{sT}, s{sT}, 6\ns_add_u32 s{sT}, s{sT}, {WS_ST}\nv_mov_b32 v2, s{sT}")
    for i in range(nstamp[role]):
        E(f"v_mov_b32 v3, s{sST+2*i}\nglobal_store_dword v2, v3, {sr(pWs,2)} offset:{4*i}")
    E(f"s_getreg_b32 s{sT}, hwreg(HW_REG_XCC_ID)\nv_mov_b32 v3, s{sT}\nglobal_store_dword v2, v3, {sr(pWs,2)} offset:60")

lab = [0]
def newlab(p):
    lab[0] += 1
    return f"L_{p}_{lab[0]}"

nhop = [0]
def hop():
    if not OPT["hop"]: return []
    nhop[0] += 1
    return [f"L_hop{nhop[0]-1}:", f"s_cbranch_execz L_hop{nhop[0]}"]

def poll_global(vaddr, base, vtmp):
    l = newlab("poll"); d = newlab("polld")
    E(f"""
    s_mov_b32 s{sSPIN}, {OPT['spin']}
    {l}:
    global_load_dword v{vtmp}, v{vaddr}, {sr(base,2)} sc1
    s_sub_u32 s{sSPIN}, s{sSPIN}, 1
    s_cbranch_scc1 {d}
    s_waitcnt vmcnt(0)
    v_cmp_ne_u32 vcc, 0, v{vtmp}
    s_nop 1
    s_cmp_eq_u64 vcc, -1
    s_cbranch_scc0 {l}
    {d}:
    s_waitcnt vmcnt(0)
    """)
def poll_ctr(vaddr, vtmp, test, depth=1, first=False):
    l = newlab("pc"); d = newlab("pcd"); c = newlab("pcc")
    at = lambda r: [f"v_mov_b32 v{r}, 0", f"global_atomic_add v{r}, v{vaddr}, v{r}, {sr(pFL,2)} sc0 sc1"]
    E(f"s_mov_b32 s{sSPIN}, {OPT['spin']}\ns_mov_b64 exec, 1")
    if depth == 1:
        if first: E(f"s_branch {c}")
        E(f"{l}:"); E(at(vtmp))
        if first == 2: E("s_waitcnt vmcnt(0)")
        E(f"{c}:\ns_sub_u32 s{sSPIN}, s{sSPIN}, 1\ns_cbranch_scc1 {d}\ns_waitcnt vmcnt({1 if first == 2 else 0})\nv_readfirstlane_b32 s{sSPIN+1}, v{vtmp}\ns_nop 0")
        E(test(sSPIN + 1)); E(f"s_cbranch_scc0 {l}")
    else:
        for i in range(1 if first else 0, depth - 1):
            if i: E(f"s_sleep {OPT['psl']}")
            E(at(vtmp + i))
        E(f"{l}:\ns_sub_u32 s{sSPIN}, s{sSPIN}, 1\ns_cbranch_scc1 {d}")
        for i in range(depth):
            E(at(vtmp + (i - 1) % depth))
            E(f"s_waitcnt vmcnt({depth-1})\nv_readfirstlane_b32 s{sSPIN+1}, v{vtmp+i}\ns_nop 0")
            E(test(sSPIN + 1))
            E(f"s_cbranch_scc1 {d}" if i < depth - 1 else f"s_cbranch_scc0 {l}")
    E(f"{d}:\ns_mov_b64 exec, -1")
def add_ctr(vaddr, vval, lanes):
    E(f"s_bfm_b64 exec, {lanes}, 0\nglobal_atomic_add v{vaddr}, v{vval}, {sr(pFL,2)} sc1\ns_mov_b64 exec, -1")
def put_flag(vaddr, vone, base=None):
    E(f"""
    s_mov_b64 exec, 1
    global_store_dword v{vaddr}, v{vone}, {sr(pFL if base is None else base,2)} sc1
    s_mov_b64 exec, -1
    """)
def lds_arrive(vaddr, vone):
    E(f"""
    s_mov_b64 exec, 1
    ds_add_u32 v{vaddr}, v{vone}
    s_mov_b64 exec, -1
    """)
def lds_wait(vaddr, vtmp, n):
    l = newlab("lw"); d = newlab("lwd")
    E(f"""
    s_mov_b32 s{sSPIN}, {OPT['spin']*8}
    {l}:
    ds_read_b32 v{vtmp}, v{vaddr}
    s_sub_u32 s{sSPIN}, s{sSPIN}, 1
    s_cbranch_scc1 {d}
    s_waitcnt lgkmcnt(0)
    v_readfirstlane_b32 s{sSPIN+1}, v{vtmp}
    s_nop 1
    s_cmp_ge_u32 s{sSPIN+1}, {n}
    s_cbranch_scc0 {l}
    {d}:
    s_waitcnt lgkmcnt(0)
    """)

def helper_entry():
    sH, sC, sMH, sD, sLd, sDs, t0 = sT, sT + 1, sT + 2, sT + 5, sT + 6, sT + 7, sT + 8
    C("""---- helper waves (4..7): touch this kernel's code once so that it sits in L2, then load the SSM parameters""")
    E(f"L_h0:\ns_setprio {OPT['prio']}\ns_sub_u32 s{sH}, s{sW}, 4")
    if OPT["pf"]:
        E(f"""
        s_getpc_b64 s[8:9]
        L_pc:
        s_andn2_b32 s10, s2, 7
        s_lshl1_add_u32 s10, s{sH}, s10
        v_and_b32 v2, 1, v1
        v_add_lshl_u32 v2, v2, s10, 7
        v_min_u32 v2, L_end-L_pc, v2
        v_mov_b32 v3, 0
        v_lshl_add_u64 v[2:3], v[2:3], 0, s[8:9]
        global_load_dword v167, v[2:3], off
        """)
    E(f"""
    s_lshl4_add_u32 s{sCH}, s{sHP}, s{sRB}
    s_lshl2_add_u32 s{t0}, s{sCH}, s{sH}
    s_lshl_b32 s{t0}, s{t0}, 7
    v_lshl_add_u32 v2, v1, 1, s{t0}
    s_lshl_b32 s{t0+1}, s{sCH}, 2
    """)
    if OPT["wt"]: E(f"""
    s_lshr_b32 s10, s2, 3
    s_lshl2_add_u32 s10, s10, s{sH}
    s_mul_i32 s10, s10, 12288
    s_and_b32 s11, s2, 3
    s_lshl_b32 s11, s11, 8
    s_add_u32 s10, s10, s11
    v_and_b32 v10, 1, v1
    v_lshl_add_u32 v10, v10, 7, s10
    v_bfe_u32 v11, v1, 1, 2
    v_mul_u32_u24 v11, 3072, v11
    v_lshrrev_b32 v3, 3, v1
    v_sub_u32 v3, 2, v3
    v_lshl_add_u32 v11, v3, 10, v11
    v_add_u32 v10, v10, v11
    s_waitcnt lgkmcnt(0)
    s_bfm_b64 exec, {8*OPT["wt"]}, 0
    global_load_dword v154, v10, {sr(pW,2)}
    s_mov_b64 exec, -1
    """)
    E(f"""
    s_waitcnt lgkmcnt(0)
    s_load_dword s{sLd}, {sr(pLdt,2)}, s{t0+1}
    s_load_dword s{sDs}, {sr(pDsk,2)}, s{t0+1}
    """)
    for j, p in enumerate((pAre, pAim, pBre, pBim, pCre, pCim)):
        E(f"global_load_ushort v{4+j}, v2, {sr(p,2)}")
    E(f"s_and_b32 s{sMH}, s{sH}, 1\ns_lshl_b32 s{sCH}, s{sCH}, 1")

def prologue():
    if OPT.get("amp"): E("s_memrealtime s[96:97]")
    if STAMP:
        E(f"s_memrealtime {sr(sST,2)}"); nstamp["m"] = nstamp["h"] = 1
    E(f"""
    s_cmpk_ge_u32 s2, 0x100
    s_cbranch_scc1 L_end
    s_load_dwordx16 s[16:31], s[0:1], 0
    s_load_dwordx16 s[32:47], s[0:1], 64
    """)
    E(f"""
    v_lshrrev_b32 v2, 6, v0
    v_and_b32 v1, 63, v0
    v_readfirstlane_b32 s{sW}, v2
    """)
    C("""s4 = head pair hp (0..15), s5 = row block rb (128 rows), s7 = first 64-wide k stage, s3 = wave.
The mapping only serves L2 locality under round-robin placement; nothing below depends on it.""")
    if OPT["xm"] == 0: E(f"""
    s_bfe_u32 s{sHP}, s2, 0x30003
    s_and_b32 s{sT}, s2, 1
    s_lshl3_add_u32 s{sHP}, s{sT}, s{sHP}
    s_lshr_b32 s{sRB}, s2, 6
    s_and_b32 s{sT}, s2, 6
    s_lshl1_add_u32 s{sRB}, s{sT}, s{sRB}
    """)
    elif OPT["xm"] == 1: E(f"""
    s_bfe_u32 s{sHP}, s2, 0x10003
    s_and_b32 s{sT}, s2, 7
    s_lshl1_add_u32 s{sHP}, s{sT}, s{sHP}
    s_lshr_b32 s{sRB}, s2, 4
    """)
    else: E(f"""
    s_bfe_u32 s{sHP}, s2, 0x20003
    s_and_b32 s{sT}, s2, 3
    s_lshl2_add_u32 s{sHP}, s{sT}, s{sHP}
    s_lshr_b32 s{sRB}, s2, 5
    s_and_b32 s{sT}, s2, 4
    s_lshl1_add_u32 s{sRB}, s{sT}, s{sRB}
    """)
    if OPT["rot"] == 0:
        E(f"s_mov_b32 s{sROT}, 0")
    elif OPT["rot"] == 1:
        E(f"s_xor_b32 s{sROT}, s{sHP}, s{sRB}\ns_and_b32 s{sROT}, s{sROT}, 1\ns_lshl_b32 s{sROT}, s{sROT}, 2")
    elif OPT["rot"] == 2:
        E(f"s_lshl1_add_u32 s{sROT}, s{sRB}, s{sHP}\ns_and_b32 s{sROT}, s{sROT}, 7")
    elif OPT["rot"] == 3:
        E(f"s_lshl1_add_u32 s{sROT}, s{sRB}, s{sHP}\ns_and_b32 s{sROT}, s{sROT}, 6")
    elif OPT["rot"] == 4:
        E(f"s_lshl2_add_u32 s{sROT}, s{sHP}, s{sRB}\ns_and_b32 s{sROT}, s{sROT}, 7")
    elif OPT["rot"] == 5:
        E(f"s_add_u32 s{sROT}, s{sHP}, s{sRB}\ns_lshl_b32 s{sROT}, s{sROT}, 1\ns_and_b32 s{sROT}, s{sROT}, 6")
    elif OPT["rot"] == 6:
        E(f"s_lshl1_add_u32 s{sROT}, s{sHP}, s{sRB}\ns_and_b32 s{sROT}, s{sROT}, 7")
    elif OPT["rot"] == 7:
        E(f"s_add_u32 s{sROT}, s{sHP}, s{sRB}\ns_lshr_b32 s{sT}, s2, 2\ns_xor_b32 s{sT}, s{sT}, s2\ns_and_b32 s{sT}, s{sT}, 1\ns_lshl1_add_u32 s{sROT}, s{sROT}, s{sT}\ns_and_b32 s{sROT}, s{sROT}, 7")
    elif OPT["rot"] == 8:
        assert OPT["xm"] == 2
        E(f"s_add_u32 s{sROT}, s{sHP}, s{sRB}\ns_lshr_b32 s{sT}, s{sT}, 1\ns_add_u32 s{sT}, s{sT}, s2\ns_lshl2_add_u32 s{sROT}, s{sROT}, s{sT}\ns_and_b32 s{sROT}, s{sROT}, 7")
    else:
        E(f"s_and_b32 s{sT}, s2, 4\ns_lshl1_add_u32 s{sROT}, s2, s{sT}\ns_and_b32 s{sROT}, s{sROT}, 7")
    if OPT["lay"] == 2:
        E(f"s_cmp_lt_u32 s{sW}, 4\ns_cbranch_scc1 L_m0")
        helper_entry()
        E("s_branch L_helper\nL_m0:")
    else:
        E(f"s_cmp_ge_u32 s{sW}, 4\ns_cbranch_scc1 L_h0")

def main_wave():
    vXD, vWD, vXA, vWA, vQA = 4, 8, 10, 14, 16
    vFB = 24
    aK, aV, aQ = 48, 64, 80
    vP = 96
    vXF = 128
    sXO, sWO, sM0, sX, sZ, sQS = 92, 93, 94, 95, 100, 101
    sKVb, sKV, sJ, sCnt, sMask = sT + 2, sT + 4, sT + 6, sT + 7, sT + 8
    ta, tb, tc = sT + 10, sT + 11, sT + 12
    sExp, sBfe, sVal = 24, 25, 26
    assert OPT['fm'] == 1
    vO, vKV = 128, 192
    M16 = OPT['m16']; vQX = 23
    assert not (M16 and (OPT['q3'] or OPT.get('itst')))
    (vIDX, vKA, vVA, vSA, vSB, vSV, vEW, vER0, vER1, vERV, vRW, vRWl, vRR, vRRl, vOA, vOB) = range(112, 128)
    vF2, vOne, vF2P, vOD, vOnes, vZer = range(17, 23); vOD2 = 3
    vQ = 240; SA, SB = 24, 40; vT = 56
    C("""==== main waves (0..3): wave w projects rows 32w..32w+31 of the row block for both heads ====
x and W_k / W_v stream through a 3-slot LDS ring (LDS-DMA, XOR-swizzled x, transposing reads for W)""")
    E(f"""
    s_lshl2_add_u32 s{sT}, s{sRB}, s{sW}
    s_lshl_b32 s{sT}, s{sT}, 15
    v_lshrrev_b32 v2, 3, v1
    v_lshl_add_u32 v2, v2, 10, s{sT}
    v_lshrrev_b32 v3, 4, v1
    v_xor_b32 v3, v3, v1
    v_and_b32 v3, 7, v3
    v_lshl_add_u32 v{vXD}, v3, 4, v2
    v_xor_b32 v{vXD+1}, 64, v{vXD}
    s_movk_i32 s{sT}, 7168
    v_add_u32 v{vXD+1}, s{sT}, v{vXD+1}
    s_movk_i32 s{sT}, 14336
    v_add_u32 v{vXD+2}, s{sT}, v{vXD}
    v_add_u32 v{vXD+3}, s{sT}, v{vXD+1}
    v_lshrrev_b32 v2, 2, v0
    v_mul_u32_u24 v2, 3072, v2
    {"v_lshrrev_b32 v3, 4, v1" if M16 else ""}
    {"v_and_b32 v3, 2, v3" if M16 else ""}
    {"v_xor_b32 v3, v3, v1" if M16 else ""}
    v_and_b32 v3, 3, {"v3" if M16 else "v1"}
    s_lshl2_add_u32 s{sT}, s{sHP}, 64
    v_add_u32 v3, s{sT}, v3
    v_lshl_add_u32 v{vWD}, v3, 4, v2
    s_mul_i32 s{sM0}, s{sW}, {WPART}
    s_mov_b32 s{SRDX+2}, 0x200000
    s_mov_b32 s{SRDX+3}, 0x00020000
    s_mov_b32 s{SRDW+2}, 0x180000
    s_mov_b32 s{SRDW+3}, s{SRDX+3}
    """)
    Q3, A0 = OPT["q3"], OPT["a0"]
    assert Q3 + A0 <= 8
    rest = list(range(Q3, 8))
    att = {i: [] for i in range(10)}
    for j in range(Q3): att[j + A0].append(j)
    att[8], att[9] = rest[:4], rest[4:]
    cnt = {i: (6 if i < 8 else 0) + len(att[i]) for i in range(10)}
    sWQ = 27
    def dmaq(j):
        return [f"s_add_u32 s{sT+1}, s{sROT}, {j}", f"s_and_b32 s{sT+1}, s{sT+1}, 7", f"s_add_u32 m0, s{sWQ}, {WQ+4096*j}",
                f"s_mul_i32 s{sT+1}, s{sT+1}, 196608", f"buffer_load_dwordx4 v{vWD+1}, {sr(SRDW,4)}, s{sT+1} offen lds"]
    def dma(i, first=False):
        if i >= 8: return [dmaq(j) for j in att[i]]
        slot = i % NS
        g = []
        for seg in range(2):
            g.append([f"buffer_load_dwordx4 v{vWD}, {sr(SRDW,4)}, s{sWO} offen offset:{seg*1024} {'nt' if OPT.get('nt',0) & 1 and i < OPT.get('nts',8) else ''} lds"])
        for j in range(4):
            g.append([f"buffer_load_dwordx4 v{vXD+j}, {sr(SRDX,4)}, s{sXO} offen offset:{j*1024} {'nt' if OPT.get('nt',0) & 2 and i < OPT.get('nts',8) else ''} lds"])
        st = sROT if i == 0 else sT
        pre = [] if i == 0 else [f"s_add_u32 s{sT}, s{sROT}, {i}", f"s_and_b32 s{sT}, s{sT}, 7"]
        pre += [f"s_add_u32 m0, s{sM0}, {RING+slot*SLOT+4096}", f"s_mul_i32 s{sWO}, s{st}, 196608"]
        if first:
            pre += ["s_waitcnt lgkmcnt(0)", f"s_mov_b64 {sr(SRDW,2)}, {sr(pW,2)}", f"s_mov_b64 {sr(SRDX,2)}, {sr(pX,2)}"]
        prex = [f"s_add_u32 m0, s{sM0}, {RING+slot*SLOT}", f"s_lshl_b32 s{sXO}, s{st}, 7"]
        if OPT["xf"] >> i & 1:
            n = 0 if i == 0 else 2
            g[2] = pre[:n] + prex + pre[n+2:] + g[2]
            g[0] = pre[n:n+2] + g[0]
            g = g[2:] + g[:2]
        else:
            g[0] = pre + g[0]
            g[2] = prex + g[2]
        if first: g[5] += [f"v_subrev_u32 v{vWD+1}, 1024, v{vWD}", f"s_lshl_b32 s{sWQ}, s{sW}, 10"]
        return g + [dmaq(j) for j in att[i]]
    if OPT["ord"]:
        OPT["xf"] |= 3
        g0, g1 = dma(0, True), dma(1)
        for g in g0[:4] + g1[:4] + g0[4:]: E(g)
    else:
        for g in dma(0, True): E(g)
    E(f"""
    s_and_b32 s{sX}, s{sW}, 1
    s_lshl_b32 s{sT+1}, s{sX}, 10
    s_add_u32 m0, s{sT+1}, {GW}
    v_lshlrev_b32 v{vKA}, 4, v1
    global_load_lds_dwordx4 v{vKA}, {sr(pGw,2)}
    """)
    held = g1[4:] if OPT["ord"] else dma(1)
    for g in held[:OPT["d1"]]: E(g)
    held = held[OPT["d1"]:]
    if OPT["lay"] == 0:
        E("s_branch L_m1")
        helper_entry(); helper_wave()
        E("L_m1:")
    elif OPT["lay"] == 1:
        E("s_branch L_m1")
        helper_entry()
        E("s_branch L_helper\nL_m1:")
    stamp("m")
    if OPT["tlb"]:
        E(f"""
        s_mov_b32 s{ta}, {WS_FL + 0x100000}
        s_load_dword s18, {sr(pWs,2)}, s{ta}
        s_load_dword s19, {sr(pDbg,2)}, 128
        s_load_dword s20, {sr(pOut,2)}, 0
        s_load_dword s21, {sr(pWo,2)}, 0
        """)
    C("""addresses of all later phases, in the shadow of the first loads""")
    E(f"""
    s_add_u32 s{pFL}, s{pWs}, {WS_FL}
    s_addc_u32 s{pFL+1}, s{pWs+1}, 0
    s_add_u32 s{ta}, s{sM0}, {RING}
    """)
    if M16: E(f"""
    v_and_b32 v2, 15, v1
    v_lshl_add_u32 v2, v2, 7, s{ta}
    v_bfe_u32 v3, v1, 1, 3
    v_lshrrev_b32 v{vXA+1}, 4, v1
    v_xor_b32 v3, v3, v{vXA+1}
    v_lshl_add_u32 v{vXA}, v3, 4, v2
    v_xor_b32 v{vXA+1}, 64, v{vXA}
    v_bfe_u32 v2, v1, 4, 1
    v_mul_u32_u24 v2, 544, v2
    v_bfe_u32 v3, v1, 2, 2
    v_lshl_add_u32 v2, v3, 6, v2
    v_and_b32 v3, 3, v1
    v_lshl_add_u32 v2, v3, 3, v2
    v_lshrrev_b32 v3, 5, v1
    v_lshl_add_u32 v{vQA}, v3, 10, v2
    v_add_u32 v{vQA}, {WQ}, v{vQA}
    v_xor_b32 v{vQX}, 32, v{vQA}
    v_mul_u32_u24 v3, {WPART}, v3
    v_add_u32 v2, v2, v3
    v_add_u32 v{vWA}, {RING+4096}, v2
    v_add_u32 v{vWA+1}, {RING+4096+2*SLOT}, v2
    v_xor_b32 v{vXA+2}, 32, v{vWA}
    v_xor_b32 v{vXA+3}, 32, v{vWA+1}
    """)
    else: E(f"""
    v_and_b32 v2, 31, v1
    v_lshl_add_u32 v2, v2, 7, s{ta}
    v_bfe_u32 v3, v1, 1, 3
    v_lshrrev_b32 v{vXA+1}, 5, v1
    v_xor_b32 v3, v3, v{vXA+1}
    v_lshl_add_u32 v{vXA}, v3, 4, v2
    v_xor_b32 v{vXA+1}, 32, v{vXA}
    v_xor_b32 v{vXA+2}, 64, v{vXA}
    v_xor_b32 v{vXA+3}, 0x60, v{vXA}
    v_lshrrev_b32 v2, 5, v1
    v_lshlrev_b32 v2, 3, v2
    v_bfe_u32 v3, v1, 2, 2
    v_add_u32 v2, v2, v3
    v_lshlrev_b32 v2, 6, v2
    v_and_b32 v3, 3, v1
    v_lshl_add_u32 v2, v3, 3, v2
    v_bfe_u32 v3, v1, 4, 1
    v_lshl_add_u32 v2, v3, 5, v2
    v_add_u32 v{vWA}, {RING+4096}, v2
    v_add_u32 v{vWA+1}, {RING+4096+2*SLOT}, v2
    v_add_u32 v{vQA}, {WQ}, v2
    """)
    E(f"""
    s_lshr_b32 s{sZ}, s{sW}, 1
    s_mov_b32 s{sQS}, {fbits(0.25 * math.log2(math.e))}
    s_lshl2_add_u32 s{ta}, s{sRB}, s{sW}
    s_lshl_b32 s{ta}, s{ta}, 11
    s_lshl_b32 s{tb}, s{sHP}, 18
    s_add_u32 s{ta}, s{ta}, s{tb}
    v_add_u32 v{vSA}, s{ta}, v{vKA}
    v_add_u32 v{vSB}, 0x20000, v{vSA}
    v_and_b32 v{vVA}, 15, v1
    v_lshrrev_b32 v2, 5, v1
    v_lshl_add_u32 v{vVA}, v2, 4, v{vVA}
    v_lshlrev_b32 v{vVA}, 4, v{vVA}
    v_bfe_u32 v2, v1, 4, 1
    v_lshlrev_b32 v2, 17, v2
    v_add3_u32 v{vSV}, v2, v{vVA}, s{ta}
    s_add_u32 s{tb}, s{sM0}, {EXCH}
    v_add_u32 v{vEW}, s{tb}, v{vKA}
    s_lshl_b32 s{ta}, s{sX}, 10
    s_add_u32 s{ta}, s{ta}, {EXCH}
    s_mul_i32 s{tb}, s{sZ}, 12288
    s_add_u32 s{tc}, s{ta}, s{tb}
    v_add_u32 v{vER0}, s{tc}, v{vKA}
    s_sub_u32 s{tc}, s{ta}, s{tb}
    s_add_u32 s{tc}, s{tc}, 12288
    v_add_u32 v{vER1}, s{tc}, v{vKA}
    s_lshl_b32 s{ta}, s{sX}, 8
    s_add_u32 s{tc}, s{ta}, s{tb}
    s_add_u32 s{tc}, s{tc}, {EXCH}
    v_add_u32 v{vERV}, s{tc}, v{vKA}
    s_lshl1_add_u32 s{ta}, s{sHP}, s{sX}
    s_lshl_b32 s{tb}, s{ta}, 17
    s_lshl_b32 s{tc}, s{sZ}, 12
    s_add_u32 s{tb}, s{tb}, s{tc}
    s_add_u32 s{sKVb}, s{pWs}, s{tb}
    s_addc_u32 s{sKVb+1}, s{pWs+1}, 0
    s_lshl1_add_u32 s{tb}, s{sRB}, s{sZ}
    s_lshl_b32 s{tb}, s{tb}, 6
    s_add_u32 s{tb}, s{tb}, s{ta}
    s_lshl_b32 s{tb}, s{tb}, 10
    s_add_u32 s{tb}, s{tb}, {WS_OF}
    v_add_u32 v{vOA}, s{tb}, v{vKA}
    v_add_u32 v{vOB}, 0x8000, v{vOA}
    s_mul_i32 s{ta}, s{sW}, {REDS}
    s_add_u32 s{ta}, s{ta}, {RED}
    v_add_u32 v{vRW}, s{ta}, v{vKA}
    v_lshl_add_u32 v{vRWl}, v1, 2, s{ta}
    s_xor_b32 s{ta}, s{sW}, 2
    s_mul_i32 s{ta}, s{ta}, {REDS}
    s_add_u32 s{ta}, s{ta}, {RED}
    v_add_u32 v{vRR}, s{ta}, v{vKA}
    v_lshl_add_u32 v{vRRl}, v1, 2, s{ta}
    s_lshl4_add_u32 s{ta}, s{sRB}, s{sHP}
    s_add_u32 s{ta}, s{ta}, {F2}
    s_lshl_b32 s{ta}, s{ta}, {FSH}
    {f"s_lshl_b32 s{tb}, s{sW}, {FSH-2}" if OPT["sep"] else ""}
    {f"s_add_u32 s{ta}, s{ta}, s{tb}" if OPT["sep"] else ""}
    v_mov_b32 v{vF2P}, s{ta}
    v_mov_b32 v{vOne}, 1
    s_lshr_b32 s{ta}, s{sHP}, 2
    s_lshl_b32 s{ta}, s{ta}, 3
    s_lshl_b32 s{sVal}, 1, s{ta}
    s_lshl1_add_u32 s{ta}, s{sRB}, s{sZ}
    s_lshl3_add_u32 s{ta}, s{ta}, {F2}
    v_add_lshl_u32 v{vF2}, v1, s{ta}, {FSH}
    {f"s_lshr_b32 s{ta}, s{sHP}, 2" if OPT["sep"] else ""}
    {f"v_lshl_add_u32 v{vF2}, s{ta}, {FSH-2}, v{vF2}" if OPT["sep"] else ""}
    s_lshl3_add_u32 s{sBfe}, s{sW}, 0x80000
    {f"s_lshr_b32 s{tb}, s{sHP}, 2" if OPT["fm"] else f"s_and_b32 s{tb}, s{sHP}, 3"}
    s_lshl2_add_u32 s{ta}, s{sRB}, s{tb}
    s_lshl2_add_u32 s{ta}, s{ta}, s{sW}
    s_lshl_b32 s{ta}, s{ta}, 13
    s_add_u32 s{ta}, s{ta}, {WS_OF}
    v_add_u32 v{vOD}, s{ta}, v{vKA}
    v_mov_b32 v{vIDX}, 0xdddddddd
    v_and_b32 v2, 27, v1
    v_cmp_eq_u32 vcc, 16, v2
    v_mov_b32 v2, {CNT+32}
    v_mov_b32 v{vZer}, {CNT+16}
    s_mov_b32 s{sMask}, 0x0000ffff
    s_mov_b32 s{sMask+1}, 0x0000ffff
    v_cndmask_b32 v{vOnes}, v{vZer}, v2, vcc
    s_mov_b32 s{sCnt}, 8
    v_add_u32 v{vOD2}, 4096, v{vOD}
    """)
    sOwn = 28
    if OPT["co"]:
        E(f"""
        s_andn2_b32 s{sJ}, 8, s{sRB}
        s_lshl1_add_u32 s{sOwn}, s{sJ}, s{sRB}
        s_sub_u32 s{sJ}, s{sJ}, 1
        """)
    def kvaddr():
        if OPT["co"]:
            return [f"s_add_u32 s{sJ}, s{sJ}, 1", f"s_cmp_eq_u32 s{sJ}, s{sOwn}", f"s_addc_u32 s{sJ}, s{sJ}, 0",
                    f"s_lshl_b32 s29, s{sJ}, 13", f"s_and_b32 s29, s29, 0x1e000",
                    f"s_add_u32 s{sKV}, s{sKVb}, s29", f"s_addc_u32 s{sKV+1}, s{sKVb+1}, 0"]
        return [f"s_add_u32 s{sJ}, s{sJ}, 0x2000", f"s_and_b32 s{sJ}, s{sJ}, 0x1e000",
                f"s_add_u32 s{sKV}, s{sKVb}, s{sJ}", f"s_addc_u32 s{sKV+1}, s{sKVb+1}, 0"]
    E(kvaddr())
    def reads(n):
        i, s = n >> 2, n & 3
        slot = i % NS
        if M16:
            f = vFB + 8 * (n % 3); s2 = s >> 1
            so = (slot & 1) * SLOT + 2 * s2 * WPART + (0 if n & 1 else 1024)
            o = [] if n & 1 else [f"ds_read_b128 {vr(vXF+4*n+4*a,4)}, v{vXA+s2} offset:{slot*SLOT+2048*a}" for a in range(2)]
            for X in range(2):
                a = (vXA + 2 if X else vWA) + (slot >> 1)
                o += [f"ds_read_b64_tr_b16 {vr(f+4*X+2*e,2)}, v{a} offset:{so+256*e}" for e in range(2)]
            return o
        a = vWA + (slot >> 1); so = (slot & 1) * SLOT + s * WPART
        f = vFB + 8 * (n % 3)
        o = [f"ds_read_b128 {vr(vXF+4*n,4)}, v{vXA+s} offset:{slot*SLOT}"]
        for c in range(2):
            o.append(f"ds_read_b64_tr_b16 {vr(f+4*c,2)}, v{a} offset:{so+1024*c}")
            o.append(f"ds_read_b64_tr_b16 {vr(f+2+4*c,2)}, v{a} offset:{so+1024*c+256}")
        return o
    def qread(n, f):
        if M16: return [f"ds_read_b64_tr_b16 {vr(f+2*e,2)}, v{vQX if n & 1 else vQA} offset:{2048*(n>>1)+256*e}" for e in range(2)]
        return [f"ds_read_b64_tr_b16 {vr(f,2)}, v{vQA} offset:{1024*n}", f"ds_read_b64_tr_b16 {vr(f+2,2)}, v{vQA} offset:{1024*n+256}"]
    def qmf(n, f):
        if M16: return [f"v_mfma_f32_16x16x32_bf16 {vr(aQ+8*(n&1)+4*a,4)}, {vr(f,4)}, {vr(vXF+8*(n>>1)+4*a,4)}, {'0' if n < 2 else vr(aQ+8*(n&1)+4*a,4)}" for a in range(2)]
        return f"v_mfma_f32_32x32x16_bf16 {vr(aQ,16)}, {vr(f,4)}, {vr(vXF+4*n,4)}, {'0' if n == 0 else vr(aQ,16)}"
    def inq(n): return n - 4 * A0 if 0 <= n - 4 * A0 < 4 * Q3 else None
    def allreads(n): return reads(n) + (qread(inq(n), vP + 4 * (n % 3)) if inq(n) is not None else [])
    def xdead(n): return [f"v_mov_b32 v{r}, 0" for r in range(vXF + 4 * n, vXF + 4 * n + 4) if r < vKV and (r - vO) % 16 < 8]
    if held:
        E(f"s_waitcnt vmcnt({OPT['d1'] + cnt[0] + 1 - OPT['d1w']})")
        for g in held: E(g)
    E(f"s_waitcnt vmcnt({2 if OPT['ord'] else cnt[1]})")
    if STAMP == 5: stamp("m")
    E("s_barrier")
    stamp("m")
    C("""---- K^T and V for 32 rows x 2 heads; the x fragments stay in v[128:255] for the Q projection""")
    E(allreads(0) + allreads(1))
    pend = dma(2)
    while len(pend) > 4: E(pend.pop(0))
    for n in range(32):
        f = vFB + 8 * (n % 3); x = vXF + 4 * n
        c = (lambda a: "0" if n == 0 else vr(a, 16))
        m = [f"v_mfma_f32_32x32x16_bf16 {vr(aV,16)}, {vr(x,4)}, {vr(f+4,4)}, {c(aV)}",
             f"v_mfma_f32_32x32x16_bf16 {vr(aK,16)}, {vr(f,4)}, {vr(x,4)}, {c(aK)}"]
        if M16:
            x = vXF + 8 * (n >> 1); m = []
            for X in range(2):
                mm = []
                for a in range(2):
                    if n & 1: d, A_, B_ = aK + 8 * X + 4 * a, f + 4 * X, x + 4 * a
                    else: d, A_, B_ = aV + 8 * a + 4 * X, x + 4 * a, f + 4 * X
                    mm.append(f"v_mfma_f32_16x16x32_bf16 {vr(d,4)}, {vr(A_,4)}, {vr(B_,4)}, {'0' if n < 2 else vr(d,4)}")
                m.append(mm)
        r = allreads(n + 2) if n + 2 < 32 else []
        E(f"s_waitcnt lgkmcnt({len(allreads(n+1)) if n < 31 else 0})")
        E(m[0])
        if (n + 2) % 4 == 0 and n + 2 < 32:
            b = (n + 2) >> 2
            assert not pend
            E(f"s_waitcnt vmcnt({cnt[b+1]}) lgkmcnt(0)")
            if STAMP == 3: stamp("m")
            E("s_barrier")
            if STAMP == 2: stamp("m")
            pend = dma(b + 2)
        E(r[:3])
        if pend: E(pend.pop(0))
        E(m[1]); E(r[3:5])
        if inq(n) is not None:
            E(qmf(inq(n), vP + 4 * (n % 3)))
            if inq(n) >= 1: E(xdead(inq(n) - 1))
        E(r[5:])
        if pend: E(pend.pop(0))
    stamp("m")
    ep = [f"v_cvt_pk_bf16_f32 v{vP+j}, v{aK+2*j}, v{aK+1+2*j}" for j in range(4)]
    ep += [f"global_store_dwordx4 v{vSA}, {vr(vP,4)}, {sr(pWs,2)} sc1"]
    ep += [f"v_cvt_pk_bf16_f32 v{vP+j}, v{aK+2*j}, v{aK+1+2*j}" for j in range(4, 8)]
    ep += [f"global_store_dwordx4 v{vSB}, {vr(vP+4,4)}, {sr(pWs,2)} sc1"]
    ep += [f"v_permlane32_swap_b32 v{vP+8+a}, v{vP+10+a}" for a in (0, 1)]
    ep += [f"global_store_dwordx4 v{vSV}, {vr(vP+8,4)}, {sr(pWs,2)} offset:1024 sc1"]
    ep += [f"v_permlane32_swap_b32 v{vP+8+a}, v{vP+10+a}" for a in (4, 5)]
    ep += [f"global_store_dwordx4 v{vSV}, {vr(vP+12,4)}, {sr(pWs,2)} offset:1536 sc1"]
    if M16:
        sw = lambda p: [f"v_permlane16_swap_b32 v{p}, v{p+2}", f"v_permlane16_swap_b32 v{p+1}, v{p+3}"]
        st = [x for x in ep if "store" in x]
        ep = [f"v_cvt_pk_bf16_f32 v{vP+j}, v{aK+2*j}, v{aK+1+2*j}" for j in range(4)] + sw(vP + 8) + [st[2]]
        ep += [f"v_cvt_pk_bf16_f32 v{vP+j}, v{aK+2*j}, v{aK+1+2*j}" for j in range(4, 8)] + sw(vP + 12) + [st[3]]
        ep += sw(vP) + [st[0]] + sw(vP + 4) + [st[1]]
        OPT["epc"] = len(ep)
    LQ = OPT["lq"]
    qb = [40, 44, 24, 28, 32, 36, 64, 68, 72]
    C("""---- publish K / V as MFMA fragments (write-through), then project Q while the stores are acknowledged""")
    E("s_nop 2" if M16 else "s_nop 10")
    for j in range(8):
        E(f"v_cvt_pk_bf16_f32 v{vP+8+j}, v{aV+2*j}, v{aV+1+2*j}")
    cut = OPT["epc"]
    E(ep[:cut])
    E(f"s_waitcnt vmcnt({cnt[9] + sum('store' in x for x in ep[:cut])})\ns_barrier")
    if STAMP == 4: stamp("m")
    n0 = 4 * Q3
    for n in range(n0, min(32, n0 + LQ)): E(qread(n, qb[(n - n0) % 9]))
    E(ep[cut:])
    late = [f"ds_read_b128 {vr(vO+16*q+8+4*e,4)}, v{vZer}" for q in range(4) for e in range(2)]
    late += [f"ds_write_b128 v{vEW}, {vr(vP+4*j,4)} offset:{2048+1024*j}" for j in range(4)]
    late += [f"ds_read_b128 {vr(vKV+12*st+4+4*e,4)}, v{vOnes}" for st in range(4) for e in range(2)]
    nl = 0
    ackn = 32 - OPT["ackr"]
    assert not att[9] or ackn > n0 + 16 - LQ
    for n in range(n0, 32):
        E(f"s_waitcnt lgkmcnt({min(15, 2*min(LQ-1, 31-n) + nl)})")
        E(qmf(n, qb[(n - n0) % 9]))
        if n == max(n0, ackn):
            if STAMP == 4: stamp("m")
            E("s_waitcnt vmcnt(0)\ns_barrier")
            if STAMP == 4: stamp("m")
        if n + LQ < 32:
            if n + LQ == n0 + 16:
                if STAMP == 4: stamp("m")
                E("s_waitcnt vmcnt(4)\ns_barrier")
                if STAMP == 4: stamp("m")
            E(qread(n + LQ, qb[(n + LQ - n0) % 9]))
        else:
            E(late[:2]); late = late[2:]; nl += 2
        if n >= 1 + M16: E(xdead(n - 1 - M16))
    E(late)
    if not M16: E(f"s_nop {max(0, 11 - len(late))}")
    for o in (0, 1):
        for j in range(8):
            E(f"v_mul_f32 v{aQ+8*o+j}, s{sQS}, v{aQ+8*o+j}")
        for j in ((0, 2, 1, 3) if M16 else range(4)):
            E(f"v_cvt_pk_bf16_f32 v{aK+4*o+j}, v{aQ+8*o+2*j}, v{aQ+8*o+1+2*j}")
        if M16: E([sw(aK + 4 * o)[0], "s_nop 0", sw(aK + 4 * o)[1]])
        E(f"ds_write_b128 v{vEW}, {vr(aK+4*o,4)} offset:{1024*o}")
    if STAMP == 4: stamp("m"); E("s_waitcnt vmcnt(0)"); stamp("m")
    C("""---- exchange Q (scaled by log2(e)/4) and this block's own K / V through LDS""")
    LATE = ackn > 31 or n0 == 32
    E("s_waitcnt lgkmcnt(0)\ns_barrier")
    stamp("m")
    E(f"""
    ds_read_b128 {vr(vQ,4)}, v{vER1}
    ds_read_b128 {vr(vKV,4)}, v{vER0} offset:2048
    ds_read_b128 {vr(vQ+4,4)}, v{vER1} offset:6144
    s_mov_b64 exec, {sr(sMask,2)}
    ds_read_b128 {vr(vKV+4,4)}, v{vERV} offset:4096
    ds_read_b128 {vr(vKV+8,4)}, v{vERV} offset:5120
    ds_read_b128 {vr(vKV+16,4)}, v{vERV} offset:{4096+6144}
    ds_read_b128 {vr(vKV+20,4)}, v{vERV} offset:{5120+6144}
    s_mov_b64 exec, -1
    ds_read_b128 {vr(vQ+8,4)}, v{vER0}
    ds_read_b128 {vr(vQ+12,4)}, v{vER0} offset:6144
    ds_read_b128 {vr(vKV+12,4)}, v{vER0} offset:{2048+6144}
    s_waitcnt lgkmcnt(8)
    v_mfma_f32_32x32x16_bf16 {vr(SA,16)}, {vr(vKV,4)}, {vr(vQ,4)}, 0
    v_mov_b32 v6, 0
    v_mov_b32 v4, 0
    v_mov_b32 v5, s{sVal}
    v_mov_b32 v2, s{sW}
    s_lshl_b32 s{sXO}, s{sW}, 13
    s_add_u32 m0, s{sXO}, {OFL}
    s_nop 4
    s_waitcnt lgkmcnt(0)
    """)
    def kload(st, par):
        return [f"global_load_dwordx4 {vr(vKV+12*st,4)}, v{vKA}, {sr(sKV,2)} offset:{par*2048} sc1"]
    def vload(st, par):
        return [f"s_mov_b64 exec, {sr(sMask,2)}",
                f"global_load_dwordx4 {vr(vKV+12*st+4,4)}, v{vVA}, {sr(sKV,2)} offset:{par*2048+1024} sc1",
                f"global_load_dwordx4 {vr(vKV+12*st+8,4)}, v{vVA}, {sr(sKV,2)} offset:{par*2048+1536} sc1",
                "s_mov_b64 exec, -1"]
    def step(t, q, mode="loop", lo=0, hi=16, extra=None):
        cur, oth = (SA, SB) if q % 2 == 0 else (SB, SA)
        tp, qp = (t, q - 1) if q else ((t - 1) % 4, 3)
        tn, qn = (t, q + 1) if q < 3 else ((t + 1) % 4, 0)
        after2, afterq, after1 = extra or ([], [], [])
        st = (t + 3) % 4; par = (t + 3) & 1
        if mode == "loop":
            if q == 0:
                after2 = vload(st, par); afterq = kload(st, par)
            if q == 1 and par == 1:
                ka = kvaddr(); after2 = ka[:2]; after1 = ka[2:]
                if OPT["co"]: afterq = ka[2:3]; after1 = ka[3:5]
            if q == 2 and par == 1 and OPT["co"]: after2 = kvaddr()[5:]
            if q == 3:
                after2 = ["s_waitcnt vmcnt(6)"]
                if t == 2:
                    after2 += [f"s_sub_u32 s{sCnt}, s{sCnt}, 1"]; afterq = [f"s_cmp_lg_u32 s{sCnt}, 0"]
        for i in range(lo, hi):
            E(f"v_exp_f32 v{cur+i}, v{cur+i}")
            if i == 1 and not (mode == "first" and q == 0):
                E(f"v_smfmac_f32_32x32x32_bf16 {vr(vO+16*qp,16)}, {vr(vKV+12*tp+8,4)}, {vr(oth+8,8)}, v{vIDX}")
                E(after2)
            if i == 4 and not (mode == "last" and q == 3):
                E(f"v_mfma_f32_32x32x16_bf16 {vr(oth,16)}, {vr(vKV+12*tn,4)}, {vr(vQ+4*qn,4)}, 0")
                E(afterq)
            if i == 10:
                E(f"v_smfmac_f32_32x32x32_bf16 {vr(vO+16*q,16)}, {vr(vKV+12*t+4,4)}, {vr(cur,8)}, v{vIDX}")
                E(after1)
    C("""==== attention: wave (X = w&1, z = w>>1) = head X, 128 queries, half of the keys ====
per 32x32 tile: S^T = K Q^T, p = exp2(S^T) in place, O^T += [V^T; 1] p.  The sparse MFMA picks the high half of every
fp32 p (= p as bf16), and the row of ones yields the row sum of exactly those p.
No shift is subtracted here: the row sums are checked below, and a wave whose sums left the safe range
redoes its rows with the true row maximum (L_safe).""")
    ackq = -OPT["ackr"] if LATE else -1
    assert ackq < OPT["bp"]
    for q in range(4):
        if q == ackq: E("s_waitcnt vmcnt(0)\ns_barrier")
        if q == OPT["bp"] - 1:
            step(0, q, "first", hi=11)
            E("s_barrier")
            stamp("m")
            E(kload(2, 0) + vload(2, 0)[:3] + vload(3, 1)[1:] + kload(3, 1) + kvaddr())
            step(0, q, "first", lo=11)
        else:
            step(0, q, "first", hi=(11 if q == 3 and OPT["seq"] else 16))
    def itst():
        if OPT.get("itst"):
            E(f"s_memtime s[90:91]\ns_memrealtime s[86:87]\ns_mov_b32 s89, m0\ns_mov_b32 m0, s{sCnt}\ns_waitcnt lgkmcnt(0)\nv_writelane_b32 v23, s90, m0\ns_bitset1_b32 m0, 3\ns_nop 0\nv_writelane_b32 v23, s86, m0\ns_mov_b32 m0, s89")
    if OPT["seq"]:
        assert OPT["bp"] < 4
        E(".p2align 3\nL_attn:")
        step(0, 3, lo=11)
        for t in (1, 2, 3, 0):
            for q in range(4):
                if (t, q) == (2, 3):
                    step(t, q, hi=11); itst(); E("s_cbranch_scc0 L_last"); step(t, q, lo=11)
                else:
                    step(t, q, hi=(11 if (t, q) == (0, 3) else 16))
        E("s_branch L_attn\nL_last:")
    else:
        E("s_branch L_attn1\n.p2align 3\nL_attn:")
        step(2, 3, lo=11)
        for t in (3, 0, 1, 2):
            if t == 1: E("L_attn1:")
            for q in range(4): step(t, q, hi=(11 if (t, q) == (2, 3) else 16))
        itst()
        E("s_cbranch_scc1 L_attn")
    step(2, 3, lo=11)
    C("""---- last key tile: query tiles 0,1 go to the partner wave while 2,3 are still being computed""")
    vR = 64
    def sendw(q): return [f"ds_write_b128 v{vRW}, {vr(vO+16*q,4)} offset:{2048*q}", f"ds_write_b128 v{vRW}, {vr(vO+16*q+4,4)} offset:{2048*q+1024}",
                          f"ds_write_b32 v{vRWl}, v{vO+16*q+8} offset:{4096+256*q}"]
    recv = ["s_waitcnt lgkmcnt(0)", "s_barrier",
            f"ds_read_b32 v{vR+16}, v{vRRl} offset:4096", f"ds_read_b128 {vr(vR,4)}, v{vRR}", f"ds_read_b128 {vr(vR+4,4)}, v{vRR} offset:1024",
            f"ds_read_b32 v{vR+17}, v{vRRl} offset:4352", f"ds_read_b128 {vr(vR+8,4)}, v{vRR} offset:2048", f"ds_read_b128 {vr(vR+12,4)}, v{vRR} offset:3072"]
    pol0 = ["s_mov_b64 exec, 1", f"global_atomic_add v6, v{vF2P}, v6, {sr(pFL,2)} sc0 sc1", "s_mov_b64 exec, -1"]
    es = OPT.get("es", 0)
    sig0 = ["s_bfm_b64 exec, 8, 0", f"global_atomic_add v{vF2}, v5, {sr(pFL,2)} sc1", "s_mov_b64 exec, -1"]
    step(3, 0, "last", extra=(hop() + (sig0 if es == 1 else []), [], [])); step(3, 1, "last", extra=(pol0 if OPT["pre"] == 1 else [], [], hop() + (sig0 if es == 2 else [])))
    w0 = sendw(0)
    step(3, 2, "last", extra=(w0[:1], w0[1:2], (pol0 if OPT["pre"] == 2 else []) + w0[2:]))
    step(3, 3, "last", extra=(hop() + (sig0 if es == 3 else []) + sendw(1), [], recv + (sig0 if es == 4 else [])))
    O2, O3 = vO + 32, vO + 48
    E(f"""
    s_waitcnt lgkmcnt(3)
    v_add_f32 v{O2+8}, v{O2+8}, v{vR+16}
    v_smfmac_f32_32x32x32_bf16 {vr(O3,16)}, {vr(vKV+36+8,4)}, {vr(SB+8,8)}, v{vIDX}
    """)
    E(hop())
    stamp("m")
    def fin(o, r, rl, dst, addr):
        if rl is not None: E(f"v_add_f32 v{o+8}, v{o+8}, v{rl}")
        E(f"v_rcp_f32 v{vT}, v{o+8}")
        if rl is not None:
            for j in range(0, 8, 2): E(f"v_pk_add_f32 {vr(o+j,2)}, {vr(o+j,2)}, {vr(r+j,2)}")
            for j in range(0, 8, 2): E(f"v_pk_mul_f32 {vr(o+j,2)}, {vr(o+j,2)}, {vr(vT,2)} op_sel_hi:[1,0]")
            for j in range(4): E(f"v_cvt_pk_bf16_f32 v{dst+j}, v{o+2*j}, v{o+2*j+1}")
            E(f"global_store_dwordx4 v{addr}, {vr(dst,4)}, {sr(pWs,2)} sc1")
            return
        if r is not None:
            for j in range(8): E(f"v_add_f32 v{o+j}, v{o+j}, v{r+j}")
        else:
            E("s_nop 0")
        for j in range(8): E(f"v_mul_f32 v{o+j}, v{o+j}, v{vT}")
        for j in range(4): E(f"v_cvt_pk_bf16_f32 v{dst+j}, v{o+2*j}, v{o+2*j+1}")
        E(f"global_store_dwordx4 v{addr}, {vr(dst,4)}, {sr(pWs,2)} sc1")
    fin(O2, vR, None, SA, vOA)
    E("s_waitcnt lgkmcnt(0)")
    E(hop())
    fin(O3, vR + 8, vR + 17, SA + 4, vOB)
    assert OPT["ep"] and OPT["pw"]
    if OPT["ep"]: E(f"s_mov_b64 exec, 1\nglobal_atomic_add v4, v{vF2P}, v4, {sr(pFL,2)} sc0 sc1\ns_mov_b64 exec, -1")
    E(hop())
    C("""---- guard: 2^-30 < row sum < 2^110 and finite results, else the exact max-subtracted path""")
    E(f"""
    s_mov_b32 s{ta}, {fbits(2.0**-30)}
    s_mov_b32 s{tb}, {fbits(2.0**110)}
    v_min_f32 v{vT+6}, v{O2+8}, v{O3+8}
    v_max_f32 v{vT+7}, v{O2+8}, v{O3+8}
    v_cmp_lt_f32 vcc, s{ta}, v{vT+6}
    v_cmp_gt_f32 {sr(tc,2)}, s{tb}, v{vT+7}
    v_pk_mul_f32 {vr(vT+2,2)}, {vr(O2,2)}, 0 op_sel_hi:[1,0]
    s_and_b64 {sr(tc,2)}, {sr(tc,2)}, vcc
    """)
    for j in (2, 4, 6, 16, 18, 20, 22):
        E(f"v_pk_fma_f32 {vr(vT+2,2)}, {vr(O2+j,2)}, 0, {vr(vT+2,2)} op_sel_hi:[1,0,1]")
    E(f"""
    v_cmp_o_f32 vcc, v{vT+2}, v{vT+3}
    s_nop 1
    s_and_b64 vcc, {sr(tc,2)}, vcc
    s_cmp_eq_u64 vcc, -1
    s_cbranch_scc0 L_safe
    """)
    C("""---- signal my O fragments once they are acknowledged; fetch those of head pairs 4w..4w+3 when all were signalled""")
    test = lambda r: [f"s_bfe_u32 s{r}, s{r}, s{sBfe}", f"s_cmp_eq_u32 s{r}, 8"]
    def odma():
        for j in range(4):
            E(f"global_load_lds_dwordx4 v{vOD}, {sr(pWs,2)} offset:{1024*j} sc1")
        E(f"s_add_u32 m0, s{sXO}, {OFL+4096}")
        E(hop() or ["s_nop 0"])
        for j in range(4):
            E(f"global_load_lds_dwordx4 v{vOD2}, {sr(pWs,2)} offset:{1024*j} sc1")
    if OPT["pre"]:
        E(f"s_waitcnt vmcnt({4 if es >= 2 + (OPT['pre'] == 2) else 3})\nv_readfirstlane_b32 s{ta}, v6\ns_nop 0")
        E(test(ta)); E("s_cbranch_scc0 L_late")
        if OPT.get("noack") and not es: add_ctr(vF2, 5, 8)
        odma()
        if OPT.get("noack"): E("s_waitcnt vmcnt(0)")
        else:
            E("s_waitcnt vmcnt(9)")
            add_ctr(vF2, 5, 8)
        n0 = nstamp["m"]; stamp("m"); stamp("m"); nstamp["m"] = n0
        E("s_waitcnt vmcnt(1)\ns_branch L_got\nL_late:")
    E("L_pub:" if OPT.get("noack") else "s_waitcnt vmcnt(1)\nL_pub:")
    if not es: add_ctr(vF2, 5, 8)
    stamp("m")
    poll_ctr(vF2P, 4, test, OPT["pd"], 1 if es else 2)
    stamp("m")
    odma()
    E(f"s_waitcnt vmcnt(0)\nL_got:\nds_write_b8 v2, v{vOne} offset:{CNT+12}")
    stamp("m")
    if OPT["hop"]: E(f"L_hop{nhop[0]}:\ns_cbranch_execz L_hopdone")
    stamp_flush("m"); spin_end("m")
    if OPT.get("itst"):
        E(f"v_lshl_add_u32 v2, v1, 2, v2\nv_add_u32 v2, 0x100000, v2\ns_mov_b64 exec, 0xffff\nglobal_store_dword v2, v23, {sr(pWs,2)}")
    E("s_endpgm")
    C("""==== fallback: softmax with the true row maximum, this wave's 64 queries over all 2048 keys ====""")
    vM, vC = vT + 6, 64
    vQ += 8; vO += 32
    E(f"""
    L_safe:
    s_waitcnt vmcnt(0)
    s_lshl_b32 s{ta}, s{sZ}, 12
    s_sub_u32 s{sKVb}, s{sKVb}, s{ta}
    s_subb_u32 s{sKVb+1}, s{sKVb+1}, 0
    s_mov_b32 s{sKV}, s{sKVb}
    s_mov_b32 s{sKV+1}, s{sKVb+1}
    s_mov_b32 s{sCnt}, 64
    v_mov_b32 v{vM}, 0xff800000
    v_mov_b32 v{vM+1}, 0xff800000
    L_safe1:
    global_load_dwordx4 {vr(vKV,4)}, v{vKA}, {sr(sKV,2)} sc1
    s_add_u32 s{sKV}, s{sKV}, 2048
    s_addc_u32 s{sKV+1}, s{sKV+1}, 0
    s_waitcnt vmcnt(0)
    v_mfma_f32_32x32x16_bf16 {vr(SA,16)}, {vr(vKV,4)}, {vr(vQ,4)}, 0
    v_mfma_f32_32x32x16_bf16 {vr(SB,16)}, {vr(vKV,4)}, {vr(vQ+4,4)}, 0
    s_nop 15
    """)
    for j in range(8):
        E(f"v_max3_f32 v{vM}, v{SA+2*j}, v{SA+2*j+1}, v{vM}\nv_max3_f32 v{vM+1}, v{SB+2*j}, v{SB+2*j+1}, v{vM+1}")
    E(f"""
    s_sub_u32 s{sCnt}, s{sCnt}, 1
    s_cmp_lg_u32 s{sCnt}, 0
    s_cbranch_scc1 L_safe1
    v_mov_b32 v{SA}, v{vM}
    v_mov_b32 v{SB}, v{vM+1}
    s_nop 1
    v_permlane32_swap_b32 v{SA}, v{vM}
    v_permlane32_swap_b32 v{SB}, v{vM+1}
    s_nop 1
    v_max_f32 v{vM}, v{vM}, v{SA}
    v_max_f32 v{vM+1}, v{vM+1}, v{SB}
    """)
    for j in range(16):
        E(f"v_sub_f32 v{vC+j}, 0, v{vM}\nv_sub_f32 v{vC+16+j}, 0, v{vM+1}\nv_mov_b32 v{vO+j}, 0\nv_mov_b32 v{vO+16+j}, 0")
    E(f"""
    s_mov_b32 s{sKV}, s{sKVb}
    s_mov_b32 s{sKV+1}, s{sKVb+1}
    s_mov_b32 s{sCnt}, 64
    L_safe2:
    """)
    E(kload(0, 0) + vload(0, 0))
    E(f"""
    s_add_u32 s{sKV}, s{sKV}, 2048
    s_addc_u32 s{sKV+1}, s{sKV+1}, 0
    s_waitcnt vmcnt(0)
    v_mfma_f32_32x32x16_bf16 {vr(SA,16)}, {vr(vKV,4)}, {vr(vQ,4)}, {vr(vC,16)}
    v_mfma_f32_32x32x16_bf16 {vr(SB,16)}, {vr(vKV,4)}, {vr(vQ+4,4)}, {vr(vC+16,16)}
    s_nop 15
    """)
    for j in range(32):
        E(f"v_exp_f32 v{SA+j}, v{SA+j}")
    E(f"""
    s_nop 1
    v_smfmac_f32_32x32x32_bf16 {vr(vO,16)}, {vr(vKV+4,4)}, {vr(SA,8)}, v{vIDX}
    v_smfmac_f32_32x32x32_bf16 {vr(vO,16)}, {vr(vKV+8,4)}, {vr(SA+8,8)}, v{vIDX}
    v_smfmac_f32_32x32x32_bf16 {vr(vO+16,16)}, {vr(vKV+4,4)}, {vr(SB,8)}, v{vIDX}
    v_smfmac_f32_32x32x32_bf16 {vr(vO+16,16)}, {vr(vKV+8,4)}, {vr(SB+8,8)}, v{vIDX}
    s_sub_u32 s{sCnt}, s{sCnt}, 1
    s_cmp_lg_u32 s{sCnt}, 0
    s_cbranch_scc1 L_safe2
    s_nop 15
    """)
    fin(O2, None, None, SA, vOA); fin(O3, None, None, SA + 4, vOB)
    E("s_waitcnt vmcnt(0)\ns_branch L_pub")

def helper_wave():
    sH, sC, sMH, sRT, sCB, sD = sT, sT + 1, sT + 2, sT + 3, sT + 4, sT + 5
    sLd, sDs = sT + 6, sT + 7
    t0 = sT + 8
    sLead, sWst, sPar = 92, 93, 94
    sAT = 100
    vGW = 156
    vGWA = 155
    vXF = 160
    vG, vGA0, vGA1 = 164, 165, 166
    vU = 168
    vKW = 128
    vNb, vPad, vF4, vF4P, vRdy, vF1, vF1P = range(141, 148)
    vTA, vTS = 148, 152
    sUW = sT + 13; sOut = sT + 12
    assert NS == 3
    vPar = 4
    C("""==== helper waves: wave h = (channel c = h>>1, mode half = h&1); SSM branch, gate, output projection ====""")
    E(f"""
    L_helper:
    s_lshr_b32 s{sC}, s{sH}, 1
    s_add_u32 s{sD}, s{sCH}, s{sC}
    s_and_b32 s{sCB if OPT["fm"] else sRT}, s{sHP}, 3
    s_lshr_b32 s{sRT if OPT["fm"] else sCB}, s{sHP}, 2
    v_lshrrev_b32 v3, 5, v1
    v_lshlrev_b32 v3, 4, v3
    s_lshl_b32 s{t0+2}, s{sROT}, 2
    s_add_u32 s{t0+2}, s{t0+2}, s{sH}
    s_lshl_b32 s{t0+2}, s{t0+2}, 5
    s_add_u32 s{t0+2}, s{t0+2}, {GW}
    v_add_u32 v{vGWA}, s{t0+2}, v3
    v_mov_b32 v12, 0
    v_mov_b32 v13, 0
    v_mov_b32 v14, 0
    v_mov_b32 v15, 0
    s_cmp_lt_u32 s2, 16
    s_cselect_b32 s{sLead}, s{sW}, 0
    """)
    E(f"s_add_u32 s{pFL}, s{pWs}, {WS_FL}\ns_addc_u32 s{pFL+1}, s{pWs+1}, 0")
    stamp("h")
    E(f"""
    s_mul_i32 s{t0}, s{sC}, {URS}
    s_add_u32 s{t0}, s{t0}, {UR+4096}
    v_lshl_add_u32 v10, v1, 4, s{t0}
    v_and_b32 v11, 1, v1
    v_lshlrev_b32 v11, 4, v11
    v_cmp_gt_u32 vcc, 30, v1
    v_add_u32 v11, {CNT}, v11
    v_mov_b32 v2, 0x3f803f80
    v_cndmask_b32 v10, v11, v10, vcc
    ds_write_b128 v10, v[12:15]
    v_and_b32 v11, 3, v1
    v_lshlrev_b32 v11, 2, v11
    ds_write_b32 v11, v2 offset:{CNT+32}
    """)
    vWA, vRA = 16, 17
    if "prio1" in OPT: E(f"s_setprio {OPT['prio1']}")
    E(f"""
    s_mul_i32 s{t0}, s{sRT}, {WPART}
    s_add_u32 s{t0}, s{t0}, {RING}
    v_and_b32 v10, 31, v1
    v_lshl_add_u32 v10, v10, 7, s{t0}
    v_bfe_u32 v11, v1, 1, 3
    v_lshrrev_b32 v3, 5, v1
    v_xor_b32 v11, v11, v3
    s_lshl_b32 s{t0}, s{sH}, 1
    v_xor_b32 v11, s{t0}, v11
    v_lshl_add_u32 v{vGA0}, v11, 4, v10
    v_mov_b32 v{vG}, 0
    s_lshr_b32 s{sUW}, s{sHP}, 1
    s_sub_u32 s{sUW}, s{sUW}, s{sROT}
    s_and_b32 s{sUW}, s{sUW}, 7
    s_mul_i32 s{t0}, s{sUW}, 11
    s_lshr_b32 s{t0}, s{t0}, 5
    s_mul_i32 s{t0}, s{t0}, 3
    s_sub_u32 s{t0}, s{sUW}, s{t0}
    s_mul_i32 s{t0}, s{t0}, {SLOT}
    s_mul_i32 s{t0+1}, s{sH}, {WPART}
    s_add_u32 s{t0}, s{t0}, s{t0+1}
    s_add_u32 s{t0}, s{t0}, {RING}
    v_and_b32 v10, 3, v1
    v_bfe_u32 v11, v1, 2, 2
    v_lshlrev_b32 v10, 3, v10
    v_sub_u32 v10, v10, v11
    v_add_u32 v10, 7, v10
    v_bfe_u32 v11, v10, 1, 3
    v_xor_b32 v11, v11, v3
    s_and_b32 s{t0+1}, s{sHP}, 1
    s_lshl_b32 s{t0+1}, s{t0+1}, 2
    v_xor_b32 v11, s{t0+1}, v11
    v_lshlrev_b32 v11, 4, v11
    v_lshl_add_u32 v11, v10, 7, v11
    v_bfe_u32 v10, v1, 4, 1
    v_lshl_add_u32 v11, v10, 3, v11
    v_add_u32 v{vTA}, s{t0}, v11
    v_xor_b32 v{vTA+1}, 32, v{vTA}
    v_subrev_u32 v{vTA+2}, 512, v{vTA}
    v_subrev_u32 v{vTA+3}, 512, v{vTA+1}
    s_mul_i32 s{t0}, s{sH}, {KGS}
    s_add_u32 s{t0}, s{t0}, {KG}
    s_mov_b32 m0, s{t0}
    v_and_b32 v10, 31, v1
    v_mul_u32_u24 v10, 272, v10
    v_lshl_add_u32 v10, v3, 4, v10
    v_add_u32 v{vRA}, s{t0}, v10
    """)
    K = []
    def k(s, c=None):
        if isinstance(s, list): s = "\n".join(s)
        for x in s.split("\n"):
            x = x.strip()
            if not x: continue
            cc = c if c is not None else (8 if any(t in x for t in ("v_exp", "v_sin", "v_cos", "v_rcp", "ds_")) else 4)
            K.append((cc, x))
    va, vb, vt = 220, 221, 222
    log2e = math.log2(math.e)
    c_hi = struct.unpack("<f", struct.pack("<f", log2e))[0]
    c_lo = log2e - c_hi
    k(f"""
    s_waitcnt lgkmcnt(0)
    s_lshl_b32 s{t0}, s{sC}, 4
    s_lshr_b32 s{sLd}, s{sLd}, s{t0}
    s_lshl_b32 s{sLd}, s{sLd}, 16
    s_lshr_b32 s{sDs}, s{sDs}, s{t0}
    s_lshl_b32 s{sDs}, s{sDs}, 16
    s_mov_b32 s{t0}, {fbits(c_hi)}
    v_mov_b32 v{vt}, s{sLd}
    v_mul_f32 v{vt+1}, s{t0}, v{vt}
    v_fma_f32 v{vt+2}, v{vt}, s{t0}, -v{vt+1}
    v_fmac_f32 v{vt+2}, {fbits(c_lo)}, v{vt}
    v_exp_f32 v{vt+1}, v{vt+1}
    v_mul_f32 v{vt+2}, {fbits(math.log(2.0))}, v{vt+2}
    v_fma_f32 v{vt+1}, v{vt+1}, v{vt+2}, v{vt+1}
    v_cvt_pk_bf16_f32 v{vt+1}, v{vt+1}, v{vt+1}
    v_lshlrev_b32 v{vt}, 16, v{vt+1}
    """)
    KPRE = [x for _, x in K]; K.clear()
    k("s_waitcnt vmcnt(0)")
    for j in range(6):
        k(f"v_lshlrev_b32 v{vPar+j}, 16, v{vPar+j}")
    k(f"""
    v_mul_f32 v{va}, v{vt}, v{vPar}
    v_mul_f32 v{vb}, v{vt}, v{vPar+1}
    v_mul_f32 v{vPar+2}, v{vt}, v{vPar+2}
    v_mul_f32 v{vPar+3}, v{vt}, v{vPar+3}
    v_mul_f32 v{va}, {fbits(c_hi)}, v{va}
    v_mul_f32 v{vb}, 0.15915494, v{vb}
    """)
    def cmul(z, x, w):
        if OPT["pk"]:
            return [f"v_pk_mul_f32 {vr(z,2)}, {vr(x,2)}, {vr(w,2)} op_sel_hi:[0,1]",
                    f"v_pk_fma_f32 {vr(z,2)}, {vr(x,2)}, {vr(w,2)}, {vr(z,2)} op_sel:[1,1,0] op_sel_hi:[1,0,1] neg_lo:[1,0,0]"]
        return [f"v_mul_f32 v{z}, v{x}, v{w}\nv_mul_f32 v{z+1}, v{x}, v{w+1}",
                f"v_fma_f32 v{z}, -v{x+1}, v{w+1}, v{z}\nv_fmac_f32 v{z+1}, v{x+1}, v{w}"]
    def cmuls(lst):
        cm = [cmul(*a) for a in lst]
        k([c[0] for c in cm]); k([c[1] for c in cm])
    def direct(z, x):
        k(f"""
        v_mul_f32 v{vt+2}, {fbits(x)}, v{vb}
        v_mul_f32 v{vt+1}, {fbits(x)}, v{va}
        v_fract_f32 v{vt+2}, v{vt+2}
        v_exp_f32 v{vt+1}, v{vt+1}
        v_cos_f32 v{z}, v{vt+2}
        v_sin_f32 v{z+1}, v{vt+2}
        s_nop 0
        v_mul_f32 v{z}, v{z}, v{vt+1}
        v_mul_f32 v{z+1}, v{z+1}, v{vt+1}
        """)
    E1, E32, E256 = 226, 228, 230
    vE = 232
    vPk = 64
    npk = [0]
    DW = {False: [], True: []}
    def puts(lst, neg):
        for z, rows in lst:
            p = vPk + npk[0]; npk[0] += 1
            k(f"v_cvt_pk_bf16_f32 v{p}, v{z}, {'-' if neg else ''}v{z+1}")
            DW[neg] += [f"ds_write_addtid_b32 v{p} offset:{272*r}" for r in rows]
        if OPT["kds"] > neg: k(DW[neg]); DW[neg] = []
    def e(j): return vE + 2 * (j % 8)
    direct(e(1), 8.0); direct(E32, 32.0)
    k(f"v_mov_b32 v{e(0)}, 1.0\nv_mov_b32 v{e(0)+1}, 0\nv_mov_b32 v{e(4)}, v{E32}\nv_mov_b32 v{e(4)+1}, v{E32+1}")
    cmuls([(e(2), e(1), e(1)), (e(5), e(1), E32)])
    cmuls([(e(3), e(2), e(1)), (e(6), e(2), E32)])
    cmuls([(e(7), e(3), E32)])
    puts([(e(j), [j]) for j in range(4)], False)
    for j0 in range(4, 32, 4):
        if j0 + 4 < 32: cmuls([(e(j + 4), e(j), E32) for j in range(j0, j0 + 4)])
        puts([(e(j), [j]) for j in range(j0, j0 + 4)], False)
    vEF, vGF, vD = (64 if OPT["kds"] else 192), 224, 176
    if OPT["kds"]: k([f"ds_read_b128 {vr(vEF+4*s,4)}, v{vRA} offset:{32*s}" for s in range(8)])
    direct(E1, 1.0); direct(E256, 256.0)
    def row(r, h): return 8 * (r >> 2) + 4 * h + (r & 3)
    vGv = 192
    g = {x: vGv + 2 * x for x in range(9)}
    E2 = e(0)
    cmuls([(g[0], vPar + 4, vPar + 2), (E2, E1, E1)])
    cmuls([(g[1], g[0], E1), (g[2], g[0], E2)])
    cmuls([(g[3], g[1], E2), (g[4], g[2], E2)])
    puts([(g[x], [row(x, 0)]) for x in range(4)], True)
    cmuls([(g[5], g[3], E2), (g[6], g[4], E2)])
    cmuls([(g[7], g[5], E2), (g[8], g[6], E2)])
    puts([(g[x], [row(x, 0)]) for x in range(4, 8)], True)
    A = {o: vGv + 18 + 2 * i for i, o in enumerate((0, 2, 4, 6, 8))}
    cmuls([(A[o], g[o], E256) for o in (0, 2, 4, 6, 8)])
    puts([(A[o], [row(r, 1) for r in rs]) for o, rs in ((0, (0, 1)), (2, (2,)), (4, (3, 4, 5)), (6, (6,)), (8, (7,)))], True)
    src, dst = A, g
    for os_, r0, h in (((0, 4, 8), 8, 0), ((0, 4, 8), 8, 1), ((0, 8), 11, 0), ((0, 8), 11, 1), ((0, 8), 13, 0), ((0, 8), 13, 1)):
        cmuls([(dst[o], src[o], E256) for o in os_])
        puts([(dst[o], [row(r0 + i, h)]) for i, o in enumerate(os_)], True)
        src, dst = dst, src
    if OPT["kds"] == 2: k([f"ds_read_b128 {vr(vGF+4*s,4)}, v{vRA} offset:{32*s}" for s in range(8)])
    def D1():
        if not OPT["kds"]: E(DW[False] + [f"ds_read_b128 {vr(vEF+4*s,4)}, v{vRA} offset:{32*s}" for s in range(8)])
    def D2():
        if OPT["kds"] < 2: E(DW[True] + [f"ds_read_b128 {vr(vGF+4*s,4)}, v{vRA} offset:{32*s}" for s in range(8)])
    (vCP, vAA, vBA, vUW, vCW, vCR, vAT, vF3, vWoG, vWoL, vF3P, vAL, vGPw, vGPr, vWoP, vUL, vClO, vOne, vCA, vTm, vomg, vg, vOut, vOL) = range(24, 48)
    vA = 48; vAcc = 96; vF2 = 3; vON = 2; vF2v = 23; vATW = 166; vWoL2 = vClO; sWs2 = 10; vXR, vSA, vSB, vSV = 124, 125, 126, 127
    LQH = {0: 2, 1: 0, 2: 1}[OPT["xm"]]
    LOH = [{0: 2, 1: 1, 2: 1}, {0: 3, 1: 2, 2: 3}][OPT["fm"]][OPT["xm"]]
    ADDR = f"""
    v_mov_b32 v{vCA}, {CNT}
    s_lshl_b32 s{t0}, s{sC}, 2
    s_add_u32 s{t0}, s{t0}, {CNT+4}
    v_mov_b32 v{vCP}, s{t0}
    v_mov_b32 v{vOne}, 1
    v_lshlrev_b32 v23, 4, v1
    s_lshl_b32 s{t0}, s{sH}, 10
    s_sub_u32 s{t0}, {UR+4080-512}, s{t0}
    v_lshrrev_b32 v18, 1, v1
    v_lshlrev_b32 v19, 4, v18
    v_sub_u32 v19, s{t0}, v19
    v_and_b32 v20, 1, v1
    v_mul_u32_u24 v21, {URS}, v20
    v_add_u32 v{vUW}, v19, v21
    s_lshr_b32 s{t0}, s{sCH}, 2
    s_lshl_b32 s{t0}, s{t0}, 14
    s_lshl_b32 s{t0+1}, s{sH}, 12
    s_add_u32 s{t0}, s{t0}, s{t0+1}
    s_and_b32 s{t0+1}, s{sRB}, 1
    s_lshl_b32 s{t0+1}, s{t0+1}, 5
    s_add_u32 s{t0}, s{t0}, s{t0+1}
    s_add_u32 s{t0}, s{t0}, {WS_UT}
    v_lshl_add_u32 v18, v18, 6, s{t0}
    v_lshl_add_u32 v{vUL}, v20, 4, v18
    v_and_b32 v18, 15, v1
    v_add_u32 v19, 1, v18
    v_and_b32 v20, 3, v19
    v_mul_u32_u24 v20, {KCP}, v20
    v_lshrrev_b32 v19, 2, v19
    v_lshl_add_u32 v20, v19, 3, v20
    v_lshrrev_b32 v21, 4, v1
    v_lshlrev_b32 v22, 4, v21
    s_mul_i32 s{t0}, s{sC}, {2*KGS}
    s_lshl_b32 s{t0+1}, s{sMH}, 8
    s_add_u32 s{t0}, s{t0}, s{t0+1}
    s_add_u32 s{t0}, s{t0}, {KG}
    v_add3_u32 v{vAA}, v20, v22, s{t0}
    s_mul_i32 s{t0}, s{sC}, {URS}
    s_add_u32 s{t0}, s{t0}, s{t0+1}
    s_add_u32 s{t0}, s{t0}, {UR+4064-3584}
    v_lshlrev_b32 v19, 5, v18
    v_sub_u32 v22, v22, v19
    v_add_u32 v{vBA}, s{t0}, v22
    s_lshl_b32 s{t0}, s{sH}, 12
    s_add_u32 s{t0}, s{t0}, {CRED}
    v_add_u32 v{vCW}, s{t0}, v23
    s_xor_b32 s{t0}, s{sH}, 1
    s_lshl_b32 s{t0}, s{t0}, 12
    s_add_u32 s{t0}, s{t0}, {CRED}
    v_add_u32 v{vCR}, s{t0}, v23
    v_lshl_add_u32 v19, v18, 5, s{t0}
    v_lshl_add_u32 v{vATW}, v21, 3, v19
    v_add_u32 v{vOL}, {OFL}, v23
    {f"v_lshrrev_b32 v19, 2, v1" if OPT["atr"] else ""}
    {f"v_lshlrev_b32 v19, 15, v19" if OPT["atr"] else ""}
    {f"v_and_b32 v20, 48, v23" if OPT["atr"] else ""}
    {f"v_add_u32 v{vAT}, v19, v20" if OPT["atr"] else ""}
    s_lshl_b32 s{t0}, s{sMH}, 20
    s_lshl_b32 s{t0+1}, s{sD}, 6
    s_add_u32 s{t0}, s{t0}, s{t0+1}
    s_add_u32 s{t0}, s{t0}, {WS_AT}
    s_add_u32 s{sAT}, s{pWs}, s{t0}
    s_addc_u32 s{sAT+1}, s{pWs+1}, 0
    s_lshl4_add_u32 s{t0}, s{sMH}, s{sHP}
    s_add_u32 s{t0}, s{t0}, {F3}
    s_lshl_b32 s{t0}, s{t0}, {FSH}
    v_mov_b32 v{vF3}, s{t0}
    s_mov_b32 s{SRDW}, s{pWo}
    s_mov_b32 s{SRDW+1}, s{pWo+1}
    s_mov_b32 s{SRDW+2}, {512*1024}
    s_mov_b32 s{SRDW+3}, 0x00020000
    s_lshl_b32 s{t0}, s{sCB}, 2
    s_add_u32 s{t0}, s{t0}, s{sH}
    s_lshl_b32 s{t0+1}, s{t0}, 6
    v_lshrrev_b32 v18, 2, v1
    v_lshl_add_u32 v18, v18, 10, s{t0+1}
    v_and_b32 v19, 3, v1
    v_lshl_add_u32 v{vWoG}, v19, 4, v18
    s_mul_i32 s{sWst}, s{sH}, {WSL*1024}
    s_add_u32 s{sWst}, s{sWst}, {WST}
    v_lshrrev_b32 v22, 5, v1
    v_lshlrev_b32 v20, 2, v22
    v_bfe_u32 v21, v1, 2, 2
    v_add_u32 v20, v20, v21
    v_lshl_add_u32 v20, v20, 6, s{sWst}
    v_lshl_add_u32 v20, v19, 3, v20
    v_bfe_u32 v21, v1, 4, 1
    v_lshl_add_u32 v{vWoL}, v21, 5, v20
    s_lshr_b32 s{t0+1}, s{sRB}, 3
    s_lshl4_add_u32 s{t0+1}, s{t0+1}, s{t0}
    s_add_u32 s{t0+1}, s{t0+1}, {F3}
    s_lshl_b32 s{t0+1}, s{t0+1}, {FSH}
    v_mov_b32 v{vF3P}, s{t0+1}
    s_lshl_b32 s{t0}, s{t0}, 5
    v_and_b32 v18, 31, v1
    s_lshl_b32 s{t0+1}, s{sRB}, 2
    s_add_u32 s{t0+1}, s{t0+1}, s{sRT}
    s_lshl_b32 s{t0+2}, s{t0+1}, 15
    s_lshl_b32 s{t0+3}, s{t0}, 6
    s_add_u32 s{t0+3}, s{t0+3}, s{t0+2}
    s_add_u32 s{t0+3}, s{t0+3}, {WS_AT}
    v_lshlrev_b32 v20, 8, v22
    v_lshl_add_u32 v20, v18, 1, v20
    v_add_u32 v{vAL}, s{t0+3}, v20
    s_lshl_b32 s{t0}, s{t0}, 1
    s_add_u32 s{sOut}, s{t0}, s{t0+2}
    """.split("\n")
    ADDR += f"""
    s_lshl_b32 s{t0}, s{sRB}, 2
    s_add_u32 s{t0}, s{t0}, s{sH}
    s_lshl_b32 s{t0}, s{t0}, 8
    s_lshl_b32 s{t0+1}, s{sHP}, 17
    s_add_u32 s{t0}, s{t0}, s{t0+1}
    s_add_u32 s{t0}, s{t0}, {WS_UT}
    v_and_b32 v18, 15, v1
    v_lshl_add_u32 v18, v18, 4, s{t0}
    v_lshrrev_b32 v19, 4, v1
    v_lshl_add_u32 v{vTS}, v19, 14, v18
    v_add_u32 v{vTS+1}, 0x10000, v{vTS}
    v_and_b32 v18, 15, v1
    v_lshlrev_b32 v{vRdy}, 2, v18
    s_lshl_b32 s{t0}, s{sHP}, 4
    v_add_u32 v19, s{t0}, v18
    v_lshlrev_b32 v{vF1P}, {FSH}, v19
    s_add_u32 s{t0}, s{t0}, s{sRB}
    s_lshr_b32 s{t0+1}, s{t0}, 2
    s_add_u32 s{t0+1}, s{t0+1}, {F4}
    s_lshl_b32 s{t0+1}, s{t0+1}, {FSH}
    v_mov_b32 v{vF4}, s{t0+1}
    s_lshl2_add_u32 s{t0+1}, s{sHP}, s{sH}
    s_add_u32 s{t0+1}, s{t0+1}, {F4}
    s_lshl_b32 s{t0+1}, s{t0+1}, {FSH}
    v_mov_b32 v{vF4P}, s{t0+1}
    s_lshl_b32 s{t0}, s{t0}, {FSH}
    v_mov_b32 v{vF1}, s{t0}
    v_and_b32 v18, 31, v1
    v_lshlrev_b32 v18, 5, v18
    v_lshrrev_b32 v19, 5, v1
    v_lshl_add_u32 v19, v19, 2, v18
    s_lshl_b32 s{t0}, s{sH}, 3
    s_add_u32 s{t0}, s{t0}, {GP}
    v_add_u32 v{vGPw}, s{t0}, v19
    v_add_u32 v{vGPr}, {GP}, v18
    s_lshr_b32 s{t0}, s2, 3
    s_lshl_b32 s{t0}, s{t0}, 2
    s_add_u32 s{t0}, s{t0}, s{sH}
    s_lshl_b32 s{t0}, s{t0}, 12
    s_lshr_b32 s{t0+1}, s{sCB}, {LOH-1}
    s_lshl_b32 s{t0+1}, s{t0+1}, {7+LOH}
    s_add_u32 s{t0}, s{t0}, s{t0+1}
    v_bfe_u32 v18, v1, {LOH}, 2
    v_lshl_add_u32 v18, v18, 10, s{t0}
    v_and_b32 v19, {(1<<LOH)-1}, v1
    v_lshl_add_u32 v{vWoP}, v19, 7, v18
    """.split("\n") + [f"v_mov_b32 v{vA+j}, 0" for j in range(16)]
    ADDR += f"""
    s_mul_i32 s{t0}, s{sC}, {2*KGS}
    v_lshrrev_b32 v18, 1, v1
    v_mul_u32_u24 v18, {KCP}, v18
    v_and_b32 v19, 1, v1
    v_cmp_eq_u32 {sr(sPar,2)}, 1, v19
    v_lshlrev_b32 v19, 4, v19
    v_add3_u32 v{vPad}, v18, v19, s{t0}
    s_lshl_b32 s{t0+1}, s{sMH}, 10
    s_add_u32 s{t0}, s{t0}, s{t0+1}
    s_add_u32 s{t0}, s{t0}, {KG+32}
    v_lshl_add_u32 v{vKW}, v1, 4, s{t0}
    s_lshl_b32 s{t0}, s{sH}, 12
    s_add_u32 s{t0}, s{t0}, {CRED+2048}
    v_lshl_add_u32 v{vNb}, v1, 3, s{t0}
    """.split("\n") + [f"v_add_u32 v{vKW+3*c+u}, {c*KCP+u*1024}, v{vKW}" for c in range(4) for u in range(3) if c or u]
    if OPT["wp"]:
        ADDR += f"""
        s_lshl1_add_u32 s{t0}, s{sCB}, s{sC}
        s_lshl_b32 s{t0}, s{t0}, 7
        s_lshl_b32 s{t0+1}, s{sMH}, 13
        s_add_u32 s{t0}, s{t0}, s{t0+1}
        v_lshrrev_b32 v18, 3, v1
        v_lshl_add_u32 v18, v18, 10, s{t0}
        v_lshrrev_b32 v19, 2, v1
        v_and_b32 v19, 4, v19
        v_xor_b32 v19, v19, v1
        v_and_b32 v19, 7, v19
        v_lshl_add_u32 v{vWoG}, v19, 4, v18
        v_lshrrev_b32 v18, 5, v1
        v_bfe_u32 v19, v1, 2, 2
        v_lshl_add_u32 v18, v18, 2, v19
        v_lshlrev_b32 v18, 7, v18
        v_bfe_u32 v19, v1, 3, 1
        v_xor_b32 v19, s{sMH}, v19
        v_lshl_add_u32 v18, v19, 6, v18
        v_bfe_u32 v19, v1, 4, 1
        v_lshl_add_u32 v18, v19, 5, v18
        v_and_b32 v19, 3, v1
        v_lshl_add_u32 v18, v19, 3, v18
        s_mul_i32 s{sWs2}, s{sC}, {2*KGS}
        v_add_u32 v{vWoL2}, s{sWs2}, v18
        s_lshl_b32 s{sWst}, s{sC}, 14
        s_add_u32 s{sWst}, s{sWst}, {WST}
        v_add_u32 v{vWoL}, s{sWst}, v18
        s_lshl_b32 s{t0}, s{sMH}, 10
        s_add_u32 s{sWst}, s{sWst}, s{t0}
        s_add_u32 s{sWs2}, s{sWs2}, s{t0}
        """.split("\n")
    assert KG == 0
    ADDR = [x.strip() for x in ADDR if x.strip()]
    def GATEF():
        E("s_waitcnt lgkmcnt(0)")
        for j in range(4):
            E(f"v_dot2_f32_bf16 v{vG}, v{vXF+j}, v{vGW+j}, v{vG}")
        E(f"s_nop 2\nds_write_b32 v{vGPw}, v{vG}")
    def SIG():
        E(f"""
        ds_read_b128 v[4:7], v{vGPr}
        ds_read_b128 v[8:11], v{vGPr} offset:16
        s_waitcnt lgkmcnt(0)
        v_add_f32 v4, v4, v5
        v_add_f32 v6, v6, v7
        v_add_f32 v8, v8, v9
        v_add_f32 v10, v10, v11
        v_add_f32 v4, v4, v6
        v_add_f32 v8, v8, v10
        v_add_f32 v4, v4, v8
        v_mul_f32 v4, {fbits(-log2e)}, v4
        v_exp_f32 v4, v4
        s_nop 0
        v_add_f32 v4, 1.0, v4
        v_rcp_f32 v{vg}, v4
        s_nop 0
        v_sub_f32 v{vomg}, 1.0, v{vg}
        """)
    def KD():
        E("s_setprio 0\ns_waitcnt lgkmcnt(0)")
        for s in range(8):
            E(f"v_mfma_f32_32x32x16_bf16 {vr(vD,16)}, {vr(vGF+4*s,4)}, {vr(vEF+4*s,4)}, {'0' if s == 0 else vr(vD,16)}")
        E(f"s_setprio {OPT['prio']}")
        l1 = newlab("k1"); l2 = newlab("k2")
        R = 64
        def xch(send, keep, n):
            E(f"ds_write_b128 v{vCW}, {vr(send,4)}\nds_write_b128 v{vCW}, {vr(send+4,4)} offset:1024")
            lds_arrive(vCP, vOne)
            lds_wait(vCP, vTm, 2)
            E(f"ds_read_b128 {vr(R,4)}, v{vCR}\nds_read_b128 {vr(R+4,4)}, v{vCR} offset:1024\ns_waitcnt lgkmcnt(0)")
            for j in range(n): E(f"v_add_f32 v{R+j}, v{R+j}, v{keep+j}")
        def w2(c, u, r):
            E(f"ds_write2_b32 v{vKW+3*c+u}, v{r[0]}, v{r[1]} offset0:0 offset1:1\nds_write2_b32 v{vKW+3*c+u}, v{r[2]}, v{r[3]} offset0:2 offset1:3")
        E(f"s_nop 8\ns_cmp_eq_u32 s{sMH}, 0\ns_cbranch_scc0 {l1}")
        xch(vD + 8, vD, 8)
        e, o = 72, 80
        E(f"""
        s_mov_b64 exec, 0xff
        ds_write_b128 v{vPad}, v[12:15]
        s_mov_b64 exec, 1
        v_add_f32 v{R}, s{sDs}, v{R}
        s_mov_b64 exec, -1
        """)
        for j in range(4): E(f"v_cvt_pk_bf16_f32 v{e+j}, v{R+2*j}, v{R+2*j+1}")
        E(f"""
        v_cvt_pk_bf16_f32 v{o+6}, v{R+7}, v{R+7}
        ds_write2_b32 v{vNb}, v{o+6}, v{o+6} offset0:2 offset1:3
        ds_write_b64 v{vNb}, {vr(e,2)}
        ds_read_b64 {vr(e+4,2)}, v{vNb} offset:8
        ds_write_b128 v{vKW}, {vr(e,4)}
        s_waitcnt lgkmcnt(1)
        """)
        for j in range(5): E(f"v_alignbit_b32 v{o+j}, v{e+j+1}, v{e+j}, 16")
        E(f"ds_write_b128 v{vKW+3}, {vr(o,4)}")
        w2(2, 0, [e + 1, e + 2, e + 3, e + 4]); w2(3, 0, [o + 1, o + 2, o + 3, o + 4])
        E(f"""
        s_mov_b64 exec, 1
        v_lshlrev_b32 v{o+6}, 16, v{e}
        ds_write_b32 v{vPad}, v{o+6} offset:{28+KCP}
        ds_write_b32 v{vPad}, v{e} offset:{28+2*KCP}
        ds_write_b32 v{vPad}, v{o+6} offset:{24+3*KCP}
        ds_write_b32 v{vPad}, v{o} offset:{28+3*KCP}
        s_mov_b64 exec, -1
        s_branch {l2}
        {l1}:
        """)
        xch(vD, vD + 8, 7)
        aa, ab, bb, bc, cc = range(72, 77)
        for d, x, y in ((aa, 0, 0), (ab, 0, 1), (bb, 1, 1), (bc, 1, 2), (cc, 2, 2)):
            E(f"v_cvt_pk_bf16_f32 v{d}, v{R+x}, v{R+y}")
        for c, r in enumerate(([aa, ab, bb, cc], [aa, bb, bc, cc], [ab, bb, cc, cc], [bb, bc, cc, cc])): w2(c, 0, r)
        for u in (1, 2):
            a_, c_ = R + 1 + 2 * u, R + 2 + 2 * u
            sel, aa, as_, sc, cc = range(72 + 5 * u, 77 + 5 * u)
            E(f"v_cndmask_b32 v{sel}, v{a_}, v{c_}, {sr(sPar,2)}")
            for d, x, y in ((aa, a_, a_), (cc, c_, c_), (as_, a_, sel), (sc, sel, c_)):
                E(f"v_cvt_pk_bf16_f32 v{d}, v{x}, v{y}")
            for c, r in enumerate(([aa, aa, sc, cc], [aa, as_, cc, cc], [aa, sc, cc, cc], [as_, cc, cc, cc])): w2(c, u, r)
        E(f"{l2}:")
    def gate_glue(i):
        SQW = [int(c) for c in str(OPT["sq"])]
        if i - 1 not in SQW: E("s_waitcnt lgkmcnt(0)")
        if OPT.get("hst"): stamp("h")
        E("s_barrier")
        if i == 1:
            lq = newlab("nr")
            E(f"""
            s_cmp_eq_u32 s{sLead}, 7
            s_cbranch_scc0 {lq}
            s_mul_i32 s{sSPIN}, s2, 40
            v_add_lshl_u32 v10, v1, s{sSPIN}, {FSH}
            s_bfm_b64 exec, 40, 0
            global_store_dword v10, v12, {sr(pFL,2)} sc1
            s_mov_b64 exec, -1
            {f"s_lshl_b32 s{sSPIN}, s2, 6" if OPT["sep"] else ""}
            {f"s_add_u32 s{sSPIN}, s{sSPIN}, {4*F2}" if OPT["sep"] else ""}
            {f"v_add_lshl_u32 v10, v1, s{sSPIN}, {FSH-2}" if OPT["sep"] else ""}
            {f"global_store_dword v10, v12, {sr(pFL,2)} sc1" if OPT["sep"] else ""}
            {lq}:
            """)
        if i == OPT["rdyw"]:
            lq = newlab("nr")
            E(f"""
            s_cmp_eq_u32 s{sLead}, 7
            s_cbranch_scc0 {lq}
            s_lshl_b32 s{sSPIN}, s2, 2
            v_mov_b32 v10, s{sSPIN}
            v_mov_b32 v11, 1
            s_waitcnt vmcnt(0)
            """)
            put_flag(10, 11, pDbg)
            E(f"{lq}:")
        if i >= 1:
            for j in range(4):
                E(f"v_dot2_f32_bf16 v{vG}, v{vXF+j}, v{vGW+j}, v{vG}")
        slot = i % NS
        E(f"ds_read_b128 {vr(vXF,4)}, v{vGA0} offset:{slot*SLOT}")
        E(f"ds_read_b128 {vr(vGW,4)}, v{vGWA} offset:{128*i}")
        E(f"""
        s_cmp_eq_u32 s{sUW}, {i}
        s_cbranch_scc0 L_ut{i}
        ds_read_b64_tr_b16 {vr(vU,2)}, v{vTA}
        ds_read_b64_tr_b16 {vr(vU+2,2)}, v{vTA+3}
        ds_read_b64_tr_b16 {vr(vU+4,2)}, v{vTA+1}
        ds_read_b64_tr_b16 {vr(vU+6,2)}, v{vTA+2}
        L_ut{i}:
        """)
        if i in SQW:
            if i == SQW[0]: E(f"""
            s_lshr_b32 s{t0}, s2, 3
            s_lshl2_add_u32 s{t0}, s{t0}, s{sH}
            s_mul_i32 s{t0}, s{t0}, 12288
            s_lshr_b32 s{t0+1}, s{sHP}, 2
            s_lshl_b32 s{t0+1}, s{t0+1}, 8
            s_add_u32 s{t0}, s{t0}, s{t0+1}
            s_add_u32 s8, s{pW}, s{t0}
            s_addc_u32 s9, s{pW+1}, 0
            """)
            E("s_waitcnt lgkmcnt(0)")
            k_ = SQW.index(i); n_ = len(SQW)
            if OPT.get("sqm", 0) == 0:
                for j in range(16 * k_ // n_, 16 * (k_ + 1) // n_):
                    E(f"s_load_dword s{18+j%8}, s[8:9], {(j>>2)*3072+(j&3)*64}")
            else:
                for j in range(8 * k_ // n_, 8 * (k_ + 1) // n_):
                    E(f"s_load_dwordx2 s[{18+2*(j%4)}:{19+2*(j%4)}], s[8:9], {(j>>1)*3072+(j&1)*128+60}")
    C("""addresses of all later phases; dt = bf16(exp(log_dt))""")
    E(ADDR); E(KPRE)
    C("""---- S4 kernel: K(hi + 8j) = Re sum_n G_n(hi) E_n(8j), E(x) = exp(dt A x), G = C dt B E, lane = mode n.
The lag is rounded to bf16 as in the reference, so 27 values of hi cover all lags.
Between the ring barriers: gate dot products and the transposed piece of u; 16 workgroups clear the hand-off counters.""")
    tot = sum(c for c, _ in K); nw = OPT["kw"]
    segs = [[] for _ in range(8)]; acc = 0
    kp = tot * OPT["kp"] / 100; k0 = kp + tot * OPT["k0"] / 100
    for c, x in K:
        if acc < kp: E(x)
        elif acc < k0: segs[0].append(x)
        else: segs[1 + min(nw - 2, int((acc - k0) * (nw - 1) / (tot - k0)))].append(x)
        acc += c
    for i in range(8):
        gate_glue(i)
        if not OPT.get("nokg"): E(segs[i])
        if i == OPT["pg"]:
            C("instruction prefetch does not cross a 4-KB page: visit the first line of each later page once (no lane active, branches only)")
            E("s_mov_b64 exec, 0\ns_branch L_pg0\nL_pgdone:\ns_mov_b64 exec, -1")
    stamp("h")
    GATEF()
    E(f"global_load_dword v{vTm}, v{vRdy}, {sr(pDbg,2)} sc1")
    E(f"s_setprio {OPT['prioq']}\ns_waitcnt lgkmcnt(0)\ns_barrier")
    stamp("h")
    lq = newlab("nf"); lr = newlab("rdy")
    LATE = OPT["ackr"] <= 0
    assert LATE or OPT["q3"] < 8
    SIG()
    if OPT["q3"] < 4: E("s_barrier")
    if LATE: E("s_barrier")
    E(f"s_setprio {OPT['prio']}\ns_waitcnt vmcnt(0)\ns_barrier")
    stamp("h")
    C("""---- K / V hand-off: counters are used only after all 16 clears were announced in d_debug""")
    E(f"s_cmp_lg_u32 s{sH}, 1")
    E(f"""
    s_cbranch_scc1 {lq}
    v_cmp_ne_u32 vcc, 0, v{vTm}
    s_nop 1
    s_cmp_eq_u64 vcc, -1
    s_cbranch_scc1 {lr}
    """)
    poll_global(vRdy, pDbg, vTm)
    E(f"{lr}:")
    add_ctr(vF1P, vOne, 16)
    if OPT["e1"]:
        assert not OPT["hs"]
        if OPT["e1"] == 2: E("s_waitcnt vmcnt(0)")
        E(f"v_mov_b32 v4, 0\ns_mov_b64 exec, 1\nglobal_atomic_add v4, v{vF1}, v4, {sr(pFL,2)} sc0 sc1\ns_mov_b64 exec, -1")
    E(f"{lq}:")
    uts = f"""
    global_store_dwordx4 v{vTS}, {vr(vU,4)}, {sr(pWs,2)} sc1
    global_store_dwordx4 v{vTS+1}, {vr(vU+4,4)}, {sr(pWs,2)} sc1
    """
    if OPT["utp"] == 1: E(uts)
    if not LATE: E("s_barrier")
    lq = newlab("nf")
    E(f"s_cmp_lg_u32 s{sH}, 1\ns_cbranch_scc1 {lq}")
    poll_ctr(vF1, 4, lambda r: [f"s_cmp_eq_u32 s{r}, 16"], OPT["pd"], min(1, OPT["e1"]))
    E(f"{lq}:")
    E("s_setprio 0\ns_barrier")
    stamp("h")
    C("""---- publish u^T; transpose E / G through LDS, sum the modes on the matrix core, build 4 shifted copies of K (+ Dskip)""")
    if OPT["utp"] == 2:
        D1(); E("s_waitcnt lgkmcnt(0)"); E(uts); D2()
        E("s_waitcnt vmcnt(0)")
        add_ctr(vF4, vOne, 1)
        KD()
    elif OPT["utp"] == 3:
        E(f"global_load_dword v{vTm}, v{vRdy}, {sr(pDbg,2)} sc1\ns_waitcnt vmcnt(0)")
        E(uts); D1(); D2()
        E("s_waitcnt vmcnt(0)")
        add_ctr(vF4, vOne, 1)
        KD()
    else:
        if OPT["utp"] == 0: E(uts)
        E("s_waitcnt vmcnt(0)")
        add_ctr(vF4, vOne, 1)
        if OPT["utp"] == 1: E("s_waitcnt vmcnt(0)")
        D1(); D2(); KD()
    if OPT["wopf"] == 2:
        E(f"""
        s_lshr_b32 s{t0}, s2, 3
        s_lshl2_add_u32 s{t0}, s{t0}, s{sH}
        s_lshl_b32 s{t0}, s{t0}, 12
        s_add_u32 s8, s{pWo}, s{t0}
        s_addc_u32 s9, s{pWo+1}, 0
        """)
        for j in range(32):
            E(f"s_load_dwordx2 s[{18+2*(j%4)}:{19+2*(j%4)}], s[8:9], {j*128+60}")
    poll_ctr(vF4P, vTm, lambda r: [f"s_cmp_eq_u32 s{r}, 16"])
    E(f"""
    global_load_dwordx4 v[12:15], v{vUL}, {sr(pWs,2)} sc1
    global_load_dwordx4 v[16:19], v{vUL}, {sr(pWs,2)} offset:2048 sc1
    s_waitcnt vmcnt(0)
    ds_write_b128 v{vUW}, v[12:15] offset:512
    ds_write_b128 v{vUW}, v[16:19]
    """)
    lds_arrive(vCA, vOne)
    lds_wait(vCA, vTm, 4 + 4 * OPT["hs"])
    stamp("h")
    vY = 64
    vF = [96, 192]
    def creads(r):
        f = vF[r & 1]; o = []
        for gmm in range(8):
            o.append(f"ds_read_b64 {vr(f+4*gmm,2)}, v{vAA} offset:{512*gmm+64*r}")
            o.append(f"ds_read_b64 {vr(f+4*gmm+2,2)}, v{vAA} offset:{512*gmm+64*r+8}")
            o.append(f"ds_read_b128 {vr(f+32+4*gmm,4)}, v{vBA} offset:{3584-512*gmm+64*r}")
        return o
    C("""---- causal convolution as Toeplitz MFMAs: y[16a+b] += K[32c-15+b+k] u[16a-32c+15-k]""")
    E(creads(0))
    E(f"s_setprio {OPT.get('prio3', OPT['prio'])}")
    for r in range(4):
        f = vF[r & 1]
        nxt = creads(r + 1) if r < 3 else []
        if r == 2 and OPT["wopf"] == 1:
            E(f"s_bfm_b64 exec, {4<<LOH}, 0\nglobal_load_dword v20, v{vWoP}, {sr(pWo,2)}\ns_mov_b64 exec, -1")
        E("s_waitcnt lgkmcnt(0)")
        seen = set()
        for gmm in range(8):
            for dl in range(8 - gmm):
                tau = gmm + dl
                c = "0" if (r == 0 and tau not in seen) else vr(vY + 4 * tau, 4)
                seen.add(tau)
                if not OPT.get("noconv") or (OPT["noconv"] == 2 and gmm < 2): E(f"v_mfma_f32_16x16x32_bf16 {vr(vY+4*tau,4)}, {vr(f+4*gmm,4)}, {vr(f+32+4*dl,4)}, {c}")
                if nxt: E(nxt.pop(0))
    E(f"s_setprio {OPT['prio']}")
    l1 = newlab("c1"); l2 = newlab("c2")
    E(f"s_nop 5\ns_cmp_eq_u32 s{sMH}, 0\ns_cbranch_scc0 {l1}")
    def conv_fin(send, keep):
        for j in range(4):
            E(f"ds_write_b128 v{vCW}, {vr(send+4*j,4)} offset:{1024*j}")
        lds_arrive(vCP, vOne)
        lds_wait(vCP, vTm, 4)
        for j in range(4):
            E(f"ds_read_b128 {vr(96+4*j,4)}, v{vCR} offset:{1024*j}")
        E("s_waitcnt lgkmcnt(0)")
        for j in range(16):
            E(f"v_add_f32 v{96+j}, v{keep+j}, v{96+j}")
    conv_fin(vY + 16, vY)
    E(f"s_branch {l2}\n{l1}:")
    conv_fin(vY, vY + 16)
    E(f"{l2}:")
    for j in range(4):
        E(f"v_cvt_pk_bf16_f32 v{112+2*j}, v{96+4*j}, v{97+4*j}\nv_cvt_pk_bf16_f32 v{113+2*j}, v{98+4*j}, v{99+4*j}")
        if OPT["atr"]:
            E(f"ds_write_b64 v{vATW}, {vr(112+2*j,2)} offset:{512*j}")
            continue
        E(f"global_store_dwordx2 v{vAT}, {vr(112+2*j,2)}, {sr(sAT,2)} sc1")
        if j < 3: E(f"s_add_u32 s{sAT}, s{sAT}, {8*32768}\ns_addc_u32 s{sAT+1}, s{sAT+1}, 0")
    if OPT["atr"]:
        E(f"""
        ds_read_b128 v[96:99], v{vCR}
        ds_read_b128 v[100:103], v{vCR} offset:1024
        s_waitcnt lgkmcnt(1)
        global_store_dwordx4 v{vAT}, v[96:99], {sr(sAT,2)} sc1
        s_add_u32 s{sAT}, s{sAT}, {16*32768}
        s_addc_u32 s{sAT+1}, s{sAT+1}, 0
        s_waitcnt lgkmcnt(0)
        global_store_dwordx4 v{vAT}, v[100:103], {sr(sAT,2)} sc1
        """)
    E("s_waitcnt vmcnt(0)")
    add_ctr(vF3, vOne, 1)
    stamp("h")
    C("""---- W_o slice (32 columns per wave) into registers""")
    vWo = 128
    sO = t0 + 2
    WD = OPT["wod"]
    if OPT["wp"] and not OPT.get("nowo"):
        def wiss(b, j):
            if j >= WD: E(f"s_waitcnt vmcnt({WD-1})")
            E(f"s_add_u32 m0, s{sWs2 if b & 1 else sWst}, {2048*j}\ns_mov_b32 s{sO}, {(8*b+j)*16384}")
            E(f"buffer_load_dwordx4 v{vWoG}, {sr(SRDW,4)}, s{sO} offen lds")
        if OPT["lp"]: E("s_setprio 0")
        for j in range(8): wiss(0, j)
        for b in range(4):
            E("s_waitcnt vmcnt(0) lgkmcnt(0)")
            if OPT["lp"]: E(f"s_setprio {OPT['prio']}")
            lds_arrive(vCP, vOne); lds_wait(vCP, vTm, 6 + 2 * b)
            if OPT["lp"]: E("s_setprio 0")
            for j in range(8):
                if b < 3: wiss(b + 1, j)
                a = vWoL2 if b & 1 else vWoL
                E(f"ds_read_b64_tr_b16 {vr(vWo+4*(8*b+j),2)}, v{a} offset:{2048*j}")
                E(f"ds_read_b64_tr_b16 {vr(vWo+4*(8*b+j)+2,2)}, v{a} offset:{2048*j+1024}")
        if OPT["lp"]: E(f"s_setprio {OPT['prio']}")
    if OPT["lp"] and not OPT["wp"]: E("s_setprio 0")
    for hd in range(0 if OPT.get("nowo") or OPT["wp"] else 32 + WD):
        if hd < 32:
            if hd % 4 == 0: E(f"s_add_u32 m0, s{sWst}, {(hd%WSL)*1024}")
            E(f"s_mov_b32 s{sO}, {hd*16384-(hd%4)*1024}")
            E(f"buffer_load_dwordx4 v{vWoG}, {sr(SRDW,4)}, s{sO} offen offset:{(hd%4)*1024} lds")
        r = hd - WD
        if r >= 0:
            E(f"s_waitcnt vmcnt({min(WD, 31-r)}) lgkmcnt(8)")
            E(f"ds_read_b64_tr_b16 {vr(vWo+4*r,2)}, v{vWoL} offset:{1024*(r%WSL)}")
            E(f"ds_read_b64_tr_b16 {vr(vWo+4*r+2,2)}, v{vWoL} offset:{1024*(r%WSL)+512}")
    E("s_waitcnt lgkmcnt(0)")
    if OPT["lp"] and not OPT["wp"]: E(f"s_setprio {OPT['prio']}")
    stamp("h")
    if OPT["clo"] & 1:
        E(f"s_bfm_b64 exec, 32, 0\nglobal_store_dword v{vClO}, v{vOne}, {sr(pWs,2)} sc1\ns_mov_b64 exec, -1")
    if OPT["clo"] & 2:
        E(f"s_bfm_b64 exec, 32, 0\nglobal_store_dword v{vOut}, v{vOne}, {sr(pOut,2)} sc1\ns_mov_b64 exec, -1")
    C("""---- a = y + u Dskip for my 32 x 32 output tile""")
    poll_ctr(vF3P, vTm, lambda r: [f"s_cmp_eq_u32 s{r}, 32"])
    if OPT["lp"]: E("s_setprio 0")
    for r in range(16):
        if r >= OPT["ad"]: E(f"s_waitcnt vmcnt({OPT['ad']-1})")
        E(f"global_load_short_d16_hi v{vA+r}, v{vAL}, {sr(pWs,2)} offset:{(8*(r>>2)+(r&3))*64} sc1")
    if OPT["hop"]: E("s_mov_b64 exec, 0\ns_branch L_hop0\nL_hopdone:\ns_mov_b64 exec, -1")
    sTodo, sId = t0, t0 + 2
    E(f"s_mov_b32 s{sTodo}, 0x01010101\ns_mov_b32 s{sSPIN}, {OPT['spin']*8}\ns_waitcnt vmcnt(0) lgkmcnt(0)")
    stamp("h")
    lq = newlab("nf")
    if OPT["pw"]:
        E("s_setprio 0\ns_barrier")
    else:
        E(f"s_barrier\ns_cmp_lg_u32 s{sH}, 0\ns_barrier\ns_cbranch_scc1 {lq}")
        add_ctr(vF2, vF2v, 16)
        E(f"{lq}:\ns_setprio 0")
    stamp("h")
    for r in range(16):
        E(f"v_mul_f32 v{vA+r}, v{vg}, v{vA+r}")
    vTW, vTR, vOu2 = 4, 5, 6
    if OPT["otr"]: E(f"""
    s_mul_i32 s{sId}, s{sH}, 2560
    v_and_b32 v7, 31, v1
    v_mul_u32_u24 v7, 80, v7
    v_lshrrev_b32 v{vTW}, 5, v1
    v_lshlrev_b32 v{vTW}, 3, v{vTW}
    v_add3_u32 v{vTW}, v{vTW}, v7, s{sId}
    v_lshrrev_b32 v7, 2, v1
    v_lshl_add_u32 v{vOut}, v7, 10, s{sOut}
    v_mul_u32_u24 v7, 80, v7
    v_and_b32 v{vTR}, 3, v1
    v_lshlrev_b32 v{vTR}, 4, v{vTR}
    v_add_u32 v{vOut}, v{vOut}, v{vTR}
    v_add_u32 v{vOu2}, 0x4000, v{vOut}
    v_add3_u32 v{vTR}, v{vTR}, v7, s{sId}
    """)
    vB = 64; vAc = [96, 112, 8, 24]
    def ord_(j): return f"ds_read_b128 {vr(vB+4*j,4)}, v{vON} offset:{1024*j}"
    def pick(skip):
        return [f"v_readfirstlane_b32 s{sId}, v{vTm}", "s_nop 0", f"s_and_b32 s{sId}, s{sId}, s{sTodo}", f"s_cbranch_scc0 {skip}",
                f"s_ff1_i32_b32 s{sId}, s{sId}", f"v_lshl_add_u32 v{vON}, s{sId}, 10, v{vOL}"] + [ord_(j) for j in range(4)]
    E(hop())
    C("""---- output projection, one group of 8 heads at a time in arrival order, one accumulator per group""")
    E(f"""
    L_fwait:
    ds_read_b32 v{vTm}, v{vCA} offset:12
    s_sub_u32 s{sSPIN}, s{sSPIN}, 1
    s_cbranch_scc1 L_fend
    s_waitcnt lgkmcnt(0)
    """)
    E(pick("L_fwait"))
    E("L_fdisp:")
    E([ord_(j) for j in range(4, 8)])
    E(f"""
    ds_read_b32 v{vTm}, v{vCA} offset:12
    s_bitset0_b32 s{sTodo}, s{sId}
    s_cmp_eq_u32 s{sId}, 8
    s_cbranch_scc1 L_fb1
    s_cmp_eq_u32 s{sId}, 16
    s_cbranch_scc1 L_fb2
    s_cmp_eq_u32 s{sId}, 24
    s_cbranch_scc1 L_fb3
    """)
    for c in range(4):
        E(f"L_fb{c}:")
        for j in range(8):
            if j <= 4: E(f"s_waitcnt lgkmcnt({8-j if j < 4 else 0})")
            if j % OPT.get("fsk", 1) == 0: E(f"v_mfma_f32_32x32x16_bf16 {vr(vAc[c],16)}, {vr(vWo+4*(8*c+j),4)}, {vr(vB+4*j,4)}, {vr(vAc[c],16) if j else 0}")
            if j in (0, 5): E(hop())
            if j == 4:
                E(pick(f"L_fs{c}"))
                E(f"L_fs{c}:")
        E("s_cbranch_scc1 L_fdisp")
        if c < 3: E("s_branch L_fnext")
    E(f"""
    L_fnext:
    s_cmp_lg_u32 s{sTodo}, 0
    s_cbranch_scc1 L_fwait
    L_fend:
    """)
    stamp("h")
    E("s_nop 8")
    C("""---- out = g a + (1 - g) b""")
    assert vomg % 2 == 0
    fl = ["", "sc1", "nt", "sc0 sc1", "sc1 nt"][OPT["outsc"]]
    for hf in (0, 8):
        for x, y in ((0, 1), (2, 3), (0, 2)):
            for r in range(hf, hf + 8, 2):
                E(f"v_pk_add_f32 {vr(vAc[x]+r,2)}, {vr(vAc[x]+r,2)}, {vr(vAc[y]+r,2)}")
        for r in range(hf, hf + 8, 2):
            E(f"v_pk_fma_f32 {vr(vAcc+r,2)}, {vr(vAcc+r,2)}, {vr(vomg,2)}, {vr(vA+r,2)} op_sel_hi:[1,0,1]")
        p = vB + hf // 2
        if OPT["otr"]:
            for j in range(4):
                E(f"v_cvt_pk_bf16_f32 v{p+j}, v{vAcc+hf+2*j}, v{vAcc+hf+2*j+1}")
                if j & 1: E(f"ds_write_b64 v{vTW}, {vr(p+j-1,2)} offset:{4*hf+8*(j-1)}")
            continue
        for j in (0, 2, 1, 3):
            E(f"v_cvt_pk_bf16_f32 v{p+j}, v{vAcc+hf+2*j}, v{vAcc+hf+2*j+1}")
        E(f"v_permlane32_swap_b32 v{p}, v{p+2}")
        E(hop() or ["s_nop 0"])
        E(f"v_permlane32_swap_b32 v{p+1}, v{p+3}")
        E(f"global_store_dwordx4 v{vOut}, {vr(p,4)}, {sr(pOut,2)} offset:{4*hf} {fl}")
    if OPT["otr"]:
        E(f"""
        ds_read_b128 {vr(vB+8,4)}, v{vTR}
        ds_read_b128 {vr(vB+12,4)}, v{vTR} offset:1280
        s_waitcnt lgkmcnt(1)
        global_store_dwordx4 v{vOut}, {vr(vB+8,4)}, {sr(pOut,2)} {fl}
        s_waitcnt lgkmcnt(0)
        global_store_dwordx4 v{vOu2}, {vr(vB+12,4)}, {sr(pOut,2)} {fl}
        """)
    stamp("h")
    if STAMP:
        E("s_waitcnt vmcnt(0)"); stamp("h")
    stamp_flush("h"); spin_end("h")
    E("s_endpgm")

hdr = open(f"cdna_kernels/{NAME}.s.ref").read().split("; Override launch")[0]
prologue(); main_wave()
if OPT['lay']: helper_wave()
E("L_end:\ns_endpgm")
if 1 <= OPT["pg"] <= 6:
    import subprocess, os, tempfile
    KOFF = 0x300
    def addrs(lines):
        t = tempfile.mkdtemp()
        body = "\n".join(f"T_{i}:\n{x}" for i, x in enumerate(lines))
        need = "" if any(x.startswith("L_pg0:") for x in lines) else "L_pg0:\n"
        open(t + "/a.s", "w").write('.amdgcn_target "amdgcn-amd-amdhsa--gfx950"\n.text\n' + body + "\n" + need)
        subprocess.run(["clang", "-x", "assembler", "-target", "amdgcn-amd-amdhsa", "-mcpu=gfx950", "-c", t + "/a.s", "-o", t + "/a.o"], check=True)
        o = subprocess.run(["llvm-objdump", "-t", t + "/a.o"], capture_output=True, text=True).stdout
        return {int(l.split()[-1][2:]): int(l.split()[0], 16) + KOFF for l in o.split("\n") if l.split() and l.split()[-1].startswith("T_")}
    npg = 0; page = 0x1000
    while True:
        ad = addrs(L)
        idx = [i for i in range(len(L)) if ad[i] >= page and L[i].startswith("    ") and not L[i].strip().startswith(".")]
        if not idx: break
        i = idx[0]
        if L.index("L_safe:") < i < L.index("L_fwait:"):
            page += 0x1000; continue
        good = [j for j in idx if ad[j] < page + 60 and "mfma" in L[j-1]]
        if good: i = good[0]
        if npg: L[last] = f"    s_cbranch_execz L_pg{npg}"
        L[i:i] = [f"L_pg{npg}:", "    s_cbranch_execz L_pgdone"]
        last = i + 1; npg += 1; page += 0x1000
out = hdr + f"""; One persistent launch: 256 workgroups (one per CU) x 8 waves; hand-offs through d_ws with bounded waits.
; @launch grid=(256,1,1) block=(512,1,1) lds={LDS_BYTES}
.amdgcn_target "amdgcn-amd-amdhsa--gfx950"
.text
.globl {NAME}_kernel
{".p2align 12" if OPT["al"] else ""}
.p2align 8
.type {NAME}_kernel,@function
{NAME}_kernel:
""" + "\n".join(L) + f"""
.section .rodata,"a"
.p2align 6
.amdhsa_kernel {NAME}_kernel
  .amdhsa_next_free_vgpr 256
  .amdhsa_next_free_sgpr 102
  .amdhsa_accum_offset 256
  .amdhsa_group_segment_fixed_size 0
  .amdhsa_kernarg_size 128
  .amdhsa_user_sgpr_count 2
  .amdhsa_user_sgpr_kernarg_segment_ptr 1
  .amdhsa_system_sgpr_workgroup_id_x 1
.end_amdhsa_kernel
"""
open(sys.argv[1], "w").write(out)
```
